```python
import torch

def _softmax(x, axis=-1):
    return torch.softmax(x, dim=axis)
def _gelu(x):
    return torch.nn.functional.gelu(x, approximate="tanh")
def _silu(x):
    return torch.nn.functional.silu(x)
def _sigmoid(x):
    return torch.sigmoid(x)
def _layernorm(x, axis=-1, eps=1e-5):
    m = x.mean(dim=axis, keepdim=True)
    v = x.var(dim=axis, keepdim=True, unbiased=False)
    return (x - m) / torch.sqrt(v + eps)
def _scatter_add(tgt, idx, src, axis=0):
    return tgt.clone().index_add_(axis, idx, src)
def _segment_sum(src, seg, n):
    out = torch.zeros((n,) + src.shape[1:], dtype=src.dtype)
    return out.index_add_(0, seg, src)
def _pad(x, pw):
    flat = tuple(v for pair in reversed(pw) for v in pair)
    return torch.nn.functional.pad(x, flat)

kernel_name = 'gated_mix__mha_block__dense_activation_relu__prompt'

def setup_inputs():

    _w = (lambda a: (lambda t: t.to(torch.bfloat16) if t.is_floating_point() else t)(torch.as_tensor(a)))
    def _A_setup():
        B, S, D, H = 1, 2048, 640, 32
        return {
            "x": _w((lambda *s: torch.randn(*s, dtype=torch.bfloat16) * 0.05)(B, S, D)),
            "wqkv": _w((lambda *s: torch.randn(*s, dtype=torch.bfloat16) * 0.8)(D, 3 * D)),
            "wo": _w((lambda *s: torch.randn(*s, dtype=torch.bfloat16) * 0.2)(D, D)),
        }
    _A_in = _A_setup()

    def _B_setup():
        B, S, D, Dff = 1, 2048, 640, 1728
        return {
            "x": _w((lambda *s: torch.randn(*s, dtype=torch.bfloat16) * 0.05)(B, S, D)),
            "w1": _w((lambda *s: torch.randn(*s, dtype=torch.bfloat16) * 0.05)(D, Dff)),
            "w2": _w((lambda *s: torch.randn(*s, dtype=torch.bfloat16) * 0.05)(Dff, D)),
        }
    _B_in = _B_setup()

    return {
        "A_x": _A_in["x"],
        "A_wqkv": _A_in["wqkv"],
        "A_wo": _A_in["wo"],
        "B_x": _B_in["x"],
        "B_w1": _B_in["w1"],
        "B_w2": _B_in["w2"],
        "gate_w": _w((lambda *s: torch.randn(*s, dtype=torch.bfloat16) * 0.05)(640) * 16.0),
    }

def reference(A_x, A_wqkv, A_wo, B_x, B_w1, B_w2, gate_w):
    def _A_ref(x, wqkv, wo):
        B, S, D = x.shape
        H = 32
        Dh = D // H
        qkv = (lambda x, *d: x.permute(*d))((x @ wqkv).reshape(B, S, 3, H, Dh), 2, 0, 3, 1, 4)
        q, k, v = qkv[0], qkv[1], qkv[2]
        scores = torch.einsum("bhqd,bhkd->bhqk", q, k) * (Dh ** -0.5)
        p = _softmax(scores, axis=-1)
        o = torch.einsum("bhqk,bhkd->bhqd", p, v)
        return (lambda x, *d: x.permute(*d))(o, 0, 2, 1, 3).reshape(B, S, D) @ wo

    def _B_ref(x, w1, w2):
        h = torch.einsum("bsd,df->bsf", x, w1)
        zero = torch.zeros_like(h)
        h = torch.maximum(h, zero)
        return torch.einsum("bsf,fd->bsd", h, w2)

    x = A_x
    g = _sigmoid((x * gate_w).sum(-1, keepdims=True))
    a = _A_ref(x, A_wqkv, A_wo)
    b = _B_ref(x, B_w1, B_w2)
    return g * a + (1 - g) * b
```

```python
import struct, sys

OUT = "gated_mix__mha_block__dense_activation_relu__prompt.s"

WS_Q = 0
SZ_Q = 32 * 2048 * 48
WS_KV = 0x400000
HEAD_KV = 64 * 2880
SZ_KV = 32 * HEAD_KV
WS_H = 0xC00000
SZ_H = 2048 * 3456
WS_O = 0x1400000
SZ_O = 2048 * 1280
WS_G = 0x1800000
SZ_G = 2048 * 4

SZ_X = 2048 * 1280
SZ_WQKV = 640 * 3840
SZ_WO = 640 * 1280
SZ_W1 = 640 * 3456
SZ_W2 = 1728 * 1280
SZ_OUT = 2048 * 1280


def f32bits(x):
    return struct.unpack("<I", struct.pack("<f", x))[0]


C_SCALE = 1.4426950408889634 / (20 ** 0.5)
LOG2E = 1.4426950408889634


class Asm:
    def __init__(self):
        self.lines = []

    def __call__(self, s):
        self.lines.append("    " + s)

    def label(self, l):
        self.lines.append(l + ":")

    def c(self, s):
        self.lines.append("    ; " + s)

    def text(self):
        return "\n".join(self.lines) + "\n"


def vr(b, n=1):
    return f"v{b}" if n == 1 else f"v[{b}:{b + n - 1}]"


def sr(b, n=1):
    return f"s{b}" if n == 1 else f"s[{b}:{b + n - 1}]"


def srd(a, d, lo, hi, size):
    a(f"s_mov_b32 s{d}, s{lo}")
    a(f"s_and_b32 s{d + 1}, s{hi}, 0xffff")
    a(f"s_mov_b32 s{d + 2}, {size}")
    a(f"s_mov_b32 s{d + 3}, 0x00020000")


def srd_off(a, d, lo, hi, off, size):
    a(f"s_add_u32 s{d}, s{lo}, {off}")
    a(f"s_addc_u32 s{d + 1}, s{hi}, 0")
    a(f"s_and_b32 s{d + 1}, s{d + 1}, 0xffff")
    a(f"s_mov_b32 s{d + 2}, {size}")
    a(f"s_mov_b32 s{d + 3}, 0x00020000")


K1_STAGE = 45056
K1_LDS = 3 * K1_STAGE


def k1():
    a = Asm()
    a.label("k1_kernel")
    a("s_cmp_ge_u32 s2, 256")
    a("s_cbranch_scc1 K1_END")
    a("s_and_b32 s3, s2, 7")
    a("s_lshr_b32 s4, s2, 3")
    a("s_lshl_b32 s3, s3, 5")
    a("s_add_u32 s3, s3, s4")
    a("s_cmp_ge_u32 s3, 253")
    a("s_cbranch_scc1 K1_END")
    a("s_mul_i32 s25, s3, 373")
    a("s_lshr_b32 s25, s25, 12")
    a("s_mul_i32 s4, s25, 11")
    a("s_sub_u32 s24, s3, s4")
    a("s_load_dwordx2 s[4:5], s[0:1], 0")
    a("s_load_dwordx2 s[6:7], s[0:1], 8")
    a("s_load_dwordx2 s[8:9], s[0:1], 32")
    a("s_load_dwordx2 s[10:11], s[0:1], 72")
    a("v_and_b32 v1, 63, v0")
    a("v_lshrrev_b32 v2, 6, v0")
    a("s_nop 0")
    a("v_readfirstlane_b32 s26, v2")
    a("s_lshr_b32 s27, s25, 2")
    a("s_min_u32 s27, s27, 3")
    a("s_mul_i32 s30, s24, 192")
    a("s_waitcnt lgkmcnt(0)")
    srd(a, 12, 4, 5, SZ_X)
    a("s_sub_u32 s29, s25, 12")
    a(f"s_mov_b32 s18, {SZ_W1}")
    a("s_mov_b32 s28, 3456")
    a("s_cmp_lt_u32 s25, 12")
    a("s_cselect_b32 s16, s6, s8")
    a("s_cselect_b32 s17, s7, s9")
    a(f"s_cselect_b32 s18, {SZ_WQKV}, s18")
    a("s_cselect_b32 s28, 3840, s28")
    a("s_cselect_b32 s29, s25, s29")
    a("s_and_b32 s17, s17, 0xffff")
    a("s_mov_b32 s19, 0x00020000")
    a("s_mul_i32 s29, s29, 160")
    a(f"s_mov_b32 s31, {WS_KV}")
    a(f"s_mov_b32 s22, {SZ_KV}")
    a("s_cmp_eq_u32 s27, 0")
    a(f"s_cselect_b32 s31, {WS_Q}, s31")
    a(f"s_cselect_b32 s22, {SZ_Q}, s22")
    a("s_cmp_eq_u32 s27, 3")
    a(f"s_cselect_b32 s31, {WS_H}, s31")
    a(f"s_cselect_b32 s22, {SZ_H}, s22")
    a("s_add_u32 s20, s10, s31")
    a("s_addc_u32 s21, s11, 0")
    a("s_and_b32 s21, s21, 0xffff")
    a("s_mov_b32 s23, 0x00020000")
    a("s_lshr_b32 s32, s26, 1")
    a("s_and_b32 s33, s26, 1")
    a("v_lshrrev_b32 v2, 3, v1")
    a("v_and_b32 v3, 7, v1")
    a("v_xor_b32 v3, v3, v2")
    a("v_lshlrev_b32 v3, 4, v3")
    a("v_mul_u32_u24 v2, 1280, v2")
    a("v_add_u32 v4, v2, v3")
    a("v_add_u32 v5, 10240, v4")
    a("v_add_u32 v6, 20480, v4")
    a("s_mul_i32 s34, s26, 24")
    a("s_add_u32 s34, s34, s30")
    a("s_mul_i32 s34, s34, 1280")
    a("s_mov_b32 s35, 0")
    a("s_lshl_b32 s36, s28, 6")
    a("s_add_u32 s37, s26, 8")
    a("s_add_u32 s38, s26, 16")
    a("s_cmp_lt_u32 s26, 4")
    a("s_cselect_b32 s38, s38, s37")
    a("s_lshl_b32 s39, s29, 1")
    for j, sidx in enumerate((26, 37, 38)):
        a(f"s_lshl_b32 s40, s{sidx}, 6")
        a("v_add_u32 v2, s40, v1")
        a("v_mul_u32_u24 v3, 3277, v2")
        a("v_lshrrev_b32 v3, 16, v3")
        a("v_mul_u32_u24 v22, 20, v3")
        a("v_sub_u32 v2, v2, v22")
        a("v_lshrrev_b32 v22, 2, v3")
        a("v_and_b32 v22, 2, v22")
        a("v_xor_b32 v2, v2, v22")
        a("v_lshlrev_b32 v2, 4, v2")
        a("v_mul_lo_u32 v3, v3, s28")
        a(f"v_add3_u32 v{7 + j}, v2, v3, s39")
    a("s_mul_i32 s41, s26, 3072")
    a("s_lshl_b32 s42, s26, 10")
    a("s_add_u32 s42, s42, 24576")
    a("s_lshl_b32 s43, s37, 10")
    a("s_add_u32 s43, s43, 24576")
    a("s_lshl_b32 s44, s38, 10")
    a("s_add_u32 s44, s44, 24576")

    def dma(buf):
        base = buf * K1_STAGE
        for j in range(3):
            a(f"s_add_u32 m0, s41, {base + j * 1024}")
            a("s_nop 0")
            a(f"buffer_load_dwordx4 v{4 + j}, s[12:15], s34 offen lds")
        for j in range(3):
            a(f"s_add_u32 m0, s{42 + j}, {base}")
            a("s_nop 0")
            a(f"buffer_load_dwordx4 v{7 + j}, s[16:19], s35 offen lds")
        a("s_add_u32 s34, s34, 128")
        a("s_add_u32 s35, s35, s36")

    dma(0)
    dma(1)
    a("v_lshrrev_b32 v22, 4, v1")
    a("v_and_b32 v23, 15, v1")
    a("s_mul_i32 s45, s32, 48")
    a("v_add_u32 v2, s45, v23")
    a("v_lshlrev_b32 v2, 7, v2")
    a("v_and_b32 v3, 7, v23")
    a("v_xor_b32 v3, v3, v22")
    a("v_lshlrev_b32 v3, 4, v3")
    a("v_add_u32 v10, v2, v3")
    a("v_xor_b32 v11, 64, v10")
    for b in (1, 2):
        a(f"v_add_u32 v{10 + 2 * b}, {b * K1_STAGE}, v10")
        a(f"v_add_u32 v{11 + 2 * b}, {b * K1_STAGE}, v11")
    a("v_lshlrev_b32 v2, 3, v22")
    a("v_lshrrev_b32 v3, 2, v23")
    a("v_add_u32 v2, v2, v3")
    a("v_mul_u32_u24 v2, 320, v2")
    a("v_and_b32 v3, 3, v23")
    a("v_lshlrev_b32 v3, 3, v3")
    a("s_mul_i32 s45, s33, 160")
    a("s_add_u32 s45, s45, 24576")
    a("v_add3_u32 v2, v2, v3, s45")
    a("v_and_b32 v3, 1, v22")
    a("v_lshlrev_b32 v3, 5, v3")
    a("s_cmp_eq_u32 s33, 0")
    a("s_cselect_b32 s45, 1, -1")
    a("v_mul_lo_u32 v3, v3, s45")
    a("v_add_u32 v16, v2, v3")
    a("v_sub_u32 v17, v2, v3")
    for b in (1, 2):
        a(f"v_add_u32 v{16 + 2 * b}, {b * K1_STAGE}, v16")
        a(f"v_add_u32 v{17 + 2 * b}, {b * K1_STAGE}, v17")

    XF = (24, 36)
    WF = (48, 68)
    ACC = 88

    def reads(buf, sub, st):
        r = []
        for ti in range(3):
            r.append(f"ds_read_b128 {vr(XF[st] + 4 * ti, 4)}, v{10 + 2 * buf + sub} offset:{ti * 2048}")
        for ni in range(5):
            ad = 16 + 2 * buf + (ni & 1)
            off = ni * 32 + sub * 10240
            r.append(f"ds_read_b64_tr_b16 {vr(WF[st] + 4 * ni, 2)}, v{ad} offset:{off}")
            r.append(f"ds_read_b64_tr_b16 {vr(WF[st] + 4 * ni + 2, 2)}, v{ad} offset:{off + 1280}")
        return r

    def mfmas(st, vor, first):
        m = []
        for ni in range(5):
            for ti in range(3):
                d = ACC + 4 * (ni * 3 + ti)
                c = "0" if first else vr(d, 4)
                w = vr(WF[st] + 4 * ni, 4)
                x = vr(XF[st] + 4 * ti, 4)
                if vor:
                    m.append(f"v_mfma_f32_16x16x32_bf16 {vr(d, 4)}, {x}, {w}, {c}")
                else:
                    m.append(f"v_mfma_f32_16x16x32_bf16 {vr(d, 4)}, {w}, {x}, {c}")
        return m

    def loop(vor):
        for ks in range(10):
            buf = ks % 3
            a(f"s_waitcnt vmcnt({6 if ks < 9 else 0})")
            a("s_barrier")
            if ks + 2 < 10:
                dma((ks + 2) % 3)
            for r in reads(buf, 0, 0):
                a(r)
            a("s_waitcnt lgkmcnt(0)")
            r1 = reads(buf, 1, 1)
            m0 = mfmas(0, vor, ks == 0)
            for i, m in enumerate(m0):
                a(m)
                if i < len(r1):
                    a(r1[i])
            a("s_waitcnt lgkmcnt(0)")
            for m in mfmas(1, vor, False):
                a(m)
        a("s_nop 7")
        a("s_nop 3")

    a("s_cmp_eq_u32 s27, 2")
    a("s_cbranch_scc1 K1_VLOOP")
    loop(False)
    a("s_mul_i32 s45, s32, 48")
    a("s_add_u32 s45, s45, s30")
    a("s_cmp_eq_u32 s27, 3")
    a("s_cbranch_scc1 K1_EPI_FFN")
    a("s_and_b32 s46, s25, 3")
    a("s_lshl_b32 s46, s46, 3")
    a("s_lshl_b32 s47, s33, 2")
    a("s_add_u32 s46, s46, s47")
    a(f"s_mov_b32 s47, {HEAD_KV}")
    a("s_cmp_eq_u32 s27, 0")
    a(f"s_cselect_b32 s47, {2048 * 48}, s47")
    a(f"s_cselect_b32 s48, {f32bits(C_SCALE)}, 1.0")
    NO = 148
    for ni in range(5):
        a(f"v_add_u32 v2, {4 * ni}, v22")
        a("v_mul_u32_u24 v3, 13, v2")
        a("v_lshrrev_b32 v3, 6, v3")
        a("v_mul_u32_u24 v4, 5, v3")
        a(f"v_sub_u32 v{NO + 5 + ni}, v2, v4")
        a("v_add_u32 v3, s46, v3")
        a("v_mul_lo_u32 v3, v3, s47")
        a(f"v_lshl_add_u32 v{NO + ni}, v{NO + 5 + ni}, 3, v3")
    TO = 158
    for ti in range(3):
        a(f"s_add_u32 s49, s45, {16 * ti}")
        a("v_add_u32 v2, s49, v23")
        a("s_cmp_eq_u32 s27, 0")
        a(f"s_cbranch_scc1 K1_TQ{ti}")
        a("v_lshrrev_b32 v3, 5, v2")
        a("v_mul_u32_u24 v3, 2880, v3")
        a("v_and_b32 v2, 31, v2")
        a("v_mul_u32_u24 v2, 48, v2")
        a(f"v_add_u32 v{TO + ti}, v2, v3")
        a(f"s_branch K1_TD{ti}")
        a.label(f"K1_TQ{ti}")
        a(f"v_mul_u32_u24 v{TO + ti}, 48, v2")
        a.label(f"K1_TD{ti}")
    a("v_mov_b32 v8, 0x3f803f80")
    a("v_mov_b32 v9, 0x00003f80")
    for ti in range(3):
        a(f"s_add_u32 s49, s45, {16 * ti}")
        a("s_cmp_ge_u32 s49, 2048")
        a(f"s_cbranch_scc1 K1_QK_SKIP{ti}")
        for ni in range(5):
            d = ACC + 4 * (ni * 3 + ti)
            for i in range(4):
                a(f"v_mul_f32 v{d + i}, s48, v{d + i}")
            a(f"v_cvt_pk_bf16_f32 v4, v{d}, v{d + 1}")
            a(f"v_cvt_pk_bf16_f32 v5, v{d + 2}, v{d + 3}")
            a(f"v_add_u32 v6, v{NO + ni}, v{TO + ti}")
            a("buffer_store_dwordx2 v[4:5], v6, s[20:23], 0 offen")
            if ni >= 1:
                a("s_cmp_eq_u32 s27, 1")
                a(f"s_cbranch_scc0 K1_NOC{ti}_{ni}")
                a(f"v_cmp_eq_u32 vcc, 4, v{NO + 5 + ni}")
                a("s_and_saveexec_b64 s[50:51], vcc")
                a("buffer_store_dwordx2 v[8:9], v6, s[20:23], 0 offen offset:8")
                a("s_mov_b64 exec, s[50:51]")
                a.label(f"K1_NOC{ti}_{ni}")
        a.label(f"K1_QK_SKIP{ti}")
    a("s_branch K1_END")
    a.label("K1_EPI_FFN")
    a("s_mul_i32 s46, s33, 80")
    a("s_add_u32 s46, s46, s29")
    a("v_lshlrev_b32 v7, 3, v22")
    a("s_lshl_b32 s47, s46, 1")
    a("v_add_u32 v7, s47, v7")
    for ti in range(3):
        a(f"s_add_u32 s49, s45, {16 * ti}")
        a("s_cmp_ge_u32 s49, 2048")
        a(f"s_cbranch_scc1 K1_F_SKIP{ti}")
        a("v_add_u32 v2, s49, v23")
        a("v_mul_u32_u24 v2, 3456, v2")
        a("v_add_u32 v6, v2, v7")
        for ni in range(5):
            d = ACC + 4 * (ni * 3 + ti)
            a(f"s_add_u32 s50, s46, {16 * ni}")
            a("s_cmp_ge_u32 s50, 1728")
            a(f"s_cbranch_scc1 K1_F_SK{ti}_{ni}")
            for i in range(4):
                a(f"v_max_f32 v{d + i}, 0, v{d + i}")
            a(f"v_cvt_pk_bf16_f32 v4, v{d}, v{d + 1}")
            a(f"v_cvt_pk_bf16_f32 v5, v{d + 2}, v{d + 3}")
            a(f"buffer_store_dwordx2 v[4:5], v6, s[20:23], 0 offen offset:{32 * ni}")
            a.label(f"K1_F_SK{ti}_{ni}")
        a.label(f"K1_F_SKIP{ti}")
    a("s_branch K1_END")
    a.label("K1_VLOOP")
    loop(True)
    a("s_mul_i32 s45, s32, 48")
    a("s_add_u32 s45, s45, s30")
    a("s_and_b32 s46, s25, 3")
    a("s_lshl_b32 s46, s46, 3")
    a("s_lshl_b32 s47, s33, 2")
    a("s_add_u32 s46, s46, s47")
    a(f"s_mov_b32 s47, {HEAD_KV}")
    for ni in range(5):
        a(f"v_add_u32 v2, {16 * ni}, v23")
        a("v_mul_u32_u24 v3, 205, v2")
        a("v_lshrrev_b32 v3, 12, v3")
        a("v_mul_u32_u24 v4, 20, v3")
        a(f"v_sub_u32 v{NO + 10 + ni}, v2, v4")
        a("v_add_u32 v3, s46, v3")
        a("v_mul_lo_u32 v3, v3, s47")
        a(f"v_lshlrev_b32 v4, 6, v{NO + 10 + ni}")
        a(f"v_add3_u32 v{NO + ni}, v3, v4, 64")
        a(f"v_add_u32 v{NO + ni}, 1472, v{NO + ni}")
        a(f"v_bfe_u32 v{NO + 5 + ni}, v{NO + 10 + ni}, 2, 2")
    a("v_mov_b32 v8, 0x3f803f80")
    a("v_mov_b32 v9, 0x3f803f80")
    for ti in range(3):
        a(f"s_add_u32 s49, s45, {16 * ti}")
        a("s_cmp_ge_u32 s49, 2048")
        a(f"s_cbranch_scc1 K1_V_SKIP{ti}")
        a("v_lshlrev_b32 v2, 2, v22")
        a("v_add_u32 v2, s49, v2")
        a("v_lshrrev_b32 v3, 5, v2")
        a("v_mul_u32_u24 v3, 2880, v3")
        a("v_bfe_u32 v2, v2, 2, 3")
        a("v_bfe_u32 v4, v2, 1, 1")
        a("v_lshl_add_u32 v10, v4, 3, v3")
        a("v_lshrrev_b32 v4, 1, v2")
        a("v_and_b32 v4, 2, v4")
        a("v_and_b32 v2, 1, v2")
        a("v_or_b32 v11, v2, v4")
        for ni in range(5):
            d = ACC + 4 * (ni * 3 + ti)
            a(f"v_cvt_pk_bf16_f32 v4, v{d}, v{d + 1}")
            a(f"v_cvt_pk_bf16_f32 v5, v{d + 2}, v{d + 3}")
            a(f"v_xor_b32 v6, v11, v{NO + 5 + ni}")
            a("v_lshlrev_b32 v6, 4, v6")
            a(f"v_add3_u32 v6, v6, v10, v{NO + ni}")
            a("buffer_store_dwordx2 v[4:5], v6, s[20:23], 0 offen")
            if ni < 4:
                a("v_xor_b32 v7, 1, v11")
                a("v_lshlrev_b32 v7, 4, v7")
                a(f"v_add3_u32 v7, v7, v10, v{NO + ni}")
                a(f"v_cmp_eq_u32 vcc, 0, v{NO + 10 + ni}")
                a("s_and_saveexec_b64 s[50:51], vcc")
                a("buffer_store_dwordx2 v[8:9], v7, s[20:23], 0 offen offset:1280")
                a("s_mov_b64 exec, s[50:51]")
        a.label(f"K1_V_SKIP{ti}")
    a.label("K1_END")
    a("s_endpgm")
    return a.text()


K2_BUF = 24576
K2_FLAG = 3 * K2_BUF
K2_LDS = K2_FLAG + 64


def k2():
    a = Asm()
    a.label("k2_kernel")
    a("s_cmp_ge_u32 s2, 256")
    a("s_cbranch_scc1 K2_END")
    a("s_and_b32 s3, s2, 7")
    a("s_lshl_b32 s3, s3, 2")
    a("s_lshr_b32 s4, s2, 3")
    a("s_and_b32 s4, s4, 3")
    a("s_add_u32 s36, s3, s4")
    a("s_lshr_b32 s37, s2, 5")
    a("s_load_dwordx2 s[4:5], s[0:1], 0")
    a("s_load_dwordx2 s[6:7], s[0:1], 48")
    a("s_load_dwordx2 s[8:9], s[0:1], 72")
    a("v_and_b32 v1, 63, v0")
    a("v_lshrrev_b32 v2, 6, v0")
    a("s_nop 0")
    a("v_readfirstlane_b32 s38, v2")
    a("s_waitcnt lgkmcnt(0)")
    srd_off(a, 12, 8, 9, WS_KV, SZ_KV)
    srd_off(a, 16, 8, 9, WS_Q, SZ_Q)
    srd_off(a, 20, 8, 9, WS_O, SZ_O)
    srd(a, 24, 4, 5, SZ_X)
    srd(a, 28, 6, 7, 1280)
    srd_off(a, 32, 8, 9, WS_G, SZ_G)
    a("v_lshlrev_b32 v16, 4, v1")
    a("s_mul_i32 s46, s38, 3072")
    a(f"s_mul_i32 s45, s36, {HEAD_KV}")
    a("s_add_u32 s45, s45, s46")
    a("v_mov_b32 v2, 0")
    a(f"v_mov_b32 v3, {K2_FLAG}")
    a("ds_write_b32 v3, v2")
    a("v_and_b32 v17, 31, v1")
    a("v_lshrrev_b32 v18, 5, v1")
    a("s_lshl_b32 s47, s37, 8")
    a("s_lshl_b32 s48, s38, 5")
    a("s_add_u32 s47, s47, s48")
    a("v_add_u32 v2, s47, v17")
    a("v_mul_u32_u24 v2, 48, v2")
    a("s_mul_i32 s48, s36, 98304")
    a("v_add_u32 v2, s48, v2")
    a("v_lshl_add_u32 v3, v18, 4, v2")
    a("buffer_load_dwordx4 v[20:23], v3, s[16:19], 0 offen")
    a("buffer_load_dwordx2 v[24:25], v2, s[16:19], 0 offen offset:32")
    a("s_lshl_b32 s48, s37, 8")
    a("s_lshl_b32 s49, s36, 3")
    a("s_add_u32 s48, s48, s49")
    a("s_add_u32 s48, s48, s38")
    a("s_mul_i32 s49, s48, 1280")
    a("v_mul_u32_u24 v2, 20, v1")
    a("buffer_load_dwordx4 v[116:119], v2, s[24:27], s49 offen")
    a("buffer_load_dword v120, v2, s[24:27], s49 offen offset:16")
    a("buffer_load_dwordx4 v[122:125], v2, s[28:31], 0 offen")
    a("buffer_load_dword v126, v2, s[28:31], 0 offen offset:16")
    a("v_mul_u32_u24 v2, 48, v17")
    a("v_lshl_add_u32 v12, v18, 4, v2")
    a("v_add_u32 v13, 32, v2")
    a("v_bfe_u32 v3, v17, 2, 2")
    a("v_lshlrev_b32 v2, 6, v17")
    a("v_add_u32 v2, 1536, v2")
    a("v_xor_b32 v19, v18, v3")
    a("v_lshl_add_u32 v14, v19, 4, v2")
    a("v_add_u32 v19, 2, v18")
    a("v_xor_b32 v19, v19, v3")
    a("v_lshl_add_u32 v15, v19, 4, v2")
    a("s_waitcnt vmcnt(0)")
    a("v_mov_b32 v2, 0")
    for j in range(5):
        xv = 116 + j
        gv = 122 + j
        a(f"v_lshlrev_b32 v3, 16, v{xv}")
        a(f"v_and_b32 v19, 0xffff0000, v{xv}")
        a(f"v_lshlrev_b32 v127, 16, v{gv}")
        a(f"v_and_b32 v128, 0xffff0000, v{gv}")
        a("v_mul_f32 v3, v3, v127")
        a("v_mul_f32 v19, v19, v128")
        a("v_cvt_pk_bf16_f32 v3, v3, v19")
        a("v_lshlrev_b32 v19, 16, v3")
        a("v_and_b32 v3, 0xffff0000, v3")
        a("v_add_f32 v2, v2, v19")
        a("v_add_f32 v2, v2, v3")
    for sh in (1, 2, 4, 8):
        a("s_nop 1")
        a(f"v_add_f32_dpp v2, v2, v2 row_shr:{sh} row_mask:0xf bank_mask:0xf")
    a("s_nop 1")
    a("v_add_f32_dpp v2, v2, v2 row_bcast:15 row_mask:0xa bank_mask:0xf")
    a("s_nop 1")
    a("v_add_f32_dpp v2, v2, v2 row_bcast:31 row_mask:0xc bank_mask:0xf")
    a("s_nop 1")
    a("v_cvt_pk_bf16_f32 v2, v2, v2")
    a("v_lshlrev_b32 v2, 16, v2")
    a(f"v_mul_f32 v2, {f32bits(-LOG2E)}, v2")
    a("v_exp_f32 v2, v2")
    a("s_nop 0")
    a("v_add_f32 v2, 1.0, v2")
    a("v_rcp_f32 v2, v2")
    a("s_nop 0")
    a("v_cvt_pk_bf16_f32 v2, v2, v2")
    a("v_lshlrev_b32 v2, 16, v2")
    a("s_lshl_b32 s49, s48, 2")
    a("v_mov_b32 v3, 0")
    a("v_cmp_eq_u32 vcc, 63, v1")
    a("s_and_saveexec_b64 s[50:51], vcc")
    a("buffer_store_dword v2, v3, s[32:35], s49 offen")
    a("s_mov_b64 exec, s[50:51]")
    a("v_cmp_eq_u32 vcc, 0, v18")
    a("s_nop 1")
    a("v_cndmask_b32 v24, 0, v24, vcc")
    a("v_cndmask_b32 v25, 0, v25, vcc")
    a("v_mov_b32 v26, 0")
    a("v_mov_b32 v27, 0")
    a("s_mov_b32 s39, 0")

    QF0, QF1 = 20, 24
    KF = (28, 36)
    VF = (44, 52)
    P = 60
    S = (68, 84)
    O = 100

    def dma_stage(lds_sreg):
        a(f"s_add_u32 m0, s{lds_sreg}, s46")
        a("s_nop 0")
        for j in range(3):
            a(f"buffer_load_dwordx4 v16, s[12:15], s44 offen offset:{1024 * j} lds")
        a("s_add_u32 s44, s44, 23040")

    def set_addrs(dst, sbase):
        for i in range(4):
            a(f"v_add_u32 v{dst + i}, s{sbase}, v{12 + i}")

    def kread(st, idx):
        base = 4 if idx < 8 else 8
        off = (idx % 8) * 2880
        return [f"ds_read_b128 {vr(KF[st], 4)}, v{base} offset:{off}",
                f"ds_read_b128 {vr(KF[st] + 4, 4)}, v{base + 1} offset:{off}"]

    def vread(st, idx):
        base = 4 if idx < 8 else 8
        off = (idx % 8) * 2880
        return [f"ds_read_b128 {vr(VF[st], 4)}, v{base + 2} offset:{off}",
                f"ds_read_b128 {vr(VF[st] + 4, 4)}, v{base + 3} offset:{off}"]

    def qk(st, sst):
        a(f"v_mfma_f32_32x32x16_bf16 {vr(S[sst], 16)}, {vr(KF[st], 4)}, {vr(QF0, 4)}, 0")
        a(f"v_mfma_f32_32x32x16_bf16 {vr(S[sst], 16)}, {vr(KF[st] + 4, 4)}, {vr(QF1, 4)}, {vr(S[sst], 16)}")

    def set_m_from(mreg):
        a(f"v_mov_b32 v3, v{mreg}")
        a("s_nop 1")
        a(f"v_permlane32_swap_b32 v{mreg}, v3")
        a("s_nop 1")
        a(f"v_max_f32 v2, v{mreg}, v3")
        a("v_and_b32 v3, 0xffff0000, v2")
        a("v_sub_f32 v2, v2, v3")
        a("v_and_b32 v19, 0xffff0000, v2")
        a("v_sub_f32 v2, v2, v19")
        a("v_xor_b32 v3, 0x80000000, v3")
        a("v_xor_b32 v19, 0x80000000, v19")
        a("v_xor_b32 v2, 0x80000000, v2")
        a("v_lshrrev_b32 v3, 16, v3")
        a("v_or_b32 v3, v3, v19")
        a("v_lshrrev_b32 v2, 16, v2")
        a("v_cmp_eq_u32 vcc, 0, v18")
        a("s_nop 1")
        a("v_cndmask_b32 v26, 0, v3, vcc")
        a("v_cndmask_b32 v27, 0, v2, vcc")
        a("s_nop 1")

    def start_stream():
        a("s_mov_b32 s44, s45")
        a("s_mov_b32 s41, 0")
        a(f"s_mov_b32 s42, {K2_BUF}")
        a(f"s_mov_b32 s43, {2 * K2_BUF}")
        dma_stage(41)
        dma_stage(42)
        set_addrs(4, 41)
        set_addrs(8, 42)
        a("s_mov_b32 s40, 0")

    def stage_head(lbl):
        a("s_waitcnt vmcnt(0) lgkmcnt(0)")
        a("s_barrier")
        a("s_cmp_ge_u32 s40, 6")
        a(f"s_cbranch_scc1 {lbl}")
        dma_stage(43)
        a.label(lbl)

    def stage_rotate():
        a("s_mov_b32 s47, s41")
        a("s_mov_b32 s41, s42")
        a("s_mov_b32 s42, s43")
        a("s_mov_b32 s43, s47")
        for i in range(4):
            a(f"v_mov_b32 v{4 + i}, v{8 + i}")
        set_addrs(8, 42)
        a("s_add_u32 s40, s40, 1")

    a.label("K2_MAIN")
    start_stream()
    for i in range(16):
        a(f"v_mov_b32 v{O + i}, 0")
    a.label("K2_STAGE")
    stage_head("K2_NODMA")
    a("s_cmp_lg_u32 s40, 0")
    a("s_cbranch_scc1 K2_BODY")
    for r in kread(0, 0):
        a(r)
    a("s_cmp_lg_u32 s39, 0")
    a("s_cbranch_scc1 K2_PRIME")
    a("s_waitcnt lgkmcnt(0)")
    qk(0, 0)
    a("s_nop 15")
    a("s_nop 3")
    s0 = S[0]
    a(f"v_max3_f32 v116, v{s0}, v{s0 + 1}, v{s0 + 2}")
    for i in range(3, 15, 2):
        a(f"v_max3_f32 v116, v116, v{s0 + i}, v{s0 + i + 1}")
    a(f"v_max_f32 v116, v116, v{s0 + 15}")
    set_m_from(116)
    a.label("K2_PRIME")
    for r in kread(1, 1):
        a(r)
    for r in vread(0, 0):
        a(r)
    a("s_waitcnt lgkmcnt(4)")
    qk(0, 0)
    a("s_nop 15")
    a.label("K2_BODY")
    for t in range(8):
        c = t % 2
        n = 1 - c
        a("s_waitcnt lgkmcnt(2)")
        qk(n, n)
        for r in kread(c, t + 2):
            a(r)
        sc = S[c]
        for i in range(8):
            a(f"v_exp_f32 v{sc + i}, v{sc + i}")
        for r in vread(n, t + 1):
            a(r)
        for i in range(8, 16):
            a(f"v_exp_f32 v{sc + i}, v{sc + i}")
        for i in range(8):
            a(f"v_cvt_pk_bf16_f32 v{P + i}, v{sc + 2 * i}, v{sc + 2 * i + 1}")
        a("s_waitcnt lgkmcnt(4)")
        a(f"v_mfma_f32_32x32x16_bf16 {vr(O, 16)}, {vr(VF[c], 4)}, {vr(P, 4)}, {vr(O, 16)}")
        a("s_nop 0")
        a(f"v_mfma_f32_32x32x16_bf16 {vr(O, 16)}, {vr(VF[c] + 4, 4)}, {vr(P + 4, 4)}, {vr(O, 16)}")
    stage_rotate()
    a("s_cmp_lt_u32 s40, 8")
    a("s_cbranch_scc1 K2_STAGE")
    a("s_nop 15")
    a("s_nop 3")
    a("s_cmp_lg_u32 s39, 0")
    a("s_cbranch_scc1 K2_EPI")
    a("v_mov_b32 v2, 0")
    for i in range(9):
        a(f"v_fma_f32 v2, v{O + i}, 0, v2")
    a("v_mov_b32 v3, 0")
    for i in range(9, 12):
        a(f"v_fma_f32 v3, v{O + i}, 0, v3")
    a("v_cmp_eq_u32 vcc, 0, v18")
    a("s_nop 1")
    a("v_cndmask_b32 v3, 0, v3, vcc")
    a("v_add_f32 v2, v2, v3")
    a("v_cmp_u_f32 vcc, v2, v2")
    a("s_nop 4")
    a("s_cbranch_vccz K2_VOTE")
    a("v_mov_b32 v2, 1")
    a(f"v_mov_b32 v3, {K2_FLAG}")
    a("ds_write_b32 v3, v2")
    a.label("K2_VOTE")
    a("s_waitcnt vmcnt(0) lgkmcnt(0)")
    a("s_barrier")
    a(f"v_mov_b32 v3, {K2_FLAG}")
    a("ds_read_b32 v2, v3")
    a("s_waitcnt lgkmcnt(0)")
    a("v_readfirstlane_b32 s47, v2")
    a("s_cmp_eq_u32 s47, 0")
    a("s_cbranch_scc1 K2_EPI")
    a("s_barrier")
    a("v_mov_b32 v26, 0")
    a("v_mov_b32 v27, 0")
    a(f"v_mov_b32 v117, {f32bits(float('-inf'))}")
    start_stream()
    a.label("K2_MSTAGE")
    stage_head("K2_MNODMA")
    for t in range(8):
        for r in kread(0, t):
            a(r)
        a("s_waitcnt lgkmcnt(0)")
        qk(0, 0)
        a("s_nop 15")
        a("s_nop 3")
        for i in range(0, 16, 2):
            a(f"v_max3_f32 v117, v117, v{s0 + i}, v{s0 + i + 1}")
    stage_rotate()
    a("s_cmp_lt_u32 s40, 8")
    a("s_cbranch_scc1 K2_MSTAGE")
    set_m_from(117)
    a("s_mov_b32 s39, 1")
    a("s_waitcnt vmcnt(0) lgkmcnt(0)")
    a("s_barrier")
    a("s_branch K2_MAIN")
    a.label("K2_EPI")
    a(f"v_mov_b32 v2, v{O + 8}")
    a(f"v_mov_b32 v3, v{O + 8}")
    a("s_nop 1")
    a("v_permlane32_swap_b32 v2, v3")
    a("s_nop 1")
    a("v_rcp_f32 v3, v3")
    a("s_nop 0")
    for i in range(12):
        a(f"v_mul_f32 v{O + i}, v{O + i}, v3")
    for i in range(6):
        a(f"v_cvt_pk_bf16_f32 v{P + i}, v{O + 2 * i}, v{O + 2 * i + 1}")
    a("s_lshl_b32 s47, s37, 8")
    a("s_lshl_b32 s48, s38, 5")
    a("s_add_u32 s47, s47, s48")
    a("v_add_u32 v2, s47, v17")
    a("v_mul_u32_u24 v2, 1280, v2")
    a("s_mul_i32 s48, s36, 40")
    a("v_lshl_add_u32 v2, v18, 3, v2")
    a("v_add_u32 v2, s48, v2")
    a(f"buffer_store_dwordx2 {vr(P, 2)}, v2, s[20:23], 0 offen")
    a(f"buffer_store_dwordx2 {vr(P + 2, 2)}, v2, s[20:23], 0 offen offset:16")
    a("v_cmp_eq_u32 vcc, 0, v18")
    a("s_and_saveexec_b64 s[50:51], vcc")
    a(f"buffer_store_dwordx2 {vr(P + 4, 2)}, v2, s[20:23], 0 offen offset:32")
    a("s_mov_b64 exec, s[50:51]")
    a.label("K2_END")
    a("s_endpgm")
    return a.text()


K3_D = 4
K3_SLOT = 5120
K3_RING = (K3_D + 1) * K3_SLOT
K3_LDS = 4 * K3_RING


def k3():
    a = Asm()
    a.label("k3_kernel")
    a("s_cmp_ge_u32 s2, 256")
    a("s_cbranch_scc1 K3_END")
    a("s_and_b32 s3, s2, 7")
    a("s_lshr_b32 s4, s2, 3")
    a("s_lshr_b32 s5, s3, 1")
    a("s_lshl_b32 s5, s5, 3")
    a("s_lshr_b32 s6, s4, 2")
    a("s_add_u32 s36, s5, s6")
    a("s_and_b32 s5, s3, 1")
    a("s_lshl_b32 s5, s5, 2")
    a("s_and_b32 s6, s4, 3")
    a("s_add_u32 s37, s5, s6")
    a("s_load_dwordx2 s[4:5], s[0:1], 16")
    a("s_load_dwordx2 s[6:7], s[0:1], 40")
    a("s_load_dwordx2 s[8:9], s[0:1], 72")
    a("s_load_dwordx2 s[10:11], s[0:1], 56")
    a("v_and_b32 v1, 63, v0")
    a("v_lshrrev_b32 v2, 6, v0")
    a("s_nop 0")
    a("v_readfirstlane_b32 s38, v2")
    a("s_lshl_b32 s39, s36, 6")
    a("s_mul_i32 s40, s37, 160")
    a("s_waitcnt lgkmcnt(0)")
    srd(a, 12, 4, 5, SZ_WO)
    srd(a, 16, 6, 7, SZ_W2)
    srd_off(a, 20, 8, 9, WS_O, SZ_O)
    srd_off(a, 24, 8, 9, WS_H, SZ_H)
    srd_off(a, 28, 8, 9, WS_G, SZ_G)
    srd(a, 32, 10, 11, SZ_OUT)
    a("v_lshrrev_b32 v22, 4, v1")
    a("v_and_b32 v23, 15, v1")
    for i in range(5):
        a(f"v_add_u32 v2, {64 * i}, v1")
        a("v_mul_u32_u24 v3, 6554, v2")
        a("v_lshrrev_b32 v3, 16, v3")
        a("v_mul_u32_u24 v4, 10, v3")
        a("v_sub_u32 v2, v2, v4")
        a("v_lshlrev_b32 v2, 4, v2")
        a("v_mul_u32_u24 v3, 1280, v3")
        a(f"v_add3_u32 v{5 + i}, v2, v3, s40")
    a("v_lshlrev_b32 v2, 3, v22")
    a("v_lshrrev_b32 v3, 2, v23")
    a("v_add_u32 v2, v2, v3")
    a("v_mul_u32_u24 v2, 160, v2")
    a("v_and_b32 v3, 3, v23")
    a("v_lshlrev_b32 v3, 3, v3")
    a(f"s_mul_i32 s41, s38, {K3_RING}")
    a("v_add3_u32 v14, v2, v3, s41")
    a("v_lshrrev_b32 v2, 2, v1")
    a("s_lshl_b32 s42, s38, 4")
    a("s_add_u32 s42, s42, s39")
    a("v_add_u32 v15, s42, v2")
    a("v_lshlrev_b32 v2, 2, v15")
    a("buffer_load_dword v16, v2, s[28:31], 0 offen")

    AF = 24
    WF = (104, 124)
    ACC = 144

    def stream(nsteps, strideA, srdA, srdW, kbaseA, kbaseW):
        for t in range(4):
            a(f"s_add_u32 s43, s39, {16 * t}")
            a("v_add_u32 v2, s43, v23")
            a(f"s_mov_b32 s44, {strideA}")
            a("v_mul_lo_u32 v2, v2, s44")
            a(f"v_lshl_add_u32 v{10 + t}, v22, 4, v2")
        a(kbaseA)
        a(kbaseW)

        def issue(s):
            slot = s % (K3_D + 1)
            for i in range(5):
                a(f"s_add_u32 m0, s41, {slot * K3_SLOT + i * 1024}")
                a("s_nop 0")
                a(f"buffer_load_dwordx4 v{5 + i}, {sr(srdW, 4)}, s46 offen lds")
            for t in range(4):
                a(f"buffer_load_dwordx4 {vr(AF + 16 * slot + 4 * t, 4)}, v{10 + t}, {sr(srdA, 4)}, s45 offen")
            a("s_add_u32 s45, s45, 64")
            a(f"s_add_u32 s46, s46, {32 * 1280}")

        def wread(s):
            slot = s % (K3_D + 1)
            st = s % 2
            for n in range(5):
                off = slot * K3_SLOT + n * 32
                a(f"ds_read_b64_tr_b16 {vr(WF[st] + 4 * n, 2)}, v14 offset:{off}")
                a(f"ds_read_b64_tr_b16 {vr(WF[st] + 4 * n + 2, 2)}, v14 offset:{off + 640}")

        issued = 0
        for s in range(min(K3_D, nsteps)):
            issue(s)
            issued += 1
        a(f"s_waitcnt vmcnt({9 * (issued - 1)})")
        wread(0)
        for s in range(nsteps):
            slot = s % (K3_D + 1)
            st = s % 2
            if issued < nsteps:
                issue(issued)
                issued += 1
            if s + 1 < nsteps:
                a(f"s_waitcnt vmcnt({9 * (issued - (s + 2))})")
                wread(s + 1)
                a("s_waitcnt lgkmcnt(10)")
            else:
                a("s_waitcnt lgkmcnt(0)")
            for n in range(5):
                for t in range(4):
                    d = ACC + 4 * (n * 4 + t)
                    c = "0" if s == 0 else vr(d, 4)
                    a(f"v_mfma_f32_16x16x32_bf16 {vr(d, 4)}, {vr(WF[st] + 4 * n, 4)}, {vr(AF + 16 * slot + 4 * t, 4)}, {c}")

    a("s_cmp_eq_u32 s38, 0")
    a("s_cbranch_scc0 K3_FFN")
    stream(20, 1280, 20, 12, "s_mov_b32 s45, 0", "s_mov_b32 s46, 0")
    a("s_branch K3_RED")
    a.label("K3_FFN")
    a("s_sub_u32 s47, s38, 1")
    stream(18, 3456, 24, 16, "s_mul_i32 s45, s47, 1152", f"s_mul_i32 s46, s47, {576 * 1280}")
    a.label("K3_RED")
    a("s_nop 7")
    a("s_nop 3")
    a("s_waitcnt vmcnt(0) lgkmcnt(0)")
    a("s_barrier")
    a("v_mul_u32_u24 v2, 320, v23")
    a("v_lshl_add_u32 v2, v22, 4, v2")
    a("s_mul_i32 s43, s38, 20480")
    a("v_add_u32 v2, s43, v2")
    for n in range(5):
        for t in range(4):
            d = ACC + 4 * (n * 4 + t)
            a(f"ds_write_b128 v2, {vr(d, 4)} offset:{t * 5120 + n * 64}")
    a("s_waitcnt lgkmcnt(0)")
    a("s_barrier")
    a("v_lshrrev_b32 v2, 2, v1")
    a("s_lshl_b32 s43, s38, 4")
    a("v_add_u32 v2, s43, v2")
    a("v_mul_u32_u24 v2, 320, v2")
    a("v_and_b32 v3, 3, v1")
    a("v_mul_u32_u24 v3, 80, v3")
    a("v_add_u32 v2, v2, v3")
    R = 24
    for src in range(4):
        for j in range(5):
            a(f"ds_read_b128 {vr(R + 20 * src + 4 * j, 4)}, v2 offset:{src * 20480 + j * 16}")
        a("s_waitcnt lgkmcnt(0)")
    a("v_sub_f32 v17, 1.0, v16")
    a("v_cvt_pk_bf16_f32 v17, v17, v17")
    a("v_lshlrev_b32 v17, 16, v17")
    for e in range(0, 20, 2):
        A0, A1 = R + e, R + e + 1
        B0, B1 = R + 20 + e, R + 20 + e + 1
        for k in (0, 1):
            a(f"v_add_f32 v{B0 + k}, v{B0 + k}, v{R + 40 + e + k}")
            a(f"v_add_f32 v{B0 + k}, v{B0 + k}, v{R + 60 + e + k}")
        a(f"v_cvt_pk_bf16_f32 v18, v{A0}, v{A1}")
        a(f"v_cvt_pk_bf16_f32 v19, v{B0}, v{B1}")
        a("v_lshlrev_b32 v4, 16, v18")
        a("v_and_b32 v5, 0xffff0000, v18")
        a("v_lshlrev_b32 v6, 16, v19")
        a("v_and_b32 v7, 0xffff0000, v19")
        a("v_mul_f32 v4, v16, v4")
        a("v_mul_f32 v5, v16, v5")
        a("v_mul_f32 v6, v17, v6")
        a("v_mul_f32 v7, v17, v7")
        a("v_cvt_pk_bf16_f32 v18, v4, v5")
        a("v_cvt_pk_bf16_f32 v19, v6, v7")
        a("v_lshlrev_b32 v4, 16, v18")
        a("v_and_b32 v5, 0xffff0000, v18")
        a("v_lshlrev_b32 v6, 16, v19")
        a("v_and_b32 v7, 0xffff0000, v19")
        a("v_add_f32 v4, v4, v6")
        a("v_add_f32 v5, v5, v7")
        a(f"v_cvt_pk_bf16_f32 v{112 + e // 2}, v4, v5")
    a("v_mul_u32_u24 v2, 1280, v15")
    a("v_and_b32 v3, 3, v1")
    a("v_mul_u32_u24 v3, 40, v3")
    a("v_add3_u32 v2, v2, v3, s40")
    a("buffer_store_dwordx4 v[112:115], v2, s[32:35], 0 offen")
    a("buffer_store_dwordx4 v[116:119], v2, s[32:35], 0 offen offset:16")
    a("buffer_store_dwordx2 v[120:121], v2, s[32:35], 0 offen offset:32")
    a.label("K3_END")
    a("s_endpgm")
    return a.text()


def desc(name, vgpr, sgpr=96):
    acc = (vgpr + 3) // 4 * 4
    return f""".amdhsa_kernel {name}
  .amdhsa_next_free_vgpr {vgpr}
  .amdhsa_next_free_sgpr {sgpr}
  .amdhsa_accum_offset {acc}
  .amdhsa_group_segment_fixed_size 0
  .amdhsa_kernarg_size 80
  .amdhsa_user_sgpr_count 2
  .amdhsa_user_sgpr_kernarg_segment_ptr 1
  .amdhsa_system_sgpr_workgroup_id_x 1
.end_amdhsa_kernel
"""


def main():
    hdr = f"""; gated_mix__mha_block__dense_activation_relu__prompt : 3 kernels (generated by gen.py, hand-designed)
; @launch kernel=k1_kernel grid=(256,1,1) block=(512,1,1) lds={K1_LDS}
; @launch kernel=k2_kernel grid=(256,1,1) block=(512,1,1) lds={K2_LDS}
; @launch kernel=k3_kernel grid=(256,1,1) block=(256,1,1) lds={K3_LDS}
.amdgcn_target "amdgcn-amd-amdhsa--gfx950"
.text
"""
    body = ""
    for name, fn in (("k1_kernel", k1), ("k2_kernel", k2), ("k3_kernel", k3)):
        body += f".globl {name}\n.p2align 8\n.type {name},@function\n" + fn()
    tail = '.section .rodata,"a"\n.p2align 6\n'
    tail += desc("k1_kernel", 168)
    tail += ".p2align 6\n" + desc("k2_kernel", 132)
    tail += ".p2align 6\n" + desc("k3_kernel", 224)
    open(OUT, "w").write(hdr + body + tail)


if __name__ == "__main__":
    main()
```

```python
import struct, sys

OUT = sys.argv[1] if len(sys.argv) > 1 else "gated_mix__mha_block__dense_activation_relu__prompt.s"

WS_Q = 0
SZ_Q = 32 * 2048 * 48
WS_KV = 0x400000
HEAD_KV = 64 * 2880
SZ_KV = 32 * HEAD_KV
WS_H = 0xC00000
SZ_H = 2048 * 3456
WS_O = 0x1400000
SZ_O = 2048 * 1280
WS_G = 0x1800000
SZ_G = 2048 * 4
WS_B = 0x1A00000
SZ_B = 2048 * 1280

SZ_X = 2048 * 1280
SZ_WQKV = 640 * 3840
SZ_WO = 640 * 1280
SZ_W1 = 640 * 3456
SZ_W2 = 1728 * 1280
SZ_OUT = 2048 * 1280


def f32bits(x):
    return struct.unpack("<I", struct.pack("<f", x))[0]


C_SCALE = 1.4426950408889634 / (20 ** 0.5)
LOG2E = 1.4426950408889634


PROF = int(__import__("os").environ.get("PROF", "0"))
WS_T = 0x2000000


def prof_init(a, wsl, wsh, wave_s, kidx=0):
    if not PROF:
        return
    a(f"s_add_u32 s92, s{wsl}, {WS_T + kidx * 0x100000}")
    a(f"s_addc_u32 s93, s{wsh}, 0")
    a("s_and_b32 s93, s93, 0xffff")
    a("s_mov_b32 s94, 0x100000")
    a("s_mov_b32 s95, 0x00020000")
    a("s_lshl_b32 s91, s2, 4")
    a(f"s_add_u32 s91, s91, s{wave_s}")
    a("s_lshl_b32 s91, s91, 7")


def prof(a, slot, tmpv=2):
    if not PROF:
        return
    a("s_memtime s[88:89]")
    a("s_waitcnt lgkmcnt(0)")
    a(f"v_mov_b32 v{tmpv}, s88")
    a(f"v_mov_b32 v{tmpv + 1}, 0")
    a(f"buffer_store_dword v{tmpv}, v{tmpv + 1}, s[92:95], s91 offen offset:{4 * slot}")


class Asm:
    def __init__(self):
        self.lines = []

    def __call__(self, s):
        self.lines.append("    " + s)

    def label(self, l):
        self.lines.append(l + ":")

    def c(self, s):
        self.lines.append("    ; " + s)

    def text(self):
        return "\n".join(self.lines) + "\n"


def vr(b, n=1):
    return f"v{b}" if n == 1 else f"v[{b}:{b + n - 1}]"


def sr(b, n=1):
    return f"s{b}" if n == 1 else f"s[{b}:{b + n - 1}]"


def srd(a, d, lo, hi, size):
    a(f"s_mov_b32 s{d}, s{lo}")
    a(f"s_and_b32 s{d + 1}, s{hi}, 0xffff")
    a(f"s_mov_b32 s{d + 2}, {size}")
    a(f"s_mov_b32 s{d + 3}, 0x00020000")


def srd_off(a, d, lo, hi, off, size):
    a(f"s_add_u32 s{d}, s{lo}, {off}")
    a(f"s_addc_u32 s{d + 1}, s{hi}, 0")
    a(f"s_and_b32 s{d + 1}, s{d + 1}, 0xffff")
    a(f"s_mov_b32 s{d + 2}, {size}")
    a(f"s_mov_b32 s{d + 3}, 0x00020000")


K1_STAGE = 45056
K1_LDS = 3 * K1_STAGE


def k1():
    a = Asm()
    a.label("k1_kernel")
    a("s_cmp_ge_u32 s2, 256")
    a("s_cbranch_scc1 K1_END")
    a("s_and_b32 s3, s2, 7")
    a("s_lshr_b32 s4, s2, 3")
    a("s_lshl_b32 s3, s3, 5")
    a("s_add_u32 s3, s3, s4")
    a("s_cmp_ge_u32 s3, 253")
    a("s_cbranch_scc1 K1_END")
    a("s_mul_i32 s25, s3, 373")
    a("s_lshr_b32 s25, s25, 12")
    a("s_mul_i32 s4, s25, 11")
    a("s_sub_u32 s24, s3, s4")
    a("s_load_dwordx2 s[4:5], s[0:1], 0")
    a("s_load_dwordx2 s[6:7], s[0:1], 8")
    a("s_load_dwordx2 s[8:9], s[0:1], 32")
    a("s_load_dwordx2 s[10:11], s[0:1], 72")
    a("v_and_b32 v1, 63, v0")
    a("v_lshrrev_b32 v2, 6, v0")
    a("s_nop 0")
    a("v_readfirstlane_b32 s26, v2")
    a("s_lshr_b32 s27, s25, 2")
    a("s_min_u32 s27, s27, 3")
    a("s_mul_i32 s30, s24, 192")
    a("s_waitcnt lgkmcnt(0)")
    srd(a, 12, 4, 5, SZ_X)
    a("s_sub_u32 s29, s25, 12")
    a(f"s_mov_b32 s18, {SZ_W1}")
    a("s_mov_b32 s28, 3456")
    a("s_cmp_lt_u32 s25, 12")
    a("s_cselect_b32 s16, s6, s8")
    a("s_cselect_b32 s17, s7, s9")
    a(f"s_cselect_b32 s18, {SZ_WQKV}, s18")
    a("s_cselect_b32 s28, 3840, s28")
    a("s_cselect_b32 s29, s25, s29")
    a("s_and_b32 s17, s17, 0xffff")
    a("s_mov_b32 s19, 0x00020000")
    a("s_mul_i32 s29, s29, 160")
    a(f"s_mov_b32 s31, {WS_KV}")
    a(f"s_mov_b32 s22, {SZ_KV}")
    a("s_cmp_eq_u32 s27, 0")
    a(f"s_cselect_b32 s31, {WS_Q}, s31")
    a(f"s_cselect_b32 s22, {SZ_Q}, s22")
    a("s_cmp_eq_u32 s27, 3")
    a(f"s_cselect_b32 s31, {WS_H}, s31")
    a(f"s_cselect_b32 s22, {SZ_H}, s22")
    a("s_add_u32 s20, s10, s31")
    a("s_addc_u32 s21, s11, 0")
    a("s_and_b32 s21, s21, 0xffff")
    a("s_mov_b32 s23, 0x00020000")
    prof_init(a, 10, 11, 26, 0)
    prof(a, 0)
    a("s_lshr_b32 s32, s26, 1")
    a("s_and_b32 s33, s26, 1")
    a("v_lshrrev_b32 v2, 3, v1")
    a("v_and_b32 v3, 7, v1")
    a("v_xor_b32 v3, v3, v2")
    a("v_lshlrev_b32 v3, 4, v3")
    a("v_mul_u32_u24 v2, 1280, v2")
    a("v_add_u32 v4, v2, v3")
    a("v_add_u32 v5, 10240, v4")
    a("v_add_u32 v6, 20480, v4")
    a("s_mul_i32 s34, s26, 24")
    a("s_add_u32 s34, s34, s30")
    a("s_mul_i32 s34, s34, 1280")
    a("s_mov_b32 s35, 0")
    a("s_lshl_b32 s36, s28, 6")
    a("s_add_u32 s37, s26, 8")
    a("s_add_u32 s38, s26, 16")
    a("s_cmp_lt_u32 s26, 4")
    a("s_cselect_b32 s38, s38, s37")
    a("s_lshl_b32 s39, s29, 1")
    for j, sidx in enumerate((26, 37, 38)):
        a(f"s_lshl_b32 s40, s{sidx}, 6")
        a("v_add_u32 v2, s40, v1")
        a("v_mul_u32_u24 v3, 3277, v2")
        a("v_lshrrev_b32 v3, 16, v3")
        a("v_mul_u32_u24 v22, 20, v3")
        a("v_sub_u32 v2, v2, v22")
        a("v_lshrrev_b32 v22, 2, v3")
        a("v_and_b32 v22, 2, v22")
        a("v_xor_b32 v2, v2, v22")
        a("v_lshlrev_b32 v2, 4, v2")
        a("v_mul_lo_u32 v3, v3, s28")
        a(f"v_add3_u32 v{7 + j}, v2, v3, s39")
    a("s_mul_i32 s41, s26, 3072")
    a("s_lshl_b32 s42, s26, 10")
    a("s_add_u32 s42, s42, 24576")
    a("s_lshl_b32 s43, s37, 10")
    a("s_add_u32 s43, s43, 24576")
    a("s_lshl_b32 s44, s38, 10")
    a("s_add_u32 s44, s44, 24576")

    def dma(buf):
        base = buf * K1_STAGE
        for j in range(3):
            a(f"s_add_u32 m0, s41, {base + j * 1024}")
            a("s_nop 0")
            a(f"buffer_load_dwordx4 v{4 + j}, s[12:15], s34 offen lds")
        for j in range(3):
            a(f"s_add_u32 m0, s{42 + j}, {base}")
            a("s_nop 0")
            a(f"buffer_load_dwordx4 v{7 + j}, s[16:19], s35 offen lds")
        a("s_add_u32 s34, s34, 128")
        a("s_add_u32 s35, s35, s36")

    dma(0)
    dma(1)
    a("v_lshrrev_b32 v22, 4, v1")
    a("v_and_b32 v23, 15, v1")
    a("s_mul_i32 s45, s32, 48")
    a("v_add_u32 v2, s45, v23")
    a("v_lshlrev_b32 v2, 7, v2")
    a("v_and_b32 v3, 7, v23")
    a("v_xor_b32 v3, v3, v22")
    a("v_lshlrev_b32 v3, 4, v3")
    a("v_add_u32 v10, v2, v3")
    a("v_xor_b32 v11, 64, v10")
    for b in (1, 2):
        a(f"v_add_u32 v{10 + 2 * b}, {b * K1_STAGE}, v10")
        a(f"v_add_u32 v{11 + 2 * b}, {b * K1_STAGE}, v11")
    a("v_lshlrev_b32 v2, 3, v22")
    a("v_lshrrev_b32 v3, 2, v23")
    a("v_add_u32 v2, v2, v3")
    a("v_mul_u32_u24 v2, 320, v2")
    a("v_and_b32 v3, 3, v23")
    a("v_lshlrev_b32 v3, 3, v3")
    a("s_mul_i32 s45, s33, 160")
    a("s_add_u32 s45, s45, 24576")
    a("v_add3_u32 v2, v2, v3, s45")
    a("v_and_b32 v3, 1, v22")
    a("v_lshlrev_b32 v3, 5, v3")
    a("s_cmp_eq_u32 s33, 0")
    a("s_cselect_b32 s45, 1, -1")
    a("v_mul_lo_u32 v3, v3, s45")
    a("v_add_u32 v16, v2, v3")
    a("v_sub_u32 v17, v2, v3")
    for b in (1, 2):
        a(f"v_add_u32 v{16 + 2 * b}, {b * K1_STAGE}, v16")
        a(f"v_add_u32 v{17 + 2 * b}, {b * K1_STAGE}, v17")

    XF = (24, 36)
    WF = (48, 68)
    ACC = 88

    def reads(buf, sub, st):
        r = []
        for ti in range(3):
            r.append(f"ds_read_b128 {vr(XF[st] + 4 * ti, 4)}, v{10 + 2 * buf + sub} offset:{ti * 2048}")
        for ni in range(5):
            ad = 16 + 2 * buf + (ni & 1)
            off = ni * 32 + sub * 10240
            r.append(f"ds_read_b64_tr_b16 {vr(WF[st] + 4 * ni, 2)}, v{ad} offset:{off}")
            r.append(f"ds_read_b64_tr_b16 {vr(WF[st] + 4 * ni + 2, 2)}, v{ad} offset:{off + 1280}")
        return r

    def mfmas(st, vor, first):
        m = []
        for ni in range(5):
            for ti in range(3):
                d = ACC + 4 * (ni * 3 + ti)
                c = "0" if first else vr(d, 4)
                w = vr(WF[st] + 4 * ni, 4)
                x = vr(XF[st] + 4 * ti, 4)
                if vor:
                    m.append(f"v_mfma_f32_16x16x32_bf16 {vr(d, 4)}, {x}, {w}, {c}")
                else:
                    m.append(f"v_mfma_f32_16x16x32_bf16 {vr(d, 4)}, {w}, {x}, {c}")
        return m

    def loop(vor):
        for ks in range(10):
            buf = ks % 3
            a(f"s_waitcnt vmcnt({6 if ks < 9 else 0})")
            a("s_barrier")
            prof(a, 1 + ks)
            if ks + 2 < 10:
                dma((ks + 2) % 3)
            for r in reads(buf, 0, 0):
                a(r)
            a("s_waitcnt lgkmcnt(0)")
            r1 = reads(buf, 1, 1)
            m0 = mfmas(0, vor, ks == 0)
            for i, m in enumerate(m0):
                a(m)
                if i < len(r1):
                    a(r1[i])
            a("s_waitcnt lgkmcnt(0)")
            for m in mfmas(1, vor, False):
                a(m)
        a("s_nop 7")
        a("s_nop 3")
        prof(a, 11)

    a("s_cmp_eq_u32 s27, 2")
    a("s_cbranch_scc1 K1_VLOOP")
    loop(False)
    a("s_mul_i32 s45, s32, 48")
    a("s_add_u32 s45, s45, s30")
    a("s_cmp_eq_u32 s27, 3")
    a("s_cbranch_scc1 K1_EPI_FFN")
    a("s_and_b32 s46, s25, 3")
    a("s_lshl_b32 s46, s46, 3")
    a("s_lshl_b32 s47, s33, 2")
    a("s_add_u32 s46, s46, s47")
    a(f"s_mov_b32 s47, {HEAD_KV}")
    a("s_cmp_eq_u32 s27, 0")
    a(f"s_cselect_b32 s47, {2048 * 48}, s47")
    a(f"s_cselect_b32 s48, {f32bits(C_SCALE)}, 1.0")
    NO = 148
    for ni in range(5):
        a(f"v_add_u32 v2, {4 * ni}, v22")
        a("v_mul_u32_u24 v3, 13, v2")
        a("v_lshrrev_b32 v3, 6, v3")
        a("v_mul_u32_u24 v4, 5, v3")
        a(f"v_sub_u32 v{NO + 5 + ni}, v2, v4")
        a("v_add_u32 v3, s46, v3")
        a("v_mul_lo_u32 v3, v3, s47")
        a(f"v_lshl_add_u32 v{NO + ni}, v{NO + 5 + ni}, 3, v3")
    TO = 158
    for ti in range(3):
        a(f"s_add_u32 s49, s45, {16 * ti}")
        a("v_add_u32 v2, s49, v23")
        a("s_cmp_eq_u32 s27, 0")
        a(f"s_cbranch_scc1 K1_TQ{ti}")
        a("v_lshrrev_b32 v3, 5, v2")
        a("v_mul_u32_u24 v3, 2880, v3")
        a("v_and_b32 v2, 31, v2")
        a("v_mul_u32_u24 v2, 48, v2")
        a(f"v_add_u32 v{TO + ti}, v2, v3")
        a(f"s_branch K1_TD{ti}")
        a.label(f"K1_TQ{ti}")
        a(f"v_mul_u32_u24 v{TO + ti}, 48, v2")
        a.label(f"K1_TD{ti}")
    a("v_mov_b32 v8, 0x3f803f80")
    a("v_mov_b32 v9, 0x00003f80")
    for ti in range(3):
        a(f"s_add_u32 s49, s45, {16 * ti}")
        a("s_cmp_ge_u32 s49, 2048")
        a(f"s_cbranch_scc1 K1_QK_SKIP{ti}")
        for ni in range(5):
            d = ACC + 4 * (ni * 3 + ti)
            for i in range(4):
                a(f"v_mul_f32 v{d + i}, s48, v{d + i}")
            a(f"v_cvt_pk_bf16_f32 v4, v{d}, v{d + 1}")
            a(f"v_cvt_pk_bf16_f32 v5, v{d + 2}, v{d + 3}")
            a(f"v_add_u32 v6, v{NO + ni}, v{TO + ti}")
            a("buffer_store_dwordx2 v[4:5], v6, s[20:23], 0 offen")
            if ni >= 1:
                a("s_cmp_eq_u32 s27, 1")
                a(f"s_cbranch_scc0 K1_NOC{ti}_{ni}")
                a(f"v_cmp_eq_u32 vcc, 4, v{NO + 5 + ni}")
                a("s_and_saveexec_b64 s[50:51], vcc")
                a("buffer_store_dwordx2 v[8:9], v6, s[20:23], 0 offen offset:8")
                a("s_mov_b64 exec, s[50:51]")
                a.label(f"K1_NOC{ti}_{ni}")
        a.label(f"K1_QK_SKIP{ti}")
    a("s_branch K1_PEND")
    a.label("K1_EPI_FFN")
    a("s_mul_i32 s46, s33, 80")
    a("s_add_u32 s46, s46, s29")
    a("v_lshlrev_b32 v7, 3, v22")
    a("s_lshl_b32 s47, s46, 1")
    a("v_add_u32 v7, s47, v7")
    for ti in range(3):
        a(f"s_add_u32 s49, s45, {16 * ti}")
        a("s_cmp_ge_u32 s49, 2048")
        a(f"s_cbranch_scc1 K1_F_SKIP{ti}")
        a("v_add_u32 v2, s49, v23")
        a("v_mul_u32_u24 v2, 3456, v2")
        a("v_add_u32 v6, v2, v7")
        for ni in range(5):
            d = ACC + 4 * (ni * 3 + ti)
            a(f"s_add_u32 s50, s46, {16 * ni}")
            a("s_cmp_ge_u32 s50, 1728")
            a(f"s_cbranch_scc1 K1_F_SK{ti}_{ni}")
            for i in range(4):
                a(f"v_max_f32 v{d + i}, 0, v{d + i}")
            a(f"v_cvt_pk_bf16_f32 v4, v{d}, v{d + 1}")
            a(f"v_cvt_pk_bf16_f32 v5, v{d + 2}, v{d + 3}")
            a(f"buffer_store_dwordx2 v[4:5], v6, s[20:23], 0 offen offset:{32 * ni}")
            a.label(f"K1_F_SK{ti}_{ni}")
        a.label(f"K1_F_SKIP{ti}")
    a("s_branch K1_PEND")
    a.label("K1_VLOOP")
    loop(True)
    a("s_mul_i32 s45, s32, 48")
    a("s_add_u32 s45, s45, s30")
    a("s_and_b32 s46, s25, 3")
    a("s_lshl_b32 s46, s46, 3")
    a("s_lshl_b32 s47, s33, 2")
    a("s_add_u32 s46, s46, s47")
    a(f"s_mov_b32 s47, {HEAD_KV}")
    for ni in range(5):
        a(f"v_add_u32 v2, {16 * ni}, v23")
        a("v_mul_u32_u24 v3, 205, v2")
        a("v_lshrrev_b32 v3, 12, v3")
        a("v_mul_u32_u24 v4, 20, v3")
        a(f"v_sub_u32 v{NO + 10 + ni}, v2, v4")
        a("v_add_u32 v3, s46, v3")
        a("v_mul_lo_u32 v3, v3, s47")
        a(f"v_lshlrev_b32 v4, 6, v{NO + 10 + ni}")
        a(f"v_add3_u32 v{NO + ni}, v3, v4, 64")
        a(f"v_add_u32 v{NO + ni}, 1472, v{NO + ni}")
        a(f"v_bfe_u32 v{NO + 5 + ni}, v{NO + 10 + ni}, 2, 2")
    a("v_mov_b32 v8, 0x3f803f80")
    a("v_mov_b32 v9, 0x3f803f80")
    for ti in range(3):
        a(f"s_add_u32 s49, s45, {16 * ti}")
        a("s_cmp_ge_u32 s49, 2048")
        a(f"s_cbranch_scc1 K1_V_SKIP{ti}")
        a("v_lshlrev_b32 v2, 2, v22")
        a("v_add_u32 v2, s49, v2")
        a("v_lshrrev_b32 v3, 5, v2")
        a("v_mul_u32_u24 v3, 2880, v3")
        a("v_bfe_u32 v2, v2, 2, 3")
        a("v_bfe_u32 v4, v2, 1, 1")
        a("v_lshl_add_u32 v10, v4, 3, v3")
        a("v_lshrrev_b32 v4, 1, v2")
        a("v_and_b32 v4, 2, v4")
        a("v_and_b32 v2, 1, v2")
        a("v_or_b32 v11, v2, v4")
        for ni in range(5):
            d = ACC + 4 * (ni * 3 + ti)
            a(f"v_cvt_pk_bf16_f32 v4, v{d}, v{d + 1}")
            a(f"v_cvt_pk_bf16_f32 v5, v{d + 2}, v{d + 3}")
            a(f"v_xor_b32 v6, v11, v{NO + 5 + ni}")
            a("v_lshlrev_b32 v6, 4, v6")
            a(f"v_add3_u32 v6, v6, v10, v{NO + ni}")
            a("buffer_store_dwordx2 v[4:5], v6, s[20:23], 0 offen")
            if ni < 4:
                a("v_xor_b32 v7, 1, v11")
                a("v_lshlrev_b32 v7, 4, v7")
                a(f"v_add3_u32 v7, v7, v10, v{NO + ni}")
                a(f"v_cmp_eq_u32 vcc, 0, v{NO + 10 + ni}")
                a("s_and_saveexec_b64 s[50:51], vcc")
                a("buffer_store_dwordx2 v[8:9], v7, s[20:23], 0 offen offset:1280")
                a("s_mov_b64 exec, s[50:51]")
        a.label(f"K1_V_SKIP{ti}")
    a.label("K1_PEND")
    prof(a, 12)
    a.label("K1_END")
    a("s_endpgm")
    return a.text()


GS_SLOT = 9216


class GW:
    VA = 4
    VW = 8
    RA = 13
    RW = 14
    AF = 24
    WF = 40
    ACC = 60


def gw_setup(a, sR0, sC0B, strideA, sLds):
    a("v_lshrrev_b32 v22, 4, v1")
    a("v_and_b32 v23, 15, v1")
    a("v_lshrrev_b32 v2, 2, v1")
    a("v_sub_u32 v3, 0, v22")
    a("v_and_b32 v3, 3, v3")
    a("v_and_b32 v15, 3, v1")
    a("v_xor_b32 v3, v3, v15")
    a("v_lshlrev_b32 v3, 4, v3")
    a(f"v_add_u32 v2, s{sR0}, v2")
    a(f"s_mov_b32 s60, {strideA}")
    a("v_mul_lo_u32 v2, v2, s60")
    a(f"v_add_u32 v{GW.VA}, v2, v3")
    for i in range(1, 4):
        a(f"v_add_u32 v{GW.VA + i}, {16 * i * strideA}, v{GW.VA}")
    for i in range(5):
        a(f"v_add_u32 v2, {64 * i}, v1")
        a("v_mul_u32_u24 v3, 6554, v2")
        a("v_lshrrev_b32 v3, 16, v3")
        a("v_mul_u32_u24 v15, 10, v3")
        a("v_sub_u32 v2, v2, v15")
        a("v_lshlrev_b32 v2, 4, v2")
        a("v_mul_u32_u24 v3, 1280, v3")
        a(f"v_add3_u32 v{GW.VW + i}, v2, v3, s{sC0B}")
    a("v_lshrrev_b32 v2, 2, v23")
    a("v_sub_u32 v2, 0, v2")
    a("v_and_b32 v2, 3, v2")
    a("v_xor_b32 v2, v2, v22")
    a("v_lshlrev_b32 v2, 4, v2")
    a("v_lshl_add_u32 v2, v23, 6, v2")
    a(f"v_add_u32 v{GW.RA}, s{sLds}, v2")
    a("v_lshlrev_b32 v2, 3, v22")
    a("v_lshrrev_b32 v3, 2, v23")
    a("v_add_u32 v2, v2, v3")
    a("v_mul_u32_u24 v2, 160, v2")
    a("v_and_b32 v3, 3, v23")
    a("v_lshlrev_b32 v3, 3, v3")
    a("v_add_u32 v2, 4096, v2")
    a(f"v_add3_u32 v{GW.RW}, v2, v3, s{sLds}")


def gw_issue(a, slot, srdA, srdW, sKA, sKW, sLds):
    for i in range(4):
        a(f"s_add_u32 m0, s{sLds}, {slot * GS_SLOT + i * 1024}")
        a("s_nop 0")
        a(f"buffer_load_dwordx4 v{GW.VA + i}, {sr(srdA, 4)}, s{sKA} offen lds")
    for i in range(5):
        a(f"s_add_u32 m0, s{sLds}, {slot * GS_SLOT + 4096 + i * 1024}")
        a("s_nop 0")
        a(f"buffer_load_dwordx4 v{GW.VW + i}, {sr(srdW, 4)}, s{sKW} offen lds")
    a(f"s_add_u32 s{sKA}, s{sKA}, 64")
    a(f"s_add_u32 s{sKW}, s{sKW}, {32 * 1280}")


def gw_compute(a, slot, first):
    for t in range(4):
        a(f"ds_read_b128 {vr(GW.AF + 4 * t, 4)}, v{GW.RA} offset:{slot * GS_SLOT + t * 1024}")
    for n in range(5):
        off = slot * GS_SLOT + n * 32
        a(f"ds_read_b64_tr_b16 {vr(GW.WF + 4 * n, 2)}, v{GW.RW} offset:{off}")
        a(f"ds_read_b64_tr_b16 {vr(GW.WF + 4 * n + 2, 2)}, v{GW.RW} offset:{off + 640}")
    a("s_waitcnt lgkmcnt(0)")
    for n in range(5):
        for t in range(4):
            d = GW.ACC + 4 * (n * 4 + t)
            c = "0" if first else vr(d, 4)
            a(f"v_mfma_f32_16x16x32_bf16 {vr(d, 4)}, {vr(GW.WF + 4 * n, 4)}, {vr(GW.AF + 4 * t, 4)}, {c}")


def gw_write_partials(a, sRed):
    a("v_mul_u32_u24 v2, 320, v23")
    a("v_lshl_add_u32 v2, v22, 4, v2")
    a(f"v_add_u32 v2, s{sRed}, v2")
    for n in range(5):
        for t in range(4):
            d = GW.ACC + 4 * (n * 4 + t)
            a(f"ds_write_b128 v2, {vr(d, 4)} offset:{t * 5120 + n * 64}")


def gw_read_sum(a, sW4, redbase):
    a("v_lshrrev_b32 v2, 2, v1")
    a(f"s_lshl_b32 s60, s{sW4}, 4")
    a("v_add_u32 v2, s60, v2")
    a("v_mul_u32_u24 v2, 320, v2")
    a("v_and_b32 v3, 3, v1")
    a("v_mul_u32_u24 v3, 80, v3")
    a("v_add_u32 v2, v2, v3")
    if redbase:
        a(f"v_add_u32 v2, {redbase}, v2")
    R = 24
    for src in range(4):
        for j in range(5):
            a(f"ds_read_b128 {vr(R + 20 * src + 4 * j, 4)}, v2 offset:{src * 20480 + j * 16}")
        a("s_waitcnt lgkmcnt(0)")
    for e in range(20):
        a(f"v_add_f32 v{R + e}, v{R + e}, v{R + 20 + e}")
        a(f"v_add_f32 v{R + 40 + e}, v{R + 40 + e}, v{R + 60 + e}")
    for e in range(20):
        a(f"v_add_f32 v{R + e}, v{R + e}, v{R + 40 + e}")


def tile_map(a, sRt, sCt):
    a("s_and_b32 s60, s2, 7")
    a("s_lshr_b32 s61, s2, 3")
    a("s_lshr_b32 s62, s60, 1")
    a("s_lshl_b32 s62, s62, 3")
    a("s_lshr_b32 s63, s61, 2")
    a(f"s_add_u32 s{sRt}, s62, s63")
    a("s_and_b32 s62, s60, 1")
    a("s_lshl_b32 s62, s62, 2")
    a("s_and_b32 s63, s61, 3")
    a(f"s_add_u32 s{sCt}, s62, s63")


K2_BUF = 24576
K2_FFN = 3 * K2_BUF
K2_FLAG = K2_FFN + 4 * 20480
K2_LDS = K2_FLAG + 64


def k2():
    a = Asm()
    a.label("k2_kernel")
    a("s_cmp_ge_u32 s2, 256")
    a("s_cbranch_scc1 K2_END")
    a("s_and_b32 s3, s2, 7")
    a("s_lshl_b32 s3, s3, 2")
    a("s_lshr_b32 s4, s2, 3")
    a("s_and_b32 s4, s4, 3")
    a("s_add_u32 s36, s3, s4")
    a("s_lshr_b32 s37, s2, 5")
    a("s_load_dwordx2 s[4:5], s[0:1], 0")
    a("s_load_dwordx2 s[6:7], s[0:1], 48")
    a("s_load_dwordx2 s[8:9], s[0:1], 72")
    a("v_and_b32 v1, 63, v0")
    a("v_lshrrev_b32 v2, 6, v0")
    a("s_nop 0")
    a("v_readfirstlane_b32 s38, v2")
    a("s_waitcnt lgkmcnt(0)")
    a("s_cmp_ge_u32 s38, 8")
    a("s_cbranch_scc1 K2_FFN")
    a("s_setprio 1")
    srd_off(a, 12, 8, 9, WS_KV, SZ_KV)
    srd_off(a, 16, 8, 9, WS_Q, SZ_Q)
    srd_off(a, 20, 8, 9, WS_O, SZ_O)
    srd(a, 24, 4, 5, SZ_X)
    srd(a, 28, 6, 7, 1280)
    srd_off(a, 32, 8, 9, WS_G, SZ_G)
    prof_init(a, 8, 9, 38, 1)
    prof(a, 0)
    a("v_lshlrev_b32 v16, 4, v1")
    a("s_mul_i32 s46, s38, 3072")
    a(f"s_mul_i32 s45, s36, {HEAD_KV}")
    a("s_add_u32 s45, s45, s46")
    a("s_mov_b32 s44, s45")
    a("s_mov_b32 s41, 0")
    a(f"s_mov_b32 s42, {K2_BUF}")
    a(f"s_mov_b32 s43, {2 * K2_BUF}")
    a("s_mov_b32 s40, 0")
    for sg in (41, 42):
        a(f"s_add_u32 m0, s{sg}, s46")
        a("s_nop 0")
        for j in range(3):
            a(f"buffer_load_dwordx4 v16, s[12:15], s44 offen offset:{1024 * j} lds")
        a("s_add_u32 s44, s44, 23040")
    a("v_mov_b32 v2, 0")
    a(f"v_mov_b32 v3, {K2_FLAG}")
    a("ds_write_b32 v3, v2")
    a("v_and_b32 v17, 31, v1")
    a("v_lshrrev_b32 v18, 5, v1")
    a("s_lshl_b32 s47, s37, 8")
    a("s_lshl_b32 s48, s38, 5")
    a("s_add_u32 s47, s47, s48")
    a("v_add_u32 v2, s47, v17")
    a("v_mul_u32_u24 v2, 48, v2")
    a("s_mul_i32 s48, s36, 98304")
    a("v_add_u32 v2, s48, v2")
    a("v_lshl_add_u32 v3, v18, 4, v2")
    a("buffer_load_dwordx4 v[20:23], v3, s[16:19], 0 offen")
    a("buffer_load_dwordx2 v[24:25], v2, s[16:19], 0 offen offset:32")
    a("s_lshl_b32 s48, s37, 8")
    a("s_lshl_b32 s49, s36, 3")
    a("s_add_u32 s48, s48, s49")
    a("s_add_u32 s48, s48, s38")
    a("s_mul_i32 s49, s48, 1280")
    a("v_mul_u32_u24 v2, 20, v1")
    a("buffer_load_dwordx4 v[116:119], v2, s[24:27], s49 offen")
    a("buffer_load_dword v120, v2, s[24:27], s49 offen offset:16")
    a("buffer_load_dwordx4 v[122:125], v2, s[28:31], 0 offen")
    a("buffer_load_dword v126, v2, s[28:31], 0 offen offset:16")
    a("v_mul_u32_u24 v2, 48, v17")
    a("v_lshl_add_u32 v12, v18, 4, v2")
    a("v_add_u32 v13, 32, v2")
    a("v_bfe_u32 v3, v17, 2, 2")
    a("v_lshlrev_b32 v2, 6, v17")
    a("v_add_u32 v2, 1536, v2")
    a("v_xor_b32 v19, v18, v3")
    a("v_lshl_add_u32 v14, v19, 4, v2")
    a("v_add_u32 v19, 2, v18")
    a("v_xor_b32 v19, v19, v3")
    a("v_lshl_add_u32 v15, v19, 4, v2")
    a("s_waitcnt vmcnt(0)")
    a("v_mov_b32 v2, 0")
    for j in range(5):
        xv = 116 + j
        gv = 122 + j
        a(f"v_lshlrev_b32 v3, 16, v{xv}")
        a(f"v_and_b32 v19, 0xffff0000, v{xv}")
        a(f"v_lshlrev_b32 v127, 16, v{gv}")
        a(f"v_and_b32 v128, 0xffff0000, v{gv}")
        a("v_mul_f32 v3, v3, v127")
        a("v_mul_f32 v19, v19, v128")
        a("v_cvt_pk_bf16_f32 v3, v3, v19")
        a("v_lshlrev_b32 v19, 16, v3")
        a("v_and_b32 v3, 0xffff0000, v3")
        a("v_add_f32 v2, v2, v19")
        a("v_add_f32 v2, v2, v3")
    for sh in (1, 2, 4, 8):
        a("s_nop 1")
        a(f"v_add_f32_dpp v2, v2, v2 row_shr:{sh} row_mask:0xf bank_mask:0xf")
    a("s_nop 1")
    a("v_add_f32_dpp v2, v2, v2 row_bcast:15 row_mask:0xa bank_mask:0xf")
    a("s_nop 1")
    a("v_add_f32_dpp v2, v2, v2 row_bcast:31 row_mask:0xc bank_mask:0xf")
    a("s_nop 1")
    a("v_cvt_pk_bf16_f32 v2, v2, v2")
    a("v_lshlrev_b32 v2, 16, v2")
    a(f"v_mul_f32 v2, {f32bits(-LOG2E)}, v2")
    a("v_exp_f32 v2, v2")
    a("s_nop 0")
    a("v_add_f32 v2, 1.0, v2")
    a("v_rcp_f32 v2, v2")
    a("s_nop 0")
    a("v_cvt_pk_bf16_f32 v2, v2, v2")
    a("v_lshlrev_b32 v2, 16, v2")
    a("s_lshl_b32 s49, s48, 2")
    a("v_mov_b32 v3, 0")
    a("v_cmp_eq_u32 vcc, 63, v1")
    a("s_and_saveexec_b64 s[50:51], vcc")
    a("buffer_store_dword v2, v3, s[32:35], s49 offen")
    a("s_mov_b64 exec, s[50:51]")
    a("v_cmp_eq_u32 vcc, 0, v18")
    a("s_nop 1")
    a("v_cndmask_b32 v24, 0, v24, vcc")
    a("v_cndmask_b32 v25, 0, v25, vcc")
    a("v_mov_b32 v26, 0")
    a("v_mov_b32 v27, 0")
    a("s_mov_b32 s39, 0")

    QF0, QF1 = 20, 24
    KF = (28, 36)
    VF = (44, 52)
    P = 60
    S = (68, 84)
    O = 100

    def dma_stage(lds_sreg):
        a(f"s_add_u32 m0, s{lds_sreg}, s46")
        a("s_nop 0")
        for j in range(3):
            a(f"buffer_load_dwordx4 v16, s[12:15], s44 offen offset:{1024 * j} lds")
        a("s_add_u32 s44, s44, 23040")

    def set_addrs(dst, sbase):
        for i in range(4):
            a(f"v_add_u32 v{dst + i}, s{sbase}, v{12 + i}")

    def kread(st, idx):
        base = 4 if idx < 8 else 8
        off = (idx % 8) * 2880
        return [f"ds_read_b128 {vr(KF[st], 4)}, v{base} offset:{off}",
                f"ds_read_b128 {vr(KF[st] + 4, 4)}, v{base + 1} offset:{off}"]

    def vread(st, idx):
        base = 4 if idx < 8 else 8
        off = (idx % 8) * 2880
        return [f"ds_read_b128 {vr(VF[st], 4)}, v{base + 2} offset:{off}",
                f"ds_read_b128 {vr(VF[st] + 4, 4)}, v{base + 3} offset:{off}"]

    def qk(st, sst):
        a(f"v_mfma_f32_32x32x16_bf16 {vr(S[sst], 16)}, {vr(KF[st], 4)}, {vr(QF0, 4)}, 0")
        a(f"v_mfma_f32_32x32x16_bf16 {vr(S[sst], 16)}, {vr(KF[st] + 4, 4)}, {vr(QF1, 4)}, {vr(S[sst], 16)}")

    def set_m_from(mreg):
        a(f"v_mov_b32 v3, v{mreg}")
        a("s_nop 1")
        a(f"v_permlane32_swap_b32 v{mreg}, v3")
        a("s_nop 1")
        a(f"v_max_f32 v2, v{mreg}, v3")
        a("v_and_b32 v3, 0xffff0000, v2")
        a("v_sub_f32 v2, v2, v3")
        a("v_and_b32 v19, 0xffff0000, v2")
        a("v_sub_f32 v2, v2, v19")
        a("v_xor_b32 v3, 0x80000000, v3")
        a("v_xor_b32 v19, 0x80000000, v19")
        a("v_xor_b32 v2, 0x80000000, v2")
        a("v_lshrrev_b32 v3, 16, v3")
        a("v_or_b32 v3, v3, v19")
        a("v_lshrrev_b32 v2, 16, v2")
        a("v_cmp_eq_u32 vcc, 0, v18")
        a("s_nop 1")
        a("v_cndmask_b32 v26, 0, v3, vcc")
        a("v_cndmask_b32 v27, 0, v2, vcc")
        a("s_nop 1")

    def start_stream():
        a("s_mov_b32 s44, s45")
        a("s_mov_b32 s41, 0")
        a(f"s_mov_b32 s42, {K2_BUF}")
        a(f"s_mov_b32 s43, {2 * K2_BUF}")
        dma_stage(41)
        dma_stage(42)
        set_addrs(4, 41)
        set_addrs(8, 42)
        a("s_mov_b32 s40, 0")

    def stage_head(lbl):
        a("s_waitcnt vmcnt(0) lgkmcnt(0)")
        a("s_barrier")
        a("s_cmp_ge_u32 s40, 6")
        a(f"s_cbranch_scc1 {lbl}")
        dma_stage(43)
        a.label(lbl)

    def stage_rotate():
        a("s_mov_b32 s47, s41")
        a("s_mov_b32 s41, s42")
        a("s_mov_b32 s42, s43")
        a("s_mov_b32 s43, s47")
        for i in range(4):
            a(f"v_mov_b32 v{4 + i}, v{8 + i}")
        set_addrs(8, 42)
        a("s_add_u32 s40, s40, 1")

    a.label("K2_MAIN")
    prof(a, 1)
    a("s_cmp_eq_u32 s39, 0")
    a("s_cbranch_scc1 K2_STARTED")
    start_stream()
    a.label("K2_STARTED")
    set_addrs(4, 41)
    set_addrs(8, 42)
    for i in range(16):
        a(f"v_mov_b32 v{O + i}, 0")
    for i in range(4):
        a(f"v_mov_b32 v{P + 4 + i}, 0")
        a(f"v_mov_b32 v{VF[1] + 4 + i}, 0")
    a.label("K2_STAGE")
    stage_head("K2_NODMA")
    a("s_cmp_lg_u32 s40, 0")
    a("s_cbranch_scc1 K2_BODY")
    for r in kread(0, 0):
        a(r)
    a("s_cmp_lg_u32 s39, 0")
    a("s_cbranch_scc1 K2_PRIME")
    a("s_waitcnt lgkmcnt(0)")
    qk(0, 0)
    a("s_nop 15")
    a("s_nop 3")
    s0 = S[0]
    a(f"v_max3_f32 v116, v{s0}, v{s0 + 1}, v{s0 + 2}")
    for i in range(3, 15, 2):
        a(f"v_max3_f32 v116, v116, v{s0 + i}, v{s0 + i + 1}")
    a(f"v_max_f32 v116, v116, v{s0 + 15}")
    set_m_from(116)
    a.label("K2_PRIME")
    for r in kread(1, 1):
        a(r)
    for r in vread(0, 0):
        a(r)
    a("s_waitcnt lgkmcnt(4)")
    qk(0, 0)
    a("s_nop 15")
    prof(a, 2)
    a.label("K2_BODY")
    for t in range(8):
        c = t % 2
        n = 1 - c
        sc = S[c]
        sn = S[n]

        def ex(lo):
            for i in range(lo, lo + 4):
                a(f"v_exp_f32 v{sc + i}, v{sc + i}")

        def cv(lo):
            for i in range(lo, lo + 4):
                a(f"v_cvt_pk_bf16_f32 v{P + i}, v{sc + 2 * i}, v{sc + 2 * i + 1}")
        ex(0)
        a(f"v_mfma_f32_32x32x16_bf16 {vr(O, 16)}, {vr(VF[n] + 4, 4)}, {vr(P + 4, 4)}, {vr(O, 16)}")
        ex(4)
        a("s_waitcnt lgkmcnt(2)")
        a(f"v_mfma_f32_32x32x16_bf16 {vr(sn, 16)}, {vr(KF[n], 4)}, {vr(QF0, 4)}, 0")
        cv(0)
        for r in kread(c, t + 2):
            a(r)
        for r in vread(n, t + 1):
            a(r)
        ex(8)
        a(f"v_mfma_f32_32x32x16_bf16 {vr(sn, 16)}, {vr(KF[n] + 4, 4)}, {vr(QF1, 4)}, {vr(sn, 16)}")
        ex(12)
        a("s_waitcnt lgkmcnt(4)")
        a(f"v_mfma_f32_32x32x16_bf16 {vr(O, 16)}, {vr(VF[c], 4)}, {vr(P, 4)}, {vr(O, 16)}")
        cv(4)
    stage_rotate()
    if PROF:
        a("s_memtime s[88:89]")
        a("s_waitcnt lgkmcnt(0)")
        a("v_mov_b32 v2, s88")
        a("s_lshl_b32 s90, s40, 2")
        a("v_mov_b32 v3, s90")
        a("buffer_store_dword v2, v3, s[92:95], s91 offen offset:8")
    a("s_cmp_lt_u32 s40, 8")
    a("s_cbranch_scc1 K2_STAGE")
    a("s_nop 1")
    a(f"v_mfma_f32_32x32x16_bf16 {vr(O, 16)}, {vr(VF[1] + 4, 4)}, {vr(P + 4, 4)}, {vr(O, 16)}")
    a("s_nop 15")
    a("s_nop 3")
    a("s_cmp_lg_u32 s39, 0")
    a("s_cbranch_scc1 K2_EPI")
    a("v_mov_b32 v2, 0")
    for i in range(9):
        a(f"v_fma_f32 v2, v{O + i}, 0, v2")
    a("v_mov_b32 v3, 0")
    for i in range(9, 12):
        a(f"v_fma_f32 v3, v{O + i}, 0, v3")
    a("v_cmp_eq_u32 vcc, 0, v18")
    a("s_nop 1")
    a("v_cndmask_b32 v3, 0, v3, vcc")
    a("v_add_f32 v2, v2, v3")
    a("v_cmp_u_f32 vcc, v2, v2")
    a("s_nop 4")
    a("s_cbranch_vccz K2_VOTE")
    a("v_mov_b32 v2, 1")
    a(f"v_mov_b32 v3, {K2_FLAG}")
    a("ds_write_b32 v3, v2")
    a.label("K2_VOTE")
    a("s_waitcnt vmcnt(0) lgkmcnt(0)")
    a("s_barrier")
    a(f"v_mov_b32 v3, {K2_FLAG}")
    a("ds_read_b32 v2, v3")
    a("s_waitcnt lgkmcnt(0)")
    a("v_readfirstlane_b32 s47, v2")
    a("s_cmp_eq_u32 s47, 0")
    a("s_cbranch_scc1 K2_EPI")
    a("s_barrier")
    a("v_mov_b32 v26, 0")
    a("v_mov_b32 v27, 0")
    a(f"v_mov_b32 v117, {f32bits(float('-inf'))}")
    start_stream()
    a.label("K2_MSTAGE")
    stage_head("K2_MNODMA")
    for t in range(8):
        for r in kread(0, t):
            a(r)
        a("s_waitcnt lgkmcnt(0)")
        qk(0, 0)
        a("s_nop 15")
        a("s_nop 3")
        for i in range(0, 16, 2):
            a(f"v_max3_f32 v117, v117, v{s0 + i}, v{s0 + i + 1}")
    stage_rotate()
    a("s_cmp_lt_u32 s40, 8")
    a("s_cbranch_scc1 K2_MSTAGE")
    set_m_from(117)
    a("s_mov_b32 s39, 1")
    a("s_waitcnt vmcnt(0) lgkmcnt(0)")
    a("s_barrier")
    a("s_branch K2_MAIN")
    a.label("K2_EPI")
    a(f"v_mov_b32 v2, v{O + 8}")
    a(f"v_mov_b32 v3, v{O + 8}")
    a("s_nop 1")
    a("v_permlane32_swap_b32 v2, v3")
    a("s_nop 1")
    a("v_rcp_f32 v3, v3")
    a("s_nop 0")
    for i in range(12):
        a(f"v_mul_f32 v{O + i}, v{O + i}, v3")
    for i in range(6):
        a(f"v_cvt_pk_bf16_f32 v{P + i}, v{O + 2 * i}, v{O + 2 * i + 1}")
    a("s_lshl_b32 s47, s37, 8")
    a("s_lshl_b32 s48, s38, 5")
    a("s_add_u32 s47, s47, s48")
    a("v_add_u32 v2, s47, v17")
    a("v_mul_u32_u24 v2, 1280, v2")
    a("s_mul_i32 s48, s36, 40")
    a("v_lshl_add_u32 v2, v18, 3, v2")
    a("v_add_u32 v2, s48, v2")
    a(f"buffer_store_dwordx2 {vr(P, 2)}, v2, s[20:23], 0 offen")
    a(f"buffer_store_dwordx2 {vr(P + 2, 2)}, v2, s[20:23], 0 offen offset:16")
    a("v_cmp_eq_u32 vcc, 0, v18")
    a("s_and_saveexec_b64 s[50:51], vcc")
    a(f"buffer_store_dwordx2 {vr(P + 4, 2)}, v2, s[20:23], 0 offen offset:32")
    a("s_mov_b64 exec, s[50:51]")
    prof(a, 12)
    a.label("K2_END")
    a("s_endpgm")
    a.label("K2_FFN")
    a("s_load_dwordx2 s[6:7], s[0:1], 40")
    tile_map(a, 36, 37)
    a("s_sub_u32 s38, s38, 8")
    a("s_lshl_b32 s39, s36, 6")
    a("s_mul_i32 s40, s37, 160")
    a("s_mul_i32 s41, s38, 20480")
    a(f"s_add_u32 s41, s41, {K2_FFN}")
    a("s_mul_i32 s42, s38, 14")
    a("s_cmp_eq_u32 s38, 3")
    a("s_cselect_b32 s42, 41, s42")
    a("s_lshl_b32 s45, s42, 6")
    a(f"s_mul_i32 s46, s42, {32 * 1280}")
    a("s_waitcnt lgkmcnt(0)")
    srd(a, 16, 6, 7, SZ_W2)
    srd_off(a, 24, 8, 9, WS_H, SZ_H)
    srd_off(a, 28, 8, 9, WS_B, SZ_B)
    gw_setup(a, 39, 40, 3456, 41)
    gw_issue(a, 0, 24, 16, 45, 46, 41)
    for k in range(7):
        a("s_barrier")
        gw_issue(a, 1, 24, 16, 45, 46, 41)
        a("s_waitcnt vmcnt(9)")
        gw_compute(a, 0, k == 0)
        gw_issue(a, 0, 24, 16, 45, 46, 41)
        a("s_waitcnt vmcnt(9)")
        if k == 6:
            a("s_cmp_ge_u32 s38, 2")
            a("s_cbranch_scc1 K2_FSKIP")
        gw_compute(a, 1, False)
    a.label("K2_FSKIP")
    a("s_nop 7")
    a("s_nop 3")
    a("s_waitcnt vmcnt(0)")
    gw_write_partials(a, 41)
    a("s_waitcnt lgkmcnt(0)")
    a("s_barrier")
    gw_read_sum(a, 38, K2_FFN)
    for e in range(0, 20, 2):
        a(f"v_cvt_pk_bf16_f32 v{112 + e // 2}, v{24 + e}, v{25 + e}")
    a("v_lshrrev_b32 v2, 2, v1")
    a("s_lshl_b32 s42, s38, 4")
    a("s_add_u32 s42, s42, s39")
    a("v_add_u32 v2, s42, v2")
    a("v_mul_u32_u24 v2, 1280, v2")
    a("v_and_b32 v3, 3, v1")
    a("v_mul_u32_u24 v3, 40, v3")
    a("v_add3_u32 v2, v2, v3, s40")
    a("buffer_store_dwordx4 v[112:115], v2, s[28:31], 0 offen")
    a("buffer_store_dwordx4 v[116:119], v2, s[28:31], 0 offen offset:16")
    a("buffer_store_dwordx2 v[120:121], v2, s[28:31], 0 offen offset:32")
    a("s_endpgm")
    return a.text()


K3_NS = 4
K3_RING = K3_NS * GS_SLOT
K3_LDS = 4 * K3_RING


def k3():
    a = Asm()
    a.label("k3_kernel")
    a("s_cmp_ge_u32 s2, 256")
    a("s_cbranch_scc1 K3_END")
    a("s_load_dwordx2 s[4:5], s[0:1], 16")
    a("s_load_dwordx2 s[8:9], s[0:1], 72")
    a("s_load_dwordx2 s[10:11], s[0:1], 56")
    tile_map(a, 36, 37)
    a("v_and_b32 v1, 63, v0")
    a("v_lshrrev_b32 v2, 6, v0")
    a("s_nop 0")
    a("v_readfirstlane_b32 s38, v2")
    a("s_lshl_b32 s39, s36, 6")
    a("s_mul_i32 s40, s37, 160")
    a(f"s_mul_i32 s41, s38, {K3_RING}")
    a("s_mul_i32 s45, s38, 320")
    a(f"s_mul_i32 s46, s38, {160 * 1280}")
    a("s_waitcnt lgkmcnt(0)")
    srd(a, 12, 4, 5, SZ_WO)
    srd_off(a, 20, 8, 9, WS_O, SZ_O)
    srd_off(a, 24, 8, 9, WS_B, SZ_B)
    srd_off(a, 28, 8, 9, WS_G, SZ_G)
    srd(a, 32, 10, 11, SZ_OUT)
    prof_init(a, 8, 9, 38, 2)
    prof(a, 0)
    gw_setup(a, 39, 40, 1280, 41)
    for st in range(4):
        gw_issue(a, st, 20, 12, 45, 46, 41)
    a("v_lshrrev_b32 v2, 2, v1")
    a("s_lshl_b32 s42, s38, 4")
    a("s_add_u32 s42, s42, s39")
    a("v_add_u32 v15, s42, v2")
    a("v_lshlrev_b32 v2, 2, v15")
    a("buffer_load_dword v16, v2, s[28:31], 0 offen")
    a("v_mul_u32_u24 v2, 1280, v15")
    a("v_and_b32 v3, 3, v1")
    a("v_mul_u32_u24 v3, 40, v3")
    a("v_add3_u32 v17, v2, v3, s40")
    a("buffer_load_dwordx4 v[140:143], v17, s[24:27], 0 offen")
    a("buffer_load_dwordx4 v[144:147], v17, s[24:27], 0 offen offset:16")
    a("buffer_load_dwordx2 v[148:149], v17, s[24:27], 0 offen offset:32")
    a(f"s_waitcnt vmcnt({27 + 4})")
    gw_compute(a, 0, True)
    gw_issue(a, 0, 20, 12, 45, 46, 41)
    a(f"s_waitcnt vmcnt({18 + 4 + 9})")
    gw_compute(a, 1, False)
    a(f"s_waitcnt vmcnt({9 + 4 + 9})")
    gw_compute(a, 2, False)
    a(f"s_waitcnt vmcnt({4 + 9})")
    gw_compute(a, 3, False)
    a("s_waitcnt vmcnt(0)")
    gw_compute(a, 0, False)
    a("s_nop 7")
    a("s_nop 3")
    prof(a, 1)
    a("s_barrier")
    a("s_mul_i32 s43, s38, 20480")
    gw_write_partials(a, 43)
    a("s_waitcnt lgkmcnt(0)")
    a("s_barrier")
    prof(a, 2)
    gw_read_sum(a, 38, 0)
    R = 24
    a("v_sub_f32 v18, 1.0, v16")
    a("v_cvt_pk_bf16_f32 v18, v18, v18")
    a("v_lshlrev_b32 v18, 16, v18")
    for e in range(0, 20, 2):
        bp = 140 + e // 2
        a(f"v_cvt_pk_bf16_f32 v19, v{R + e}, v{R + e + 1}")
        a("v_lshlrev_b32 v4, 16, v19")
        a("v_and_b32 v5, 0xffff0000, v19")
        a(f"v_lshlrev_b32 v6, 16, v{bp}")
        a(f"v_and_b32 v7, 0xffff0000, v{bp}")
        a("v_mul_f32 v4, v16, v4")
        a("v_mul_f32 v5, v16, v5")
        a("v_mul_f32 v6, v18, v6")
        a("v_mul_f32 v7, v18, v7")
        a("v_cvt_pk_bf16_f32 v19, v4, v5")
        a("v_cvt_pk_bf16_f32 v20, v6, v7")
        a("v_lshlrev_b32 v4, 16, v19")
        a("v_and_b32 v5, 0xffff0000, v19")
        a("v_lshlrev_b32 v6, 16, v20")
        a("v_and_b32 v7, 0xffff0000, v20")
        a("v_add_f32 v4, v4, v6")
        a("v_add_f32 v5, v5, v7")
        a(f"v_cvt_pk_bf16_f32 v{112 + e // 2}, v4, v5")
    a("buffer_store_dwordx4 v[112:115], v17, s[32:35], 0 offen")
    a("buffer_store_dwordx4 v[116:119], v17, s[32:35], 0 offen offset:16")
    a("buffer_store_dwordx2 v[120:121], v17, s[32:35], 0 offen offset:32")
    prof(a, 12)
    a.label("K3_END")
    a("s_endpgm")
    return a.text()


def desc(name, vgpr, sgpr=96):
    acc = (vgpr + 3) // 4 * 4
    return f""".amdhsa_kernel {name}
  .amdhsa_next_free_vgpr {vgpr}
  .amdhsa_next_free_sgpr {sgpr}
  .amdhsa_accum_offset {acc}
  .amdhsa_group_segment_fixed_size 0
  .amdhsa_kernarg_size 80
  .amdhsa_user_sgpr_count 2
  .amdhsa_user_sgpr_kernarg_segment_ptr 1
  .amdhsa_system_sgpr_workgroup_id_x 1
.end_amdhsa_kernel
"""


def main():
    hdr = f"""; gated_mix__mha_block__dense_activation_relu__prompt : 3 kernels (generated by gen.py, hand-designed)
; @launch kernel=k1_kernel grid=(256,1,1) block=(512,1,1) lds={K1_LDS}
; @launch kernel=k2_kernel grid=(256,1,1) block=(768,1,1) lds={K2_LDS}
; @launch kernel=k3_kernel grid=(256,1,1) block=(256,1,1) lds={K3_LDS}
.amdgcn_target "amdgcn-amd-amdhsa--gfx950"
.text
"""
    body = ""
    for name, fn in (("k1_kernel", k1), ("k2_kernel", k2), ("k3_kernel", k3)):
        body += f".globl {name}\n.p2align 8\n.type {name},@function\n" + fn()
    tail = '.section .rodata,"a"\n.p2align 6\n'
    tail += desc("k1_kernel", 168)
    tail += ".p2align 6\n" + desc("k2_kernel", 144)
    tail += ".p2align 6\n" + desc("k3_kernel", 152)
    open(OUT, "w").write(hdr + body + tail)


if __name__ == "__main__":
    main()
```

```python
import struct, sys

OUT = sys.argv[1] if len(sys.argv) > 1 else "gated_mix__mha_block__dense_activation_relu__prompt.s"

WS_Q = 0
SZ_Q = 32 * 2048 * 48
WS_KV = 0x400000
HEAD_KV = 64 * 2880
SZ_KV = 32 * HEAD_KV
WS_H = 0xC00000
SZ_H = 2048 * 3456
WS_O = 0x1400000
SZ_O = 2048 * 1280
WS_G = 0x1800000
SZ_G = 2048 * 4
WS_B = 0x1A00000
SZ_B = 2048 * 1280

SZ_X = 2048 * 1280
SZ_WQKV = 640 * 3840
SZ_WO = 640 * 1280
SZ_W1 = 640 * 3456
SZ_W2 = 1728 * 1280
SZ_OUT = 2048 * 1280


def f32bits(x):
    return struct.unpack("<I", struct.pack("<f", x))[0]


C_SCALE = 1.4426950408889634 / (20 ** 0.5)
LOG2E = 1.4426950408889634


PROF = int(__import__("os").environ.get("PROF", "0"))
WS_T = 0x2000000
XP_PF = int(__import__("os").environ.get("XP_PF", "1"))
XP_ROT = int(__import__("os").environ.get("XP_ROT", "1"))
XP_NOLDS = int(__import__("os").environ.get("XP_NOLDS", "0"))
XP_NOFFN = int(__import__("os").environ.get("XP_NOFFN", "0"))


def prof_init(a, wsl, wsh, wave_s, kidx=0):
    if not PROF:
        return
    a(f"s_add_u32 s92, s{wsl}, {WS_T + kidx * 0x100000}")
    a(f"s_addc_u32 s93, s{wsh}, 0")
    a("s_and_b32 s93, s93, 0xffff")
    a("s_mov_b32 s94, 0x100000")
    a("s_mov_b32 s95, 0x00020000")
    a("s_lshl_b32 s91, s2, 4")
    a(f"s_add_u32 s91, s91, s{wave_s}")
    a("s_lshl_b32 s91, s91, 7")


def prof(a, slot, tmpv=2):
    if not PROF:
        return
    a("s_memtime s[88:89]")
    a("s_waitcnt lgkmcnt(0)")
    a(f"v_mov_b32 v{tmpv}, s88")
    a(f"v_mov_b32 v{tmpv + 1}, 0")
    a(f"buffer_store_dword v{tmpv}, v{tmpv + 1}, s[92:95], s91 offen offset:{4 * slot}")
    if slot in (0, 12):
        a("s_memrealtime s[88:89]")
        a("s_waitcnt lgkmcnt(0)")
        a(f"v_mov_b32 v{tmpv}, s88")
        a(f"buffer_store_dword v{tmpv}, v{tmpv + 1}, s[92:95], s91 offen offset:{4 * (13 if slot == 0 else 14)}")


class Asm:
    def __init__(self):
        self.lines = []

    def __call__(self, s):
        self.lines.append("    " + s)

    def label(self, l):
        self.lines.append(l + ":")

    def c(self, s):
        self.lines.append("    ; " + s)

    def text(self):
        return "\n".join(self.lines) + "\n"


def vr(b, n=1):
    return f"v{b}" if n == 1 else f"v[{b}:{b + n - 1}]"


def sr(b, n=1):
    return f"s{b}" if n == 1 else f"s[{b}:{b + n - 1}]"


def srd(a, d, lo, hi, size):
    a(f"s_mov_b32 s{d}, s{lo}")
    a(f"s_and_b32 s{d + 1}, s{hi}, 0xffff")
    a(f"s_mov_b32 s{d + 2}, {size}")
    a(f"s_mov_b32 s{d + 3}, 0x00020000")


def srd_off(a, d, lo, hi, off, size):
    a(f"s_add_u32 s{d}, s{lo}, {off}")
    a(f"s_addc_u32 s{d + 1}, s{hi}, 0")
    a(f"s_and_b32 s{d + 1}, s{d + 1}, 0xffff")
    a(f"s_mov_b32 s{d + 2}, {size}")
    a(f"s_mov_b32 s{d + 3}, 0x00020000")


K1_STAGE = 45056
K1_LDS = 3 * K1_STAGE


def k1():
    a = Asm()
    a.label("k1_kernel")
    a("s_cmp_ge_u32 s2, 256")
    a("s_cbranch_scc1 K1_END")
    a("s_and_b32 s3, s2, 7")
    a("s_lshr_b32 s4, s2, 3")
    a("s_lshl_b32 s3, s3, 5")
    a("s_add_u32 s3, s3, s4")
    a("s_cmp_ge_u32 s3, 253")
    a("s_cbranch_scc1 K1_END")
    a("s_mul_i32 s25, s3, 373")
    a("s_lshr_b32 s25, s25, 12")
    a("s_mul_i32 s4, s25, 11")
    a("s_sub_u32 s24, s3, s4")
    a("s_load_dwordx2 s[4:5], s[0:1], 0")
    a("s_load_dwordx2 s[6:7], s[0:1], 8")
    a("s_load_dwordx2 s[8:9], s[0:1], 32")
    a("s_load_dwordx2 s[10:11], s[0:1], 72")
    a("v_and_b32 v1, 63, v0")
    a("v_lshrrev_b32 v2, 6, v0")
    a("s_nop 0")
    a("v_readfirstlane_b32 s26, v2")
    a("s_lshr_b32 s27, s25, 2")
    a("s_min_u32 s27, s27, 3")
    a("s_mul_i32 s30, s24, 192")
    a("s_waitcnt lgkmcnt(0)")
    srd(a, 12, 4, 5, SZ_X)
    a("s_sub_u32 s29, s25, 12")
    a(f"s_mov_b32 s18, {SZ_W1}")
    a("s_mov_b32 s28, 3456")
    a("s_cmp_lt_u32 s25, 12")
    a("s_cselect_b32 s16, s6, s8")
    a("s_cselect_b32 s17, s7, s9")
    a(f"s_cselect_b32 s18, {SZ_WQKV}, s18")
    a("s_cselect_b32 s28, 3840, s28")
    a("s_cselect_b32 s29, s25, s29")
    a("s_and_b32 s17, s17, 0xffff")
    a("s_mov_b32 s19, 0x00020000")
    a("s_mul_i32 s29, s29, 160")
    a(f"s_mov_b32 s31, {WS_KV}")
    a(f"s_mov_b32 s22, {SZ_KV}")
    a("s_cmp_eq_u32 s27, 0")
    a(f"s_cselect_b32 s31, {WS_Q}, s31")
    a(f"s_cselect_b32 s22, {SZ_Q}, s22")
    a("s_cmp_eq_u32 s27, 3")
    a(f"s_cselect_b32 s31, {WS_H}, s31")
    a(f"s_cselect_b32 s22, {SZ_H}, s22")
    a("s_add_u32 s20, s10, s31")
    a("s_addc_u32 s21, s11, 0")
    a("s_and_b32 s21, s21, 0xffff")
    a("s_mov_b32 s23, 0x00020000")
    prof_init(a, 10, 11, 26, 0)
    prof(a, 0)
    a("s_lshr_b32 s32, s26, 1")
    a("s_and_b32 s33, s26, 1")
    a("v_lshrrev_b32 v2, 3, v1")
    a("v_and_b32 v3, 7, v1")
    a("v_xor_b32 v3, v3, v2")
    a("v_lshlrev_b32 v3, 4, v3")
    a("v_mul_u32_u24 v2, 1280, v2")
    a("v_add_u32 v4, v2, v3")
    a("v_add_u32 v5, 10240, v4")
    a("v_add_u32 v6, 20480, v4")
    a("s_mul_i32 s34, s26, 24")
    a("s_add_u32 s34, s34, s30")
    a("s_mul_i32 s34, s34, 1280")
    a("s_mov_b32 s35, 0")
    a("s_lshl_b32 s36, s28, 6")
    a("s_add_u32 s62, s34, 1280")
    a("s_mul_i32 s61, s28, 640")
    a("s_add_u32 s60, s24, s25")
    a("s_mul_i32 s63, s60, 43")
    a("s_lshr_b32 s63, s63, 7")
    a("s_mul_i32 s63, s63, 3")
    a("s_sub_u32 s60, s60, s63")
    a(f"s_mul_i32 s60, s60, {XP_ROT}")
    a("s_lshl_b32 s63, s60, 7")
    a("s_add_u32 s34, s34, s63")
    a("s_mul_i32 s35, s60, s36")
    a("s_add_u32 s37, s26, 8")
    a("s_add_u32 s38, s26, 16")
    a("s_cmp_lt_u32 s26, 4")
    a("s_cselect_b32 s38, s38, s37")
    a("s_lshl_b32 s39, s29, 1")
    for j, sidx in enumerate((26, 37, 38)):
        a(f"s_lshl_b32 s40, s{sidx}, 6")
        a("v_add_u32 v2, s40, v1")
        a("v_mul_u32_u24 v3, 3277, v2")
        a("v_lshrrev_b32 v3, 16, v3")
        a("v_mul_u32_u24 v22, 20, v3")
        a("v_sub_u32 v2, v2, v22")
        a("v_lshrrev_b32 v22, 2, v3")
        a("v_and_b32 v22, 2, v22")
        a("v_xor_b32 v2, v2, v22")
        a("v_lshlrev_b32 v2, 4, v2")
        a("v_mul_lo_u32 v3, v3, s28")
        a(f"v_add3_u32 v{7 + j}, v2, v3, s39")
    a("s_mul_i32 s41, s26, 3072")
    a("s_lshl_b32 s42, s26, 10")
    a("s_add_u32 s42, s42, 24576")
    a("s_lshl_b32 s43, s37, 10")
    a("s_add_u32 s43, s43, 24576")
    a("s_lshl_b32 s44, s38, 10")
    a("s_add_u32 s44, s44, 24576")

    def dma_pieces(buf):
        base = buf * K1_STAGE
        g = []
        for j in range(3):
            x = [f"s_add_u32 m0, s41, {base + j * 1024}", "s_nop 0",
                 f"buffer_load_dwordx4 v{4 + j}, s[12:15], s34 offen lds"]
            if j == 2:
                x += ["s_add_u32 s34, s34, 128", "s_sub_u32 s60, s34, 1280", "s_cmp_ge_u32 s34, s62",
                      "s_cselect_b32 s34, s60, s34"]
            g.append(x)
        for j in range(3):
            x = [f"s_add_u32 m0, s{42 + j}, {base}", "s_nop 0",
                 f"buffer_load_dwordx4 v{7 + j}, s[16:19], s35 offen lds"]
            if j == 2:
                x += ["s_add_u32 s35, s35, s36", "s_cmp_ge_u32 s35, s61", "s_cselect_b32 s35, 0, s35"]
            g.append(x)
        return g

    for b in range(3):
        for g in dma_pieces(b):
            for x in g:
                a(x)
    NPF = 0
    if XP_PF > 1:
        NPF = 3
        a("s_lshr_b32 s45, s2, 3")
        a("s_mul_i32 s45, s45, 81920")
        a("v_lshlrev_b32 v2, 7, v0")
        a("buffer_load_dword v160, v2, s[12:15], s45 offen")
        a("v_add_u32 v3, 0x10000, v2")
        a("v_cmp_gt_u32 vcc, 128, v0")
        a("v_bfrev_b32 v22, 1")
        a("v_cndmask_b32 v3, v22, v3, vcc")
        a("buffer_load_dword v161, v3, s[12:15], s45 offen")
        a("v_mul_u32_u24 v2, 21846, v0")
        a("v_lshrrev_b32 v2, 16, v2")
        a("v_mul_u32_u24 v3, 3, v2")
        a("v_sub_u32 v3, v0, v3")
        a("v_lshlrev_b32 v3, 7, v3")
        a("s_mul_i32 s45, s24, 59")
        a("v_add_u32 v2, s45, v2")
        a("v_cmp_gt_u32 vcc, 177, v0")
        a("v_mul_lo_u32 v2, v2, s28")
        a("v_add3_u32 v2, v2, v3, s39")
        a("v_cndmask_b32 v2, v22, v2, vcc")
        a("buffer_load_dword v162, v2, s[16:19], 0 offen")
    a("v_lshrrev_b32 v22, 4, v1")
    a("v_and_b32 v23, 15, v1")
    a("s_mul_i32 s45, s32, 48")
    a("v_add_u32 v2, s45, v23")
    a("v_lshlrev_b32 v2, 7, v2")
    a("v_and_b32 v3, 7, v23")
    a("v_xor_b32 v3, v3, v22")
    a("v_lshlrev_b32 v3, 4, v3")
    a("v_add_u32 v10, v2, v3")
    a("v_xor_b32 v11, 64, v10")
    for b in (1, 2):
        a(f"v_add_u32 v{10 + 2 * b}, {b * K1_STAGE}, v10")
        a(f"v_add_u32 v{11 + 2 * b}, {b * K1_STAGE}, v11")
    a("v_lshlrev_b32 v2, 3, v22")
    a("v_lshrrev_b32 v3, 2, v23")
    a("v_add_u32 v2, v2, v3")
    a("v_mul_u32_u24 v2, 320, v2")
    a("v_and_b32 v3, 3, v23")
    a("v_lshlrev_b32 v3, 3, v3")
    a("s_mul_i32 s45, s33, 160")
    a("s_add_u32 s45, s45, 24576")
    a("v_add3_u32 v2, v2, v3, s45")
    a("v_and_b32 v3, 1, v22")
    a("v_lshlrev_b32 v3, 5, v3")
    a("s_cmp_eq_u32 s33, 0")
    a("s_cselect_b32 s45, 1, -1")
    a("v_mul_lo_u32 v3, v3, s45")
    a("v_add_u32 v16, v2, v3")
    a("v_sub_u32 v17, v2, v3")
    for b in (1, 2):
        a(f"v_add_u32 v{16 + 2 * b}, {b * K1_STAGE}, v16")
        a(f"v_add_u32 v{17 + 2 * b}, {b * K1_STAGE}, v17")

    XF = (24, 36)
    WF = (48, 68)
    ACC = 88

    def reads(buf, sub, st):
        r = []
        for ti in range(3):
            r.append(f"ds_read_b128 {vr(XF[st] + 4 * ti, 4)}, v{10 + 2 * buf + sub} offset:{ti * 2048}")
        for ni in range(5):
            ad = 16 + 2 * buf + (ni & 1)
            off = ni * 32 + sub * 10240
            r.append(f"ds_read_b64_tr_b16 {vr(WF[st] + 4 * ni, 2)}, v{ad} offset:{off}")
            r.append(f"ds_read_b64_tr_b16 {vr(WF[st] + 4 * ni + 2, 2)}, v{ad} offset:{off + 1280}")
        return r

    def mfmas(st, vor, first):
        m = []
        for ni in range(5):
            for ti in range(3):
                d = ACC + 4 * (ni * 3 + ti)
                c = "0" if first else vr(d, 4)
                w = vr(WF[st] + 4 * ni, 4)
                x = vr(XF[st] + 4 * ti, 4)
                if vor:
                    m.append(f"v_mfma_f32_16x16x32_bf16 {vr(d, 4)}, {x}, {w}, {c}")
                else:
                    m.append(f"v_mfma_f32_16x16x32_bf16 {vr(d, 4)}, {w}, {x}, {c}")
        return m

    def phase(ms, rs, ds):
        rs = list(rs)
        ds = list(ds)
        for i, m in enumerate(ms):
            a(m)
            for _ in range(2):
                if rs:
                    a(rs.pop(0))
            if ds and i in (7, 10, 13):
                for x in ds.pop(0):
                    a(x)

    def loop(vor):
        a(f"s_waitcnt vmcnt({12 + NPF})")
        a("s_barrier")
        prof(a, 1)
        for r in reads(0, 0, 0):
            a(r)
        pend = []
        for ks in range(10):
            buf = ks % 3
            a("s_waitcnt lgkmcnt(0)")
            phase(mfmas(0, vor, ks == 0), reads(buf, 1, 1), pend)
            pend = []
            nxt = []
            if ks < 9:
                a(f"s_waitcnt vmcnt({(6 + NPF if ks < 2 else 6) if ks < 8 else 0}) lgkmcnt(0)")
                a("s_barrier")
                prof(a, 2 + ks)
                nxt = reads((ks + 1) % 3, 0, 0)
            else:
                a("s_waitcnt lgkmcnt(0)")
            d = []
            if ks + 3 < 10:
                p = dma_pieces(buf)
                d = p[:3]
                pend = p[3:]
            phase(mfmas(1, vor, False), nxt, d)
        a("s_barrier")
        a("s_nop 7")
        a("s_nop 3")
        prof(a, 11)

    a("s_cmp_eq_u32 s27, 2")
    a("s_cbranch_scc1 K1_VLOOP")
    loop(False)
    a("s_mul_i32 s45, s32, 48")
    a("v_add_u32 v4, s45, v23")
    a("s_cmp_eq_u32 s27, 3")
    a("s_cbranch_scc1 K1_EPI_FFN")
    a("s_cmp_eq_u32 s27, 0")
    a(f"s_cselect_b32 s48, {f32bits(C_SCALE)}, 1.0")
    NO = 148
    a("v_mul_u32_u24 v4, 48, v4")
    a("s_mul_i32 s46, s33, 36864")
    a("v_add_u32 v4, s46, v4")
    for ni in range(5):
        a(f"v_add_u32 v2, {4 * ni}, v22")
        a("v_mul_u32_u24 v3, 13, v2")
        a("v_lshrrev_b32 v3, 6, v3")
        a("v_mul_u32_u24 v5, 5, v3")
        a(f"v_sub_u32 v{NO + 5 + ni}, v2, v5")
        a("v_mul_u32_u24 v3, 9216, v3")
        a(f"v_lshl_add_u32 v3, v{NO + 5 + ni}, 3, v3")
        a(f"v_add_u32 v{NO + ni}, v3, v4")
    a("v_mov_b32 v8, 0x3f803f80")
    a("v_mov_b32 v9, 0x00003f80")
    for ti in range(3):
        for ni in range(5):
            d = ACC + 4 * (ni * 3 + ti)
            for i in range(4):
                a(f"v_mul_f32 v{d + i}, s48, v{d + i}")
            a(f"v_cvt_pk_bf16_f32 v{d}, v{d}, v{d + 1}")
            a(f"v_cvt_pk_bf16_f32 v{d + 1}, v{d + 2}, v{d + 3}")
            a(f"ds_write_b64 v{NO + ni}, {vr(d, 2)} offset:{768 * ti}")
    for ni in range(1, 5):
        a(f"v_cmp_eq_u32 vcc, 4, v{NO + 5 + ni}")
        a("s_and_saveexec_b64 s[50:51], vcc")
        for ti in range(3):
            a(f"ds_write_b64 v{NO + ni}, v[8:9] offset:{768 * ti + 8}")
        a("s_mov_b64 exec, s[50:51]")
    a("s_mul_i32 s52, s26, 9216")
    a("s_and_b32 s46, s25, 3")
    a("s_lshl_b32 s46, s46, 3")
    a("s_add_u32 s46, s46, s26")
    a("s_sub_u32 s57, 2048, s30")
    a("s_min_u32 s57, s57, 192")
    a("s_mul_i32 s57, s57, 3")
    a("s_mov_b32 s56, 0")
    a("s_mov_b32 s58, 1000")
    a("s_cmp_eq_u32 s27, 0")
    a("s_cbranch_scc0 K1_CPK")
    a("s_mul_i32 s53, s46, 98304")
    a("s_mul_i32 s47, s30, 48")
    a("s_add_u32 s53, s53, s47")
    a("s_mov_b32 s54, 0")
    a("s_mov_b32 s55, 0")
    a("s_branch K1_COPY")
    a.label("K1_CPK")
    a(f"s_mul_i32 s53, s46, {HEAD_KV}")
    a("s_mul_i32 s47, s30, 90")
    a("s_add_u32 s53, s53, s47")
    a("s_mov_b32 s54, 683")
    a("s_mov_b32 s55, 1344")
    a("s_branch K1_COPY")
    a.label("K1_EPI_FFN")
    a("v_mul_u32_u24 v4, 336, v4")
    a("s_mul_i32 s46, s33, 160")
    a("v_lshl_add_u32 v4, v22, 3, v4")
    a("v_add_u32 v4, s46, v4")
    for ti in range(3):
        for ni in range(5):
            d = ACC + 4 * (ni * 3 + ti)
            for i in range(4):
                a(f"v_max_f32 v{d + i}, 0, v{d + i}")
            a(f"v_cvt_pk_bf16_f32 v{d}, v{d}, v{d + 1}")
            a(f"v_cvt_pk_bf16_f32 v{d + 1}, v{d + 2}, v{d + 3}")
            a(f"ds_write_b64 v4, {vr(d, 2)} offset:{5376 * ti + 32 * ni}")
    a("s_mul_i32 s52, s26, 8064")
    a("s_mul_i32 s46, s26, 24")
    a("s_add_u32 s46, s46, s30")
    a("s_mul_i32 s53, s46, 3456")
    a("s_lshl_b32 s47, s29, 1")
    a("s_add_u32 s53, s53, s47")
    a("s_mov_b32 s54, 3277")
    a("s_mov_b32 s55, 3136")
    a("s_mov_b32 s56, 16")
    a("s_sub_i32 s57, 2048, s46")
    a("s_max_i32 s57, s57, 0")
    a("s_min_u32 s57, s57, 24")
    a("s_mul_i32 s57, s57, 20")
    a("s_sub_u32 s58, 1728, s29")
    a("s_lshr_b32 s58, s58, 3")
    a("s_branch K1_COPY")
    a.label("K1_VLOOP")
    loop(True)
    a("s_mul_i32 s46, s33, 32256")
    for ni in range(5):
        a(f"v_add_u32 v2, {16 * ni}, v23")
        a("v_mul_u32_u24 v3, 205, v2")
        a("v_lshrrev_b32 v3, 12, v3")
        a("v_mul_u32_u24 v4, 20, v3")
        a(f"v_sub_u32 v{NO + 10 + ni}, v2, v4")
        a("v_mul_u32_u24 v3, 8064, v3")
        a(f"v_lshlrev_b32 v4, 6, v{NO + 10 + ni}")
        a(f"v_add3_u32 v{NO + ni}, v3, v4, s46")
        a(f"v_bfe_u32 v{NO + 5 + ni}, v{NO + 10 + ni}, 2, 2")
    a("v_mov_b32 v8, 0x3f803f80")
    a("v_mov_b32 v9, 0x3f803f80")
    a("s_mul_i32 s45, s32, 48")
    for ti in range(3):
        a(f"s_add_u32 s49, s45, {16 * ti}")
        a("v_lshlrev_b32 v2, 2, v22")
        a("v_add_u32 v2, s49, v2")
        a("v_lshrrev_b32 v3, 5, v2")
        a("v_mul_u32_u24 v3, 1344, v3")
        a("v_bfe_u32 v2, v2, 2, 3")
        a("v_bfe_u32 v4, v2, 1, 1")
        a("v_lshl_add_u32 v10, v4, 3, v3")
        a("v_lshrrev_b32 v4, 1, v2")
        a("v_and_b32 v4, 2, v4")
        a("v_and_b32 v2, 1, v2")
        a("v_or_b32 v11, v2, v4")
        for ni in range(5):
            d = ACC + 4 * (ni * 3 + ti)
            a(f"v_cvt_pk_bf16_f32 v{d}, v{d}, v{d + 1}")
            a(f"v_cvt_pk_bf16_f32 v{d + 1}, v{d + 2}, v{d + 3}")
            a(f"v_xor_b32 v6, v11, v{NO + 5 + ni}")
            a("v_lshlrev_b32 v6, 4, v6")
            a(f"v_add3_u32 v6, v6, v10, v{NO + ni}")
            a(f"ds_write_b64 v6, {vr(d, 2)}")
            if ni < 4:
                a("v_xor_b32 v7, 1, v11")
                a("v_lshlrev_b32 v7, 4, v7")
                a(f"v_add3_u32 v7, v7, v10, v{NO + ni}")
                a(f"v_cmp_eq_u32 vcc, 0, v{NO + 10 + ni}")
                a("s_and_saveexec_b64 s[50:51], vcc")
                a("ds_write_b64 v7, v[8:9] offset:1280")
                a("s_mov_b64 exec, s[50:51]")
    a("s_mul_i32 s52, s26, 8064")
    a("s_and_b32 s46, s25, 3")
    a("s_lshl_b32 s46, s46, 3")
    a("s_add_u32 s46, s46, s26")
    a(f"s_mul_i32 s53, s46, {HEAD_KV}")
    a("s_mul_i32 s47, s30, 90")
    a("s_add_u32 s53, s53, s47")
    a("s_add_u32 s53, s53, 1536")
    a("s_mov_b32 s54, 781")
    a("s_mov_b32 s55, 1536")
    a("s_mov_b32 s56, 0")
    a("s_sub_u32 s57, 2048, s30")
    a("s_min_u32 s57, s57, 192")
    a("s_lshr_b32 s57, s57, 5")
    a("s_mul_i32 s57, s57, 84")
    a("s_mov_b32 s58, 1000")
    a.label("K1_COPY")
    a("s_mov_b32 s59, 20")
    for it in range(9):
        ga = 24 + it
        la = 34 + it
        a(f"v_add_u32 v2, {64 * it}, v1")
        a("v_mul_lo_u32 v3, v2, s54")
        a("v_lshrrev_b32 v3, 16, v3")
        a("v_lshlrev_b32 v4, 4, v2")
        a("v_mul_lo_u32 v5, v3, s55")
        a(f"v_add3_u32 v{ga}, v4, v5, s53")
        a("v_mul_lo_u32 v5, v3, s56")
        a(f"v_add3_u32 v{la}, v4, v5, s52")
        a("v_mul_lo_u32 v5, v3, s59")
        a("v_sub_u32 v5, v2, v5")
        a("v_cmp_gt_u32 vcc, s57, v2")
        a("v_cmp_gt_i32 s[50:51], s58, v5")
        a("s_and_b64 vcc, vcc, s[50:51]")
        a("v_bfrev_b32 v5, 1")
        a(f"v_cndmask_b32 v{ga}, v5, v{ga}, vcc")
    a("s_waitcnt lgkmcnt(0)")
    a("s_barrier")
    for it in range(9):
        a(f"ds_read_b128 {vr(48 + 4 * it, 4)}, v{34 + it}")
    for it in range(9):
        a(f"s_waitcnt lgkmcnt({8 - it})")
        a(f"buffer_store_dwordx4 {vr(48 + 4 * it, 4)}, v{24 + it}, s[20:23], 0 offen")
    a.label("K1_PEND")
    prof(a, 12)
    a.label("K1_END")
    a("s_endpgm")
    return a.text()


GS_SLOT = 9216


class GW:
    VA = 4
    VW = 8
    RA = 13
    RW = 14
    AF = 24
    WF = 40
    ACC = 60


def gw_setup(a, sR0, sC0B, strideA, sLds):
    a("v_lshrrev_b32 v22, 4, v1")
    a("v_and_b32 v23, 15, v1")
    a("v_lshrrev_b32 v2, 2, v1")
    a("v_sub_u32 v3, 0, v22")
    a("v_and_b32 v3, 3, v3")
    a("v_and_b32 v15, 3, v1")
    a("v_xor_b32 v3, v3, v15")
    a("v_lshlrev_b32 v3, 4, v3")
    a(f"v_add_u32 v2, s{sR0}, v2")
    a(f"s_mov_b32 s60, {strideA}")
    a("v_mul_lo_u32 v2, v2, s60")
    a(f"v_add_u32 v{GW.VA}, v2, v3")
    for i in range(1, 4):
        a(f"v_add_u32 v{GW.VA + i}, {16 * i * strideA}, v{GW.VA}")
    for i in range(5):
        a(f"v_add_u32 v2, {64 * i}, v1")
        a("v_mul_u32_u24 v3, 6554, v2")
        a("v_lshrrev_b32 v3, 16, v3")
        a("v_mul_u32_u24 v15, 10, v3")
        a("v_sub_u32 v2, v2, v15")
        a("v_lshlrev_b32 v2, 4, v2")
        a("v_mul_u32_u24 v3, 1280, v3")
        a(f"v_add3_u32 v{GW.VW + i}, v2, v3, s{sC0B}")
    a("v_lshrrev_b32 v2, 2, v23")
    a("v_sub_u32 v2, 0, v2")
    a("v_and_b32 v2, 3, v2")
    a("v_xor_b32 v2, v2, v22")
    a("v_lshlrev_b32 v2, 4, v2")
    a("v_lshl_add_u32 v2, v23, 6, v2")
    a(f"v_add_u32 v{GW.RA}, s{sLds}, v2")
    a("v_lshlrev_b32 v2, 3, v22")
    a("v_lshrrev_b32 v3, 2, v23")
    a("v_add_u32 v2, v2, v3")
    a("v_mul_u32_u24 v2, 160, v2")
    a("v_and_b32 v3, 3, v23")
    a("v_lshlrev_b32 v3, 3, v3")
    a("v_add_u32 v2, 4096, v2")
    a(f"v_add3_u32 v{GW.RW}, v2, v3, s{sLds}")


def gw_issue(a, slot, srdA, srdW, sKA, sKW, sLds):
    for i in range(4):
        a(f"s_add_u32 m0, s{sLds}, {slot * GS_SLOT + i * 1024}")
        a("s_nop 0")
        a(f"buffer_load_dwordx4 v{GW.VA + i}, {sr(srdA, 4)}, s{sKA} offen lds")
    for i in range(5):
        a(f"s_add_u32 m0, s{sLds}, {slot * GS_SLOT + 4096 + i * 1024}")
        a("s_nop 0")
        a(f"buffer_load_dwordx4 v{GW.VW + i}, {sr(srdW, 4)}, s{sKW} offen lds")
    a(f"s_add_u32 s{sKA}, s{sKA}, 64")
    a(f"s_add_u32 s{sKW}, s{sKW}, {32 * 1280}")


def gw_compute(a, slot, first):
    for t in range(4):
        a(f"ds_read_b128 {vr(GW.AF + 4 * t, 4)}, v{GW.RA} offset:{slot * GS_SLOT + t * 1024}")
    for n in range(5):
        off = slot * GS_SLOT + n * 32
        a(f"ds_read_b64_tr_b16 {vr(GW.WF + 4 * n, 2)}, v{GW.RW} offset:{off}")
        a(f"ds_read_b64_tr_b16 {vr(GW.WF + 4 * n + 2, 2)}, v{GW.RW} offset:{off + 640}")
    a("s_waitcnt lgkmcnt(0)")
    for n in range(5):
        for t in range(4):
            d = GW.ACC + 4 * (n * 4 + t)
            c = "0" if first else vr(d, 4)
            a(f"v_mfma_f32_16x16x32_bf16 {vr(d, 4)}, {vr(GW.WF + 4 * n, 4)}, {vr(GW.AF + 4 * t, 4)}, {c}")


def gw_write_partials(a, sRed):
    a("v_mul_u32_u24 v2, 320, v23")
    a("v_lshl_add_u32 v2, v22, 4, v2")
    a(f"v_add_u32 v2, s{sRed}, v2")
    for n in range(5):
        for t in range(4):
            d = GW.ACC + 4 * (n * 4 + t)
            a(f"ds_write_b128 v2, {vr(d, 4)} offset:{t * 5120 + n * 64}")


def gw_read_sum(a, sW4, redbase):
    a("v_lshrrev_b32 v2, 2, v1")
    a(f"s_lshl_b32 s60, s{sW4}, 4")
    a("v_add_u32 v2, s60, v2")
    a("v_mul_u32_u24 v2, 320, v2")
    a("v_and_b32 v3, 3, v1")
    a("v_mul_u32_u24 v3, 80, v3")
    a("v_add_u32 v2, v2, v3")
    if redbase:
        a(f"v_add_u32 v2, {redbase}, v2")
    R = 24
    for src in range(4):
        for j in range(5):
            a(f"ds_read_b128 {vr(R + 20 * src + 4 * j, 4)}, v2 offset:{src * 20480 + j * 16}")
        a("s_waitcnt lgkmcnt(0)")
    for e in range(20):
        a(f"v_add_f32 v{R + e}, v{R + e}, v{R + 20 + e}")
        a(f"v_add_f32 v{R + 40 + e}, v{R + 40 + e}, v{R + 60 + e}")
    for e in range(20):
        a(f"v_add_f32 v{R + e}, v{R + e}, v{R + 40 + e}")


def tile_map(a, sRt, sCt):
    a("s_and_b32 s60, s2, 7")
    a("s_lshr_b32 s61, s2, 3")
    a("s_lshr_b32 s62, s60, 1")
    a("s_lshl_b32 s62, s62, 3")
    a("s_lshr_b32 s63, s61, 2")
    a(f"s_add_u32 s{sRt}, s62, s63")
    a("s_and_b32 s62, s60, 1")
    a("s_lshl_b32 s62, s62, 2")
    a("s_and_b32 s63, s61, 3")
    a(f"s_add_u32 s{sCt}, s62, s63")


K2_BUF = 24576
K2_FFN = 3 * K2_BUF
K2_FLAG = K2_FFN + 4 * 20480
K2_LDS = K2_FLAG + 64


def k2():
    a = Asm()
    a.label("k2_kernel")
    a("s_cmp_ge_u32 s2, 256")
    a("s_cbranch_scc1 K2_END")
    a("s_and_b32 s3, s2, 7")
    a("s_lshl_b32 s3, s3, 2")
    a("s_lshr_b32 s4, s2, 3")
    a("s_and_b32 s4, s4, 3")
    a("s_add_u32 s36, s3, s4")
    a("s_lshr_b32 s37, s2, 5")
    a("s_load_dwordx2 s[4:5], s[0:1], 0")
    a("s_load_dwordx2 s[6:7], s[0:1], 48")
    a("s_load_dwordx2 s[8:9], s[0:1], 72")
    a("v_and_b32 v1, 63, v0")
    a("v_lshrrev_b32 v2, 6, v0")
    a("s_nop 0")
    a("v_readfirstlane_b32 s38, v2")
    a("s_waitcnt lgkmcnt(0)")
    a("s_cmp_ge_u32 s38, 8")
    a("s_cbranch_scc1 K2_FFN")
    a("s_setprio 1")
    srd_off(a, 12, 8, 9, WS_KV, SZ_KV)
    srd_off(a, 16, 8, 9, WS_Q, SZ_Q)
    srd_off(a, 20, 8, 9, WS_O, SZ_O)
    srd(a, 24, 4, 5, SZ_X)
    srd(a, 28, 6, 7, 1280)
    srd_off(a, 32, 8, 9, WS_G, SZ_G)
    prof_init(a, 8, 9, 38, 1)
    prof(a, 0)
    a("v_lshlrev_b32 v16, 4, v1")
    a("s_mul_i32 s46, s38, 3072")
    a(f"s_mul_i32 s45, s36, {HEAD_KV}")
    a("s_add_u32 s45, s45, s46")
    a("s_mov_b32 s44, s45")
    a("s_mov_b32 s41, 0")
    a(f"s_mov_b32 s42, {K2_BUF}")
    a(f"s_mov_b32 s43, {2 * K2_BUF}")
    a("s_mov_b32 s40, 0")
    for sg in (41, 42):
        a(f"s_add_u32 m0, s{sg}, s46")
        a("s_nop 0")
        for j in range(3):
            a(f"buffer_load_dwordx4 v16, s[12:15], s44 offen offset:{1024 * j} lds")
        a("s_add_u32 s44, s44, 23040")
    a("v_mov_b32 v2, 0")
    a(f"v_mov_b32 v3, {K2_FLAG}")
    a("ds_write_b32 v3, v2")
    a("v_and_b32 v17, 31, v1")
    a("v_lshrrev_b32 v18, 5, v1")
    a("s_lshl_b32 s47, s37, 8")
    a("s_lshl_b32 s48, s38, 5")
    a("s_add_u32 s47, s47, s48")
    a("v_add_u32 v2, s47, v17")
    a("v_mul_u32_u24 v2, 48, v2")
    a("s_mul_i32 s48, s36, 98304")
    a("v_add_u32 v2, s48, v2")
    a("v_lshl_add_u32 v3, v18, 4, v2")
    a("buffer_load_dwordx4 v[20:23], v3, s[16:19], 0 offen")
    a("buffer_load_dwordx2 v[24:25], v2, s[16:19], 0 offen offset:32")
    a("s_lshl_b32 s48, s37, 8")
    a("s_lshl_b32 s49, s36, 3")
    a("s_add_u32 s48, s48, s49")
    a("s_add_u32 s48, s48, s38")
    a("s_mul_i32 s49, s48, 1280")
    a("v_mul_u32_u24 v2, 20, v1")
    a("buffer_load_dwordx4 v[116:119], v2, s[24:27], s49 offen")
    a("buffer_load_dword v120, v2, s[24:27], s49 offen offset:16")
    a("buffer_load_dwordx4 v[122:125], v2, s[28:31], 0 offen")
    a("buffer_load_dword v126, v2, s[28:31], 0 offen offset:16")
    a("v_mul_u32_u24 v2, 48, v17")
    a("v_lshl_add_u32 v12, v18, 4, v2")
    a("v_add_u32 v13, 32, v2")
    a("v_bfe_u32 v3, v17, 2, 2")
    a("v_lshlrev_b32 v2, 6, v17")
    a("v_add_u32 v2, 1536, v2")
    a("v_xor_b32 v19, v18, v3")
    a("v_lshl_add_u32 v14, v19, 4, v2")
    a("v_add_u32 v19, 2, v18")
    a("v_xor_b32 v19, v19, v3")
    a("v_lshl_add_u32 v15, v19, 4, v2")
    a("s_waitcnt vmcnt(0)")
    a("v_mov_b32 v2, 0")
    for j in range(5):
        xv = 116 + j
        gv = 122 + j
        a(f"v_lshlrev_b32 v3, 16, v{xv}")
        a(f"v_and_b32 v19, 0xffff0000, v{xv}")
        a(f"v_lshlrev_b32 v127, 16, v{gv}")
        a(f"v_and_b32 v128, 0xffff0000, v{gv}")
        a("v_mul_f32 v3, v3, v127")
        a("v_mul_f32 v19, v19, v128")
        a("v_cvt_pk_bf16_f32 v3, v3, v19")
        a("v_lshlrev_b32 v19, 16, v3")
        a("v_and_b32 v3, 0xffff0000, v3")
        a("v_add_f32 v2, v2, v19")
        a("v_add_f32 v2, v2, v3")
    for sh in (1, 2, 4, 8):
        a("s_nop 1")
        a(f"v_add_f32_dpp v2, v2, v2 row_shr:{sh} row_mask:0xf bank_mask:0xf")
    a("s_nop 1")
    a("v_add_f32_dpp v2, v2, v2 row_bcast:15 row_mask:0xa bank_mask:0xf")
    a("s_nop 1")
    a("v_add_f32_dpp v2, v2, v2 row_bcast:31 row_mask:0xc bank_mask:0xf")
    a("s_nop 1")
    a("v_cvt_pk_bf16_f32 v2, v2, v2")
    a("v_lshlrev_b32 v2, 16, v2")
    a(f"v_mul_f32 v2, {f32bits(-LOG2E)}, v2")
    a("v_exp_f32 v2, v2")
    a("s_nop 0")
    a("v_add_f32 v2, 1.0, v2")
    a("v_rcp_f32 v2, v2")
    a("s_nop 0")
    a("v_cvt_pk_bf16_f32 v2, v2, v2")
    a("v_lshlrev_b32 v2, 16, v2")
    a("s_lshl_b32 s49, s48, 2")
    a("v_mov_b32 v3, 0")
    a("v_cmp_eq_u32 vcc, 63, v1")
    a("s_and_saveexec_b64 s[50:51], vcc")
    a("buffer_store_dword v2, v3, s[32:35], s49 offen")
    a("s_mov_b64 exec, s[50:51]")
    a("v_cmp_eq_u32 vcc, 0, v18")
    a("s_nop 1")
    a("v_cndmask_b32 v24, 0, v24, vcc")
    a("v_cndmask_b32 v25, 0, v25, vcc")
    a("v_mov_b32 v26, 0")
    a("v_mov_b32 v27, 0")
    a("s_mov_b32 s39, 0")

    QF0, QF1 = 20, 24
    KF = (28, 36)
    VF = (44, 52)
    P = 60
    S = (68, 84)
    O = 100

    def dma_stage(lds_sreg):
        a(f"s_add_u32 m0, s{lds_sreg}, s46")
        a("s_nop 0")
        for j in range(3):
            a(f"buffer_load_dwordx4 v16, s[12:15], s44 offen offset:{1024 * j} lds")
        a("s_add_u32 s44, s44, 23040")

    def set_addrs(dst, sbase):
        for i in range(4):
            a(f"v_add_u32 v{dst + i}, s{sbase}, v{12 + i}")

    def kread(st, idx):
        base = 4 if idx < 8 else 8
        off = (idx % 8) * 2880
        return [f"ds_read_b128 {vr(KF[st], 4)}, v{base} offset:{off}",
                f"ds_read_b128 {vr(KF[st] + 4, 4)}, v{base + 1} offset:{off}"]

    def vread(st, idx):
        base = 4 if idx < 8 else 8
        off = (idx % 8) * 2880
        return [f"ds_read_b128 {vr(VF[st], 4)}, v{base + 2} offset:{off}",
                f"ds_read_b128 {vr(VF[st] + 4, 4)}, v{base + 3} offset:{off}"]

    def qk(st, sst):
        a(f"v_mfma_f32_32x32x16_bf16 {vr(S[sst], 16)}, {vr(KF[st], 4)}, {vr(QF0, 4)}, 0")
        a(f"v_mfma_f32_32x32x16_bf16 {vr(S[sst], 16)}, {vr(KF[st] + 4, 4)}, {vr(QF1, 4)}, {vr(S[sst], 16)}")

    def set_m_from(mreg):
        a(f"v_mov_b32 v3, v{mreg}")
        a("s_nop 1")
        a(f"v_permlane32_swap_b32 v{mreg}, v3")
        a("s_nop 1")
        a(f"v_max_f32 v2, v{mreg}, v3")
        a("v_and_b32 v3, 0xffff0000, v2")
        a("v_sub_f32 v2, v2, v3")
        a("v_and_b32 v19, 0xffff0000, v2")
        a("v_sub_f32 v2, v2, v19")
        a("v_xor_b32 v3, 0x80000000, v3")
        a("v_xor_b32 v19, 0x80000000, v19")
        a("v_xor_b32 v2, 0x80000000, v2")
        a("v_lshrrev_b32 v3, 16, v3")
        a("v_or_b32 v3, v3, v19")
        a("v_lshrrev_b32 v2, 16, v2")
        a("v_cmp_eq_u32 vcc, 0, v18")
        a("s_nop 1")
        a("v_cndmask_b32 v26, 0, v3, vcc")
        a("v_cndmask_b32 v27, 0, v2, vcc")
        a("s_nop 1")

    def start_stream():
        a("s_mov_b32 s44, s45")
        a("s_mov_b32 s41, 0")
        a(f"s_mov_b32 s42, {K2_BUF}")
        a(f"s_mov_b32 s43, {2 * K2_BUF}")
        dma_stage(41)
        dma_stage(42)
        set_addrs(4, 41)
        set_addrs(8, 42)
        a("s_mov_b32 s40, 0")

    def stage_head(lbl):
        a("s_waitcnt vmcnt(0) lgkmcnt(0)")
        a("s_barrier")
        a("s_cmp_ge_u32 s40, 6")
        a(f"s_cbranch_scc1 {lbl}")
        dma_stage(43)
        a.label(lbl)

    def stage_rotate():
        a("s_mov_b32 s47, s41")
        a("s_mov_b32 s41, s42")
        a("s_mov_b32 s42, s43")
        a("s_mov_b32 s43, s47")
        for i in range(4):
            a(f"v_mov_b32 v{4 + i}, v{8 + i}")
        set_addrs(8, 42)
        a("s_add_u32 s40, s40, 1")

    a.label("K2_MAIN")
    prof(a, 1)
    a("s_cmp_eq_u32 s39, 0")
    a("s_cbranch_scc1 K2_STARTED")
    start_stream()
    a.label("K2_STARTED")
    set_addrs(4, 41)
    set_addrs(8, 42)
    for i in range(16):
        a(f"v_mov_b32 v{O + i}, 0")
    for i in range(4):
        a(f"v_mov_b32 v{P + 4 + i}, 0")
        a(f"v_mov_b32 v{VF[1] + 4 + i}, 0")
    a.label("K2_STAGE")
    stage_head("K2_NODMA")
    a("s_cmp_lg_u32 s40, 0")
    a("s_cbranch_scc1 K2_BODY")
    for r in kread(0, 0):
        a(r)
    a("s_cmp_lg_u32 s39, 0")
    a("s_cbranch_scc1 K2_PRIME")
    a("s_waitcnt lgkmcnt(0)")
    qk(0, 0)
    a("s_nop 15")
    a("s_nop 3")
    s0 = S[0]
    a(f"v_max3_f32 v116, v{s0}, v{s0 + 1}, v{s0 + 2}")
    for i in range(3, 15, 2):
        a(f"v_max3_f32 v116, v116, v{s0 + i}, v{s0 + i + 1}")
    a(f"v_max_f32 v116, v116, v{s0 + 15}")
    set_m_from(116)
    a.label("K2_PRIME")
    for r in kread(1, 1):
        a(r)
    for r in vread(0, 0):
        a(r)
    a("s_waitcnt lgkmcnt(4)")
    qk(0, 0)
    a("s_nop 15")
    prof(a, 2)
    a.label("K2_BODY")
    for t in range(8):
        c = t % 2
        n = 1 - c
        sc = S[c]
        sn = S[n]

        def ex(lo):
            for i in range(lo, lo + 4):
                a(f"v_exp_f32 v{sc + i}, v{sc + i}")

        def cv(lo):
            for i in range(lo, lo + 4):
                a(f"v_cvt_pk_bf16_f32 v{P + i}, v{sc + 2 * i}, v{sc + 2 * i + 1}")
        ex(0)
        a(f"v_mfma_f32_32x32x16_bf16 {vr(O, 16)}, {vr(VF[n] + 4, 4)}, {vr(P + 4, 4)}, {vr(O, 16)}")
        ex(4)
        a("s_waitcnt lgkmcnt(2)")
        a(f"v_mfma_f32_32x32x16_bf16 {vr(sn, 16)}, {vr(KF[n], 4)}, {vr(QF0, 4)}, 0")
        cv(0)
        if not XP_NOLDS:
            for r in kread(c, t + 2):
                a(r)
            for r in vread(n, t + 1):
                a(r)
        ex(8)
        a(f"v_mfma_f32_32x32x16_bf16 {vr(sn, 16)}, {vr(KF[n] + 4, 4)}, {vr(QF1, 4)}, {vr(sn, 16)}")
        ex(12)
        a("s_waitcnt lgkmcnt(4)")
        a(f"v_mfma_f32_32x32x16_bf16 {vr(O, 16)}, {vr(VF[c], 4)}, {vr(P, 4)}, {vr(O, 16)}")
        cv(4)
    stage_rotate()
    if PROF:
        a("s_memtime s[88:89]")
        a("s_waitcnt lgkmcnt(0)")
        a("v_mov_b32 v2, s88")
        a("s_lshl_b32 s90, s40, 2")
        a("v_mov_b32 v3, s90")
        a("buffer_store_dword v2, v3, s[92:95], s91 offen offset:8")
    a("s_cmp_lt_u32 s40, 8")
    a("s_cbranch_scc1 K2_STAGE")
    a("s_nop 1")
    a(f"v_mfma_f32_32x32x16_bf16 {vr(O, 16)}, {vr(VF[1] + 4, 4)}, {vr(P + 4, 4)}, {vr(O, 16)}")
    a("s_nop 15")
    a("s_nop 3")
    a("s_cmp_lg_u32 s39, 0")
    a("s_cbranch_scc1 K2_EPI")
    a("v_mov_b32 v2, 0")
    for i in range(9):
        a(f"v_fma_f32 v2, v{O + i}, 0, v2")
    a("v_mov_b32 v3, 0")
    for i in range(9, 12):
        a(f"v_fma_f32 v3, v{O + i}, 0, v3")
    a("v_cmp_eq_u32 vcc, 0, v18")
    a("s_nop 1")
    a("v_cndmask_b32 v3, 0, v3, vcc")
    a("v_add_f32 v2, v2, v3")
    a("v_cmp_u_f32 vcc, v2, v2")
    a("s_nop 4")
    a("s_cbranch_vccz K2_VOTE")
    a("v_mov_b32 v2, 1")
    a(f"v_mov_b32 v3, {K2_FLAG}")
    a("ds_write_b32 v3, v2")
    a.label("K2_VOTE")
    a("s_waitcnt vmcnt(0) lgkmcnt(0)")
    a("s_barrier")
    a(f"v_mov_b32 v3, {K2_FLAG}")
    a("ds_read_b32 v2, v3")
    a("s_waitcnt lgkmcnt(0)")
    a("v_readfirstlane_b32 s47, v2")
    a("s_cmp_eq_u32 s47, 0")
    a("s_cbranch_scc1 K2_EPI")
    a("s_barrier")
    a("v_mov_b32 v26, 0")
    a("v_mov_b32 v27, 0")
    a(f"v_mov_b32 v117, {f32bits(float('-inf'))}")
    start_stream()
    a.label("K2_MSTAGE")
    stage_head("K2_MNODMA")
    for t in range(8):
        for r in kread(0, t):
            a(r)
        a("s_waitcnt lgkmcnt(0)")
        qk(0, 0)
        a("s_nop 15")
        a("s_nop 3")
        for i in range(0, 16, 2):
            a(f"v_max3_f32 v117, v117, v{s0 + i}, v{s0 + i + 1}")
    stage_rotate()
    a("s_cmp_lt_u32 s40, 8")
    a("s_cbranch_scc1 K2_MSTAGE")
    set_m_from(117)
    a("s_mov_b32 s39, 1")
    a("s_waitcnt vmcnt(0) lgkmcnt(0)")
    a("s_barrier")
    a("s_branch K2_MAIN")
    a.label("K2_EPI")
    a(f"v_mov_b32 v2, v{O + 8}")
    a(f"v_mov_b32 v3, v{O + 8}")
    a("s_nop 1")
    a("v_permlane32_swap_b32 v2, v3")
    a("s_nop 1")
    a("v_rcp_f32 v3, v3")
    a("s_nop 0")
    for i in range(12):
        a(f"v_mul_f32 v{O + i}, v{O + i}, v3")
    for i in range(6):
        a(f"v_cvt_pk_bf16_f32 v{P + i}, v{O + 2 * i}, v{O + 2 * i + 1}")
    a("s_lshl_b32 s47, s37, 8")
    a("s_lshl_b32 s48, s38, 5")
    a("s_add_u32 s47, s47, s48")
    a("v_add_u32 v2, s47, v17")
    a("v_mul_u32_u24 v2, 1280, v2")
    a("s_mul_i32 s48, s36, 40")
    a("v_lshl_add_u32 v2, v18, 3, v2")
    a("v_add_u32 v2, s48, v2")
    a(f"buffer_store_dwordx2 {vr(P, 2)}, v2, s[20:23], 0 offen")
    a(f"buffer_store_dwordx2 {vr(P + 2, 2)}, v2, s[20:23], 0 offen offset:16")
    a("v_cmp_eq_u32 vcc, 0, v18")
    a("s_and_saveexec_b64 s[50:51], vcc")
    a(f"buffer_store_dwordx2 {vr(P + 4, 2)}, v2, s[20:23], 0 offen offset:32")
    a("s_mov_b64 exec, s[50:51]")
    prof(a, 12)
    a.label("K2_END")
    a("s_endpgm")
    a.label("K2_FFN")
    if XP_NOFFN:
        a("s_endpgm")
    a("s_load_dwordx2 s[6:7], s[0:1], 40")
    a("s_load_dwordx2 s[52:53], s[0:1], 16")
    tile_map(a, 36, 37)
    a("s_sub_u32 s38, s38, 8")
    a("s_lshl_b32 s39, s36, 6")
    a("s_mul_i32 s40, s37, 160")
    a("s_mul_i32 s41, s38, 20480")
    a(f"s_add_u32 s41, s41, {K2_FFN}")
    a("s_mul_i32 s42, s38, 14")
    a("s_cmp_eq_u32 s38, 3")
    a("s_cselect_b32 s42, 41, s42")
    a("s_lshl_b32 s45, s42, 6")
    a(f"s_mul_i32 s46, s42, {32 * 1280}")
    a("s_waitcnt lgkmcnt(0)")
    srd(a, 16, 6, 7, SZ_W2)
    srd_off(a, 24, 8, 9, WS_H, SZ_H)
    srd_off(a, 28, 8, 9, WS_B, SZ_B)
    gw_setup(a, 39, 40, 3456, 41)
    gw_issue(a, 0, 24, 16, 45, 46, 41)
    if XP_PF:
        srd(a, 52, 52, 53, SZ_WO)
        a("s_mul_i32 s56, s2, 3200")
        a("v_and_b32 v3, 255, v0")
        a("v_lshlrev_b32 v2, 7, v3")
        a("v_cmp_gt_u32 vcc, 25, v3")
        a("v_bfrev_b32 v3, 1")
        a("v_cndmask_b32 v2, v3, v2, vcc")
        a("buffer_load_dword v141, v2, s[52:55], s56 offen")
    for k in range(7):
        a("s_barrier")
        gw_issue(a, 1, 24, 16, 45, 46, 41)
        a("s_waitcnt vmcnt(9)")
        gw_compute(a, 0, k == 0)
        gw_issue(a, 0, 24, 16, 45, 46, 41)
        a("s_waitcnt vmcnt(9)")
        if k == 6:
            a("s_cmp_ge_u32 s38, 2")
            a("s_cbranch_scc1 K2_FSKIP")
        gw_compute(a, 1, False)
    a.label("K2_FSKIP")
    a("s_nop 7")
    a("s_nop 3")
    a("s_waitcnt vmcnt(0)")
    gw_write_partials(a, 41)
    a("s_waitcnt lgkmcnt(0)")
    a("s_barrier")
    gw_read_sum(a, 38, K2_FFN)
    for e in range(0, 20, 2):
        a(f"v_cvt_pk_bf16_f32 v{112 + e // 2}, v{24 + e}, v{25 + e}")
    a("v_lshrrev_b32 v2, 2, v1")
    a("s_lshl_b32 s42, s38, 4")
    a("s_add_u32 s42, s42, s39")
    a("v_add_u32 v2, s42, v2")
    a("v_mul_u32_u24 v2, 1280, v2")
    a("v_and_b32 v3, 3, v1")
    a("v_mul_u32_u24 v3, 40, v3")
    a("v_add3_u32 v2, v2, v3, s40")
    a("buffer_store_dwordx4 v[112:115], v2, s[28:31], 0 offen")
    a("buffer_store_dwordx4 v[116:119], v2, s[28:31], 0 offen offset:16")
    a("buffer_store_dwordx2 v[120:121], v2, s[28:31], 0 offen offset:32")
    a("s_endpgm")
    return a.text()


K3_NS = 4
K3_RING = K3_NS * GS_SLOT
K3_LDS = 4 * K3_RING


def k3():
    a = Asm()
    a.label("k3_kernel")
    a("s_cmp_ge_u32 s2, 256")
    a("s_cbranch_scc1 K3_END")
    a("s_load_dwordx2 s[4:5], s[0:1], 16")
    a("s_load_dwordx2 s[8:9], s[0:1], 72")
    a("s_load_dwordx2 s[10:11], s[0:1], 56")
    tile_map(a, 36, 37)
    a("v_and_b32 v1, 63, v0")
    a("v_lshrrev_b32 v2, 6, v0")
    a("s_nop 0")
    a("v_readfirstlane_b32 s38, v2")
    a("s_lshl_b32 s39, s36, 6")
    a("s_mul_i32 s40, s37, 160")
    a(f"s_mul_i32 s41, s38, {K3_RING}")
    a("s_mul_i32 s45, s38, 320")
    a(f"s_mul_i32 s46, s38, {160 * 1280}")
    a("s_waitcnt lgkmcnt(0)")
    srd(a, 12, 4, 5, SZ_WO)
    srd_off(a, 20, 8, 9, WS_O, SZ_O)
    srd_off(a, 24, 8, 9, WS_B, SZ_B)
    srd_off(a, 28, 8, 9, WS_G, SZ_G)
    srd(a, 32, 10, 11, SZ_OUT)
    prof_init(a, 8, 9, 38, 2)
    prof(a, 0)
    gw_setup(a, 39, 40, 1280, 41)
    for st in range(4):
        gw_issue(a, st, 20, 12, 45, 46, 41)
    a("v_lshrrev_b32 v2, 2, v1")
    a("s_lshl_b32 s42, s38, 4")
    a("s_add_u32 s42, s42, s39")
    a("v_add_u32 v15, s42, v2")
    a("v_lshlrev_b32 v2, 2, v15")
    a("buffer_load_dword v16, v2, s[28:31], 0 offen")
    a("v_mul_u32_u24 v2, 1280, v15")
    a("v_and_b32 v3, 3, v1")
    a("v_mul_u32_u24 v3, 40, v3")
    a("v_add3_u32 v17, v2, v3, s40")
    a("buffer_load_dwordx4 v[140:143], v17, s[24:27], 0 offen")
    a("buffer_load_dwordx4 v[144:147], v17, s[24:27], 0 offen offset:16")
    a("buffer_load_dwordx2 v[148:149], v17, s[24:27], 0 offen offset:32")
    a(f"s_waitcnt vmcnt({27 + 4})")
    gw_compute(a, 0, True)
    gw_issue(a, 0, 20, 12, 45, 46, 41)
    a(f"s_waitcnt vmcnt({18 + 4 + 9})")
    gw_compute(a, 1, False)
    a(f"s_waitcnt vmcnt({9 + 4 + 9})")
    gw_compute(a, 2, False)
    a(f"s_waitcnt vmcnt({4 + 9})")
    gw_compute(a, 3, False)
    a("s_waitcnt vmcnt(0)")
    gw_compute(a, 0, False)
    a("s_nop 7")
    a("s_nop 3")
    prof(a, 1)
    a("s_barrier")
    a("s_mul_i32 s43, s38, 20480")
    gw_write_partials(a, 43)
    a("s_waitcnt lgkmcnt(0)")
    a("s_barrier")
    prof(a, 2)
    gw_read_sum(a, 38, 0)
    R = 24
    a("v_sub_f32 v18, 1.0, v16")
    a("v_cvt_pk_bf16_f32 v18, v18, v18")
    a("v_lshlrev_b32 v18, 16, v18")
    for e in range(0, 20, 2):
        bp = 140 + e // 2
        a(f"v_cvt_pk_bf16_f32 v19, v{R + e}, v{R + e + 1}")
        a("v_lshlrev_b32 v4, 16, v19")
        a("v_and_b32 v5, 0xffff0000, v19")
        a(f"v_lshlrev_b32 v6, 16, v{bp}")
        a(f"v_and_b32 v7, 0xffff0000, v{bp}")
        a("v_mul_f32 v4, v16, v4")
        a("v_mul_f32 v5, v16, v5")
        a("v_mul_f32 v6, v18, v6")
        a("v_mul_f32 v7, v18, v7")
        a("v_cvt_pk_bf16_f32 v19, v4, v5")
        a("v_cvt_pk_bf16_f32 v20, v6, v7")
        a("v_lshlrev_b32 v4, 16, v19")
        a("v_and_b32 v5, 0xffff0000, v19")
        a("v_lshlrev_b32 v6, 16, v20")
        a("v_and_b32 v7, 0xffff0000, v20")
        a("v_add_f32 v4, v4, v6")
        a("v_add_f32 v5, v5, v7")
        a(f"v_cvt_pk_bf16_f32 v{112 + e // 2}, v4, v5")
    a("buffer_store_dwordx4 v[112:115], v17, s[32:35], 0 offen")
    a("buffer_store_dwordx4 v[116:119], v17, s[32:35], 0 offen offset:16")
    a("buffer_store_dwordx2 v[120:121], v17, s[32:35], 0 offen offset:32")
    prof(a, 12)
    a.label("K3_END")
    a("s_endpgm")
    return a.text()


def desc(name, vgpr, sgpr=96):
    acc = (vgpr + 3) // 4 * 4
    return f""".amdhsa_kernel {name}
  .amdhsa_next_free_vgpr {vgpr}
  .amdhsa_next_free_sgpr {sgpr}
  .amdhsa_accum_offset {acc}
  .amdhsa_group_segment_fixed_size 0
  .amdhsa_kernarg_size 80
  .amdhsa_user_sgpr_count 2
  .amdhsa_user_sgpr_kernarg_segment_ptr 1
  .amdhsa_system_sgpr_workgroup_id_x 1
.end_amdhsa_kernel
"""


def main():
    hdr = f"""; gated_mix__mha_block__dense_activation_relu__prompt : 3 kernels (generated by gen.py, hand-designed)
; @launch kernel=k1_kernel grid=(256,1,1) block=(512,1,1) lds={K1_LDS}
; @launch kernel=k2_kernel grid=(256,1,1) block=(768,1,1) lds={K2_LDS}
; @launch kernel=k3_kernel grid=(256,1,1) block=(256,1,1) lds={K3_LDS}
.amdgcn_target "amdgcn-amd-amdhsa--gfx950"
.text
"""
    body = ""
    for name, fn in (("k1_kernel", k1), ("k2_kernel", k2), ("k3_kernel", k3)):
        body += f".globl {name}\n.p2align 8\n.type {name},@function\n" + fn()
    tail = '.section .rodata,"a"\n.p2align 6\n'
    tail += desc("k1_kernel", 168)
    tail += ".p2align 6\n" + desc("k2_kernel", 144)
    tail += ".p2align 6\n" + desc("k3_kernel", 152)
    open(OUT, "w").write(hdr + body + tail)


if __name__ == "__main__":
    main()
```

```python
import struct, sys

OUT = sys.argv[1] if len(sys.argv) > 1 else "gated_mix__mha_block__dense_activation_relu__prompt.s"

WS_Q = 0
SZ_Q = 32 * 2048 * 48
WS_KV = 0x400000
HEAD_KV = 64 * 2880
SZ_KV = 32 * HEAD_KV
WS_H = 0xC00000
SZ_H = 2048 * 3456
WS_O = 0x1400000
SZ_O = 2048 * 1280
WS_G = 0x1800000
SZ_G = 2048 * 4
WS_B = 0x1A00000
SZ_B = 2048 * 1280

SZ_X = 2048 * 1280
SZ_WQKV = 640 * 3840
SZ_WO = 640 * 1280
SZ_W1 = 640 * 3456
SZ_W2 = 1728 * 1280
SZ_OUT = 2048 * 1280


def f32bits(x):
    return struct.unpack("<I", struct.pack("<f", x))[0]


C_SCALE = 1.4426950408889634 / (20 ** 0.5)
LOG2E = 1.4426950408889634


PROF = int(__import__("os").environ.get("PROF", "0"))
WS_T = 0x2000000
XP_PF = int(__import__("os").environ.get("XP_PF", "1"))
XP_ROT = int(__import__("os").environ.get("XP_ROT", "1"))
XP_PRIO = int(__import__("os").environ.get("XP_PRIO", "1"))
XP_NOLDS = int(__import__("os").environ.get("XP_NOLDS", "0"))
XP_NOFFN = int(__import__("os").environ.get("XP_NOFFN", "0"))


def prof_init(a, wsl, wsh, wave_s, kidx=0):
    if not PROF:
        return
    a(f"s_add_u32 s92, s{wsl}, {WS_T + kidx * 0x100000}")
    a(f"s_addc_u32 s93, s{wsh}, 0")
    a("s_and_b32 s93, s93, 0xffff")
    a("s_mov_b32 s94, 0x100000")
    a("s_mov_b32 s95, 0x00020000")
    a("s_lshl_b32 s91, s2, 4")
    a(f"s_add_u32 s91, s91, s{wave_s}")
    a("s_lshl_b32 s91, s91, 7")


def prof(a, slot, tmpv=2):
    if not PROF:
        return
    a("s_memtime s[88:89]")
    a("s_waitcnt lgkmcnt(0)")
    a(f"v_mov_b32 v{tmpv}, s88")
    a(f"v_mov_b32 v{tmpv + 1}, 0")
    a(f"buffer_store_dword v{tmpv}, v{tmpv + 1}, s[92:95], s91 offen offset:{4 * slot}")
    if slot == 0:
        a(f"v_mov_b32 v{tmpv}, s86")
        a(f"buffer_store_dword v{tmpv}, v{tmpv + 1}, s[92:95], s91 offen offset:60")
    if slot in (0, 12):
        a("s_memrealtime s[88:89]")
        a("s_waitcnt lgkmcnt(0)")
        a(f"v_mov_b32 v{tmpv}, s88")
        a(f"buffer_store_dword v{tmpv}, v{tmpv + 1}, s[92:95], s91 offen offset:{4 * (13 if slot == 0 else 14)}")


class Asm:
    def __init__(self):
        self.lines = []

    def __call__(self, s):
        self.lines.append("    " + s)

    def label(self, l):
        self.lines.append(l + ":")

    def c(self, s):
        self.lines.append("    ; " + s)

    def text(self):
        return "\n".join(self.lines) + "\n"


def vr(b, n=1):
    return f"v{b}" if n == 1 else f"v[{b}:{b + n - 1}]"


def sr(b, n=1):
    return f"s{b}" if n == 1 else f"s[{b}:{b + n - 1}]"


def srd(a, d, lo, hi, size):
    a(f"s_mov_b32 s{d}, s{lo}")
    a(f"s_and_b32 s{d + 1}, s{hi}, 0xffff")
    a(f"s_mov_b32 s{d + 2}, {size}")
    a(f"s_mov_b32 s{d + 3}, 0x00020000")


def srd_off(a, d, lo, hi, off, size):
    a(f"s_add_u32 s{d}, s{lo}, {off}")
    a(f"s_addc_u32 s{d + 1}, s{hi}, 0")
    a(f"s_and_b32 s{d + 1}, s{d + 1}, 0xffff")
    a(f"s_mov_b32 s{d + 2}, {size}")
    a(f"s_mov_b32 s{d + 3}, 0x00020000")


K1_STAGE = 45056
K1_LDS = 3 * K1_STAGE


def k1():
    a = Asm()
    a.label("k1_kernel")
    if PROF:
        a("s_memtime s[86:87]")
    a("s_cmp_ge_u32 s2, 256")
    a("s_cbranch_scc1 K1_END")
    a("s_and_b32 s3, s2, 7")
    a("s_lshr_b32 s4, s2, 3")
    a("s_lshl_b32 s3, s3, 5")
    a("s_add_u32 s3, s3, s4")
    a("s_cmp_ge_u32 s3, 253")
    a("s_cbranch_scc1 K1_END")
    a("s_mul_i32 s25, s3, 373")
    a("s_lshr_b32 s25, s25, 12")
    a("s_mul_i32 s4, s25, 11")
    a("s_sub_u32 s24, s3, s4")
    a("s_load_dwordx2 s[4:5], s[0:1], 0")
    a("s_load_dwordx2 s[6:7], s[0:1], 8")
    a("s_load_dwordx2 s[8:9], s[0:1], 32")
    a("s_load_dwordx2 s[10:11], s[0:1], 72")
    a("v_and_b32 v1, 63, v0")
    a("v_lshrrev_b32 v2, 6, v0")
    a("s_nop 0")
    a("v_readfirstlane_b32 s26, v2")
    a("s_lshr_b32 s27, s25, 2")
    a("s_min_u32 s27, s27, 3")
    a("s_mul_i32 s30, s24, 192")
    a("s_waitcnt lgkmcnt(0)")
    srd(a, 12, 4, 5, SZ_X)
    a("s_sub_u32 s29, s25, 12")
    a(f"s_mov_b32 s18, {SZ_W1}")
    a("s_mov_b32 s28, 3456")
    a("s_cmp_lt_u32 s25, 12")
    a("s_cselect_b32 s16, s6, s8")
    a("s_cselect_b32 s17, s7, s9")
    a(f"s_cselect_b32 s18, {SZ_WQKV}, s18")
    a("s_cselect_b32 s28, 3840, s28")
    a("s_cselect_b32 s29, s25, s29")
    a("s_and_b32 s17, s17, 0xffff")
    a("s_mov_b32 s19, 0x00020000")
    a("s_mul_i32 s29, s29, 160")
    a(f"s_mov_b32 s31, {WS_KV}")
    a(f"s_mov_b32 s22, {SZ_KV}")
    a("s_cmp_eq_u32 s27, 0")
    a(f"s_cselect_b32 s31, {WS_Q}, s31")
    a(f"s_cselect_b32 s22, {SZ_Q}, s22")
    a("s_cmp_eq_u32 s27, 3")
    a(f"s_cselect_b32 s31, {WS_H}, s31")
    a(f"s_cselect_b32 s22, {SZ_H}, s22")
    a("s_add_u32 s20, s10, s31")
    a("s_addc_u32 s21, s11, 0")
    a("s_and_b32 s21, s21, 0xffff")
    a("s_mov_b32 s23, 0x00020000")
    prof_init(a, 10, 11, 26, 0)
    prof(a, 0)
    a("s_lshr_b32 s32, s26, 1")
    a("s_and_b32 s33, s26, 1")
    a("v_lshrrev_b32 v2, 3, v1")
    a("v_and_b32 v3, 7, v1")
    a("v_xor_b32 v3, v3, v2")
    a("v_lshlrev_b32 v3, 4, v3")
    a("v_mul_u32_u24 v2, 1280, v2")
    a("v_add_u32 v4, v2, v3")
    a("v_add_u32 v5, 10240, v4")
    a("v_add_u32 v6, 20480, v4")
    a("s_mul_i32 s34, s26, 24")
    a("s_add_u32 s34, s34, s30")
    a("s_mul_i32 s34, s34, 1280")
    a("s_mov_b32 s35, 0")
    a("s_lshl_b32 s36, s28, 6")
    a("s_add_u32 s62, s34, 1280")
    a("s_mul_i32 s61, s28, 640")
    a("s_add_u32 s60, s24, s25")
    a("s_mul_i32 s63, s60, 43")
    a("s_lshr_b32 s63, s63, 7")
    a("s_mul_i32 s63, s63, 3")
    a("s_sub_u32 s60, s60, s63")
    a(f"s_mul_i32 s60, s60, {XP_ROT}")
    a("s_lshl_b32 s63, s60, 7")
    a("s_add_u32 s34, s34, s63")
    a("s_mul_i32 s35, s60, s36")
    a("s_add_u32 s37, s26, 8")
    a("s_add_u32 s38, s26, 16")
    a("s_cmp_lt_u32 s26, 4")
    a("s_cselect_b32 s38, s38, s37")
    a("s_lshl_b32 s39, s29, 1")
    for j, sidx in enumerate((26, 37, 38)):
        a(f"s_lshl_b32 s40, s{sidx}, 6")
        a("v_add_u32 v2, s40, v1")
        a("v_mul_u32_u24 v3, 3277, v2")
        a("v_lshrrev_b32 v3, 16, v3")
        a("v_mul_u32_u24 v22, 20, v3")
        a("v_sub_u32 v2, v2, v22")
        a("v_lshrrev_b32 v22, 2, v3")
        a("v_and_b32 v22, 2, v22")
        a("v_xor_b32 v2, v2, v22")
        a("v_lshlrev_b32 v2, 4, v2")
        a("v_mul_lo_u32 v3, v3, s28")
        a(f"v_add3_u32 v{7 + j}, v2, v3, s39")
    a("s_mul_i32 s41, s26, 3072")
    a("s_lshl_b32 s42, s26, 10")
    a("s_add_u32 s42, s42, 24576")
    a("s_lshl_b32 s43, s37, 10")
    a("s_add_u32 s43, s43, 24576")
    a("s_lshl_b32 s44, s38, 10")
    a("s_add_u32 s44, s44, 24576")

    def dma_pieces(buf):
        base = buf * K1_STAGE
        g = []
        for j in range(3):
            x = [f"s_add_u32 m0, s41, {base + j * 1024}", "s_nop 0",
                 f"buffer_load_dwordx4 v{4 + j}, s[12:15], s34 offen lds"]
            if j == 2:
                x += ["s_add_u32 s34, s34, 128", "s_sub_u32 s60, s34, 1280", "s_cmp_ge_u32 s34, s62",
                      "s_cselect_b32 s34, s60, s34"]
            g.append(x)
        for j in range(3):
            x = [f"s_add_u32 m0, s{42 + j}, {base}", "s_nop 0",
                 f"buffer_load_dwordx4 v{7 + j}, s[16:19], s35 offen lds"]
            if j == 2:
                x += ["s_add_u32 s35, s35, s36", "s_cmp_ge_u32 s35, s61", "s_cselect_b32 s35, 0, s35"]
            g.append(x)
        return g

    for b in range(3):
        for g in dma_pieces(b):
            for x in g:
                a(x)
    NPF = 0
    if XP_PF > 1:
        NPF = 3
        a("s_lshr_b32 s45, s2, 3")
        a("s_mul_i32 s45, s45, 81920")
        a("v_lshlrev_b32 v2, 7, v0")
        a("buffer_load_dword v160, v2, s[12:15], s45 offen")
        a("v_add_u32 v3, 0x10000, v2")
        a("v_cmp_gt_u32 vcc, 128, v0")
        a("v_bfrev_b32 v22, 1")
        a("v_cndmask_b32 v3, v22, v3, vcc")
        a("buffer_load_dword v161, v3, s[12:15], s45 offen")
        a("v_mul_u32_u24 v2, 21846, v0")
        a("v_lshrrev_b32 v2, 16, v2")
        a("v_mul_u32_u24 v3, 3, v2")
        a("v_sub_u32 v3, v0, v3")
        a("v_lshlrev_b32 v3, 7, v3")
        a("s_mul_i32 s45, s24, 59")
        a("v_add_u32 v2, s45, v2")
        a("v_cmp_gt_u32 vcc, 177, v0")
        a("v_mul_lo_u32 v2, v2, s28")
        a("v_add3_u32 v2, v2, v3, s39")
        a("v_cndmask_b32 v2, v22, v2, vcc")
        a("buffer_load_dword v162, v2, s[16:19], 0 offen")
    a("v_lshrrev_b32 v22, 4, v1")
    a("v_and_b32 v23, 15, v1")
    a("s_mul_i32 s45, s32, 48")
    a("v_add_u32 v2, s45, v23")
    a("v_lshlrev_b32 v2, 7, v2")
    a("v_and_b32 v3, 7, v23")
    a("v_xor_b32 v3, v3, v22")
    a("v_lshlrev_b32 v3, 4, v3")
    a("v_add_u32 v10, v2, v3")
    a("v_xor_b32 v11, 64, v10")
    for b in (1, 2):
        a(f"v_add_u32 v{10 + 2 * b}, {b * K1_STAGE}, v10")
        a(f"v_add_u32 v{11 + 2 * b}, {b * K1_STAGE}, v11")
    a("v_lshlrev_b32 v2, 3, v22")
    a("v_lshrrev_b32 v3, 2, v23")
    a("v_add_u32 v2, v2, v3")
    a("v_mul_u32_u24 v2, 320, v2")
    a("v_and_b32 v3, 3, v23")
    a("v_lshlrev_b32 v3, 3, v3")
    a("s_mul_i32 s45, s33, 160")
    a("s_add_u32 s45, s45, 24576")
    a("v_add3_u32 v2, v2, v3, s45")
    a("v_and_b32 v3, 1, v22")
    a("v_lshlrev_b32 v3, 5, v3")
    a("s_cmp_eq_u32 s33, 0")
    a("s_cselect_b32 s45, 1, -1")
    a("v_mul_lo_u32 v3, v3, s45")
    a("v_add_u32 v16, v2, v3")
    a("v_sub_u32 v17, v2, v3")
    for b in (1, 2):
        a(f"v_add_u32 v{16 + 2 * b}, {b * K1_STAGE}, v16")
        a(f"v_add_u32 v{17 + 2 * b}, {b * K1_STAGE}, v17")

    XF = (24, 36)
    WF = (48, 68)
    ACC = 88

    def reads(buf, sub, st):
        r = []
        for ti in range(3):
            r.append(f"ds_read_b128 {vr(XF[st] + 4 * ti, 4)}, v{10 + 2 * buf + sub} offset:{ti * 2048}")
        for ni in range(5):
            ad = 16 + 2 * buf + (ni & 1)
            off = ni * 32 + sub * 10240
            r.append(f"ds_read_b64_tr_b16 {vr(WF[st] + 4 * ni, 2)}, v{ad} offset:{off}")
            r.append(f"ds_read_b64_tr_b16 {vr(WF[st] + 4 * ni + 2, 2)}, v{ad} offset:{off + 1280}")
        return r

    def mfmas(st, vor, first):
        m = []
        for ni in range(5):
            for ti in range(3):
                d = ACC + 4 * (ni * 3 + ti)
                c = "0" if first else vr(d, 4)
                w = vr(WF[st] + 4 * ni, 4)
                x = vr(XF[st] + 4 * ti, 4)
                if vor:
                    m.append(f"v_mfma_f32_16x16x32_bf16 {vr(d, 4)}, {x}, {w}, {c}")
                else:
                    m.append(f"v_mfma_f32_16x16x32_bf16 {vr(d, 4)}, {w}, {x}, {c}")
        return m

    def phase(ms, rs, ds):
        rs = list(rs)
        ds = list(ds)
        for i, m in enumerate(ms):
            a(m)
            for _ in range(2):
                if rs:
                    a(rs.pop(0))
            if ds and i in (7, 10, 13):
                for x in ds.pop(0):
                    a(x)

    def loop(vor):
        a(f"s_waitcnt vmcnt({12 + NPF})")
        a("s_barrier")
        prof(a, 1)
        for r in reads(0, 0, 0):
            a(r)
        pend = []
        for ks in range(10):
            buf = ks % 3
            a("s_waitcnt lgkmcnt(0)")
            phase(mfmas(0, vor, ks == 0), reads(buf, 1, 1), pend)
            pend = []
            nxt = []
            if ks < 9:
                a(f"s_waitcnt vmcnt({(6 + NPF if ks < 2 else 6) if ks < 8 else 0}) lgkmcnt(0)")
                a("s_barrier")
                prof(a, 2 + ks)
                nxt = reads((ks + 1) % 3, 0, 0)
            else:
                a("s_waitcnt lgkmcnt(0)")
            d = []
            if ks + 3 < 10:
                p = dma_pieces(buf)
                d = p[:3]
                pend = p[3:]
            phase(mfmas(1, vor, False), nxt, d)
        a("s_barrier")
        a("s_nop 7")
        a("s_nop 3")
        prof(a, 11)

    a("s_cmp_eq_u32 s27, 2")
    a("s_cbranch_scc1 K1_VLOOP")
    loop(False)
    a("s_mul_i32 s45, s32, 48")
    a("v_add_u32 v4, s45, v23")
    a("s_cmp_eq_u32 s27, 3")
    a("s_cbranch_scc1 K1_EPI_FFN")
    a("s_cmp_eq_u32 s27, 0")
    a(f"s_cselect_b32 s48, {f32bits(C_SCALE)}, 1.0")
    NO = 148
    a("v_mul_u32_u24 v4, 48, v4")
    a("s_mul_i32 s46, s33, 36864")
    a("v_add_u32 v4, s46, v4")
    for ni in range(5):
        a(f"v_add_u32 v2, {4 * ni}, v22")
        a("v_mul_u32_u24 v3, 13, v2")
        a("v_lshrrev_b32 v3, 6, v3")
        a("v_mul_u32_u24 v5, 5, v3")
        a(f"v_sub_u32 v{NO + 5 + ni}, v2, v5")
        a("v_mul_u32_u24 v3, 9216, v3")
        a(f"v_lshl_add_u32 v3, v{NO + 5 + ni}, 3, v3")
        a(f"v_add_u32 v{NO + ni}, v3, v4")
    a("v_mov_b32 v8, 0x3f803f80")
    a("v_mov_b32 v9, 0x00003f80")
    for ti in range(3):
        for ni in range(5):
            d = ACC + 4 * (ni * 3 + ti)
            for i in range(4):
                a(f"v_mul_f32 v{d + i}, s48, v{d + i}")
            a(f"v_cvt_pk_bf16_f32 v{d}, v{d}, v{d + 1}")
            a(f"v_cvt_pk_bf16_f32 v{d + 1}, v{d + 2}, v{d + 3}")
            a(f"ds_write_b64 v{NO + ni}, {vr(d, 2)} offset:{768 * ti}")
    for ni in range(1, 5):
        a(f"v_cmp_eq_u32 vcc, 4, v{NO + 5 + ni}")
        a("s_and_saveexec_b64 s[50:51], vcc")
        for ti in range(3):
            a(f"ds_write_b64 v{NO + ni}, v[8:9] offset:{768 * ti + 8}")
        a("s_mov_b64 exec, s[50:51]")
    a("s_mul_i32 s52, s26, 9216")
    a("s_and_b32 s46, s25, 3")
    a("s_lshl_b32 s46, s46, 3")
    a("s_add_u32 s46, s46, s26")
    a("s_sub_u32 s57, 2048, s30")
    a("s_min_u32 s57, s57, 192")
    a("s_mul_i32 s57, s57, 3")
    a("s_mov_b32 s56, 0")
    a("s_mov_b32 s58, 1000")
    a("s_cmp_eq_u32 s27, 0")
    a("s_cbranch_scc0 K1_CPK")
    a("s_mul_i32 s53, s46, 98304")
    a("s_mul_i32 s47, s30, 48")
    a("s_add_u32 s53, s53, s47")
    a("s_mov_b32 s54, 0")
    a("s_mov_b32 s55, 0")
    a("s_branch K1_COPY")
    a.label("K1_CPK")
    a(f"s_mul_i32 s53, s46, {HEAD_KV}")
    a("s_mul_i32 s47, s30, 90")
    a("s_add_u32 s53, s53, s47")
    a("s_mov_b32 s54, 683")
    a("s_mov_b32 s55, 1344")
    a("s_branch K1_COPY")
    a.label("K1_EPI_FFN")
    a("v_mul_u32_u24 v4, 336, v4")
    a("s_mul_i32 s46, s33, 160")
    a("v_lshl_add_u32 v4, v22, 3, v4")
    a("v_add_u32 v4, s46, v4")
    for ti in range(3):
        for ni in range(5):
            d = ACC + 4 * (ni * 3 + ti)
            for i in range(4):
                a(f"v_max_f32 v{d + i}, 0, v{d + i}")
            a(f"v_cvt_pk_bf16_f32 v{d}, v{d}, v{d + 1}")
            a(f"v_cvt_pk_bf16_f32 v{d + 1}, v{d + 2}, v{d + 3}")
            a(f"ds_write_b64 v4, {vr(d, 2)} offset:{5376 * ti + 32 * ni}")
    a("s_mul_i32 s52, s26, 8064")
    a("s_mul_i32 s46, s26, 24")
    a("s_add_u32 s46, s46, s30")
    a("s_mul_i32 s53, s46, 3456")
    a("s_lshl_b32 s47, s29, 1")
    a("s_add_u32 s53, s53, s47")
    a("s_mov_b32 s54, 3277")
    a("s_mov_b32 s55, 3136")
    a("s_mov_b32 s56, 16")
    a("s_sub_i32 s57, 2048, s46")
    a("s_max_i32 s57, s57, 0")
    a("s_min_u32 s57, s57, 24")
    a("s_mul_i32 s57, s57, 20")
    a("s_sub_u32 s58, 1728, s29")
    a("s_lshr_b32 s58, s58, 3")
    a("s_branch K1_COPY")
    a.label("K1_VLOOP")
    loop(True)
    a("s_mul_i32 s46, s33, 32256")
    for ni in range(5):
        a(f"v_add_u32 v2, {16 * ni}, v23")
        a("v_mul_u32_u24 v3, 205, v2")
        a("v_lshrrev_b32 v3, 12, v3")
        a("v_mul_u32_u24 v4, 20, v3")
        a(f"v_sub_u32 v{NO + 10 + ni}, v2, v4")
        a("v_mul_u32_u24 v3, 8064, v3")
        a(f"v_lshlrev_b32 v4, 6, v{NO + 10 + ni}")
        a(f"v_add3_u32 v{NO + ni}, v3, v4, s46")
        a(f"v_bfe_u32 v{NO + 5 + ni}, v{NO + 10 + ni}, 2, 2")
    a("v_mov_b32 v8, 0x3f803f80")
    a("v_mov_b32 v9, 0x3f803f80")
    a("s_mul_i32 s45, s32, 48")
    for ti in range(3):
        a(f"s_add_u32 s49, s45, {16 * ti}")
        a("v_lshlrev_b32 v2, 2, v22")
        a("v_add_u32 v2, s49, v2")
        a("v_lshrrev_b32 v3, 5, v2")
        a("v_mul_u32_u24 v3, 1344, v3")
        a("v_bfe_u32 v2, v2, 2, 3")
        a("v_bfe_u32 v4, v2, 1, 1")
        a("v_lshl_add_u32 v10, v4, 3, v3")
        a("v_lshrrev_b32 v4, 1, v2")
        a("v_and_b32 v4, 2, v4")
        a("v_and_b32 v2, 1, v2")
        a("v_or_b32 v11, v2, v4")
        for ni in range(5):
            d = ACC + 4 * (ni * 3 + ti)
            a(f"v_cvt_pk_bf16_f32 v{d}, v{d}, v{d + 1}")
            a(f"v_cvt_pk_bf16_f32 v{d + 1}, v{d + 2}, v{d + 3}")
            a(f"v_xor_b32 v6, v11, v{NO + 5 + ni}")
            a("v_lshlrev_b32 v6, 4, v6")
            a(f"v_add3_u32 v6, v6, v10, v{NO + ni}")
            a(f"ds_write_b64 v6, {vr(d, 2)}")
            if ni < 4:
                a("v_xor_b32 v7, 1, v11")
                a("v_lshlrev_b32 v7, 4, v7")
                a(f"v_add3_u32 v7, v7, v10, v{NO + ni}")
                a(f"v_cmp_eq_u32 vcc, 0, v{NO + 10 + ni}")
                a("s_and_saveexec_b64 s[50:51], vcc")
                a("ds_write_b64 v7, v[8:9] offset:1280")
                a("s_mov_b64 exec, s[50:51]")
    a("s_mul_i32 s52, s26, 8064")
    a("s_and_b32 s46, s25, 3")
    a("s_lshl_b32 s46, s46, 3")
    a("s_add_u32 s46, s46, s26")
    a(f"s_mul_i32 s53, s46, {HEAD_KV}")
    a("s_mul_i32 s47, s30, 90")
    a("s_add_u32 s53, s53, s47")
    a("s_add_u32 s53, s53, 1536")
    a("s_mov_b32 s54, 781")
    a("s_mov_b32 s55, 1536")
    a("s_mov_b32 s56, 0")
    a("s_sub_u32 s57, 2048, s30")
    a("s_min_u32 s57, s57, 192")
    a("s_lshr_b32 s57, s57, 5")
    a("s_mul_i32 s57, s57, 84")
    a("s_mov_b32 s58, 1000")
    a.label("K1_COPY")
    a("s_mov_b32 s59, 20")
    for it in range(9):
        ga = 24 + it
        la = 34 + it
        a(f"v_add_u32 v2, {64 * it}, v1")
        a("v_mul_lo_u32 v3, v2, s54")
        a("v_lshrrev_b32 v3, 16, v3")
        a("v_lshlrev_b32 v4, 4, v2")
        a("v_mul_lo_u32 v5, v3, s55")
        a(f"v_add3_u32 v{ga}, v4, v5, s53")
        a("v_mul_lo_u32 v5, v3, s56")
        a(f"v_add3_u32 v{la}, v4, v5, s52")
        a("v_mul_lo_u32 v5, v3, s59")
        a("v_sub_u32 v5, v2, v5")
        a("v_cmp_gt_u32 vcc, s57, v2")
        a("v_cmp_gt_i32 s[50:51], s58, v5")
        a("s_and_b64 vcc, vcc, s[50:51]")
        a("v_bfrev_b32 v5, 1")
        a(f"v_cndmask_b32 v{ga}, v5, v{ga}, vcc")
    a("s_waitcnt lgkmcnt(0)")
    a("s_barrier")
    for it in range(9):
        a(f"ds_read_b128 {vr(48 + 4 * it, 4)}, v{34 + it}")
    for it in range(9):
        a(f"s_waitcnt lgkmcnt({8 - it})")
        a(f"buffer_store_dwordx4 {vr(48 + 4 * it, 4)}, v{24 + it}, s[20:23], 0 offen sc1")
    a.label("K1_PEND")
    prof(a, 12)
    a.label("K1_END")
    a("s_endpgm")
    return a.text()


GS_SLOT = 9216


class GW:
    VA = 4
    VW = 8
    RA = 13
    RW = 14
    AF = 24
    WF = 40
    ACC = 60


def gw_setup(a, sR0, sC0B, strideA, sLds):
    a("v_lshrrev_b32 v22, 4, v1")
    a("v_and_b32 v23, 15, v1")
    a("v_lshrrev_b32 v2, 2, v1")
    a("v_sub_u32 v3, 0, v22")
    a("v_and_b32 v3, 3, v3")
    a("v_and_b32 v15, 3, v1")
    a("v_xor_b32 v3, v3, v15")
    a("v_lshlrev_b32 v3, 4, v3")
    a(f"v_add_u32 v2, s{sR0}, v2")
    a(f"s_mov_b32 s60, {strideA}")
    a("v_mul_lo_u32 v2, v2, s60")
    a(f"v_add_u32 v{GW.VA}, v2, v3")
    for i in range(1, 4):
        a(f"v_add_u32 v{GW.VA + i}, {16 * i * strideA}, v{GW.VA}")
    for i in range(5):
        a(f"v_add_u32 v2, {64 * i}, v1")
        a("v_mul_u32_u24 v3, 6554, v2")
        a("v_lshrrev_b32 v3, 16, v3")
        a("v_mul_u32_u24 v15, 10, v3")
        a("v_sub_u32 v2, v2, v15")
        a("v_lshlrev_b32 v2, 4, v2")
        a("v_mul_u32_u24 v3, 1280, v3")
        a(f"v_add3_u32 v{GW.VW + i}, v2, v3, s{sC0B}")
    a("v_lshrrev_b32 v2, 2, v23")
    a("v_sub_u32 v2, 0, v2")
    a("v_and_b32 v2, 3, v2")
    a("v_xor_b32 v2, v2, v22")
    a("v_lshlrev_b32 v2, 4, v2")
    a("v_lshl_add_u32 v2, v23, 6, v2")
    a(f"v_add_u32 v{GW.RA}, s{sLds}, v2")
    a("v_lshlrev_b32 v2, 3, v22")
    a("v_lshrrev_b32 v3, 2, v23")
    a("v_add_u32 v2, v2, v3")
    a("v_mul_u32_u24 v2, 160, v2")
    a("v_and_b32 v3, 3, v23")
    a("v_lshlrev_b32 v3, 3, v3")
    a("v_add_u32 v2, 4096, v2")
    a(f"v_add3_u32 v{GW.RW}, v2, v3, s{sLds}")


def gw_issue(a, slot, srdA, srdW, sKA, sKW, sLds):
    for i in range(4):
        a(f"s_add_u32 m0, s{sLds}, {slot * GS_SLOT + i * 1024}")
        a("s_nop 0")
        a(f"buffer_load_dwordx4 v{GW.VA + i}, {sr(srdA, 4)}, s{sKA} offen lds")
    for i in range(5):
        a(f"s_add_u32 m0, s{sLds}, {slot * GS_SLOT + 4096 + i * 1024}")
        a("s_nop 0")
        a(f"buffer_load_dwordx4 v{GW.VW + i}, {sr(srdW, 4)}, s{sKW} offen lds")
    a(f"s_add_u32 s{sKA}, s{sKA}, 64")
    a(f"s_add_u32 s{sKW}, s{sKW}, {32 * 1280}")


def gw_compute(a, slot, first):
    for t in range(4):
        a(f"ds_read_b128 {vr(GW.AF + 4 * t, 4)}, v{GW.RA} offset:{slot * GS_SLOT + t * 1024}")
    for n in range(5):
        off = slot * GS_SLOT + n * 32
        a(f"ds_read_b64_tr_b16 {vr(GW.WF + 4 * n, 2)}, v{GW.RW} offset:{off}")
        a(f"ds_read_b64_tr_b16 {vr(GW.WF + 4 * n + 2, 2)}, v{GW.RW} offset:{off + 640}")
    a("s_waitcnt lgkmcnt(0)")
    for n in range(5):
        for t in range(4):
            d = GW.ACC + 4 * (n * 4 + t)
            c = "0" if first else vr(d, 4)
            a(f"v_mfma_f32_16x16x32_bf16 {vr(d, 4)}, {vr(GW.WF + 4 * n, 4)}, {vr(GW.AF + 4 * t, 4)}, {c}")


def gw_write_partials(a, sRed):
    a("v_mul_u32_u24 v2, 320, v23")
    a("v_lshl_add_u32 v2, v22, 4, v2")
    a(f"v_add_u32 v2, s{sRed}, v2")
    for n in range(5):
        for t in range(4):
            d = GW.ACC + 4 * (n * 4 + t)
            a(f"ds_write_b128 v2, {vr(d, 4)} offset:{t * 5120 + n * 64}")


def gw_read_sum(a, sW4, redbase):
    a("v_lshrrev_b32 v2, 2, v1")
    a(f"s_lshl_b32 s60, s{sW4}, 4")
    a("v_add_u32 v2, s60, v2")
    a("v_mul_u32_u24 v2, 320, v2")
    a("v_and_b32 v3, 3, v1")
    a("v_mul_u32_u24 v3, 80, v3")
    a("v_add_u32 v2, v2, v3")
    if redbase:
        a(f"v_add_u32 v2, {redbase}, v2")
    R = 24
    for src in range(4):
        for j in range(5):
            a(f"ds_read_b128 {vr(R + 20 * src + 4 * j, 4)}, v2 offset:{src * 20480 + j * 16}")
        a("s_waitcnt lgkmcnt(0)")
    for e in range(20):
        a(f"v_add_f32 v{R + e}, v{R + e}, v{R + 20 + e}")
        a(f"v_add_f32 v{R + 40 + e}, v{R + 40 + e}, v{R + 60 + e}")
    for e in range(20):
        a(f"v_add_f32 v{R + e}, v{R + e}, v{R + 40 + e}")


def tile_map(a, sRt, sCt):
    a("s_and_b32 s60, s2, 7")
    a("s_lshr_b32 s61, s2, 3")
    a("s_lshr_b32 s62, s60, 1")
    a("s_lshl_b32 s62, s62, 3")
    a("s_lshr_b32 s63, s61, 2")
    a(f"s_add_u32 s{sRt}, s62, s63")
    a("s_and_b32 s62, s60, 1")
    a("s_lshl_b32 s62, s62, 2")
    a("s_and_b32 s63, s61, 3")
    a(f"s_add_u32 s{sCt}, s62, s63")


K2_BUF = 24576
K2_FFN = 3 * K2_BUF
K2_FLAG = K2_FFN + 4 * 20480
K2_LDS = K2_FLAG + 64


def k2():
    a = Asm()
    a.label("k2_kernel")
    if PROF:
        a("s_memtime s[86:87]")
    a("s_cmp_ge_u32 s2, 256")
    a("s_cbranch_scc1 K2_END")
    a("s_and_b32 s3, s2, 7")
    a("s_lshl_b32 s3, s3, 2")
    a("s_lshr_b32 s4, s2, 3")
    a("s_and_b32 s4, s4, 3")
    a("s_add_u32 s36, s3, s4")
    a("s_lshr_b32 s37, s2, 5")
    a("s_load_dwordx2 s[4:5], s[0:1], 0")
    a("s_load_dwordx2 s[6:7], s[0:1], 48")
    a("s_load_dwordx2 s[8:9], s[0:1], 72")
    a("v_and_b32 v1, 63, v0")
    a("v_lshrrev_b32 v2, 6, v0")
    a("s_nop 0")
    a("v_readfirstlane_b32 s38, v2")
    a("s_waitcnt lgkmcnt(0)")
    a("s_cmp_ge_u32 s38, 8")
    a("s_cbranch_scc1 K2_FFN")
    a("s_setprio 1")
    srd_off(a, 12, 8, 9, WS_KV, SZ_KV)
    srd_off(a, 16, 8, 9, WS_Q, SZ_Q)
    srd_off(a, 20, 8, 9, WS_O, SZ_O)
    srd(a, 24, 4, 5, SZ_X)
    srd(a, 28, 6, 7, 1280)
    srd_off(a, 32, 8, 9, WS_G, SZ_G)
    prof_init(a, 8, 9, 38, 1)
    prof(a, 0)
    a("v_lshlrev_b32 v16, 4, v1")
    a("s_mul_i32 s46, s38, 3072")
    a(f"s_mul_i32 s45, s36, {HEAD_KV}")
    a("s_add_u32 s45, s45, s46")
    a("s_mov_b32 s44, s45")
    a("s_mov_b32 s41, 0")
    a(f"s_mov_b32 s42, {K2_BUF}")
    a(f"s_mov_b32 s43, {2 * K2_BUF}")
    a("s_mov_b32 s40, 0")
    for sg in (41, 42):
        a(f"s_add_u32 m0, s{sg}, s46")
        a("s_nop 0")
        for j in range(3):
            a(f"buffer_load_dwordx4 v16, s[12:15], s44 offen offset:{1024 * j} lds")
        a("s_add_u32 s44, s44, 23040")
    a("v_mov_b32 v2, 0")
    a(f"v_mov_b32 v3, {K2_FLAG}")
    a("ds_write_b32 v3, v2")
    a("v_and_b32 v17, 31, v1")
    a("v_lshrrev_b32 v18, 5, v1")
    a("s_lshl_b32 s47, s37, 8")
    a("s_lshl_b32 s48, s38, 5")
    a("s_add_u32 s47, s47, s48")
    a("v_add_u32 v2, s47, v17")
    a("v_mul_u32_u24 v2, 48, v2")
    a("s_mul_i32 s48, s36, 98304")
    a("v_add_u32 v2, s48, v2")
    a("v_lshl_add_u32 v3, v18, 4, v2")
    a("buffer_load_dwordx4 v[20:23], v3, s[16:19], 0 offen")
    a("buffer_load_dwordx2 v[24:25], v2, s[16:19], 0 offen offset:32")
    a("s_lshl_b32 s48, s37, 8")
    a("s_lshl_b32 s49, s36, 3")
    a("s_add_u32 s48, s48, s49")
    a("s_add_u32 s48, s48, s38")
    a("s_mul_i32 s49, s48, 1280")
    a("v_mul_u32_u24 v2, 20, v1")
    a("buffer_load_dwordx4 v[116:119], v2, s[24:27], s49 offen")
    a("buffer_load_dword v120, v2, s[24:27], s49 offen offset:16")
    a("buffer_load_dwordx4 v[122:125], v2, s[28:31], 0 offen")
    a("buffer_load_dword v126, v2, s[28:31], 0 offen offset:16")
    a("v_mul_u32_u24 v2, 48, v17")
    a("v_lshl_add_u32 v12, v18, 4, v2")
    a("v_add_u32 v13, 32, v2")
    a("v_bfe_u32 v3, v17, 2, 2")
    a("v_lshlrev_b32 v2, 6, v17")
    a("v_add_u32 v2, 1536, v2")
    a("v_xor_b32 v19, v18, v3")
    a("v_lshl_add_u32 v14, v19, 4, v2")
    a("v_add_u32 v19, 2, v18")
    a("v_xor_b32 v19, v19, v3")
    a("v_lshl_add_u32 v15, v19, 4, v2")
    a("s_waitcnt vmcnt(0)")
    a("v_mov_b32 v2, 0")
    for j in range(5):
        xv = 116 + j
        gv = 122 + j
        a(f"v_lshlrev_b32 v3, 16, v{xv}")
        a(f"v_and_b32 v19, 0xffff0000, v{xv}")
        a(f"v_lshlrev_b32 v127, 16, v{gv}")
        a(f"v_and_b32 v128, 0xffff0000, v{gv}")
        a("v_mul_f32 v3, v3, v127")
        a("v_mul_f32 v19, v19, v128")
        a("v_cvt_pk_bf16_f32 v3, v3, v19")
        a("v_lshlrev_b32 v19, 16, v3")
        a("v_and_b32 v3, 0xffff0000, v3")
        a("v_add_f32 v2, v2, v19")
        a("v_add_f32 v2, v2, v3")
    for sh in (1, 2, 4, 8):
        a("s_nop 1")
        a(f"v_add_f32_dpp v2, v2, v2 row_shr:{sh} row_mask:0xf bank_mask:0xf")
    a("s_nop 1")
    a("v_add_f32_dpp v2, v2, v2 row_bcast:15 row_mask:0xa bank_mask:0xf")
    a("s_nop 1")
    a("v_add_f32_dpp v2, v2, v2 row_bcast:31 row_mask:0xc bank_mask:0xf")
    a("s_nop 1")
    a("v_cvt_pk_bf16_f32 v2, v2, v2")
    a("v_lshlrev_b32 v2, 16, v2")
    a(f"v_mul_f32 v2, {f32bits(-LOG2E)}, v2")
    a("v_exp_f32 v2, v2")
    a("s_nop 0")
    a("v_add_f32 v2, 1.0, v2")
    a("v_rcp_f32 v2, v2")
    a("s_nop 0")
    a("v_cvt_pk_bf16_f32 v2, v2, v2")
    a("v_lshlrev_b32 v2, 16, v2")
    a("s_lshl_b32 s49, s48, 2")
    a("v_mov_b32 v3, 0")
    a("v_cmp_eq_u32 vcc, 63, v1")
    a("s_and_saveexec_b64 s[50:51], vcc")
    a("buffer_store_dword v2, v3, s[32:35], s49 offen")
    a("s_mov_b64 exec, s[50:51]")
    a("v_cmp_eq_u32 vcc, 0, v18")
    a("s_nop 1")
    a("v_cndmask_b32 v24, 0, v24, vcc")
    a("v_cndmask_b32 v25, 0, v25, vcc")
    a("v_mov_b32 v26, 0")
    a("v_mov_b32 v27, 0")
    a("s_mov_b32 s39, 0")

    QF0, QF1 = 20, 24
    KF = (28, 36)
    VF = (44, 52)
    P = 60
    S = (68, 84)
    O = 100

    def dma_stage(lds_sreg):
        a(f"s_add_u32 m0, s{lds_sreg}, s46")
        a("s_nop 0")
        for j in range(3):
            a(f"buffer_load_dwordx4 v16, s[12:15], s44 offen offset:{1024 * j} lds")
        a("s_add_u32 s44, s44, 23040")

    def set_addrs(dst, sbase):
        for i in range(4):
            a(f"v_add_u32 v{dst + i}, s{sbase}, v{12 + i}")

    def kread(st, idx):
        base = 4 if idx < 8 else 8
        off = (idx % 8) * 2880
        return [f"ds_read_b128 {vr(KF[st], 4)}, v{base} offset:{off}",
                f"ds_read_b128 {vr(KF[st] + 4, 4)}, v{base + 1} offset:{off}"]

    def vread(st, idx):
        base = 4 if idx < 8 else 8
        off = (idx % 8) * 2880
        return [f"ds_read_b128 {vr(VF[st], 4)}, v{base + 2} offset:{off}",
                f"ds_read_b128 {vr(VF[st] + 4, 4)}, v{base + 3} offset:{off}"]

    def qk(st, sst):
        a(f"v_mfma_f32_32x32x16_bf16 {vr(S[sst], 16)}, {vr(KF[st], 4)}, {vr(QF0, 4)}, 0")
        a(f"v_mfma_f32_32x32x16_bf16 {vr(S[sst], 16)}, {vr(KF[st] + 4, 4)}, {vr(QF1, 4)}, {vr(S[sst], 16)}")

    def set_m_from(mreg):
        a(f"v_mov_b32 v3, v{mreg}")
        a("s_nop 1")
        a(f"v_permlane32_swap_b32 v{mreg}, v3")
        a("s_nop 1")
        a(f"v_max_f32 v2, v{mreg}, v3")
        a("v_and_b32 v3, 0xffff0000, v2")
        a("v_sub_f32 v2, v2, v3")
        a("v_and_b32 v19, 0xffff0000, v2")
        a("v_sub_f32 v2, v2, v19")
        a("v_xor_b32 v3, 0x80000000, v3")
        a("v_xor_b32 v19, 0x80000000, v19")
        a("v_xor_b32 v2, 0x80000000, v2")
        a("v_lshrrev_b32 v3, 16, v3")
        a("v_or_b32 v3, v3, v19")
        a("v_lshrrev_b32 v2, 16, v2")
        a("v_cmp_eq_u32 vcc, 0, v18")
        a("s_nop 1")
        a("v_cndmask_b32 v26, 0, v3, vcc")
        a("v_cndmask_b32 v27, 0, v2, vcc")
        a("s_nop 1")

    def start_stream():
        a("s_mov_b32 s44, s45")
        a("s_mov_b32 s41, 0")
        a(f"s_mov_b32 s42, {K2_BUF}")
        a(f"s_mov_b32 s43, {2 * K2_BUF}")
        dma_stage(41)
        dma_stage(42)
        set_addrs(4, 41)
        set_addrs(8, 42)
        a("s_mov_b32 s40, 0")

    def stage_head(lbl):
        a("s_waitcnt vmcnt(0) lgkmcnt(0)")
        a("s_barrier")
        a("s_cmp_ge_u32 s40, 6")
        a(f"s_cbranch_scc1 {lbl}")
        dma_stage(43)
        a.label(lbl)

    def stage_rotate():
        a("s_mov_b32 s47, s41")
        a("s_mov_b32 s41, s42")
        a("s_mov_b32 s42, s43")
        a("s_mov_b32 s43, s47")
        for i in range(4):
            a(f"v_mov_b32 v{4 + i}, v{8 + i}")
        set_addrs(8, 42)
        a("s_add_u32 s40, s40, 1")

    a.label("K2_MAIN")
    prof(a, 1)
    a("s_cmp_eq_u32 s39, 0")
    a("s_cbranch_scc1 K2_STARTED")
    start_stream()
    a.label("K2_STARTED")
    set_addrs(4, 41)
    set_addrs(8, 42)
    for i in range(16):
        a(f"v_mov_b32 v{O + i}, 0")
    for i in range(4):
        a(f"v_mov_b32 v{P + 4 + i}, 0")
        a(f"v_mov_b32 v{VF[1] + 4 + i}, 0")
    a.label("K2_STAGE")
    stage_head("K2_NODMA")
    a("s_cmp_lg_u32 s40, 0")
    a("s_cbranch_scc1 K2_BODY")
    for r in kread(0, 0):
        a(r)
    a("s_cmp_lg_u32 s39, 0")
    a("s_cbranch_scc1 K2_PRIME")
    a("s_waitcnt lgkmcnt(0)")
    qk(0, 0)
    a("s_nop 15")
    a("s_nop 3")
    s0 = S[0]
    a(f"v_max3_f32 v116, v{s0}, v{s0 + 1}, v{s0 + 2}")
    for i in range(3, 15, 2):
        a(f"v_max3_f32 v116, v116, v{s0 + i}, v{s0 + i + 1}")
    a(f"v_max_f32 v116, v116, v{s0 + 15}")
    set_m_from(116)
    a.label("K2_PRIME")
    for r in kread(1, 1):
        a(r)
    for r in vread(0, 0):
        a(r)
    a("s_waitcnt lgkmcnt(4)")
    qk(0, 0)
    a("s_nop 15")
    prof(a, 2)
    a.label("K2_BODY")

    def body(par):
        for t in range(8):
            c = t % 2
            n = 1 - c
            sc = S[c]
            sn = S[n]

            def ex(lo):
                for i in range(lo, lo + 4):
                    a(f"v_exp_f32 v{sc + i}, v{sc + i}")

            def cv(lo):
                for i in range(lo, lo + 4):
                    a(f"v_cvt_pk_bf16_f32 v{P + i}, v{sc + 2 * i}, v{sc + 2 * i + 1}")
            if XP_PRIO:
                a(f"s_setprio {2 if (t & 1) == par else 1}")
            ex(0)
            a(f"v_mfma_f32_32x32x16_bf16 {vr(O, 16)}, {vr(VF[n] + 4, 4)}, {vr(P + 4, 4)}, {vr(O, 16)}")
            ex(4)
            a("s_waitcnt lgkmcnt(2)")
            a(f"v_mfma_f32_32x32x16_bf16 {vr(sn, 16)}, {vr(KF[n], 4)}, {vr(QF0, 4)}, 0")
            cv(0)
            if not XP_NOLDS:
                for r in kread(c, t + 2):
                    a(r)
                for r in vread(n, t + 1):
                    a(r)
            ex(8)
            a(f"v_mfma_f32_32x32x16_bf16 {vr(sn, 16)}, {vr(KF[n] + 4, 4)}, {vr(QF1, 4)}, {vr(sn, 16)}")
            ex(12)
            a("s_waitcnt lgkmcnt(4)")
            a(f"v_mfma_f32_32x32x16_bf16 {vr(O, 16)}, {vr(VF[c], 4)}, {vr(P, 4)}, {vr(O, 16)}")
            cv(4)

    if XP_PRIO:
        a("s_cmp_ge_u32 s38, 4")
        a("s_cbranch_scc1 K2_BODY1")
        body(0)
        a("s_branch K2_BODYE")
        a.label("K2_BODY1")
        body(1)
        a.label("K2_BODYE")
    else:
        body(0)
    stage_rotate()
    if PROF:
        a("s_memtime s[88:89]")
        a("s_waitcnt lgkmcnt(0)")
        a("v_mov_b32 v2, s88")
        a("s_lshl_b32 s90, s40, 2")
        a("v_mov_b32 v3, s90")
        a("buffer_store_dword v2, v3, s[92:95], s91 offen offset:8")
    a("s_cmp_lt_u32 s40, 8")
    a("s_cbranch_scc1 K2_STAGE")
    a("s_nop 1")
    a(f"v_mfma_f32_32x32x16_bf16 {vr(O, 16)}, {vr(VF[1] + 4, 4)}, {vr(P + 4, 4)}, {vr(O, 16)}")
    a("s_nop 15")
    a("s_nop 3")
    a("s_cmp_lg_u32 s39, 0")
    a("s_cbranch_scc1 K2_EPI")
    a("v_mov_b32 v2, 0")
    for i in range(9):
        a(f"v_fma_f32 v2, v{O + i}, 0, v2")
    a("v_mov_b32 v3, 0")
    for i in range(9, 12):
        a(f"v_fma_f32 v3, v{O + i}, 0, v3")
    a("v_cmp_eq_u32 vcc, 0, v18")
    a("s_nop 1")
    a("v_cndmask_b32 v3, 0, v3, vcc")
    a("v_add_f32 v2, v2, v3")
    a("v_cmp_u_f32 vcc, v2, v2")
    a("s_nop 4")
    a("s_cbranch_vccz K2_VOTE")
    a("v_mov_b32 v2, 1")
    a(f"v_mov_b32 v3, {K2_FLAG}")
    a("ds_write_b32 v3, v2")
    a.label("K2_VOTE")
    a("s_waitcnt vmcnt(0) lgkmcnt(0)")
    a("s_barrier")
    a(f"v_mov_b32 v3, {K2_FLAG}")
    a("ds_read_b32 v2, v3")
    a("s_waitcnt lgkmcnt(0)")
    a("v_readfirstlane_b32 s47, v2")
    a("s_cmp_eq_u32 s47, 0")
    a("s_cbranch_scc1 K2_EPI")
    a("s_barrier")
    a("v_mov_b32 v26, 0")
    a("v_mov_b32 v27, 0")
    a(f"v_mov_b32 v117, {f32bits(float('-inf'))}")
    start_stream()
    a.label("K2_MSTAGE")
    stage_head("K2_MNODMA")
    for t in range(8):
        for r in kread(0, t):
            a(r)
        a("s_waitcnt lgkmcnt(0)")
        qk(0, 0)
        a("s_nop 15")
        a("s_nop 3")
        for i in range(0, 16, 2):
            a(f"v_max3_f32 v117, v117, v{s0 + i}, v{s0 + i + 1}")
    stage_rotate()
    a("s_cmp_lt_u32 s40, 8")
    a("s_cbranch_scc1 K2_MSTAGE")
    set_m_from(117)
    a("s_mov_b32 s39, 1")
    a("s_waitcnt vmcnt(0) lgkmcnt(0)")
    a("s_barrier")
    a("s_branch K2_MAIN")
    a.label("K2_EPI")
    a(f"v_mov_b32 v2, v{O + 8}")
    a(f"v_mov_b32 v3, v{O + 8}")
    a("s_nop 1")
    a("v_permlane32_swap_b32 v2, v3")
    a("s_nop 1")
    a("v_rcp_f32 v3, v3")
    a("s_nop 0")
    for i in range(12):
        a(f"v_mul_f32 v{O + i}, v{O + i}, v3")
    for i in range(6):
        a(f"v_cvt_pk_bf16_f32 v{P + i}, v{O + 2 * i}, v{O + 2 * i + 1}")
    a("s_lshl_b32 s47, s37, 8")
    a("s_lshl_b32 s48, s38, 5")
    a("s_add_u32 s47, s47, s48")
    a("v_add_u32 v2, s47, v17")
    a("v_mul_u32_u24 v2, 1280, v2")
    a("s_mul_i32 s48, s36, 40")
    a("v_lshl_add_u32 v2, v18, 3, v2")
    a("v_add_u32 v2, s48, v2")
    a(f"buffer_store_dwordx2 {vr(P, 2)}, v2, s[20:23], 0 offen")
    a(f"buffer_store_dwordx2 {vr(P + 2, 2)}, v2, s[20:23], 0 offen offset:16")
    a("v_cmp_eq_u32 vcc, 0, v18")
    a("s_and_saveexec_b64 s[50:51], vcc")
    a(f"buffer_store_dwordx2 {vr(P + 4, 2)}, v2, s[20:23], 0 offen offset:32")
    a("s_mov_b64 exec, s[50:51]")
    prof(a, 12)
    a.label("K2_END")
    a("s_endpgm")
    a.label("K2_FFN")
    if XP_NOFFN:
        a("s_endpgm")
    a("s_load_dwordx2 s[6:7], s[0:1], 40")
    a("s_load_dwordx2 s[52:53], s[0:1], 16")
    tile_map(a, 36, 37)
    a("s_sub_u32 s38, s38, 8")
    a("s_lshl_b32 s39, s36, 6")
    a("s_mul_i32 s40, s37, 160")
    a("s_mul_i32 s41, s38, 20480")
    a(f"s_add_u32 s41, s41, {K2_FFN}")
    a("s_mul_i32 s42, s38, 14")
    a("s_cmp_eq_u32 s38, 3")
    a("s_cselect_b32 s42, 41, s42")
    a("s_lshl_b32 s45, s42, 6")
    a(f"s_mul_i32 s46, s42, {32 * 1280}")
    a("s_waitcnt lgkmcnt(0)")
    srd(a, 16, 6, 7, SZ_W2)
    srd_off(a, 24, 8, 9, WS_H, SZ_H)
    srd_off(a, 28, 8, 9, WS_B, SZ_B)
    gw_setup(a, 39, 40, 3456, 41)
    gw_issue(a, 0, 24, 16, 45, 46, 41)
    if XP_PF:
        srd(a, 52, 52, 53, SZ_WO)
        a("s_mul_i32 s56, s2, 3200")
        a("v_and_b32 v3, 255, v0")
        a("v_lshlrev_b32 v2, 7, v3")
        a("v_cmp_gt_u32 vcc, 25, v3")
        a("v_bfrev_b32 v3, 1")
        a("v_cndmask_b32 v2, v3, v2, vcc")
        a("buffer_load_dword v141, v2, s[52:55], s56 offen")
    for k in range(7):
        a("s_barrier")
        gw_issue(a, 1, 24, 16, 45, 46, 41)
        a("s_waitcnt vmcnt(9)")
        gw_compute(a, 0, k == 0)
        gw_issue(a, 0, 24, 16, 45, 46, 41)
        a("s_waitcnt vmcnt(9)")
        if k == 6:
            a("s_cmp_ge_u32 s38, 2")
            a("s_cbranch_scc1 K2_FSKIP")
        gw_compute(a, 1, False)
    a.label("K2_FSKIP")
    a("s_nop 7")
    a("s_nop 3")
    a("s_waitcnt vmcnt(0)")
    gw_write_partials(a, 41)
    a("s_waitcnt lgkmcnt(0)")
    a("s_barrier")
    gw_read_sum(a, 38, K2_FFN)
    for e in range(0, 20, 2):
        a(f"v_cvt_pk_bf16_f32 v{112 + e // 2}, v{24 + e}, v{25 + e}")
    a("v_lshrrev_b32 v2, 2, v1")
    a("s_lshl_b32 s42, s38, 4")
    a("s_add_u32 s42, s42, s39")
    a("v_add_u32 v2, s42, v2")
    a("v_mul_u32_u24 v2, 1280, v2")
    a("v_and_b32 v3, 3, v1")
    a("v_mul_u32_u24 v3, 40, v3")
    a("v_add3_u32 v2, v2, v3, s40")
    a("buffer_store_dwordx4 v[112:115], v2, s[28:31], 0 offen")
    a("buffer_store_dwordx4 v[116:119], v2, s[28:31], 0 offen offset:16")
    a("buffer_store_dwordx2 v[120:121], v2, s[28:31], 0 offen offset:32")
    a("s_endpgm")
    return a.text()


def wmap(a, dst, sC0B):
    a("v_mul_u32_u24 v3, 6554, v2")
    a("v_lshrrev_b32 v3, 16, v3")
    a("v_mul_u32_u24 v15, 10, v3")
    a("v_sub_u32 v2, v2, v15")
    a("v_lshrrev_b32 v15, 1, v3")
    a("v_and_b32 v15, 4, v15")
    a("v_xor_b32 v3, v3, v15")
    a("v_lshlrev_b32 v2, 4, v2")
    a("v_mul_u32_u24 v3, 1280, v3")
    a(f"v_add3_u32 v{dst}, v2, v3, s{sC0B}")


def wread_addr(a, d0, d1, sBase):
    a("v_lshlrev_b32 v2, 3, v22")
    a("v_lshrrev_b32 v3, 2, v23")
    a("v_add_u32 v2, v2, v3")
    a("v_mul_u32_u24 v2, 160, v2")
    a("v_and_b32 v3, 3, v23")
    a("v_lshlrev_b32 v3, 3, v3")
    a(f"v_add3_u32 v2, v2, v3, s{sBase}")
    a("v_and_b32 v3, 1, v22")
    a("v_mul_u32_u24 v3, 640, v3")
    a(f"v_add_u32 v{d0}, v2, v3")
    a("v_sub_u32 v2, v2, v3")
    a(f"v_add_u32 v{d1}, 640, v2")


K3_STG = 36864
K3_LDS = 4 * K3_STG


def k3():
    a = Asm()
    a.label("k3_kernel")
    if PROF:
        a("s_memtime s[86:87]")
    a("s_cmp_ge_u32 s2, 256")
    a("s_cbranch_scc1 K3_END")
    a("s_load_dwordx2 s[4:5], s[0:1], 16")
    a("s_load_dwordx2 s[8:9], s[0:1], 72")
    a("s_load_dwordx2 s[10:11], s[0:1], 56")
    tile_map(a, 36, 37)
    a("v_and_b32 v1, 63, v0")
    a("v_lshrrev_b32 v2, 6, v0")
    a("v_lshrrev_b32 v22, 4, v1")
    a("v_readfirstlane_b32 s38, v2")
    a("v_and_b32 v23, 15, v1")
    a("s_lshl_b32 s39, s36, 6")
    a("s_mul_i32 s40, s37, 160")
    a("s_and_b32 s49, s38, 3")
    a("s_lshr_b32 s50, s38, 2")
    a("s_lshl_b32 s42, s38, 3")
    for j in range(2):
        a(f"s_add_u32 s43, s42, {4 * j}")
        a("v_add_u32 v2, s43, v22")
        a("v_and_b32 v3, 15, v2")
        a("v_xor_b32 v3, v3, v23")
        a("v_add_u32 v2, s39, v2")
        a("v_mul_u32_u24 v2, 1280, v2")
        a(f"v_lshl_add_u32 v{4 + j}, v3, 4, v2")
    a("s_add_u32 s43, s38, 8")
    a("s_add_u32 s44, s38, 16")
    a("s_cmp_lt_u32 s38, 4")
    a("s_cselect_b32 s44, s44, s43")
    for j, sp in enumerate((38, 43, 44)):
        a(f"s_lshl_b32 s51, s{sp}, 6")
        a("v_add_u32 v2, s51, v1")
        wmap(a, 8 + j, 40)
        a(f"s_lshl_b32 s{52 + j}, s{sp}, 10")
        a(f"s_add_u32 s{52 + j}, s{52 + j}, 16384")
    a("s_lshl_b32 s45, s38, 11")
    a("s_waitcnt lgkmcnt(0)")
    srd(a, 12, 4, 5, SZ_WO)
    srd_off(a, 20, 8, 9, WS_O, SZ_O)
    srd_off(a, 24, 8, 9, WS_B, SZ_B)
    srd_off(a, 28, 8, 9, WS_G, SZ_G)
    srd(a, 32, 10, 11, SZ_OUT)
    prof_init(a, 8, 9, 38, 2)
    prof(a, 0)

    def issue(stage, slot):
        a(f"s_mov_b32 s47, {stage * 256}")
        a(f"s_mov_b32 s48, {stage * 128 * 1280}")
        for j in range(2):
            a(f"s_add_u32 m0, s45, {slot * K3_STG + j * 1024}")
            a("s_nop 0")
            a(f"buffer_load_dwordx4 v{4 + j}, s[20:23], s47 offen lds")
        for j in range(3):
            a(f"s_add_u32 m0, s{52 + j}, {slot * K3_STG}")
            a("s_nop 0")
            a(f"buffer_load_dwordx4 v{8 + j}, s[12:15], s48 offen lds")

    for st in range(4):
        issue(st, st)
    a("s_lshl_b32 s42, s49, 4")
    a("s_add_u32 s42, s42, s39")
    a("v_add_u32 v2, s42, v23")
    a("v_lshlrev_b32 v3, 2, v2")
    a("buffer_load_dword v16, v3, s[28:31], 0 offen")
    a("v_mul_u32_u24 v2, 1280, v2")
    a("v_lshl_add_u32 v2, v22, 3, v2")
    a("s_mul_i32 s43, s50, 96")
    a("s_add_u32 s43, s43, s40")
    a("v_add_u32 v17, s43, v2")
    BV = 104
    for n in range(3):
        a(f"buffer_load_dwordx2 {vr(BV + 2 * n, 2)}, v17, s[24:27], 0 offen offset:{32 * n}")
    RA, RW = 24, 28
    a("s_lshl_b32 s43, s49, 12")
    a("v_lshlrev_b32 v2, 8, v23")
    a("v_add_u32 v2, s43, v2")
    a("s_lshl_b32 s43, s50, 3")
    for i in range(2):
        a(f"s_add_u32 s44, s43, {4 * i}")
        a("v_add_u32 v3, s44, v22")
        a("v_xor_b32 v3, v3, v23")
        a(f"v_lshl_add_u32 v{RA + i}, v3, 4, v2")
        a(f"v_add_u32 v{RA + 2 + i}, {2 * K3_STG}, v{RA + i}")
    a("s_mul_i32 s43, s50, 10240")
    a("s_add_u32 s43, s43, 16384")
    wread_addr(a, RW, RW + 1, 43)
    a(f"v_add_u32 v{RW + 2}, {2 * K3_STG}, v{RW}")
    a(f"v_add_u32 v{RW + 3}, {2 * K3_STG}, v{RW + 1}")
    a("v_lshlrev_b32 v21, 4, v1")
    a("s_mul_i32 s43, s49, 5120")
    a(f"s_add_u32 s43, s43, {K3_STG}")
    a("v_add_u32 v21, s43, v21")
    AF = (36, 40)
    WF = (44, 64)
    ACC = 84

    def reads(t):
        st, i = t >> 1, t & 1
        slot = st % 4
        hi = slot >> 1
        so = (slot & 1) * K3_STG
        r = [f"ds_read_b128 {vr(AF[i], 4)}, v{RA + 2 * hi + i} offset:{so}"]
        for n in range(5):
            off = so + i * 5120 + n * 32
            r.append(f"ds_read_b64_tr_b16 {vr(WF[i] + 4 * n, 2)}, v{RW + 2 * hi} offset:{off}")
            r.append(f"ds_read_b64_tr_b16 {vr(WF[i] + 4 * n + 2, 2)}, v{RW + 2 * hi + 1} offset:{off}")
        return r

    def mf(t):
        for n in range(5):
            d = ACC + 4 * n
            c = "0" if t == 0 else vr(d, 4)
            a(f"v_mfma_f32_16x16x32_bf16 {vr(d, 4)}, {vr(WF[t & 1] + 4 * n, 4)}, {vr(AF[t & 1], 4)}, {c}")

    a("s_waitcnt vmcnt(19)")
    a("s_barrier")
    prof(a, 1)
    for r in reads(0) + reads(1):
        a(r)
    a("s_waitcnt vmcnt(4) lgkmcnt(0)")
    a("s_barrier")
    prof(a, 2)
    issue(4, 0)
    mf(0)
    for r in reads(2):
        a(r)
    mf(1)
    for t in range(2, 10):
        if t == 7:
            a("s_waitcnt vmcnt(0)")
            a("s_barrier")
            prof(a, 3)
        if t < 9:
            for r in reads(t + 1):
                a(r)
            a("s_waitcnt lgkmcnt(11)")
        else:
            a("s_waitcnt lgkmcnt(0)")
        mf(t)
    a("v_sub_f32 v18, 1.0, v16")
    a("v_cvt_pk_bf16_f32 v18, v18, v18")
    a("v_lshlrev_b32 v18, 16, v18")
    a("s_nop 7")
    prof(a, 6)
    XR = 44
    a("s_cmp_eq_u32 s50, 0")
    a("s_cbranch_scc0 K3_X1")
    for n in (3, 4):
        a(f"ds_write_b128 v21, {vr(ACC + 4 * n, 4)} offset:{1024 * n}")
    a("s_waitcnt lgkmcnt(0)")
    a("s_barrier")
    for n in range(3):
        a(f"ds_read_b128 {vr(XR + 4 * n, 4)}, v21 offset:{1024 * n}")
    a("s_branch K3_FIN")
    a.label("K3_X1")
    for n in range(3):
        a(f"ds_write_b128 v21, {vr(ACC + 4 * n, 4)} offset:{1024 * n}")
    a("s_waitcnt lgkmcnt(0)")
    a("s_barrier")
    for n in (3, 4):
        a(f"ds_read_b128 {vr(XR + 4 * (n - 3), 4)}, v21 offset:{1024 * n}")
    for i in range(8):
        a(f"v_mov_b32 v{ACC + i}, v{ACC + 12 + i}")
    a.label("K3_FIN")
    a("s_waitcnt lgkmcnt(0)")
    for n in range(3):
        if n == 2:
            a("s_cmp_eq_u32 s50, 0")
            a("s_cbranch_scc0 K3_PEND")
        for i in range(4):
            a(f"v_add_f32 v{ACC + 4 * n + i}, v{ACC + 4 * n + i}, v{XR + 4 * n + i}")
        for h in range(2):
            e = ACC + 4 * n + 2 * h
            bp = BV + 2 * n + h
            a(f"v_cvt_pk_bf16_f32 v19, v{e}, v{e + 1}")
            a("v_lshlrev_b32 v4, 16, v19")
            a("v_and_b32 v5, 0xffff0000, v19")
            a(f"v_lshlrev_b32 v6, 16, v{bp}")
            a(f"v_and_b32 v7, 0xffff0000, v{bp}")
            a("v_mul_f32 v4, v16, v4")
            a("v_mul_f32 v5, v16, v5")
            a("v_mul_f32 v6, v18, v6")
            a("v_mul_f32 v7, v18, v7")
            a("v_cvt_pk_bf16_f32 v19, v4, v5")
            a("v_cvt_pk_bf16_f32 v20, v6, v7")
            a("v_lshlrev_b32 v4, 16, v19")
            a("v_and_b32 v5, 0xffff0000, v19")
            a("v_lshlrev_b32 v6, 16, v20")
            a("v_and_b32 v7, 0xffff0000, v20")
            a("v_add_f32 v4, v4, v6")
            a("v_add_f32 v5, v5, v7")
            a(f"v_cvt_pk_bf16_f32 v{bp}, v4, v5")
        a(f"buffer_store_dwordx2 {vr(BV + 2 * n, 2)}, v17, s[32:35], 0 offen offset:{32 * n}")
    a.label("K3_PEND")
    prof(a, 12)
    a.label("K3_END")
    a("s_endpgm")
    return a.text()


def desc(name, vgpr, sgpr=96):
    acc = (vgpr + 3) // 4 * 4
    return f""".amdhsa_kernel {name}
  .amdhsa_next_free_vgpr {vgpr}
  .amdhsa_next_free_sgpr {sgpr}
  .amdhsa_accum_offset {acc}
  .amdhsa_group_segment_fixed_size 0
  .amdhsa_kernarg_size 80
  .amdhsa_user_sgpr_count 2
  .amdhsa_user_sgpr_kernarg_segment_ptr 1
  .amdhsa_system_sgpr_workgroup_id_x 1
.end_amdhsa_kernel
"""


def main():
    hdr = f"""; gated_mix__mha_block__dense_activation_relu__prompt : 3 kernels (generated by gen.py, hand-designed)
; @launch kernel=k1_kernel grid=(256,1,1) block=(512,1,1) lds={K1_LDS}
; @launch kernel=k2_kernel grid=(256,1,1) block=(768,1,1) lds={K2_LDS}
; @launch kernel=k3_kernel grid=(256,1,1) block=(512,1,1) lds={K3_LDS}
.amdgcn_target "amdgcn-amd-amdhsa--gfx950"
.text
"""
    body = ""
    for name, fn in (("k1_kernel", k1), ("k2_kernel", k2), ("k3_kernel", k3)):
        body += f".globl {name}\n.p2align 8\n.type {name},@function\n" + fn()
    tail = '.section .rodata,"a"\n.p2align 6\n'
    tail += desc("k1_kernel", 168)
    tail += ".p2align 6\n" + desc("k2_kernel", 144)
    tail += ".p2align 6\n" + desc("k3_kernel", 116)
    open(OUT, "w").write(hdr + body + tail)


if __name__ == "__main__":
    main()
```

```python
import struct, sys

OUT = sys.argv[1] if len(sys.argv) > 1 else "gated_mix__mha_block__dense_activation_relu__prompt.s"

WS_Q = 0
SZ_Q = 32 * 2048 * 48
WS_KV = 0x400000
HEAD_KV = 64 * 2880
SZ_KV = 32 * HEAD_KV
WS_H = 0xC00000
SZ_H = 2048 * 3456
WS_O = 0x1400000
SZ_O = 2048 * 1280
WS_G = 0x1800000
SZ_G = 2048 * 4
WS_B = 0x1A00000
SZ_B = 2048 * 1280

SZ_X = 2048 * 1280
SZ_WQKV = 640 * 3840
SZ_WO = 640 * 1280
SZ_W1 = 640 * 3456
SZ_W2 = 1728 * 1280
SZ_OUT = 2048 * 1280


def f32bits(x):
    return struct.unpack("<I", struct.pack("<f", x))[0]


C_SCALE = 1.4426950408889634 / (20 ** 0.5)
LOG2E = 1.4426950408889634


PROF = int(__import__("os").environ.get("PROF", "0"))
WS_T = 0x2000000
XP_PF = int(__import__("os").environ.get("XP_PF", "1"))
XP_ROT = int(__import__("os").environ.get("XP_ROT", "1"))
XP_PRIO = int(__import__("os").environ.get("XP_PRIO", "0"))
XP_RPM = int(__import__("os").environ.get("XP_RPM", "1"))
XP_DSL = eval(__import__("os").environ.get("XP_DSL", "(7, 10, 13)"))
XP_FDEL = int(__import__("os").environ.get("XP_FDEL", "1"))
XP_FS = eval(__import__("os").environ.get("XP_FS", "(2, 2, 2, 2, 2, 2, 2)"))
XP_NOLDS = int(__import__("os").environ.get("XP_NOLDS", "0"))
XP_NOFFN = int(__import__("os").environ.get("XP_NOFFN", "0"))


def prof_init(a, wsl, wsh, wave_s, kidx=0):
    if not PROF:
        return
    a(f"s_add_u32 s92, s{wsl}, {WS_T + kidx * 0x100000}")
    a(f"s_addc_u32 s93, s{wsh}, 0")
    a("s_and_b32 s93, s93, 0xffff")
    a("s_mov_b32 s94, 0x100000")
    a("s_mov_b32 s95, 0x00020000")
    a("s_lshl_b32 s91, s2, 4")
    a(f"s_add_u32 s91, s91, s{wave_s}")
    a("s_lshl_b32 s91, s91, 7")


def prof(a, slot, tmpv=2):
    if not PROF:
        return
    a("s_memtime s[88:89]")
    a("s_waitcnt lgkmcnt(0)")
    a(f"v_mov_b32 v{tmpv}, s88")
    a(f"v_mov_b32 v{tmpv + 1}, 0")
    a(f"buffer_store_dword v{tmpv}, v{tmpv + 1}, s[92:95], s91 offen offset:{4 * slot}")
    if slot == 0:
        a(f"v_mov_b32 v{tmpv}, s86")
        a(f"buffer_store_dword v{tmpv}, v{tmpv + 1}, s[92:95], s91 offen offset:60")
    if slot in (0, 12):
        a("s_memrealtime s[88:89]")
        a("s_waitcnt lgkmcnt(0)")
        a(f"v_mov_b32 v{tmpv}, s88")
        a(f"buffer_store_dword v{tmpv}, v{tmpv + 1}, s[92:95], s91 offen offset:{4 * (13 if slot == 0 else 14)}")


class Asm:
    def __init__(self):
        self.lines = []

    def __call__(self, s):
        self.lines.append("    " + s)

    def label(self, l):
        self.lines.append(l + ":")

    def c(self, s):
        self.lines.append("    ; " + s)

    def text(self):
        return "\n".join(self.lines) + "\n"


def vr(b, n=1):
    return f"v{b}" if n == 1 else f"v[{b}:{b + n - 1}]"


def sr(b, n=1):
    return f"s{b}" if n == 1 else f"s[{b}:{b + n - 1}]"


def srd(a, d, lo, hi, size):
    a(f"s_mov_b32 s{d}, s{lo}")
    a(f"s_and_b32 s{d + 1}, s{hi}, 0xffff")
    a(f"s_mov_b32 s{d + 2}, {size}")
    a(f"s_mov_b32 s{d + 3}, 0x00020000")


def srd_off(a, d, lo, hi, off, size):
    a(f"s_add_u32 s{d}, s{lo}, {off}")
    a(f"s_addc_u32 s{d + 1}, s{hi}, 0")
    a(f"s_and_b32 s{d + 1}, s{d + 1}, 0xffff")
    a(f"s_mov_b32 s{d + 2}, {size}")
    a(f"s_mov_b32 s{d + 3}, 0x00020000")


K1_STAGE = 45056
K1_LDS = 3 * K1_STAGE


def k1():
    a = Asm()
    a.label("k1_kernel")
    if PROF:
        a("s_memtime s[86:87]")
    a("s_cmp_ge_u32 s2, 256")
    a("s_cbranch_scc1 K1_END")
    a("s_and_b32 s3, s2, 7")
    a("s_lshr_b32 s4, s2, 3")
    a("s_lshl_b32 s3, s3, 5")
    a("s_add_u32 s3, s3, s4")
    a("s_cmp_ge_u32 s3, 253")
    a("s_cbranch_scc1 K1_END")
    a("s_mul_i32 s25, s3, 373")
    a("s_lshr_b32 s25, s25, 12")
    a("s_mul_i32 s4, s25, 11")
    a("s_sub_u32 s24, s3, s4")
    a("s_load_dwordx2 s[4:5], s[0:1], 0")
    a("s_load_dwordx2 s[6:7], s[0:1], 8")
    a("s_load_dwordx2 s[8:9], s[0:1], 32")
    a("s_load_dwordx2 s[10:11], s[0:1], 72")
    a("v_and_b32 v1, 63, v0")
    a("v_lshrrev_b32 v2, 6, v0")
    a("s_nop 0")
    a("v_readfirstlane_b32 s26, v2")
    a("s_lshr_b32 s27, s25, 2")
    a("s_min_u32 s27, s27, 3")
    a("s_mul_i32 s30, s24, 192")
    a("s_waitcnt lgkmcnt(0)")
    srd(a, 12, 4, 5, SZ_X)
    a("s_sub_u32 s29, s25, 12")
    a(f"s_mov_b32 s18, {SZ_W1}")
    a("s_mov_b32 s28, 3456")
    a("s_cmp_lt_u32 s25, 12")
    a("s_cselect_b32 s16, s6, s8")
    a("s_cselect_b32 s17, s7, s9")
    a(f"s_cselect_b32 s18, {SZ_WQKV}, s18")
    a("s_cselect_b32 s28, 3840, s28")
    a("s_cselect_b32 s29, s25, s29")
    a("s_and_b32 s17, s17, 0xffff")
    a("s_mov_b32 s19, 0x00020000")
    a("s_mul_i32 s29, s29, 160")
    a(f"s_mov_b32 s31, {WS_KV}")
    a(f"s_mov_b32 s22, {SZ_KV}")
    a("s_cmp_eq_u32 s27, 0")
    a(f"s_cselect_b32 s31, {WS_Q}, s31")
    a(f"s_cselect_b32 s22, {SZ_Q}, s22")
    a("s_cmp_eq_u32 s27, 3")
    a(f"s_cselect_b32 s31, {WS_H}, s31")
    a(f"s_cselect_b32 s22, {SZ_H}, s22")
    a("s_add_u32 s20, s10, s31")
    a("s_addc_u32 s21, s11, 0")
    a("s_and_b32 s21, s21, 0xffff")
    a("s_mov_b32 s23, 0x00020000")
    prof_init(a, 10, 11, 26, 0)
    prof(a, 0)
    a("s_lshr_b32 s32, s26, 1")
    a("s_and_b32 s33, s26, 1")
    a("v_lshrrev_b32 v2, 3, v1")
    a("v_and_b32 v3, 7, v1")
    a("v_xor_b32 v3, v3, v2")
    a("v_lshlrev_b32 v3, 4, v3")
    a("v_mul_u32_u24 v2, 1280, v2")
    a("v_add_u32 v4, v2, v3")
    a("v_add_u32 v5, 10240, v4")
    a("v_add_u32 v6, 20480, v4")
    a("s_mul_i32 s34, s26, 24")
    a("s_add_u32 s34, s34, s30")
    a("s_mul_i32 s34, s34, 1280")
    a("s_mov_b32 s35, 0")
    a("s_lshl_b32 s36, s28, 6")
    a("s_add_u32 s62, s34, 1280")
    a("s_mul_i32 s61, s28, 640")
    a("s_add_u32 s60, s24, s25")
    a("s_mul_i32 s63, s60, 43")
    a("s_lshr_b32 s63, s63, 7")
    a("s_mul_i32 s63, s63, 3")
    a("s_sub_u32 s60, s60, s63")
    a(f"s_mul_i32 s60, s60, {XP_ROT}")
    a("s_lshl_b32 s63, s60, 7")
    a("s_add_u32 s34, s34, s63")
    a("s_mul_i32 s35, s60, s36")
    a("s_add_u32 s37, s26, 8")
    a("s_add_u32 s38, s26, 16")
    a("s_cmp_lt_u32 s26, 4")
    a("s_cselect_b32 s38, s38, s37")
    a("s_lshl_b32 s39, s29, 1")
    for j, sidx in enumerate((26, 37, 38)):
        a(f"s_lshl_b32 s40, s{sidx}, 6")
        a("v_add_u32 v2, s40, v1")
        a("v_mul_u32_u24 v3, 3277, v2")
        a("v_lshrrev_b32 v3, 16, v3")
        a("v_mul_u32_u24 v22, 20, v3")
        a("v_sub_u32 v2, v2, v22")
        a("v_lshrrev_b32 v22, 2, v3")
        a("v_and_b32 v22, 2, v22")
        a("v_xor_b32 v2, v2, v22")
        a("v_lshlrev_b32 v2, 4, v2")
        a("v_mul_lo_u32 v3, v3, s28")
        a(f"v_add3_u32 v{7 + j}, v2, v3, s39")
    a("s_mul_i32 s41, s26, 3072")
    a("s_lshl_b32 s42, s26, 10")
    a("s_add_u32 s42, s42, 24576")
    a("s_lshl_b32 s43, s37, 10")
    a("s_add_u32 s43, s43, 24576")
    a("s_lshl_b32 s44, s38, 10")
    a("s_add_u32 s44, s44, 24576")

    def dma_pieces(buf):
        base = buf * K1_STAGE
        g = []
        for j in range(3):
            x = [f"s_add_u32 m0, s41, {base + j * 1024}", "s_nop 0",
                 f"buffer_load_dwordx4 v{4 + j}, s[12:15], s34 offen lds"]
            if j == 2:
                x += ["s_add_u32 s34, s34, 128", "s_sub_u32 s60, s34, 1280", "s_cmp_ge_u32 s34, s62",
                      "s_cselect_b32 s34, s60, s34"]
            g.append(x)
        for j in range(3):
            x = [f"s_add_u32 m0, s{42 + j}, {base}", "s_nop 0",
                 f"buffer_load_dwordx4 v{7 + j}, s[16:19], s35 offen lds"]
            if j == 2:
                x += ["s_add_u32 s35, s35, s36", "s_cmp_ge_u32 s35, s61", "s_cselect_b32 s35, 0, s35"]
            g.append(x)
        return g

    for b in range(3):
        for g in dma_pieces(b):
            for x in g:
                a(x)
    NPF = 0
    if XP_PF > 1:
        NPF = 3
        a("s_lshr_b32 s45, s2, 3")
        a("s_mul_i32 s45, s45, 81920")
        a("v_lshlrev_b32 v2, 7, v0")
        a("buffer_load_dword v160, v2, s[12:15], s45 offen")
        a("v_add_u32 v3, 0x10000, v2")
        a("v_cmp_gt_u32 vcc, 128, v0")
        a("v_bfrev_b32 v22, 1")
        a("v_cndmask_b32 v3, v22, v3, vcc")
        a("buffer_load_dword v161, v3, s[12:15], s45 offen")
        a("v_mul_u32_u24 v2, 21846, v0")
        a("v_lshrrev_b32 v2, 16, v2")
        a("v_mul_u32_u24 v3, 3, v2")
        a("v_sub_u32 v3, v0, v3")
        a("v_lshlrev_b32 v3, 7, v3")
        a("s_mul_i32 s45, s24, 59")
        a("v_add_u32 v2, s45, v2")
        a("v_cmp_gt_u32 vcc, 177, v0")
        a("v_mul_lo_u32 v2, v2, s28")
        a("v_add3_u32 v2, v2, v3, s39")
        a("v_cndmask_b32 v2, v22, v2, vcc")
        a("buffer_load_dword v162, v2, s[16:19], 0 offen")
    a("v_lshrrev_b32 v22, 4, v1")
    a("v_and_b32 v23, 15, v1")
    a("s_mul_i32 s45, s32, 48")
    a("v_add_u32 v2, s45, v23")
    a("v_lshlrev_b32 v2, 7, v2")
    a("v_and_b32 v3, 7, v23")
    a("v_xor_b32 v3, v3, v22")
    a("v_lshlrev_b32 v3, 4, v3")
    a("v_add_u32 v10, v2, v3")
    a("v_xor_b32 v11, 64, v10")
    for b in (1, 2):
        a(f"v_add_u32 v{10 + 2 * b}, {b * K1_STAGE}, v10")
        a(f"v_add_u32 v{11 + 2 * b}, {b * K1_STAGE}, v11")
    a("v_lshlrev_b32 v2, 3, v22")
    a("v_lshrrev_b32 v3, 2, v23")
    a("v_add_u32 v2, v2, v3")
    a("v_mul_u32_u24 v2, 320, v2")
    a("v_and_b32 v3, 3, v23")
    a("v_lshlrev_b32 v3, 3, v3")
    a("s_mul_i32 s45, s33, 160")
    a("s_add_u32 s45, s45, 24576")
    a("v_add3_u32 v2, v2, v3, s45")
    a("v_and_b32 v3, 1, v22")
    a("v_lshlrev_b32 v3, 5, v3")
    a("s_cmp_eq_u32 s33, 0")
    a("s_cselect_b32 s45, 1, -1")
    a("v_mul_lo_u32 v3, v3, s45")
    a("v_add_u32 v16, v2, v3")
    a("v_sub_u32 v17, v2, v3")
    for b in (1, 2):
        a(f"v_add_u32 v{16 + 2 * b}, {b * K1_STAGE}, v16")
        a(f"v_add_u32 v{17 + 2 * b}, {b * K1_STAGE}, v17")

    XF = (24, 36)
    WF = (48, 68)
    ACC = 88

    def reads(buf, sub, st):
        r = []
        for ti in range(3):
            r.append(f"ds_read_b128 {vr(XF[st] + 4 * ti, 4)}, v{10 + 2 * buf + sub} offset:{ti * 2048}")
        for ni in range(5):
            ad = 16 + 2 * buf + (ni & 1)
            off = ni * 32 + sub * 10240
            r.append(f"ds_read_b64_tr_b16 {vr(WF[st] + 4 * ni, 2)}, v{ad} offset:{off}")
            r.append(f"ds_read_b64_tr_b16 {vr(WF[st] + 4 * ni + 2, 2)}, v{ad} offset:{off + 1280}")
        return r

    def mfmas(st, vor, first):
        m = []
        for ni in range(5):
            for ti in range(3):
                d = ACC + 4 * (ni * 3 + ti)
                c = "0" if first else vr(d, 4)
                w = vr(WF[st] + 4 * ni, 4)
                x = vr(XF[st] + 4 * ti, 4)
                if vor:
                    m.append(f"v_mfma_f32_16x16x32_bf16 {vr(d, 4)}, {x}, {w}, {c}")
                else:
                    m.append(f"v_mfma_f32_16x16x32_bf16 {vr(d, 4)}, {w}, {x}, {c}")
        return m

    def phase(ms, rs, ds):
        rs = list(rs)
        ds = list(ds)
        for i, m in enumerate(ms):
            a(m)
            for _ in range(XP_RPM):
                if rs:
                    a(rs.pop(0))
            if ds and i in XP_DSL:
                for x in ds.pop(0):
                    a(x)

    def loop(vor):
        a(f"s_waitcnt vmcnt({12 + NPF})")
        a("s_barrier")
        prof(a, 1)
        for r in reads(0, 0, 0):
            a(r)
        pend = []
        for ks in range(10):
            buf = ks % 3
            a("s_waitcnt lgkmcnt(0)")
            phase(mfmas(0, vor, ks == 0), reads(buf, 1, 1), pend)
            pend = []
            nxt = []
            if ks < 9:
                a(f"s_waitcnt vmcnt({(6 + NPF if ks < 2 else 6) if ks < 8 else 0}) lgkmcnt(0)")
                a("s_barrier")
                prof(a, 2 + ks)
                nxt = reads((ks + 1) % 3, 0, 0)
            else:
                a("s_waitcnt lgkmcnt(0)")
            d = []
            if ks + 3 < 10:
                p = dma_pieces(buf)
                d = p[:3]
                pend = p[3:]
            phase(mfmas(1, vor, False), nxt, d)
        a("s_barrier")
        a("s_nop 7")
        a("s_nop 3")
        prof(a, 11)

    a("s_cmp_eq_u32 s27, 2")
    a("s_cbranch_scc1 K1_VLOOP")
    loop(False)
    a("s_mul_i32 s45, s32, 48")
    a("v_add_u32 v4, s45, v23")
    a("s_cmp_eq_u32 s27, 3")
    a("s_cbranch_scc1 K1_EPI_FFN")
    a("s_cmp_eq_u32 s27, 0")
    a(f"s_cselect_b32 s48, {f32bits(C_SCALE)}, 1.0")
    NO = 148
    a("v_mul_u32_u24 v4, 48, v4")
    a("s_mul_i32 s46, s33, 36864")
    a("v_add_u32 v4, s46, v4")
    for ni in range(5):
        a(f"v_add_u32 v2, {4 * ni}, v22")
        a("v_mul_u32_u24 v3, 13, v2")
        a("v_lshrrev_b32 v3, 6, v3")
        a("v_mul_u32_u24 v5, 5, v3")
        a(f"v_sub_u32 v{NO + 5 + ni}, v2, v5")
        a("v_mul_u32_u24 v3, 9216, v3")
        a(f"v_lshl_add_u32 v3, v{NO + 5 + ni}, 3, v3")
        a(f"v_add_u32 v{NO + ni}, v3, v4")
    a("v_mov_b32 v8, 0x3f803f80")
    a("v_mov_b32 v9, 0x00003f80")
    for ti in range(3):
        for ni in range(5):
            d = ACC + 4 * (ni * 3 + ti)
            for i in range(4):
                a(f"v_mul_f32 v{d + i}, s48, v{d + i}")
            a(f"v_cvt_pk_bf16_f32 v{d}, v{d}, v{d + 1}")
            a(f"v_cvt_pk_bf16_f32 v{d + 1}, v{d + 2}, v{d + 3}")
            a(f"ds_write_b64 v{NO + ni}, {vr(d, 2)} offset:{768 * ti}")
    for ni in range(1, 5):
        a(f"v_cmp_eq_u32 vcc, 4, v{NO + 5 + ni}")
        a("s_and_saveexec_b64 s[50:51], vcc")
        for ti in range(3):
            a(f"ds_write_b64 v{NO + ni}, v[8:9] offset:{768 * ti + 8}")
        a("s_mov_b64 exec, s[50:51]")
    a("s_mul_i32 s52, s26, 9216")
    a("s_and_b32 s46, s25, 3")
    a("s_lshl_b32 s46, s46, 3")
    a("s_add_u32 s46, s46, s26")
    a("s_sub_u32 s57, 2048, s30")
    a("s_min_u32 s57, s57, 192")
    a("s_mul_i32 s57, s57, 3")
    a("s_mov_b32 s56, 0")
    a("s_mov_b32 s58, 1000")
    a("s_cmp_eq_u32 s27, 0")
    a("s_cbranch_scc0 K1_CPK")
    a("s_mul_i32 s53, s46, 98304")
    a("s_mul_i32 s47, s30, 48")
    a("s_add_u32 s53, s53, s47")
    a("s_mov_b32 s54, 0")
    a("s_mov_b32 s55, 0")
    a("s_branch K1_COPY")
    a.label("K1_CPK")
    a(f"s_mul_i32 s53, s46, {HEAD_KV}")
    a("s_mul_i32 s47, s30, 90")
    a("s_add_u32 s53, s53, s47")
    a("s_mov_b32 s54, 683")
    a("s_mov_b32 s55, 1344")
    a("s_branch K1_COPY")
    a.label("K1_EPI_FFN")
    a("v_mul_u32_u24 v4, 336, v4")
    a("s_mul_i32 s46, s33, 160")
    a("v_lshl_add_u32 v4, v22, 3, v4")
    a("v_add_u32 v4, s46, v4")
    for ti in range(3):
        for ni in range(5):
            d = ACC + 4 * (ni * 3 + ti)
            for i in range(4):
                a(f"v_max_f32 v{d + i}, 0, v{d + i}")
            a(f"v_cvt_pk_bf16_f32 v{d}, v{d}, v{d + 1}")
            a(f"v_cvt_pk_bf16_f32 v{d + 1}, v{d + 2}, v{d + 3}")
            a(f"ds_write_b64 v4, {vr(d, 2)} offset:{5376 * ti + 32 * ni}")
    a("s_mul_i32 s52, s26, 8064")
    a("s_mul_i32 s46, s26, 24")
    a("s_add_u32 s46, s46, s30")
    a("s_mul_i32 s53, s46, 3456")
    a("s_lshl_b32 s47, s29, 1")
    a("s_add_u32 s53, s53, s47")
    a("s_mov_b32 s54, 3277")
    a("s_mov_b32 s55, 3136")
    a("s_mov_b32 s56, 16")
    a("s_sub_i32 s57, 2048, s46")
    a("s_max_i32 s57, s57, 0")
    a("s_min_u32 s57, s57, 24")
    a("s_mul_i32 s57, s57, 20")
    a("s_sub_u32 s58, 1728, s29")
    a("s_lshr_b32 s58, s58, 3")
    a("s_branch K1_COPY")
    a.label("K1_VLOOP")
    loop(True)
    a("s_mul_i32 s46, s33, 32256")
    for ni in range(5):
        a(f"v_add_u32 v2, {16 * ni}, v23")
        a("v_mul_u32_u24 v3, 205, v2")
        a("v_lshrrev_b32 v3, 12, v3")
        a("v_mul_u32_u24 v4, 20, v3")
        a(f"v_sub_u32 v{NO + 10 + ni}, v2, v4")
        a("v_mul_u32_u24 v3, 8064, v3")
        a(f"v_lshlrev_b32 v4, 6, v{NO + 10 + ni}")
        a(f"v_add3_u32 v{NO + ni}, v3, v4, s46")
        a(f"v_bfe_u32 v{NO + 5 + ni}, v{NO + 10 + ni}, 2, 2")
    a("v_mov_b32 v8, 0x3f803f80")
    a("v_mov_b32 v9, 0x3f803f80")
    a("s_mul_i32 s45, s32, 48")
    for ti in range(3):
        a(f"s_add_u32 s49, s45, {16 * ti}")
        a("v_lshlrev_b32 v2, 2, v22")
        a("v_add_u32 v2, s49, v2")
        a("v_lshrrev_b32 v3, 5, v2")
        a("v_mul_u32_u24 v3, 1344, v3")
        a("v_bfe_u32 v2, v2, 2, 3")
        a("v_bfe_u32 v4, v2, 1, 1")
        a("v_lshl_add_u32 v10, v4, 3, v3")
        a("v_lshrrev_b32 v4, 1, v2")
        a("v_and_b32 v4, 2, v4")
        a("v_and_b32 v2, 1, v2")
        a("v_or_b32 v11, v2, v4")
        for ni in range(5):
            d = ACC + 4 * (ni * 3 + ti)
            a(f"v_cvt_pk_bf16_f32 v{d}, v{d}, v{d + 1}")
            a(f"v_cvt_pk_bf16_f32 v{d + 1}, v{d + 2}, v{d + 3}")
            a(f"v_xor_b32 v6, v11, v{NO + 5 + ni}")
            a("v_lshlrev_b32 v6, 4, v6")
            a(f"v_add3_u32 v6, v6, v10, v{NO + ni}")
            a(f"ds_write_b64 v6, {vr(d, 2)}")
            if ni < 4:
                a("v_xor_b32 v7, 1, v11")
                a("v_lshlrev_b32 v7, 4, v7")
                a(f"v_add3_u32 v7, v7, v10, v{NO + ni}")
                a(f"v_cmp_eq_u32 vcc, 0, v{NO + 10 + ni}")
                a("s_and_saveexec_b64 s[50:51], vcc")
                a("ds_write_b64 v7, v[8:9] offset:1280")
                a("s_mov_b64 exec, s[50:51]")
    a("s_mul_i32 s52, s26, 8064")
    a("s_and_b32 s46, s25, 3")
    a("s_lshl_b32 s46, s46, 3")
    a("s_add_u32 s46, s46, s26")
    a(f"s_mul_i32 s53, s46, {HEAD_KV}")
    a("s_mul_i32 s47, s30, 90")
    a("s_add_u32 s53, s53, s47")
    a("s_add_u32 s53, s53, 1536")
    a("s_mov_b32 s54, 781")
    a("s_mov_b32 s55, 1536")
    a("s_mov_b32 s56, 0")
    a("s_sub_u32 s57, 2048, s30")
    a("s_min_u32 s57, s57, 192")
    a("s_lshr_b32 s57, s57, 5")
    a("s_mul_i32 s57, s57, 84")
    a("s_mov_b32 s58, 1000")
    a.label("K1_COPY")
    a("s_mov_b32 s59, 20")
    for it in range(9):
        ga = 24 + it
        la = 34 + it
        a(f"v_add_u32 v2, {64 * it}, v1")
        a("v_mul_lo_u32 v3, v2, s54")
        a("v_lshrrev_b32 v3, 16, v3")
        a("v_lshlrev_b32 v4, 4, v2")
        a("v_mul_lo_u32 v5, v3, s55")
        a(f"v_add3_u32 v{ga}, v4, v5, s53")
        a("v_mul_lo_u32 v5, v3, s56")
        a(f"v_add3_u32 v{la}, v4, v5, s52")
        a("v_mul_lo_u32 v5, v3, s59")
        a("v_sub_u32 v5, v2, v5")
        a("v_cmp_gt_u32 vcc, s57, v2")
        a("v_cmp_gt_i32 s[50:51], s58, v5")
        a("s_and_b64 vcc, vcc, s[50:51]")
        a("v_bfrev_b32 v5, 1")
        a(f"v_cndmask_b32 v{ga}, v5, v{ga}, vcc")
    a("s_waitcnt lgkmcnt(0)")
    a("s_barrier")
    for it in range(9):
        a(f"ds_read_b128 {vr(48 + 4 * it, 4)}, v{34 + it}")
    for it in range(9):
        a(f"s_waitcnt lgkmcnt({8 - it})")
        a(f"buffer_store_dwordx4 {vr(48 + 4 * it, 4)}, v{24 + it}, s[20:23], 0 offen sc1")
    a.label("K1_PEND")
    prof(a, 12)
    a.label("K1_END")
    a("s_endpgm")
    return a.text()


GS_SLOT = 9216


class GW:
    VA = 4
    VW = 8
    RA = 13
    RW = 14
    AF = 24
    WF = 40
    ACC = 60


def gw_setup(a, sR0, sC0B, strideA, sLds):
    a("v_lshrrev_b32 v22, 4, v1")
    a("v_and_b32 v23, 15, v1")
    a("v_lshrrev_b32 v2, 2, v1")
    a("v_sub_u32 v3, 0, v22")
    a("v_and_b32 v3, 3, v3")
    a("v_and_b32 v15, 3, v1")
    a("v_xor_b32 v3, v3, v15")
    a("v_lshlrev_b32 v3, 4, v3")
    a(f"v_add_u32 v2, s{sR0}, v2")
    a(f"s_mov_b32 s60, {strideA}")
    a("v_mul_lo_u32 v2, v2, s60")
    a(f"v_add_u32 v{GW.VA}, v2, v3")
    for i in range(1, 4):
        a(f"v_add_u32 v{GW.VA + i}, {16 * i * strideA}, v{GW.VA}")
    for i in range(5):
        a(f"v_add_u32 v2, {64 * i}, v1")
        a("v_mul_u32_u24 v3, 6554, v2")
        a("v_lshrrev_b32 v3, 16, v3")
        a("v_mul_u32_u24 v15, 10, v3")
        a("v_sub_u32 v2, v2, v15")
        a("v_lshlrev_b32 v2, 4, v2")
        a("v_mul_u32_u24 v3, 1280, v3")
        a(f"v_add3_u32 v{GW.VW + i}, v2, v3, s{sC0B}")
    a("v_lshrrev_b32 v2, 2, v23")
    a("v_sub_u32 v2, 0, v2")
    a("v_and_b32 v2, 3, v2")
    a("v_xor_b32 v2, v2, v22")
    a("v_lshlrev_b32 v2, 4, v2")
    a("v_lshl_add_u32 v2, v23, 6, v2")
    a(f"v_add_u32 v{GW.RA}, s{sLds}, v2")
    a("v_lshlrev_b32 v2, 3, v22")
    a("v_lshrrev_b32 v3, 2, v23")
    a("v_add_u32 v2, v2, v3")
    a("v_mul_u32_u24 v2, 160, v2")
    a("v_and_b32 v3, 3, v23")
    a("v_lshlrev_b32 v3, 3, v3")
    a("v_add_u32 v2, 4096, v2")
    a(f"v_add3_u32 v{GW.RW}, v2, v3, s{sLds}")


def gw_issue(a, slot, srdA, srdW, sKA, sKW, sLds):
    for i in range(4):
        a(f"s_add_u32 m0, s{sLds}, {slot * GS_SLOT + i * 1024}")
        a("s_nop 0")
        a(f"buffer_load_dwordx4 v{GW.VA + i}, {sr(srdA, 4)}, s{sKA} offen lds")
    for i in range(5):
        a(f"s_add_u32 m0, s{sLds}, {slot * GS_SLOT + 4096 + i * 1024}")
        a("s_nop 0")
        a(f"buffer_load_dwordx4 v{GW.VW + i}, {sr(srdW, 4)}, s{sKW} offen lds")
    a(f"s_add_u32 s{sKA}, s{sKA}, 64")
    a(f"s_add_u32 s{sKW}, s{sKW}, {32 * 1280}")


def gw_compute(a, slot, first):
    for t in range(4):
        a(f"ds_read_b128 {vr(GW.AF + 4 * t, 4)}, v{GW.RA} offset:{slot * GS_SLOT + t * 1024}")
    for n in range(5):
        off = slot * GS_SLOT + n * 32
        a(f"ds_read_b64_tr_b16 {vr(GW.WF + 4 * n, 2)}, v{GW.RW} offset:{off}")
        a(f"ds_read_b64_tr_b16 {vr(GW.WF + 4 * n + 2, 2)}, v{GW.RW} offset:{off + 640}")
    a("s_waitcnt lgkmcnt(0)")
    for n in range(5):
        for t in range(4):
            d = GW.ACC + 4 * (n * 4 + t)
            c = "0" if first else vr(d, 4)
            a(f"v_mfma_f32_16x16x32_bf16 {vr(d, 4)}, {vr(GW.WF + 4 * n, 4)}, {vr(GW.AF + 4 * t, 4)}, {c}")


def gw_write_partials(a, sRed):
    a("v_mul_u32_u24 v2, 320, v23")
    a("v_lshl_add_u32 v2, v22, 4, v2")
    a(f"v_add_u32 v2, s{sRed}, v2")
    for n in range(5):
        for t in range(4):
            d = GW.ACC + 4 * (n * 4 + t)
            a(f"ds_write_b128 v2, {vr(d, 4)} offset:{t * 5120 + n * 64}")


def gw_read_sum(a, sW4, redbase):
    a("v_lshrrev_b32 v2, 2, v1")
    a(f"s_lshl_b32 s60, s{sW4}, 4")
    a("v_add_u32 v2, s60, v2")
    a("v_mul_u32_u24 v2, 320, v2")
    a("v_and_b32 v3, 3, v1")
    a("v_mul_u32_u24 v3, 80, v3")
    a("v_add_u32 v2, v2, v3")
    if redbase:
        a(f"v_add_u32 v2, {redbase}, v2")
    R = 24
    for src in range(4):
        for j in range(5):
            a(f"ds_read_b128 {vr(R + 20 * src + 4 * j, 4)}, v2 offset:{src * 20480 + j * 16}")
        a("s_waitcnt lgkmcnt(0)")
    for e in range(20):
        a(f"v_add_f32 v{R + e}, v{R + e}, v{R + 20 + e}")
        a(f"v_add_f32 v{R + 40 + e}, v{R + 40 + e}, v{R + 60 + e}")
    for e in range(20):
        a(f"v_add_f32 v{R + e}, v{R + e}, v{R + 40 + e}")


def tile_map(a, sRt, sCt):
    a("s_and_b32 s60, s2, 7")
    a("s_lshr_b32 s61, s2, 3")
    a("s_lshr_b32 s62, s60, 1")
    a("s_lshl_b32 s62, s62, 3")
    a("s_lshr_b32 s63, s61, 2")
    a(f"s_add_u32 s{sRt}, s62, s63")
    a("s_and_b32 s62, s60, 1")
    a("s_lshl_b32 s62, s62, 2")
    a("s_and_b32 s63, s61, 3")
    a(f"s_add_u32 s{sCt}, s62, s63")


K2_BUF = 24576
K2_FFN = 3 * K2_BUF
K2_FLAG = K2_FFN + 4 * 20480
K2_LDS = K2_FLAG + 64


def k2():
    a = Asm()
    a.label("k2_kernel")
    if PROF:
        a("s_memtime s[86:87]")
    a("s_cmp_ge_u32 s2, 256")
    a("s_cbranch_scc1 K2_END")
    a("s_and_b32 s3, s2, 7")
    a("s_lshl_b32 s3, s3, 2")
    a("s_lshr_b32 s4, s2, 3")
    a("s_and_b32 s4, s4, 3")
    a("s_add_u32 s36, s3, s4")
    a("s_lshr_b32 s37, s2, 5")
    a("s_load_dwordx2 s[4:5], s[0:1], 0")
    a("s_load_dwordx2 s[6:7], s[0:1], 48")
    a("s_load_dwordx2 s[8:9], s[0:1], 72")
    a("v_and_b32 v1, 63, v0")
    a("v_lshrrev_b32 v2, 6, v0")
    a("s_nop 0")
    a("v_readfirstlane_b32 s38, v2")
    a("s_waitcnt lgkmcnt(0)")
    a("s_cmp_ge_u32 s38, 8")
    a("s_cbranch_scc1 K2_FFN")
    a("s_setprio 1")
    srd_off(a, 12, 8, 9, WS_KV, SZ_KV)
    srd_off(a, 16, 8, 9, WS_Q, SZ_Q)
    srd_off(a, 20, 8, 9, WS_O, SZ_O)
    srd(a, 24, 4, 5, SZ_X)
    srd(a, 28, 6, 7, 1280)
    srd_off(a, 32, 8, 9, WS_G, SZ_G)
    prof_init(a, 8, 9, 38, 1)
    prof(a, 0)
    a("v_lshlrev_b32 v16, 4, v1")
    a("s_mul_i32 s46, s38, 3072")
    a(f"s_mul_i32 s45, s36, {HEAD_KV}")
    a("s_add_u32 s45, s45, s46")
    a("s_mov_b32 s44, s45")
    a("s_mov_b32 s41, 0")
    a(f"s_mov_b32 s42, {K2_BUF}")
    a(f"s_mov_b32 s43, {2 * K2_BUF}")
    a("s_mov_b32 s40, 0")
    for sg in (41, 42):
        a(f"s_add_u32 m0, s{sg}, s46")
        a("s_nop 0")
        for j in range(3):
            a(f"buffer_load_dwordx4 v16, s[12:15], s44 offen offset:{1024 * j} lds")
        a("s_add_u32 s44, s44, 23040")
    a("v_mov_b32 v2, 0")
    a(f"v_mov_b32 v3, {K2_FLAG}")
    a("ds_write_b32 v3, v2")
    a("v_and_b32 v17, 31, v1")
    a("v_lshrrev_b32 v18, 5, v1")
    a("s_lshl_b32 s47, s37, 8")
    a("s_lshl_b32 s48, s38, 5")
    a("s_add_u32 s47, s47, s48")
    a("v_add_u32 v2, s47, v17")
    a("v_mul_u32_u24 v2, 48, v2")
    a("s_mul_i32 s48, s36, 98304")
    a("v_add_u32 v2, s48, v2")
    a("v_lshl_add_u32 v3, v18, 4, v2")
    a("buffer_load_dwordx4 v[20:23], v3, s[16:19], 0 offen")
    a("buffer_load_dwordx2 v[24:25], v2, s[16:19], 0 offen offset:32")
    a("s_lshl_b32 s48, s37, 8")
    a("s_lshl_b32 s49, s36, 3")
    a("s_add_u32 s48, s48, s49")
    a("s_add_u32 s48, s48, s38")
    a("s_mul_i32 s49, s48, 1280")
    a("v_mul_u32_u24 v2, 20, v1")
    a("buffer_load_dwordx4 v[116:119], v2, s[24:27], s49 offen")
    a("buffer_load_dword v120, v2, s[24:27], s49 offen offset:16")
    a("buffer_load_dwordx4 v[122:125], v2, s[28:31], 0 offen")
    a("buffer_load_dword v126, v2, s[28:31], 0 offen offset:16")
    a("v_mul_u32_u24 v2, 48, v17")
    a("v_lshl_add_u32 v12, v18, 4, v2")
    a("v_add_u32 v13, 32, v2")
    a("v_bfe_u32 v3, v17, 2, 2")
    a("v_lshlrev_b32 v2, 6, v17")
    a("v_add_u32 v2, 1536, v2")
    a("v_xor_b32 v19, v18, v3")
    a("v_lshl_add_u32 v14, v19, 4, v2")
    a("v_add_u32 v19, 2, v18")
    a("v_xor_b32 v19, v19, v3")
    a("v_lshl_add_u32 v15, v19, 4, v2")
    a("s_waitcnt vmcnt(0)")
    a("v_mov_b32 v2, 0")
    for j in range(5):
        xv = 116 + j
        gv = 122 + j
        a(f"v_lshlrev_b32 v3, 16, v{xv}")
        a(f"v_and_b32 v19, 0xffff0000, v{xv}")
        a(f"v_lshlrev_b32 v127, 16, v{gv}")
        a(f"v_and_b32 v128, 0xffff0000, v{gv}")
        a("v_mul_f32 v3, v3, v127")
        a("v_mul_f32 v19, v19, v128")
        a("v_cvt_pk_bf16_f32 v3, v3, v19")
        a("v_lshlrev_b32 v19, 16, v3")
        a("v_and_b32 v3, 0xffff0000, v3")
        a("v_add_f32 v2, v2, v19")
        a("v_add_f32 v2, v2, v3")
    for sh in (1, 2, 4, 8):
        a("s_nop 1")
        a(f"v_add_f32_dpp v2, v2, v2 row_shr:{sh} row_mask:0xf bank_mask:0xf")
    a("s_nop 1")
    a("v_add_f32_dpp v2, v2, v2 row_bcast:15 row_mask:0xa bank_mask:0xf")
    a("s_nop 1")
    a("v_add_f32_dpp v2, v2, v2 row_bcast:31 row_mask:0xc bank_mask:0xf")
    a("s_nop 1")
    a("v_cvt_pk_bf16_f32 v2, v2, v2")
    a("v_lshlrev_b32 v2, 16, v2")
    a(f"v_mul_f32 v2, {f32bits(-LOG2E)}, v2")
    a("v_exp_f32 v2, v2")
    a("s_nop 0")
    a("v_add_f32 v2, 1.0, v2")
    a("v_rcp_f32 v2, v2")
    a("s_nop 0")
    a("v_cvt_pk_bf16_f32 v2, v2, v2")
    a("v_lshlrev_b32 v2, 16, v2")
    a("s_lshl_b32 s49, s48, 2")
    a("v_mov_b32 v3, 0")
    a("v_cmp_eq_u32 vcc, 63, v1")
    a("s_and_saveexec_b64 s[50:51], vcc")
    a("buffer_store_dword v2, v3, s[32:35], s49 offen")
    a("s_mov_b64 exec, s[50:51]")
    a("v_cmp_eq_u32 vcc, 0, v18")
    a("s_nop 1")
    a("v_cndmask_b32 v24, 0, v24, vcc")
    a("v_cndmask_b32 v25, 0, v25, vcc")
    a("v_mov_b32 v26, 0")
    a("v_mov_b32 v27, 0")
    a("s_mov_b32 s39, 0")

    QF0, QF1 = 20, 24
    KF = (28, 36)
    VF = (44, 52)
    P = 60
    S = (68, 84)
    O = 100

    def dma_stage(lds_sreg):
        a(f"s_add_u32 m0, s{lds_sreg}, s46")
        a("s_nop 0")
        for j in range(3):
            a(f"buffer_load_dwordx4 v16, s[12:15], s44 offen offset:{1024 * j} lds")
        a("s_add_u32 s44, s44, 23040")

    def set_addrs(dst, sbase):
        for i in range(4):
            a(f"v_add_u32 v{dst + i}, s{sbase}, v{12 + i}")

    def kread(st, idx):
        base = 4 if idx < 8 else 8
        off = (idx % 8) * 2880
        return [f"ds_read_b128 {vr(KF[st], 4)}, v{base} offset:{off}",
                f"ds_read_b128 {vr(KF[st] + 4, 4)}, v{base + 1} offset:{off}"]

    def vread(st, idx):
        base = 4 if idx < 8 else 8
        off = (idx % 8) * 2880
        return [f"ds_read_b128 {vr(VF[st], 4)}, v{base + 2} offset:{off}",
                f"ds_read_b128 {vr(VF[st] + 4, 4)}, v{base + 3} offset:{off}"]

    def qk(st, sst):
        a(f"v_mfma_f32_32x32x16_bf16 {vr(S[sst], 16)}, {vr(KF[st], 4)}, {vr(QF0, 4)}, 0")
        a(f"v_mfma_f32_32x32x16_bf16 {vr(S[sst], 16)}, {vr(KF[st] + 4, 4)}, {vr(QF1, 4)}, {vr(S[sst], 16)}")

    def set_m_from(mreg):
        a(f"v_mov_b32 v3, v{mreg}")
        a("s_nop 1")
        a(f"v_permlane32_swap_b32 v{mreg}, v3")
        a("s_nop 1")
        a(f"v_max_f32 v2, v{mreg}, v3")
        a("v_and_b32 v3, 0xffff0000, v2")
        a("v_sub_f32 v2, v2, v3")
        a("v_and_b32 v19, 0xffff0000, v2")
        a("v_sub_f32 v2, v2, v19")
        a("v_xor_b32 v3, 0x80000000, v3")
        a("v_xor_b32 v19, 0x80000000, v19")
        a("v_xor_b32 v2, 0x80000000, v2")
        a("v_lshrrev_b32 v3, 16, v3")
        a("v_or_b32 v3, v3, v19")
        a("v_lshrrev_b32 v2, 16, v2")
        a("v_cmp_eq_u32 vcc, 0, v18")
        a("s_nop 1")
        a("v_cndmask_b32 v26, 0, v3, vcc")
        a("v_cndmask_b32 v27, 0, v2, vcc")
        a("s_nop 1")

    def start_stream():
        a("s_mov_b32 s44, s45")
        a("s_mov_b32 s41, 0")
        a(f"s_mov_b32 s42, {K2_BUF}")
        a(f"s_mov_b32 s43, {2 * K2_BUF}")
        dma_stage(41)
        dma_stage(42)
        set_addrs(4, 41)
        set_addrs(8, 42)
        a("s_mov_b32 s40, 0")

    def stage_head(lbl):
        a("s_waitcnt vmcnt(0) lgkmcnt(0)")
        a("s_barrier")
        a("s_cmp_ge_u32 s40, 6")
        a(f"s_cbranch_scc1 {lbl}")
        dma_stage(43)
        a.label(lbl)

    def stage_rotate():
        a("s_mov_b32 s47, s41")
        a("s_mov_b32 s41, s42")
        a("s_mov_b32 s42, s43")
        a("s_mov_b32 s43, s47")
        for i in range(4):
            a(f"v_mov_b32 v{4 + i}, v{8 + i}")
        set_addrs(8, 42)
        a("s_add_u32 s40, s40, 1")

    a.label("K2_MAIN")
    prof(a, 1)
    a("s_cmp_eq_u32 s39, 0")
    a("s_cbranch_scc1 K2_STARTED")
    start_stream()
    a.label("K2_STARTED")
    set_addrs(4, 41)
    set_addrs(8, 42)
    for i in range(16):
        a(f"v_mov_b32 v{O + i}, 0")
    for i in range(4):
        a(f"v_mov_b32 v{P + 4 + i}, 0")
        a(f"v_mov_b32 v{VF[1] + 4 + i}, 0")
    a.label("K2_STAGE")
    stage_head("K2_NODMA")
    a("s_cmp_lg_u32 s40, 0")
    a("s_cbranch_scc1 K2_BODY")
    for r in kread(0, 0):
        a(r)
    a("s_cmp_lg_u32 s39, 0")
    a("s_cbranch_scc1 K2_PRIME")
    a("s_waitcnt lgkmcnt(0)")
    qk(0, 0)
    a("s_nop 15")
    a("s_nop 3")
    s0 = S[0]
    a(f"v_max3_f32 v116, v{s0}, v{s0 + 1}, v{s0 + 2}")
    for i in range(3, 15, 2):
        a(f"v_max3_f32 v116, v116, v{s0 + i}, v{s0 + i + 1}")
    a(f"v_max_f32 v116, v116, v{s0 + 15}")
    set_m_from(116)
    a.label("K2_PRIME")
    for r in kread(1, 1):
        a(r)
    for r in vread(0, 0):
        a(r)
    a("s_waitcnt lgkmcnt(4)")
    qk(0, 0)
    a("s_nop 15")
    prof(a, 2)
    a.label("K2_BODY")

    def body(par):
        for t in range(8):
            c = t % 2
            n = 1 - c
            sc = S[c]
            sn = S[n]

            def ex(lo):
                for i in range(lo, lo + 4):
                    a(f"v_exp_f32 v{sc + i}, v{sc + i}")

            def cv(lo):
                for i in range(lo, lo + 4):
                    a(f"v_cvt_pk_bf16_f32 v{P + i}, v{sc + 2 * i}, v{sc + 2 * i + 1}")
            if XP_PRIO:
                a(f"s_setprio {2 if (t & 1) == par else 1}")
            ex(0)
            a(f"v_mfma_f32_32x32x16_bf16 {vr(O, 16)}, {vr(VF[n] + 4, 4)}, {vr(P + 4, 4)}, {vr(O, 16)}")
            ex(4)
            a("s_waitcnt lgkmcnt(2)")
            a(f"v_mfma_f32_32x32x16_bf16 {vr(sn, 16)}, {vr(KF[n], 4)}, {vr(QF0, 4)}, 0")
            cv(0)
            if not XP_NOLDS:
                for r in kread(c, t + 2):
                    a(r)
                for r in vread(n, t + 1):
                    a(r)
            ex(8)
            a(f"v_mfma_f32_32x32x16_bf16 {vr(sn, 16)}, {vr(KF[n] + 4, 4)}, {vr(QF1, 4)}, {vr(sn, 16)}")
            ex(12)
            a("s_waitcnt lgkmcnt(4)")
            a(f"v_mfma_f32_32x32x16_bf16 {vr(O, 16)}, {vr(VF[c], 4)}, {vr(P, 4)}, {vr(O, 16)}")
            cv(4)

    if XP_PRIO:
        a("s_cmp_ge_u32 s38, 4")
        a("s_cbranch_scc1 K2_BODY1")
        body(0)
        a("s_branch K2_BODYE")
        a.label("K2_BODY1")
        body(1)
        a.label("K2_BODYE")
    else:
        body(0)
    stage_rotate()
    if PROF:
        a("s_memtime s[88:89]")
        a("s_waitcnt lgkmcnt(0)")
        a("v_mov_b32 v2, s88")
        a("s_lshl_b32 s90, s40, 2")
        a("v_mov_b32 v3, s90")
        a("buffer_store_dword v2, v3, s[92:95], s91 offen offset:8")
    a("s_cmp_lt_u32 s40, 8")
    a("s_cbranch_scc1 K2_STAGE")
    a("s_nop 1")
    a(f"v_mfma_f32_32x32x16_bf16 {vr(O, 16)}, {vr(VF[1] + 4, 4)}, {vr(P + 4, 4)}, {vr(O, 16)}")
    a("s_nop 15")
    a("s_nop 3")
    a("s_cmp_lg_u32 s39, 0")
    a("s_cbranch_scc1 K2_EPI")
    a("v_mov_b32 v2, 0")
    for i in range(9):
        a(f"v_fma_f32 v2, v{O + i}, 0, v2")
    a("v_mov_b32 v3, 0")
    for i in range(9, 12):
        a(f"v_fma_f32 v3, v{O + i}, 0, v3")
    a("v_cmp_eq_u32 vcc, 0, v18")
    a("s_nop 1")
    a("v_cndmask_b32 v3, 0, v3, vcc")
    a("v_add_f32 v2, v2, v3")
    a("v_cmp_u_f32 vcc, v2, v2")
    a("s_nop 4")
    a("s_cbranch_vccz K2_VOTE")
    a("v_mov_b32 v2, 1")
    a(f"v_mov_b32 v3, {K2_FLAG}")
    a("ds_write_b32 v3, v2")
    a.label("K2_VOTE")
    a("s_waitcnt vmcnt(0) lgkmcnt(0)")
    a("s_barrier")
    a(f"v_mov_b32 v3, {K2_FLAG}")
    a("ds_read_b32 v2, v3")
    a("s_waitcnt lgkmcnt(0)")
    a("v_readfirstlane_b32 s47, v2")
    a("s_cmp_eq_u32 s47, 0")
    a("s_cbranch_scc1 K2_EPI")
    a("s_barrier")
    a("v_mov_b32 v26, 0")
    a("v_mov_b32 v27, 0")
    a(f"v_mov_b32 v117, {f32bits(float('-inf'))}")
    start_stream()
    a.label("K2_MSTAGE")
    stage_head("K2_MNODMA")
    for t in range(8):
        for r in kread(0, t):
            a(r)
        a("s_waitcnt lgkmcnt(0)")
        qk(0, 0)
        a("s_nop 15")
        a("s_nop 3")
        for i in range(0, 16, 2):
            a(f"v_max3_f32 v117, v117, v{s0 + i}, v{s0 + i + 1}")
    stage_rotate()
    a("s_cmp_lt_u32 s40, 8")
    a("s_cbranch_scc1 K2_MSTAGE")
    set_m_from(117)
    a("s_mov_b32 s39, 1")
    a("s_waitcnt vmcnt(0) lgkmcnt(0)")
    a("s_barrier")
    a("s_branch K2_MAIN")
    a.label("K2_EPI")
    a(f"v_mov_b32 v2, v{O + 8}")
    a(f"v_mov_b32 v3, v{O + 8}")
    a("s_nop 1")
    a("v_permlane32_swap_b32 v2, v3")
    a("s_nop 1")
    a("v_rcp_f32 v3, v3")
    a("s_nop 0")
    for i in range(12):
        a(f"v_mul_f32 v{O + i}, v{O + i}, v3")
    for i in range(6):
        a(f"v_cvt_pk_bf16_f32 v{P + i}, v{O + 2 * i}, v{O + 2 * i + 1}")
    a("s_lshl_b32 s47, s37, 8")
    a("s_lshl_b32 s48, s38, 5")
    a("s_add_u32 s47, s47, s48")
    a("v_add_u32 v2, s47, v17")
    a("v_mul_u32_u24 v2, 1280, v2")
    a("s_mul_i32 s48, s36, 40")
    a("v_lshl_add_u32 v2, v18, 3, v2")
    a("v_add_u32 v2, s48, v2")
    a(f"buffer_store_dwordx2 {vr(P, 2)}, v2, s[20:23], 0 offen")
    a(f"buffer_store_dwordx2 {vr(P + 2, 2)}, v2, s[20:23], 0 offen offset:16")
    a("v_cmp_eq_u32 vcc, 0, v18")
    a("s_and_saveexec_b64 s[50:51], vcc")
    a(f"buffer_store_dwordx2 {vr(P + 4, 2)}, v2, s[20:23], 0 offen offset:32")
    a("s_mov_b64 exec, s[50:51]")
    prof(a, 12)
    a.label("K2_END")
    a("s_endpgm")
    a.label("K2_FFN")
    if XP_NOFFN:
        a("s_endpgm")
    a("s_load_dwordx2 s[6:7], s[0:1], 40")
    a("s_load_dwordx2 s[52:53], s[0:1], 16")
    tile_map(a, 36, 37)
    a("s_sub_u32 s38, s38, 8")
    a("s_lshl_b32 s39, s36, 6")
    a("s_mul_i32 s40, s37, 160")
    a("s_mul_i32 s41, s38, 20480")
    a(f"s_add_u32 s41, s41, {K2_FFN}")
    a("s_mul_i32 s42, s38, 14")
    a("s_cmp_eq_u32 s38, 3")
    a("s_cselect_b32 s42, 41, s42")
    a("s_lshl_b32 s45, s42, 6")
    a(f"s_mul_i32 s46, s42, {32 * 1280}")
    a("s_waitcnt lgkmcnt(0)")
    srd(a, 16, 6, 7, SZ_W2)
    srd_off(a, 24, 8, 9, WS_H, SZ_H)
    srd_off(a, 28, 8, 9, WS_B, SZ_B)
    gw_setup(a, 39, 40, 3456, 41)
    j = 0
    for k, ns in enumerate(XP_FS):
        a("s_barrier")
        if k == 0:
            gw_issue(a, 0, 24, 16, 45, 46, 41)
        if k == 1 and XP_PF:
            srd(a, 52, 52, 53, SZ_WO)
            a("s_mul_i32 s56, s2, 3200")
            a("v_and_b32 v3, 255, v0")
            a("v_lshlrev_b32 v2, 7, v3")
            a("v_cmp_gt_u32 vcc, 25, v3")
            a("v_bfrev_b32 v3, 1")
            a("v_cndmask_b32 v2, v3, v2, vcc")
            a("buffer_load_dword v141, v2, s[52:55], s56 offen")
        for _ in range(ns):
            if j < 13:
                gw_issue(a, (j + 1) & 1, 24, 16, 45, 46, 41)
                a("s_waitcnt vmcnt(9)")
            else:
                a("s_waitcnt vmcnt(0)")
                a("s_cmp_ge_u32 s38, 2")
                a("s_cbranch_scc1 K2_FSKIP")
            gw_compute(a, j & 1, j == 0)
            j += 1
    assert j == 14
    a.label("K2_FSKIP")
    a("s_nop 7")
    a("s_nop 3")
    a("s_waitcnt vmcnt(0)")
    gw_write_partials(a, 41)
    a("s_waitcnt lgkmcnt(0)")
    a("s_barrier")
    gw_read_sum(a, 38, K2_FFN)
    for e in range(0, 20, 2):
        a(f"v_cvt_pk_bf16_f32 v{112 + e // 2}, v{24 + e}, v{25 + e}")
    a("v_lshrrev_b32 v2, 2, v1")
    a("s_lshl_b32 s42, s38, 4")
    a("s_add_u32 s42, s42, s39")
    a("v_add_u32 v2, s42, v2")
    a("v_mul_u32_u24 v2, 1280, v2")
    a("v_and_b32 v3, 3, v1")
    a("v_mul_u32_u24 v3, 40, v3")
    a("v_add3_u32 v2, v2, v3, s40")
    a("buffer_store_dwordx4 v[112:115], v2, s[28:31], 0 offen")
    a("buffer_store_dwordx4 v[116:119], v2, s[28:31], 0 offen offset:16")
    a("buffer_store_dwordx2 v[120:121], v2, s[28:31], 0 offen offset:32")
    a("s_endpgm")
    return a.text()


def wmap(a, dst, sC0B):
    a("v_mul_u32_u24 v3, 6554, v2")
    a("v_lshrrev_b32 v3, 16, v3")
    a("v_mul_u32_u24 v15, 10, v3")
    a("v_sub_u32 v2, v2, v15")
    a("v_lshrrev_b32 v15, 1, v3")
    a("v_and_b32 v15, 4, v15")
    a("v_xor_b32 v3, v3, v15")
    a("v_lshlrev_b32 v2, 4, v2")
    a("v_mul_u32_u24 v3, 1280, v3")
    a(f"v_add3_u32 v{dst}, v2, v3, s{sC0B}")


def wread_addr(a, d0, d1, sBase):
    a("v_lshlrev_b32 v2, 3, v22")
    a("v_lshrrev_b32 v3, 2, v23")
    a("v_add_u32 v2, v2, v3")
    a("v_mul_u32_u24 v2, 160, v2")
    a("v_and_b32 v3, 3, v23")
    a("v_lshlrev_b32 v3, 3, v3")
    a(f"v_add3_u32 v2, v2, v3, s{sBase}")
    a("v_and_b32 v3, 1, v22")
    a("v_mul_u32_u24 v3, 640, v3")
    a(f"v_add_u32 v{d0}, v2, v3")
    a("v_sub_u32 v2, v2, v3")
    a(f"v_add_u32 v{d1}, 640, v2")


K3_STG = 36864
K3_LDS = 4 * K3_STG


def k3():
    a = Asm()
    a.label("k3_kernel")
    if PROF:
        a("s_memtime s[86:87]")
    a("s_cmp_ge_u32 s2, 256")
    a("s_cbranch_scc1 K3_END")
    a("s_load_dwordx2 s[4:5], s[0:1], 16")
    a("s_load_dwordx2 s[8:9], s[0:1], 72")
    a("s_load_dwordx2 s[10:11], s[0:1], 56")
    tile_map(a, 36, 37)
    a("v_and_b32 v1, 63, v0")
    a("v_lshrrev_b32 v2, 6, v0")
    a("v_lshrrev_b32 v22, 4, v1")
    a("v_readfirstlane_b32 s38, v2")
    a("v_and_b32 v23, 15, v1")
    a("s_lshl_b32 s39, s36, 6")
    a("s_mul_i32 s40, s37, 160")
    a("s_and_b32 s49, s38, 3")
    a("s_lshr_b32 s50, s38, 2")
    a("s_lshl_b32 s42, s38, 3")
    for j in range(2):
        a(f"s_add_u32 s43, s42, {4 * j}")
        a("v_add_u32 v2, s43, v22")
        a("v_and_b32 v3, 15, v2")
        a("v_xor_b32 v3, v3, v23")
        a("v_add_u32 v2, s39, v2")
        a("v_mul_u32_u24 v2, 1280, v2")
        a(f"v_lshl_add_u32 v{4 + j}, v3, 4, v2")
    a("s_add_u32 s43, s38, 8")
    a("s_add_u32 s44, s38, 16")
    a("s_cmp_lt_u32 s38, 4")
    a("s_cselect_b32 s44, s44, s43")
    for j, sp in enumerate((38, 43, 44)):
        a(f"s_lshl_b32 s51, s{sp}, 6")
        a("v_add_u32 v2, s51, v1")
        wmap(a, 8 + j, 40)
        a(f"s_lshl_b32 s{52 + j}, s{sp}, 10")
        a(f"s_add_u32 s{52 + j}, s{52 + j}, 16384")
    a("s_lshl_b32 s45, s38, 11")
    a("s_waitcnt lgkmcnt(0)")
    srd(a, 12, 4, 5, SZ_WO)
    srd_off(a, 20, 8, 9, WS_O, SZ_O)
    srd_off(a, 24, 8, 9, WS_B, SZ_B)
    srd_off(a, 28, 8, 9, WS_G, SZ_G)
    srd(a, 32, 10, 11, SZ_OUT)
    prof_init(a, 8, 9, 38, 2)
    prof(a, 0)

    def issue(stage, slot):
        a(f"s_mov_b32 s47, {stage * 256}")
        a(f"s_mov_b32 s48, {stage * 128 * 1280}")
        for j in range(2):
            a(f"s_add_u32 m0, s45, {slot * K3_STG + j * 1024}")
            a("s_nop 0")
            a(f"buffer_load_dwordx4 v{4 + j}, s[20:23], s47 offen lds")
        for j in range(3):
            a(f"s_add_u32 m0, s{52 + j}, {slot * K3_STG}")
            a("s_nop 0")
            a(f"buffer_load_dwordx4 v{8 + j}, s[12:15], s48 offen lds")

    for st in range(4):
        issue(st, st)
    a("s_lshl_b32 s42, s49, 4")
    a("s_add_u32 s42, s42, s39")
    a("v_add_u32 v2, s42, v23")
    a("v_lshlrev_b32 v3, 2, v2")
    a("buffer_load_dword v16, v3, s[28:31], 0 offen")
    a("v_mul_u32_u24 v2, 1280, v2")
    a("v_lshl_add_u32 v2, v22, 3, v2")
    a("s_mul_i32 s43, s50, 96")
    a("s_add_u32 s43, s43, s40")
    a("v_add_u32 v17, s43, v2")
    BV = 104
    for n in range(3):
        a(f"buffer_load_dwordx2 {vr(BV + 2 * n, 2)}, v17, s[24:27], 0 offen offset:{32 * n}")
    RA, RW = 24, 28
    a("s_lshl_b32 s43, s49, 12")
    a("v_lshlrev_b32 v2, 8, v23")
    a("v_add_u32 v2, s43, v2")
    a("s_lshl_b32 s43, s50, 3")
    for i in range(2):
        a(f"s_add_u32 s44, s43, {4 * i}")
        a("v_add_u32 v3, s44, v22")
        a("v_xor_b32 v3, v3, v23")
        a(f"v_lshl_add_u32 v{RA + i}, v3, 4, v2")
        a(f"v_add_u32 v{RA + 2 + i}, {2 * K3_STG}, v{RA + i}")
    a("s_mul_i32 s43, s50, 10240")
    a("s_add_u32 s43, s43, 16384")
    wread_addr(a, RW, RW + 1, 43)
    a(f"v_add_u32 v{RW + 2}, {2 * K3_STG}, v{RW}")
    a(f"v_add_u32 v{RW + 3}, {2 * K3_STG}, v{RW + 1}")
    a("v_lshlrev_b32 v21, 4, v1")
    a("s_mul_i32 s43, s49, 5120")
    a(f"s_add_u32 s43, s43, {K3_STG}")
    a("v_add_u32 v21, s43, v21")
    AF = (36, 40)
    WF = (44, 64)
    ACC = 84

    def reads(t):
        st, i = t >> 1, t & 1
        slot = st % 4
        hi = slot >> 1
        so = (slot & 1) * K3_STG
        r = [f"ds_read_b128 {vr(AF[i], 4)}, v{RA + 2 * hi + i} offset:{so}"]
        for n in range(5):
            off = so + i * 5120 + n * 32
            r.append(f"ds_read_b64_tr_b16 {vr(WF[i] + 4 * n, 2)}, v{RW + 2 * hi} offset:{off}")
            r.append(f"ds_read_b64_tr_b16 {vr(WF[i] + 4 * n + 2, 2)}, v{RW + 2 * hi + 1} offset:{off}")
        return r

    def mf(t):
        for n in range(5):
            d = ACC + 4 * n
            c = "0" if t == 0 else vr(d, 4)
            a(f"v_mfma_f32_16x16x32_bf16 {vr(d, 4)}, {vr(WF[t & 1] + 4 * n, 4)}, {vr(AF[t & 1], 4)}, {c}")

    a("s_waitcnt vmcnt(19)")
    a("s_barrier")
    prof(a, 1)
    for r in reads(0) + reads(1):
        a(r)
    a("s_waitcnt vmcnt(4) lgkmcnt(0)")
    a("s_barrier")
    prof(a, 2)
    issue(4, 0)
    mf(0)
    for r in reads(2):
        a(r)
    mf(1)
    for t in range(2, 10):
        if t == 7:
            a("s_waitcnt vmcnt(0)")
            a("s_barrier")
            prof(a, 3)
        if t < 9:
            for r in reads(t + 1):
                a(r)
            a("s_waitcnt lgkmcnt(11)")
        else:
            a("s_waitcnt lgkmcnt(0)")
        mf(t)
    a("v_sub_f32 v18, 1.0, v16")
    a("v_cvt_pk_bf16_f32 v18, v18, v18")
    a("v_lshlrev_b32 v18, 16, v18")
    a("s_nop 7")
    prof(a, 6)
    XR = 44
    a("s_cmp_eq_u32 s50, 0")
    a("s_cbranch_scc0 K3_X1")
    for n in (3, 4):
        a(f"ds_write_b128 v21, {vr(ACC + 4 * n, 4)} offset:{1024 * n}")
    a("s_waitcnt lgkmcnt(0)")
    a("s_barrier")
    for n in range(3):
        a(f"ds_read_b128 {vr(XR + 4 * n, 4)}, v21 offset:{1024 * n}")
    a("s_branch K3_FIN")
    a.label("K3_X1")
    for n in range(3):
        a(f"ds_write_b128 v21, {vr(ACC + 4 * n, 4)} offset:{1024 * n}")
    a("s_waitcnt lgkmcnt(0)")
    a("s_barrier")
    for n in (3, 4):
        a(f"ds_read_b128 {vr(XR + 4 * (n - 3), 4)}, v21 offset:{1024 * n}")
    for i in range(8):
        a(f"v_mov_b32 v{ACC + i}, v{ACC + 12 + i}")
    a.label("K3_FIN")
    a("s_waitcnt lgkmcnt(0)")
    for n in range(3):
        if n == 2:
            a("s_cmp_eq_u32 s50, 0")
            a("s_cbranch_scc0 K3_PEND")
        for i in range(4):
            a(f"v_add_f32 v{ACC + 4 * n + i}, v{ACC + 4 * n + i}, v{XR + 4 * n + i}")
        for h in range(2):
            e = ACC + 4 * n + 2 * h
            bp = BV + 2 * n + h
            a(f"v_cvt_pk_bf16_f32 v19, v{e}, v{e + 1}")
            a("v_lshlrev_b32 v4, 16, v19")
            a("v_and_b32 v5, 0xffff0000, v19")
            a(f"v_lshlrev_b32 v6, 16, v{bp}")
            a(f"v_and_b32 v7, 0xffff0000, v{bp}")
            a("v_mul_f32 v4, v16, v4")
            a("v_mul_f32 v5, v16, v5")
            a("v_mul_f32 v6, v18, v6")
            a("v_mul_f32 v7, v18, v7")
            a("v_cvt_pk_bf16_f32 v19, v4, v5")
            a("v_cvt_pk_bf16_f32 v20, v6, v7")
            a("v_lshlrev_b32 v4, 16, v19")
            a("v_and_b32 v5, 0xffff0000, v19")
            a("v_lshlrev_b32 v6, 16, v20")
            a("v_and_b32 v7, 0xffff0000, v20")
            a("v_add_f32 v4, v4, v6")
            a("v_add_f32 v5, v5, v7")
            a(f"v_cvt_pk_bf16_f32 v{bp}, v4, v5")
        a(f"buffer_store_dwordx2 {vr(BV + 2 * n, 2)}, v17, s[32:35], 0 offen offset:{32 * n}")
    a.label("K3_PEND")
    prof(a, 12)
    a.label("K3_END")
    a("s_endpgm")
    return a.text()


def desc(name, vgpr, sgpr=96):
    acc = (vgpr + 3) // 4 * 4
    return f""".amdhsa_kernel {name}
  .amdhsa_next_free_vgpr {vgpr}
  .amdhsa_next_free_sgpr {sgpr}
  .amdhsa_accum_offset {acc}
  .amdhsa_group_segment_fixed_size 0
  .amdhsa_kernarg_size 80
  .amdhsa_user_sgpr_count 2
  .amdhsa_user_sgpr_kernarg_segment_ptr 1
  .amdhsa_system_sgpr_workgroup_id_x 1
.end_amdhsa_kernel
"""


def main():
    hdr = f"""; gated_mix__mha_block__dense_activation_relu__prompt : 3 kernels (generated by gen.py, hand-designed)
; @launch kernel=k1_kernel grid=(256,1,1) block=(512,1,1) lds={K1_LDS}
; @launch kernel=k2_kernel grid=(256,1,1) block=(768,1,1) lds={K2_LDS}
; @launch kernel=k3_kernel grid=(256,1,1) block=(512,1,1) lds={K3_LDS}
.amdgcn_target "amdgcn-amd-amdhsa--gfx950"
.text
"""
    body = ""
    for name, fn in (("k1_kernel", k1), ("k2_kernel", k2), ("k3_kernel", k3)):
        body += f".globl {name}\n.p2align 8\n.type {name},@function\n" + fn()
    tail = '.section .rodata,"a"\n.p2align 6\n'
    tail += desc("k1_kernel", 168)
    tail += ".p2align 6\n" + desc("k2_kernel", 144)
    tail += ".p2align 6\n" + desc("k3_kernel", 116)
    open(OUT, "w").write(hdr + body + tail)


if __name__ == "__main__":
    main()
```

```python
import struct, sys

OUT = sys.argv[1] if len(sys.argv) > 1 else "gated_mix__mha_block__dense_activation_relu__prompt.s"

WS_Q = 0
SZ_Q = 32 * 2048 * 48
WS_KV = 0x400000
HEAD_KV = 64 * 2880
SZ_KV = 32 * HEAD_KV
WS_H = 0xC00000
SZ_H = 2048 * 3456
WS_O = 0x1400000
SZ_O = 2048 * 1280
WS_G = 0x1800000
SZ_G = 2048 * 4
WS_B = 0x1A00000
SZ_B = 2048 * 1280

SZ_X = 2048 * 1280
SZ_WQKV = 640 * 3840
SZ_WO = 640 * 1280
SZ_W1 = 640 * 3456
SZ_W2 = 1728 * 1280
SZ_OUT = 2048 * 1280


def f32bits(x):
    return struct.unpack("<I", struct.pack("<f", x))[0]


C_SCALE = 1.4426950408889634 / (20 ** 0.5)
LOG2E = 1.4426950408889634


PROF = int(__import__("os").environ.get("PROF", "0"))
WS_T = 0x2000000
XP_PF = int(__import__("os").environ.get("XP_PF", "1"))
XP_ROT = int(__import__("os").environ.get("XP_ROT", "1"))
XP_PRIO = int(__import__("os").environ.get("XP_PRIO", "0"))
XP_RPM = int(__import__("os").environ.get("XP_RPM", "1"))
XP_DSL = eval(__import__("os").environ.get("XP_DSL", "(7, 10, 13)"))
XP_FDEL = int(__import__("os").environ.get("XP_FDEL", "1"))
XP_FS = eval(__import__("os").environ.get("XP_FS", "(2, 2, 2, 2, 2, 2, 2)"))
XP_NOLDS = int(__import__("os").environ.get("XP_NOLDS", "0"))
XP_NOFFN = int(__import__("os").environ.get("XP_NOFFN", "0"))


def prof_init(a, wsl, wsh, wave_s, kidx=0):
    if not PROF:
        return
    a(f"s_add_u32 s92, s{wsl}, {WS_T + kidx * 0x100000}")
    a(f"s_addc_u32 s93, s{wsh}, 0")
    a("s_and_b32 s93, s93, 0xffff")
    a("s_mov_b32 s94, 0x100000")
    a("s_mov_b32 s95, 0x00020000")
    a("s_lshl_b32 s91, s2, 4")
    a(f"s_add_u32 s91, s91, s{wave_s}")
    a("s_lshl_b32 s91, s91, 7")


def prof(a, slot, tmpv=2):
    if not PROF:
        return
    a("s_memtime s[88:89]")
    a("s_waitcnt lgkmcnt(0)")
    a(f"v_mov_b32 v{tmpv}, s88")
    a(f"v_mov_b32 v{tmpv + 1}, 0")
    a(f"buffer_store_dword v{tmpv}, v{tmpv + 1}, s[92:95], s91 offen offset:{4 * slot}")
    if slot == 0:
        a(f"v_mov_b32 v{tmpv}, s86")
        a(f"buffer_store_dword v{tmpv}, v{tmpv + 1}, s[92:95], s91 offen offset:60")
    if slot in (0, 12):
        a("s_memrealtime s[88:89]")
        a("s_waitcnt lgkmcnt(0)")
        a(f"v_mov_b32 v{tmpv}, s88")
        a(f"buffer_store_dword v{tmpv}, v{tmpv + 1}, s[92:95], s91 offen offset:{4 * (13 if slot == 0 else 14)}")


class Asm:
    def __init__(self):
        self.lines = []

    def __call__(self, s):
        self.lines.append("    " + s)

    def label(self, l):
        self.lines.append(l + ":")

    def c(self, s):
        self.lines.append("    ; " + s)

    def text(self):
        return "\n".join(self.lines) + "\n"


def vr(b, n=1):
    return f"v{b}" if n == 1 else f"v[{b}:{b + n - 1}]"


def sr(b, n=1):
    return f"s{b}" if n == 1 else f"s[{b}:{b + n - 1}]"


def srd(a, d, lo, hi, size):
    a(f"s_mov_b32 s{d}, s{lo}")
    a(f"s_and_b32 s{d + 1}, s{hi}, 0xffff")
    a(f"s_mov_b32 s{d + 2}, {size}")
    a(f"s_mov_b32 s{d + 3}, 0x00020000")


def srd_off(a, d, lo, hi, off, size):
    a(f"s_add_u32 s{d}, s{lo}, {off}")
    a(f"s_addc_u32 s{d + 1}, s{hi}, 0")
    a(f"s_and_b32 s{d + 1}, s{d + 1}, 0xffff")
    a(f"s_mov_b32 s{d + 2}, {size}")
    a(f"s_mov_b32 s{d + 3}, 0x00020000")


K1_STAGE = 45056
K1_LDS = 3 * K1_STAGE


def k1():
    a = Asm()
    a.label("k1_kernel")
    if PROF:
        a("s_memtime s[86:87]")
    a("s_cmp_ge_u32 s2, 256")
    a("s_cbranch_scc1 K1_END")
    a("s_and_b32 s3, s2, 7")
    a("s_lshr_b32 s4, s2, 3")
    a("s_lshl_b32 s3, s3, 5")
    a("s_add_u32 s3, s3, s4")
    a("s_cmp_ge_u32 s3, 253")
    a("s_cbranch_scc1 K1_END")
    a("s_mul_i32 s25, s3, 373")
    a("s_lshr_b32 s25, s25, 12")
    a("s_mul_i32 s4, s25, 11")
    a("s_sub_u32 s24, s3, s4")
    a("s_load_dwordx2 s[4:5], s[0:1], 0")
    a("s_load_dwordx2 s[6:7], s[0:1], 8")
    a("s_load_dwordx2 s[8:9], s[0:1], 32")
    a("s_load_dwordx2 s[10:11], s[0:1], 72")
    a("v_and_b32 v1, 63, v0")
    a("v_lshrrev_b32 v2, 6, v0")
    a("s_nop 0")
    a("v_readfirstlane_b32 s26, v2")
    a("s_lshr_b32 s27, s25, 2")
    a("s_min_u32 s27, s27, 3")
    a("s_mul_i32 s30, s24, 192")
    a("s_waitcnt lgkmcnt(0)")
    srd(a, 12, 4, 5, SZ_X)
    a("s_sub_u32 s29, s25, 12")
    a(f"s_mov_b32 s18, {SZ_W1}")
    a("s_mov_b32 s28, 3456")
    a("s_cmp_lt_u32 s25, 12")
    a("s_cselect_b32 s16, s6, s8")
    a("s_cselect_b32 s17, s7, s9")
    a(f"s_cselect_b32 s18, {SZ_WQKV}, s18")
    a("s_cselect_b32 s28, 3840, s28")
    a("s_cselect_b32 s29, s25, s29")
    a("s_and_b32 s17, s17, 0xffff")
    a("s_mov_b32 s19, 0x00020000")
    a("s_mul_i32 s29, s29, 160")
    a(f"s_mov_b32 s31, {WS_KV}")
    a(f"s_mov_b32 s22, {SZ_KV}")
    a("s_cmp_eq_u32 s27, 0")
    a(f"s_cselect_b32 s31, {WS_Q}, s31")
    a(f"s_cselect_b32 s22, {SZ_Q}, s22")
    a("s_cmp_eq_u32 s27, 3")
    a(f"s_cselect_b32 s31, {WS_H}, s31")
    a(f"s_cselect_b32 s22, {SZ_H}, s22")
    a("s_add_u32 s20, s10, s31")
    a("s_addc_u32 s21, s11, 0")
    a("s_and_b32 s21, s21, 0xffff")
    a("s_mov_b32 s23, 0x00020000")
    prof_init(a, 10, 11, 26, 0)
    prof(a, 0)
    a("s_lshr_b32 s32, s26, 1")
    a("s_and_b32 s33, s26, 1")
    a("v_lshrrev_b32 v2, 3, v1")
    a("v_and_b32 v3, 7, v1")
    a("v_xor_b32 v3, v3, v2")
    a("v_lshlrev_b32 v3, 4, v3")
    a("v_mul_u32_u24 v2, 1280, v2")
    a("v_add_u32 v4, v2, v3")
    a("v_add_u32 v5, 10240, v4")
    a("v_add_u32 v6, 20480, v4")
    a("s_mul_i32 s34, s26, 24")
    a("s_add_u32 s34, s34, s30")
    a("s_mul_i32 s34, s34, 1280")
    a("s_mov_b32 s35, 0")
    a("s_lshl_b32 s36, s28, 6")
    a("s_add_u32 s62, s34, 1280")
    a("s_mul_i32 s61, s28, 640")
    a("s_add_u32 s60, s24, s25")
    a("s_mul_i32 s63, s60, 43")
    a("s_lshr_b32 s63, s63, 7")
    a("s_mul_i32 s63, s63, 3")
    a("s_sub_u32 s60, s60, s63")
    a(f"s_mul_i32 s60, s60, {XP_ROT}")
    a("s_lshl_b32 s63, s60, 7")
    a("s_add_u32 s34, s34, s63")
    a("s_mul_i32 s35, s60, s36")
    a("s_add_u32 s37, s26, 8")
    a("s_add_u32 s38, s26, 16")
    a("s_cmp_lt_u32 s26, 4")
    a("s_cselect_b32 s38, s38, s37")
    a("s_lshl_b32 s39, s29, 1")
    for j, sidx in enumerate((26, 37, 38)):
        a(f"s_lshl_b32 s40, s{sidx}, 6")
        a("v_add_u32 v2, s40, v1")
        a("v_mul_u32_u24 v3, 3277, v2")
        a("v_lshrrev_b32 v3, 16, v3")
        a("v_mul_u32_u24 v22, 20, v3")
        a("v_sub_u32 v2, v2, v22")
        a("v_lshrrev_b32 v22, 2, v3")
        a("v_and_b32 v22, 2, v22")
        a("v_xor_b32 v2, v2, v22")
        a("v_lshlrev_b32 v2, 4, v2")
        a("v_mul_lo_u32 v3, v3, s28")
        a(f"v_add3_u32 v{7 + j}, v2, v3, s39")
    a("s_mul_i32 s41, s26, 3072")
    a("s_lshl_b32 s42, s26, 10")
    a("s_add_u32 s42, s42, 24576")
    a("s_lshl_b32 s43, s37, 10")
    a("s_add_u32 s43, s43, 24576")
    a("s_lshl_b32 s44, s38, 10")
    a("s_add_u32 s44, s44, 24576")

    def dma_pieces(buf):
        base = buf * K1_STAGE
        g = []
        for j in range(3):
            x = [f"s_add_u32 m0, s41, {base + j * 1024}", "s_nop 0",
                 f"buffer_load_dwordx4 v{4 + j}, s[12:15], s34 offen lds"]
            if j == 2:
                x += ["s_add_u32 s34, s34, 128", "s_sub_u32 s60, s34, 1280", "s_cmp_ge_u32 s34, s62",
                      "s_cselect_b32 s34, s60, s34"]
            g.append(x)
        for j in range(3):
            x = [f"s_add_u32 m0, s{42 + j}, {base}", "s_nop 0",
                 f"buffer_load_dwordx4 v{7 + j}, s[16:19], s35 offen lds"]
            if j == 2:
                x += ["s_add_u32 s35, s35, s36", "s_cmp_ge_u32 s35, s61", "s_cselect_b32 s35, 0, s35"]
            g.append(x)
        return g

    for b in range(3):
        for g in dma_pieces(b):
            for x in g:
                a(x)
    NPF = 0
    if XP_PF > 1:
        NPF = 3
        a("s_lshr_b32 s45, s2, 3")
        a("s_mul_i32 s45, s45, 81920")
        a("v_lshlrev_b32 v2, 7, v0")
        a("buffer_load_dword v160, v2, s[12:15], s45 offen")
        a("v_add_u32 v3, 0x10000, v2")
        a("v_cmp_gt_u32 vcc, 128, v0")
        a("v_bfrev_b32 v22, 1")
        a("v_cndmask_b32 v3, v22, v3, vcc")
        a("buffer_load_dword v161, v3, s[12:15], s45 offen")
        a("v_mul_u32_u24 v2, 21846, v0")
        a("v_lshrrev_b32 v2, 16, v2")
        a("v_mul_u32_u24 v3, 3, v2")
        a("v_sub_u32 v3, v0, v3")
        a("v_lshlrev_b32 v3, 7, v3")
        a("s_mul_i32 s45, s24, 59")
        a("v_add_u32 v2, s45, v2")
        a("v_cmp_gt_u32 vcc, 177, v0")
        a("v_mul_lo_u32 v2, v2, s28")
        a("v_add3_u32 v2, v2, v3, s39")
        a("v_cndmask_b32 v2, v22, v2, vcc")
        a("buffer_load_dword v162, v2, s[16:19], 0 offen")
    a("v_lshrrev_b32 v22, 4, v1")
    a("v_and_b32 v23, 15, v1")
    a("s_mul_i32 s45, s32, 48")
    a("v_add_u32 v2, s45, v23")
    a("v_lshlrev_b32 v2, 7, v2")
    a("v_and_b32 v3, 7, v23")
    a("v_xor_b32 v3, v3, v22")
    a("v_lshlrev_b32 v3, 4, v3")
    a("v_add_u32 v10, v2, v3")
    a("v_xor_b32 v11, 64, v10")
    for b in (1, 2):
        a(f"v_add_u32 v{10 + 2 * b}, {b * K1_STAGE}, v10")
        a(f"v_add_u32 v{11 + 2 * b}, {b * K1_STAGE}, v11")
    a("v_lshlrev_b32 v2, 3, v22")
    a("v_lshrrev_b32 v3, 2, v23")
    a("v_add_u32 v2, v2, v3")
    a("v_mul_u32_u24 v2, 320, v2")
    a("v_and_b32 v3, 3, v23")
    a("v_lshlrev_b32 v3, 3, v3")
    a("s_mul_i32 s45, s33, 160")
    a("s_add_u32 s45, s45, 24576")
    a("v_add3_u32 v2, v2, v3, s45")
    a("v_and_b32 v3, 1, v22")
    a("v_lshlrev_b32 v3, 5, v3")
    a("s_cmp_eq_u32 s33, 0")
    a("s_cselect_b32 s45, 1, -1")
    a("v_mul_lo_u32 v3, v3, s45")
    a("v_add_u32 v16, v2, v3")
    a("v_sub_u32 v17, v2, v3")
    for b in (1, 2):
        a(f"v_add_u32 v{16 + 2 * b}, {b * K1_STAGE}, v16")
        a(f"v_add_u32 v{17 + 2 * b}, {b * K1_STAGE}, v17")

    XF = (24, 36)
    WF = (48, 68)
    ACC = 88

    def reads(buf, sub, st):
        r = []
        for ti in range(3):
            r.append(f"ds_read_b128 {vr(XF[st] + 4 * ti, 4)}, v{10 + 2 * buf + sub} offset:{ti * 2048}")
        for ni in range(5):
            ad = 16 + 2 * buf + (ni & 1)
            off = ni * 32 + sub * 10240
            r.append(f"ds_read_b64_tr_b16 {vr(WF[st] + 4 * ni, 2)}, v{ad} offset:{off}")
            r.append(f"ds_read_b64_tr_b16 {vr(WF[st] + 4 * ni + 2, 2)}, v{ad} offset:{off + 1280}")
        return r

    def mfmas(st, vor, first):
        m = []
        for ni in range(5):
            for ti in range(3):
                d = ACC + 4 * (ni * 3 + ti)
                c = "0" if first else vr(d, 4)
                w = vr(WF[st] + 4 * ni, 4)
                x = vr(XF[st] + 4 * ti, 4)
                if vor:
                    m.append(f"v_mfma_f32_16x16x32_bf16 {vr(d, 4)}, {x}, {w}, {c}")
                else:
                    m.append(f"v_mfma_f32_16x16x32_bf16 {vr(d, 4)}, {w}, {x}, {c}")
        return m

    def phase(ms, rs, ds):
        rs = list(rs)
        ds = list(ds)
        for i, m in enumerate(ms):
            a(m)
            for _ in range(XP_RPM):
                if rs:
                    a(rs.pop(0))
            if ds and i in XP_DSL:
                for x in ds.pop(0):
                    a(x)

    def loop(vor):
        a(f"s_waitcnt vmcnt({12 + NPF})")
        a("s_barrier")
        prof(a, 1)
        for r in reads(0, 0, 0):
            a(r)
        pend = []
        for ks in range(10):
            buf = ks % 3
            a("s_waitcnt lgkmcnt(0)")
            phase(mfmas(0, vor, ks == 0), reads(buf, 1, 1), pend)
            pend = []
            nxt = []
            if ks < 9:
                a(f"s_waitcnt vmcnt({(6 + NPF if ks < 2 else 6) if ks < 8 else 0}) lgkmcnt(0)")
                a("s_barrier")
                prof(a, 2 + ks)
                nxt = reads((ks + 1) % 3, 0, 0)
            else:
                a("s_waitcnt lgkmcnt(0)")
            d = []
            if ks + 3 < 10:
                p = dma_pieces(buf)
                d = p[:3]
                pend = p[3:]
            phase(mfmas(1, vor, False), nxt, d)
        a("s_barrier")
        a("s_nop 7")
        a("s_nop 3")
        prof(a, 11)

    a("s_cmp_eq_u32 s27, 2")
    a("s_cbranch_scc1 K1_VLOOP")
    loop(False)
    a("s_mul_i32 s45, s32, 48")
    a("v_add_u32 v4, s45, v23")
    a("s_cmp_eq_u32 s27, 3")
    a("s_cbranch_scc1 K1_EPI_FFN")
    a("s_cmp_eq_u32 s27, 0")
    a(f"s_cselect_b32 s48, {f32bits(C_SCALE)}, 1.0")
    NO = 148
    a("v_mul_u32_u24 v4, 48, v4")
    a("s_mul_i32 s46, s33, 36864")
    a("v_add_u32 v4, s46, v4")
    for ni in range(5):
        a(f"v_add_u32 v2, {4 * ni}, v22")
        a("v_mul_u32_u24 v3, 13, v2")
        a("v_lshrrev_b32 v3, 6, v3")
        a("v_mul_u32_u24 v5, 5, v3")
        a(f"v_sub_u32 v{NO + 5 + ni}, v2, v5")
        a("v_mul_u32_u24 v3, 9216, v3")
        a(f"v_lshl_add_u32 v3, v{NO + 5 + ni}, 3, v3")
        a(f"v_add_u32 v{NO + ni}, v3, v4")
    a("v_mov_b32 v8, 0x3f803f80")
    a("v_mov_b32 v9, 0x00003f80")
    for ti in range(3):
        for ni in range(5):
            d = ACC + 4 * (ni * 3 + ti)
            for i in range(4):
                a(f"v_mul_f32 v{d + i}, s48, v{d + i}")
            a(f"v_cvt_pk_bf16_f32 v{d}, v{d}, v{d + 1}")
            a(f"v_cvt_pk_bf16_f32 v{d + 1}, v{d + 2}, v{d + 3}")
            a(f"ds_write_b64 v{NO + ni}, {vr(d, 2)} offset:{768 * ti}")
    for ni in range(1, 5):
        a(f"v_cmp_eq_u32 vcc, 4, v{NO + 5 + ni}")
        a("s_and_saveexec_b64 s[50:51], vcc")
        for ti in range(3):
            a(f"ds_write_b64 v{NO + ni}, v[8:9] offset:{768 * ti + 8}")
        a("s_mov_b64 exec, s[50:51]")
    a("s_mul_i32 s52, s26, 9216")
    a("s_and_b32 s46, s25, 3")
    a("s_lshl_b32 s46, s46, 3")
    a("s_add_u32 s46, s46, s26")
    a("s_sub_u32 s57, 2048, s30")
    a("s_min_u32 s57, s57, 192")
    a("s_mul_i32 s57, s57, 3")
    a("s_mov_b32 s56, 0")
    a("s_mov_b32 s58, 1000")
    a("s_cmp_eq_u32 s27, 0")
    a("s_cbranch_scc0 K1_CPK")
    a("s_mul_i32 s53, s46, 98304")
    a("s_mul_i32 s47, s30, 48")
    a("s_add_u32 s53, s53, s47")
    a("s_mov_b32 s54, 0")
    a("s_mov_b32 s55, 0")
    a("s_branch K1_COPY")
    a.label("K1_CPK")
    a(f"s_mul_i32 s53, s46, {HEAD_KV}")
    a("s_mul_i32 s47, s30, 90")
    a("s_add_u32 s53, s53, s47")
    a("s_mov_b32 s54, 683")
    a("s_mov_b32 s55, 1344")
    a("s_branch K1_COPY")
    a.label("K1_EPI_FFN")
    a("v_mul_u32_u24 v4, 336, v4")
    a("s_mul_i32 s46, s33, 160")
    a("v_lshl_add_u32 v4, v22, 3, v4")
    a("v_add_u32 v4, s46, v4")
    for ti in range(3):
        for ni in range(5):
            d = ACC + 4 * (ni * 3 + ti)
            for i in range(4):
                a(f"v_max_f32 v{d + i}, 0, v{d + i}")
            a(f"v_cvt_pk_bf16_f32 v{d}, v{d}, v{d + 1}")
            a(f"v_cvt_pk_bf16_f32 v{d + 1}, v{d + 2}, v{d + 3}")
            a(f"ds_write_b64 v4, {vr(d, 2)} offset:{5376 * ti + 32 * ni}")
    a("s_mul_i32 s52, s26, 8064")
    a("s_mul_i32 s46, s26, 24")
    a("s_add_u32 s46, s46, s30")
    a("s_mul_i32 s53, s46, 3456")
    a("s_lshl_b32 s47, s29, 1")
    a("s_add_u32 s53, s53, s47")
    a("s_mov_b32 s54, 3277")
    a("s_mov_b32 s55, 3136")
    a("s_mov_b32 s56, 16")
    a("s_sub_i32 s57, 2048, s46")
    a("s_max_i32 s57, s57, 0")
    a("s_min_u32 s57, s57, 24")
    a("s_mul_i32 s57, s57, 20")
    a("s_sub_u32 s58, 1728, s29")
    a("s_lshr_b32 s58, s58, 3")
    a("s_branch K1_COPY")
    a.label("K1_VLOOP")
    loop(True)
    a("s_mul_i32 s46, s33, 32256")
    for ni in range(5):
        a(f"v_add_u32 v2, {16 * ni}, v23")
        a("v_mul_u32_u24 v3, 205, v2")
        a("v_lshrrev_b32 v3, 12, v3")
        a("v_mul_u32_u24 v4, 20, v3")
        a(f"v_sub_u32 v{NO + 10 + ni}, v2, v4")
        a("v_mul_u32_u24 v3, 8064, v3")
        a(f"v_lshlrev_b32 v4, 6, v{NO + 10 + ni}")
        a(f"v_add3_u32 v{NO + ni}, v3, v4, s46")
        a(f"v_bfe_u32 v{NO + 5 + ni}, v{NO + 10 + ni}, 2, 2")
    a("v_mov_b32 v8, 0x3f803f80")
    a("v_mov_b32 v9, 0x3f803f80")
    a("s_mul_i32 s45, s32, 48")
    for ti in range(3):
        a(f"s_add_u32 s49, s45, {16 * ti}")
        a("v_lshlrev_b32 v2, 2, v22")
        a("v_add_u32 v2, s49, v2")
        a("v_lshrrev_b32 v3, 5, v2")
        a("v_mul_u32_u24 v3, 1344, v3")
        a("v_bfe_u32 v2, v2, 2, 3")
        a("v_bfe_u32 v4, v2, 1, 1")
        a("v_lshl_add_u32 v10, v4, 3, v3")
        a("v_lshrrev_b32 v4, 1, v2")
        a("v_and_b32 v4, 2, v4")
        a("v_and_b32 v2, 1, v2")
        a("v_or_b32 v11, v2, v4")
        for ni in range(5):
            d = ACC + 4 * (ni * 3 + ti)
            a(f"v_cvt_pk_bf16_f32 v{d}, v{d}, v{d + 1}")
            a(f"v_cvt_pk_bf16_f32 v{d + 1}, v{d + 2}, v{d + 3}")
            a(f"v_xor_b32 v6, v11, v{NO + 5 + ni}")
            a("v_lshlrev_b32 v6, 4, v6")
            a(f"v_add3_u32 v6, v6, v10, v{NO + ni}")
            a(f"ds_write_b64 v6, {vr(d, 2)}")
            if ni < 4:
                a("v_xor_b32 v7, 1, v11")
                a("v_lshlrev_b32 v7, 4, v7")
                a(f"v_add3_u32 v7, v7, v10, v{NO + ni}")
                a(f"v_cmp_eq_u32 vcc, 0, v{NO + 10 + ni}")
                a("s_and_saveexec_b64 s[50:51], vcc")
                a("ds_write_b64 v7, v[8:9] offset:1280")
                a("s_mov_b64 exec, s[50:51]")
    a("s_mul_i32 s52, s26, 8064")
    a("s_and_b32 s46, s25, 3")
    a("s_lshl_b32 s46, s46, 3")
    a("s_add_u32 s46, s46, s26")
    a(f"s_mul_i32 s53, s46, {HEAD_KV}")
    a("s_mul_i32 s47, s30, 90")
    a("s_add_u32 s53, s53, s47")
    a("s_add_u32 s53, s53, 1536")
    a("s_mov_b32 s54, 781")
    a("s_mov_b32 s55, 1536")
    a("s_mov_b32 s56, 0")
    a("s_sub_u32 s57, 2048, s30")
    a("s_min_u32 s57, s57, 192")
    a("s_lshr_b32 s57, s57, 5")
    a("s_mul_i32 s57, s57, 84")
    a("s_mov_b32 s58, 1000")
    a.label("K1_COPY")
    a("s_mov_b32 s59, 20")
    for it in range(9):
        ga = 24 + it
        la = 34 + it
        a(f"v_add_u32 v2, {64 * it}, v1")
        a("v_mul_lo_u32 v3, v2, s54")
        a("v_lshrrev_b32 v3, 16, v3")
        a("v_lshlrev_b32 v4, 4, v2")
        a("v_mul_lo_u32 v5, v3, s55")
        a(f"v_add3_u32 v{ga}, v4, v5, s53")
        a("v_mul_lo_u32 v5, v3, s56")
        a(f"v_add3_u32 v{la}, v4, v5, s52")
        a("v_mul_lo_u32 v5, v3, s59")
        a("v_sub_u32 v5, v2, v5")
        a("v_cmp_gt_u32 vcc, s57, v2")
        a("v_cmp_gt_i32 s[50:51], s58, v5")
        a("s_and_b64 vcc, vcc, s[50:51]")
        a("v_bfrev_b32 v5, 1")
        a(f"v_cndmask_b32 v{ga}, v5, v{ga}, vcc")
    a("s_waitcnt lgkmcnt(0)")
    a("s_barrier")
    for it in range(9):
        a(f"ds_read_b128 {vr(48 + 4 * it, 4)}, v{34 + it}")
    for it in range(9):
        a(f"s_waitcnt lgkmcnt({8 - it})")
        a(f"buffer_store_dwordx4 {vr(48 + 4 * it, 4)}, v{24 + it}, s[20:23], 0 offen sc1")
    a.label("K1_PEND")
    prof(a, 12)
    a.label("K1_END")
    a("s_endpgm")
    return a.text()


GS_SLOT = 9216


class GW:
    VA = 4
    VW = 8
    RA = 13
    RW = 14
    AF = 24
    WF = 40
    ACC = 60


def gw_setup(a, sR0, sC0B, strideA, sLds):
    a("v_lshrrev_b32 v22, 4, v1")
    a("v_and_b32 v23, 15, v1")
    a("v_lshrrev_b32 v2, 2, v1")
    a("v_sub_u32 v3, 0, v22")
    a("v_and_b32 v3, 3, v3")
    a("v_and_b32 v15, 3, v1")
    a("v_xor_b32 v3, v3, v15")
    a("v_lshlrev_b32 v3, 4, v3")
    a(f"v_add_u32 v2, s{sR0}, v2")
    a(f"s_mov_b32 s60, {strideA}")
    a("v_mul_lo_u32 v2, v2, s60")
    a(f"v_add_u32 v{GW.VA}, v2, v3")
    for i in range(1, 4):
        a(f"v_add_u32 v{GW.VA + i}, {16 * i * strideA}, v{GW.VA}")
    for i in range(5):
        a(f"v_add_u32 v2, {64 * i}, v1")
        a("v_mul_u32_u24 v3, 6554, v2")
        a("v_lshrrev_b32 v3, 16, v3")
        a("v_mul_u32_u24 v15, 10, v3")
        a("v_sub_u32 v2, v2, v15")
        a("v_lshlrev_b32 v2, 4, v2")
        a("v_mul_u32_u24 v3, 1280, v3")
        a(f"v_add3_u32 v{GW.VW + i}, v2, v3, s{sC0B}")
    a("v_lshrrev_b32 v2, 2, v23")
    a("v_sub_u32 v2, 0, v2")
    a("v_and_b32 v2, 3, v2")
    a("v_xor_b32 v2, v2, v22")
    a("v_lshlrev_b32 v2, 4, v2")
    a("v_lshl_add_u32 v2, v23, 6, v2")
    a(f"v_add_u32 v{GW.RA}, s{sLds}, v2")
    a("v_lshlrev_b32 v2, 3, v22")
    a("v_lshrrev_b32 v3, 2, v23")
    a("v_add_u32 v2, v2, v3")
    a("v_mul_u32_u24 v2, 160, v2")
    a("v_and_b32 v3, 3, v23")
    a("v_lshlrev_b32 v3, 3, v3")
    a("v_add_u32 v2, 4096, v2")
    a(f"v_add3_u32 v{GW.RW}, v2, v3, s{sLds}")


def gw_issue(a, slot, srdA, srdW, sKA, sKW, sLds):
    for i in range(4):
        a(f"s_add_u32 m0, s{sLds}, {slot * GS_SLOT + i * 1024}")
        a("s_nop 0")
        a(f"buffer_load_dwordx4 v{GW.VA + i}, {sr(srdA, 4)}, s{sKA} offen lds")
    for i in range(5):
        a(f"s_add_u32 m0, s{sLds}, {slot * GS_SLOT + 4096 + i * 1024}")
        a("s_nop 0")
        a(f"buffer_load_dwordx4 v{GW.VW + i}, {sr(srdW, 4)}, s{sKW} offen lds")
    a(f"s_add_u32 s{sKA}, s{sKA}, 64")
    a(f"s_add_u32 s{sKW}, s{sKW}, {32 * 1280}")


def gw_compute(a, slot, first):
    for t in range(4):
        a(f"ds_read_b128 {vr(GW.AF + 4 * t, 4)}, v{GW.RA} offset:{slot * GS_SLOT + t * 1024}")
    for n in range(5):
        off = slot * GS_SLOT + n * 32
        a(f"ds_read_b64_tr_b16 {vr(GW.WF + 4 * n, 2)}, v{GW.RW} offset:{off}")
        a(f"ds_read_b64_tr_b16 {vr(GW.WF + 4 * n + 2, 2)}, v{GW.RW} offset:{off + 640}")
    a("s_waitcnt lgkmcnt(0)")
    for n in range(5):
        for t in range(4):
            d = GW.ACC + 4 * (n * 4 + t)
            c = "0" if first else vr(d, 4)
            a(f"v_mfma_f32_16x16x32_bf16 {vr(d, 4)}, {vr(GW.WF + 4 * n, 4)}, {vr(GW.AF + 4 * t, 4)}, {c}")


def gw_write_partials(a, sRed):
    a("v_mul_u32_u24 v2, 320, v23")
    a("v_lshl_add_u32 v2, v22, 4, v2")
    a(f"v_add_u32 v2, s{sRed}, v2")
    for n in range(5):
        for t in range(4):
            d = GW.ACC + 4 * (n * 4 + t)
            a(f"ds_write_b128 v2, {vr(d, 4)} offset:{t * 5120 + n * 64}")


def gw_read_sum(a, sW4, redbase):
    a("v_lshrrev_b32 v2, 2, v1")
    a(f"s_lshl_b32 s60, s{sW4}, 4")
    a("v_add_u32 v2, s60, v2")
    a("v_mul_u32_u24 v2, 320, v2")
    a("v_and_b32 v3, 3, v1")
    a("v_mul_u32_u24 v3, 80, v3")
    a("v_add_u32 v2, v2, v3")
    if redbase:
        a(f"v_add_u32 v2, {redbase}, v2")
    R = 24
    for src in range(4):
        for j in range(5):
            a(f"ds_read_b128 {vr(R + 20 * src + 4 * j, 4)}, v2 offset:{src * 20480 + j * 16}")
        a("s_waitcnt lgkmcnt(0)")
    for e in range(20):
        a(f"v_add_f32 v{R + e}, v{R + e}, v{R + 20 + e}")
        a(f"v_add_f32 v{R + 40 + e}, v{R + 40 + e}, v{R + 60 + e}")
    for e in range(20):
        a(f"v_add_f32 v{R + e}, v{R + e}, v{R + 40 + e}")


def tile_map(a, sRt, sCt):
    a("s_and_b32 s60, s2, 7")
    a("s_lshr_b32 s61, s2, 3")
    a("s_lshr_b32 s62, s60, 1")
    a("s_lshl_b32 s62, s62, 3")
    a("s_lshr_b32 s63, s61, 2")
    a(f"s_add_u32 s{sRt}, s62, s63")
    a("s_and_b32 s62, s60, 1")
    a("s_lshl_b32 s62, s62, 2")
    a("s_and_b32 s63, s61, 3")
    a(f"s_add_u32 s{sCt}, s62, s63")


K2_BUF = 24576
K2_FFN = 3 * K2_BUF
K2_FLAG = K2_FFN + 4 * 20480
K2_LDS = K2_FLAG + 64


def k2():
    a = Asm()
    a.label("k2_kernel")
    if PROF:
        a("s_memtime s[86:87]")
    a("s_cmp_ge_u32 s2, 256")
    a("s_cbranch_scc1 K2_END")
    a("s_and_b32 s3, s2, 7")
    a("s_lshl_b32 s3, s3, 2")
    a("s_lshr_b32 s4, s2, 3")
    a("s_and_b32 s4, s4, 3")
    a("s_add_u32 s36, s3, s4")
    a("s_lshr_b32 s37, s2, 5")
    a("s_load_dwordx2 s[4:5], s[0:1], 0")
    a("s_load_dwordx2 s[6:7], s[0:1], 48")
    a("s_load_dwordx2 s[8:9], s[0:1], 72")
    a("v_and_b32 v1, 63, v0")
    a("v_lshrrev_b32 v2, 6, v0")
    a("s_nop 0")
    a("v_readfirstlane_b32 s38, v2")
    a("s_waitcnt lgkmcnt(0)")
    a("s_cmp_ge_u32 s38, 8")
    a("s_cbranch_scc1 K2_FFN")
    a("s_setprio 1")
    srd_off(a, 12, 8, 9, WS_KV, SZ_KV)
    srd_off(a, 16, 8, 9, WS_Q, SZ_Q)
    srd_off(a, 20, 8, 9, WS_O, SZ_O)
    srd(a, 24, 4, 5, SZ_X)
    srd(a, 28, 6, 7, 1280)
    srd_off(a, 32, 8, 9, WS_G, SZ_G)
    prof_init(a, 8, 9, 38, 1)
    prof(a, 0)
    a("v_lshlrev_b32 v16, 4, v1")
    a("s_mul_i32 s46, s38, 3072")
    a(f"s_mul_i32 s45, s36, {HEAD_KV}")
    a("s_add_u32 s45, s45, s46")
    a("s_mov_b32 s44, s45")
    a("s_mov_b32 s41, 0")
    a(f"s_mov_b32 s42, {K2_BUF}")
    a(f"s_mov_b32 s43, {2 * K2_BUF}")
    a("s_mov_b32 s40, 0")
    for sg in (41, 42):
        a(f"s_add_u32 m0, s{sg}, s46")
        a("s_nop 0")
        for j in range(3):
            a(f"buffer_load_dwordx4 v16, s[12:15], s44 offen offset:{1024 * j} lds")
        a("s_add_u32 s44, s44, 23040")
    a("v_mov_b32 v2, 0")
    a(f"v_mov_b32 v3, {K2_FLAG}")
    a("ds_write_b32 v3, v2")
    a("v_and_b32 v17, 31, v1")
    a("v_lshrrev_b32 v18, 5, v1")
    a("s_lshl_b32 s47, s37, 8")
    a("s_lshl_b32 s48, s38, 5")
    a("s_add_u32 s47, s47, s48")
    a("v_add_u32 v2, s47, v17")
    a("v_mul_u32_u24 v2, 48, v2")
    a("s_mul_i32 s48, s36, 98304")
    a("v_add_u32 v2, s48, v2")
    a("v_lshl_add_u32 v3, v18, 4, v2")
    a("buffer_load_dwordx4 v[20:23], v3, s[16:19], 0 offen")
    a("buffer_load_dwordx2 v[24:25], v2, s[16:19], 0 offen offset:32")
    a("s_lshl_b32 s48, s37, 8")
    a("s_lshl_b32 s49, s36, 3")
    a("s_add_u32 s48, s48, s49")
    a("s_add_u32 s48, s48, s38")
    a("s_mul_i32 s49, s48, 1280")
    a("v_mul_u32_u24 v2, 20, v1")
    a("buffer_load_dwordx4 v[116:119], v2, s[24:27], s49 offen")
    a("buffer_load_dword v120, v2, s[24:27], s49 offen offset:16")
    a("buffer_load_dwordx4 v[122:125], v2, s[28:31], 0 offen")
    a("buffer_load_dword v126, v2, s[28:31], 0 offen offset:16")
    a("v_mul_u32_u24 v2, 48, v17")
    a("v_lshl_add_u32 v12, v18, 4, v2")
    a("v_add_u32 v13, 32, v2")
    a("v_bfe_u32 v3, v17, 2, 2")
    a("v_lshlrev_b32 v2, 6, v17")
    a("v_add_u32 v2, 1536, v2")
    a("v_xor_b32 v19, v18, v3")
    a("v_lshl_add_u32 v14, v19, 4, v2")
    a("v_add_u32 v19, 2, v18")
    a("v_xor_b32 v19, v19, v3")
    a("v_lshl_add_u32 v15, v19, 4, v2")
    a("s_waitcnt vmcnt(0)")
    a("v_mov_b32 v2, 0")
    for j in range(5):
        xv = 116 + j
        gv = 122 + j
        a(f"v_lshlrev_b32 v3, 16, v{xv}")
        a(f"v_and_b32 v19, 0xffff0000, v{xv}")
        a(f"v_lshlrev_b32 v127, 16, v{gv}")
        a(f"v_and_b32 v128, 0xffff0000, v{gv}")
        a("v_mul_f32 v3, v3, v127")
        a("v_mul_f32 v19, v19, v128")
        a("v_cvt_pk_bf16_f32 v3, v3, v19")
        a("v_lshlrev_b32 v19, 16, v3")
        a("v_and_b32 v3, 0xffff0000, v3")
        a("v_add_f32 v2, v2, v19")
        a("v_add_f32 v2, v2, v3")
    for sh in (1, 2, 4, 8):
        a("s_nop 1")
        a(f"v_add_f32_dpp v2, v2, v2 row_shr:{sh} row_mask:0xf bank_mask:0xf")
    a("s_nop 1")
    a("v_add_f32_dpp v2, v2, v2 row_bcast:15 row_mask:0xa bank_mask:0xf")
    a("s_nop 1")
    a("v_add_f32_dpp v2, v2, v2 row_bcast:31 row_mask:0xc bank_mask:0xf")
    a("s_nop 1")
    a("v_cvt_pk_bf16_f32 v2, v2, v2")
    a("v_lshlrev_b32 v2, 16, v2")
    a(f"v_mul_f32 v2, {f32bits(-LOG2E)}, v2")
    a("v_exp_f32 v2, v2")
    a("s_nop 0")
    a("v_add_f32 v2, 1.0, v2")
    a("v_rcp_f32 v2, v2")
    a("s_nop 0")
    a("v_cvt_pk_bf16_f32 v2, v2, v2")
    a("v_lshlrev_b32 v2, 16, v2")
    a("s_lshl_b32 s49, s48, 2")
    a("v_mov_b32 v3, 0")
    a("v_cmp_eq_u32 vcc, 63, v1")
    a("s_and_saveexec_b64 s[50:51], vcc")
    a("buffer_store_dword v2, v3, s[32:35], s49 offen")
    a("s_mov_b64 exec, s[50:51]")
    a("v_cmp_eq_u32 vcc, 0, v18")
    a("s_nop 1")
    a("v_cndmask_b32 v24, 0, v24, vcc")
    a("v_cndmask_b32 v25, 0, v25, vcc")
    a("v_mov_b32 v26, 0")
    a("v_mov_b32 v27, 0")
    a("s_mov_b32 s39, 0")

    QF0, QF1 = 20, 24
    KF = (28, 36)
    VF = (44, 52)
    P = 60
    S = (68, 84)
    O = 100

    def dma_stage(lds_sreg):
        a(f"s_add_u32 m0, s{lds_sreg}, s46")
        a("s_nop 0")
        for j in range(3):
            a(f"buffer_load_dwordx4 v16, s[12:15], s44 offen offset:{1024 * j} lds")
        a("s_add_u32 s44, s44, 23040")

    def set_addrs(dst, sbase):
        for i in range(4):
            a(f"v_add_u32 v{dst + i}, s{sbase}, v{12 + i}")

    def kread(st, idx):
        base = 4 if idx < 8 else 8
        off = (idx % 8) * 2880
        return [f"ds_read_b128 {vr(KF[st], 4)}, v{base} offset:{off}",
                f"ds_read_b128 {vr(KF[st] + 4, 4)}, v{base + 1} offset:{off}"]

    def vread(st, idx):
        base = 4 if idx < 8 else 8
        off = (idx % 8) * 2880
        return [f"ds_read_b128 {vr(VF[st], 4)}, v{base + 2} offset:{off}",
                f"ds_read_b128 {vr(VF[st] + 4, 4)}, v{base + 3} offset:{off}"]

    def qk(st, sst):
        a(f"v_mfma_f32_32x32x16_bf16 {vr(S[sst], 16)}, {vr(KF[st], 4)}, {vr(QF0, 4)}, 0")
        a(f"v_mfma_f32_32x32x16_bf16 {vr(S[sst], 16)}, {vr(KF[st] + 4, 4)}, {vr(QF1, 4)}, {vr(S[sst], 16)}")

    def set_m_from(mreg):
        a(f"v_mov_b32 v3, v{mreg}")
        a("s_nop 1")
        a(f"v_permlane32_swap_b32 v{mreg}, v3")
        a("s_nop 1")
        a(f"v_max_f32 v2, v{mreg}, v3")
        a("v_and_b32 v3, 0xffff0000, v2")
        a("v_sub_f32 v2, v2, v3")
        a("v_and_b32 v19, 0xffff0000, v2")
        a("v_sub_f32 v2, v2, v19")
        a("v_xor_b32 v3, 0x80000000, v3")
        a("v_xor_b32 v19, 0x80000000, v19")
        a("v_xor_b32 v2, 0x80000000, v2")
        a("v_lshrrev_b32 v3, 16, v3")
        a("v_or_b32 v3, v3, v19")
        a("v_lshrrev_b32 v2, 16, v2")
        a("v_cmp_eq_u32 vcc, 0, v18")
        a("s_nop 1")
        a("v_cndmask_b32 v26, 0, v3, vcc")
        a("v_cndmask_b32 v27, 0, v2, vcc")
        a("s_nop 1")

    def start_stream():
        a("s_mov_b32 s44, s45")
        a("s_mov_b32 s41, 0")
        a(f"s_mov_b32 s42, {K2_BUF}")
        a(f"s_mov_b32 s43, {2 * K2_BUF}")
        dma_stage(41)
        dma_stage(42)
        set_addrs(4, 41)
        set_addrs(8, 42)
        a("s_mov_b32 s40, 0")

    def stage_head(lbl):
        a("s_waitcnt vmcnt(0) lgkmcnt(0)")
        a("s_barrier")
        a("s_cmp_ge_u32 s40, 6")
        a(f"s_cbranch_scc1 {lbl}")
        dma_stage(43)
        a.label(lbl)

    def stage_rotate():
        a("s_mov_b32 s47, s41")
        a("s_mov_b32 s41, s42")
        a("s_mov_b32 s42, s43")
        a("s_mov_b32 s43, s47")
        for i in range(4):
            a(f"v_mov_b32 v{4 + i}, v{8 + i}")
        set_addrs(8, 42)
        a("s_add_u32 s40, s40, 1")

    a.label("K2_MAIN")
    prof(a, 1)
    a("s_cmp_eq_u32 s39, 0")
    a("s_cbranch_scc1 K2_STARTED")
    start_stream()
    a.label("K2_STARTED")
    set_addrs(4, 41)
    set_addrs(8, 42)
    for i in range(16):
        a(f"v_mov_b32 v{O + i}, 0")
    for i in range(4):
        a(f"v_mov_b32 v{P + 4 + i}, 0")
        a(f"v_mov_b32 v{VF[1] + 4 + i}, 0")
    a.label("K2_STAGE")
    stage_head("K2_NODMA")
    a("s_cmp_lg_u32 s40, 0")
    a("s_cbranch_scc1 K2_BODY")
    for r in kread(0, 0):
        a(r)
    a("s_cmp_lg_u32 s39, 0")
    a("s_cbranch_scc1 K2_PRIME")
    a("s_waitcnt lgkmcnt(0)")
    qk(0, 0)
    a("s_nop 15")
    a("s_nop 3")
    s0 = S[0]
    a(f"v_max3_f32 v116, v{s0}, v{s0 + 1}, v{s0 + 2}")
    for i in range(3, 15, 2):
        a(f"v_max3_f32 v116, v116, v{s0 + i}, v{s0 + i + 1}")
    a(f"v_max_f32 v116, v116, v{s0 + 15}")
    set_m_from(116)
    a.label("K2_PRIME")
    for r in kread(1, 1):
        a(r)
    for r in vread(0, 0):
        a(r)
    a("s_waitcnt lgkmcnt(4)")
    qk(0, 0)
    a("s_nop 15")
    prof(a, 2)
    a.label("K2_BODY")

    def body(par):
        for t in range(8):
            c = t % 2
            n = 1 - c
            sc = S[c]
            sn = S[n]

            def ex(lo):
                for i in range(lo, lo + 4):
                    a(f"v_exp_f32 v{sc + i}, v{sc + i}")

            def cv(lo):
                for i in range(lo, lo + 4):
                    a(f"v_cvt_pk_bf16_f32 v{P + i}, v{sc + 2 * i}, v{sc + 2 * i + 1}")
            if XP_PRIO:
                a(f"s_setprio {2 if (t & 1) == par else 1}")
            ex(0)
            a(f"v_mfma_f32_32x32x16_bf16 {vr(O, 16)}, {vr(VF[n] + 4, 4)}, {vr(P + 4, 4)}, {vr(O, 16)}")
            ex(4)
            a("s_waitcnt lgkmcnt(2)")
            a(f"v_mfma_f32_32x32x16_bf16 {vr(sn, 16)}, {vr(KF[n], 4)}, {vr(QF0, 4)}, 0")
            cv(0)
            if not XP_NOLDS:
                for r in kread(c, t + 2):
                    a(r)
                for r in vread(n, t + 1):
                    a(r)
            ex(8)
            a(f"v_mfma_f32_32x32x16_bf16 {vr(sn, 16)}, {vr(KF[n] + 4, 4)}, {vr(QF1, 4)}, {vr(sn, 16)}")
            ex(12)
            a("s_waitcnt lgkmcnt(4)")
            a(f"v_mfma_f32_32x32x16_bf16 {vr(O, 16)}, {vr(VF[c], 4)}, {vr(P, 4)}, {vr(O, 16)}")
            cv(4)

    if XP_PRIO:
        a("s_cmp_ge_u32 s38, 4")
        a("s_cbranch_scc1 K2_BODY1")
        body(0)
        a("s_branch K2_BODYE")
        a.label("K2_BODY1")
        body(1)
        a.label("K2_BODYE")
    else:
        body(0)
    stage_rotate()
    if PROF:
        a("s_memtime s[88:89]")
        a("s_waitcnt lgkmcnt(0)")
        a("v_mov_b32 v2, s88")
        a("s_lshl_b32 s90, s40, 2")
        a("v_mov_b32 v3, s90")
        a("buffer_store_dword v2, v3, s[92:95], s91 offen offset:8")
    a("s_cmp_lt_u32 s40, 8")
    a("s_cbranch_scc1 K2_STAGE")
    a("s_nop 1")
    a(f"v_mfma_f32_32x32x16_bf16 {vr(O, 16)}, {vr(VF[1] + 4, 4)}, {vr(P + 4, 4)}, {vr(O, 16)}")
    a("s_nop 15")
    a("s_nop 3")
    a("s_cmp_lg_u32 s39, 0")
    a("s_cbranch_scc1 K2_EPI")
    a("v_mov_b32 v2, 0")
    for i in range(9):
        a(f"v_fma_f32 v2, v{O + i}, 0, v2")
    a("v_mov_b32 v3, 0")
    for i in range(9, 12):
        a(f"v_fma_f32 v3, v{O + i}, 0, v3")
    a("v_cmp_eq_u32 vcc, 0, v18")
    a("s_nop 1")
    a("v_cndmask_b32 v3, 0, v3, vcc")
    a("v_add_f32 v2, v2, v3")
    a("v_cmp_u_f32 vcc, v2, v2")
    a("s_nop 4")
    a("s_cbranch_vccz K2_VOTE")
    a("v_mov_b32 v2, 1")
    a(f"v_mov_b32 v3, {K2_FLAG}")
    a("ds_write_b32 v3, v2")
    a.label("K2_VOTE")
    a("s_branch K2_EPI")
    a.label("K2_FALL")
    a("s_barrier")
    a("v_mov_b32 v26, 0")
    a("v_mov_b32 v27, 0")
    a(f"v_mov_b32 v117, {f32bits(float('-inf'))}")
    start_stream()
    a.label("K2_MSTAGE")
    stage_head("K2_MNODMA")
    for t in range(8):
        for r in kread(0, t):
            a(r)
        a("s_waitcnt lgkmcnt(0)")
        qk(0, 0)
        a("s_nop 15")
        a("s_nop 3")
        for i in range(0, 16, 2):
            a(f"v_max3_f32 v117, v117, v{s0 + i}, v{s0 + i + 1}")
    stage_rotate()
    a("s_cmp_lt_u32 s40, 8")
    a("s_cbranch_scc1 K2_MSTAGE")
    set_m_from(117)
    a("s_mov_b32 s39, 1")
    a("s_waitcnt vmcnt(0) lgkmcnt(0)")
    a("s_barrier")
    a("s_branch K2_MAIN")
    a.label("K2_EPI")
    a(f"v_mov_b32 v2, v{O + 8}")
    a(f"v_mov_b32 v3, v{O + 8}")
    a("s_nop 1")
    a("v_permlane32_swap_b32 v2, v3")
    a("s_nop 1")
    a("v_rcp_f32 v3, v3")
    a("s_nop 0")
    for i in range(12):
        a(f"v_mul_f32 v{O + i}, v{O + i}, v3")
    for i in range(6):
        a(f"v_cvt_pk_bf16_f32 v{P + i}, v{O + 2 * i}, v{O + 2 * i + 1}")
    a("s_lshl_b32 s47, s37, 8")
    a("s_lshl_b32 s48, s38, 5")
    a("s_add_u32 s47, s47, s48")
    a("v_add_u32 v2, s47, v17")
    a("v_mul_u32_u24 v2, 1280, v2")
    a("s_mul_i32 s48, s36, 40")
    a("v_lshl_add_u32 v2, v18, 3, v2")
    a("v_add_u32 v2, s48, v2")
    a(f"buffer_store_dwordx2 {vr(P, 2)}, v2, s[20:23], 0 offen")
    a(f"buffer_store_dwordx2 {vr(P + 2, 2)}, v2, s[20:23], 0 offen offset:16")
    a("v_cmp_eq_u32 vcc, 0, v18")
    a("s_and_saveexec_b64 s[50:51], vcc")
    a(f"buffer_store_dwordx2 {vr(P + 4, 2)}, v2, s[20:23], 0 offen offset:32")
    a("s_mov_b64 exec, s[50:51]")
    a("s_cmp_lg_u32 s39, 0")
    a("s_cbranch_scc1 K2_PEND")
    a("s_waitcnt lgkmcnt(0)")
    a("s_barrier")
    a(f"v_mov_b32 v3, {K2_FLAG}")
    a("ds_read_b32 v2, v3")
    a("s_waitcnt lgkmcnt(0)")
    a("v_readfirstlane_b32 s47, v2")
    a("s_cmp_lg_u32 s47, 0")
    a("s_cbranch_scc1 K2_FALL")
    a.label("K2_PEND")
    prof(a, 12)
    a.label("K2_END")
    a("s_endpgm")
    a.label("K2_FFN")
    if XP_NOFFN:
        a("s_endpgm")
    a("s_load_dwordx2 s[6:7], s[0:1], 40")
    a("s_load_dwordx2 s[52:53], s[0:1], 16")
    tile_map(a, 36, 37)
    a("s_sub_u32 s38, s38, 8")
    a("s_lshl_b32 s39, s36, 6")
    a("s_mul_i32 s40, s37, 160")
    a("s_mul_i32 s41, s38, 20480")
    a(f"s_add_u32 s41, s41, {K2_FFN}")
    a("s_mul_i32 s42, s38, 14")
    a("s_cmp_eq_u32 s38, 3")
    a("s_cselect_b32 s42, 41, s42")
    a("s_lshl_b32 s45, s42, 6")
    a(f"s_mul_i32 s46, s42, {32 * 1280}")
    a("s_waitcnt lgkmcnt(0)")
    srd(a, 16, 6, 7, SZ_W2)
    srd_off(a, 24, 8, 9, WS_H, SZ_H)
    srd_off(a, 28, 8, 9, WS_B, SZ_B)
    gw_setup(a, 39, 40, 3456, 41)
    j = 0
    for k, ns in enumerate(XP_FS):
        a("s_barrier")
        if k == 0:
            gw_issue(a, 0, 24, 16, 45, 46, 41)
        if k == 1 and XP_PF:
            srd(a, 52, 52, 53, SZ_WO)
            a("s_mul_i32 s56, s2, 3200")
            a("v_and_b32 v3, 255, v0")
            a("v_lshlrev_b32 v2, 7, v3")
            a("v_cmp_gt_u32 vcc, 25, v3")
            a("v_bfrev_b32 v3, 1")
            a("v_cndmask_b32 v2, v3, v2, vcc")
            a("buffer_load_dword v141, v2, s[52:55], s56 offen")
        for _ in range(ns):
            if j < 13:
                gw_issue(a, (j + 1) & 1, 24, 16, 45, 46, 41)
                a("s_waitcnt vmcnt(9)")
            else:
                a("s_waitcnt vmcnt(0)")
                a("s_cmp_ge_u32 s38, 2")
                a("s_cbranch_scc1 K2_FSKIP")
            gw_compute(a, j & 1, j == 0)
            j += 1
    assert j == 14
    a.label("K2_FSKIP")
    a("s_nop 7")
    a("s_nop 3")
    a("s_waitcnt vmcnt(0)")
    gw_write_partials(a, 41)
    a("s_waitcnt lgkmcnt(0)")
    a("s_barrier")
    gw_read_sum(a, 38, K2_FFN)
    for e in range(0, 20, 2):
        a(f"v_cvt_pk_bf16_f32 v{112 + e // 2}, v{24 + e}, v{25 + e}")
    a("v_lshrrev_b32 v2, 2, v1")
    a("s_lshl_b32 s42, s38, 4")
    a("s_add_u32 s42, s42, s39")
    a("v_add_u32 v2, s42, v2")
    a("v_mul_u32_u24 v2, 1280, v2")
    a("v_and_b32 v3, 3, v1")
    a("v_mul_u32_u24 v3, 40, v3")
    a("v_add3_u32 v2, v2, v3, s40")
    a("buffer_store_dwordx4 v[112:115], v2, s[28:31], 0 offen")
    a("buffer_store_dwordx4 v[116:119], v2, s[28:31], 0 offen offset:16")
    a("buffer_store_dwordx2 v[120:121], v2, s[28:31], 0 offen offset:32")
    a("s_endpgm")
    return a.text()


def wmap(a, dst, sC0B):
    a("v_mul_u32_u24 v3, 6554, v2")
    a("v_lshrrev_b32 v3, 16, v3")
    a("v_mul_u32_u24 v15, 10, v3")
    a("v_sub_u32 v2, v2, v15")
    a("v_lshrrev_b32 v15, 1, v3")
    a("v_and_b32 v15, 4, v15")
    a("v_xor_b32 v3, v3, v15")
    a("v_lshlrev_b32 v2, 4, v2")
    a("v_mul_u32_u24 v3, 1280, v3")
    a(f"v_add3_u32 v{dst}, v2, v3, s{sC0B}")


def wread_addr(a, d0, d1, sBase):
    a("v_lshlrev_b32 v2, 3, v22")
    a("v_lshrrev_b32 v3, 2, v23")
    a("v_add_u32 v2, v2, v3")
    a("v_mul_u32_u24 v2, 160, v2")
    a("v_and_b32 v3, 3, v23")
    a("v_lshlrev_b32 v3, 3, v3")
    a(f"v_add3_u32 v2, v2, v3, s{sBase}")
    a("v_and_b32 v3, 1, v22")
    a("v_mul_u32_u24 v3, 640, v3")
    a(f"v_add_u32 v{d0}, v2, v3")
    a("v_sub_u32 v2, v2, v3")
    a(f"v_add_u32 v{d1}, 640, v2")


K3_STG = 36864
K3_LDS = 4 * K3_STG


def k3():
    a = Asm()
    a.label("k3_kernel")
    if PROF:
        a("s_memtime s[86:87]")
    a("s_cmp_ge_u32 s2, 256")
    a("s_cbranch_scc1 K3_END")
    a("s_load_dwordx2 s[4:5], s[0:1], 16")
    a("s_load_dwordx2 s[8:9], s[0:1], 72")
    a("s_load_dwordx2 s[10:11], s[0:1], 56")
    tile_map(a, 36, 37)
    a("v_and_b32 v1, 63, v0")
    a("v_lshrrev_b32 v2, 6, v0")
    a("v_lshrrev_b32 v22, 4, v1")
    a("v_readfirstlane_b32 s38, v2")
    a("v_and_b32 v23, 15, v1")
    a("s_lshl_b32 s39, s36, 6")
    a("s_mul_i32 s40, s37, 160")
    a("s_and_b32 s49, s38, 3")
    a("s_lshr_b32 s50, s38, 2")
    a("s_lshl_b32 s42, s38, 3")
    for j in range(2):
        a(f"s_add_u32 s43, s42, {4 * j}")
        a("v_add_u32 v2, s43, v22")
        a("v_and_b32 v3, 15, v2")
        a("v_xor_b32 v3, v3, v23")
        a("v_add_u32 v2, s39, v2")
        a("v_mul_u32_u24 v2, 1280, v2")
        a(f"v_lshl_add_u32 v{4 + j}, v3, 4, v2")
    a("s_add_u32 s43, s38, 8")
    a("s_add_u32 s44, s38, 16")
    a("s_cmp_lt_u32 s38, 4")
    a("s_cselect_b32 s44, s44, s43")
    for j, sp in enumerate((38, 43, 44)):
        a(f"s_lshl_b32 s51, s{sp}, 6")
        a("v_add_u32 v2, s51, v1")
        wmap(a, 8 + j, 40)
        a(f"s_lshl_b32 s{52 + j}, s{sp}, 10")
        a(f"s_add_u32 s{52 + j}, s{52 + j}, 16384")
    a("s_lshl_b32 s45, s38, 11")
    a("s_waitcnt lgkmcnt(0)")
    srd(a, 12, 4, 5, SZ_WO)
    srd_off(a, 20, 8, 9, WS_O, SZ_O)
    srd_off(a, 24, 8, 9, WS_B, SZ_B)
    srd_off(a, 28, 8, 9, WS_G, SZ_G)
    srd(a, 32, 10, 11, SZ_OUT)
    prof_init(a, 8, 9, 38, 2)
    prof(a, 0)

    def issue(stage, slot):
        a(f"s_mov_b32 s47, {stage * 256}")
        a(f"s_mov_b32 s48, {stage * 128 * 1280}")
        for j in range(2):
            a(f"s_add_u32 m0, s45, {slot * K3_STG + j * 1024}")
            a("s_nop 0")
            a(f"buffer_load_dwordx4 v{4 + j}, s[20:23], s47 offen lds")
        for j in range(3):
            a(f"s_add_u32 m0, s{52 + j}, {slot * K3_STG}")
            a("s_nop 0")
            a(f"buffer_load_dwordx4 v{8 + j}, s[12:15], s48 offen lds")

    for st in range(4):
        issue(st, st)
    a("s_lshl_b32 s42, s49, 4")
    a("s_add_u32 s42, s42, s39")
    a("v_add_u32 v2, s42, v23")
    a("v_lshlrev_b32 v3, 2, v2")
    a("buffer_load_dword v16, v3, s[28:31], 0 offen")
    a("v_mul_u32_u24 v2, 1280, v2")
    a("v_lshl_add_u32 v2, v22, 3, v2")
    a("s_mul_i32 s43, s50, 96")
    a("s_add_u32 s43, s43, s40")
    a("v_add_u32 v17, s43, v2")
    BV = 104
    for n in range(3):
        a(f"buffer_load_dwordx2 {vr(BV + 2 * n, 2)}, v17, s[24:27], 0 offen offset:{32 * n}")
    RA, RW = 24, 28
    a("s_lshl_b32 s43, s49, 12")
    a("v_lshlrev_b32 v2, 8, v23")
    a("v_add_u32 v2, s43, v2")
    a("s_lshl_b32 s43, s50, 3")
    for i in range(2):
        a(f"s_add_u32 s44, s43, {4 * i}")
        a("v_add_u32 v3, s44, v22")
        a("v_xor_b32 v3, v3, v23")
        a(f"v_lshl_add_u32 v{RA + i}, v3, 4, v2")
        a(f"v_add_u32 v{RA + 2 + i}, {2 * K3_STG}, v{RA + i}")
    a("s_mul_i32 s43, s50, 10240")
    a("s_add_u32 s43, s43, 16384")
    wread_addr(a, RW, RW + 1, 43)
    a(f"v_add_u32 v{RW + 2}, {2 * K3_STG}, v{RW}")
    a(f"v_add_u32 v{RW + 3}, {2 * K3_STG}, v{RW + 1}")
    a("v_lshlrev_b32 v21, 4, v1")
    a("s_mul_i32 s43, s49, 5120")
    a(f"s_add_u32 s43, s43, {K3_STG}")
    a("v_add_u32 v21, s43, v21")
    AF = (36, 40)
    WF = (44, 64)
    ACC = 84

    def reads(t):
        st, i = t >> 1, t & 1
        slot = st % 4
        hi = slot >> 1
        so = (slot & 1) * K3_STG
        r = [f"ds_read_b128 {vr(AF[i], 4)}, v{RA + 2 * hi + i} offset:{so}"]
        for n in range(5):
            off = so + i * 5120 + n * 32
            r.append(f"ds_read_b64_tr_b16 {vr(WF[i] + 4 * n, 2)}, v{RW + 2 * hi} offset:{off}")
            r.append(f"ds_read_b64_tr_b16 {vr(WF[i] + 4 * n + 2, 2)}, v{RW + 2 * hi + 1} offset:{off}")
        return r

    def mf(t):
        for n in range(5):
            d = ACC + 4 * n
            c = "0" if t == 0 else vr(d, 4)
            a(f"v_mfma_f32_16x16x32_bf16 {vr(d, 4)}, {vr(WF[t & 1] + 4 * n, 4)}, {vr(AF[t & 1], 4)}, {c}")

    a("s_waitcnt vmcnt(19)")
    a("s_barrier")
    prof(a, 1)
    for r in reads(0) + reads(1):
        a(r)
    a("s_waitcnt vmcnt(4) lgkmcnt(0)")
    a("s_barrier")
    prof(a, 2)
    issue(4, 0)
    mf(0)
    for r in reads(2):
        a(r)
    mf(1)
    for t in range(2, 10):
        if t == 7:
            a("s_waitcnt vmcnt(0)")
            a("s_barrier")
            prof(a, 3)
        if t < 9:
            for r in reads(t + 1):
                a(r)
            a("s_waitcnt lgkmcnt(11)")
        else:
            a("s_waitcnt lgkmcnt(0)")
        mf(t)
    a("v_sub_f32 v18, 1.0, v16")
    a("v_cvt_pk_bf16_f32 v18, v18, v18")
    a("v_lshlrev_b32 v18, 16, v18")
    a("s_nop 7")
    prof(a, 6)
    XR = 44
    a("s_cmp_eq_u32 s50, 0")
    a("s_cbranch_scc0 K3_X1")
    for n in (3, 4):
        a(f"ds_write_b128 v21, {vr(ACC + 4 * n, 4)} offset:{1024 * n}")
    a("s_waitcnt lgkmcnt(0)")
    a("s_barrier")
    for n in range(3):
        a(f"ds_read_b128 {vr(XR + 4 * n, 4)}, v21 offset:{1024 * n}")
    a("s_branch K3_FIN")
    a.label("K3_X1")
    for n in range(3):
        a(f"ds_write_b128 v21, {vr(ACC + 4 * n, 4)} offset:{1024 * n}")
    a("s_waitcnt lgkmcnt(0)")
    a("s_barrier")
    for n in (3, 4):
        a(f"ds_read_b128 {vr(XR + 4 * (n - 3), 4)}, v21 offset:{1024 * n}")
    for i in range(8):
        a(f"v_mov_b32 v{ACC + i}, v{ACC + 12 + i}")
    a.label("K3_FIN")
    a("s_waitcnt lgkmcnt(0)")
    for n in range(3):
        if n == 2:
            a("s_cmp_eq_u32 s50, 0")
            a("s_cbranch_scc0 K3_PEND")
        for i in range(4):
            a(f"v_add_f32 v{ACC + 4 * n + i}, v{ACC + 4 * n + i}, v{XR + 4 * n + i}")
        for h in range(2):
            e = ACC + 4 * n + 2 * h
            bp = BV + 2 * n + h
            a(f"v_cvt_pk_bf16_f32 v19, v{e}, v{e + 1}")
            a("v_lshlrev_b32 v4, 16, v19")
            a("v_and_b32 v5, 0xffff0000, v19")
            a(f"v_lshlrev_b32 v6, 16, v{bp}")
            a(f"v_and_b32 v7, 0xffff0000, v{bp}")
            a("v_mul_f32 v4, v16, v4")
            a("v_mul_f32 v5, v16, v5")
            a("v_mul_f32 v6, v18, v6")
            a("v_mul_f32 v7, v18, v7")
            a("v_cvt_pk_bf16_f32 v19, v4, v5")
            a("v_cvt_pk_bf16_f32 v20, v6, v7")
            a("v_lshlrev_b32 v4, 16, v19")
            a("v_and_b32 v5, 0xffff0000, v19")
            a("v_lshlrev_b32 v6, 16, v20")
            a("v_and_b32 v7, 0xffff0000, v20")
            a("v_add_f32 v4, v4, v6")
            a("v_add_f32 v5, v5, v7")
            a(f"v_cvt_pk_bf16_f32 v{bp}, v4, v5")
        a(f"buffer_store_dwordx2 {vr(BV + 2 * n, 2)}, v17, s[32:35], 0 offen offset:{32 * n}")
    a.label("K3_PEND")
    prof(a, 12)
    a.label("K3_END")
    a("s_endpgm")
    return a.text()


def desc(name, vgpr, sgpr=96):
    acc = (vgpr + 3) // 4 * 4
    return f""".amdhsa_kernel {name}
  .amdhsa_next_free_vgpr {vgpr}
  .amdhsa_next_free_sgpr {sgpr}
  .amdhsa_accum_offset {acc}
  .amdhsa_group_segment_fixed_size 0
  .amdhsa_kernarg_size 80
  .amdhsa_user_sgpr_count 2
  .amdhsa_user_sgpr_kernarg_segment_ptr 1
  .amdhsa_system_sgpr_workgroup_id_x 1
.end_amdhsa_kernel
"""


def main():
    hdr = f"""; gated_mix__mha_block__dense_activation_relu__prompt : 3 kernels (generated by gen.py, hand-designed)
; @launch kernel=k1_kernel grid=(256,1,1) block=(512,1,1) lds={K1_LDS}
; @launch kernel=k2_kernel grid=(256,1,1) block=(768,1,1) lds={K2_LDS}
; @launch kernel=k3_kernel grid=(256,1,1) block=(512,1,1) lds={K3_LDS}
.amdgcn_target "amdgcn-amd-amdhsa--gfx950"
.text
"""
    body = ""
    for name, fn in (("k1_kernel", k1), ("k2_kernel", k2), ("k3_kernel", k3)):
        body += f".globl {name}\n.p2align 8\n.type {name},@function\n" + fn()
    tail = '.section .rodata,"a"\n.p2align 6\n'
    tail += desc("k1_kernel", 168)
    tail += ".p2align 6\n" + desc("k2_kernel", 144)
    tail += ".p2align 6\n" + desc("k3_kernel", 116)
    open(OUT, "w").write(hdr + body + tail)


if __name__ == "__main__":
    main()
```

```python
import struct, sys

OUT = sys.argv[1] if len(sys.argv) > 1 else "gated_mix__mha_block__dense_activation_relu__prompt.s"

WS_Q = 0
SZ_Q = 32 * 2048 * 48
WS_KV = 0x400000
HEAD_KV = 64 * 2880
SZ_KV = 32 * HEAD_KV
WS_H = 0xC00000
SZ_H = 2048 * 3456
WS_O = 0x1400000
SZ_O = 2048 * 1280
WS_G = 0x1800000
SZ_G = 2048 * 4
WS_B = 0x1A00000
SZ_B = 2048 * 1280

SZ_X = 2048 * 1280
SZ_WQKV = 640 * 3840
SZ_WO = 640 * 1280
SZ_W1 = 640 * 3456
SZ_W2 = 1728 * 1280
SZ_OUT = 2048 * 1280


def f32bits(x):
    return struct.unpack("<I", struct.pack("<f", x))[0]


C_SCALE = 1.4426950408889634 / (20 ** 0.5)
LOG2E = 1.4426950408889634


PROF = int(__import__("os").environ.get("PROF", "0"))
WS_T = 0x2000000
XP_PF = int(__import__("os").environ.get("XP_PF", "1"))
XP_ROT = int(__import__("os").environ.get("XP_ROT", "1"))
XP_PRIO = int(__import__("os").environ.get("XP_PRIO", "0"))
XP_RPM = int(__import__("os").environ.get("XP_RPM", "1"))
XP_DSL = eval(__import__("os").environ.get("XP_DSL", "(7, 10, 13)"))
XP_FDEL = int(__import__("os").environ.get("XP_FDEL", "1"))
XP_FS = eval(__import__("os").environ.get("XP_FS", "(2, 2, 2, 2, 2, 2, 2)"))
XP_QX = int(__import__("os").environ.get("XP_QX", "0"))
XP_NOLDS = int(__import__("os").environ.get("XP_NOLDS", "0"))
XP_NOFFN = int(__import__("os").environ.get("XP_NOFFN", "0"))


def prof_init(a, wsl, wsh, wave_s, kidx=0):
    if not PROF:
        return
    a(f"s_add_u32 s92, s{wsl}, {WS_T + kidx * 0x100000}")
    a(f"s_addc_u32 s93, s{wsh}, 0")
    a("s_and_b32 s93, s93, 0xffff")
    a("s_mov_b32 s94, 0x100000")
    a("s_mov_b32 s95, 0x00020000")
    a("s_lshl_b32 s91, s2, 4")
    a(f"s_add_u32 s91, s91, s{wave_s}")
    a("s_lshl_b32 s91, s91, 7")


def prof(a, slot, tmpv=2):
    if not PROF:
        return
    a("s_memtime s[88:89]")
    a("s_waitcnt lgkmcnt(0)")
    a(f"v_mov_b32 v{tmpv}, s88")
    a(f"v_mov_b32 v{tmpv + 1}, 0")
    a(f"buffer_store_dword v{tmpv}, v{tmpv + 1}, s[92:95], s91 offen offset:{4 * slot}")
    if slot == 0:
        a(f"v_mov_b32 v{tmpv}, s86")
        a(f"buffer_store_dword v{tmpv}, v{tmpv + 1}, s[92:95], s91 offen offset:60")
    if slot in (0, 12):
        a("s_memrealtime s[88:89]")
        a("s_waitcnt lgkmcnt(0)")
        a(f"v_mov_b32 v{tmpv}, s88")
        a(f"buffer_store_dword v{tmpv}, v{tmpv + 1}, s[92:95], s91 offen offset:{4 * (13 if slot == 0 else 14)}")


class Asm:
    def __init__(self):
        self.lines = []

    def __call__(self, s):
        self.lines.append("    " + s)

    def label(self, l):
        self.lines.append(l + ":")

    def c(self, s):
        self.lines.append("    ; " + s)

    def text(self):
        return "\n".join(self.lines) + "\n"


def vr(b, n=1):
    return f"v{b}" if n == 1 else f"v[{b}:{b + n - 1}]"


def sr(b, n=1):
    return f"s{b}" if n == 1 else f"s[{b}:{b + n - 1}]"


def srd(a, d, lo, hi, size):
    a(f"s_mov_b32 s{d}, s{lo}")
    a(f"s_and_b32 s{d + 1}, s{hi}, 0xffff")
    a(f"s_mov_b32 s{d + 2}, {size}")
    a(f"s_mov_b32 s{d + 3}, 0x00020000")


def srd_off(a, d, lo, hi, off, size):
    a(f"s_add_u32 s{d}, s{lo}, {off}")
    a(f"s_addc_u32 s{d + 1}, s{hi}, 0")
    a(f"s_and_b32 s{d + 1}, s{d + 1}, 0xffff")
    a(f"s_mov_b32 s{d + 2}, {size}")
    a(f"s_mov_b32 s{d + 3}, 0x00020000")


K1_STAGE = 45056
K1_LDS = 3 * K1_STAGE


def k1():
    a = Asm()
    a.label("k1_kernel")
    if PROF:
        a("s_memtime s[86:87]")
    a("s_cmp_ge_u32 s2, 256")
    a("s_cbranch_scc1 K1_END")
    a("s_and_b32 s3, s2, 7")
    a("s_lshr_b32 s4, s2, 3")
    a("s_lshl_b32 s3, s3, 5")
    a("s_add_u32 s3, s3, s4")
    a("s_cmp_ge_u32 s3, 253")
    a("s_cbranch_scc1 K1_END")
    a("s_mul_i32 s25, s3, 373")
    a("s_lshr_b32 s25, s25, 12")
    a("s_mul_i32 s4, s25, 11")
    a("s_sub_u32 s24, s3, s4")
    a("s_load_dwordx2 s[4:5], s[0:1], 0")
    a("s_load_dwordx2 s[6:7], s[0:1], 8")
    a("s_load_dwordx2 s[8:9], s[0:1], 32")
    a("s_load_dwordx2 s[10:11], s[0:1], 72")
    a("v_and_b32 v1, 63, v0")
    a("v_lshrrev_b32 v2, 6, v0")
    a("s_nop 0")
    a("v_readfirstlane_b32 s26, v2")
    a("s_lshr_b32 s27, s25, 2")
    a("s_min_u32 s27, s27, 3")
    a("s_mul_i32 s30, s24, 192")
    a("s_waitcnt lgkmcnt(0)")
    srd(a, 12, 4, 5, SZ_X)
    a("s_sub_u32 s29, s25, 12")
    a(f"s_mov_b32 s18, {SZ_W1}")
    a("s_mov_b32 s28, 3456")
    a("s_cmp_lt_u32 s25, 12")
    a("s_cselect_b32 s16, s6, s8")
    a("s_cselect_b32 s17, s7, s9")
    a(f"s_cselect_b32 s18, {SZ_WQKV}, s18")
    a("s_cselect_b32 s28, 3840, s28")
    a("s_cselect_b32 s29, s25, s29")
    a("s_and_b32 s17, s17, 0xffff")
    a("s_mov_b32 s19, 0x00020000")
    a("s_mul_i32 s29, s29, 160")
    a(f"s_mov_b32 s31, {WS_KV}")
    a(f"s_mov_b32 s22, {SZ_KV}")
    a("s_cmp_eq_u32 s27, 0")
    a(f"s_cselect_b32 s31, {WS_Q}, s31")
    a(f"s_cselect_b32 s22, {SZ_Q}, s22")
    a("s_cmp_eq_u32 s27, 3")
    a(f"s_cselect_b32 s31, {WS_H}, s31")
    a(f"s_cselect_b32 s22, {SZ_H}, s22")
    a("s_add_u32 s20, s10, s31")
    a("s_addc_u32 s21, s11, 0")
    a("s_and_b32 s21, s21, 0xffff")
    a("s_mov_b32 s23, 0x00020000")
    prof_init(a, 10, 11, 26, 0)
    prof(a, 0)
    a("s_lshr_b32 s32, s26, 1")
    a("s_and_b32 s33, s26, 1")
    a("v_lshrrev_b32 v2, 3, v1")
    a("v_and_b32 v3, 7, v1")
    a("v_xor_b32 v3, v3, v2")
    a("v_lshlrev_b32 v3, 4, v3")
    a("v_mul_u32_u24 v2, 1280, v2")
    a("v_add_u32 v4, v2, v3")
    a("v_add_u32 v5, 10240, v4")
    a("v_add_u32 v6, 20480, v4")
    a("s_mul_i32 s34, s26, 24")
    a("s_add_u32 s34, s34, s30")
    a("s_mul_i32 s34, s34, 1280")
    a("s_mov_b32 s35, 0")
    a("s_lshl_b32 s36, s28, 6")
    a("s_add_u32 s62, s34, 1280")
    a("s_mul_i32 s61, s28, 640")
    a("s_add_u32 s60, s24, s25")
    a("s_mul_i32 s63, s60, 43")
    a("s_lshr_b32 s63, s63, 7")
    a("s_mul_i32 s63, s63, 3")
    a("s_sub_u32 s60, s60, s63")
    a(f"s_mul_i32 s60, s60, {XP_ROT}")
    a("s_lshl_b32 s63, s60, 7")
    a("s_add_u32 s34, s34, s63")
    a("s_mul_i32 s35, s60, s36")
    a("s_add_u32 s37, s26, 8")
    a("s_add_u32 s38, s26, 16")
    a("s_cmp_lt_u32 s26, 4")
    a("s_cselect_b32 s38, s38, s37")
    a("s_lshl_b32 s39, s29, 1")
    for j, sidx in enumerate((26, 37, 38)):
        a(f"s_lshl_b32 s40, s{sidx}, 6")
        a("v_add_u32 v2, s40, v1")
        a("v_mul_u32_u24 v3, 3277, v2")
        a("v_lshrrev_b32 v3, 16, v3")
        a("v_mul_u32_u24 v22, 20, v3")
        a("v_sub_u32 v2, v2, v22")
        a("v_lshrrev_b32 v22, 2, v3")
        a("v_and_b32 v22, 2, v22")
        a("v_xor_b32 v2, v2, v22")
        a("v_lshlrev_b32 v2, 4, v2")
        a("v_mul_lo_u32 v3, v3, s28")
        a(f"v_add3_u32 v{7 + j}, v2, v3, s39")
    a("s_mul_i32 s41, s26, 3072")
    a("s_lshl_b32 s42, s26, 10")
    a("s_add_u32 s42, s42, 24576")
    a("s_lshl_b32 s43, s37, 10")
    a("s_add_u32 s43, s43, 24576")
    a("s_lshl_b32 s44, s38, 10")
    a("s_add_u32 s44, s44, 24576")

    def dma_pieces(buf):
        base = buf * K1_STAGE
        g = []
        for j in range(3):
            x = [f"s_add_u32 m0, s41, {base + j * 1024}", "s_nop 0",
                 f"buffer_load_dwordx4 v{4 + j}, s[12:15], s34 offen lds"]
            if j == 2:
                x += ["s_add_u32 s34, s34, 128", "s_sub_u32 s60, s34, 1280", "s_cmp_ge_u32 s34, s62",
                      "s_cselect_b32 s34, s60, s34"]
            g.append(x)
        for j in range(3):
            x = [f"s_add_u32 m0, s{42 + j}, {base}", "s_nop 0",
                 f"buffer_load_dwordx4 v{7 + j}, s[16:19], s35 offen lds"]
            if j == 2:
                x += ["s_add_u32 s35, s35, s36", "s_cmp_ge_u32 s35, s61", "s_cselect_b32 s35, 0, s35"]
            g.append(x)
        return g

    for b in range(3):
        for g in dma_pieces(b):
            for x in g:
                a(x)
    NPF = 0
    if XP_PF > 1:
        NPF = 3
        a("s_lshr_b32 s45, s2, 3")
        a("s_mul_i32 s45, s45, 81920")
        a("v_lshlrev_b32 v2, 7, v0")
        a("buffer_load_dword v160, v2, s[12:15], s45 offen")
        a("v_add_u32 v3, 0x10000, v2")
        a("v_cmp_gt_u32 vcc, 128, v0")
        a("v_bfrev_b32 v22, 1")
        a("v_cndmask_b32 v3, v22, v3, vcc")
        a("buffer_load_dword v161, v3, s[12:15], s45 offen")
        a("v_mul_u32_u24 v2, 21846, v0")
        a("v_lshrrev_b32 v2, 16, v2")
        a("v_mul_u32_u24 v3, 3, v2")
        a("v_sub_u32 v3, v0, v3")
        a("v_lshlrev_b32 v3, 7, v3")
        a("s_mul_i32 s45, s24, 59")
        a("v_add_u32 v2, s45, v2")
        a("v_cmp_gt_u32 vcc, 177, v0")
        a("v_mul_lo_u32 v2, v2, s28")
        a("v_add3_u32 v2, v2, v3, s39")
        a("v_cndmask_b32 v2, v22, v2, vcc")
        a("buffer_load_dword v162, v2, s[16:19], 0 offen")
    a("v_lshrrev_b32 v22, 4, v1")
    a("v_and_b32 v23, 15, v1")
    a("s_mul_i32 s45, s32, 48")
    a("v_add_u32 v2, s45, v23")
    a("v_lshlrev_b32 v2, 7, v2")
    a("v_and_b32 v3, 7, v23")
    a("v_xor_b32 v3, v3, v22")
    a("v_lshlrev_b32 v3, 4, v3")
    a("v_add_u32 v10, v2, v3")
    a("v_xor_b32 v11, 64, v10")
    for b in (1, 2):
        a(f"v_add_u32 v{10 + 2 * b}, {b * K1_STAGE}, v10")
        a(f"v_add_u32 v{11 + 2 * b}, {b * K1_STAGE}, v11")
    a("v_lshlrev_b32 v2, 3, v22")
    a("v_lshrrev_b32 v3, 2, v23")
    a("v_add_u32 v2, v2, v3")
    a("v_mul_u32_u24 v2, 320, v2")
    a("v_and_b32 v3, 3, v23")
    a("v_lshlrev_b32 v3, 3, v3")
    a("s_mul_i32 s45, s33, 160")
    a("s_add_u32 s45, s45, 24576")
    a("v_add3_u32 v2, v2, v3, s45")
    a("v_and_b32 v3, 1, v22")
    a("v_lshlrev_b32 v3, 5, v3")
    a("s_cmp_eq_u32 s33, 0")
    a("s_cselect_b32 s45, 1, -1")
    a("v_mul_lo_u32 v3, v3, s45")
    a("v_add_u32 v16, v2, v3")
    a("v_sub_u32 v17, v2, v3")
    for b in (1, 2):
        a(f"v_add_u32 v{16 + 2 * b}, {b * K1_STAGE}, v16")
        a(f"v_add_u32 v{17 + 2 * b}, {b * K1_STAGE}, v17")

    XF = (24, 36)
    WF = (48, 68)
    ACC = 88

    def reads(buf, sub, st):
        r = []
        for ti in range(3):
            r.append(f"ds_read_b128 {vr(XF[st] + 4 * ti, 4)}, v{10 + 2 * buf + sub} offset:{ti * 2048}")
        for ni in range(5):
            ad = 16 + 2 * buf + (ni & 1)
            off = ni * 32 + sub * 10240
            r.append(f"ds_read_b64_tr_b16 {vr(WF[st] + 4 * ni, 2)}, v{ad} offset:{off}")
            r.append(f"ds_read_b64_tr_b16 {vr(WF[st] + 4 * ni + 2, 2)}, v{ad} offset:{off + 1280}")
        return r

    def mfmas(st, vor, first):
        m = []
        for ni in range(5):
            for ti in range(3):
                d = ACC + 4 * (ni * 3 + ti)
                c = "0" if first else vr(d, 4)
                w = vr(WF[st] + 4 * ni, 4)
                x = vr(XF[st] + 4 * ti, 4)
                if vor:
                    m.append(f"v_mfma_f32_16x16x32_bf16 {vr(d, 4)}, {x}, {w}, {c}")
                else:
                    m.append(f"v_mfma_f32_16x16x32_bf16 {vr(d, 4)}, {w}, {x}, {c}")
        return m

    def phase(ms, rs, ds):
        rs = list(rs)
        ds = list(ds)
        for i, m in enumerate(ms):
            a(m)
            for _ in range(XP_RPM):
                if rs:
                    a(rs.pop(0))
            if ds and i in XP_DSL:
                for x in ds.pop(0):
                    a(x)

    def loop(vor):
        a(f"s_waitcnt vmcnt({12 + NPF})")
        a("s_barrier")
        prof(a, 1)
        for r in reads(0, 0, 0):
            a(r)
        pend = []
        for ks in range(10):
            buf = ks % 3
            a("s_waitcnt lgkmcnt(0)")
            phase(mfmas(0, vor, ks == 0), reads(buf, 1, 1), pend)
            pend = []
            nxt = []
            if ks < 9:
                a(f"s_waitcnt vmcnt({(6 + NPF if ks < 2 else 6) if ks < 8 else 0}) lgkmcnt(0)")
                a("s_barrier")
                prof(a, 2 + ks)
                nxt = reads((ks + 1) % 3, 0, 0)
            else:
                a("s_waitcnt lgkmcnt(0)")
            d = []
            if ks + 3 < 10:
                p = dma_pieces(buf)
                d = p[:3]
                pend = p[3:]
            phase(mfmas(1, vor, False), nxt, d)
        a("s_barrier")
        a("s_nop 7")
        a("s_nop 3")
        prof(a, 11)

    a("s_cmp_eq_u32 s27, 2")
    a("s_cbranch_scc1 K1_VLOOP")
    loop(False)
    a("s_mul_i32 s45, s32, 48")
    a("v_add_u32 v4, s45, v23")
    a("s_cmp_eq_u32 s27, 3")
    a("s_cbranch_scc1 K1_EPI_FFN")
    a("s_cmp_eq_u32 s27, 0")
    a(f"s_cselect_b32 s48, {f32bits(C_SCALE)}, 1.0")
    NO = 148
    a("v_mul_u32_u24 v4, 48, v4")
    a("s_mul_i32 s46, s33, 36864")
    a("v_add_u32 v4, s46, v4")
    for ni in range(5):
        a(f"v_add_u32 v2, {4 * ni}, v22")
        a("v_mul_u32_u24 v3, 13, v2")
        a("v_lshrrev_b32 v3, 6, v3")
        a("v_mul_u32_u24 v5, 5, v3")
        a(f"v_sub_u32 v{NO + 5 + ni}, v2, v5")
        a("v_mul_u32_u24 v3, 9216, v3")
        a(f"v_lshl_add_u32 v3, v{NO + 5 + ni}, 3, v3")
        a(f"v_add_u32 v{NO + ni}, v3, v4")
    a("v_mov_b32 v8, 0x3f803f80")
    a("v_mov_b32 v9, 0x00003f80")
    for ti in range(3):
        for ni in range(5):
            d = ACC + 4 * (ni * 3 + ti)
            for i in range(4):
                a(f"v_mul_f32 v{d + i}, s48, v{d + i}")
            a(f"v_cvt_pk_bf16_f32 v{d}, v{d}, v{d + 1}")
            a(f"v_cvt_pk_bf16_f32 v{d + 1}, v{d + 2}, v{d + 3}")
            a(f"ds_write_b64 v{NO + ni}, {vr(d, 2)} offset:{768 * ti}")
    for ni in range(1, 5):
        a(f"v_cmp_eq_u32 vcc, 4, v{NO + 5 + ni}")
        a("s_and_saveexec_b64 s[50:51], vcc")
        for ti in range(3):
            a(f"ds_write_b64 v{NO + ni}, v[8:9] offset:{768 * ti + 8}")
        a("s_mov_b64 exec, s[50:51]")
    a("s_mul_i32 s52, s26, 9216")
    a("s_and_b32 s46, s25, 3")
    a("s_lshl_b32 s46, s46, 3")
    a("s_add_u32 s46, s46, s26")
    a("s_sub_u32 s57, 2048, s30")
    a("s_min_u32 s57, s57, 192")
    a("s_mul_i32 s57, s57, 3")
    a("s_mov_b32 s56, 0")
    a("s_mov_b32 s58, 1000")
    a("s_cmp_eq_u32 s27, 0")
    a("s_cbranch_scc0 K1_CPK")
    a("s_mul_i32 s53, s46, 98304")
    a("s_mul_i32 s47, s30, 48")
    a("s_add_u32 s53, s53, s47")
    a("s_mov_b32 s54, 0")
    a("s_mov_b32 s55, 0")
    a("s_branch K1_COPY")
    a.label("K1_CPK")
    a(f"s_mul_i32 s53, s46, {HEAD_KV}")
    a("s_mul_i32 s47, s30, 90")
    a("s_add_u32 s53, s53, s47")
    a("s_mov_b32 s54, 683")
    a("s_mov_b32 s55, 1344")
    a("s_branch K1_COPY")
    a.label("K1_EPI_FFN")
    a("v_mul_u32_u24 v4, 336, v4")
    a("s_mul_i32 s46, s33, 160")
    a("v_lshl_add_u32 v4, v22, 3, v4")
    a("v_add_u32 v4, s46, v4")
    for ti in range(3):
        for ni in range(5):
            d = ACC + 4 * (ni * 3 + ti)
            for i in range(4):
                a(f"v_max_f32 v{d + i}, 0, v{d + i}")
            a(f"v_cvt_pk_bf16_f32 v{d}, v{d}, v{d + 1}")
            a(f"v_cvt_pk_bf16_f32 v{d + 1}, v{d + 2}, v{d + 3}")
            a(f"ds_write_b64 v4, {vr(d, 2)} offset:{5376 * ti + 32 * ni}")
    a("s_mul_i32 s52, s26, 8064")
    a("s_mul_i32 s46, s26, 24")
    a("s_add_u32 s46, s46, s30")
    a("s_mul_i32 s53, s46, 3456")
    a("s_lshl_b32 s47, s29, 1")
    a("s_add_u32 s53, s53, s47")
    a("s_mov_b32 s54, 3277")
    a("s_mov_b32 s55, 3136")
    a("s_mov_b32 s56, 16")
    a("s_sub_i32 s57, 2048, s46")
    a("s_max_i32 s57, s57, 0")
    a("s_min_u32 s57, s57, 24")
    a("s_mul_i32 s57, s57, 20")
    a("s_sub_u32 s58, 1728, s29")
    a("s_lshr_b32 s58, s58, 3")
    a("s_branch K1_COPY")
    a.label("K1_VLOOP")
    loop(True)
    a("s_mul_i32 s46, s33, 32256")
    for ni in range(5):
        a(f"v_add_u32 v2, {16 * ni}, v23")
        a("v_mul_u32_u24 v3, 205, v2")
        a("v_lshrrev_b32 v3, 12, v3")
        a("v_mul_u32_u24 v4, 20, v3")
        a(f"v_sub_u32 v{NO + 10 + ni}, v2, v4")
        a("v_mul_u32_u24 v3, 8064, v3")
        a(f"v_lshlrev_b32 v4, 6, v{NO + 10 + ni}")
        a(f"v_add3_u32 v{NO + ni}, v3, v4, s46")
        a(f"v_bfe_u32 v{NO + 5 + ni}, v{NO + 10 + ni}, 2, 2")
    a("v_mov_b32 v8, 0x3f803f80")
    a("v_mov_b32 v9, 0x3f803f80")
    a("s_mul_i32 s45, s32, 48")
    for ti in range(3):
        a(f"s_add_u32 s49, s45, {16 * ti}")
        a("v_lshlrev_b32 v2, 2, v22")
        a("v_add_u32 v2, s49, v2")
        a("v_lshrrev_b32 v3, 5, v2")
        a("v_mul_u32_u24 v3, 1344, v3")
        a("v_bfe_u32 v2, v2, 2, 3")
        a("v_bfe_u32 v4, v2, 1, 1")
        a("v_lshl_add_u32 v10, v4, 3, v3")
        a("v_lshrrev_b32 v4, 1, v2")
        a("v_and_b32 v4, 2, v4")
        a("v_and_b32 v2, 1, v2")
        a("v_or_b32 v11, v2, v4")
        for ni in range(5):
            d = ACC + 4 * (ni * 3 + ti)
            a(f"v_cvt_pk_bf16_f32 v{d}, v{d}, v{d + 1}")
            a(f"v_cvt_pk_bf16_f32 v{d + 1}, v{d + 2}, v{d + 3}")
            a(f"v_xor_b32 v6, v11, v{NO + 5 + ni}")
            a("v_lshlrev_b32 v6, 4, v6")
            a(f"v_add3_u32 v6, v6, v10, v{NO + ni}")
            a(f"ds_write_b64 v6, {vr(d, 2)}")
            if ni < 4:
                a("v_xor_b32 v7, 1, v11")
                a("v_lshlrev_b32 v7, 4, v7")
                a(f"v_add3_u32 v7, v7, v10, v{NO + ni}")
                a(f"v_cmp_eq_u32 vcc, 0, v{NO + 10 + ni}")
                a("s_and_saveexec_b64 s[50:51], vcc")
                a("ds_write_b64 v7, v[8:9] offset:1280")
                a("s_mov_b64 exec, s[50:51]")
    a("s_mul_i32 s52, s26, 8064")
    a("s_and_b32 s46, s25, 3")
    a("s_lshl_b32 s46, s46, 3")
    a("s_add_u32 s46, s46, s26")
    a(f"s_mul_i32 s53, s46, {HEAD_KV}")
    a("s_mul_i32 s47, s30, 90")
    a("s_add_u32 s53, s53, s47")
    a("s_add_u32 s53, s53, 1536")
    a("s_mov_b32 s54, 781")
    a("s_mov_b32 s55, 1536")
    a("s_mov_b32 s56, 0")
    a("s_sub_u32 s57, 2048, s30")
    a("s_min_u32 s57, s57, 192")
    a("s_lshr_b32 s57, s57, 5")
    a("s_mul_i32 s57, s57, 84")
    a("s_mov_b32 s58, 1000")
    a.label("K1_COPY")
    a("s_mov_b32 s59, 20")
    for it in range(9):
        ga = 24 + it
        la = 34 + it
        a(f"v_add_u32 v2, {64 * it}, v1")
        a("v_mul_lo_u32 v3, v2, s54")
        a("v_lshrrev_b32 v3, 16, v3")
        a("v_lshlrev_b32 v4, 4, v2")
        a("v_mul_lo_u32 v5, v3, s55")
        a(f"v_add3_u32 v{ga}, v4, v5, s53")
        a("v_mul_lo_u32 v5, v3, s56")
        a(f"v_add3_u32 v{la}, v4, v5, s52")
        a("v_mul_lo_u32 v5, v3, s59")
        a("v_sub_u32 v5, v2, v5")
        a("v_cmp_gt_u32 vcc, s57, v2")
        a("v_cmp_gt_i32 s[50:51], s58, v5")
        a("s_and_b64 vcc, vcc, s[50:51]")
        a("v_bfrev_b32 v5, 1")
        a(f"v_cndmask_b32 v{ga}, v5, v{ga}, vcc")
    a("s_waitcnt lgkmcnt(0)")
    a("s_barrier")
    for it in range(9):
        a(f"ds_read_b128 {vr(48 + 4 * it, 4)}, v{34 + it}")
    for it in range(9):
        a(f"s_waitcnt lgkmcnt({8 - it})")
        a(f"buffer_store_dwordx4 {vr(48 + 4 * it, 4)}, v{24 + it}, s[20:23], 0 offen sc1")
    a.label("K1_PEND")
    prof(a, 12)
    a.label("K1_END")
    a("s_endpgm")
    return a.text()


GS_SLOT = 9216


class GW:
    VA = 4
    VW = 8
    RA = 13
    RW = 14
    AF = 24
    WF = 40
    ACC = 60


def gw_setup(a, sR0, sC0B, strideA, sLds):
    a("v_lshrrev_b32 v22, 4, v1")
    a("v_and_b32 v23, 15, v1")
    a("v_lshrrev_b32 v2, 2, v1")
    a("v_sub_u32 v3, 0, v22")
    a("v_and_b32 v3, 3, v3")
    a("v_and_b32 v15, 3, v1")
    a("v_xor_b32 v3, v3, v15")
    a("v_lshlrev_b32 v3, 4, v3")
    a(f"v_add_u32 v2, s{sR0}, v2")
    a(f"s_mov_b32 s60, {strideA}")
    a("v_mul_lo_u32 v2, v2, s60")
    a(f"v_add_u32 v{GW.VA}, v2, v3")
    for i in range(1, 4):
        a(f"v_add_u32 v{GW.VA + i}, {16 * i * strideA}, v{GW.VA}")
    for i in range(5):
        a(f"v_add_u32 v2, {64 * i}, v1")
        a("v_mul_u32_u24 v3, 6554, v2")
        a("v_lshrrev_b32 v3, 16, v3")
        a("v_mul_u32_u24 v15, 10, v3")
        a("v_sub_u32 v2, v2, v15")
        a("v_lshlrev_b32 v2, 4, v2")
        a("v_mul_u32_u24 v3, 1280, v3")
        a(f"v_add3_u32 v{GW.VW + i}, v2, v3, s{sC0B}")
    a("v_lshrrev_b32 v2, 2, v23")
    a("v_sub_u32 v2, 0, v2")
    a("v_and_b32 v2, 3, v2")
    a("v_xor_b32 v2, v2, v22")
    a("v_lshlrev_b32 v2, 4, v2")
    a("v_lshl_add_u32 v2, v23, 6, v2")
    a(f"v_add_u32 v{GW.RA}, s{sLds}, v2")
    a("v_lshlrev_b32 v2, 3, v22")
    a("v_lshrrev_b32 v3, 2, v23")
    a("v_add_u32 v2, v2, v3")
    a("v_mul_u32_u24 v2, 160, v2")
    a("v_and_b32 v3, 3, v23")
    a("v_lshlrev_b32 v3, 3, v3")
    a("v_add_u32 v2, 4096, v2")
    a(f"v_add3_u32 v{GW.RW}, v2, v3, s{sLds}")


def gw_issue(a, slot, srdA, srdW, sKA, sKW, sLds):
    for i in range(4):
        a(f"s_add_u32 m0, s{sLds}, {slot * GS_SLOT + i * 1024}")
        a("s_nop 0")
        a(f"buffer_load_dwordx4 v{GW.VA + i}, {sr(srdA, 4)}, s{sKA} offen lds")
    for i in range(5):
        a(f"s_add_u32 m0, s{sLds}, {slot * GS_SLOT + 4096 + i * 1024}")
        a("s_nop 0")
        a(f"buffer_load_dwordx4 v{GW.VW + i}, {sr(srdW, 4)}, s{sKW} offen lds")
    a(f"s_add_u32 s{sKA}, s{sKA}, 64")
    a(f"s_add_u32 s{sKW}, s{sKW}, {32 * 1280}")


def gw_compute(a, slot, first):
    for t in range(4):
        a(f"ds_read_b128 {vr(GW.AF + 4 * t, 4)}, v{GW.RA} offset:{slot * GS_SLOT + t * 1024}")
    for n in range(5):
        off = slot * GS_SLOT + n * 32
        a(f"ds_read_b64_tr_b16 {vr(GW.WF + 4 * n, 2)}, v{GW.RW} offset:{off}")
        a(f"ds_read_b64_tr_b16 {vr(GW.WF + 4 * n + 2, 2)}, v{GW.RW} offset:{off + 640}")
    a("s_waitcnt lgkmcnt(0)")
    for n in range(5):
        for t in range(4):
            d = GW.ACC + 4 * (n * 4 + t)
            c = "0" if first else vr(d, 4)
            a(f"v_mfma_f32_16x16x32_bf16 {vr(d, 4)}, {vr(GW.WF + 4 * n, 4)}, {vr(GW.AF + 4 * t, 4)}, {c}")


def gw_write_partials(a, sRed):
    a("v_mul_u32_u24 v2, 320, v23")
    a("v_lshl_add_u32 v2, v22, 4, v2")
    a(f"v_add_u32 v2, s{sRed}, v2")
    for n in range(5):
        for t in range(4):
            d = GW.ACC + 4 * (n * 4 + t)
            a(f"ds_write_b128 v2, {vr(d, 4)} offset:{t * 5120 + n * 64}")


def gw_read_sum(a, sW4, redbase):
    a("v_lshrrev_b32 v2, 2, v1")
    a(f"s_lshl_b32 s60, s{sW4}, 4")
    a("v_add_u32 v2, s60, v2")
    a("v_mul_u32_u24 v2, 320, v2")
    a("v_and_b32 v3, 3, v1")
    a("v_mul_u32_u24 v3, 80, v3")
    a("v_add_u32 v2, v2, v3")
    if redbase:
        a(f"v_add_u32 v2, {redbase}, v2")
    R = 24
    for src in range(4):
        for j in range(5):
            a(f"ds_read_b128 {vr(R + 20 * src + 4 * j, 4)}, v2 offset:{src * 20480 + j * 16}")
        a("s_waitcnt lgkmcnt(0)")
    for e in range(20):
        a(f"v_add_f32 v{R + e}, v{R + e}, v{R + 20 + e}")
        a(f"v_add_f32 v{R + 40 + e}, v{R + 40 + e}, v{R + 60 + e}")
    for e in range(20):
        a(f"v_add_f32 v{R + e}, v{R + e}, v{R + 40 + e}")


def tile_map(a, sRt, sCt):
    if XP_QX:
        a("s_and_b32 s60, s2, 7")
        a("s_lshr_b32 s61, s2, 3")
        a("s_lshl_b32 s62, s60, 2")
        a("s_lshr_b32 s63, s61, 3")
        a(f"s_add_u32 s{sRt}, s62, s63")
        a(f"s_and_b32 s{sCt}, s61, 7")
        return
    a("s_and_b32 s60, s2, 7")
    a("s_lshr_b32 s61, s2, 3")
    a("s_lshr_b32 s62, s60, 1")
    a("s_lshl_b32 s62, s62, 3")
    a("s_lshr_b32 s63, s61, 2")
    a(f"s_add_u32 s{sRt}, s62, s63")
    a("s_and_b32 s62, s60, 1")
    a("s_lshl_b32 s62, s62, 2")
    a("s_and_b32 s63, s61, 3")
    a(f"s_add_u32 s{sCt}, s62, s63")


K2_BUF = 24576
K2_FFN = 3 * K2_BUF
K2_FLAG = K2_FFN + 4 * 20480
K2_LDS = K2_FLAG + 64


def k2():
    a = Asm()
    a.label("k2_kernel")
    if PROF:
        a("s_memtime s[86:87]")
    a("s_cmp_ge_u32 s2, 256")
    a("s_cbranch_scc1 K2_END")
    a("s_and_b32 s3, s2, 7")
    a("s_lshl_b32 s3, s3, 2")
    a("s_lshr_b32 s4, s2, 3")
    a("s_and_b32 s4, s4, 3")
    a("s_add_u32 s36, s3, s4")
    a("s_lshr_b32 s37, s2, 5")
    if XP_QX:
        a("s_lshr_b32 s36, s2, 3")
        a("s_and_b32 s37, s2, 7")
    a("s_load_dwordx2 s[4:5], s[0:1], 0")
    a("s_load_dwordx2 s[6:7], s[0:1], 48")
    a("s_load_dwordx2 s[8:9], s[0:1], 72")
    a("v_and_b32 v1, 63, v0")
    a("v_lshrrev_b32 v2, 6, v0")
    a("s_nop 0")
    a("v_readfirstlane_b32 s38, v2")
    a("s_waitcnt lgkmcnt(0)")
    a("s_cmp_ge_u32 s38, 8")
    a("s_cbranch_scc1 K2_FFN")
    a("s_setprio 1")
    srd_off(a, 12, 8, 9, WS_KV, SZ_KV)
    srd_off(a, 16, 8, 9, WS_Q, SZ_Q)
    srd_off(a, 20, 8, 9, WS_O, SZ_O)
    srd(a, 24, 4, 5, SZ_X)
    srd(a, 28, 6, 7, 1280)
    srd_off(a, 32, 8, 9, WS_G, SZ_G)
    prof_init(a, 8, 9, 38, 1)
    prof(a, 0)
    a("v_lshlrev_b32 v16, 4, v1")
    a("s_mul_i32 s46, s38, 3072")
    a(f"s_mul_i32 s45, s36, {HEAD_KV}")
    a("s_add_u32 s45, s45, s46")
    a("s_mov_b32 s44, s45")
    a("s_mov_b32 s41, 0")
    a(f"s_mov_b32 s42, {K2_BUF}")
    a(f"s_mov_b32 s43, {2 * K2_BUF}")
    a("s_mov_b32 s40, 0")
    for sg in (41, 42):
        a(f"s_add_u32 m0, s{sg}, s46")
        a("s_nop 0")
        for j in range(3):
            a(f"buffer_load_dwordx4 v16, s[12:15], s44 offen offset:{1024 * j} lds")
        a("s_add_u32 s44, s44, 23040")
    a("v_mov_b32 v2, 0")
    a(f"v_mov_b32 v3, {K2_FLAG}")
    a("ds_write_b32 v3, v2")
    a("v_and_b32 v17, 31, v1")
    a("v_lshrrev_b32 v18, 5, v1")
    a("s_lshl_b32 s47, s37, 8")
    a("s_lshl_b32 s48, s38, 5")
    a("s_add_u32 s47, s47, s48")
    a("v_add_u32 v2, s47, v17")
    a("v_mul_u32_u24 v2, 48, v2")
    a("s_mul_i32 s48, s36, 98304")
    a("v_add_u32 v2, s48, v2")
    a("v_lshl_add_u32 v3, v18, 4, v2")
    a("buffer_load_dwordx4 v[20:23], v3, s[16:19], 0 offen")
    a("buffer_load_dwordx2 v[24:25], v2, s[16:19], 0 offen offset:32")
    a("s_lshl_b32 s48, s37, 8")
    a("s_lshl_b32 s49, s36, 3")
    a("s_add_u32 s48, s48, s49")
    a("s_add_u32 s48, s48, s38")
    a("s_mul_i32 s49, s48, 1280")
    a("v_mul_u32_u24 v2, 20, v1")
    a("buffer_load_dwordx4 v[116:119], v2, s[24:27], s49 offen")
    a("buffer_load_dword v120, v2, s[24:27], s49 offen offset:16")
    a("buffer_load_dwordx4 v[122:125], v2, s[28:31], 0 offen")
    a("buffer_load_dword v126, v2, s[28:31], 0 offen offset:16")
    a("v_mul_u32_u24 v2, 48, v17")
    a("v_lshl_add_u32 v12, v18, 4, v2")
    a("v_add_u32 v13, 32, v2")
    a("v_bfe_u32 v3, v17, 2, 2")
    a("v_lshlrev_b32 v2, 6, v17")
    a("v_add_u32 v2, 1536, v2")
    a("v_xor_b32 v19, v18, v3")
    a("v_lshl_add_u32 v14, v19, 4, v2")
    a("v_add_u32 v19, 2, v18")
    a("v_xor_b32 v19, v19, v3")
    a("v_lshl_add_u32 v15, v19, 4, v2")
    a("s_waitcnt vmcnt(0)")
    a("v_mov_b32 v2, 0")
    for j in range(5):
        xv = 116 + j
        gv = 122 + j
        a(f"v_lshlrev_b32 v3, 16, v{xv}")
        a(f"v_and_b32 v19, 0xffff0000, v{xv}")
        a(f"v_lshlrev_b32 v127, 16, v{gv}")
        a(f"v_and_b32 v128, 0xffff0000, v{gv}")
        a("v_mul_f32 v3, v3, v127")
        a("v_mul_f32 v19, v19, v128")
        a("v_cvt_pk_bf16_f32 v3, v3, v19")
        a("v_lshlrev_b32 v19, 16, v3")
        a("v_and_b32 v3, 0xffff0000, v3")
        a("v_add_f32 v2, v2, v19")
        a("v_add_f32 v2, v2, v3")
    for sh in (1, 2, 4, 8):
        a("s_nop 1")
        a(f"v_add_f32_dpp v2, v2, v2 row_shr:{sh} row_mask:0xf bank_mask:0xf")
    a("s_nop 1")
    a("v_add_f32_dpp v2, v2, v2 row_bcast:15 row_mask:0xa bank_mask:0xf")
    a("s_nop 1")
    a("v_add_f32_dpp v2, v2, v2 row_bcast:31 row_mask:0xc bank_mask:0xf")
    a("s_nop 1")
    a("v_cvt_pk_bf16_f32 v2, v2, v2")
    a("v_lshlrev_b32 v2, 16, v2")
    a(f"v_mul_f32 v2, {f32bits(-LOG2E)}, v2")
    a("v_exp_f32 v2, v2")
    a("s_nop 0")
    a("v_add_f32 v2, 1.0, v2")
    a("v_rcp_f32 v2, v2")
    a("s_nop 0")
    a("v_cvt_pk_bf16_f32 v2, v2, v2")
    a("v_lshlrev_b32 v2, 16, v2")
    a("s_lshl_b32 s49, s48, 2")
    a("v_mov_b32 v3, 0")
    a("v_cmp_eq_u32 vcc, 63, v1")
    a("s_and_saveexec_b64 s[50:51], vcc")
    a("buffer_store_dword v2, v3, s[32:35], s49 offen")
    a("s_mov_b64 exec, s[50:51]")
    a("v_cmp_eq_u32 vcc, 0, v18")
    a("s_nop 1")
    a("v_cndmask_b32 v24, 0, v24, vcc")
    a("v_cndmask_b32 v25, 0, v25, vcc")
    a("v_mov_b32 v26, 0")
    a("v_mov_b32 v27, 0")
    a("s_mov_b32 s39, 0")

    QF0, QF1 = 20, 24
    KF = (28, 36)
    VF = (44, 52)
    P = 60
    S = (68, 84)
    O = 100

    def dma_stage(lds_sreg):
        a(f"s_add_u32 m0, s{lds_sreg}, s46")
        a("s_nop 0")
        for j in range(3):
            a(f"buffer_load_dwordx4 v16, s[12:15], s44 offen offset:{1024 * j} lds")
        a("s_add_u32 s44, s44, 23040")

    def set_addrs(dst, sbase):
        for i in range(4):
            a(f"v_add_u32 v{dst + i}, s{sbase}, v{12 + i}")

    def kread(st, idx):
        base = 4 if idx < 8 else 8
        off = (idx % 8) * 2880
        return [f"ds_read_b128 {vr(KF[st], 4)}, v{base} offset:{off}",
                f"ds_read_b128 {vr(KF[st] + 4, 4)}, v{base + 1} offset:{off}"]

    def vread(st, idx):
        base = 4 if idx < 8 else 8
        off = (idx % 8) * 2880
        return [f"ds_read_b128 {vr(VF[st], 4)}, v{base + 2} offset:{off}",
                f"ds_read_b128 {vr(VF[st] + 4, 4)}, v{base + 3} offset:{off}"]

    def qk(st, sst):
        a(f"v_mfma_f32_32x32x16_bf16 {vr(S[sst], 16)}, {vr(KF[st], 4)}, {vr(QF0, 4)}, 0")
        a(f"v_mfma_f32_32x32x16_bf16 {vr(S[sst], 16)}, {vr(KF[st] + 4, 4)}, {vr(QF1, 4)}, {vr(S[sst], 16)}")

    def set_m_from(mreg):
        a(f"v_mov_b32 v3, v{mreg}")
        a("s_nop 1")
        a(f"v_permlane32_swap_b32 v{mreg}, v3")
        a("s_nop 1")
        a(f"v_max_f32 v2, v{mreg}, v3")
        a("v_and_b32 v3, 0xffff0000, v2")
        a("v_sub_f32 v2, v2, v3")
        a("v_and_b32 v19, 0xffff0000, v2")
        a("v_sub_f32 v2, v2, v19")
        a("v_xor_b32 v3, 0x80000000, v3")
        a("v_xor_b32 v19, 0x80000000, v19")
        a("v_xor_b32 v2, 0x80000000, v2")
        a("v_lshrrev_b32 v3, 16, v3")
        a("v_or_b32 v3, v3, v19")
        a("v_lshrrev_b32 v2, 16, v2")
        a("v_cmp_eq_u32 vcc, 0, v18")
        a("s_nop 1")
        a("v_cndmask_b32 v26, 0, v3, vcc")
        a("v_cndmask_b32 v27, 0, v2, vcc")
        a("s_nop 1")

    def start_stream():
        a("s_mov_b32 s44, s45")
        a("s_mov_b32 s41, 0")
        a(f"s_mov_b32 s42, {K2_BUF}")
        a(f"s_mov_b32 s43, {2 * K2_BUF}")
        dma_stage(41)
        dma_stage(42)
        set_addrs(4, 41)
        set_addrs(8, 42)
        a("s_mov_b32 s40, 0")

    def stage_head(lbl):
        a("s_waitcnt vmcnt(0) lgkmcnt(0)")
        a("s_barrier")
        a("s_cmp_ge_u32 s40, 6")
        a(f"s_cbranch_scc1 {lbl}")
        dma_stage(43)
        a.label(lbl)

    def stage_rotate():
        a("s_mov_b32 s47, s41")
        a("s_mov_b32 s41, s42")
        a("s_mov_b32 s42, s43")
        a("s_mov_b32 s43, s47")
        for i in range(4):
            a(f"v_mov_b32 v{4 + i}, v{8 + i}")
        set_addrs(8, 42)
        a("s_add_u32 s40, s40, 1")

    a.label("K2_MAIN")
    prof(a, 1)
    a("s_cmp_eq_u32 s39, 0")
    a("s_cbranch_scc1 K2_STARTED")
    start_stream()
    a.label("K2_STARTED")
    set_addrs(4, 41)
    set_addrs(8, 42)
    for i in range(16):
        a(f"v_mov_b32 v{O + i}, 0")
    for i in range(4):
        a(f"v_mov_b32 v{P + 4 + i}, 0")
        a(f"v_mov_b32 v{VF[1] + 4 + i}, 0")
    a.label("K2_STAGE")
    stage_head("K2_NODMA")
    a("s_cmp_lg_u32 s40, 0")
    a("s_cbranch_scc1 K2_BODY")
    for r in kread(0, 0):
        a(r)
    a("s_cmp_lg_u32 s39, 0")
    a("s_cbranch_scc1 K2_PRIME")
    a("s_waitcnt lgkmcnt(0)")
    qk(0, 0)
    a("s_nop 15")
    a("s_nop 3")
    s0 = S[0]
    a(f"v_max3_f32 v116, v{s0}, v{s0 + 1}, v{s0 + 2}")
    for i in range(3, 15, 2):
        a(f"v_max3_f32 v116, v116, v{s0 + i}, v{s0 + i + 1}")
    a(f"v_max_f32 v116, v116, v{s0 + 15}")
    set_m_from(116)
    a.label("K2_PRIME")
    for r in kread(1, 1):
        a(r)
    for r in vread(0, 0):
        a(r)
    a("s_waitcnt lgkmcnt(4)")
    qk(0, 0)
    a("s_nop 15")
    prof(a, 2)
    a.label("K2_BODY")

    def body(par):
        for t in range(8):
            c = t % 2
            n = 1 - c
            sc = S[c]
            sn = S[n]

            def ex(lo):
                for i in range(lo, lo + 4):
                    a(f"v_exp_f32 v{sc + i}, v{sc + i}")

            def cv(lo):
                for i in range(lo, lo + 4):
                    a(f"v_cvt_pk_bf16_f32 v{P + i}, v{sc + 2 * i}, v{sc + 2 * i + 1}")
            if XP_PRIO:
                a(f"s_setprio {2 if (t & 1) == par else 1}")
            ex(0)
            a(f"v_mfma_f32_32x32x16_bf16 {vr(O, 16)}, {vr(VF[n] + 4, 4)}, {vr(P + 4, 4)}, {vr(O, 16)}")
            ex(4)
            a("s_waitcnt lgkmcnt(2)")
            a(f"v_mfma_f32_32x32x16_bf16 {vr(sn, 16)}, {vr(KF[n], 4)}, {vr(QF0, 4)}, 0")
            cv(0)
            if not XP_NOLDS:
                for r in kread(c, t + 2):
                    a(r)
                for r in vread(n, t + 1):
                    a(r)
            ex(8)
            a(f"v_mfma_f32_32x32x16_bf16 {vr(sn, 16)}, {vr(KF[n] + 4, 4)}, {vr(QF1, 4)}, {vr(sn, 16)}")
            ex(12)
            a("s_waitcnt lgkmcnt(4)")
            a(f"v_mfma_f32_32x32x16_bf16 {vr(O, 16)}, {vr(VF[c], 4)}, {vr(P, 4)}, {vr(O, 16)}")
            cv(4)

    if XP_PRIO:
        a("s_cmp_ge_u32 s38, 4")
        a("s_cbranch_scc1 K2_BODY1")
        body(0)
        a("s_branch K2_BODYE")
        a.label("K2_BODY1")
        body(1)
        a.label("K2_BODYE")
    else:
        body(0)
    stage_rotate()
    if PROF:
        a("s_memtime s[88:89]")
        a("s_waitcnt lgkmcnt(0)")
        a("v_mov_b32 v2, s88")
        a("s_lshl_b32 s90, s40, 2")
        a("v_mov_b32 v3, s90")
        a("buffer_store_dword v2, v3, s[92:95], s91 offen offset:8")
    a("s_cmp_lt_u32 s40, 8")
    a("s_cbranch_scc1 K2_STAGE")
    a("s_nop 1")
    a(f"v_mfma_f32_32x32x16_bf16 {vr(O, 16)}, {vr(VF[1] + 4, 4)}, {vr(P + 4, 4)}, {vr(O, 16)}")
    a("s_nop 15")
    a("s_nop 3")
    a("s_cmp_lg_u32 s39, 0")
    a("s_cbranch_scc1 K2_EPI")
    a("v_mov_b32 v2, 0")
    for i in range(9):
        a(f"v_fma_f32 v2, v{O + i}, 0, v2")
    a("v_mov_b32 v3, 0")
    for i in range(9, 12):
        a(f"v_fma_f32 v3, v{O + i}, 0, v3")
    a("v_cmp_eq_u32 vcc, 0, v18")
    a("s_nop 1")
    a("v_cndmask_b32 v3, 0, v3, vcc")
    a("v_add_f32 v2, v2, v3")
    a("v_cmp_u_f32 vcc, v2, v2")
    a("s_nop 4")
    a("s_cbranch_vccz K2_VOTE")
    a("v_mov_b32 v2, 1")
    a(f"v_mov_b32 v3, {K2_FLAG}")
    a("ds_write_b32 v3, v2")
    a.label("K2_VOTE")
    a("s_branch K2_EPI")
    a.label("K2_FALL")
    a("s_barrier")
    a("v_mov_b32 v26, 0")
    a("v_mov_b32 v27, 0")
    a(f"v_mov_b32 v117, {f32bits(float('-inf'))}")
    start_stream()
    a.label("K2_MSTAGE")
    stage_head("K2_MNODMA")
    for t in range(8):
        for r in kread(0, t):
            a(r)
        a("s_waitcnt lgkmcnt(0)")
        qk(0, 0)
        a("s_nop 15")
        a("s_nop 3")
        for i in range(0, 16, 2):
            a(f"v_max3_f32 v117, v117, v{s0 + i}, v{s0 + i + 1}")
    stage_rotate()
    a("s_cmp_lt_u32 s40, 8")
    a("s_cbranch_scc1 K2_MSTAGE")
    set_m_from(117)
    a("s_mov_b32 s39, 1")
    a("s_waitcnt vmcnt(0) lgkmcnt(0)")
    a("s_barrier")
    a("s_branch K2_MAIN")
    a.label("K2_EPI")
    a(f"v_mov_b32 v2, v{O + 8}")
    a(f"v_mov_b32 v3, v{O + 8}")
    a("s_nop 1")
    a("v_permlane32_swap_b32 v2, v3")
    a("s_nop 1")
    a("v_rcp_f32 v3, v3")
    a("s_nop 0")
    for i in range(12):
        a(f"v_mul_f32 v{O + i}, v{O + i}, v3")
    for i in range(6):
        a(f"v_cvt_pk_bf16_f32 v{P + i}, v{O + 2 * i}, v{O + 2 * i + 1}")
    a("s_lshl_b32 s47, s37, 8")
    a("s_lshl_b32 s48, s38, 5")
    a("s_add_u32 s47, s47, s48")
    a("v_add_u32 v2, s47, v17")
    a("v_mul_u32_u24 v2, 1280, v2")
    a("s_mul_i32 s48, s36, 40")
    a("v_lshl_add_u32 v2, v18, 3, v2")
    a("v_add_u32 v2, s48, v2")
    a(f"buffer_store_dwordx2 {vr(P, 2)}, v2, s[20:23], 0 offen")
    a(f"buffer_store_dwordx2 {vr(P + 2, 2)}, v2, s[20:23], 0 offen offset:16")
    a("v_cmp_eq_u32 vcc, 0, v18")
    a("s_and_saveexec_b64 s[50:51], vcc")
    a(f"buffer_store_dwordx2 {vr(P + 4, 2)}, v2, s[20:23], 0 offen offset:32")
    a("s_mov_b64 exec, s[50:51]")
    a("s_cmp_lg_u32 s39, 0")
    a("s_cbranch_scc1 K2_PEND")
    a("s_waitcnt lgkmcnt(0)")
    a("s_barrier")
    a(f"v_mov_b32 v3, {K2_FLAG}")
    a("ds_read_b32 v2, v3")
    a("s_waitcnt lgkmcnt(0)")
    a("v_readfirstlane_b32 s47, v2")
    a("s_cmp_lg_u32 s47, 0")
    a("s_cbranch_scc1 K2_FALL")
    a.label("K2_PEND")
    prof(a, 12)
    a.label("K2_END")
    a("s_endpgm")
    a.label("K2_FFN")
    if XP_NOFFN:
        a("s_endpgm")
    a("s_load_dwordx2 s[6:7], s[0:1], 40")
    a("s_load_dwordx2 s[52:53], s[0:1], 16")
    tile_map(a, 36, 37)
    a("s_sub_u32 s38, s38, 8")
    a("s_lshl_b32 s39, s36, 6")
    a("s_mul_i32 s40, s37, 160")
    a("s_mul_i32 s41, s38, 20480")
    a(f"s_add_u32 s41, s41, {K2_FFN}")
    a("s_mul_i32 s42, s38, 14")
    a("s_cmp_eq_u32 s38, 3")
    a("s_cselect_b32 s42, 41, s42")
    a("s_lshl_b32 s45, s42, 6")
    a(f"s_mul_i32 s46, s42, {32 * 1280}")
    a("s_waitcnt lgkmcnt(0)")
    srd(a, 16, 6, 7, SZ_W2)
    srd_off(a, 24, 8, 9, WS_H, SZ_H)
    srd_off(a, 28, 8, 9, WS_B, SZ_B)
    gw_setup(a, 39, 40, 3456, 41)
    j = 0
    for k, ns in enumerate(XP_FS):
        a("s_barrier")
        if k == 0:
            gw_issue(a, 0, 24, 16, 45, 46, 41)
        if k == 1 and XP_PF and not XP_QX:
            srd(a, 52, 52, 53, SZ_WO)
            a("s_mul_i32 s56, s2, 3200")
            a("v_and_b32 v3, 255, v0")
            a("v_lshlrev_b32 v2, 7, v3")
            a("v_cmp_gt_u32 vcc, 25, v3")
            a("v_bfrev_b32 v3, 1")
            a("v_cndmask_b32 v2, v3, v2, vcc")
            a("buffer_load_dword v141, v2, s[52:55], s56 offen")
        for _ in range(ns):
            if j < 13:
                gw_issue(a, (j + 1) & 1, 24, 16, 45, 46, 41)
                a("s_waitcnt vmcnt(9)")
            else:
                a("s_waitcnt vmcnt(0)")
                a("s_cmp_ge_u32 s38, 2")
                a("s_cbranch_scc1 K2_FSKIP")
            gw_compute(a, j & 1, j == 0)
            j += 1
    assert j == 14
    a.label("K2_FSKIP")
    a("s_nop 7")
    a("s_nop 3")
    a("s_waitcnt vmcnt(0)")
    gw_write_partials(a, 41)
    a("s_waitcnt lgkmcnt(0)")
    a("s_barrier")
    gw_read_sum(a, 38, K2_FFN)
    for e in range(0, 20, 2):
        a(f"v_cvt_pk_bf16_f32 v{112 + e // 2}, v{24 + e}, v{25 + e}")
    a("s_lshl_b32 s42, s36, 3")
    a("s_add_u32 s42, s42, s37")
    a("s_lshl_b32 s42, s42, 2")
    a("s_add_u32 s42, s42, s38")
    a("s_mul_i32 s42, s42, 2560")
    a("v_mul_u32_u24 v2, 40, v1")
    a("v_add_u32 v2, s42, v2")
    a("buffer_store_dwordx4 v[112:115], v2, s[28:31], 0 offen")
    a("buffer_store_dwordx4 v[116:119], v2, s[28:31], 0 offen offset:16")
    a("buffer_store_dwordx2 v[120:121], v2, s[28:31], 0 offen offset:32")
    if XP_QX and XP_PF:
        srd(a, 52, 52, 53, SZ_WO)
        a("s_lshr_b32 s56, s2, 3")
        a("s_mul_i32 s56, s56, 25600")
        a("v_and_b32 v3, 255, v0")
        a("v_lshlrev_b32 v2, 7, v3")
        a("v_cmp_gt_u32 vcc, 200, v3")
        a("v_bfrev_b32 v3, 1")
        a("v_cndmask_b32 v2, v3, v2, vcc")
        a("buffer_load_dword v141, v2, s[52:55], s56 offen")
        a("s_waitcnt vmcnt(0)")
    a("s_endpgm")
    return a.text()


def wmap(a, dst, sC0B):
    a("v_mul_u32_u24 v3, 6554, v2")
    a("v_lshrrev_b32 v3, 16, v3")
    a("v_mul_u32_u24 v15, 10, v3")
    a("v_sub_u32 v2, v2, v15")
    a("v_lshrrev_b32 v15, 1, v3")
    a("v_and_b32 v15, 4, v15")
    a("v_xor_b32 v3, v3, v15")
    a("v_lshlrev_b32 v2, 4, v2")
    a("v_mul_u32_u24 v3, 1280, v3")
    a(f"v_add3_u32 v{dst}, v2, v3, s{sC0B}")


def wread_addr(a, d0, d1, sBase):
    a("v_lshlrev_b32 v2, 3, v22")
    a("v_lshrrev_b32 v3, 2, v23")
    a("v_add_u32 v2, v2, v3")
    a("v_mul_u32_u24 v2, 160, v2")
    a("v_and_b32 v3, 3, v23")
    a("v_lshlrev_b32 v3, 3, v3")
    a(f"v_add3_u32 v2, v2, v3, s{sBase}")
    a("v_and_b32 v3, 1, v22")
    a("v_mul_u32_u24 v3, 640, v3")
    a(f"v_add_u32 v{d0}, v2, v3")
    a("v_sub_u32 v2, v2, v3")
    a(f"v_add_u32 v{d1}, 640, v2")


K3_STG = 36864
K3_B = 4 * K3_STG
K3_LDS = K3_B + 10240


def k3():
    a = Asm()
    a.label("k3_kernel")
    if PROF:
        a("s_memtime s[86:87]")
    a("s_cmp_ge_u32 s2, 256")
    a("s_cbranch_scc1 K3_END")
    a("s_load_dwordx2 s[4:5], s[0:1], 16")
    a("s_load_dwordx2 s[8:9], s[0:1], 72")
    a("s_load_dwordx2 s[10:11], s[0:1], 56")
    tile_map(a, 36, 37)
    a("v_and_b32 v1, 63, v0")
    a("v_lshrrev_b32 v2, 6, v0")
    a("v_lshrrev_b32 v22, 4, v1")
    a("v_readfirstlane_b32 s38, v2")
    a("v_and_b32 v23, 15, v1")
    a("s_lshl_b32 s39, s36, 6")
    a("s_mul_i32 s40, s37, 160")
    a("s_and_b32 s49, s38, 3")
    a("s_lshr_b32 s50, s38, 2")
    a("s_lshl_b32 s42, s38, 3")
    for j in range(2):
        a(f"s_add_u32 s43, s42, {4 * j}")
        a("v_add_u32 v2, s43, v22")
        a("v_and_b32 v3, 15, v2")
        a("v_xor_b32 v3, v3, v23")
        a("v_add_u32 v2, s39, v2")
        a("v_mul_u32_u24 v2, 1280, v2")
        a(f"v_lshl_add_u32 v{4 + j}, v3, 4, v2")
    a("s_add_u32 s43, s38, 8")
    a("s_add_u32 s44, s38, 16")
    a("s_cmp_lt_u32 s38, 4")
    a("s_cselect_b32 s44, s44, s43")
    for j, sp in enumerate((38, 43, 44)):
        a(f"s_lshl_b32 s51, s{sp}, 6")
        a("v_add_u32 v2, s51, v1")
        wmap(a, 8 + j, 40)
        a(f"s_lshl_b32 s{52 + j}, s{sp}, 10")
        a(f"s_add_u32 s{52 + j}, s{52 + j}, 16384")
    a("s_lshl_b32 s45, s38, 11")
    a("s_waitcnt lgkmcnt(0)")
    srd(a, 12, 4, 5, SZ_WO)
    srd_off(a, 20, 8, 9, WS_O, SZ_O)
    srd_off(a, 24, 8, 9, WS_B, SZ_B)
    srd_off(a, 28, 8, 9, WS_G, SZ_G)
    srd(a, 32, 10, 11, SZ_OUT)
    prof_init(a, 8, 9, 38, 2)
    prof(a, 0)

    def issue(stage, slot):
        a(f"s_mov_b32 s47, {stage * 256}")
        a(f"s_mov_b32 s48, {stage * 128 * 1280}")
        for j in range(2):
            a(f"s_add_u32 m0, s45, {slot * K3_STG + j * 1024}")
            a("s_nop 0")
            a(f"buffer_load_dwordx4 v{4 + j}, s[20:23], s47 offen lds")
        for j in range(3):
            a(f"s_add_u32 m0, s{52 + j}, {slot * K3_STG}")
            a("s_nop 0")
            a(f"buffer_load_dwordx4 v{8 + j}, s[12:15], s48 offen lds")

    for st in range(4):
        issue(st, st)
    a("s_lshl_b32 s42, s36, 3")
    a("s_add_u32 s42, s42, s37")
    a("s_lshl_b32 s42, s42, 3")
    a("s_add_u32 s42, s42, s38")
    a("s_mul_i32 s42, s42, 1280")
    a("s_mul_i32 s43, s38, 1280")
    a("v_lshlrev_b32 v2, 4, v1")
    a("v_lshlrev_b32 v3, 2, v1")
    a(f"s_add_u32 m0, s43, {K3_B}")
    a("s_nop 0")
    a("buffer_load_dwordx4 v2, s[24:27], s42 offen lds")
    a("buffer_load_dword v3, s[24:27], s42 offen offset:1024 lds")
    a("s_lshl_b32 s42, s49, 4")
    a("v_add_u32 v2, s42, v23")
    a("v_add_u32 v3, s39, v2")
    a("v_lshlrev_b32 v3, 2, v3")
    a("buffer_load_dword v16, v3, s[28:31], 0 offen")
    a("v_mul_u32_u24 v2, 160, v2")
    a("v_lshl_add_u32 v2, v22, 3, v2")
    a("s_mul_i32 s43, s50, 96")
    a(f"s_add_u32 s43, s43, {K3_B}")
    a("v_add_u32 v17, s43, v2")
    for j in range(2):
        a("s_mul_i32 s43, s38, 80")
        a(f"s_add_u32 s43, s43, {64 * j}")
        a("v_add_u32 v2, s43, v1")
        a("v_mul_u32_u24 v3, 6554, v2")
        a("v_lshrrev_b32 v3, 16, v3")
        a("v_mul_u32_u24 v15, 10, v3")
        a("v_sub_u32 v15, v2, v15")
        a("v_lshlrev_b32 v15, 4, v15")
        a("v_add_u32 v3, s39, v3")
        a("v_mul_u32_u24 v3, 1280, v3")
        a(f"v_add3_u32 v{12 + j}, v3, v15, s40")
        a("v_lshlrev_b32 v2, 4, v2")
        a(f"v_add_u32 v{32 + j}, {K3_B}, v2")
    BV = 104
    RA, RW = 24, 28
    a("s_lshl_b32 s43, s49, 12")
    a("v_lshlrev_b32 v2, 8, v23")
    a("v_add_u32 v2, s43, v2")
    a("s_lshl_b32 s43, s50, 3")
    for i in range(2):
        a(f"s_add_u32 s44, s43, {4 * i}")
        a("v_add_u32 v3, s44, v22")
        a("v_xor_b32 v3, v3, v23")
        a(f"v_lshl_add_u32 v{RA + i}, v3, 4, v2")
        a(f"v_add_u32 v{RA + 2 + i}, {2 * K3_STG}, v{RA + i}")
    a("s_mul_i32 s43, s50, 10240")
    a("s_add_u32 s43, s43, 16384")
    wread_addr(a, RW, RW + 1, 43)
    a(f"v_add_u32 v{RW + 2}, {2 * K3_STG}, v{RW}")
    a(f"v_add_u32 v{RW + 3}, {2 * K3_STG}, v{RW + 1}")
    a("v_lshlrev_b32 v21, 4, v1")
    a("s_mul_i32 s43, s49, 5120")
    a(f"s_add_u32 s43, s43, {K3_STG}")
    a("v_add_u32 v21, s43, v21")
    AF = (36, 40)
    WF = (44, 64)
    ACC = 84

    def reads(t):
        st, i = t >> 1, t & 1
        slot = st % 4
        hi = slot >> 1
        so = (slot & 1) * K3_STG
        r = [f"ds_read_b128 {vr(AF[i], 4)}, v{RA + 2 * hi + i} offset:{so}"]
        for n in range(5):
            off = so + i * 5120 + n * 32
            r.append(f"ds_read_b64_tr_b16 {vr(WF[i] + 4 * n, 2)}, v{RW + 2 * hi} offset:{off}")
            r.append(f"ds_read_b64_tr_b16 {vr(WF[i] + 4 * n + 2, 2)}, v{RW + 2 * hi + 1} offset:{off}")
        return r

    def mf(t):
        for n in range(5):
            d = ACC + 4 * n
            c = "0" if t == 0 else vr(d, 4)
            a(f"v_mfma_f32_16x16x32_bf16 {vr(d, 4)}, {vr(WF[t & 1] + 4 * n, 4)}, {vr(AF[t & 1], 4)}, {c}")

    a("s_waitcnt vmcnt(18)")
    a("s_barrier")
    prof(a, 1)
    for r in reads(0) + reads(1):
        a(r)
    a("s_waitcnt vmcnt(3) lgkmcnt(0)")
    a("s_barrier")
    prof(a, 2)
    issue(4, 0)
    mf(0)
    for r in reads(2):
        a(r)
    mf(1)
    for t in range(2, 10):
        if t == 7:
            a("s_waitcnt vmcnt(0)")
            a("s_barrier")
            prof(a, 3)
        if t < 9:
            for r in reads(t + 1):
                a(r)
            a("s_waitcnt lgkmcnt(11)")
        else:
            a("s_waitcnt lgkmcnt(0)")
        mf(t)
    a("v_sub_f32 v18, 1.0, v16")
    a("v_cvt_pk_bf16_f32 v18, v18, v18")
    a("v_lshlrev_b32 v18, 16, v18")
    a("s_nop 7")
    prof(a, 6)
    XR = 44
    a("s_cmp_eq_u32 s50, 0")
    a("s_cbranch_scc0 K3_X1")
    for n in (3, 4):
        a(f"ds_write_b128 v21, {vr(ACC + 4 * n, 4)} offset:{1024 * n}")
    a("s_waitcnt lgkmcnt(0)")
    a("s_barrier")
    for n in range(3):
        a(f"ds_read_b128 {vr(XR + 4 * n, 4)}, v21 offset:{1024 * n}")
    a("s_branch K3_FIN")
    a.label("K3_X1")
    for n in range(3):
        a(f"ds_write_b128 v21, {vr(ACC + 4 * n, 4)} offset:{1024 * n}")
    a("s_waitcnt lgkmcnt(0)")
    a("s_barrier")
    for n in (3, 4):
        a(f"ds_read_b128 {vr(XR + 4 * (n - 3), 4)}, v21 offset:{1024 * n}")
    for i in range(8):
        a(f"v_mov_b32 v{ACC + i}, v{ACC + 12 + i}")
    a.label("K3_FIN")
    for n in range(3):
        a(f"ds_read_b64 {vr(BV + 2 * n, 2)}, v17 offset:{32 * n}")
    a("s_waitcnt lgkmcnt(0)")
    for n in range(3):
        if n == 2:
            a("s_cmp_eq_u32 s50, 0")
            a("s_cbranch_scc0 K3_CP")
        for i in range(4):
            a(f"v_add_f32 v{ACC + 4 * n + i}, v{ACC + 4 * n + i}, v{XR + 4 * n + i}")
        for h in range(2):
            e = ACC + 4 * n + 2 * h
            bp = BV + 2 * n + h
            a(f"v_cvt_pk_bf16_f32 v19, v{e}, v{e + 1}")
            a("v_lshlrev_b32 v4, 16, v19")
            a("v_and_b32 v5, 0xffff0000, v19")
            a(f"v_lshlrev_b32 v6, 16, v{bp}")
            a(f"v_and_b32 v7, 0xffff0000, v{bp}")
            a("v_mul_f32 v4, v16, v4")
            a("v_mul_f32 v5, v16, v5")
            a("v_mul_f32 v6, v18, v6")
            a("v_mul_f32 v7, v18, v7")
            a("v_cvt_pk_bf16_f32 v19, v4, v5")
            a("v_cvt_pk_bf16_f32 v20, v6, v7")
            a("v_lshlrev_b32 v4, 16, v19")
            a("v_and_b32 v5, 0xffff0000, v19")
            a("v_lshlrev_b32 v6, 16, v20")
            a("v_and_b32 v7, 0xffff0000, v20")
            a("v_add_f32 v4, v4, v6")
            a("v_add_f32 v5, v5, v7")
            a(f"v_cvt_pk_bf16_f32 v{bp}, v4, v5")
        a(f"ds_write_b64 v17, {vr(BV + 2 * n, 2)} offset:{32 * n}")
    a.label("K3_CP")
    a("s_waitcnt lgkmcnt(0)")
    a("s_barrier")
    a("ds_read_b128 v[4:7], v32")
    a("ds_read_b128 v[8:11], v33")
    a("s_waitcnt lgkmcnt(1)")
    a("buffer_store_dwordx4 v[4:7], v12, s[32:35], 0 offen")
    a("v_cmp_gt_u32 vcc, 16, v1")
    a("s_and_saveexec_b64 s[50:51], vcc")
    a("s_waitcnt lgkmcnt(0)")
    a("buffer_store_dwordx4 v[8:11], v13, s[32:35], 0 offen")
    a("s_mov_b64 exec, s[50:51]")
    a.label("K3_PEND")
    prof(a, 12)
    a.label("K3_END")
    a("s_endpgm")
    return a.text()


def desc(name, vgpr, sgpr=96):
    acc = (vgpr + 3) // 4 * 4
    return f""".amdhsa_kernel {name}
  .amdhsa_next_free_vgpr {vgpr}
  .amdhsa_next_free_sgpr {sgpr}
  .amdhsa_accum_offset {acc}
  .amdhsa_group_segment_fixed_size 0
  .amdhsa_kernarg_size 80
  .amdhsa_user_sgpr_count 2
  .amdhsa_user_sgpr_kernarg_segment_ptr 1
  .amdhsa_system_sgpr_workgroup_id_x 1
.end_amdhsa_kernel
"""


def main():
    hdr = f"""; gated_mix__mha_block__dense_activation_relu__prompt : 3 kernels (generated by gen.py, hand-designed)
; @launch kernel=k1_kernel grid=(256,1,1) block=(512,1,1) lds={K1_LDS}
; @launch kernel=k2_kernel grid=(256,1,1) block=(768,1,1) lds={K2_LDS}
; @launch kernel=k3_kernel grid=(256,1,1) block=(512,1,1) lds={K3_LDS}
.amdgcn_target "amdgcn-amd-amdhsa--gfx950"
.text
"""
    body = ""
    for name, fn in (("k1_kernel", k1), ("k2_kernel", k2), ("k3_kernel", k3)):
        body += f".globl {name}\n.p2align 8\n.type {name},@function\n" + fn()
    tail = '.section .rodata,"a"\n.p2align 6\n'
    tail += desc("k1_kernel", 168)
    tail += ".p2align 6\n" + desc("k2_kernel", 144)
    tail += ".p2align 6\n" + desc("k3_kernel", 116)
    open(OUT, "w").write(hdr + body + tail)


if __name__ == "__main__":
    main()
```

```python
import struct, sys

OUT = sys.argv[1] if len(sys.argv) > 1 else "gated_mix__mha_block__dense_activation_relu__prompt.s"

WS_Q = 0
SZ_Q = 32 * 2048 * 48
WS_KV = 0x400000
HEAD_KV = 64 * 2880
SZ_KV = 32 * HEAD_KV
WS_H = 0xC00000
SZ_H = 2048 * 3456
WS_O = 0x1400000
SZ_O = 2048 * 1280
WS_G = 0x1800000
SZ_G = 2048 * 4
WS_B = 0x1A00000
SZ_B = 2048 * 1280
WS_WO = 0x1E00000

SZ_X = 2048 * 1280
SZ_WQKV = 640 * 3840
SZ_WO = 640 * 1280
SZ_W1 = 640 * 3456
SZ_W2 = 1728 * 1280
SZ_OUT = 2048 * 1280


def f32bits(x):
    return struct.unpack("<I", struct.pack("<f", x))[0]


C_SCALE = 1.4426950408889634 / (20 ** 0.5)
LOG2E = 1.4426950408889634


PROF = int(__import__("os").environ.get("PROF", "0"))
WS_T = 0x2000000
XP_PF = int(__import__("os").environ.get("XP_PF", "0"))
XP_ROT = int(__import__("os").environ.get("XP_ROT", "1"))
XP_PRIO = int(__import__("os").environ.get("XP_PRIO", "0"))
XP_RPM = int(__import__("os").environ.get("XP_RPM", "1"))
XP_DSL = eval(__import__("os").environ.get("XP_DSL", "(7, 10, 13)"))
XP_FDEL = int(__import__("os").environ.get("XP_FDEL", "1"))
XP_FS = eval(__import__("os").environ.get("XP_FS", "(2, 2, 2, 2, 2, 2, 2)"))
XP_QX = int(__import__("os").environ.get("XP_QX", "0"))
XP_NOLDS = int(__import__("os").environ.get("XP_NOLDS", "0"))
XP_NOFFN = int(__import__("os").environ.get("XP_NOFFN", "0"))


def prof_init(a, wsl, wsh, wave_s, kidx=0):
    if not PROF:
        return
    a(f"s_add_u32 s92, s{wsl}, {WS_T + kidx * 0x100000}")
    a(f"s_addc_u32 s93, s{wsh}, 0")
    a("s_and_b32 s93, s93, 0xffff")
    a("s_mov_b32 s94, 0x100000")
    a("s_mov_b32 s95, 0x00020000")
    a("s_lshl_b32 s91, s2, 4")
    a(f"s_add_u32 s91, s91, s{wave_s}")
    a("s_lshl_b32 s91, s91, 7")


def prof(a, slot, tmpv=2):
    if not PROF:
        return
    a("s_memtime s[88:89]")
    a("s_waitcnt lgkmcnt(0)")
    a(f"v_mov_b32 v{tmpv}, s88")
    a(f"v_mov_b32 v{tmpv + 1}, 0")
    a(f"buffer_store_dword v{tmpv}, v{tmpv + 1}, s[92:95], s91 offen offset:{4 * slot}")
    if slot == 0:
        a(f"v_mov_b32 v{tmpv}, s86")
        a(f"buffer_store_dword v{tmpv}, v{tmpv + 1}, s[92:95], s91 offen offset:60")
    if slot in (0, 12):
        a("s_memrealtime s[88:89]")
        a("s_waitcnt lgkmcnt(0)")
        a(f"v_mov_b32 v{tmpv}, s88")
        a(f"buffer_store_dword v{tmpv}, v{tmpv + 1}, s[92:95], s91 offen offset:{4 * (13 if slot == 0 else 14)}")


class Asm:
    def __init__(self):
        self.lines = []

    def __call__(self, s):
        self.lines.append("    " + s)

    def label(self, l):
        self.lines.append(l + ":")

    def c(self, s):
        self.lines.append("    ; " + s)

    def text(self):
        return "\n".join(self.lines) + "\n"


def vr(b, n=1):
    return f"v{b}" if n == 1 else f"v[{b}:{b + n - 1}]"


def sr(b, n=1):
    return f"s{b}" if n == 1 else f"s[{b}:{b + n - 1}]"


def srd(a, d, lo, hi, size):
    a(f"s_mov_b32 s{d}, s{lo}")
    a(f"s_and_b32 s{d + 1}, s{hi}, 0xffff")
    a(f"s_mov_b32 s{d + 2}, {size}")
    a(f"s_mov_b32 s{d + 3}, 0x00020000")


def srd_off(a, d, lo, hi, off, size):
    a(f"s_add_u32 s{d}, s{lo}, {off}")
    a(f"s_addc_u32 s{d + 1}, s{hi}, 0")
    a(f"s_and_b32 s{d + 1}, s{d + 1}, 0xffff")
    a(f"s_mov_b32 s{d + 2}, {size}")
    a(f"s_mov_b32 s{d + 3}, 0x00020000")


K1_STAGE = 45056
K1_LDS = 3 * K1_STAGE


def k1():
    a = Asm()
    a.label("k1_kernel")
    if PROF:
        a("s_memtime s[86:87]")
    a("s_cmp_ge_u32 s2, 256")
    a("s_cbranch_scc1 K1_END")
    a("s_and_b32 s3, s2, 7")
    a("s_lshr_b32 s4, s2, 3")
    a("s_lshl_b32 s3, s3, 5")
    a("s_add_u32 s3, s3, s4")
    a("s_cmp_ge_u32 s3, 253")
    a("s_cbranch_scc1 K1_PACK")
    a("s_mul_i32 s25, s3, 373")
    a("s_lshr_b32 s25, s25, 12")
    a("s_mul_i32 s4, s25, 11")
    a("s_sub_u32 s24, s3, s4")
    a("s_load_dwordx2 s[4:5], s[0:1], 0")
    a("s_load_dwordx2 s[6:7], s[0:1], 8")
    a("s_load_dwordx2 s[8:9], s[0:1], 32")
    a("s_load_dwordx2 s[10:11], s[0:1], 72")
    a("v_and_b32 v1, 63, v0")
    a("v_lshrrev_b32 v2, 6, v0")
    a("s_nop 0")
    a("v_readfirstlane_b32 s26, v2")
    a("s_lshr_b32 s27, s25, 2")
    a("s_min_u32 s27, s27, 3")
    a("s_mul_i32 s30, s24, 192")
    a("s_waitcnt lgkmcnt(0)")
    srd(a, 12, 4, 5, SZ_X)
    a("s_sub_u32 s29, s25, 12")
    a(f"s_mov_b32 s18, {SZ_W1}")
    a("s_mov_b32 s28, 3456")
    a("s_cmp_lt_u32 s25, 12")
    a("s_cselect_b32 s16, s6, s8")
    a("s_cselect_b32 s17, s7, s9")
    a(f"s_cselect_b32 s18, {SZ_WQKV}, s18")
    a("s_cselect_b32 s28, 3840, s28")
    a("s_cselect_b32 s29, s25, s29")
    a("s_and_b32 s17, s17, 0xffff")
    a("s_mov_b32 s19, 0x00020000")
    a("s_mul_i32 s29, s29, 160")
    a(f"s_mov_b32 s31, {WS_KV}")
    a(f"s_mov_b32 s22, {SZ_KV}")
    a("s_cmp_eq_u32 s27, 0")
    a(f"s_cselect_b32 s31, {WS_Q}, s31")
    a(f"s_cselect_b32 s22, {SZ_Q}, s22")
    a("s_cmp_eq_u32 s27, 3")
    a(f"s_cselect_b32 s31, {WS_H}, s31")
    a(f"s_cselect_b32 s22, {SZ_H}, s22")
    a("s_add_u32 s20, s10, s31")
    a("s_addc_u32 s21, s11, 0")
    a("s_and_b32 s21, s21, 0xffff")
    a("s_mov_b32 s23, 0x00020000")
    prof_init(a, 10, 11, 26, 0)
    prof(a, 0)
    a("s_lshr_b32 s32, s26, 1")
    a("s_and_b32 s33, s26, 1")
    a("v_lshrrev_b32 v2, 3, v1")
    a("v_and_b32 v3, 7, v1")
    a("v_xor_b32 v3, v3, v2")
    a("v_lshlrev_b32 v3, 4, v3")
    a("v_mul_u32_u24 v2, 1280, v2")
    a("v_add_u32 v4, v2, v3")
    a("v_add_u32 v5, 10240, v4")
    a("v_add_u32 v6, 20480, v4")
    a("s_mul_i32 s34, s26, 24")
    a("s_add_u32 s34, s34, s30")
    a("s_mul_i32 s34, s34, 1280")
    a("s_mov_b32 s35, 0")
    a("s_lshl_b32 s36, s28, 6")
    a("s_add_u32 s62, s34, 1280")
    a("s_mul_i32 s61, s28, 640")
    a("s_add_u32 s60, s24, s25")
    a("s_mul_i32 s63, s60, 43")
    a("s_lshr_b32 s63, s63, 7")
    a("s_mul_i32 s63, s63, 3")
    a("s_sub_u32 s60, s60, s63")
    a(f"s_mul_i32 s60, s60, {XP_ROT}")
    a("s_lshl_b32 s63, s60, 7")
    a("s_add_u32 s34, s34, s63")
    a("s_mul_i32 s35, s60, s36")
    a("s_add_u32 s37, s26, 8")
    a("s_add_u32 s38, s26, 16")
    a("s_cmp_lt_u32 s26, 4")
    a("s_cselect_b32 s38, s38, s37")
    a("s_lshl_b32 s39, s29, 1")
    for j, sidx in enumerate((26, 37, 38)):
        a(f"s_lshl_b32 s40, s{sidx}, 6")
        a("v_add_u32 v2, s40, v1")
        a("v_mul_u32_u24 v3, 3277, v2")
        a("v_lshrrev_b32 v3, 16, v3")
        a("v_mul_u32_u24 v22, 20, v3")
        a("v_sub_u32 v2, v2, v22")
        a("v_lshrrev_b32 v22, 2, v3")
        a("v_and_b32 v22, 2, v22")
        a("v_xor_b32 v2, v2, v22")
        a("v_lshlrev_b32 v2, 4, v2")
        a("v_mul_lo_u32 v3, v3, s28")
        a(f"v_add3_u32 v{7 + j}, v2, v3, s39")
    a("s_mul_i32 s41, s26, 3072")
    a("s_lshl_b32 s42, s26, 10")
    a("s_add_u32 s42, s42, 24576")
    a("s_lshl_b32 s43, s37, 10")
    a("s_add_u32 s43, s43, 24576")
    a("s_lshl_b32 s44, s38, 10")
    a("s_add_u32 s44, s44, 24576")

    def dma_pieces(buf):
        base = buf * K1_STAGE
        g = []
        for j in range(3):
            x = [f"s_add_u32 m0, s41, {base + j * 1024}", "s_nop 0",
                 f"buffer_load_dwordx4 v{4 + j}, s[12:15], s34 offen lds"]
            if j == 2:
                x += ["s_add_u32 s34, s34, 128", "s_sub_u32 s60, s34, 1280", "s_cmp_ge_u32 s34, s62",
                      "s_cselect_b32 s34, s60, s34"]
            g.append(x)
        for j in range(3):
            x = [f"s_add_u32 m0, s{42 + j}, {base}", "s_nop 0",
                 f"buffer_load_dwordx4 v{7 + j}, s[16:19], s35 offen lds"]
            if j == 2:
                x += ["s_add_u32 s35, s35, s36", "s_cmp_ge_u32 s35, s61", "s_cselect_b32 s35, 0, s35"]
            g.append(x)
        return g

    for b in range(3):
        for g in dma_pieces(b):
            for x in g:
                a(x)
    NPF = 0
    if XP_PF > 1:
        NPF = 3
        a("s_lshr_b32 s45, s2, 3")
        a("s_mul_i32 s45, s45, 81920")
        a("v_lshlrev_b32 v2, 7, v0")
        a("buffer_load_dword v160, v2, s[12:15], s45 offen")
        a("v_add_u32 v3, 0x10000, v2")
        a("v_cmp_gt_u32 vcc, 128, v0")
        a("v_bfrev_b32 v22, 1")
        a("v_cndmask_b32 v3, v22, v3, vcc")
        a("buffer_load_dword v161, v3, s[12:15], s45 offen")
        a("v_mul_u32_u24 v2, 21846, v0")
        a("v_lshrrev_b32 v2, 16, v2")
        a("v_mul_u32_u24 v3, 3, v2")
        a("v_sub_u32 v3, v0, v3")
        a("v_lshlrev_b32 v3, 7, v3")
        a("s_mul_i32 s45, s24, 59")
        a("v_add_u32 v2, s45, v2")
        a("v_cmp_gt_u32 vcc, 177, v0")
        a("v_mul_lo_u32 v2, v2, s28")
        a("v_add3_u32 v2, v2, v3, s39")
        a("v_cndmask_b32 v2, v22, v2, vcc")
        a("buffer_load_dword v162, v2, s[16:19], 0 offen")
    a("v_lshrrev_b32 v22, 4, v1")
    a("v_and_b32 v23, 15, v1")
    a("s_mul_i32 s45, s32, 48")
    a("v_add_u32 v2, s45, v23")
    a("v_lshlrev_b32 v2, 7, v2")
    a("v_and_b32 v3, 7, v23")
    a("v_xor_b32 v3, v3, v22")
    a("v_lshlrev_b32 v3, 4, v3")
    a("v_add_u32 v10, v2, v3")
    a("v_xor_b32 v11, 64, v10")
    for b in (1, 2):
        a(f"v_add_u32 v{10 + 2 * b}, {b * K1_STAGE}, v10")
        a(f"v_add_u32 v{11 + 2 * b}, {b * K1_STAGE}, v11")
    a("v_lshlrev_b32 v2, 3, v22")
    a("v_lshrrev_b32 v3, 2, v23")
    a("v_add_u32 v2, v2, v3")
    a("v_mul_u32_u24 v2, 320, v2")
    a("v_and_b32 v3, 3, v23")
    a("v_lshlrev_b32 v3, 3, v3")
    a("s_mul_i32 s45, s33, 160")
    a("s_add_u32 s45, s45, 24576")
    a("v_add3_u32 v2, v2, v3, s45")
    a("v_and_b32 v3, 1, v22")
    a("v_lshlrev_b32 v3, 5, v3")
    a("s_cmp_eq_u32 s33, 0")
    a("s_cselect_b32 s45, 1, -1")
    a("v_mul_lo_u32 v3, v3, s45")
    a("v_add_u32 v16, v2, v3")
    a("v_sub_u32 v17, v2, v3")
    for b in (1, 2):
        a(f"v_add_u32 v{16 + 2 * b}, {b * K1_STAGE}, v16")
        a(f"v_add_u32 v{17 + 2 * b}, {b * K1_STAGE}, v17")

    XF = (24, 36)
    WF = (48, 68)
    ACC = 88

    def reads(buf, sub, st):
        r = []
        for ti in range(3):
            r.append(f"ds_read_b128 {vr(XF[st] + 4 * ti, 4)}, v{10 + 2 * buf + sub} offset:{ti * 2048}")
        for ni in range(5):
            ad = 16 + 2 * buf + (ni & 1)
            off = ni * 32 + sub * 10240
            r.append(f"ds_read_b64_tr_b16 {vr(WF[st] + 4 * ni, 2)}, v{ad} offset:{off}")
            r.append(f"ds_read_b64_tr_b16 {vr(WF[st] + 4 * ni + 2, 2)}, v{ad} offset:{off + 1280}")
        return r

    def mfmas(st, vor, first):
        m = []
        for ni in range(5):
            for ti in range(3):
                d = ACC + 4 * (ni * 3 + ti)
                c = "0" if first else vr(d, 4)
                w = vr(WF[st] + 4 * ni, 4)
                x = vr(XF[st] + 4 * ti, 4)
                if vor:
                    m.append(f"v_mfma_f32_16x16x32_bf16 {vr(d, 4)}, {x}, {w}, {c}")
                else:
                    m.append(f"v_mfma_f32_16x16x32_bf16 {vr(d, 4)}, {w}, {x}, {c}")
        return m

    def phase(ms, rs, ds):
        rs = list(rs)
        ds = list(ds)
        for i, m in enumerate(ms):
            a(m)
            for _ in range(XP_RPM):
                if rs:
                    a(rs.pop(0))
            if ds and i in XP_DSL:
                for x in ds.pop(0):
                    a(x)

    def loop(vor):
        a(f"s_waitcnt vmcnt({12 + NPF})")
        a("s_barrier")
        prof(a, 1)
        for r in reads(0, 0, 0):
            a(r)
        pend = []
        for ks in range(10):
            buf = ks % 3
            a("s_waitcnt lgkmcnt(0)")
            phase(mfmas(0, vor, ks == 0), reads(buf, 1, 1), pend)
            pend = []
            nxt = []
            if ks < 9:
                a(f"s_waitcnt vmcnt({(6 + NPF if ks < 2 else 6) if ks < 8 else 0}) lgkmcnt(0)")
                a("s_barrier")
                prof(a, 2 + ks)
                nxt = reads((ks + 1) % 3, 0, 0)
            else:
                a("s_waitcnt lgkmcnt(0)")
            d = []
            if ks + 3 < 10:
                p = dma_pieces(buf)
                d = p[:3]
                pend = p[3:]
            phase(mfmas(1, vor, False), nxt, d)
        a("s_barrier")
        a("s_nop 7")
        a("s_nop 3")
        prof(a, 11)

    a("s_cmp_eq_u32 s27, 2")
    a("s_cbranch_scc1 K1_VLOOP")
    loop(False)
    a("s_mul_i32 s45, s32, 48")
    a("v_add_u32 v4, s45, v23")
    a("s_cmp_eq_u32 s27, 3")
    a("s_cbranch_scc1 K1_EPI_FFN")
    a("s_cmp_eq_u32 s27, 0")
    a(f"s_cselect_b32 s48, {f32bits(C_SCALE)}, 1.0")
    NO = 148
    a("v_mul_u32_u24 v4, 48, v4")
    a("s_mul_i32 s46, s33, 36864")
    a("v_add_u32 v4, s46, v4")
    for ni in range(5):
        a(f"v_add_u32 v2, {4 * ni}, v22")
        a("v_mul_u32_u24 v3, 13, v2")
        a("v_lshrrev_b32 v3, 6, v3")
        a("v_mul_u32_u24 v5, 5, v3")
        a(f"v_sub_u32 v{NO + 5 + ni}, v2, v5")
        a("v_mul_u32_u24 v3, 9216, v3")
        a(f"v_lshl_add_u32 v3, v{NO + 5 + ni}, 3, v3")
        a(f"v_add_u32 v{NO + ni}, v3, v4")
    a("v_mov_b32 v8, 0x3f803f80")
    a("v_mov_b32 v9, 0x00003f80")
    for ti in range(3):
        for ni in range(5):
            d = ACC + 4 * (ni * 3 + ti)
            for i in range(4):
                a(f"v_mul_f32 v{d + i}, s48, v{d + i}")
            a(f"v_cvt_pk_bf16_f32 v{d}, v{d}, v{d + 1}")
            a(f"v_cvt_pk_bf16_f32 v{d + 1}, v{d + 2}, v{d + 3}")
            a(f"ds_write_b64 v{NO + ni}, {vr(d, 2)} offset:{768 * ti}")
    for ni in range(1, 5):
        a(f"v_cmp_eq_u32 vcc, 4, v{NO + 5 + ni}")
        a("s_and_saveexec_b64 s[50:51], vcc")
        for ti in range(3):
            a(f"ds_write_b64 v{NO + ni}, v[8:9] offset:{768 * ti + 8}")
        a("s_mov_b64 exec, s[50:51]")
    a("s_mul_i32 s52, s26, 9216")
    a("s_and_b32 s46, s25, 3")
    a("s_lshl_b32 s46, s46, 3")
    a("s_add_u32 s46, s46, s26")
    a("s_sub_u32 s57, 2048, s30")
    a("s_min_u32 s57, s57, 192")
    a("s_mul_i32 s57, s57, 3")
    a("s_mov_b32 s56, 0")
    a("s_mov_b32 s58, 1000")
    a("s_cmp_eq_u32 s27, 0")
    a("s_cbranch_scc0 K1_CPK")
    a("s_mul_i32 s53, s46, 98304")
    a("s_mul_i32 s47, s30, 48")
    a("s_add_u32 s53, s53, s47")
    a("s_mov_b32 s54, 0")
    a("s_mov_b32 s55, 0")
    a("s_branch K1_COPY")
    a.label("K1_CPK")
    a(f"s_mul_i32 s53, s46, {HEAD_KV}")
    a("s_mul_i32 s47, s30, 90")
    a("s_add_u32 s53, s53, s47")
    a("s_mov_b32 s54, 683")
    a("s_mov_b32 s55, 1344")
    a("s_branch K1_COPY")
    a.label("K1_EPI_FFN")
    a("v_mul_u32_u24 v4, 336, v4")
    a("s_mul_i32 s46, s33, 160")
    a("v_lshl_add_u32 v4, v22, 3, v4")
    a("v_add_u32 v4, s46, v4")
    for ti in range(3):
        for ni in range(5):
            d = ACC + 4 * (ni * 3 + ti)
            for i in range(4):
                a(f"v_max_f32 v{d + i}, 0, v{d + i}")
            a(f"v_cvt_pk_bf16_f32 v{d}, v{d}, v{d + 1}")
            a(f"v_cvt_pk_bf16_f32 v{d + 1}, v{d + 2}, v{d + 3}")
            a(f"ds_write_b64 v4, {vr(d, 2)} offset:{5376 * ti + 32 * ni}")
    a("s_mul_i32 s52, s26, 8064")
    a("s_mul_i32 s46, s26, 24")
    a("s_add_u32 s46, s46, s30")
    a("s_mul_i32 s53, s46, 3456")
    a("s_lshl_b32 s47, s29, 1")
    a("s_add_u32 s53, s53, s47")
    a("s_mov_b32 s54, 3277")
    a("s_mov_b32 s55, 3136")
    a("s_mov_b32 s56, 16")
    a("s_sub_i32 s57, 2048, s46")
    a("s_max_i32 s57, s57, 0")
    a("s_min_u32 s57, s57, 24")
    a("s_mul_i32 s57, s57, 20")
    a("s_sub_u32 s58, 1728, s29")
    a("s_lshr_b32 s58, s58, 3")
    a("s_branch K1_COPY")
    a.label("K1_VLOOP")
    loop(True)
    a("s_mul_i32 s46, s33, 32256")
    for ni in range(5):
        a(f"v_add_u32 v2, {16 * ni}, v23")
        a("v_mul_u32_u24 v3, 205, v2")
        a("v_lshrrev_b32 v3, 12, v3")
        a("v_mul_u32_u24 v4, 20, v3")
        a(f"v_sub_u32 v{NO + 10 + ni}, v2, v4")
        a("v_mul_u32_u24 v3, 8064, v3")
        a(f"v_lshlrev_b32 v4, 6, v{NO + 10 + ni}")
        a(f"v_add3_u32 v{NO + ni}, v3, v4, s46")
        a(f"v_bfe_u32 v{NO + 5 + ni}, v{NO + 10 + ni}, 2, 2")
    a("v_mov_b32 v8, 0x3f803f80")
    a("v_mov_b32 v9, 0x3f803f80")
    a("s_mul_i32 s45, s32, 48")
    for ti in range(3):
        a(f"s_add_u32 s49, s45, {16 * ti}")
        a("v_lshlrev_b32 v2, 2, v22")
        a("v_add_u32 v2, s49, v2")
        a("v_lshrrev_b32 v3, 5, v2")
        a("v_mul_u32_u24 v3, 1344, v3")
        a("v_bfe_u32 v2, v2, 2, 3")
        a("v_bfe_u32 v4, v2, 1, 1")
        a("v_lshl_add_u32 v10, v4, 3, v3")
        a("v_lshrrev_b32 v4, 1, v2")
        a("v_and_b32 v4, 2, v4")
        a("v_and_b32 v2, 1, v2")
        a("v_or_b32 v11, v2, v4")
        for ni in range(5):
            d = ACC + 4 * (ni * 3 + ti)
            a(f"v_cvt_pk_bf16_f32 v{d}, v{d}, v{d + 1}")
            a(f"v_cvt_pk_bf16_f32 v{d + 1}, v{d + 2}, v{d + 3}")
            a(f"v_xor_b32 v6, v11, v{NO + 5 + ni}")
            a("v_lshlrev_b32 v6, 4, v6")
            a(f"v_add3_u32 v6, v6, v10, v{NO + ni}")
            a(f"ds_write_b64 v6, {vr(d, 2)}")
            if ni < 4:
                a("v_xor_b32 v7, 1, v11")
                a("v_lshlrev_b32 v7, 4, v7")
                a(f"v_add3_u32 v7, v7, v10, v{NO + ni}")
                a(f"v_cmp_eq_u32 vcc, 0, v{NO + 10 + ni}")
                a("s_and_saveexec_b64 s[50:51], vcc")
                a("ds_write_b64 v7, v[8:9] offset:1280")
                a("s_mov_b64 exec, s[50:51]")
    a("s_mul_i32 s52, s26, 8064")
    a("s_and_b32 s46, s25, 3")
    a("s_lshl_b32 s46, s46, 3")
    a("s_add_u32 s46, s46, s26")
    a(f"s_mul_i32 s53, s46, {HEAD_KV}")
    a("s_mul_i32 s47, s30, 90")
    a("s_add_u32 s53, s53, s47")
    a("s_add_u32 s53, s53, 1536")
    a("s_mov_b32 s54, 781")
    a("s_mov_b32 s55, 1536")
    a("s_mov_b32 s56, 0")
    a("s_sub_u32 s57, 2048, s30")
    a("s_min_u32 s57, s57, 192")
    a("s_lshr_b32 s57, s57, 5")
    a("s_mul_i32 s57, s57, 84")
    a("s_mov_b32 s58, 1000")
    a.label("K1_COPY")
    a("s_mov_b32 s59, 20")
    for it in range(9):
        ga = 24 + it
        la = 34 + it
        a(f"v_add_u32 v2, {64 * it}, v1")
        a("v_mul_lo_u32 v3, v2, s54")
        a("v_lshrrev_b32 v3, 16, v3")
        a("v_lshlrev_b32 v4, 4, v2")
        a("v_mul_lo_u32 v5, v3, s55")
        a(f"v_add3_u32 v{ga}, v4, v5, s53")
        a("v_mul_lo_u32 v5, v3, s56")
        a(f"v_add3_u32 v{la}, v4, v5, s52")
        a("v_mul_lo_u32 v5, v3, s59")
        a("v_sub_u32 v5, v2, v5")
        a("v_cmp_gt_u32 vcc, s57, v2")
        a("v_cmp_gt_i32 s[50:51], s58, v5")
        a("s_and_b64 vcc, vcc, s[50:51]")
        a("v_bfrev_b32 v5, 1")
        a(f"v_cndmask_b32 v{ga}, v5, v{ga}, vcc")
    a("s_waitcnt lgkmcnt(0)")
    a("s_barrier")
    for it in range(9):
        a(f"ds_read_b128 {vr(48 + 4 * it, 4)}, v{34 + it}")
    for it in range(9):
        a(f"s_waitcnt lgkmcnt({8 - it})")
        a(f"buffer_store_dwordx4 {vr(48 + 4 * it, 4)}, v{24 + it}, s[20:23], 0 offen sc1")
    a.label("K1_PEND")
    prof(a, 12)
    a.label("K1_END")
    a("s_endpgm")
    a.label("K1_PACK")
    a("s_load_dwordx2 s[4:5], s[0:1], 16")
    a("s_load_dwordx2 s[6:7], s[0:1], 72")
    a("s_sub_u32 s3, s3, 253")
    a("s_mul_i32 s3, s3, 17408")
    a("v_add_u32 v1, s3, v0")
    a("v_lshlrev_b32 v2, 4, v1")
    a("s_mov_b32 s20, 52429")
    a("s_mov_b32 s21, 102400")
    a("v_bfrev_b32 v3, 1")
    a("s_waitcnt lgkmcnt(0)")
    srd(a, 12, 4, 5, SZ_WO)
    srd_off(a, 16, 6, 7, WS_WO, SZ_WO)
    it = 0
    for nb in (7, 7, 7, 7, 6):
        for j in range(nb):
            a(f"s_mov_b32 s22, {(it + j) * 8192}")
            a(f"buffer_load_dwordx4 {vr(32 + 4 * j, 4)}, v2, s[12:15], s22 offen")
        for j in range(nb):
            a(f"v_add_u32 v4, {(it + j) * 512}, v1")
            a("v_mul_lo_u32 v5, v4, s20")
            a("v_lshrrev_b32 v5, 22, v5")
            a("v_mul_u32_u24 v6, 80, v5")
            a("v_sub_u32 v6, v4, v6")
            a("v_mul_u32_u24 v7, 6554, v6")
            a("v_lshrrev_b32 v7, 16, v7")
            a("v_mul_u32_u24 v8, 10, v7")
            a("v_sub_u32 v6, v6, v8")
            a("v_lshrrev_b32 v8, 1, v5")
            a("v_and_b32 v8, 4, v8")
            a("v_xor_b32 v5, v5, v8")
            a("v_mul_u32_u24 v5, 160, v5")
            a("v_mul_lo_u32 v7, v7, s21")
            a("v_lshl_add_u32 v5, v6, 4, v5")
            a("v_add_u32 v5, v5, v7")
            a("v_cmp_gt_u32 vcc, 51200, v4")
            a(f"v_cndmask_b32 v{16 + j}, v3, v5, vcc")
        for j in range(nb):
            a(f"s_waitcnt vmcnt({nb - 1})")
            a(f"buffer_store_dwordx4 {vr(32 + 4 * j, 4)}, v{16 + j}, s[16:19], 0 offen")
        a("s_waitcnt vmcnt(0)")
        it += nb
    a("s_endpgm")
    return a.text()


GS_SLOT = 9216


class GW:
    VA = 4
    VW = 8
    RA = 13
    RW = 14
    AF = 24
    WF = 40
    ACC = 60


def gw_setup(a, sR0, sC0B, strideA, sLds):
    a("v_lshrrev_b32 v22, 4, v1")
    a("v_and_b32 v23, 15, v1")
    a("v_lshrrev_b32 v2, 2, v1")
    a("v_sub_u32 v3, 0, v22")
    a("v_and_b32 v3, 3, v3")
    a("v_and_b32 v15, 3, v1")
    a("v_xor_b32 v3, v3, v15")
    a("v_lshlrev_b32 v3, 4, v3")
    a(f"v_add_u32 v2, s{sR0}, v2")
    a(f"s_mov_b32 s60, {strideA}")
    a("v_mul_lo_u32 v2, v2, s60")
    a(f"v_add_u32 v{GW.VA}, v2, v3")
    for i in range(1, 4):
        a(f"v_add_u32 v{GW.VA + i}, {16 * i * strideA}, v{GW.VA}")
    for i in range(5):
        a(f"v_add_u32 v2, {64 * i}, v1")
        a("v_mul_u32_u24 v3, 6554, v2")
        a("v_lshrrev_b32 v3, 16, v3")
        a("v_mul_u32_u24 v15, 10, v3")
        a("v_sub_u32 v2, v2, v15")
        a("v_lshlrev_b32 v2, 4, v2")
        a("v_mul_u32_u24 v3, 1280, v3")
        a(f"v_add3_u32 v{GW.VW + i}, v2, v3, s{sC0B}")
    a("v_lshrrev_b32 v2, 2, v23")
    a("v_sub_u32 v2, 0, v2")
    a("v_and_b32 v2, 3, v2")
    a("v_xor_b32 v2, v2, v22")
    a("v_lshlrev_b32 v2, 4, v2")
    a("v_lshl_add_u32 v2, v23, 6, v2")
    a(f"v_add_u32 v{GW.RA}, s{sLds}, v2")
    a("v_lshlrev_b32 v2, 3, v22")
    a("v_lshrrev_b32 v3, 2, v23")
    a("v_add_u32 v2, v2, v3")
    a("v_mul_u32_u24 v2, 160, v2")
    a("v_and_b32 v3, 3, v23")
    a("v_lshlrev_b32 v3, 3, v3")
    a("v_add_u32 v2, 4096, v2")
    a(f"v_add3_u32 v{GW.RW}, v2, v3, s{sLds}")


def gw_issue(a, slot, srdA, srdW, sKA, sKW, sLds):
    for i in range(4):
        a(f"s_add_u32 m0, s{sLds}, {slot * GS_SLOT + i * 1024}")
        a("s_nop 0")
        a(f"buffer_load_dwordx4 v{GW.VA + i}, {sr(srdA, 4)}, s{sKA} offen lds")
    for i in range(5):
        a(f"s_add_u32 m0, s{sLds}, {slot * GS_SLOT + 4096 + i * 1024}")
        a("s_nop 0")
        a(f"buffer_load_dwordx4 v{GW.VW + i}, {sr(srdW, 4)}, s{sKW} offen lds")
    a(f"s_add_u32 s{sKA}, s{sKA}, 64")
    a(f"s_add_u32 s{sKW}, s{sKW}, {32 * 1280}")


def gw_compute(a, slot, first):
    for t in range(4):
        a(f"ds_read_b128 {vr(GW.AF + 4 * t, 4)}, v{GW.RA} offset:{slot * GS_SLOT + t * 1024}")
    for n in range(5):
        off = slot * GS_SLOT + n * 32
        a(f"ds_read_b64_tr_b16 {vr(GW.WF + 4 * n, 2)}, v{GW.RW} offset:{off}")
        a(f"ds_read_b64_tr_b16 {vr(GW.WF + 4 * n + 2, 2)}, v{GW.RW} offset:{off + 640}")
    a("s_waitcnt lgkmcnt(0)")
    for n in range(5):
        for t in range(4):
            d = GW.ACC + 4 * (n * 4 + t)
            c = "0" if first else vr(d, 4)
            a(f"v_mfma_f32_16x16x32_bf16 {vr(d, 4)}, {vr(GW.WF + 4 * n, 4)}, {vr(GW.AF + 4 * t, 4)}, {c}")


def gw_write_partials(a, sRed):
    a("v_mul_u32_u24 v2, 320, v23")
    a("v_lshl_add_u32 v2, v22, 4, v2")
    a(f"v_add_u32 v2, s{sRed}, v2")
    for n in range(5):
        for t in range(4):
            d = GW.ACC + 4 * (n * 4 + t)
            a(f"ds_write_b128 v2, {vr(d, 4)} offset:{t * 5120 + n * 64}")


def gw_read_sum(a, sW4, redbase):
    a("v_lshrrev_b32 v2, 2, v1")
    a(f"s_lshl_b32 s60, s{sW4}, 4")
    a("v_add_u32 v2, s60, v2")
    a("v_mul_u32_u24 v2, 320, v2")
    a("v_and_b32 v3, 3, v1")
    a("v_mul_u32_u24 v3, 80, v3")
    a("v_add_u32 v2, v2, v3")
    if redbase:
        a(f"v_add_u32 v2, {redbase}, v2")
    R = 24
    for src in range(4):
        for j in range(5):
            a(f"ds_read_b128 {vr(R + 20 * src + 4 * j, 4)}, v2 offset:{src * 20480 + j * 16}")
        a("s_waitcnt lgkmcnt(0)")
    for e in range(20):
        a(f"v_add_f32 v{R + e}, v{R + e}, v{R + 20 + e}")
        a(f"v_add_f32 v{R + 40 + e}, v{R + 40 + e}, v{R + 60 + e}")
    for e in range(20):
        a(f"v_add_f32 v{R + e}, v{R + e}, v{R + 40 + e}")


def tile_map(a, sRt, sCt):
    if XP_QX:
        a("s_and_b32 s60, s2, 7")
        a("s_lshr_b32 s61, s2, 3")
        a("s_lshl_b32 s62, s60, 2")
        a("s_lshr_b32 s63, s61, 3")
        a(f"s_add_u32 s{sRt}, s62, s63")
        a(f"s_and_b32 s{sCt}, s61, 7")
        return
    a("s_and_b32 s60, s2, 7")
    a("s_lshr_b32 s61, s2, 3")
    a("s_lshr_b32 s62, s60, 1")
    a("s_lshl_b32 s62, s62, 3")
    a("s_lshr_b32 s63, s61, 2")
    a(f"s_add_u32 s{sRt}, s62, s63")
    a("s_and_b32 s62, s60, 1")
    a("s_lshl_b32 s62, s62, 2")
    a("s_and_b32 s63, s61, 3")
    a(f"s_add_u32 s{sCt}, s62, s63")


K2_BUF = 24576
K2_FFN = 3 * K2_BUF
K2_FLAG = K2_FFN + 4 * 20480
K2_LDS = K2_FLAG + 64


def k2():
    a = Asm()
    a.label("k2_kernel")
    if PROF:
        a("s_memtime s[86:87]")
    a("s_cmp_ge_u32 s2, 256")
    a("s_cbranch_scc1 K2_END")
    a("s_and_b32 s3, s2, 7")
    a("s_lshl_b32 s3, s3, 2")
    a("s_lshr_b32 s4, s2, 3")
    a("s_and_b32 s4, s4, 3")
    a("s_add_u32 s36, s3, s4")
    a("s_lshr_b32 s37, s2, 5")
    if XP_QX:
        a("s_lshr_b32 s36, s2, 3")
        a("s_and_b32 s37, s2, 7")
    a("s_load_dwordx2 s[4:5], s[0:1], 0")
    a("s_load_dwordx2 s[6:7], s[0:1], 48")
    a("s_load_dwordx2 s[8:9], s[0:1], 72")
    a("v_and_b32 v1, 63, v0")
    a("v_lshrrev_b32 v2, 6, v0")
    a("s_nop 0")
    a("v_readfirstlane_b32 s38, v2")
    a("s_waitcnt lgkmcnt(0)")
    a("s_cmp_ge_u32 s38, 8")
    a("s_cbranch_scc1 K2_FFN")
    a("s_setprio 1")
    srd_off(a, 12, 8, 9, WS_KV, SZ_KV)
    srd_off(a, 16, 8, 9, WS_Q, SZ_Q)
    srd_off(a, 20, 8, 9, WS_O, SZ_O)
    srd(a, 24, 4, 5, SZ_X)
    srd(a, 28, 6, 7, 1280)
    srd_off(a, 32, 8, 9, WS_G, SZ_G)
    prof_init(a, 8, 9, 38, 1)
    prof(a, 0)
    a("v_lshlrev_b32 v16, 4, v1")
    a("s_mul_i32 s46, s38, 3072")
    a(f"s_mul_i32 s45, s36, {HEAD_KV}")
    a("s_add_u32 s45, s45, s46")
    a("s_mov_b32 s44, s45")
    a("s_mov_b32 s41, 0")
    a(f"s_mov_b32 s42, {K2_BUF}")
    a(f"s_mov_b32 s43, {2 * K2_BUF}")
    a("s_mov_b32 s40, 0")
    for sg in (41, 42):
        a(f"s_add_u32 m0, s{sg}, s46")
        a("s_nop 0")
        for j in range(3):
            a(f"buffer_load_dwordx4 v16, s[12:15], s44 offen offset:{1024 * j} lds")
        a("s_add_u32 s44, s44, 23040")
    a("v_mov_b32 v2, 0")
    a(f"v_mov_b32 v3, {K2_FLAG}")
    a("ds_write_b32 v3, v2")
    a("v_and_b32 v17, 31, v1")
    a("v_lshrrev_b32 v18, 5, v1")
    a("s_lshl_b32 s47, s37, 8")
    a("s_lshl_b32 s48, s38, 5")
    a("s_add_u32 s47, s47, s48")
    a("v_add_u32 v2, s47, v17")
    a("v_mul_u32_u24 v2, 48, v2")
    a("s_mul_i32 s48, s36, 98304")
    a("v_add_u32 v2, s48, v2")
    a("v_lshl_add_u32 v3, v18, 4, v2")
    a("buffer_load_dwordx4 v[20:23], v3, s[16:19], 0 offen")
    a("buffer_load_dwordx2 v[24:25], v2, s[16:19], 0 offen offset:32")
    a("s_lshl_b32 s48, s37, 8")
    a("s_lshl_b32 s49, s36, 3")
    a("s_add_u32 s48, s48, s49")
    a("s_add_u32 s48, s48, s38")
    a("s_mul_i32 s49, s48, 1280")
    a("v_mul_u32_u24 v2, 20, v1")
    a("buffer_load_dwordx4 v[116:119], v2, s[24:27], s49 offen")
    a("buffer_load_dword v120, v2, s[24:27], s49 offen offset:16")
    a("buffer_load_dwordx4 v[122:125], v2, s[28:31], 0 offen")
    a("buffer_load_dword v126, v2, s[28:31], 0 offen offset:16")
    a("v_mul_u32_u24 v2, 48, v17")
    a("v_lshl_add_u32 v12, v18, 4, v2")
    a("v_add_u32 v13, 32, v2")
    a("v_bfe_u32 v3, v17, 2, 2")
    a("v_lshlrev_b32 v2, 6, v17")
    a("v_add_u32 v2, 1536, v2")
    a("v_xor_b32 v19, v18, v3")
    a("v_lshl_add_u32 v14, v19, 4, v2")
    a("v_add_u32 v19, 2, v18")
    a("v_xor_b32 v19, v19, v3")
    a("v_lshl_add_u32 v15, v19, 4, v2")
    a("s_waitcnt vmcnt(0)")
    a("v_mov_b32 v2, 0")
    for j in range(5):
        xv = 116 + j
        gv = 122 + j
        a(f"v_lshlrev_b32 v3, 16, v{xv}")
        a(f"v_and_b32 v19, 0xffff0000, v{xv}")
        a(f"v_lshlrev_b32 v127, 16, v{gv}")
        a(f"v_and_b32 v128, 0xffff0000, v{gv}")
        a("v_mul_f32 v3, v3, v127")
        a("v_mul_f32 v19, v19, v128")
        a("v_cvt_pk_bf16_f32 v3, v3, v19")
        a("v_lshlrev_b32 v19, 16, v3")
        a("v_and_b32 v3, 0xffff0000, v3")
        a("v_add_f32 v2, v2, v19")
        a("v_add_f32 v2, v2, v3")
    for sh in (1, 2, 4, 8):
        a("s_nop 1")
        a(f"v_add_f32_dpp v2, v2, v2 row_shr:{sh} row_mask:0xf bank_mask:0xf")
    a("s_nop 1")
    a("v_add_f32_dpp v2, v2, v2 row_bcast:15 row_mask:0xa bank_mask:0xf")
    a("s_nop 1")
    a("v_add_f32_dpp v2, v2, v2 row_bcast:31 row_mask:0xc bank_mask:0xf")
    a("s_nop 1")
    a("v_cvt_pk_bf16_f32 v2, v2, v2")
    a("v_lshlrev_b32 v2, 16, v2")
    a(f"v_mul_f32 v2, {f32bits(-LOG2E)}, v2")
    a("v_exp_f32 v2, v2")
    a("s_nop 0")
    a("v_add_f32 v2, 1.0, v2")
    a("v_rcp_f32 v2, v2")
    a("s_nop 0")
    a("v_cvt_pk_bf16_f32 v2, v2, v2")
    a("v_lshlrev_b32 v2, 16, v2")
    a("s_lshl_b32 s49, s48, 2")
    a("v_mov_b32 v3, 0")
    a("v_cmp_eq_u32 vcc, 63, v1")
    a("s_and_saveexec_b64 s[50:51], vcc")
    a("buffer_store_dword v2, v3, s[32:35], s49 offen")
    a("s_mov_b64 exec, s[50:51]")
    a("v_cmp_eq_u32 vcc, 0, v18")
    a("s_nop 1")
    a("v_cndmask_b32 v24, 0, v24, vcc")
    a("v_cndmask_b32 v25, 0, v25, vcc")
    a("v_mov_b32 v26, 0")
    a("v_mov_b32 v27, 0")
    a("s_mov_b32 s39, 0")

    QF0, QF1 = 20, 24
    KF = (28, 36)
    VF = (44, 52)
    P = 60
    S = (68, 84)
    O = 100

    def dma_stage(lds_sreg):
        a(f"s_add_u32 m0, s{lds_sreg}, s46")
        a("s_nop 0")
        for j in range(3):
            a(f"buffer_load_dwordx4 v16, s[12:15], s44 offen offset:{1024 * j} lds")
        a("s_add_u32 s44, s44, 23040")

    def set_addrs(dst, sbase):
        for i in range(4):
            a(f"v_add_u32 v{dst + i}, s{sbase}, v{12 + i}")

    def kread(st, idx):
        base = 4 if idx < 8 else 8
        off = (idx % 8) * 2880
        return [f"ds_read_b128 {vr(KF[st], 4)}, v{base} offset:{off}",
                f"ds_read_b128 {vr(KF[st] + 4, 4)}, v{base + 1} offset:{off}"]

    def vread(st, idx):
        base = 4 if idx < 8 else 8
        off = (idx % 8) * 2880
        return [f"ds_read_b128 {vr(VF[st], 4)}, v{base + 2} offset:{off}",
                f"ds_read_b128 {vr(VF[st] + 4, 4)}, v{base + 3} offset:{off}"]

    def qk(st, sst):
        a(f"v_mfma_f32_32x32x16_bf16 {vr(S[sst], 16)}, {vr(KF[st], 4)}, {vr(QF0, 4)}, 0")
        a(f"v_mfma_f32_32x32x16_bf16 {vr(S[sst], 16)}, {vr(KF[st] + 4, 4)}, {vr(QF1, 4)}, {vr(S[sst], 16)}")

    def set_m_from(mreg):
        a(f"v_mov_b32 v3, v{mreg}")
        a("s_nop 1")
        a(f"v_permlane32_swap_b32 v{mreg}, v3")
        a("s_nop 1")
        a(f"v_max_f32 v2, v{mreg}, v3")
        a("v_and_b32 v3, 0xffff0000, v2")
        a("v_sub_f32 v2, v2, v3")
        a("v_and_b32 v19, 0xffff0000, v2")
        a("v_sub_f32 v2, v2, v19")
        a("v_xor_b32 v3, 0x80000000, v3")
        a("v_xor_b32 v19, 0x80000000, v19")
        a("v_xor_b32 v2, 0x80000000, v2")
        a("v_lshrrev_b32 v3, 16, v3")
        a("v_or_b32 v3, v3, v19")
        a("v_lshrrev_b32 v2, 16, v2")
        a("v_cmp_eq_u32 vcc, 0, v18")
        a("s_nop 1")
        a("v_cndmask_b32 v26, 0, v3, vcc")
        a("v_cndmask_b32 v27, 0, v2, vcc")
        a("s_nop 1")

    def start_stream():
        a("s_mov_b32 s44, s45")
        a("s_mov_b32 s41, 0")
        a(f"s_mov_b32 s42, {K2_BUF}")
        a(f"s_mov_b32 s43, {2 * K2_BUF}")
        dma_stage(41)
        dma_stage(42)
        set_addrs(4, 41)
        set_addrs(8, 42)
        a("s_mov_b32 s40, 0")

    def stage_head(lbl):
        a("s_waitcnt vmcnt(0) lgkmcnt(0)")
        a("s_barrier")
        a("s_cmp_ge_u32 s40, 6")
        a(f"s_cbranch_scc1 {lbl}")
        dma_stage(43)
        a.label(lbl)

    def stage_rotate():
        a("s_mov_b32 s47, s41")
        a("s_mov_b32 s41, s42")
        a("s_mov_b32 s42, s43")
        a("s_mov_b32 s43, s47")
        for i in range(4):
            a(f"v_mov_b32 v{4 + i}, v{8 + i}")
        set_addrs(8, 42)
        a("s_add_u32 s40, s40, 1")

    a.label("K2_MAIN")
    prof(a, 1)
    a("s_cmp_eq_u32 s39, 0")
    a("s_cbranch_scc1 K2_STARTED")
    start_stream()
    a.label("K2_STARTED")
    set_addrs(4, 41)
    set_addrs(8, 42)
    for i in range(16):
        a(f"v_mov_b32 v{O + i}, 0")
    for i in range(4):
        a(f"v_mov_b32 v{P + 4 + i}, 0")
        a(f"v_mov_b32 v{VF[1] + 4 + i}, 0")
    a.label("K2_STAGE")
    stage_head("K2_NODMA")
    a("s_cmp_lg_u32 s40, 0")
    a("s_cbranch_scc1 K2_BODY")
    for r in kread(0, 0):
        a(r)
    a("s_cmp_lg_u32 s39, 0")
    a("s_cbranch_scc1 K2_PRIME")
    a("s_waitcnt lgkmcnt(0)")
    qk(0, 0)
    a("s_nop 15")
    a("s_nop 3")
    s0 = S[0]
    a(f"v_max3_f32 v116, v{s0}, v{s0 + 1}, v{s0 + 2}")
    for i in range(3, 15, 2):
        a(f"v_max3_f32 v116, v116, v{s0 + i}, v{s0 + i + 1}")
    a(f"v_max_f32 v116, v116, v{s0 + 15}")
    set_m_from(116)
    a.label("K2_PRIME")
    for r in kread(1, 1):
        a(r)
    for r in vread(0, 0):
        a(r)
    a("s_waitcnt lgkmcnt(4)")
    qk(0, 0)
    a("s_nop 15")
    prof(a, 2)
    a.label("K2_BODY")

    def body(par):
        for t in range(8):
            c = t % 2
            n = 1 - c
            sc = S[c]
            sn = S[n]

            def ex(lo):
                for i in range(lo, lo + 4):
                    a(f"v_exp_f32 v{sc + i}, v{sc + i}")

            def cv(lo):
                for i in range(lo, lo + 4):
                    a(f"v_cvt_pk_bf16_f32 v{P + i}, v{sc + 2 * i}, v{sc + 2 * i + 1}")
            if XP_PRIO:
                a(f"s_setprio {2 if (t & 1) == par else 1}")
            ex(0)
            a(f"v_mfma_f32_32x32x16_bf16 {vr(O, 16)}, {vr(VF[n] + 4, 4)}, {vr(P + 4, 4)}, {vr(O, 16)}")
            ex(4)
            a("s_waitcnt lgkmcnt(2)")
            a(f"v_mfma_f32_32x32x16_bf16 {vr(sn, 16)}, {vr(KF[n], 4)}, {vr(QF0, 4)}, 0")
            cv(0)
            if not XP_NOLDS:
                for r in kread(c, t + 2):
                    a(r)
                for r in vread(n, t + 1):
                    a(r)
            ex(8)
            a(f"v_mfma_f32_32x32x16_bf16 {vr(sn, 16)}, {vr(KF[n] + 4, 4)}, {vr(QF1, 4)}, {vr(sn, 16)}")
            ex(12)
            a("s_waitcnt lgkmcnt(4)")
            a(f"v_mfma_f32_32x32x16_bf16 {vr(O, 16)}, {vr(VF[c], 4)}, {vr(P, 4)}, {vr(O, 16)}")
            cv(4)

    if XP_PRIO:
        a("s_cmp_ge_u32 s38, 4")
        a("s_cbranch_scc1 K2_BODY1")
        body(0)
        a("s_branch K2_BODYE")
        a.label("K2_BODY1")
        body(1)
        a.label("K2_BODYE")
    else:
        body(0)
    stage_rotate()
    if PROF:
        a("s_memtime s[88:89]")
        a("s_waitcnt lgkmcnt(0)")
        a("v_mov_b32 v2, s88")
        a("s_lshl_b32 s90, s40, 2")
        a("v_mov_b32 v3, s90")
        a("buffer_store_dword v2, v3, s[92:95], s91 offen offset:8")
    a("s_cmp_lt_u32 s40, 8")
    a("s_cbranch_scc1 K2_STAGE")
    a("s_nop 1")
    a(f"v_mfma_f32_32x32x16_bf16 {vr(O, 16)}, {vr(VF[1] + 4, 4)}, {vr(P + 4, 4)}, {vr(O, 16)}")
    a("s_nop 15")
    a("s_nop 3")
    a("s_cmp_lg_u32 s39, 0")
    a("s_cbranch_scc1 K2_EPI")
    a("v_mov_b32 v2, 0")
    for i in range(9):
        a(f"v_fma_f32 v2, v{O + i}, 0, v2")
    a("v_mov_b32 v3, 0")
    for i in range(9, 12):
        a(f"v_fma_f32 v3, v{O + i}, 0, v3")
    a("v_cmp_eq_u32 vcc, 0, v18")
    a("s_nop 1")
    a("v_cndmask_b32 v3, 0, v3, vcc")
    a("v_add_f32 v2, v2, v3")
    a("v_cmp_u_f32 vcc, v2, v2")
    a("s_nop 4")
    a("s_cbranch_vccz K2_VOTE")
    a("v_mov_b32 v2, 1")
    a(f"v_mov_b32 v3, {K2_FLAG}")
    a("ds_write_b32 v3, v2")
    a.label("K2_VOTE")
    a("s_branch K2_EPI")
    a.label("K2_FALL")
    a("s_barrier")
    a("v_mov_b32 v26, 0")
    a("v_mov_b32 v27, 0")
    a(f"v_mov_b32 v117, {f32bits(float('-inf'))}")
    start_stream()
    a.label("K2_MSTAGE")
    stage_head("K2_MNODMA")
    for t in range(8):
        for r in kread(0, t):
            a(r)
        a("s_waitcnt lgkmcnt(0)")
        qk(0, 0)
        a("s_nop 15")
        a("s_nop 3")
        for i in range(0, 16, 2):
            a(f"v_max3_f32 v117, v117, v{s0 + i}, v{s0 + i + 1}")
    stage_rotate()
    a("s_cmp_lt_u32 s40, 8")
    a("s_cbranch_scc1 K2_MSTAGE")
    set_m_from(117)
    a("s_mov_b32 s39, 1")
    a("s_waitcnt vmcnt(0) lgkmcnt(0)")
    a("s_barrier")
    a("s_branch K2_MAIN")
    a.label("K2_EPI")
    a(f"v_mov_b32 v2, v{O + 8}")
    a(f"v_mov_b32 v3, v{O + 8}")
    a("s_nop 1")
    a("v_permlane32_swap_b32 v2, v3")
    a("s_nop 1")
    a("v_rcp_f32 v3, v3")
    a("s_nop 0")
    for i in range(12):
        a(f"v_mul_f32 v{O + i}, v{O + i}, v3")
    for i in range(6):
        a(f"v_cvt_pk_bf16_f32 v{P + i}, v{O + 2 * i}, v{O + 2 * i + 1}")
    a("s_lshl_b32 s47, s37, 8")
    a("s_lshl_b32 s48, s38, 5")
    a("s_add_u32 s47, s47, s48")
    a("v_add_u32 v2, s47, v17")
    a("v_mul_u32_u24 v2, 1280, v2")
    a("s_mul_i32 s48, s36, 40")
    a("v_lshl_add_u32 v2, v18, 3, v2")
    a("v_add_u32 v2, s48, v2")
    a(f"buffer_store_dwordx2 {vr(P, 2)}, v2, s[20:23], 0 offen")
    a(f"buffer_store_dwordx2 {vr(P + 2, 2)}, v2, s[20:23], 0 offen offset:16")
    a("v_cmp_eq_u32 vcc, 0, v18")
    a("s_and_saveexec_b64 s[50:51], vcc")
    a(f"buffer_store_dwordx2 {vr(P + 4, 2)}, v2, s[20:23], 0 offen offset:32")
    a("s_mov_b64 exec, s[50:51]")
    a("s_cmp_lg_u32 s39, 0")
    a("s_cbranch_scc1 K2_PEND")
    a("s_waitcnt lgkmcnt(0)")
    a("s_barrier")
    a(f"v_mov_b32 v3, {K2_FLAG}")
    a("ds_read_b32 v2, v3")
    a("s_waitcnt lgkmcnt(0)")
    a("v_readfirstlane_b32 s47, v2")
    a("s_cmp_lg_u32 s47, 0")
    a("s_cbranch_scc1 K2_FALL")
    a.label("K2_PEND")
    prof(a, 12)
    a.label("K2_END")
    a("s_endpgm")
    a.label("K2_FFN")
    if XP_NOFFN:
        a("s_endpgm")
    a("s_load_dwordx2 s[6:7], s[0:1], 40")
    a("s_load_dwordx2 s[52:53], s[0:1], 16")
    tile_map(a, 36, 37)
    a("s_sub_u32 s38, s38, 8")
    a("s_lshl_b32 s39, s36, 6")
    a("s_mul_i32 s40, s37, 160")
    a("s_mul_i32 s41, s38, 20480")
    a(f"s_add_u32 s41, s41, {K2_FFN}")
    a("s_mul_i32 s42, s38, 14")
    a("s_cmp_eq_u32 s38, 3")
    a("s_cselect_b32 s42, 41, s42")
    a("s_lshl_b32 s45, s42, 6")
    a(f"s_mul_i32 s46, s42, {32 * 1280}")
    a("s_waitcnt lgkmcnt(0)")
    srd(a, 16, 6, 7, SZ_W2)
    srd_off(a, 24, 8, 9, WS_H, SZ_H)
    srd_off(a, 28, 8, 9, WS_B, SZ_B)
    gw_setup(a, 39, 40, 3456, 41)
    j = 0
    for k, ns in enumerate(XP_FS):
        a("s_barrier")
        if k == 0:
            gw_issue(a, 0, 24, 16, 45, 46, 41)
        if k == 1 and XP_PF and not XP_QX:
            srd(a, 52, 52, 53, SZ_WO)
            a("s_mul_i32 s56, s2, 3200")
            a("v_and_b32 v3, 255, v0")
            a("v_lshlrev_b32 v2, 7, v3")
            a("v_cmp_gt_u32 vcc, 25, v3")
            a("v_bfrev_b32 v3, 1")
            a("v_cndmask_b32 v2, v3, v2, vcc")
            a("buffer_load_dword v141, v2, s[52:55], s56 offen")
        for _ in range(ns):
            if j < 13:
                gw_issue(a, (j + 1) & 1, 24, 16, 45, 46, 41)
                a("s_waitcnt vmcnt(9)")
            else:
                a("s_waitcnt vmcnt(0)")
                a("s_cmp_ge_u32 s38, 2")
                a("s_cbranch_scc1 K2_FSKIP")
            gw_compute(a, j & 1, j == 0)
            j += 1
    assert j == 14
    a.label("K2_FSKIP")
    a("s_nop 7")
    a("s_nop 3")
    a("s_waitcnt vmcnt(0)")
    gw_write_partials(a, 41)
    a("s_waitcnt lgkmcnt(0)")
    a("s_barrier")
    gw_read_sum(a, 38, K2_FFN)
    for e in range(0, 20, 2):
        a(f"v_cvt_pk_bf16_f32 v{112 + e // 2}, v{24 + e}, v{25 + e}")
    a("s_lshl_b32 s42, s36, 3")
    a("s_add_u32 s42, s42, s37")
    a("s_lshl_b32 s42, s42, 2")
    a("s_add_u32 s42, s42, s38")
    a("s_mul_i32 s42, s42, 2560")
    a("v_mul_u32_u24 v2, 40, v1")
    a("v_add_u32 v2, s42, v2")
    a("buffer_store_dwordx4 v[112:115], v2, s[28:31], 0 offen")
    a("buffer_store_dwordx4 v[116:119], v2, s[28:31], 0 offen offset:16")
    a("buffer_store_dwordx2 v[120:121], v2, s[28:31], 0 offen offset:32")
    if XP_QX and XP_PF:
        srd(a, 52, 52, 53, SZ_WO)
        a("s_lshr_b32 s56, s2, 3")
        a("s_mul_i32 s56, s56, 25600")
        a("v_and_b32 v3, 255, v0")
        a("v_lshlrev_b32 v2, 7, v3")
        a("v_cmp_gt_u32 vcc, 200, v3")
        a("v_bfrev_b32 v3, 1")
        a("v_cndmask_b32 v2, v3, v2, vcc")
        a("buffer_load_dword v141, v2, s[52:55], s56 offen")
        a("s_waitcnt vmcnt(0)")
    a("s_endpgm")
    return a.text()


def wmap(a, dst, sC0B):
    a("v_mul_u32_u24 v3, 6554, v2")
    a("v_lshrrev_b32 v3, 16, v3")
    a("v_mul_u32_u24 v15, 10, v3")
    a("v_sub_u32 v2, v2, v15")
    a("v_lshrrev_b32 v15, 1, v3")
    a("v_and_b32 v15, 4, v15")
    a("v_xor_b32 v3, v3, v15")
    a("v_lshlrev_b32 v2, 4, v2")
    a("v_mul_u32_u24 v3, 1280, v3")
    a(f"v_add3_u32 v{dst}, v2, v3, s{sC0B}")


def wread_addr(a, d0, d1, sBase):
    a("v_lshlrev_b32 v2, 3, v22")
    a("v_lshrrev_b32 v3, 2, v23")
    a("v_add_u32 v2, v2, v3")
    a("v_mul_u32_u24 v2, 160, v2")
    a("v_and_b32 v3, 3, v23")
    a("v_lshlrev_b32 v3, 3, v3")
    a(f"v_add3_u32 v2, v2, v3, s{sBase}")
    a("v_and_b32 v3, 1, v22")
    a("v_mul_u32_u24 v3, 640, v3")
    a(f"v_add_u32 v{d0}, v2, v3")
    a("v_sub_u32 v2, v2, v3")
    a(f"v_add_u32 v{d1}, 640, v2")


K3_STG = 36864
K3_B = 4 * K3_STG
K3_LDS = K3_B + 10240


def k3():
    a = Asm()
    a.label("k3_kernel")
    if PROF:
        a("s_memtime s[86:87]")
    a("s_cmp_ge_u32 s2, 256")
    a("s_cbranch_scc1 K3_END")
    a("s_load_dwordx2 s[4:5], s[0:1], 16")
    a("s_load_dwordx2 s[8:9], s[0:1], 72")
    a("s_load_dwordx2 s[10:11], s[0:1], 56")
    tile_map(a, 36, 37)
    a("v_and_b32 v1, 63, v0")
    a("v_lshrrev_b32 v2, 6, v0")
    a("v_lshrrev_b32 v22, 4, v1")
    a("v_readfirstlane_b32 s38, v2")
    a("v_and_b32 v23, 15, v1")
    a("s_lshl_b32 s39, s36, 6")
    a("s_mul_i32 s40, s37, 160")
    a("s_and_b32 s49, s38, 3")
    a("s_lshr_b32 s50, s38, 2")
    a("s_lshl_b32 s42, s38, 3")
    for j in range(2):
        a(f"s_add_u32 s43, s42, {4 * j}")
        a("v_add_u32 v2, s43, v22")
        a("v_and_b32 v3, 15, v2")
        a("v_xor_b32 v3, v3, v23")
        a("v_add_u32 v2, s39, v2")
        a("v_mul_u32_u24 v2, 1280, v2")
        a(f"v_lshl_add_u32 v{4 + j}, v3, 4, v2")
    a("s_add_u32 s43, s38, 8")
    a("s_add_u32 s44, s38, 16")
    a("s_cmp_lt_u32 s38, 4")
    a("s_cselect_b32 s44, s44, s43")
    a("v_lshlrev_b32 v2, 4, v1")
    a("s_mul_i32 s55, s37, 102400")
    for j, sp in enumerate((38, 43, 44)):
        a(f"s_lshl_b32 s{52 + j}, s{sp}, 10")
        a(f"s_add_u32 s51, s{52 + j}, s55")
        a(f"v_add_u32 v{8 + j}, s51, v2")
        a(f"s_add_u32 s{52 + j}, s{52 + j}, 16384")
    a("s_lshl_b32 s45, s38, 11")
    a("s_waitcnt lgkmcnt(0)")
    srd_off(a, 12, 8, 9, WS_WO, SZ_WO)
    srd_off(a, 20, 8, 9, WS_O, SZ_O)
    srd_off(a, 24, 8, 9, WS_B, SZ_B)
    srd_off(a, 28, 8, 9, WS_G, SZ_G)
    srd(a, 32, 10, 11, SZ_OUT)
    prof_init(a, 8, 9, 38, 2)
    prof(a, 0)

    def issue(stage, slot):
        a(f"s_mov_b32 s47, {stage * 256}")
        a(f"s_mov_b32 s48, {stage * 20480}")
        for j in range(2):
            a(f"s_add_u32 m0, s45, {slot * K3_STG + j * 1024}")
            a("s_nop 0")
            a(f"buffer_load_dwordx4 v{4 + j}, s[20:23], s47 offen lds")
        for j in range(3):
            a(f"s_add_u32 m0, s{52 + j}, {slot * K3_STG}")
            a("s_nop 0")
            a(f"buffer_load_dwordx4 v{8 + j}, s[12:15], s48 offen lds")

    for st in range(4):
        issue(st, st)
    a("s_lshl_b32 s42, s36, 3")
    a("s_add_u32 s42, s42, s37")
    a("s_lshl_b32 s42, s42, 3")
    a("s_add_u32 s42, s42, s38")
    a("s_mul_i32 s42, s42, 1280")
    a("s_mul_i32 s43, s38, 1280")
    a("v_lshlrev_b32 v2, 4, v1")
    a("v_lshlrev_b32 v3, 2, v1")
    a(f"s_add_u32 m0, s43, {K3_B}")
    a("s_nop 0")
    a("buffer_load_dwordx4 v2, s[24:27], s42 offen lds")
    a("buffer_load_dword v3, s[24:27], s42 offen offset:1024 lds")
    a("s_lshl_b32 s42, s49, 4")
    a("v_add_u32 v2, s42, v23")
    a("v_add_u32 v3, s39, v2")
    a("v_lshlrev_b32 v3, 2, v3")
    a("buffer_load_dword v16, v3, s[28:31], 0 offen")
    a("v_mul_u32_u24 v2, 160, v2")
    a("v_lshl_add_u32 v2, v22, 3, v2")
    a("s_mul_i32 s43, s50, 96")
    a(f"s_add_u32 s43, s43, {K3_B}")
    a("v_add_u32 v17, s43, v2")
    for j in range(2):
        a("s_mul_i32 s43, s38, 80")
        a(f"s_add_u32 s43, s43, {64 * j}")
        a("v_add_u32 v2, s43, v1")
        a("v_mul_u32_u24 v3, 6554, v2")
        a("v_lshrrev_b32 v3, 16, v3")
        a("v_mul_u32_u24 v15, 10, v3")
        a("v_sub_u32 v15, v2, v15")
        a("v_lshlrev_b32 v15, 4, v15")
        a("v_add_u32 v3, s39, v3")
        a("v_mul_u32_u24 v3, 1280, v3")
        a(f"v_add3_u32 v{12 + j}, v3, v15, s40")
        a("v_lshlrev_b32 v2, 4, v2")
        a(f"v_add_u32 v{32 + j}, {K3_B}, v2")
    BV = 104
    RA, RW = 24, 28
    a("s_lshl_b32 s43, s49, 12")
    a("v_lshlrev_b32 v2, 8, v23")
    a("v_add_u32 v2, s43, v2")
    a("s_lshl_b32 s43, s50, 3")
    for i in range(2):
        a(f"s_add_u32 s44, s43, {4 * i}")
        a("v_add_u32 v3, s44, v22")
        a("v_xor_b32 v3, v3, v23")
        a(f"v_lshl_add_u32 v{RA + i}, v3, 4, v2")
        a(f"v_add_u32 v{RA + 2 + i}, {2 * K3_STG}, v{RA + i}")
    a("s_mul_i32 s43, s50, 10240")
    a("s_add_u32 s43, s43, 16384")
    wread_addr(a, RW, RW + 1, 43)
    a(f"v_add_u32 v{RW + 2}, {2 * K3_STG}, v{RW}")
    a(f"v_add_u32 v{RW + 3}, {2 * K3_STG}, v{RW + 1}")
    a("v_lshlrev_b32 v21, 4, v1")
    a("s_mul_i32 s43, s49, 5120")
    a(f"s_add_u32 s43, s43, {K3_STG}")
    a("v_add_u32 v21, s43, v21")
    AF = (36, 40)
    WF = (44, 64)
    ACC = 84

    def reads(t):
        st, i = t >> 1, t & 1
        slot = st % 4
        hi = slot >> 1
        so = (slot & 1) * K3_STG
        r = [f"ds_read_b128 {vr(AF[i], 4)}, v{RA + 2 * hi + i} offset:{so}"]
        for n in range(5):
            off = so + i * 5120 + n * 32
            r.append(f"ds_read_b64_tr_b16 {vr(WF[i] + 4 * n, 2)}, v{RW + 2 * hi} offset:{off}")
            r.append(f"ds_read_b64_tr_b16 {vr(WF[i] + 4 * n + 2, 2)}, v{RW + 2 * hi + 1} offset:{off}")
        return r

    def mf(t):
        for n in range(5):
            d = ACC + 4 * n
            c = "0" if t == 0 else vr(d, 4)
            a(f"v_mfma_f32_16x16x32_bf16 {vr(d, 4)}, {vr(WF[t & 1] + 4 * n, 4)}, {vr(AF[t & 1], 4)}, {c}")

    a("s_waitcnt vmcnt(18)")
    a("s_barrier")
    prof(a, 1)
    for r in reads(0) + reads(1):
        a(r)
    a("s_waitcnt vmcnt(3) lgkmcnt(0)")
    a("s_barrier")
    prof(a, 2)
    issue(4, 0)
    mf(0)
    for r in reads(2):
        a(r)
    mf(1)
    for t in range(2, 10):
        if t == 7:
            a("s_waitcnt vmcnt(0)")
            a("s_barrier")
            prof(a, 3)
        if t < 9:
            for r in reads(t + 1):
                a(r)
            a("s_waitcnt lgkmcnt(11)")
        else:
            a("s_waitcnt lgkmcnt(0)")
        mf(t)
    a("v_sub_f32 v18, 1.0, v16")
    a("v_cvt_pk_bf16_f32 v18, v18, v18")
    a("v_lshlrev_b32 v18, 16, v18")
    a("s_nop 7")
    prof(a, 6)
    XR = 44
    a("s_cmp_eq_u32 s50, 0")
    a("s_cbranch_scc0 K3_X1")
    for n in (3, 4):
        a(f"ds_write_b128 v21, {vr(ACC + 4 * n, 4)} offset:{1024 * n}")
    a("s_waitcnt lgkmcnt(0)")
    a("s_barrier")
    for n in range(3):
        a(f"ds_read_b128 {vr(XR + 4 * n, 4)}, v21 offset:{1024 * n}")
    a("s_branch K3_FIN")
    a.label("K3_X1")
    for n in range(3):
        a(f"ds_write_b128 v21, {vr(ACC + 4 * n, 4)} offset:{1024 * n}")
    a("s_waitcnt lgkmcnt(0)")
    a("s_barrier")
    for n in (3, 4):
        a(f"ds_read_b128 {vr(XR + 4 * (n - 3), 4)}, v21 offset:{1024 * n}")
    for i in range(8):
        a(f"v_mov_b32 v{ACC + i}, v{ACC + 12 + i}")
    a.label("K3_FIN")
    for n in range(3):
        a(f"ds_read_b64 {vr(BV + 2 * n, 2)}, v17 offset:{32 * n}")
    a("s_waitcnt lgkmcnt(0)")
    for n in range(3):
        if n == 2:
            a("s_cmp_eq_u32 s50, 0")
            a("s_cbranch_scc0 K3_CP")
        for i in range(4):
            a(f"v_add_f32 v{ACC + 4 * n + i}, v{ACC + 4 * n + i}, v{XR + 4 * n + i}")
        for h in range(2):
            e = ACC + 4 * n + 2 * h
            bp = BV + 2 * n + h
            a(f"v_cvt_pk_bf16_f32 v19, v{e}, v{e + 1}")
            a("v_lshlrev_b32 v4, 16, v19")
            a("v_and_b32 v5, 0xffff0000, v19")
            a(f"v_lshlrev_b32 v6, 16, v{bp}")
            a(f"v_and_b32 v7, 0xffff0000, v{bp}")
            a("v_mul_f32 v4, v16, v4")
            a("v_mul_f32 v5, v16, v5")
            a("v_mul_f32 v6, v18, v6")
            a("v_mul_f32 v7, v18, v7")
            a("v_cvt_pk_bf16_f32 v19, v4, v5")
            a("v_cvt_pk_bf16_f32 v20, v6, v7")
            a("v_lshlrev_b32 v4, 16, v19")
            a("v_and_b32 v5, 0xffff0000, v19")
            a("v_lshlrev_b32 v6, 16, v20")
            a("v_and_b32 v7, 0xffff0000, v20")
            a("v_add_f32 v4, v4, v6")
            a("v_add_f32 v5, v5, v7")
            a(f"v_cvt_pk_bf16_f32 v{bp}, v4, v5")
        a(f"ds_write_b64 v17, {vr(BV + 2 * n, 2)} offset:{32 * n}")
    a.label("K3_CP")
    a("s_waitcnt lgkmcnt(0)")
    a("s_barrier")
    a("ds_read_b128 v[4:7], v32")
    a("ds_read_b128 v[8:11], v33")
    a("s_waitcnt lgkmcnt(1)")
    a("buffer_store_dwordx4 v[4:7], v12, s[32:35], 0 offen")
    a("v_cmp_gt_u32 vcc, 16, v1")
    a("s_and_saveexec_b64 s[50:51], vcc")
    a("s_waitcnt lgkmcnt(0)")
    a("buffer_store_dwordx4 v[8:11], v13, s[32:35], 0 offen")
    a("s_mov_b64 exec, s[50:51]")
    a.label("K3_PEND")
    prof(a, 12)
    a.label("K3_END")
    a("s_endpgm")
    return a.text()


def desc(name, vgpr, sgpr=96):
    acc = (vgpr + 3) // 4 * 4
    return f""".amdhsa_kernel {name}
  .amdhsa_next_free_vgpr {vgpr}
  .amdhsa_next_free_sgpr {sgpr}
  .amdhsa_accum_offset {acc}
  .amdhsa_group_segment_fixed_size 0
  .amdhsa_kernarg_size 80
  .amdhsa_user_sgpr_count 2
  .amdhsa_user_sgpr_kernarg_segment_ptr 1
  .amdhsa_system_sgpr_workgroup_id_x 1
.end_amdhsa_kernel
"""


def main():
    hdr = f"""; gated_mix__mha_block__dense_activation_relu__prompt : 3 kernels (generated by gen.py, hand-designed)
; @launch kernel=k1_kernel grid=(256,1,1) block=(512,1,1) lds={K1_LDS}
; @launch kernel=k2_kernel grid=(256,1,1) block=(768,1,1) lds={K2_LDS}
; @launch kernel=k3_kernel grid=(256,1,1) block=(512,1,1) lds={K3_LDS}
.amdgcn_target "amdgcn-amd-amdhsa--gfx950"
.text
"""
    body = ""
    for name, fn in (("k1_kernel", k1), ("k2_kernel", k2), ("k3_kernel", k3)):
        body += f".globl {name}\n.p2align 8\n.type {name},@function\n" + fn()
    tail = '.section .rodata,"a"\n.p2align 6\n'
    tail += desc("k1_kernel", 168)
    tail += ".p2align 6\n" + desc("k2_kernel", 144)
    tail += ".p2align 6\n" + desc("k3_kernel", 116)
    open(OUT, "w").write(hdr + body + tail)


if __name__ == "__main__":
    main()
```

```python
import struct, sys

OUT = sys.argv[1] if len(sys.argv) > 1 else "gated_mix__mha_block__dense_activation_relu__prompt.s"

WS_Q = 0
SZ_Q = 32 * 2048 * 48
WS_KV = 0x400000
HEAD_KV = 64 * 2880
SZ_KV = 32 * HEAD_KV
WS_H = 0xC00000
SZ_H = 2048 * 3456
WS_O = 0x1400000
SZ_O = 2048 * 1280
WS_G = 0x1800000
SZ_G = 2048 * 4
WS_B = 0x1A00000
SZ_B = 2048 * 1280
WS_WO = 0x1E00000

SZ_X = 2048 * 1280
SZ_WQKV = 640 * 3840
SZ_WO = 640 * 1280
SZ_W1 = 640 * 3456
SZ_W2 = 1728 * 1280
SZ_OUT = 2048 * 1280


def f32bits(x):
    return struct.unpack("<I", struct.pack("<f", x))[0]


C_SCALE = 1.4426950408889634 / (20 ** 0.5)
LOG2E = 1.4426950408889634


PROF = int(__import__("os").environ.get("PROF", "0"))
WS_T = 0x2000000
XP_PF = int(__import__("os").environ.get("XP_PF", "0"))
XP_ROT = int(__import__("os").environ.get("XP_ROT", "1"))
XP_PRIO = int(__import__("os").environ.get("XP_PRIO", "0"))
XP_RPM = int(__import__("os").environ.get("XP_RPM", "1"))
XP_DSL = eval(__import__("os").environ.get("XP_DSL", "(7, 10, 13)"))
XP_FDEL = int(__import__("os").environ.get("XP_FDEL", "1"))
XP_FS = eval(__import__("os").environ.get("XP_FS", "(2, 2, 2, 2, 2, 2, 2)"))
XP_QX = int(__import__("os").environ.get("XP_QX", "0"))
XP_NOLDS = int(__import__("os").environ.get("XP_NOLDS", "0"))
XP_NOFFN = int(__import__("os").environ.get("XP_NOFFN", "0"))


def prof_init(a, wsl, wsh, wave_s, kidx=0):
    if not PROF:
        return
    a(f"s_add_u32 s92, s{wsl}, {WS_T + kidx * 0x100000}")
    a(f"s_addc_u32 s93, s{wsh}, 0")
    a("s_and_b32 s93, s93, 0xffff")
    a("s_mov_b32 s94, 0x100000")
    a("s_mov_b32 s95, 0x00020000")
    a("s_lshl_b32 s91, s2, 4")
    a(f"s_add_u32 s91, s91, s{wave_s}")
    a("s_lshl_b32 s91, s91, 7")


def prof(a, slot, tmpv=2):
    if not PROF:
        return
    a("s_memtime s[88:89]")
    a("s_waitcnt lgkmcnt(0)")
    a(f"v_mov_b32 v{tmpv}, s88")
    a(f"v_mov_b32 v{tmpv + 1}, 0")
    a(f"buffer_store_dword v{tmpv}, v{tmpv + 1}, s[92:95], s91 offen offset:{4 * slot}")
    if slot == 0:
        a(f"v_mov_b32 v{tmpv}, s86")
        a(f"buffer_store_dword v{tmpv}, v{tmpv + 1}, s[92:95], s91 offen offset:60")
    if slot in (0, 12):
        a("s_memrealtime s[88:89]")
        a("s_waitcnt lgkmcnt(0)")
        a(f"v_mov_b32 v{tmpv}, s88")
        a(f"buffer_store_dword v{tmpv}, v{tmpv + 1}, s[92:95], s91 offen offset:{4 * (13 if slot == 0 else 14)}")


class Asm:
    def __init__(self):
        self.lines = []

    def __call__(self, s):
        self.lines.append("    " + s)

    def label(self, l):
        self.lines.append(l + ":")

    def c(self, s):
        self.lines.append("    ; " + s)

    def text(self):
        return "\n".join(self.lines) + "\n"


def vr(b, n=1):
    return f"v{b}" if n == 1 else f"v[{b}:{b + n - 1}]"


def sr(b, n=1):
    return f"s{b}" if n == 1 else f"s[{b}:{b + n - 1}]"


def srd(a, d, lo, hi, size):
    a(f"s_mov_b32 s{d}, s{lo}")
    a(f"s_and_b32 s{d + 1}, s{hi}, 0xffff")
    a(f"s_mov_b32 s{d + 2}, {size}")
    a(f"s_mov_b32 s{d + 3}, 0x00020000")


def srd_off(a, d, lo, hi, off, size):
    a(f"s_add_u32 s{d}, s{lo}, {off}")
    a(f"s_addc_u32 s{d + 1}, s{hi}, 0")
    a(f"s_and_b32 s{d + 1}, s{d + 1}, 0xffff")
    a(f"s_mov_b32 s{d + 2}, {size}")
    a(f"s_mov_b32 s{d + 3}, 0x00020000")


K1_STAGE = 45056
K1_LDS = 3 * K1_STAGE


def k1():
    a = Asm()
    a.label("k1_kernel")
    if PROF:
        a("s_memtime s[86:87]")
    a("s_cmp_ge_u32 s2, 256")
    a("s_cbranch_scc1 K1_END")
    a("s_and_b32 s3, s2, 7")
    a("s_lshr_b32 s4, s2, 3")
    a("s_lshl_b32 s3, s3, 5")
    a("s_add_u32 s3, s3, s4")
    a("s_cmp_ge_u32 s3, 253")
    a("s_cbranch_scc1 K1_PACK")
    a("s_mul_i32 s25, s3, 373")
    a("s_lshr_b32 s25, s25, 12")
    a("s_mul_i32 s4, s25, 11")
    a("s_sub_u32 s24, s3, s4")
    a("s_load_dwordx2 s[4:5], s[0:1], 0")
    a("s_load_dwordx2 s[6:7], s[0:1], 8")
    a("s_load_dwordx2 s[8:9], s[0:1], 32")
    a("s_load_dwordx2 s[10:11], s[0:1], 72")
    a("v_and_b32 v1, 63, v0")
    a("v_lshrrev_b32 v2, 6, v0")
    a("s_nop 0")
    a("v_readfirstlane_b32 s26, v2")
    a("s_lshr_b32 s27, s25, 2")
    a("s_min_u32 s27, s27, 3")
    a("s_mul_i32 s30, s24, 192")
    a("s_waitcnt lgkmcnt(0)")
    srd(a, 12, 4, 5, SZ_X)
    a("s_sub_u32 s29, s25, 12")
    a(f"s_mov_b32 s18, {SZ_W1}")
    a("s_mov_b32 s28, 3456")
    a("s_cmp_lt_u32 s25, 12")
    a("s_cselect_b32 s16, s6, s8")
    a("s_cselect_b32 s17, s7, s9")
    a(f"s_cselect_b32 s18, {SZ_WQKV}, s18")
    a("s_cselect_b32 s28, 3840, s28")
    a("s_cselect_b32 s29, s25, s29")
    a("s_and_b32 s17, s17, 0xffff")
    a("s_mov_b32 s19, 0x00020000")
    a("s_mul_i32 s29, s29, 160")
    a(f"s_mov_b32 s31, {WS_KV}")
    a(f"s_mov_b32 s22, {SZ_KV}")
    a("s_cmp_eq_u32 s27, 0")
    a(f"s_cselect_b32 s31, {WS_Q}, s31")
    a(f"s_cselect_b32 s22, {SZ_Q}, s22")
    a("s_cmp_eq_u32 s27, 3")
    a(f"s_cselect_b32 s31, {WS_H}, s31")
    a(f"s_cselect_b32 s22, {SZ_H}, s22")
    a("s_add_u32 s20, s10, s31")
    a("s_addc_u32 s21, s11, 0")
    a("s_and_b32 s21, s21, 0xffff")
    a("s_mov_b32 s23, 0x00020000")
    prof_init(a, 10, 11, 26, 0)
    prof(a, 0)
    a("s_lshr_b32 s32, s26, 1")
    a("s_and_b32 s33, s26, 1")
    a("v_lshrrev_b32 v2, 3, v1")
    a("v_and_b32 v3, 7, v1")
    a("v_xor_b32 v3, v3, v2")
    a("v_lshlrev_b32 v3, 4, v3")
    a("v_mul_u32_u24 v2, 1280, v2")
    a("v_add_u32 v4, v2, v3")
    a("v_add_u32 v5, 10240, v4")
    a("v_add_u32 v6, 20480, v4")
    a("s_mul_i32 s34, s26, 24")
    a("s_add_u32 s34, s34, s30")
    a("s_mul_i32 s34, s34, 1280")
    a("s_mov_b32 s35, 0")
    a("s_lshl_b32 s36, s28, 6")
    a("s_add_u32 s62, s34, 1280")
    a("s_mul_i32 s61, s28, 640")
    a("s_add_u32 s60, s24, s25")
    a("s_mul_i32 s63, s60, 43")
    a("s_lshr_b32 s63, s63, 7")
    a("s_mul_i32 s63, s63, 3")
    a("s_sub_u32 s60, s60, s63")
    a(f"s_mul_i32 s60, s60, {XP_ROT}")
    a("s_lshl_b32 s63, s60, 7")
    a("s_add_u32 s34, s34, s63")
    a("s_mul_i32 s35, s60, s36")
    a("s_add_u32 s37, s26, 8")
    a("s_add_u32 s38, s26, 16")
    a("s_cmp_lt_u32 s26, 4")
    a("s_cselect_b32 s38, s38, s37")
    a("s_lshl_b32 s39, s29, 1")
    for j, sidx in enumerate((26, 37, 38)):
        a(f"s_lshl_b32 s40, s{sidx}, 6")
        a("v_add_u32 v2, s40, v1")
        a("v_mul_u32_u24 v3, 3277, v2")
        a("v_lshrrev_b32 v3, 16, v3")
        a("v_mul_u32_u24 v22, 20, v3")
        a("v_sub_u32 v2, v2, v22")
        a("v_lshrrev_b32 v22, 2, v3")
        a("v_and_b32 v22, 2, v22")
        a("v_xor_b32 v2, v2, v22")
        a("v_lshlrev_b32 v2, 4, v2")
        a("v_mul_lo_u32 v3, v3, s28")
        a(f"v_add3_u32 v{7 + j}, v2, v3, s39")
    a("s_mul_i32 s41, s26, 3072")
    a("s_lshl_b32 s42, s26, 10")
    a("s_add_u32 s42, s42, 24576")
    a("s_lshl_b32 s43, s37, 10")
    a("s_add_u32 s43, s43, 24576")
    a("s_lshl_b32 s44, s38, 10")
    a("s_add_u32 s44, s44, 24576")

    def dma_pieces(buf):
        base = buf * K1_STAGE
        g = []
        for j in range(3):
            x = [f"s_add_u32 m0, s41, {base + j * 1024}", "s_nop 0",
                 f"buffer_load_dwordx4 v{4 + j}, s[12:15], s34 offen lds"]
            if j == 2:
                x += ["s_add_u32 s34, s34, 128", "s_sub_u32 s60, s34, 1280", "s_cmp_ge_u32 s34, s62",
                      "s_cselect_b32 s34, s60, s34"]
            g.append(x)
        for j in range(3):
            x = [f"s_add_u32 m0, s{42 + j}, {base}", "s_nop 0",
                 f"buffer_load_dwordx4 v{7 + j}, s[16:19], s35 offen lds"]
            if j == 2:
                x += ["s_add_u32 s35, s35, s36", "s_cmp_ge_u32 s35, s61", "s_cselect_b32 s35, 0, s35"]
            g.append(x)
        return g

    for b in range(3):
        for g in dma_pieces(b):
            for x in g:
                a(x)
    NPF = 0
    if XP_PF > 1:
        NPF = 3
        a("s_lshr_b32 s45, s2, 3")
        a("s_mul_i32 s45, s45, 81920")
        a("v_lshlrev_b32 v2, 7, v0")
        a("buffer_load_dword v160, v2, s[12:15], s45 offen")
        a("v_add_u32 v3, 0x10000, v2")
        a("v_cmp_gt_u32 vcc, 128, v0")
        a("v_bfrev_b32 v22, 1")
        a("v_cndmask_b32 v3, v22, v3, vcc")
        a("buffer_load_dword v161, v3, s[12:15], s45 offen")
        a("v_mul_u32_u24 v2, 21846, v0")
        a("v_lshrrev_b32 v2, 16, v2")
        a("v_mul_u32_u24 v3, 3, v2")
        a("v_sub_u32 v3, v0, v3")
        a("v_lshlrev_b32 v3, 7, v3")
        a("s_mul_i32 s45, s24, 59")
        a("v_add_u32 v2, s45, v2")
        a("v_cmp_gt_u32 vcc, 177, v0")
        a("v_mul_lo_u32 v2, v2, s28")
        a("v_add3_u32 v2, v2, v3, s39")
        a("v_cndmask_b32 v2, v22, v2, vcc")
        a("buffer_load_dword v162, v2, s[16:19], 0 offen")
    a("v_lshrrev_b32 v22, 4, v1")
    a("v_and_b32 v23, 15, v1")
    a("s_mul_i32 s45, s32, 48")
    a("v_add_u32 v2, s45, v23")
    a("v_lshlrev_b32 v2, 7, v2")
    a("v_and_b32 v3, 7, v23")
    a("v_xor_b32 v3, v3, v22")
    a("v_lshlrev_b32 v3, 4, v3")
    a("v_add_u32 v10, v2, v3")
    a("v_xor_b32 v11, 64, v10")
    for b in (1, 2):
        a(f"v_add_u32 v{10 + 2 * b}, {b * K1_STAGE}, v10")
        a(f"v_add_u32 v{11 + 2 * b}, {b * K1_STAGE}, v11")
    a("v_lshlrev_b32 v2, 3, v22")
    a("v_lshrrev_b32 v3, 2, v23")
    a("v_add_u32 v2, v2, v3")
    a("v_mul_u32_u24 v2, 320, v2")
    a("v_and_b32 v3, 3, v23")
    a("v_lshlrev_b32 v3, 3, v3")
    a("s_mul_i32 s45, s33, 160")
    a("s_add_u32 s45, s45, 24576")
    a("v_add3_u32 v2, v2, v3, s45")
    a("v_and_b32 v3, 1, v22")
    a("v_lshlrev_b32 v3, 5, v3")
    a("s_cmp_eq_u32 s33, 0")
    a("s_cselect_b32 s45, 1, -1")
    a("v_mul_lo_u32 v3, v3, s45")
    a("v_add_u32 v16, v2, v3")
    a("v_sub_u32 v17, v2, v3")
    for b in (1, 2):
        a(f"v_add_u32 v{16 + 2 * b}, {b * K1_STAGE}, v16")
        a(f"v_add_u32 v{17 + 2 * b}, {b * K1_STAGE}, v17")

    XF = (24, 36)
    WF = (48, 68)
    ACC = 88

    def reads(buf, sub, st):
        r = []
        for ti in range(3):
            r.append(f"ds_read_b128 {vr(XF[st] + 4 * ti, 4)}, v{10 + 2 * buf + sub} offset:{ti * 2048}")
        for ni in range(5):
            ad = 16 + 2 * buf + (ni & 1)
            off = ni * 32 + sub * 10240
            r.append(f"ds_read_b64_tr_b16 {vr(WF[st] + 4 * ni, 2)}, v{ad} offset:{off}")
            r.append(f"ds_read_b64_tr_b16 {vr(WF[st] + 4 * ni + 2, 2)}, v{ad} offset:{off + 1280}")
        return r

    def mfmas(st, vor, first):
        m = []
        for ni in range(5):
            for ti in range(3):
                d = ACC + 4 * (ni * 3 + ti)
                c = "0" if first else vr(d, 4)
                w = vr(WF[st] + 4 * ni, 4)
                x = vr(XF[st] + 4 * ti, 4)
                if vor:
                    m.append(f"v_mfma_f32_16x16x32_bf16 {vr(d, 4)}, {x}, {w}, {c}")
                else:
                    m.append(f"v_mfma_f32_16x16x32_bf16 {vr(d, 4)}, {w}, {x}, {c}")
        return m

    def phase(ms, rs, ds):
        rs = list(rs)
        ds = list(ds)
        for i, m in enumerate(ms):
            a(m)
            for _ in range(XP_RPM):
                if rs:
                    a(rs.pop(0))
            if ds and i in XP_DSL:
                for x in ds.pop(0):
                    a(x)

    def loop(vor):
        a(f"s_waitcnt vmcnt({12 + NPF})")
        a("s_barrier")
        prof(a, 1)
        for r in reads(0, 0, 0):
            a(r)
        pend = []
        for ks in range(10):
            buf = ks % 3
            a("s_waitcnt lgkmcnt(0)")
            phase(mfmas(0, vor, ks == 0), reads(buf, 1, 1), pend)
            pend = []
            nxt = []
            if ks < 9:
                a(f"s_waitcnt vmcnt({(6 + NPF if ks < 2 else 6) if ks < 8 else 0}) lgkmcnt(0)")
                a("s_barrier")
                prof(a, 2 + ks)
                nxt = reads((ks + 1) % 3, 0, 0)
            else:
                a("s_waitcnt lgkmcnt(0)")
            d = []
            if ks + 3 < 10:
                p = dma_pieces(buf)
                d = p[:3]
                pend = p[3:]
            phase(mfmas(1, vor, False), nxt, d)
        a("s_barrier")
        a("s_nop 7")
        a("s_nop 3")
        prof(a, 11)

    a("s_cmp_eq_u32 s27, 2")
    a("s_cbranch_scc1 K1_VLOOP")
    loop(False)
    a("s_mul_i32 s45, s32, 48")
    a("v_add_u32 v4, s45, v23")
    a("s_cmp_eq_u32 s27, 3")
    a("s_cbranch_scc1 K1_EPI_FFN")
    a("s_cmp_eq_u32 s27, 0")
    a(f"s_cselect_b32 s48, {f32bits(C_SCALE)}, 1.0")
    NO = 148
    a("v_mul_u32_u24 v4, 48, v4")
    a("s_mul_i32 s46, s33, 36864")
    a("v_add_u32 v4, s46, v4")
    for ni in range(5):
        a(f"v_add_u32 v2, {4 * ni}, v22")
        a("v_mul_u32_u24 v3, 13, v2")
        a("v_lshrrev_b32 v3, 6, v3")
        a("v_mul_u32_u24 v5, 5, v3")
        a(f"v_sub_u32 v{NO + 5 + ni}, v2, v5")
        a("v_mul_u32_u24 v3, 9216, v3")
        a(f"v_lshl_add_u32 v3, v{NO + 5 + ni}, 3, v3")
        a(f"v_add_u32 v{NO + ni}, v3, v4")
    a("v_mov_b32 v8, 0x3f803f80")
    a("v_mov_b32 v9, 0x00003f80")
    for ti in range(3):
        for ni in range(5):
            d = ACC + 4 * (ni * 3 + ti)
            for i in range(4):
                a(f"v_mul_f32 v{d + i}, s48, v{d + i}")
            a(f"v_cvt_pk_bf16_f32 v{d}, v{d}, v{d + 1}")
            a(f"v_cvt_pk_bf16_f32 v{d + 1}, v{d + 2}, v{d + 3}")
            a(f"ds_write_b64 v{NO + ni}, {vr(d, 2)} offset:{768 * ti}")
    for ni in range(1, 5):
        a(f"v_cmp_eq_u32 vcc, 4, v{NO + 5 + ni}")
        a("s_and_saveexec_b64 s[50:51], vcc")
        for ti in range(3):
            a(f"ds_write_b64 v{NO + ni}, v[8:9] offset:{768 * ti + 8}")
        a("s_mov_b64 exec, s[50:51]")
    a("s_mul_i32 s52, s26, 9216")
    a("s_and_b32 s46, s25, 3")
    a("s_lshl_b32 s46, s46, 3")
    a("s_add_u32 s46, s46, s26")
    a("s_sub_u32 s57, 2048, s30")
    a("s_min_u32 s57, s57, 192")
    a("s_mul_i32 s57, s57, 3")
    a("s_mov_b32 s56, 0")
    a("s_mov_b32 s58, 1000")
    a("s_cmp_eq_u32 s27, 0")
    a("s_cbranch_scc0 K1_CPK")
    a("s_mul_i32 s53, s46, 98304")
    a("s_mul_i32 s47, s30, 48")
    a("s_add_u32 s53, s53, s47")
    a("s_mov_b32 s54, 0")
    a("s_mov_b32 s55, 0")
    a("s_branch K1_COPY")
    a.label("K1_CPK")
    a(f"s_mul_i32 s53, s46, {HEAD_KV}")
    a("s_mul_i32 s47, s30, 90")
    a("s_add_u32 s53, s53, s47")
    a("s_mov_b32 s54, 683")
    a("s_mov_b32 s55, 1344")
    a("s_branch K1_COPY")
    a.label("K1_EPI_FFN")
    a("v_mul_u32_u24 v4, 336, v4")
    a("s_mul_i32 s46, s33, 160")
    a("v_lshl_add_u32 v4, v22, 3, v4")
    a("v_add_u32 v4, s46, v4")
    for ti in range(3):
        for ni in range(5):
            d = ACC + 4 * (ni * 3 + ti)
            for i in range(4):
                a(f"v_max_f32 v{d + i}, 0, v{d + i}")
            a(f"v_cvt_pk_bf16_f32 v{d}, v{d}, v{d + 1}")
            a(f"v_cvt_pk_bf16_f32 v{d + 1}, v{d + 2}, v{d + 3}")
            a(f"ds_write_b64 v4, {vr(d, 2)} offset:{5376 * ti + 32 * ni}")
    a("s_mul_i32 s52, s26, 8064")
    a("s_mul_i32 s46, s26, 24")
    a("s_add_u32 s46, s46, s30")
    a("s_mul_i32 s53, s46, 3456")
    a("s_lshl_b32 s47, s29, 1")
    a("s_add_u32 s53, s53, s47")
    a("s_mov_b32 s54, 3277")
    a("s_mov_b32 s55, 3136")
    a("s_mov_b32 s56, 16")
    a("s_sub_i32 s57, 2048, s46")
    a("s_max_i32 s57, s57, 0")
    a("s_min_u32 s57, s57, 24")
    a("s_mul_i32 s57, s57, 20")
    a("s_sub_u32 s58, 1728, s29")
    a("s_lshr_b32 s58, s58, 3")
    a("s_branch K1_COPY")
    a.label("K1_VLOOP")
    loop(True)
    a("s_mul_i32 s46, s33, 32256")
    for ni in range(5):
        a(f"v_add_u32 v2, {16 * ni}, v23")
        a("v_mul_u32_u24 v3, 205, v2")
        a("v_lshrrev_b32 v3, 12, v3")
        a("v_mul_u32_u24 v4, 20, v3")
        a(f"v_sub_u32 v{NO + 10 + ni}, v2, v4")
        a("v_mul_u32_u24 v3, 8064, v3")
        a(f"v_lshlrev_b32 v4, 6, v{NO + 10 + ni}")
        a(f"v_add3_u32 v{NO + ni}, v3, v4, s46")
        a(f"v_bfe_u32 v{NO + 5 + ni}, v{NO + 10 + ni}, 2, 2")
    a("v_mov_b32 v8, 0x3f803f80")
    a("v_mov_b32 v9, 0x3f803f80")
    a("s_mul_i32 s45, s32, 48")
    for ti in range(3):
        a(f"s_add_u32 s49, s45, {16 * ti}")
        a("v_lshlrev_b32 v2, 2, v22")
        a("v_add_u32 v2, s49, v2")
        a("v_lshrrev_b32 v3, 5, v2")
        a("v_mul_u32_u24 v3, 1344, v3")
        a("v_bfe_u32 v2, v2, 2, 3")
        a("v_bfe_u32 v4, v2, 1, 1")
        a("v_lshl_add_u32 v10, v4, 3, v3")
        a("v_lshrrev_b32 v4, 1, v2")
        a("v_and_b32 v4, 2, v4")
        a("v_and_b32 v2, 1, v2")
        a("v_or_b32 v11, v2, v4")
        for ni in range(5):
            d = ACC + 4 * (ni * 3 + ti)
            a(f"v_cvt_pk_bf16_f32 v{d}, v{d}, v{d + 1}")
            a(f"v_cvt_pk_bf16_f32 v{d + 1}, v{d + 2}, v{d + 3}")
            a(f"v_xor_b32 v6, v11, v{NO + 5 + ni}")
            a("v_lshlrev_b32 v6, 4, v6")
            a(f"v_add3_u32 v6, v6, v10, v{NO + ni}")
            a(f"ds_write_b64 v6, {vr(d, 2)}")
            if ni < 4:
                a("v_xor_b32 v7, 1, v11")
                a("v_lshlrev_b32 v7, 4, v7")
                a(f"v_add3_u32 v7, v7, v10, v{NO + ni}")
                a(f"v_cmp_eq_u32 vcc, 0, v{NO + 10 + ni}")
                a("s_and_saveexec_b64 s[50:51], vcc")
                a("ds_write_b64 v7, v[8:9] offset:1280")
                a("s_mov_b64 exec, s[50:51]")
    a("s_mul_i32 s52, s26, 8064")
    a("s_and_b32 s46, s25, 3")
    a("s_lshl_b32 s46, s46, 3")
    a("s_add_u32 s46, s46, s26")
    a(f"s_mul_i32 s53, s46, {HEAD_KV}")
    a("s_mul_i32 s47, s30, 90")
    a("s_add_u32 s53, s53, s47")
    a("s_add_u32 s53, s53, 1536")
    a("s_mov_b32 s54, 781")
    a("s_mov_b32 s55, 1536")
    a("s_mov_b32 s56, 0")
    a("s_sub_u32 s57, 2048, s30")
    a("s_min_u32 s57, s57, 192")
    a("s_lshr_b32 s57, s57, 5")
    a("s_mul_i32 s57, s57, 84")
    a("s_mov_b32 s58, 1000")
    a.label("K1_COPY")
    a("s_mov_b32 s59, 20")
    for it in range(9):
        ga = 24 + it
        la = 34 + it
        a(f"v_add_u32 v2, {64 * it}, v1")
        a("v_mul_lo_u32 v3, v2, s54")
        a("v_lshrrev_b32 v3, 16, v3")
        a("v_lshlrev_b32 v4, 4, v2")
        a("v_mul_lo_u32 v5, v3, s55")
        a(f"v_add3_u32 v{ga}, v4, v5, s53")
        a("v_mul_lo_u32 v5, v3, s56")
        a(f"v_add3_u32 v{la}, v4, v5, s52")
        a("v_mul_lo_u32 v5, v3, s59")
        a("v_sub_u32 v5, v2, v5")
        a("v_cmp_gt_u32 vcc, s57, v2")
        a("v_cmp_gt_i32 s[50:51], s58, v5")
        a("s_and_b64 vcc, vcc, s[50:51]")
        a("v_bfrev_b32 v5, 1")
        a(f"v_cndmask_b32 v{ga}, v5, v{ga}, vcc")
    a("s_waitcnt lgkmcnt(0)")
    a("s_barrier")
    for it in range(9):
        a(f"ds_read_b128 {vr(48 + 4 * it, 4)}, v{34 + it}")
    for it in range(9):
        a(f"s_waitcnt lgkmcnt({8 - it})")
        a(f"buffer_store_dwordx4 {vr(48 + 4 * it, 4)}, v{24 + it}, s[20:23], 0 offen sc1")
    a.label("K1_PEND")
    prof(a, 12)
    a.label("K1_END")
    a("s_endpgm")
    a.label("K1_PACK")
    a("s_load_dwordx2 s[4:5], s[0:1], 16")
    a("s_load_dwordx2 s[6:7], s[0:1], 72")
    a("s_sub_u32 s3, s3, 253")
    a("s_mul_i32 s3, s3, 17408")
    a("v_add_u32 v1, s3, v0")
    a("v_lshlrev_b32 v2, 4, v1")
    a("s_mov_b32 s20, 52429")
    a("s_mov_b32 s21, 102400")
    a("v_bfrev_b32 v3, 1")
    a("s_waitcnt lgkmcnt(0)")
    srd(a, 12, 4, 5, SZ_WO)
    srd_off(a, 16, 6, 7, WS_WO, SZ_WO)
    for j in range(34):
        a(f"s_mov_b32 s22, {j * 8192}")
        a(f"buffer_load_dwordx4 {vr(24 + 4 * j, 4)}, v2, s[12:15], s22 offen")
    for j in range(34):
        a(f"v_add_u32 v4, {j * 512}, v1")
        a("v_mul_lo_u32 v5, v4, s20")
        a("v_lshrrev_b32 v5, 22, v5")
        a("v_mul_u32_u24 v6, 80, v5")
        a("v_sub_u32 v6, v4, v6")
        a("v_mul_u32_u24 v7, 6554, v6")
        a("v_lshrrev_b32 v7, 16, v7")
        a("v_mul_u32_u24 v8, 10, v7")
        a("v_sub_u32 v6, v6, v8")
        a("v_lshrrev_b32 v8, 1, v5")
        a("v_and_b32 v8, 4, v8")
        a("v_xor_b32 v5, v5, v8")
        a("v_mul_u32_u24 v5, 160, v5")
        a("v_mul_lo_u32 v7, v7, s21")
        a("v_lshl_add_u32 v5, v6, 4, v5")
        a("v_add_u32 v5, v5, v7")
        a("v_cmp_gt_u32 vcc, 51200, v4")
        a(f"v_cndmask_b32 v{16 + (j & 3)}, v3, v5, vcc")
        a("s_waitcnt vmcnt(33)")
        a(f"buffer_store_dwordx4 {vr(24 + 4 * j, 4)}, v{16 + (j & 3)}, s[16:19], 0 offen")
    a("s_endpgm")
    return a.text()


GS_SLOT = 9216


class GW:
    VA = 4
    VW = 8
    RA = 13
    RW = 14
    AF = 24
    WF = 40
    ACC = 60


def gw_setup(a, sR0, sC0B, strideA, sLds):
    a("v_lshrrev_b32 v22, 4, v1")
    a("v_and_b32 v23, 15, v1")
    a("v_lshrrev_b32 v2, 2, v1")
    a("v_sub_u32 v3, 0, v22")
    a("v_and_b32 v3, 3, v3")
    a("v_and_b32 v15, 3, v1")
    a("v_xor_b32 v3, v3, v15")
    a("v_lshlrev_b32 v3, 4, v3")
    a(f"v_add_u32 v2, s{sR0}, v2")
    a(f"s_mov_b32 s60, {strideA}")
    a("v_mul_lo_u32 v2, v2, s60")
    a(f"v_add_u32 v{GW.VA}, v2, v3")
    for i in range(1, 4):
        a(f"v_add_u32 v{GW.VA + i}, {16 * i * strideA}, v{GW.VA}")
    for i in range(5):
        a(f"v_add_u32 v2, {64 * i}, v1")
        a("v_mul_u32_u24 v3, 6554, v2")
        a("v_lshrrev_b32 v3, 16, v3")
        a("v_mul_u32_u24 v15, 10, v3")
        a("v_sub_u32 v2, v2, v15")
        a("v_lshlrev_b32 v2, 4, v2")
        a("v_mul_u32_u24 v3, 1280, v3")
        a(f"v_add3_u32 v{GW.VW + i}, v2, v3, s{sC0B}")
    a("v_lshrrev_b32 v2, 2, v23")
    a("v_sub_u32 v2, 0, v2")
    a("v_and_b32 v2, 3, v2")
    a("v_xor_b32 v2, v2, v22")
    a("v_lshlrev_b32 v2, 4, v2")
    a("v_lshl_add_u32 v2, v23, 6, v2")
    a(f"v_add_u32 v{GW.RA}, s{sLds}, v2")
    a("v_lshlrev_b32 v2, 3, v22")
    a("v_lshrrev_b32 v3, 2, v23")
    a("v_add_u32 v2, v2, v3")
    a("v_mul_u32_u24 v2, 160, v2")
    a("v_and_b32 v3, 3, v23")
    a("v_lshlrev_b32 v3, 3, v3")
    a("v_add_u32 v2, 4096, v2")
    a(f"v_add3_u32 v{GW.RW}, v2, v3, s{sLds}")


def gw_issue(a, slot, srdA, srdW, sKA, sKW, sLds):
    for i in range(4):
        a(f"s_add_u32 m0, s{sLds}, {slot * GS_SLOT + i * 1024}")
        a("s_nop 0")
        a(f"buffer_load_dwordx4 v{GW.VA + i}, {sr(srdA, 4)}, s{sKA} offen lds")
    for i in range(5):
        a(f"s_add_u32 m0, s{sLds}, {slot * GS_SLOT + 4096 + i * 1024}")
        a("s_nop 0")
        a(f"buffer_load_dwordx4 v{GW.VW + i}, {sr(srdW, 4)}, s{sKW} offen lds")
    a(f"s_add_u32 s{sKA}, s{sKA}, 64")
    a(f"s_add_u32 s{sKW}, s{sKW}, {32 * 1280}")


def gw_compute(a, slot, first):
    for t in range(4):
        a(f"ds_read_b128 {vr(GW.AF + 4 * t, 4)}, v{GW.RA} offset:{slot * GS_SLOT + t * 1024}")
    for n in range(5):
        off = slot * GS_SLOT + n * 32
        a(f"ds_read_b64_tr_b16 {vr(GW.WF + 4 * n, 2)}, v{GW.RW} offset:{off}")
        a(f"ds_read_b64_tr_b16 {vr(GW.WF + 4 * n + 2, 2)}, v{GW.RW} offset:{off + 640}")
    a("s_waitcnt lgkmcnt(0)")
    for n in range(5):
        for t in range(4):
            d = GW.ACC + 4 * (n * 4 + t)
            c = "0" if first else vr(d, 4)
            a(f"v_mfma_f32_16x16x32_bf16 {vr(d, 4)}, {vr(GW.WF + 4 * n, 4)}, {vr(GW.AF + 4 * t, 4)}, {c}")


def gw_write_partials(a, sRed):
    a("v_mul_u32_u24 v2, 320, v23")
    a("v_lshl_add_u32 v2, v22, 4, v2")
    a(f"v_add_u32 v2, s{sRed}, v2")
    for n in range(5):
        for t in range(4):
            d = GW.ACC + 4 * (n * 4 + t)
            a(f"ds_write_b128 v2, {vr(d, 4)} offset:{t * 5120 + n * 64}")


def gw_read_sum(a, sW4, redbase):
    a("v_lshrrev_b32 v2, 2, v1")
    a(f"s_lshl_b32 s60, s{sW4}, 4")
    a("v_add_u32 v2, s60, v2")
    a("v_mul_u32_u24 v2, 320, v2")
    a("v_and_b32 v3, 3, v1")
    a("v_mul_u32_u24 v3, 80, v3")
    a("v_add_u32 v2, v2, v3")
    if redbase:
        a(f"v_add_u32 v2, {redbase}, v2")
    R = 24
    for src in range(4):
        for j in range(5):
            a(f"ds_read_b128 {vr(R + 20 * src + 4 * j, 4)}, v2 offset:{src * 20480 + j * 16}")
        a("s_waitcnt lgkmcnt(0)")
    for e in range(20):
        a(f"v_add_f32 v{R + e}, v{R + e}, v{R + 20 + e}")
        a(f"v_add_f32 v{R + 40 + e}, v{R + 40 + e}, v{R + 60 + e}")
    for e in range(20):
        a(f"v_add_f32 v{R + e}, v{R + e}, v{R + 40 + e}")


def tile_map(a, sRt, sCt):
    if XP_QX:
        a("s_and_b32 s60, s2, 7")
        a("s_lshr_b32 s61, s2, 3")
        a("s_lshl_b32 s62, s60, 2")
        a("s_lshr_b32 s63, s61, 3")
        a(f"s_add_u32 s{sRt}, s62, s63")
        a(f"s_and_b32 s{sCt}, s61, 7")
        return
    a("s_and_b32 s60, s2, 7")
    a("s_lshr_b32 s61, s2, 3")
    a("s_lshr_b32 s62, s60, 1")
    a("s_lshl_b32 s62, s62, 3")
    a("s_lshr_b32 s63, s61, 2")
    a(f"s_add_u32 s{sRt}, s62, s63")
    a("s_and_b32 s62, s60, 1")
    a("s_lshl_b32 s62, s62, 2")
    a("s_and_b32 s63, s61, 3")
    a(f"s_add_u32 s{sCt}, s62, s63")


K2_BUF = 24576
K2_FFN = 3 * K2_BUF
K2_FLAG = K2_FFN + 4 * 20480
K2_LDS = K2_FLAG + 64


def k2():
    a = Asm()
    a.label("k2_kernel")
    if PROF:
        a("s_memtime s[86:87]")
    a("s_cmp_ge_u32 s2, 256")
    a("s_cbranch_scc1 K2_END")
    a("s_and_b32 s3, s2, 7")
    a("s_lshl_b32 s3, s3, 2")
    a("s_lshr_b32 s4, s2, 3")
    a("s_and_b32 s4, s4, 3")
    a("s_add_u32 s36, s3, s4")
    a("s_lshr_b32 s37, s2, 5")
    if XP_QX:
        a("s_lshr_b32 s36, s2, 3")
        a("s_and_b32 s37, s2, 7")
    a("s_load_dwordx2 s[4:5], s[0:1], 0")
    a("s_load_dwordx2 s[6:7], s[0:1], 48")
    a("s_load_dwordx2 s[8:9], s[0:1], 72")
    a("v_and_b32 v1, 63, v0")
    a("v_lshrrev_b32 v2, 6, v0")
    a("s_nop 0")
    a("v_readfirstlane_b32 s38, v2")
    a("s_waitcnt lgkmcnt(0)")
    a("s_cmp_ge_u32 s38, 8")
    a("s_cbranch_scc1 K2_FFN")
    a("s_setprio 1")
    srd_off(a, 12, 8, 9, WS_KV, SZ_KV)
    srd_off(a, 16, 8, 9, WS_Q, SZ_Q)
    srd_off(a, 20, 8, 9, WS_O, SZ_O)
    srd(a, 24, 4, 5, SZ_X)
    srd(a, 28, 6, 7, 1280)
    srd_off(a, 32, 8, 9, WS_G, SZ_G)
    prof_init(a, 8, 9, 38, 1)
    prof(a, 0)
    a("v_lshlrev_b32 v16, 4, v1")
    a("s_mul_i32 s46, s38, 3072")
    a(f"s_mul_i32 s45, s36, {HEAD_KV}")
    a("s_add_u32 s45, s45, s46")
    a("s_mov_b32 s44, s45")
    a("s_mov_b32 s41, 0")
    a(f"s_mov_b32 s42, {K2_BUF}")
    a(f"s_mov_b32 s43, {2 * K2_BUF}")
    a("s_mov_b32 s40, 0")
    for sg in (41, 42):
        a(f"s_add_u32 m0, s{sg}, s46")
        a("s_nop 0")
        for j in range(3):
            a(f"buffer_load_dwordx4 v16, s[12:15], s44 offen offset:{1024 * j} lds")
        a("s_add_u32 s44, s44, 23040")
    a("v_mov_b32 v2, 0")
    a(f"v_mov_b32 v3, {K2_FLAG}")
    a("ds_write_b32 v3, v2")
    a("v_and_b32 v17, 31, v1")
    a("v_lshrrev_b32 v18, 5, v1")
    a("s_lshl_b32 s47, s37, 8")
    a("s_lshl_b32 s48, s38, 5")
    a("s_add_u32 s47, s47, s48")
    a("v_add_u32 v2, s47, v17")
    a("v_mul_u32_u24 v2, 48, v2")
    a("s_mul_i32 s48, s36, 98304")
    a("v_add_u32 v2, s48, v2")
    a("v_lshl_add_u32 v3, v18, 4, v2")
    a("buffer_load_dwordx4 v[20:23], v3, s[16:19], 0 offen")
    a("buffer_load_dwordx2 v[24:25], v2, s[16:19], 0 offen offset:32")
    a("s_lshl_b32 s48, s37, 8")
    a("s_lshl_b32 s49, s36, 3")
    a("s_add_u32 s48, s48, s49")
    a("s_add_u32 s48, s48, s38")
    a("s_mul_i32 s49, s48, 1280")
    a("v_mul_u32_u24 v2, 20, v1")
    a("buffer_load_dwordx4 v[116:119], v2, s[24:27], s49 offen")
    a("buffer_load_dword v120, v2, s[24:27], s49 offen offset:16")
    a("buffer_load_dwordx4 v[122:125], v2, s[28:31], 0 offen")
    a("buffer_load_dword v126, v2, s[28:31], 0 offen offset:16")
    a("v_mul_u32_u24 v2, 48, v17")
    a("v_lshl_add_u32 v12, v18, 4, v2")
    a("v_add_u32 v13, 32, v2")
    a("v_bfe_u32 v3, v17, 2, 2")
    a("v_lshlrev_b32 v2, 6, v17")
    a("v_add_u32 v2, 1536, v2")
    a("v_xor_b32 v19, v18, v3")
    a("v_lshl_add_u32 v14, v19, 4, v2")
    a("v_add_u32 v19, 2, v18")
    a("v_xor_b32 v19, v19, v3")
    a("v_lshl_add_u32 v15, v19, 4, v2")
    a("s_waitcnt vmcnt(0)")
    a("v_mov_b32 v2, 0")
    for j in range(5):
        xv = 116 + j
        gv = 122 + j
        a(f"v_lshlrev_b32 v3, 16, v{xv}")
        a(f"v_and_b32 v19, 0xffff0000, v{xv}")
        a(f"v_lshlrev_b32 v127, 16, v{gv}")
        a(f"v_and_b32 v128, 0xffff0000, v{gv}")
        a("v_mul_f32 v3, v3, v127")
        a("v_mul_f32 v19, v19, v128")
        a("v_cvt_pk_bf16_f32 v3, v3, v19")
        a("v_lshlrev_b32 v19, 16, v3")
        a("v_and_b32 v3, 0xffff0000, v3")
        a("v_add_f32 v2, v2, v19")
        a("v_add_f32 v2, v2, v3")
    for sh in (1, 2, 4, 8):
        a("s_nop 1")
        a(f"v_add_f32_dpp v2, v2, v2 row_shr:{sh} row_mask:0xf bank_mask:0xf")
    a("s_nop 1")
    a("v_add_f32_dpp v2, v2, v2 row_bcast:15 row_mask:0xa bank_mask:0xf")
    a("s_nop 1")
    a("v_add_f32_dpp v2, v2, v2 row_bcast:31 row_mask:0xc bank_mask:0xf")
    a("s_nop 1")
    a("v_cvt_pk_bf16_f32 v2, v2, v2")
    a("v_lshlrev_b32 v2, 16, v2")
    a(f"v_mul_f32 v2, {f32bits(-LOG2E)}, v2")
    a("v_exp_f32 v2, v2")
    a("s_nop 0")
    a("v_add_f32 v2, 1.0, v2")
    a("v_rcp_f32 v2, v2")
    a("s_nop 0")
    a("v_cvt_pk_bf16_f32 v2, v2, v2")
    a("v_lshlrev_b32 v2, 16, v2")
    a("s_lshl_b32 s49, s48, 2")
    a("v_mov_b32 v3, 0")
    a("v_cmp_eq_u32 vcc, 63, v1")
    a("s_and_saveexec_b64 s[50:51], vcc")
    a("buffer_store_dword v2, v3, s[32:35], s49 offen")
    a("s_mov_b64 exec, s[50:51]")
    a("v_cmp_eq_u32 vcc, 0, v18")
    a("s_nop 1")
    a("v_cndmask_b32 v24, 0, v24, vcc")
    a("v_cndmask_b32 v25, 0, v25, vcc")
    a("v_mov_b32 v26, 0")
    a("v_mov_b32 v27, 0")
    a("s_mov_b32 s39, 0")

    QF0, QF1 = 20, 24
    KF = (28, 36)
    VF = (44, 52)
    P = 60
    S = (68, 84)
    O = 100

    def dma_stage(lds_sreg):
        a(f"s_add_u32 m0, s{lds_sreg}, s46")
        a("s_nop 0")
        for j in range(3):
            a(f"buffer_load_dwordx4 v16, s[12:15], s44 offen offset:{1024 * j} lds")
        a("s_add_u32 s44, s44, 23040")

    def set_addrs(dst, sbase):
        for i in range(4):
            a(f"v_add_u32 v{dst + i}, s{sbase}, v{12 + i}")

    def kread(st, idx):
        base = 4 if idx < 8 else 8
        off = (idx % 8) * 2880
        return [f"ds_read_b128 {vr(KF[st], 4)}, v{base} offset:{off}",
                f"ds_read_b128 {vr(KF[st] + 4, 4)}, v{base + 1} offset:{off}"]

    def vread(st, idx):
        base = 4 if idx < 8 else 8
        off = (idx % 8) * 2880
        return [f"ds_read_b128 {vr(VF[st], 4)}, v{base + 2} offset:{off}",
                f"ds_read_b128 {vr(VF[st] + 4, 4)}, v{base + 3} offset:{off}"]

    def qk(st, sst):
        a(f"v_mfma_f32_32x32x16_bf16 {vr(S[sst], 16)}, {vr(KF[st], 4)}, {vr(QF0, 4)}, 0")
        a(f"v_mfma_f32_32x32x16_bf16 {vr(S[sst], 16)}, {vr(KF[st] + 4, 4)}, {vr(QF1, 4)}, {vr(S[sst], 16)}")

    def set_m_from(mreg):
        a(f"v_mov_b32 v3, v{mreg}")
        a("s_nop 1")
        a(f"v_permlane32_swap_b32 v{mreg}, v3")
        a("s_nop 1")
        a(f"v_max_f32 v2, v{mreg}, v3")
        a("v_and_b32 v3, 0xffff0000, v2")
        a("v_sub_f32 v2, v2, v3")
        a("v_and_b32 v19, 0xffff0000, v2")
        a("v_sub_f32 v2, v2, v19")
        a("v_xor_b32 v3, 0x80000000, v3")
        a("v_xor_b32 v19, 0x80000000, v19")
        a("v_xor_b32 v2, 0x80000000, v2")
        a("v_lshrrev_b32 v3, 16, v3")
        a("v_or_b32 v3, v3, v19")
        a("v_lshrrev_b32 v2, 16, v2")
        a("v_cmp_eq_u32 vcc, 0, v18")
        a("s_nop 1")
        a("v_cndmask_b32 v26, 0, v3, vcc")
        a("v_cndmask_b32 v27, 0, v2, vcc")
        a("s_nop 1")

    def start_stream():
        a("s_mov_b32 s44, s45")
        a("s_mov_b32 s41, 0")
        a(f"s_mov_b32 s42, {K2_BUF}")
        a(f"s_mov_b32 s43, {2 * K2_BUF}")
        dma_stage(41)
        dma_stage(42)
        set_addrs(4, 41)
        set_addrs(8, 42)
        a("s_mov_b32 s40, 0")

    def stage_head(lbl):
        a("s_waitcnt vmcnt(0) lgkmcnt(0)")
        a("s_barrier")
        a("s_cmp_ge_u32 s40, 6")
        a(f"s_cbranch_scc1 {lbl}")
        dma_stage(43)
        a.label(lbl)

    def stage_rotate():
        a("s_mov_b32 s47, s41")
        a("s_mov_b32 s41, s42")
        a("s_mov_b32 s42, s43")
        a("s_mov_b32 s43, s47")
        for i in range(4):
            a(f"v_mov_b32 v{4 + i}, v{8 + i}")
        set_addrs(8, 42)
        a("s_add_u32 s40, s40, 1")

    a.label("K2_MAIN")
    prof(a, 1)
    a("s_cmp_eq_u32 s39, 0")
    a("s_cbranch_scc1 K2_STARTED")
    start_stream()
    a.label("K2_STARTED")
    set_addrs(4, 41)
    set_addrs(8, 42)
    for i in range(16):
        a(f"v_mov_b32 v{O + i}, 0")
    for i in range(4):
        a(f"v_mov_b32 v{P + 4 + i}, 0")
        a(f"v_mov_b32 v{VF[1] + 4 + i}, 0")
    a.label("K2_STAGE")
    stage_head("K2_NODMA")
    a("s_cmp_lg_u32 s40, 0")
    a("s_cbranch_scc1 K2_BODY")
    for r in kread(0, 0):
        a(r)
    a("s_cmp_lg_u32 s39, 0")
    a("s_cbranch_scc1 K2_PRIME")
    a("s_waitcnt lgkmcnt(0)")
    qk(0, 0)
    a("s_nop 15")
    a("s_nop 3")
    s0 = S[0]
    a(f"v_max3_f32 v116, v{s0}, v{s0 + 1}, v{s0 + 2}")
    for i in range(3, 15, 2):
        a(f"v_max3_f32 v116, v116, v{s0 + i}, v{s0 + i + 1}")
    a(f"v_max_f32 v116, v116, v{s0 + 15}")
    set_m_from(116)
    a.label("K2_PRIME")
    for r in kread(1, 1):
        a(r)
    for r in vread(0, 0):
        a(r)
    a("s_waitcnt lgkmcnt(4)")
    qk(0, 0)
    a("s_nop 15")
    prof(a, 2)
    a.label("K2_BODY")

    def body(par):
        for t in range(8):
            c = t % 2
            n = 1 - c
            sc = S[c]
            sn = S[n]

            def ex(lo):
                for i in range(lo, lo + 4):
                    a(f"v_exp_f32 v{sc + i}, v{sc + i}")

            def cv(lo):
                for i in range(lo, lo + 4):
                    a(f"v_cvt_pk_bf16_f32 v{P + i}, v{sc + 2 * i}, v{sc + 2 * i + 1}")
            if XP_PRIO:
                a(f"s_setprio {2 if (t & 1) == par else 1}")
            ex(0)
            a(f"v_mfma_f32_32x32x16_bf16 {vr(O, 16)}, {vr(VF[n] + 4, 4)}, {vr(P + 4, 4)}, {vr(O, 16)}")
            ex(4)
            a("s_waitcnt lgkmcnt(2)")
            a(f"v_mfma_f32_32x32x16_bf16 {vr(sn, 16)}, {vr(KF[n], 4)}, {vr(QF0, 4)}, 0")
            cv(0)
            if not XP_NOLDS:
                for r in kread(c, t + 2):
                    a(r)
                for r in vread(n, t + 1):
                    a(r)
            ex(8)
            a(f"v_mfma_f32_32x32x16_bf16 {vr(sn, 16)}, {vr(KF[n] + 4, 4)}, {vr(QF1, 4)}, {vr(sn, 16)}")
            ex(12)
            a("s_waitcnt lgkmcnt(4)")
            a(f"v_mfma_f32_32x32x16_bf16 {vr(O, 16)}, {vr(VF[c], 4)}, {vr(P, 4)}, {vr(O, 16)}")
            cv(4)

    if XP_PRIO:
        a("s_cmp_ge_u32 s38, 4")
        a("s_cbranch_scc1 K2_BODY1")
        body(0)
        a("s_branch K2_BODYE")
        a.label("K2_BODY1")
        body(1)
        a.label("K2_BODYE")
    else:
        body(0)
    stage_rotate()
    if PROF:
        a("s_memtime s[88:89]")
        a("s_waitcnt lgkmcnt(0)")
        a("v_mov_b32 v2, s88")
        a("s_lshl_b32 s90, s40, 2")
        a("v_mov_b32 v3, s90")
        a("buffer_store_dword v2, v3, s[92:95], s91 offen offset:8")
    a("s_cmp_lt_u32 s40, 8")
    a("s_cbranch_scc1 K2_STAGE")
    a("s_nop 1")
    a(f"v_mfma_f32_32x32x16_bf16 {vr(O, 16)}, {vr(VF[1] + 4, 4)}, {vr(P + 4, 4)}, {vr(O, 16)}")
    a("s_nop 15")
    a("s_nop 3")
    a("s_cmp_lg_u32 s39, 0")
    a("s_cbranch_scc1 K2_EPI")
    a("v_mov_b32 v2, 0")
    for i in range(9):
        a(f"v_fma_f32 v2, v{O + i}, 0, v2")
    a("v_mov_b32 v3, 0")
    for i in range(9, 12):
        a(f"v_fma_f32 v3, v{O + i}, 0, v3")
    a("v_cmp_eq_u32 vcc, 0, v18")
    a("s_nop 1")
    a("v_cndmask_b32 v3, 0, v3, vcc")
    a("v_add_f32 v2, v2, v3")
    a("v_cmp_u_f32 vcc, v2, v2")
    a("s_nop 4")
    a("s_cbranch_vccz K2_VOTE")
    a("v_mov_b32 v2, 1")
    a(f"v_mov_b32 v3, {K2_FLAG}")
    a("ds_write_b32 v3, v2")
    a.label("K2_VOTE")
    a("s_branch K2_EPI")
    a.label("K2_FALL")
    a("s_barrier")
    a("v_mov_b32 v26, 0")
    a("v_mov_b32 v27, 0")
    a(f"v_mov_b32 v117, {f32bits(float('-inf'))}")
    start_stream()
    a.label("K2_MSTAGE")
    stage_head("K2_MNODMA")
    for t in range(8):
        for r in kread(0, t):
            a(r)
        a("s_waitcnt lgkmcnt(0)")
        qk(0, 0)
        a("s_nop 15")
        a("s_nop 3")
        for i in range(0, 16, 2):
            a(f"v_max3_f32 v117, v117, v{s0 + i}, v{s0 + i + 1}")
    stage_rotate()
    a("s_cmp_lt_u32 s40, 8")
    a("s_cbranch_scc1 K2_MSTAGE")
    set_m_from(117)
    a("s_mov_b32 s39, 1")
    a("s_waitcnt vmcnt(0) lgkmcnt(0)")
    a("s_barrier")
    a("s_branch K2_MAIN")
    a.label("K2_EPI")
    a(f"v_mov_b32 v2, v{O + 8}")
    a(f"v_mov_b32 v3, v{O + 8}")
    a("s_nop 1")
    a("v_permlane32_swap_b32 v2, v3")
    a("s_nop 1")
    a("v_rcp_f32 v3, v3")
    a("s_nop 0")
    for i in range(12):
        a(f"v_mul_f32 v{O + i}, v{O + i}, v3")
    for i in range(6):
        a(f"v_cvt_pk_bf16_f32 v{P + i}, v{O + 2 * i}, v{O + 2 * i + 1}")
    a("s_lshl_b32 s47, s37, 8")
    a("s_lshl_b32 s48, s38, 5")
    a("s_add_u32 s47, s47, s48")
    a("v_add_u32 v2, s47, v17")
    a("v_mul_u32_u24 v2, 1280, v2")
    a("s_mul_i32 s48, s36, 40")
    a("v_lshl_add_u32 v2, v18, 3, v2")
    a("v_add_u32 v2, s48, v2")
    a(f"buffer_store_dwordx2 {vr(P, 2)}, v2, s[20:23], 0 offen")
    a(f"buffer_store_dwordx2 {vr(P + 2, 2)}, v2, s[20:23], 0 offen offset:16")
    a("v_cmp_eq_u32 vcc, 0, v18")
    a("s_and_saveexec_b64 s[50:51], vcc")
    a(f"buffer_store_dwordx2 {vr(P + 4, 2)}, v2, s[20:23], 0 offen offset:32")
    a("s_mov_b64 exec, s[50:51]")
    a("s_cmp_lg_u32 s39, 0")
    a("s_cbranch_scc1 K2_PEND")
    a("s_waitcnt lgkmcnt(0)")
    a("s_barrier")
    a(f"v_mov_b32 v3, {K2_FLAG}")
    a("ds_read_b32 v2, v3")
    a("s_waitcnt lgkmcnt(0)")
    a("v_readfirstlane_b32 s47, v2")
    a("s_cmp_lg_u32 s47, 0")
    a("s_cbranch_scc1 K2_FALL")
    a.label("K2_PEND")
    prof(a, 12)
    a.label("K2_END")
    a("s_endpgm")
    a.label("K2_FFN")
    if XP_NOFFN:
        a("s_endpgm")
    a("s_load_dwordx2 s[6:7], s[0:1], 40")
    a("s_load_dwordx2 s[52:53], s[0:1], 16")
    tile_map(a, 36, 37)
    a("s_sub_u32 s38, s38, 8")
    a("s_lshl_b32 s39, s36, 6")
    a("s_mul_i32 s40, s37, 160")
    a("s_mul_i32 s41, s38, 20480")
    a(f"s_add_u32 s41, s41, {K2_FFN}")
    a("s_mul_i32 s42, s38, 14")
    a("s_cmp_eq_u32 s38, 3")
    a("s_cselect_b32 s42, 41, s42")
    a("s_lshl_b32 s45, s42, 6")
    a(f"s_mul_i32 s46, s42, {32 * 1280}")
    a("s_waitcnt lgkmcnt(0)")
    srd(a, 16, 6, 7, SZ_W2)
    srd_off(a, 24, 8, 9, WS_H, SZ_H)
    srd_off(a, 28, 8, 9, WS_B, SZ_B)
    gw_setup(a, 39, 40, 3456, 41)
    j = 0
    for k, ns in enumerate(XP_FS):
        a("s_barrier")
        if k == 0:
            gw_issue(a, 0, 24, 16, 45, 46, 41)
        if k == 1 and XP_PF and not XP_QX:
            srd(a, 52, 52, 53, SZ_WO)
            a("s_mul_i32 s56, s2, 3200")
            a("v_and_b32 v3, 255, v0")
            a("v_lshlrev_b32 v2, 7, v3")
            a("v_cmp_gt_u32 vcc, 25, v3")
            a("v_bfrev_b32 v3, 1")
            a("v_cndmask_b32 v2, v3, v2, vcc")
            a("buffer_load_dword v141, v2, s[52:55], s56 offen")
        for _ in range(ns):
            if j < 13:
                gw_issue(a, (j + 1) & 1, 24, 16, 45, 46, 41)
                a("s_waitcnt vmcnt(9)")
            else:
                a("s_waitcnt vmcnt(0)")
                a("s_cmp_ge_u32 s38, 2")
                a("s_cbranch_scc1 K2_FSKIP")
            gw_compute(a, j & 1, j == 0)
            j += 1
    assert j == 14
    a.label("K2_FSKIP")
    a("s_nop 7")
    a("s_nop 3")
    a("s_waitcnt vmcnt(0)")
    gw_write_partials(a, 41)
    a("s_waitcnt lgkmcnt(0)")
    a("s_barrier")
    gw_read_sum(a, 38, K2_FFN)
    for e in range(0, 20, 2):
        a(f"v_cvt_pk_bf16_f32 v{112 + e // 2}, v{24 + e}, v{25 + e}")
    a("s_lshl_b32 s42, s36, 3")
    a("s_add_u32 s42, s42, s37")
    a("s_lshl_b32 s42, s42, 2")
    a("s_add_u32 s42, s42, s38")
    a("s_mul_i32 s42, s42, 2560")
    a("v_mul_u32_u24 v2, 40, v1")
    a("v_add_u32 v2, s42, v2")
    a("buffer_store_dwordx4 v[112:115], v2, s[28:31], 0 offen")
    a("buffer_store_dwordx4 v[116:119], v2, s[28:31], 0 offen offset:16")
    a("buffer_store_dwordx2 v[120:121], v2, s[28:31], 0 offen offset:32")
    if XP_QX and XP_PF:
        srd(a, 52, 52, 53, SZ_WO)
        a("s_lshr_b32 s56, s2, 3")
        a("s_mul_i32 s56, s56, 25600")
        a("v_and_b32 v3, 255, v0")
        a("v_lshlrev_b32 v2, 7, v3")
        a("v_cmp_gt_u32 vcc, 200, v3")
        a("v_bfrev_b32 v3, 1")
        a("v_cndmask_b32 v2, v3, v2, vcc")
        a("buffer_load_dword v141, v2, s[52:55], s56 offen")
        a("s_waitcnt vmcnt(0)")
    a("s_endpgm")
    return a.text()


def wmap(a, dst, sC0B):
    a("v_mul_u32_u24 v3, 6554, v2")
    a("v_lshrrev_b32 v3, 16, v3")
    a("v_mul_u32_u24 v15, 10, v3")
    a("v_sub_u32 v2, v2, v15")
    a("v_lshrrev_b32 v15, 1, v3")
    a("v_and_b32 v15, 4, v15")
    a("v_xor_b32 v3, v3, v15")
    a("v_lshlrev_b32 v2, 4, v2")
    a("v_mul_u32_u24 v3, 1280, v3")
    a(f"v_add3_u32 v{dst}, v2, v3, s{sC0B}")


def wread_addr(a, d0, d1, sBase):
    a("v_lshlrev_b32 v2, 3, v22")
    a("v_lshrrev_b32 v3, 2, v23")
    a("v_add_u32 v2, v2, v3")
    a("v_mul_u32_u24 v2, 160, v2")
    a("v_and_b32 v3, 3, v23")
    a("v_lshlrev_b32 v3, 3, v3")
    a(f"v_add3_u32 v2, v2, v3, s{sBase}")
    a("v_and_b32 v3, 1, v22")
    a("v_mul_u32_u24 v3, 640, v3")
    a(f"v_add_u32 v{d0}, v2, v3")
    a("v_sub_u32 v2, v2, v3")
    a(f"v_add_u32 v{d1}, 640, v2")


K3_STG = 36864
K3_B = 4 * K3_STG
K3_LDS = K3_B + 10240


def k3():
    a = Asm()
    a.label("k3_kernel")
    if PROF:
        a("s_memtime s[86:87]")
    a("s_cmp_ge_u32 s2, 256")
    a("s_cbranch_scc1 K3_END")
    a("s_load_dwordx2 s[4:5], s[0:1], 16")
    a("s_load_dwordx2 s[8:9], s[0:1], 72")
    a("s_load_dwordx2 s[10:11], s[0:1], 56")
    tile_map(a, 36, 37)
    a("v_and_b32 v1, 63, v0")
    a("v_lshrrev_b32 v2, 6, v0")
    a("v_lshrrev_b32 v22, 4, v1")
    a("v_readfirstlane_b32 s38, v2")
    a("v_and_b32 v23, 15, v1")
    a("s_lshl_b32 s39, s36, 6")
    a("s_mul_i32 s40, s37, 160")
    a("s_and_b32 s49, s38, 3")
    a("s_lshr_b32 s50, s38, 2")
    a("s_lshl_b32 s42, s38, 3")
    for j in range(2):
        a(f"s_add_u32 s43, s42, {4 * j}")
        a("v_add_u32 v2, s43, v22")
        a("v_and_b32 v3, 15, v2")
        a("v_xor_b32 v3, v3, v23")
        a("v_add_u32 v2, s39, v2")
        a("v_mul_u32_u24 v2, 1280, v2")
        a(f"v_lshl_add_u32 v{4 + j}, v3, 4, v2")
    a("s_add_u32 s43, s38, 8")
    a("s_add_u32 s44, s38, 16")
    a("s_cmp_lt_u32 s38, 4")
    a("s_cselect_b32 s44, s44, s43")
    a("v_lshlrev_b32 v2, 4, v1")
    a("s_mul_i32 s55, s37, 102400")
    for j, sp in enumerate((38, 43, 44)):
        a(f"s_lshl_b32 s{52 + j}, s{sp}, 10")
        a(f"s_add_u32 s51, s{52 + j}, s55")
        a(f"v_add_u32 v{8 + j}, s51, v2")
        a(f"s_add_u32 s{52 + j}, s{52 + j}, 16384")
    a("s_lshl_b32 s45, s38, 11")
    a("s_waitcnt lgkmcnt(0)")
    srd_off(a, 12, 8, 9, WS_WO, SZ_WO)
    srd_off(a, 20, 8, 9, WS_O, SZ_O)
    srd_off(a, 24, 8, 9, WS_B, SZ_B)
    srd_off(a, 28, 8, 9, WS_G, SZ_G)
    srd(a, 32, 10, 11, SZ_OUT)
    prof_init(a, 8, 9, 38, 2)
    prof(a, 0)

    def issue(stage, slot):
        a(f"s_mov_b32 s47, {stage * 256}")
        a(f"s_mov_b32 s48, {stage * 20480}")
        for j in range(2):
            a(f"s_add_u32 m0, s45, {slot * K3_STG + j * 1024}")
            a("s_nop 0")
            a(f"buffer_load_dwordx4 v{4 + j}, s[20:23], s47 offen lds")
        for j in range(3):
            a(f"s_add_u32 m0, s{52 + j}, {slot * K3_STG}")
            a("s_nop 0")
            a(f"buffer_load_dwordx4 v{8 + j}, s[12:15], s48 offen lds")

    for st in range(4):
        issue(st, st)
    a("s_lshl_b32 s42, s36, 3")
    a("s_add_u32 s42, s42, s37")
    a("s_lshl_b32 s42, s42, 3")
    a("s_add_u32 s42, s42, s38")
    a("s_mul_i32 s42, s42, 1280")
    a("s_mul_i32 s43, s38, 1280")
    a("v_lshlrev_b32 v2, 4, v1")
    a("v_lshlrev_b32 v3, 2, v1")
    a(f"s_add_u32 m0, s43, {K3_B}")
    a("s_nop 0")
    a("buffer_load_dwordx4 v2, s[24:27], s42 offen lds")
    a("buffer_load_dword v3, s[24:27], s42 offen offset:1024 lds")
    a("s_lshl_b32 s42, s49, 4")
    a("v_add_u32 v2, s42, v23")
    a("v_add_u32 v3, s39, v2")
    a("v_lshlrev_b32 v3, 2, v3")
    a("buffer_load_dword v16, v3, s[28:31], 0 offen")
    a("v_mul_u32_u24 v2, 160, v2")
    a("v_lshl_add_u32 v2, v22, 3, v2")
    a("s_mul_i32 s43, s50, 96")
    a(f"s_add_u32 s43, s43, {K3_B}")
    a("v_add_u32 v17, s43, v2")
    for j in range(2):
        a("s_mul_i32 s43, s38, 80")
        a(f"s_add_u32 s43, s43, {64 * j}")
        a("v_add_u32 v2, s43, v1")
        a("v_mul_u32_u24 v3, 6554, v2")
        a("v_lshrrev_b32 v3, 16, v3")
        a("v_mul_u32_u24 v15, 10, v3")
        a("v_sub_u32 v15, v2, v15")
        a("v_lshlrev_b32 v15, 4, v15")
        a("v_add_u32 v3, s39, v3")
        a("v_mul_u32_u24 v3, 1280, v3")
        a(f"v_add3_u32 v{12 + j}, v3, v15, s40")
        a("v_lshlrev_b32 v2, 4, v2")
        a(f"v_add_u32 v{32 + j}, {K3_B}, v2")
    BV = 104
    RA, RW = 24, 28
    a("s_lshl_b32 s43, s49, 12")
    a("v_lshlrev_b32 v2, 8, v23")
    a("v_add_u32 v2, s43, v2")
    a("s_lshl_b32 s43, s50, 3")
    for i in range(2):
        a(f"s_add_u32 s44, s43, {4 * i}")
        a("v_add_u32 v3, s44, v22")
        a("v_xor_b32 v3, v3, v23")
        a(f"v_lshl_add_u32 v{RA + i}, v3, 4, v2")
        a(f"v_add_u32 v{RA + 2 + i}, {2 * K3_STG}, v{RA + i}")
    a("s_mul_i32 s43, s50, 10240")
    a("s_add_u32 s43, s43, 16384")
    wread_addr(a, RW, RW + 1, 43)
    a(f"v_add_u32 v{RW + 2}, {2 * K3_STG}, v{RW}")
    a(f"v_add_u32 v{RW + 3}, {2 * K3_STG}, v{RW + 1}")
    a("v_lshlrev_b32 v21, 4, v1")
    a("s_mul_i32 s43, s49, 5120")
    a(f"s_add_u32 s43, s43, {K3_STG}")
    a("v_add_u32 v21, s43, v21")
    AF = (36, 40)
    WF = (44, 64)
    ACC = 84

    def reads(t):
        st, i = t >> 1, t & 1
        slot = st % 4
        hi = slot >> 1
        so = (slot & 1) * K3_STG
        r = [f"ds_read_b128 {vr(AF[i], 4)}, v{RA + 2 * hi + i} offset:{so}"]
        for n in range(5):
            off = so + i * 5120 + n * 32
            r.append(f"ds_read_b64_tr_b16 {vr(WF[i] + 4 * n, 2)}, v{RW + 2 * hi} offset:{off}")
            r.append(f"ds_read_b64_tr_b16 {vr(WF[i] + 4 * n + 2, 2)}, v{RW + 2 * hi + 1} offset:{off}")
        return r

    def mf(t):
        for n in range(5):
            d = ACC + 4 * n
            c = "0" if t == 0 else vr(d, 4)
            a(f"v_mfma_f32_16x16x32_bf16 {vr(d, 4)}, {vr(WF[t & 1] + 4 * n, 4)}, {vr(AF[t & 1], 4)}, {c}")

    a("s_waitcnt vmcnt(18)")
    a("s_barrier")
    prof(a, 1)
    for r in reads(0) + reads(1):
        a(r)
    a("s_waitcnt vmcnt(3) lgkmcnt(0)")
    a("s_barrier")
    prof(a, 2)
    issue(4, 0)
    mf(0)
    for r in reads(2):
        a(r)
    mf(1)
    for t in range(2, 10):
        if t == 7:
            a("s_waitcnt vmcnt(0)")
            a("s_barrier")
            prof(a, 3)
        if t < 9:
            for r in reads(t + 1):
                a(r)
            a("s_waitcnt lgkmcnt(11)")
        else:
            a("s_waitcnt lgkmcnt(0)")
        mf(t)
    a("v_sub_f32 v18, 1.0, v16")
    a("v_cvt_pk_bf16_f32 v18, v18, v18")
    a("v_lshlrev_b32 v18, 16, v18")
    a("s_nop 7")
    prof(a, 6)
    XR = 44
    a("s_cmp_eq_u32 s50, 0")
    a("s_cbranch_scc0 K3_X1")
    for n in (3, 4):
        a(f"ds_write_b128 v21, {vr(ACC + 4 * n, 4)} offset:{1024 * n}")
    a("s_waitcnt lgkmcnt(0)")
    a("s_barrier")
    for n in range(3):
        a(f"ds_read_b128 {vr(XR + 4 * n, 4)}, v21 offset:{1024 * n}")
    a("s_branch K3_FIN")
    a.label("K3_X1")
    for n in range(3):
        a(f"ds_write_b128 v21, {vr(ACC + 4 * n, 4)} offset:{1024 * n}")
    a("s_waitcnt lgkmcnt(0)")
    a("s_barrier")
    for n in (3, 4):
        a(f"ds_read_b128 {vr(XR + 4 * (n - 3), 4)}, v21 offset:{1024 * n}")
    for i in range(8):
        a(f"v_mov_b32 v{ACC + i}, v{ACC + 12 + i}")
    a.label("K3_FIN")
    for n in range(3):
        a(f"ds_read_b64 {vr(BV + 2 * n, 2)}, v17 offset:{32 * n}")
    a("s_waitcnt lgkmcnt(0)")
    for n in range(3):
        if n == 2:
            a("s_cmp_eq_u32 s50, 0")
            a("s_cbranch_scc0 K3_CP")
        for i in range(4):
            a(f"v_add_f32 v{ACC + 4 * n + i}, v{ACC + 4 * n + i}, v{XR + 4 * n + i}")
        for h in range(2):
            e = ACC + 4 * n + 2 * h
            bp = BV + 2 * n + h
            a(f"v_cvt_pk_bf16_f32 v19, v{e}, v{e + 1}")
            a("v_lshlrev_b32 v4, 16, v19")
            a("v_and_b32 v5, 0xffff0000, v19")
            a(f"v_lshlrev_b32 v6, 16, v{bp}")
            a(f"v_and_b32 v7, 0xffff0000, v{bp}")
            a("v_mul_f32 v4, v16, v4")
            a("v_mul_f32 v5, v16, v5")
            a("v_mul_f32 v6, v18, v6")
            a("v_mul_f32 v7, v18, v7")
            a("v_cvt_pk_bf16_f32 v19, v4, v5")
            a("v_cvt_pk_bf16_f32 v20, v6, v7")
            a("v_lshlrev_b32 v4, 16, v19")
            a("v_and_b32 v5, 0xffff0000, v19")
            a("v_lshlrev_b32 v6, 16, v20")
            a("v_and_b32 v7, 0xffff0000, v20")
            a("v_add_f32 v4, v4, v6")
            a("v_add_f32 v5, v5, v7")
            a(f"v_cvt_pk_bf16_f32 v{bp}, v4, v5")
        a(f"ds_write_b64 v17, {vr(BV + 2 * n, 2)} offset:{32 * n}")
    a.label("K3_CP")
    a("s_waitcnt lgkmcnt(0)")
    a("s_barrier")
    a("ds_read_b128 v[4:7], v32")
    a("ds_read_b128 v[8:11], v33")
    a("s_waitcnt lgkmcnt(1)")
    a("buffer_store_dwordx4 v[4:7], v12, s[32:35], 0 offen")
    a("v_cmp_gt_u32 vcc, 16, v1")
    a("s_and_saveexec_b64 s[50:51], vcc")
    a("s_waitcnt lgkmcnt(0)")
    a("buffer_store_dwordx4 v[8:11], v13, s[32:35], 0 offen")
    a("s_mov_b64 exec, s[50:51]")
    a.label("K3_PEND")
    prof(a, 12)
    a.label("K3_END")
    a("s_endpgm")
    return a.text()


def desc(name, vgpr, sgpr=96):
    acc = (vgpr + 3) // 4 * 4
    return f""".amdhsa_kernel {name}
  .amdhsa_next_free_vgpr {vgpr}
  .amdhsa_next_free_sgpr {sgpr}
  .amdhsa_accum_offset {acc}
  .amdhsa_group_segment_fixed_size 0
  .amdhsa_kernarg_size 80
  .amdhsa_user_sgpr_count 2
  .amdhsa_user_sgpr_kernarg_segment_ptr 1
  .amdhsa_system_sgpr_workgroup_id_x 1
.end_amdhsa_kernel
"""


def main():
    hdr = f"""; gated_mix__mha_block__dense_activation_relu__prompt : 3 kernels (generated by gen.py, hand-designed)
; @launch kernel=k1_kernel grid=(256,1,1) block=(512,1,1) lds={K1_LDS}
; @launch kernel=k2_kernel grid=(256,1,1) block=(768,1,1) lds={K2_LDS}
; @launch kernel=k3_kernel grid=(256,1,1) block=(512,1,1) lds={K3_LDS}
.amdgcn_target "amdgcn-amd-amdhsa--gfx950"
.text
"""
    body = ""
    for name, fn in (("k1_kernel", k1), ("k2_kernel", k2), ("k3_kernel", k3)):
        body += f".globl {name}\n.p2align 8\n.type {name},@function\n" + fn()
    tail = '.section .rodata,"a"\n.p2align 6\n'
    tail += desc("k1_kernel", 168)
    tail += ".p2align 6\n" + desc("k2_kernel", 144)
    tail += ".p2align 6\n" + desc("k3_kernel", 116)
    open(OUT, "w").write(hdr + body + tail)


if __name__ == "__main__":
    main()
```

```python
import struct, sys

OUT = sys.argv[1] if len(sys.argv) > 1 else "gated_mix__mha_block__dense_activation_relu__prompt.s"

WS_Q = 0
SZ_Q = 32 * 2048 * 48
WS_KV = 0x400000
HEAD_KV = 64 * 2880
SZ_KV = 32 * HEAD_KV
WS_H = 0xC00000
SZ_H = 2048 * 3456
WS_O = 0x1400000
SZ_O = 2048 * 1280
WS_G = 0x1800000
SZ_G = 2048 * 4
WS_B = 0x1A00000
SZ_B = 2048 * 1280
WS_WO = 0x1E00000

SZ_X = 2048 * 1280
SZ_WQKV = 640 * 3840
SZ_WO = 640 * 1280
SZ_W1 = 640 * 3456
SZ_W2 = 1728 * 1280
SZ_OUT = 2048 * 1280


def f32bits(x):
    return struct.unpack("<I", struct.pack("<f", x))[0]


C_SCALE = 1.4426950408889634 / (20 ** 0.5)
LOG2E = 1.4426950408889634


PROF = int(__import__("os").environ.get("PROF", "0"))
WS_T = 0x2000000
XP_PF = int(__import__("os").environ.get("XP_PF", "0"))
XP_ROT = int(__import__("os").environ.get("XP_ROT", "1"))
XP_PRIO = int(__import__("os").environ.get("XP_PRIO", "0"))
XP_RPM = int(__import__("os").environ.get("XP_RPM", "1"))
XP_DSL = eval(__import__("os").environ.get("XP_DSL", "(7, 10, 13)"))
XP_FDEL = int(__import__("os").environ.get("XP_FDEL", "1"))
XP_FS = eval(__import__("os").environ.get("XP_FS", "(2, 2, 2, 2, 2, 2, 2)"))
XP_QX = int(__import__("os").environ.get("XP_QX", "0"))
XP_PF2 = int(__import__("os").environ.get("XP_PF2", "1"))
XP_NOLDS = int(__import__("os").environ.get("XP_NOLDS", "0"))
XP_NOFFN = int(__import__("os").environ.get("XP_NOFFN", "0"))


def prof_init(a, wsl, wsh, wave_s, kidx=0):
    if not PROF:
        return
    a(f"s_add_u32 s92, s{wsl}, {WS_T + kidx * 0x100000}")
    a(f"s_addc_u32 s93, s{wsh}, 0")
    a("s_and_b32 s93, s93, 0xffff")
    a("s_mov_b32 s94, 0x100000")
    a("s_mov_b32 s95, 0x00020000")
    a("s_lshl_b32 s91, s2, 4")
    a(f"s_add_u32 s91, s91, s{wave_s}")
    a("s_lshl_b32 s91, s91, 7")


def prof(a, slot, tmpv=2):
    if not PROF:
        return
    a("s_memtime s[88:89]")
    a("s_waitcnt lgkmcnt(0)")
    a(f"v_mov_b32 v{tmpv}, s88")
    a(f"v_mov_b32 v{tmpv + 1}, 0")
    a(f"buffer_store_dword v{tmpv}, v{tmpv + 1}, s[92:95], s91 offen offset:{4 * slot}")
    if slot == 0:
        a(f"v_mov_b32 v{tmpv}, s86")
        a(f"buffer_store_dword v{tmpv}, v{tmpv + 1}, s[92:95], s91 offen offset:60")
    if slot in (0, 12):
        a("s_memrealtime s[88:89]")
        a("s_waitcnt lgkmcnt(0)")
        a(f"v_mov_b32 v{tmpv}, s88")
        a(f"buffer_store_dword v{tmpv}, v{tmpv + 1}, s[92:95], s91 offen offset:{4 * (13 if slot == 0 else 14)}")


class Asm:
    def __init__(self):
        self.lines = []

    def __call__(self, s):
        self.lines.append("    " + s)

    def label(self, l):
        self.lines.append(l + ":")

    def c(self, s):
        self.lines.append("    ; " + s)

    def text(self):
        return "\n".join(self.lines) + "\n"


def vr(b, n=1):
    return f"v{b}" if n == 1 else f"v[{b}:{b + n - 1}]"


def sr(b, n=1):
    return f"s{b}" if n == 1 else f"s[{b}:{b + n - 1}]"


def srd(a, d, lo, hi, size):
    a(f"s_mov_b32 s{d}, s{lo}")
    a(f"s_and_b32 s{d + 1}, s{hi}, 0xffff")
    a(f"s_mov_b32 s{d + 2}, {size}")
    a(f"s_mov_b32 s{d + 3}, 0x00020000")


def srd_off(a, d, lo, hi, off, size):
    a(f"s_add_u32 s{d}, s{lo}, {off}")
    a(f"s_addc_u32 s{d + 1}, s{hi}, 0")
    a(f"s_and_b32 s{d + 1}, s{d + 1}, 0xffff")
    a(f"s_mov_b32 s{d + 2}, {size}")
    a(f"s_mov_b32 s{d + 3}, 0x00020000")


K1_STAGE = 45056
K1_LDS = 3 * K1_STAGE


def k1():
    a = Asm()
    a.label("k1_kernel")
    if PROF:
        a("s_memtime s[86:87]")
    a("s_cmp_ge_u32 s2, 256")
    a("s_cbranch_scc1 K1_END")
    a("s_and_b32 s3, s2, 7")
    a("s_lshr_b32 s4, s2, 3")
    a("s_lshl_b32 s3, s3, 5")
    a("s_add_u32 s3, s3, s4")
    a("s_cmp_ge_u32 s3, 253")
    a("s_cbranch_scc1 K1_PACK")
    a("s_mul_i32 s25, s3, 373")
    a("s_lshr_b32 s25, s25, 12")
    a("s_mul_i32 s4, s25, 11")
    a("s_sub_u32 s24, s3, s4")
    a("s_load_dwordx2 s[4:5], s[0:1], 0")
    a("s_load_dwordx2 s[6:7], s[0:1], 8")
    a("s_load_dwordx2 s[8:9], s[0:1], 32")
    a("s_load_dwordx2 s[10:11], s[0:1], 72")
    a("v_and_b32 v1, 63, v0")
    a("v_lshrrev_b32 v2, 6, v0")
    a("s_nop 0")
    a("v_readfirstlane_b32 s26, v2")
    a("s_lshr_b32 s27, s25, 2")
    a("s_min_u32 s27, s27, 3")
    a("s_mul_i32 s30, s24, 192")
    a("s_waitcnt lgkmcnt(0)")
    srd(a, 12, 4, 5, SZ_X)
    a("s_sub_u32 s29, s25, 12")
    a(f"s_mov_b32 s18, {SZ_W1}")
    a("s_mov_b32 s28, 3456")
    a("s_cmp_lt_u32 s25, 12")
    a("s_cselect_b32 s16, s6, s8")
    a("s_cselect_b32 s17, s7, s9")
    a(f"s_cselect_b32 s18, {SZ_WQKV}, s18")
    a("s_cselect_b32 s28, 3840, s28")
    a("s_cselect_b32 s29, s25, s29")
    a("s_and_b32 s17, s17, 0xffff")
    a("s_mov_b32 s19, 0x00020000")
    a("s_mul_i32 s29, s29, 160")
    a(f"s_mov_b32 s31, {WS_KV}")
    a(f"s_mov_b32 s22, {SZ_KV}")
    a("s_cmp_eq_u32 s27, 0")
    a(f"s_cselect_b32 s31, {WS_Q}, s31")
    a(f"s_cselect_b32 s22, {SZ_Q}, s22")
    a("s_cmp_eq_u32 s27, 3")
    a(f"s_cselect_b32 s31, {WS_H}, s31")
    a(f"s_cselect_b32 s22, {SZ_H}, s22")
    a("s_add_u32 s20, s10, s31")
    a("s_addc_u32 s21, s11, 0")
    a("s_and_b32 s21, s21, 0xffff")
    a("s_mov_b32 s23, 0x00020000")
    prof_init(a, 10, 11, 26, 0)
    prof(a, 0)
    a("s_lshr_b32 s32, s26, 1")
    a("s_and_b32 s33, s26, 1")
    a("v_lshrrev_b32 v2, 3, v1")
    a("v_and_b32 v3, 7, v1")
    a("v_xor_b32 v3, v3, v2")
    a("v_lshlrev_b32 v3, 4, v3")
    a("v_mul_u32_u24 v2, 1280, v2")
    a("v_add_u32 v4, v2, v3")
    a("v_add_u32 v5, 10240, v4")
    a("v_add_u32 v6, 20480, v4")
    a("s_mul_i32 s34, s26, 24")
    a("s_add_u32 s34, s34, s30")
    a("s_mul_i32 s34, s34, 1280")
    a("s_mov_b32 s35, 0")
    a("s_lshl_b32 s36, s28, 6")
    a("s_add_u32 s62, s34, 1280")
    a("s_mul_i32 s61, s28, 640")
    a("s_add_u32 s60, s24, s25")
    a("s_mul_i32 s63, s60, 43")
    a("s_lshr_b32 s63, s63, 7")
    a("s_mul_i32 s63, s63, 3")
    a("s_sub_u32 s60, s60, s63")
    a(f"s_mul_i32 s60, s60, {XP_ROT}")
    a("s_lshl_b32 s63, s60, 7")
    a("s_add_u32 s34, s34, s63")
    a("s_mul_i32 s35, s60, s36")
    a("s_add_u32 s37, s26, 8")
    a("s_add_u32 s38, s26, 16")
    a("s_cmp_lt_u32 s26, 4")
    a("s_cselect_b32 s38, s38, s37")
    a("s_lshl_b32 s39, s29, 1")
    for j, sidx in enumerate((26, 37, 38)):
        a(f"s_lshl_b32 s40, s{sidx}, 6")
        a("v_add_u32 v2, s40, v1")
        a("v_mul_u32_u24 v3, 3277, v2")
        a("v_lshrrev_b32 v3, 16, v3")
        a("v_mul_u32_u24 v22, 20, v3")
        a("v_sub_u32 v2, v2, v22")
        a("v_lshrrev_b32 v22, 2, v3")
        a("v_and_b32 v22, 2, v22")
        a("v_xor_b32 v2, v2, v22")
        a("v_lshlrev_b32 v2, 4, v2")
        a("v_mul_lo_u32 v3, v3, s28")
        a(f"v_add3_u32 v{7 + j}, v2, v3, s39")
    a("s_mul_i32 s41, s26, 3072")
    a("s_lshl_b32 s42, s26, 10")
    a("s_add_u32 s42, s42, 24576")
    a("s_lshl_b32 s43, s37, 10")
    a("s_add_u32 s43, s43, 24576")
    a("s_lshl_b32 s44, s38, 10")
    a("s_add_u32 s44, s44, 24576")

    def dma_pieces(buf):
        base = buf * K1_STAGE
        g = []
        for j in range(3):
            x = [f"s_add_u32 m0, s41, {base + j * 1024}", "s_nop 0",
                 f"buffer_load_dwordx4 v{4 + j}, s[12:15], s34 offen lds"]
            if j == 2:
                x += ["s_add_u32 s34, s34, 128", "s_sub_u32 s60, s34, 1280", "s_cmp_ge_u32 s34, s62",
                      "s_cselect_b32 s34, s60, s34"]
            g.append(x)
        for j in range(3):
            x = [f"s_add_u32 m0, s{42 + j}, {base}", "s_nop 0",
                 f"buffer_load_dwordx4 v{7 + j}, s[16:19], s35 offen lds"]
            if j == 2:
                x += ["s_add_u32 s35, s35, s36", "s_cmp_ge_u32 s35, s61", "s_cselect_b32 s35, 0, s35"]
            g.append(x)
        return g

    for b in range(3):
        for g in dma_pieces(b):
            for x in g:
                a(x)
    NPF = 0
    if XP_PF > 1:
        NPF = 3
        a("s_lshr_b32 s45, s2, 3")
        a("s_mul_i32 s45, s45, 81920")
        a("v_lshlrev_b32 v2, 7, v0")
        a("buffer_load_dword v160, v2, s[12:15], s45 offen")
        a("v_add_u32 v3, 0x10000, v2")
        a("v_cmp_gt_u32 vcc, 128, v0")
        a("v_bfrev_b32 v22, 1")
        a("v_cndmask_b32 v3, v22, v3, vcc")
        a("buffer_load_dword v161, v3, s[12:15], s45 offen")
        a("v_mul_u32_u24 v2, 21846, v0")
        a("v_lshrrev_b32 v2, 16, v2")
        a("v_mul_u32_u24 v3, 3, v2")
        a("v_sub_u32 v3, v0, v3")
        a("v_lshlrev_b32 v3, 7, v3")
        a("s_mul_i32 s45, s24, 59")
        a("v_add_u32 v2, s45, v2")
        a("v_cmp_gt_u32 vcc, 177, v0")
        a("v_mul_lo_u32 v2, v2, s28")
        a("v_add3_u32 v2, v2, v3, s39")
        a("v_cndmask_b32 v2, v22, v2, vcc")
        a("buffer_load_dword v162, v2, s[16:19], 0 offen")
    a("v_lshrrev_b32 v22, 4, v1")
    a("v_and_b32 v23, 15, v1")
    a("s_mul_i32 s45, s32, 48")
    a("v_add_u32 v2, s45, v23")
    a("v_lshlrev_b32 v2, 7, v2")
    a("v_and_b32 v3, 7, v23")
    a("v_xor_b32 v3, v3, v22")
    a("v_lshlrev_b32 v3, 4, v3")
    a("v_add_u32 v10, v2, v3")
    a("v_xor_b32 v11, 64, v10")
    for b in (1, 2):
        a(f"v_add_u32 v{10 + 2 * b}, {b * K1_STAGE}, v10")
        a(f"v_add_u32 v{11 + 2 * b}, {b * K1_STAGE}, v11")
    a("v_lshlrev_b32 v2, 3, v22")
    a("v_lshrrev_b32 v3, 2, v23")
    a("v_add_u32 v2, v2, v3")
    a("v_mul_u32_u24 v2, 320, v2")
    a("v_and_b32 v3, 3, v23")
    a("v_lshlrev_b32 v3, 3, v3")
    a("s_mul_i32 s45, s33, 160")
    a("s_add_u32 s45, s45, 24576")
    a("v_add3_u32 v2, v2, v3, s45")
    a("v_and_b32 v3, 1, v22")
    a("v_lshlrev_b32 v3, 5, v3")
    a("s_cmp_eq_u32 s33, 0")
    a("s_cselect_b32 s45, 1, -1")
    a("v_mul_lo_u32 v3, v3, s45")
    a("v_add_u32 v16, v2, v3")
    a("v_sub_u32 v17, v2, v3")
    for b in (1, 2):
        a(f"v_add_u32 v{16 + 2 * b}, {b * K1_STAGE}, v16")
        a(f"v_add_u32 v{17 + 2 * b}, {b * K1_STAGE}, v17")

    XF = (24, 36)
    WF = (48, 68)
    ACC = 88

    def reads(buf, sub, st):
        r = []
        for ti in range(3):
            r.append(f"ds_read_b128 {vr(XF[st] + 4 * ti, 4)}, v{10 + 2 * buf + sub} offset:{ti * 2048}")
        for ni in range(5):
            ad = 16 + 2 * buf + (ni & 1)
            off = ni * 32 + sub * 10240
            r.append(f"ds_read_b64_tr_b16 {vr(WF[st] + 4 * ni, 2)}, v{ad} offset:{off}")
            r.append(f"ds_read_b64_tr_b16 {vr(WF[st] + 4 * ni + 2, 2)}, v{ad} offset:{off + 1280}")
        return r

    def mfmas(st, vor, first):
        m = []
        for ni in range(5):
            for ti in range(3):
                d = ACC + 4 * (ni * 3 + ti)
                c = "0" if first else vr(d, 4)
                w = vr(WF[st] + 4 * ni, 4)
                x = vr(XF[st] + 4 * ti, 4)
                if vor:
                    m.append(f"v_mfma_f32_16x16x32_bf16 {vr(d, 4)}, {x}, {w}, {c}")
                else:
                    m.append(f"v_mfma_f32_16x16x32_bf16 {vr(d, 4)}, {w}, {x}, {c}")
        return m

    def phase(ms, rs, ds):
        rs = list(rs)
        ds = list(ds)
        for i, m in enumerate(ms):
            a(m)
            for _ in range(XP_RPM):
                if rs:
                    a(rs.pop(0))
            if ds and i in XP_DSL:
                for x in ds.pop(0):
                    a(x)

    def loop(vor):
        a(f"s_waitcnt vmcnt({12 + NPF})")
        a("s_barrier")
        prof(a, 1)
        for r in reads(0, 0, 0):
            a(r)
        pend = []
        for ks in range(10):
            buf = ks % 3
            a("s_waitcnt lgkmcnt(0)")
            phase(mfmas(0, vor, ks == 0), reads(buf, 1, 1), pend)
            pend = []
            nxt = []
            if ks < 9:
                a(f"s_waitcnt vmcnt({(6 + NPF if ks < 2 else 6) if ks < 8 else 0}) lgkmcnt(0)")
                a("s_barrier")
                prof(a, 2 + ks)
                nxt = reads((ks + 1) % 3, 0, 0)
            else:
                a("s_waitcnt lgkmcnt(0)")
            d = []
            if ks + 3 < 10:
                p = dma_pieces(buf)
                d = p[:3]
                pend = p[3:]
            phase(mfmas(1, vor, False), nxt, d)
        a("s_barrier")
        a("s_nop 7")
        a("s_nop 3")
        prof(a, 11)

    a("s_cmp_eq_u32 s27, 2")
    a("s_cbranch_scc1 K1_VLOOP")
    loop(False)
    a("s_mul_i32 s45, s32, 48")
    a("v_add_u32 v4, s45, v23")
    a("s_cmp_eq_u32 s27, 3")
    a("s_cbranch_scc1 K1_EPI_FFN")
    a("s_cmp_eq_u32 s27, 0")
    a(f"s_cselect_b32 s48, {f32bits(C_SCALE)}, 1.0")
    NO = 148
    a("v_mul_u32_u24 v4, 48, v4")
    a("s_mul_i32 s46, s33, 36864")
    a("v_add_u32 v4, s46, v4")
    for ni in range(5):
        a(f"v_add_u32 v2, {4 * ni}, v22")
        a("v_mul_u32_u24 v3, 13, v2")
        a("v_lshrrev_b32 v3, 6, v3")
        a("v_mul_u32_u24 v5, 5, v3")
        a(f"v_sub_u32 v{NO + 5 + ni}, v2, v5")
        a("v_mul_u32_u24 v3, 9216, v3")
        a(f"v_lshl_add_u32 v3, v{NO + 5 + ni}, 3, v3")
        a(f"v_add_u32 v{NO + ni}, v3, v4")
    a("v_mov_b32 v8, 0x3f803f80")
    a("v_mov_b32 v9, 0x00003f80")
    for ti in range(3):
        for ni in range(5):
            d = ACC + 4 * (ni * 3 + ti)
            for i in range(4):
                a(f"v_mul_f32 v{d + i}, s48, v{d + i}")
            a(f"v_cvt_pk_bf16_f32 v{d}, v{d}, v{d + 1}")
            a(f"v_cvt_pk_bf16_f32 v{d + 1}, v{d + 2}, v{d + 3}")
            a(f"ds_write_b64 v{NO + ni}, {vr(d, 2)} offset:{768 * ti}")
    for ni in range(1, 5):
        a(f"v_cmp_eq_u32 vcc, 4, v{NO + 5 + ni}")
        a("s_and_saveexec_b64 s[50:51], vcc")
        for ti in range(3):
            a(f"ds_write_b64 v{NO + ni}, v[8:9] offset:{768 * ti + 8}")
        a("s_mov_b64 exec, s[50:51]")
    a("s_mul_i32 s52, s26, 9216")
    a("s_and_b32 s46, s25, 3")
    a("s_lshl_b32 s46, s46, 3")
    a("s_add_u32 s46, s46, s26")
    a("s_sub_u32 s57, 2048, s30")
    a("s_min_u32 s57, s57, 192")
    a("s_mul_i32 s57, s57, 3")
    a("s_mov_b32 s56, 0")
    a("s_mov_b32 s58, 1000")
    a("s_cmp_eq_u32 s27, 0")
    a("s_cbranch_scc0 K1_CPK")
    a("s_mul_i32 s53, s46, 98304")
    a("s_mul_i32 s47, s30, 48")
    a("s_add_u32 s53, s53, s47")
    a("s_mov_b32 s54, 0")
    a("s_mov_b32 s55, 0")
    a("s_branch K1_COPY")
    a.label("K1_CPK")
    a(f"s_mul_i32 s53, s46, {HEAD_KV}")
    a("s_mul_i32 s47, s30, 90")
    a("s_add_u32 s53, s53, s47")
    a("s_mov_b32 s54, 683")
    a("s_mov_b32 s55, 1344")
    a("s_branch K1_COPY")
    a.label("K1_EPI_FFN")
    a("v_mul_u32_u24 v4, 336, v4")
    a("s_mul_i32 s46, s33, 160")
    a("v_lshl_add_u32 v4, v22, 3, v4")
    a("v_add_u32 v4, s46, v4")
    for ti in range(3):
        for ni in range(5):
            d = ACC + 4 * (ni * 3 + ti)
            for i in range(4):
                a(f"v_max_f32 v{d + i}, 0, v{d + i}")
            a(f"v_cvt_pk_bf16_f32 v{d}, v{d}, v{d + 1}")
            a(f"v_cvt_pk_bf16_f32 v{d + 1}, v{d + 2}, v{d + 3}")
            a(f"ds_write_b64 v4, {vr(d, 2)} offset:{5376 * ti + 32 * ni}")
    a("s_mul_i32 s52, s26, 8064")
    a("s_mul_i32 s46, s26, 24")
    a("s_add_u32 s46, s46, s30")
    a("s_mul_i32 s53, s46, 3456")
    a("s_lshl_b32 s47, s29, 1")
    a("s_add_u32 s53, s53, s47")
    a("s_mov_b32 s54, 3277")
    a("s_mov_b32 s55, 3136")
    a("s_mov_b32 s56, 16")
    a("s_sub_i32 s57, 2048, s46")
    a("s_max_i32 s57, s57, 0")
    a("s_min_u32 s57, s57, 24")
    a("s_mul_i32 s57, s57, 20")
    a("s_sub_u32 s58, 1728, s29")
    a("s_lshr_b32 s58, s58, 3")
    a("s_branch K1_COPY")
    a.label("K1_VLOOP")
    loop(True)
    a("s_mul_i32 s46, s33, 32256")
    for ni in range(5):
        a(f"v_add_u32 v2, {16 * ni}, v23")
        a("v_mul_u32_u24 v3, 205, v2")
        a("v_lshrrev_b32 v3, 12, v3")
        a("v_mul_u32_u24 v4, 20, v3")
        a(f"v_sub_u32 v{NO + 10 + ni}, v2, v4")
        a("v_mul_u32_u24 v3, 8064, v3")
        a(f"v_lshlrev_b32 v4, 6, v{NO + 10 + ni}")
        a(f"v_add3_u32 v{NO + ni}, v3, v4, s46")
        a(f"v_bfe_u32 v{NO + 5 + ni}, v{NO + 10 + ni}, 2, 2")
    a("v_mov_b32 v8, 0x3f803f80")
    a("v_mov_b32 v9, 0x3f803f80")
    a("s_mul_i32 s45, s32, 48")
    for ti in range(3):
        a(f"s_add_u32 s49, s45, {16 * ti}")
        a("v_lshlrev_b32 v2, 2, v22")
        a("v_add_u32 v2, s49, v2")
        a("v_lshrrev_b32 v3, 5, v2")
        a("v_mul_u32_u24 v3, 1344, v3")
        a("v_bfe_u32 v2, v2, 2, 3")
        a("v_bfe_u32 v4, v2, 1, 1")
        a("v_lshl_add_u32 v10, v4, 3, v3")
        a("v_lshrrev_b32 v4, 1, v2")
        a("v_and_b32 v4, 2, v4")
        a("v_and_b32 v2, 1, v2")
        a("v_or_b32 v11, v2, v4")
        for ni in range(5):
            d = ACC + 4 * (ni * 3 + ti)
            a(f"v_cvt_pk_bf16_f32 v{d}, v{d}, v{d + 1}")
            a(f"v_cvt_pk_bf16_f32 v{d + 1}, v{d + 2}, v{d + 3}")
            a(f"v_xor_b32 v6, v11, v{NO + 5 + ni}")
            a("v_lshlrev_b32 v6, 4, v6")
            a(f"v_add3_u32 v6, v6, v10, v{NO + ni}")
            a(f"ds_write_b64 v6, {vr(d, 2)}")
            if ni < 4:
                a("v_xor_b32 v7, 1, v11")
                a("v_lshlrev_b32 v7, 4, v7")
                a(f"v_add3_u32 v7, v7, v10, v{NO + ni}")
                a(f"v_cmp_eq_u32 vcc, 0, v{NO + 10 + ni}")
                a("s_and_saveexec_b64 s[50:51], vcc")
                a("ds_write_b64 v7, v[8:9] offset:1280")
                a("s_mov_b64 exec, s[50:51]")
    a("s_mul_i32 s52, s26, 8064")
    a("s_and_b32 s46, s25, 3")
    a("s_lshl_b32 s46, s46, 3")
    a("s_add_u32 s46, s46, s26")
    a(f"s_mul_i32 s53, s46, {HEAD_KV}")
    a("s_mul_i32 s47, s30, 90")
    a("s_add_u32 s53, s53, s47")
    a("s_add_u32 s53, s53, 1536")
    a("s_mov_b32 s54, 781")
    a("s_mov_b32 s55, 1536")
    a("s_mov_b32 s56, 0")
    a("s_sub_u32 s57, 2048, s30")
    a("s_min_u32 s57, s57, 192")
    a("s_lshr_b32 s57, s57, 5")
    a("s_mul_i32 s57, s57, 84")
    a("s_mov_b32 s58, 1000")
    a.label("K1_COPY")
    a("s_mov_b32 s59, 20")
    for it in range(9):
        ga = 24 + it
        la = 34 + it
        a(f"v_add_u32 v2, {64 * it}, v1")
        a("v_mul_lo_u32 v3, v2, s54")
        a("v_lshrrev_b32 v3, 16, v3")
        a("v_lshlrev_b32 v4, 4, v2")
        a("v_mul_lo_u32 v5, v3, s55")
        a(f"v_add3_u32 v{ga}, v4, v5, s53")
        a("v_mul_lo_u32 v5, v3, s56")
        a(f"v_add3_u32 v{la}, v4, v5, s52")
        a("v_mul_lo_u32 v5, v3, s59")
        a("v_sub_u32 v5, v2, v5")
        a("v_cmp_gt_u32 vcc, s57, v2")
        a("v_cmp_gt_i32 s[50:51], s58, v5")
        a("s_and_b64 vcc, vcc, s[50:51]")
        a("v_bfrev_b32 v5, 1")
        a(f"v_cndmask_b32 v{ga}, v5, v{ga}, vcc")
    a("s_waitcnt lgkmcnt(0)")
    a("s_barrier")
    for it in range(9):
        a(f"ds_read_b128 {vr(48 + 4 * it, 4)}, v{34 + it}")
    for it in range(9):
        a(f"s_waitcnt lgkmcnt({8 - it})")
        a(f"buffer_store_dwordx4 {vr(48 + 4 * it, 4)}, v{24 + it}, s[20:23], 0 offen sc1")
    a.label("K1_PEND")
    prof(a, 12)
    a.label("K1_END")
    a("s_endpgm")
    a.label("K1_PACK")
    a("s_load_dwordx2 s[4:5], s[0:1], 16")
    a("s_load_dwordx2 s[6:7], s[0:1], 72")
    a("s_sub_u32 s3, s3, 253")
    a("s_mul_i32 s3, s3, 17408")
    a("v_add_u32 v1, s3, v0")
    a("v_lshlrev_b32 v2, 4, v1")
    a("s_mov_b32 s20, 52429")
    a("s_mov_b32 s21, 102400")
    a("v_bfrev_b32 v3, 1")
    a("s_waitcnt lgkmcnt(0)")
    srd(a, 12, 4, 5, SZ_WO)
    srd_off(a, 16, 6, 7, WS_WO, SZ_WO)
    for j in range(34):
        a(f"s_mov_b32 s22, {j * 8192}")
        a(f"buffer_load_dwordx4 {vr(24 + 4 * j, 4)}, v2, s[12:15], s22 offen")
    for j in range(34):
        a(f"v_add_u32 v4, {j * 512}, v1")
        a("v_mul_lo_u32 v5, v4, s20")
        a("v_lshrrev_b32 v5, 22, v5")
        a("v_mul_u32_u24 v6, 80, v5")
        a("v_sub_u32 v6, v4, v6")
        a("v_mul_u32_u24 v7, 6554, v6")
        a("v_lshrrev_b32 v7, 16, v7")
        a("v_mul_u32_u24 v8, 10, v7")
        a("v_sub_u32 v6, v6, v8")
        a("v_lshrrev_b32 v8, 1, v5")
        a("v_and_b32 v8, 4, v8")
        a("v_xor_b32 v5, v5, v8")
        a("v_mul_u32_u24 v5, 160, v5")
        a("v_mul_lo_u32 v7, v7, s21")
        a("v_lshl_add_u32 v5, v6, 4, v5")
        a("v_add_u32 v5, v5, v7")
        a("v_cmp_gt_u32 vcc, 51200, v4")
        a(f"v_cndmask_b32 v{16 + (j & 3)}, v3, v5, vcc")
        a("s_waitcnt vmcnt(33)")
        a(f"buffer_store_dwordx4 {vr(24 + 4 * j, 4)}, v{16 + (j & 3)}, s[16:19], 0 offen")
    a("s_endpgm")
    return a.text()


GS_SLOT = 9216


class GW:
    VA = 4
    VW = 8
    RA = 13
    RW = 14
    AF = 24
    WF = 40
    ACC = 60


def gw_setup(a, sR0, sC0B, strideA, sLds):
    a("v_lshrrev_b32 v22, 4, v1")
    a("v_and_b32 v23, 15, v1")
    a("v_lshrrev_b32 v2, 2, v1")
    a("v_sub_u32 v3, 0, v22")
    a("v_and_b32 v3, 3, v3")
    a("v_and_b32 v15, 3, v1")
    a("v_xor_b32 v3, v3, v15")
    a("v_lshlrev_b32 v3, 4, v3")
    a(f"v_add_u32 v2, s{sR0}, v2")
    a(f"s_mov_b32 s60, {strideA}")
    a("v_mul_lo_u32 v2, v2, s60")
    a(f"v_add_u32 v{GW.VA}, v2, v3")
    for i in range(1, 4):
        a(f"v_add_u32 v{GW.VA + i}, {16 * i * strideA}, v{GW.VA}")
    for i in range(5):
        a(f"v_add_u32 v2, {64 * i}, v1")
        a("v_mul_u32_u24 v3, 6554, v2")
        a("v_lshrrev_b32 v3, 16, v3")
        a("v_mul_u32_u24 v15, 10, v3")
        a("v_sub_u32 v2, v2, v15")
        a("v_lshlrev_b32 v2, 4, v2")
        a("v_mul_u32_u24 v3, 1280, v3")
        a(f"v_add3_u32 v{GW.VW + i}, v2, v3, s{sC0B}")
    a("v_lshrrev_b32 v2, 2, v23")
    a("v_sub_u32 v2, 0, v2")
    a("v_and_b32 v2, 3, v2")
    a("v_xor_b32 v2, v2, v22")
    a("v_lshlrev_b32 v2, 4, v2")
    a("v_lshl_add_u32 v2, v23, 6, v2")
    a(f"v_add_u32 v{GW.RA}, s{sLds}, v2")
    a("v_lshlrev_b32 v2, 3, v22")
    a("v_lshrrev_b32 v3, 2, v23")
    a("v_add_u32 v2, v2, v3")
    a("v_mul_u32_u24 v2, 160, v2")
    a("v_and_b32 v3, 3, v23")
    a("v_lshlrev_b32 v3, 3, v3")
    a("v_add_u32 v2, 4096, v2")
    a(f"v_add3_u32 v{GW.RW}, v2, v3, s{sLds}")


def gw_issue(a, slot, srdA, srdW, sKA, sKW, sLds):
    for i in range(4):
        a(f"s_add_u32 m0, s{sLds}, {slot * GS_SLOT + i * 1024}")
        a("s_nop 0")
        a(f"buffer_load_dwordx4 v{GW.VA + i}, {sr(srdA, 4)}, s{sKA} offen lds")
    for i in range(5):
        a(f"s_add_u32 m0, s{sLds}, {slot * GS_SLOT + 4096 + i * 1024}")
        a("s_nop 0")
        a(f"buffer_load_dwordx4 v{GW.VW + i}, {sr(srdW, 4)}, s{sKW} offen lds")
    a(f"s_add_u32 s{sKA}, s{sKA}, 64")
    a(f"s_add_u32 s{sKW}, s{sKW}, {32 * 1280}")


def gw_compute(a, slot, first):
    for t in range(4):
        a(f"ds_read_b128 {vr(GW.AF + 4 * t, 4)}, v{GW.RA} offset:{slot * GS_SLOT + t * 1024}")
    for n in range(5):
        off = slot * GS_SLOT + n * 32
        a(f"ds_read_b64_tr_b16 {vr(GW.WF + 4 * n, 2)}, v{GW.RW} offset:{off}")
        a(f"ds_read_b64_tr_b16 {vr(GW.WF + 4 * n + 2, 2)}, v{GW.RW} offset:{off + 640}")
    a("s_waitcnt lgkmcnt(0)")
    for n in range(5):
        for t in range(4):
            d = GW.ACC + 4 * (n * 4 + t)
            c = "0" if first else vr(d, 4)
            a(f"v_mfma_f32_16x16x32_bf16 {vr(d, 4)}, {vr(GW.WF + 4 * n, 4)}, {vr(GW.AF + 4 * t, 4)}, {c}")


def gw_write_partials(a, sRed):
    a("v_mul_u32_u24 v2, 320, v23")
    a("v_lshl_add_u32 v2, v22, 4, v2")
    a(f"v_add_u32 v2, s{sRed}, v2")
    for n in range(5):
        for t in range(4):
            d = GW.ACC + 4 * (n * 4 + t)
            a(f"ds_write_b128 v2, {vr(d, 4)} offset:{t * 5120 + n * 64}")


def gw_read_sum(a, sW4, redbase):
    a("v_lshrrev_b32 v2, 2, v1")
    a(f"s_lshl_b32 s60, s{sW4}, 4")
    a("v_add_u32 v2, s60, v2")
    a("v_mul_u32_u24 v2, 320, v2")
    a("v_and_b32 v3, 3, v1")
    a("v_mul_u32_u24 v3, 80, v3")
    a("v_add_u32 v2, v2, v3")
    if redbase:
        a(f"v_add_u32 v2, {redbase}, v2")
    R = 24
    for src in range(4):
        for j in range(5):
            a(f"ds_read_b128 {vr(R + 20 * src + 4 * j, 4)}, v2 offset:{src * 20480 + j * 16}")
        a("s_waitcnt lgkmcnt(0)")
    for e in range(20):
        a(f"v_add_f32 v{R + e}, v{R + e}, v{R + 20 + e}")
        a(f"v_add_f32 v{R + 40 + e}, v{R + 40 + e}, v{R + 60 + e}")
    for e in range(20):
        a(f"v_add_f32 v{R + e}, v{R + e}, v{R + 40 + e}")


def tile_map(a, sRt, sCt):
    if XP_QX:
        a("s_and_b32 s60, s2, 7")
        a("s_lshr_b32 s61, s2, 3")
        a("s_lshl_b32 s62, s60, 2")
        a("s_lshr_b32 s63, s61, 3")
        a(f"s_add_u32 s{sRt}, s62, s63")
        a(f"s_and_b32 s{sCt}, s61, 7")
        return
    a("s_and_b32 s60, s2, 7")
    a("s_lshr_b32 s61, s2, 3")
    a("s_lshr_b32 s62, s60, 1")
    a("s_lshl_b32 s62, s62, 3")
    a("s_lshr_b32 s63, s61, 2")
    a(f"s_add_u32 s{sRt}, s62, s63")
    a("s_and_b32 s62, s60, 1")
    a("s_lshl_b32 s62, s62, 2")
    a("s_and_b32 s63, s61, 3")
    a(f"s_add_u32 s{sCt}, s62, s63")


K2_BUF = 24576
K2_FFN = 3 * K2_BUF
K2_FLAG = K2_FFN + 4 * 20480
K2_LDS = K2_FLAG + 64


def k2():
    a = Asm()
    a.label("k2_kernel")
    if PROF:
        a("s_memtime s[86:87]")
    a("s_cmp_ge_u32 s2, 256")
    a("s_cbranch_scc1 K2_END")
    a("s_and_b32 s3, s2, 7")
    a("s_lshl_b32 s3, s3, 2")
    a("s_lshr_b32 s4, s2, 3")
    a("s_and_b32 s4, s4, 3")
    a("s_add_u32 s36, s3, s4")
    a("s_lshr_b32 s37, s2, 5")
    if XP_QX:
        a("s_lshr_b32 s36, s2, 3")
        a("s_and_b32 s37, s2, 7")
    a("s_load_dwordx2 s[4:5], s[0:1], 0")
    a("s_load_dwordx2 s[6:7], s[0:1], 48")
    a("s_load_dwordx2 s[8:9], s[0:1], 72")
    a("v_and_b32 v1, 63, v0")
    a("v_lshrrev_b32 v2, 6, v0")
    a("s_nop 0")
    a("v_readfirstlane_b32 s38, v2")
    a("s_waitcnt lgkmcnt(0)")
    a("s_cmp_ge_u32 s38, 8")
    a("s_cbranch_scc1 K2_FFN")
    a("s_setprio 1")
    srd_off(a, 12, 8, 9, WS_KV, SZ_KV)
    srd_off(a, 16, 8, 9, WS_Q, SZ_Q)
    srd_off(a, 20, 8, 9, WS_O, SZ_O)
    srd(a, 24, 4, 5, SZ_X)
    srd(a, 28, 6, 7, 1280)
    srd_off(a, 32, 8, 9, WS_G, SZ_G)
    prof_init(a, 8, 9, 38, 1)
    prof(a, 0)
    a("v_lshlrev_b32 v16, 4, v1")
    a("s_mul_i32 s46, s38, 3072")
    a(f"s_mul_i32 s45, s36, {HEAD_KV}")
    a("s_add_u32 s45, s45, s46")
    a("s_mov_b32 s44, s45")
    a("s_mov_b32 s41, 0")
    a(f"s_mov_b32 s42, {K2_BUF}")
    a(f"s_mov_b32 s43, {2 * K2_BUF}")
    a("s_mov_b32 s40, 0")
    for sg in (41, 42):
        a(f"s_add_u32 m0, s{sg}, s46")
        a("s_nop 0")
        for j in range(3):
            a(f"buffer_load_dwordx4 v16, s[12:15], s44 offen offset:{1024 * j} lds")
        a("s_add_u32 s44, s44, 23040")
    a("v_mov_b32 v2, 0")
    a(f"v_mov_b32 v3, {K2_FLAG}")
    a("ds_write_b32 v3, v2")
    a("v_and_b32 v17, 31, v1")
    a("v_lshrrev_b32 v18, 5, v1")
    a("s_lshl_b32 s47, s37, 8")
    a("s_lshl_b32 s48, s38, 5")
    a("s_add_u32 s47, s47, s48")
    a("v_add_u32 v2, s47, v17")
    a("v_mul_u32_u24 v2, 48, v2")
    a("s_mul_i32 s48, s36, 98304")
    a("v_add_u32 v2, s48, v2")
    a("v_lshl_add_u32 v3, v18, 4, v2")
    a("buffer_load_dwordx4 v[20:23], v3, s[16:19], 0 offen")
    a("buffer_load_dwordx2 v[24:25], v2, s[16:19], 0 offen offset:32")
    a("s_lshl_b32 s48, s37, 8")
    a("s_lshl_b32 s49, s36, 3")
    a("s_add_u32 s48, s48, s49")
    a("s_add_u32 s48, s48, s38")
    a("s_mul_i32 s49, s48, 1280")
    a("v_mul_u32_u24 v2, 20, v1")
    a("buffer_load_dwordx4 v[116:119], v2, s[24:27], s49 offen")
    a("buffer_load_dword v120, v2, s[24:27], s49 offen offset:16")
    a("buffer_load_dwordx4 v[122:125], v2, s[28:31], 0 offen")
    a("buffer_load_dword v126, v2, s[28:31], 0 offen offset:16")
    a("v_mul_u32_u24 v2, 48, v17")
    a("v_lshl_add_u32 v12, v18, 4, v2")
    a("v_add_u32 v13, 32, v2")
    a("v_bfe_u32 v3, v17, 2, 2")
    a("v_lshlrev_b32 v2, 6, v17")
    a("v_add_u32 v2, 1536, v2")
    a("v_xor_b32 v19, v18, v3")
    a("v_lshl_add_u32 v14, v19, 4, v2")
    a("v_add_u32 v19, 2, v18")
    a("v_xor_b32 v19, v19, v3")
    a("v_lshl_add_u32 v15, v19, 4, v2")
    a("s_waitcnt vmcnt(0)")
    a("v_mov_b32 v2, 0")
    for j in range(5):
        xv = 116 + j
        gv = 122 + j
        a(f"v_lshlrev_b32 v3, 16, v{xv}")
        a(f"v_and_b32 v19, 0xffff0000, v{xv}")
        a(f"v_lshlrev_b32 v127, 16, v{gv}")
        a(f"v_and_b32 v128, 0xffff0000, v{gv}")
        a("v_mul_f32 v3, v3, v127")
        a("v_mul_f32 v19, v19, v128")
        a("v_cvt_pk_bf16_f32 v3, v3, v19")
        a("v_lshlrev_b32 v19, 16, v3")
        a("v_and_b32 v3, 0xffff0000, v3")
        a("v_add_f32 v2, v2, v19")
        a("v_add_f32 v2, v2, v3")
    for sh in (1, 2, 4, 8):
        a("s_nop 1")
        a(f"v_add_f32_dpp v2, v2, v2 row_shr:{sh} row_mask:0xf bank_mask:0xf")
    a("s_nop 1")
    a("v_add_f32_dpp v2, v2, v2 row_bcast:15 row_mask:0xa bank_mask:0xf")
    a("s_nop 1")
    a("v_add_f32_dpp v2, v2, v2 row_bcast:31 row_mask:0xc bank_mask:0xf")
    a("s_nop 1")
    a("v_cvt_pk_bf16_f32 v2, v2, v2")
    a("v_lshlrev_b32 v2, 16, v2")
    a(f"v_mul_f32 v2, {f32bits(-LOG2E)}, v2")
    a("v_exp_f32 v2, v2")
    a("s_nop 0")
    a("v_add_f32 v2, 1.0, v2")
    a("v_rcp_f32 v2, v2")
    a("s_nop 0")
    a("v_cvt_pk_bf16_f32 v2, v2, v2")
    a("v_lshlrev_b32 v2, 16, v2")
    a("s_lshl_b32 s49, s48, 2")
    a("v_mov_b32 v3, 0")
    a("v_cmp_eq_u32 vcc, 63, v1")
    a("s_and_saveexec_b64 s[50:51], vcc")
    a("buffer_store_dword v2, v3, s[32:35], s49 offen")
    a("s_mov_b64 exec, s[50:51]")
    a("v_cmp_eq_u32 vcc, 0, v18")
    a("s_nop 1")
    a("v_cndmask_b32 v24, 0, v24, vcc")
    a("v_cndmask_b32 v25, 0, v25, vcc")
    a("v_mov_b32 v26, 0")
    a("v_mov_b32 v27, 0")
    a("s_mov_b32 s39, 0")

    QF0, QF1 = 20, 24
    KF = (28, 36)
    VF = (44, 52)
    P = 60
    S = (68, 84)
    O = 100

    def dma_stage(lds_sreg):
        a(f"s_add_u32 m0, s{lds_sreg}, s46")
        a("s_nop 0")
        for j in range(3):
            a(f"buffer_load_dwordx4 v16, s[12:15], s44 offen offset:{1024 * j} lds")
        a("s_add_u32 s44, s44, 23040")

    def set_addrs(dst, sbase):
        for i in range(4):
            a(f"v_add_u32 v{dst + i}, s{sbase}, v{12 + i}")

    def kread(st, idx):
        base = 4 if idx < 8 else 8
        off = (idx % 8) * 2880
        return [f"ds_read_b128 {vr(KF[st], 4)}, v{base} offset:{off}",
                f"ds_read_b128 {vr(KF[st] + 4, 4)}, v{base + 1} offset:{off}"]

    def vread(st, idx):
        base = 4 if idx < 8 else 8
        off = (idx % 8) * 2880
        return [f"ds_read_b128 {vr(VF[st], 4)}, v{base + 2} offset:{off}",
                f"ds_read_b128 {vr(VF[st] + 4, 4)}, v{base + 3} offset:{off}"]

    def qk(st, sst):
        a(f"v_mfma_f32_32x32x16_bf16 {vr(S[sst], 16)}, {vr(KF[st], 4)}, {vr(QF0, 4)}, 0")
        a(f"v_mfma_f32_32x32x16_bf16 {vr(S[sst], 16)}, {vr(KF[st] + 4, 4)}, {vr(QF1, 4)}, {vr(S[sst], 16)}")

    def set_m_from(mreg):
        a(f"v_mov_b32 v3, v{mreg}")
        a("s_nop 1")
        a(f"v_permlane32_swap_b32 v{mreg}, v3")
        a("s_nop 1")
        a(f"v_max_f32 v2, v{mreg}, v3")
        a("v_and_b32 v3, 0xffff0000, v2")
        a("v_sub_f32 v2, v2, v3")
        a("v_and_b32 v19, 0xffff0000, v2")
        a("v_sub_f32 v2, v2, v19")
        a("v_xor_b32 v3, 0x80000000, v3")
        a("v_xor_b32 v19, 0x80000000, v19")
        a("v_xor_b32 v2, 0x80000000, v2")
        a("v_lshrrev_b32 v3, 16, v3")
        a("v_or_b32 v3, v3, v19")
        a("v_lshrrev_b32 v2, 16, v2")
        a("v_cmp_eq_u32 vcc, 0, v18")
        a("s_nop 1")
        a("v_cndmask_b32 v26, 0, v3, vcc")
        a("v_cndmask_b32 v27, 0, v2, vcc")
        a("s_nop 1")

    def start_stream():
        a("s_mov_b32 s44, s45")
        a("s_mov_b32 s41, 0")
        a(f"s_mov_b32 s42, {K2_BUF}")
        a(f"s_mov_b32 s43, {2 * K2_BUF}")
        dma_stage(41)
        dma_stage(42)
        set_addrs(4, 41)
        set_addrs(8, 42)
        a("s_mov_b32 s40, 0")

    def stage_head(lbl):
        a("s_waitcnt vmcnt(0) lgkmcnt(0)")
        a("s_barrier")
        a("s_cmp_ge_u32 s40, 6")
        a(f"s_cbranch_scc1 {lbl}")
        dma_stage(43)
        a.label(lbl)

    def stage_rotate():
        a("s_mov_b32 s47, s41")
        a("s_mov_b32 s41, s42")
        a("s_mov_b32 s42, s43")
        a("s_mov_b32 s43, s47")
        for i in range(4):
            a(f"v_mov_b32 v{4 + i}, v{8 + i}")
        set_addrs(8, 42)
        a("s_add_u32 s40, s40, 1")

    a.label("K2_MAIN")
    prof(a, 1)
    a("s_cmp_eq_u32 s39, 0")
    a("s_cbranch_scc1 K2_STARTED")
    start_stream()
    a.label("K2_STARTED")
    set_addrs(4, 41)
    set_addrs(8, 42)
    for i in range(16):
        a(f"v_mov_b32 v{O + i}, 0")
    for i in range(4):
        a(f"v_mov_b32 v{P + 4 + i}, 0")
        a(f"v_mov_b32 v{VF[1] + 4 + i}, 0")
    a.label("K2_STAGE")
    stage_head("K2_NODMA")
    a("s_cmp_lg_u32 s40, 0")
    a("s_cbranch_scc1 K2_BODY")
    for r in kread(0, 0):
        a(r)
    a("s_cmp_lg_u32 s39, 0")
    a("s_cbranch_scc1 K2_PRIME")
    a("s_waitcnt lgkmcnt(0)")
    qk(0, 0)
    a("s_nop 15")
    a("s_nop 3")
    s0 = S[0]
    a(f"v_max3_f32 v116, v{s0}, v{s0 + 1}, v{s0 + 2}")
    for i in range(3, 15, 2):
        a(f"v_max3_f32 v116, v116, v{s0 + i}, v{s0 + i + 1}")
    a(f"v_max_f32 v116, v116, v{s0 + 15}")
    set_m_from(116)
    a.label("K2_PRIME")
    for r in kread(1, 1):
        a(r)
    for r in vread(0, 0):
        a(r)
    a("s_waitcnt lgkmcnt(4)")
    qk(0, 0)
    a("s_nop 15")
    prof(a, 2)
    a.label("K2_BODY")

    def body(par):
        for t in range(8):
            c = t % 2
            n = 1 - c
            sc = S[c]
            sn = S[n]

            def ex(lo):
                for i in range(lo, lo + 4):
                    a(f"v_exp_f32 v{sc + i}, v{sc + i}")

            def cv(lo):
                for i in range(lo, lo + 4):
                    a(f"v_cvt_pk_bf16_f32 v{P + i}, v{sc + 2 * i}, v{sc + 2 * i + 1}")
            if XP_PRIO:
                a(f"s_setprio {2 if (t & 1) == par else 1}")
            ex(0)
            a(f"v_mfma_f32_32x32x16_bf16 {vr(O, 16)}, {vr(VF[n] + 4, 4)}, {vr(P + 4, 4)}, {vr(O, 16)}")
            ex(4)
            a("s_waitcnt lgkmcnt(2)")
            a(f"v_mfma_f32_32x32x16_bf16 {vr(sn, 16)}, {vr(KF[n], 4)}, {vr(QF0, 4)}, 0")
            cv(0)
            if not XP_NOLDS:
                for r in kread(c, t + 2):
                    a(r)
                for r in vread(n, t + 1):
                    a(r)
            ex(8)
            a(f"v_mfma_f32_32x32x16_bf16 {vr(sn, 16)}, {vr(KF[n] + 4, 4)}, {vr(QF1, 4)}, {vr(sn, 16)}")
            ex(12)
            a("s_waitcnt lgkmcnt(4)")
            a(f"v_mfma_f32_32x32x16_bf16 {vr(O, 16)}, {vr(VF[c], 4)}, {vr(P, 4)}, {vr(O, 16)}")
            cv(4)

    if XP_PRIO:
        a("s_cmp_ge_u32 s38, 4")
        a("s_cbranch_scc1 K2_BODY1")
        body(0)
        a("s_branch K2_BODYE")
        a.label("K2_BODY1")
        body(1)
        a.label("K2_BODYE")
    else:
        body(0)
    stage_rotate()
    if PROF:
        a("s_memtime s[88:89]")
        a("s_waitcnt lgkmcnt(0)")
        a("v_mov_b32 v2, s88")
        a("s_lshl_b32 s90, s40, 2")
        a("v_mov_b32 v3, s90")
        a("buffer_store_dword v2, v3, s[92:95], s91 offen offset:8")
    a("s_cmp_lt_u32 s40, 8")
    a("s_cbranch_scc1 K2_STAGE")
    a("s_nop 1")
    a(f"v_mfma_f32_32x32x16_bf16 {vr(O, 16)}, {vr(VF[1] + 4, 4)}, {vr(P + 4, 4)}, {vr(O, 16)}")
    a("s_nop 15")
    a("s_nop 3")
    a("s_cmp_lg_u32 s39, 0")
    a("s_cbranch_scc1 K2_EPI")
    a("v_mov_b32 v2, 0")
    for i in range(9):
        a(f"v_fma_f32 v2, v{O + i}, 0, v2")
    a("v_mov_b32 v3, 0")
    for i in range(9, 12):
        a(f"v_fma_f32 v3, v{O + i}, 0, v3")
    a("v_cmp_eq_u32 vcc, 0, v18")
    a("s_nop 1")
    a("v_cndmask_b32 v3, 0, v3, vcc")
    a("v_add_f32 v2, v2, v3")
    a("v_cmp_u_f32 vcc, v2, v2")
    a("s_nop 4")
    a("s_cbranch_vccz K2_VOTE")
    a("v_mov_b32 v2, 1")
    a(f"v_mov_b32 v3, {K2_FLAG}")
    a("ds_write_b32 v3, v2")
    a.label("K2_VOTE")
    a("s_branch K2_EPI")
    a.label("K2_FALL")
    a("s_barrier")
    a("v_mov_b32 v26, 0")
    a("v_mov_b32 v27, 0")
    a(f"v_mov_b32 v117, {f32bits(float('-inf'))}")
    start_stream()
    a.label("K2_MSTAGE")
    stage_head("K2_MNODMA")
    for t in range(8):
        for r in kread(0, t):
            a(r)
        a("s_waitcnt lgkmcnt(0)")
        qk(0, 0)
        a("s_nop 15")
        a("s_nop 3")
        for i in range(0, 16, 2):
            a(f"v_max3_f32 v117, v117, v{s0 + i}, v{s0 + i + 1}")
    stage_rotate()
    a("s_cmp_lt_u32 s40, 8")
    a("s_cbranch_scc1 K2_MSTAGE")
    set_m_from(117)
    a("s_mov_b32 s39, 1")
    a("s_waitcnt vmcnt(0) lgkmcnt(0)")
    a("s_barrier")
    a("s_branch K2_MAIN")
    a.label("K2_EPI")
    a(f"v_mov_b32 v2, v{O + 8}")
    a(f"v_mov_b32 v3, v{O + 8}")
    a("s_nop 1")
    a("v_permlane32_swap_b32 v2, v3")
    a("s_nop 1")
    a("v_rcp_f32 v3, v3")
    a("s_nop 0")
    for i in range(12):
        a(f"v_mul_f32 v{O + i}, v{O + i}, v3")
    for i in range(6):
        a(f"v_cvt_pk_bf16_f32 v{P + i}, v{O + 2 * i}, v{O + 2 * i + 1}")
    a("s_lshl_b32 s47, s37, 8")
    a("s_lshl_b32 s48, s38, 5")
    a("s_add_u32 s47, s47, s48")
    a("v_add_u32 v2, s47, v17")
    a("v_mul_u32_u24 v2, 1280, v2")
    a("s_mul_i32 s48, s36, 40")
    a("v_lshl_add_u32 v2, v18, 3, v2")
    a("v_add_u32 v2, s48, v2")
    a(f"buffer_store_dwordx2 {vr(P, 2)}, v2, s[20:23], 0 offen")
    a(f"buffer_store_dwordx2 {vr(P + 2, 2)}, v2, s[20:23], 0 offen offset:16")
    a("v_cmp_eq_u32 vcc, 0, v18")
    a("s_and_saveexec_b64 s[50:51], vcc")
    a(f"buffer_store_dwordx2 {vr(P + 4, 2)}, v2, s[20:23], 0 offen offset:32")
    a("s_mov_b64 exec, s[50:51]")
    a("s_cmp_lg_u32 s39, 0")
    a("s_cbranch_scc1 K2_PEND")
    a("s_waitcnt lgkmcnt(0)")
    a("s_barrier")
    a(f"v_mov_b32 v3, {K2_FLAG}")
    a("ds_read_b32 v2, v3")
    a("s_waitcnt lgkmcnt(0)")
    a("v_readfirstlane_b32 s47, v2")
    a("s_cmp_lg_u32 s47, 0")
    a("s_cbranch_scc1 K2_FALL")
    a.label("K2_PEND")
    prof(a, 12)
    a.label("K2_END")
    a("s_endpgm")
    a.label("K2_FFN")
    if XP_NOFFN:
        a("s_endpgm")
    a("s_load_dwordx2 s[6:7], s[0:1], 40")
    a("s_load_dwordx2 s[52:53], s[0:1], 16")
    tile_map(a, 36, 37)
    a("s_sub_u32 s38, s38, 8")
    a("s_lshl_b32 s39, s36, 6")
    a("s_mul_i32 s40, s37, 160")
    a("s_mul_i32 s41, s38, 20480")
    a(f"s_add_u32 s41, s41, {K2_FFN}")
    a("s_mul_i32 s42, s38, 14")
    a("s_cmp_eq_u32 s38, 3")
    a("s_cselect_b32 s42, 41, s42")
    a("s_lshl_b32 s45, s42, 6")
    a(f"s_mul_i32 s46, s42, {32 * 1280}")
    a("s_waitcnt lgkmcnt(0)")
    srd(a, 16, 6, 7, SZ_W2)
    srd_off(a, 24, 8, 9, WS_H, SZ_H)
    srd_off(a, 28, 8, 9, WS_B, SZ_B)
    gw_setup(a, 39, 40, 3456, 41)
    j = 0
    for k, ns in enumerate(XP_FS):
        a("s_barrier")
        if k == 0:
            gw_issue(a, 0, 24, 16, 45, 46, 41)
        if k == 1 and XP_PF and not XP_QX:
            srd(a, 52, 52, 53, SZ_WO)
            a("s_mul_i32 s56, s2, 3200")
            a("v_and_b32 v3, 255, v0")
            a("v_lshlrev_b32 v2, 7, v3")
            a("v_cmp_gt_u32 vcc, 25, v3")
            a("v_bfrev_b32 v3, 1")
            a("v_cndmask_b32 v2, v3, v2, vcc")
            a("buffer_load_dword v141, v2, s[52:55], s56 offen")
        for _ in range(ns):
            if j < 13:
                gw_issue(a, (j + 1) & 1, 24, 16, 45, 46, 41)
                a("s_waitcnt vmcnt(9)")
            else:
                a("s_waitcnt vmcnt(0)")
                a("s_cmp_ge_u32 s38, 2")
                a("s_cbranch_scc1 K2_FSKIP")
            gw_compute(a, j & 1, j == 0)
            j += 1
    assert j == 14
    a.label("K2_FSKIP")
    a("s_nop 7")
    a("s_nop 3")
    a("s_waitcnt vmcnt(0)")
    gw_write_partials(a, 41)
    a("s_waitcnt lgkmcnt(0)")
    a("s_barrier")
    gw_read_sum(a, 38, K2_FFN)
    for e in range(0, 20, 2):
        a(f"v_cvt_pk_bf16_f32 v{112 + e // 2}, v{24 + e}, v{25 + e}")
    a("s_lshl_b32 s42, s36, 3")
    a("s_add_u32 s42, s42, s37")
    a("s_lshl_b32 s42, s42, 2")
    a("s_add_u32 s42, s42, s38")
    a("s_mul_i32 s42, s42, 2560")
    a("v_mul_u32_u24 v2, 40, v1")
    a("v_add_u32 v2, s42, v2")
    a("buffer_store_dwordx4 v[112:115], v2, s[28:31], 0 offen")
    a("buffer_store_dwordx4 v[116:119], v2, s[28:31], 0 offen offset:16")
    a("buffer_store_dwordx2 v[120:121], v2, s[28:31], 0 offen offset:32")
    if XP_PF2:
        srd_off(a, 52, 8, 9, WS_WO, SZ_WO)
        a("s_lshr_b32 s56, s2, 3")
        a("s_mul_i32 s56, s56, 12800")
        a("s_and_b32 s57, s2, 1")
        a("s_mul_i32 s57, s57, 409600")
        a("s_add_u32 s56, s56, s57")
        a("v_and_b32 v3, 255, v0")
        a("v_lshlrev_b32 v2, 7, v3")
        a("v_cmp_gt_u32 vcc, 100, v3")
        a("v_bfrev_b32 v3, 1")
        a("v_cndmask_b32 v2, v3, v2, vcc")
        a("buffer_load_dword v141, v2, s[52:55], s56 offen")
        a("s_waitcnt vmcnt(0)")
    a("s_endpgm")
    return a.text()


def wmap(a, dst, sC0B):
    a("v_mul_u32_u24 v3, 6554, v2")
    a("v_lshrrev_b32 v3, 16, v3")
    a("v_mul_u32_u24 v15, 10, v3")
    a("v_sub_u32 v2, v2, v15")
    a("v_lshrrev_b32 v15, 1, v3")
    a("v_and_b32 v15, 4, v15")
    a("v_xor_b32 v3, v3, v15")
    a("v_lshlrev_b32 v2, 4, v2")
    a("v_mul_u32_u24 v3, 1280, v3")
    a(f"v_add3_u32 v{dst}, v2, v3, s{sC0B}")


def wread_addr(a, d0, d1, sBase):
    a("v_lshlrev_b32 v2, 3, v22")
    a("v_lshrrev_b32 v3, 2, v23")
    a("v_add_u32 v2, v2, v3")
    a("v_mul_u32_u24 v2, 160, v2")
    a("v_and_b32 v3, 3, v23")
    a("v_lshlrev_b32 v3, 3, v3")
    a(f"v_add3_u32 v2, v2, v3, s{sBase}")
    a("v_and_b32 v3, 1, v22")
    a("v_mul_u32_u24 v3, 640, v3")
    a(f"v_add_u32 v{d0}, v2, v3")
    a("v_sub_u32 v2, v2, v3")
    a(f"v_add_u32 v{d1}, 640, v2")


K3_STG = 36864
K3_B = 4 * K3_STG
K3_LDS = K3_B + 10240


def k3():
    a = Asm()
    a.label("k3_kernel")
    if PROF:
        a("s_memtime s[86:87]")
    a("s_cmp_ge_u32 s2, 256")
    a("s_cbranch_scc1 K3_END")
    a("s_load_dwordx2 s[4:5], s[0:1], 16")
    a("s_load_dwordx2 s[8:9], s[0:1], 72")
    a("s_load_dwordx2 s[10:11], s[0:1], 56")
    tile_map(a, 36, 37)
    a("v_and_b32 v1, 63, v0")
    a("v_lshrrev_b32 v2, 6, v0")
    a("v_lshrrev_b32 v22, 4, v1")
    a("v_readfirstlane_b32 s38, v2")
    a("v_and_b32 v23, 15, v1")
    a("s_lshl_b32 s39, s36, 6")
    a("s_mul_i32 s40, s37, 160")
    a("s_and_b32 s49, s38, 3")
    a("s_lshr_b32 s50, s38, 2")
    a("s_lshl_b32 s42, s38, 3")
    for j in range(2):
        a(f"s_add_u32 s43, s42, {4 * j}")
        a("v_add_u32 v2, s43, v22")
        a("v_and_b32 v3, 15, v2")
        a("v_xor_b32 v3, v3, v23")
        a("v_add_u32 v2, s39, v2")
        a("v_mul_u32_u24 v2, 1280, v2")
        a(f"v_lshl_add_u32 v{4 + j}, v3, 4, v2")
    a("s_add_u32 s43, s38, 8")
    a("s_add_u32 s44, s38, 16")
    a("s_cmp_lt_u32 s38, 4")
    a("s_cselect_b32 s44, s44, s43")
    a("v_lshlrev_b32 v2, 4, v1")
    a("s_mul_i32 s55, s37, 102400")
    for j, sp in enumerate((38, 43, 44)):
        a(f"s_lshl_b32 s{52 + j}, s{sp}, 10")
        a(f"s_add_u32 s51, s{52 + j}, s55")
        a(f"v_add_u32 v{8 + j}, s51, v2")
        a(f"s_add_u32 s{52 + j}, s{52 + j}, 16384")
    a("s_lshl_b32 s45, s38, 11")
    a("s_waitcnt lgkmcnt(0)")
    srd_off(a, 12, 8, 9, WS_WO, SZ_WO)
    srd_off(a, 20, 8, 9, WS_O, SZ_O)
    srd_off(a, 24, 8, 9, WS_B, SZ_B)
    srd_off(a, 28, 8, 9, WS_G, SZ_G)
    srd(a, 32, 10, 11, SZ_OUT)
    prof_init(a, 8, 9, 38, 2)
    prof(a, 0)

    def issue(stage, slot):
        a(f"s_mov_b32 s47, {stage * 256}")
        a(f"s_mov_b32 s48, {stage * 20480}")
        for j in range(2):
            a(f"s_add_u32 m0, s45, {slot * K3_STG + j * 1024}")
            a("s_nop 0")
            a(f"buffer_load_dwordx4 v{4 + j}, s[20:23], s47 offen lds")
        for j in range(3):
            a(f"s_add_u32 m0, s{52 + j}, {slot * K3_STG}")
            a("s_nop 0")
            a(f"buffer_load_dwordx4 v{8 + j}, s[12:15], s48 offen lds")

    for st in range(4):
        issue(st, st)
    a("s_lshl_b32 s42, s36, 3")
    a("s_add_u32 s42, s42, s37")
    a("s_lshl_b32 s42, s42, 3")
    a("s_add_u32 s42, s42, s38")
    a("s_mul_i32 s42, s42, 1280")
    a("s_mul_i32 s43, s38, 1280")
    a("v_lshlrev_b32 v2, 4, v1")
    a("v_lshlrev_b32 v3, 2, v1")
    a(f"s_add_u32 m0, s43, {K3_B}")
    a("s_nop 0")
    a("buffer_load_dwordx4 v2, s[24:27], s42 offen lds")
    a("buffer_load_dword v3, s[24:27], s42 offen offset:1024 lds")
    a("s_lshl_b32 s42, s49, 4")
    a("v_add_u32 v2, s42, v23")
    a("v_add_u32 v3, s39, v2")
    a("v_lshlrev_b32 v3, 2, v3")
    a("buffer_load_dword v16, v3, s[28:31], 0 offen")
    a("v_mul_u32_u24 v2, 160, v2")
    a("v_lshl_add_u32 v2, v22, 3, v2")
    a("s_mul_i32 s43, s50, 96")
    a(f"s_add_u32 s43, s43, {K3_B}")
    a("v_add_u32 v17, s43, v2")
    for j in range(2):
        a("s_mul_i32 s43, s38, 80")
        a(f"s_add_u32 s43, s43, {64 * j}")
        a("v_add_u32 v2, s43, v1")
        a("v_mul_u32_u24 v3, 6554, v2")
        a("v_lshrrev_b32 v3, 16, v3")
        a("v_mul_u32_u24 v15, 10, v3")
        a("v_sub_u32 v15, v2, v15")
        a("v_lshlrev_b32 v15, 4, v15")
        a("v_add_u32 v3, s39, v3")
        a("v_mul_u32_u24 v3, 1280, v3")
        a(f"v_add3_u32 v{12 + j}, v3, v15, s40")
        a("v_lshlrev_b32 v2, 4, v2")
        a(f"v_add_u32 v{32 + j}, {K3_B}, v2")
    BV = 104
    RA, RW = 24, 28
    a("s_lshl_b32 s43, s49, 12")
    a("v_lshlrev_b32 v2, 8, v23")
    a("v_add_u32 v2, s43, v2")
    a("s_lshl_b32 s43, s50, 3")
    for i in range(2):
        a(f"s_add_u32 s44, s43, {4 * i}")
        a("v_add_u32 v3, s44, v22")
        a("v_xor_b32 v3, v3, v23")
        a(f"v_lshl_add_u32 v{RA + i}, v3, 4, v2")
        a(f"v_add_u32 v{RA + 2 + i}, {2 * K3_STG}, v{RA + i}")
    a("s_mul_i32 s43, s50, 10240")
    a("s_add_u32 s43, s43, 16384")
    wread_addr(a, RW, RW + 1, 43)
    a(f"v_add_u32 v{RW + 2}, {2 * K3_STG}, v{RW}")
    a(f"v_add_u32 v{RW + 3}, {2 * K3_STG}, v{RW + 1}")
    a("v_lshlrev_b32 v21, 4, v1")
    a("s_mul_i32 s43, s49, 5120")
    a(f"s_add_u32 s43, s43, {K3_STG}")
    a("v_add_u32 v21, s43, v21")
    AF = (36, 40)
    WF = (44, 64)
    ACC = 84

    def reads(t):
        st, i = t >> 1, t & 1
        slot = st % 4
        hi = slot >> 1
        so = (slot & 1) * K3_STG
        r = [f"ds_read_b128 {vr(AF[i], 4)}, v{RA + 2 * hi + i} offset:{so}"]
        for n in range(5):
            off = so + i * 5120 + n * 32
            r.append(f"ds_read_b64_tr_b16 {vr(WF[i] + 4 * n, 2)}, v{RW + 2 * hi} offset:{off}")
            r.append(f"ds_read_b64_tr_b16 {vr(WF[i] + 4 * n + 2, 2)}, v{RW + 2 * hi + 1} offset:{off}")
        return r

    def mf(t):
        for n in range(5):
            d = ACC + 4 * n
            c = "0" if t == 0 else vr(d, 4)
            a(f"v_mfma_f32_16x16x32_bf16 {vr(d, 4)}, {vr(WF[t & 1] + 4 * n, 4)}, {vr(AF[t & 1], 4)}, {c}")

    a("s_waitcnt vmcnt(18)")
    a("s_barrier")
    prof(a, 1)
    for r in reads(0) + reads(1):
        a(r)
    a("s_waitcnt vmcnt(3) lgkmcnt(0)")
    a("s_barrier")
    prof(a, 2)
    issue(4, 0)
    mf(0)
    for r in reads(2):
        a(r)
    mf(1)
    for t in range(2, 10):
        if t == 7:
            a("s_waitcnt vmcnt(0)")
            a("s_barrier")
            prof(a, 3)
        if t < 9:
            for r in reads(t + 1):
                a(r)
            a("s_waitcnt lgkmcnt(11)")
        else:
            a("s_waitcnt lgkmcnt(0)")
        mf(t)
    a("v_sub_f32 v18, 1.0, v16")
    a("v_cvt_pk_bf16_f32 v18, v18, v18")
    a("v_lshlrev_b32 v18, 16, v18")
    a("s_nop 7")
    prof(a, 6)
    XR = 44
    a("s_cmp_eq_u32 s50, 0")
    a("s_cbranch_scc0 K3_X1")
    for n in (3, 4):
        a(f"ds_write_b128 v21, {vr(ACC + 4 * n, 4)} offset:{1024 * n}")
    a("s_waitcnt lgkmcnt(0)")
    a("s_barrier")
    for n in range(3):
        a(f"ds_read_b128 {vr(XR + 4 * n, 4)}, v21 offset:{1024 * n}")
    a("s_branch K3_FIN")
    a.label("K3_X1")
    for n in range(3):
        a(f"ds_write_b128 v21, {vr(ACC + 4 * n, 4)} offset:{1024 * n}")
    a("s_waitcnt lgkmcnt(0)")
    a("s_barrier")
    for n in (3, 4):
        a(f"ds_read_b128 {vr(XR + 4 * (n - 3), 4)}, v21 offset:{1024 * n}")
    for i in range(8):
        a(f"v_mov_b32 v{ACC + i}, v{ACC + 12 + i}")
    a.label("K3_FIN")
    for n in range(3):
        a(f"ds_read_b64 {vr(BV + 2 * n, 2)}, v17 offset:{32 * n}")
    a("s_waitcnt lgkmcnt(0)")
    for n in range(3):
        if n == 2:
            a("s_cmp_eq_u32 s50, 0")
            a("s_cbranch_scc0 K3_CP")
        for i in range(4):
            a(f"v_add_f32 v{ACC + 4 * n + i}, v{ACC + 4 * n + i}, v{XR + 4 * n + i}")
        for h in range(2):
            e = ACC + 4 * n + 2 * h
            bp = BV + 2 * n + h
            a(f"v_cvt_pk_bf16_f32 v19, v{e}, v{e + 1}")
            a("v_lshlrev_b32 v4, 16, v19")
            a("v_and_b32 v5, 0xffff0000, v19")
            a(f"v_lshlrev_b32 v6, 16, v{bp}")
            a(f"v_and_b32 v7, 0xffff0000, v{bp}")
            a("v_mul_f32 v4, v16, v4")
            a("v_mul_f32 v5, v16, v5")
            a("v_mul_f32 v6, v18, v6")
            a("v_mul_f32 v7, v18, v7")
            a("v_cvt_pk_bf16_f32 v19, v4, v5")
            a("v_cvt_pk_bf16_f32 v20, v6, v7")
            a("v_lshlrev_b32 v4, 16, v19")
            a("v_and_b32 v5, 0xffff0000, v19")
            a("v_lshlrev_b32 v6, 16, v20")
            a("v_and_b32 v7, 0xffff0000, v20")
            a("v_add_f32 v4, v4, v6")
            a("v_add_f32 v5, v5, v7")
            a(f"v_cvt_pk_bf16_f32 v{bp}, v4, v5")
        a(f"ds_write_b64 v17, {vr(BV + 2 * n, 2)} offset:{32 * n}")
    a.label("K3_CP")
    a("s_waitcnt lgkmcnt(0)")
    a("s_barrier")
    a("ds_read_b128 v[4:7], v32")
    a("ds_read_b128 v[8:11], v33")
    a("s_waitcnt lgkmcnt(1)")
    a("buffer_store_dwordx4 v[4:7], v12, s[32:35], 0 offen")
    a("v_cmp_gt_u32 vcc, 16, v1")
    a("s_and_saveexec_b64 s[50:51], vcc")
    a("s_waitcnt lgkmcnt(0)")
    a("buffer_store_dwordx4 v[8:11], v13, s[32:35], 0 offen")
    a("s_mov_b64 exec, s[50:51]")
    a.label("K3_PEND")
    prof(a, 12)
    a.label("K3_END")
    a("s_endpgm")
    return a.text()


def desc(name, vgpr, sgpr=96):
    acc = (vgpr + 3) // 4 * 4
    return f""".amdhsa_kernel {name}
  .amdhsa_next_free_vgpr {vgpr}
  .amdhsa_next_free_sgpr {sgpr}
  .amdhsa_accum_offset {acc}
  .amdhsa_group_segment_fixed_size 0
  .amdhsa_kernarg_size 80
  .amdhsa_user_sgpr_count 2
  .amdhsa_user_sgpr_kernarg_segment_ptr 1
  .amdhsa_system_sgpr_workgroup_id_x 1
.end_amdhsa_kernel
"""


def main():
    hdr = f"""; gated_mix__mha_block__dense_activation_relu__prompt : 3 kernels (generated by gen.py, hand-designed)
; @launch kernel=k1_kernel grid=(256,1,1) block=(512,1,1) lds={K1_LDS}
; @launch kernel=k2_kernel grid=(256,1,1) block=(768,1,1) lds={K2_LDS}
; @launch kernel=k3_kernel grid=(256,1,1) block=(512,1,1) lds={K3_LDS}
.amdgcn_target "amdgcn-amd-amdhsa--gfx950"
.text
"""
    body = ""
    for name, fn in (("k1_kernel", k1), ("k2_kernel", k2), ("k3_kernel", k3)):
        body += f".globl {name}\n.p2align 8\n.type {name},@function\n" + fn()
    tail = '.section .rodata,"a"\n.p2align 6\n'
    tail += desc("k1_kernel", 168)
    tail += ".p2align 6\n" + desc("k2_kernel", 144)
    tail += ".p2align 6\n" + desc("k3_kernel", 116)
    open(OUT, "w").write(hdr + body + tail)


if __name__ == "__main__":
    main()
```

```python
import struct, sys

OUT = sys.argv[1] if len(sys.argv) > 1 else "gated_mix__mha_block__dense_activation_relu__prompt.s"

WS_Q = 0
SZ_Q = 32 * 2048 * 48
WS_KV = 0x400000
HEAD_KV = 64 * 2880
SZ_KV = 32 * HEAD_KV
WS_H = 0xC00000
SZ_H = 2048 * 3456
WS_O = 0x1400000
SZ_O = 2048 * 1280
WS_G = 0x1800000
SZ_G = 2048 * 4
WS_B = 0x1A00000
SZ_B = 2048 * 1280
WS_WO = 0x1E00000
WS_W2P = 0x2400000

SZ_X = 2048 * 1280
SZ_WQKV = 640 * 3840
SZ_WO = 640 * 1280
SZ_W1 = 640 * 3456
SZ_W2 = 1728 * 1280
SZ_OUT = 2048 * 1280


def f32bits(x):
    return struct.unpack("<I", struct.pack("<f", x))[0]


C_SCALE = 1.4426950408889634 / (20 ** 0.5)
LOG2E = 1.4426950408889634


PROF = int(__import__("os").environ.get("PROF", "0"))
WS_T = 0x2000000
XP_PF = int(__import__("os").environ.get("XP_PF", "0"))
XP_ROT = int(__import__("os").environ.get("XP_ROT", "1"))
XP_PRIO = int(__import__("os").environ.get("XP_PRIO", "0"))
XP_RPM = int(__import__("os").environ.get("XP_RPM", "1"))
XP_DSL = eval(__import__("os").environ.get("XP_DSL", "(7, 10, 13)"))
XP_FDEL = int(__import__("os").environ.get("XP_FDEL", "1"))
XP_FS = eval(__import__("os").environ.get("XP_FS", "(2, 2, 2, 2, 2, 2, 2)"))
XP_QX = int(__import__("os").environ.get("XP_QX", "0"))
XP_PF2 = int(__import__("os").environ.get("XP_PF2", "0"))
XP_NOLDS = int(__import__("os").environ.get("XP_NOLDS", "0"))
XP_NOFFN = int(__import__("os").environ.get("XP_NOFFN", "0"))
XP_K8 = int(__import__("os").environ.get("XP_K8", "1"))
XP_PR = eval(__import__("os").environ.get("XP_PR", "(3, 3, 3, 2, 2, 2, 1, 1)"))
XP_FP = int(__import__("os").environ.get("XP_FP", "0"))
XP_FE = int(__import__("os").environ.get("XP_FE", "3"))
XP_FPIPE = int(__import__("os").environ.get("XP_FPIPE", "1"))
XP_FB = int(__import__("os").environ.get("XP_FB", "2"))
XP_ES = int(__import__("os").environ.get("XP_ES", "1"))
XP_FJ = int(__import__("os").environ.get("XP_FJ", "1"))
XP_GF = int(__import__("os").environ.get("XP_GF", "1"))
XP_NODMA = int(__import__("os").environ.get("XP_NODMA", "0"))
XP_NOBAR = int(__import__("os").environ.get("XP_NOBAR", "0"))


def prof_init(a, wsl, wsh, wave_s, kidx=0):
    if not PROF:
        return
    a(f"s_add_u32 s92, s{wsl}, {WS_T + kidx * 0x100000}")
    a(f"s_addc_u32 s93, s{wsh}, 0")
    a("s_and_b32 s93, s93, 0xffff")
    a("s_mov_b32 s94, 0x100000")
    a("s_mov_b32 s95, 0x00020000")
    a("s_lshl_b32 s91, s2, 4")
    a(f"s_add_u32 s91, s91, s{wave_s}")
    a("s_lshl_b32 s91, s91, 7")


def prof(a, slot, tmpv=2):
    if not PROF:
        return
    a("s_memtime s[88:89]")
    a("s_waitcnt lgkmcnt(0)")
    a(f"v_mov_b32 v{tmpv}, s88")
    a(f"v_mov_b32 v{tmpv + 1}, 0")
    a(f"buffer_store_dword v{tmpv}, v{tmpv + 1}, s[92:95], s91 offen offset:{4 * slot}")
    if slot == 0:
        a(f"v_mov_b32 v{tmpv}, s86")
        a(f"buffer_store_dword v{tmpv}, v{tmpv + 1}, s[92:95], s91 offen offset:60")
    if slot in (0, 12):
        a("s_memrealtime s[88:89]")
        a("s_waitcnt lgkmcnt(0)")
        a(f"v_mov_b32 v{tmpv}, s88")
        a(f"buffer_store_dword v{tmpv}, v{tmpv + 1}, s[92:95], s91 offen offset:{4 * (13 if slot == 0 else 14)}")


class Asm:
    def __init__(self):
        self.lines = []

    def __call__(self, s):
        self.lines.append("    " + s)

    def label(self, l):
        self.lines.append(l + ":")

    def c(self, s):
        self.lines.append("    ; " + s)

    def text(self):
        return "\n".join(self.lines) + "\n"


def vr(b, n=1):
    return f"v{b}" if n == 1 else f"v[{b}:{b + n - 1}]"


def sr(b, n=1):
    return f"s{b}" if n == 1 else f"s[{b}:{b + n - 1}]"


def srd(a, d, lo, hi, size):
    a(f"s_mov_b32 s{d}, s{lo}")
    a(f"s_and_b32 s{d + 1}, s{hi}, 0xffff")
    a(f"s_mov_b32 s{d + 2}, {size}")
    a(f"s_mov_b32 s{d + 3}, 0x00020000")


def srd_off(a, d, lo, hi, off, size):
    a(f"s_add_u32 s{d}, s{lo}, {off}")
    a(f"s_addc_u32 s{d + 1}, s{hi}, 0")
    a(f"s_and_b32 s{d + 1}, s{d + 1}, 0xffff")
    a(f"s_mov_b32 s{d + 2}, {size}")
    a(f"s_mov_b32 s{d + 3}, 0x00020000")


K1_STAGE = 45056
K1_LDS = 3 * K1_STAGE


def k1():
    a = Asm()
    a.label("k1_kernel")
    if PROF:
        a("s_memtime s[86:87]")
    a("s_cmp_ge_u32 s2, 256")
    a("s_cbranch_scc1 K1_END")
    a("s_and_b32 s3, s2, 7")
    a("s_lshr_b32 s4, s2, 3")
    a("s_lshl_b32 s3, s3, 5")
    a("s_add_u32 s3, s3, s4")
    a("s_cmp_ge_u32 s3, 253")
    a("s_cbranch_scc1 K1_PACK")
    a("s_mul_i32 s25, s3, 373")
    a("s_lshr_b32 s25, s25, 12")
    a("s_mul_i32 s4, s25, 11")
    a("s_sub_u32 s24, s3, s4")
    a("s_load_dwordx2 s[4:5], s[0:1], 0")
    a("s_load_dwordx2 s[6:7], s[0:1], 8")
    a("s_load_dwordx2 s[8:9], s[0:1], 32")
    a("s_load_dwordx2 s[10:11], s[0:1], 72")
    a("s_load_dwordx2 s[64:65], s[0:1], 40")
    a("v_and_b32 v1, 63, v0")
    a("v_lshrrev_b32 v2, 6, v0")
    a("s_nop 0")
    a("v_readfirstlane_b32 s26, v2")
    a("s_mul_i32 s72, s3, 547")
    a("s_lshr_b32 s27, s25, 2")
    a("s_min_u32 s27, s27, 3")
    a("s_mul_i32 s30, s24, 192")
    a("s_waitcnt lgkmcnt(0)")
    srd(a, 12, 4, 5, SZ_X)
    a("s_sub_u32 s29, s25, 12")
    a(f"s_mov_b32 s18, {SZ_W1}")
    a("s_mov_b32 s28, 3456")
    a("s_cmp_lt_u32 s25, 12")
    a("s_cselect_b32 s16, s6, s8")
    a("s_cselect_b32 s17, s7, s9")
    a(f"s_cselect_b32 s18, {SZ_WQKV}, s18")
    a("s_cselect_b32 s28, 3840, s28")
    a("s_cselect_b32 s29, s25, s29")
    a("s_and_b32 s17, s17, 0xffff")
    a("s_mov_b32 s19, 0x00020000")
    a("s_mul_i32 s29, s29, 160")
    a(f"s_mov_b32 s31, {WS_KV}")
    a(f"s_mov_b32 s22, {SZ_KV}")
    a("s_cmp_eq_u32 s27, 0")
    a(f"s_cselect_b32 s31, {WS_Q}, s31")
    a(f"s_cselect_b32 s22, {SZ_Q}, s22")
    a("s_cmp_eq_u32 s27, 3")
    a(f"s_cselect_b32 s31, {WS_H}, s31")
    a(f"s_cselect_b32 s22, {SZ_H}, s22")
    a("s_add_u32 s20, s10, s31")
    a("s_addc_u32 s21, s11, 0")
    a("s_and_b32 s21, s21, 0xffff")
    a("s_mov_b32 s23, 0x00020000")
    prof_init(a, 10, 11, 26, 0)
    prof(a, 0)
    a("s_and_b32 s65, s65, 0xffff")
    a(f"s_mov_b32 s66, {SZ_W2}")
    a("s_mov_b32 s67, 0x00020000")
    srd_off(a, 68, 10, 11, WS_W2P, SZ_W2)
    a("v_add_u32 v164, s72, v0")
    a("v_add_u32 v165, 512, v164")
    a("v_bfrev_b32 v2, 1")
    a("v_cmp_gt_u32 vcc, 35, v0")
    a("v_lshlrev_b32 v3, 4, v164")
    a("v_cndmask_b32 v165, v2, v165, vcc")
    a("v_lshlrev_b32 v2, 4, v165")
    a("v_cndmask_b32 v2, v165, v2, vcc")
    a("buffer_load_dwordx4 v[168:171], v3, s[64:67], 0 offen")
    a("buffer_load_dwordx4 v[172:175], v2, s[64:67], 0 offen")
    a("s_lshr_b32 s32, s26, 1")
    a("s_and_b32 s33, s26, 1")
    a("v_lshrrev_b32 v2, 3, v1")
    a("v_and_b32 v3, 7, v1")
    a("v_xor_b32 v3, v3, v2")
    a("v_lshlrev_b32 v3, 4, v3")
    a("v_mul_u32_u24 v2, 1280, v2")
    a("v_add_u32 v4, v2, v3")
    a("v_add_u32 v5, 10240, v4")
    a("v_add_u32 v6, 20480, v4")
    a("s_mul_i32 s34, s26, 24")
    a("s_add_u32 s34, s34, s30")
    a("s_mul_i32 s34, s34, 1280")
    a("s_mov_b32 s35, 0")
    a("s_lshl_b32 s36, s28, 6")
    a("s_add_u32 s62, s34, 1280")
    a("s_mul_i32 s61, s28, 640")
    a("s_add_u32 s60, s24, s25")
    a("s_mul_i32 s63, s60, 43")
    a("s_lshr_b32 s63, s63, 7")
    a("s_mul_i32 s63, s63, 3")
    a("s_sub_u32 s60, s60, s63")
    a(f"s_mul_i32 s60, s60, {XP_ROT}")
    a("s_lshl_b32 s63, s60, 7")
    a("s_add_u32 s34, s34, s63")
    a("s_mul_i32 s35, s60, s36")
    a("s_add_u32 s37, s26, 8")
    a("s_add_u32 s38, s26, 16")
    a("s_cmp_lt_u32 s26, 4")
    a("s_cselect_b32 s38, s38, s37")
    a("s_lshl_b32 s39, s29, 1")
    for j, sidx in enumerate((26, 37, 38)):
        a(f"s_lshl_b32 s40, s{sidx}, 6")
        a("v_add_u32 v2, s40, v1")
        a("v_mul_u32_u24 v3, 3277, v2")
        a("v_lshrrev_b32 v3, 16, v3")
        a("v_mul_u32_u24 v22, 20, v3")
        a("v_sub_u32 v2, v2, v22")
        a("v_lshrrev_b32 v22, 2, v3")
        a("v_and_b32 v22, 2, v22")
        a("v_xor_b32 v2, v2, v22")
        a("v_lshlrev_b32 v2, 4, v2")
        a("v_mul_lo_u32 v3, v3, s28")
        a(f"v_add3_u32 v{7 + j}, v2, v3, s39")
    a("s_mul_i32 s41, s26, 3072")
    a("s_lshl_b32 s42, s26, 10")
    a("s_add_u32 s42, s42, 24576")
    a("s_lshl_b32 s43, s37, 10")
    a("s_add_u32 s43, s43, 24576")
    a("s_lshl_b32 s44, s38, 10")
    a("s_add_u32 s44, s44, 24576")

    def dma_pieces(buf):
        base = buf * K1_STAGE
        g = []
        for j in range(3):
            x = [f"s_add_u32 m0, s41, {base + j * 1024}", "s_nop 0",
                 f"buffer_load_dwordx4 v{4 + j}, s[12:15], s34 offen lds"]
            if j == 2:
                x += ["s_add_u32 s34, s34, 128", "s_sub_u32 s60, s34, 1280", "s_cmp_ge_u32 s34, s62",
                      "s_cselect_b32 s34, s60, s34"]
            g.append(x)
        for j in range(3):
            x = [f"s_add_u32 m0, s{42 + j}, {base}", "s_nop 0",
                 f"buffer_load_dwordx4 v{7 + j}, s[16:19], s35 offen lds"]
            if j == 2:
                x += ["s_add_u32 s35, s35, s36", "s_cmp_ge_u32 s35, s61", "s_cselect_b32 s35, 0, s35"]
            g.append(x)
        return g

    for b in range(3):
        for g in dma_pieces(b):
            for x in g:
                a(x)
    NPF = 0
    if XP_PF > 1:
        NPF = 3
        a("s_lshr_b32 s45, s2, 3")
        a("s_mul_i32 s45, s45, 81920")
        a("v_lshlrev_b32 v2, 7, v0")
        a("buffer_load_dword v160, v2, s[12:15], s45 offen")
        a("v_add_u32 v3, 0x10000, v2")
        a("v_cmp_gt_u32 vcc, 128, v0")
        a("v_bfrev_b32 v22, 1")
        a("v_cndmask_b32 v3, v22, v3, vcc")
        a("buffer_load_dword v161, v3, s[12:15], s45 offen")
        a("v_mul_u32_u24 v2, 21846, v0")
        a("v_lshrrev_b32 v2, 16, v2")
        a("v_mul_u32_u24 v3, 3, v2")
        a("v_sub_u32 v3, v0, v3")
        a("v_lshlrev_b32 v3, 7, v3")
        a("s_mul_i32 s45, s24, 59")
        a("v_add_u32 v2, s45, v2")
        a("v_cmp_gt_u32 vcc, 177, v0")
        a("v_mul_lo_u32 v2, v2, s28")
        a("v_add3_u32 v2, v2, v3, s39")
        a("v_cndmask_b32 v2, v22, v2, vcc")
        a("buffer_load_dword v162, v2, s[16:19], 0 offen")
    a("v_lshrrev_b32 v22, 4, v1")
    a("v_and_b32 v23, 15, v1")
    a("s_mul_i32 s45, s32, 48")
    a("v_add_u32 v2, s45, v23")
    a("v_lshlrev_b32 v2, 7, v2")
    a("v_and_b32 v3, 7, v23")
    a("v_xor_b32 v3, v3, v22")
    a("v_lshlrev_b32 v3, 4, v3")
    a("v_add_u32 v10, v2, v3")
    a("v_xor_b32 v11, 64, v10")
    for b in (1, 2):
        a(f"v_add_u32 v{10 + 2 * b}, {b * K1_STAGE}, v10")
        a(f"v_add_u32 v{11 + 2 * b}, {b * K1_STAGE}, v11")
    a("v_lshlrev_b32 v2, 3, v22")
    a("v_lshrrev_b32 v3, 2, v23")
    a("v_add_u32 v2, v2, v3")
    a("v_mul_u32_u24 v2, 320, v2")
    a("v_and_b32 v3, 3, v23")
    a("v_lshlrev_b32 v3, 3, v3")
    a("s_mul_i32 s45, s33, 160")
    a("s_add_u32 s45, s45, 24576")
    a("v_add3_u32 v2, v2, v3, s45")
    a("v_and_b32 v3, 1, v22")
    a("v_lshlrev_b32 v3, 5, v3")
    a("s_cmp_eq_u32 s33, 0")
    a("s_cselect_b32 s45, 1, -1")
    a("v_mul_lo_u32 v3, v3, s45")
    a("v_add_u32 v16, v2, v3")
    a("v_sub_u32 v17, v2, v3")
    for b in (1, 2):
        a(f"v_add_u32 v{16 + 2 * b}, {b * K1_STAGE}, v16")
        a(f"v_add_u32 v{17 + 2 * b}, {b * K1_STAGE}, v17")

    XF = (24, 36)
    WF = (48, 68)
    ACC = 88

    def reads(buf, sub, st):
        r = []
        for ti in range(3):
            r.append(f"ds_read_b128 {vr(XF[st] + 4 * ti, 4)}, v{10 + 2 * buf + sub} offset:{ti * 2048}")
        for ni in range(5):
            ad = 16 + 2 * buf + (ni & 1)
            off = ni * 32 + sub * 10240
            r.append(f"ds_read_b64_tr_b16 {vr(WF[st] + 4 * ni, 2)}, v{ad} offset:{off}")
            r.append(f"ds_read_b64_tr_b16 {vr(WF[st] + 4 * ni + 2, 2)}, v{ad} offset:{off + 1280}")
        return r

    def mfmas(st, vor, first):
        m = []
        for ni in range(5):
            for ti in range(3):
                d = ACC + 4 * (ni * 3 + ti)
                c = "0" if first else vr(d, 4)
                w = vr(WF[st] + 4 * ni, 4)
                x = vr(XF[st] + 4 * ti, 4)
                if vor:
                    m.append(f"v_mfma_f32_16x16x32_bf16 {vr(d, 4)}, {x}, {w}, {c}")
                else:
                    m.append(f"v_mfma_f32_16x16x32_bf16 {vr(d, 4)}, {w}, {x}, {c}")
        return m

    def phase(ms, rs, ds):
        rs = list(rs)
        ds = list(ds)
        for i, m in enumerate(ms):
            a(m)
            for _ in range(XP_RPM):
                if rs:
                    a(rs.pop(0))
            if ds and i in XP_DSL:
                for x in ds.pop(0):
                    a(x)

    def loop(vor):
        a(f"s_waitcnt vmcnt({12 + NPF})")
        a("s_barrier")
        prof(a, 1)
        for r in reads(0, 0, 0):
            a(r)
        pend = []
        for ks in range(10):
            buf = ks % 3
            a("s_waitcnt lgkmcnt(0)")
            phase(mfmas(0, vor, ks == 0), reads(buf, 1, 1), pend)
            pend = []
            nxt = []
            if ks < 9:
                a(f"s_waitcnt vmcnt({(6 + NPF if ks < 2 else 6) if ks < 8 else 0}) lgkmcnt(0)")
                a("s_barrier")
                prof(a, 2 + ks)
                nxt = reads((ks + 1) % 3, 0, 0)
            else:
                a("s_waitcnt lgkmcnt(0)")
            d = []
            if ks + 3 < 10:
                p = dma_pieces(buf)
                d = p[:3]
                pend = p[3:]
            phase(mfmas(1, vor, False), nxt, d)
        a("s_barrier")
        a("s_nop 7")
        a("s_nop 3")
        prof(a, 11)

    a("s_cmp_eq_u32 s27, 2")
    a("s_cbranch_scc1 K1_VLOOP")
    loop(False)
    a("s_mul_i32 s45, s32, 48")
    a("v_add_u32 v4, s45, v23")
    a("s_cmp_eq_u32 s27, 3")
    a("s_cbranch_scc1 K1_EPI_FFN")
    a("s_cmp_eq_u32 s27, 0")
    a(f"s_cselect_b32 s48, {f32bits(C_SCALE)}, 1.0")
    NO = 148
    a("v_mul_u32_u24 v4, 48, v4")
    a("s_mul_i32 s46, s33, 36864")
    a("v_add_u32 v4, s46, v4")
    for ni in range(5):
        a(f"v_add_u32 v2, {4 * ni}, v22")
        a("v_mul_u32_u24 v3, 13, v2")
        a("v_lshrrev_b32 v3, 6, v3")
        a("v_mul_u32_u24 v5, 5, v3")
        a(f"v_sub_u32 v{NO + 5 + ni}, v2, v5")
        a("v_mul_u32_u24 v3, 9216, v3")
        a(f"v_lshl_add_u32 v3, v{NO + 5 + ni}, 3, v3")
        a(f"v_add_u32 v{NO + ni}, v3, v4")
    a("v_mov_b32 v8, 0x3f803f80")
    a("v_mov_b32 v9, 0x00003f80")
    for ti in range(3):
        for ni in range(5):
            d = ACC + 4 * (ni * 3 + ti)
            for i in range(4):
                a(f"v_mul_f32 v{d + i}, s48, v{d + i}")
            a(f"v_cvt_pk_bf16_f32 v{d}, v{d}, v{d + 1}")
            a(f"v_cvt_pk_bf16_f32 v{d + 1}, v{d + 2}, v{d + 3}")
            a(f"ds_write_b64 v{NO + ni}, {vr(d, 2)} offset:{768 * ti}")
    for ni in range(1, 5):
        a(f"v_cmp_eq_u32 vcc, 4, v{NO + 5 + ni}")
        a("s_and_saveexec_b64 s[50:51], vcc")
        for ti in range(3):
            a(f"ds_write_b64 v{NO + ni}, v[8:9] offset:{768 * ti + 8}")
        a("s_mov_b64 exec, s[50:51]")
    a("s_mul_i32 s52, s26, 9216")
    a("s_and_b32 s46, s25, 3")
    a("s_lshl_b32 s46, s46, 3")
    a("s_add_u32 s46, s46, s26")
    a("s_sub_u32 s57, 2048, s30")
    a("s_min_u32 s57, s57, 192")
    a("s_mul_i32 s57, s57, 3")
    a("s_mov_b32 s56, 0")
    a("s_mov_b32 s58, 1000")
    a("s_cmp_eq_u32 s27, 0")
    a("s_cbranch_scc0 K1_CPK")
    a("s_mul_i32 s53, s46, 98304")
    a("s_mul_i32 s47, s30, 48")
    a("s_add_u32 s53, s53, s47")
    a("s_mov_b32 s54, 0")
    a("s_mov_b32 s55, 0")
    a("s_branch K1_COPY")
    a.label("K1_CPK")
    a(f"s_mul_i32 s53, s46, {HEAD_KV}")
    a("s_mul_i32 s47, s30, 90")
    a("s_add_u32 s53, s53, s47")
    a("s_mov_b32 s54, 683")
    a("s_mov_b32 s55, 1344")
    a("s_branch K1_COPY")
    a.label("K1_EPI_FFN")
    a("v_lshrrev_b32 v2, 2, v23")
    a("v_sub_u32 v2, 0, v2")
    a("v_and_b32 v2, 3, v2")
    a("v_and_b32 v3, 1, v22")
    a("v_lshlrev_b32 v3, 3, v3")
    a("v_lshl_add_u32 v3, v23, 6, v3")
    a("v_lshrrev_b32 v4, 1, v22")
    a("s_mul_i32 s46, s33, 10")
    for ni in range(5):
        a(f"s_add_u32 s47, s46, {2 * ni}")
        a("v_add_u32 v5, s47, v4")
        a("v_lshrrev_b32 v6, 2, v5")
        a("v_and_b32 v5, 3, v5")
        a("v_xor_b32 v5, v5, v2")
        a("v_lshl_add_u32 v6, v6, 12, v3")
        a(f"v_lshl_add_u32 v{148 + ni}, v5, 4, v6")
    for ti in range(3):
        a(f"s_add_u32 s46, s45, {16 * ti}")
        a("s_lshr_b32 s47, s46, 6")
        a("s_mul_i32 s47, s47, 20480")
        a("s_and_b32 s46, s46, 63")
        a("s_lshl_b32 s46, s46, 6")
        a("s_add_u32 s46, s46, s47")
        for ni in range(5):
            d = ACC + 4 * (ni * 3 + ti)
            for i in range(4):
                a(f"v_max_f32 v{d + i}, 0, v{d + i}")
            a(f"v_cvt_pk_bf16_f32 v{d}, v{d}, v{d + 1}")
            a(f"v_cvt_pk_bf16_f32 v{d + 1}, v{d + 2}, v{d + 3}")
            a(f"v_add_u32 v4, s46, v{148 + ni}")
            a(f"ds_write_b64 v4, {vr(d, 2)}")
    a("s_mul_i32 s52, s26, 2560")
    a("s_lshr_b32 s46, s30, 6")
    a("s_mul_i32 s46, s46, 54")
    a("s_lshr_b32 s47, s29, 5")
    a("s_add_u32 s46, s46, s47")
    a("s_lshl_b32 s53, s46, 12")
    a("s_add_u32 s53, s53, s52")
    a("s_mov_b32 s54, 410")
    a(f"s_mov_b32 s55, {221184 - 2560}")
    a(f"s_mov_b32 s56, {20480 - 2560}")
    a("s_sub_u32 s57, 2048, s30")
    a("s_min_u32 s57, s57, 192")
    a("s_lshr_b32 s57, s57, 6")
    a("s_mul_i32 s57, s57, 160")
    a("s_sub_u32 s58, 1728, s29")
    a("s_min_u32 s58, s58, 160")
    a("s_lshl_b32 s58, s58, 3")
    a("s_mul_i32 s47, s26, 160")
    a("s_sub_i32 s58, s58, s47")
    a("s_branch K1_COPY")
    a.label("K1_VLOOP")
    loop(True)
    a("s_mul_i32 s46, s33, 32256")
    for ni in range(5):
        a(f"v_add_u32 v2, {16 * ni}, v23")
        a("v_mul_u32_u24 v3, 205, v2")
        a("v_lshrrev_b32 v3, 12, v3")
        a("v_mul_u32_u24 v4, 20, v3")
        a(f"v_sub_u32 v{NO + 10 + ni}, v2, v4")
        a("v_mul_u32_u24 v3, 8064, v3")
        a(f"v_lshlrev_b32 v4, 6, v{NO + 10 + ni}")
        a(f"v_add3_u32 v{NO + ni}, v3, v4, s46")
        a(f"v_bfe_u32 v{NO + 5 + ni}, v{NO + 10 + ni}, 2, 2")
    a("v_mov_b32 v8, 0x3f803f80")
    a("v_mov_b32 v9, 0x3f803f80")
    a("s_mul_i32 s45, s32, 48")
    for ti in range(3):
        a(f"s_add_u32 s49, s45, {16 * ti}")
        a("v_lshlrev_b32 v2, 2, v22")
        a("v_add_u32 v2, s49, v2")
        a("v_lshrrev_b32 v3, 5, v2")
        a("v_mul_u32_u24 v3, 1344, v3")
        a("v_bfe_u32 v2, v2, 2, 3")
        a("v_bfe_u32 v4, v2, 1, 1")
        a("v_lshl_add_u32 v10, v4, 3, v3")
        a("v_lshrrev_b32 v4, 1, v2")
        a("v_and_b32 v4, 2, v4")
        a("v_and_b32 v2, 1, v2")
        a("v_or_b32 v11, v2, v4")
        for ni in range(5):
            d = ACC + 4 * (ni * 3 + ti)
            a(f"v_cvt_pk_bf16_f32 v{d}, v{d}, v{d + 1}")
            a(f"v_cvt_pk_bf16_f32 v{d + 1}, v{d + 2}, v{d + 3}")
            a(f"v_xor_b32 v6, v11, v{NO + 5 + ni}")
            a("v_lshlrev_b32 v6, 4, v6")
            a(f"v_add3_u32 v6, v6, v10, v{NO + ni}")
            a(f"ds_write_b64 v6, {vr(d, 2)}")
            if ni < 4:
                a("v_xor_b32 v7, 1, v11")
                a("v_lshlrev_b32 v7, 4, v7")
                a(f"v_add3_u32 v7, v7, v10, v{NO + ni}")
                a(f"v_cmp_eq_u32 vcc, 0, v{NO + 10 + ni}")
                a("s_and_saveexec_b64 s[50:51], vcc")
                a("ds_write_b64 v7, v[8:9] offset:1280")
                a("s_mov_b64 exec, s[50:51]")
    a("s_mul_i32 s52, s26, 8064")
    a("s_and_b32 s46, s25, 3")
    a("s_lshl_b32 s46, s46, 3")
    a("s_add_u32 s46, s46, s26")
    a(f"s_mul_i32 s53, s46, {HEAD_KV}")
    a("s_mul_i32 s47, s30, 90")
    a("s_add_u32 s53, s53, s47")
    a("s_add_u32 s53, s53, 1536")
    a("s_mov_b32 s54, 781")
    a("s_mov_b32 s55, 1536")
    a("s_mov_b32 s56, 0")
    a("s_sub_u32 s57, 2048, s30")
    a("s_min_u32 s57, s57, 192")
    a("s_lshr_b32 s57, s57, 5")
    a("s_mul_i32 s57, s57, 84")
    a("s_mov_b32 s58, 1000")
    a.label("K1_COPY")
    a("s_mov_b32 s59, 160")
    for it in range(9):
        ga = 24 + it
        la = 34 + it
        a(f"v_add_u32 v2, {64 * it}, v1")
        a("v_mul_lo_u32 v3, v2, s54")
        a("v_lshrrev_b32 v3, 16, v3")
        a("v_lshlrev_b32 v4, 4, v2")
        a("v_mul_lo_u32 v5, v3, s55")
        a(f"v_add3_u32 v{ga}, v4, v5, s53")
        a("v_mul_lo_u32 v5, v3, s56")
        a(f"v_add3_u32 v{la}, v4, v5, s52")
        a("v_mul_lo_u32 v5, v3, s59")
        a("v_sub_u32 v5, v2, v5")
        a("v_cmp_gt_u32 vcc, s57, v2")
        a("v_cmp_gt_i32 s[50:51], s58, v5")
        a("s_and_b64 vcc, vcc, s[50:51]")
        a("v_bfrev_b32 v5, 1")
        a(f"v_cndmask_b32 v{ga}, v5, v{ga}, vcc")
    a("s_mov_b32 s72, 53687092")
    a("s_mov_b32 s73, 276480")
    for r in (164, 165):
        a(f"v_mul_hi_u32 v3, v{r}, s72")
        a("v_mul_u32_u24 v4, 80, v3")
        a(f"v_sub_u32 v4, v{r}, v4")
        a("v_mul_u32_u24 v5, 6554, v4")
        a("v_lshrrev_b32 v5, 16, v5")
        a("v_mul_u32_u24 v6, 10, v5")
        a("v_sub_u32 v4, v4, v6")
        a("v_mul_u32_u24 v3, 160, v3")
        a("v_mul_lo_u32 v5, v5, s73")
        a("v_lshl_add_u32 v3, v4, 4, v3")
        a("v_add_u32 v3, v3, v5")
        a(f"v_cmp_gt_u32 vcc, {1728 * 80}, v{r}")
        a("v_bfrev_b32 v5, 1")
        a(f"v_cndmask_b32 v{r}, v5, v3, vcc")
    a("buffer_store_dwordx4 v[168:171], v164, s[68:71], 0 offen")
    a("buffer_store_dwordx4 v[172:175], v165, s[68:71], 0 offen")
    a("s_waitcnt lgkmcnt(0)")
    a("s_barrier")
    for it in range(9):
        a(f"ds_read_b128 {vr(48 + 4 * it, 4)}, v{34 + it}")
    for it in range(9):
        a(f"s_waitcnt lgkmcnt({8 - it})")
        a(f"buffer_store_dwordx4 {vr(48 + 4 * it, 4)}, v{24 + it}, s[20:23], 0 offen sc1")
    a.label("K1_PEND")
    prof(a, 12)
    a.label("K1_END")
    a("s_endpgm")
    a.label("K1_PACK")
    a("s_load_dwordx2 s[4:5], s[0:1], 16")
    a("s_load_dwordx2 s[6:7], s[0:1], 72")
    a("s_sub_u32 s3, s3, 253")
    a("s_mul_i32 s3, s3, 17408")
    a("v_add_u32 v1, s3, v0")
    a("v_lshlrev_b32 v2, 4, v1")
    a("s_mov_b32 s20, 52429")
    a("s_mov_b32 s21, 102400")
    a("v_bfrev_b32 v3, 1")
    a("s_waitcnt lgkmcnt(0)")
    srd(a, 12, 4, 5, SZ_WO)
    srd_off(a, 16, 6, 7, WS_WO, SZ_WO)
    for j in range(34):
        a(f"s_mov_b32 s22, {j * 8192}")
        a(f"buffer_load_dwordx4 {vr(24 + 4 * j, 4)}, v2, s[12:15], s22 offen")
    for j in range(34):
        a(f"v_add_u32 v4, {j * 512}, v1")
        a("v_mul_lo_u32 v5, v4, s20")
        a("v_lshrrev_b32 v5, 22, v5")
        a("v_mul_u32_u24 v6, 80, v5")
        a("v_sub_u32 v6, v4, v6")
        a("v_mul_u32_u24 v7, 6554, v6")
        a("v_lshrrev_b32 v7, 16, v7")
        a("v_mul_u32_u24 v8, 10, v7")
        a("v_sub_u32 v6, v6, v8")
        a("v_lshrrev_b32 v8, 1, v5")
        a("v_and_b32 v8, 4, v8")
        a("v_xor_b32 v5, v5, v8")
        a("v_mul_u32_u24 v5, 160, v5")
        a("v_mul_lo_u32 v7, v7, s21")
        a("v_lshl_add_u32 v5, v6, 4, v5")
        a("v_add_u32 v5, v5, v7")
        a("v_cmp_gt_u32 vcc, 51200, v4")
        a(f"v_cndmask_b32 v{16 + (j & 3)}, v3, v5, vcc")
        a("s_waitcnt vmcnt(33)")
        a(f"buffer_store_dwordx4 {vr(24 + 4 * j, 4)}, v{16 + (j & 3)}, s[16:19], 0 offen")
    a("s_endpgm")
    return a.text()


GS_SLOT = 9216


class GW:
    VA = 4
    VW = 8
    RA = 13
    RW = 14
    AF = 24
    WF = 40
    ACC = 60


def gw_setup(a, sR0, sC0B, strideA, sLds):
    a("v_lshrrev_b32 v22, 4, v1")
    a("v_and_b32 v23, 15, v1")
    a(f"v_lshlrev_b32 v{GW.VA}, 4, v1")
    a(f"v_add_u32 v{GW.VA + 1}, 4096, v{GW.VA}")
    a("v_lshrrev_b32 v2, 2, v23")
    a("v_sub_u32 v2, 0, v2")
    a("v_and_b32 v2, 3, v2")
    a("v_xor_b32 v2, v2, v22")
    a("v_lshlrev_b32 v2, 4, v2")
    a("v_lshl_add_u32 v2, v23, 6, v2")
    a(f"v_add_u32 v{GW.RA}, s{sLds}, v2")
    a("v_lshlrev_b32 v2, 3, v22")
    a("v_lshrrev_b32 v3, 2, v23")
    a("v_add_u32 v2, v2, v3")
    a("v_mul_u32_u24 v2, 160, v2")
    a("v_and_b32 v3, 3, v23")
    a("v_lshlrev_b32 v3, 3, v3")
    a("v_add_u32 v2, 4096, v2")
    a(f"v_add3_u32 v{GW.RW}, v2, v3, s{sLds}")


def gw_pieces(slot, srdA, srdW, sKA, sKW, sLds):
    g = []
    for i in range(4):
        g.append(([f"s_add_u32 m0, s{sLds}, {slot * GS_SLOT}", "s_nop 0"] if i == 0 else []) +
                 [f"buffer_load_dwordx4 v{GW.VA}, {sr(srdA, 4)}, s{sKA} offen offset:{1024 * i} lds"])
    for i in range(4):
        g.append(([f"s_add_u32 m0, s{sLds}, {slot * GS_SLOT + 4096}", "s_nop 0"] if i == 0 else []) +
                 [f"buffer_load_dwordx4 v{GW.VA}, {sr(srdW, 4)}, s{sKW} offen offset:{1024 * i} lds"])
    g.append([f"s_add_u32 m0, s{sLds}, {slot * GS_SLOT + 8192}", "s_nop 0",
              f"buffer_load_dwordx4 v{GW.VA + 1}, {sr(srdW, 4)}, s{sKW} offen lds",
              f"s_add_u32 s{sKA}, s{sKA}, 4096", f"s_add_u32 s{sKW}, s{sKW}, 5120"])
    return g


def gw_issue(a, slot, srdA, srdW, sKA, sKW, sLds):
    for p in gw_pieces(slot, srdA, srdW, sKA, sKW, sLds):
        for x in p:
            a(x)


def gw_compute_pipe(a, slot, first, pieces):
    for t in range(4):
        a(f"ds_read_b128 {vr(GW.AF + 4 * t, 4)}, v{GW.RA} offset:{slot * GS_SLOT + t * 1024}")
    for n in range(5):
        off = slot * GS_SLOT + n * 32
        a(f"ds_read_b64_tr_b16 {vr(GW.WF + 4 * n, 2)}, v{GW.RW} offset:{off}")
        a(f"ds_read_b64_tr_b16 {vr(GW.WF + 4 * n + 2, 2)}, v{GW.RW} offset:{off + 640}")
    a("s_waitcnt lgkmcnt(0)")
    pieces = list(pieces)
    i = 0
    for n in range(5):
        for t in range(4):
            d = GW.ACC + 4 * (n * 4 + t)
            c = "0" if first else vr(d, 4)
            a(f"v_mfma_f32_16x16x32_bf16 {vr(d, 4)}, {vr(GW.WF + 4 * n, 4)}, {vr(GW.AF + 4 * t, 4)}, {c}")
            i += 1
            if pieces and i % XP_FB == 0:
                for x in pieces.pop(0):
                    a(x)
    for p in pieces:
        for x in p:
            a(x)


def gw_compute_jit(a, slot, first):
    for t in range(4):
        a(f"ds_read_b128 {vr(GW.AF + 4 * t, 4)}, v{GW.RA} offset:{slot * GS_SLOT + t * 1024}")
    for n in range(5):
        off = slot * GS_SLOT + n * 32
        a(f"ds_read_b64_tr_b16 {vr(GW.WF + 4 * n, 2)}, v{GW.RW} offset:{off}")
        a(f"ds_read_b64_tr_b16 {vr(GW.WF + 4 * n + 2, 2)}, v{GW.RW} offset:{off + 640}")
        a("s_waitcnt lgkmcnt(0)")
        for t in range(4):
            d = GW.ACC + 4 * (n * 4 + t)
            c = "0" if first else vr(d, 4)
            a(f"v_mfma_f32_16x16x32_bf16 {vr(d, 4)}, {vr(GW.WF + 4 * n, 4)}, {vr(GW.AF + 4 * t, 4)}, {c}")


def gw_compute(a, slot, first):
    if XP_FJ:
        return gw_compute_jit(a, slot, first)
    for t in range(4):
        a(f"ds_read_b128 {vr(GW.AF + 4 * t, 4)}, v{GW.RA} offset:{slot * GS_SLOT + t * 1024}")
    for n in range(5):
        off = slot * GS_SLOT + n * 32
        a(f"ds_read_b64_tr_b16 {vr(GW.WF + 4 * n, 2)}, v{GW.RW} offset:{off}")
        a(f"ds_read_b64_tr_b16 {vr(GW.WF + 4 * n + 2, 2)}, v{GW.RW} offset:{off + 640}")
    a("s_waitcnt lgkmcnt(0)")
    for n in range(5):
        for t in range(4):
            d = GW.ACC + 4 * (n * 4 + t)
            c = "0" if first else vr(d, 4)
            a(f"v_mfma_f32_16x16x32_bf16 {vr(d, 4)}, {vr(GW.WF + 4 * n, 4)}, {vr(GW.AF + 4 * t, 4)}, {c}")


def gw_write_partials(a, sRed):
    a(f"v_add_u32 v2, s{sRed}, v{GW.VA}")
    for n in range(5):
        for t in range(4):
            d = GW.ACC + 4 * (n * 4 + t)
            a(f"ds_write_b128 v2, {vr(d, 4)} offset:{(n * 4 + t) * 1024}")


def gw_read_sum(a, sW4, redbase):
    a(f"s_lshl_b32 s60, s{sW4}, 10")
    a(f"s_add_u32 s60, s60, {redbase}")
    a(f"v_add_u32 v2, s60, v{GW.VA}")
    a(f"v_add_u32 v3, {2 * 20480}, v2")
    R = 24
    for src in range(4):
        for j in range(5):
            a(f"ds_read_b128 {vr(R + 20 * src + 4 * j, 4)}, v{2 + (src >> 1)} offset:{(src & 1) * 20480 + j * 4096}")
    a("s_waitcnt lgkmcnt(10)")
    for e in range(20):
        a(f"v_add_f32 v{R + e}, v{R + e}, v{R + 20 + e}")
    a("s_waitcnt lgkmcnt(0)")
    for e in range(20):
        a(f"v_add_f32 v{R + 40 + e}, v{R + 40 + e}, v{R + 60 + e}")
    for e in range(20):
        a(f"v_add_f32 v{R + e}, v{R + e}, v{R + 40 + e}")


def tile_map(a, sRt, sCt):
    if XP_QX:
        a("s_and_b32 s60, s2, 7")
        a("s_lshr_b32 s61, s2, 3")
        a("s_lshl_b32 s62, s60, 2")
        a("s_lshr_b32 s63, s61, 3")
        a(f"s_add_u32 s{sRt}, s62, s63")
        a(f"s_and_b32 s{sCt}, s61, 7")
        return
    a("s_and_b32 s60, s2, 7")
    a("s_lshr_b32 s61, s2, 3")
    a("s_lshr_b32 s62, s60, 1")
    a("s_lshl_b32 s62, s62, 3")
    a("s_lshr_b32 s63, s61, 2")
    a(f"s_add_u32 s{sRt}, s62, s63")
    a("s_and_b32 s62, s60, 1")
    a("s_lshl_b32 s62, s62, 2")
    a("s_and_b32 s63, s61, 3")
    a(f"s_add_u32 s{sCt}, s62, s63")


K2_BUF = 24576
K2_FFN = 3 * K2_BUF
K2_FLAG = K2_FFN + 4 * 20480
K2_LDS = K2_FLAG + 64


def gate_compute(a, XV, GV, srow, srdG):
    a("v_mov_b32 v2, 0")
    for j in range(5):
        xv = XV + j
        gv = GV + j
        a(f"v_lshlrev_b32 v3, 16, v{xv}")
        a(f"v_and_b32 v19, 0xffff0000, v{xv}")
        a(f"v_lshlrev_b32 v127, 16, v{gv}")
        a(f"v_and_b32 v128, 0xffff0000, v{gv}")
        a("v_mul_f32 v3, v3, v127")
        a("v_mul_f32 v19, v19, v128")
        a("v_cvt_pk_bf16_f32 v3, v3, v19")
        a("v_lshlrev_b32 v19, 16, v3")
        a("v_and_b32 v3, 0xffff0000, v3")
        a("v_add_f32 v2, v2, v19")
        a("v_add_f32 v2, v2, v3")
    for sh in (1, 2, 4, 8):
        a("s_nop 1")
        a(f"v_add_f32_dpp v2, v2, v2 row_shr:{sh} row_mask:0xf bank_mask:0xf")
    a("s_nop 1")
    a("v_add_f32_dpp v2, v2, v2 row_bcast:15 row_mask:0xa bank_mask:0xf")
    a("s_nop 1")
    a("v_add_f32_dpp v2, v2, v2 row_bcast:31 row_mask:0xc bank_mask:0xf")
    a("s_nop 1")
    a("v_cvt_pk_bf16_f32 v2, v2, v2")
    a("v_lshlrev_b32 v2, 16, v2")
    a(f"v_mul_f32 v2, {f32bits(-LOG2E)}, v2")
    a("v_exp_f32 v2, v2")
    a("s_nop 0")
    a("v_add_f32 v2, 1.0, v2")
    a("v_rcp_f32 v2, v2")
    a("s_nop 0")
    a("v_cvt_pk_bf16_f32 v2, v2, v2")
    a("v_lshlrev_b32 v2, 16, v2")
    a(f"s_lshl_b32 s49, s{srow}, 2")
    a("v_mov_b32 v3, 0")
    a("v_cmp_eq_u32 vcc, 63, v1")
    a("s_and_saveexec_b64 s[50:51], vcc")
    a(f"buffer_store_dword v2, v3, {sr(srdG, 4)}, s49 offen")
    a("s_mov_b64 exec, s[50:51]")


def gate_compute2(a, XA, XB, GV, srow, srdG):
    GU = 24
    a("v_mov_b32 v2, 0")
    a("v_mov_b32 v3, 0")
    a("v_mov_b32 v19, 0x3f803f80")
    for j in range(5):
        a(f"v_lshlrev_b32 v{GU + 2 * j}, 16, v{GV + j}")
        a(f"v_and_b32 v{GU + 2 * j + 1}, 0xffff0000, v{GV + j}")
    for X, acc in ((XA, 2), (XB, 3)):
        for j in range(5):
            a(f"v_lshlrev_b32 v36, 16, v{X + j}")
            a(f"v_and_b32 v37, 0xffff0000, v{X + j}")
            a(f"v_pk_mul_f32 v[36:37], v[36:37], v[{GU + 2 * j}:{GU + 2 * j + 1}]")
            a("v_cvt_pk_bf16_f32 v36, v36, v37")
            a(f"v_dot2_f32_bf16 v{acc}, v36, v19, v{acc}")
    for sh in (1, 2, 4, 8):
        a("s_nop 2" if sh == 1 else "s_nop 0")
        a(f"v_add_f32_dpp v2, v2, v2 row_shr:{sh} row_mask:0xf bank_mask:0xf")
        a(f"v_add_f32_dpp v3, v3, v3 row_shr:{sh} row_mask:0xf bank_mask:0xf")
    a("s_nop 0")
    a("v_add_f32_dpp v2, v2, v2 row_bcast:15 row_mask:0xa bank_mask:0xf")
    a("v_add_f32_dpp v3, v3, v3 row_bcast:15 row_mask:0xa bank_mask:0xf")
    a("s_nop 0")
    a("v_add_f32_dpp v2, v2, v2 row_bcast:31 row_mask:0xc bank_mask:0xf")
    a("v_add_f32_dpp v3, v3, v3 row_bcast:31 row_mask:0xc bank_mask:0xf")
    a("s_nop 1")
    a("v_cvt_pk_bf16_f32 v2, v2, v3")
    a("v_and_b32 v3, 0xffff0000, v2")
    a("v_lshlrev_b32 v2, 16, v2")
    a(f"v_mul_f32 v2, {f32bits(-LOG2E)}, v2")
    a(f"v_mul_f32 v3, {f32bits(-LOG2E)}, v3")
    a("v_exp_f32 v2, v2")
    a("v_exp_f32 v3, v3")
    a("s_nop 0")
    a("v_add_f32 v2, 1.0, v2")
    a("v_add_f32 v3, 1.0, v3")
    a("v_rcp_f32 v2, v2")
    a("v_rcp_f32 v3, v3")
    a("s_nop 0")
    a("v_cvt_pk_bf16_f32 v2, v2, v3")
    a("v_and_b32 v3, 0xffff0000, v2")
    a("v_lshlrev_b32 v2, 16, v2")
    a(f"s_lshl_b32 s49, s{srow}, 2")
    a("v_mov_b32 v19, 0")
    a("v_cmp_eq_u32 vcc, 63, v1")
    a("s_and_saveexec_b64 s[50:51], vcc")
    a(f"buffer_store_dwordx2 v[2:3], v19, {sr(srdG, 4)}, s49 offen")
    a("s_mov_b64 exec, s[50:51]")


def k2():
    a = Asm()
    a.label("k2_kernel")
    if PROF:
        a("s_memtime s[86:87]")
    a("s_cmp_ge_u32 s2, 256")
    a("s_cbranch_scc1 K2_END")
    a("s_and_b32 s3, s2, 7")
    a("s_lshl_b32 s3, s3, 2")
    a("s_lshr_b32 s4, s2, 3")
    a("s_and_b32 s4, s4, 3")
    a("s_add_u32 s36, s3, s4")
    a("s_lshr_b32 s37, s2, 5")
    if XP_QX:
        a("s_lshr_b32 s36, s2, 3")
        a("s_and_b32 s37, s2, 7")
    a("s_load_dwordx2 s[4:5], s[0:1], 0")
    a("s_load_dwordx2 s[6:7], s[0:1], 48")
    a("s_load_dwordx2 s[8:9], s[0:1], 72")
    a("v_and_b32 v1, 63, v0")
    a("v_lshrrev_b32 v2, 6, v0")
    a("s_nop 0")
    a("v_readfirstlane_b32 s38, v2")
    a("s_waitcnt lgkmcnt(0)")
    a("s_cmp_ge_u32 s38, 8")
    a("s_cbranch_scc1 K2_FFN")
    a("s_setprio 1")
    srd_off(a, 12, 8, 9, WS_KV, SZ_KV)
    srd_off(a, 16, 8, 9, WS_Q, SZ_Q)
    srd_off(a, 20, 8, 9, WS_O, SZ_O)
    srd(a, 24, 4, 5, SZ_X)
    srd(a, 28, 6, 7, 1280)
    srd_off(a, 32, 8, 9, WS_G, SZ_G)
    prof_init(a, 8, 9, 38, 1)
    prof(a, 0)
    a("v_lshlrev_b32 v16, 4, v1")
    a("s_mul_i32 s46, s38, 3072")
    a(f"s_mul_i32 s45, s36, {HEAD_KV}")
    a("s_add_u32 s45, s45, s46")
    a("s_mov_b32 s44, s45")
    a("s_mov_b32 s41, 0")
    a(f"s_mov_b32 s42, {K2_BUF}")
    a(f"s_mov_b32 s43, {2 * K2_BUF}")
    a("s_mov_b32 s40, 0")
    a("v_and_b32 v17, 31, v1")
    a("v_lshrrev_b32 v18, 5, v1")
    a("s_lshl_b32 s47, s37, 8")
    a("s_lshl_b32 s48, s38, 5")
    a("s_add_u32 s47, s47, s48")
    a("v_add_u32 v2, s47, v17")
    a("v_mul_u32_u24 v2, 48, v2")
    a("s_mul_i32 s48, s36, 98304")
    a("v_add_u32 v2, s48, v2")
    a("v_lshl_add_u32 v3, v18, 4, v2")
    a("buffer_load_dwordx4 v[20:23], v3, s[16:19], 0 offen")
    a("buffer_load_dwordx2 v[24:25], v2, s[16:19], 0 offen offset:32")
    for sg in (41, 42):
        a(f"s_add_u32 m0, s{sg}, s46")
        a("s_nop 0")
        for j in range(3):
            a(f"buffer_load_dwordx4 v16, s[12:15], s44 offen offset:{1024 * j} lds")
        a("s_add_u32 s44, s44, 23040")
    a("v_mov_b32 v2, 0")
    a(f"v_mov_b32 v3, {K2_FLAG}")
    a("ds_write_b32 v3, v2")
    if not XP_GF:
        a("s_lshl_b32 s48, s37, 8")
        a("s_lshl_b32 s49, s36, 3")
        a("s_add_u32 s48, s48, s49")
        a("s_add_u32 s48, s48, s38")
        a("s_mul_i32 s49, s48, 1280")
        a("v_mul_u32_u24 v2, 20, v1")
        a("buffer_load_dwordx4 v[116:119], v2, s[24:27], s49 offen")
        a("buffer_load_dword v120, v2, s[24:27], s49 offen offset:16")
        a("buffer_load_dwordx4 v[122:125], v2, s[28:31], 0 offen")
        a("buffer_load_dword v126, v2, s[28:31], 0 offen offset:16")
    a("v_mul_u32_u24 v2, 48, v17")
    a("v_lshl_add_u32 v12, v18, 4, v2")
    a("v_add_u32 v13, 32, v2")
    if XP_K8:
        a("v_lshl_add_u32 v13, v18, 3, v13")
    a("v_bfe_u32 v3, v17, 2, 2")
    a("v_lshlrev_b32 v2, 6, v17")
    a("v_add_u32 v2, 1536, v2")
    a("v_xor_b32 v19, v18, v3")
    a("v_lshl_add_u32 v14, v19, 4, v2")
    a("v_add_u32 v19, 2, v18")
    a("v_xor_b32 v19, v19, v3")
    a("v_lshl_add_u32 v15, v19, 4, v2")
    a("s_waitcnt vmcnt(6)" if (XP_GF and XP_ES) else "s_waitcnt vmcnt(0)")
    if not XP_GF:
        gate_compute(a, 116, 122, 48, 32)
    a("v_cmp_eq_u32 vcc, 0, v18")
    a("s_nop 1")
    a("v_cndmask_b32 v24, 0, v24, vcc")
    a("v_cndmask_b32 v25, 0, v25, vcc")
    a("v_mov_b32 v26, 0")
    a("v_mov_b32 v27, 0")
    a("s_mov_b32 s39, 0")

    QF0, QF1 = 20, 24
    KF = (28, 36)
    VF = (44, 52)
    P = 60
    S = (68, 84)
    O = 100

    def dma_stage(lds_sreg):
        a(f"s_add_u32 m0, s{lds_sreg}, s46")
        a("s_nop 0")
        for j in range(3):
            a(f"buffer_load_dwordx4 v16, s[12:15], s44 offen offset:{1024 * j} lds")
        a("s_add_u32 s44, s44, 23040")

    def set_addrs(dst, sbase):
        for i in range(4):
            a(f"v_add_u32 v{dst + i}, s{sbase}, v{12 + i}")

    def kread(st, idx):
        base = 4 if idx < 8 else 8
        off = (idx % 8) * 2880
        if XP_K8:
            return [f"ds_read_b128 {vr(KF[st], 4)}, v{base} offset:{off}",
                    f"ds_read_b64 {vr(KF[st] + 4, 2)}, v{base + 1} offset:{off}"]
        return [f"ds_read_b128 {vr(KF[st], 4)}, v{base} offset:{off}",
                f"ds_read_b128 {vr(KF[st] + 4, 4)}, v{base + 1} offset:{off}"]

    def qk2(st, sd):
        if XP_K8:
            return f"v_mfma_f32_32x32x8bf16_1k {vr(sd, 16)}, {vr(KF[st] + 4, 2)}, {vr(QF1, 2)}, {vr(sd, 16)}"
        return f"v_mfma_f32_32x32x16_bf16 {vr(sd, 16)}, {vr(KF[st] + 4, 4)}, {vr(QF1, 4)}, {vr(sd, 16)}"

    def vread(st, idx):
        base = 4 if idx < 8 else 8
        off = (idx % 8) * 2880
        return [f"ds_read_b128 {vr(VF[st], 4)}, v{base + 2} offset:{off}",
                f"ds_read_b128 {vr(VF[st] + 4, 4)}, v{base + 3} offset:{off}"]

    def qk(st, sst):
        a(f"v_mfma_f32_32x32x16_bf16 {vr(S[sst], 16)}, {vr(KF[st], 4)}, {vr(QF0, 4)}, 0")
        a(qk2(st, S[sst]))

    def set_m_from(mreg):
        a(f"v_mov_b32 v3, v{mreg}")
        a("s_nop 1")
        a(f"v_permlane32_swap_b32 v{mreg}, v3")
        a("s_nop 1")
        a(f"v_max_f32 v2, v{mreg}, v3")
        a("v_and_b32 v3, 0xffff0000, v2")
        a("v_sub_f32 v2, v2, v3")
        a("v_and_b32 v19, 0xffff0000, v2")
        a("v_sub_f32 v2, v2, v19")
        a("v_xor_b32 v3, 0x80000000, v3")
        a("v_xor_b32 v19, 0x80000000, v19")
        a("v_xor_b32 v2, 0x80000000, v2")
        a("v_lshrrev_b32 v3, 16, v3")
        a("v_or_b32 v3, v3, v19")
        a("v_lshrrev_b32 v2, 16, v2")
        a("v_cmp_eq_u32 vcc, 0, v18")
        a("s_nop 1")
        if XP_K8:
            a("v_cndmask_b32 v24, v3, v24, vcc")
            a("v_cndmask_b32 v25, v2, v25, vcc")
        else:
            a("v_cndmask_b32 v26, 0, v3, vcc")
            a("v_cndmask_b32 v27, 0, v2, vcc")
        a("s_nop 1")

    def start_stream():
        a("s_mov_b32 s44, s45")
        a("s_mov_b32 s41, 0")
        a(f"s_mov_b32 s42, {K2_BUF}")
        a(f"s_mov_b32 s43, {2 * K2_BUF}")
        dma_stage(41)
        dma_stage(42)
        set_addrs(4, 41)
        set_addrs(8, 42)
        a("s_mov_b32 s40, 0")

    def stage_head(lbl):
        if XP_ES:
            a("s_cmp_eq_u32 s40, 0")
            a(f"s_cbranch_scc1 {lbl}_W0")
            a("s_waitcnt vmcnt(0)")
            a.label(lbl + "_W0")
            a("s_waitcnt vmcnt(3) lgkmcnt(0)")
        else:
            a("s_waitcnt vmcnt(0) lgkmcnt(0)")
        if XP_NOBAR:
            a("s_cmp_lg_u32 s40, 0")
            a(f"s_cbranch_scc1 {lbl}_NB")
        a("s_barrier")
        if XP_NOBAR:
            a.label(lbl + "_NB")
        a(f"s_cmp_ge_u32 s40, {1 if XP_NODMA else 6}")
        a(f"s_cbranch_scc1 {lbl}")
        dma_stage(43)
        a.label(lbl)

    def stage_rotate():
        a("s_mov_b32 s47, s41")
        a("s_mov_b32 s41, s42")
        a("s_mov_b32 s42, s43")
        a("s_mov_b32 s43, s47")
        for i in range(4):
            a(f"v_mov_b32 v{4 + i}, v{8 + i}")
        set_addrs(8, 42)
        a("s_add_u32 s40, s40, 1")

    a.label("K2_MAIN")
    prof(a, 1)
    a("s_cmp_eq_u32 s39, 0")
    a("s_cbranch_scc1 K2_STARTED")
    start_stream()
    a.label("K2_STARTED")
    set_addrs(4, 41)
    set_addrs(8, 42)
    for i in range(16):
        a(f"v_mov_b32 v{O + i}, 0")
    for i in range(4):
        a(f"v_mov_b32 v{P + 4 + i}, 0")
        a(f"v_mov_b32 v{VF[1] + 4 + i}, 0")
    a.label("K2_STAGE")
    stage_head("K2_NODMA")
    a("s_cmp_lg_u32 s40, 0")
    a("s_cbranch_scc1 K2_BODY")
    for r in kread(0, 0):
        a(r)
    a("s_cmp_lg_u32 s39, 0")
    a("s_cbranch_scc1 K2_PRIME")
    a("s_waitcnt lgkmcnt(0)")
    qk(0, 0)
    a("s_nop 15")
    a("s_nop 3")
    s0 = S[0]
    a(f"v_max3_f32 v116, v{s0}, v{s0 + 1}, v{s0 + 2}")
    for i in range(3, 15, 2):
        a(f"v_max3_f32 v116, v116, v{s0 + i}, v{s0 + i + 1}")
    a(f"v_max_f32 v116, v116, v{s0 + 15}")
    set_m_from(116)
    a.label("K2_PRIME")
    for r in kread(1, 1):
        a(r)
    for r in vread(0, 0):
        a(r)
    a("s_waitcnt lgkmcnt(4)")
    qk(0, 0)
    a("s_nop 15")
    prof(a, 2)
    a.label("K2_BODY")

    def body(par):
        for t in range(8):
            c = t % 2
            n = 1 - c
            sc = S[c]
            sn = S[n]

            def ex(lo):
                for i in range(lo, lo + 4):
                    a(f"v_exp_f32 v{sc + i}, v{sc + i}")

            def cv(lo):
                for i in range(lo, lo + 4):
                    a(f"v_cvt_pk_bf16_f32 v{P + i}, v{sc + 2 * i}, v{sc + 2 * i + 1}")
            if XP_PRIO:
                a(f"s_setprio {2 if (t & 1) == par else 1}")
            if XP_PR and (t == 0 or XP_PR[t] != XP_PR[t - 1]):
                a(f"s_setprio {XP_PR[t]}")
            ex(0)
            a(f"v_mfma_f32_32x32x16_bf16 {vr(O, 16)}, {vr(VF[n] + 4, 4)}, {vr(P + 4, 4)}, {vr(O, 16)}")
            ex(4)
            a("s_waitcnt lgkmcnt(0)" if XP_K8 else "s_waitcnt lgkmcnt(2)")
            a(f"v_mfma_f32_32x32x16_bf16 {vr(sn, 16)}, {vr(KF[n], 4)}, {vr(QF0, 4)}, 0")
            cv(0)
            if XP_ES and t == 6:
                a("s_cmp_lg_u32 s40, 0")
                a(f"s_cbranch_scc1 K2_MID{par}")
                a("s_waitcnt vmcnt(3)")
                a("s_barrier")
                a.label(f"K2_MID{par}")
            if not XP_NOLDS:
                for r in kread(c, t + 2):
                    a(r)
                for r in vread(n, t + 1):
                    a(r)
            ex(8)
            a(qk2(n, sn))
            ex(12)
            if not XP_K8:
                a("s_waitcnt lgkmcnt(4)")
            a(f"v_mfma_f32_32x32x16_bf16 {vr(O, 16)}, {vr(VF[c], 4)}, {vr(P, 4)}, {vr(O, 16)}")
            cv(4)

    if XP_PRIO:
        a("s_cmp_ge_u32 s38, 4")
        a("s_cbranch_scc1 K2_BODY1")
        body(0)
        a("s_branch K2_BODYE")
        a.label("K2_BODY1")
        body(1)
        a.label("K2_BODYE")
    else:
        body(0)
    stage_rotate()
    if PROF:
        a("s_memtime s[88:89]")
        a("s_waitcnt lgkmcnt(0)")
        a("v_mov_b32 v2, s88")
        a("s_lshl_b32 s90, s40, 2")
        a("v_mov_b32 v3, s90")
        a("buffer_store_dword v2, v3, s[92:95], s91 offen offset:8")
    a("s_cmp_lt_u32 s40, 8")
    a("s_cbranch_scc1 K2_STAGE")
    a("s_nop 1")
    a(f"v_mfma_f32_32x32x16_bf16 {vr(O, 16)}, {vr(VF[1] + 4, 4)}, {vr(P + 4, 4)}, {vr(O, 16)}")
    a("s_nop 15")
    a("s_nop 3")
    a("s_cmp_lg_u32 s39, 0")
    a("s_cbranch_scc1 K2_EPI")
    a("v_mov_b32 v2, 0")
    for i in range(9):
        a(f"v_fma_f32 v2, v{O + i}, 0, v2")
    a("v_mov_b32 v3, 0")
    for i in range(9, 12):
        a(f"v_fma_f32 v3, v{O + i}, 0, v3")
    a("v_cmp_eq_u32 vcc, 0, v18")
    a("s_nop 1")
    a("v_cndmask_b32 v3, 0, v3, vcc")
    a("v_add_f32 v2, v2, v3")
    a("v_cmp_u_f32 vcc, v2, v2")
    a("s_nop 4")
    a("s_cbranch_vccz K2_VOTE")
    a("v_mov_b32 v2, 1")
    a(f"v_mov_b32 v3, {K2_FLAG}")
    a("ds_write_b32 v3, v2")
    a.label("K2_VOTE")
    a("s_branch K2_EPI")
    a.label("K2_FALL")
    a("s_barrier")
    a("v_mov_b32 v26, 0")
    a("v_mov_b32 v27, 0")
    a("v_cmp_eq_u32 vcc, 0, v18")
    a("s_nop 1")
    a("v_cndmask_b32 v24, 0, v24, vcc")
    a("v_cndmask_b32 v25, 0, v25, vcc")
    a(f"v_mov_b32 v117, {f32bits(float('-inf'))}")
    start_stream()
    a.label("K2_MSTAGE")
    stage_head("K2_MNODMA")
    for t in range(8):
        for r in kread(0, t):
            a(r)
        a("s_waitcnt lgkmcnt(0)")
        qk(0, 0)
        a("s_nop 15")
        a("s_nop 3")
        for i in range(0, 16, 2):
            a(f"v_max3_f32 v117, v117, v{s0 + i}, v{s0 + i + 1}")
    stage_rotate()
    a("s_cmp_lt_u32 s40, 8")
    a("s_cbranch_scc1 K2_MSTAGE")
    set_m_from(117)
    a("s_mov_b32 s39, 1")
    a("s_waitcnt vmcnt(0) lgkmcnt(0)")
    a("s_barrier")
    a("s_branch K2_MAIN")
    a.label("K2_EPI")
    a(f"v_mov_b32 v2, v{O + 8}")
    a(f"v_mov_b32 v3, v{O + 8}")
    a("s_nop 1")
    a("v_permlane32_swap_b32 v2, v3")
    a("s_nop 1")
    a("v_rcp_f32 v3, v3")
    a("s_nop 0")
    for i in range(12):
        a(f"v_mul_f32 v{O + i}, v{O + i}, v3")
    for i in range(6):
        a(f"v_cvt_pk_bf16_f32 v{P + i}, v{O + 2 * i}, v{O + 2 * i + 1}")
    a("s_lshl_b32 s47, s37, 8")
    a("s_lshl_b32 s48, s38, 5")
    a("s_add_u32 s47, s47, s48")
    a("v_add_u32 v2, s47, v17")
    a("v_mul_u32_u24 v2, 1280, v2")
    a("s_mul_i32 s48, s36, 40")
    a("v_lshl_add_u32 v2, v18, 3, v2")
    a("v_add_u32 v2, s48, v2")
    a(f"buffer_store_dwordx2 {vr(P, 2)}, v2, s[20:23], 0 offen")
    a(f"buffer_store_dwordx2 {vr(P + 2, 2)}, v2, s[20:23], 0 offen offset:16")
    a("v_cmp_eq_u32 vcc, 0, v18")
    a("s_and_saveexec_b64 s[50:51], vcc")
    a(f"buffer_store_dwordx2 {vr(P + 4, 2)}, v2, s[20:23], 0 offen offset:32")
    a("s_mov_b64 exec, s[50:51]")
    a("s_cmp_lg_u32 s39, 0")
    a("s_cbranch_scc1 K2_PEND")
    a("s_waitcnt lgkmcnt(0)")
    a("s_barrier")
    a(f"v_mov_b32 v3, {K2_FLAG}")
    a("ds_read_b32 v2, v3")
    a("s_waitcnt lgkmcnt(0)")
    a("v_readfirstlane_b32 s47, v2")
    a("s_cmp_lg_u32 s47, 0")
    a("s_cbranch_scc1 K2_FALL")
    a.label("K2_PEND")
    prof(a, 12)
    a.label("K2_END")
    a("s_endpgm")
    a.label("K2_FFN")
    if XP_NOFFN:
        a("s_endpgm")
    if XP_FP:
        a(f"s_setprio {XP_FP}")
    a("s_sub_u32 s38, s38, 8")
    if XP_GF:
        srd(a, 64, 4, 5, SZ_X)
        srd(a, 68, 6, 7, 1280)
        srd_off(a, 32, 8, 9, WS_G, SZ_G)
        a("s_lshl_b32 s48, s37, 8")
        a("s_lshl_b32 s49, s36, 3")
        a("s_add_u32 s48, s48, s49")
        a("s_lshl_b32 s49, s38, 1")
        a("s_add_u32 s48, s48, s49")
    a("s_load_dwordx2 s[6:7], s[0:1], 40")
    a("s_load_dwordx2 s[52:53], s[0:1], 16")
    tile_map(a, 36, 37)
    a("s_lshl_b32 s39, s36, 6")
    a("s_mul_i32 s40, s37, 160")
    a("s_mul_i32 s41, s38, 20480")
    a(f"s_add_u32 s41, s41, {K2_FFN}")
    a("s_mul_i32 s42, s38, 14")
    a("s_cmp_eq_u32 s38, 3")
    a("s_cselect_b32 s42, 41, s42")
    a("s_mul_i32 s45, s36, 54")
    a("s_add_u32 s45, s45, s42")
    a("s_lshl_b32 s45, s45, 12")
    a("s_mul_i32 s46, s42, 5120")
    a("s_mul_i32 s47, s37, 276480")
    a("s_add_u32 s46, s46, s47")
    a("s_waitcnt lgkmcnt(0)")
    srd_off(a, 16, 8, 9, WS_W2P, SZ_W2)
    srd_off(a, 24, 8, 9, WS_H, SZ_H)
    srd_off(a, 28, 8, 9, WS_B, SZ_B)
    gw_setup(a, 39, 40, 3456, 41)
    j = 0
    for k, ns in enumerate(XP_FS):
        a("s_barrier")
        if k == 0:
            if XP_GF:
                a("s_mul_i32 s49, s48, 1280")
                a("v_mul_u32_u24 v2, 20, v1")
                a("buffer_load_dwordx4 v[116:119], v2, s[64:67], s49 offen")
                a("buffer_load_dword v120, v2, s[64:67], s49 offen offset:16")
                a("buffer_load_dwordx4 v[122:125], v2, s[68:71], 0 offen")
                a("buffer_load_dword v126, v2, s[68:71], 0 offen offset:16")
                a("buffer_load_dwordx4 v[132:135], v2, s[64:67], s49 offen offset:1280")
                a("buffer_load_dword v136, v2, s[64:67], s49 offen offset:1296")
            gw_issue(a, 0, 24, 16, 45, 46, 41)
        if k == 1 and XP_PF and not XP_QX:
            srd(a, 52, 52, 53, SZ_WO)
            a("s_mul_i32 s56, s2, 3200")
            a("v_and_b32 v3, 255, v0")
            a("v_lshlrev_b32 v2, 7, v3")
            a("v_cmp_gt_u32 vcc, 25, v3")
            a("v_bfrev_b32 v3, 1")
            a("v_cndmask_b32 v2, v3, v2, vcc")
            a("buffer_load_dword v141, v2, s[52:55], s56 offen")
        for _ in range(ns):
            if XP_FPIPE:
                if j == 0:
                    gw_issue(a, 1, 24, 16, 45, 46, 41)
                    if XP_GF:
                        a("s_waitcnt vmcnt(18)")
                        gate_compute2(a, 116, 132, 122, 48, 32)
                        a("s_waitcnt vmcnt(10)")
                    else:
                        a("s_waitcnt vmcnt(9)")
                elif j < 13:
                    a("s_waitcnt vmcnt(9)")
                else:
                    a("s_waitcnt vmcnt(0)")
                    a("s_cmp_ge_u32 s38, 2")
                    a("s_cbranch_scc1 K2_FSKIP")
                gw_compute_pipe(a, j & 1, j == 0, gw_pieces(j & 1, 24, 16, 45, 46, 41) if j + 2 < 14 else [])
                if j == 0 and XP_ES:
                    a("s_barrier")
                j += 1
                continue
            if j < 13:
                gw_issue(a, (j + 1) & 1, 24, 16, 45, 46, 41)
                if j == 0 and XP_GF:
                    a("s_waitcnt vmcnt(18)")
                    gate_compute2(a, 116, 132, 122, 48, 32)
                    a("s_waitcnt vmcnt(10)")
                else:
                    a("s_waitcnt vmcnt(9)")
            else:
                a("s_waitcnt vmcnt(0)")
                a("s_cmp_ge_u32 s38, 2")
                a("s_cbranch_scc1 K2_FSKIP")
            gw_compute(a, j & 1, j == 0)
            if j == 0 and XP_ES:
                a("s_barrier")
            j += 1
    assert j == 14
    a.label("K2_FSKIP")
    if XP_FE:
        a(f"s_setprio {XP_FE}")
    a("s_nop 7")
    a("s_nop 3")
    a("s_waitcnt vmcnt(0)")
    gw_write_partials(a, 41)
    a("s_waitcnt lgkmcnt(0)")
    a("s_barrier")
    gw_read_sum(a, 38, K2_FFN)
    for e in range(0, 20, 2):
        a(f"v_cvt_pk_bf16_f32 v{112 + e // 2}, v{24 + e}, v{25 + e}")
    a("s_lshl_b32 s42, s36, 3")
    a("s_add_u32 s42, s42, s37")
    a("s_lshl_b32 s42, s42, 2")
    a("s_add_u32 s42, s42, s38")
    a("s_mul_i32 s42, s42, 2560")
    a("v_lshlrev_b32 v2, 3, v1")
    for n in range(5):
        a(f"buffer_store_dwordx2 {vr(112 + 2 * n, 2)}, v2, s[28:31], s42 offen offset:{512 * n}")
    if XP_PF2:
        srd_off(a, 52, 8, 9, WS_WO, SZ_WO)
        a("s_lshr_b32 s56, s2, 3")
        a("s_mul_i32 s56, s56, 12800")
        a("s_and_b32 s57, s2, 1")
        a("s_mul_i32 s57, s57, 409600")
        a("s_add_u32 s56, s56, s57")
        a("v_and_b32 v3, 255, v0")
        a("v_lshlrev_b32 v2, 7, v3")
        a("v_cmp_gt_u32 vcc, 100, v3")
        a("v_bfrev_b32 v3, 1")
        a("v_cndmask_b32 v2, v3, v2, vcc")
        a("buffer_load_dword v141, v2, s[52:55], s56 offen")
        a("s_waitcnt vmcnt(0)")
    a("s_endpgm")
    return a.text()


def wmap(a, dst, sC0B):
    a("v_mul_u32_u24 v3, 6554, v2")
    a("v_lshrrev_b32 v3, 16, v3")
    a("v_mul_u32_u24 v15, 10, v3")
    a("v_sub_u32 v2, v2, v15")
    a("v_lshrrev_b32 v15, 1, v3")
    a("v_and_b32 v15, 4, v15")
    a("v_xor_b32 v3, v3, v15")
    a("v_lshlrev_b32 v2, 4, v2")
    a("v_mul_u32_u24 v3, 1280, v3")
    a(f"v_add3_u32 v{dst}, v2, v3, s{sC0B}")


def wread_addr(a, d0, d1, sBase):
    a("v_lshlrev_b32 v2, 3, v22")
    a("v_lshrrev_b32 v3, 2, v23")
    a("v_add_u32 v2, v2, v3")
    a("v_mul_u32_u24 v2, 160, v2")
    a("v_and_b32 v3, 3, v23")
    a("v_lshlrev_b32 v3, 3, v3")
    a(f"v_add3_u32 v2, v2, v3, s{sBase}")
    a("v_and_b32 v3, 1, v22")
    a("v_mul_u32_u24 v3, 640, v3")
    a(f"v_add_u32 v{d0}, v2, v3")
    a("v_sub_u32 v2, v2, v3")
    a(f"v_add_u32 v{d1}, 640, v2")


K3_STG = 36864
K3_B = 4 * K3_STG
K3_LDS = K3_B + 10240


def k3():
    a = Asm()
    a.label("k3_kernel")
    if PROF:
        a("s_memtime s[86:87]")
    a("s_cmp_ge_u32 s2, 256")
    a("s_cbranch_scc1 K3_END")
    a("s_load_dwordx2 s[4:5], s[0:1], 16")
    a("s_load_dwordx2 s[8:9], s[0:1], 72")
    a("s_load_dwordx2 s[10:11], s[0:1], 56")
    tile_map(a, 36, 37)
    a("v_and_b32 v1, 63, v0")
    a("v_lshrrev_b32 v2, 6, v0")
    a("v_lshrrev_b32 v22, 4, v1")
    a("v_readfirstlane_b32 s38, v2")
    a("v_and_b32 v23, 15, v1")
    a("s_lshl_b32 s39, s36, 6")
    a("s_mul_i32 s40, s37, 160")
    a("s_and_b32 s49, s38, 3")
    a("s_lshr_b32 s50, s38, 2")
    a("s_lshl_b32 s42, s38, 3")
    for j in range(2):
        a(f"s_add_u32 s43, s42, {4 * j}")
        a("v_add_u32 v2, s43, v22")
        a("v_and_b32 v3, 15, v2")
        a("v_xor_b32 v3, v3, v23")
        a("v_add_u32 v2, s39, v2")
        a("v_mul_u32_u24 v2, 1280, v2")
        a(f"v_lshl_add_u32 v{4 + j}, v3, 4, v2")
    a("s_add_u32 s43, s38, 8")
    a("s_add_u32 s44, s38, 16")
    a("s_cmp_lt_u32 s38, 4")
    a("s_cselect_b32 s44, s44, s43")
    a("v_lshlrev_b32 v2, 4, v1")
    a("s_mul_i32 s55, s37, 102400")
    for j, sp in enumerate((38, 43, 44)):
        a(f"s_lshl_b32 s{52 + j}, s{sp}, 10")
        a(f"s_add_u32 s51, s{52 + j}, s55")
        a(f"v_add_u32 v{8 + j}, s51, v2")
        a(f"s_add_u32 s{52 + j}, s{52 + j}, 16384")
    a("s_lshl_b32 s45, s38, 11")
    a("s_waitcnt lgkmcnt(0)")
    srd_off(a, 12, 8, 9, WS_WO, SZ_WO)
    srd_off(a, 20, 8, 9, WS_O, SZ_O)
    srd_off(a, 24, 8, 9, WS_B, SZ_B)
    srd_off(a, 28, 8, 9, WS_G, SZ_G)
    srd(a, 32, 10, 11, SZ_OUT)
    prof_init(a, 8, 9, 38, 2)
    prof(a, 0)

    def issue(stage, slot):
        a(f"s_mov_b32 s47, {stage * 256}")
        a(f"s_mov_b32 s48, {stage * 20480}")
        for j in range(2):
            a(f"s_add_u32 m0, s45, {slot * K3_STG + j * 1024}")
            a("s_nop 0")
            a(f"buffer_load_dwordx4 v{4 + j}, s[20:23], s47 offen lds")
        for j in range(3):
            a(f"s_add_u32 m0, s{52 + j}, {slot * K3_STG}")
            a("s_nop 0")
            a(f"buffer_load_dwordx4 v{8 + j}, s[12:15], s48 offen lds")

    for st in range(4):
        issue(st, st)
    a("s_lshl_b32 s42, s36, 3")
    a("s_add_u32 s42, s42, s37")
    a("s_lshl_b32 s42, s42, 2")
    a("s_add_u32 s42, s42, s49")
    a("s_mul_i32 s42, s42, 2560")
    a("s_mul_i32 s43, s50, 1536")
    a("s_add_u32 s42, s42, s43")
    a("v_lshlrev_b32 v2, 3, v1")
    for n in range(3):
        a(f"buffer_load_dwordx2 {vr(104 + 2 * n, 2)}, v2, s[24:27], s42 offen offset:{512 * n}")
    a("s_lshl_b32 s42, s49, 4")
    a("v_add_u32 v2, s42, v23")
    a("v_add_u32 v3, s39, v2")
    a("v_lshlrev_b32 v3, 2, v3")
    a("buffer_load_dword v16, v3, s[28:31], 0 offen")
    a("v_mul_u32_u24 v2, 160, v2")
    a("v_lshl_add_u32 v2, v22, 3, v2")
    a("s_mul_i32 s43, s50, 96")
    a(f"s_add_u32 s43, s43, {K3_B}")
    a("v_add_u32 v17, s43, v2")
    for j in range(2):
        a("s_mul_i32 s43, s38, 80")
        a(f"s_add_u32 s43, s43, {64 * j}")
        a("v_add_u32 v2, s43, v1")
        a("v_mul_u32_u24 v3, 6554, v2")
        a("v_lshrrev_b32 v3, 16, v3")
        a("v_mul_u32_u24 v15, 10, v3")
        a("v_sub_u32 v15, v2, v15")
        a("v_lshlrev_b32 v15, 4, v15")
        a("v_add_u32 v3, s39, v3")
        a("v_mul_u32_u24 v3, 1280, v3")
        a(f"v_add3_u32 v{12 + j}, v3, v15, s40")
        a("v_lshlrev_b32 v2, 4, v2")
        a(f"v_add_u32 v{32 + j}, {K3_B}, v2")
    BV = 104
    RA, RW = 24, 28
    a("s_lshl_b32 s43, s49, 12")
    a("v_lshlrev_b32 v2, 8, v23")
    a("v_add_u32 v2, s43, v2")
    a("s_lshl_b32 s43, s50, 3")
    for i in range(2):
        a(f"s_add_u32 s44, s43, {4 * i}")
        a("v_add_u32 v3, s44, v22")
        a("v_xor_b32 v3, v3, v23")
        a(f"v_lshl_add_u32 v{RA + i}, v3, 4, v2")
        a(f"v_add_u32 v{RA + 2 + i}, {2 * K3_STG}, v{RA + i}")
    a("s_mul_i32 s43, s50, 10240")
    a("s_add_u32 s43, s43, 16384")
    wread_addr(a, RW, RW + 1, 43)
    a(f"v_add_u32 v{RW + 2}, {2 * K3_STG}, v{RW}")
    a(f"v_add_u32 v{RW + 3}, {2 * K3_STG}, v{RW + 1}")
    a("v_lshlrev_b32 v21, 4, v1")
    a("s_mul_i32 s43, s49, 5120")
    a(f"s_add_u32 s43, s43, {K3_STG}")
    a("v_add_u32 v21, s43, v21")
    AF = (36, 40)
    WF = (44, 64)
    ACC = 84

    def reads(t):
        st, i = t >> 1, t & 1
        slot = st % 4
        hi = slot >> 1
        so = (slot & 1) * K3_STG
        r = [f"ds_read_b128 {vr(AF[i], 4)}, v{RA + 2 * hi + i} offset:{so}"]
        for n in range(5):
            off = so + i * 5120 + n * 32
            r.append(f"ds_read_b64_tr_b16 {vr(WF[i] + 4 * n, 2)}, v{RW + 2 * hi} offset:{off}")
            r.append(f"ds_read_b64_tr_b16 {vr(WF[i] + 4 * n + 2, 2)}, v{RW + 2 * hi + 1} offset:{off}")
        return r

    def mf(t):
        for n in range(5):
            d = ACC + 4 * n
            c = "0" if t == 0 else vr(d, 4)
            a(f"v_mfma_f32_16x16x32_bf16 {vr(d, 4)}, {vr(WF[t & 1] + 4 * n, 4)}, {vr(AF[t & 1], 4)}, {c}")

    a("s_waitcnt vmcnt(19)")
    a("s_barrier")
    prof(a, 1)
    for r in reads(0) + reads(1):
        a(r)
    a("s_waitcnt vmcnt(4) lgkmcnt(0)")
    a("s_barrier")
    prof(a, 2)
    issue(4, 0)
    mf(0)
    for r in reads(2):
        a(r)
    mf(1)
    for t in range(2, 10):
        if t == 7:
            a("s_waitcnt vmcnt(0)")
            a("s_barrier")
            prof(a, 3)
        if t < 9:
            for r in reads(t + 1):
                a(r)
            a("s_waitcnt lgkmcnt(11)")
        else:
            a("s_waitcnt lgkmcnt(0)")
        mf(t)
    a("v_sub_f32 v18, 1.0, v16")
    a("v_cvt_pk_bf16_f32 v18, v18, v18")
    a("v_lshlrev_b32 v18, 16, v18")
    a("s_nop 7")
    prof(a, 6)
    XR = 44
    a("s_cmp_eq_u32 s50, 0")
    a("s_cbranch_scc0 K3_X1")
    for n in (3, 4):
        a(f"ds_write_b128 v21, {vr(ACC + 4 * n, 4)} offset:{1024 * n}")
    a("s_waitcnt lgkmcnt(0)")
    a("s_barrier")
    for n in range(3):
        a(f"ds_read_b128 {vr(XR + 4 * n, 4)}, v21 offset:{1024 * n}")
    a("s_branch K3_FIN")
    a.label("K3_X1")
    for n in range(3):
        a(f"ds_write_b128 v21, {vr(ACC + 4 * n, 4)} offset:{1024 * n}")
    a("s_waitcnt lgkmcnt(0)")
    a("s_barrier")
    for n in (3, 4):
        a(f"ds_read_b128 {vr(XR + 4 * (n - 3), 4)}, v21 offset:{1024 * n}")
    for i in range(8):
        a(f"v_mov_b32 v{ACC + i}, v{ACC + 12 + i}")
    a.label("K3_FIN")
    a("s_waitcnt lgkmcnt(0)")
    for n in range(3):
        if n == 2:
            a("s_cmp_eq_u32 s50, 0")
            a("s_cbranch_scc0 K3_CP")
        for i in range(4):
            a(f"v_add_f32 v{ACC + 4 * n + i}, v{ACC + 4 * n + i}, v{XR + 4 * n + i}")
        for h in range(2):
            e = ACC + 4 * n + 2 * h
            bp = BV + 2 * n + h
            a(f"v_cvt_pk_bf16_f32 v19, v{e}, v{e + 1}")
            a("v_lshlrev_b32 v4, 16, v19")
            a("v_and_b32 v5, 0xffff0000, v19")
            a(f"v_lshlrev_b32 v6, 16, v{bp}")
            a(f"v_and_b32 v7, 0xffff0000, v{bp}")
            a("v_mul_f32 v4, v16, v4")
            a("v_mul_f32 v5, v16, v5")
            a("v_mul_f32 v6, v18, v6")
            a("v_mul_f32 v7, v18, v7")
            a("v_cvt_pk_bf16_f32 v19, v4, v5")
            a("v_cvt_pk_bf16_f32 v20, v6, v7")
            a("v_lshlrev_b32 v4, 16, v19")
            a("v_and_b32 v5, 0xffff0000, v19")
            a("v_lshlrev_b32 v6, 16, v20")
            a("v_and_b32 v7, 0xffff0000, v20")
            a("v_add_f32 v4, v4, v6")
            a("v_add_f32 v5, v5, v7")
            a(f"v_cvt_pk_bf16_f32 v{bp}, v4, v5")
        a(f"ds_write_b64 v17, {vr(BV + 2 * n, 2)} offset:{32 * n}")
    a.label("K3_CP")
    a("s_waitcnt lgkmcnt(0)")
    a("s_barrier")
    a("ds_read_b128 v[4:7], v32")
    a("ds_read_b128 v[8:11], v33")
    a("s_waitcnt lgkmcnt(1)")
    a("buffer_store_dwordx4 v[4:7], v12, s[32:35], 0 offen")
    a("v_cmp_gt_u32 vcc, 16, v1")
    a("s_and_saveexec_b64 s[50:51], vcc")
    a("s_waitcnt lgkmcnt(0)")
    a("buffer_store_dwordx4 v[8:11], v13, s[32:35], 0 offen")
    a("s_mov_b64 exec, s[50:51]")
    a.label("K3_PEND")
    prof(a, 12)
    a.label("K3_END")
    a("s_endpgm")
    return a.text()


def desc(name, vgpr, sgpr=96):
    acc = (vgpr + 3) // 4 * 4
    return f""".amdhsa_kernel {name}
  .amdhsa_next_free_vgpr {vgpr}
  .amdhsa_next_free_sgpr {sgpr}
  .amdhsa_accum_offset {acc}
  .amdhsa_group_segment_fixed_size 0
  .amdhsa_kernarg_size 80
  .amdhsa_user_sgpr_count 2
  .amdhsa_user_sgpr_kernarg_segment_ptr 1
  .amdhsa_system_sgpr_workgroup_id_x 1
.end_amdhsa_kernel
"""


def main():
    hdr = f"""; gated_mix__mha_block__dense_activation_relu__prompt : 3 kernels (generated by gen.py, hand-designed)
; @launch kernel=k1_kernel grid=(256,1,1) block=(512,1,1) lds={K1_LDS}
; @launch kernel=k2_kernel grid=(256,1,1) block=(768,1,1) lds={K2_LDS}
; @launch kernel=k3_kernel grid=(256,1,1) block=(512,1,1) lds={K3_LDS}
.amdgcn_target "amdgcn-amd-amdhsa--gfx950"
.text
"""
    body = ""
    for name, fn in (("k1_kernel", k1), ("k2_kernel", k2), ("k3_kernel", k3)):
        body += f".globl {name}\n.p2align 8\n.type {name},@function\n" + fn()
    tail = '.section .rodata,"a"\n.p2align 6\n'
    tail += desc("k1_kernel", 176)
    tail += ".p2align 6\n" + desc("k2_kernel", 144)
    tail += ".p2align 6\n" + desc("k3_kernel", 116)
    open(OUT, "w").write(hdr + body + tail)


if __name__ == "__main__":
    main()
```

```python
import struct, sys

OUT = sys.argv[1] if len(sys.argv) > 1 else "gated_mix__mha_block__dense_activation_relu__prompt.s"

WS_Q = 0
SZ_Q = 32 * 2048 * 48
WS_KV = 0x400000
HEAD_KV = 64 * 2880
SZ_KV = 32 * HEAD_KV
WS_H = 0xC00000
SZ_H = 2048 * 3456
WS_O = 0x1400000
SZ_O = 2048 * 1280
WS_G = 0x1800000
SZ_G = 2048 * 4
WS_B = 0x1A00000
SZ_B = 2048 * 1280
WS_WO = 0x1E00000
WS_W2P = 0x2400000

SZ_X = 2048 * 1280
SZ_WQKV = 640 * 3840
SZ_WO = 640 * 1280
SZ_W1 = 640 * 3456
SZ_W2 = 1728 * 1280
SZ_OUT = 2048 * 1280


def f32bits(x):
    return struct.unpack("<I", struct.pack("<f", x))[0]


C_SCALE = 1.4426950408889634 / (20 ** 0.5)
LOG2E = 1.4426950408889634


PROF = int(__import__("os").environ.get("PROF", "0"))
WS_T = 0x2000000
XP_PF = int(__import__("os").environ.get("XP_PF", "0"))
XP_ROT = int(__import__("os").environ.get("XP_ROT", "1"))
XP_PRIO = int(__import__("os").environ.get("XP_PRIO", "0"))
XP_RPM = int(__import__("os").environ.get("XP_RPM", "1"))
XP_DSL = eval(__import__("os").environ.get("XP_DSL", "(7, 10, 13)"))
XP_FDEL = int(__import__("os").environ.get("XP_FDEL", "1"))
XP_FS = eval(__import__("os").environ.get("XP_FS", "(2, 2, 2, 2, 2, 2, 2)"))
XP_QX = int(__import__("os").environ.get("XP_QX", "0"))
XP_PF2 = int(__import__("os").environ.get("XP_PF2", "0"))
XP_NOLDS = int(__import__("os").environ.get("XP_NOLDS", "0"))
XP_NOFFN = int(__import__("os").environ.get("XP_NOFFN", "0"))
XP_K8 = int(__import__("os").environ.get("XP_K8", "1"))
XP_PR = eval(__import__("os").environ.get("XP_PR", "(3, 3, 3, 2, 2, 2, 1, 1)"))
XP_FP = int(__import__("os").environ.get("XP_FP", "0"))
XP_FE = int(__import__("os").environ.get("XP_FE", "3"))
XP_FPIPE = int(__import__("os").environ.get("XP_FPIPE", "1"))
XP_FB = int(__import__("os").environ.get("XP_FB", "2"))
XP_ES = int(__import__("os").environ.get("XP_ES", "1"))
XP_FJ = int(__import__("os").environ.get("XP_FJ", "1"))
XP_GF = int(__import__("os").environ.get("XP_GF", "1"))
XP_NODMA = int(__import__("os").environ.get("XP_NODMA", "0"))
XP_NOBAR = int(__import__("os").environ.get("XP_NOBAR", "0"))


def prof_init(a, wsl, wsh, wave_s, kidx=0):
    if not PROF:
        return
    a(f"s_add_u32 s92, s{wsl}, {WS_T + kidx * 0x100000}")
    a(f"s_addc_u32 s93, s{wsh}, 0")
    a("s_and_b32 s93, s93, 0xffff")
    a("s_mov_b32 s94, 0x100000")
    a("s_mov_b32 s95, 0x00020000")
    a("s_lshl_b32 s91, s2, 4")
    a(f"s_add_u32 s91, s91, s{wave_s}")
    a("s_lshl_b32 s91, s91, 7")


def prof(a, slot, tmpv=2):
    if not PROF:
        return
    a("s_memtime s[88:89]")
    a("s_waitcnt lgkmcnt(0)")
    a(f"v_mov_b32 v{tmpv}, s88")
    a(f"v_mov_b32 v{tmpv + 1}, 0")
    a(f"buffer_store_dword v{tmpv}, v{tmpv + 1}, s[92:95], s91 offen offset:{4 * slot}")
    if slot == 0:
        a(f"v_mov_b32 v{tmpv}, s86")
        a(f"buffer_store_dword v{tmpv}, v{tmpv + 1}, s[92:95], s91 offen offset:60")
    if slot in (0, 12):
        a("s_memrealtime s[88:89]")
        a("s_waitcnt lgkmcnt(0)")
        a(f"v_mov_b32 v{tmpv}, s88")
        a(f"buffer_store_dword v{tmpv}, v{tmpv + 1}, s[92:95], s91 offen offset:{4 * (13 if slot == 0 else 14)}")


class Asm:
    def __init__(self):
        self.lines = []

    def __call__(self, s):
        self.lines.append("    " + s)

    def label(self, l):
        self.lines.append(l + ":")

    def c(self, s):
        self.lines.append("    ; " + s)

    def text(self):
        return "\n".join(self.lines) + "\n"


def vr(b, n=1):
    return f"v{b}" if n == 1 else f"v[{b}:{b + n - 1}]"


def sr(b, n=1):
    return f"s{b}" if n == 1 else f"s[{b}:{b + n - 1}]"


def srd(a, d, lo, hi, size):
    a(f"s_mov_b32 s{d}, s{lo}")
    a(f"s_and_b32 s{d + 1}, s{hi}, 0xffff")
    a(f"s_mov_b32 s{d + 2}, {size}")
    a(f"s_mov_b32 s{d + 3}, 0x00020000")


def srd_off(a, d, lo, hi, off, size):
    a(f"s_add_u32 s{d}, s{lo}, {off}")
    a(f"s_addc_u32 s{d + 1}, s{hi}, 0")
    a(f"s_and_b32 s{d + 1}, s{d + 1}, 0xffff")
    a(f"s_mov_b32 s{d + 2}, {size}")
    a(f"s_mov_b32 s{d + 3}, 0x00020000")


K1_STAGE = 45056
K1_LDS = 3 * K1_STAGE


def k1():
    a = Asm()
    a.label("k1_kernel")
    if PROF:
        a("s_memtime s[86:87]")
    a("s_cmp_ge_u32 s2, 256")
    a("s_cbranch_scc1 K1_END")
    a("s_and_b32 s3, s2, 7")
    a("s_lshr_b32 s4, s2, 3")
    a("s_lshl_b32 s3, s3, 5")
    a("s_add_u32 s3, s3, s4")
    a("s_cmp_ge_u32 s3, 253")
    a("s_cbranch_scc1 K1_PACK")
    a("s_mul_i32 s25, s3, 373")
    a("s_lshr_b32 s25, s25, 12")
    a("s_mul_i32 s4, s25, 11")
    a("s_sub_u32 s24, s3, s4")
    a("s_load_dwordx2 s[4:5], s[0:1], 0")
    a("s_load_dwordx2 s[6:7], s[0:1], 8")
    a("s_load_dwordx2 s[8:9], s[0:1], 32")
    a("s_load_dwordx2 s[10:11], s[0:1], 72")
    a("s_load_dwordx2 s[64:65], s[0:1], 40")
    a("v_and_b32 v1, 63, v0")
    a("v_lshrrev_b32 v2, 6, v0")
    a("s_nop 0")
    a("v_readfirstlane_b32 s26, v2")
    a("s_mul_i32 s72, s3, 547")
    a("s_lshr_b32 s27, s25, 2")
    a("s_min_u32 s27, s27, 3")
    a("s_mul_i32 s30, s24, 192")
    a("s_waitcnt lgkmcnt(0)")
    srd(a, 12, 4, 5, SZ_X)
    a("s_sub_u32 s29, s25, 12")
    a(f"s_mov_b32 s18, {SZ_W1}")
    a("s_mov_b32 s28, 3456")
    a("s_cmp_lt_u32 s25, 12")
    a("s_cselect_b32 s16, s6, s8")
    a("s_cselect_b32 s17, s7, s9")
    a(f"s_cselect_b32 s18, {SZ_WQKV}, s18")
    a("s_cselect_b32 s28, 3840, s28")
    a("s_cselect_b32 s29, s25, s29")
    a("s_and_b32 s17, s17, 0xffff")
    a("s_mov_b32 s19, 0x00020000")
    a("s_mul_i32 s29, s29, 160")
    a(f"s_mov_b32 s31, {WS_KV}")
    a(f"s_mov_b32 s22, {SZ_KV}")
    a("s_cmp_eq_u32 s27, 0")
    a(f"s_cselect_b32 s31, {WS_Q}, s31")
    a(f"s_cselect_b32 s22, {SZ_Q}, s22")
    a("s_cmp_eq_u32 s27, 3")
    a(f"s_cselect_b32 s31, {WS_H}, s31")
    a(f"s_cselect_b32 s22, {SZ_H}, s22")
    a("s_add_u32 s20, s10, s31")
    a("s_addc_u32 s21, s11, 0")
    a("s_and_b32 s21, s21, 0xffff")
    a("s_mov_b32 s23, 0x00020000")
    prof_init(a, 10, 11, 26, 0)
    prof(a, 0)
    a("s_and_b32 s65, s65, 0xffff")
    a(f"s_mov_b32 s66, {SZ_W2}")
    a("s_mov_b32 s67, 0x00020000")
    srd_off(a, 68, 10, 11, WS_W2P, SZ_W2)
    a("v_add_u32 v164, s72, v0")
    a("v_add_u32 v165, 512, v164")
    a("v_bfrev_b32 v2, 1")
    a("v_cmp_gt_u32 vcc, 35, v0")
    a("v_lshlrev_b32 v166, 4, v164")
    a("v_cndmask_b32 v165, v2, v165, vcc")
    a("v_lshlrev_b32 v2, 4, v165")
    a("v_cndmask_b32 v167, v165, v2, vcc")
    a("s_lshr_b32 s32, s26, 1")
    a("s_and_b32 s33, s26, 1")
    a("v_lshrrev_b32 v2, 3, v1")
    a("v_and_b32 v3, 7, v1")
    a("v_xor_b32 v3, v3, v2")
    a("v_lshlrev_b32 v3, 4, v3")
    a("v_mul_u32_u24 v2, 1280, v2")
    a("v_add_u32 v4, v2, v3")
    a("v_add_u32 v5, 10240, v4")
    a("v_add_u32 v6, 20480, v4")
    a("s_mul_i32 s34, s26, 24")
    a("s_add_u32 s34, s34, s30")
    a("s_mul_i32 s34, s34, 1280")
    a("s_mov_b32 s35, 0")
    a("s_lshl_b32 s36, s28, 6")
    a("s_add_u32 s62, s34, 1280")
    a("s_mul_i32 s61, s28, 640")
    a("s_add_u32 s60, s24, s25")
    a("s_mul_i32 s63, s60, 43")
    a("s_lshr_b32 s63, s63, 7")
    a("s_mul_i32 s63, s63, 3")
    a("s_sub_u32 s60, s60, s63")
    a(f"s_mul_i32 s60, s60, {XP_ROT}")
    a("s_lshl_b32 s63, s60, 7")
    a("s_add_u32 s34, s34, s63")
    a("s_mul_i32 s35, s60, s36")
    a("s_add_u32 s37, s26, 8")
    a("s_add_u32 s38, s26, 16")
    a("s_cmp_lt_u32 s26, 4")
    a("s_cselect_b32 s38, s38, s37")
    a("s_lshl_b32 s39, s29, 1")
    for j, sidx in enumerate((26, 37, 38)):
        a(f"s_lshl_b32 s40, s{sidx}, 6")
        a("v_add_u32 v2, s40, v1")
        a("v_mul_u32_u24 v3, 3277, v2")
        a("v_lshrrev_b32 v3, 16, v3")
        a("v_mul_u32_u24 v22, 20, v3")
        a("v_sub_u32 v2, v2, v22")
        a("v_lshrrev_b32 v22, 2, v3")
        a("v_and_b32 v22, 2, v22")
        a("v_xor_b32 v2, v2, v22")
        a("v_lshlrev_b32 v2, 4, v2")
        a("v_mul_lo_u32 v3, v3, s28")
        a(f"v_add3_u32 v{7 + j}, v2, v3, s39")
    a("s_mul_i32 s41, s26, 3072")
    a("s_lshl_b32 s42, s26, 10")
    a("s_add_u32 s42, s42, 24576")
    a("s_lshl_b32 s43, s37, 10")
    a("s_add_u32 s43, s43, 24576")
    a("s_lshl_b32 s44, s38, 10")
    a("s_add_u32 s44, s44, 24576")

    def dma_pieces(buf):
        base = buf * K1_STAGE
        g = []
        for j in range(3):
            x = [f"s_add_u32 m0, s41, {base + j * 1024}", "s_nop 0",
                 f"buffer_load_dwordx4 v{4 + j}, s[12:15], s34 offen lds"]
            if j == 2:
                x += ["s_add_u32 s34, s34, 128", "s_sub_u32 s60, s34, 1280", "s_cmp_ge_u32 s34, s62",
                      "s_cselect_b32 s34, s60, s34"]
            g.append(x)
        for j in range(3):
            x = [f"s_add_u32 m0, s{42 + j}, {base}", "s_nop 0",
                 f"buffer_load_dwordx4 v{7 + j}, s[16:19], s35 offen lds"]
            if j == 2:
                x += ["s_add_u32 s35, s35, s36", "s_cmp_ge_u32 s35, s61", "s_cselect_b32 s35, 0, s35"]
            g.append(x)
        return g

    for b in range(3):
        for g in dma_pieces(b):
            for x in g:
                a(x)
    NPF = 2
    a("buffer_load_dwordx4 v[168:171], v166, s[64:67], 0 offen")
    a("buffer_load_dwordx4 v[172:175], v167, s[64:67], 0 offen")
    a("s_mov_b32 s72, 53687092")
    a("s_mov_b32 s73, 276480")
    for r in (164, 165):
        a(f"v_mul_hi_u32 v24, v{r}, s72")
        a("v_mul_u32_u24 v25, 80, v24")
        a(f"v_sub_u32 v25, v{r}, v25")
        a("v_mul_u32_u24 v26, 6554, v25")
        a("v_lshrrev_b32 v26, 16, v26")
        a("v_mul_u32_u24 v27, 10, v26")
        a("v_sub_u32 v25, v25, v27")
        a("v_mul_u32_u24 v24, 160, v24")
        a("v_mul_lo_u32 v26, v26, s73")
        a("v_lshl_add_u32 v24, v25, 4, v24")
        a("v_add_u32 v24, v24, v26")
        a(f"v_cmp_gt_u32 vcc, {1728 * 80}, v{r}")
        a("v_bfrev_b32 v26, 1")
        a(f"v_cndmask_b32 v{r}, v26, v24, vcc")
    if XP_PF > 1:
        NPF = 3
        a("s_lshr_b32 s45, s2, 3")
        a("s_mul_i32 s45, s45, 81920")
        a("v_lshlrev_b32 v2, 7, v0")
        a("buffer_load_dword v160, v2, s[12:15], s45 offen")
        a("v_add_u32 v3, 0x10000, v2")
        a("v_cmp_gt_u32 vcc, 128, v0")
        a("v_bfrev_b32 v22, 1")
        a("v_cndmask_b32 v3, v22, v3, vcc")
        a("buffer_load_dword v161, v3, s[12:15], s45 offen")
        a("v_mul_u32_u24 v2, 21846, v0")
        a("v_lshrrev_b32 v2, 16, v2")
        a("v_mul_u32_u24 v3, 3, v2")
        a("v_sub_u32 v3, v0, v3")
        a("v_lshlrev_b32 v3, 7, v3")
        a("s_mul_i32 s45, s24, 59")
        a("v_add_u32 v2, s45, v2")
        a("v_cmp_gt_u32 vcc, 177, v0")
        a("v_mul_lo_u32 v2, v2, s28")
        a("v_add3_u32 v2, v2, v3, s39")
        a("v_cndmask_b32 v2, v22, v2, vcc")
        a("buffer_load_dword v162, v2, s[16:19], 0 offen")
    a("v_lshrrev_b32 v22, 4, v1")
    a("v_and_b32 v23, 15, v1")
    a("s_mul_i32 s45, s32, 48")
    a("v_add_u32 v2, s45, v23")
    a("v_lshlrev_b32 v2, 7, v2")
    a("v_and_b32 v3, 7, v23")
    a("v_xor_b32 v3, v3, v22")
    a("v_lshlrev_b32 v3, 4, v3")
    a("v_add_u32 v10, v2, v3")
    a("v_xor_b32 v11, 64, v10")
    for b in (1, 2):
        a(f"v_add_u32 v{10 + 2 * b}, {b * K1_STAGE}, v10")
        a(f"v_add_u32 v{11 + 2 * b}, {b * K1_STAGE}, v11")
    a("v_lshlrev_b32 v2, 3, v22")
    a("v_lshrrev_b32 v3, 2, v23")
    a("v_add_u32 v2, v2, v3")
    a("v_mul_u32_u24 v2, 320, v2")
    a("v_and_b32 v3, 3, v23")
    a("v_lshlrev_b32 v3, 3, v3")
    a("s_mul_i32 s45, s33, 160")
    a("s_add_u32 s45, s45, 24576")
    a("v_add3_u32 v2, v2, v3, s45")
    a("v_and_b32 v3, 1, v22")
    a("v_lshlrev_b32 v3, 5, v3")
    a("s_cmp_eq_u32 s33, 0")
    a("s_cselect_b32 s45, 1, -1")
    a("v_mul_lo_u32 v3, v3, s45")
    a("v_add_u32 v16, v2, v3")
    a("v_sub_u32 v17, v2, v3")
    for b in (1, 2):
        a(f"v_add_u32 v{16 + 2 * b}, {b * K1_STAGE}, v16")
        a(f"v_add_u32 v{17 + 2 * b}, {b * K1_STAGE}, v17")

    XF = (24, 36)
    WF = (48, 68)
    ACC = 88

    def reads(buf, sub, st):
        r = []
        for ti in range(3):
            r.append(f"ds_read_b128 {vr(XF[st] + 4 * ti, 4)}, v{10 + 2 * buf + sub} offset:{ti * 2048}")
        for ni in range(5):
            ad = 16 + 2 * buf + (ni & 1)
            off = ni * 32 + sub * 10240
            r.append(f"ds_read_b64_tr_b16 {vr(WF[st] + 4 * ni, 2)}, v{ad} offset:{off}")
            r.append(f"ds_read_b64_tr_b16 {vr(WF[st] + 4 * ni + 2, 2)}, v{ad} offset:{off + 1280}")
        return r

    def mfmas(st, vor, first):
        m = []
        for ni in range(5):
            for ti in range(3):
                d = ACC + 4 * (ni * 3 + ti)
                c = "0" if first else vr(d, 4)
                w = vr(WF[st] + 4 * ni, 4)
                x = vr(XF[st] + 4 * ti, 4)
                if vor:
                    m.append(f"v_mfma_f32_16x16x32_bf16 {vr(d, 4)}, {x}, {w}, {c}")
                else:
                    m.append(f"v_mfma_f32_16x16x32_bf16 {vr(d, 4)}, {w}, {x}, {c}")
        return m

    def phase(ms, rs, ds):
        rs = list(rs)
        ds = list(ds)
        for i, m in enumerate(ms):
            a(m)
            for _ in range(XP_RPM):
                if rs:
                    a(rs.pop(0))
            if ds and i in XP_DSL:
                for x in ds.pop(0):
                    a(x)

    def loop(vor):
        a(f"s_waitcnt vmcnt({12 + NPF})")
        a("s_barrier")
        prof(a, 1)
        for r in reads(0, 0, 0):
            a(r)
        pend = []
        for ks in range(10):
            buf = ks % 3
            a("s_waitcnt lgkmcnt(0)")
            phase(mfmas(0, vor, ks == 0), reads(buf, 1, 1), pend)
            pend = []
            nxt = []
            if ks < 9:
                a(f"s_waitcnt vmcnt({(6 + NPF if ks in (0, 1, 3) else 6) if ks < 8 else 0}) lgkmcnt(0)")
                a("s_barrier")
                if ks == 2:
                    a("buffer_store_dwordx4 v[168:171], v164, s[68:71], 0 offen")
                    a("buffer_store_dwordx4 v[172:175], v165, s[68:71], 0 offen")
                prof(a, 2 + ks)
                nxt = reads((ks + 1) % 3, 0, 0)
            else:
                a("s_waitcnt lgkmcnt(0)")
            d = []
            if ks + 3 < 10:
                p = dma_pieces(buf)
                d = p[:3]
                pend = p[3:]
            phase(mfmas(1, vor, False), nxt, d)
        a("s_barrier")
        a("s_nop 7")
        a("s_nop 3")
        prof(a, 11)

    a("s_cmp_eq_u32 s27, 2")
    a("s_cbranch_scc1 K1_VLOOP")
    loop(False)
    a("s_mul_i32 s45, s32, 48")
    a("v_add_u32 v4, s45, v23")
    a("s_cmp_eq_u32 s27, 3")
    a("s_cbranch_scc1 K1_EPI_FFN")
    a("s_cmp_eq_u32 s27, 0")
    a(f"s_cselect_b32 s48, {f32bits(C_SCALE)}, 1.0")
    NO = 148
    a("v_mul_u32_u24 v4, 48, v4")
    a("s_mul_i32 s46, s33, 36864")
    a("v_add_u32 v4, s46, v4")
    for ni in range(5):
        a(f"v_add_u32 v2, {4 * ni}, v22")
        a("v_mul_u32_u24 v3, 13, v2")
        a("v_lshrrev_b32 v3, 6, v3")
        a("v_mul_u32_u24 v5, 5, v3")
        a(f"v_sub_u32 v{NO + 5 + ni}, v2, v5")
        a("v_mul_u32_u24 v3, 9216, v3")
        a(f"v_lshl_add_u32 v3, v{NO + 5 + ni}, 3, v3")
        a(f"v_add_u32 v{NO + ni}, v3, v4")
    a("v_mov_b32 v8, 0x3f803f80")
    a("v_mov_b32 v9, 0x00003f80")
    for ti in range(3):
        for ni in range(5):
            d = ACC + 4 * (ni * 3 + ti)
            for i in range(4):
                a(f"v_mul_f32 v{d + i}, s48, v{d + i}")
            a(f"v_cvt_pk_bf16_f32 v{d}, v{d}, v{d + 1}")
            a(f"v_cvt_pk_bf16_f32 v{d + 1}, v{d + 2}, v{d + 3}")
            a(f"ds_write_b64 v{NO + ni}, {vr(d, 2)} offset:{768 * ti}")
    for ni in range(1, 5):
        a(f"v_cmp_eq_u32 vcc, 4, v{NO + 5 + ni}")
        a("s_and_saveexec_b64 s[50:51], vcc")
        for ti in range(3):
            a(f"ds_write_b64 v{NO + ni}, v[8:9] offset:{768 * ti + 8}")
        a("s_mov_b64 exec, s[50:51]")
    a("s_mul_i32 s52, s26, 9216")
    a("s_and_b32 s46, s25, 3")
    a("s_lshl_b32 s46, s46, 3")
    a("s_add_u32 s46, s46, s26")
    a("s_sub_u32 s57, 2048, s30")
    a("s_min_u32 s57, s57, 192")
    a("s_mul_i32 s57, s57, 3")
    a("s_mov_b32 s56, 0")
    a("s_mov_b32 s58, 1000")
    a("s_cmp_eq_u32 s27, 0")
    a("s_cbranch_scc0 K1_CPK")
    a("s_mul_i32 s53, s46, 98304")
    a("s_mul_i32 s47, s30, 48")
    a("s_add_u32 s53, s53, s47")
    a("s_mov_b32 s54, 0")
    a("s_mov_b32 s55, 0")
    a("s_branch K1_COPY")
    a.label("K1_CPK")
    a(f"s_mul_i32 s53, s46, {HEAD_KV}")
    a("s_mul_i32 s47, s30, 90")
    a("s_add_u32 s53, s53, s47")
    a("s_mov_b32 s54, 683")
    a("s_mov_b32 s55, 1344")
    a("s_branch K1_COPY")
    a.label("K1_EPI_FFN")
    a("v_lshrrev_b32 v2, 2, v23")
    a("v_sub_u32 v2, 0, v2")
    a("v_and_b32 v2, 3, v2")
    a("v_and_b32 v3, 1, v22")
    a("v_lshlrev_b32 v3, 3, v3")
    a("v_lshl_add_u32 v3, v23, 6, v3")
    a("v_lshrrev_b32 v4, 1, v22")
    a("s_mul_i32 s46, s33, 10")
    for ni in range(5):
        a(f"s_add_u32 s47, s46, {2 * ni}")
        a("v_add_u32 v5, s47, v4")
        a("v_lshrrev_b32 v6, 2, v5")
        a("v_and_b32 v5, 3, v5")
        a("v_xor_b32 v5, v5, v2")
        a("v_lshl_add_u32 v6, v6, 12, v3")
        a(f"v_lshl_add_u32 v{148 + ni}, v5, 4, v6")
    for ti in range(3):
        a(f"s_add_u32 s46, s45, {16 * ti}")
        a("s_lshr_b32 s47, s46, 6")
        a("s_mul_i32 s47, s47, 20480")
        a("s_and_b32 s46, s46, 63")
        a("s_lshl_b32 s46, s46, 6")
        a("s_add_u32 s46, s46, s47")
        for ni in range(5):
            d = ACC + 4 * (ni * 3 + ti)
            for i in range(4):
                a(f"v_max_f32 v{d + i}, 0, v{d + i}")
            a(f"v_cvt_pk_bf16_f32 v{d}, v{d}, v{d + 1}")
            a(f"v_cvt_pk_bf16_f32 v{d + 1}, v{d + 2}, v{d + 3}")
            a(f"v_add_u32 v4, s46, v{148 + ni}")
            a(f"ds_write_b64 v4, {vr(d, 2)}")
    a("s_mul_i32 s52, s26, 2560")
    a("s_lshr_b32 s46, s30, 6")
    a("s_mul_i32 s46, s46, 54")
    a("s_lshr_b32 s47, s29, 5")
    a("s_add_u32 s46, s46, s47")
    a("s_lshl_b32 s53, s46, 12")
    a("s_add_u32 s53, s53, s52")
    a("s_mov_b32 s54, 410")
    a(f"s_mov_b32 s55, {221184 - 2560}")
    a(f"s_mov_b32 s56, {20480 - 2560}")
    a("s_sub_u32 s57, 2048, s30")
    a("s_min_u32 s57, s57, 192")
    a("s_lshr_b32 s57, s57, 6")
    a("s_mul_i32 s57, s57, 160")
    a("s_sub_u32 s58, 1728, s29")
    a("s_min_u32 s58, s58, 160")
    a("s_lshl_b32 s58, s58, 3")
    a("s_mul_i32 s47, s26, 160")
    a("s_sub_i32 s58, s58, s47")
    a("s_branch K1_COPY")
    a.label("K1_VLOOP")
    loop(True)
    a("s_mul_i32 s46, s33, 32256")
    for ni in range(5):
        a(f"v_add_u32 v2, {16 * ni}, v23")
        a("v_mul_u32_u24 v3, 205, v2")
        a("v_lshrrev_b32 v3, 12, v3")
        a("v_mul_u32_u24 v4, 20, v3")
        a(f"v_sub_u32 v{NO + 10 + ni}, v2, v4")
        a("v_mul_u32_u24 v3, 8064, v3")
        a(f"v_lshlrev_b32 v4, 6, v{NO + 10 + ni}")
        a(f"v_add3_u32 v{NO + ni}, v3, v4, s46")
        a(f"v_bfe_u32 v{NO + 5 + ni}, v{NO + 10 + ni}, 2, 2")
    a("v_mov_b32 v8, 0x3f803f80")
    a("v_mov_b32 v9, 0x3f803f80")
    a("s_mul_i32 s45, s32, 48")
    for ti in range(3):
        a(f"s_add_u32 s49, s45, {16 * ti}")
        a("v_lshlrev_b32 v2, 2, v22")
        a("v_add_u32 v2, s49, v2")
        a("v_lshrrev_b32 v3, 5, v2")
        a("v_mul_u32_u24 v3, 1344, v3")
        a("v_bfe_u32 v2, v2, 2, 3")
        a("v_bfe_u32 v4, v2, 1, 1")
        a("v_lshl_add_u32 v10, v4, 3, v3")
        a("v_lshrrev_b32 v4, 1, v2")
        a("v_and_b32 v4, 2, v4")
        a("v_and_b32 v2, 1, v2")
        a("v_or_b32 v11, v2, v4")
        for ni in range(5):
            d = ACC + 4 * (ni * 3 + ti)
            a(f"v_cvt_pk_bf16_f32 v{d}, v{d}, v{d + 1}")
            a(f"v_cvt_pk_bf16_f32 v{d + 1}, v{d + 2}, v{d + 3}")
            a(f"v_xor_b32 v6, v11, v{NO + 5 + ni}")
            a("v_lshlrev_b32 v6, 4, v6")
            a(f"v_add3_u32 v6, v6, v10, v{NO + ni}")
            a(f"ds_write_b64 v6, {vr(d, 2)}")
            if ni < 4:
                a("v_xor_b32 v7, 1, v11")
                a("v_lshlrev_b32 v7, 4, v7")
                a(f"v_add3_u32 v7, v7, v10, v{NO + ni}")
                a(f"v_cmp_eq_u32 vcc, 0, v{NO + 10 + ni}")
                a("s_and_saveexec_b64 s[50:51], vcc")
                a("ds_write_b64 v7, v[8:9] offset:1280")
                a("s_mov_b64 exec, s[50:51]")
    a("s_mul_i32 s52, s26, 8064")
    a("s_and_b32 s46, s25, 3")
    a("s_lshl_b32 s46, s46, 3")
    a("s_add_u32 s46, s46, s26")
    a(f"s_mul_i32 s53, s46, {HEAD_KV}")
    a("s_mul_i32 s47, s30, 90")
    a("s_add_u32 s53, s53, s47")
    a("s_add_u32 s53, s53, 1536")
    a("s_mov_b32 s54, 781")
    a("s_mov_b32 s55, 1536")
    a("s_mov_b32 s56, 0")
    a("s_sub_u32 s57, 2048, s30")
    a("s_min_u32 s57, s57, 192")
    a("s_lshr_b32 s57, s57, 5")
    a("s_mul_i32 s57, s57, 84")
    a("s_mov_b32 s58, 1000")
    a.label("K1_COPY")
    a("s_mov_b32 s59, 160")
    for it in range(9):
        ga = 24 + it
        la = 34 + it
        a(f"v_add_u32 v2, {64 * it}, v1")
        a("v_mul_lo_u32 v3, v2, s54")
        a("v_lshrrev_b32 v3, 16, v3")
        a("v_lshlrev_b32 v4, 4, v2")
        a("v_mul_lo_u32 v5, v3, s55")
        a(f"v_add3_u32 v{ga}, v4, v5, s53")
        a("v_mul_lo_u32 v5, v3, s56")
        a(f"v_add3_u32 v{la}, v4, v5, s52")
        a("v_mul_lo_u32 v5, v3, s59")
        a("v_sub_u32 v5, v2, v5")
        a("v_cmp_gt_u32 vcc, s57, v2")
        a("v_cmp_gt_i32 s[50:51], s58, v5")
        a("s_and_b64 vcc, vcc, s[50:51]")
        a("v_bfrev_b32 v5, 1")
        a(f"v_cndmask_b32 v{ga}, v5, v{ga}, vcc")
    a("s_waitcnt lgkmcnt(0)")
    a("s_barrier")
    for it in range(9):
        a(f"ds_read_b128 {vr(48 + 4 * it, 4)}, v{34 + it}")
    for it in range(9):
        a(f"s_waitcnt lgkmcnt({8 - it})")
        a(f"buffer_store_dwordx4 {vr(48 + 4 * it, 4)}, v{24 + it}, s[20:23], 0 offen sc1")
    a.label("K1_PEND")
    prof(a, 12)
    a.label("K1_END")
    a("s_endpgm")
    a.label("K1_PACK")
    a("s_load_dwordx2 s[4:5], s[0:1], 16")
    a("s_load_dwordx2 s[6:7], s[0:1], 72")
    a("s_sub_u32 s3, s3, 253")
    a("s_mul_i32 s3, s3, 17408")
    a("v_add_u32 v1, s3, v0")
    a("v_lshlrev_b32 v2, 4, v1")
    a("s_mov_b32 s20, 52429")
    a("s_mov_b32 s21, 102400")
    a("v_bfrev_b32 v3, 1")
    a("s_waitcnt lgkmcnt(0)")
    srd(a, 12, 4, 5, SZ_WO)
    srd_off(a, 16, 6, 7, WS_WO, SZ_WO)
    for j in range(34):
        a(f"s_mov_b32 s22, {j * 8192}")
        a(f"buffer_load_dwordx4 {vr(24 + 4 * j, 4)}, v2, s[12:15], s22 offen")
    for j in range(34):
        a(f"v_add_u32 v4, {j * 512}, v1")
        a("v_mul_lo_u32 v5, v4, s20")
        a("v_lshrrev_b32 v5, 22, v5")
        a("v_mul_u32_u24 v6, 80, v5")
        a("v_sub_u32 v6, v4, v6")
        a("v_mul_u32_u24 v7, 6554, v6")
        a("v_lshrrev_b32 v7, 16, v7")
        a("v_mul_u32_u24 v8, 10, v7")
        a("v_sub_u32 v6, v6, v8")
        a("v_lshrrev_b32 v8, 1, v5")
        a("v_and_b32 v8, 4, v8")
        a("v_xor_b32 v5, v5, v8")
        a("v_mul_u32_u24 v5, 160, v5")
        a("v_mul_lo_u32 v7, v7, s21")
        a("v_lshl_add_u32 v5, v6, 4, v5")
        a("v_add_u32 v5, v5, v7")
        a("v_cmp_gt_u32 vcc, 51200, v4")
        a(f"v_cndmask_b32 v{16 + (j & 3)}, v3, v5, vcc")
        a("s_waitcnt vmcnt(33)")
        a(f"buffer_store_dwordx4 {vr(24 + 4 * j, 4)}, v{16 + (j & 3)}, s[16:19], 0 offen")
    a("s_endpgm")
    return a.text()


GS_SLOT = 9216


class GW:
    VA = 4
    VW = 8
    RA = 13
    RW = 14
    AF = 24
    WF = 40
    ACC = 60


def gw_setup(a, sR0, sC0B, strideA, sLds):
    a("v_lshrrev_b32 v22, 4, v1")
    a("v_and_b32 v23, 15, v1")
    a(f"v_lshlrev_b32 v{GW.VA}, 4, v1")
    a(f"v_add_u32 v{GW.VA + 1}, 4096, v{GW.VA}")
    a("v_lshrrev_b32 v2, 2, v23")
    a("v_sub_u32 v2, 0, v2")
    a("v_and_b32 v2, 3, v2")
    a("v_xor_b32 v2, v2, v22")
    a("v_lshlrev_b32 v2, 4, v2")
    a("v_lshl_add_u32 v2, v23, 6, v2")
    a(f"v_add_u32 v{GW.RA}, s{sLds}, v2")
    a("v_lshlrev_b32 v2, 3, v22")
    a("v_lshrrev_b32 v3, 2, v23")
    a("v_add_u32 v2, v2, v3")
    a("v_mul_u32_u24 v2, 160, v2")
    a("v_and_b32 v3, 3, v23")
    a("v_lshlrev_b32 v3, 3, v3")
    a("v_add_u32 v2, 4096, v2")
    a(f"v_add3_u32 v{GW.RW}, v2, v3, s{sLds}")


def gw_pieces(slot, srdA, srdW, sKA, sKW, sLds):
    g = []
    for i in range(4):
        g.append(([f"s_add_u32 m0, s{sLds}, {slot * GS_SLOT}", "s_nop 0"] if i == 0 else []) +
                 [f"buffer_load_dwordx4 v{GW.VA}, {sr(srdA, 4)}, s{sKA} offen offset:{1024 * i} lds"])
    for i in range(4):
        g.append(([f"s_add_u32 m0, s{sLds}, {slot * GS_SLOT + 4096}", "s_nop 0"] if i == 0 else []) +
                 [f"buffer_load_dwordx4 v{GW.VA}, {sr(srdW, 4)}, s{sKW} offen offset:{1024 * i} lds"])
    g.append([f"s_add_u32 m0, s{sLds}, {slot * GS_SLOT + 8192}", "s_nop 0",
              f"buffer_load_dwordx4 v{GW.VA + 1}, {sr(srdW, 4)}, s{sKW} offen lds",
              f"s_add_u32 s{sKA}, s{sKA}, 4096", f"s_add_u32 s{sKW}, s{sKW}, 5120"])
    return g


def gw_issue(a, slot, srdA, srdW, sKA, sKW, sLds):
    for p in gw_pieces(slot, srdA, srdW, sKA, sKW, sLds):
        for x in p:
            a(x)


def gw_compute_pipe(a, slot, first, pieces):
    for t in range(4):
        a(f"ds_read_b128 {vr(GW.AF + 4 * t, 4)}, v{GW.RA} offset:{slot * GS_SLOT + t * 1024}")
    for n in range(5):
        off = slot * GS_SLOT + n * 32
        a(f"ds_read_b64_tr_b16 {vr(GW.WF + 4 * n, 2)}, v{GW.RW} offset:{off}")
        a(f"ds_read_b64_tr_b16 {vr(GW.WF + 4 * n + 2, 2)}, v{GW.RW} offset:{off + 640}")
    a("s_waitcnt lgkmcnt(0)")
    pieces = list(pieces)
    i = 0
    for n in range(5):
        for t in range(4):
            d = GW.ACC + 4 * (n * 4 + t)
            c = "0" if first else vr(d, 4)
            a(f"v_mfma_f32_16x16x32_bf16 {vr(d, 4)}, {vr(GW.WF + 4 * n, 4)}, {vr(GW.AF + 4 * t, 4)}, {c}")
            i += 1
            if pieces and i % XP_FB == 0:
                for x in pieces.pop(0):
                    a(x)
    for p in pieces:
        for x in p:
            a(x)


def gw_compute_jit(a, slot, first):
    for t in range(4):
        a(f"ds_read_b128 {vr(GW.AF + 4 * t, 4)}, v{GW.RA} offset:{slot * GS_SLOT + t * 1024}")
    for n in range(5):
        off = slot * GS_SLOT + n * 32
        a(f"ds_read_b64_tr_b16 {vr(GW.WF + 4 * n, 2)}, v{GW.RW} offset:{off}")
        a(f"ds_read_b64_tr_b16 {vr(GW.WF + 4 * n + 2, 2)}, v{GW.RW} offset:{off + 640}")
        a("s_waitcnt lgkmcnt(0)")
        for t in range(4):
            d = GW.ACC + 4 * (n * 4 + t)
            c = "0" if first else vr(d, 4)
            a(f"v_mfma_f32_16x16x32_bf16 {vr(d, 4)}, {vr(GW.WF + 4 * n, 4)}, {vr(GW.AF + 4 * t, 4)}, {c}")


def gw_compute(a, slot, first):
    if XP_FJ:
        return gw_compute_jit(a, slot, first)
    for t in range(4):
        a(f"ds_read_b128 {vr(GW.AF + 4 * t, 4)}, v{GW.RA} offset:{slot * GS_SLOT + t * 1024}")
    for n in range(5):
        off = slot * GS_SLOT + n * 32
        a(f"ds_read_b64_tr_b16 {vr(GW.WF + 4 * n, 2)}, v{GW.RW} offset:{off}")
        a(f"ds_read_b64_tr_b16 {vr(GW.WF + 4 * n + 2, 2)}, v{GW.RW} offset:{off + 640}")
    a("s_waitcnt lgkmcnt(0)")
    for n in range(5):
        for t in range(4):
            d = GW.ACC + 4 * (n * 4 + t)
            c = "0" if first else vr(d, 4)
            a(f"v_mfma_f32_16x16x32_bf16 {vr(d, 4)}, {vr(GW.WF + 4 * n, 4)}, {vr(GW.AF + 4 * t, 4)}, {c}")


def gw_write_partials(a, sRed):
    a(f"v_add_u32 v2, s{sRed}, v{GW.VA}")
    for n in range(5):
        for t in range(4):
            d = GW.ACC + 4 * (n * 4 + t)
            a(f"ds_write_b128 v2, {vr(d, 4)} offset:{(n * 4 + t) * 1024}")


def gw_read_sum(a, sW4, redbase):
    a(f"s_lshl_b32 s60, s{sW4}, 10")
    a(f"s_add_u32 s60, s60, {redbase}")
    a(f"v_add_u32 v2, s60, v{GW.VA}")
    a(f"v_add_u32 v3, {2 * 20480}, v2")
    R = 24
    for src in range(4):
        for j in range(5):
            a(f"ds_read_b128 {vr(R + 20 * src + 4 * j, 4)}, v{2 + (src >> 1)} offset:{(src & 1) * 20480 + j * 4096}")
    a("s_waitcnt lgkmcnt(10)")
    for e in range(20):
        a(f"v_add_f32 v{R + e}, v{R + e}, v{R + 20 + e}")
    a("s_waitcnt lgkmcnt(0)")
    for e in range(20):
        a(f"v_add_f32 v{R + 40 + e}, v{R + 40 + e}, v{R + 60 + e}")
    for e in range(20):
        a(f"v_add_f32 v{R + e}, v{R + e}, v{R + 40 + e}")


def tile_map(a, sRt, sCt):
    if XP_QX:
        a("s_and_b32 s60, s2, 7")
        a("s_lshr_b32 s61, s2, 3")
        a("s_lshl_b32 s62, s60, 2")
        a("s_lshr_b32 s63, s61, 3")
        a(f"s_add_u32 s{sRt}, s62, s63")
        a(f"s_and_b32 s{sCt}, s61, 7")
        return
    a("s_and_b32 s60, s2, 7")
    a("s_lshr_b32 s61, s2, 3")
    a("s_lshr_b32 s62, s60, 1")
    a("s_lshl_b32 s62, s62, 3")
    a("s_lshr_b32 s63, s61, 2")
    a(f"s_add_u32 s{sRt}, s62, s63")
    a("s_and_b32 s62, s60, 1")
    a("s_lshl_b32 s62, s62, 2")
    a("s_and_b32 s63, s61, 3")
    a(f"s_add_u32 s{sCt}, s62, s63")


K2_BUF = 24576
K2_FFN = 3 * K2_BUF
K2_FLAG = K2_FFN + 4 * 20480
K2_LDS = K2_FLAG + 64


def gate_compute(a, XV, GV, srow, srdG):
    a("v_mov_b32 v2, 0")
    for j in range(5):
        xv = XV + j
        gv = GV + j
        a(f"v_lshlrev_b32 v3, 16, v{xv}")
        a(f"v_and_b32 v19, 0xffff0000, v{xv}")
        a(f"v_lshlrev_b32 v127, 16, v{gv}")
        a(f"v_and_b32 v128, 0xffff0000, v{gv}")
        a("v_mul_f32 v3, v3, v127")
        a("v_mul_f32 v19, v19, v128")
        a("v_cvt_pk_bf16_f32 v3, v3, v19")
        a("v_lshlrev_b32 v19, 16, v3")
        a("v_and_b32 v3, 0xffff0000, v3")
        a("v_add_f32 v2, v2, v19")
        a("v_add_f32 v2, v2, v3")
    for sh in (1, 2, 4, 8):
        a("s_nop 1")
        a(f"v_add_f32_dpp v2, v2, v2 row_shr:{sh} row_mask:0xf bank_mask:0xf")
    a("s_nop 1")
    a("v_add_f32_dpp v2, v2, v2 row_bcast:15 row_mask:0xa bank_mask:0xf")
    a("s_nop 1")
    a("v_add_f32_dpp v2, v2, v2 row_bcast:31 row_mask:0xc bank_mask:0xf")
    a("s_nop 1")
    a("v_cvt_pk_bf16_f32 v2, v2, v2")
    a("v_lshlrev_b32 v2, 16, v2")
    a(f"v_mul_f32 v2, {f32bits(-LOG2E)}, v2")
    a("v_exp_f32 v2, v2")
    a("s_nop 0")
    a("v_add_f32 v2, 1.0, v2")
    a("v_rcp_f32 v2, v2")
    a("s_nop 0")
    a("v_cvt_pk_bf16_f32 v2, v2, v2")
    a("v_lshlrev_b32 v2, 16, v2")
    a(f"s_lshl_b32 s49, s{srow}, 2")
    a("v_mov_b32 v3, 0")
    a("v_cmp_eq_u32 vcc, 63, v1")
    a("s_and_saveexec_b64 s[50:51], vcc")
    a(f"buffer_store_dword v2, v3, {sr(srdG, 4)}, s49 offen")
    a("s_mov_b64 exec, s[50:51]")


def gate_compute2(a, XA, XB, GV, srow, srdG):
    GU = 24
    a("v_mov_b32 v2, 0")
    a("v_mov_b32 v3, 0")
    a("v_mov_b32 v19, 0x3f803f80")
    for j in range(5):
        a(f"v_lshlrev_b32 v{GU + 2 * j}, 16, v{GV + j}")
        a(f"v_and_b32 v{GU + 2 * j + 1}, 0xffff0000, v{GV + j}")
    for X, acc in ((XA, 2), (XB, 3)):
        for j in range(5):
            a(f"v_lshlrev_b32 v36, 16, v{X + j}")
            a(f"v_and_b32 v37, 0xffff0000, v{X + j}")
            a(f"v_pk_mul_f32 v[36:37], v[36:37], v[{GU + 2 * j}:{GU + 2 * j + 1}]")
            a("v_cvt_pk_bf16_f32 v36, v36, v37")
            a(f"v_dot2_f32_bf16 v{acc}, v36, v19, v{acc}")
    for sh in (1, 2, 4, 8):
        a("s_nop 2" if sh == 1 else "s_nop 0")
        a(f"v_add_f32_dpp v2, v2, v2 row_shr:{sh} row_mask:0xf bank_mask:0xf")
        a(f"v_add_f32_dpp v3, v3, v3 row_shr:{sh} row_mask:0xf bank_mask:0xf")
    a("s_nop 0")
    a("v_add_f32_dpp v2, v2, v2 row_bcast:15 row_mask:0xa bank_mask:0xf")
    a("v_add_f32_dpp v3, v3, v3 row_bcast:15 row_mask:0xa bank_mask:0xf")
    a("s_nop 0")
    a("v_add_f32_dpp v2, v2, v2 row_bcast:31 row_mask:0xc bank_mask:0xf")
    a("v_add_f32_dpp v3, v3, v3 row_bcast:31 row_mask:0xc bank_mask:0xf")
    a("s_nop 1")
    a("v_cvt_pk_bf16_f32 v2, v2, v3")
    a("v_and_b32 v3, 0xffff0000, v2")
    a("v_lshlrev_b32 v2, 16, v2")
    a(f"v_mul_f32 v2, {f32bits(-LOG2E)}, v2")
    a(f"v_mul_f32 v3, {f32bits(-LOG2E)}, v3")
    a("v_exp_f32 v2, v2")
    a("v_exp_f32 v3, v3")
    a("s_nop 0")
    a("v_add_f32 v2, 1.0, v2")
    a("v_add_f32 v3, 1.0, v3")
    a("v_rcp_f32 v2, v2")
    a("v_rcp_f32 v3, v3")
    a("s_nop 0")
    a("v_cvt_pk_bf16_f32 v2, v2, v3")
    a("v_and_b32 v3, 0xffff0000, v2")
    a("v_lshlrev_b32 v2, 16, v2")
    a(f"s_lshl_b32 s49, s{srow}, 2")
    a("v_mov_b32 v19, 0")
    a("v_cmp_eq_u32 vcc, 63, v1")
    a("s_and_saveexec_b64 s[50:51], vcc")
    a(f"buffer_store_dwordx2 v[2:3], v19, {sr(srdG, 4)}, s49 offen")
    a("s_mov_b64 exec, s[50:51]")


def k2():
    a = Asm()
    a.label("k2_kernel")
    if PROF:
        a("s_memtime s[86:87]")
    a("s_cmp_ge_u32 s2, 256")
    a("s_cbranch_scc1 K2_END")
    a("s_and_b32 s3, s2, 7")
    a("s_lshl_b32 s3, s3, 2")
    a("s_lshr_b32 s4, s2, 3")
    a("s_and_b32 s4, s4, 3")
    a("s_add_u32 s36, s3, s4")
    a("s_lshr_b32 s37, s2, 5")
    if XP_QX:
        a("s_lshr_b32 s36, s2, 3")
        a("s_and_b32 s37, s2, 7")
    a("s_load_dwordx2 s[4:5], s[0:1], 0")
    a("s_load_dwordx2 s[6:7], s[0:1], 48")
    a("s_load_dwordx2 s[8:9], s[0:1], 72")
    a("v_and_b32 v1, 63, v0")
    a("v_lshrrev_b32 v2, 6, v0")
    a("s_nop 0")
    a("v_readfirstlane_b32 s38, v2")
    a("s_waitcnt lgkmcnt(0)")
    a("s_cmp_ge_u32 s38, 8")
    a("s_cbranch_scc1 K2_FFN")
    a("s_setprio 1")
    srd_off(a, 12, 8, 9, WS_KV, SZ_KV)
    srd_off(a, 16, 8, 9, WS_Q, SZ_Q)
    srd_off(a, 20, 8, 9, WS_O, SZ_O)
    srd(a, 24, 4, 5, SZ_X)
    srd(a, 28, 6, 7, 1280)
    srd_off(a, 32, 8, 9, WS_G, SZ_G)
    prof_init(a, 8, 9, 38, 1)
    prof(a, 0)
    a("v_lshlrev_b32 v16, 4, v1")
    a("s_mul_i32 s46, s38, 3072")
    a(f"s_mul_i32 s45, s36, {HEAD_KV}")
    a("s_add_u32 s45, s45, s46")
    a("s_mov_b32 s44, s45")
    a("s_mov_b32 s41, 0")
    a(f"s_mov_b32 s42, {K2_BUF}")
    a(f"s_mov_b32 s43, {2 * K2_BUF}")
    a("s_mov_b32 s40, 0")
    a("v_and_b32 v17, 31, v1")
    a("v_lshrrev_b32 v18, 5, v1")
    a("s_lshl_b32 s47, s37, 8")
    a("s_lshl_b32 s48, s38, 5")
    a("s_add_u32 s47, s47, s48")
    a("v_add_u32 v2, s47, v17")
    a("v_mul_u32_u24 v2, 48, v2")
    a("s_mul_i32 s48, s36, 98304")
    a("v_add_u32 v2, s48, v2")
    a("v_lshl_add_u32 v3, v18, 4, v2")
    a("buffer_load_dwordx4 v[20:23], v3, s[16:19], 0 offen")
    a("buffer_load_dwordx2 v[24:25], v2, s[16:19], 0 offen offset:32")
    for sg in (41, 42):
        a(f"s_add_u32 m0, s{sg}, s46")
        a("s_nop 0")
        for j in range(3):
            a(f"buffer_load_dwordx4 v16, s[12:15], s44 offen offset:{1024 * j} lds")
        a("s_add_u32 s44, s44, 23040")
    a("v_mov_b32 v2, 0")
    a(f"v_mov_b32 v3, {K2_FLAG}")
    a("ds_write_b32 v3, v2")
    if not XP_GF:
        a("s_lshl_b32 s48, s37, 8")
        a("s_lshl_b32 s49, s36, 3")
        a("s_add_u32 s48, s48, s49")
        a("s_add_u32 s48, s48, s38")
        a("s_mul_i32 s49, s48, 1280")
        a("v_mul_u32_u24 v2, 20, v1")
        a("buffer_load_dwordx4 v[116:119], v2, s[24:27], s49 offen")
        a("buffer_load_dword v120, v2, s[24:27], s49 offen offset:16")
        a("buffer_load_dwordx4 v[122:125], v2, s[28:31], 0 offen")
        a("buffer_load_dword v126, v2, s[28:31], 0 offen offset:16")
    a("v_mul_u32_u24 v2, 48, v17")
    a("v_lshl_add_u32 v12, v18, 4, v2")
    a("v_add_u32 v13, 32, v2")
    if XP_K8:
        a("v_lshl_add_u32 v13, v18, 3, v13")
    a("v_bfe_u32 v3, v17, 2, 2")
    a("v_lshlrev_b32 v2, 6, v17")
    a("v_add_u32 v2, 1536, v2")
    a("v_xor_b32 v19, v18, v3")
    a("v_lshl_add_u32 v14, v19, 4, v2")
    a("v_add_u32 v19, 2, v18")
    a("v_xor_b32 v19, v19, v3")
    a("v_lshl_add_u32 v15, v19, 4, v2")
    a("s_waitcnt vmcnt(6)" if (XP_GF and XP_ES) else "s_waitcnt vmcnt(0)")
    if not XP_GF:
        gate_compute(a, 116, 122, 48, 32)
    a("v_cmp_eq_u32 vcc, 0, v18")
    a("s_nop 1")
    a("v_cndmask_b32 v24, 0, v24, vcc")
    a("v_cndmask_b32 v25, 0, v25, vcc")
    a("v_mov_b32 v26, 0")
    a("v_mov_b32 v27, 0")
    a("s_mov_b32 s39, 0")

    QF0, QF1 = 20, 24
    KF = (28, 36)
    VF = (44, 52)
    P = 60
    S = (68, 84)
    O = 100

    def dma_stage(lds_sreg):
        a(f"s_add_u32 m0, s{lds_sreg}, s46")
        a("s_nop 0")
        for j in range(3):
            a(f"buffer_load_dwordx4 v16, s[12:15], s44 offen offset:{1024 * j} lds")
        a("s_add_u32 s44, s44, 23040")

    def set_addrs(dst, sbase):
        for i in range(4):
            a(f"v_add_u32 v{dst + i}, s{sbase}, v{12 + i}")

    def kread(st, idx):
        base = 4 if idx < 8 else 8
        off = (idx % 8) * 2880
        if XP_K8:
            return [f"ds_read_b128 {vr(KF[st], 4)}, v{base} offset:{off}",
                    f"ds_read_b64 {vr(KF[st] + 4, 2)}, v{base + 1} offset:{off}"]
        return [f"ds_read_b128 {vr(KF[st], 4)}, v{base} offset:{off}",
                f"ds_read_b128 {vr(KF[st] + 4, 4)}, v{base + 1} offset:{off}"]

    def qk2(st, sd):
        if XP_K8:
            return f"v_mfma_f32_32x32x8bf16_1k {vr(sd, 16)}, {vr(KF[st] + 4, 2)}, {vr(QF1, 2)}, {vr(sd, 16)}"
        return f"v_mfma_f32_32x32x16_bf16 {vr(sd, 16)}, {vr(KF[st] + 4, 4)}, {vr(QF1, 4)}, {vr(sd, 16)}"

    def vread(st, idx):
        base = 4 if idx < 8 else 8
        off = (idx % 8) * 2880
        return [f"ds_read_b128 {vr(VF[st], 4)}, v{base + 2} offset:{off}",
                f"ds_read_b128 {vr(VF[st] + 4, 4)}, v{base + 3} offset:{off}"]

    def qk(st, sst):
        a(f"v_mfma_f32_32x32x16_bf16 {vr(S[sst], 16)}, {vr(KF[st], 4)}, {vr(QF0, 4)}, 0")
        a(qk2(st, S[sst]))

    def set_m_from(mreg):
        a(f"v_mov_b32 v3, v{mreg}")
        a("s_nop 1")
        a(f"v_permlane32_swap_b32 v{mreg}, v3")
        a("s_nop 1")
        a(f"v_max_f32 v2, v{mreg}, v3")
        a("v_and_b32 v3, 0xffff0000, v2")
        a("v_sub_f32 v2, v2, v3")
        a("v_and_b32 v19, 0xffff0000, v2")
        a("v_sub_f32 v2, v2, v19")
        a("v_xor_b32 v3, 0x80000000, v3")
        a("v_xor_b32 v19, 0x80000000, v19")
        a("v_xor_b32 v2, 0x80000000, v2")
        a("v_lshrrev_b32 v3, 16, v3")
        a("v_or_b32 v3, v3, v19")
        a("v_lshrrev_b32 v2, 16, v2")
        a("v_cmp_eq_u32 vcc, 0, v18")
        a("s_nop 1")
        if XP_K8:
            a("v_cndmask_b32 v24, v3, v24, vcc")
            a("v_cndmask_b32 v25, v2, v25, vcc")
        else:
            a("v_cndmask_b32 v26, 0, v3, vcc")
            a("v_cndmask_b32 v27, 0, v2, vcc")
        a("s_nop 1")

    def start_stream():
        a("s_mov_b32 s44, s45")
        a("s_mov_b32 s41, 0")
        a(f"s_mov_b32 s42, {K2_BUF}")
        a(f"s_mov_b32 s43, {2 * K2_BUF}")
        dma_stage(41)
        dma_stage(42)
        set_addrs(4, 41)
        set_addrs(8, 42)
        a("s_mov_b32 s40, 0")

    def stage_head(lbl):
        if XP_ES:
            a("s_cmp_eq_u32 s40, 0")
            a(f"s_cbranch_scc1 {lbl}_W0")
            a("s_waitcnt vmcnt(0)")
            a.label(lbl + "_W0")
            a("s_waitcnt vmcnt(3) lgkmcnt(0)")
        else:
            a("s_waitcnt vmcnt(0) lgkmcnt(0)")
        if XP_NOBAR:
            a("s_cmp_lg_u32 s40, 0")
            a(f"s_cbranch_scc1 {lbl}_NB")
        a("s_barrier")
        if XP_NOBAR:
            a.label(lbl + "_NB")
        a(f"s_cmp_ge_u32 s40, {1 if XP_NODMA else 6}")
        a(f"s_cbranch_scc1 {lbl}")
        dma_stage(43)
        a.label(lbl)

    def stage_rotate():
        a("s_mov_b32 s47, s41")
        a("s_mov_b32 s41, s42")
        a("s_mov_b32 s42, s43")
        a("s_mov_b32 s43, s47")
        for i in range(4):
            a(f"v_mov_b32 v{4 + i}, v{8 + i}")
        set_addrs(8, 42)
        a("s_add_u32 s40, s40, 1")

    a.label("K2_MAIN")
    prof(a, 1)
    a("s_cmp_eq_u32 s39, 0")
    a("s_cbranch_scc1 K2_STARTED")
    start_stream()
    a.label("K2_STARTED")
    set_addrs(4, 41)
    set_addrs(8, 42)
    for i in range(16):
        a(f"v_mov_b32 v{O + i}, 0")
    for i in range(4):
        a(f"v_mov_b32 v{P + 4 + i}, 0")
        a(f"v_mov_b32 v{VF[1] + 4 + i}, 0")
    a.label("K2_STAGE")
    stage_head("K2_NODMA")
    a("s_cmp_lg_u32 s40, 0")
    a("s_cbranch_scc1 K2_BODY")
    for r in kread(0, 0):
        a(r)
    a("s_cmp_lg_u32 s39, 0")
    a("s_cbranch_scc1 K2_PRIME")
    a("s_waitcnt lgkmcnt(0)")
    qk(0, 0)
    a("s_nop 15")
    a("s_nop 3")
    s0 = S[0]
    a(f"v_max3_f32 v116, v{s0}, v{s0 + 1}, v{s0 + 2}")
    for i in range(3, 15, 2):
        a(f"v_max3_f32 v116, v116, v{s0 + i}, v{s0 + i + 1}")
    a(f"v_max_f32 v116, v116, v{s0 + 15}")
    set_m_from(116)
    a.label("K2_PRIME")
    for r in kread(1, 1):
        a(r)
    for r in vread(0, 0):
        a(r)
    a("s_waitcnt lgkmcnt(4)")
    qk(0, 0)
    a("s_nop 15")
    prof(a, 2)
    a.label("K2_BODY")

    def body(par):
        for t in range(8):
            c = t % 2
            n = 1 - c
            sc = S[c]
            sn = S[n]

            def ex(lo):
                for i in range(lo, lo + 4):
                    a(f"v_exp_f32 v{sc + i}, v{sc + i}")

            def cv(lo):
                for i in range(lo, lo + 4):
                    a(f"v_cvt_pk_bf16_f32 v{P + i}, v{sc + 2 * i}, v{sc + 2 * i + 1}")
            if XP_PRIO:
                a(f"s_setprio {2 if (t & 1) == par else 1}")
            if XP_PR and (t == 0 or XP_PR[t] != XP_PR[t - 1]):
                a(f"s_setprio {XP_PR[t]}")
            ex(0)
            a(f"v_mfma_f32_32x32x16_bf16 {vr(O, 16)}, {vr(VF[n] + 4, 4)}, {vr(P + 4, 4)}, {vr(O, 16)}")
            ex(4)
            a("s_waitcnt lgkmcnt(0)" if XP_K8 else "s_waitcnt lgkmcnt(2)")
            a(f"v_mfma_f32_32x32x16_bf16 {vr(sn, 16)}, {vr(KF[n], 4)}, {vr(QF0, 4)}, 0")
            cv(0)
            if XP_ES and t == 6:
                a("s_cmp_lg_u32 s40, 0")
                a(f"s_cbranch_scc1 K2_MID{par}")
                a("s_waitcnt vmcnt(3)")
                a("s_barrier")
                a.label(f"K2_MID{par}")
            if not XP_NOLDS:
                for r in kread(c, t + 2):
                    a(r)
                for r in vread(n, t + 1):
                    a(r)
            ex(8)
            a(qk2(n, sn))
            ex(12)
            if not XP_K8:
                a("s_waitcnt lgkmcnt(4)")
            a(f"v_mfma_f32_32x32x16_bf16 {vr(O, 16)}, {vr(VF[c], 4)}, {vr(P, 4)}, {vr(O, 16)}")
            cv(4)

    if XP_PRIO:
        a("s_cmp_ge_u32 s38, 4")
        a("s_cbranch_scc1 K2_BODY1")
        body(0)
        a("s_branch K2_BODYE")
        a.label("K2_BODY1")
        body(1)
        a.label("K2_BODYE")
    else:
        body(0)
    stage_rotate()
    if PROF:
        a("s_memtime s[88:89]")
        a("s_waitcnt lgkmcnt(0)")
        a("v_mov_b32 v2, s88")
        a("s_lshl_b32 s90, s40, 2")
        a("v_mov_b32 v3, s90")
        a("buffer_store_dword v2, v3, s[92:95], s91 offen offset:8")
    a("s_cmp_lt_u32 s40, 8")
    a("s_cbranch_scc1 K2_STAGE")
    a("s_nop 1")
    a(f"v_mfma_f32_32x32x16_bf16 {vr(O, 16)}, {vr(VF[1] + 4, 4)}, {vr(P + 4, 4)}, {vr(O, 16)}")
    a("s_nop 15")
    a("s_nop 3")
    a("s_cmp_lg_u32 s39, 0")
    a("s_cbranch_scc1 K2_EPI")
    a("v_mov_b32 v2, 0")
    for i in range(9):
        a(f"v_fma_f32 v2, v{O + i}, 0, v2")
    a("v_mov_b32 v3, 0")
    for i in range(9, 12):
        a(f"v_fma_f32 v3, v{O + i}, 0, v3")
    a("v_cmp_eq_u32 vcc, 0, v18")
    a("s_nop 1")
    a("v_cndmask_b32 v3, 0, v3, vcc")
    a("v_add_f32 v2, v2, v3")
    a("v_cmp_u_f32 vcc, v2, v2")
    a("s_nop 4")
    a("s_cbranch_vccz K2_VOTE")
    a("v_mov_b32 v2, 1")
    a(f"v_mov_b32 v3, {K2_FLAG}")
    a("ds_write_b32 v3, v2")
    a.label("K2_VOTE")
    a("s_branch K2_EPI")
    a.label("K2_FALL")
    a("s_barrier")
    a("v_mov_b32 v26, 0")
    a("v_mov_b32 v27, 0")
    a("v_cmp_eq_u32 vcc, 0, v18")
    a("s_nop 1")
    a("v_cndmask_b32 v24, 0, v24, vcc")
    a("v_cndmask_b32 v25, 0, v25, vcc")
    a(f"v_mov_b32 v117, {f32bits(float('-inf'))}")
    start_stream()
    a.label("K2_MSTAGE")
    stage_head("K2_MNODMA")
    for t in range(8):
        for r in kread(0, t):
            a(r)
        a("s_waitcnt lgkmcnt(0)")
        qk(0, 0)
        a("s_nop 15")
        a("s_nop 3")
        for i in range(0, 16, 2):
            a(f"v_max3_f32 v117, v117, v{s0 + i}, v{s0 + i + 1}")
    stage_rotate()
    a("s_cmp_lt_u32 s40, 8")
    a("s_cbranch_scc1 K2_MSTAGE")
    set_m_from(117)
    a("s_mov_b32 s39, 1")
    a("s_waitcnt vmcnt(0) lgkmcnt(0)")
    a("s_barrier")
    a("s_branch K2_MAIN")
    a.label("K2_EPI")
    a(f"v_mov_b32 v2, v{O + 8}")
    a(f"v_mov_b32 v3, v{O + 8}")
    a("s_nop 1")
    a("v_permlane32_swap_b32 v2, v3")
    a("s_nop 1")
    a("v_rcp_f32 v3, v3")
    a("s_nop 0")
    for i in range(12):
        a(f"v_mul_f32 v{O + i}, v{O + i}, v3")
    for i in range(6):
        a(f"v_cvt_pk_bf16_f32 v{P + i}, v{O + 2 * i}, v{O + 2 * i + 1}")
    a("s_lshl_b32 s47, s37, 8")
    a("s_lshl_b32 s48, s38, 5")
    a("s_add_u32 s47, s47, s48")
    a("v_add_u32 v2, s47, v17")
    a("v_mul_u32_u24 v2, 1280, v2")
    a("s_mul_i32 s48, s36, 40")
    a("v_lshl_add_u32 v2, v18, 3, v2")
    a("v_add_u32 v2, s48, v2")
    a(f"buffer_store_dwordx2 {vr(P, 2)}, v2, s[20:23], 0 offen")
    a(f"buffer_store_dwordx2 {vr(P + 2, 2)}, v2, s[20:23], 0 offen offset:16")
    a("v_cmp_eq_u32 vcc, 0, v18")
    a("s_and_saveexec_b64 s[50:51], vcc")
    a(f"buffer_store_dwordx2 {vr(P + 4, 2)}, v2, s[20:23], 0 offen offset:32")
    a("s_mov_b64 exec, s[50:51]")
    a("s_cmp_lg_u32 s39, 0")
    a("s_cbranch_scc1 K2_PEND")
    a("s_waitcnt lgkmcnt(0)")
    a("s_barrier")
    a(f"v_mov_b32 v3, {K2_FLAG}")
    a("ds_read_b32 v2, v3")
    a("s_waitcnt lgkmcnt(0)")
    a("v_readfirstlane_b32 s47, v2")
    a("s_cmp_lg_u32 s47, 0")
    a("s_cbranch_scc1 K2_FALL")
    a.label("K2_PEND")
    prof(a, 12)
    a.label("K2_END")
    a("s_endpgm")
    a.label("K2_FFN")
    if XP_NOFFN:
        a("s_endpgm")
    if XP_FP:
        a(f"s_setprio {XP_FP}")
    a("s_sub_u32 s38, s38, 8")
    if XP_GF:
        srd(a, 64, 4, 5, SZ_X)
        srd(a, 68, 6, 7, 1280)
        srd_off(a, 32, 8, 9, WS_G, SZ_G)
        a("s_lshl_b32 s48, s37, 8")
        a("s_lshl_b32 s49, s36, 3")
        a("s_add_u32 s48, s48, s49")
        a("s_lshl_b32 s49, s38, 1")
        a("s_add_u32 s48, s48, s49")
    a("s_load_dwordx2 s[6:7], s[0:1], 40")
    a("s_load_dwordx2 s[52:53], s[0:1], 16")
    tile_map(a, 36, 37)
    a("s_lshl_b32 s39, s36, 6")
    a("s_mul_i32 s40, s37, 160")
    a("s_mul_i32 s41, s38, 20480")
    a(f"s_add_u32 s41, s41, {K2_FFN}")
    a("s_mul_i32 s42, s38, 14")
    a("s_cmp_eq_u32 s38, 3")
    a("s_cselect_b32 s42, 41, s42")
    a("s_mul_i32 s45, s36, 54")
    a("s_add_u32 s45, s45, s42")
    a("s_lshl_b32 s45, s45, 12")
    a("s_mul_i32 s46, s42, 5120")
    a("s_mul_i32 s47, s37, 276480")
    a("s_add_u32 s46, s46, s47")
    a("s_waitcnt lgkmcnt(0)")
    srd_off(a, 16, 8, 9, WS_W2P, SZ_W2)
    srd_off(a, 24, 8, 9, WS_H, SZ_H)
    srd_off(a, 28, 8, 9, WS_B, SZ_B)
    gw_setup(a, 39, 40, 3456, 41)
    j = 0
    for k, ns in enumerate(XP_FS):
        a("s_barrier")
        if k == 0:
            if XP_GF:
                a("s_mul_i32 s49, s48, 1280")
                a("v_mul_u32_u24 v2, 20, v1")
                a("buffer_load_dwordx4 v[116:119], v2, s[64:67], s49 offen")
                a("buffer_load_dword v120, v2, s[64:67], s49 offen offset:16")
                a("buffer_load_dwordx4 v[122:125], v2, s[68:71], 0 offen")
                a("buffer_load_dword v126, v2, s[68:71], 0 offen offset:16")
                a("buffer_load_dwordx4 v[132:135], v2, s[64:67], s49 offen offset:1280")
                a("buffer_load_dword v136, v2, s[64:67], s49 offen offset:1296")
            gw_issue(a, 0, 24, 16, 45, 46, 41)
        if k == 1 and XP_PF and not XP_QX:
            srd(a, 52, 52, 53, SZ_WO)
            a("s_mul_i32 s56, s2, 3200")
            a("v_and_b32 v3, 255, v0")
            a("v_lshlrev_b32 v2, 7, v3")
            a("v_cmp_gt_u32 vcc, 25, v3")
            a("v_bfrev_b32 v3, 1")
            a("v_cndmask_b32 v2, v3, v2, vcc")
            a("buffer_load_dword v141, v2, s[52:55], s56 offen")
        for _ in range(ns):
            if XP_FPIPE:
                if j == 0:
                    gw_issue(a, 1, 24, 16, 45, 46, 41)
                    if XP_GF:
                        a("s_waitcnt vmcnt(18)")
                        gate_compute2(a, 116, 132, 122, 48, 32)
                        a("s_waitcnt vmcnt(10)")
                    else:
                        a("s_waitcnt vmcnt(9)")
                elif j < 13:
                    a("s_waitcnt vmcnt(9)")
                else:
                    a("s_waitcnt vmcnt(0)")
                    a("s_cmp_ge_u32 s38, 2")
                    a("s_cbranch_scc1 K2_FSKIP")
                gw_compute_pipe(a, j & 1, j == 0, gw_pieces(j & 1, 24, 16, 45, 46, 41) if j + 2 < 14 else [])
                if j == 0 and XP_ES:
                    a("s_barrier")
                j += 1
                continue
            if j < 13:
                gw_issue(a, (j + 1) & 1, 24, 16, 45, 46, 41)
                if j == 0 and XP_GF:
                    a("s_waitcnt vmcnt(18)")
                    gate_compute2(a, 116, 132, 122, 48, 32)
                    a("s_waitcnt vmcnt(10)")
                else:
                    a("s_waitcnt vmcnt(9)")
            else:
                a("s_waitcnt vmcnt(0)")
                a("s_cmp_ge_u32 s38, 2")
                a("s_cbranch_scc1 K2_FSKIP")
            gw_compute(a, j & 1, j == 0)
            if j == 0 and XP_ES:
                a("s_barrier")
            j += 1
    assert j == 14
    a.label("K2_FSKIP")
    if XP_FE:
        a(f"s_setprio {XP_FE}")
    a("s_nop 7")
    a("s_nop 3")
    a("s_waitcnt vmcnt(0)")
    gw_write_partials(a, 41)
    a("s_waitcnt lgkmcnt(0)")
    a("s_barrier")
    gw_read_sum(a, 38, K2_FFN)
    for e in range(0, 20, 2):
        a(f"v_cvt_pk_bf16_f32 v{112 + e // 2}, v{24 + e}, v{25 + e}")
    a("s_lshl_b32 s42, s36, 3")
    a("s_add_u32 s42, s42, s37")
    a("s_lshl_b32 s42, s42, 2")
    a("s_add_u32 s42, s42, s38")
    a("s_mul_i32 s42, s42, 2560")
    a("v_lshlrev_b32 v2, 3, v1")
    for n in range(5):
        a(f"buffer_store_dwordx2 {vr(112 + 2 * n, 2)}, v2, s[28:31], s42 offen offset:{512 * n}")
    if XP_PF2:
        srd_off(a, 52, 8, 9, WS_WO, SZ_WO)
        a("s_lshr_b32 s56, s2, 3")
        a("s_mul_i32 s56, s56, 12800")
        a("s_and_b32 s57, s2, 1")
        a("s_mul_i32 s57, s57, 409600")
        a("s_add_u32 s56, s56, s57")
        a("v_and_b32 v3, 255, v0")
        a("v_lshlrev_b32 v2, 7, v3")
        a("v_cmp_gt_u32 vcc, 100, v3")
        a("v_bfrev_b32 v3, 1")
        a("v_cndmask_b32 v2, v3, v2, vcc")
        a("buffer_load_dword v141, v2, s[52:55], s56 offen")
        a("s_waitcnt vmcnt(0)")
    a("s_endpgm")
    return a.text()


def wmap(a, dst, sC0B):
    a("v_mul_u32_u24 v3, 6554, v2")
    a("v_lshrrev_b32 v3, 16, v3")
    a("v_mul_u32_u24 v15, 10, v3")
    a("v_sub_u32 v2, v2, v15")
    a("v_lshrrev_b32 v15, 1, v3")
    a("v_and_b32 v15, 4, v15")
    a("v_xor_b32 v3, v3, v15")
    a("v_lshlrev_b32 v2, 4, v2")
    a("v_mul_u32_u24 v3, 1280, v3")
    a(f"v_add3_u32 v{dst}, v2, v3, s{sC0B}")


def wread_addr(a, d0, d1, sBase):
    a("v_lshlrev_b32 v2, 3, v22")
    a("v_lshrrev_b32 v3, 2, v23")
    a("v_add_u32 v2, v2, v3")
    a("v_mul_u32_u24 v2, 160, v2")
    a("v_and_b32 v3, 3, v23")
    a("v_lshlrev_b32 v3, 3, v3")
    a(f"v_add3_u32 v2, v2, v3, s{sBase}")
    a("v_and_b32 v3, 1, v22")
    a("v_mul_u32_u24 v3, 640, v3")
    a(f"v_add_u32 v{d0}, v2, v3")
    a("v_sub_u32 v2, v2, v3")
    a(f"v_add_u32 v{d1}, 640, v2")


K3_STG = 36864
K3_B = 4 * K3_STG
K3_LDS = K3_B + 10240


def k3():
    a = Asm()
    a.label("k3_kernel")
    if PROF:
        a("s_memtime s[86:87]")
    a("s_cmp_ge_u32 s2, 256")
    a("s_cbranch_scc1 K3_END")
    a("s_load_dwordx2 s[4:5], s[0:1], 16")
    a("s_load_dwordx2 s[8:9], s[0:1], 72")
    a("s_load_dwordx2 s[10:11], s[0:1], 56")
    tile_map(a, 36, 37)
    a("v_and_b32 v1, 63, v0")
    a("v_lshrrev_b32 v2, 6, v0")
    a("v_lshrrev_b32 v22, 4, v1")
    a("v_readfirstlane_b32 s38, v2")
    a("v_and_b32 v23, 15, v1")
    a("s_lshl_b32 s39, s36, 6")
    a("s_mul_i32 s40, s37, 160")
    a("s_and_b32 s49, s38, 3")
    a("s_lshr_b32 s50, s38, 2")
    a("s_lshl_b32 s42, s38, 3")
    for j in range(2):
        a(f"s_add_u32 s43, s42, {4 * j}")
        a("v_add_u32 v2, s43, v22")
        a("v_and_b32 v3, 15, v2")
        a("v_xor_b32 v3, v3, v23")
        a("v_add_u32 v2, s39, v2")
        a("v_mul_u32_u24 v2, 1280, v2")
        a(f"v_lshl_add_u32 v{4 + j}, v3, 4, v2")
    a("s_add_u32 s43, s38, 8")
    a("s_add_u32 s44, s38, 16")
    a("s_cmp_lt_u32 s38, 4")
    a("s_cselect_b32 s44, s44, s43")
    a("v_lshlrev_b32 v2, 4, v1")
    a("s_mul_i32 s55, s37, 102400")
    for j, sp in enumerate((38, 43, 44)):
        a(f"s_lshl_b32 s{52 + j}, s{sp}, 10")
        a(f"s_add_u32 s51, s{52 + j}, s55")
        a(f"v_add_u32 v{8 + j}, s51, v2")
        a(f"s_add_u32 s{52 + j}, s{52 + j}, 16384")
    a("s_lshl_b32 s45, s38, 11")
    a("s_waitcnt lgkmcnt(0)")
    srd_off(a, 12, 8, 9, WS_WO, SZ_WO)
    srd_off(a, 20, 8, 9, WS_O, SZ_O)
    srd_off(a, 24, 8, 9, WS_B, SZ_B)
    srd_off(a, 28, 8, 9, WS_G, SZ_G)
    srd(a, 32, 10, 11, SZ_OUT)
    prof_init(a, 8, 9, 38, 2)
    prof(a, 0)

    def issue(stage, slot):
        a(f"s_mov_b32 s47, {stage * 256}")
        a(f"s_mov_b32 s48, {stage * 20480}")
        for j in range(2):
            a(f"s_add_u32 m0, s45, {slot * K3_STG + j * 1024}")
            a("s_nop 0")
            a(f"buffer_load_dwordx4 v{4 + j}, s[20:23], s47 offen lds")
        for j in range(3):
            a(f"s_add_u32 m0, s{52 + j}, {slot * K3_STG}")
            a("s_nop 0")
            a(f"buffer_load_dwordx4 v{8 + j}, s[12:15], s48 offen lds")

    for st in range(4):
        issue(st, st)
    a("s_lshl_b32 s42, s36, 3")
    a("s_add_u32 s42, s42, s37")
    a("s_lshl_b32 s42, s42, 2")
    a("s_add_u32 s42, s42, s49")
    a("s_mul_i32 s42, s42, 2560")
    a("s_mul_i32 s43, s50, 1536")
    a("s_add_u32 s42, s42, s43")
    a("v_lshlrev_b32 v2, 3, v1")
    for n in range(3):
        a(f"buffer_load_dwordx2 {vr(104 + 2 * n, 2)}, v2, s[24:27], s42 offen offset:{512 * n}")
    a("s_lshl_b32 s42, s49, 4")
    a("v_add_u32 v2, s42, v23")
    a("v_add_u32 v3, s39, v2")
    a("v_lshlrev_b32 v3, 2, v3")
    a("buffer_load_dword v16, v3, s[28:31], 0 offen")
    a("v_mul_u32_u24 v2, 160, v2")
    a("v_lshl_add_u32 v2, v22, 3, v2")
    a("s_mul_i32 s43, s50, 96")
    a(f"s_add_u32 s43, s43, {K3_B}")
    a("v_add_u32 v17, s43, v2")
    for j in range(2):
        a("s_mul_i32 s43, s38, 80")
        a(f"s_add_u32 s43, s43, {64 * j}")
        a("v_add_u32 v2, s43, v1")
        a("v_mul_u32_u24 v3, 6554, v2")
        a("v_lshrrev_b32 v3, 16, v3")
        a("v_mul_u32_u24 v15, 10, v3")
        a("v_sub_u32 v15, v2, v15")
        a("v_lshlrev_b32 v15, 4, v15")
        a("v_add_u32 v3, s39, v3")
        a("v_mul_u32_u24 v3, 1280, v3")
        a(f"v_add3_u32 v{12 + j}, v3, v15, s40")
        a("v_lshlrev_b32 v2, 4, v2")
        a(f"v_add_u32 v{32 + j}, {K3_B}, v2")
    BV = 104
    RA, RW = 24, 28
    a("s_lshl_b32 s43, s49, 12")
    a("v_lshlrev_b32 v2, 8, v23")
    a("v_add_u32 v2, s43, v2")
    a("s_lshl_b32 s43, s50, 3")
    for i in range(2):
        a(f"s_add_u32 s44, s43, {4 * i}")
        a("v_add_u32 v3, s44, v22")
        a("v_xor_b32 v3, v3, v23")
        a(f"v_lshl_add_u32 v{RA + i}, v3, 4, v2")
        a(f"v_add_u32 v{RA + 2 + i}, {2 * K3_STG}, v{RA + i}")
    a("s_mul_i32 s43, s50, 10240")
    a("s_add_u32 s43, s43, 16384")
    wread_addr(a, RW, RW + 1, 43)
    a(f"v_add_u32 v{RW + 2}, {2 * K3_STG}, v{RW}")
    a(f"v_add_u32 v{RW + 3}, {2 * K3_STG}, v{RW + 1}")
    a("v_lshlrev_b32 v21, 4, v1")
    a("s_mul_i32 s43, s49, 5120")
    a(f"s_add_u32 s43, s43, {K3_STG}")
    a("v_add_u32 v21, s43, v21")
    AF = (36, 40)
    WF = (44, 64)
    ACC = 84

    def reads(t):
        st, i = t >> 1, t & 1
        slot = st % 4
        hi = slot >> 1
        so = (slot & 1) * K3_STG
        r = [f"ds_read_b128 {vr(AF[i], 4)}, v{RA + 2 * hi + i} offset:{so}"]
        for n in range(5):
            off = so + i * 5120 + n * 32
            r.append(f"ds_read_b64_tr_b16 {vr(WF[i] + 4 * n, 2)}, v{RW + 2 * hi} offset:{off}")
            r.append(f"ds_read_b64_tr_b16 {vr(WF[i] + 4 * n + 2, 2)}, v{RW + 2 * hi + 1} offset:{off}")
        return r

    def mf(t):
        for n in range(5):
            d = ACC + 4 * n
            c = "0" if t == 0 else vr(d, 4)
            a(f"v_mfma_f32_16x16x32_bf16 {vr(d, 4)}, {vr(WF[t & 1] + 4 * n, 4)}, {vr(AF[t & 1], 4)}, {c}")

    a("s_waitcnt vmcnt(19)")
    a("s_barrier")
    prof(a, 1)
    for r in reads(0) + reads(1):
        a(r)
    a("s_waitcnt vmcnt(4) lgkmcnt(0)")
    a("s_barrier")
    prof(a, 2)
    issue(4, 0)
    mf(0)
    for r in reads(2):
        a(r)
    mf(1)
    for t in range(2, 10):
        if t == 7:
            a("s_waitcnt vmcnt(0)")
            a("s_barrier")
            prof(a, 3)
        if t < 9:
            for r in reads(t + 1):
                a(r)
            a("s_waitcnt lgkmcnt(11)")
        else:
            a("s_waitcnt lgkmcnt(0)")
        mf(t)
    a("v_sub_f32 v18, 1.0, v16")
    a("v_cvt_pk_bf16_f32 v18, v18, v18")
    a("v_lshlrev_b32 v18, 16, v18")
    a("s_nop 7")
    prof(a, 6)
    XR = 44
    a("s_cmp_eq_u32 s50, 0")
    a("s_cbranch_scc0 K3_X1")
    for n in (3, 4):
        a(f"ds_write_b128 v21, {vr(ACC + 4 * n, 4)} offset:{1024 * n}")
    a("s_waitcnt lgkmcnt(0)")
    a("s_barrier")
    for n in range(3):
        a(f"ds_read_b128 {vr(XR + 4 * n, 4)}, v21 offset:{1024 * n}")
    a("s_branch K3_FIN")
    a.label("K3_X1")
    for n in range(3):
        a(f"ds_write_b128 v21, {vr(ACC + 4 * n, 4)} offset:{1024 * n}")
    a("s_waitcnt lgkmcnt(0)")
    a("s_barrier")
    for n in (3, 4):
        a(f"ds_read_b128 {vr(XR + 4 * (n - 3), 4)}, v21 offset:{1024 * n}")
    for i in range(8):
        a(f"v_mov_b32 v{ACC + i}, v{ACC + 12 + i}")
    a.label("K3_FIN")
    a("s_waitcnt lgkmcnt(0)")
    for n in range(3):
        if n == 2:
            a("s_cmp_eq_u32 s50, 0")
            a("s_cbranch_scc0 K3_CP")
        for i in range(4):
            a(f"v_add_f32 v{ACC + 4 * n + i}, v{ACC + 4 * n + i}, v{XR + 4 * n + i}")
        for h in range(2):
            e = ACC + 4 * n + 2 * h
            bp = BV + 2 * n + h
            a(f"v_cvt_pk_bf16_f32 v19, v{e}, v{e + 1}")
            a("v_lshlrev_b32 v4, 16, v19")
            a("v_and_b32 v5, 0xffff0000, v19")
            a(f"v_lshlrev_b32 v6, 16, v{bp}")
            a(f"v_and_b32 v7, 0xffff0000, v{bp}")
            a("v_mul_f32 v4, v16, v4")
            a("v_mul_f32 v5, v16, v5")
            a("v_mul_f32 v6, v18, v6")
            a("v_mul_f32 v7, v18, v7")
            a("v_cvt_pk_bf16_f32 v19, v4, v5")
            a("v_cvt_pk_bf16_f32 v20, v6, v7")
            a("v_lshlrev_b32 v4, 16, v19")
            a("v_and_b32 v5, 0xffff0000, v19")
            a("v_lshlrev_b32 v6, 16, v20")
            a("v_and_b32 v7, 0xffff0000, v20")
            a("v_add_f32 v4, v4, v6")
            a("v_add_f32 v5, v5, v7")
            a(f"v_cvt_pk_bf16_f32 v{bp}, v4, v5")
        a(f"ds_write_b64 v17, {vr(BV + 2 * n, 2)} offset:{32 * n}")
    a.label("K3_CP")
    a("s_waitcnt lgkmcnt(0)")
    a("s_barrier")
    a("ds_read_b128 v[4:7], v32")
    a("ds_read_b128 v[8:11], v33")
    a("s_waitcnt lgkmcnt(1)")
    a("buffer_store_dwordx4 v[4:7], v12, s[32:35], 0 offen")
    a("v_cmp_gt_u32 vcc, 16, v1")
    a("s_and_saveexec_b64 s[50:51], vcc")
    a("s_waitcnt lgkmcnt(0)")
    a("buffer_store_dwordx4 v[8:11], v13, s[32:35], 0 offen")
    a("s_mov_b64 exec, s[50:51]")
    a.label("K3_PEND")
    prof(a, 12)
    a.label("K3_END")
    a("s_endpgm")
    return a.text()


def desc(name, vgpr, sgpr=96):
    acc = (vgpr + 3) // 4 * 4
    return f""".amdhsa_kernel {name}
  .amdhsa_next_free_vgpr {vgpr}
  .amdhsa_next_free_sgpr {sgpr}
  .amdhsa_accum_offset {acc}
  .amdhsa_group_segment_fixed_size 0
  .amdhsa_kernarg_size 80
  .amdhsa_user_sgpr_count 2
  .amdhsa_user_sgpr_kernarg_segment_ptr 1
  .amdhsa_system_sgpr_workgroup_id_x 1
.end_amdhsa_kernel
"""


def main():
    hdr = f"""; gated_mix__mha_block__dense_activation_relu__prompt : 3 kernels (generated by gen.py, hand-designed)
; @launch kernel=k1_kernel grid=(256,1,1) block=(512,1,1) lds={K1_LDS}
; @launch kernel=k2_kernel grid=(256,1,1) block=(768,1,1) lds={K2_LDS}
; @launch kernel=k3_kernel grid=(256,1,1) block=(512,1,1) lds={K3_LDS}
.amdgcn_target "amdgcn-amd-amdhsa--gfx950"
.text
"""
    body = ""
    for name, fn in (("k1_kernel", k1), ("k2_kernel", k2), ("k3_kernel", k3)):
        body += f".globl {name}\n.p2align 8\n.type {name},@function\n" + fn()
    tail = '.section .rodata,"a"\n.p2align 6\n'
    tail += desc("k1_kernel", 176)
    tail += ".p2align 6\n" + desc("k2_kernel", 144)
    tail += ".p2align 6\n" + desc("k3_kernel", 116)
    open(OUT, "w").write(hdr + body + tail)


if __name__ == "__main__":
    main()
```

```python
import struct, sys

OUT = sys.argv[1] if len(sys.argv) > 1 else "gated_mix__mha_block__dense_activation_relu__prompt.s"

WS_Q = 0
SZ_Q = 32 * 2048 * 48
WS_KV = 0x400000
HEAD_KV = 64 * 2880
SZ_KV = 32 * HEAD_KV
WS_H = 0xC00000
SZ_H = 2048 * 3456
WS_O = 0x1400000
SZ_O = 2048 * 1280
WS_G = 0x1800000
SZ_G = 2048 * 4
WS_B = 0x1A00000
SZ_B = 2048 * 1280
WS_WO = 0x1E00000
WS_W2P = 0x2400000

SZ_X = 2048 * 1280
SZ_WQKV = 640 * 3840
SZ_WO = 640 * 1280
SZ_W1 = 640 * 3456
SZ_W2 = 1728 * 1280
SZ_OUT = 2048 * 1280


def f32bits(x):
    return struct.unpack("<I", struct.pack("<f", x))[0]


C_SCALE = 1.4426950408889634 / (20 ** 0.5)
LOG2E = 1.4426950408889634


PROF = int(__import__("os").environ.get("PROF", "0"))
WS_T = 0x2000000
XP_PF = int(__import__("os").environ.get("XP_PF", "0"))
XP_ROT = int(__import__("os").environ.get("XP_ROT", "1"))
XP_PRIO = int(__import__("os").environ.get("XP_PRIO", "0"))
XP_RPM = int(__import__("os").environ.get("XP_RPM", "1"))
XP_DSL = eval(__import__("os").environ.get("XP_DSL", "(7, 10, 13)"))
XP_FDEL = int(__import__("os").environ.get("XP_FDEL", "1"))
XP_FS = eval(__import__("os").environ.get("XP_FS", "(1, 3, 3, 3, 2, 2)"))
XP_QX = int(__import__("os").environ.get("XP_QX", "0"))
XP_PF2 = int(__import__("os").environ.get("XP_PF2", "0"))
XP_NOLDS = int(__import__("os").environ.get("XP_NOLDS", "0"))
XP_NOFFN = int(__import__("os").environ.get("XP_NOFFN", "0"))
XP_K8 = int(__import__("os").environ.get("XP_K8", "1"))
XP_PR = eval(__import__("os").environ.get("XP_PR", "(3, 3, 3, 2, 2, 2, 1, 1)"))
XP_FP = int(__import__("os").environ.get("XP_FP", "0"))
XP_FE = int(__import__("os").environ.get("XP_FE", "3"))
XP_FPIPE = int(__import__("os").environ.get("XP_FPIPE", "1"))
XP_FB = int(__import__("os").environ.get("XP_FB", "2"))
XP_FUSE = int(__import__("os").environ.get("XP_FUSE", "1"))
XP_ES = int(__import__("os").environ.get("XP_ES", "1"))
XP_FJ = int(__import__("os").environ.get("XP_FJ", "1"))
XP_GF = int(__import__("os").environ.get("XP_GF", "1"))
XP_NODMA = int(__import__("os").environ.get("XP_NODMA", "0"))
XP_NOBAR = int(__import__("os").environ.get("XP_NOBAR", "0"))


def prof_init(a, wsl, wsh, wave_s, kidx=0):
    if not PROF:
        return
    a(f"s_add_u32 s92, s{wsl}, {WS_T + kidx * 0x100000}")
    a(f"s_addc_u32 s93, s{wsh}, 0")
    a("s_and_b32 s93, s93, 0xffff")
    a("s_mov_b32 s94, 0x100000")
    a("s_mov_b32 s95, 0x00020000")
    a("s_lshl_b32 s91, s2, 4")
    a(f"s_add_u32 s91, s91, s{wave_s}")
    a("s_lshl_b32 s91, s91, 7")


def prof(a, slot, tmpv=2):
    if not PROF:
        return
    a("s_memtime s[88:89]")
    a("s_waitcnt lgkmcnt(0)")
    a(f"v_mov_b32 v{tmpv}, s88")
    a(f"v_mov_b32 v{tmpv + 1}, 0")
    a(f"buffer_store_dword v{tmpv}, v{tmpv + 1}, s[92:95], s91 offen offset:{4 * slot}")
    if slot == 0:
        a(f"v_mov_b32 v{tmpv}, s86")
        a(f"buffer_store_dword v{tmpv}, v{tmpv + 1}, s[92:95], s91 offen offset:60")
    if slot in (0, 12):
        a("s_memrealtime s[88:89]")
        a("s_waitcnt lgkmcnt(0)")
        a(f"v_mov_b32 v{tmpv}, s88")
        a(f"buffer_store_dword v{tmpv}, v{tmpv + 1}, s[92:95], s91 offen offset:{4 * (13 if slot == 0 else 14)}")


class Asm:
    def __init__(self):
        self.lines = []

    def __call__(self, s):
        self.lines.append("    " + s)

    def label(self, l):
        self.lines.append(l + ":")

    def c(self, s):
        self.lines.append("    ; " + s)

    def text(self):
        return "\n".join(self.lines) + "\n"


def vr(b, n=1):
    return f"v{b}" if n == 1 else f"v[{b}:{b + n - 1}]"


def sr(b, n=1):
    return f"s{b}" if n == 1 else f"s[{b}:{b + n - 1}]"


def srd(a, d, lo, hi, size):
    a(f"s_mov_b32 s{d}, s{lo}")
    a(f"s_and_b32 s{d + 1}, s{hi}, 0xffff")
    a(f"s_mov_b32 s{d + 2}, {size}")
    a(f"s_mov_b32 s{d + 3}, 0x00020000")


def srd_off(a, d, lo, hi, off, size):
    a(f"s_add_u32 s{d}, s{lo}, {off}")
    a(f"s_addc_u32 s{d + 1}, s{hi}, 0")
    a(f"s_and_b32 s{d + 1}, s{d + 1}, 0xffff")
    a(f"s_mov_b32 s{d + 2}, {size}")
    a(f"s_mov_b32 s{d + 3}, 0x00020000")


K1_STAGE = 45056
K1_LDS = 3 * K1_STAGE


def k1():
    a = Asm()
    a.label("k1_kernel")
    if PROF:
        a("s_memtime s[86:87]")
    a("s_cmp_ge_u32 s2, 256")
    a("s_cbranch_scc1 K1_END")
    a("s_and_b32 s3, s2, 7")
    a("s_lshr_b32 s4, s2, 3")
    a("s_lshl_b32 s3, s3, 5")
    a("s_add_u32 s3, s3, s4")
    a("s_cmp_ge_u32 s3, 253")
    a("s_cbranch_scc1 K1_PACK")
    a("s_mul_i32 s25, s3, 373")
    a("s_lshr_b32 s25, s25, 12")
    a("s_mul_i32 s4, s25, 11")
    a("s_sub_u32 s24, s3, s4")
    a("s_load_dwordx2 s[4:5], s[0:1], 0")
    a("s_load_dwordx2 s[6:7], s[0:1], 8")
    a("s_load_dwordx2 s[8:9], s[0:1], 32")
    a("s_load_dwordx2 s[10:11], s[0:1], 72")
    a("s_load_dwordx2 s[64:65], s[0:1], 40")
    a("v_and_b32 v1, 63, v0")
    a("v_lshrrev_b32 v2, 6, v0")
    a("s_nop 0")
    a("v_readfirstlane_b32 s26, v2")
    a("s_mul_i32 s72, s3, 547")
    a("s_lshr_b32 s27, s25, 2")
    a("s_min_u32 s27, s27, 3")
    a("s_mul_i32 s30, s24, 192")
    a("s_waitcnt lgkmcnt(0)")
    srd(a, 12, 4, 5, SZ_X)
    a("s_sub_u32 s29, s25, 12")
    a(f"s_mov_b32 s18, {SZ_W1}")
    a("s_mov_b32 s28, 3456")
    a("s_cmp_lt_u32 s25, 12")
    a("s_cselect_b32 s16, s6, s8")
    a("s_cselect_b32 s17, s7, s9")
    a(f"s_cselect_b32 s18, {SZ_WQKV}, s18")
    a("s_cselect_b32 s28, 3840, s28")
    a("s_cselect_b32 s29, s25, s29")
    a("s_and_b32 s17, s17, 0xffff")
    a("s_mov_b32 s19, 0x00020000")
    a("s_mul_i32 s29, s29, 160")
    a(f"s_mov_b32 s31, {WS_KV}")
    a(f"s_mov_b32 s22, {SZ_KV}")
    a("s_cmp_eq_u32 s27, 0")
    a(f"s_cselect_b32 s31, {WS_Q}, s31")
    a(f"s_cselect_b32 s22, {SZ_Q}, s22")
    a("s_cmp_eq_u32 s27, 3")
    a(f"s_cselect_b32 s31, {WS_H}, s31")
    a(f"s_cselect_b32 s22, {SZ_H}, s22")
    a("s_add_u32 s20, s10, s31")
    a("s_addc_u32 s21, s11, 0")
    a("s_and_b32 s21, s21, 0xffff")
    a("s_mov_b32 s23, 0x00020000")
    prof_init(a, 10, 11, 26, 0)
    prof(a, 0)
    a("s_and_b32 s65, s65, 0xffff")
    a(f"s_mov_b32 s66, {SZ_W2}")
    a("s_mov_b32 s67, 0x00020000")
    srd_off(a, 68, 10, 11, WS_W2P, SZ_W2)
    a("v_add_u32 v164, s72, v0")
    a("v_add_u32 v165, 512, v164")
    a("v_bfrev_b32 v2, 1")
    a("v_cmp_gt_u32 vcc, 35, v0")
    a("v_lshlrev_b32 v166, 4, v164")
    a("v_cndmask_b32 v165, v2, v165, vcc")
    a("v_lshlrev_b32 v2, 4, v165")
    a("v_cndmask_b32 v167, v165, v2, vcc")
    a("s_lshr_b32 s32, s26, 1")
    a("s_and_b32 s33, s26, 1")
    a("v_lshrrev_b32 v2, 3, v1")
    a("v_and_b32 v3, 7, v1")
    a("v_xor_b32 v3, v3, v2")
    a("v_lshlrev_b32 v3, 4, v3")
    a("v_mul_u32_u24 v2, 1280, v2")
    a("v_add_u32 v4, v2, v3")
    a("v_add_u32 v5, 10240, v4")
    a("v_add_u32 v6, 20480, v4")
    a("s_mul_i32 s34, s26, 24")
    a("s_add_u32 s34, s34, s30")
    a("s_mul_i32 s34, s34, 1280")
    a("s_mov_b32 s35, 0")
    a("s_lshl_b32 s36, s28, 6")
    a("s_add_u32 s62, s34, 1280")
    a("s_mul_i32 s61, s28, 640")
    a("s_add_u32 s60, s24, s25")
    a("s_mul_i32 s63, s60, 43")
    a("s_lshr_b32 s63, s63, 7")
    a("s_mul_i32 s63, s63, 3")
    a("s_sub_u32 s60, s60, s63")
    a(f"s_mul_i32 s60, s60, {XP_ROT}")
    a("s_lshl_b32 s63, s60, 7")
    a("s_add_u32 s34, s34, s63")
    a("s_mul_i32 s35, s60, s36")
    a("s_add_u32 s37, s26, 8")
    a("s_add_u32 s38, s26, 16")
    a("s_cmp_lt_u32 s26, 4")
    a("s_cselect_b32 s38, s38, s37")
    a("s_lshl_b32 s39, s29, 1")
    for j, sidx in enumerate((26, 37, 38)):
        a(f"s_lshl_b32 s40, s{sidx}, 6")
        a("v_add_u32 v2, s40, v1")
        a("v_mul_u32_u24 v3, 3277, v2")
        a("v_lshrrev_b32 v3, 16, v3")
        a("v_mul_u32_u24 v22, 20, v3")
        a("v_sub_u32 v2, v2, v22")
        a("v_lshrrev_b32 v22, 2, v3")
        a("v_and_b32 v22, 2, v22")
        a("v_xor_b32 v2, v2, v22")
        a("v_lshlrev_b32 v2, 4, v2")
        a("v_mul_lo_u32 v3, v3, s28")
        a(f"v_add3_u32 v{7 + j}, v2, v3, s39")
    a("s_mul_i32 s41, s26, 3072")
    a("s_lshl_b32 s42, s26, 10")
    a("s_add_u32 s42, s42, 24576")
    a("s_lshl_b32 s43, s37, 10")
    a("s_add_u32 s43, s43, 24576")
    a("s_lshl_b32 s44, s38, 10")
    a("s_add_u32 s44, s44, 24576")

    def dma_pieces(buf):
        base = buf * K1_STAGE
        g = []
        for j in range(3):
            x = [f"s_add_u32 m0, s41, {base + j * 1024}", "s_nop 0",
                 f"buffer_load_dwordx4 v{4 + j}, s[12:15], s34 offen lds"]
            if j == 2:
                x += ["s_add_u32 s34, s34, 128", "s_sub_u32 s60, s34, 1280", "s_cmp_ge_u32 s34, s62",
                      "s_cselect_b32 s34, s60, s34"]
            g.append(x)
        for j in range(3):
            x = [f"s_add_u32 m0, s{42 + j}, {base}", "s_nop 0",
                 f"buffer_load_dwordx4 v{7 + j}, s[16:19], s35 offen lds"]
            if j == 2:
                x += ["s_add_u32 s35, s35, s36", "s_cmp_ge_u32 s35, s61", "s_cselect_b32 s35, 0, s35"]
            g.append(x)
        return g

    for b in range(3):
        for g in dma_pieces(b):
            for x in g:
                a(x)
    NPF = 2
    a("buffer_load_dwordx4 v[168:171], v166, s[64:67], 0 offen")
    a("buffer_load_dwordx4 v[172:175], v167, s[64:67], 0 offen")
    a("s_mov_b32 s72, 53687092")
    a("s_mov_b32 s73, 276480")
    for r in (164, 165):
        a(f"v_mul_hi_u32 v24, v{r}, s72")
        a("v_mul_u32_u24 v25, 80, v24")
        a(f"v_sub_u32 v25, v{r}, v25")
        a("v_mul_u32_u24 v26, 6554, v25")
        a("v_lshrrev_b32 v26, 16, v26")
        a("v_mul_u32_u24 v27, 10, v26")
        a("v_sub_u32 v25, v25, v27")
        a("v_mul_u32_u24 v24, 160, v24")
        a("v_mul_lo_u32 v26, v26, s73")
        a("v_lshl_add_u32 v24, v25, 4, v24")
        a("v_add_u32 v24, v24, v26")
        a(f"v_cmp_gt_u32 vcc, {1728 * 80}, v{r}")
        a("v_bfrev_b32 v26, 1")
        a(f"v_cndmask_b32 v{r}, v26, v24, vcc")
    if XP_PF > 1:
        NPF = 3
        a("s_lshr_b32 s45, s2, 3")
        a("s_mul_i32 s45, s45, 81920")
        a("v_lshlrev_b32 v2, 7, v0")
        a("buffer_load_dword v160, v2, s[12:15], s45 offen")
        a("v_add_u32 v3, 0x10000, v2")
        a("v_cmp_gt_u32 vcc, 128, v0")
        a("v_bfrev_b32 v22, 1")
        a("v_cndmask_b32 v3, v22, v3, vcc")
        a("buffer_load_dword v161, v3, s[12:15], s45 offen")
        a("v_mul_u32_u24 v2, 21846, v0")
        a("v_lshrrev_b32 v2, 16, v2")
        a("v_mul_u32_u24 v3, 3, v2")
        a("v_sub_u32 v3, v0, v3")
        a("v_lshlrev_b32 v3, 7, v3")
        a("s_mul_i32 s45, s24, 59")
        a("v_add_u32 v2, s45, v2")
        a("v_cmp_gt_u32 vcc, 177, v0")
        a("v_mul_lo_u32 v2, v2, s28")
        a("v_add3_u32 v2, v2, v3, s39")
        a("v_cndmask_b32 v2, v22, v2, vcc")
        a("buffer_load_dword v162, v2, s[16:19], 0 offen")
    a("v_lshrrev_b32 v22, 4, v1")
    a("v_and_b32 v23, 15, v1")
    a("s_mul_i32 s45, s32, 48")
    a("v_add_u32 v2, s45, v23")
    a("v_lshlrev_b32 v2, 7, v2")
    a("v_and_b32 v3, 7, v23")
    a("v_xor_b32 v3, v3, v22")
    a("v_lshlrev_b32 v3, 4, v3")
    a("v_add_u32 v10, v2, v3")
    a("v_xor_b32 v11, 64, v10")
    for b in (1, 2):
        a(f"v_add_u32 v{10 + 2 * b}, {b * K1_STAGE}, v10")
        a(f"v_add_u32 v{11 + 2 * b}, {b * K1_STAGE}, v11")
    a("v_lshlrev_b32 v2, 3, v22")
    a("v_lshrrev_b32 v3, 2, v23")
    a("v_add_u32 v2, v2, v3")
    a("v_mul_u32_u24 v2, 320, v2")
    a("v_and_b32 v3, 3, v23")
    a("v_lshlrev_b32 v3, 3, v3")
    a("s_mul_i32 s45, s33, 160")
    a("s_add_u32 s45, s45, 24576")
    a("v_add3_u32 v2, v2, v3, s45")
    a("v_and_b32 v3, 1, v22")
    a("v_lshlrev_b32 v3, 5, v3")
    a("s_cmp_eq_u32 s33, 0")
    a("s_cselect_b32 s45, 1, -1")
    a("v_mul_lo_u32 v3, v3, s45")
    a("v_add_u32 v16, v2, v3")
    a("v_sub_u32 v17, v2, v3")
    for b in (1, 2):
        a(f"v_add_u32 v{16 + 2 * b}, {b * K1_STAGE}, v16")
        a(f"v_add_u32 v{17 + 2 * b}, {b * K1_STAGE}, v17")

    XF = (24, 36)
    WF = (48, 68)
    ACC = 88

    def reads(buf, sub, st):
        r = []
        for ti in range(3):
            r.append(f"ds_read_b128 {vr(XF[st] + 4 * ti, 4)}, v{10 + 2 * buf + sub} offset:{ti * 2048}")
        for ni in range(5):
            ad = 16 + 2 * buf + (ni & 1)
            off = ni * 32 + sub * 10240
            r.append(f"ds_read_b64_tr_b16 {vr(WF[st] + 4 * ni, 2)}, v{ad} offset:{off}")
            r.append(f"ds_read_b64_tr_b16 {vr(WF[st] + 4 * ni + 2, 2)}, v{ad} offset:{off + 1280}")
        return r

    def mfmas(st, vor, first):
        m = []
        for ni in range(5):
            for ti in range(3):
                d = ACC + 4 * (ni * 3 + ti)
                c = "0" if first else vr(d, 4)
                w = vr(WF[st] + 4 * ni, 4)
                x = vr(XF[st] + 4 * ti, 4)
                if vor:
                    m.append(f"v_mfma_f32_16x16x32_bf16 {vr(d, 4)}, {x}, {w}, {c}")
                else:
                    m.append(f"v_mfma_f32_16x16x32_bf16 {vr(d, 4)}, {w}, {x}, {c}")
        return m

    def phase(ms, rs, ds):
        rs = list(rs)
        ds = list(ds)
        for i, m in enumerate(ms):
            a(m)
            for _ in range(XP_RPM):
                if rs:
                    a(rs.pop(0))
            if ds and i in XP_DSL:
                for x in ds.pop(0):
                    a(x)

    def loop(vor):
        a(f"s_waitcnt vmcnt({12 + NPF})")
        a("s_barrier")
        prof(a, 1)
        for r in reads(0, 0, 0):
            a(r)
        pend = []
        for ks in range(10):
            buf = ks % 3
            a("s_waitcnt lgkmcnt(0)")
            phase(mfmas(0, vor, ks == 0), reads(buf, 1, 1), pend)
            pend = []
            nxt = []
            if ks < 9:
                a(f"s_waitcnt vmcnt({(6 + NPF if ks in (0, 1, 3) else 6) if ks < 8 else 0}) lgkmcnt(0)")
                a("s_barrier")
                if ks == 2:
                    a("buffer_store_dwordx4 v[168:171], v164, s[68:71], 0 offen")
                    a("buffer_store_dwordx4 v[172:175], v165, s[68:71], 0 offen")
                prof(a, 2 + ks)
                nxt = reads((ks + 1) % 3, 0, 0)
            else:
                a("s_waitcnt lgkmcnt(0)")
            d = []
            if ks + 3 < 10:
                p = dma_pieces(buf)
                d = p[:3]
                pend = p[3:]
            phase(mfmas(1, vor, False), nxt, d)
        a("s_barrier")
        a("s_nop 7")
        a("s_nop 3")
        prof(a, 11)

    a("s_cmp_eq_u32 s27, 2")
    a("s_cbranch_scc1 K1_VLOOP")
    loop(False)
    a("s_mul_i32 s45, s32, 48")
    a("v_add_u32 v4, s45, v23")
    a("s_cmp_eq_u32 s27, 3")
    a("s_cbranch_scc1 K1_EPI_FFN")
    a("s_cmp_eq_u32 s27, 0")
    a(f"s_cselect_b32 s48, {f32bits(C_SCALE)}, 1.0")
    NO = 148
    a("v_mul_u32_u24 v4, 48, v4")
    a("s_mul_i32 s46, s33, 36864")
    a("v_add_u32 v4, s46, v4")
    for ni in range(5):
        a(f"v_add_u32 v2, {4 * ni}, v22")
        a("v_mul_u32_u24 v3, 13, v2")
        a("v_lshrrev_b32 v3, 6, v3")
        a("v_mul_u32_u24 v5, 5, v3")
        a(f"v_sub_u32 v{NO + 5 + ni}, v2, v5")
        a("v_mul_u32_u24 v3, 9216, v3")
        a(f"v_lshl_add_u32 v3, v{NO + 5 + ni}, 3, v3")
        a(f"v_add_u32 v{NO + ni}, v3, v4")
    a("v_mov_b32 v8, 0x3f803f80")
    a("v_mov_b32 v9, 0x00003f80")
    for ti in range(3):
        for ni in range(5):
            d = ACC + 4 * (ni * 3 + ti)
            for i in range(4):
                a(f"v_mul_f32 v{d + i}, s48, v{d + i}")
            a(f"v_cvt_pk_bf16_f32 v{d}, v{d}, v{d + 1}")
            a(f"v_cvt_pk_bf16_f32 v{d + 1}, v{d + 2}, v{d + 3}")
            a(f"ds_write_b64 v{NO + ni}, {vr(d, 2)} offset:{768 * ti}")
    for ni in range(1, 5):
        a(f"v_cmp_eq_u32 vcc, 4, v{NO + 5 + ni}")
        a("s_and_saveexec_b64 s[50:51], vcc")
        for ti in range(3):
            a(f"ds_write_b64 v{NO + ni}, v[8:9] offset:{768 * ti + 8}")
        a("s_mov_b64 exec, s[50:51]")
    a("s_mul_i32 s52, s26, 9216")
    a("s_and_b32 s46, s25, 3")
    a("s_lshl_b32 s46, s46, 3")
    a("s_add_u32 s46, s46, s26")
    a("s_sub_u32 s57, 2048, s30")
    a("s_min_u32 s57, s57, 192")
    a("s_mul_i32 s57, s57, 3")
    a("s_mov_b32 s56, 0")
    a("s_mov_b32 s58, 1000")
    a("s_cmp_eq_u32 s27, 0")
    a("s_cbranch_scc0 K1_CPK")
    a("s_mul_i32 s53, s46, 98304")
    a("s_mul_i32 s47, s30, 48")
    a("s_add_u32 s53, s53, s47")
    a("s_mov_b32 s54, 0")
    a("s_mov_b32 s55, 0")
    a("s_branch K1_COPY")
    a.label("K1_CPK")
    a(f"s_mul_i32 s53, s46, {HEAD_KV}")
    a("s_mul_i32 s47, s30, 90")
    a("s_add_u32 s53, s53, s47")
    a("s_mov_b32 s54, 683")
    a("s_mov_b32 s55, 1344")
    a("s_branch K1_COPY")
    a.label("K1_EPI_FFN")
    a("v_lshrrev_b32 v2, 2, v23")
    a("v_sub_u32 v2, 0, v2")
    a("v_and_b32 v2, 3, v2")
    a("v_and_b32 v3, 1, v22")
    a("v_lshlrev_b32 v3, 3, v3")
    a("v_lshl_add_u32 v3, v23, 6, v3")
    a("v_lshrrev_b32 v4, 1, v22")
    a("s_mul_i32 s46, s33, 10")
    for ni in range(5):
        a(f"s_add_u32 s47, s46, {2 * ni}")
        a("v_add_u32 v5, s47, v4")
        a("v_lshrrev_b32 v6, 2, v5")
        a("v_and_b32 v5, 3, v5")
        a("v_xor_b32 v5, v5, v2")
        a("v_lshl_add_u32 v6, v6, 12, v3")
        a(f"v_lshl_add_u32 v{148 + ni}, v5, 4, v6")
    for ti in range(3):
        a(f"s_add_u32 s46, s45, {16 * ti}")
        a("s_lshr_b32 s47, s46, 6")
        a("s_mul_i32 s47, s47, 20480")
        a("s_and_b32 s46, s46, 63")
        a("s_lshl_b32 s46, s46, 6")
        a("s_add_u32 s46, s46, s47")
        for ni in range(5):
            d = ACC + 4 * (ni * 3 + ti)
            for i in range(4):
                a(f"v_max_f32 v{d + i}, 0, v{d + i}")
            a(f"v_cvt_pk_bf16_f32 v{d}, v{d}, v{d + 1}")
            a(f"v_cvt_pk_bf16_f32 v{d + 1}, v{d + 2}, v{d + 3}")
            a(f"v_add_u32 v4, s46, v{148 + ni}")
            a(f"ds_write_b64 v4, {vr(d, 2)}")
    a("s_mul_i32 s52, s26, 2560")
    a("s_lshr_b32 s46, s30, 6")
    a("s_mul_i32 s46, s46, 54")
    a("s_lshr_b32 s47, s29, 5")
    a("s_add_u32 s46, s46, s47")
    a("s_lshl_b32 s53, s46, 12")
    a("s_add_u32 s53, s53, s52")
    a("s_mov_b32 s54, 410")
    a(f"s_mov_b32 s55, {221184 - 2560}")
    a(f"s_mov_b32 s56, {20480 - 2560}")
    a("s_sub_u32 s57, 2048, s30")
    a("s_min_u32 s57, s57, 192")
    a("s_lshr_b32 s57, s57, 6")
    a("s_mul_i32 s57, s57, 160")
    a("s_sub_u32 s58, 1728, s29")
    a("s_min_u32 s58, s58, 160")
    a("s_lshl_b32 s58, s58, 3")
    a("s_mul_i32 s47, s26, 160")
    a("s_sub_i32 s58, s58, s47")
    a("s_branch K1_COPY")
    a.label("K1_VLOOP")
    loop(True)
    a("s_mul_i32 s46, s33, 32256")
    for ni in range(5):
        a(f"v_add_u32 v2, {16 * ni}, v23")
        a("v_mul_u32_u24 v3, 205, v2")
        a("v_lshrrev_b32 v3, 12, v3")
        a("v_mul_u32_u24 v4, 20, v3")
        a(f"v_sub_u32 v{NO + 10 + ni}, v2, v4")
        a("v_mul_u32_u24 v3, 8064, v3")
        a(f"v_lshlrev_b32 v4, 6, v{NO + 10 + ni}")
        a(f"v_add3_u32 v{NO + ni}, v3, v4, s46")
        a(f"v_bfe_u32 v{NO + 5 + ni}, v{NO + 10 + ni}, 2, 2")
    a("v_mov_b32 v8, 0x3f803f80")
    a("v_mov_b32 v9, 0x3f803f80")
    a("s_mul_i32 s45, s32, 48")
    for ti in range(3):
        a(f"s_add_u32 s49, s45, {16 * ti}")
        a("v_lshlrev_b32 v2, 2, v22")
        a("v_add_u32 v2, s49, v2")
        a("v_lshrrev_b32 v3, 5, v2")
        a("v_mul_u32_u24 v3, 1344, v3")
        a("v_bfe_u32 v2, v2, 2, 3")
        a("v_bfe_u32 v4, v2, 1, 1")
        a("v_lshl_add_u32 v10, v4, 3, v3")
        a("v_lshrrev_b32 v4, 1, v2")
        a("v_and_b32 v4, 2, v4")
        a("v_and_b32 v2, 1, v2")
        a("v_or_b32 v11, v2, v4")
        for ni in range(5):
            d = ACC + 4 * (ni * 3 + ti)
            a(f"v_cvt_pk_bf16_f32 v{d}, v{d}, v{d + 1}")
            a(f"v_cvt_pk_bf16_f32 v{d + 1}, v{d + 2}, v{d + 3}")
            a(f"v_xor_b32 v6, v11, v{NO + 5 + ni}")
            a("v_lshlrev_b32 v6, 4, v6")
            a(f"v_add3_u32 v6, v6, v10, v{NO + ni}")
            a(f"ds_write_b64 v6, {vr(d, 2)}")
            if ni < 4:
                a("v_xor_b32 v7, 1, v11")
                a("v_lshlrev_b32 v7, 4, v7")
                a(f"v_add3_u32 v7, v7, v10, v{NO + ni}")
                a(f"v_cmp_eq_u32 vcc, 0, v{NO + 10 + ni}")
                a("s_and_saveexec_b64 s[50:51], vcc")
                a("ds_write_b64 v7, v[8:9] offset:1280")
                a("s_mov_b64 exec, s[50:51]")
    a("s_mul_i32 s52, s26, 8064")
    a("s_and_b32 s46, s25, 3")
    a("s_lshl_b32 s46, s46, 3")
    a("s_add_u32 s46, s46, s26")
    a(f"s_mul_i32 s53, s46, {HEAD_KV}")
    a("s_mul_i32 s47, s30, 90")
    a("s_add_u32 s53, s53, s47")
    a("s_add_u32 s53, s53, 1536")
    a("s_mov_b32 s54, 781")
    a("s_mov_b32 s55, 1536")
    a("s_mov_b32 s56, 0")
    a("s_sub_u32 s57, 2048, s30")
    a("s_min_u32 s57, s57, 192")
    a("s_lshr_b32 s57, s57, 5")
    a("s_mul_i32 s57, s57, 84")
    a("s_mov_b32 s58, 1000")
    a.label("K1_COPY")
    a("s_mov_b32 s59, 160")
    for it in range(9):
        ga = 24 + it
        la = 34 + it
        a(f"v_add_u32 v2, {64 * it}, v1")
        a("v_mul_lo_u32 v3, v2, s54")
        a("v_lshrrev_b32 v3, 16, v3")
        a("v_lshlrev_b32 v4, 4, v2")
        a("v_mul_lo_u32 v5, v3, s55")
        a(f"v_add3_u32 v{ga}, v4, v5, s53")
        a("v_mul_lo_u32 v5, v3, s56")
        a(f"v_add3_u32 v{la}, v4, v5, s52")
        a("v_mul_lo_u32 v5, v3, s59")
        a("v_sub_u32 v5, v2, v5")
        a("v_cmp_gt_u32 vcc, s57, v2")
        a("v_cmp_gt_i32 s[50:51], s58, v5")
        a("s_and_b64 vcc, vcc, s[50:51]")
        a("v_bfrev_b32 v5, 1")
        a(f"v_cndmask_b32 v{ga}, v5, v{ga}, vcc")
    a("s_waitcnt lgkmcnt(0)")
    a("s_barrier")
    for it in range(9):
        a(f"ds_read_b128 {vr(48 + 4 * it, 4)}, v{34 + it}")
    for it in range(9):
        a(f"s_waitcnt lgkmcnt({8 - it})")
        a(f"buffer_store_dwordx4 {vr(48 + 4 * it, 4)}, v{24 + it}, s[20:23], 0 offen sc1")
    a.label("K1_PEND")
    prof(a, 12)
    a.label("K1_END")
    a("s_endpgm")
    a.label("K1_PACK")
    a("s_load_dwordx2 s[4:5], s[0:1], 16")
    a("s_load_dwordx2 s[6:7], s[0:1], 72")
    a("s_sub_u32 s3, s3, 253")
    a("s_mul_i32 s3, s3, 17408")
    a("v_add_u32 v1, s3, v0")
    a("v_lshlrev_b32 v2, 4, v1")
    a("s_mov_b32 s20, 52429")
    a("s_mov_b32 s21, 102400")
    a("v_bfrev_b32 v3, 1")
    a("s_waitcnt lgkmcnt(0)")
    srd(a, 12, 4, 5, SZ_WO)
    srd_off(a, 16, 6, 7, WS_WO, SZ_WO)
    for j in range(34):
        a(f"s_mov_b32 s22, {j * 8192}")
        a(f"buffer_load_dwordx4 {vr(24 + 4 * j, 4)}, v2, s[12:15], s22 offen")
    for j in range(34):
        a(f"v_add_u32 v4, {j * 512}, v1")
        a("v_mul_lo_u32 v5, v4, s20")
        a("v_lshrrev_b32 v5, 22, v5")
        a("v_mul_u32_u24 v6, 80, v5")
        a("v_sub_u32 v6, v4, v6")
        a("v_mul_u32_u24 v7, 6554, v6")
        a("v_lshrrev_b32 v7, 16, v7")
        a("v_mul_u32_u24 v8, 10, v7")
        a("v_sub_u32 v6, v6, v8")
        a("v_lshrrev_b32 v8, 1, v5")
        a("v_and_b32 v8, 4, v8")
        a("v_xor_b32 v5, v5, v8")
        a("v_mul_u32_u24 v5, 160, v5")
        a("v_mul_lo_u32 v7, v7, s21")
        a("v_lshl_add_u32 v5, v6, 4, v5")
        a("v_add_u32 v5, v5, v7")
        a("v_cmp_gt_u32 vcc, 51200, v4")
        a(f"v_cndmask_b32 v{16 + (j & 3)}, v3, v5, vcc")
        a("s_waitcnt vmcnt(33)")
        a(f"buffer_store_dwordx4 {vr(24 + 4 * j, 4)}, v{16 + (j & 3)}, s[16:19], 0 offen")
    a("s_endpgm")
    return a.text()


GS_SLOT = 9216


class GW:
    VA = 4
    VW = 8
    RA = 13
    RW = 14
    AF = 24
    WF = 40
    ACC = 60


def gw_setup(a, sR0, sC0B, strideA, sLds):
    a("v_lshrrev_b32 v22, 4, v1")
    a("v_and_b32 v23, 15, v1")
    a(f"v_lshlrev_b32 v{GW.VA}, 4, v1")
    a(f"v_add_u32 v{GW.VA + 1}, 4096, v{GW.VA}")
    a("v_lshrrev_b32 v2, 2, v23")
    a("v_sub_u32 v2, 0, v2")
    a("v_and_b32 v2, 3, v2")
    a("v_xor_b32 v2, v2, v22")
    a("v_lshlrev_b32 v2, 4, v2")
    a("v_lshl_add_u32 v2, v23, 6, v2")
    a(f"v_add_u32 v{GW.RA}, s{sLds}, v2")
    a("v_lshlrev_b32 v2, 3, v22")
    a("v_lshrrev_b32 v3, 2, v23")
    a("v_add_u32 v2, v2, v3")
    a("v_mul_u32_u24 v2, 160, v2")
    a("v_and_b32 v3, 3, v23")
    a("v_lshlrev_b32 v3, 3, v3")
    a("v_add_u32 v2, 4096, v2")
    a(f"v_add3_u32 v{GW.RW}, v2, v3, s{sLds}")


def gw_pieces(slot, srdA, srdW, sKA, sKW, sLds):
    g = []
    for i in range(4):
        g.append(([f"s_add_u32 m0, s{sLds}, {slot * GS_SLOT}", "s_nop 0"] if i == 0 else []) +
                 [f"buffer_load_dwordx4 v{GW.VA}, {sr(srdA, 4)}, s{sKA} offen offset:{1024 * i} lds"])
    for i in range(4):
        g.append(([f"s_add_u32 m0, s{sLds}, {slot * GS_SLOT + 4096}", "s_nop 0"] if i == 0 else []) +
                 [f"buffer_load_dwordx4 v{GW.VA}, {sr(srdW, 4)}, s{sKW} offen offset:{1024 * i} lds"])
    g.append([f"s_add_u32 m0, s{sLds}, {slot * GS_SLOT + 8192}", "s_nop 0",
              f"buffer_load_dwordx4 v{GW.VA + 1}, {sr(srdW, 4)}, s{sKW} offen lds",
              f"s_add_u32 s{sKA}, s{sKA}, 4096", f"s_add_u32 s{sKW}, s{sKW}, 5120"])
    return g


def gw_issue(a, slot, srdA, srdW, sKA, sKW, sLds):
    for p in gw_pieces(slot, srdA, srdW, sKA, sKW, sLds):
        for x in p:
            a(x)


def gw_compute_pipe(a, slot, first, pieces):
    for t in range(4):
        a(f"ds_read_b128 {vr(GW.AF + 4 * t, 4)}, v{GW.RA} offset:{slot * GS_SLOT + t * 1024}")
    for n in range(5):
        off = slot * GS_SLOT + n * 32
        a(f"ds_read_b64_tr_b16 {vr(GW.WF + 4 * n, 2)}, v{GW.RW} offset:{off}")
        a(f"ds_read_b64_tr_b16 {vr(GW.WF + 4 * n + 2, 2)}, v{GW.RW} offset:{off + 640}")
    a("s_waitcnt lgkmcnt(0)")
    pieces = list(pieces)
    i = 0
    for n in range(5):
        for t in range(4):
            d = GW.ACC + 4 * (n * 4 + t)
            c = "0" if first else vr(d, 4)
            a(f"v_mfma_f32_16x16x32_bf16 {vr(d, 4)}, {vr(GW.WF + 4 * n, 4)}, {vr(GW.AF + 4 * t, 4)}, {c}")
            i += 1
            if pieces and i % XP_FB == 0:
                for x in pieces.pop(0):
                    a(x)
    for p in pieces:
        for x in p:
            a(x)


def gw_compute_jit(a, slot, first):
    for t in range(4):
        a(f"ds_read_b128 {vr(GW.AF + 4 * t, 4)}, v{GW.RA} offset:{slot * GS_SLOT + t * 1024}")
    for n in range(5):
        off = slot * GS_SLOT + n * 32
        a(f"ds_read_b64_tr_b16 {vr(GW.WF + 4 * n, 2)}, v{GW.RW} offset:{off}")
        a(f"ds_read_b64_tr_b16 {vr(GW.WF + 4 * n + 2, 2)}, v{GW.RW} offset:{off + 640}")
        a("s_waitcnt lgkmcnt(0)")
        for t in range(4):
            d = GW.ACC + 4 * (n * 4 + t)
            c = "0" if first else vr(d, 4)
            a(f"v_mfma_f32_16x16x32_bf16 {vr(d, 4)}, {vr(GW.WF + 4 * n, 4)}, {vr(GW.AF + 4 * t, 4)}, {c}")


def gw_compute(a, slot, first):
    if XP_FJ:
        return gw_compute_jit(a, slot, first)
    for t in range(4):
        a(f"ds_read_b128 {vr(GW.AF + 4 * t, 4)}, v{GW.RA} offset:{slot * GS_SLOT + t * 1024}")
    for n in range(5):
        off = slot * GS_SLOT + n * 32
        a(f"ds_read_b64_tr_b16 {vr(GW.WF + 4 * n, 2)}, v{GW.RW} offset:{off}")
        a(f"ds_read_b64_tr_b16 {vr(GW.WF + 4 * n + 2, 2)}, v{GW.RW} offset:{off + 640}")
    a("s_waitcnt lgkmcnt(0)")
    for n in range(5):
        for t in range(4):
            d = GW.ACC + 4 * (n * 4 + t)
            c = "0" if first else vr(d, 4)
            a(f"v_mfma_f32_16x16x32_bf16 {vr(d, 4)}, {vr(GW.WF + 4 * n, 4)}, {vr(GW.AF + 4 * t, 4)}, {c}")


def gw_write_partials(a, sRed):
    a(f"v_add_u32 v2, s{sRed}, v{GW.VA}")
    for n in range(5):
        for t in range(4):
            d = GW.ACC + 4 * (n * 4 + t)
            a(f"ds_write_b128 v2, {vr(d, 4)} offset:{(n * 4 + t) * 1024}")


def gw_read_sum(a, sW4, redbase):
    a(f"s_lshl_b32 s60, s{sW4}, 10")
    a(f"s_add_u32 s60, s60, {redbase}")
    a(f"v_add_u32 v2, s60, v{GW.VA}")
    a(f"v_add_u32 v3, {2 * 20480}, v2")
    R = 24
    for src in range(4):
        for j in range(5):
            a(f"ds_read_b128 {vr(R + 20 * src + 4 * j, 4)}, v{2 + (src >> 1)} offset:{(src & 1) * 20480 + j * 4096}")
    a("s_waitcnt lgkmcnt(10)")
    for e in range(20):
        a(f"v_add_f32 v{R + e}, v{R + e}, v{R + 20 + e}")
    a("s_waitcnt lgkmcnt(0)")
    for e in range(20):
        a(f"v_add_f32 v{R + 40 + e}, v{R + 40 + e}, v{R + 60 + e}")
    for e in range(20):
        a(f"v_add_f32 v{R + e}, v{R + e}, v{R + 40 + e}")


def tile_map(a, sRt, sCt):
    if XP_QX:
        a("s_and_b32 s60, s2, 7")
        a("s_lshr_b32 s61, s2, 3")
        a("s_lshl_b32 s62, s60, 2")
        a("s_lshr_b32 s63, s61, 3")
        a(f"s_add_u32 s{sRt}, s62, s63")
        a(f"s_and_b32 s{sCt}, s61, 7")
        return
    if XP_FUSE:
        a("s_lshr_b32 s60, s2, 5")
        a("s_lshl_b32 s60, s60, 2")
        a("s_bfe_u32 s61, s2, 0x20001")
        a(f"s_add_u32 s{sRt}, s60, s61")
        a("s_and_b32 s60, s2, 1")
        a("s_lshl_b32 s60, s60, 2")
        a("s_bfe_u32 s61, s2, 0x20003")
        a(f"s_add_u32 s{sCt}, s60, s61")
        return
    a("s_and_b32 s60, s2, 7")
    a("s_lshr_b32 s61, s2, 3")
    a("s_lshr_b32 s62, s60, 1")
    a("s_lshl_b32 s62, s62, 3")
    a("s_lshr_b32 s63, s61, 2")
    a(f"s_add_u32 s{sRt}, s62, s63")
    a("s_and_b32 s62, s60, 1")
    a("s_lshl_b32 s62, s62, 2")
    a("s_and_b32 s63, s61, 3")
    a(f"s_add_u32 s{sCt}, s62, s63")


K2_BUF = 23552 if XP_FUSE else 24576
K2_FFN = 3 * K2_BUF
K2_B = K2_FFN + 4 * 20480
K2_FLAG = K2_B + (10240 if XP_FUSE else 0)
K2_LDS = K2_FLAG + 64
K2_W4 = K2_FFN - 20480
K2_XCH = 0
K2_OST = 24576


def gate_compute(a, XV, GV, srow, srdG):
    a("v_mov_b32 v2, 0")
    for j in range(5):
        xv = XV + j
        gv = GV + j
        a(f"v_lshlrev_b32 v3, 16, v{xv}")
        a(f"v_and_b32 v19, 0xffff0000, v{xv}")
        a(f"v_lshlrev_b32 v127, 16, v{gv}")
        a(f"v_and_b32 v128, 0xffff0000, v{gv}")
        a("v_mul_f32 v3, v3, v127")
        a("v_mul_f32 v19, v19, v128")
        a("v_cvt_pk_bf16_f32 v3, v3, v19")
        a("v_lshlrev_b32 v19, 16, v3")
        a("v_and_b32 v3, 0xffff0000, v3")
        a("v_add_f32 v2, v2, v19")
        a("v_add_f32 v2, v2, v3")
    for sh in (1, 2, 4, 8):
        a("s_nop 1")
        a(f"v_add_f32_dpp v2, v2, v2 row_shr:{sh} row_mask:0xf bank_mask:0xf")
    a("s_nop 1")
    a("v_add_f32_dpp v2, v2, v2 row_bcast:15 row_mask:0xa bank_mask:0xf")
    a("s_nop 1")
    a("v_add_f32_dpp v2, v2, v2 row_bcast:31 row_mask:0xc bank_mask:0xf")
    a("s_nop 1")
    a("v_cvt_pk_bf16_f32 v2, v2, v2")
    a("v_lshlrev_b32 v2, 16, v2")
    a(f"v_mul_f32 v2, {f32bits(-LOG2E)}, v2")
    a("v_exp_f32 v2, v2")
    a("s_nop 0")
    a("v_add_f32 v2, 1.0, v2")
    a("v_rcp_f32 v2, v2")
    a("s_nop 0")
    a("v_cvt_pk_bf16_f32 v2, v2, v2")
    a("v_lshlrev_b32 v2, 16, v2")
    a(f"s_lshl_b32 s49, s{srow}, 2")
    a("v_mov_b32 v3, 0")
    a("v_cmp_eq_u32 vcc, 63, v1")
    a("s_and_saveexec_b64 s[50:51], vcc")
    a(f"buffer_store_dword v2, v3, {sr(srdG, 4)}, s49 offen")
    a("s_mov_b64 exec, s[50:51]")


def gate_compute2(a, XA, XB, GV, srow, srdG):
    GU = 24
    a("v_mov_b32 v2, 0")
    a("v_mov_b32 v3, 0")
    a("v_mov_b32 v19, 0x3f803f80")
    for j in range(5):
        a(f"v_lshlrev_b32 v{GU + 2 * j}, 16, v{GV + j}")
        a(f"v_and_b32 v{GU + 2 * j + 1}, 0xffff0000, v{GV + j}")
    for X, acc in ((XA, 2), (XB, 3)):
        for j in range(5):
            a(f"v_lshlrev_b32 v36, 16, v{X + j}")
            a(f"v_and_b32 v37, 0xffff0000, v{X + j}")
            a(f"v_pk_mul_f32 v[36:37], v[36:37], v[{GU + 2 * j}:{GU + 2 * j + 1}]")
            a("v_cvt_pk_bf16_f32 v36, v36, v37")
            a(f"v_dot2_f32_bf16 v{acc}, v36, v19, v{acc}")
    for sh in (1, 2, 4, 8):
        a("s_nop 2" if sh == 1 else "s_nop 0")
        a(f"v_add_f32_dpp v2, v2, v2 row_shr:{sh} row_mask:0xf bank_mask:0xf")
        a(f"v_add_f32_dpp v3, v3, v3 row_shr:{sh} row_mask:0xf bank_mask:0xf")
    a("s_nop 0")
    a("v_add_f32_dpp v2, v2, v2 row_bcast:15 row_mask:0xa bank_mask:0xf")
    a("v_add_f32_dpp v3, v3, v3 row_bcast:15 row_mask:0xa bank_mask:0xf")
    a("s_nop 0")
    a("v_add_f32_dpp v2, v2, v2 row_bcast:31 row_mask:0xc bank_mask:0xf")
    a("v_add_f32_dpp v3, v3, v3 row_bcast:31 row_mask:0xc bank_mask:0xf")
    a("s_nop 1")
    a("v_cvt_pk_bf16_f32 v2, v2, v3")
    a("v_and_b32 v3, 0xffff0000, v2")
    a("v_lshlrev_b32 v2, 16, v2")
    a(f"v_mul_f32 v2, {f32bits(-LOG2E)}, v2")
    a(f"v_mul_f32 v3, {f32bits(-LOG2E)}, v3")
    a("v_exp_f32 v2, v2")
    a("v_exp_f32 v3, v3")
    a("s_nop 0")
    a("v_add_f32 v2, 1.0, v2")
    a("v_add_f32 v3, 1.0, v3")
    a("v_rcp_f32 v2, v2")
    a("v_rcp_f32 v3, v3")
    a("s_nop 0")
    a("v_cvt_pk_bf16_f32 v2, v2, v3")
    a("v_and_b32 v3, 0xffff0000, v2")
    a("v_lshlrev_b32 v2, 16, v2")
    a(f"s_lshl_b32 s49, s{srow}, 2")
    a("v_mov_b32 v19, 0")
    a("v_cmp_eq_u32 vcc, 63, v1")
    a("s_and_saveexec_b64 s[50:51], vcc")
    a(f"buffer_store_dwordx2 v[2:3], v19, {sr(srdG, 4)}, s49 offen" + (" sc1" if XP_FUSE else ""))
    a("s_mov_b64 exec, s[50:51]")


def k2_tail(a):
    prof(a, 16)
    a("s_lshr_b32 s40, s2, 5")
    a("s_lshl_b32 s40, s40, 5")
    srd(a, 24, 6, 7, 256)
    srd(a, 16, 4, 5, SZ_OUT)
    srd_off(a, 12, 8, 9, WS_WO, SZ_WO)
    a("v_mov_b32 v4, 0")
    a("s_cmp_lg_u32 s38, 0")
    a("s_cbranch_scc1 K2_T1")
    a("v_mov_b32 v2, 1")
    a("s_mov_b64 exec, 1")
    a("buffer_atomic_add v2, v4, s[24:27], s40 offen")
    a("s_mov_b64 exec, -1")
    a.label("K2_T1")
    tile_map(a, 36, 37)
    a("v_lshrrev_b32 v22, 4, v1")
    a("v_and_b32 v23, 15, v1")
    a("s_lshl_b32 s39, s36, 6")
    a("s_and_b32 s49, s38, 3")
    a("s_lshr_b32 s50, s38, 2")
    a("s_add_u32 s43, s38, 8")
    a("s_add_u32 s44, s38, 16")
    a("s_cmp_lt_u32 s38, 4")
    a("s_cselect_b32 s44, s44, s43")
    a("s_mul_i32 s55, s37, 102400")
    a(f"s_add_u32 s55, s55, {4 * 20480}")
    for sp in (38, 43, 44):
        a(f"s_lshl_b32 s52, s{sp}, 10")
        a(f"s_add_u32 m0, s52, {K2_W4}")
        a("s_add_u32 s52, s52, s55")
        a("buffer_load_dwordx4 v16, s[12:15], s52 offen lds")
    a("s_mul_i32 s41, s37, 160")
    a("s_lshl_b32 s42, s36, 2")
    a("s_add_u32 s42, s42, s49")
    a("s_mul_i32 s42, s42, 20480")
    a("s_lshl_b32 s43, s50, 11")
    a("s_add_u32 s42, s42, s43")
    a("s_lshl_b32 s43, s49, 4")
    a("v_add_u32 v2, s43, v23")
    a("v_add_u32 v3, s39, v2")
    a("v_lshlrev_b32 v5, 2, v3")
    a("v_mul_u32_u24 v2, 160, v2")
    a("v_lshl_add_u32 v2, v22, 3, v2")
    a("s_mul_i32 s43, s50, 96")
    a(f"s_add_u32 s43, s43, {K2_OST}")
    a("v_add_u32 v17, s43, v2")
    a("s_mul_i32 s43, s49, 2560")
    a("s_mul_i32 s44, s50, 1536")
    a("s_add_u32 s43, s43, s44")
    a(f"s_add_u32 s43, s43, {K2_B}")
    a("v_lshlrev_b32 v2, 3, v1")
    a("v_add_u32 v6, s43, v2")
    for j in range(2):
        a("s_mul_i32 s43, s38, 80")
        a(f"s_add_u32 s43, s43, {64 * j}")
        a("v_add_u32 v2, s43, v1")
        a("v_mul_u32_u24 v3, 6554, v2")
        a("v_lshrrev_b32 v3, 16, v3")
        a("v_mul_u32_u24 v15, 10, v3")
        a("v_sub_u32 v15, v2, v15")
        a("v_lshlrev_b32 v15, 4, v15")
        a("v_add_u32 v3, s39, v3")
        a("v_mul_u32_u24 v3, 1280, v3")
        a(f"v_add3_u32 v{12 + j}, v3, v15, s41")
        a("v_lshlrev_b32 v2, 4, v2")
        a(f"v_add_u32 v{8 + j}, {K2_OST}, v2")
    RW = 28
    a("s_mul_i32 s43, s50, 10240")
    a(f"s_add_u32 s43, s43, {K2_W4}")
    wread_addr(a, RW, RW + 1, 43)
    a(f"v_add_u32 v{RW + 2}, {3 * 20480}, v{RW}")
    a(f"v_add_u32 v{RW + 3}, {3 * 20480}, v{RW + 1}")
    a("s_mul_i32 s43, s49, 5120")
    a(f"s_add_u32 s43, s43, {K2_XCH}")
    a("v_add_u32 v21, s43, v16")
    AF = 32
    WF = (72, 92)
    ACC = 112
    BV = 132

    def reads(t):
        st, i = t >> 1, t & 1
        pos = (st + 1) % 5
        hi = 1 if pos >= 3 else 0
        so = (pos - 3 * hi) * 20480
        r = []
        for n in range(5):
            off = so + i * 5120 + n * 32
            r.append(f"ds_read_b64_tr_b16 {vr(WF[i] + 4 * n, 2)}, v{RW + 2 * hi} offset:{off}")
            r.append(f"ds_read_b64_tr_b16 {vr(WF[i] + 4 * n + 2, 2)}, v{RW + 2 * hi + 1} offset:{off}")
        return r

    def mf(t):
        for n in range(5):
            d = ACC + 4 * n
            c = "0" if t == 0 else vr(d, 4)
            a(f"v_mfma_f32_16x16x32_bf16 {vr(d, 4)}, {vr(WF[t & 1] + 4 * n, 4)}, {vr(AF + 4 * t, 4)}, {c}")

    for r in reads(0) + reads(1):
        a(r)
    for n in range(3):
        a(f"ds_read_b64 {vr(BV + 2 * n, 2)}, v6 offset:{512 * n}")
    a("s_cmp_lg_u32 s38, 0")
    a("s_cbranch_scc1 K2_T3")
    a("s_mov_b32 s43, 0")
    a.label("K2_T2")
    a("buffer_load_dword v2, v4, s[24:27], s40 offen sc1")
    a("s_add_u32 s43, s43, 1")
    a("s_waitcnt vmcnt(0)")
    a("v_readfirstlane_b32 s44, v2")
    a("s_cmp_ge_u32 s44, 32")
    a("s_cbranch_scc1 K2_T3")
    a("s_sleep 1")
    a("s_cmp_lt_u32 s43, 0x100000")
    a("s_cbranch_scc1 K2_T2")
    a.label("K2_T3")
    a("s_waitcnt vmcnt(0)")
    a("s_barrier")
    prof(a, 17)
    for t in range(10):
        st, i = t >> 1, t & 1
        if i == 0 and st:
            a("s_add_u32 s42, s42, 4096")
        a(f"buffer_load_dwordx4 {vr(AF + 4 * t, 4)}, v16, s[20:23], s42 offen offset:{1024 * i} sc1")
    a("buffer_load_dword v18, v5, s[32:35], 0 offen sc1")
    for t in range(10):
        a(f"s_waitcnt vmcnt({10 - t}) lgkmcnt({10 if 1 <= t < 9 else 0})")
        mf(t)
        if t + 2 < 10:
            for r in reads(t + 2):
                a(r)
    prof(a, 18)
    a("s_waitcnt vmcnt(0)")
    a("v_sub_f32 v19, 1.0, v18")
    a("v_cvt_pk_bf16_f32 v19, v19, v19")
    a("v_lshlrev_b32 v19, 16, v19")
    a("s_nop 7")
    XR = 72
    a("s_cmp_eq_u32 s50, 0")
    a("s_cbranch_scc0 K2_X1")
    for n in (3, 4):
        a(f"ds_write_b128 v21, {vr(ACC + 4 * n, 4)} offset:{1024 * n}")
    a("s_waitcnt lgkmcnt(0)")
    a("s_barrier")
    for n in range(3):
        a(f"ds_read_b128 {vr(XR + 4 * n, 4)}, v21 offset:{1024 * n}")
    a("s_branch K2_FIN")
    a.label("K2_X1")
    for n in range(3):
        a(f"ds_write_b128 v21, {vr(ACC + 4 * n, 4)} offset:{1024 * n}")
    a("s_waitcnt lgkmcnt(0)")
    a("s_barrier")
    for n in (3, 4):
        a(f"ds_read_b128 {vr(XR + 4 * (n - 3), 4)}, v21 offset:{1024 * n}")
    for i in range(8):
        a(f"v_mov_b32 v{ACC + i}, v{ACC + 12 + i}")
    a.label("K2_FIN")
    a("s_waitcnt lgkmcnt(0)")
    for n in range(3):
        if n == 2:
            a("s_cmp_eq_u32 s50, 0")
            a("s_cbranch_scc0 K2_CP")
        for i in range(4):
            a(f"v_add_f32 v{ACC + 4 * n + i}, v{ACC + 4 * n + i}, v{XR + 4 * n + i}")
        for h in range(2):
            e = ACC + 4 * n + 2 * h
            bp = BV + 2 * n + h
            a(f"v_cvt_pk_bf16_f32 v24, v{e}, v{e + 1}")
            a("v_lshlrev_b32 v4, 16, v24")
            a("v_and_b32 v5, 0xffff0000, v24")
            a(f"v_lshlrev_b32 v6, 16, v{bp}")
            a(f"v_and_b32 v7, 0xffff0000, v{bp}")
            a("v_mul_f32 v4, v18, v4")
            a("v_mul_f32 v5, v18, v5")
            a("v_mul_f32 v6, v19, v6")
            a("v_mul_f32 v7, v19, v7")
            a("v_cvt_pk_bf16_f32 v24, v4, v5")
            a("v_cvt_pk_bf16_f32 v20, v6, v7")
            a("v_lshlrev_b32 v4, 16, v24")
            a("v_and_b32 v5, 0xffff0000, v24")
            a("v_lshlrev_b32 v6, 16, v20")
            a("v_and_b32 v7, 0xffff0000, v20")
            a("v_add_f32 v4, v4, v6")
            a("v_add_f32 v5, v5, v7")
            a(f"v_cvt_pk_bf16_f32 v{bp}, v4, v5")
        a(f"ds_write_b64 v17, {vr(BV + 2 * n, 2)} offset:{32 * n}")
    a.label("K2_CP")
    a("s_waitcnt lgkmcnt(0)")
    a("s_barrier")
    a("ds_read_b128 v[32:35], v8")
    a("ds_read_b128 v[36:39], v9")
    a("s_waitcnt lgkmcnt(1)")
    a("buffer_store_dwordx4 v[32:35], v12, s[16:19], 0 offen")
    a("v_cmp_gt_u32 vcc, 16, v1")
    a("s_and_saveexec_b64 s[50:51], vcc")
    a("s_waitcnt lgkmcnt(0)")
    a("buffer_store_dwordx4 v[36:39], v13, s[16:19], 0 offen")
    a("s_mov_b64 exec, s[50:51]")


def k2():
    a = Asm()
    a.label("k2_kernel")
    if PROF:
        a("s_memtime s[86:87]")
    a("s_cmp_ge_u32 s2, 256")
    a("s_cbranch_scc1 K2_END")
    a("s_and_b32 s3, s2, 7")
    a("s_lshl_b32 s3, s3, 2")
    a("s_lshr_b32 s4, s2, 3")
    a("s_and_b32 s4, s4, 3")
    a("s_add_u32 s36, s3, s4")
    a("s_lshr_b32 s37, s2, 5")
    if XP_QX:
        a("s_lshr_b32 s36, s2, 3")
        a("s_and_b32 s37, s2, 7")
    a("s_load_dwordx2 s[4:5], s[0:1], 0")
    a("s_load_dwordx2 s[6:7], s[0:1], 48")
    a("s_load_dwordx2 s[8:9], s[0:1], 72")
    a("v_and_b32 v1, 63, v0")
    a("v_lshrrev_b32 v2, 6, v0")
    a("s_nop 0")
    a("v_readfirstlane_b32 s38, v2")
    a("s_waitcnt lgkmcnt(0)")
    a("s_cmp_ge_u32 s38, 8")
    a("s_cbranch_scc1 K2_FFN")
    a("s_setprio 1")
    srd_off(a, 12, 8, 9, WS_KV, SZ_KV)
    srd_off(a, 16, 8, 9, WS_Q, SZ_Q)
    srd_off(a, 20, 8, 9, WS_O, SZ_O)
    srd(a, 24, 4, 5, SZ_X)
    srd(a, 28, 6, 7, 1280)
    srd_off(a, 32, 8, 9, WS_G, SZ_G)
    prof_init(a, 8, 9, 38, 1)
    prof(a, 0)
    a("v_lshlrev_b32 v16, 4, v1")
    a("s_mul_i32 s46, s38, 3072")
    a("s_cmp_lt_u32 s38, 7")
    a("s_cselect_b64 s[54:55], -1, 0")
    a(f"s_mul_i32 s45, s36, {HEAD_KV}")
    a("s_add_u32 s45, s45, s46")
    a("s_mov_b32 s44, s45")
    a("s_mov_b32 s41, 0")
    a(f"s_mov_b32 s42, {K2_BUF}")
    a(f"s_mov_b32 s43, {2 * K2_BUF}")
    a("s_mov_b32 s40, 0")
    a("v_and_b32 v17, 31, v1")
    a("v_lshrrev_b32 v18, 5, v1")
    a("s_lshl_b32 s47, s37, 8")
    a("s_lshl_b32 s48, s38, 5")
    a("s_add_u32 s47, s47, s48")
    a("v_add_u32 v2, s47, v17")
    a("v_mul_u32_u24 v2, 48, v2")
    a("s_mul_i32 s48, s36, 98304")
    a("v_add_u32 v2, s48, v2")
    a("v_lshl_add_u32 v3, v18, 4, v2")
    a("buffer_load_dwordx4 v[20:23], v3, s[16:19], 0 offen")
    a("buffer_load_dwordx2 v[24:25], v2, s[16:19], 0 offen offset:32")
    for sg in (41, 42):
        a(f"s_add_u32 m0, s{sg}, s46")
        a("s_nop 0")
        for j in range(3):
            if j == 2 and XP_FUSE:
                a("s_mov_b64 exec, s[54:55]")
            a(f"buffer_load_dwordx4 v16, s[12:15], s44 offen offset:{1024 * j} lds")
        if XP_FUSE:
            a("s_mov_b64 exec, -1")
        a("s_add_u32 s44, s44, 23040")
    a("v_mov_b32 v2, 0")
    a(f"v_mov_b32 v3, {K2_FLAG}")
    a("ds_write_b32 v3, v2")
    if not XP_GF:
        a("s_lshl_b32 s48, s37, 8")
        a("s_lshl_b32 s49, s36, 3")
        a("s_add_u32 s48, s48, s49")
        a("s_add_u32 s48, s48, s38")
        a("s_mul_i32 s49, s48, 1280")
        a("v_mul_u32_u24 v2, 20, v1")
        a("buffer_load_dwordx4 v[116:119], v2, s[24:27], s49 offen")
        a("buffer_load_dword v120, v2, s[24:27], s49 offen offset:16")
        a("buffer_load_dwordx4 v[122:125], v2, s[28:31], 0 offen")
        a("buffer_load_dword v126, v2, s[28:31], 0 offen offset:16")
    a("v_mul_u32_u24 v2, 48, v17")
    a("v_lshl_add_u32 v12, v18, 4, v2")
    a("v_add_u32 v13, 32, v2")
    if XP_K8:
        a("v_lshl_add_u32 v13, v18, 3, v13")
    a("v_bfe_u32 v3, v17, 2, 2")
    a("v_lshlrev_b32 v2, 6, v17")
    a("v_add_u32 v2, 1536, v2")
    a("v_xor_b32 v19, v18, v3")
    a("v_lshl_add_u32 v14, v19, 4, v2")
    a("v_add_u32 v19, 2, v18")
    a("v_xor_b32 v19, v19, v3")
    a("v_lshl_add_u32 v15, v19, 4, v2")
    a("s_waitcnt vmcnt(6)" if (XP_GF and XP_ES) else "s_waitcnt vmcnt(0)")
    if not XP_GF:
        gate_compute(a, 116, 122, 48, 32)
    a("v_cmp_eq_u32 vcc, 0, v18")
    a("s_nop 1")
    a("v_cndmask_b32 v24, 0, v24, vcc")
    a("v_cndmask_b32 v25, 0, v25, vcc")
    a("v_mov_b32 v26, 0")
    a("v_mov_b32 v27, 0")
    a("s_mov_b32 s39, 0")

    QF0, QF1 = 20, 24
    KF = (28, 36)
    VF = (44, 52)
    P = 60
    S = (68, 84)
    O = 100

    def dma_stage(lds_sreg):
        a(f"s_add_u32 m0, s{lds_sreg}, s46")
        a("s_nop 0")
        for j in range(3):
            if j == 2 and XP_FUSE:
                a("s_mov_b64 exec, s[54:55]")
            a(f"buffer_load_dwordx4 v16, s[12:15], s44 offen offset:{1024 * j} lds")
        if XP_FUSE:
            a("s_mov_b64 exec, -1")
        a("s_add_u32 s44, s44, 23040")

    def set_addrs(dst, sbase):
        for i in range(4):
            a(f"v_add_u32 v{dst + i}, s{sbase}, v{12 + i}")

    def kread(st, idx):
        base = 4 if idx < 8 else 8
        off = (idx % 8) * 2880
        if XP_K8:
            return [f"ds_read_b128 {vr(KF[st], 4)}, v{base} offset:{off}",
                    f"ds_read_b64 {vr(KF[st] + 4, 2)}, v{base + 1} offset:{off}"]
        return [f"ds_read_b128 {vr(KF[st], 4)}, v{base} offset:{off}",
                f"ds_read_b128 {vr(KF[st] + 4, 4)}, v{base + 1} offset:{off}"]

    def qk2(st, sd):
        if XP_K8:
            return f"v_mfma_f32_32x32x8bf16_1k {vr(sd, 16)}, {vr(KF[st] + 4, 2)}, {vr(QF1, 2)}, {vr(sd, 16)}"
        return f"v_mfma_f32_32x32x16_bf16 {vr(sd, 16)}, {vr(KF[st] + 4, 4)}, {vr(QF1, 4)}, {vr(sd, 16)}"

    def vread(st, idx):
        base = 4 if idx < 8 else 8
        off = (idx % 8) * 2880
        return [f"ds_read_b128 {vr(VF[st], 4)}, v{base + 2} offset:{off}",
                f"ds_read_b128 {vr(VF[st] + 4, 4)}, v{base + 3} offset:{off}"]

    def qk(st, sst):
        a(f"v_mfma_f32_32x32x16_bf16 {vr(S[sst], 16)}, {vr(KF[st], 4)}, {vr(QF0, 4)}, 0")
        a(qk2(st, S[sst]))

    def set_m_from(mreg):
        a(f"v_mov_b32 v3, v{mreg}")
        a("s_nop 1")
        a(f"v_permlane32_swap_b32 v{mreg}, v3")
        a("s_nop 1")
        a(f"v_max_f32 v2, v{mreg}, v3")
        a("v_and_b32 v3, 0xffff0000, v2")
        a("v_sub_f32 v2, v2, v3")
        a("v_and_b32 v19, 0xffff0000, v2")
        a("v_sub_f32 v2, v2, v19")
        a("v_xor_b32 v3, 0x80000000, v3")
        a("v_xor_b32 v19, 0x80000000, v19")
        a("v_xor_b32 v2, 0x80000000, v2")
        a("v_lshrrev_b32 v3, 16, v3")
        a("v_or_b32 v3, v3, v19")
        a("v_lshrrev_b32 v2, 16, v2")
        a("v_cmp_eq_u32 vcc, 0, v18")
        a("s_nop 1")
        if XP_K8:
            a("v_cndmask_b32 v24, v3, v24, vcc")
            a("v_cndmask_b32 v25, v2, v25, vcc")
        else:
            a("v_cndmask_b32 v26, 0, v3, vcc")
            a("v_cndmask_b32 v27, 0, v2, vcc")
        a("s_nop 1")

    def start_stream():
        a("s_mov_b32 s44, s45")
        a("s_mov_b32 s41, 0")
        a(f"s_mov_b32 s42, {K2_BUF}")
        a(f"s_mov_b32 s43, {2 * K2_BUF}")
        dma_stage(41)
        dma_stage(42)
        set_addrs(4, 41)
        set_addrs(8, 42)
        a("s_mov_b32 s40, 0")

    def stage_head(lbl):
        if XP_ES:
            a("s_cmp_eq_u32 s40, 0")
            a(f"s_cbranch_scc1 {lbl}_W0")
            a("s_waitcnt vmcnt(0)")
            a.label(lbl + "_W0")
            a("s_waitcnt vmcnt(3) lgkmcnt(0)")
        else:
            a("s_waitcnt vmcnt(0) lgkmcnt(0)")
        if XP_NOBAR:
            a("s_cmp_lg_u32 s40, 0")
            a(f"s_cbranch_scc1 {lbl}_NB")
        a("s_barrier")
        if XP_NOBAR:
            a.label(lbl + "_NB")
        a(f"s_cmp_ge_u32 s40, {1 if XP_NODMA else 6}")
        a(f"s_cbranch_scc1 {lbl}")
        dma_stage(43)
        a.label(lbl)

    def stage_rotate():
        a("s_mov_b32 s47, s41")
        a("s_mov_b32 s41, s42")
        a("s_mov_b32 s42, s43")
        a("s_mov_b32 s43, s47")
        for i in range(4):
            a(f"v_mov_b32 v{4 + i}, v{8 + i}")
        set_addrs(8, 42)
        a("s_add_u32 s40, s40, 1")

    a.label("K2_MAIN")
    prof(a, 1)
    a("s_cmp_eq_u32 s39, 0")
    a("s_cbranch_scc1 K2_STARTED")
    start_stream()
    a.label("K2_STARTED")
    set_addrs(4, 41)
    set_addrs(8, 42)
    for i in range(16):
        a(f"v_mov_b32 v{O + i}, 0")
    for i in range(4):
        a(f"v_mov_b32 v{P + 4 + i}, 0")
        a(f"v_mov_b32 v{VF[1] + 4 + i}, 0")
    a.label("K2_STAGE")
    stage_head("K2_NODMA")
    a("s_cmp_lg_u32 s40, 0")
    a("s_cbranch_scc1 K2_BODY")
    for r in kread(0, 0):
        a(r)
    a("s_cmp_lg_u32 s39, 0")
    a("s_cbranch_scc1 K2_PRIME")
    a("s_waitcnt lgkmcnt(0)")
    qk(0, 0)
    a("s_nop 15")
    a("s_nop 3")
    s0 = S[0]
    a(f"v_max3_f32 v116, v{s0}, v{s0 + 1}, v{s0 + 2}")
    for i in range(3, 15, 2):
        a(f"v_max3_f32 v116, v116, v{s0 + i}, v{s0 + i + 1}")
    a(f"v_max_f32 v116, v116, v{s0 + 15}")
    set_m_from(116)
    a.label("K2_PRIME")
    for r in kread(1, 1):
        a(r)
    for r in vread(0, 0):
        a(r)
    a("s_waitcnt lgkmcnt(4)")
    qk(0, 0)
    a("s_nop 15")
    prof(a, 2)
    a.label("K2_BODY")

    def body(par):
        for t in range(8):
            c = t % 2
            n = 1 - c
            sc = S[c]
            sn = S[n]

            def ex(lo):
                for i in range(lo, lo + 4):
                    a(f"v_exp_f32 v{sc + i}, v{sc + i}")

            def cv(lo):
                for i in range(lo, lo + 4):
                    a(f"v_cvt_pk_bf16_f32 v{P + i}, v{sc + 2 * i}, v{sc + 2 * i + 1}")
            if XP_PRIO:
                a(f"s_setprio {2 if (t & 1) == par else 1}")
            if XP_PR and (t == 0 or XP_PR[t] != XP_PR[t - 1]):
                a(f"s_setprio {XP_PR[t]}")
            ex(0)
            a(f"v_mfma_f32_32x32x16_bf16 {vr(O, 16)}, {vr(VF[n] + 4, 4)}, {vr(P + 4, 4)}, {vr(O, 16)}")
            ex(4)
            a("s_waitcnt lgkmcnt(0)" if XP_K8 else "s_waitcnt lgkmcnt(2)")
            a(f"v_mfma_f32_32x32x16_bf16 {vr(sn, 16)}, {vr(KF[n], 4)}, {vr(QF0, 4)}, 0")
            cv(0)
            if XP_ES and t == 6:
                a("s_cmp_lg_u32 s40, 0")
                a(f"s_cbranch_scc1 K2_MID{par}")
                a("s_waitcnt vmcnt(3)")
                a("s_barrier")
                a.label(f"K2_MID{par}")
            if not XP_NOLDS:
                for r in kread(c, t + 2):
                    a(r)
                for r in vread(n, t + 1):
                    a(r)
            ex(8)
            a(qk2(n, sn))
            ex(12)
            if not XP_K8:
                a("s_waitcnt lgkmcnt(4)")
            a(f"v_mfma_f32_32x32x16_bf16 {vr(O, 16)}, {vr(VF[c], 4)}, {vr(P, 4)}, {vr(O, 16)}")
            cv(4)

    if XP_PRIO:
        a("s_cmp_ge_u32 s38, 4")
        a("s_cbranch_scc1 K2_BODY1")
        body(0)
        a("s_branch K2_BODYE")
        a.label("K2_BODY1")
        body(1)
        a.label("K2_BODYE")
    else:
        body(0)
    stage_rotate()
    if PROF:
        a("s_memtime s[88:89]")
        a("s_waitcnt lgkmcnt(0)")
        a("v_mov_b32 v2, s88")
        a("s_lshl_b32 s90, s40, 2")
        a("v_mov_b32 v3, s90")
        a("buffer_store_dword v2, v3, s[92:95], s91 offen offset:8")
    a("s_cmp_lt_u32 s40, 8")
    a("s_cbranch_scc1 K2_STAGE")
    a("s_nop 1")
    a(f"v_mfma_f32_32x32x16_bf16 {vr(O, 16)}, {vr(VF[1] + 4, 4)}, {vr(P + 4, 4)}, {vr(O, 16)}")
    a("s_nop 15")
    a("s_nop 3")
    a("s_cmp_lg_u32 s39, 0")
    a("s_cbranch_scc1 K2_EPI")
    a("v_mov_b32 v2, 0")
    for i in range(9):
        a(f"v_fma_f32 v2, v{O + i}, 0, v2")
    a("v_mov_b32 v3, 0")
    for i in range(9, 12):
        a(f"v_fma_f32 v3, v{O + i}, 0, v3")
    a("v_cmp_eq_u32 vcc, 0, v18")
    a("s_nop 1")
    a("v_cndmask_b32 v3, 0, v3, vcc")
    a("v_add_f32 v2, v2, v3")
    a("v_cmp_u_f32 vcc, v2, v2")
    a("s_nop 4")
    a("s_cbranch_vccz K2_VOTE")
    a("v_mov_b32 v2, 1")
    a(f"v_mov_b32 v3, {K2_FLAG}")
    a("ds_write_b32 v3, v2")
    a.label("K2_VOTE")
    a("s_branch K2_EPI")
    a.label("K2_FALL")
    a("s_barrier")
    a("v_mov_b32 v26, 0")
    a("v_mov_b32 v27, 0")
    a("v_cmp_eq_u32 vcc, 0, v18")
    a("s_nop 1")
    a("v_cndmask_b32 v24, 0, v24, vcc")
    a("v_cndmask_b32 v25, 0, v25, vcc")
    a(f"v_mov_b32 v117, {f32bits(float('-inf'))}")
    start_stream()
    a.label("K2_MSTAGE")
    stage_head("K2_MNODMA")
    for t in range(8):
        for r in kread(0, t):
            a(r)
        a("s_waitcnt lgkmcnt(0)")
        qk(0, 0)
        a("s_nop 15")
        a("s_nop 3")
        for i in range(0, 16, 2):
            a(f"v_max3_f32 v117, v117, v{s0 + i}, v{s0 + i + 1}")
    stage_rotate()
    a("s_cmp_lt_u32 s40, 8")
    a("s_cbranch_scc1 K2_MSTAGE")
    set_m_from(117)
    a("s_mov_b32 s39, 1")
    a("s_waitcnt vmcnt(0) lgkmcnt(0)")
    a("s_barrier")
    a("s_branch K2_MAIN")
    a.label("K2_EPI")
    a(f"v_mov_b32 v2, v{O + 8}")
    a(f"v_mov_b32 v3, v{O + 8}")
    a("s_nop 1")
    a("v_permlane32_swap_b32 v2, v3")
    a("s_nop 1")
    a("v_rcp_f32 v3, v3")
    a("s_nop 0")
    for i in range(12):
        a(f"v_mul_f32 v{O + i}, v{O + i}, v3")
    for i in range(6):
        a(f"v_cvt_pk_bf16_f32 v{P + i}, v{O + 2 * i}, v{O + 2 * i + 1}")
    a("s_lshl_b32 s47, s37, 8")
    a("s_lshl_b32 s48, s38, 5")
    a("s_add_u32 s47, s47, s48")
    a("v_add_u32 v2, s47, v17")
    if XP_FUSE:
        a("v_lshrrev_b32 v3, 4, v2")
        a("v_mul_u32_u24 v3, 20480, v3")
        a("v_and_b32 v2, 15, v2")
        a("v_lshl_add_u32 v2, v2, 4, v3")
        a("s_mul_i32 s48, s36, 20")
        a("v_lshl_add_u32 v3, v18, 2, s48")
        a("v_lshrrev_b32 v19, 3, v3")
        a("v_lshl_add_u32 v2, v19, 8, v2")
        a("v_and_b32 v3, 4, v3")
        a("v_lshl_add_u32 v2, v3, 1, v2")
        a(f"buffer_store_dwordx2 {vr(P, 2)}, v2, s[20:23], 0 offen sc1")
        a(f"buffer_store_dwordx2 {vr(P + 2, 2)}, v2, s[20:23], 0 offen offset:256 sc1")
        a("v_cmp_eq_u32 vcc, 0, v18")
        a("s_and_saveexec_b64 s[50:51], vcc")
        a(f"buffer_store_dwordx2 {vr(P + 4, 2)}, v2, s[20:23], 0 offen offset:512 sc1")
        a("s_mov_b64 exec, s[50:51]")
        a("s_load_dwordx2 s[4:5], s[0:1], 56")
        a("s_load_dwordx2 s[6:7], s[0:1], 64")
        a("s_waitcnt vmcnt(0) lgkmcnt(0)")
        a("s_barrier")
        a("s_cmp_lg_u32 s39, 0")
        a("s_cbranch_scc1 K2_TAIL")
    else:
        a("v_mul_u32_u24 v2, 1280, v2")
        a("s_mul_i32 s48, s36, 40")
        a("v_lshl_add_u32 v2, v18, 3, v2")
        a("v_add_u32 v2, s48, v2")
        a(f"buffer_store_dwordx2 {vr(P, 2)}, v2, s[20:23], 0 offen")
        a(f"buffer_store_dwordx2 {vr(P + 2, 2)}, v2, s[20:23], 0 offen offset:16")
        a("v_cmp_eq_u32 vcc, 0, v18")
        a("s_and_saveexec_b64 s[50:51], vcc")
        a(f"buffer_store_dwordx2 {vr(P + 4, 2)}, v2, s[20:23], 0 offen offset:32")
        a("s_mov_b64 exec, s[50:51]")
        a("s_cmp_lg_u32 s39, 0")
        a("s_cbranch_scc1 K2_PEND")
        a("s_waitcnt lgkmcnt(0)")
        a("s_barrier")
    a(f"v_mov_b32 v3, {K2_FLAG}")
    a("ds_read_b32 v2, v3")
    a("s_waitcnt lgkmcnt(0)")
    a("v_readfirstlane_b32 s47, v2")
    a("s_cmp_lg_u32 s47, 0")
    a("s_cbranch_scc1 K2_FALL")
    if XP_FUSE:
        a.label("K2_TAIL")
        k2_tail(a)
    a.label("K2_PEND")
    prof(a, 12)
    a.label("K2_END")
    a("s_endpgm")
    a.label("K2_FFN")
    if XP_NOFFN:
        a("s_endpgm")
    if XP_FP:
        a(f"s_setprio {XP_FP}")
    a("s_sub_u32 s38, s38, 8")
    if XP_GF:
        srd(a, 64, 4, 5, SZ_X)
        srd(a, 68, 6, 7, 1280)
        srd_off(a, 32, 8, 9, WS_G, SZ_G)
        a("s_lshl_b32 s48, s37, 8")
        a("s_lshl_b32 s49, s36, 3")
        a("s_add_u32 s48, s48, s49")
        a("s_lshl_b32 s49, s38, 1")
        a("s_add_u32 s48, s48, s49")
    a("s_load_dwordx2 s[6:7], s[0:1], 40")
    a("s_load_dwordx2 s[52:53], s[0:1], 16")
    tile_map(a, 36, 37)
    a("s_lshl_b32 s39, s36, 6")
    a("s_mul_i32 s40, s37, 160")
    a("s_mul_i32 s41, s38, 20480")
    a(f"s_add_u32 s41, s41, {K2_FFN}")
    a("s_mul_i32 s42, s38, 14")
    a("s_cmp_eq_u32 s38, 3")
    a("s_cselect_b32 s42, 41, s42")
    a("s_mul_i32 s45, s36, 54")
    a("s_add_u32 s45, s45, s42")
    a("s_lshl_b32 s45, s45, 12")
    a("s_mul_i32 s46, s42, 5120")
    a("s_mul_i32 s47, s37, 276480")
    a("s_add_u32 s46, s46, s47")
    a("s_waitcnt lgkmcnt(0)")
    srd_off(a, 16, 8, 9, WS_W2P, SZ_W2)
    srd_off(a, 24, 8, 9, WS_H, SZ_H)
    srd_off(a, 28, 8, 9, WS_B, SZ_B)
    gw_setup(a, 39, 40, 3456, 41)
    j = 0
    for k, ns in enumerate(XP_FS):
        a("s_barrier")
        if k == 0:
            if XP_GF:
                a("s_mul_i32 s49, s48, 1280")
                a("v_mul_u32_u24 v2, 20, v1")
                a("buffer_load_dwordx4 v[116:119], v2, s[64:67], s49 offen")
                a("buffer_load_dword v120, v2, s[64:67], s49 offen offset:16")
                a("buffer_load_dwordx4 v[122:125], v2, s[68:71], 0 offen")
                a("buffer_load_dword v126, v2, s[68:71], 0 offen offset:16")
                a("buffer_load_dwordx4 v[132:135], v2, s[64:67], s49 offen offset:1280")
                a("buffer_load_dword v136, v2, s[64:67], s49 offen offset:1296")
            gw_issue(a, 0, 24, 16, 45, 46, 41)
        if k == 1 and XP_PF and not XP_QX:
            srd(a, 52, 52, 53, SZ_WO)
            a("s_mul_i32 s56, s2, 3200")
            a("v_and_b32 v3, 255, v0")
            a("v_lshlrev_b32 v2, 7, v3")
            a("v_cmp_gt_u32 vcc, 25, v3")
            a("v_bfrev_b32 v3, 1")
            a("v_cndmask_b32 v2, v3, v2, vcc")
            a("buffer_load_dword v141, v2, s[52:55], s56 offen")
        for _ in range(ns):
            if XP_FPIPE:
                if j == 0:
                    gw_issue(a, 1, 24, 16, 45, 46, 41)
                    if XP_GF:
                        a("s_waitcnt vmcnt(18)")
                        gate_compute2(a, 116, 132, 122, 48, 32)
                        a("s_waitcnt vmcnt(10)")
                    else:
                        a("s_waitcnt vmcnt(9)")
                elif j < 13:
                    a("s_waitcnt vmcnt(9)")
                else:
                    a("s_waitcnt vmcnt(0)")
                    a("s_cmp_ge_u32 s38, 2")
                    a("s_cbranch_scc1 K2_FSKIP")
                gw_compute_pipe(a, j & 1, j == 0, gw_pieces(j & 1, 24, 16, 45, 46, 41) if j + 2 < 14 else [])
                if j == 0 and XP_ES:
                    a("s_barrier")
                j += 1
                continue
            if j < 13:
                gw_issue(a, (j + 1) & 1, 24, 16, 45, 46, 41)
                if j == 0 and XP_GF:
                    a("s_waitcnt vmcnt(18)")
                    gate_compute2(a, 116, 132, 122, 48, 32)
                    a("s_waitcnt vmcnt(10)")
                else:
                    a("s_waitcnt vmcnt(9)")
            else:
                a("s_waitcnt vmcnt(0)")
                a("s_cmp_ge_u32 s38, 2")
                a("s_cbranch_scc1 K2_FSKIP")
            gw_compute(a, j & 1, j == 0)
            if j == 0 and XP_ES:
                a("s_barrier")
            j += 1
    assert j == 14
    a.label("K2_FSKIP")
    if XP_FE:
        a(f"s_setprio {XP_FE}")
    a("s_nop 7")
    a("s_nop 3")
    a("s_waitcnt vmcnt(0)")
    gw_write_partials(a, 41)
    a("s_waitcnt lgkmcnt(0)")
    a("s_barrier")
    gw_read_sum(a, 38, K2_FFN)
    for e in range(0, 20, 2):
        a(f"v_cvt_pk_bf16_f32 v{112 + e // 2}, v{24 + e}, v{25 + e}")
    if XP_FUSE:
        a("s_mul_i32 s42, s38, 2560")
        a(f"s_add_u32 s42, s42, {K2_B}")
        a("v_lshlrev_b32 v2, 3, v1")
        a("v_add_u32 v2, s42, v2")
        for n in range(5):
            a(f"ds_write_b64 v2, {vr(112 + 2 * n, 2)} offset:{512 * n}")
        a("s_waitcnt lgkmcnt(0)")
        a("s_barrier")
        a("s_setprio 0")
        srd_off(a, 52, 8, 9, WS_WO, SZ_WO)
        a("s_mul_i32 s56, s37, 102400")
        a("s_mul_i32 s57, s38, 20480")
        a("s_add_u32 s56, s56, s57")
        for j in range(5):
            a(f"s_add_u32 m0, s41, {4096 * j}")
            a("s_nop 0")
            for i in range(4):
                a(f"buffer_load_dwordx4 v{GW.VA}, s[52:55], s56 offen offset:{1024 * i} lds")
            a("s_add_u32 s56, s56, 4096")
        for _ in range(8 - (len(XP_FS) + 2)):
            a("s_barrier")
        a("s_waitcnt vmcnt(0)")
        a("s_barrier")
        a("s_endpgm")
        return a.text()
    a("s_lshl_b32 s42, s36, 3")
    a("s_add_u32 s42, s42, s37")
    a("s_lshl_b32 s42, s42, 2")
    a("s_add_u32 s42, s42, s38")
    a("s_mul_i32 s42, s42, 2560")
    a("v_lshlrev_b32 v2, 3, v1")
    for n in range(5):
        a(f"buffer_store_dwordx2 {vr(112 + 2 * n, 2)}, v2, s[28:31], s42 offen offset:{512 * n}")
    if XP_PF2:
        srd_off(a, 52, 8, 9, WS_WO, SZ_WO)
        a("s_lshr_b32 s56, s2, 3")
        a("s_mul_i32 s56, s56, 12800")
        a("s_and_b32 s57, s2, 1")
        a("s_mul_i32 s57, s57, 409600")
        a("s_add_u32 s56, s56, s57")
        a("v_and_b32 v3, 255, v0")
        a("v_lshlrev_b32 v2, 7, v3")
        a("v_cmp_gt_u32 vcc, 100, v3")
        a("v_bfrev_b32 v3, 1")
        a("v_cndmask_b32 v2, v3, v2, vcc")
        a("buffer_load_dword v141, v2, s[52:55], s56 offen")
        a("s_waitcnt vmcnt(0)")
    a("s_endpgm")
    return a.text()


def wmap(a, dst, sC0B):
    a("v_mul_u32_u24 v3, 6554, v2")
    a("v_lshrrev_b32 v3, 16, v3")
    a("v_mul_u32_u24 v15, 10, v3")
    a("v_sub_u32 v2, v2, v15")
    a("v_lshrrev_b32 v15, 1, v3")
    a("v_and_b32 v15, 4, v15")
    a("v_xor_b32 v3, v3, v15")
    a("v_lshlrev_b32 v2, 4, v2")
    a("v_mul_u32_u24 v3, 1280, v3")
    a(f"v_add3_u32 v{dst}, v2, v3, s{sC0B}")


def wread_addr(a, d0, d1, sBase):
    a("v_lshlrev_b32 v2, 3, v22")
    a("v_lshrrev_b32 v3, 2, v23")
    a("v_add_u32 v2, v2, v3")
    a("v_mul_u32_u24 v2, 160, v2")
    a("v_and_b32 v3, 3, v23")
    a("v_lshlrev_b32 v3, 3, v3")
    a(f"v_add3_u32 v2, v2, v3, s{sBase}")
    a("v_and_b32 v3, 1, v22")
    a("v_mul_u32_u24 v3, 640, v3")
    a(f"v_add_u32 v{d0}, v2, v3")
    a("v_sub_u32 v2, v2, v3")
    a(f"v_add_u32 v{d1}, 640, v2")


K3_STG = 36864
K3_B = 4 * K3_STG
K3_LDS = K3_B + 10240


def k3():
    a = Asm()
    a.label("k3_kernel")
    if PROF:
        a("s_memtime s[86:87]")
    a("s_cmp_ge_u32 s2, 256")
    a("s_cbranch_scc1 K3_END")
    a("s_load_dwordx2 s[4:5], s[0:1], 16")
    a("s_load_dwordx2 s[8:9], s[0:1], 72")
    a("s_load_dwordx2 s[10:11], s[0:1], 56")
    tile_map(a, 36, 37)
    a("v_and_b32 v1, 63, v0")
    a("v_lshrrev_b32 v2, 6, v0")
    a("v_lshrrev_b32 v22, 4, v1")
    a("v_readfirstlane_b32 s38, v2")
    a("v_and_b32 v23, 15, v1")
    a("s_lshl_b32 s39, s36, 6")
    a("s_mul_i32 s40, s37, 160")
    a("s_and_b32 s49, s38, 3")
    a("s_lshr_b32 s50, s38, 2")
    a("s_lshl_b32 s42, s38, 3")
    for j in range(2):
        a(f"s_add_u32 s43, s42, {4 * j}")
        a("v_add_u32 v2, s43, v22")
        a("v_and_b32 v3, 15, v2")
        a("v_xor_b32 v3, v3, v23")
        a("v_add_u32 v2, s39, v2")
        a("v_mul_u32_u24 v2, 1280, v2")
        a(f"v_lshl_add_u32 v{4 + j}, v3, 4, v2")
    a("s_add_u32 s43, s38, 8")
    a("s_add_u32 s44, s38, 16")
    a("s_cmp_lt_u32 s38, 4")
    a("s_cselect_b32 s44, s44, s43")
    a("v_lshlrev_b32 v2, 4, v1")
    a("s_mul_i32 s55, s37, 102400")
    for j, sp in enumerate((38, 43, 44)):
        a(f"s_lshl_b32 s{52 + j}, s{sp}, 10")
        a(f"s_add_u32 s51, s{52 + j}, s55")
        a(f"v_add_u32 v{8 + j}, s51, v2")
        a(f"s_add_u32 s{52 + j}, s{52 + j}, 16384")
    a("s_lshl_b32 s45, s38, 11")
    a("s_waitcnt lgkmcnt(0)")
    srd_off(a, 12, 8, 9, WS_WO, SZ_WO)
    srd_off(a, 20, 8, 9, WS_O, SZ_O)
    srd_off(a, 24, 8, 9, WS_B, SZ_B)
    srd_off(a, 28, 8, 9, WS_G, SZ_G)
    srd(a, 32, 10, 11, SZ_OUT)
    prof_init(a, 8, 9, 38, 2)
    prof(a, 0)

    def issue(stage, slot):
        a(f"s_mov_b32 s47, {stage * 256}")
        a(f"s_mov_b32 s48, {stage * 20480}")
        for j in range(2):
            a(f"s_add_u32 m0, s45, {slot * K3_STG + j * 1024}")
            a("s_nop 0")
            a(f"buffer_load_dwordx4 v{4 + j}, s[20:23], s47 offen lds")
        for j in range(3):
            a(f"s_add_u32 m0, s{52 + j}, {slot * K3_STG}")
            a("s_nop 0")
            a(f"buffer_load_dwordx4 v{8 + j}, s[12:15], s48 offen lds")

    for st in range(4):
        issue(st, st)
    a("s_lshl_b32 s42, s36, 3")
    a("s_add_u32 s42, s42, s37")
    a("s_lshl_b32 s42, s42, 2")
    a("s_add_u32 s42, s42, s49")
    a("s_mul_i32 s42, s42, 2560")
    a("s_mul_i32 s43, s50, 1536")
    a("s_add_u32 s42, s42, s43")
    a("v_lshlrev_b32 v2, 3, v1")
    for n in range(3):
        a(f"buffer_load_dwordx2 {vr(104 + 2 * n, 2)}, v2, s[24:27], s42 offen offset:{512 * n}")
    a("s_lshl_b32 s42, s49, 4")
    a("v_add_u32 v2, s42, v23")
    a("v_add_u32 v3, s39, v2")
    a("v_lshlrev_b32 v3, 2, v3")
    a("buffer_load_dword v16, v3, s[28:31], 0 offen")
    a("v_mul_u32_u24 v2, 160, v2")
    a("v_lshl_add_u32 v2, v22, 3, v2")
    a("s_mul_i32 s43, s50, 96")
    a(f"s_add_u32 s43, s43, {K3_B}")
    a("v_add_u32 v17, s43, v2")
    for j in range(2):
        a("s_mul_i32 s43, s38, 80")
        a(f"s_add_u32 s43, s43, {64 * j}")
        a("v_add_u32 v2, s43, v1")
        a("v_mul_u32_u24 v3, 6554, v2")
        a("v_lshrrev_b32 v3, 16, v3")
        a("v_mul_u32_u24 v15, 10, v3")
        a("v_sub_u32 v15, v2, v15")
        a("v_lshlrev_b32 v15, 4, v15")
        a("v_add_u32 v3, s39, v3")
        a("v_mul_u32_u24 v3, 1280, v3")
        a(f"v_add3_u32 v{12 + j}, v3, v15, s40")
        a("v_lshlrev_b32 v2, 4, v2")
        a(f"v_add_u32 v{32 + j}, {K3_B}, v2")
    BV = 104
    RA, RW = 24, 28
    a("s_lshl_b32 s43, s49, 12")
    a("v_lshlrev_b32 v2, 8, v23")
    a("v_add_u32 v2, s43, v2")
    a("s_lshl_b32 s43, s50, 3")
    for i in range(2):
        a(f"s_add_u32 s44, s43, {4 * i}")
        a("v_add_u32 v3, s44, v22")
        a("v_xor_b32 v3, v3, v23")
        a(f"v_lshl_add_u32 v{RA + i}, v3, 4, v2")
        a(f"v_add_u32 v{RA + 2 + i}, {2 * K3_STG}, v{RA + i}")
    a("s_mul_i32 s43, s50, 10240")
    a("s_add_u32 s43, s43, 16384")
    wread_addr(a, RW, RW + 1, 43)
    a(f"v_add_u32 v{RW + 2}, {2 * K3_STG}, v{RW}")
    a(f"v_add_u32 v{RW + 3}, {2 * K3_STG}, v{RW + 1}")
    a("v_lshlrev_b32 v21, 4, v1")
    a("s_mul_i32 s43, s49, 5120")
    a(f"s_add_u32 s43, s43, {K3_STG}")
    a("v_add_u32 v21, s43, v21")
    AF = (36, 40)
    WF = (44, 64)
    ACC = 84

    def reads(t):
        st, i = t >> 1, t & 1
        slot = st % 4
        hi = slot >> 1
        so = (slot & 1) * K3_STG
        r = [f"ds_read_b128 {vr(AF[i], 4)}, v{RA + 2 * hi + i} offset:{so}"]
        for n in range(5):
            off = so + i * 5120 + n * 32
            r.append(f"ds_read_b64_tr_b16 {vr(WF[i] + 4 * n, 2)}, v{RW + 2 * hi} offset:{off}")
            r.append(f"ds_read_b64_tr_b16 {vr(WF[i] + 4 * n + 2, 2)}, v{RW + 2 * hi + 1} offset:{off}")
        return r

    def mf(t):
        for n in range(5):
            d = ACC + 4 * n
            c = "0" if t == 0 else vr(d, 4)
            a(f"v_mfma_f32_16x16x32_bf16 {vr(d, 4)}, {vr(WF[t & 1] + 4 * n, 4)}, {vr(AF[t & 1], 4)}, {c}")

    a("s_waitcnt vmcnt(19)")
    a("s_barrier")
    prof(a, 1)
    for r in reads(0) + reads(1):
        a(r)
    a("s_waitcnt vmcnt(4) lgkmcnt(0)")
    a("s_barrier")
    prof(a, 2)
    issue(4, 0)
    mf(0)
    for r in reads(2):
        a(r)
    mf(1)
    for t in range(2, 10):
        if t == 7:
            a("s_waitcnt vmcnt(0)")
            a("s_barrier")
            prof(a, 3)
        if t < 9:
            for r in reads(t + 1):
                a(r)
            a("s_waitcnt lgkmcnt(11)")
        else:
            a("s_waitcnt lgkmcnt(0)")
        mf(t)
    a("v_sub_f32 v18, 1.0, v16")
    a("v_cvt_pk_bf16_f32 v18, v18, v18")
    a("v_lshlrev_b32 v18, 16, v18")
    a("s_nop 7")
    prof(a, 6)
    XR = 44
    a("s_cmp_eq_u32 s50, 0")
    a("s_cbranch_scc0 K3_X1")
    for n in (3, 4):
        a(f"ds_write_b128 v21, {vr(ACC + 4 * n, 4)} offset:{1024 * n}")
    a("s_waitcnt lgkmcnt(0)")
    a("s_barrier")
    for n in range(3):
        a(f"ds_read_b128 {vr(XR + 4 * n, 4)}, v21 offset:{1024 * n}")
    a("s_branch K3_FIN")
    a.label("K3_X1")
    for n in range(3):
        a(f"ds_write_b128 v21, {vr(ACC + 4 * n, 4)} offset:{1024 * n}")
    a("s_waitcnt lgkmcnt(0)")
    a("s_barrier")
    for n in (3, 4):
        a(f"ds_read_b128 {vr(XR + 4 * (n - 3), 4)}, v21 offset:{1024 * n}")
    for i in range(8):
        a(f"v_mov_b32 v{ACC + i}, v{ACC + 12 + i}")
    a.label("K3_FIN")
    a("s_waitcnt lgkmcnt(0)")
    for n in range(3):
        if n == 2:
            a("s_cmp_eq_u32 s50, 0")
            a("s_cbranch_scc0 K3_CP")
        for i in range(4):
            a(f"v_add_f32 v{ACC + 4 * n + i}, v{ACC + 4 * n + i}, v{XR + 4 * n + i}")
        for h in range(2):
            e = ACC + 4 * n + 2 * h
            bp = BV + 2 * n + h
            a(f"v_cvt_pk_bf16_f32 v19, v{e}, v{e + 1}")
            a("v_lshlrev_b32 v4, 16, v19")
            a("v_and_b32 v5, 0xffff0000, v19")
            a(f"v_lshlrev_b32 v6, 16, v{bp}")
            a(f"v_and_b32 v7, 0xffff0000, v{bp}")
            a("v_mul_f32 v4, v16, v4")
            a("v_mul_f32 v5, v16, v5")
            a("v_mul_f32 v6, v18, v6")
            a("v_mul_f32 v7, v18, v7")
            a("v_cvt_pk_bf16_f32 v19, v4, v5")
            a("v_cvt_pk_bf16_f32 v20, v6, v7")
            a("v_lshlrev_b32 v4, 16, v19")
            a("v_and_b32 v5, 0xffff0000, v19")
            a("v_lshlrev_b32 v6, 16, v20")
            a("v_and_b32 v7, 0xffff0000, v20")
            a("v_add_f32 v4, v4, v6")
            a("v_add_f32 v5, v5, v7")
            a(f"v_cvt_pk_bf16_f32 v{bp}, v4, v5")
        a(f"ds_write_b64 v17, {vr(BV + 2 * n, 2)} offset:{32 * n}")
    a.label("K3_CP")
    a("s_waitcnt lgkmcnt(0)")
    a("s_barrier")
    a("ds_read_b128 v[4:7], v32")
    a("ds_read_b128 v[8:11], v33")
    a("s_waitcnt lgkmcnt(1)")
    a("buffer_store_dwordx4 v[4:7], v12, s[32:35], 0 offen")
    a("v_cmp_gt_u32 vcc, 16, v1")
    a("s_and_saveexec_b64 s[50:51], vcc")
    a("s_waitcnt lgkmcnt(0)")
    a("buffer_store_dwordx4 v[8:11], v13, s[32:35], 0 offen")
    a("s_mov_b64 exec, s[50:51]")
    a.label("K3_PEND")
    prof(a, 12)
    a.label("K3_END")
    a("s_endpgm")
    return a.text()


def desc(name, vgpr, sgpr=96):
    acc = (vgpr + 3) // 4 * 4
    return f""".amdhsa_kernel {name}
  .amdhsa_next_free_vgpr {vgpr}
  .amdhsa_next_free_sgpr {sgpr}
  .amdhsa_accum_offset {acc}
  .amdhsa_group_segment_fixed_size 0
  .amdhsa_kernarg_size 80
  .amdhsa_user_sgpr_count 2
  .amdhsa_user_sgpr_kernarg_segment_ptr 1
  .amdhsa_system_sgpr_workgroup_id_x 1
.end_amdhsa_kernel
"""


def main():
    l3 = "" if XP_FUSE else f"; @launch kernel=k3_kernel grid=(256,1,1) block=(512,1,1) lds={K3_LDS}\n"
    hdr = f"""; gated_mix__mha_block__dense_activation_relu__prompt : kernel list (generated by gen.py, hand-designed)
; @launch kernel=k1_kernel grid=(256,1,1) block=(512,1,1) lds={K1_LDS}
; @launch kernel=k2_kernel grid=(256,1,1) block=(768,1,1) lds={K2_LDS}
{l3}.amdgcn_target "amdgcn-amd-amdhsa--gfx950"
.text
"""
    body = ""
    for name, fn in (("k1_kernel", k1), ("k2_kernel", k2), ("k3_kernel", k3))[:2 if XP_FUSE else 3]:
        body += f".globl {name}\n.p2align 8\n.type {name},@function\n" + fn()
    tail = '.section .rodata,"a"\n.p2align 6\n'
    tail += desc("k1_kernel", 176)
    tail += ".p2align 6\n" + desc("k2_kernel", 144)
    if not XP_FUSE:
        tail += ".p2align 6\n" + desc("k3_kernel", 116)
    open(OUT, "w").write(hdr + body + tail)


if __name__ == "__main__":
    main()
```

```python
import struct, sys

OUT = sys.argv[1] if len(sys.argv) > 1 else "gated_mix__mha_block__dense_activation_relu__prompt.s"

WS_Q = 0
SZ_Q = 32 * 2048 * 48
WS_KV = 0x400000
HEAD_KV = 64 * 2880
SZ_KV = 32 * HEAD_KV
WS_H = 0xC00000
SZ_H = 2048 * 3456
WS_O = 0x1400000
SZ_O = 2048 * 1280
WS_G = 0x1800000
SZ_G = 2048 * 4
WS_B = 0x1A00000
SZ_B = 2048 * 1280
WS_WO = 0x1E00000
WS_W2P = 0x2400000
WS_CNT = 0x2800000

SZ_X = 2048 * 1280
SZ_WQKV = 640 * 3840
SZ_WO = 640 * 1280
SZ_W1 = 640 * 3456
SZ_W2 = 1728 * 1280
SZ_OUT = 2048 * 1280


def f32bits(x):
    return struct.unpack("<I", struct.pack("<f", x))[0]


C_SCALE = 1.4426950408889634 / (20 ** 0.5)
LOG2E = 1.4426950408889634


PROF = int(__import__("os").environ.get("PROF", "0"))
WS_T = 0x2000000
XP_PF = int(__import__("os").environ.get("XP_PF", "0"))
XP_ROT = int(__import__("os").environ.get("XP_ROT", "1"))
XP_PRIO = int(__import__("os").environ.get("XP_PRIO", "0"))
XP_RPM = int(__import__("os").environ.get("XP_RPM", "1"))
XP_DSL = eval(__import__("os").environ.get("XP_DSL", "(7, 10, 13)"))
XP_FDEL = int(__import__("os").environ.get("XP_FDEL", "1"))
XP_FS = eval(__import__("os").environ.get("XP_FS", "(1, 3, 3, 3, 2, 2)"))
XP_QX = int(__import__("os").environ.get("XP_QX", "0"))
XP_PF2 = int(__import__("os").environ.get("XP_PF2", "0"))
XP_NOLDS = int(__import__("os").environ.get("XP_NOLDS", "0"))
XP_NOFFN = int(__import__("os").environ.get("XP_NOFFN", "0"))
XP_K8 = int(__import__("os").environ.get("XP_K8", "1"))
XP_PR = eval(__import__("os").environ.get("XP_PR", "(3, 3, 3, 2, 2, 2, 1, 1)"))
XP_FP = int(__import__("os").environ.get("XP_FP", "0"))
XP_FE = int(__import__("os").environ.get("XP_FE", "3"))
XP_FPIPE = int(__import__("os").environ.get("XP_FPIPE", "1"))
XP_FB = int(__import__("os").environ.get("XP_FB", "2"))
XP_FUSE = int(__import__("os").environ.get("XP_FUSE", "1"))
XP_ES = int(__import__("os").environ.get("XP_ES", "1"))
XP_FJ = int(__import__("os").environ.get("XP_FJ", "1"))
XP_GF = int(__import__("os").environ.get("XP_GF", "1"))
XP_NODMA = int(__import__("os").environ.get("XP_NODMA", "0"))
XP_NOBAR = int(__import__("os").environ.get("XP_NOBAR", "0"))


def prof_init(a, wsl, wsh, wave_s, kidx=0):
    if not PROF:
        return
    a(f"s_add_u32 s92, s{wsl}, {WS_T + kidx * 0x100000}")
    a(f"s_addc_u32 s93, s{wsh}, 0")
    a("s_and_b32 s93, s93, 0xffff")
    a("s_mov_b32 s94, 0x100000")
    a("s_mov_b32 s95, 0x00020000")
    a("s_lshl_b32 s91, s2, 4")
    a(f"s_add_u32 s91, s91, s{wave_s}")
    a("s_lshl_b32 s91, s91, 7")


def prof(a, slot, tmpv=2):
    if not PROF:
        return
    a("s_memtime s[88:89]")
    a("s_waitcnt lgkmcnt(0)")
    a(f"v_mov_b32 v{tmpv}, s88")
    a(f"v_mov_b32 v{tmpv + 1}, 0")
    a(f"buffer_store_dword v{tmpv}, v{tmpv + 1}, s[92:95], s91 offen offset:{4 * slot}")
    if slot == 0:
        a(f"v_mov_b32 v{tmpv}, s86")
        a(f"buffer_store_dword v{tmpv}, v{tmpv + 1}, s[92:95], s91 offen offset:60")
    if slot in (0, 12):
        a("s_memrealtime s[88:89]")
        a("s_waitcnt lgkmcnt(0)")
        a(f"v_mov_b32 v{tmpv}, s88")
        a(f"buffer_store_dword v{tmpv}, v{tmpv + 1}, s[92:95], s91 offen offset:{4 * (13 if slot == 0 else 14)}")


class Asm:
    def __init__(self):
        self.lines = []

    def __call__(self, s):
        self.lines.append("    " + s)

    def label(self, l):
        self.lines.append(l + ":")

    def c(self, s):
        self.lines.append("    ; " + s)

    def text(self):
        return "\n".join(self.lines) + "\n"


def vr(b, n=1):
    return f"v{b}" if n == 1 else f"v[{b}:{b + n - 1}]"


def sr(b, n=1):
    return f"s{b}" if n == 1 else f"s[{b}:{b + n - 1}]"


def srd(a, d, lo, hi, size):
    a(f"s_mov_b32 s{d}, s{lo}")
    a(f"s_and_b32 s{d + 1}, s{hi}, 0xffff")
    a(f"s_mov_b32 s{d + 2}, {size}")
    a(f"s_mov_b32 s{d + 3}, 0x00020000")


def srd_off(a, d, lo, hi, off, size):
    a(f"s_add_u32 s{d}, s{lo}, {off}")
    a(f"s_addc_u32 s{d + 1}, s{hi}, 0")
    a(f"s_and_b32 s{d + 1}, s{d + 1}, 0xffff")
    a(f"s_mov_b32 s{d + 2}, {size}")
    a(f"s_mov_b32 s{d + 3}, 0x00020000")


K1_STAGE = 45056
K1_LDS = 3 * K1_STAGE


def k1():
    a = Asm()
    a.label("k1_kernel")
    if PROF:
        a("s_memtime s[86:87]")
    a("s_cmp_ge_u32 s2, 256")
    a("s_cbranch_scc1 K1_END")
    a("s_and_b32 s3, s2, 7")
    a("s_lshr_b32 s4, s2, 3")
    a("s_lshl_b32 s3, s3, 5")
    a("s_add_u32 s3, s3, s4")
    a("s_cmp_ge_u32 s3, 253")
    a("s_cbranch_scc1 K1_PACK")
    a("s_mul_i32 s25, s3, 373")
    a("s_lshr_b32 s25, s25, 12")
    a("s_mul_i32 s4, s25, 11")
    a("s_sub_u32 s24, s3, s4")
    a("s_load_dwordx2 s[4:5], s[0:1], 0")
    a("s_load_dwordx2 s[6:7], s[0:1], 8")
    a("s_load_dwordx2 s[8:9], s[0:1], 32")
    a("s_load_dwordx2 s[10:11], s[0:1], 72")
    a("s_load_dwordx2 s[64:65], s[0:1], 40")
    a("v_and_b32 v1, 63, v0")
    a("v_lshrrev_b32 v2, 6, v0")
    a("s_nop 0")
    a("v_readfirstlane_b32 s26, v2")
    a("s_mul_i32 s72, s3, 547")
    a("s_lshr_b32 s27, s25, 2")
    a("s_min_u32 s27, s27, 3")
    a("s_mul_i32 s30, s24, 192")
    a("s_waitcnt lgkmcnt(0)")
    srd(a, 12, 4, 5, SZ_X)
    a("s_sub_u32 s29, s25, 12")
    a(f"s_mov_b32 s18, {SZ_W1}")
    a("s_mov_b32 s28, 3456")
    a("s_cmp_lt_u32 s25, 12")
    a("s_cselect_b32 s16, s6, s8")
    a("s_cselect_b32 s17, s7, s9")
    a(f"s_cselect_b32 s18, {SZ_WQKV}, s18")
    a("s_cselect_b32 s28, 3840, s28")
    a("s_cselect_b32 s29, s25, s29")
    a("s_and_b32 s17, s17, 0xffff")
    a("s_mov_b32 s19, 0x00020000")
    a("s_mul_i32 s29, s29, 160")
    a(f"s_mov_b32 s31, {WS_KV}")
    a(f"s_mov_b32 s22, {SZ_KV}")
    a("s_cmp_eq_u32 s27, 0")
    a(f"s_cselect_b32 s31, {WS_Q}, s31")
    a(f"s_cselect_b32 s22, {SZ_Q}, s22")
    a("s_cmp_eq_u32 s27, 3")
    a(f"s_cselect_b32 s31, {WS_H}, s31")
    a(f"s_cselect_b32 s22, {SZ_H}, s22")
    a("s_add_u32 s20, s10, s31")
    a("s_addc_u32 s21, s11, 0")
    a("s_and_b32 s21, s21, 0xffff")
    a("s_mov_b32 s23, 0x00020000")
    prof_init(a, 10, 11, 26, 0)
    prof(a, 0)
    a("s_and_b32 s65, s65, 0xffff")
    a(f"s_mov_b32 s66, {SZ_W2}")
    a("s_mov_b32 s67, 0x00020000")
    srd_off(a, 68, 10, 11, WS_W2P, SZ_W2)
    a("v_add_u32 v164, s72, v0")
    a("v_add_u32 v165, 512, v164")
    a("v_bfrev_b32 v2, 1")
    a("v_cmp_gt_u32 vcc, 35, v0")
    a("v_lshlrev_b32 v166, 4, v164")
    a("v_cndmask_b32 v165, v2, v165, vcc")
    a("v_lshlrev_b32 v2, 4, v165")
    a("v_cndmask_b32 v167, v165, v2, vcc")
    a("s_lshr_b32 s32, s26, 1")
    a("s_and_b32 s33, s26, 1")
    a("v_lshrrev_b32 v2, 3, v1")
    a("v_and_b32 v3, 7, v1")
    a("v_xor_b32 v3, v3, v2")
    a("v_lshlrev_b32 v3, 4, v3")
    a("v_mul_u32_u24 v2, 1280, v2")
    a("v_add_u32 v4, v2, v3")
    a("v_add_u32 v5, 10240, v4")
    a("v_add_u32 v6, 20480, v4")
    a("s_mul_i32 s34, s26, 24")
    a("s_add_u32 s34, s34, s30")
    a("s_mul_i32 s34, s34, 1280")
    a("s_mov_b32 s35, 0")
    a("s_lshl_b32 s36, s28, 6")
    a("s_add_u32 s62, s34, 1280")
    a("s_mul_i32 s61, s28, 640")
    a("s_add_u32 s60, s24, s25")
    a("s_mul_i32 s63, s60, 43")
    a("s_lshr_b32 s63, s63, 7")
    a("s_mul_i32 s63, s63, 3")
    a("s_sub_u32 s60, s60, s63")
    a(f"s_mul_i32 s60, s60, {XP_ROT}")
    a("s_lshl_b32 s63, s60, 7")
    a("s_add_u32 s34, s34, s63")
    a("s_mul_i32 s35, s60, s36")
    a("s_add_u32 s37, s26, 8")
    a("s_add_u32 s38, s26, 16")
    a("s_cmp_lt_u32 s26, 4")
    a("s_cselect_b32 s38, s38, s37")
    a("s_lshl_b32 s39, s29, 1")
    for j, sidx in enumerate((26, 37, 38)):
        a(f"s_lshl_b32 s40, s{sidx}, 6")
        a("v_add_u32 v2, s40, v1")
        a("v_mul_u32_u24 v3, 3277, v2")
        a("v_lshrrev_b32 v3, 16, v3")
        a("v_mul_u32_u24 v22, 20, v3")
        a("v_sub_u32 v2, v2, v22")
        a("v_lshrrev_b32 v22, 2, v3")
        a("v_and_b32 v22, 2, v22")
        a("v_xor_b32 v2, v2, v22")
        a("v_lshlrev_b32 v2, 4, v2")
        a("v_mul_lo_u32 v3, v3, s28")
        a(f"v_add3_u32 v{7 + j}, v2, v3, s39")
    a("s_mul_i32 s41, s26, 3072")
    a("s_lshl_b32 s42, s26, 10")
    a("s_add_u32 s42, s42, 24576")
    a("s_lshl_b32 s43, s37, 10")
    a("s_add_u32 s43, s43, 24576")
    a("s_lshl_b32 s44, s38, 10")
    a("s_add_u32 s44, s44, 24576")

    def dma_pieces(buf):
        base = buf * K1_STAGE
        g = []
        for j in range(3):
            x = [f"s_add_u32 m0, s41, {base + j * 1024}", "s_nop 0",
                 f"buffer_load_dwordx4 v{4 + j}, s[12:15], s34 offen lds"]
            if j == 2:
                x += ["s_add_u32 s34, s34, 128", "s_sub_u32 s60, s34, 1280", "s_cmp_ge_u32 s34, s62",
                      "s_cselect_b32 s34, s60, s34"]
            g.append(x)
        for j in range(3):
            x = [f"s_add_u32 m0, s{42 + j}, {base}", "s_nop 0",
                 f"buffer_load_dwordx4 v{7 + j}, s[16:19], s35 offen lds"]
            if j == 2:
                x += ["s_add_u32 s35, s35, s36", "s_cmp_ge_u32 s35, s61", "s_cselect_b32 s35, 0, s35"]
            g.append(x)
        return g

    for b in range(3):
        for g in dma_pieces(b):
            for x in g:
                a(x)
    NPF = 2
    a("buffer_load_dwordx4 v[168:171], v166, s[64:67], 0 offen")
    a("buffer_load_dwordx4 v[172:175], v167, s[64:67], 0 offen")
    a("s_mov_b32 s72, 53687092")
    a("s_mov_b32 s73, 276480")
    for r in (164, 165):
        a(f"v_mul_hi_u32 v24, v{r}, s72")
        a("v_mul_u32_u24 v25, 80, v24")
        a(f"v_sub_u32 v25, v{r}, v25")
        a("v_mul_u32_u24 v26, 6554, v25")
        a("v_lshrrev_b32 v26, 16, v26")
        a("v_mul_u32_u24 v27, 10, v26")
        a("v_sub_u32 v25, v25, v27")
        a("v_mul_u32_u24 v24, 160, v24")
        a("v_mul_lo_u32 v26, v26, s73")
        a("v_lshl_add_u32 v24, v25, 4, v24")
        a("v_add_u32 v24, v24, v26")
        a(f"v_cmp_gt_u32 vcc, {1728 * 80}, v{r}")
        a("v_bfrev_b32 v26, 1")
        a(f"v_cndmask_b32 v{r}, v26, v24, vcc")
    if XP_PF > 1:
        NPF = 3
        a("s_lshr_b32 s45, s2, 3")
        a("s_mul_i32 s45, s45, 81920")
        a("v_lshlrev_b32 v2, 7, v0")
        a("buffer_load_dword v160, v2, s[12:15], s45 offen")
        a("v_add_u32 v3, 0x10000, v2")
        a("v_cmp_gt_u32 vcc, 128, v0")
        a("v_bfrev_b32 v22, 1")
        a("v_cndmask_b32 v3, v22, v3, vcc")
        a("buffer_load_dword v161, v3, s[12:15], s45 offen")
        a("v_mul_u32_u24 v2, 21846, v0")
        a("v_lshrrev_b32 v2, 16, v2")
        a("v_mul_u32_u24 v3, 3, v2")
        a("v_sub_u32 v3, v0, v3")
        a("v_lshlrev_b32 v3, 7, v3")
        a("s_mul_i32 s45, s24, 59")
        a("v_add_u32 v2, s45, v2")
        a("v_cmp_gt_u32 vcc, 177, v0")
        a("v_mul_lo_u32 v2, v2, s28")
        a("v_add3_u32 v2, v2, v3, s39")
        a("v_cndmask_b32 v2, v22, v2, vcc")
        a("buffer_load_dword v162, v2, s[16:19], 0 offen")
    a("v_lshrrev_b32 v22, 4, v1")
    a("v_and_b32 v23, 15, v1")
    a("s_mul_i32 s45, s32, 48")
    a("v_add_u32 v2, s45, v23")
    a("v_lshlrev_b32 v2, 7, v2")
    a("v_and_b32 v3, 7, v23")
    a("v_xor_b32 v3, v3, v22")
    a("v_lshlrev_b32 v3, 4, v3")
    a("v_add_u32 v10, v2, v3")
    a("v_xor_b32 v11, 64, v10")
    for b in (1, 2):
        a(f"v_add_u32 v{10 + 2 * b}, {b * K1_STAGE}, v10")
        a(f"v_add_u32 v{11 + 2 * b}, {b * K1_STAGE}, v11")
    a("v_lshlrev_b32 v2, 3, v22")
    a("v_lshrrev_b32 v3, 2, v23")
    a("v_add_u32 v2, v2, v3")
    a("v_mul_u32_u24 v2, 320, v2")
    a("v_and_b32 v3, 3, v23")
    a("v_lshlrev_b32 v3, 3, v3")
    a("s_mul_i32 s45, s33, 160")
    a("s_add_u32 s45, s45, 24576")
    a("v_add3_u32 v2, v2, v3, s45")
    a("v_and_b32 v3, 1, v22")
    a("v_lshlrev_b32 v3, 5, v3")
    a("s_cmp_eq_u32 s33, 0")
    a("s_cselect_b32 s45, 1, -1")
    a("v_mul_lo_u32 v3, v3, s45")
    a("v_add_u32 v16, v2, v3")
    a("v_sub_u32 v17, v2, v3")
    for b in (1, 2):
        a(f"v_add_u32 v{16 + 2 * b}, {b * K1_STAGE}, v16")
        a(f"v_add_u32 v{17 + 2 * b}, {b * K1_STAGE}, v17")

    XF = (24, 36)
    WF = (48, 68)
    ACC = 88

    def reads(buf, sub, st):
        r = []
        for ti in range(3):
            r.append(f"ds_read_b128 {vr(XF[st] + 4 * ti, 4)}, v{10 + 2 * buf + sub} offset:{ti * 2048}")
        for ni in range(5):
            ad = 16 + 2 * buf + (ni & 1)
            off = ni * 32 + sub * 10240
            r.append(f"ds_read_b64_tr_b16 {vr(WF[st] + 4 * ni, 2)}, v{ad} offset:{off}")
            r.append(f"ds_read_b64_tr_b16 {vr(WF[st] + 4 * ni + 2, 2)}, v{ad} offset:{off + 1280}")
        return r

    def mfmas(st, vor, first):
        m = []
        for ni in range(5):
            for ti in range(3):
                d = ACC + 4 * (ni * 3 + ti)
                c = "0" if first else vr(d, 4)
                w = vr(WF[st] + 4 * ni, 4)
                x = vr(XF[st] + 4 * ti, 4)
                if vor:
                    m.append(f"v_mfma_f32_16x16x32_bf16 {vr(d, 4)}, {x}, {w}, {c}")
                else:
                    m.append(f"v_mfma_f32_16x16x32_bf16 {vr(d, 4)}, {w}, {x}, {c}")
        return m

    def phase(ms, rs, ds):
        rs = list(rs)
        ds = list(ds)
        for i, m in enumerate(ms):
            a(m)
            for _ in range(XP_RPM):
                if rs:
                    a(rs.pop(0))
            if ds and i in XP_DSL:
                for x in ds.pop(0):
                    a(x)

    def loop(vor):
        a(f"s_waitcnt vmcnt({12 + NPF})")
        a("s_barrier")
        prof(a, 1)
        for r in reads(0, 0, 0):
            a(r)
        pend = []
        for ks in range(10):
            buf = ks % 3
            a("s_waitcnt lgkmcnt(0)")
            phase(mfmas(0, vor, ks == 0), reads(buf, 1, 1), pend)
            pend = []
            nxt = []
            if ks < 9:
                a(f"s_waitcnt vmcnt({(6 + NPF if ks in (0, 1, 3) else 6) if ks < 8 else 0}) lgkmcnt(0)")
                a("s_barrier")
                if ks == 2:
                    a("buffer_store_dwordx4 v[168:171], v164, s[68:71], 0 offen")
                    a("buffer_store_dwordx4 v[172:175], v165, s[68:71], 0 offen")
                prof(a, 2 + ks)
                nxt = reads((ks + 1) % 3, 0, 0)
            else:
                a("s_waitcnt lgkmcnt(0)")
            d = []
            if ks + 3 < 10:
                p = dma_pieces(buf)
                d = p[:3]
                pend = p[3:]
            phase(mfmas(1, vor, False), nxt, d)
        a("s_barrier")
        a("s_nop 7")
        a("s_nop 3")
        prof(a, 11)

    a("s_cmp_eq_u32 s27, 2")
    a("s_cbranch_scc1 K1_VLOOP")
    loop(False)
    a("s_mul_i32 s45, s32, 48")
    a("v_add_u32 v4, s45, v23")
    a("s_cmp_eq_u32 s27, 3")
    a("s_cbranch_scc1 K1_EPI_FFN")
    a("s_cmp_eq_u32 s27, 0")
    a(f"s_cselect_b32 s48, {f32bits(C_SCALE)}, 1.0")
    NO = 148
    a("v_mul_u32_u24 v4, 48, v4")
    a("s_mul_i32 s46, s33, 36864")
    a("v_add_u32 v4, s46, v4")
    for ni in range(5):
        a(f"v_add_u32 v2, {4 * ni}, v22")
        a("v_mul_u32_u24 v3, 13, v2")
        a("v_lshrrev_b32 v3, 6, v3")
        a("v_mul_u32_u24 v5, 5, v3")
        a(f"v_sub_u32 v{NO + 5 + ni}, v2, v5")
        a("v_mul_u32_u24 v3, 9216, v3")
        a(f"v_lshl_add_u32 v3, v{NO + 5 + ni}, 3, v3")
        a(f"v_add_u32 v{NO + ni}, v3, v4")
    a("v_mov_b32 v8, 0x3f803f80")
    a("v_mov_b32 v9, 0x00003f80")
    for ti in range(3):
        for ni in range(5):
            d = ACC + 4 * (ni * 3 + ti)
            for i in range(4):
                a(f"v_mul_f32 v{d + i}, s48, v{d + i}")
            a(f"v_cvt_pk_bf16_f32 v{d}, v{d}, v{d + 1}")
            a(f"v_cvt_pk_bf16_f32 v{d + 1}, v{d + 2}, v{d + 3}")
            a(f"ds_write_b64 v{NO + ni}, {vr(d, 2)} offset:{768 * ti}")
    for ni in range(1, 5):
        a(f"v_cmp_eq_u32 vcc, 4, v{NO + 5 + ni}")
        a("s_and_saveexec_b64 s[50:51], vcc")
        for ti in range(3):
            a(f"ds_write_b64 v{NO + ni}, v[8:9] offset:{768 * ti + 8}")
        a("s_mov_b64 exec, s[50:51]")
    a("s_mul_i32 s52, s26, 9216")
    a("s_and_b32 s46, s25, 3")
    a("s_lshl_b32 s46, s46, 3")
    a("s_add_u32 s46, s46, s26")
    a("s_sub_u32 s57, 2048, s30")
    a("s_min_u32 s57, s57, 192")
    a("s_mul_i32 s57, s57, 3")
    a("s_mov_b32 s56, 0")
    a("s_mov_b32 s58, 1000")
    a("s_cmp_eq_u32 s27, 0")
    a("s_cbranch_scc0 K1_CPK")
    a("s_mul_i32 s53, s46, 98304")
    a("s_mul_i32 s47, s30, 48")
    a("s_add_u32 s53, s53, s47")
    a("s_mov_b32 s54, 0")
    a("s_mov_b32 s55, 0")
    a("s_branch K1_COPY")
    a.label("K1_CPK")
    a(f"s_mul_i32 s53, s46, {HEAD_KV}")
    a("s_mul_i32 s47, s30, 90")
    a("s_add_u32 s53, s53, s47")
    a("s_mov_b32 s54, 683")
    a("s_mov_b32 s55, 1344")
    a("s_branch K1_COPY")
    a.label("K1_EPI_FFN")
    a("v_lshrrev_b32 v2, 2, v23")
    a("v_sub_u32 v2, 0, v2")
    a("v_and_b32 v2, 3, v2")
    a("v_and_b32 v3, 1, v22")
    a("v_lshlrev_b32 v3, 3, v3")
    a("v_lshl_add_u32 v3, v23, 6, v3")
    a("v_lshrrev_b32 v4, 1, v22")
    a("s_mul_i32 s46, s33, 10")
    for ni in range(5):
        a(f"s_add_u32 s47, s46, {2 * ni}")
        a("v_add_u32 v5, s47, v4")
        a("v_lshrrev_b32 v6, 2, v5")
        a("v_and_b32 v5, 3, v5")
        a("v_xor_b32 v5, v5, v2")
        a("v_lshl_add_u32 v6, v6, 12, v3")
        a(f"v_lshl_add_u32 v{148 + ni}, v5, 4, v6")
    for ti in range(3):
        a(f"s_add_u32 s46, s45, {16 * ti}")
        a("s_lshr_b32 s47, s46, 6")
        a("s_mul_i32 s47, s47, 20480")
        a("s_and_b32 s46, s46, 63")
        a("s_lshl_b32 s46, s46, 6")
        a("s_add_u32 s46, s46, s47")
        for ni in range(5):
            d = ACC + 4 * (ni * 3 + ti)
            for i in range(4):
                a(f"v_max_f32 v{d + i}, 0, v{d + i}")
            a(f"v_cvt_pk_bf16_f32 v{d}, v{d}, v{d + 1}")
            a(f"v_cvt_pk_bf16_f32 v{d + 1}, v{d + 2}, v{d + 3}")
            a(f"v_add_u32 v4, s46, v{148 + ni}")
            a(f"ds_write_b64 v4, {vr(d, 2)}")
    a("s_mul_i32 s52, s26, 2560")
    a("s_lshr_b32 s46, s30, 6")
    a("s_mul_i32 s46, s46, 54")
    a("s_lshr_b32 s47, s29, 5")
    a("s_add_u32 s46, s46, s47")
    a("s_lshl_b32 s53, s46, 12")
    a("s_add_u32 s53, s53, s52")
    a("s_mov_b32 s54, 410")
    a(f"s_mov_b32 s55, {221184 - 2560}")
    a(f"s_mov_b32 s56, {20480 - 2560}")
    a("s_sub_u32 s57, 2048, s30")
    a("s_min_u32 s57, s57, 192")
    a("s_lshr_b32 s57, s57, 6")
    a("s_mul_i32 s57, s57, 160")
    a("s_sub_u32 s58, 1728, s29")
    a("s_min_u32 s58, s58, 160")
    a("s_lshl_b32 s58, s58, 3")
    a("s_mul_i32 s47, s26, 160")
    a("s_sub_i32 s58, s58, s47")
    a("s_branch K1_COPY")
    a.label("K1_VLOOP")
    loop(True)
    a("s_mul_i32 s46, s33, 32256")
    for ni in range(5):
        a(f"v_add_u32 v2, {16 * ni}, v23")
        a("v_mul_u32_u24 v3, 205, v2")
        a("v_lshrrev_b32 v3, 12, v3")
        a("v_mul_u32_u24 v4, 20, v3")
        a(f"v_sub_u32 v{NO + 10 + ni}, v2, v4")
        a("v_mul_u32_u24 v3, 8064, v3")
        a(f"v_lshlrev_b32 v4, 6, v{NO + 10 + ni}")
        a(f"v_add3_u32 v{NO + ni}, v3, v4, s46")
        a(f"v_bfe_u32 v{NO + 5 + ni}, v{NO + 10 + ni}, 2, 2")
    a("v_mov_b32 v8, 0x3f803f80")
    a("v_mov_b32 v9, 0x3f803f80")
    a("s_mul_i32 s45, s32, 48")
    for ti in range(3):
        a(f"s_add_u32 s49, s45, {16 * ti}")
        a("v_lshlrev_b32 v2, 2, v22")
        a("v_add_u32 v2, s49, v2")
        a("v_lshrrev_b32 v3, 5, v2")
        a("v_mul_u32_u24 v3, 1344, v3")
        a("v_bfe_u32 v2, v2, 2, 3")
        a("v_bfe_u32 v4, v2, 1, 1")
        a("v_lshl_add_u32 v10, v4, 3, v3")
        a("v_lshrrev_b32 v4, 1, v2")
        a("v_and_b32 v4, 2, v4")
        a("v_and_b32 v2, 1, v2")
        a("v_or_b32 v11, v2, v4")
        for ni in range(5):
            d = ACC + 4 * (ni * 3 + ti)
            a(f"v_cvt_pk_bf16_f32 v{d}, v{d}, v{d + 1}")
            a(f"v_cvt_pk_bf16_f32 v{d + 1}, v{d + 2}, v{d + 3}")
            a(f"v_xor_b32 v6, v11, v{NO + 5 + ni}")
            a("v_lshlrev_b32 v6, 4, v6")
            a(f"v_add3_u32 v6, v6, v10, v{NO + ni}")
            a(f"ds_write_b64 v6, {vr(d, 2)}")
            if ni < 4:
                a("v_xor_b32 v7, 1, v11")
                a("v_lshlrev_b32 v7, 4, v7")
                a(f"v_add3_u32 v7, v7, v10, v{NO + ni}")
                a(f"v_cmp_eq_u32 vcc, 0, v{NO + 10 + ni}")
                a("s_and_saveexec_b64 s[50:51], vcc")
                a("ds_write_b64 v7, v[8:9] offset:1280")
                a("s_mov_b64 exec, s[50:51]")
    a("s_mul_i32 s52, s26, 8064")
    a("s_and_b32 s46, s25, 3")
    a("s_lshl_b32 s46, s46, 3")
    a("s_add_u32 s46, s46, s26")
    a(f"s_mul_i32 s53, s46, {HEAD_KV}")
    a("s_mul_i32 s47, s30, 90")
    a("s_add_u32 s53, s53, s47")
    a("s_add_u32 s53, s53, 1536")
    a("s_mov_b32 s54, 781")
    a("s_mov_b32 s55, 1536")
    a("s_mov_b32 s56, 0")
    a("s_sub_u32 s57, 2048, s30")
    a("s_min_u32 s57, s57, 192")
    a("s_lshr_b32 s57, s57, 5")
    a("s_mul_i32 s57, s57, 84")
    a("s_mov_b32 s58, 1000")
    a.label("K1_COPY")
    a("s_mov_b32 s59, 160")
    for it in range(9):
        ga = 24 + it
        la = 34 + it
        a(f"v_add_u32 v2, {64 * it}, v1")
        a("v_mul_lo_u32 v3, v2, s54")
        a("v_lshrrev_b32 v3, 16, v3")
        a("v_lshlrev_b32 v4, 4, v2")
        a("v_mul_lo_u32 v5, v3, s55")
        a(f"v_add3_u32 v{ga}, v4, v5, s53")
        a("v_mul_lo_u32 v5, v3, s56")
        a(f"v_add3_u32 v{la}, v4, v5, s52")
        a("v_mul_lo_u32 v5, v3, s59")
        a("v_sub_u32 v5, v2, v5")
        a("v_cmp_gt_u32 vcc, s57, v2")
        a("v_cmp_gt_i32 s[50:51], s58, v5")
        a("s_and_b64 vcc, vcc, s[50:51]")
        a("v_bfrev_b32 v5, 1")
        a(f"v_cndmask_b32 v{ga}, v5, v{ga}, vcc")
    a("s_waitcnt lgkmcnt(0)")
    a("s_barrier")
    for it in range(9):
        a(f"ds_read_b128 {vr(48 + 4 * it, 4)}, v{34 + it}")
    for it in range(9):
        a(f"s_waitcnt lgkmcnt({8 - it})")
        a(f"buffer_store_dwordx4 {vr(48 + 4 * it, 4)}, v{24 + it}, s[20:23], 0 offen sc1")
    a.label("K1_PEND")
    prof(a, 12)
    a.label("K1_END")
    a("s_endpgm")
    a.label("K1_PACK")
    a("s_load_dwordx2 s[4:5], s[0:1], 16")
    a("s_load_dwordx2 s[6:7], s[0:1], 72")
    a("s_sub_u32 s3, s3, 253")
    a("s_mul_i32 s3, s3, 17408")
    a("v_add_u32 v1, s3, v0")
    a("v_lshlrev_b32 v2, 4, v1")
    a("s_mov_b32 s20, 52429")
    a("s_mov_b32 s21, 102400")
    a("v_bfrev_b32 v3, 1")
    a("s_waitcnt lgkmcnt(0)")
    srd(a, 12, 4, 5, SZ_WO)
    srd_off(a, 16, 6, 7, WS_WO, SZ_WO)
    srd_off(a, 24, 6, 7, WS_CNT, 65536)
    a("v_lshlrev_b32 v4, 8, v1")
    a("v_mov_b32 v5, 0")
    a("buffer_store_dword v5, v4, s[24:27], 0 offen")
    for j in range(34):
        a(f"s_mov_b32 s22, {j * 8192}")
        a(f"buffer_load_dwordx4 {vr(24 + 4 * j, 4)}, v2, s[12:15], s22 offen")
    for j in range(34):
        a(f"v_add_u32 v4, {j * 512}, v1")
        a("v_mul_lo_u32 v5, v4, s20")
        a("v_lshrrev_b32 v5, 22, v5")
        a("v_mul_u32_u24 v6, 80, v5")
        a("v_sub_u32 v6, v4, v6")
        a("v_mul_u32_u24 v7, 6554, v6")
        a("v_lshrrev_b32 v7, 16, v7")
        a("v_mul_u32_u24 v8, 10, v7")
        a("v_sub_u32 v6, v6, v8")
        a("v_lshrrev_b32 v8, 1, v5")
        a("v_and_b32 v8, 4, v8")
        a("v_xor_b32 v5, v5, v8")
        a("v_mul_u32_u24 v5, 160, v5")
        a("v_mul_lo_u32 v7, v7, s21")
        a("v_lshl_add_u32 v5, v6, 4, v5")
        a("v_add_u32 v5, v5, v7")
        a("v_cmp_gt_u32 vcc, 51200, v4")
        a(f"v_cndmask_b32 v{16 + (j & 3)}, v3, v5, vcc")
        a("s_waitcnt vmcnt(33)")
        a(f"buffer_store_dwordx4 {vr(24 + 4 * j, 4)}, v{16 + (j & 3)}, s[16:19], 0 offen")
    a("s_endpgm")
    return a.text()


GS_SLOT = 9216


class GW:
    VA = 4
    VW = 8
    RA = 13
    RW = 14
    AF = 24
    WF = 40
    ACC = 60


def gw_setup(a, sR0, sC0B, strideA, sLds):
    a("v_lshrrev_b32 v22, 4, v1")
    a("v_and_b32 v23, 15, v1")
    a(f"v_lshlrev_b32 v{GW.VA}, 4, v1")
    a(f"v_add_u32 v{GW.VA + 1}, 4096, v{GW.VA}")
    a("v_lshrrev_b32 v2, 2, v23")
    a("v_sub_u32 v2, 0, v2")
    a("v_and_b32 v2, 3, v2")
    a("v_xor_b32 v2, v2, v22")
    a("v_lshlrev_b32 v2, 4, v2")
    a("v_lshl_add_u32 v2, v23, 6, v2")
    a(f"v_add_u32 v{GW.RA}, s{sLds}, v2")
    a("v_lshlrev_b32 v2, 3, v22")
    a("v_lshrrev_b32 v3, 2, v23")
    a("v_add_u32 v2, v2, v3")
    a("v_mul_u32_u24 v2, 160, v2")
    a("v_and_b32 v3, 3, v23")
    a("v_lshlrev_b32 v3, 3, v3")
    a("v_add_u32 v2, 4096, v2")
    a(f"v_add3_u32 v{GW.RW}, v2, v3, s{sLds}")


def gw_pieces(slot, srdA, srdW, sKA, sKW, sLds):
    g = []
    for i in range(4):
        g.append(([f"s_add_u32 m0, s{sLds}, {slot * GS_SLOT}", "s_nop 0"] if i == 0 else []) +
                 [f"buffer_load_dwordx4 v{GW.VA}, {sr(srdA, 4)}, s{sKA} offen offset:{1024 * i} lds"])
    for i in range(4):
        g.append(([f"s_add_u32 m0, s{sLds}, {slot * GS_SLOT + 4096}", "s_nop 0"] if i == 0 else []) +
                 [f"buffer_load_dwordx4 v{GW.VA}, {sr(srdW, 4)}, s{sKW} offen offset:{1024 * i} lds"])
    g.append([f"s_add_u32 m0, s{sLds}, {slot * GS_SLOT + 8192}", "s_nop 0",
              f"buffer_load_dwordx4 v{GW.VA + 1}, {sr(srdW, 4)}, s{sKW} offen lds",
              f"s_add_u32 s{sKA}, s{sKA}, 4096", f"s_add_u32 s{sKW}, s{sKW}, 5120"])
    return g


def gw_issue(a, slot, srdA, srdW, sKA, sKW, sLds):
    for p in gw_pieces(slot, srdA, srdW, sKA, sKW, sLds):
        for x in p:
            a(x)


def gw_compute_pipe(a, slot, first, pieces):
    for t in range(4):
        a(f"ds_read_b128 {vr(GW.AF + 4 * t, 4)}, v{GW.RA} offset:{slot * GS_SLOT + t * 1024}")
    for n in range(5):
        off = slot * GS_SLOT + n * 32
        a(f"ds_read_b64_tr_b16 {vr(GW.WF + 4 * n, 2)}, v{GW.RW} offset:{off}")
        a(f"ds_read_b64_tr_b16 {vr(GW.WF + 4 * n + 2, 2)}, v{GW.RW} offset:{off + 640}")
    a("s_waitcnt lgkmcnt(0)")
    pieces = list(pieces)
    i = 0
    for n in range(5):
        for t in range(4):
            d = GW.ACC + 4 * (n * 4 + t)
            c = "0" if first else vr(d, 4)
            a(f"v_mfma_f32_16x16x32_bf16 {vr(d, 4)}, {vr(GW.WF + 4 * n, 4)}, {vr(GW.AF + 4 * t, 4)}, {c}")
            i += 1
            if pieces and i % XP_FB == 0:
                for x in pieces.pop(0):
                    a(x)
    for p in pieces:
        for x in p:
            a(x)


def gw_compute_jit(a, slot, first):
    for t in range(4):
        a(f"ds_read_b128 {vr(GW.AF + 4 * t, 4)}, v{GW.RA} offset:{slot * GS_SLOT + t * 1024}")
    for n in range(5):
        off = slot * GS_SLOT + n * 32
        a(f"ds_read_b64_tr_b16 {vr(GW.WF + 4 * n, 2)}, v{GW.RW} offset:{off}")
        a(f"ds_read_b64_tr_b16 {vr(GW.WF + 4 * n + 2, 2)}, v{GW.RW} offset:{off + 640}")
        a("s_waitcnt lgkmcnt(0)")
        for t in range(4):
            d = GW.ACC + 4 * (n * 4 + t)
            c = "0" if first else vr(d, 4)
            a(f"v_mfma_f32_16x16x32_bf16 {vr(d, 4)}, {vr(GW.WF + 4 * n, 4)}, {vr(GW.AF + 4 * t, 4)}, {c}")


def gw_compute(a, slot, first):
    if XP_FJ:
        return gw_compute_jit(a, slot, first)
    for t in range(4):
        a(f"ds_read_b128 {vr(GW.AF + 4 * t, 4)}, v{GW.RA} offset:{slot * GS_SLOT + t * 1024}")
    for n in range(5):
        off = slot * GS_SLOT + n * 32
        a(f"ds_read_b64_tr_b16 {vr(GW.WF + 4 * n, 2)}, v{GW.RW} offset:{off}")
        a(f"ds_read_b64_tr_b16 {vr(GW.WF + 4 * n + 2, 2)}, v{GW.RW} offset:{off + 640}")
    a("s_waitcnt lgkmcnt(0)")
    for n in range(5):
        for t in range(4):
            d = GW.ACC + 4 * (n * 4 + t)
            c = "0" if first else vr(d, 4)
            a(f"v_mfma_f32_16x16x32_bf16 {vr(d, 4)}, {vr(GW.WF + 4 * n, 4)}, {vr(GW.AF + 4 * t, 4)}, {c}")


def gw_write_partials(a, sRed):
    a(f"v_add_u32 v2, s{sRed}, v{GW.VA}")
    for n in range(5):
        for t in range(4):
            d = GW.ACC + 4 * (n * 4 + t)
            a(f"ds_write_b128 v2, {vr(d, 4)} offset:{(n * 4 + t) * 1024}")


def gw_read_sum(a, sW4, redbase):
    a(f"s_lshl_b32 s60, s{sW4}, 10")
    a(f"s_add_u32 s60, s60, {redbase}")
    a(f"v_add_u32 v2, s60, v{GW.VA}")
    a(f"v_add_u32 v3, {2 * 20480}, v2")
    R = 24
    for src in range(4):
        for j in range(5):
            a(f"ds_read_b128 {vr(R + 20 * src + 4 * j, 4)}, v{2 + (src >> 1)} offset:{(src & 1) * 20480 + j * 4096}")
    a("s_waitcnt lgkmcnt(10)")
    for e in range(20):
        a(f"v_add_f32 v{R + e}, v{R + e}, v{R + 20 + e}")
    a("s_waitcnt lgkmcnt(0)")
    for e in range(20):
        a(f"v_add_f32 v{R + 40 + e}, v{R + 40 + e}, v{R + 60 + e}")
    for e in range(20):
        a(f"v_add_f32 v{R + e}, v{R + e}, v{R + 40 + e}")


def tile_map(a, sRt, sCt):
    if XP_QX:
        a("s_and_b32 s60, s2, 7")
        a("s_lshr_b32 s61, s2, 3")
        a("s_lshl_b32 s62, s60, 2")
        a("s_lshr_b32 s63, s61, 3")
        a(f"s_add_u32 s{sRt}, s62, s63")
        a(f"s_and_b32 s{sCt}, s61, 7")
        return
    if XP_FUSE:
        a("s_lshr_b32 s60, s2, 5")
        a("s_lshl_b32 s60, s60, 2")
        a("s_bfe_u32 s61, s2, 0x20001")
        a(f"s_add_u32 s{sRt}, s60, s61")
        a("s_and_b32 s60, s2, 1")
        a("s_lshl_b32 s60, s60, 2")
        a("s_bfe_u32 s61, s2, 0x20003")
        a(f"s_add_u32 s{sCt}, s60, s61")
        return
    a("s_and_b32 s60, s2, 7")
    a("s_lshr_b32 s61, s2, 3")
    a("s_lshr_b32 s62, s60, 1")
    a("s_lshl_b32 s62, s62, 3")
    a("s_lshr_b32 s63, s61, 2")
    a(f"s_add_u32 s{sRt}, s62, s63")
    a("s_and_b32 s62, s60, 1")
    a("s_lshl_b32 s62, s62, 2")
    a("s_and_b32 s63, s61, 3")
    a(f"s_add_u32 s{sCt}, s62, s63")


K2_BUF = 23552 if XP_FUSE else 24576
K2_FFN = 3 * K2_BUF
K2_B = K2_FFN + 4 * 20480
K2_FLAG = K2_B + (10240 if XP_FUSE else 0)
K2_LDS = K2_FLAG + 64
K2_W4 = K2_FFN - 20480
K2_XCH = 0
K2_OST = 24576


def gate_compute(a, XV, GV, srow, srdG):
    a("v_mov_b32 v2, 0")
    for j in range(5):
        xv = XV + j
        gv = GV + j
        a(f"v_lshlrev_b32 v3, 16, v{xv}")
        a(f"v_and_b32 v19, 0xffff0000, v{xv}")
        a(f"v_lshlrev_b32 v127, 16, v{gv}")
        a(f"v_and_b32 v128, 0xffff0000, v{gv}")
        a("v_mul_f32 v3, v3, v127")
        a("v_mul_f32 v19, v19, v128")
        a("v_cvt_pk_bf16_f32 v3, v3, v19")
        a("v_lshlrev_b32 v19, 16, v3")
        a("v_and_b32 v3, 0xffff0000, v3")
        a("v_add_f32 v2, v2, v19")
        a("v_add_f32 v2, v2, v3")
    for sh in (1, 2, 4, 8):
        a("s_nop 1")
        a(f"v_add_f32_dpp v2, v2, v2 row_shr:{sh} row_mask:0xf bank_mask:0xf")
    a("s_nop 1")
    a("v_add_f32_dpp v2, v2, v2 row_bcast:15 row_mask:0xa bank_mask:0xf")
    a("s_nop 1")
    a("v_add_f32_dpp v2, v2, v2 row_bcast:31 row_mask:0xc bank_mask:0xf")
    a("s_nop 1")
    a("v_cvt_pk_bf16_f32 v2, v2, v2")
    a("v_lshlrev_b32 v2, 16, v2")
    a(f"v_mul_f32 v2, {f32bits(-LOG2E)}, v2")
    a("v_exp_f32 v2, v2")
    a("s_nop 0")
    a("v_add_f32 v2, 1.0, v2")
    a("v_rcp_f32 v2, v2")
    a("s_nop 0")
    a("v_cvt_pk_bf16_f32 v2, v2, v2")
    a("v_lshlrev_b32 v2, 16, v2")
    a(f"s_lshl_b32 s49, s{srow}, 2")
    a("v_mov_b32 v3, 0")
    a("v_cmp_eq_u32 vcc, 63, v1")
    a("s_and_saveexec_b64 s[50:51], vcc")
    a(f"buffer_store_dword v2, v3, {sr(srdG, 4)}, s49 offen")
    a("s_mov_b64 exec, s[50:51]")


def gate_compute2(a, XA, XB, GV, srow, srdG):
    GU = 24
    a("v_mov_b32 v2, 0")
    a("v_mov_b32 v3, 0")
    a("v_mov_b32 v19, 0x3f803f80")
    for j in range(5):
        a(f"v_lshlrev_b32 v{GU + 2 * j}, 16, v{GV + j}")
        a(f"v_and_b32 v{GU + 2 * j + 1}, 0xffff0000, v{GV + j}")
    for X, acc in ((XA, 2), (XB, 3)):
        for j in range(5):
            a(f"v_lshlrev_b32 v36, 16, v{X + j}")
            a(f"v_and_b32 v37, 0xffff0000, v{X + j}")
            a(f"v_pk_mul_f32 v[36:37], v[36:37], v[{GU + 2 * j}:{GU + 2 * j + 1}]")
            a("v_cvt_pk_bf16_f32 v36, v36, v37")
            a(f"v_dot2_f32_bf16 v{acc}, v36, v19, v{acc}")
    for sh in (1, 2, 4, 8):
        a("s_nop 2" if sh == 1 else "s_nop 0")
        a(f"v_add_f32_dpp v2, v2, v2 row_shr:{sh} row_mask:0xf bank_mask:0xf")
        a(f"v_add_f32_dpp v3, v3, v3 row_shr:{sh} row_mask:0xf bank_mask:0xf")
    a("s_nop 0")
    a("v_add_f32_dpp v2, v2, v2 row_bcast:15 row_mask:0xa bank_mask:0xf")
    a("v_add_f32_dpp v3, v3, v3 row_bcast:15 row_mask:0xa bank_mask:0xf")
    a("s_nop 0")
    a("v_add_f32_dpp v2, v2, v2 row_bcast:31 row_mask:0xc bank_mask:0xf")
    a("v_add_f32_dpp v3, v3, v3 row_bcast:31 row_mask:0xc bank_mask:0xf")
    a("s_nop 1")
    a("v_cvt_pk_bf16_f32 v2, v2, v3")
    a("v_and_b32 v3, 0xffff0000, v2")
    a("v_lshlrev_b32 v2, 16, v2")
    a(f"v_mul_f32 v2, {f32bits(-LOG2E)}, v2")
    a(f"v_mul_f32 v3, {f32bits(-LOG2E)}, v3")
    a("v_exp_f32 v2, v2")
    a("v_exp_f32 v3, v3")
    a("s_nop 0")
    a("v_add_f32 v2, 1.0, v2")
    a("v_add_f32 v3, 1.0, v3")
    a("v_rcp_f32 v2, v2")
    a("v_rcp_f32 v3, v3")
    a("s_nop 0")
    a("v_cvt_pk_bf16_f32 v2, v2, v3")
    a("v_and_b32 v3, 0xffff0000, v2")
    a("v_lshlrev_b32 v2, 16, v2")
    a(f"s_lshl_b32 s49, s{srow}, 2")
    a("v_mov_b32 v19, 0")
    a("v_cmp_eq_u32 vcc, 63, v1")
    a("s_and_saveexec_b64 s[50:51], vcc")
    a(f"buffer_store_dwordx2 v[2:3], v19, {sr(srdG, 4)}, s49 offen" + (" sc1" if XP_FUSE else ""))
    a("s_mov_b64 exec, s[50:51]")


def k2_tail(a):
    prof(a, 16)
    a("s_lshr_b32 s40, s2, 5")
    a("s_lshl_b32 s40, s40, 13")
    srd_off(a, 24, 8, 9, WS_CNT, 65536)
    srd(a, 16, 4, 5, SZ_OUT)
    srd_off(a, 12, 8, 9, WS_WO, SZ_WO)
    a("v_mov_b32 v4, 0")
    a("s_cmp_lg_u32 s38, 0")
    a("s_cbranch_scc1 K2_T1")
    a("v_mov_b32 v2, 1")
    a("v_lshlrev_b32 v3, 8, v1")
    a("s_mov_b32 exec_hi, 0")
    a("buffer_atomic_add v2, v3, s[24:27], s40 offen")
    a("s_mov_b32 exec_hi, -1")
    a.label("K2_T1")
    a("s_lshl_b32 s40, s2, 8")
    tile_map(a, 36, 37)
    a("v_lshrrev_b32 v22, 4, v1")
    a("v_and_b32 v23, 15, v1")
    a("s_lshl_b32 s39, s36, 6")
    a("s_and_b32 s49, s38, 3")
    a("s_lshr_b32 s50, s38, 2")
    a("s_add_u32 s43, s38, 8")
    a("s_add_u32 s44, s38, 16")
    a("s_cmp_lt_u32 s38, 4")
    a("s_cselect_b32 s44, s44, s43")
    a("s_mul_i32 s55, s37, 102400")
    a(f"s_add_u32 s55, s55, {4 * 20480}")
    for sp in (38, 43, 44):
        a(f"s_lshl_b32 s52, s{sp}, 10")
        a(f"s_add_u32 m0, s52, {K2_W4}")
        a("s_add_u32 s52, s52, s55")
        a("buffer_load_dwordx4 v16, s[12:15], s52 offen lds")
    a("s_mul_i32 s41, s37, 160")
    a("s_lshl_b32 s42, s36, 2")
    a("s_add_u32 s42, s42, s49")
    a("s_mul_i32 s42, s42, 20480")
    a("s_lshl_b32 s43, s50, 11")
    a("s_add_u32 s42, s42, s43")
    a("s_lshl_b32 s43, s49, 4")
    a("v_add_u32 v2, s43, v23")
    a("v_add_u32 v3, s39, v2")
    a("v_lshlrev_b32 v5, 2, v3")
    a("v_mul_u32_u24 v2, 160, v2")
    a("v_lshl_add_u32 v2, v22, 3, v2")
    a("s_mul_i32 s43, s50, 96")
    a(f"s_add_u32 s43, s43, {K2_OST}")
    a("v_add_u32 v17, s43, v2")
    a("s_mul_i32 s43, s49, 2560")
    a("s_mul_i32 s44, s50, 1536")
    a("s_add_u32 s43, s43, s44")
    a(f"s_add_u32 s43, s43, {K2_B}")
    a("v_lshlrev_b32 v2, 3, v1")
    a("v_add_u32 v6, s43, v2")
    for j in range(2):
        a("s_mul_i32 s43, s38, 80")
        a(f"s_add_u32 s43, s43, {64 * j}")
        a("v_add_u32 v2, s43, v1")
        a("v_mul_u32_u24 v3, 6554, v2")
        a("v_lshrrev_b32 v3, 16, v3")
        a("v_mul_u32_u24 v15, 10, v3")
        a("v_sub_u32 v15, v2, v15")
        a("v_lshlrev_b32 v15, 4, v15")
        a("v_add_u32 v3, s39, v3")
        a("v_mul_u32_u24 v3, 1280, v3")
        a(f"v_add3_u32 v{12 + j}, v3, v15, s41")
        a("v_lshlrev_b32 v2, 4, v2")
        a(f"v_add_u32 v{8 + j}, {K2_OST}, v2")
    RW = 28
    a("s_mul_i32 s43, s50, 10240")
    a(f"s_add_u32 s43, s43, {K2_W4}")
    wread_addr(a, RW, RW + 1, 43)
    a(f"v_add_u32 v{RW + 2}, {3 * 20480}, v{RW}")
    a(f"v_add_u32 v{RW + 3}, {3 * 20480}, v{RW + 1}")
    a("s_mul_i32 s43, s49, 5120")
    a(f"s_add_u32 s43, s43, {K2_XCH}")
    a("v_add_u32 v21, s43, v16")
    AF = 32
    WF = (72, 92)
    ACC = 112
    BV = 132

    def reads(t):
        st, i = t >> 1, t & 1
        pos = (st + 1) % 5
        hi = 1 if pos >= 3 else 0
        so = (pos - 3 * hi) * 20480
        r = []
        for n in range(5):
            off = so + i * 5120 + n * 32
            r.append(f"ds_read_b64_tr_b16 {vr(WF[i] + 4 * n, 2)}, v{RW + 2 * hi} offset:{off}")
            r.append(f"ds_read_b64_tr_b16 {vr(WF[i] + 4 * n + 2, 2)}, v{RW + 2 * hi + 1} offset:{off}")
        return r

    def mf(t):
        for n in range(5):
            d = ACC + 4 * n
            c = "0" if t == 0 else vr(d, 4)
            a(f"v_mfma_f32_16x16x32_bf16 {vr(d, 4)}, {vr(WF[t & 1] + 4 * n, 4)}, {vr(AF + 4 * t, 4)}, {c}")

    for r in reads(0) + reads(1):
        a(r)
    for n in range(3):
        a(f"ds_read_b64 {vr(BV + 2 * n, 2)}, v6 offset:{512 * n}")
    a("s_cmp_lg_u32 s38, 0")
    a("s_cbranch_scc1 K2_T3")
    a("s_mov_b32 s43, 0")
    a.label("K2_T2")
    a("buffer_load_dword v2, v4, s[24:27], s40 offen sc1")
    a("s_add_u32 s43, s43, 1")
    a("s_waitcnt vmcnt(0)")
    a("v_readfirstlane_b32 s44, v2")
    a("s_cmp_ge_u32 s44, 32")
    a("s_cbranch_scc1 K2_T3")
    a("s_sleep 2")
    a("s_cmp_lt_u32 s43, 0x100000")
    a("s_cbranch_scc1 K2_T2")
    a.label("K2_T3")
    a("s_waitcnt vmcnt(0)")
    a("s_barrier")
    prof(a, 17)
    for t in range(10):
        st, i = t >> 1, t & 1
        if i == 0 and st:
            a("s_add_u32 s42, s42, 4096")
        a(f"buffer_load_dwordx4 {vr(AF + 4 * t, 4)}, v16, s[20:23], s42 offen offset:{1024 * i} sc1")
    a("buffer_load_dword v18, v5, s[32:35], 0 offen sc1")
    for t in range(10):
        a(f"s_waitcnt vmcnt({10 - t}) lgkmcnt({10 if 1 <= t < 9 else 0})")
        mf(t)
        if t + 2 < 10:
            for r in reads(t + 2):
                a(r)
    prof(a, 18)
    a("s_waitcnt vmcnt(0)")
    a("v_sub_f32 v19, 1.0, v18")
    a("v_cvt_pk_bf16_f32 v19, v19, v19")
    a("v_lshlrev_b32 v19, 16, v19")
    a("s_nop 7")
    XR = 72
    a("s_cmp_eq_u32 s50, 0")
    a("s_cbranch_scc0 K2_X1")
    for n in (3, 4):
        a(f"ds_write_b128 v21, {vr(ACC + 4 * n, 4)} offset:{1024 * n}")
    a("s_waitcnt lgkmcnt(0)")
    a("s_barrier")
    for n in range(3):
        a(f"ds_read_b128 {vr(XR + 4 * n, 4)}, v21 offset:{1024 * n}")
    a("s_branch K2_FIN")
    a.label("K2_X1")
    for n in range(3):
        a(f"ds_write_b128 v21, {vr(ACC + 4 * n, 4)} offset:{1024 * n}")
    a("s_waitcnt lgkmcnt(0)")
    a("s_barrier")
    for n in (3, 4):
        a(f"ds_read_b128 {vr(XR + 4 * (n - 3), 4)}, v21 offset:{1024 * n}")
    for i in range(8):
        a(f"v_mov_b32 v{ACC + i}, v{ACC + 12 + i}")
    a.label("K2_FIN")
    a("s_waitcnt lgkmcnt(0)")
    for n in range(3):
        if n == 2:
            a("s_cmp_eq_u32 s50, 0")
            a("s_cbranch_scc0 K2_CP")
        for i in range(4):
            a(f"v_add_f32 v{ACC + 4 * n + i}, v{ACC + 4 * n + i}, v{XR + 4 * n + i}")
        for h in range(2):
            e = ACC + 4 * n + 2 * h
            bp = BV + 2 * n + h
            a(f"v_cvt_pk_bf16_f32 v24, v{e}, v{e + 1}")
            a("v_lshlrev_b32 v4, 16, v24")
            a("v_and_b32 v5, 0xffff0000, v24")
            a(f"v_lshlrev_b32 v6, 16, v{bp}")
            a(f"v_and_b32 v7, 0xffff0000, v{bp}")
            a("v_mul_f32 v4, v18, v4")
            a("v_mul_f32 v5, v18, v5")
            a("v_mul_f32 v6, v19, v6")
            a("v_mul_f32 v7, v19, v7")
            a("v_cvt_pk_bf16_f32 v24, v4, v5")
            a("v_cvt_pk_bf16_f32 v20, v6, v7")
            a("v_lshlrev_b32 v4, 16, v24")
            a("v_and_b32 v5, 0xffff0000, v24")
            a("v_lshlrev_b32 v6, 16, v20")
            a("v_and_b32 v7, 0xffff0000, v20")
            a("v_add_f32 v4, v4, v6")
            a("v_add_f32 v5, v5, v7")
            a(f"v_cvt_pk_bf16_f32 v{bp}, v4, v5")
        a(f"ds_write_b64 v17, {vr(BV + 2 * n, 2)} offset:{32 * n}")
    a.label("K2_CP")
    a("s_waitcnt lgkmcnt(0)")
    a("s_barrier")
    a("ds_read_b128 v[32:35], v8")
    a("ds_read_b128 v[36:39], v9")
    a("s_waitcnt lgkmcnt(1)")
    a("buffer_store_dwordx4 v[32:35], v12, s[16:19], 0 offen")
    a("v_cmp_gt_u32 vcc, 16, v1")
    a("s_and_saveexec_b64 s[50:51], vcc")
    a("s_waitcnt lgkmcnt(0)")
    a("buffer_store_dwordx4 v[36:39], v13, s[16:19], 0 offen")
    a("s_mov_b64 exec, s[50:51]")


def k2():
    a = Asm()
    a.label("k2_kernel")
    if PROF:
        a("s_memtime s[86:87]")
    a("s_cmp_ge_u32 s2, 256")
    a("s_cbranch_scc1 K2_END")
    a("s_and_b32 s3, s2, 7")
    a("s_lshl_b32 s3, s3, 2")
    a("s_lshr_b32 s4, s2, 3")
    a("s_and_b32 s4, s4, 3")
    a("s_add_u32 s36, s3, s4")
    a("s_lshr_b32 s37, s2, 5")
    if XP_QX:
        a("s_lshr_b32 s36, s2, 3")
        a("s_and_b32 s37, s2, 7")
    a("s_load_dwordx2 s[4:5], s[0:1], 0")
    a("s_load_dwordx2 s[6:7], s[0:1], 48")
    a("s_load_dwordx2 s[8:9], s[0:1], 72")
    a("v_and_b32 v1, 63, v0")
    a("v_lshrrev_b32 v2, 6, v0")
    a("s_nop 0")
    a("v_readfirstlane_b32 s38, v2")
    a("s_waitcnt lgkmcnt(0)")
    a("s_cmp_ge_u32 s38, 8")
    a("s_cbranch_scc1 K2_FFN")
    a("s_setprio 1")
    srd_off(a, 12, 8, 9, WS_KV, SZ_KV)
    srd_off(a, 16, 8, 9, WS_Q, SZ_Q)
    srd_off(a, 20, 8, 9, WS_O, SZ_O)
    srd(a, 24, 4, 5, SZ_X)
    srd(a, 28, 6, 7, 1280)
    srd_off(a, 32, 8, 9, WS_G, SZ_G)
    prof_init(a, 8, 9, 38, 1)
    prof(a, 0)
    a("v_lshlrev_b32 v16, 4, v1")
    a("s_mul_i32 s46, s38, 3072")
    a("s_cmp_lt_u32 s38, 7")
    a("s_cselect_b64 s[54:55], -1, 0")
    a(f"s_mul_i32 s45, s36, {HEAD_KV}")
    a("s_add_u32 s45, s45, s46")
    a("s_mov_b32 s44, s45")
    a("s_mov_b32 s41, 0")
    a(f"s_mov_b32 s42, {K2_BUF}")
    a(f"s_mov_b32 s43, {2 * K2_BUF}")
    a("s_mov_b32 s40, 0")
    a("v_and_b32 v17, 31, v1")
    a("v_lshrrev_b32 v18, 5, v1")
    a("s_lshl_b32 s47, s37, 8")
    a("s_lshl_b32 s48, s38, 5")
    a("s_add_u32 s47, s47, s48")
    a("v_add_u32 v2, s47, v17")
    a("v_mul_u32_u24 v2, 48, v2")
    a("s_mul_i32 s48, s36, 98304")
    a("v_add_u32 v2, s48, v2")
    a("v_lshl_add_u32 v3, v18, 4, v2")
    a("buffer_load_dwordx4 v[20:23], v3, s[16:19], 0 offen")
    a("buffer_load_dwordx2 v[24:25], v2, s[16:19], 0 offen offset:32")
    for sg in (41, 42):
        a(f"s_add_u32 m0, s{sg}, s46")
        a("s_nop 0")
        for j in range(3):
            if j == 2 and XP_FUSE:
                a("s_mov_b64 exec, s[54:55]")
            a(f"buffer_load_dwordx4 v16, s[12:15], s44 offen offset:{1024 * j} lds")
        if XP_FUSE:
            a("s_mov_b64 exec, -1")
        a("s_add_u32 s44, s44, 23040")
    a("v_mov_b32 v2, 0")
    a(f"v_mov_b32 v3, {K2_FLAG}")
    a("ds_write_b32 v3, v2")
    if not XP_GF:
        a("s_lshl_b32 s48, s37, 8")
        a("s_lshl_b32 s49, s36, 3")
        a("s_add_u32 s48, s48, s49")
        a("s_add_u32 s48, s48, s38")
        a("s_mul_i32 s49, s48, 1280")
        a("v_mul_u32_u24 v2, 20, v1")
        a("buffer_load_dwordx4 v[116:119], v2, s[24:27], s49 offen")
        a("buffer_load_dword v120, v2, s[24:27], s49 offen offset:16")
        a("buffer_load_dwordx4 v[122:125], v2, s[28:31], 0 offen")
        a("buffer_load_dword v126, v2, s[28:31], 0 offen offset:16")
    a("v_mul_u32_u24 v2, 48, v17")
    a("v_lshl_add_u32 v12, v18, 4, v2")
    a("v_add_u32 v13, 32, v2")
    if XP_K8:
        a("v_lshl_add_u32 v13, v18, 3, v13")
    a("v_bfe_u32 v3, v17, 2, 2")
    a("v_lshlrev_b32 v2, 6, v17")
    a("v_add_u32 v2, 1536, v2")
    a("v_xor_b32 v19, v18, v3")
    a("v_lshl_add_u32 v14, v19, 4, v2")
    a("v_add_u32 v19, 2, v18")
    a("v_xor_b32 v19, v19, v3")
    a("v_lshl_add_u32 v15, v19, 4, v2")
    a("s_waitcnt vmcnt(6)" if (XP_GF and XP_ES) else "s_waitcnt vmcnt(0)")
    if not XP_GF:
        gate_compute(a, 116, 122, 48, 32)
    a("v_cmp_eq_u32 vcc, 0, v18")
    a("s_nop 1")
    a("v_cndmask_b32 v24, 0, v24, vcc")
    a("v_cndmask_b32 v25, 0, v25, vcc")
    a("v_mov_b32 v26, 0")
    a("v_mov_b32 v27, 0")
    a("s_mov_b32 s39, 0")

    QF0, QF1 = 20, 24
    KF = (28, 36)
    VF = (44, 52)
    P = 60
    S = (68, 84)
    O = 100

    def dma_stage(lds_sreg):
        a(f"s_add_u32 m0, s{lds_sreg}, s46")
        a("s_nop 0")
        for j in range(3):
            if j == 2 and XP_FUSE:
                a("s_mov_b64 exec, s[54:55]")
            a(f"buffer_load_dwordx4 v16, s[12:15], s44 offen offset:{1024 * j} lds")
        if XP_FUSE:
            a("s_mov_b64 exec, -1")
        a("s_add_u32 s44, s44, 23040")

    def set_addrs(dst, sbase):
        for i in range(4):
            a(f"v_add_u32 v{dst + i}, s{sbase}, v{12 + i}")

    def kread(st, idx):
        base = 4 if idx < 8 else 8
        off = (idx % 8) * 2880
        if XP_K8:
            return [f"ds_read_b128 {vr(KF[st], 4)}, v{base} offset:{off}",
                    f"ds_read_b64 {vr(KF[st] + 4, 2)}, v{base + 1} offset:{off}"]
        return [f"ds_read_b128 {vr(KF[st], 4)}, v{base} offset:{off}",
                f"ds_read_b128 {vr(KF[st] + 4, 4)}, v{base + 1} offset:{off}"]

    def qk2(st, sd):
        if XP_K8:
            return f"v_mfma_f32_32x32x8bf16_1k {vr(sd, 16)}, {vr(KF[st] + 4, 2)}, {vr(QF1, 2)}, {vr(sd, 16)}"
        return f"v_mfma_f32_32x32x16_bf16 {vr(sd, 16)}, {vr(KF[st] + 4, 4)}, {vr(QF1, 4)}, {vr(sd, 16)}"

    def vread(st, idx):
        base = 4 if idx < 8 else 8
        off = (idx % 8) * 2880
        return [f"ds_read_b128 {vr(VF[st], 4)}, v{base + 2} offset:{off}",
                f"ds_read_b128 {vr(VF[st] + 4, 4)}, v{base + 3} offset:{off}"]

    def qk(st, sst):
        a(f"v_mfma_f32_32x32x16_bf16 {vr(S[sst], 16)}, {vr(KF[st], 4)}, {vr(QF0, 4)}, 0")
        a(qk2(st, S[sst]))

    def set_m_from(mreg):
        a(f"v_mov_b32 v3, v{mreg}")
        a("s_nop 1")
        a(f"v_permlane32_swap_b32 v{mreg}, v3")
        a("s_nop 1")
        a(f"v_max_f32 v2, v{mreg}, v3")
        a("v_and_b32 v3, 0xffff0000, v2")
        a("v_sub_f32 v2, v2, v3")
        a("v_and_b32 v19, 0xffff0000, v2")
        a("v_sub_f32 v2, v2, v19")
        a("v_xor_b32 v3, 0x80000000, v3")
        a("v_xor_b32 v19, 0x80000000, v19")
        a("v_xor_b32 v2, 0x80000000, v2")
        a("v_lshrrev_b32 v3, 16, v3")
        a("v_or_b32 v3, v3, v19")
        a("v_lshrrev_b32 v2, 16, v2")
        a("v_cmp_eq_u32 vcc, 0, v18")
        a("s_nop 1")
        if XP_K8:
            a("v_cndmask_b32 v24, v3, v24, vcc")
            a("v_cndmask_b32 v25, v2, v25, vcc")
        else:
            a("v_cndmask_b32 v26, 0, v3, vcc")
            a("v_cndmask_b32 v27, 0, v2, vcc")
        a("s_nop 1")

    def start_stream():
        a("s_mov_b32 s44, s45")
        a("s_mov_b32 s41, 0")
        a(f"s_mov_b32 s42, {K2_BUF}")
        a(f"s_mov_b32 s43, {2 * K2_BUF}")
        dma_stage(41)
        dma_stage(42)
        set_addrs(4, 41)
        set_addrs(8, 42)
        a("s_mov_b32 s40, 0")

    def stage_head(lbl):
        if XP_ES:
            a("s_cmp_eq_u32 s40, 0")
            a(f"s_cbranch_scc1 {lbl}_W0")
            a("s_waitcnt vmcnt(0)")
            a.label(lbl + "_W0")
            a("s_waitcnt vmcnt(3) lgkmcnt(0)")
        else:
            a("s_waitcnt vmcnt(0) lgkmcnt(0)")
        if XP_NOBAR:
            a("s_cmp_lg_u32 s40, 0")
            a(f"s_cbranch_scc1 {lbl}_NB")
        a("s_barrier")
        if XP_NOBAR:
            a.label(lbl + "_NB")
        a(f"s_cmp_ge_u32 s40, {1 if XP_NODMA else 6}")
        a(f"s_cbranch_scc1 {lbl}")
        dma_stage(43)
        a.label(lbl)

    def stage_rotate():
        a("s_mov_b32 s47, s41")
        a("s_mov_b32 s41, s42")
        a("s_mov_b32 s42, s43")
        a("s_mov_b32 s43, s47")
        for i in range(4):
            a(f"v_mov_b32 v{4 + i}, v{8 + i}")
        set_addrs(8, 42)
        a("s_add_u32 s40, s40, 1")

    a.label("K2_MAIN")
    prof(a, 1)
    a("s_cmp_eq_u32 s39, 0")
    a("s_cbranch_scc1 K2_STARTED")
    start_stream()
    a.label("K2_STARTED")
    set_addrs(4, 41)
    set_addrs(8, 42)
    for i in range(16):
        a(f"v_mov_b32 v{O + i}, 0")
    for i in range(4):
        a(f"v_mov_b32 v{P + 4 + i}, 0")
        a(f"v_mov_b32 v{VF[1] + 4 + i}, 0")
    a.label("K2_STAGE")
    stage_head("K2_NODMA")
    a("s_cmp_lg_u32 s40, 0")
    a("s_cbranch_scc1 K2_BODY")
    for r in kread(0, 0):
        a(r)
    a("s_cmp_lg_u32 s39, 0")
    a("s_cbranch_scc1 K2_PRIME")
    a("s_waitcnt lgkmcnt(0)")
    qk(0, 0)
    a("s_nop 15")
    a("s_nop 3")
    s0 = S[0]
    a(f"v_max3_f32 v116, v{s0}, v{s0 + 1}, v{s0 + 2}")
    for i in range(3, 15, 2):
        a(f"v_max3_f32 v116, v116, v{s0 + i}, v{s0 + i + 1}")
    a(f"v_max_f32 v116, v116, v{s0 + 15}")
    set_m_from(116)
    a.label("K2_PRIME")
    for r in kread(1, 1):
        a(r)
    for r in vread(0, 0):
        a(r)
    a("s_waitcnt lgkmcnt(4)")
    qk(0, 0)
    a("s_nop 15")
    prof(a, 2)
    a.label("K2_BODY")

    def body(par):
        for t in range(8):
            c = t % 2
            n = 1 - c
            sc = S[c]
            sn = S[n]

            def ex(lo):
                for i in range(lo, lo + 4):
                    a(f"v_exp_f32 v{sc + i}, v{sc + i}")

            def cv(lo):
                for i in range(lo, lo + 4):
                    a(f"v_cvt_pk_bf16_f32 v{P + i}, v{sc + 2 * i}, v{sc + 2 * i + 1}")
            if XP_PRIO:
                a(f"s_setprio {2 if (t & 1) == par else 1}")
            if XP_PR and (t == 0 or XP_PR[t] != XP_PR[t - 1]):
                a(f"s_setprio {XP_PR[t]}")
            ex(0)
            a(f"v_mfma_f32_32x32x16_bf16 {vr(O, 16)}, {vr(VF[n] + 4, 4)}, {vr(P + 4, 4)}, {vr(O, 16)}")
            ex(4)
            a("s_waitcnt lgkmcnt(0)" if XP_K8 else "s_waitcnt lgkmcnt(2)")
            a(f"v_mfma_f32_32x32x16_bf16 {vr(sn, 16)}, {vr(KF[n], 4)}, {vr(QF0, 4)}, 0")
            cv(0)
            if XP_ES and t == 6:
                a("s_cmp_lg_u32 s40, 0")
                a(f"s_cbranch_scc1 K2_MID{par}")
                a("s_waitcnt vmcnt(3)")
                a("s_barrier")
                a.label(f"K2_MID{par}")
            if not XP_NOLDS:
                for r in kread(c, t + 2):
                    a(r)
                for r in vread(n, t + 1):
                    a(r)
            ex(8)
            a(qk2(n, sn))
            ex(12)
            if not XP_K8:
                a("s_waitcnt lgkmcnt(4)")
            a(f"v_mfma_f32_32x32x16_bf16 {vr(O, 16)}, {vr(VF[c], 4)}, {vr(P, 4)}, {vr(O, 16)}")
            cv(4)

    if XP_PRIO:
        a("s_cmp_ge_u32 s38, 4")
        a("s_cbranch_scc1 K2_BODY1")
        body(0)
        a("s_branch K2_BODYE")
        a.label("K2_BODY1")
        body(1)
        a.label("K2_BODYE")
    else:
        body(0)
    stage_rotate()
    if PROF:
        a("s_memtime s[88:89]")
        a("s_waitcnt lgkmcnt(0)")
        a("v_mov_b32 v2, s88")
        a("s_lshl_b32 s90, s40, 2")
        a("v_mov_b32 v3, s90")
        a("buffer_store_dword v2, v3, s[92:95], s91 offen offset:8")
    a("s_cmp_lt_u32 s40, 8")
    a("s_cbranch_scc1 K2_STAGE")
    a("s_nop 1")
    a(f"v_mfma_f32_32x32x16_bf16 {vr(O, 16)}, {vr(VF[1] + 4, 4)}, {vr(P + 4, 4)}, {vr(O, 16)}")
    a("s_nop 15")
    a("s_nop 3")
    a("s_cmp_lg_u32 s39, 0")
    a("s_cbranch_scc1 K2_EPI")
    a("v_mov_b32 v2, 0")
    for i in range(9):
        a(f"v_fma_f32 v2, v{O + i}, 0, v2")
    a("v_mov_b32 v3, 0")
    for i in range(9, 12):
        a(f"v_fma_f32 v3, v{O + i}, 0, v3")
    a("v_cmp_eq_u32 vcc, 0, v18")
    a("s_nop 1")
    a("v_cndmask_b32 v3, 0, v3, vcc")
    a("v_add_f32 v2, v2, v3")
    a("v_cmp_u_f32 vcc, v2, v2")
    a("s_nop 4")
    a("s_cbranch_vccz K2_VOTE")
    a("v_mov_b32 v2, 1")
    a(f"v_mov_b32 v3, {K2_FLAG}")
    a("ds_write_b32 v3, v2")
    a.label("K2_VOTE")
    a("s_branch K2_EPI")
    a.label("K2_FALL")
    a("s_barrier")
    a("v_mov_b32 v26, 0")
    a("v_mov_b32 v27, 0")
    a("v_cmp_eq_u32 vcc, 0, v18")
    a("s_nop 1")
    a("v_cndmask_b32 v24, 0, v24, vcc")
    a("v_cndmask_b32 v25, 0, v25, vcc")
    a(f"v_mov_b32 v117, {f32bits(float('-inf'))}")
    start_stream()
    a.label("K2_MSTAGE")
    stage_head("K2_MNODMA")
    for t in range(8):
        for r in kread(0, t):
            a(r)
        a("s_waitcnt lgkmcnt(0)")
        qk(0, 0)
        a("s_nop 15")
        a("s_nop 3")
        for i in range(0, 16, 2):
            a(f"v_max3_f32 v117, v117, v{s0 + i}, v{s0 + i + 1}")
    stage_rotate()
    a("s_cmp_lt_u32 s40, 8")
    a("s_cbranch_scc1 K2_MSTAGE")
    set_m_from(117)
    a("s_mov_b32 s39, 1")
    a("s_waitcnt vmcnt(0) lgkmcnt(0)")
    a("s_barrier")
    a("s_branch K2_MAIN")
    a.label("K2_EPI")
    a(f"v_mov_b32 v2, v{O + 8}")
    a(f"v_mov_b32 v3, v{O + 8}")
    a("s_nop 1")
    a("v_permlane32_swap_b32 v2, v3")
    a("s_nop 1")
    a("v_rcp_f32 v3, v3")
    a("s_nop 0")
    for i in range(12):
        a(f"v_mul_f32 v{O + i}, v{O + i}, v3")
    for i in range(6):
        a(f"v_cvt_pk_bf16_f32 v{P + i}, v{O + 2 * i}, v{O + 2 * i + 1}")
    a("s_lshl_b32 s47, s37, 8")
    a("s_lshl_b32 s48, s38, 5")
    a("s_add_u32 s47, s47, s48")
    a("v_add_u32 v2, s47, v17")
    if XP_FUSE:
        a("v_lshrrev_b32 v3, 4, v2")
        a("v_mul_u32_u24 v3, 20480, v3")
        a("v_and_b32 v2, 15, v2")
        a("v_lshl_add_u32 v2, v2, 4, v3")
        a("s_mul_i32 s48, s36, 20")
        a("v_lshl_add_u32 v3, v18, 2, s48")
        a("v_lshrrev_b32 v19, 3, v3")
        a("v_lshl_add_u32 v2, v19, 8, v2")
        a("v_and_b32 v3, 4, v3")
        a("v_lshl_add_u32 v2, v3, 1, v2")
        a(f"buffer_store_dwordx2 {vr(P, 2)}, v2, s[20:23], 0 offen sc1")
        a(f"buffer_store_dwordx2 {vr(P + 2, 2)}, v2, s[20:23], 0 offen offset:256 sc1")
        a("v_cmp_eq_u32 vcc, 0, v18")
        a("s_and_saveexec_b64 s[50:51], vcc")
        a(f"buffer_store_dwordx2 {vr(P + 4, 2)}, v2, s[20:23], 0 offen offset:512 sc1")
        a("s_mov_b64 exec, s[50:51]")
        a("s_load_dwordx2 s[4:5], s[0:1], 56")
        a("s_waitcnt vmcnt(0) lgkmcnt(0)")
        a("s_barrier")
        a("s_cmp_lg_u32 s39, 0")
        a("s_cbranch_scc1 K2_TAIL")
    else:
        a("v_mul_u32_u24 v2, 1280, v2")
        a("s_mul_i32 s48, s36, 40")
        a("v_lshl_add_u32 v2, v18, 3, v2")
        a("v_add_u32 v2, s48, v2")
        a(f"buffer_store_dwordx2 {vr(P, 2)}, v2, s[20:23], 0 offen")
        a(f"buffer_store_dwordx2 {vr(P + 2, 2)}, v2, s[20:23], 0 offen offset:16")
        a("v_cmp_eq_u32 vcc, 0, v18")
        a("s_and_saveexec_b64 s[50:51], vcc")
        a(f"buffer_store_dwordx2 {vr(P + 4, 2)}, v2, s[20:23], 0 offen offset:32")
        a("s_mov_b64 exec, s[50:51]")
        a("s_cmp_lg_u32 s39, 0")
        a("s_cbranch_scc1 K2_PEND")
        a("s_waitcnt lgkmcnt(0)")
        a("s_barrier")
    a(f"v_mov_b32 v3, {K2_FLAG}")
    a("ds_read_b32 v2, v3")
    a("s_waitcnt lgkmcnt(0)")
    a("v_readfirstlane_b32 s47, v2")
    a("s_cmp_lg_u32 s47, 0")
    a("s_cbranch_scc1 K2_FALL")
    if XP_FUSE:
        a.label("K2_TAIL")
        k2_tail(a)
    a.label("K2_PEND")
    prof(a, 12)
    a.label("K2_END")
    a("s_endpgm")
    a.label("K2_FFN")
    if XP_NOFFN:
        a("s_endpgm")
    if XP_FP:
        a(f"s_setprio {XP_FP}")
    a("s_sub_u32 s38, s38, 8")
    if XP_GF:
        srd(a, 64, 4, 5, SZ_X)
        srd(a, 68, 6, 7, 1280)
        srd_off(a, 32, 8, 9, WS_G, SZ_G)
        a("s_lshl_b32 s48, s37, 8")
        a("s_lshl_b32 s49, s36, 3")
        a("s_add_u32 s48, s48, s49")
        a("s_lshl_b32 s49, s38, 1")
        a("s_add_u32 s48, s48, s49")
    a("s_load_dwordx2 s[6:7], s[0:1], 40")
    a("s_load_dwordx2 s[52:53], s[0:1], 16")
    tile_map(a, 36, 37)
    a("s_lshl_b32 s39, s36, 6")
    a("s_mul_i32 s40, s37, 160")
    a("s_mul_i32 s41, s38, 20480")
    a(f"s_add_u32 s41, s41, {K2_FFN}")
    a("s_mul_i32 s42, s38, 14")
    a("s_cmp_eq_u32 s38, 3")
    a("s_cselect_b32 s42, 41, s42")
    a("s_mul_i32 s45, s36, 54")
    a("s_add_u32 s45, s45, s42")
    a("s_lshl_b32 s45, s45, 12")
    a("s_mul_i32 s46, s42, 5120")
    a("s_mul_i32 s47, s37, 276480")
    a("s_add_u32 s46, s46, s47")
    a("s_waitcnt lgkmcnt(0)")
    srd_off(a, 16, 8, 9, WS_W2P, SZ_W2)
    srd_off(a, 24, 8, 9, WS_H, SZ_H)
    srd_off(a, 28, 8, 9, WS_B, SZ_B)
    gw_setup(a, 39, 40, 3456, 41)
    j = 0
    for k, ns in enumerate(XP_FS):
        a("s_barrier")
        if k == 0:
            if XP_GF:
                a("s_mul_i32 s49, s48, 1280")
                a("v_mul_u32_u24 v2, 20, v1")
                a("buffer_load_dwordx4 v[116:119], v2, s[64:67], s49 offen")
                a("buffer_load_dword v120, v2, s[64:67], s49 offen offset:16")
                a("buffer_load_dwordx4 v[122:125], v2, s[68:71], 0 offen")
                a("buffer_load_dword v126, v2, s[68:71], 0 offen offset:16")
                a("buffer_load_dwordx4 v[132:135], v2, s[64:67], s49 offen offset:1280")
                a("buffer_load_dword v136, v2, s[64:67], s49 offen offset:1296")
            gw_issue(a, 0, 24, 16, 45, 46, 41)
        if k == 1 and XP_PF and not XP_QX:
            srd(a, 52, 52, 53, SZ_WO)
            a("s_mul_i32 s56, s2, 3200")
            a("v_and_b32 v3, 255, v0")
            a("v_lshlrev_b32 v2, 7, v3")
            a("v_cmp_gt_u32 vcc, 25, v3")
            a("v_bfrev_b32 v3, 1")
            a("v_cndmask_b32 v2, v3, v2, vcc")
            a("buffer_load_dword v141, v2, s[52:55], s56 offen")
        for _ in range(ns):
            if XP_FPIPE:
                if j == 0:
                    gw_issue(a, 1, 24, 16, 45, 46, 41)
                    if XP_GF:
                        a("s_waitcnt vmcnt(18)")
                        gate_compute2(a, 116, 132, 122, 48, 32)
                        a("s_waitcnt vmcnt(10)")
                    else:
                        a("s_waitcnt vmcnt(9)")
                elif j < 13:
                    a("s_waitcnt vmcnt(9)")
                else:
                    a("s_waitcnt vmcnt(0)")
                    a("s_cmp_ge_u32 s38, 2")
                    a("s_cbranch_scc1 K2_FSKIP")
                gw_compute_pipe(a, j & 1, j == 0, gw_pieces(j & 1, 24, 16, 45, 46, 41) if j + 2 < 14 else [])
                if j == 0 and XP_ES:
                    a("s_barrier")
                j += 1
                continue
            if j < 13:
                gw_issue(a, (j + 1) & 1, 24, 16, 45, 46, 41)
                if j == 0 and XP_GF:
                    a("s_waitcnt vmcnt(18)")
                    gate_compute2(a, 116, 132, 122, 48, 32)
                    a("s_waitcnt vmcnt(10)")
                else:
                    a("s_waitcnt vmcnt(9)")
            else:
                a("s_waitcnt vmcnt(0)")
                a("s_cmp_ge_u32 s38, 2")
                a("s_cbranch_scc1 K2_FSKIP")
            gw_compute(a, j & 1, j == 0)
            if j == 0 and XP_ES:
                a("s_barrier")
            j += 1
    assert j == 14
    a.label("K2_FSKIP")
    if XP_FE:
        a(f"s_setprio {XP_FE}")
    a("s_nop 7")
    a("s_nop 3")
    a("s_waitcnt vmcnt(0)")
    gw_write_partials(a, 41)
    a("s_waitcnt lgkmcnt(0)")
    a("s_barrier")
    gw_read_sum(a, 38, K2_FFN)
    for e in range(0, 20, 2):
        a(f"v_cvt_pk_bf16_f32 v{112 + e // 2}, v{24 + e}, v{25 + e}")
    if XP_FUSE:
        a("s_mul_i32 s42, s38, 2560")
        a(f"s_add_u32 s42, s42, {K2_B}")
        a("v_lshlrev_b32 v2, 3, v1")
        a("v_add_u32 v2, s42, v2")
        for n in range(5):
            a(f"ds_write_b64 v2, {vr(112 + 2 * n, 2)} offset:{512 * n}")
        a("s_waitcnt lgkmcnt(0)")
        a("s_barrier")
        a("s_setprio 0")
        srd_off(a, 52, 8, 9, WS_WO, SZ_WO)
        a("s_mul_i32 s56, s37, 102400")
        a("s_mul_i32 s57, s38, 20480")
        a("s_add_u32 s56, s56, s57")
        for j in range(5):
            a(f"s_add_u32 m0, s41, {4096 * j}")
            a("s_nop 0")
            for i in range(4):
                a(f"buffer_load_dwordx4 v{GW.VA}, s[52:55], s56 offen offset:{1024 * i} lds")
            a("s_add_u32 s56, s56, 4096")
        for _ in range(8 - (len(XP_FS) + 2)):
            a("s_barrier")
        a("s_waitcnt vmcnt(0)")
        a("s_barrier")
        a("s_endpgm")
        return a.text()
    a("s_lshl_b32 s42, s36, 3")
    a("s_add_u32 s42, s42, s37")
    a("s_lshl_b32 s42, s42, 2")
    a("s_add_u32 s42, s42, s38")
    a("s_mul_i32 s42, s42, 2560")
    a("v_lshlrev_b32 v2, 3, v1")
    for n in range(5):
        a(f"buffer_store_dwordx2 {vr(112 + 2 * n, 2)}, v2, s[28:31], s42 offen offset:{512 * n}")
    if XP_PF2:
        srd_off(a, 52, 8, 9, WS_WO, SZ_WO)
        a("s_lshr_b32 s56, s2, 3")
        a("s_mul_i32 s56, s56, 12800")
        a("s_and_b32 s57, s2, 1")
        a("s_mul_i32 s57, s57, 409600")
        a("s_add_u32 s56, s56, s57")
        a("v_and_b32 v3, 255, v0")
        a("v_lshlrev_b32 v2, 7, v3")
        a("v_cmp_gt_u32 vcc, 100, v3")
        a("v_bfrev_b32 v3, 1")
        a("v_cndmask_b32 v2, v3, v2, vcc")
        a("buffer_load_dword v141, v2, s[52:55], s56 offen")
        a("s_waitcnt vmcnt(0)")
    a("s_endpgm")
    return a.text()


def wmap(a, dst, sC0B):
    a("v_mul_u32_u24 v3, 6554, v2")
    a("v_lshrrev_b32 v3, 16, v3")
    a("v_mul_u32_u24 v15, 10, v3")
    a("v_sub_u32 v2, v2, v15")
    a("v_lshrrev_b32 v15, 1, v3")
    a("v_and_b32 v15, 4, v15")
    a("v_xor_b32 v3, v3, v15")
    a("v_lshlrev_b32 v2, 4, v2")
    a("v_mul_u32_u24 v3, 1280, v3")
    a(f"v_add3_u32 v{dst}, v2, v3, s{sC0B}")


def wread_addr(a, d0, d1, sBase):
    a("v_lshlrev_b32 v2, 3, v22")
    a("v_lshrrev_b32 v3, 2, v23")
    a("v_add_u32 v2, v2, v3")
    a("v_mul_u32_u24 v2, 160, v2")
    a("v_and_b32 v3, 3, v23")
    a("v_lshlrev_b32 v3, 3, v3")
    a(f"v_add3_u32 v2, v2, v3, s{sBase}")
    a("v_and_b32 v3, 1, v22")
    a("v_mul_u32_u24 v3, 640, v3")
    a(f"v_add_u32 v{d0}, v2, v3")
    a("v_sub_u32 v2, v2, v3")
    a(f"v_add_u32 v{d1}, 640, v2")


K3_STG = 36864
K3_B = 4 * K3_STG
K3_LDS = K3_B + 10240


def k3():
    a = Asm()
    a.label("k3_kernel")
    if PROF:
        a("s_memtime s[86:87]")
    a("s_cmp_ge_u32 s2, 256")
    a("s_cbranch_scc1 K3_END")
    a("s_load_dwordx2 s[4:5], s[0:1], 16")
    a("s_load_dwordx2 s[8:9], s[0:1], 72")
    a("s_load_dwordx2 s[10:11], s[0:1], 56")
    tile_map(a, 36, 37)
    a("v_and_b32 v1, 63, v0")
    a("v_lshrrev_b32 v2, 6, v0")
    a("v_lshrrev_b32 v22, 4, v1")
    a("v_readfirstlane_b32 s38, v2")
    a("v_and_b32 v23, 15, v1")
    a("s_lshl_b32 s39, s36, 6")
    a("s_mul_i32 s40, s37, 160")
    a("s_and_b32 s49, s38, 3")
    a("s_lshr_b32 s50, s38, 2")
    a("s_lshl_b32 s42, s38, 3")
    for j in range(2):
        a(f"s_add_u32 s43, s42, {4 * j}")
        a("v_add_u32 v2, s43, v22")
        a("v_and_b32 v3, 15, v2")
        a("v_xor_b32 v3, v3, v23")
        a("v_add_u32 v2, s39, v2")
        a("v_mul_u32_u24 v2, 1280, v2")
        a(f"v_lshl_add_u32 v{4 + j}, v3, 4, v2")
    a("s_add_u32 s43, s38, 8")
    a("s_add_u32 s44, s38, 16")
    a("s_cmp_lt_u32 s38, 4")
    a("s_cselect_b32 s44, s44, s43")
    a("v_lshlrev_b32 v2, 4, v1")
    a("s_mul_i32 s55, s37, 102400")
    for j, sp in enumerate((38, 43, 44)):
        a(f"s_lshl_b32 s{52 + j}, s{sp}, 10")
        a(f"s_add_u32 s51, s{52 + j}, s55")
        a(f"v_add_u32 v{8 + j}, s51, v2")
        a(f"s_add_u32 s{52 + j}, s{52 + j}, 16384")
    a("s_lshl_b32 s45, s38, 11")
    a("s_waitcnt lgkmcnt(0)")
    srd_off(a, 12, 8, 9, WS_WO, SZ_WO)
    srd_off(a, 20, 8, 9, WS_O, SZ_O)
    srd_off(a, 24, 8, 9, WS_B, SZ_B)
    srd_off(a, 28, 8, 9, WS_G, SZ_G)
    srd(a, 32, 10, 11, SZ_OUT)
    prof_init(a, 8, 9, 38, 2)
    prof(a, 0)

    def issue(stage, slot):
        a(f"s_mov_b32 s47, {stage * 256}")
        a(f"s_mov_b32 s48, {stage * 20480}")
        for j in range(2):
            a(f"s_add_u32 m0, s45, {slot * K3_STG + j * 1024}")
            a("s_nop 0")
            a(f"buffer_load_dwordx4 v{4 + j}, s[20:23], s47 offen lds")
        for j in range(3):
            a(f"s_add_u32 m0, s{52 + j}, {slot * K3_STG}")
            a("s_nop 0")
            a(f"buffer_load_dwordx4 v{8 + j}, s[12:15], s48 offen lds")

    for st in range(4):
        issue(st, st)
    a("s_lshl_b32 s42, s36, 3")
    a("s_add_u32 s42, s42, s37")
    a("s_lshl_b32 s42, s42, 2")
    a("s_add_u32 s42, s42, s49")
    a("s_mul_i32 s42, s42, 2560")
    a("s_mul_i32 s43, s50, 1536")
    a("s_add_u32 s42, s42, s43")
    a("v_lshlrev_b32 v2, 3, v1")
    for n in range(3):
        a(f"buffer_load_dwordx2 {vr(104 + 2 * n, 2)}, v2, s[24:27], s42 offen offset:{512 * n}")
    a("s_lshl_b32 s42, s49, 4")
    a("v_add_u32 v2, s42, v23")
    a("v_add_u32 v3, s39, v2")
    a("v_lshlrev_b32 v3, 2, v3")
    a("buffer_load_dword v16, v3, s[28:31], 0 offen")
    a("v_mul_u32_u24 v2, 160, v2")
    a("v_lshl_add_u32 v2, v22, 3, v2")
    a("s_mul_i32 s43, s50, 96")
    a(f"s_add_u32 s43, s43, {K3_B}")
    a("v_add_u32 v17, s43, v2")
    for j in range(2):
        a("s_mul_i32 s43, s38, 80")
        a(f"s_add_u32 s43, s43, {64 * j}")
        a("v_add_u32 v2, s43, v1")
        a("v_mul_u32_u24 v3, 6554, v2")
        a("v_lshrrev_b32 v3, 16, v3")
        a("v_mul_u32_u24 v15, 10, v3")
        a("v_sub_u32 v15, v2, v15")
        a("v_lshlrev_b32 v15, 4, v15")
        a("v_add_u32 v3, s39, v3")
        a("v_mul_u32_u24 v3, 1280, v3")
        a(f"v_add3_u32 v{12 + j}, v3, v15, s40")
        a("v_lshlrev_b32 v2, 4, v2")
        a(f"v_add_u32 v{32 + j}, {K3_B}, v2")
    BV = 104
    RA, RW = 24, 28
    a("s_lshl_b32 s43, s49, 12")
    a("v_lshlrev_b32 v2, 8, v23")
    a("v_add_u32 v2, s43, v2")
    a("s_lshl_b32 s43, s50, 3")
    for i in range(2):
        a(f"s_add_u32 s44, s43, {4 * i}")
        a("v_add_u32 v3, s44, v22")
        a("v_xor_b32 v3, v3, v23")
        a(f"v_lshl_add_u32 v{RA + i}, v3, 4, v2")
        a(f"v_add_u32 v{RA + 2 + i}, {2 * K3_STG}, v{RA + i}")
    a("s_mul_i32 s43, s50, 10240")
    a("s_add_u32 s43, s43, 16384")
    wread_addr(a, RW, RW + 1, 43)
    a(f"v_add_u32 v{RW + 2}, {2 * K3_STG}, v{RW}")
    a(f"v_add_u32 v{RW + 3}, {2 * K3_STG}, v{RW + 1}")
    a("v_lshlrev_b32 v21, 4, v1")
    a("s_mul_i32 s43, s49, 5120")
    a(f"s_add_u32 s43, s43, {K3_STG}")
    a("v_add_u32 v21, s43, v21")
    AF = (36, 40)
    WF = (44, 64)
    ACC = 84

    def reads(t):
        st, i = t >> 1, t & 1
        slot = st % 4
        hi = slot >> 1
        so = (slot & 1) * K3_STG
        r = [f"ds_read_b128 {vr(AF[i], 4)}, v{RA + 2 * hi + i} offset:{so}"]
        for n in range(5):
            off = so + i * 5120 + n * 32
            r.append(f"ds_read_b64_tr_b16 {vr(WF[i] + 4 * n, 2)}, v{RW + 2 * hi} offset:{off}")
            r.append(f"ds_read_b64_tr_b16 {vr(WF[i] + 4 * n + 2, 2)}, v{RW + 2 * hi + 1} offset:{off}")
        return r

    def mf(t):
        for n in range(5):
            d = ACC + 4 * n
            c = "0" if t == 0 else vr(d, 4)
            a(f"v_mfma_f32_16x16x32_bf16 {vr(d, 4)}, {vr(WF[t & 1] + 4 * n, 4)}, {vr(AF[t & 1], 4)}, {c}")

    a("s_waitcnt vmcnt(19)")
    a("s_barrier")
    prof(a, 1)
    for r in reads(0) + reads(1):
        a(r)
    a("s_waitcnt vmcnt(4) lgkmcnt(0)")
    a("s_barrier")
    prof(a, 2)
    issue(4, 0)
    mf(0)
    for r in reads(2):
        a(r)
    mf(1)
    for t in range(2, 10):
        if t == 7:
            a("s_waitcnt vmcnt(0)")
            a("s_barrier")
            prof(a, 3)
        if t < 9:
            for r in reads(t + 1):
                a(r)
            a("s_waitcnt lgkmcnt(11)")
        else:
            a("s_waitcnt lgkmcnt(0)")
        mf(t)
    a("v_sub_f32 v18, 1.0, v16")
    a("v_cvt_pk_bf16_f32 v18, v18, v18")
    a("v_lshlrev_b32 v18, 16, v18")
    a("s_nop 7")
    prof(a, 6)
    XR = 44
    a("s_cmp_eq_u32 s50, 0")
    a("s_cbranch_scc0 K3_X1")
    for n in (3, 4):
        a(f"ds_write_b128 v21, {vr(ACC + 4 * n, 4)} offset:{1024 * n}")
    a("s_waitcnt lgkmcnt(0)")
    a("s_barrier")
    for n in range(3):
        a(f"ds_read_b128 {vr(XR + 4 * n, 4)}, v21 offset:{1024 * n}")
    a("s_branch K3_FIN")
    a.label("K3_X1")
    for n in range(3):
        a(f"ds_write_b128 v21, {vr(ACC + 4 * n, 4)} offset:{1024 * n}")
    a("s_waitcnt lgkmcnt(0)")
    a("s_barrier")
    for n in (3, 4):
        a(f"ds_read_b128 {vr(XR + 4 * (n - 3), 4)}, v21 offset:{1024 * n}")
    for i in range(8):
        a(f"v_mov_b32 v{ACC + i}, v{ACC + 12 + i}")
    a.label("K3_FIN")
    a("s_waitcnt lgkmcnt(0)")
    for n in range(3):
        if n == 2:
            a("s_cmp_eq_u32 s50, 0")
            a("s_cbranch_scc0 K3_CP")
        for i in range(4):
            a(f"v_add_f32 v{ACC + 4 * n + i}, v{ACC + 4 * n + i}, v{XR + 4 * n + i}")
        for h in range(2):
            e = ACC + 4 * n + 2 * h
            bp = BV + 2 * n + h
            a(f"v_cvt_pk_bf16_f32 v19, v{e}, v{e + 1}")
            a("v_lshlrev_b32 v4, 16, v19")
            a("v_and_b32 v5, 0xffff0000, v19")
            a(f"v_lshlrev_b32 v6, 16, v{bp}")
            a(f"v_and_b32 v7, 0xffff0000, v{bp}")
            a("v_mul_f32 v4, v16, v4")
            a("v_mul_f32 v5, v16, v5")
            a("v_mul_f32 v6, v18, v6")
            a("v_mul_f32 v7, v18, v7")
            a("v_cvt_pk_bf16_f32 v19, v4, v5")
            a("v_cvt_pk_bf16_f32 v20, v6, v7")
            a("v_lshlrev_b32 v4, 16, v19")
            a("v_and_b32 v5, 0xffff0000, v19")
            a("v_lshlrev_b32 v6, 16, v20")
            a("v_and_b32 v7, 0xffff0000, v20")
            a("v_add_f32 v4, v4, v6")
            a("v_add_f32 v5, v5, v7")
            a(f"v_cvt_pk_bf16_f32 v{bp}, v4, v5")
        a(f"ds_write_b64 v17, {vr(BV + 2 * n, 2)} offset:{32 * n}")
    a.label("K3_CP")
    a("s_waitcnt lgkmcnt(0)")
    a("s_barrier")
    a("ds_read_b128 v[4:7], v32")
    a("ds_read_b128 v[8:11], v33")
    a("s_waitcnt lgkmcnt(1)")
    a("buffer_store_dwordx4 v[4:7], v12, s[32:35], 0 offen")
    a("v_cmp_gt_u32 vcc, 16, v1")
    a("s_and_saveexec_b64 s[50:51], vcc")
    a("s_waitcnt lgkmcnt(0)")
    a("buffer_store_dwordx4 v[8:11], v13, s[32:35], 0 offen")
    a("s_mov_b64 exec, s[50:51]")
    a.label("K3_PEND")
    prof(a, 12)
    a.label("K3_END")
    a("s_endpgm")
    return a.text()


def desc(name, vgpr, sgpr=96):
    acc = (vgpr + 3) // 4 * 4
    return f""".amdhsa_kernel {name}
  .amdhsa_next_free_vgpr {vgpr}
  .amdhsa_next_free_sgpr {sgpr}
  .amdhsa_accum_offset {acc}
  .amdhsa_group_segment_fixed_size 0
  .amdhsa_kernarg_size 80
  .amdhsa_user_sgpr_count 2
  .amdhsa_user_sgpr_kernarg_segment_ptr 1
  .amdhsa_system_sgpr_workgroup_id_x 1
.end_amdhsa_kernel
"""


def main():
    l3 = "" if XP_FUSE else f"; @launch kernel=k3_kernel grid=(256,1,1) block=(512,1,1) lds={K3_LDS}\n"
    hdr = f"""; gated_mix__mha_block__dense_activation_relu__prompt : kernel list (generated by gen.py, hand-designed)
; @launch kernel=k1_kernel grid=(256,1,1) block=(512,1,1) lds={K1_LDS}
; @launch kernel=k2_kernel grid=(256,1,1) block=(768,1,1) lds={K2_LDS}
{l3}.amdgcn_target "amdgcn-amd-amdhsa--gfx950"
.text
"""
    body = ""
    for name, fn in (("k1_kernel", k1), ("k2_kernel", k2), ("k3_kernel", k3))[:2 if XP_FUSE else 3]:
        body += f".globl {name}\n.p2align 8\n.type {name},@function\n" + fn()
    tail = '.section .rodata,"a"\n.p2align 6\n'
    tail += desc("k1_kernel", 176)
    tail += ".p2align 6\n" + desc("k2_kernel", 144)
    if not XP_FUSE:
        tail += ".p2align 6\n" + desc("k3_kernel", 116)
    open(OUT, "w").write(hdr + body + tail)


if __name__ == "__main__":
    main()
```

```python
import struct, sys

OUT = sys.argv[1] if len(sys.argv) > 1 else "gated_mix__mha_block__dense_activation_relu__prompt.s"

WS_Q = 0
SZ_Q = 32 * 2048 * 48
WS_KV = 0x400000
HEAD_KV = 64 * 2880
SZ_KV = 32 * HEAD_KV
WS_H = 0xC00000
SZ_H = 2048 * 3456
WS_O = 0x1400000
SZ_O = 2048 * 1280
WS_G = 0x1800000
SZ_G = 2048 * 4
WS_B = 0x1A00000
SZ_B = 2048 * 1280
WS_WO = 0x1E00000
WS_W2P = 0x2400000
WS_CNT = 0x2800000

SZ_X = 2048 * 1280
SZ_WQKV = 640 * 3840
SZ_WO = 640 * 1280
SZ_W1 = 640 * 3456
SZ_W2 = 1728 * 1280
SZ_OUT = 2048 * 1280


def f32bits(x):
    return struct.unpack("<I", struct.pack("<f", x))[0]


C_SCALE = 1.4426950408889634 / (20 ** 0.5)
LOG2E = 1.4426950408889634


PROF = int(__import__("os").environ.get("PROF", "0"))
WS_T = 0x2000000
XP_PF = int(__import__("os").environ.get("XP_PF", "0"))
XP_ROT = int(__import__("os").environ.get("XP_ROT", "1"))
XP_PRIO = int(__import__("os").environ.get("XP_PRIO", "0"))
XP_RPM = int(__import__("os").environ.get("XP_RPM", "1"))
XP_DSL = eval(__import__("os").environ.get("XP_DSL", "(7, 10, 13)"))
XP_FDEL = int(__import__("os").environ.get("XP_FDEL", "1"))
XP_FS = eval(__import__("os").environ.get("XP_FS", "(1, 3, 3, 3, 2, 2)"))
XP_QX = int(__import__("os").environ.get("XP_QX", "0"))
XP_PF2 = int(__import__("os").environ.get("XP_PF2", "0"))
XP_NOLDS = int(__import__("os").environ.get("XP_NOLDS", "0"))
XP_NOFFN = int(__import__("os").environ.get("XP_NOFFN", "0"))
XP_K8 = int(__import__("os").environ.get("XP_K8", "1"))
XP_PR = eval(__import__("os").environ.get("XP_PR", "(3, 3, 3, 2, 2, 2, 1, 1)"))
XP_FP = int(__import__("os").environ.get("XP_FP", "0"))
XP_FE = int(__import__("os").environ.get("XP_FE", "3"))
XP_FPIPE = int(__import__("os").environ.get("XP_FPIPE", "1"))
XP_FB = int(__import__("os").environ.get("XP_FB", "2"))
XP_FUSE = int(__import__("os").environ.get("XP_FUSE", "1"))
XP_ES = int(__import__("os").environ.get("XP_ES", "1"))
XP_FJ = int(__import__("os").environ.get("XP_FJ", "1"))
XP_GF = int(__import__("os").environ.get("XP_GF", "1"))
XP_NODMA = int(__import__("os").environ.get("XP_NODMA", "0"))
XP_NOBAR = int(__import__("os").environ.get("XP_NOBAR", "0"))
XP_SEN = int(__import__("os").environ.get("XP_SEN", "1"))
XP_PKS = int(__import__("os").environ.get("XP_PKS", "8"))
XP_SLP = int(__import__("os").environ.get("XP_SLP", "1"))
WS_F = 0x1802000
SZ_F = 131072


def prof_init(a, wsl, wsh, wave_s, kidx=0):
    if not PROF:
        return
    a(f"s_add_u32 s92, s{wsl}, {WS_T + kidx * 0x100000}")
    a(f"s_addc_u32 s93, s{wsh}, 0")
    a("s_and_b32 s93, s93, 0xffff")
    a("s_mov_b32 s94, 0x100000")
    a("s_mov_b32 s95, 0x00020000")
    a("s_lshl_b32 s91, s2, 4")
    a(f"s_add_u32 s91, s91, s{wave_s}")
    a("s_lshl_b32 s91, s91, 7")


def prof(a, slot, tmpv=2):
    if not PROF:
        return
    a("s_memtime s[88:89]")
    a("s_waitcnt lgkmcnt(0)")
    a(f"v_mov_b32 v{tmpv}, s88")
    a(f"v_mov_b32 v{tmpv + 1}, 0")
    a(f"buffer_store_dword v{tmpv}, v{tmpv + 1}, s[92:95], s91 offen offset:{4 * slot}")
    if slot == 0:
        a(f"v_mov_b32 v{tmpv}, s86")
        a(f"buffer_store_dword v{tmpv}, v{tmpv + 1}, s[92:95], s91 offen offset:60")
    if slot in (0, 12):
        a("s_memrealtime s[88:89]")
        a("s_waitcnt lgkmcnt(0)")
        a(f"v_mov_b32 v{tmpv}, s88")
        a(f"buffer_store_dword v{tmpv}, v{tmpv + 1}, s[92:95], s91 offen offset:{4 * (13 if slot == 0 else 14)}")


class Asm:
    def __init__(self):
        self.lines = []

    def __call__(self, s):
        self.lines.append("    " + s)

    def label(self, l):
        self.lines.append(l + ":")

    def c(self, s):
        self.lines.append("    ; " + s)

    def text(self):
        return "\n".join(self.lines) + "\n"


def vr(b, n=1):
    return f"v{b}" if n == 1 else f"v[{b}:{b + n - 1}]"


def sr(b, n=1):
    return f"s{b}" if n == 1 else f"s[{b}:{b + n - 1}]"


def srd(a, d, lo, hi, size):
    a(f"s_mov_b32 s{d}, s{lo}")
    a(f"s_and_b32 s{d + 1}, s{hi}, 0xffff")
    a(f"s_mov_b32 s{d + 2}, {size}")
    a(f"s_mov_b32 s{d + 3}, 0x00020000")


def srd_off(a, d, lo, hi, off, size):
    a(f"s_add_u32 s{d}, s{lo}, {off}")
    a(f"s_addc_u32 s{d + 1}, s{hi}, 0")
    a(f"s_and_b32 s{d + 1}, s{d + 1}, 0xffff")
    a(f"s_mov_b32 s{d + 2}, {size}")
    a(f"s_mov_b32 s{d + 3}, 0x00020000")


K1_STAGE = 45056
K1_LDS = 3 * K1_STAGE


XP_PSC = __import__("os").environ.get("XP_PSC", " sc1")


def k1_poison(a, D, A, S=68):
    srd_off(a, S, 10, 11, WS_O, WS_F + SZ_F - WS_O)
    for i in range(4):
        a(f"v_mov_b32 v{D + i}, -1")
    a("s_mul_i32 s80, s2, 10240")
    a(f"v_lshlrev_b32 v{A}, 4, v0")
    a(f"v_add_u32 v{A + 1}, 8192, v{A}")
    a(f"v_add_u32 v{A + 1}, s80, v{A + 1}")
    a("s_lshl_b32 s81, s2, 5")
    a(f"s_add_u32 s81, s81, {WS_G - WS_O - 2048}")
    a(f"v_add_u32 v{A + 2}, s81, v{A}")
    a("v_cmp_gt_u32 vcc, 128, v0")
    a(f"v_cndmask_b32 v{A + 1}, v{A + 2}, v{A + 1}, vcc")
    a("s_lshl_b32 s81, s2, 9")
    a(f"s_add_u32 s81, s81, {WS_F - WS_O - 2080}")
    a(f"v_add_u32 v{A + 2}, s81, v{A}")
    a("v_cmp_gt_u32 vcc, 130, v0")
    a(f"v_cndmask_b32 v{A + 1}, v{A + 2}, v{A + 1}, vcc")
    a(f"v_bfrev_b32 v{A + 2}, 1")
    a("v_cmp_gt_u32 vcc, 162, v0")
    a(f"v_cndmask_b32 v{A + 1}, v{A + 2}, v{A + 1}, vcc")
    if XP_SEN == 2:
        a("v_cmp_lt_u32 vcc, 127, v0")
        a(f"v_cndmask_b32 v{A + 1}, v{A + 2}, v{A + 1}, vcc")
        a(f"v_mov_b32 v{A}, v{A + 2}")
    a(f"buffer_store_dwordx4 {vr(D, 4)}, v{A}, {sr(S, 4)}, s80 offen{XP_PSC}")
    a(f"buffer_store_dwordx4 {vr(D, 4)}, v{A + 1}, {sr(S, 4)}, 0 offen{XP_PSC}")


def k1():
    a = Asm()
    a.label("k1_kernel")
    if PROF:
        a("s_memtime s[86:87]")
    a("s_cmp_ge_u32 s2, 256")
    a("s_cbranch_scc1 K1_END")
    a("s_and_b32 s3, s2, 7")
    a("s_lshr_b32 s4, s2, 3")
    a("s_lshl_b32 s3, s3, 5")
    a("s_add_u32 s3, s3, s4")
    a("s_cmp_ge_u32 s3, 253")
    a("s_cbranch_scc1 K1_PACK")
    a("s_mul_i32 s25, s3, 373")
    a("s_lshr_b32 s25, s25, 12")
    a("s_mul_i32 s4, s25, 11")
    a("s_sub_u32 s24, s3, s4")
    a("s_load_dwordx2 s[4:5], s[0:1], 0")
    a("s_load_dwordx2 s[6:7], s[0:1], 8")
    a("s_load_dwordx2 s[8:9], s[0:1], 32")
    a("s_load_dwordx2 s[10:11], s[0:1], 72")
    a("s_load_dwordx2 s[64:65], s[0:1], 40")
    a("v_and_b32 v1, 63, v0")
    a("v_lshrrev_b32 v2, 6, v0")
    a("s_nop 0")
    a("v_readfirstlane_b32 s26, v2")
    a("s_mul_i32 s72, s3, 547")
    a("s_lshr_b32 s27, s25, 2")
    a("s_min_u32 s27, s27, 3")
    a("s_mul_i32 s30, s24, 192")
    a("s_waitcnt lgkmcnt(0)")
    srd(a, 12, 4, 5, SZ_X)
    a("s_sub_u32 s29, s25, 12")
    a(f"s_mov_b32 s18, {SZ_W1}")
    a("s_mov_b32 s28, 3456")
    a("s_cmp_lt_u32 s25, 12")
    a("s_cselect_b32 s16, s6, s8")
    a("s_cselect_b32 s17, s7, s9")
    a(f"s_cselect_b32 s18, {SZ_WQKV}, s18")
    a("s_cselect_b32 s28, 3840, s28")
    a("s_cselect_b32 s29, s25, s29")
    a("s_and_b32 s17, s17, 0xffff")
    a("s_mov_b32 s19, 0x00020000")
    a("s_mul_i32 s29, s29, 160")
    a(f"s_mov_b32 s31, {WS_KV}")
    a(f"s_mov_b32 s22, {SZ_KV}")
    a("s_cmp_eq_u32 s27, 0")
    a(f"s_cselect_b32 s31, {WS_Q}, s31")
    a(f"s_cselect_b32 s22, {SZ_Q}, s22")
    a("s_cmp_eq_u32 s27, 3")
    a(f"s_cselect_b32 s31, {WS_H}, s31")
    a(f"s_cselect_b32 s22, {SZ_H}, s22")
    a("s_add_u32 s20, s10, s31")
    a("s_addc_u32 s21, s11, 0")
    a("s_and_b32 s21, s21, 0xffff")
    a("s_mov_b32 s23, 0x00020000")
    prof_init(a, 10, 11, 26, 0)
    prof(a, 0)
    a("s_and_b32 s65, s65, 0xffff")
    a(f"s_mov_b32 s66, {SZ_W2}")
    a("s_mov_b32 s67, 0x00020000")
    srd_off(a, 68, 10, 11, WS_W2P, SZ_W2)
    a("v_add_u32 v164, s72, v0")
    a("v_add_u32 v165, 512, v164")
    a("v_bfrev_b32 v2, 1")
    a("v_cmp_gt_u32 vcc, 35, v0")
    a("v_lshlrev_b32 v166, 4, v164")
    a("v_cndmask_b32 v165, v2, v165, vcc")
    a("v_lshlrev_b32 v2, 4, v165")
    a("v_cndmask_b32 v167, v165, v2, vcc")
    a("s_lshr_b32 s32, s26, 1")
    a("s_and_b32 s33, s26, 1")
    a("v_lshrrev_b32 v2, 3, v1")
    a("v_and_b32 v3, 7, v1")
    a("v_xor_b32 v3, v3, v2")
    a("v_lshlrev_b32 v3, 4, v3")
    a("v_mul_u32_u24 v2, 1280, v2")
    a("v_add_u32 v4, v2, v3")
    a("v_add_u32 v5, 10240, v4")
    a("v_add_u32 v6, 20480, v4")
    a("s_mul_i32 s34, s26, 24")
    a("s_add_u32 s34, s34, s30")
    a("s_mul_i32 s34, s34, 1280")
    a("s_mov_b32 s35, 0")
    a("s_lshl_b32 s36, s28, 6")
    a("s_add_u32 s62, s34, 1280")
    a("s_mul_i32 s61, s28, 640")
    a("s_add_u32 s60, s24, s25")
    a("s_mul_i32 s63, s60, 43")
    a("s_lshr_b32 s63, s63, 7")
    a("s_mul_i32 s63, s63, 3")
    a("s_sub_u32 s60, s60, s63")
    a(f"s_mul_i32 s60, s60, {XP_ROT}")
    a("s_lshl_b32 s63, s60, 7")
    a("s_add_u32 s34, s34, s63")
    a("s_mul_i32 s35, s60, s36")
    a("s_add_u32 s37, s26, 8")
    a("s_add_u32 s38, s26, 16")
    a("s_cmp_lt_u32 s26, 4")
    a("s_cselect_b32 s38, s38, s37")
    a("s_lshl_b32 s39, s29, 1")
    for j, sidx in enumerate((26, 37, 38)):
        a(f"s_lshl_b32 s40, s{sidx}, 6")
        a("v_add_u32 v2, s40, v1")
        a("v_mul_u32_u24 v3, 3277, v2")
        a("v_lshrrev_b32 v3, 16, v3")
        a("v_mul_u32_u24 v22, 20, v3")
        a("v_sub_u32 v2, v2, v22")
        a("v_lshrrev_b32 v22, 2, v3")
        a("v_and_b32 v22, 2, v22")
        a("v_xor_b32 v2, v2, v22")
        a("v_lshlrev_b32 v2, 4, v2")
        a("v_mul_lo_u32 v3, v3, s28")
        a(f"v_add3_u32 v{7 + j}, v2, v3, s39")
    a("s_mul_i32 s41, s26, 3072")
    a("s_lshl_b32 s42, s26, 10")
    a("s_add_u32 s42, s42, 24576")
    a("s_lshl_b32 s43, s37, 10")
    a("s_add_u32 s43, s43, 24576")
    a("s_lshl_b32 s44, s38, 10")
    a("s_add_u32 s44, s44, 24576")

    def dma_pieces(buf):
        base = buf * K1_STAGE
        g = []
        for j in range(3):
            x = [f"s_add_u32 m0, s41, {base + j * 1024}", "s_nop 0",
                 f"buffer_load_dwordx4 v{4 + j}, s[12:15], s34 offen lds"]
            if j == 2:
                x += ["s_add_u32 s34, s34, 128", "s_sub_u32 s60, s34, 1280", "s_cmp_ge_u32 s34, s62",
                      "s_cselect_b32 s34, s60, s34"]
            g.append(x)
        for j in range(3):
            x = [f"s_add_u32 m0, s{42 + j}, {base}", "s_nop 0",
                 f"buffer_load_dwordx4 v{7 + j}, s[16:19], s35 offen lds"]
            if j == 2:
                x += ["s_add_u32 s35, s35, s36", "s_cmp_ge_u32 s35, s61", "s_cselect_b32 s35, 0, s35"]
            g.append(x)
        return g

    if XP_SEN and XP_PKS == -1:
        k1_poison(a, 168, 172, 76)
    for b in range(3):
        for g in dma_pieces(b):
            for x in g:
                a(x)
    NPF = 2
    a("buffer_load_dwordx4 v[168:171], v166, s[64:67], 0 offen")
    a("buffer_load_dwordx4 v[172:175], v167, s[64:67], 0 offen")
    a("s_mov_b32 s72, 53687092")
    a("s_mov_b32 s73, 276480")
    for r in (164, 165):
        a(f"v_mul_hi_u32 v24, v{r}, s72")
        a("v_mul_u32_u24 v25, 80, v24")
        a(f"v_sub_u32 v25, v{r}, v25")
        a("v_mul_u32_u24 v26, 6554, v25")
        a("v_lshrrev_b32 v26, 16, v26")
        a("v_mul_u32_u24 v27, 10, v26")
        a("v_sub_u32 v25, v25, v27")
        a("v_mul_u32_u24 v24, 160, v24")
        a("v_mul_lo_u32 v26, v26, s73")
        a("v_lshl_add_u32 v24, v25, 4, v24")
        a("v_add_u32 v24, v24, v26")
        a(f"v_cmp_gt_u32 vcc, {1728 * 80}, v{r}")
        a("v_bfrev_b32 v26, 1")
        a(f"v_cndmask_b32 v{r}, v26, v24, vcc")
    if XP_PF > 1:
        NPF = 3
        a("s_lshr_b32 s45, s2, 3")
        a("s_mul_i32 s45, s45, 81920")
        a("v_lshlrev_b32 v2, 7, v0")
        a("buffer_load_dword v160, v2, s[12:15], s45 offen")
        a("v_add_u32 v3, 0x10000, v2")
        a("v_cmp_gt_u32 vcc, 128, v0")
        a("v_bfrev_b32 v22, 1")
        a("v_cndmask_b32 v3, v22, v3, vcc")
        a("buffer_load_dword v161, v3, s[12:15], s45 offen")
        a("v_mul_u32_u24 v2, 21846, v0")
        a("v_lshrrev_b32 v2, 16, v2")
        a("v_mul_u32_u24 v3, 3, v2")
        a("v_sub_u32 v3, v0, v3")
        a("v_lshlrev_b32 v3, 7, v3")
        a("s_mul_i32 s45, s24, 59")
        a("v_add_u32 v2, s45, v2")
        a("v_cmp_gt_u32 vcc, 177, v0")
        a("v_mul_lo_u32 v2, v2, s28")
        a("v_add3_u32 v2, v2, v3, s39")
        a("v_cndmask_b32 v2, v22, v2, vcc")
        a("buffer_load_dword v162, v2, s[16:19], 0 offen")
    a("v_lshrrev_b32 v22, 4, v1")
    a("v_and_b32 v23, 15, v1")
    a("s_mul_i32 s45, s32, 48")
    a("v_add_u32 v2, s45, v23")
    a("v_lshlrev_b32 v2, 7, v2")
    a("v_and_b32 v3, 7, v23")
    a("v_xor_b32 v3, v3, v22")
    a("v_lshlrev_b32 v3, 4, v3")
    a("v_add_u32 v10, v2, v3")
    a("v_xor_b32 v11, 64, v10")
    for b in (1, 2):
        a(f"v_add_u32 v{10 + 2 * b}, {b * K1_STAGE}, v10")
        a(f"v_add_u32 v{11 + 2 * b}, {b * K1_STAGE}, v11")
    a("v_lshlrev_b32 v2, 3, v22")
    a("v_lshrrev_b32 v3, 2, v23")
    a("v_add_u32 v2, v2, v3")
    a("v_mul_u32_u24 v2, 320, v2")
    a("v_and_b32 v3, 3, v23")
    a("v_lshlrev_b32 v3, 3, v3")
    a("s_mul_i32 s45, s33, 160")
    a("s_add_u32 s45, s45, 24576")
    a("v_add3_u32 v2, v2, v3, s45")
    a("v_and_b32 v3, 1, v22")
    a("v_lshlrev_b32 v3, 5, v3")
    a("s_cmp_eq_u32 s33, 0")
    a("s_cselect_b32 s45, 1, -1")
    a("v_mul_lo_u32 v3, v3, s45")
    a("v_add_u32 v16, v2, v3")
    a("v_sub_u32 v17, v2, v3")
    for b in (1, 2):
        a(f"v_add_u32 v{16 + 2 * b}, {b * K1_STAGE}, v16")
        a(f"v_add_u32 v{17 + 2 * b}, {b * K1_STAGE}, v17")

    XF = (24, 36)
    WF = (48, 68)
    ACC = 88

    def reads(buf, sub, st):
        r = []
        for ti in range(3):
            r.append(f"ds_read_b128 {vr(XF[st] + 4 * ti, 4)}, v{10 + 2 * buf + sub} offset:{ti * 2048}")
        for ni in range(5):
            ad = 16 + 2 * buf + (ni & 1)
            off = ni * 32 + sub * 10240
            r.append(f"ds_read_b64_tr_b16 {vr(WF[st] + 4 * ni, 2)}, v{ad} offset:{off}")
            r.append(f"ds_read_b64_tr_b16 {vr(WF[st] + 4 * ni + 2, 2)}, v{ad} offset:{off + 1280}")
        return r

    def mfmas(st, vor, first):
        m = []
        for ni in range(5):
            for ti in range(3):
                d = ACC + 4 * (ni * 3 + ti)
                c = "0" if first else vr(d, 4)
                w = vr(WF[st] + 4 * ni, 4)
                x = vr(XF[st] + 4 * ti, 4)
                if vor:
                    m.append(f"v_mfma_f32_16x16x32_bf16 {vr(d, 4)}, {x}, {w}, {c}")
                else:
                    m.append(f"v_mfma_f32_16x16x32_bf16 {vr(d, 4)}, {w}, {x}, {c}")
        return m

    def phase(ms, rs, ds):
        rs = list(rs)
        ds = list(ds)
        for i, m in enumerate(ms):
            a(m)
            for _ in range(XP_RPM):
                if rs:
                    a(rs.pop(0))
            if ds and i in XP_DSL:
                for x in ds.pop(0):
                    a(x)

    def loop(vor):
        a(f"s_waitcnt vmcnt({12 + NPF})")
        a("s_barrier")
        prof(a, 1)
        for r in reads(0, 0, 0):
            a(r)
        pend = []
        for ks in range(10):
            buf = ks % 3
            a("s_waitcnt lgkmcnt(0)")
            phase(mfmas(0, vor, ks == 0), reads(buf, 1, 1), pend)
            pend = []
            nxt = []
            if ks < 9:
                a(f"s_waitcnt vmcnt({(6 + NPF if ks in (0, 1, 3) or (XP_SEN and ks == XP_PKS + 1) else 6) if ks < 8 else 0}) lgkmcnt(0)")
                a("s_barrier")
                if ks == 2:
                    a("buffer_store_dwordx4 v[168:171], v164, s[68:71], 0 offen")
                    a("buffer_store_dwordx4 v[172:175], v165, s[68:71], 0 offen")
                if XP_SEN and ks == XP_PKS:
                    k1_poison(a, 168, 164)
                prof(a, 2 + ks)
                nxt = reads((ks + 1) % 3, 0, 0)
            else:
                a("s_waitcnt lgkmcnt(0)")
            d = []
            if ks + 3 < 10:
                p = dma_pieces(buf)
                d = p[:3]
                pend = p[3:]
            phase(mfmas(1, vor, False), nxt, d)
        a("s_barrier")
        a("s_nop 7")
        a("s_nop 3")
        prof(a, 11)

    a("s_cmp_eq_u32 s27, 2")
    a("s_cbranch_scc1 K1_VLOOP")
    loop(False)
    a("s_mul_i32 s45, s32, 48")
    a("v_add_u32 v4, s45, v23")
    a("s_cmp_eq_u32 s27, 3")
    a("s_cbranch_scc1 K1_EPI_FFN")
    a("s_cmp_eq_u32 s27, 0")
    a(f"s_cselect_b32 s48, {f32bits(C_SCALE)}, 1.0")
    NO = 148
    a("v_mul_u32_u24 v4, 48, v4")
    a("s_mul_i32 s46, s33, 36864")
    a("v_add_u32 v4, s46, v4")
    for ni in range(5):
        a(f"v_add_u32 v2, {4 * ni}, v22")
        a("v_mul_u32_u24 v3, 13, v2")
        a("v_lshrrev_b32 v3, 6, v3")
        a("v_mul_u32_u24 v5, 5, v3")
        a(f"v_sub_u32 v{NO + 5 + ni}, v2, v5")
        a("v_mul_u32_u24 v3, 9216, v3")
        a(f"v_lshl_add_u32 v3, v{NO + 5 + ni}, 3, v3")
        a(f"v_add_u32 v{NO + ni}, v3, v4")
    a("v_mov_b32 v8, 0x3f803f80")
    a("v_mov_b32 v9, 0x00003f80")
    for ti in range(3):
        for ni in range(5):
            d = ACC + 4 * (ni * 3 + ti)
            for i in range(4):
                a(f"v_mul_f32 v{d + i}, s48, v{d + i}")
            a(f"v_cvt_pk_bf16_f32 v{d}, v{d}, v{d + 1}")
            a(f"v_cvt_pk_bf16_f32 v{d + 1}, v{d + 2}, v{d + 3}")
            a(f"ds_write_b64 v{NO + ni}, {vr(d, 2)} offset:{768 * ti}")
    for ni in range(1, 5):
        a(f"v_cmp_eq_u32 vcc, 4, v{NO + 5 + ni}")
        a("s_and_saveexec_b64 s[50:51], vcc")
        for ti in range(3):
            a(f"ds_write_b64 v{NO + ni}, v[8:9] offset:{768 * ti + 8}")
        a("s_mov_b64 exec, s[50:51]")
    a("s_mul_i32 s52, s26, 9216")
    a("s_and_b32 s46, s25, 3")
    a("s_lshl_b32 s46, s46, 3")
    a("s_add_u32 s46, s46, s26")
    a("s_sub_u32 s57, 2048, s30")
    a("s_min_u32 s57, s57, 192")
    a("s_mul_i32 s57, s57, 3")
    a("s_mov_b32 s56, 0")
    a("s_mov_b32 s58, 1000")
    a("s_cmp_eq_u32 s27, 0")
    a("s_cbranch_scc0 K1_CPK")
    a("s_mul_i32 s53, s46, 98304")
    a("s_mul_i32 s47, s30, 48")
    a("s_add_u32 s53, s53, s47")
    a("s_mov_b32 s54, 0")
    a("s_mov_b32 s55, 0")
    a("s_branch K1_COPY")
    a.label("K1_CPK")
    a(f"s_mul_i32 s53, s46, {HEAD_KV}")
    a("s_mul_i32 s47, s30, 90")
    a("s_add_u32 s53, s53, s47")
    a("s_mov_b32 s54, 683")
    a("s_mov_b32 s55, 1344")
    a("s_branch K1_COPY")
    a.label("K1_EPI_FFN")
    a("v_lshrrev_b32 v2, 2, v23")
    a("v_sub_u32 v2, 0, v2")
    a("v_and_b32 v2, 3, v2")
    a("v_and_b32 v3, 1, v22")
    a("v_lshlrev_b32 v3, 3, v3")
    a("v_lshl_add_u32 v3, v23, 6, v3")
    a("v_lshrrev_b32 v4, 1, v22")
    a("s_mul_i32 s46, s33, 10")
    for ni in range(5):
        a(f"s_add_u32 s47, s46, {2 * ni}")
        a("v_add_u32 v5, s47, v4")
        a("v_lshrrev_b32 v6, 2, v5")
        a("v_and_b32 v5, 3, v5")
        a("v_xor_b32 v5, v5, v2")
        a("v_lshl_add_u32 v6, v6, 12, v3")
        a(f"v_lshl_add_u32 v{148 + ni}, v5, 4, v6")
    for ti in range(3):
        a(f"s_add_u32 s46, s45, {16 * ti}")
        a("s_lshr_b32 s47, s46, 6")
        a("s_mul_i32 s47, s47, 20480")
        a("s_and_b32 s46, s46, 63")
        a("s_lshl_b32 s46, s46, 6")
        a("s_add_u32 s46, s46, s47")
        for ni in range(5):
            d = ACC + 4 * (ni * 3 + ti)
            for i in range(4):
                a(f"v_max_f32 v{d + i}, 0, v{d + i}")
            a(f"v_cvt_pk_bf16_f32 v{d}, v{d}, v{d + 1}")
            a(f"v_cvt_pk_bf16_f32 v{d + 1}, v{d + 2}, v{d + 3}")
            a(f"v_add_u32 v4, s46, v{148 + ni}")
            a(f"ds_write_b64 v4, {vr(d, 2)}")
    a("s_mul_i32 s52, s26, 2560")
    a("s_lshr_b32 s46, s30, 6")
    a("s_mul_i32 s46, s46, 54")
    a("s_lshr_b32 s47, s29, 5")
    a("s_add_u32 s46, s46, s47")
    a("s_lshl_b32 s53, s46, 12")
    a("s_add_u32 s53, s53, s52")
    a("s_mov_b32 s54, 410")
    a(f"s_mov_b32 s55, {221184 - 2560}")
    a(f"s_mov_b32 s56, {20480 - 2560}")
    a("s_sub_u32 s57, 2048, s30")
    a("s_min_u32 s57, s57, 192")
    a("s_lshr_b32 s57, s57, 6")
    a("s_mul_i32 s57, s57, 160")
    a("s_sub_u32 s58, 1728, s29")
    a("s_min_u32 s58, s58, 160")
    a("s_lshl_b32 s58, s58, 3")
    a("s_mul_i32 s47, s26, 160")
    a("s_sub_i32 s58, s58, s47")
    a("s_branch K1_COPY")
    a.label("K1_VLOOP")
    loop(True)
    a("s_mul_i32 s46, s33, 32256")
    for ni in range(5):
        a(f"v_add_u32 v2, {16 * ni}, v23")
        a("v_mul_u32_u24 v3, 205, v2")
        a("v_lshrrev_b32 v3, 12, v3")
        a("v_mul_u32_u24 v4, 20, v3")
        a(f"v_sub_u32 v{NO + 10 + ni}, v2, v4")
        a("v_mul_u32_u24 v3, 8064, v3")
        a(f"v_lshlrev_b32 v4, 6, v{NO + 10 + ni}")
        a(f"v_add3_u32 v{NO + ni}, v3, v4, s46")
        a(f"v_bfe_u32 v{NO + 5 + ni}, v{NO + 10 + ni}, 2, 2")
    a("v_mov_b32 v8, 0x3f803f80")
    a("v_mov_b32 v9, 0x3f803f80")
    a("s_mul_i32 s45, s32, 48")
    for ti in range(3):
        a(f"s_add_u32 s49, s45, {16 * ti}")
        a("v_lshlrev_b32 v2, 2, v22")
        a("v_add_u32 v2, s49, v2")
        a("v_lshrrev_b32 v3, 5, v2")
        a("v_mul_u32_u24 v3, 1344, v3")
        a("v_bfe_u32 v2, v2, 2, 3")
        a("v_bfe_u32 v4, v2, 1, 1")
        a("v_lshl_add_u32 v10, v4, 3, v3")
        a("v_lshrrev_b32 v4, 1, v2")
        a("v_and_b32 v4, 2, v4")
        a("v_and_b32 v2, 1, v2")
        a("v_or_b32 v11, v2, v4")
        for ni in range(5):
            d = ACC + 4 * (ni * 3 + ti)
            a(f"v_cvt_pk_bf16_f32 v{d}, v{d}, v{d + 1}")
            a(f"v_cvt_pk_bf16_f32 v{d + 1}, v{d + 2}, v{d + 3}")
            a(f"v_xor_b32 v6, v11, v{NO + 5 + ni}")
            a("v_lshlrev_b32 v6, 4, v6")
            a(f"v_add3_u32 v6, v6, v10, v{NO + ni}")
            a(f"ds_write_b64 v6, {vr(d, 2)}")
            if ni < 4:
                a("v_xor_b32 v7, 1, v11")
                a("v_lshlrev_b32 v7, 4, v7")
                a(f"v_add3_u32 v7, v7, v10, v{NO + ni}")
                a(f"v_cmp_eq_u32 vcc, 0, v{NO + 10 + ni}")
                a("s_and_saveexec_b64 s[50:51], vcc")
                a("ds_write_b64 v7, v[8:9] offset:1280")
                a("s_mov_b64 exec, s[50:51]")
    a("s_mul_i32 s52, s26, 8064")
    a("s_and_b32 s46, s25, 3")
    a("s_lshl_b32 s46, s46, 3")
    a("s_add_u32 s46, s46, s26")
    a(f"s_mul_i32 s53, s46, {HEAD_KV}")
    a("s_mul_i32 s47, s30, 90")
    a("s_add_u32 s53, s53, s47")
    a("s_add_u32 s53, s53, 1536")
    a("s_mov_b32 s54, 781")
    a("s_mov_b32 s55, 1536")
    a("s_mov_b32 s56, 0")
    a("s_sub_u32 s57, 2048, s30")
    a("s_min_u32 s57, s57, 192")
    a("s_lshr_b32 s57, s57, 5")
    a("s_mul_i32 s57, s57, 84")
    a("s_mov_b32 s58, 1000")
    a.label("K1_COPY")
    a("s_mov_b32 s59, 160")
    for it in range(9):
        ga = 24 + it
        la = 34 + it
        a(f"v_add_u32 v2, {64 * it}, v1")
        a("v_mul_lo_u32 v3, v2, s54")
        a("v_lshrrev_b32 v3, 16, v3")
        a("v_lshlrev_b32 v4, 4, v2")
        a("v_mul_lo_u32 v5, v3, s55")
        a(f"v_add3_u32 v{ga}, v4, v5, s53")
        a("v_mul_lo_u32 v5, v3, s56")
        a(f"v_add3_u32 v{la}, v4, v5, s52")
        a("v_mul_lo_u32 v5, v3, s59")
        a("v_sub_u32 v5, v2, v5")
        a("v_cmp_gt_u32 vcc, s57, v2")
        a("v_cmp_gt_i32 s[50:51], s58, v5")
        a("s_and_b64 vcc, vcc, s[50:51]")
        a("v_bfrev_b32 v5, 1")
        a(f"v_cndmask_b32 v{ga}, v5, v{ga}, vcc")
    a("s_waitcnt lgkmcnt(0)")
    a("s_barrier")
    for it in range(9):
        a(f"ds_read_b128 {vr(48 + 4 * it, 4)}, v{34 + it}")
    for it in range(9):
        a(f"s_waitcnt lgkmcnt({8 - it})")
        a(f"buffer_store_dwordx4 {vr(48 + 4 * it, 4)}, v{24 + it}, s[20:23], 0 offen sc1")
    a.label("K1_PEND")
    prof(a, 12)
    a.label("K1_END")
    a("s_endpgm")
    a.label("K1_PACK")
    a("s_load_dwordx2 s[4:5], s[0:1], 16")
    a("s_load_dwordx2 s[6:7], s[0:1], 72")
    a("s_sub_u32 s3, s3, 253")
    a("s_mul_i32 s3, s3, 17408")
    a("v_add_u32 v1, s3, v0")
    a("v_lshlrev_b32 v2, 4, v1")
    a("s_mov_b32 s20, 52429")
    a("s_mov_b32 s21, 102400")
    a("v_bfrev_b32 v3, 1")
    a("s_waitcnt lgkmcnt(0)")
    srd(a, 12, 4, 5, SZ_WO)
    srd_off(a, 16, 6, 7, WS_WO, SZ_WO)
    if XP_SEN:
        a("s_mov_b32 s10, s6")
        a("s_mov_b32 s11, s7")
        k1_poison(a, 4, 8)
    else:
        srd_off(a, 24, 6, 7, WS_CNT, 65536)
        a("v_lshlrev_b32 v4, 8, v1")
        a("v_mov_b32 v5, 0")
        a("buffer_store_dword v5, v4, s[24:27], 0 offen")
    for j in range(34):
        a(f"s_mov_b32 s22, {j * 8192}")
        a(f"buffer_load_dwordx4 {vr(24 + 4 * j, 4)}, v2, s[12:15], s22 offen")
    for j in range(34):
        a(f"v_add_u32 v4, {j * 512}, v1")
        a("v_mul_lo_u32 v5, v4, s20")
        a("v_lshrrev_b32 v5, 22, v5")
        a("v_mul_u32_u24 v6, 80, v5")
        a("v_sub_u32 v6, v4, v6")
        a("v_mul_u32_u24 v7, 6554, v6")
        a("v_lshrrev_b32 v7, 16, v7")
        a("v_mul_u32_u24 v8, 10, v7")
        a("v_sub_u32 v6, v6, v8")
        a("v_lshrrev_b32 v8, 1, v5")
        a("v_and_b32 v8, 4, v8")
        a("v_xor_b32 v5, v5, v8")
        a("v_mul_u32_u24 v5, 160, v5")
        a("v_mul_lo_u32 v7, v7, s21")
        a("v_lshl_add_u32 v5, v6, 4, v5")
        a("v_add_u32 v5, v5, v7")
        a("v_cmp_gt_u32 vcc, 51200, v4")
        a(f"v_cndmask_b32 v{16 + (j & 3)}, v3, v5, vcc")
        a("s_waitcnt vmcnt(33)")
        a(f"buffer_store_dwordx4 {vr(24 + 4 * j, 4)}, v{16 + (j & 3)}, s[16:19], 0 offen")
    a("s_endpgm")
    return a.text()


GS_SLOT = 9216


class GW:
    VA = 4
    VW = 8
    RA = 13
    RW = 14
    AF = 24
    WF = 40
    ACC = 60


def gw_setup(a, sR0, sC0B, strideA, sLds):
    a("v_lshrrev_b32 v22, 4, v1")
    a("v_and_b32 v23, 15, v1")
    a(f"v_lshlrev_b32 v{GW.VA}, 4, v1")
    a(f"v_add_u32 v{GW.VA + 1}, 4096, v{GW.VA}")
    a("v_lshrrev_b32 v2, 2, v23")
    a("v_sub_u32 v2, 0, v2")
    a("v_and_b32 v2, 3, v2")
    a("v_xor_b32 v2, v2, v22")
    a("v_lshlrev_b32 v2, 4, v2")
    a("v_lshl_add_u32 v2, v23, 6, v2")
    a(f"v_add_u32 v{GW.RA}, s{sLds}, v2")
    a("v_lshlrev_b32 v2, 3, v22")
    a("v_lshrrev_b32 v3, 2, v23")
    a("v_add_u32 v2, v2, v3")
    a("v_mul_u32_u24 v2, 160, v2")
    a("v_and_b32 v3, 3, v23")
    a("v_lshlrev_b32 v3, 3, v3")
    a("v_add_u32 v2, 4096, v2")
    a(f"v_add3_u32 v{GW.RW}, v2, v3, s{sLds}")


def gw_pieces(slot, srdA, srdW, sKA, sKW, sLds):
    g = []
    for i in range(4):
        g.append(([f"s_add_u32 m0, s{sLds}, {slot * GS_SLOT}", "s_nop 0"] if i == 0 else []) +
                 [f"buffer_load_dwordx4 v{GW.VA}, {sr(srdA, 4)}, s{sKA} offen offset:{1024 * i} lds"])
    for i in range(4):
        g.append(([f"s_add_u32 m0, s{sLds}, {slot * GS_SLOT + 4096}", "s_nop 0"] if i == 0 else []) +
                 [f"buffer_load_dwordx4 v{GW.VA}, {sr(srdW, 4)}, s{sKW} offen offset:{1024 * i} lds"])
    g.append([f"s_add_u32 m0, s{sLds}, {slot * GS_SLOT + 8192}", "s_nop 0",
              f"buffer_load_dwordx4 v{GW.VA + 1}, {sr(srdW, 4)}, s{sKW} offen lds",
              f"s_add_u32 s{sKA}, s{sKA}, 4096", f"s_add_u32 s{sKW}, s{sKW}, 5120"])
    return g


def gw_issue(a, slot, srdA, srdW, sKA, sKW, sLds):
    for p in gw_pieces(slot, srdA, srdW, sKA, sKW, sLds):
        for x in p:
            a(x)


def gw_compute_pipe(a, slot, first, pieces):
    for t in range(4):
        a(f"ds_read_b128 {vr(GW.AF + 4 * t, 4)}, v{GW.RA} offset:{slot * GS_SLOT + t * 1024}")
    for n in range(5):
        off = slot * GS_SLOT + n * 32
        a(f"ds_read_b64_tr_b16 {vr(GW.WF + 4 * n, 2)}, v{GW.RW} offset:{off}")
        a(f"ds_read_b64_tr_b16 {vr(GW.WF + 4 * n + 2, 2)}, v{GW.RW} offset:{off + 640}")
    a("s_waitcnt lgkmcnt(0)")
    pieces = list(pieces)
    i = 0
    for n in range(5):
        for t in range(4):
            d = GW.ACC + 4 * (n * 4 + t)
            c = "0" if first else vr(d, 4)
            a(f"v_mfma_f32_16x16x32_bf16 {vr(d, 4)}, {vr(GW.WF + 4 * n, 4)}, {vr(GW.AF + 4 * t, 4)}, {c}")
            i += 1
            if pieces and i % XP_FB == 0:
                for x in pieces.pop(0):
                    a(x)
    for p in pieces:
        for x in p:
            a(x)


def gw_compute_jit(a, slot, first):
    for t in range(4):
        a(f"ds_read_b128 {vr(GW.AF + 4 * t, 4)}, v{GW.RA} offset:{slot * GS_SLOT + t * 1024}")
    for n in range(5):
        off = slot * GS_SLOT + n * 32
        a(f"ds_read_b64_tr_b16 {vr(GW.WF + 4 * n, 2)}, v{GW.RW} offset:{off}")
        a(f"ds_read_b64_tr_b16 {vr(GW.WF + 4 * n + 2, 2)}, v{GW.RW} offset:{off + 640}")
        a("s_waitcnt lgkmcnt(0)")
        for t in range(4):
            d = GW.ACC + 4 * (n * 4 + t)
            c = "0" if first else vr(d, 4)
            a(f"v_mfma_f32_16x16x32_bf16 {vr(d, 4)}, {vr(GW.WF + 4 * n, 4)}, {vr(GW.AF + 4 * t, 4)}, {c}")


def gw_compute(a, slot, first):
    if XP_FJ:
        return gw_compute_jit(a, slot, first)
    for t in range(4):
        a(f"ds_read_b128 {vr(GW.AF + 4 * t, 4)}, v{GW.RA} offset:{slot * GS_SLOT + t * 1024}")
    for n in range(5):
        off = slot * GS_SLOT + n * 32
        a(f"ds_read_b64_tr_b16 {vr(GW.WF + 4 * n, 2)}, v{GW.RW} offset:{off}")
        a(f"ds_read_b64_tr_b16 {vr(GW.WF + 4 * n + 2, 2)}, v{GW.RW} offset:{off + 640}")
    a("s_waitcnt lgkmcnt(0)")
    for n in range(5):
        for t in range(4):
            d = GW.ACC + 4 * (n * 4 + t)
            c = "0" if first else vr(d, 4)
            a(f"v_mfma_f32_16x16x32_bf16 {vr(d, 4)}, {vr(GW.WF + 4 * n, 4)}, {vr(GW.AF + 4 * t, 4)}, {c}")


def gw_write_partials(a, sRed):
    a(f"v_add_u32 v2, s{sRed}, v{GW.VA}")
    for n in range(5):
        for t in range(4):
            d = GW.ACC + 4 * (n * 4 + t)
            a(f"ds_write_b128 v2, {vr(d, 4)} offset:{(n * 4 + t) * 1024}")


def gw_read_sum(a, sW4, redbase):
    a(f"s_lshl_b32 s60, s{sW4}, 10")
    a(f"s_add_u32 s60, s60, {redbase}")
    a(f"v_add_u32 v2, s60, v{GW.VA}")
    a(f"v_add_u32 v3, {2 * 20480}, v2")
    R = 24
    for src in range(4):
        for j in range(5):
            a(f"ds_read_b128 {vr(R + 20 * src + 4 * j, 4)}, v{2 + (src >> 1)} offset:{(src & 1) * 20480 + j * 4096}")
    a("s_waitcnt lgkmcnt(10)")
    for e in range(20):
        a(f"v_add_f32 v{R + e}, v{R + e}, v{R + 20 + e}")
    a("s_waitcnt lgkmcnt(0)")
    for e in range(20):
        a(f"v_add_f32 v{R + 40 + e}, v{R + 40 + e}, v{R + 60 + e}")
    for e in range(20):
        a(f"v_add_f32 v{R + e}, v{R + e}, v{R + 40 + e}")


def tile_map(a, sRt, sCt):
    if XP_QX:
        a("s_and_b32 s60, s2, 7")
        a("s_lshr_b32 s61, s2, 3")
        a("s_lshl_b32 s62, s60, 2")
        a("s_lshr_b32 s63, s61, 3")
        a(f"s_add_u32 s{sRt}, s62, s63")
        a(f"s_and_b32 s{sCt}, s61, 7")
        return
    if XP_FUSE:
        a("s_lshr_b32 s60, s2, 5")
        a("s_lshl_b32 s60, s60, 2")
        a("s_bfe_u32 s61, s2, 0x20001")
        a(f"s_add_u32 s{sRt}, s60, s61")
        a("s_and_b32 s60, s2, 1")
        a("s_lshl_b32 s60, s60, 2")
        a("s_bfe_u32 s61, s2, 0x20003")
        a(f"s_add_u32 s{sCt}, s60, s61")
        return
    a("s_and_b32 s60, s2, 7")
    a("s_lshr_b32 s61, s2, 3")
    a("s_lshr_b32 s62, s60, 1")
    a("s_lshl_b32 s62, s62, 3")
    a("s_lshr_b32 s63, s61, 2")
    a(f"s_add_u32 s{sRt}, s62, s63")
    a("s_and_b32 s62, s60, 1")
    a("s_lshl_b32 s62, s62, 2")
    a("s_and_b32 s63, s61, 3")
    a(f"s_add_u32 s{sCt}, s62, s63")


K2_BUF = 23552 if XP_FUSE else 24576
K2_FFN = 3 * K2_BUF
K2_B = K2_FFN + 4 * 20480
K2_FLAG = K2_B + (10240 if XP_FUSE else 0)
K2_LDS = K2_FLAG + 64
K2_W4 = K2_FFN - 20480
K2_XCH = 0
K2_OST = 24576


def gate_compute(a, XV, GV, srow, srdG):
    a("v_mov_b32 v2, 0")
    for j in range(5):
        xv = XV + j
        gv = GV + j
        a(f"v_lshlrev_b32 v3, 16, v{xv}")
        a(f"v_and_b32 v19, 0xffff0000, v{xv}")
        a(f"v_lshlrev_b32 v127, 16, v{gv}")
        a(f"v_and_b32 v128, 0xffff0000, v{gv}")
        a("v_mul_f32 v3, v3, v127")
        a("v_mul_f32 v19, v19, v128")
        a("v_cvt_pk_bf16_f32 v3, v3, v19")
        a("v_lshlrev_b32 v19, 16, v3")
        a("v_and_b32 v3, 0xffff0000, v3")
        a("v_add_f32 v2, v2, v19")
        a("v_add_f32 v2, v2, v3")
    for sh in (1, 2, 4, 8):
        a("s_nop 1")
        a(f"v_add_f32_dpp v2, v2, v2 row_shr:{sh} row_mask:0xf bank_mask:0xf")
    a("s_nop 1")
    a("v_add_f32_dpp v2, v2, v2 row_bcast:15 row_mask:0xa bank_mask:0xf")
    a("s_nop 1")
    a("v_add_f32_dpp v2, v2, v2 row_bcast:31 row_mask:0xc bank_mask:0xf")
    a("s_nop 1")
    a("v_cvt_pk_bf16_f32 v2, v2, v2")
    a("v_lshlrev_b32 v2, 16, v2")
    a(f"v_mul_f32 v2, {f32bits(-LOG2E)}, v2")
    a("v_exp_f32 v2, v2")
    a("s_nop 0")
    a("v_add_f32 v2, 1.0, v2")
    a("v_rcp_f32 v2, v2")
    a("s_nop 0")
    a("v_cvt_pk_bf16_f32 v2, v2, v2")
    a("v_lshlrev_b32 v2, 16, v2")
    a(f"s_lshl_b32 s49, s{srow}, 2")
    a("v_mov_b32 v3, 0")
    a("v_cmp_eq_u32 vcc, 63, v1")
    a("s_and_saveexec_b64 s[50:51], vcc")
    a(f"buffer_store_dword v2, v3, {sr(srdG, 4)}, s49 offen")
    a("s_mov_b64 exec, s[50:51]")


def gate_compute2(a, XA, XB, GV, srow, srdG):
    GU = 24
    a("v_mov_b32 v2, 0")
    a("v_mov_b32 v3, 0")
    a("v_mov_b32 v19, 0x3f803f80")
    for j in range(5):
        a(f"v_lshlrev_b32 v{GU + 2 * j}, 16, v{GV + j}")
        a(f"v_and_b32 v{GU + 2 * j + 1}, 0xffff0000, v{GV + j}")
    for X, acc in ((XA, 2), (XB, 3)):
        for j in range(5):
            a(f"v_lshlrev_b32 v36, 16, v{X + j}")
            a(f"v_and_b32 v37, 0xffff0000, v{X + j}")
            a(f"v_pk_mul_f32 v[36:37], v[36:37], v[{GU + 2 * j}:{GU + 2 * j + 1}]")
            a("v_cvt_pk_bf16_f32 v36, v36, v37")
            a(f"v_dot2_f32_bf16 v{acc}, v36, v19, v{acc}")
    for sh in (1, 2, 4, 8):
        a("s_nop 2" if sh == 1 else "s_nop 0")
        a(f"v_add_f32_dpp v2, v2, v2 row_shr:{sh} row_mask:0xf bank_mask:0xf")
        a(f"v_add_f32_dpp v3, v3, v3 row_shr:{sh} row_mask:0xf bank_mask:0xf")
    a("s_nop 0")
    a("v_add_f32_dpp v2, v2, v2 row_bcast:15 row_mask:0xa bank_mask:0xf")
    a("v_add_f32_dpp v3, v3, v3 row_bcast:15 row_mask:0xa bank_mask:0xf")
    a("s_nop 0")
    a("v_add_f32_dpp v2, v2, v2 row_bcast:31 row_mask:0xc bank_mask:0xf")
    a("v_add_f32_dpp v3, v3, v3 row_bcast:31 row_mask:0xc bank_mask:0xf")
    a("s_nop 1")
    a("v_cvt_pk_bf16_f32 v2, v2, v3")
    a("v_and_b32 v3, 0xffff0000, v2")
    a("v_lshlrev_b32 v2, 16, v2")
    a(f"v_mul_f32 v2, {f32bits(-LOG2E)}, v2")
    a(f"v_mul_f32 v3, {f32bits(-LOG2E)}, v3")
    a("v_exp_f32 v2, v2")
    a("v_exp_f32 v3, v3")
    a("s_nop 0")
    a("v_add_f32 v2, 1.0, v2")
    a("v_add_f32 v3, 1.0, v3")
    a("v_rcp_f32 v2, v2")
    a("v_rcp_f32 v3, v3")
    a("s_nop 0")
    a("v_cvt_pk_bf16_f32 v2, v2, v3")
    a("v_and_b32 v3, 0xffff0000, v2")
    a("v_lshlrev_b32 v2, 16, v2")
    a(f"s_lshl_b32 s49, s{srow}, 2")
    a("v_mov_b32 v19, 0")
    a("v_cmp_eq_u32 vcc, 63, v1")
    a("s_and_saveexec_b64 s[50:51], vcc")
    a(f"buffer_store_dwordx2 v[2:3], v19, {sr(srdG, 4)}, s49 offen" + (" sc1" if XP_FUSE else ""))
    a("s_mov_b64 exec, s[50:51]")


def k2_tail(a):
    prof(a, 16)
    a("s_lshr_b32 s40, s2, 5")
    a("s_lshl_b32 s40, s40, 13")
    srd_off(a, 24, 8, 9, WS_CNT, 65536)
    srd(a, 16, 4, 5, SZ_OUT)
    srd_off(a, 12, 8, 9, WS_WO, SZ_WO)
    a("v_mov_b32 v4, 0")
    a("s_cmp_lg_u32 s38, 0")
    a("s_cbranch_scc1 K2_T1")
    a("v_mov_b32 v2, 1")
    a("v_lshlrev_b32 v3, 8, v1")
    a("s_mov_b32 exec_hi, 0")
    a("buffer_atomic_add v2, v3, s[24:27], s40 offen")
    a("s_mov_b32 exec_hi, -1")
    a.label("K2_T1")
    a("s_lshl_b32 s40, s2, 8")
    tile_map(a, 36, 37)
    a("v_lshrrev_b32 v22, 4, v1")
    a("v_and_b32 v23, 15, v1")
    a("s_lshl_b32 s39, s36, 6")
    a("s_and_b32 s49, s38, 3")
    a("s_lshr_b32 s50, s38, 2")
    a("s_add_u32 s43, s38, 8")
    a("s_add_u32 s44, s38, 16")
    a("s_cmp_lt_u32 s38, 4")
    a("s_cselect_b32 s44, s44, s43")
    a("s_mul_i32 s55, s37, 102400")
    a(f"s_add_u32 s55, s55, {4 * 20480}")
    for sp in (38, 43, 44):
        a(f"s_lshl_b32 s52, s{sp}, 10")
        a(f"s_add_u32 m0, s52, {K2_W4}")
        a("s_add_u32 s52, s52, s55")
        a("buffer_load_dwordx4 v16, s[12:15], s52 offen lds")
    a("s_mul_i32 s41, s37, 160")
    a("s_lshl_b32 s42, s36, 2")
    a("s_add_u32 s42, s42, s49")
    a("s_mul_i32 s42, s42, 20480")
    a("s_lshl_b32 s43, s50, 11")
    a("s_add_u32 s42, s42, s43")
    a("s_lshl_b32 s43, s49, 4")
    a("v_add_u32 v2, s43, v23")
    a("v_add_u32 v3, s39, v2")
    a("v_lshlrev_b32 v5, 2, v3")
    a("v_mul_u32_u24 v2, 160, v2")
    a("v_lshl_add_u32 v2, v22, 3, v2")
    a("s_mul_i32 s43, s50, 96")
    a(f"s_add_u32 s43, s43, {K2_OST}")
    a("v_add_u32 v17, s43, v2")
    a("s_mul_i32 s43, s49, 2560")
    a("s_mul_i32 s44, s50, 1536")
    a("s_add_u32 s43, s43, s44")
    a(f"s_add_u32 s43, s43, {K2_B}")
    a("v_lshlrev_b32 v2, 3, v1")
    a("v_add_u32 v6, s43, v2")
    for j in range(2):
        a("s_mul_i32 s43, s38, 80")
        a(f"s_add_u32 s43, s43, {64 * j}")
        a("v_add_u32 v2, s43, v1")
        a("v_mul_u32_u24 v3, 6554, v2")
        a("v_lshrrev_b32 v3, 16, v3")
        a("v_mul_u32_u24 v15, 10, v3")
        a("v_sub_u32 v15, v2, v15")
        a("v_lshlrev_b32 v15, 4, v15")
        a("v_add_u32 v3, s39, v3")
        a("v_mul_u32_u24 v3, 1280, v3")
        a(f"v_add3_u32 v{12 + j}, v3, v15, s41")
        a("v_lshlrev_b32 v2, 4, v2")
        a(f"v_add_u32 v{8 + j}, {K2_OST}, v2")
    RW = 28
    a("s_mul_i32 s43, s50, 10240")
    a(f"s_add_u32 s43, s43, {K2_W4}")
    wread_addr(a, RW, RW + 1, 43)
    a(f"v_add_u32 v{RW + 2}, {3 * 20480}, v{RW}")
    a(f"v_add_u32 v{RW + 3}, {3 * 20480}, v{RW + 1}")
    a("s_mul_i32 s43, s49, 5120")
    a(f"s_add_u32 s43, s43, {K2_XCH}")
    a("v_add_u32 v21, s43, v16")
    AF = 32
    WF = (72, 92)
    ACC = 112
    BV = 132

    def reads(t):
        st, i = t >> 1, t & 1
        pos = (st + 1) % 5
        hi = 1 if pos >= 3 else 0
        so = (pos - 3 * hi) * 20480
        r = []
        for n in range(5):
            off = so + i * 5120 + n * 32
            r.append(f"ds_read_b64_tr_b16 {vr(WF[i] + 4 * n, 2)}, v{RW + 2 * hi} offset:{off}")
            r.append(f"ds_read_b64_tr_b16 {vr(WF[i] + 4 * n + 2, 2)}, v{RW + 2 * hi + 1} offset:{off}")
        return r

    def mf(t):
        for n in range(5):
            d = ACC + 4 * n
            c = "0" if t == 0 else vr(d, 4)
            a(f"v_mfma_f32_16x16x32_bf16 {vr(d, 4)}, {vr(WF[t & 1] + 4 * n, 4)}, {vr(AF + 4 * t, 4)}, {c}")

    for r in reads(0) + reads(1):
        a(r)
    for n in range(3):
        a(f"ds_read_b64 {vr(BV + 2 * n, 2)}, v6 offset:{512 * n}")
    a("s_cmp_lg_u32 s38, 0")
    a("s_cbranch_scc1 K2_T3")
    a("s_mov_b32 s43, 0")
    a.label("K2_T2")
    a("buffer_load_dword v2, v4, s[24:27], s40 offen sc1")
    a("s_add_u32 s43, s43, 1")
    a("s_waitcnt vmcnt(0)")
    a("v_readfirstlane_b32 s44, v2")
    a("s_cmp_ge_u32 s44, 32")
    a("s_cbranch_scc1 K2_T3")
    a("s_sleep 2")
    a("s_cmp_lt_u32 s43, 0x100000")
    a("s_cbranch_scc1 K2_T2")
    a.label("K2_T3")
    a("s_waitcnt vmcnt(0)")
    a("s_barrier")
    prof(a, 17)
    for t in range(10):
        st, i = t >> 1, t & 1
        if i == 0 and st:
            a("s_add_u32 s42, s42, 4096")
        a(f"buffer_load_dwordx4 {vr(AF + 4 * t, 4)}, v16, s[20:23], s42 offen offset:{1024 * i} sc1")
    a("buffer_load_dword v18, v5, s[32:35], 0 offen sc1")
    for t in range(10):
        a(f"s_waitcnt vmcnt({10 - t}) lgkmcnt({10 if 1 <= t < 9 else 0})")
        mf(t)
        if t + 2 < 10:
            for r in reads(t + 2):
                a(r)
    prof(a, 18)
    a("s_waitcnt vmcnt(0)")
    a("v_sub_f32 v19, 1.0, v18")
    a("v_cvt_pk_bf16_f32 v19, v19, v19")
    a("v_lshlrev_b32 v19, 16, v19")
    a("s_nop 7")
    XR = 72
    a("s_cmp_eq_u32 s50, 0")
    a("s_cbranch_scc0 K2_X1")
    for n in (3, 4):
        a(f"ds_write_b128 v21, {vr(ACC + 4 * n, 4)} offset:{1024 * n}")
    a("s_waitcnt lgkmcnt(0)")
    a("s_barrier")
    for n in range(3):
        a(f"ds_read_b128 {vr(XR + 4 * n, 4)}, v21 offset:{1024 * n}")
    a("s_branch K2_FIN")
    a.label("K2_X1")
    for n in range(3):
        a(f"ds_write_b128 v21, {vr(ACC + 4 * n, 4)} offset:{1024 * n}")
    a("s_waitcnt lgkmcnt(0)")
    a("s_barrier")
    for n in (3, 4):
        a(f"ds_read_b128 {vr(XR + 4 * (n - 3), 4)}, v21 offset:{1024 * n}")
    for i in range(8):
        a(f"v_mov_b32 v{ACC + i}, v{ACC + 12 + i}")
    a.label("K2_FIN")
    a("s_waitcnt lgkmcnt(0)")
    for n in range(3):
        if n == 2:
            a("s_cmp_eq_u32 s50, 0")
            a("s_cbranch_scc0 K2_CP")
        for i in range(4):
            a(f"v_add_f32 v{ACC + 4 * n + i}, v{ACC + 4 * n + i}, v{XR + 4 * n + i}")
        for h in range(2):
            e = ACC + 4 * n + 2 * h
            bp = BV + 2 * n + h
            a(f"v_cvt_pk_bf16_f32 v24, v{e}, v{e + 1}")
            a("v_lshlrev_b32 v4, 16, v24")
            a("v_and_b32 v5, 0xffff0000, v24")
            a(f"v_lshlrev_b32 v6, 16, v{bp}")
            a(f"v_and_b32 v7, 0xffff0000, v{bp}")
            a("v_mul_f32 v4, v18, v4")
            a("v_mul_f32 v5, v18, v5")
            a("v_mul_f32 v6, v19, v6")
            a("v_mul_f32 v7, v19, v7")
            a("v_cvt_pk_bf16_f32 v24, v4, v5")
            a("v_cvt_pk_bf16_f32 v20, v6, v7")
            a("v_lshlrev_b32 v4, 16, v24")
            a("v_and_b32 v5, 0xffff0000, v24")
            a("v_lshlrev_b32 v6, 16, v20")
            a("v_and_b32 v7, 0xffff0000, v20")
            a("v_add_f32 v4, v4, v6")
            a("v_add_f32 v5, v5, v7")
            a(f"v_cvt_pk_bf16_f32 v{bp}, v4, v5")
        a(f"ds_write_b64 v17, {vr(BV + 2 * n, 2)} offset:{32 * n}")
    a.label("K2_CP")
    a("s_waitcnt lgkmcnt(0)")
    a("s_barrier")
    a("ds_read_b128 v[32:35], v8")
    a("ds_read_b128 v[36:39], v9")
    a("s_waitcnt lgkmcnt(1)")
    a("buffer_store_dwordx4 v[32:35], v12, s[16:19], 0 offen")
    a("v_cmp_gt_u32 vcc, 16, v1")
    a("s_and_saveexec_b64 s[50:51], vcc")
    a("s_waitcnt lgkmcnt(0)")
    a("buffer_store_dwordx4 v[36:39], v13, s[16:19], 0 offen")
    a("s_mov_b64 exec, s[50:51]")


T_OST, T_G, T_B, T_RW, T_XCH, T_OUT = 140, 141, 142, 143, 147, 148
T_GV, T_GM = 150, 151
T_FS, T_FL = 152, 153


def k2_tail_setup(a):
    a("s_lshr_b32 s66, s2, 5")
    a("s_lshl_b32 s66, s66, 2")
    a("s_bfe_u32 s67, s2, 0x20001")
    a("s_add_u32 s66, s66, s67")
    a("s_and_b32 s67, s2, 1")
    a("s_lshl_b32 s67, s67, 2")
    a("s_bfe_u32 s68, s2, 0x20003")
    a("s_add_u32 s67, s67, s68")
    a("s_and_b32 s58, s38, 3")
    a("s_lshr_b32 s57, s38, 2")
    a("s_mov_b32 s59, 0")
    a("s_add_u32 s61, s38, 8")
    a("s_add_u32 s62, s38, 16")
    a("s_cmp_lt_u32 s38, 4")
    a("s_cselect_b32 s62, s62, s61")
    a("s_mov_b32 s60, s38")
    a("s_mul_i32 s68, s67, 102400")
    a(f"s_add_u32 s68, s68, {4 * 20480}")
    for i in range(3):
        a(f"s_lshl_b32 s{60 + i}, s{60 + i}, 10")
        a(f"s_add_u32 s{63 + i}, s{60 + i}, {K2_W4}")
        a(f"s_add_u32 s{60 + i}, s{60 + i}, s68")
    a("s_lshl_b32 s56, s66, 2")
    a("s_add_u32 s56, s56, s58")
    a("s_mul_i32 s56, s56, 20480")
    a("s_lshl_b32 s68, s57, 11")
    a("s_add_u32 s70, s56, s68")
    for i in range(1, 5):
        a(f"s_add_u32 s{70 + i}, s70, {4096 * i}")
    a("v_lshrrev_b32 v118, 4, v1")
    a("v_and_b32 v119, 15, v1")
    a("s_lshl_b32 s68, s66, 6")
    a("s_lshl_b32 s69, s58, 4")
    a("s_add_u32 s68, s68, s69")
    a("v_add_u32 v3, s68, v119")
    a(f"v_lshlrev_b32 v{T_G}, 2, v3")
    a("v_mul_u32_u24 v3, 1280, v3")
    a("s_mul_i32 s68, s67, 160")
    a("s_mul_i32 s69, s57, 96")
    a("s_add_u32 s68, s68, s69")
    a("v_add_u32 v3, s68, v3")
    a(f"v_lshl_add_u32 v{T_OUT + 1}, v118, 3, v3")
    a("v_and_b32 v2, 1, v118")
    a("v_lshl_add_u32 v3, v2, 5, v3")
    a("v_lshrrev_b32 v2, 1, v118")
    a(f"v_lshl_add_u32 v{T_OUT}, v2, 4, v3")
    a("s_mul_i32 s68, s58, 2560")
    a("s_mul_i32 s69, s57, 1536")
    a("s_add_u32 s68, s68, s69")
    a(f"s_add_u32 s68, s68, {K2_B}")
    a("v_lshlrev_b32 v2, 3, v1")
    a(f"v_add_u32 v{T_B}, s68, v2")
    a("s_mul_i32 s68, s57, 10240")
    a(f"s_add_u32 s68, s68, {K2_W4}")
    wread_addr(a, T_RW, T_RW + 1, 68, 118, 119)
    a(f"v_add_u32 v{T_RW + 2}, {3 * 20480}, v{T_RW}")
    a(f"v_add_u32 v{T_RW + 3}, {3 * 20480}, v{T_RW + 1}")
    a("s_mul_i32 s68, s58, 5120")
    a(f"s_add_u32 s68, s68, {K2_XCH}")
    a(f"v_add_u32 v{T_XCH}, s68, v16")
    a("s_lshl_b32 s68, s37, 3")
    a("s_add_u32 s68, s68, s38")
    a("s_lshl_b32 s68, s68, 10")
    a("s_lshl_b32 s69, s36, 2")
    a("s_add_u32 s68, s68, s69")
    a(f"s_add_u32 s68, s68, {WS_F - WS_G}")
    a("v_lshlrev_b32 v2, 7, v1")
    a(f"v_add_u32 v{T_FS}, s68, v2")
    a("s_lshl_b32 s68, s66, 1")
    a("s_lshr_b32 s69, s58, 1")
    a("s_add_u32 s68, s68, s69")
    a("s_lshl_b32 s68, s68, 3")
    a("s_add_u32 s68, s68, s67")
    a("s_lshl_b32 s68, s68, 7")
    a(f"s_add_u32 s68, s68, {WS_F - WS_G}")
    a(f"v_lshl_add_u32 v{T_FL}, v17, 2, s68")
    a("s_lshl_b32 s68, s37, 8")
    a("s_lshl_b32 s69, s38, 5")
    a("s_add_u32 s68, s68, s69")
    a("v_add_u32 v2, s68, v17")
    a("v_lshrrev_b32 v3, 4, v2")
    a("v_mul_u32_u24 v3, 20480, v3")
    a("v_and_b32 v2, 15, v2")
    a("v_lshl_add_u32 v2, v2, 4, v3")
    a("s_mul_i32 s68, s36, 20")
    a("v_lshl_add_u32 v3, v18, 2, s68")
    a("v_lshrrev_b32 v19, 3, v3")
    a("v_lshl_add_u32 v2, v19, 8, v2")
    a("v_and_b32 v3, 4, v3")
    a(f"v_lshl_add_u32 v{T_OST}, v3, 1, v2")


T_AF = 68
T_WF = (28, 48)
T_ACC = 108
T_T2 = 128


def k2_tail_loads(a):
    a(f"buffer_load_dword v{T_GV}, v{T_G}, s[32:35], 0 offen sc1")
    for t in range(10):
        a(t2_load(t))


def t2_load(t):
    st, i = t >> 1, t & 1
    return f"buffer_load_dwordx4 {vr(T_AF + 4 * t, 4)}, v16, s[20:23], s{70 + st} offen offset:{1024 * i} sc1"


def k2_tail2(a):
    AF, WF, ACC, T2 = T_AF, T_WF, T_ACC, T_T2
    BV = 152 + 6
    prof(a, 16)

    def reads(t):
        st, i = t >> 1, t & 1
        pos = (st + 1) % 5
        hi = 1 if pos >= 3 else 0
        so = (pos - 3 * hi) * 20480
        r = []
        for n in range(5):
            off = so + i * 5120 + n * 32
            r.append(f"ds_read_b64_tr_b16 {vr(WF[i] + 4 * n, 2)}, v{T_RW + 2 * hi} offset:{off}")
            r.append(f"ds_read_b64_tr_b16 {vr(WF[i] + 4 * n + 2, 2)}, v{T_RW + 2 * hi + 1} offset:{off}")
        return r

    def mf(t):
        for n in range(5):
            d = ACC + 4 * n
            a(f"v_mfma_f32_16x16x32_bf16 {vr(d, 4)}, {vr(WF[t & 1] + 4 * n, 4)}, {vr(AF + 4 * t, 4)}, {vr(d, 4)}")

    def check(t):
        r = AF + 4 * t
        a(f"v_max3_u32 v2, v{r}, v{r + 1}, v{r + 2}")
        a(f"v_max_u32 v2, v2, v{r + 3}")
        a("v_cmp_eq_u32 vcc, -1, v2")
        a("s_nop 4")

    for n in range(3):
        a(f"ds_read_b64 {vr(BV + 2 * n, 2)}, v{T_B} offset:{512 * n}")
    for r in reads(0) + reads(1):
        a(r)
    for i in range(20):
        a(f"v_mov_b32 v{ACC + i}, 0")
    a("s_mov_b32 s40, 0")
    a("s_mov_b32 s41, 0")
    a("s_waitcnt vmcnt(0)")
    a.label("K2_GCHK")
    a(f"v_cmp_eq_u32 vcc, -1, v{T_GV}")
    a("s_nop 4")
    a("s_cbranch_vccz K2_GOK")
    a(f"buffer_load_dword v{T_GV}, v{T_G}, s[32:35], 0 offen sc1")
    a("s_add_u32 s41, s41, 1")
    a("s_cmp_lt_u32 s41, 0x100000")
    a("s_waitcnt vmcnt(0)")
    a("s_cbranch_scc1 K2_GCHK")
    a.label("K2_GOK")
    a(f"v_sub_f32 v{T_GM}, 1.0, v{T_GV}")
    a(f"v_cvt_pk_bf16_f32 v{T_GM}, v{T_GM}, v{T_GM}")
    a(f"v_lshlrev_b32 v{T_GM}, 16, v{T_GM}")
    a("s_waitcnt lgkmcnt(15)")
    for p in range(6):
        a(f"v_lshlrev_b32 v4, 16, v{BV + p}")
        a(f"v_and_b32 v5, 0xffff0000, v{BV + p}")
        a(f"v_mul_f32 v4, v{T_GM}, v4")
        a(f"v_mul_f32 v5, v{T_GM}, v5")
        a("v_cvt_pk_bf16_f32 v4, v4, v5")
        a(f"v_lshlrev_b32 v{T2 + 2 * p}, 16, v4")
        a(f"v_and_b32 v{T2 + 2 * p + 1}, 0xffff0000, v4")
    a.label("K2_POLL")
    a(f"buffer_load_dword v2, v{T_FL}, s[32:35], 0 offen sc1")
    a("s_add_u32 s41, s41, 1")
    a("s_waitcnt vmcnt(0)")
    a("v_cmp_eq_u32 vcc, -1, v2")
    a("s_nop 4")
    a("s_cbranch_vccz K2_PDONE")
    if XP_SLP:
        a(f"s_sleep {XP_SLP}")
    a("s_cmp_lt_u32 s41, 0x100000")
    a("s_cbranch_scc1 K2_POLL")
    a.label("K2_PDONE")
    for t in range(10):
        a(t2_load(t))
    prof(a, 17)
    for t in range(10 if XP_SEN == 2 else 0):
        a(f"s_waitcnt vmcnt({9 - t}) lgkmcnt({10 if t < 9 else 0})")
        mf(t)
        if t + 2 < 10:
            for r in reads(t + 2):
                a(r)
    for t in range(10 if XP_SEN == 1 else 0):
        a(f"s_waitcnt vmcnt({9 - t})")
        check(t)
        a(f"s_cbranch_vccz K2_OK{t}")
        a(f"s_bitset1_b32 s40, {t}")
        a(f"s_branch K2_NX{t}")
        a.label(f"K2_OK{t}")
        a(f"s_waitcnt lgkmcnt({10 if t < 9 else 0})")
        mf(t)
        a.label(f"K2_NX{t}")
        if t + 2 < 10:
            for r in reads(t + 2):
                a(r)
    if XP_SEN == 2:
        a("s_branch K2_ALL")
    a.label("K2_RETRY")
    a("s_cmp_eq_u32 s40, 0")
    a("s_cbranch_scc1 K2_ALL")
    for t in range(10):
        a(f"s_bitcmp1_b32 s40, {t}")
        a(f"s_cbranch_scc0 K2_RL{t}")
        a(t2_load(t))
        a.label(f"K2_RL{t}")
    a("s_add_u32 s41, s41, 1")
    a("s_cmp_ge_u32 s41, 0x100000")
    a("s_cbranch_scc1 K2_ALL")
    a("s_waitcnt vmcnt(0)")
    for t in range(10):
        a(f"s_bitcmp1_b32 s40, {t}")
        a(f"s_cbranch_scc0 K2_RN{t}")
        check(t)
        a(f"s_cbranch_vccnz K2_RN{t}")
        for r in reads(t):
            a(r)
        a(f"s_bitset0_b32 s40, {t}")
        a("s_waitcnt lgkmcnt(0)")
        mf(t)
        a.label(f"K2_RN{t}")
    a("s_branch K2_RETRY")
    a.label("K2_ALL")
    prof(a, 18)
    a("s_nop 7")
    XR = 28
    a("s_cmp_eq_u32 s57, 0")
    a("s_cbranch_scc0 K2_X1")
    for n in (3, 4):
        a(f"ds_write_b128 v{T_XCH}, {vr(ACC + 4 * n, 4)} offset:{1024 * n}")
    a("s_waitcnt lgkmcnt(0)")
    a("s_barrier")
    for n in range(3):
        a(f"ds_read_b128 {vr(XR + 4 * n, 4)}, v{T_XCH} offset:{1024 * n}")
    a("s_branch K2_FIN")
    a.label("K2_X1")
    for n in range(3):
        a(f"ds_write_b128 v{T_XCH}, {vr(ACC + 4 * n, 4)} offset:{1024 * n}")
    a("s_waitcnt lgkmcnt(0)")
    a("s_barrier")
    for n in (3, 4):
        a(f"ds_read_b128 {vr(XR + 4 * (n - 3), 4)}, v{T_XCH} offset:{1024 * n}")
    for i in range(8):
        a(f"v_mov_b32 v{ACC + i}, v{ACC + 12 + i}")
    a.label("K2_FIN")
    R = 160
    for n in range(3):
        if n == 2:
            a("s_nop 1")
            a(f"v_permlane16_swap_b32 v{R}, v{R + 2}")
            a(f"v_permlane16_swap_b32 v{R + 1}, v{R + 3}")
            a("s_nop 1")
            a(f"buffer_store_dwordx4 {vr(R, 4)}, v{T_OUT}, s[28:31], 0 offen")
            a("s_cmp_eq_u32 s57, 0")
            a("s_cbranch_scc0 K2_PEND")
        a(f"s_waitcnt lgkmcnt({(1, 0, 0)[n]})" if n else "s_waitcnt lgkmcnt(1)")
        for h in range(2):
            e = ACC + 4 * n + 2 * h
            x = XR + 4 * n + 2 * h
            p = 2 * n + h
            a(f"v_pk_add_f32 {vr(e, 2)}, {vr(e, 2)}, {vr(x, 2)}")
            a(f"v_cvt_pk_bf16_f32 v6, v{e}, v{e + 1}")
            a("v_lshlrev_b32 v4, 16, v6")
            a("v_and_b32 v5, 0xffff0000, v6")
            a(f"v_mul_f32 v4, v{T_GV}, v4")
            a(f"v_mul_f32 v5, v{T_GV}, v5")
            a("v_cvt_pk_bf16_f32 v6, v4, v5")
            a("v_lshlrev_b32 v4, 16, v6")
            a("v_and_b32 v5, 0xffff0000, v6")
            a(f"v_pk_add_f32 v[4:5], v[4:5], {vr(T2 + 2 * p, 2)}")
            a(f"v_cvt_pk_bf16_f32 v{R + p}, v4, v5")
    a(f"buffer_store_dwordx2 {vr(R + 4, 2)}, v{T_OUT + 1}, s[28:31], 0 offen offset:64")


def k2():
    a = Asm()
    a.label("k2_kernel")
    if PROF:
        a("s_memtime s[86:87]")
    a("s_cmp_ge_u32 s2, 256")
    a("s_cbranch_scc1 K2_END")
    a("s_and_b32 s3, s2, 7")
    a("s_lshl_b32 s3, s3, 2")
    a("s_lshr_b32 s4, s2, 3")
    a("s_and_b32 s4, s4, 3")
    a("s_add_u32 s36, s3, s4")
    a("s_lshr_b32 s37, s2, 5")
    if XP_QX:
        a("s_lshr_b32 s36, s2, 3")
        a("s_and_b32 s37, s2, 7")
    a("s_load_dwordx2 s[4:5], s[0:1], 0")
    a("s_load_dwordx2 s[6:7], s[0:1], 48")
    a("s_load_dwordx2 s[8:9], s[0:1], 72")
    if XP_SEN:
        a("s_load_dwordx2 s[10:11], s[0:1], 56")
    a("v_and_b32 v1, 63, v0")
    a("v_lshrrev_b32 v2, 6, v0")
    a("s_nop 0")
    a("v_readfirstlane_b32 s38, v2")
    a("s_waitcnt lgkmcnt(0)")
    a("s_cmp_ge_u32 s38, 8")
    a("s_cbranch_scc1 K2_FFN")
    a("s_setprio 1")
    srd_off(a, 12, 8, 9, WS_KV, SZ_KV)
    srd_off(a, 16, 8, 9, WS_Q, SZ_Q)
    srd_off(a, 20, 8, 9, WS_O, SZ_O)
    if XP_SEN:
        srd_off(a, 24, 8, 9, WS_WO, SZ_WO)
        srd(a, 28, 10, 11, SZ_OUT)
    else:
        srd(a, 24, 4, 5, SZ_X)
        srd(a, 28, 6, 7, 1280)
    srd_off(a, 32, 8, 9, WS_G, WS_F + SZ_F - WS_G if XP_SEN else SZ_G)
    prof_init(a, 8, 9, 38, 1)
    prof(a, 0)
    a("v_lshlrev_b32 v16, 4, v1")
    a("s_mul_i32 s46, s38, 3072")
    a("s_cmp_lt_u32 s38, 7")
    a("s_cselect_b64 s[54:55], -1, 0")
    a(f"s_mul_i32 s45, s36, {HEAD_KV}")
    a("s_add_u32 s45, s45, s46")
    a("s_mov_b32 s44, s45")
    a("s_mov_b32 s41, 0")
    a(f"s_mov_b32 s42, {K2_BUF}")
    a(f"s_mov_b32 s43, {2 * K2_BUF}")
    a("s_mov_b32 s40, 0")
    a("v_and_b32 v17, 31, v1")
    a("v_lshrrev_b32 v18, 5, v1")
    a("s_lshl_b32 s47, s37, 8")
    a("s_lshl_b32 s48, s38, 5")
    a("s_add_u32 s47, s47, s48")
    a("v_add_u32 v2, s47, v17")
    a("v_mul_u32_u24 v2, 48, v2")
    a("s_mul_i32 s48, s36, 98304")
    a("v_add_u32 v2, s48, v2")
    a("v_lshl_add_u32 v3, v18, 4, v2")
    a("buffer_load_dwordx4 v[20:23], v3, s[16:19], 0 offen")
    a("buffer_load_dwordx2 v[24:25], v2, s[16:19], 0 offen offset:32")
    for sg in (41, 42):
        a(f"s_add_u32 m0, s{sg}, s46")
        a("s_nop 0")
        for j in range(3):
            if j == 2 and XP_FUSE:
                a("s_mov_b64 exec, s[54:55]")
            a(f"buffer_load_dwordx4 v16, s[12:15], s44 offen offset:{1024 * j} lds")
        if XP_FUSE:
            a("s_mov_b64 exec, -1")
        a("s_add_u32 s44, s44, 23040")
    a("v_mov_b32 v2, 0")
    a(f"v_mov_b32 v3, {K2_FLAG}")
    a("ds_write_b32 v3, v2")
    if not XP_GF:
        a("s_lshl_b32 s48, s37, 8")
        a("s_lshl_b32 s49, s36, 3")
        a("s_add_u32 s48, s48, s49")
        a("s_add_u32 s48, s48, s38")
        a("s_mul_i32 s49, s48, 1280")
        a("v_mul_u32_u24 v2, 20, v1")
        a("buffer_load_dwordx4 v[116:119], v2, s[24:27], s49 offen")
        a("buffer_load_dword v120, v2, s[24:27], s49 offen offset:16")
        a("buffer_load_dwordx4 v[122:125], v2, s[28:31], 0 offen")
        a("buffer_load_dword v126, v2, s[28:31], 0 offen offset:16")
    a("v_mul_u32_u24 v2, 48, v17")
    a("v_lshl_add_u32 v12, v18, 4, v2")
    a("v_add_u32 v13, 32, v2")
    if XP_K8:
        a("v_lshl_add_u32 v13, v18, 3, v13")
    a("v_bfe_u32 v3, v17, 2, 2")
    a("v_lshlrev_b32 v2, 6, v17")
    a("v_add_u32 v2, 1536, v2")
    a("v_xor_b32 v19, v18, v3")
    a("v_lshl_add_u32 v14, v19, 4, v2")
    a("v_add_u32 v19, 2, v18")
    a("v_xor_b32 v19, v19, v3")
    a("v_lshl_add_u32 v15, v19, 4, v2")
    if XP_SEN:
        k2_tail_setup(a)
    a("s_waitcnt vmcnt(6)" if (XP_GF and XP_ES) else "s_waitcnt vmcnt(0)")
    if not XP_GF:
        gate_compute(a, 116, 122, 48, 32)
    a("v_cmp_eq_u32 vcc, 0, v18")
    a("s_nop 1")
    a("v_cndmask_b32 v24, 0, v24, vcc")
    a("v_cndmask_b32 v25, 0, v25, vcc")
    a("v_mov_b32 v26, 0")
    a("v_mov_b32 v27, 0")
    a("s_mov_b32 s39, 0")

    QF0, QF1 = 20, 24
    KF = (28, 36)
    VF = (44, 52)
    P = 60
    S = (68, 84)
    O = 100

    def dma_stage(lds_sreg):
        a(f"s_add_u32 m0, s{lds_sreg}, s46")
        a("s_nop 0")
        for j in range(3):
            if j == 2 and XP_FUSE:
                a("s_mov_b64 exec, s[54:55]")
            a(f"buffer_load_dwordx4 v16, s[12:15], s44 offen offset:{1024 * j} lds")
        if XP_FUSE:
            a("s_mov_b64 exec, -1")
        a("s_add_u32 s44, s44, 23040")

    def set_addrs(dst, sbase):
        for i in range(4):
            a(f"v_add_u32 v{dst + i}, s{sbase}, v{12 + i}")

    def kread(st, idx):
        base = 4 if idx < 8 else 8
        off = (idx % 8) * 2880
        if XP_K8:
            return [f"ds_read_b128 {vr(KF[st], 4)}, v{base} offset:{off}",
                    f"ds_read_b64 {vr(KF[st] + 4, 2)}, v{base + 1} offset:{off}"]
        return [f"ds_read_b128 {vr(KF[st], 4)}, v{base} offset:{off}",
                f"ds_read_b128 {vr(KF[st] + 4, 4)}, v{base + 1} offset:{off}"]

    def qk2(st, sd):
        if XP_K8:
            return f"v_mfma_f32_32x32x8bf16_1k {vr(sd, 16)}, {vr(KF[st] + 4, 2)}, {vr(QF1, 2)}, {vr(sd, 16)}"
        return f"v_mfma_f32_32x32x16_bf16 {vr(sd, 16)}, {vr(KF[st] + 4, 4)}, {vr(QF1, 4)}, {vr(sd, 16)}"

    def vread(st, idx):
        base = 4 if idx < 8 else 8
        off = (idx % 8) * 2880
        return [f"ds_read_b128 {vr(VF[st], 4)}, v{base + 2} offset:{off}",
                f"ds_read_b128 {vr(VF[st] + 4, 4)}, v{base + 3} offset:{off}"]

    def qk(st, sst):
        a(f"v_mfma_f32_32x32x16_bf16 {vr(S[sst], 16)}, {vr(KF[st], 4)}, {vr(QF0, 4)}, 0")
        a(qk2(st, S[sst]))

    def set_m_from(mreg):
        a(f"v_mov_b32 v3, v{mreg}")
        a("s_nop 1")
        a(f"v_permlane32_swap_b32 v{mreg}, v3")
        a("s_nop 1")
        a(f"v_max_f32 v2, v{mreg}, v3")
        a("v_and_b32 v3, 0xffff0000, v2")
        a("v_sub_f32 v2, v2, v3")
        a("v_and_b32 v19, 0xffff0000, v2")
        a("v_sub_f32 v2, v2, v19")
        a("v_xor_b32 v3, 0x80000000, v3")
        a("v_xor_b32 v19, 0x80000000, v19")
        a("v_xor_b32 v2, 0x80000000, v2")
        a("v_lshrrev_b32 v3, 16, v3")
        a("v_or_b32 v3, v3, v19")
        a("v_lshrrev_b32 v2, 16, v2")
        a("v_cmp_eq_u32 vcc, 0, v18")
        a("s_nop 1")
        if XP_K8:
            a("v_cndmask_b32 v24, v3, v24, vcc")
            a("v_cndmask_b32 v25, v2, v25, vcc")
        else:
            a("v_cndmask_b32 v26, 0, v3, vcc")
            a("v_cndmask_b32 v27, 0, v2, vcc")
        a("s_nop 1")

    def start_stream():
        a("s_mov_b32 s44, s45")
        a("s_mov_b32 s41, 0")
        a(f"s_mov_b32 s42, {K2_BUF}")
        a(f"s_mov_b32 s43, {2 * K2_BUF}")
        dma_stage(41)
        dma_stage(42)
        set_addrs(4, 41)
        set_addrs(8, 42)
        a("s_mov_b32 s40, 0")

    def stage_head(lbl):
        if XP_ES:
            a("s_cmp_eq_u32 s40, 0")
            a(f"s_cbranch_scc1 {lbl}_W0")
            a("s_waitcnt vmcnt(0)")
            a.label(lbl + "_W0")
            a("s_waitcnt vmcnt(3) lgkmcnt(0)")
        else:
            a("s_waitcnt vmcnt(0) lgkmcnt(0)")
        if XP_NOBAR:
            a("s_cmp_lg_u32 s40, 0")
            a(f"s_cbranch_scc1 {lbl}_NB")
        a("s_barrier")
        if XP_NOBAR:
            a.label(lbl + "_NB")
        a(f"s_cmp_ge_u32 s40, {1 if XP_NODMA else 6}")
        a(f"s_cbranch_scc1 {lbl}" + ("_X" if XP_SEN and lbl == "K2_NODMA" else ""))
        dma_stage(43)
        a.label(lbl)

    def stage_rotate():
        a("s_mov_b32 s47, s41")
        a("s_mov_b32 s41, s42")
        a("s_mov_b32 s42, s43")
        a("s_mov_b32 s43, s47")
        for i in range(4):
            a(f"v_mov_b32 v{4 + i}, v{8 + i}")
        set_addrs(8, 42)
        a("s_add_u32 s40, s40, 1")

    a.label("K2_MAIN")
    prof(a, 1)
    a("s_cmp_eq_u32 s39, 0")
    a("s_cbranch_scc1 K2_STARTED")
    start_stream()
    a.label("K2_STARTED")
    set_addrs(4, 41)
    set_addrs(8, 42)
    for i in range(16):
        a(f"v_mov_b32 v{O + i}, 0")
    for i in range(4):
        a(f"v_mov_b32 v{P + 4 + i}, 0")
        a(f"v_mov_b32 v{VF[1] + 4 + i}, 0")
    a.label("K2_STAGE")
    stage_head("K2_NODMA")
    a("s_cmp_lg_u32 s40, 0")
    a("s_cbranch_scc1 K2_BODY")
    for r in kread(0, 0):
        a(r)
    a("s_cmp_lg_u32 s39, 0")
    a("s_cbranch_scc1 K2_PRIME")
    a("s_waitcnt lgkmcnt(0)")
    qk(0, 0)
    a("s_nop 15")
    a("s_nop 3")
    s0 = S[0]
    a(f"v_max3_f32 v116, v{s0}, v{s0 + 1}, v{s0 + 2}")
    for i in range(3, 15, 2):
        a(f"v_max3_f32 v116, v116, v{s0 + i}, v{s0 + i + 1}")
    a(f"v_max_f32 v116, v116, v{s0 + 15}")
    set_m_from(116)
    a.label("K2_PRIME")
    for r in kread(1, 1):
        a(r)
    for r in vread(0, 0):
        a(r)
    a("s_waitcnt lgkmcnt(4)")
    qk(0, 0)
    a("s_nop 15")
    prof(a, 2)
    a.label("K2_BODY")

    def body(par):
        for t in range(8):
            c = t % 2
            n = 1 - c
            sc = S[c]
            sn = S[n]

            def ex(lo):
                for i in range(lo, lo + 4):
                    a(f"v_exp_f32 v{sc + i}, v{sc + i}")

            def cv(lo):
                for i in range(lo, lo + 4):
                    a(f"v_cvt_pk_bf16_f32 v{P + i}, v{sc + 2 * i}, v{sc + 2 * i + 1}")
            if XP_PRIO:
                a(f"s_setprio {2 if (t & 1) == par else 1}")
            if XP_PR and (t == 0 or XP_PR[t] != XP_PR[t - 1]):
                a(f"s_setprio {XP_PR[t]}")
            ex(0)
            a(f"v_mfma_f32_32x32x16_bf16 {vr(O, 16)}, {vr(VF[n] + 4, 4)}, {vr(P + 4, 4)}, {vr(O, 16)}")
            ex(4)
            a("s_waitcnt lgkmcnt(0)" if XP_K8 else "s_waitcnt lgkmcnt(2)")
            a(f"v_mfma_f32_32x32x16_bf16 {vr(sn, 16)}, {vr(KF[n], 4)}, {vr(QF0, 4)}, 0")
            cv(0)
            if XP_ES and t == 6:
                a("s_cmp_lg_u32 s40, 0")
                a(f"s_cbranch_scc1 K2_MID{par}")
                a("s_waitcnt vmcnt(3)")
                a("s_barrier")
                a.label(f"K2_MID{par}")
            if not XP_NOLDS:
                for r in kread(c, t + 2):
                    a(r)
                for r in vread(n, t + 1):
                    a(r)
            ex(8)
            a(qk2(n, sn))
            ex(12)
            if not XP_K8:
                a("s_waitcnt lgkmcnt(4)")
            a(f"v_mfma_f32_32x32x16_bf16 {vr(O, 16)}, {vr(VF[c], 4)}, {vr(P, 4)}, {vr(O, 16)}")
            cv(4)

    if XP_PRIO:
        a("s_cmp_ge_u32 s38, 4")
        a("s_cbranch_scc1 K2_BODY1")
        body(0)
        a("s_branch K2_BODYE")
        a.label("K2_BODY1")
        body(1)
        a.label("K2_BODYE")
    else:
        body(0)
    stage_rotate()
    if PROF:
        a("s_memtime s[88:89]")
        a("s_waitcnt lgkmcnt(0)")
        a("v_mov_b32 v2, s88")
        a("s_lshl_b32 s90, s40, 2")
        a("v_mov_b32 v3, s90")
        a("buffer_store_dword v2, v3, s[92:95], s91 offen offset:8")
    a("s_cmp_lt_u32 s40, 8")
    a("s_cbranch_scc1 K2_STAGE")
    a("s_nop 1")
    a(f"v_mfma_f32_32x32x16_bf16 {vr(O, 16)}, {vr(VF[1] + 4, 4)}, {vr(P + 4, 4)}, {vr(O, 16)}")
    a("s_nop 15")
    a("s_nop 3")
    a("s_cmp_lg_u32 s39, 0")
    a("s_cbranch_scc1 K2_EPI")
    a("v_mov_b32 v2, 0")
    for i in range(9):
        a(f"v_fma_f32 v2, v{O + i}, 0, v2")
    a("v_mov_b32 v3, 0")
    for i in range(9, 12):
        a(f"v_fma_f32 v3, v{O + i}, 0, v3")
    a("v_cmp_eq_u32 vcc, 0, v18")
    a("s_nop 1")
    a("v_cndmask_b32 v3, 0, v3, vcc")
    a("v_add_f32 v2, v2, v3")
    a("v_cmp_u_f32 vcc, v2, v2")
    a("s_nop 4")
    a("s_cbranch_vccz K2_VOTE")
    a("v_mov_b32 v2, 1")
    a(f"v_mov_b32 v3, {K2_FLAG}")
    a("ds_write_b32 v3, v2")
    if XP_SEN:
        a("s_branch K2_NOST")
    a.label("K2_VOTE")
    a("s_branch K2_EPI")
    a.label("K2_FALL")
    if XP_SEN:
        a("s_waitcnt vmcnt(0)")
    a("s_barrier")
    a("v_mov_b32 v26, 0")
    a("v_mov_b32 v27, 0")
    a("v_cmp_eq_u32 vcc, 0, v18")
    a("s_nop 1")
    a("v_cndmask_b32 v24, 0, v24, vcc")
    a("v_cndmask_b32 v25, 0, v25, vcc")
    a(f"v_mov_b32 v117, {f32bits(float('-inf'))}")
    start_stream()
    a.label("K2_MSTAGE")
    stage_head("K2_MNODMA")
    for t in range(8):
        for r in kread(0, t):
            a(r)
        a("s_waitcnt lgkmcnt(0)")
        qk(0, 0)
        a("s_nop 15")
        a("s_nop 3")
        for i in range(0, 16, 2):
            a(f"v_max3_f32 v117, v117, v{s0 + i}, v{s0 + i + 1}")
    stage_rotate()
    a("s_cmp_lt_u32 s40, 8")
    a("s_cbranch_scc1 K2_MSTAGE")
    set_m_from(117)
    a("s_mov_b32 s39, 1")
    a("s_waitcnt vmcnt(0) lgkmcnt(0)")
    a("s_barrier")
    a("s_branch K2_MAIN")
    a.label("K2_EPI")
    if XP_SEN:
        a("s_cmp_lg_u32 s59, 0")
        a("s_cbranch_scc1 K2_NOST")
        a("s_mov_b32 s59, 1")
    a(f"v_mov_b32 v2, v{O + 8}")
    a(f"v_mov_b32 v3, v{O + 8}")
    a("s_nop 1")
    a("v_permlane32_swap_b32 v2, v3")
    a("s_nop 1")
    a("v_rcp_f32 v3, v3")
    a("s_nop 0")
    for i in range(12):
        a(f"v_mul_f32 v{O + i}, v{O + i}, v3")
    for i in range(6):
        a(f"v_cvt_pk_bf16_f32 v{P + i}, v{O + 2 * i}, v{O + 2 * i + 1}")
    if not XP_SEN:
        a("s_lshl_b32 s47, s37, 8")
        a("s_lshl_b32 s48, s38, 5")
        a("s_add_u32 s47, s47, s48")
        a("v_add_u32 v2, s47, v17")
    if XP_SEN:
        for i in range(6 if XP_SEN == 1 else 0):
            a(f"v_min_u32 v{P + i}, -2, v{P + i}")
        a(f"buffer_store_dwordx2 {vr(P, 2)}, v{T_OST}, s[20:23], 0 offen sc1")
        a(f"buffer_store_dwordx2 {vr(P + 2, 2)}, v{T_OST}, s[20:23], 0 offen offset:256 sc1")
        a("s_mov_b32 exec_hi, 0")
        a(f"buffer_store_dwordx2 {vr(P + 4, 2)}, v{T_OST}, s[20:23], 0 offen offset:512 sc1")
        a("s_mov_b32 exec_lo, 0xff")
        if XP_SEN == 2:
            a("s_waitcnt vmcnt(0)")
        a(f"buffer_store_dword v16, v{T_FS}, s[32:35], 0 offen sc1")
        a("s_mov_b64 exec, -1")
        a.label("K2_NOST")
        a(f"buffer_load_dword v{T_GV}, v{T_G}, s[32:35], 0 offen sc1")
        a("s_waitcnt lgkmcnt(0)")
        a("s_barrier")
        a("s_cmp_lg_u32 s39, 0")
        a("s_cbranch_scc1 K2_TAIL")
    elif XP_FUSE:
        a("v_lshrrev_b32 v3, 4, v2")
        a("v_mul_u32_u24 v3, 20480, v3")
        a("v_and_b32 v2, 15, v2")
        a("v_lshl_add_u32 v2, v2, 4, v3")
        a("s_mul_i32 s48, s36, 20")
        a("v_lshl_add_u32 v3, v18, 2, s48")
        a("v_lshrrev_b32 v19, 3, v3")
        a("v_lshl_add_u32 v2, v19, 8, v2")
        a("v_and_b32 v3, 4, v3")
        a("v_lshl_add_u32 v2, v3, 1, v2")
        a(f"buffer_store_dwordx2 {vr(P, 2)}, v2, s[20:23], 0 offen sc1")
        a(f"buffer_store_dwordx2 {vr(P + 2, 2)}, v2, s[20:23], 0 offen offset:256 sc1")
        a("v_cmp_eq_u32 vcc, 0, v18")
        a("s_and_saveexec_b64 s[50:51], vcc")
        a(f"buffer_store_dwordx2 {vr(P + 4, 2)}, v2, s[20:23], 0 offen offset:512 sc1")
        a("s_mov_b64 exec, s[50:51]")
        a("s_load_dwordx2 s[4:5], s[0:1], 56")
        a("s_waitcnt vmcnt(0) lgkmcnt(0)")
        a("s_barrier")
        a("s_cmp_lg_u32 s39, 0")
        a("s_cbranch_scc1 K2_TAIL")
    else:
        a("v_mul_u32_u24 v2, 1280, v2")
        a("s_mul_i32 s48, s36, 40")
        a("v_lshl_add_u32 v2, v18, 3, v2")
        a("v_add_u32 v2, s48, v2")
        a(f"buffer_store_dwordx2 {vr(P, 2)}, v2, s[20:23], 0 offen")
        a(f"buffer_store_dwordx2 {vr(P + 2, 2)}, v2, s[20:23], 0 offen offset:16")
        a("v_cmp_eq_u32 vcc, 0, v18")
        a("s_and_saveexec_b64 s[50:51], vcc")
        a(f"buffer_store_dwordx2 {vr(P + 4, 2)}, v2, s[20:23], 0 offen offset:32")
        a("s_mov_b64 exec, s[50:51]")
        a("s_cmp_lg_u32 s39, 0")
        a("s_cbranch_scc1 K2_PEND")
        a("s_waitcnt lgkmcnt(0)")
        a("s_barrier")
    a(f"v_mov_b32 v3, {K2_FLAG}")
    a("ds_read_b32 v2, v3")
    a("s_waitcnt lgkmcnt(0)")
    a("v_readfirstlane_b32 s47, v2")
    a("s_cmp_lg_u32 s47, 0")
    a("s_cbranch_scc1 K2_FALL")
    if XP_FUSE:
        a.label("K2_TAIL")
        if XP_SEN:
            k2_tail2(a)
        else:
            k2_tail(a)
    a.label("K2_PEND")
    prof(a, 12)
    a.label("K2_END")
    a("s_endpgm")
    if XP_SEN:
        a.label("K2_NODMA_X")
        a("s_cmp_lg_u32 s40, 6")
        a("s_cbranch_scc1 K2_NODMA")
        for i in range(3):
            a(f"s_mov_b32 m0, s{63 + i}")
            a("s_nop 0")
            a(f"buffer_load_dwordx4 v16, s[24:27], s{60 + i} offen lds")
        a("s_branch K2_NODMA")
    a.label("K2_FFN")
    if XP_NOFFN:
        a("s_endpgm")
    if XP_FP:
        a(f"s_setprio {XP_FP}")
    a("s_sub_u32 s38, s38, 8")
    if XP_GF:
        srd(a, 64, 4, 5, SZ_X)
        srd(a, 68, 6, 7, 1280)
        srd_off(a, 32, 8, 9, WS_G, SZ_G)
        a("s_lshl_b32 s48, s37, 8")
        a("s_lshl_b32 s49, s36, 3")
        a("s_add_u32 s48, s48, s49")
        a("s_lshl_b32 s49, s38, 1")
        a("s_add_u32 s48, s48, s49")
    a("s_load_dwordx2 s[6:7], s[0:1], 40")
    a("s_load_dwordx2 s[52:53], s[0:1], 16")
    tile_map(a, 36, 37)
    a("s_lshl_b32 s39, s36, 6")
    a("s_mul_i32 s40, s37, 160")
    a("s_mul_i32 s41, s38, 20480")
    a(f"s_add_u32 s41, s41, {K2_FFN}")
    a("s_mul_i32 s42, s38, 14")
    a("s_cmp_eq_u32 s38, 3")
    a("s_cselect_b32 s42, 41, s42")
    a("s_mul_i32 s45, s36, 54")
    a("s_add_u32 s45, s45, s42")
    a("s_lshl_b32 s45, s45, 12")
    a("s_mul_i32 s46, s42, 5120")
    a("s_mul_i32 s47, s37, 276480")
    a("s_add_u32 s46, s46, s47")
    a("s_waitcnt lgkmcnt(0)")
    srd_off(a, 16, 8, 9, WS_W2P, SZ_W2)
    srd_off(a, 24, 8, 9, WS_H, SZ_H)
    srd_off(a, 28, 8, 9, WS_B, SZ_B)
    gw_setup(a, 39, 40, 3456, 41)
    j = 0
    for k, ns in enumerate(XP_FS):
        a("s_barrier")
        if k == 0:
            if XP_GF:
                a("s_mul_i32 s49, s48, 1280")
                a("v_mul_u32_u24 v2, 20, v1")
                a("buffer_load_dwordx4 v[116:119], v2, s[64:67], s49 offen")
                a("buffer_load_dword v120, v2, s[64:67], s49 offen offset:16")
                a("buffer_load_dwordx4 v[122:125], v2, s[68:71], 0 offen")
                a("buffer_load_dword v126, v2, s[68:71], 0 offen offset:16")
                a("buffer_load_dwordx4 v[132:135], v2, s[64:67], s49 offen offset:1280")
                a("buffer_load_dword v136, v2, s[64:67], s49 offen offset:1296")
            gw_issue(a, 0, 24, 16, 45, 46, 41)
        if k == 1 and XP_PF and not XP_QX:
            srd(a, 52, 52, 53, SZ_WO)
            a("s_mul_i32 s56, s2, 3200")
            a("v_and_b32 v3, 255, v0")
            a("v_lshlrev_b32 v2, 7, v3")
            a("v_cmp_gt_u32 vcc, 25, v3")
            a("v_bfrev_b32 v3, 1")
            a("v_cndmask_b32 v2, v3, v2, vcc")
            a("buffer_load_dword v141, v2, s[52:55], s56 offen")
        for _ in range(ns):
            if XP_FPIPE:
                if j == 0:
                    gw_issue(a, 1, 24, 16, 45, 46, 41)
                    if XP_GF:
                        a("s_waitcnt vmcnt(18)")
                        gate_compute2(a, 116, 132, 122, 48, 32)
                        a("s_waitcnt vmcnt(10)")
                    else:
                        a("s_waitcnt vmcnt(9)")
                elif j < 13:
                    a("s_waitcnt vmcnt(9)")
                else:
                    a("s_waitcnt vmcnt(0)")
                    a("s_cmp_ge_u32 s38, 2")
                    a("s_cbranch_scc1 K2_FSKIP")
                gw_compute_pipe(a, j & 1, j == 0, gw_pieces(j & 1, 24, 16, 45, 46, 41) if j + 2 < 14 else [])
                if j == 0 and XP_ES:
                    a("s_barrier")
                j += 1
                continue
            if j < 13:
                gw_issue(a, (j + 1) & 1, 24, 16, 45, 46, 41)
                if j == 0 and XP_GF:
                    a("s_waitcnt vmcnt(18)")
                    gate_compute2(a, 116, 132, 122, 48, 32)
                    a("s_waitcnt vmcnt(10)")
                else:
                    a("s_waitcnt vmcnt(9)")
            else:
                a("s_waitcnt vmcnt(0)")
                a("s_cmp_ge_u32 s38, 2")
                a("s_cbranch_scc1 K2_FSKIP")
            gw_compute(a, j & 1, j == 0)
            if j == 0 and XP_ES:
                a("s_barrier")
            j += 1
    assert j == 14
    a.label("K2_FSKIP")
    if XP_FE:
        a(f"s_setprio {XP_FE}")
    a("s_nop 7")
    a("s_nop 3")
    a("s_waitcnt vmcnt(0)")
    gw_write_partials(a, 41)
    a("s_waitcnt lgkmcnt(0)")
    a("s_barrier")
    gw_read_sum(a, 38, K2_FFN)
    for e in range(0, 20, 2):
        a(f"v_cvt_pk_bf16_f32 v{112 + e // 2}, v{24 + e}, v{25 + e}")
    if XP_FUSE:
        a("s_mul_i32 s42, s38, 2560")
        a(f"s_add_u32 s42, s42, {K2_B}")
        a("v_lshlrev_b32 v2, 3, v1")
        a("v_add_u32 v2, s42, v2")
        for n in range(5):
            a(f"ds_write_b64 v2, {vr(112 + 2 * n, 2)} offset:{512 * n}")
        a("s_waitcnt lgkmcnt(0)")
        a("s_barrier")
        a("s_setprio 0")
        srd_off(a, 52, 8, 9, WS_WO, SZ_WO)
        a("s_mul_i32 s56, s37, 102400")
        a("s_mul_i32 s57, s38, 20480")
        a("s_add_u32 s56, s56, s57")
        for j in range(5):
            a(f"s_add_u32 m0, s41, {4096 * j}")
            a("s_nop 0")
            for i in range(4):
                a(f"buffer_load_dwordx4 v{GW.VA}, s[52:55], s56 offen offset:{1024 * i} lds")
            a("s_add_u32 s56, s56, 4096")
        for _ in range(8 - (len(XP_FS) + 2)):
            a("s_barrier")
        a("s_waitcnt vmcnt(0)")
        a("s_barrier")
        a("s_endpgm")
        return a.text()
    a("s_lshl_b32 s42, s36, 3")
    a("s_add_u32 s42, s42, s37")
    a("s_lshl_b32 s42, s42, 2")
    a("s_add_u32 s42, s42, s38")
    a("s_mul_i32 s42, s42, 2560")
    a("v_lshlrev_b32 v2, 3, v1")
    for n in range(5):
        a(f"buffer_store_dwordx2 {vr(112 + 2 * n, 2)}, v2, s[28:31], s42 offen offset:{512 * n}")
    if XP_PF2:
        srd_off(a, 52, 8, 9, WS_WO, SZ_WO)
        a("s_lshr_b32 s56, s2, 3")
        a("s_mul_i32 s56, s56, 12800")
        a("s_and_b32 s57, s2, 1")
        a("s_mul_i32 s57, s57, 409600")
        a("s_add_u32 s56, s56, s57")
        a("v_and_b32 v3, 255, v0")
        a("v_lshlrev_b32 v2, 7, v3")
        a("v_cmp_gt_u32 vcc, 100, v3")
        a("v_bfrev_b32 v3, 1")
        a("v_cndmask_b32 v2, v3, v2, vcc")
        a("buffer_load_dword v141, v2, s[52:55], s56 offen")
        a("s_waitcnt vmcnt(0)")
    a("s_endpgm")
    return a.text()


def wmap(a, dst, sC0B):
    a("v_mul_u32_u24 v3, 6554, v2")
    a("v_lshrrev_b32 v3, 16, v3")
    a("v_mul_u32_u24 v15, 10, v3")
    a("v_sub_u32 v2, v2, v15")
    a("v_lshrrev_b32 v15, 1, v3")
    a("v_and_b32 v15, 4, v15")
    a("v_xor_b32 v3, v3, v15")
    a("v_lshlrev_b32 v2, 4, v2")
    a("v_mul_u32_u24 v3, 1280, v3")
    a(f"v_add3_u32 v{dst}, v2, v3, s{sC0B}")


def wread_addr(a, d0, d1, sBase, G=22, U=23):
    a(f"v_lshlrev_b32 v2, 3, v{G}")
    a(f"v_lshrrev_b32 v3, 2, v{U}")
    a("v_add_u32 v2, v2, v3")
    a("v_mul_u32_u24 v2, 160, v2")
    a(f"v_and_b32 v3, 3, v{U}")
    a("v_lshlrev_b32 v3, 3, v3")
    a(f"v_add3_u32 v2, v2, v3, s{sBase}")
    a(f"v_and_b32 v3, 1, v{G}")
    a("v_mul_u32_u24 v3, 640, v3")
    a(f"v_add_u32 v{d0}, v2, v3")
    a("v_sub_u32 v2, v2, v3")
    a(f"v_add_u32 v{d1}, 640, v2")


K3_STG = 36864
K3_B = 4 * K3_STG
K3_LDS = K3_B + 10240


def k3():
    a = Asm()
    a.label("k3_kernel")
    if PROF:
        a("s_memtime s[86:87]")
    a("s_cmp_ge_u32 s2, 256")
    a("s_cbranch_scc1 K3_END")
    a("s_load_dwordx2 s[4:5], s[0:1], 16")
    a("s_load_dwordx2 s[8:9], s[0:1], 72")
    a("s_load_dwordx2 s[10:11], s[0:1], 56")
    tile_map(a, 36, 37)
    a("v_and_b32 v1, 63, v0")
    a("v_lshrrev_b32 v2, 6, v0")
    a("v_lshrrev_b32 v22, 4, v1")
    a("v_readfirstlane_b32 s38, v2")
    a("v_and_b32 v23, 15, v1")
    a("s_lshl_b32 s39, s36, 6")
    a("s_mul_i32 s40, s37, 160")
    a("s_and_b32 s49, s38, 3")
    a("s_lshr_b32 s50, s38, 2")
    a("s_lshl_b32 s42, s38, 3")
    for j in range(2):
        a(f"s_add_u32 s43, s42, {4 * j}")
        a("v_add_u32 v2, s43, v22")
        a("v_and_b32 v3, 15, v2")
        a("v_xor_b32 v3, v3, v23")
        a("v_add_u32 v2, s39, v2")
        a("v_mul_u32_u24 v2, 1280, v2")
        a(f"v_lshl_add_u32 v{4 + j}, v3, 4, v2")
    a("s_add_u32 s43, s38, 8")
    a("s_add_u32 s44, s38, 16")
    a("s_cmp_lt_u32 s38, 4")
    a("s_cselect_b32 s44, s44, s43")
    a("v_lshlrev_b32 v2, 4, v1")
    a("s_mul_i32 s55, s37, 102400")
    for j, sp in enumerate((38, 43, 44)):
        a(f"s_lshl_b32 s{52 + j}, s{sp}, 10")
        a(f"s_add_u32 s51, s{52 + j}, s55")
        a(f"v_add_u32 v{8 + j}, s51, v2")
        a(f"s_add_u32 s{52 + j}, s{52 + j}, 16384")
    a("s_lshl_b32 s45, s38, 11")
    a("s_waitcnt lgkmcnt(0)")
    srd_off(a, 12, 8, 9, WS_WO, SZ_WO)
    srd_off(a, 20, 8, 9, WS_O, SZ_O)
    srd_off(a, 24, 8, 9, WS_B, SZ_B)
    srd_off(a, 28, 8, 9, WS_G, SZ_G)
    srd(a, 32, 10, 11, SZ_OUT)
    prof_init(a, 8, 9, 38, 2)
    prof(a, 0)

    def issue(stage, slot):
        a(f"s_mov_b32 s47, {stage * 256}")
        a(f"s_mov_b32 s48, {stage * 20480}")
        for j in range(2):
            a(f"s_add_u32 m0, s45, {slot * K3_STG + j * 1024}")
            a("s_nop 0")
            a(f"buffer_load_dwordx4 v{4 + j}, s[20:23], s47 offen lds")
        for j in range(3):
            a(f"s_add_u32 m0, s{52 + j}, {slot * K3_STG}")
            a("s_nop 0")
            a(f"buffer_load_dwordx4 v{8 + j}, s[12:15], s48 offen lds")

    for st in range(4):
        issue(st, st)
    a("s_lshl_b32 s42, s36, 3")
    a("s_add_u32 s42, s42, s37")
    a("s_lshl_b32 s42, s42, 2")
    a("s_add_u32 s42, s42, s49")
    a("s_mul_i32 s42, s42, 2560")
    a("s_mul_i32 s43, s50, 1536")
    a("s_add_u32 s42, s42, s43")
    a("v_lshlrev_b32 v2, 3, v1")
    for n in range(3):
        a(f"buffer_load_dwordx2 {vr(104 + 2 * n, 2)}, v2, s[24:27], s42 offen offset:{512 * n}")
    a("s_lshl_b32 s42, s49, 4")
    a("v_add_u32 v2, s42, v23")
    a("v_add_u32 v3, s39, v2")
    a("v_lshlrev_b32 v3, 2, v3")
    a("buffer_load_dword v16, v3, s[28:31], 0 offen")
    a("v_mul_u32_u24 v2, 160, v2")
    a("v_lshl_add_u32 v2, v22, 3, v2")
    a("s_mul_i32 s43, s50, 96")
    a(f"s_add_u32 s43, s43, {K3_B}")
    a("v_add_u32 v17, s43, v2")
    for j in range(2):
        a("s_mul_i32 s43, s38, 80")
        a(f"s_add_u32 s43, s43, {64 * j}")
        a("v_add_u32 v2, s43, v1")
        a("v_mul_u32_u24 v3, 6554, v2")
        a("v_lshrrev_b32 v3, 16, v3")
        a("v_mul_u32_u24 v15, 10, v3")
        a("v_sub_u32 v15, v2, v15")
        a("v_lshlrev_b32 v15, 4, v15")
        a("v_add_u32 v3, s39, v3")
        a("v_mul_u32_u24 v3, 1280, v3")
        a(f"v_add3_u32 v{12 + j}, v3, v15, s40")
        a("v_lshlrev_b32 v2, 4, v2")
        a(f"v_add_u32 v{32 + j}, {K3_B}, v2")
    BV = 104
    RA, RW = 24, 28
    a("s_lshl_b32 s43, s49, 12")
    a("v_lshlrev_b32 v2, 8, v23")
    a("v_add_u32 v2, s43, v2")
    a("s_lshl_b32 s43, s50, 3")
    for i in range(2):
        a(f"s_add_u32 s44, s43, {4 * i}")
        a("v_add_u32 v3, s44, v22")
        a("v_xor_b32 v3, v3, v23")
        a(f"v_lshl_add_u32 v{RA + i}, v3, 4, v2")
        a(f"v_add_u32 v{RA + 2 + i}, {2 * K3_STG}, v{RA + i}")
    a("s_mul_i32 s43, s50, 10240")
    a("s_add_u32 s43, s43, 16384")
    wread_addr(a, RW, RW + 1, 43)
    a(f"v_add_u32 v{RW + 2}, {2 * K3_STG}, v{RW}")
    a(f"v_add_u32 v{RW + 3}, {2 * K3_STG}, v{RW + 1}")
    a("v_lshlrev_b32 v21, 4, v1")
    a("s_mul_i32 s43, s49, 5120")
    a(f"s_add_u32 s43, s43, {K3_STG}")
    a("v_add_u32 v21, s43, v21")
    AF = (36, 40)
    WF = (44, 64)
    ACC = 84

    def reads(t):
        st, i = t >> 1, t & 1
        slot = st % 4
        hi = slot >> 1
        so = (slot & 1) * K3_STG
        r = [f"ds_read_b128 {vr(AF[i], 4)}, v{RA + 2 * hi + i} offset:{so}"]
        for n in range(5):
            off = so + i * 5120 + n * 32
            r.append(f"ds_read_b64_tr_b16 {vr(WF[i] + 4 * n, 2)}, v{RW + 2 * hi} offset:{off}")
            r.append(f"ds_read_b64_tr_b16 {vr(WF[i] + 4 * n + 2, 2)}, v{RW + 2 * hi + 1} offset:{off}")
        return r

    def mf(t):
        for n in range(5):
            d = ACC + 4 * n
            c = "0" if t == 0 else vr(d, 4)
            a(f"v_mfma_f32_16x16x32_bf16 {vr(d, 4)}, {vr(WF[t & 1] + 4 * n, 4)}, {vr(AF[t & 1], 4)}, {c}")

    a("s_waitcnt vmcnt(19)")
    a("s_barrier")
    prof(a, 1)
    for r in reads(0) + reads(1):
        a(r)
    a("s_waitcnt vmcnt(4) lgkmcnt(0)")
    a("s_barrier")
    prof(a, 2)
    issue(4, 0)
    mf(0)
    for r in reads(2):
        a(r)
    mf(1)
    for t in range(2, 10):
        if t == 7:
            a("s_waitcnt vmcnt(0)")
            a("s_barrier")
            prof(a, 3)
        if t < 9:
            for r in reads(t + 1):
                a(r)
            a("s_waitcnt lgkmcnt(11)")
        else:
            a("s_waitcnt lgkmcnt(0)")
        mf(t)
    a("v_sub_f32 v18, 1.0, v16")
    a("v_cvt_pk_bf16_f32 v18, v18, v18")
    a("v_lshlrev_b32 v18, 16, v18")
    a("s_nop 7")
    prof(a, 6)
    XR = 44
    a("s_cmp_eq_u32 s50, 0")
    a("s_cbranch_scc0 K3_X1")
    for n in (3, 4):
        a(f"ds_write_b128 v21, {vr(ACC + 4 * n, 4)} offset:{1024 * n}")
    a("s_waitcnt lgkmcnt(0)")
    a("s_barrier")
    for n in range(3):
        a(f"ds_read_b128 {vr(XR + 4 * n, 4)}, v21 offset:{1024 * n}")
    a("s_branch K3_FIN")
    a.label("K3_X1")
    for n in range(3):
        a(f"ds_write_b128 v21, {vr(ACC + 4 * n, 4)} offset:{1024 * n}")
    a("s_waitcnt lgkmcnt(0)")
    a("s_barrier")
    for n in (3, 4):
        a(f"ds_read_b128 {vr(XR + 4 * (n - 3), 4)}, v21 offset:{1024 * n}")
    for i in range(8):
        a(f"v_mov_b32 v{ACC + i}, v{ACC + 12 + i}")
    a.label("K3_FIN")
    a("s_waitcnt lgkmcnt(0)")
    for n in range(3):
        if n == 2:
            a("s_cmp_eq_u32 s50, 0")
            a("s_cbranch_scc0 K3_CP")
        for i in range(4):
            a(f"v_add_f32 v{ACC + 4 * n + i}, v{ACC + 4 * n + i}, v{XR + 4 * n + i}")
        for h in range(2):
            e = ACC + 4 * n + 2 * h
            bp = BV + 2 * n + h
            a(f"v_cvt_pk_bf16_f32 v19, v{e}, v{e + 1}")
            a("v_lshlrev_b32 v4, 16, v19")
            a("v_and_b32 v5, 0xffff0000, v19")
            a(f"v_lshlrev_b32 v6, 16, v{bp}")
            a(f"v_and_b32 v7, 0xffff0000, v{bp}")
            a("v_mul_f32 v4, v16, v4")
            a("v_mul_f32 v5, v16, v5")
            a("v_mul_f32 v6, v18, v6")
            a("v_mul_f32 v7, v18, v7")
            a("v_cvt_pk_bf16_f32 v19, v4, v5")
            a("v_cvt_pk_bf16_f32 v20, v6, v7")
            a("v_lshlrev_b32 v4, 16, v19")
            a("v_and_b32 v5, 0xffff0000, v19")
            a("v_lshlrev_b32 v6, 16, v20")
            a("v_and_b32 v7, 0xffff0000, v20")
            a("v_add_f32 v4, v4, v6")
            a("v_add_f32 v5, v5, v7")
            a(f"v_cvt_pk_bf16_f32 v{bp}, v4, v5")
        a(f"ds_write_b64 v17, {vr(BV + 2 * n, 2)} offset:{32 * n}")
    a.label("K3_CP")
    a("s_waitcnt lgkmcnt(0)")
    a("s_barrier")
    a("ds_read_b128 v[4:7], v32")
    a("ds_read_b128 v[8:11], v33")
    a("s_waitcnt lgkmcnt(1)")
    a("buffer_store_dwordx4 v[4:7], v12, s[32:35], 0 offen")
    a("v_cmp_gt_u32 vcc, 16, v1")
    a("s_and_saveexec_b64 s[50:51], vcc")
    a("s_waitcnt lgkmcnt(0)")
    a("buffer_store_dwordx4 v[8:11], v13, s[32:35], 0 offen")
    a("s_mov_b64 exec, s[50:51]")
    a.label("K3_PEND")
    prof(a, 12)
    a.label("K3_END")
    a("s_endpgm")
    return a.text()


def desc(name, vgpr, sgpr=96):
    acc = (vgpr + 3) // 4 * 4
    return f""".amdhsa_kernel {name}
  .amdhsa_next_free_vgpr {vgpr}
  .amdhsa_next_free_sgpr {sgpr}
  .amdhsa_accum_offset {acc}
  .amdhsa_group_segment_fixed_size 0
  .amdhsa_kernarg_size 80
  .amdhsa_user_sgpr_count 2
  .amdhsa_user_sgpr_kernarg_segment_ptr 1
  .amdhsa_system_sgpr_workgroup_id_x 1
.end_amdhsa_kernel
"""


def main():
    l3 = "" if XP_FUSE else f"; @launch kernel=k3_kernel grid=(256,1,1) block=(512,1,1) lds={K3_LDS}\n"
    hdr = f"""; gated_mix__mha_block__dense_activation_relu__prompt : kernel list (generated by gen.py, hand-designed)
; @launch kernel=k1_kernel grid=(256,1,1) block=(512,1,1) lds={K1_LDS}
; @launch kernel=k2_kernel grid=(256,1,1) block=(768,1,1) lds={K2_LDS}
{l3}.amdgcn_target "amdgcn-amd-amdhsa--gfx950"
.text
"""
    body = ""
    for name, fn in (("k1_kernel", k1), ("k2_kernel", k2), ("k3_kernel", k3))[:2 if XP_FUSE else 3]:
        body += f".globl {name}\n.p2align 8\n.type {name},@function\n" + fn()
    tail = '.section .rodata,"a"\n.p2align 6\n'
    tail += desc("k1_kernel", 176)
    tail += ".p2align 6\n" + desc("k2_kernel", 168 if XP_SEN else 144)
    if not XP_FUSE:
        tail += ".p2align 6\n" + desc("k3_kernel", 116)
    open(OUT, "w").write(hdr + body + tail)


if __name__ == "__main__":
    main()
```

```python
import struct, sys

OUT = sys.argv[1] if len(sys.argv) > 1 else "gated_mix__mha_block__dense_activation_relu__prompt.s"

WS_Q = 0
SZ_Q = 32 * 2048 * 48
WS_KV = 0x400000
HEAD_KV = 64 * 2880
SZ_KV = 32 * HEAD_KV
WS_H = 0xC00000
SZ_H = 2048 * 3456
WS_O = 0x1400000
SZ_O = 2048 * 1280
WS_G = 0x1800000
SZ_G = 2048 * 4
WS_B = 0x1A00000
SZ_B = 2048 * 1280
WS_WO = 0x1E00000
WS_W2P = 0x2400000
WS_CNT = 0x2800000

SZ_X = 2048 * 1280
SZ_WQKV = 640 * 3840
SZ_WO = 640 * 1280
SZ_W1 = 640 * 3456
SZ_W2 = 1728 * 1280
SZ_OUT = 2048 * 1280


def f32bits(x):
    return struct.unpack("<I", struct.pack("<f", x))[0]


C_SCALE = 1.4426950408889634 / (20 ** 0.5)
LOG2E = 1.4426950408889634


PROF = int(__import__("os").environ.get("PROF", "0"))
WS_T = 0x2000000
XP_PF = int(__import__("os").environ.get("XP_PF", "0"))
XP_ROT = int(__import__("os").environ.get("XP_ROT", "1"))
XP_PRIO = int(__import__("os").environ.get("XP_PRIO", "0"))
XP_RPM = int(__import__("os").environ.get("XP_RPM", "1"))
XP_DSL = eval(__import__("os").environ.get("XP_DSL", "(7, 10, 13)"))
XP_FDEL = int(__import__("os").environ.get("XP_FDEL", "1"))
XP_FS = eval(__import__("os").environ.get("XP_FS", "(1, 3, 3, 3, 2, 2)"))
XP_QX = int(__import__("os").environ.get("XP_QX", "0"))
XP_PF2 = int(__import__("os").environ.get("XP_PF2", "0"))
XP_NOLDS = int(__import__("os").environ.get("XP_NOLDS", "0"))
XP_NOFFN = int(__import__("os").environ.get("XP_NOFFN", "0"))
XP_K8 = int(__import__("os").environ.get("XP_K8", "1"))
XP_PR = eval(__import__("os").environ.get("XP_PR", "(3, 3, 3, 2, 2, 2, 1, 1)"))
XP_FP = int(__import__("os").environ.get("XP_FP", "0"))
XP_FE = int(__import__("os").environ.get("XP_FE", "3"))
XP_FPIPE = int(__import__("os").environ.get("XP_FPIPE", "1"))
XP_FB = int(__import__("os").environ.get("XP_FB", "2"))
XP_FUSE = int(__import__("os").environ.get("XP_FUSE", "1"))
XP_ES = int(__import__("os").environ.get("XP_ES", "1"))
XP_FJ = int(__import__("os").environ.get("XP_FJ", "1"))
XP_GF = int(__import__("os").environ.get("XP_GF", "1"))
XP_NODMA = int(__import__("os").environ.get("XP_NODMA", "0"))
XP_NOBAR = int(__import__("os").environ.get("XP_NOBAR", "0"))
XP_SEN = int(__import__("os").environ.get("XP_SEN", "1"))
XP_PKS = int(__import__("os").environ.get("XP_PKS", "8"))
XP_SLP = int(__import__("os").environ.get("XP_SLP", "1"))
WS_F = 0x1802000
SZ_F = 131072


def prof_init(a, wsl, wsh, wave_s, kidx=0):
    if not PROF:
        return
    a(f"s_add_u32 s92, s{wsl}, {WS_T + kidx * 0x100000}")
    a(f"s_addc_u32 s93, s{wsh}, 0")
    a("s_and_b32 s93, s93, 0xffff")
    a("s_mov_b32 s94, 0x100000")
    a("s_mov_b32 s95, 0x00020000")
    a("s_lshl_b32 s91, s2, 4")
    a(f"s_add_u32 s91, s91, s{wave_s}")
    a("s_lshl_b32 s91, s91, 7")


def prof(a, slot, tmpv=2):
    if not PROF:
        return
    a("s_memtime s[88:89]")
    a("s_waitcnt lgkmcnt(0)")
    a(f"v_mov_b32 v{tmpv}, s88")
    a(f"v_mov_b32 v{tmpv + 1}, 0")
    a(f"buffer_store_dword v{tmpv}, v{tmpv + 1}, s[92:95], s91 offen offset:{4 * slot}")
    if slot == 0:
        a(f"v_mov_b32 v{tmpv}, s86")
        a(f"buffer_store_dword v{tmpv}, v{tmpv + 1}, s[92:95], s91 offen offset:60")
    if slot in (0, 12):
        a("s_memrealtime s[88:89]")
        a("s_waitcnt lgkmcnt(0)")
        a(f"v_mov_b32 v{tmpv}, s88")
        a(f"buffer_store_dword v{tmpv}, v{tmpv + 1}, s[92:95], s91 offen offset:{4 * (13 if slot == 0 else 14)}")


class Asm:
    def __init__(self):
        self.lines = []

    def __call__(self, s):
        self.lines.append("    " + s)

    def label(self, l):
        self.lines.append(l + ":")

    def c(self, s):
        self.lines.append("    ; " + s)

    def text(self):
        return "\n".join(self.lines) + "\n"


def vr(b, n=1):
    return f"v{b}" if n == 1 else f"v[{b}:{b + n - 1}]"


def sr(b, n=1):
    return f"s{b}" if n == 1 else f"s[{b}:{b + n - 1}]"


def srd(a, d, lo, hi, size):
    a(f"s_mov_b32 s{d}, s{lo}")
    a(f"s_and_b32 s{d + 1}, s{hi}, 0xffff")
    a(f"s_mov_b32 s{d + 2}, {size}")
    a(f"s_mov_b32 s{d + 3}, 0x00020000")


def srd_off(a, d, lo, hi, off, size):
    a(f"s_add_u32 s{d}, s{lo}, {off}")
    a(f"s_addc_u32 s{d + 1}, s{hi}, 0")
    a(f"s_and_b32 s{d + 1}, s{d + 1}, 0xffff")
    a(f"s_mov_b32 s{d + 2}, {size}")
    a(f"s_mov_b32 s{d + 3}, 0x00020000")


K1_STAGE = 45056
K1_LDS = 3 * K1_STAGE


XP_PSC = __import__("os").environ.get("XP_PSC", " sc1")


def k1_poison(a, D, A, S=68):
    srd_off(a, S, 10, 11, WS_O, WS_F + SZ_F - WS_O)
    for i in range(4):
        a(f"v_mov_b32 v{D + i}, -1")
    a("s_mul_i32 s80, s2, 10240")
    a(f"v_lshlrev_b32 v{A}, 4, v0")
    a(f"v_add_u32 v{A + 1}, 8192, v{A}")
    a(f"v_add_u32 v{A + 1}, s80, v{A + 1}")
    a("s_lshl_b32 s81, s2, 5")
    a(f"s_add_u32 s81, s81, {WS_G - WS_O - 2048}")
    a(f"v_add_u32 v{A + 2}, s81, v{A}")
    a("v_cmp_gt_u32 vcc, 128, v0")
    a(f"v_cndmask_b32 v{A + 1}, v{A + 2}, v{A + 1}, vcc")
    a("s_lshl_b32 s81, s2, 9")
    a(f"s_add_u32 s81, s81, {WS_F - WS_O - 2080}")
    a(f"v_add_u32 v{A + 2}, s81, v{A}")
    a("v_cmp_gt_u32 vcc, 130, v0")
    a(f"v_cndmask_b32 v{A + 1}, v{A + 2}, v{A + 1}, vcc")
    a(f"v_bfrev_b32 v{A + 2}, 1")
    a("v_cmp_gt_u32 vcc, 162, v0")
    a(f"v_cndmask_b32 v{A + 1}, v{A + 2}, v{A + 1}, vcc")
    if XP_SEN == 2:
        a("v_cmp_lt_u32 vcc, 127, v0")
        a(f"v_cndmask_b32 v{A + 1}, v{A + 2}, v{A + 1}, vcc")
        a(f"v_mov_b32 v{A}, v{A + 2}")
    a(f"buffer_store_dwordx4 {vr(D, 4)}, v{A}, {sr(S, 4)}, s80 offen{XP_PSC}")
    a(f"buffer_store_dwordx4 {vr(D, 4)}, v{A + 1}, {sr(S, 4)}, 0 offen{XP_PSC}")


def k1():
    a = Asm()
    a.label("k1_kernel")
    if PROF:
        a("s_memtime s[86:87]")
    a("s_cmp_ge_u32 s2, 256")
    a("s_cbranch_scc1 K1_END")
    a("s_and_b32 s3, s2, 7")
    a("s_lshr_b32 s4, s2, 3")
    a("s_lshl_b32 s3, s3, 5")
    a("s_add_u32 s3, s3, s4")
    a("s_cmp_ge_u32 s3, 253")
    a("s_cbranch_scc1 K1_PACK")
    a("s_mul_i32 s25, s3, 373")
    a("s_lshr_b32 s25, s25, 12")
    a("s_mul_i32 s4, s25, 11")
    a("s_sub_u32 s24, s3, s4")
    a("s_load_dwordx2 s[4:5], s[0:1], 0")
    a("s_load_dwordx2 s[6:7], s[0:1], 8")
    a("s_load_dwordx2 s[8:9], s[0:1], 32")
    a("s_load_dwordx2 s[10:11], s[0:1], 72")
    a("s_load_dwordx2 s[64:65], s[0:1], 40")
    a("v_and_b32 v1, 63, v0")
    a("v_lshrrev_b32 v2, 6, v0")
    a("s_nop 0")
    a("v_readfirstlane_b32 s26, v2")
    a("s_mul_i32 s72, s3, 547")
    a("s_lshr_b32 s27, s25, 2")
    a("s_min_u32 s27, s27, 3")
    a("s_mul_i32 s30, s24, 192")
    a("s_waitcnt lgkmcnt(0)")
    srd(a, 12, 4, 5, SZ_X)
    a("s_sub_u32 s29, s25, 12")
    a(f"s_mov_b32 s18, {SZ_W1}")
    a("s_mov_b32 s28, 3456")
    a("s_cmp_lt_u32 s25, 12")
    a("s_cselect_b32 s16, s6, s8")
    a("s_cselect_b32 s17, s7, s9")
    a(f"s_cselect_b32 s18, {SZ_WQKV}, s18")
    a("s_cselect_b32 s28, 3840, s28")
    a("s_cselect_b32 s29, s25, s29")
    a("s_and_b32 s17, s17, 0xffff")
    a("s_mov_b32 s19, 0x00020000")
    a("s_mul_i32 s29, s29, 160")
    a(f"s_mov_b32 s31, {WS_KV}")
    a(f"s_mov_b32 s22, {SZ_KV}")
    a("s_cmp_eq_u32 s27, 0")
    a(f"s_cselect_b32 s31, {WS_Q}, s31")
    a(f"s_cselect_b32 s22, {SZ_Q}, s22")
    a("s_cmp_eq_u32 s27, 3")
    a(f"s_cselect_b32 s31, {WS_H}, s31")
    a(f"s_cselect_b32 s22, {SZ_H}, s22")
    a("s_add_u32 s20, s10, s31")
    a("s_addc_u32 s21, s11, 0")
    a("s_and_b32 s21, s21, 0xffff")
    a("s_mov_b32 s23, 0x00020000")
    prof_init(a, 10, 11, 26, 0)
    prof(a, 0)
    a("s_and_b32 s65, s65, 0xffff")
    a(f"s_mov_b32 s66, {SZ_W2}")
    a("s_mov_b32 s67, 0x00020000")
    srd_off(a, 68, 10, 11, WS_W2P, SZ_W2)
    a("v_add_u32 v164, s72, v0")
    a("v_add_u32 v165, 512, v164")
    a("v_bfrev_b32 v2, 1")
    a("v_cmp_gt_u32 vcc, 35, v0")
    a("v_lshlrev_b32 v166, 4, v164")
    a("v_cndmask_b32 v165, v2, v165, vcc")
    a("v_lshlrev_b32 v2, 4, v165")
    a("v_cndmask_b32 v167, v165, v2, vcc")
    a("s_lshr_b32 s32, s26, 1")
    a("s_and_b32 s33, s26, 1")
    a("v_lshrrev_b32 v2, 3, v1")
    a("v_and_b32 v3, 7, v1")
    a("v_xor_b32 v3, v3, v2")
    a("v_lshlrev_b32 v3, 4, v3")
    a("v_mul_u32_u24 v2, 1280, v2")
    a("v_add_u32 v4, v2, v3")
    a("v_add_u32 v5, 10240, v4")
    a("v_add_u32 v6, 20480, v4")
    a("s_mul_i32 s34, s26, 24")
    a("s_add_u32 s34, s34, s30")
    a("s_mul_i32 s34, s34, 1280")
    a("s_mov_b32 s35, 0")
    a("s_lshl_b32 s36, s28, 6")
    a("s_add_u32 s62, s34, 1280")
    a("s_mul_i32 s61, s28, 640")
    a("s_add_u32 s60, s24, s25")
    a("s_mul_i32 s63, s60, 43")
    a("s_lshr_b32 s63, s63, 7")
    a("s_mul_i32 s63, s63, 3")
    a("s_sub_u32 s60, s60, s63")
    a(f"s_mul_i32 s60, s60, {XP_ROT}")
    a("s_lshl_b32 s63, s60, 7")
    a("s_add_u32 s34, s34, s63")
    a("s_mul_i32 s35, s60, s36")
    a("s_add_u32 s37, s26, 8")
    a("s_add_u32 s38, s26, 16")
    a("s_cmp_lt_u32 s26, 4")
    a("s_cselect_b32 s38, s38, s37")
    a("s_lshl_b32 s39, s29, 1")
    for j, sidx in enumerate((26, 37, 38)):
        a(f"s_lshl_b32 s40, s{sidx}, 6")
        a("v_add_u32 v2, s40, v1")
        a("v_mul_u32_u24 v3, 3277, v2")
        a("v_lshrrev_b32 v3, 16, v3")
        a("v_mul_u32_u24 v22, 20, v3")
        a("v_sub_u32 v2, v2, v22")
        a("v_lshrrev_b32 v22, 2, v3")
        a("v_and_b32 v22, 2, v22")
        a("v_xor_b32 v2, v2, v22")
        a("v_lshlrev_b32 v2, 4, v2")
        a("v_mul_lo_u32 v3, v3, s28")
        a(f"v_add3_u32 v{7 + j}, v2, v3, s39")
    a("s_mul_i32 s41, s26, 3072")
    a("s_lshl_b32 s42, s26, 10")
    a("s_add_u32 s42, s42, 24576")
    a("s_lshl_b32 s43, s37, 10")
    a("s_add_u32 s43, s43, 24576")
    a("s_lshl_b32 s44, s38, 10")
    a("s_add_u32 s44, s44, 24576")

    def dma_pieces(buf):
        base = buf * K1_STAGE
        g = []
        for j in range(3):
            x = [f"s_add_u32 m0, s41, {base + j * 1024}", "s_nop 0",
                 f"buffer_load_dwordx4 v{4 + j}, s[12:15], s34 offen lds"]
            if j == 2:
                x += ["s_add_u32 s34, s34, 128", "s_sub_u32 s60, s34, 1280", "s_cmp_ge_u32 s34, s62",
                      "s_cselect_b32 s34, s60, s34"]
            g.append(x)
        for j in range(3):
            x = [f"s_add_u32 m0, s{42 + j}, {base}", "s_nop 0",
                 f"buffer_load_dwordx4 v{7 + j}, s[16:19], s35 offen lds"]
            if j == 2:
                x += ["s_add_u32 s35, s35, s36", "s_cmp_ge_u32 s35, s61", "s_cselect_b32 s35, 0, s35"]
            g.append(x)
        return g

    if XP_SEN in (1, 2) and XP_PKS == -1:
        k1_poison(a, 168, 172, 76)
    for b in range(3):
        for g in dma_pieces(b):
            for x in g:
                a(x)
    NPF = 2
    a("buffer_load_dwordx4 v[168:171], v166, s[64:67], 0 offen")
    a("buffer_load_dwordx4 v[172:175], v167, s[64:67], 0 offen")
    a("s_mov_b32 s72, 53687092")
    a("s_mov_b32 s73, 276480")
    for r in (164, 165):
        a(f"v_mul_hi_u32 v24, v{r}, s72")
        a("v_mul_u32_u24 v25, 80, v24")
        a(f"v_sub_u32 v25, v{r}, v25")
        a("v_mul_u32_u24 v26, 6554, v25")
        a("v_lshrrev_b32 v26, 16, v26")
        a("v_mul_u32_u24 v27, 10, v26")
        a("v_sub_u32 v25, v25, v27")
        a("v_mul_u32_u24 v24, 160, v24")
        a("v_mul_lo_u32 v26, v26, s73")
        a("v_lshl_add_u32 v24, v25, 4, v24")
        a("v_add_u32 v24, v24, v26")
        a(f"v_cmp_gt_u32 vcc, {1728 * 80}, v{r}")
        a("v_bfrev_b32 v26, 1")
        a(f"v_cndmask_b32 v{r}, v26, v24, vcc")
    if XP_PF > 1:
        NPF = 3
        a("s_lshr_b32 s45, s2, 3")
        a("s_mul_i32 s45, s45, 81920")
        a("v_lshlrev_b32 v2, 7, v0")
        a("buffer_load_dword v160, v2, s[12:15], s45 offen")
        a("v_add_u32 v3, 0x10000, v2")
        a("v_cmp_gt_u32 vcc, 128, v0")
        a("v_bfrev_b32 v22, 1")
        a("v_cndmask_b32 v3, v22, v3, vcc")
        a("buffer_load_dword v161, v3, s[12:15], s45 offen")
        a("v_mul_u32_u24 v2, 21846, v0")
        a("v_lshrrev_b32 v2, 16, v2")
        a("v_mul_u32_u24 v3, 3, v2")
        a("v_sub_u32 v3, v0, v3")
        a("v_lshlrev_b32 v3, 7, v3")
        a("s_mul_i32 s45, s24, 59")
        a("v_add_u32 v2, s45, v2")
        a("v_cmp_gt_u32 vcc, 177, v0")
        a("v_mul_lo_u32 v2, v2, s28")
        a("v_add3_u32 v2, v2, v3, s39")
        a("v_cndmask_b32 v2, v22, v2, vcc")
        a("buffer_load_dword v162, v2, s[16:19], 0 offen")
    a("v_lshrrev_b32 v22, 4, v1")
    a("v_and_b32 v23, 15, v1")
    a("s_mul_i32 s45, s32, 48")
    a("v_add_u32 v2, s45, v23")
    a("v_lshlrev_b32 v2, 7, v2")
    a("v_and_b32 v3, 7, v23")
    a("v_xor_b32 v3, v3, v22")
    a("v_lshlrev_b32 v3, 4, v3")
    a("v_add_u32 v10, v2, v3")
    a("v_xor_b32 v11, 64, v10")
    for b in (1, 2):
        a(f"v_add_u32 v{10 + 2 * b}, {b * K1_STAGE}, v10")
        a(f"v_add_u32 v{11 + 2 * b}, {b * K1_STAGE}, v11")
    a("v_lshlrev_b32 v2, 3, v22")
    a("v_lshrrev_b32 v3, 2, v23")
    a("v_add_u32 v2, v2, v3")
    a("v_mul_u32_u24 v2, 320, v2")
    a("v_and_b32 v3, 3, v23")
    a("v_lshlrev_b32 v3, 3, v3")
    a("s_mul_i32 s45, s33, 160")
    a("s_add_u32 s45, s45, 24576")
    a("v_add3_u32 v2, v2, v3, s45")
    a("v_and_b32 v3, 1, v22")
    a("v_lshlrev_b32 v3, 5, v3")
    a("s_cmp_eq_u32 s33, 0")
    a("s_cselect_b32 s45, 1, -1")
    a("v_mul_lo_u32 v3, v3, s45")
    a("v_add_u32 v16, v2, v3")
    a("v_sub_u32 v17, v2, v3")
    for b in (1, 2):
        a(f"v_add_u32 v{16 + 2 * b}, {b * K1_STAGE}, v16")
        a(f"v_add_u32 v{17 + 2 * b}, {b * K1_STAGE}, v17")

    XF = (24, 36)
    WF = (48, 68)
    ACC = 88

    def reads(buf, sub, st):
        r = []
        for ti in range(3):
            r.append(f"ds_read_b128 {vr(XF[st] + 4 * ti, 4)}, v{10 + 2 * buf + sub} offset:{ti * 2048}")
        for ni in range(5):
            ad = 16 + 2 * buf + (ni & 1)
            off = ni * 32 + sub * 10240
            r.append(f"ds_read_b64_tr_b16 {vr(WF[st] + 4 * ni, 2)}, v{ad} offset:{off}")
            r.append(f"ds_read_b64_tr_b16 {vr(WF[st] + 4 * ni + 2, 2)}, v{ad} offset:{off + 1280}")
        return r

    def mfmas(st, vor, first):
        m = []
        for ni in range(5):
            for ti in range(3):
                d = ACC + 4 * (ni * 3 + ti)
                c = "0" if first else vr(d, 4)
                w = vr(WF[st] + 4 * ni, 4)
                x = vr(XF[st] + 4 * ti, 4)
                if vor:
                    m.append(f"v_mfma_f32_16x16x32_bf16 {vr(d, 4)}, {x}, {w}, {c}")
                else:
                    m.append(f"v_mfma_f32_16x16x32_bf16 {vr(d, 4)}, {w}, {x}, {c}")
        return m

    def phase(ms, rs, ds):
        rs = list(rs)
        ds = list(ds)
        for i, m in enumerate(ms):
            a(m)
            for _ in range(XP_RPM):
                if rs:
                    a(rs.pop(0))
            if ds and i in XP_DSL:
                for x in ds.pop(0):
                    a(x)

    def loop(vor):
        a(f"s_waitcnt vmcnt({12 + NPF})")
        a("s_barrier")
        prof(a, 1)
        for r in reads(0, 0, 0):
            a(r)
        pend = []
        for ks in range(10):
            buf = ks % 3
            a("s_waitcnt lgkmcnt(0)")
            phase(mfmas(0, vor, ks == 0), reads(buf, 1, 1), pend)
            pend = []
            nxt = []
            if ks < 9:
                a(f"s_waitcnt vmcnt({(6 + NPF if ks in (0, 1, 3) or (XP_SEN in (1, 2) and ks == XP_PKS + 1) else 6) if ks < 8 else 0}) lgkmcnt(0)")
                a("s_barrier")
                if ks == 2:
                    a("buffer_store_dwordx4 v[168:171], v164, s[68:71], 0 offen")
                    a("buffer_store_dwordx4 v[172:175], v165, s[68:71], 0 offen")
                if XP_SEN in (1, 2) and ks == XP_PKS:
                    k1_poison(a, 168, 164)
                prof(a, 2 + ks)
                nxt = reads((ks + 1) % 3, 0, 0)
            else:
                a("s_waitcnt lgkmcnt(0)")
            d = []
            if ks + 3 < 10:
                p = dma_pieces(buf)
                d = p[:3]
                pend = p[3:]
            phase(mfmas(1, vor, False), nxt, d)
        a("s_barrier")
        a("s_nop 7")
        a("s_nop 3")
        prof(a, 11)

    a("s_cmp_eq_u32 s27, 2")
    a("s_cbranch_scc1 K1_VLOOP")
    loop(False)
    a("s_mul_i32 s45, s32, 48")
    a("v_add_u32 v4, s45, v23")
    a("s_cmp_eq_u32 s27, 3")
    a("s_cbranch_scc1 K1_EPI_FFN")
    a("s_cmp_eq_u32 s27, 0")
    a(f"s_cselect_b32 s48, {f32bits(C_SCALE)}, 1.0")
    NO = 148
    a("v_mul_u32_u24 v4, 48, v4")
    a("s_mul_i32 s46, s33, 36864")
    a("v_add_u32 v4, s46, v4")
    for ni in range(5):
        a(f"v_add_u32 v2, {4 * ni}, v22")
        a("v_mul_u32_u24 v3, 13, v2")
        a("v_lshrrev_b32 v3, 6, v3")
        a("v_mul_u32_u24 v5, 5, v3")
        a(f"v_sub_u32 v{NO + 5 + ni}, v2, v5")
        a("v_mul_u32_u24 v3, 9216, v3")
        a(f"v_lshl_add_u32 v3, v{NO + 5 + ni}, 3, v3")
        a(f"v_add_u32 v{NO + ni}, v3, v4")
    a("v_mov_b32 v8, 0x3f803f80")
    a("v_mov_b32 v9, 0x00003f80")
    for ti in range(3):
        for ni in range(5):
            d = ACC + 4 * (ni * 3 + ti)
            for i in range(4):
                a(f"v_mul_f32 v{d + i}, s48, v{d + i}")
            a(f"v_cvt_pk_bf16_f32 v{d}, v{d}, v{d + 1}")
            a(f"v_cvt_pk_bf16_f32 v{d + 1}, v{d + 2}, v{d + 3}")
            a(f"ds_write_b64 v{NO + ni}, {vr(d, 2)} offset:{768 * ti}")
    for ni in range(1, 5):
        a(f"v_cmp_eq_u32 vcc, 4, v{NO + 5 + ni}")
        a("s_and_saveexec_b64 s[50:51], vcc")
        for ti in range(3):
            a(f"ds_write_b64 v{NO + ni}, v[8:9] offset:{768 * ti + 8}")
        a("s_mov_b64 exec, s[50:51]")
    a("s_mul_i32 s52, s26, 9216")
    a("s_and_b32 s46, s25, 3")
    a("s_lshl_b32 s46, s46, 3")
    a("s_add_u32 s46, s46, s26")
    a("s_sub_u32 s57, 2048, s30")
    a("s_min_u32 s57, s57, 192")
    a("s_mul_i32 s57, s57, 3")
    a("s_mov_b32 s56, 0")
    a("s_mov_b32 s58, 1000")
    a("s_cmp_eq_u32 s27, 0")
    a("s_cbranch_scc0 K1_CPK")
    a("s_mul_i32 s53, s46, 98304")
    a("s_mul_i32 s47, s30, 48")
    a("s_add_u32 s53, s53, s47")
    a("s_mov_b32 s54, 0")
    a("s_mov_b32 s55, 0")
    a("s_branch K1_COPY")
    a.label("K1_CPK")
    a(f"s_mul_i32 s53, s46, {HEAD_KV}")
    a("s_mul_i32 s47, s30, 90")
    a("s_add_u32 s53, s53, s47")
    a("s_mov_b32 s54, 683")
    a("s_mov_b32 s55, 1344")
    a("s_branch K1_COPY")
    a.label("K1_EPI_FFN")
    a("v_lshrrev_b32 v2, 2, v23")
    a("v_sub_u32 v2, 0, v2")
    a("v_and_b32 v2, 3, v2")
    a("v_and_b32 v3, 1, v22")
    a("v_lshlrev_b32 v3, 3, v3")
    a("v_lshl_add_u32 v3, v23, 6, v3")
    a("v_lshrrev_b32 v4, 1, v22")
    a("s_mul_i32 s46, s33, 10")
    for ni in range(5):
        a(f"s_add_u32 s47, s46, {2 * ni}")
        a("v_add_u32 v5, s47, v4")
        a("v_lshrrev_b32 v6, 2, v5")
        a("v_and_b32 v5, 3, v5")
        a("v_xor_b32 v5, v5, v2")
        a("v_lshl_add_u32 v6, v6, 12, v3")
        a(f"v_lshl_add_u32 v{148 + ni}, v5, 4, v6")
    for ti in range(3):
        a(f"s_add_u32 s46, s45, {16 * ti}")
        a("s_lshr_b32 s47, s46, 6")
        a("s_mul_i32 s47, s47, 20480")
        a("s_and_b32 s46, s46, 63")
        a("s_lshl_b32 s46, s46, 6")
        a("s_add_u32 s46, s46, s47")
        for ni in range(5):
            d = ACC + 4 * (ni * 3 + ti)
            for i in range(4):
                a(f"v_max_f32 v{d + i}, 0, v{d + i}")
            a(f"v_cvt_pk_bf16_f32 v{d}, v{d}, v{d + 1}")
            a(f"v_cvt_pk_bf16_f32 v{d + 1}, v{d + 2}, v{d + 3}")
            a(f"v_add_u32 v4, s46, v{148 + ni}")
            a(f"ds_write_b64 v4, {vr(d, 2)}")
    a("s_mul_i32 s52, s26, 2560")
    a("s_lshr_b32 s46, s30, 6")
    a("s_mul_i32 s46, s46, 54")
    a("s_lshr_b32 s47, s29, 5")
    a("s_add_u32 s46, s46, s47")
    a("s_lshl_b32 s53, s46, 12")
    a("s_add_u32 s53, s53, s52")
    a("s_mov_b32 s54, 410")
    a(f"s_mov_b32 s55, {221184 - 2560}")
    a(f"s_mov_b32 s56, {20480 - 2560}")
    a("s_sub_u32 s57, 2048, s30")
    a("s_min_u32 s57, s57, 192")
    a("s_lshr_b32 s57, s57, 6")
    a("s_mul_i32 s57, s57, 160")
    a("s_sub_u32 s58, 1728, s29")
    a("s_min_u32 s58, s58, 160")
    a("s_lshl_b32 s58, s58, 3")
    a("s_mul_i32 s47, s26, 160")
    a("s_sub_i32 s58, s58, s47")
    a("s_branch K1_COPY")
    a.label("K1_VLOOP")
    loop(True)
    a("s_mul_i32 s46, s33, 32256")
    for ni in range(5):
        a(f"v_add_u32 v2, {16 * ni}, v23")
        a("v_mul_u32_u24 v3, 205, v2")
        a("v_lshrrev_b32 v3, 12, v3")
        a("v_mul_u32_u24 v4, 20, v3")
        a(f"v_sub_u32 v{NO + 10 + ni}, v2, v4")
        a("v_mul_u32_u24 v3, 8064, v3")
        a(f"v_lshlrev_b32 v4, 6, v{NO + 10 + ni}")
        a(f"v_add3_u32 v{NO + ni}, v3, v4, s46")
        a(f"v_bfe_u32 v{NO + 5 + ni}, v{NO + 10 + ni}, 2, 2")
    a("v_mov_b32 v8, 0x3f803f80")
    a("v_mov_b32 v9, 0x3f803f80")
    a("s_mul_i32 s45, s32, 48")
    for ti in range(3):
        a(f"s_add_u32 s49, s45, {16 * ti}")
        a("v_lshlrev_b32 v2, 2, v22")
        a("v_add_u32 v2, s49, v2")
        a("v_lshrrev_b32 v3, 5, v2")
        a("v_mul_u32_u24 v3, 1344, v3")
        a("v_bfe_u32 v2, v2, 2, 3")
        a("v_bfe_u32 v4, v2, 1, 1")
        a("v_lshl_add_u32 v10, v4, 3, v3")
        a("v_lshrrev_b32 v4, 1, v2")
        a("v_and_b32 v4, 2, v4")
        a("v_and_b32 v2, 1, v2")
        a("v_or_b32 v11, v2, v4")
        for ni in range(5):
            d = ACC + 4 * (ni * 3 + ti)
            a(f"v_cvt_pk_bf16_f32 v{d}, v{d}, v{d + 1}")
            a(f"v_cvt_pk_bf16_f32 v{d + 1}, v{d + 2}, v{d + 3}")
            a(f"v_xor_b32 v6, v11, v{NO + 5 + ni}")
            a("v_lshlrev_b32 v6, 4, v6")
            a(f"v_add3_u32 v6, v6, v10, v{NO + ni}")
            a(f"ds_write_b64 v6, {vr(d, 2)}")
            if ni < 4:
                a("v_xor_b32 v7, 1, v11")
                a("v_lshlrev_b32 v7, 4, v7")
                a(f"v_add3_u32 v7, v7, v10, v{NO + ni}")
                a(f"v_cmp_eq_u32 vcc, 0, v{NO + 10 + ni}")
                a("s_and_saveexec_b64 s[50:51], vcc")
                a("ds_write_b64 v7, v[8:9] offset:1280")
                a("s_mov_b64 exec, s[50:51]")
    a("s_mul_i32 s52, s26, 8064")
    a("s_and_b32 s46, s25, 3")
    a("s_lshl_b32 s46, s46, 3")
    a("s_add_u32 s46, s46, s26")
    a(f"s_mul_i32 s53, s46, {HEAD_KV}")
    a("s_mul_i32 s47, s30, 90")
    a("s_add_u32 s53, s53, s47")
    a("s_add_u32 s53, s53, 1536")
    a("s_mov_b32 s54, 781")
    a("s_mov_b32 s55, 1536")
    a("s_mov_b32 s56, 0")
    a("s_sub_u32 s57, 2048, s30")
    a("s_min_u32 s57, s57, 192")
    a("s_lshr_b32 s57, s57, 5")
    a("s_mul_i32 s57, s57, 84")
    a("s_mov_b32 s58, 1000")
    a.label("K1_COPY")
    a("s_mov_b32 s59, 160")
    for it in range(9):
        ga = 24 + it
        la = 34 + it
        a(f"v_add_u32 v2, {64 * it}, v1")
        a("v_mul_lo_u32 v3, v2, s54")
        a("v_lshrrev_b32 v3, 16, v3")
        a("v_lshlrev_b32 v4, 4, v2")
        a("v_mul_lo_u32 v5, v3, s55")
        a(f"v_add3_u32 v{ga}, v4, v5, s53")
        a("v_mul_lo_u32 v5, v3, s56")
        a(f"v_add3_u32 v{la}, v4, v5, s52")
        a("v_mul_lo_u32 v5, v3, s59")
        a("v_sub_u32 v5, v2, v5")
        a("v_cmp_gt_u32 vcc, s57, v2")
        a("v_cmp_gt_i32 s[50:51], s58, v5")
        a("s_and_b64 vcc, vcc, s[50:51]")
        a("v_bfrev_b32 v5, 1")
        a(f"v_cndmask_b32 v{ga}, v5, v{ga}, vcc")
    a("s_waitcnt lgkmcnt(0)")
    a("s_barrier")
    for it in range(9):
        a(f"ds_read_b128 {vr(48 + 4 * it, 4)}, v{34 + it}")
    for it in range(9):
        a(f"s_waitcnt lgkmcnt({8 - it})")
        a(f"buffer_store_dwordx4 {vr(48 + 4 * it, 4)}, v{24 + it}, s[20:23], 0 offen sc1")
    a.label("K1_PEND")
    prof(a, 12)
    a.label("K1_END")
    a("s_endpgm")
    a.label("K1_PACK")
    a("s_load_dwordx2 s[4:5], s[0:1], 16")
    a("s_load_dwordx2 s[6:7], s[0:1], 72")
    a("s_sub_u32 s3, s3, 253")
    a("s_mul_i32 s3, s3, 17408")
    a("v_add_u32 v1, s3, v0")
    a("v_lshlrev_b32 v2, 4, v1")
    a("s_mov_b32 s20, 52429")
    a("s_mov_b32 s21, 102400")
    a("v_bfrev_b32 v3, 1")
    a("s_waitcnt lgkmcnt(0)")
    srd(a, 12, 4, 5, SZ_WO)
    srd_off(a, 16, 6, 7, WS_WO, SZ_WO)
    if XP_SEN in (1, 2):
        a("s_mov_b32 s10, s6")
        a("s_mov_b32 s11, s7")
        k1_poison(a, 4, 8)
    else:
        srd_off(a, 24, 6, 7, WS_CNT, 65536)
        a("v_lshlrev_b32 v4, 8, v1")
        a("v_mov_b32 v5, 0")
        a("buffer_store_dword v5, v4, s[24:27], 0 offen")
    for j in range(34):
        a(f"s_mov_b32 s22, {j * 8192}")
        a(f"buffer_load_dwordx4 {vr(24 + 4 * j, 4)}, v2, s[12:15], s22 offen")
    for j in range(34):
        a(f"v_add_u32 v4, {j * 512}, v1")
        a("v_mul_lo_u32 v5, v4, s20")
        a("v_lshrrev_b32 v5, 22, v5")
        a("v_mul_u32_u24 v6, 80, v5")
        a("v_sub_u32 v6, v4, v6")
        a("v_mul_u32_u24 v7, 6554, v6")
        a("v_lshrrev_b32 v7, 16, v7")
        a("v_mul_u32_u24 v8, 10, v7")
        a("v_sub_u32 v6, v6, v8")
        a("v_lshrrev_b32 v8, 1, v5")
        a("v_and_b32 v8, 4, v8")
        a("v_xor_b32 v5, v5, v8")
        a("v_mul_u32_u24 v5, 160, v5")
        a("v_mul_lo_u32 v7, v7, s21")
        a("v_lshl_add_u32 v5, v6, 4, v5")
        a("v_add_u32 v5, v5, v7")
        a("v_cmp_gt_u32 vcc, 51200, v4")
        a(f"v_cndmask_b32 v{16 + (j & 3)}, v3, v5, vcc")
        a("s_waitcnt vmcnt(33)")
        a(f"buffer_store_dwordx4 {vr(24 + 4 * j, 4)}, v{16 + (j & 3)}, s[16:19], 0 offen")
    a("s_endpgm")
    return a.text()


GS_SLOT = 9216


class GW:
    VA = 4
    VW = 8
    RA = 13
    RW = 14
    AF = 24
    WF = 40
    ACC = 60


def gw_setup(a, sR0, sC0B, strideA, sLds):
    a("v_lshrrev_b32 v22, 4, v1")
    a("v_and_b32 v23, 15, v1")
    a(f"v_lshlrev_b32 v{GW.VA}, 4, v1")
    a(f"v_add_u32 v{GW.VA + 1}, 4096, v{GW.VA}")
    a("v_lshrrev_b32 v2, 2, v23")
    a("v_sub_u32 v2, 0, v2")
    a("v_and_b32 v2, 3, v2")
    a("v_xor_b32 v2, v2, v22")
    a("v_lshlrev_b32 v2, 4, v2")
    a("v_lshl_add_u32 v2, v23, 6, v2")
    a(f"v_add_u32 v{GW.RA}, s{sLds}, v2")
    a("v_lshlrev_b32 v2, 3, v22")
    a("v_lshrrev_b32 v3, 2, v23")
    a("v_add_u32 v2, v2, v3")
    a("v_mul_u32_u24 v2, 160, v2")
    a("v_and_b32 v3, 3, v23")
    a("v_lshlrev_b32 v3, 3, v3")
    a("v_add_u32 v2, 4096, v2")
    a(f"v_add3_u32 v{GW.RW}, v2, v3, s{sLds}")


def gw_pieces(slot, srdA, srdW, sKA, sKW, sLds):
    g = []
    for i in range(4):
        g.append(([f"s_add_u32 m0, s{sLds}, {slot * GS_SLOT}", "s_nop 0"] if i == 0 else []) +
                 [f"buffer_load_dwordx4 v{GW.VA}, {sr(srdA, 4)}, s{sKA} offen offset:{1024 * i} lds"])
    for i in range(4):
        g.append(([f"s_add_u32 m0, s{sLds}, {slot * GS_SLOT + 4096}", "s_nop 0"] if i == 0 else []) +
                 [f"buffer_load_dwordx4 v{GW.VA}, {sr(srdW, 4)}, s{sKW} offen offset:{1024 * i} lds"])
    g.append([f"s_add_u32 m0, s{sLds}, {slot * GS_SLOT + 8192}", "s_nop 0",
              f"buffer_load_dwordx4 v{GW.VA + 1}, {sr(srdW, 4)}, s{sKW} offen lds",
              f"s_add_u32 s{sKA}, s{sKA}, 4096", f"s_add_u32 s{sKW}, s{sKW}, 5120"])
    return g


def gw_issue(a, slot, srdA, srdW, sKA, sKW, sLds):
    for p in gw_pieces(slot, srdA, srdW, sKA, sKW, sLds):
        for x in p:
            a(x)


def gw_compute_pipe(a, slot, first, pieces):
    for t in range(4):
        a(f"ds_read_b128 {vr(GW.AF + 4 * t, 4)}, v{GW.RA} offset:{slot * GS_SLOT + t * 1024}")
    for n in range(5):
        off = slot * GS_SLOT + n * 32
        a(f"ds_read_b64_tr_b16 {vr(GW.WF + 4 * n, 2)}, v{GW.RW} offset:{off}")
        a(f"ds_read_b64_tr_b16 {vr(GW.WF + 4 * n + 2, 2)}, v{GW.RW} offset:{off + 640}")
    a("s_waitcnt lgkmcnt(0)")
    pieces = list(pieces)
    i = 0
    for n in range(5):
        for t in range(4):
            d = GW.ACC + 4 * (n * 4 + t)
            c = "0" if first else vr(d, 4)
            a(f"v_mfma_f32_16x16x32_bf16 {vr(d, 4)}, {vr(GW.WF + 4 * n, 4)}, {vr(GW.AF + 4 * t, 4)}, {c}")
            i += 1
            if pieces and i % XP_FB == 0:
                for x in pieces.pop(0):
                    a(x)
    for p in pieces:
        for x in p:
            a(x)


def gw_compute_jit(a, slot, first):
    for t in range(4):
        a(f"ds_read_b128 {vr(GW.AF + 4 * t, 4)}, v{GW.RA} offset:{slot * GS_SLOT + t * 1024}")
    for n in range(5):
        off = slot * GS_SLOT + n * 32
        a(f"ds_read_b64_tr_b16 {vr(GW.WF + 4 * n, 2)}, v{GW.RW} offset:{off}")
        a(f"ds_read_b64_tr_b16 {vr(GW.WF + 4 * n + 2, 2)}, v{GW.RW} offset:{off + 640}")
        a("s_waitcnt lgkmcnt(0)")
        for t in range(4):
            d = GW.ACC + 4 * (n * 4 + t)
            c = "0" if first else vr(d, 4)
            a(f"v_mfma_f32_16x16x32_bf16 {vr(d, 4)}, {vr(GW.WF + 4 * n, 4)}, {vr(GW.AF + 4 * t, 4)}, {c}")


def gw_compute(a, slot, first):
    if XP_FJ:
        return gw_compute_jit(a, slot, first)
    for t in range(4):
        a(f"ds_read_b128 {vr(GW.AF + 4 * t, 4)}, v{GW.RA} offset:{slot * GS_SLOT + t * 1024}")
    for n in range(5):
        off = slot * GS_SLOT + n * 32
        a(f"ds_read_b64_tr_b16 {vr(GW.WF + 4 * n, 2)}, v{GW.RW} offset:{off}")
        a(f"ds_read_b64_tr_b16 {vr(GW.WF + 4 * n + 2, 2)}, v{GW.RW} offset:{off + 640}")
    a("s_waitcnt lgkmcnt(0)")
    for n in range(5):
        for t in range(4):
            d = GW.ACC + 4 * (n * 4 + t)
            c = "0" if first else vr(d, 4)
            a(f"v_mfma_f32_16x16x32_bf16 {vr(d, 4)}, {vr(GW.WF + 4 * n, 4)}, {vr(GW.AF + 4 * t, 4)}, {c}")


def gw_write_partials(a, sRed):
    a(f"v_add_u32 v2, s{sRed}, v{GW.VA}")
    for n in range(5):
        for t in range(4):
            d = GW.ACC + 4 * (n * 4 + t)
            a(f"ds_write_b128 v2, {vr(d, 4)} offset:{(n * 4 + t) * 1024}")


def gw_read_sum(a, sW4, redbase):
    a(f"s_lshl_b32 s60, s{sW4}, 10")
    a(f"s_add_u32 s60, s60, {redbase}")
    a(f"v_add_u32 v2, s60, v{GW.VA}")
    a(f"v_add_u32 v3, {2 * 20480}, v2")
    R = 24
    for src in range(4):
        for j in range(5):
            a(f"ds_read_b128 {vr(R + 20 * src + 4 * j, 4)}, v{2 + (src >> 1)} offset:{(src & 1) * 20480 + j * 4096}")
    a("s_waitcnt lgkmcnt(10)")
    for e in range(20):
        a(f"v_add_f32 v{R + e}, v{R + e}, v{R + 20 + e}")
    a("s_waitcnt lgkmcnt(0)")
    for e in range(20):
        a(f"v_add_f32 v{R + 40 + e}, v{R + 40 + e}, v{R + 60 + e}")
    for e in range(20):
        a(f"v_add_f32 v{R + e}, v{R + e}, v{R + 40 + e}")


def tile_map(a, sRt, sCt):
    if XP_QX:
        a("s_and_b32 s60, s2, 7")
        a("s_lshr_b32 s61, s2, 3")
        a("s_lshl_b32 s62, s60, 2")
        a("s_lshr_b32 s63, s61, 3")
        a(f"s_add_u32 s{sRt}, s62, s63")
        a(f"s_and_b32 s{sCt}, s61, 7")
        return
    if XP_FUSE:
        a("s_lshr_b32 s60, s2, 5")
        a("s_lshl_b32 s60, s60, 2")
        a("s_bfe_u32 s61, s2, 0x20001")
        a(f"s_add_u32 s{sRt}, s60, s61")
        a("s_and_b32 s60, s2, 1")
        a("s_lshl_b32 s60, s60, 2")
        a("s_bfe_u32 s61, s2, 0x20003")
        a(f"s_add_u32 s{sCt}, s60, s61")
        return
    a("s_and_b32 s60, s2, 7")
    a("s_lshr_b32 s61, s2, 3")
    a("s_lshr_b32 s62, s60, 1")
    a("s_lshl_b32 s62, s62, 3")
    a("s_lshr_b32 s63, s61, 2")
    a(f"s_add_u32 s{sRt}, s62, s63")
    a("s_and_b32 s62, s60, 1")
    a("s_lshl_b32 s62, s62, 2")
    a("s_and_b32 s63, s61, 3")
    a(f"s_add_u32 s{sCt}, s62, s63")


K2_BUF = 23552 if XP_FUSE else 24576
K2_FFN = 3 * K2_BUF
K2_B = K2_FFN + 4 * 20480
K2_FLAG = K2_B + (10240 if XP_FUSE else 0)
K2_LDS = K2_FLAG + 64
K2_W4 = K2_FFN - 20480
K2_XCH = 0
K2_OST = 24576


def gate_compute(a, XV, GV, srow, srdG):
    a("v_mov_b32 v2, 0")
    for j in range(5):
        xv = XV + j
        gv = GV + j
        a(f"v_lshlrev_b32 v3, 16, v{xv}")
        a(f"v_and_b32 v19, 0xffff0000, v{xv}")
        a(f"v_lshlrev_b32 v127, 16, v{gv}")
        a(f"v_and_b32 v128, 0xffff0000, v{gv}")
        a("v_mul_f32 v3, v3, v127")
        a("v_mul_f32 v19, v19, v128")
        a("v_cvt_pk_bf16_f32 v3, v3, v19")
        a("v_lshlrev_b32 v19, 16, v3")
        a("v_and_b32 v3, 0xffff0000, v3")
        a("v_add_f32 v2, v2, v19")
        a("v_add_f32 v2, v2, v3")
    for sh in (1, 2, 4, 8):
        a("s_nop 1")
        a(f"v_add_f32_dpp v2, v2, v2 row_shr:{sh} row_mask:0xf bank_mask:0xf")
    a("s_nop 1")
    a("v_add_f32_dpp v2, v2, v2 row_bcast:15 row_mask:0xa bank_mask:0xf")
    a("s_nop 1")
    a("v_add_f32_dpp v2, v2, v2 row_bcast:31 row_mask:0xc bank_mask:0xf")
    a("s_nop 1")
    a("v_cvt_pk_bf16_f32 v2, v2, v2")
    a("v_lshlrev_b32 v2, 16, v2")
    a(f"v_mul_f32 v2, {f32bits(-LOG2E)}, v2")
    a("v_exp_f32 v2, v2")
    a("s_nop 0")
    a("v_add_f32 v2, 1.0, v2")
    a("v_rcp_f32 v2, v2")
    a("s_nop 0")
    a("v_cvt_pk_bf16_f32 v2, v2, v2")
    a("v_lshlrev_b32 v2, 16, v2")
    a(f"s_lshl_b32 s49, s{srow}, 2")
    a("v_mov_b32 v3, 0")
    a("v_cmp_eq_u32 vcc, 63, v1")
    a("s_and_saveexec_b64 s[50:51], vcc")
    a(f"buffer_store_dword v2, v3, {sr(srdG, 4)}, s49 offen")
    a("s_mov_b64 exec, s[50:51]")


def gate_compute2(a, XA, XB, GV, srow, srdG):
    GU = 24
    a("v_mov_b32 v2, 0")
    a("v_mov_b32 v3, 0")
    a("v_mov_b32 v19, 0x3f803f80")
    for j in range(5):
        a(f"v_lshlrev_b32 v{GU + 2 * j}, 16, v{GV + j}")
        a(f"v_and_b32 v{GU + 2 * j + 1}, 0xffff0000, v{GV + j}")
    for X, acc in ((XA, 2), (XB, 3)):
        for j in range(5):
            a(f"v_lshlrev_b32 v36, 16, v{X + j}")
            a(f"v_and_b32 v37, 0xffff0000, v{X + j}")
            a(f"v_pk_mul_f32 v[36:37], v[36:37], v[{GU + 2 * j}:{GU + 2 * j + 1}]")
            a("v_cvt_pk_bf16_f32 v36, v36, v37")
            a(f"v_dot2_f32_bf16 v{acc}, v36, v19, v{acc}")
    for sh in (1, 2, 4, 8):
        a("s_nop 2" if sh == 1 else "s_nop 0")
        a(f"v_add_f32_dpp v2, v2, v2 row_shr:{sh} row_mask:0xf bank_mask:0xf")
        a(f"v_add_f32_dpp v3, v3, v3 row_shr:{sh} row_mask:0xf bank_mask:0xf")
    a("s_nop 0")
    a("v_add_f32_dpp v2, v2, v2 row_bcast:15 row_mask:0xa bank_mask:0xf")
    a("v_add_f32_dpp v3, v3, v3 row_bcast:15 row_mask:0xa bank_mask:0xf")
    a("s_nop 0")
    a("v_add_f32_dpp v2, v2, v2 row_bcast:31 row_mask:0xc bank_mask:0xf")
    a("v_add_f32_dpp v3, v3, v3 row_bcast:31 row_mask:0xc bank_mask:0xf")
    a("s_nop 1")
    a("v_cvt_pk_bf16_f32 v2, v2, v3")
    a("v_and_b32 v3, 0xffff0000, v2")
    a("v_lshlrev_b32 v2, 16, v2")
    a(f"v_mul_f32 v2, {f32bits(-LOG2E)}, v2")
    a(f"v_mul_f32 v3, {f32bits(-LOG2E)}, v3")
    a("v_exp_f32 v2, v2")
    a("v_exp_f32 v3, v3")
    a("s_nop 0")
    a("v_add_f32 v2, 1.0, v2")
    a("v_add_f32 v3, 1.0, v3")
    a("v_rcp_f32 v2, v2")
    a("v_rcp_f32 v3, v3")
    a("s_nop 0")
    a("v_cvt_pk_bf16_f32 v2, v2, v3")
    a("v_and_b32 v3, 0xffff0000, v2")
    a("v_lshlrev_b32 v2, 16, v2")
    a(f"s_lshl_b32 s49, s{srow}, 2")
    a("v_mov_b32 v19, 0")
    a("v_cmp_eq_u32 vcc, 63, v1")
    a("s_and_saveexec_b64 s[50:51], vcc")
    a(f"buffer_store_dwordx2 v[2:3], v19, {sr(srdG, 4)}, s49 offen" + (" sc1" if XP_FUSE else ""))
    a("s_mov_b64 exec, s[50:51]")


def k2_tail(a):
    prof(a, 16)
    a("s_lshr_b32 s40, s2, 5")
    a("s_lshl_b32 s40, s40, 13")
    srd_off(a, 24, 8, 9, WS_CNT, 65536)
    srd(a, 16, 4, 5, SZ_OUT)
    srd_off(a, 12, 8, 9, WS_WO, SZ_WO)
    a("v_mov_b32 v4, 0")
    a("s_cmp_lg_u32 s38, 0")
    a("s_cbranch_scc1 K2_T1")
    a("v_mov_b32 v2, 1")
    a("v_lshlrev_b32 v3, 8, v1")
    a("s_mov_b32 exec_hi, 0")
    a("buffer_atomic_add v2, v3, s[24:27], s40 offen")
    a("s_mov_b32 exec_hi, -1")
    a.label("K2_T1")
    a("s_lshl_b32 s40, s2, 8")
    tile_map(a, 36, 37)
    a("v_lshrrev_b32 v22, 4, v1")
    a("v_and_b32 v23, 15, v1")
    a("s_lshl_b32 s39, s36, 6")
    a("s_and_b32 s49, s38, 3")
    a("s_lshr_b32 s50, s38, 2")
    a("s_add_u32 s43, s38, 8")
    a("s_add_u32 s44, s38, 16")
    a("s_cmp_lt_u32 s38, 4")
    a("s_cselect_b32 s44, s44, s43")
    a("s_mul_i32 s55, s37, 102400")
    a(f"s_add_u32 s55, s55, {4 * 20480}")
    for sp in (38, 43, 44):
        a(f"s_lshl_b32 s52, s{sp}, 10")
        a(f"s_add_u32 m0, s52, {K2_W4}")
        a("s_add_u32 s52, s52, s55")
        a("buffer_load_dwordx4 v16, s[12:15], s52 offen lds")
    a("s_mul_i32 s41, s37, 160")
    a("s_lshl_b32 s42, s36, 2")
    a("s_add_u32 s42, s42, s49")
    a("s_mul_i32 s42, s42, 20480")
    a("s_lshl_b32 s43, s50, 11")
    a("s_add_u32 s42, s42, s43")
    a("s_lshl_b32 s43, s49, 4")
    a("v_add_u32 v2, s43, v23")
    a("v_add_u32 v3, s39, v2")
    a("v_lshlrev_b32 v5, 2, v3")
    a("v_mul_u32_u24 v2, 160, v2")
    a("v_lshl_add_u32 v2, v22, 3, v2")
    a("s_mul_i32 s43, s50, 96")
    a(f"s_add_u32 s43, s43, {K2_OST}")
    a("v_add_u32 v17, s43, v2")
    a("s_mul_i32 s43, s49, 2560")
    a("s_mul_i32 s44, s50, 1536")
    a("s_add_u32 s43, s43, s44")
    a(f"s_add_u32 s43, s43, {K2_B}")
    a("v_lshlrev_b32 v2, 3, v1")
    a("v_add_u32 v6, s43, v2")
    for j in range(2):
        a("s_mul_i32 s43, s38, 80")
        a(f"s_add_u32 s43, s43, {64 * j}")
        a("v_add_u32 v2, s43, v1")
        a("v_mul_u32_u24 v3, 6554, v2")
        a("v_lshrrev_b32 v3, 16, v3")
        a("v_mul_u32_u24 v15, 10, v3")
        a("v_sub_u32 v15, v2, v15")
        a("v_lshlrev_b32 v15, 4, v15")
        a("v_add_u32 v3, s39, v3")
        a("v_mul_u32_u24 v3, 1280, v3")
        a(f"v_add3_u32 v{12 + j}, v3, v15, s41")
        a("v_lshlrev_b32 v2, 4, v2")
        a(f"v_add_u32 v{8 + j}, {K2_OST}, v2")
    RW = 28
    a("s_mul_i32 s43, s50, 10240")
    a(f"s_add_u32 s43, s43, {K2_W4}")
    wread_addr(a, RW, RW + 1, 43)
    a(f"v_add_u32 v{RW + 2}, {3 * 20480}, v{RW}")
    a(f"v_add_u32 v{RW + 3}, {3 * 20480}, v{RW + 1}")
    a("s_mul_i32 s43, s49, 5120")
    a(f"s_add_u32 s43, s43, {K2_XCH}")
    a("v_add_u32 v21, s43, v16")
    AF = 32
    WF = (72, 92)
    ACC = 112
    BV = 132

    def reads(t):
        st, i = t >> 1, t & 1
        pos = (st + 1) % 5
        hi = 1 if pos >= 3 else 0
        so = (pos - 3 * hi) * 20480
        r = []
        for n in range(5):
            off = so + i * 5120 + n * 32
            r.append(f"ds_read_b64_tr_b16 {vr(WF[i] + 4 * n, 2)}, v{RW + 2 * hi} offset:{off}")
            r.append(f"ds_read_b64_tr_b16 {vr(WF[i] + 4 * n + 2, 2)}, v{RW + 2 * hi + 1} offset:{off}")
        return r

    def mf(t):
        for n in range(5):
            d = ACC + 4 * n
            c = "0" if t == 0 else vr(d, 4)
            a(f"v_mfma_f32_16x16x32_bf16 {vr(d, 4)}, {vr(WF[t & 1] + 4 * n, 4)}, {vr(AF + 4 * t, 4)}, {c}")

    for r in reads(0) + reads(1):
        a(r)
    for n in range(3):
        a(f"ds_read_b64 {vr(BV + 2 * n, 2)}, v6 offset:{512 * n}")
    a("s_cmp_lg_u32 s38, 0")
    a("s_cbranch_scc1 K2_T3")
    a("s_mov_b32 s43, 0")
    a.label("K2_T2")
    a("buffer_load_dword v2, v4, s[24:27], s40 offen sc1")
    a("s_add_u32 s43, s43, 1")
    a("s_waitcnt vmcnt(0)")
    a("v_readfirstlane_b32 s44, v2")
    a("s_cmp_ge_u32 s44, 32")
    a("s_cbranch_scc1 K2_T3")
    a("s_sleep 2")
    a("s_cmp_lt_u32 s43, 0x100000")
    a("s_cbranch_scc1 K2_T2")
    a.label("K2_T3")
    a("s_waitcnt vmcnt(0)")
    a("s_barrier")
    prof(a, 17)
    for t in range(10):
        st, i = t >> 1, t & 1
        if i == 0 and st:
            a("s_add_u32 s42, s42, 4096")
        a(f"buffer_load_dwordx4 {vr(AF + 4 * t, 4)}, v16, s[20:23], s42 offen offset:{1024 * i} sc1")
    a("buffer_load_dword v18, v5, s[32:35], 0 offen sc1")
    for t in range(10):
        a(f"s_waitcnt vmcnt({10 - t}) lgkmcnt({10 if 1 <= t < 9 else 0})")
        mf(t)
        if t + 2 < 10:
            for r in reads(t + 2):
                a(r)
    prof(a, 18)
    a("s_waitcnt vmcnt(0)")
    a("v_sub_f32 v19, 1.0, v18")
    a("v_cvt_pk_bf16_f32 v19, v19, v19")
    a("v_lshlrev_b32 v19, 16, v19")
    a("s_nop 7")
    XR = 72
    a("s_cmp_eq_u32 s50, 0")
    a("s_cbranch_scc0 K2_X1")
    for n in (3, 4):
        a(f"ds_write_b128 v21, {vr(ACC + 4 * n, 4)} offset:{1024 * n}")
    a("s_waitcnt lgkmcnt(0)")
    a("s_barrier")
    for n in range(3):
        a(f"ds_read_b128 {vr(XR + 4 * n, 4)}, v21 offset:{1024 * n}")
    a("s_branch K2_FIN")
    a.label("K2_X1")
    for n in range(3):
        a(f"ds_write_b128 v21, {vr(ACC + 4 * n, 4)} offset:{1024 * n}")
    a("s_waitcnt lgkmcnt(0)")
    a("s_barrier")
    for n in (3, 4):
        a(f"ds_read_b128 {vr(XR + 4 * (n - 3), 4)}, v21 offset:{1024 * n}")
    for i in range(8):
        a(f"v_mov_b32 v{ACC + i}, v{ACC + 12 + i}")
    a.label("K2_FIN")
    a("s_waitcnt lgkmcnt(0)")
    for n in range(3):
        if n == 2:
            a("s_cmp_eq_u32 s50, 0")
            a("s_cbranch_scc0 K2_CP")
        for i in range(4):
            a(f"v_add_f32 v{ACC + 4 * n + i}, v{ACC + 4 * n + i}, v{XR + 4 * n + i}")
        for h in range(2):
            e = ACC + 4 * n + 2 * h
            bp = BV + 2 * n + h
            a(f"v_cvt_pk_bf16_f32 v24, v{e}, v{e + 1}")
            a("v_lshlrev_b32 v4, 16, v24")
            a("v_and_b32 v5, 0xffff0000, v24")
            a(f"v_lshlrev_b32 v6, 16, v{bp}")
            a(f"v_and_b32 v7, 0xffff0000, v{bp}")
            a("v_mul_f32 v4, v18, v4")
            a("v_mul_f32 v5, v18, v5")
            a("v_mul_f32 v6, v19, v6")
            a("v_mul_f32 v7, v19, v7")
            a("v_cvt_pk_bf16_f32 v24, v4, v5")
            a("v_cvt_pk_bf16_f32 v20, v6, v7")
            a("v_lshlrev_b32 v4, 16, v24")
            a("v_and_b32 v5, 0xffff0000, v24")
            a("v_lshlrev_b32 v6, 16, v20")
            a("v_and_b32 v7, 0xffff0000, v20")
            a("v_add_f32 v4, v4, v6")
            a("v_add_f32 v5, v5, v7")
            a(f"v_cvt_pk_bf16_f32 v{bp}, v4, v5")
        a(f"ds_write_b64 v17, {vr(BV + 2 * n, 2)} offset:{32 * n}")
    a.label("K2_CP")
    a("s_waitcnt lgkmcnt(0)")
    a("s_barrier")
    a("ds_read_b128 v[32:35], v8")
    a("ds_read_b128 v[36:39], v9")
    a("s_waitcnt lgkmcnt(1)")
    a("buffer_store_dwordx4 v[32:35], v12, s[16:19], 0 offen")
    a("v_cmp_gt_u32 vcc, 16, v1")
    a("s_and_saveexec_b64 s[50:51], vcc")
    a("s_waitcnt lgkmcnt(0)")
    a("buffer_store_dwordx4 v[36:39], v13, s[16:19], 0 offen")
    a("s_mov_b64 exec, s[50:51]")


T_OST, T_G, T_B, T_RW, T_XCH, T_OUT = 140, 141, 142, 143, 147, 148
T_GV, T_GM = 150, 151
T_FS, T_FL = 152, 153


def k2_tail_setup(a):
    a("s_lshr_b32 s66, s2, 5")
    a("s_lshl_b32 s66, s66, 2")
    a("s_bfe_u32 s67, s2, 0x20001")
    a("s_add_u32 s66, s66, s67")
    a("s_and_b32 s67, s2, 1")
    a("s_lshl_b32 s67, s67, 2")
    a("s_bfe_u32 s68, s2, 0x20003")
    a("s_add_u32 s67, s67, s68")
    a("s_and_b32 s58, s38, 3")
    a("s_lshr_b32 s57, s38, 2")
    a("s_mov_b32 s59, 0")
    a("s_add_u32 s61, s38, 8")
    a("s_add_u32 s62, s38, 16")
    a("s_cmp_lt_u32 s38, 4")
    a("s_cselect_b32 s62, s62, s61")
    a("s_mov_b32 s60, s38")
    a("s_mul_i32 s68, s67, 102400")
    a(f"s_add_u32 s68, s68, {4 * 20480}")
    for i in range(3):
        a(f"s_lshl_b32 s{60 + i}, s{60 + i}, 10")
        a(f"s_add_u32 s{63 + i}, s{60 + i}, {K2_W4}")
        a(f"s_add_u32 s{60 + i}, s{60 + i}, s68")
    a("s_lshl_b32 s56, s66, 2")
    a("s_add_u32 s56, s56, s58")
    a("s_mul_i32 s56, s56, 20480")
    a("s_lshl_b32 s68, s57, 11")
    a("s_add_u32 s70, s56, s68")
    for i in range(1, 5):
        a(f"s_add_u32 s{70 + i}, s70, {4096 * i}")
    a("v_lshrrev_b32 v118, 4, v1")
    a("v_and_b32 v119, 15, v1")
    a("s_lshl_b32 s68, s66, 6")
    a("s_lshl_b32 s69, s58, 4")
    a("s_add_u32 s68, s68, s69")
    a("v_add_u32 v3, s68, v119")
    a(f"v_lshlrev_b32 v{T_G}, 2, v3")
    a("v_mul_u32_u24 v3, 1280, v3")
    a("s_mul_i32 s68, s67, 160")
    a("s_mul_i32 s69, s57, 96")
    a("s_add_u32 s68, s68, s69")
    a("v_add_u32 v3, s68, v3")
    a(f"v_lshl_add_u32 v{T_OUT + 1}, v118, 3, v3")
    a("v_and_b32 v2, 1, v118")
    a("v_lshl_add_u32 v3, v2, 5, v3")
    a("v_lshrrev_b32 v2, 1, v118")
    a(f"v_lshl_add_u32 v{T_OUT}, v2, 4, v3")
    a("s_mul_i32 s68, s58, 2560")
    a("s_mul_i32 s69, s57, 1536")
    a("s_add_u32 s68, s68, s69")
    a(f"s_add_u32 s68, s68, {K2_B}")
    a("v_lshlrev_b32 v2, 3, v1")
    a(f"v_add_u32 v{T_B}, s68, v2")
    a("s_mul_i32 s68, s57, 10240")
    a(f"s_add_u32 s68, s68, {K2_W4}")
    wread_addr(a, T_RW, T_RW + 1, 68, 118, 119)
    a(f"v_add_u32 v{T_RW + 2}, {3 * 20480}, v{T_RW}")
    a(f"v_add_u32 v{T_RW + 3}, {3 * 20480}, v{T_RW + 1}")
    a("s_mul_i32 s68, s58, 5120")
    a(f"s_add_u32 s68, s68, {K2_XCH}")
    a(f"v_add_u32 v{T_XCH}, s68, v16")
    a("s_lshl_b32 s68, s37, 3")
    a("s_add_u32 s68, s68, s38")
    a("s_lshl_b32 s68, s68, 10")
    a("s_lshl_b32 s69, s36, 2")
    a("s_add_u32 s68, s68, s69")
    a(f"s_add_u32 s68, s68, {WS_F - WS_G}")
    a("v_lshlrev_b32 v2, 7, v1")
    a(f"v_add_u32 v{T_FS}, s68, v2")
    a("s_lshl_b32 s68, s66, 1")
    a("s_lshr_b32 s69, s58, 1")
    a("s_add_u32 s68, s68, s69")
    a("s_lshl_b32 s68, s68, 3")
    a("s_add_u32 s68, s68, s67")
    a("s_lshl_b32 s68, s68, 7")
    a(f"s_add_u32 s68, s68, {WS_F - WS_G}")
    a(f"v_lshl_add_u32 v{T_FL}, v17, 2, s68")
    if XP_SEN == 3:
        srd_off(a, 16, 8, 9, WS_CNT, 65536)
        a("s_lshl_b32 s75, s37, 13")
        a("s_lshl_b32 s76, s2, 8")
        a(f"v_mov_b32 v{T_FS}, 1")
        a(f"v_lshlrev_b32 v{T_FL}, 8, v1")
    a("s_lshl_b32 s68, s37, 8")
    a("s_lshl_b32 s69, s38, 5")
    a("s_add_u32 s68, s68, s69")
    a("v_add_u32 v2, s68, v17")
    a("v_lshrrev_b32 v3, 4, v2")
    a("v_mul_u32_u24 v3, 20480, v3")
    a("v_and_b32 v2, 15, v2")
    a("v_lshl_add_u32 v2, v2, 4, v3")
    a("s_mul_i32 s68, s36, 20")
    a("v_lshl_add_u32 v3, v18, 2, s68")
    a("v_lshrrev_b32 v19, 3, v3")
    a("v_lshl_add_u32 v2, v19, 8, v2")
    a("v_and_b32 v3, 4, v3")
    a(f"v_lshl_add_u32 v{T_OST}, v3, 1, v2")


T_AF = 68
T_WF = (28, 48)
T_ACC = 108
T_T2 = 128


def k2_tail_loads(a):
    a(f"buffer_load_dword v{T_GV}, v{T_G}, s[32:35], 0 offen sc1")
    for t in range(10):
        a(t2_load(t))


def t2_load(t):
    st, i = t >> 1, t & 1
    return f"buffer_load_dwordx4 {vr(T_AF + 4 * t, 4)}, v16, s[20:23], s{70 + st} offen offset:{1024 * i} sc1"


def k2_tail2(a):
    AF, WF, ACC, T2 = T_AF, T_WF, T_ACC, T_T2
    BV = 152 + 6
    prof(a, 16)

    def reads(t):
        st, i = t >> 1, t & 1
        pos = (st + 1) % 5
        hi = 1 if pos >= 3 else 0
        so = (pos - 3 * hi) * 20480
        r = []
        for n in range(5):
            off = so + i * 5120 + n * 32
            r.append(f"ds_read_b64_tr_b16 {vr(WF[i] + 4 * n, 2)}, v{T_RW + 2 * hi} offset:{off}")
            r.append(f"ds_read_b64_tr_b16 {vr(WF[i] + 4 * n + 2, 2)}, v{T_RW + 2 * hi + 1} offset:{off}")
        return r

    def mf(t):
        for n in range(5):
            d = ACC + 4 * n
            a(f"v_mfma_f32_16x16x32_bf16 {vr(d, 4)}, {vr(WF[t & 1] + 4 * n, 4)}, {vr(AF + 4 * t, 4)}, {vr(d, 4)}")

    def check(t):
        r = AF + 4 * t
        a(f"v_max3_u32 v2, v{r}, v{r + 1}, v{r + 2}")
        a(f"v_max_u32 v2, v2, v{r + 3}")
        a("v_cmp_eq_u32 vcc, -1, v2")
        a("s_nop 4")

    if XP_SEN == 3:
        a("s_cmp_lg_u32 s38, 0")
        a("s_cbranch_scc1 K2_T1")
        a("s_mov_b32 exec_hi, 0")
        a(f"buffer_atomic_add v{T_FS}, v{T_FL}, s[16:19], s75 offen")
        a("s_mov_b32 exec_hi, -1")
        a.label("K2_T1")
    for n in range(3):
        a(f"ds_read_b64 {vr(BV + 2 * n, 2)}, v{T_B} offset:{512 * n}")
    for r in reads(0) + reads(1):
        a(r)
    for i in range(20):
        a(f"v_mov_b32 v{ACC + i}, 0")
    a("s_mov_b32 s40, 0")
    a("s_mov_b32 s41, 0")
    if XP_SEN == 3:
        a("s_cmp_lg_u32 s38, 0")
        a("s_cbranch_scc1 K2_T3")
        a("v_mov_b32 v4, 0")
        a.label("K2_T2")
        a("buffer_load_dword v2, v4, s[16:19], s76 offen sc1")
        a("s_add_u32 s41, s41, 1")
        a("s_waitcnt vmcnt(0)")
        a("v_readfirstlane_b32 s44, v2")
        a("s_cmp_ge_u32 s44, 32")
        a("s_cbranch_scc1 K2_T3")
        a(f"s_sleep {XP_SLP}")
        a("s_cmp_lt_u32 s41, 0x100000")
        a("s_cbranch_scc1 K2_T2")
        a.label("K2_T3")
        a("s_barrier")
        a(f"buffer_load_dword v{T_GV}, v{T_G}, s[32:35], 0 offen sc1")
        for t in range(10):
            a(t2_load(t))
        prof(a, 17)
        a("s_waitcnt vmcnt(10)")
        a("s_branch K2_GOK")
    a("s_waitcnt vmcnt(0)")
    a.label("K2_GCHK")
    a(f"v_cmp_eq_u32 vcc, -1, v{T_GV}")
    a("s_nop 4")
    a("s_cbranch_vccz K2_GOK")
    a(f"buffer_load_dword v{T_GV}, v{T_G}, s[32:35], 0 offen sc1")
    a("s_add_u32 s41, s41, 1")
    a("s_cmp_lt_u32 s41, 0x100000")
    a("s_waitcnt vmcnt(0)")
    a("s_cbranch_scc1 K2_GCHK")
    a.label("K2_GOK")
    a(f"v_sub_f32 v{T_GM}, 1.0, v{T_GV}")
    a(f"v_cvt_pk_bf16_f32 v{T_GM}, v{T_GM}, v{T_GM}")
    a(f"v_lshlrev_b32 v{T_GM}, 16, v{T_GM}")
    a("s_waitcnt lgkmcnt(15)")
    for p in range(6):
        a(f"v_lshlrev_b32 v4, 16, v{BV + p}")
        a(f"v_and_b32 v5, 0xffff0000, v{BV + p}")
        a(f"v_mul_f32 v4, v{T_GM}, v4")
        a(f"v_mul_f32 v5, v{T_GM}, v5")
        a("v_cvt_pk_bf16_f32 v4, v4, v5")
        a(f"v_lshlrev_b32 v{T2 + 2 * p}, 16, v4")
        a(f"v_and_b32 v{T2 + 2 * p + 1}, 0xffff0000, v4")
    if XP_SEN == 3:
        a("s_branch K2_GO")
    a.label("K2_POLL")
    a(f"buffer_load_dword v2, v{T_FL}, s[32:35], 0 offen sc1")
    a("s_add_u32 s41, s41, 1")
    a("s_waitcnt vmcnt(0)")
    a("v_cmp_eq_u32 vcc, -1, v2")
    a("s_nop 4")
    a("s_cbranch_vccz K2_PDONE")
    if XP_SLP:
        a(f"s_sleep {XP_SLP}")
    a("s_cmp_lt_u32 s41, 0x100000")
    a("s_cbranch_scc1 K2_POLL")
    a.label("K2_PDONE")
    for t in range(10):
        a(t2_load(t))
    prof(a, 17)
    a.label("K2_GO")
    for t in range(10 if XP_SEN >= 2 else 0):
        a(f"s_waitcnt vmcnt({9 - t}) lgkmcnt({10 if t < 9 else 0})")
        mf(t)
        if t + 2 < 10:
            for r in reads(t + 2):
                a(r)
    for t in range(10 if XP_SEN == 1 else 0):
        a(f"s_waitcnt vmcnt({9 - t})")
        check(t)
        a(f"s_cbranch_vccz K2_OK{t}")
        a(f"s_bitset1_b32 s40, {t}")
        a(f"s_branch K2_NX{t}")
        a.label(f"K2_OK{t}")
        a(f"s_waitcnt lgkmcnt({10 if t < 9 else 0})")
        mf(t)
        a.label(f"K2_NX{t}")
        if t + 2 < 10:
            for r in reads(t + 2):
                a(r)
    if XP_SEN >= 2:
        a("s_branch K2_ALL")
    a.label("K2_RETRY")
    a("s_cmp_eq_u32 s40, 0")
    a("s_cbranch_scc1 K2_ALL")
    for t in range(10):
        a(f"s_bitcmp1_b32 s40, {t}")
        a(f"s_cbranch_scc0 K2_RL{t}")
        a(t2_load(t))
        a.label(f"K2_RL{t}")
    a("s_add_u32 s41, s41, 1")
    a("s_cmp_ge_u32 s41, 0x100000")
    a("s_cbranch_scc1 K2_ALL")
    a("s_waitcnt vmcnt(0)")
    for t in range(10):
        a(f"s_bitcmp1_b32 s40, {t}")
        a(f"s_cbranch_scc0 K2_RN{t}")
        check(t)
        a(f"s_cbranch_vccnz K2_RN{t}")
        for r in reads(t):
            a(r)
        a(f"s_bitset0_b32 s40, {t}")
        a("s_waitcnt lgkmcnt(0)")
        mf(t)
        a.label(f"K2_RN{t}")
    a("s_branch K2_RETRY")
    a.label("K2_ALL")
    prof(a, 18)
    a("s_nop 7")
    XR = 28
    a("s_cmp_eq_u32 s57, 0")
    a("s_cbranch_scc0 K2_X1")
    for n in (3, 4):
        a(f"ds_write_b128 v{T_XCH}, {vr(ACC + 4 * n, 4)} offset:{1024 * n}")
    a("s_waitcnt lgkmcnt(0)")
    a("s_barrier")
    for n in range(3):
        a(f"ds_read_b128 {vr(XR + 4 * n, 4)}, v{T_XCH} offset:{1024 * n}")
    a("s_branch K2_FIN")
    a.label("K2_X1")
    for n in range(3):
        a(f"ds_write_b128 v{T_XCH}, {vr(ACC + 4 * n, 4)} offset:{1024 * n}")
    a("s_waitcnt lgkmcnt(0)")
    a("s_barrier")
    for n in (3, 4):
        a(f"ds_read_b128 {vr(XR + 4 * (n - 3), 4)}, v{T_XCH} offset:{1024 * n}")
    for i in range(8):
        a(f"v_mov_b32 v{ACC + i}, v{ACC + 12 + i}")
    a.label("K2_FIN")
    R = 160
    for n in range(3):
        if n == 2:
            a("s_nop 1")
            a(f"v_permlane16_swap_b32 v{R}, v{R + 2}")
            a(f"v_permlane16_swap_b32 v{R + 1}, v{R + 3}")
            a("s_nop 1")
            a(f"buffer_store_dwordx4 {vr(R, 4)}, v{T_OUT}, s[28:31], 0 offen")
            a("s_cmp_eq_u32 s57, 0")
            a("s_cbranch_scc0 K2_PEND")
        a(f"s_waitcnt lgkmcnt({(1, 0, 0)[n]})" if n else "s_waitcnt lgkmcnt(1)")
        for h in range(2):
            e = ACC + 4 * n + 2 * h
            x = XR + 4 * n + 2 * h
            p = 2 * n + h
            a(f"v_pk_add_f32 {vr(e, 2)}, {vr(e, 2)}, {vr(x, 2)}")
            a(f"v_cvt_pk_bf16_f32 v6, v{e}, v{e + 1}")
            a("v_lshlrev_b32 v4, 16, v6")
            a("v_and_b32 v5, 0xffff0000, v6")
            a(f"v_mul_f32 v4, v{T_GV}, v4")
            a(f"v_mul_f32 v5, v{T_GV}, v5")
            a("v_cvt_pk_bf16_f32 v6, v4, v5")
            a("v_lshlrev_b32 v4, 16, v6")
            a("v_and_b32 v5, 0xffff0000, v6")
            a(f"v_pk_add_f32 v[4:5], v[4:5], {vr(T2 + 2 * p, 2)}")
            a(f"v_cvt_pk_bf16_f32 v{R + p}, v4, v5")
    a(f"buffer_store_dwordx2 {vr(R + 4, 2)}, v{T_OUT + 1}, s[28:31], 0 offen offset:64")


def k2():
    a = Asm()
    a.label("k2_kernel")
    if PROF:
        a("s_memtime s[86:87]")
    a("s_cmp_ge_u32 s2, 256")
    a("s_cbranch_scc1 K2_END")
    a("s_and_b32 s3, s2, 7")
    a("s_lshl_b32 s3, s3, 2")
    a("s_lshr_b32 s4, s2, 3")
    a("s_and_b32 s4, s4, 3")
    a("s_add_u32 s36, s3, s4")
    a("s_lshr_b32 s37, s2, 5")
    if XP_QX:
        a("s_lshr_b32 s36, s2, 3")
        a("s_and_b32 s37, s2, 7")
    a("s_load_dwordx2 s[4:5], s[0:1], 0")
    a("s_load_dwordx2 s[6:7], s[0:1], 48")
    a("s_load_dwordx2 s[8:9], s[0:1], 72")
    if XP_SEN:
        a("s_load_dwordx2 s[10:11], s[0:1], 56")
    a("v_and_b32 v1, 63, v0")
    a("v_lshrrev_b32 v2, 6, v0")
    a("s_nop 0")
    a("v_readfirstlane_b32 s38, v2")
    a("s_waitcnt lgkmcnt(0)")
    a("s_cmp_ge_u32 s38, 8")
    a("s_cbranch_scc1 K2_FFN")
    a("s_setprio 1")
    srd_off(a, 12, 8, 9, WS_KV, SZ_KV)
    srd_off(a, 16, 8, 9, WS_Q, SZ_Q)
    srd_off(a, 20, 8, 9, WS_O, SZ_O)
    if XP_SEN:
        srd_off(a, 24, 8, 9, WS_WO, SZ_WO)
        srd(a, 28, 10, 11, SZ_OUT)
    else:
        srd(a, 24, 4, 5, SZ_X)
        srd(a, 28, 6, 7, 1280)
    srd_off(a, 32, 8, 9, WS_G, WS_F + SZ_F - WS_G if XP_SEN else SZ_G)
    prof_init(a, 8, 9, 38, 1)
    prof(a, 0)
    a("v_lshlrev_b32 v16, 4, v1")
    a("s_mul_i32 s46, s38, 3072")
    a("s_cmp_lt_u32 s38, 7")
    a("s_cselect_b64 s[54:55], -1, 0")
    a(f"s_mul_i32 s45, s36, {HEAD_KV}")
    a("s_add_u32 s45, s45, s46")
    a("s_mov_b32 s44, s45")
    a("s_mov_b32 s41, 0")
    a(f"s_mov_b32 s42, {K2_BUF}")
    a(f"s_mov_b32 s43, {2 * K2_BUF}")
    a("s_mov_b32 s40, 0")
    a("v_and_b32 v17, 31, v1")
    a("v_lshrrev_b32 v18, 5, v1")
    a("s_lshl_b32 s47, s37, 8")
    a("s_lshl_b32 s48, s38, 5")
    a("s_add_u32 s47, s47, s48")
    a("v_add_u32 v2, s47, v17")
    a("v_mul_u32_u24 v2, 48, v2")
    a("s_mul_i32 s48, s36, 98304")
    a("v_add_u32 v2, s48, v2")
    a("v_lshl_add_u32 v3, v18, 4, v2")
    a("buffer_load_dwordx4 v[20:23], v3, s[16:19], 0 offen")
    a("buffer_load_dwordx2 v[24:25], v2, s[16:19], 0 offen offset:32")
    for sg in (41, 42):
        a(f"s_add_u32 m0, s{sg}, s46")
        a("s_nop 0")
        for j in range(3):
            if j == 2 and XP_FUSE:
                a("s_mov_b64 exec, s[54:55]")
            a(f"buffer_load_dwordx4 v16, s[12:15], s44 offen offset:{1024 * j} lds")
        if XP_FUSE:
            a("s_mov_b64 exec, -1")
        a("s_add_u32 s44, s44, 23040")
    a("v_mov_b32 v2, 0")
    a(f"v_mov_b32 v3, {K2_FLAG}")
    a("ds_write_b32 v3, v2")
    if not XP_GF:
        a("s_lshl_b32 s48, s37, 8")
        a("s_lshl_b32 s49, s36, 3")
        a("s_add_u32 s48, s48, s49")
        a("s_add_u32 s48, s48, s38")
        a("s_mul_i32 s49, s48, 1280")
        a("v_mul_u32_u24 v2, 20, v1")
        a("buffer_load_dwordx4 v[116:119], v2, s[24:27], s49 offen")
        a("buffer_load_dword v120, v2, s[24:27], s49 offen offset:16")
        a("buffer_load_dwordx4 v[122:125], v2, s[28:31], 0 offen")
        a("buffer_load_dword v126, v2, s[28:31], 0 offen offset:16")
    a("v_mul_u32_u24 v2, 48, v17")
    a("v_lshl_add_u32 v12, v18, 4, v2")
    a("v_add_u32 v13, 32, v2")
    if XP_K8:
        a("v_lshl_add_u32 v13, v18, 3, v13")
    a("v_bfe_u32 v3, v17, 2, 2")
    a("v_lshlrev_b32 v2, 6, v17")
    a("v_add_u32 v2, 1536, v2")
    a("v_xor_b32 v19, v18, v3")
    a("v_lshl_add_u32 v14, v19, 4, v2")
    a("v_add_u32 v19, 2, v18")
    a("v_xor_b32 v19, v19, v3")
    a("v_lshl_add_u32 v15, v19, 4, v2")
    if XP_SEN:
        k2_tail_setup(a)
    a("s_waitcnt vmcnt(6)" if (XP_GF and XP_ES) else "s_waitcnt vmcnt(0)")
    if not XP_GF:
        gate_compute(a, 116, 122, 48, 32)
    a("v_cmp_eq_u32 vcc, 0, v18")
    a("s_nop 1")
    a("v_cndmask_b32 v24, 0, v24, vcc")
    a("v_cndmask_b32 v25, 0, v25, vcc")
    a("v_mov_b32 v26, 0")
    a("v_mov_b32 v27, 0")
    a("s_mov_b32 s39, 0")

    QF0, QF1 = 20, 24
    KF = (28, 36)
    VF = (44, 52)
    P = 60
    S = (68, 84)
    O = 100

    def dma_stage(lds_sreg):
        a(f"s_add_u32 m0, s{lds_sreg}, s46")
        a("s_nop 0")
        for j in range(3):
            if j == 2 and XP_FUSE:
                a("s_mov_b64 exec, s[54:55]")
            a(f"buffer_load_dwordx4 v16, s[12:15], s44 offen offset:{1024 * j} lds")
        if XP_FUSE:
            a("s_mov_b64 exec, -1")
        a("s_add_u32 s44, s44, 23040")

    def set_addrs(dst, sbase):
        for i in range(4):
            a(f"v_add_u32 v{dst + i}, s{sbase}, v{12 + i}")

    def kread(st, idx):
        base = 4 if idx < 8 else 8
        off = (idx % 8) * 2880
        if XP_K8:
            return [f"ds_read_b128 {vr(KF[st], 4)}, v{base} offset:{off}",
                    f"ds_read_b64 {vr(KF[st] + 4, 2)}, v{base + 1} offset:{off}"]
        return [f"ds_read_b128 {vr(KF[st], 4)}, v{base} offset:{off}",
                f"ds_read_b128 {vr(KF[st] + 4, 4)}, v{base + 1} offset:{off}"]

    def qk2(st, sd):
        if XP_K8:
            return f"v_mfma_f32_32x32x8bf16_1k {vr(sd, 16)}, {vr(KF[st] + 4, 2)}, {vr(QF1, 2)}, {vr(sd, 16)}"
        return f"v_mfma_f32_32x32x16_bf16 {vr(sd, 16)}, {vr(KF[st] + 4, 4)}, {vr(QF1, 4)}, {vr(sd, 16)}"

    def vread(st, idx):
        base = 4 if idx < 8 else 8
        off = (idx % 8) * 2880
        return [f"ds_read_b128 {vr(VF[st], 4)}, v{base + 2} offset:{off}",
                f"ds_read_b128 {vr(VF[st] + 4, 4)}, v{base + 3} offset:{off}"]

    def qk(st, sst):
        a(f"v_mfma_f32_32x32x16_bf16 {vr(S[sst], 16)}, {vr(KF[st], 4)}, {vr(QF0, 4)}, 0")
        a(qk2(st, S[sst]))

    def set_m_from(mreg):
        a(f"v_mov_b32 v3, v{mreg}")
        a("s_nop 1")
        a(f"v_permlane32_swap_b32 v{mreg}, v3")
        a("s_nop 1")
        a(f"v_max_f32 v2, v{mreg}, v3")
        a("v_and_b32 v3, 0xffff0000, v2")
        a("v_sub_f32 v2, v2, v3")
        a("v_and_b32 v19, 0xffff0000, v2")
        a("v_sub_f32 v2, v2, v19")
        a("v_xor_b32 v3, 0x80000000, v3")
        a("v_xor_b32 v19, 0x80000000, v19")
        a("v_xor_b32 v2, 0x80000000, v2")
        a("v_lshrrev_b32 v3, 16, v3")
        a("v_or_b32 v3, v3, v19")
        a("v_lshrrev_b32 v2, 16, v2")
        a("v_cmp_eq_u32 vcc, 0, v18")
        a("s_nop 1")
        if XP_K8:
            a("v_cndmask_b32 v24, v3, v24, vcc")
            a("v_cndmask_b32 v25, v2, v25, vcc")
        else:
            a("v_cndmask_b32 v26, 0, v3, vcc")
            a("v_cndmask_b32 v27, 0, v2, vcc")
        a("s_nop 1")

    def start_stream():
        a("s_mov_b32 s44, s45")
        a("s_mov_b32 s41, 0")
        a(f"s_mov_b32 s42, {K2_BUF}")
        a(f"s_mov_b32 s43, {2 * K2_BUF}")
        dma_stage(41)
        dma_stage(42)
        set_addrs(4, 41)
        set_addrs(8, 42)
        a("s_mov_b32 s40, 0")

    def stage_head(lbl):
        if XP_ES:
            a("s_cmp_eq_u32 s40, 0")
            a(f"s_cbranch_scc1 {lbl}_W0")
            a("s_waitcnt vmcnt(0)")
            a.label(lbl + "_W0")
            a("s_waitcnt vmcnt(3) lgkmcnt(0)")
        else:
            a("s_waitcnt vmcnt(0) lgkmcnt(0)")
        if XP_NOBAR:
            a("s_cmp_lg_u32 s40, 0")
            a(f"s_cbranch_scc1 {lbl}_NB")
        a("s_barrier")
        if XP_NOBAR:
            a.label(lbl + "_NB")
        a(f"s_cmp_ge_u32 s40, {1 if XP_NODMA else 6}")
        a(f"s_cbranch_scc1 {lbl}" + ("_X" if XP_SEN and lbl == "K2_NODMA" else ""))
        dma_stage(43)
        a.label(lbl)

    def stage_rotate():
        a("s_mov_b32 s47, s41")
        a("s_mov_b32 s41, s42")
        a("s_mov_b32 s42, s43")
        a("s_mov_b32 s43, s47")
        for i in range(4):
            a(f"v_mov_b32 v{4 + i}, v{8 + i}")
        set_addrs(8, 42)
        a("s_add_u32 s40, s40, 1")

    a.label("K2_MAIN")
    prof(a, 1)
    a("s_cmp_eq_u32 s39, 0")
    a("s_cbranch_scc1 K2_STARTED")
    start_stream()
    a.label("K2_STARTED")
    set_addrs(4, 41)
    set_addrs(8, 42)
    for i in range(16):
        a(f"v_mov_b32 v{O + i}, 0")
    for i in range(4):
        a(f"v_mov_b32 v{P + 4 + i}, 0")
        a(f"v_mov_b32 v{VF[1] + 4 + i}, 0")
    a.label("K2_STAGE")
    stage_head("K2_NODMA")
    a("s_cmp_lg_u32 s40, 0")
    a("s_cbranch_scc1 K2_BODY")
    for r in kread(0, 0):
        a(r)
    a("s_cmp_lg_u32 s39, 0")
    a("s_cbranch_scc1 K2_PRIME")
    a("s_waitcnt lgkmcnt(0)")
    qk(0, 0)
    a("s_nop 15")
    a("s_nop 3")
    s0 = S[0]
    a(f"v_max3_f32 v116, v{s0}, v{s0 + 1}, v{s0 + 2}")
    for i in range(3, 15, 2):
        a(f"v_max3_f32 v116, v116, v{s0 + i}, v{s0 + i + 1}")
    a(f"v_max_f32 v116, v116, v{s0 + 15}")
    set_m_from(116)
    a.label("K2_PRIME")
    for r in kread(1, 1):
        a(r)
    for r in vread(0, 0):
        a(r)
    a("s_waitcnt lgkmcnt(4)")
    qk(0, 0)
    a("s_nop 15")
    prof(a, 2)
    a.label("K2_BODY")

    def body(par):
        for t in range(8):
            c = t % 2
            n = 1 - c
            sc = S[c]
            sn = S[n]

            def ex(lo):
                for i in range(lo, lo + 4):
                    a(f"v_exp_f32 v{sc + i}, v{sc + i}")

            def cv(lo):
                for i in range(lo, lo + 4):
                    a(f"v_cvt_pk_bf16_f32 v{P + i}, v{sc + 2 * i}, v{sc + 2 * i + 1}")
            if XP_PRIO:
                a(f"s_setprio {2 if (t & 1) == par else 1}")
            if XP_PR and (t == 0 or XP_PR[t] != XP_PR[t - 1]):
                a(f"s_setprio {XP_PR[t]}")
            ex(0)
            a(f"v_mfma_f32_32x32x16_bf16 {vr(O, 16)}, {vr(VF[n] + 4, 4)}, {vr(P + 4, 4)}, {vr(O, 16)}")
            ex(4)
            a("s_waitcnt lgkmcnt(0)" if XP_K8 else "s_waitcnt lgkmcnt(2)")
            a(f"v_mfma_f32_32x32x16_bf16 {vr(sn, 16)}, {vr(KF[n], 4)}, {vr(QF0, 4)}, 0")
            cv(0)
            if XP_ES and t == 6:
                a("s_cmp_lg_u32 s40, 0")
                a(f"s_cbranch_scc1 K2_MID{par}")
                a("s_waitcnt vmcnt(3)")
                a("s_barrier")
                a.label(f"K2_MID{par}")
            if not XP_NOLDS:
                for r in kread(c, t + 2):
                    a(r)
                for r in vread(n, t + 1):
                    a(r)
            ex(8)
            a(qk2(n, sn))
            ex(12)
            if not XP_K8:
                a("s_waitcnt lgkmcnt(4)")
            a(f"v_mfma_f32_32x32x16_bf16 {vr(O, 16)}, {vr(VF[c], 4)}, {vr(P, 4)}, {vr(O, 16)}")
            cv(4)

    if XP_PRIO:
        a("s_cmp_ge_u32 s38, 4")
        a("s_cbranch_scc1 K2_BODY1")
        body(0)
        a("s_branch K2_BODYE")
        a.label("K2_BODY1")
        body(1)
        a.label("K2_BODYE")
    else:
        body(0)
    stage_rotate()
    if PROF:
        a("s_memtime s[88:89]")
        a("s_waitcnt lgkmcnt(0)")
        a("v_mov_b32 v2, s88")
        a("s_lshl_b32 s90, s40, 2")
        a("v_mov_b32 v3, s90")
        a("buffer_store_dword v2, v3, s[92:95], s91 offen offset:8")
    a("s_cmp_lt_u32 s40, 8")
    a("s_cbranch_scc1 K2_STAGE")
    a("s_nop 1")
    a(f"v_mfma_f32_32x32x16_bf16 {vr(O, 16)}, {vr(VF[1] + 4, 4)}, {vr(P + 4, 4)}, {vr(O, 16)}")
    a("s_nop 15")
    a("s_nop 3")
    a("s_cmp_lg_u32 s39, 0")
    a("s_cbranch_scc1 K2_EPI")
    a("v_mov_b32 v2, 0")
    for i in range(9):
        a(f"v_fma_f32 v2, v{O + i}, 0, v2")
    a("v_mov_b32 v3, 0")
    for i in range(9, 12):
        a(f"v_fma_f32 v3, v{O + i}, 0, v3")
    a("v_cmp_eq_u32 vcc, 0, v18")
    a("s_nop 1")
    a("v_cndmask_b32 v3, 0, v3, vcc")
    a("v_add_f32 v2, v2, v3")
    a("v_cmp_u_f32 vcc, v2, v2")
    a("s_nop 4")
    a("s_cbranch_vccz K2_VOTE")
    a("v_mov_b32 v2, 1")
    a(f"v_mov_b32 v3, {K2_FLAG}")
    a("ds_write_b32 v3, v2")
    if XP_SEN:
        a("s_branch K2_NOST")
    a.label("K2_VOTE")
    a("s_branch K2_EPI")
    a.label("K2_FALL")
    if XP_SEN:
        a("s_waitcnt vmcnt(0)")
    a("s_barrier")
    a("v_mov_b32 v26, 0")
    a("v_mov_b32 v27, 0")
    a("v_cmp_eq_u32 vcc, 0, v18")
    a("s_nop 1")
    a("v_cndmask_b32 v24, 0, v24, vcc")
    a("v_cndmask_b32 v25, 0, v25, vcc")
    a(f"v_mov_b32 v117, {f32bits(float('-inf'))}")
    start_stream()
    a.label("K2_MSTAGE")
    stage_head("K2_MNODMA")
    for t in range(8):
        for r in kread(0, t):
            a(r)
        a("s_waitcnt lgkmcnt(0)")
        qk(0, 0)
        a("s_nop 15")
        a("s_nop 3")
        for i in range(0, 16, 2):
            a(f"v_max3_f32 v117, v117, v{s0 + i}, v{s0 + i + 1}")
    stage_rotate()
    a("s_cmp_lt_u32 s40, 8")
    a("s_cbranch_scc1 K2_MSTAGE")
    set_m_from(117)
    a("s_mov_b32 s39, 1")
    a("s_waitcnt vmcnt(0) lgkmcnt(0)")
    a("s_barrier")
    a("s_branch K2_MAIN")
    a.label("K2_EPI")
    if XP_SEN:
        a("s_cmp_lg_u32 s59, 0")
        a("s_cbranch_scc1 K2_NOST")
        a("s_mov_b32 s59, 1")
    a(f"v_mov_b32 v2, v{O + 8}")
    a(f"v_mov_b32 v3, v{O + 8}")
    a("s_nop 1")
    a("v_permlane32_swap_b32 v2, v3")
    a("s_nop 1")
    a("v_rcp_f32 v3, v3")
    a("s_nop 0")
    for i in range(12):
        a(f"v_mul_f32 v{O + i}, v{O + i}, v3")
    for i in range(6):
        a(f"v_cvt_pk_bf16_f32 v{P + i}, v{O + 2 * i}, v{O + 2 * i + 1}")
    if not XP_SEN:
        a("s_lshl_b32 s47, s37, 8")
        a("s_lshl_b32 s48, s38, 5")
        a("s_add_u32 s47, s47, s48")
        a("v_add_u32 v2, s47, v17")
    if XP_SEN:
        for i in range(6 if XP_SEN == 1 else 0):
            a(f"v_min_u32 v{P + i}, -2, v{P + i}")
        a(f"buffer_store_dwordx2 {vr(P, 2)}, v{T_OST}, s[20:23], 0 offen sc1")
        a(f"buffer_store_dwordx2 {vr(P + 2, 2)}, v{T_OST}, s[20:23], 0 offen offset:256 sc1")
        a("s_mov_b32 exec_hi, 0")
        a(f"buffer_store_dwordx2 {vr(P + 4, 2)}, v{T_OST}, s[20:23], 0 offen offset:512 sc1")
        if XP_SEN < 3:
            a("s_mov_b32 exec_lo, 0xff")
            if XP_SEN == 2:
                a("s_waitcnt vmcnt(0)")
            a(f"buffer_store_dword v16, v{T_FS}, s[32:35], 0 offen sc1")
        a("s_mov_b64 exec, -1")
        a.label("K2_NOST")
        if XP_SEN < 3:
            a(f"buffer_load_dword v{T_GV}, v{T_G}, s[32:35], 0 offen sc1")
            a("s_waitcnt lgkmcnt(0)")
        else:
            a("s_waitcnt vmcnt(0) lgkmcnt(0)")
        a("s_barrier")
        a("s_cmp_lg_u32 s39, 0")
        a("s_cbranch_scc1 K2_TAIL")
    elif XP_FUSE:
        a("v_lshrrev_b32 v3, 4, v2")
        a("v_mul_u32_u24 v3, 20480, v3")
        a("v_and_b32 v2, 15, v2")
        a("v_lshl_add_u32 v2, v2, 4, v3")
        a("s_mul_i32 s48, s36, 20")
        a("v_lshl_add_u32 v3, v18, 2, s48")
        a("v_lshrrev_b32 v19, 3, v3")
        a("v_lshl_add_u32 v2, v19, 8, v2")
        a("v_and_b32 v3, 4, v3")
        a("v_lshl_add_u32 v2, v3, 1, v2")
        a(f"buffer_store_dwordx2 {vr(P, 2)}, v2, s[20:23], 0 offen sc1")
        a(f"buffer_store_dwordx2 {vr(P + 2, 2)}, v2, s[20:23], 0 offen offset:256 sc1")
        a("v_cmp_eq_u32 vcc, 0, v18")
        a("s_and_saveexec_b64 s[50:51], vcc")
        a(f"buffer_store_dwordx2 {vr(P + 4, 2)}, v2, s[20:23], 0 offen offset:512 sc1")
        a("s_mov_b64 exec, s[50:51]")
        a("s_load_dwordx2 s[4:5], s[0:1], 56")
        a("s_waitcnt vmcnt(0) lgkmcnt(0)")
        a("s_barrier")
        a("s_cmp_lg_u32 s39, 0")
        a("s_cbranch_scc1 K2_TAIL")
    else:
        a("v_mul_u32_u24 v2, 1280, v2")
        a("s_mul_i32 s48, s36, 40")
        a("v_lshl_add_u32 v2, v18, 3, v2")
        a("v_add_u32 v2, s48, v2")
        a(f"buffer_store_dwordx2 {vr(P, 2)}, v2, s[20:23], 0 offen")
        a(f"buffer_store_dwordx2 {vr(P + 2, 2)}, v2, s[20:23], 0 offen offset:16")
        a("v_cmp_eq_u32 vcc, 0, v18")
        a("s_and_saveexec_b64 s[50:51], vcc")
        a(f"buffer_store_dwordx2 {vr(P + 4, 2)}, v2, s[20:23], 0 offen offset:32")
        a("s_mov_b64 exec, s[50:51]")
        a("s_cmp_lg_u32 s39, 0")
        a("s_cbranch_scc1 K2_PEND")
        a("s_waitcnt lgkmcnt(0)")
        a("s_barrier")
    a(f"v_mov_b32 v3, {K2_FLAG}")
    a("ds_read_b32 v2, v3")
    a("s_waitcnt lgkmcnt(0)")
    a("v_readfirstlane_b32 s47, v2")
    a("s_cmp_lg_u32 s47, 0")
    a("s_cbranch_scc1 K2_FALL")
    if XP_FUSE:
        a.label("K2_TAIL")
        if XP_SEN:
            k2_tail2(a)
        else:
            k2_tail(a)
    a.label("K2_PEND")
    prof(a, 12)
    a.label("K2_END")
    a("s_endpgm")
    if XP_SEN:
        a.label("K2_NODMA_X")
        a("s_cmp_lg_u32 s40, 6")
        a("s_cbranch_scc1 K2_NODMA")
        for i in range(3):
            a(f"s_mov_b32 m0, s{63 + i}")
            a("s_nop 0")
            a(f"buffer_load_dwordx4 v16, s[24:27], s{60 + i} offen lds")
        a("s_branch K2_NODMA")
    a.label("K2_FFN")
    if XP_NOFFN:
        a("s_endpgm")
    if XP_FP:
        a(f"s_setprio {XP_FP}")
    a("s_sub_u32 s38, s38, 8")
    if XP_GF:
        srd(a, 64, 4, 5, SZ_X)
        srd(a, 68, 6, 7, 1280)
        srd_off(a, 32, 8, 9, WS_G, SZ_G)
        a("s_lshl_b32 s48, s37, 8")
        a("s_lshl_b32 s49, s36, 3")
        a("s_add_u32 s48, s48, s49")
        a("s_lshl_b32 s49, s38, 1")
        a("s_add_u32 s48, s48, s49")
    a("s_load_dwordx2 s[6:7], s[0:1], 40")
    a("s_load_dwordx2 s[52:53], s[0:1], 16")
    tile_map(a, 36, 37)
    a("s_lshl_b32 s39, s36, 6")
    a("s_mul_i32 s40, s37, 160")
    a("s_mul_i32 s41, s38, 20480")
    a(f"s_add_u32 s41, s41, {K2_FFN}")
    a("s_mul_i32 s42, s38, 14")
    a("s_cmp_eq_u32 s38, 3")
    a("s_cselect_b32 s42, 41, s42")
    a("s_mul_i32 s45, s36, 54")
    a("s_add_u32 s45, s45, s42")
    a("s_lshl_b32 s45, s45, 12")
    a("s_mul_i32 s46, s42, 5120")
    a("s_mul_i32 s47, s37, 276480")
    a("s_add_u32 s46, s46, s47")
    a("s_waitcnt lgkmcnt(0)")
    srd_off(a, 16, 8, 9, WS_W2P, SZ_W2)
    srd_off(a, 24, 8, 9, WS_H, SZ_H)
    srd_off(a, 28, 8, 9, WS_B, SZ_B)
    gw_setup(a, 39, 40, 3456, 41)
    j = 0
    for k, ns in enumerate(XP_FS):
        a("s_barrier")
        if k == 0:
            if XP_GF:
                a("s_mul_i32 s49, s48, 1280")
                a("v_mul_u32_u24 v2, 20, v1")
                a("buffer_load_dwordx4 v[116:119], v2, s[64:67], s49 offen")
                a("buffer_load_dword v120, v2, s[64:67], s49 offen offset:16")
                a("buffer_load_dwordx4 v[122:125], v2, s[68:71], 0 offen")
                a("buffer_load_dword v126, v2, s[68:71], 0 offen offset:16")
                a("buffer_load_dwordx4 v[132:135], v2, s[64:67], s49 offen offset:1280")
                a("buffer_load_dword v136, v2, s[64:67], s49 offen offset:1296")
            gw_issue(a, 0, 24, 16, 45, 46, 41)
        if k == 1 and XP_PF and not XP_QX:
            srd(a, 52, 52, 53, SZ_WO)
            a("s_mul_i32 s56, s2, 3200")
            a("v_and_b32 v3, 255, v0")
            a("v_lshlrev_b32 v2, 7, v3")
            a("v_cmp_gt_u32 vcc, 25, v3")
            a("v_bfrev_b32 v3, 1")
            a("v_cndmask_b32 v2, v3, v2, vcc")
            a("buffer_load_dword v141, v2, s[52:55], s56 offen")
        for _ in range(ns):
            if XP_FPIPE:
                if j == 0:
                    gw_issue(a, 1, 24, 16, 45, 46, 41)
                    if XP_GF:
                        a("s_waitcnt vmcnt(18)")
                        gate_compute2(a, 116, 132, 122, 48, 32)
                        a("s_waitcnt vmcnt(10)")
                    else:
                        a("s_waitcnt vmcnt(9)")
                elif j < 13:
                    a("s_waitcnt vmcnt(9)")
                else:
                    a("s_waitcnt vmcnt(0)")
                    a("s_cmp_ge_u32 s38, 2")
                    a("s_cbranch_scc1 K2_FSKIP")
                gw_compute_pipe(a, j & 1, j == 0, gw_pieces(j & 1, 24, 16, 45, 46, 41) if j + 2 < 14 else [])
                if j == 0 and XP_ES:
                    a("s_barrier")
                j += 1
                continue
            if j < 13:
                gw_issue(a, (j + 1) & 1, 24, 16, 45, 46, 41)
                if j == 0 and XP_GF:
                    a("s_waitcnt vmcnt(18)")
                    gate_compute2(a, 116, 132, 122, 48, 32)
                    a("s_waitcnt vmcnt(10)")
                else:
                    a("s_waitcnt vmcnt(9)")
            else:
                a("s_waitcnt vmcnt(0)")
                a("s_cmp_ge_u32 s38, 2")
                a("s_cbranch_scc1 K2_FSKIP")
            gw_compute(a, j & 1, j == 0)
            if j == 0 and XP_ES:
                a("s_barrier")
            j += 1
    assert j == 14
    a.label("K2_FSKIP")
    if XP_FE:
        a(f"s_setprio {XP_FE}")
    a("s_nop 7")
    a("s_nop 3")
    a("s_waitcnt vmcnt(0)")
    gw_write_partials(a, 41)
    a("s_waitcnt lgkmcnt(0)")
    a("s_barrier")
    gw_read_sum(a, 38, K2_FFN)
    for e in range(0, 20, 2):
        a(f"v_cvt_pk_bf16_f32 v{112 + e // 2}, v{24 + e}, v{25 + e}")
    if XP_FUSE:
        a("s_mul_i32 s42, s38, 2560")
        a(f"s_add_u32 s42, s42, {K2_B}")
        a("v_lshlrev_b32 v2, 3, v1")
        a("v_add_u32 v2, s42, v2")
        for n in range(5):
            a(f"ds_write_b64 v2, {vr(112 + 2 * n, 2)} offset:{512 * n}")
        a("s_waitcnt lgkmcnt(0)")
        a("s_barrier")
        a("s_setprio 0")
        srd_off(a, 52, 8, 9, WS_WO, SZ_WO)
        a("s_mul_i32 s56, s37, 102400")
        a("s_mul_i32 s57, s38, 20480")
        a("s_add_u32 s56, s56, s57")
        for j in range(5):
            a(f"s_add_u32 m0, s41, {4096 * j}")
            a("s_nop 0")
            for i in range(4):
                a(f"buffer_load_dwordx4 v{GW.VA}, s[52:55], s56 offen offset:{1024 * i} lds")
            a("s_add_u32 s56, s56, 4096")
        for _ in range(8 - (len(XP_FS) + 2)):
            a("s_barrier")
        a("s_waitcnt vmcnt(0)")
        a("s_barrier")
        a("s_endpgm")
        return a.text()
    a("s_lshl_b32 s42, s36, 3")
    a("s_add_u32 s42, s42, s37")
    a("s_lshl_b32 s42, s42, 2")
    a("s_add_u32 s42, s42, s38")
    a("s_mul_i32 s42, s42, 2560")
    a("v_lshlrev_b32 v2, 3, v1")
    for n in range(5):
        a(f"buffer_store_dwordx2 {vr(112 + 2 * n, 2)}, v2, s[28:31], s42 offen offset:{512 * n}")
    if XP_PF2:
        srd_off(a, 52, 8, 9, WS_WO, SZ_WO)
        a("s_lshr_b32 s56, s2, 3")
        a("s_mul_i32 s56, s56, 12800")
        a("s_and_b32 s57, s2, 1")
        a("s_mul_i32 s57, s57, 409600")
        a("s_add_u32 s56, s56, s57")
        a("v_and_b32 v3, 255, v0")
        a("v_lshlrev_b32 v2, 7, v3")
        a("v_cmp_gt_u32 vcc, 100, v3")
        a("v_bfrev_b32 v3, 1")
        a("v_cndmask_b32 v2, v3, v2, vcc")
        a("buffer_load_dword v141, v2, s[52:55], s56 offen")
        a("s_waitcnt vmcnt(0)")
    a("s_endpgm")
    return a.text()


def wmap(a, dst, sC0B):
    a("v_mul_u32_u24 v3, 6554, v2")
    a("v_lshrrev_b32 v3, 16, v3")
    a("v_mul_u32_u24 v15, 10, v3")
    a("v_sub_u32 v2, v2, v15")
    a("v_lshrrev_b32 v15, 1, v3")
    a("v_and_b32 v15, 4, v15")
    a("v_xor_b32 v3, v3, v15")
    a("v_lshlrev_b32 v2, 4, v2")
    a("v_mul_u32_u24 v3, 1280, v3")
    a(f"v_add3_u32 v{dst}, v2, v3, s{sC0B}")


def wread_addr(a, d0, d1, sBase, G=22, U=23):
    a(f"v_lshlrev_b32 v2, 3, v{G}")
    a(f"v_lshrrev_b32 v3, 2, v{U}")
    a("v_add_u32 v2, v2, v3")
    a("v_mul_u32_u24 v2, 160, v2")
    a(f"v_and_b32 v3, 3, v{U}")
    a("v_lshlrev_b32 v3, 3, v3")
    a(f"v_add3_u32 v2, v2, v3, s{sBase}")
    a(f"v_and_b32 v3, 1, v{G}")
    a("v_mul_u32_u24 v3, 640, v3")
    a(f"v_add_u32 v{d0}, v2, v3")
    a("v_sub_u32 v2, v2, v3")
    a(f"v_add_u32 v{d1}, 640, v2")


K3_STG = 36864
K3_B = 4 * K3_STG
K3_LDS = K3_B + 10240


def k3():
    a = Asm()
    a.label("k3_kernel")
    if PROF:
        a("s_memtime s[86:87]")
    a("s_cmp_ge_u32 s2, 256")
    a("s_cbranch_scc1 K3_END")
    a("s_load_dwordx2 s[4:5], s[0:1], 16")
    a("s_load_dwordx2 s[8:9], s[0:1], 72")
    a("s_load_dwordx2 s[10:11], s[0:1], 56")
    tile_map(a, 36, 37)
    a("v_and_b32 v1, 63, v0")
    a("v_lshrrev_b32 v2, 6, v0")
    a("v_lshrrev_b32 v22, 4, v1")
    a("v_readfirstlane_b32 s38, v2")
    a("v_and_b32 v23, 15, v1")
    a("s_lshl_b32 s39, s36, 6")
    a("s_mul_i32 s40, s37, 160")
    a("s_and_b32 s49, s38, 3")
    a("s_lshr_b32 s50, s38, 2")
    a("s_lshl_b32 s42, s38, 3")
    for j in range(2):
        a(f"s_add_u32 s43, s42, {4 * j}")
        a("v_add_u32 v2, s43, v22")
        a("v_and_b32 v3, 15, v2")
        a("v_xor_b32 v3, v3, v23")
        a("v_add_u32 v2, s39, v2")
        a("v_mul_u32_u24 v2, 1280, v2")
        a(f"v_lshl_add_u32 v{4 + j}, v3, 4, v2")
    a("s_add_u32 s43, s38, 8")
    a("s_add_u32 s44, s38, 16")
    a("s_cmp_lt_u32 s38, 4")
    a("s_cselect_b32 s44, s44, s43")
    a("v_lshlrev_b32 v2, 4, v1")
    a("s_mul_i32 s55, s37, 102400")
    for j, sp in enumerate((38, 43, 44)):
        a(f"s_lshl_b32 s{52 + j}, s{sp}, 10")
        a(f"s_add_u32 s51, s{52 + j}, s55")
        a(f"v_add_u32 v{8 + j}, s51, v2")
        a(f"s_add_u32 s{52 + j}, s{52 + j}, 16384")
    a("s_lshl_b32 s45, s38, 11")
    a("s_waitcnt lgkmcnt(0)")
    srd_off(a, 12, 8, 9, WS_WO, SZ_WO)
    srd_off(a, 20, 8, 9, WS_O, SZ_O)
    srd_off(a, 24, 8, 9, WS_B, SZ_B)
    srd_off(a, 28, 8, 9, WS_G, SZ_G)
    srd(a, 32, 10, 11, SZ_OUT)
    prof_init(a, 8, 9, 38, 2)
    prof(a, 0)

    def issue(stage, slot):
        a(f"s_mov_b32 s47, {stage * 256}")
        a(f"s_mov_b32 s48, {stage * 20480}")
        for j in range(2):
            a(f"s_add_u32 m0, s45, {slot * K3_STG + j * 1024}")
            a("s_nop 0")
            a(f"buffer_load_dwordx4 v{4 + j}, s[20:23], s47 offen lds")
        for j in range(3):
            a(f"s_add_u32 m0, s{52 + j}, {slot * K3_STG}")
            a("s_nop 0")
            a(f"buffer_load_dwordx4 v{8 + j}, s[12:15], s48 offen lds")

    for st in range(4):
        issue(st, st)
    a("s_lshl_b32 s42, s36, 3")
    a("s_add_u32 s42, s42, s37")
    a("s_lshl_b32 s42, s42, 2")
    a("s_add_u32 s42, s42, s49")
    a("s_mul_i32 s42, s42, 2560")
    a("s_mul_i32 s43, s50, 1536")
    a("s_add_u32 s42, s42, s43")
    a("v_lshlrev_b32 v2, 3, v1")
    for n in range(3):
        a(f"buffer_load_dwordx2 {vr(104 + 2 * n, 2)}, v2, s[24:27], s42 offen offset:{512 * n}")
    a("s_lshl_b32 s42, s49, 4")
    a("v_add_u32 v2, s42, v23")
    a("v_add_u32 v3, s39, v2")
    a("v_lshlrev_b32 v3, 2, v3")
    a("buffer_load_dword v16, v3, s[28:31], 0 offen")
    a("v_mul_u32_u24 v2, 160, v2")
    a("v_lshl_add_u32 v2, v22, 3, v2")
    a("s_mul_i32 s43, s50, 96")
    a(f"s_add_u32 s43, s43, {K3_B}")
    a("v_add_u32 v17, s43, v2")
    for j in range(2):
        a("s_mul_i32 s43, s38, 80")
        a(f"s_add_u32 s43, s43, {64 * j}")
        a("v_add_u32 v2, s43, v1")
        a("v_mul_u32_u24 v3, 6554, v2")
        a("v_lshrrev_b32 v3, 16, v3")
        a("v_mul_u32_u24 v15, 10, v3")
        a("v_sub_u32 v15, v2, v15")
        a("v_lshlrev_b32 v15, 4, v15")
        a("v_add_u32 v3, s39, v3")
        a("v_mul_u32_u24 v3, 1280, v3")
        a(f"v_add3_u32 v{12 + j}, v3, v15, s40")
        a("v_lshlrev_b32 v2, 4, v2")
        a(f"v_add_u32 v{32 + j}, {K3_B}, v2")
    BV = 104
    RA, RW = 24, 28
    a("s_lshl_b32 s43, s49, 12")
    a("v_lshlrev_b32 v2, 8, v23")
    a("v_add_u32 v2, s43, v2")
    a("s_lshl_b32 s43, s50, 3")
    for i in range(2):
        a(f"s_add_u32 s44, s43, {4 * i}")
        a("v_add_u32 v3, s44, v22")
        a("v_xor_b32 v3, v3, v23")
        a(f"v_lshl_add_u32 v{RA + i}, v3, 4, v2")
        a(f"v_add_u32 v{RA + 2 + i}, {2 * K3_STG}, v{RA + i}")
    a("s_mul_i32 s43, s50, 10240")
    a("s_add_u32 s43, s43, 16384")
    wread_addr(a, RW, RW + 1, 43)
    a(f"v_add_u32 v{RW + 2}, {2 * K3_STG}, v{RW}")
    a(f"v_add_u32 v{RW + 3}, {2 * K3_STG}, v{RW + 1}")
    a("v_lshlrev_b32 v21, 4, v1")
    a("s_mul_i32 s43, s49, 5120")
    a(f"s_add_u32 s43, s43, {K3_STG}")
    a("v_add_u32 v21, s43, v21")
    AF = (36, 40)
    WF = (44, 64)
    ACC = 84

    def reads(t):
        st, i = t >> 1, t & 1
        slot = st % 4
        hi = slot >> 1
        so = (slot & 1) * K3_STG
        r = [f"ds_read_b128 {vr(AF[i], 4)}, v{RA + 2 * hi + i} offset:{so}"]
        for n in range(5):
            off = so + i * 5120 + n * 32
            r.append(f"ds_read_b64_tr_b16 {vr(WF[i] + 4 * n, 2)}, v{RW + 2 * hi} offset:{off}")
            r.append(f"ds_read_b64_tr_b16 {vr(WF[i] + 4 * n + 2, 2)}, v{RW + 2 * hi + 1} offset:{off}")
        return r

    def mf(t):
        for n in range(5):
            d = ACC + 4 * n
            c = "0" if t == 0 else vr(d, 4)
            a(f"v_mfma_f32_16x16x32_bf16 {vr(d, 4)}, {vr(WF[t & 1] + 4 * n, 4)}, {vr(AF[t & 1], 4)}, {c}")

    a("s_waitcnt vmcnt(19)")
    a("s_barrier")
    prof(a, 1)
    for r in reads(0) + reads(1):
        a(r)
    a("s_waitcnt vmcnt(4) lgkmcnt(0)")
    a("s_barrier")
    prof(a, 2)
    issue(4, 0)
    mf(0)
    for r in reads(2):
        a(r)
    mf(1)
    for t in range(2, 10):
        if t == 7:
            a("s_waitcnt vmcnt(0)")
            a("s_barrier")
            prof(a, 3)
        if t < 9:
            for r in reads(t + 1):
                a(r)
            a("s_waitcnt lgkmcnt(11)")
        else:
            a("s_waitcnt lgkmcnt(0)")
        mf(t)
    a("v_sub_f32 v18, 1.0, v16")
    a("v_cvt_pk_bf16_f32 v18, v18, v18")
    a("v_lshlrev_b32 v18, 16, v18")
    a("s_nop 7")
    prof(a, 6)
    XR = 44
    a("s_cmp_eq_u32 s50, 0")
    a("s_cbranch_scc0 K3_X1")
    for n in (3, 4):
        a(f"ds_write_b128 v21, {vr(ACC + 4 * n, 4)} offset:{1024 * n}")
    a("s_waitcnt lgkmcnt(0)")
    a("s_barrier")
    for n in range(3):
        a(f"ds_read_b128 {vr(XR + 4 * n, 4)}, v21 offset:{1024 * n}")
    a("s_branch K3_FIN")
    a.label("K3_X1")
    for n in range(3):
        a(f"ds_write_b128 v21, {vr(ACC + 4 * n, 4)} offset:{1024 * n}")
    a("s_waitcnt lgkmcnt(0)")
    a("s_barrier")
    for n in (3, 4):
        a(f"ds_read_b128 {vr(XR + 4 * (n - 3), 4)}, v21 offset:{1024 * n}")
    for i in range(8):
        a(f"v_mov_b32 v{ACC + i}, v{ACC + 12 + i}")
    a.label("K3_FIN")
    a("s_waitcnt lgkmcnt(0)")
    for n in range(3):
        if n == 2:
            a("s_cmp_eq_u32 s50, 0")
            a("s_cbranch_scc0 K3_CP")
        for i in range(4):
            a(f"v_add_f32 v{ACC + 4 * n + i}, v{ACC + 4 * n + i}, v{XR + 4 * n + i}")
        for h in range(2):
            e = ACC + 4 * n + 2 * h
            bp = BV + 2 * n + h
            a(f"v_cvt_pk_bf16_f32 v19, v{e}, v{e + 1}")
            a("v_lshlrev_b32 v4, 16, v19")
            a("v_and_b32 v5, 0xffff0000, v19")
            a(f"v_lshlrev_b32 v6, 16, v{bp}")
            a(f"v_and_b32 v7, 0xffff0000, v{bp}")
            a("v_mul_f32 v4, v16, v4")
            a("v_mul_f32 v5, v16, v5")
            a("v_mul_f32 v6, v18, v6")
            a("v_mul_f32 v7, v18, v7")
            a("v_cvt_pk_bf16_f32 v19, v4, v5")
            a("v_cvt_pk_bf16_f32 v20, v6, v7")
            a("v_lshlrev_b32 v4, 16, v19")
            a("v_and_b32 v5, 0xffff0000, v19")
            a("v_lshlrev_b32 v6, 16, v20")
            a("v_and_b32 v7, 0xffff0000, v20")
            a("v_add_f32 v4, v4, v6")
            a("v_add_f32 v5, v5, v7")
            a(f"v_cvt_pk_bf16_f32 v{bp}, v4, v5")
        a(f"ds_write_b64 v17, {vr(BV + 2 * n, 2)} offset:{32 * n}")
    a.label("K3_CP")
    a("s_waitcnt lgkmcnt(0)")
    a("s_barrier")
    a("ds_read_b128 v[4:7], v32")
    a("ds_read_b128 v[8:11], v33")
    a("s_waitcnt lgkmcnt(1)")
    a("buffer_store_dwordx4 v[4:7], v12, s[32:35], 0 offen")
    a("v_cmp_gt_u32 vcc, 16, v1")
    a("s_and_saveexec_b64 s[50:51], vcc")
    a("s_waitcnt lgkmcnt(0)")
    a("buffer_store_dwordx4 v[8:11], v13, s[32:35], 0 offen")
    a("s_mov_b64 exec, s[50:51]")
    a.label("K3_PEND")
    prof(a, 12)
    a.label("K3_END")
    a("s_endpgm")
    return a.text()


def desc(name, vgpr, sgpr=96):
    acc = (vgpr + 3) // 4 * 4
    return f""".amdhsa_kernel {name}
  .amdhsa_next_free_vgpr {vgpr}
  .amdhsa_next_free_sgpr {sgpr}
  .amdhsa_accum_offset {acc}
  .amdhsa_group_segment_fixed_size 0
  .amdhsa_kernarg_size 80
  .amdhsa_user_sgpr_count 2
  .amdhsa_user_sgpr_kernarg_segment_ptr 1
  .amdhsa_system_sgpr_workgroup_id_x 1
.end_amdhsa_kernel
"""


def main():
    l3 = "" if XP_FUSE else f"; @launch kernel=k3_kernel grid=(256,1,1) block=(512,1,1) lds={K3_LDS}\n"
    hdr = f"""; gated_mix__mha_block__dense_activation_relu__prompt : kernel list (generated by gen.py, hand-designed)
; @launch kernel=k1_kernel grid=(256,1,1) block=(512,1,1) lds={K1_LDS}
; @launch kernel=k2_kernel grid=(256,1,1) block=(768,1,1) lds={K2_LDS}
{l3}.amdgcn_target "amdgcn-amd-amdhsa--gfx950"
.text
"""
    body = ""
    for name, fn in (("k1_kernel", k1), ("k2_kernel", k2), ("k3_kernel", k3))[:2 if XP_FUSE else 3]:
        body += f".globl {name}\n.p2align 8\n.type {name},@function\n" + fn()
    tail = '.section .rodata,"a"\n.p2align 6\n'
    tail += desc("k1_kernel", 176)
    tail += ".p2align 6\n" + desc("k2_kernel", 168 if XP_SEN else 144)
    if not XP_FUSE:
        tail += ".p2align 6\n" + desc("k3_kernel", 116)
    open(OUT, "w").write(hdr + body + tail)


if __name__ == "__main__":
    main()
```

```python
import struct, sys

OUT = sys.argv[1] if len(sys.argv) > 1 else "gated_mix__mha_block__dense_activation_relu__prompt.s"

WS_Q = 0
SZ_Q = 32 * 2048 * 48
WS_KV = 0x400000
HEAD_KV = 64 * 2880
SZ_KV = 32 * HEAD_KV
WS_H = 0xC00000
SZ_H = 2048 * 3456
WS_O = 0x1400000
SZ_O = 2048 * 1280
WS_G = 0x1800000
SZ_G = 2048 * 4
WS_B = 0x1A00000
SZ_B = 2048 * 1280
WS_WO = 0x1E00000
WS_W2P = 0x2400000
WS_CNT = 0x2800000

SZ_X = 2048 * 1280
SZ_WQKV = 640 * 3840
SZ_WO = 640 * 1280
SZ_W1 = 640 * 3456
SZ_W2 = 1728 * 1280
SZ_OUT = 2048 * 1280


def f32bits(x):
    return struct.unpack("<I", struct.pack("<f", x))[0]


C_SCALE = 1.4426950408889634 / (20 ** 0.5)
LOG2E = 1.4426950408889634


PROF = int(__import__("os").environ.get("PROF", "0"))
WS_T = 0x2000000
XP_PF = int(__import__("os").environ.get("XP_PF", "0"))
XP_ROT = int(__import__("os").environ.get("XP_ROT", "1"))
XP_PRIO = int(__import__("os").environ.get("XP_PRIO", "0"))
XP_RPM = int(__import__("os").environ.get("XP_RPM", "1"))
XP_DSL = eval(__import__("os").environ.get("XP_DSL", "(7, 10, 13)"))
XP_FDEL = int(__import__("os").environ.get("XP_FDEL", "1"))
XP_FS = eval(__import__("os").environ.get("XP_FS", "(1, 3, 3, 3, 2, 2)"))
XP_QX = int(__import__("os").environ.get("XP_QX", "0"))
XP_PF2 = int(__import__("os").environ.get("XP_PF2", "0"))
XP_NOLDS = int(__import__("os").environ.get("XP_NOLDS", "0"))
XP_NOFFN = int(__import__("os").environ.get("XP_NOFFN", "0"))
XP_K8 = int(__import__("os").environ.get("XP_K8", "1"))
XP_PR = eval(__import__("os").environ.get("XP_PR", "(3, 3, 3, 2, 2, 2, 1, 1)"))
XP_FP = int(__import__("os").environ.get("XP_FP", "0"))
XP_FE = int(__import__("os").environ.get("XP_FE", "3"))
XP_FPIPE = int(__import__("os").environ.get("XP_FPIPE", "1"))
XP_FB = int(__import__("os").environ.get("XP_FB", "2"))
XP_FUSE = int(__import__("os").environ.get("XP_FUSE", "1"))
XP_ES = int(__import__("os").environ.get("XP_ES", "1"))
XP_FJ = int(__import__("os").environ.get("XP_FJ", "1"))
XP_GF = int(__import__("os").environ.get("XP_GF", "1"))
XP_NODMA = int(__import__("os").environ.get("XP_NODMA", "0"))
XP_NOBAR = int(__import__("os").environ.get("XP_NOBAR", "0"))
XP_SEN = int(__import__("os").environ.get("XP_SEN", "1"))
XP_MAP = int(__import__("os").environ.get("XP_MAP", "1"))
XP_TP = int(__import__("os").environ.get("XP_TP", "5"))
XP_LP = int(__import__("os").environ.get("XP_LP", "1"))
XP_WL = int(__import__("os").environ.get("XP_WL", "4"))
XP_WS = int(__import__("os").environ.get("XP_WS", "8"))
XP_WO = int(__import__("os").environ.get("XP_WO", "1"))
XP_PB = int(__import__("os").environ.get("XP_PB", "1"))
XP_P2 = int(__import__("os").environ.get("XP_P2", "1"))
XP_PKS = int(__import__("os").environ.get("XP_PKS", "8"))
XP_SLP = int(__import__("os").environ.get("XP_SLP", "1"))
WS_F = 0x1802000
SZ_F = 131072


def prof_init(a, wsl, wsh, wave_s, kidx=0):
    if not PROF:
        return
    a(f"s_add_u32 s92, s{wsl}, {WS_T + kidx * 0x100000}")
    a(f"s_addc_u32 s93, s{wsh}, 0")
    a("s_and_b32 s93, s93, 0xffff")
    a("s_mov_b32 s94, 0x100000")
    a("s_mov_b32 s95, 0x00020000")
    a("s_lshl_b32 s91, s2, 4")
    a(f"s_add_u32 s91, s91, s{wave_s}")
    a("s_lshl_b32 s91, s91, 7")


def prof(a, slot, tmpv=2):
    if not PROF:
        return
    a("s_memtime s[88:89]")
    a("s_waitcnt lgkmcnt(0)")
    a(f"v_mov_b32 v{tmpv}, s88")
    a(f"v_mov_b32 v{tmpv + 1}, 0")
    a(f"buffer_store_dword v{tmpv}, v{tmpv + 1}, s[92:95], s91 offen offset:{4 * slot}")
    if slot == 0:
        a(f"v_mov_b32 v{tmpv}, s86")
        a(f"buffer_store_dword v{tmpv}, v{tmpv + 1}, s[92:95], s91 offen offset:60")
    if slot in (0, 12):
        a("s_memrealtime s[88:89]")
        a("s_waitcnt lgkmcnt(0)")
        a(f"v_mov_b32 v{tmpv}, s88")
        a(f"buffer_store_dword v{tmpv}, v{tmpv + 1}, s[92:95], s91 offen offset:{4 * (13 if slot == 0 else 14)}")


class Asm:
    def __init__(self):
        self.lines = []

    def __call__(self, s):
        self.lines.append("    " + s)

    def label(self, l):
        self.lines.append(l + ":")

    def c(self, s):
        self.lines.append("    ; " + s)

    def text(self):
        return "\n".join(self.lines) + "\n"


def vr(b, n=1):
    return f"v{b}" if n == 1 else f"v[{b}:{b + n - 1}]"


def sr(b, n=1):
    return f"s{b}" if n == 1 else f"s[{b}:{b + n - 1}]"


def srd(a, d, lo, hi, size):
    a(f"s_mov_b32 s{d}, s{lo}")
    a(f"s_and_b32 s{d + 1}, s{hi}, 0xffff")
    a(f"s_mov_b32 s{d + 2}, {size}")
    a(f"s_mov_b32 s{d + 3}, 0x00020000")


def srd_off(a, d, lo, hi, off, size):
    a(f"s_add_u32 s{d}, s{lo}, {off}")
    a(f"s_addc_u32 s{d + 1}, s{hi}, 0")
    a(f"s_and_b32 s{d + 1}, s{d + 1}, 0xffff")
    a(f"s_mov_b32 s{d + 2}, {size}")
    a(f"s_mov_b32 s{d + 3}, 0x00020000")


K1_STAGE = 45056
K1_LDS = 3 * K1_STAGE


XP_PSC = __import__("os").environ.get("XP_PSC", " sc1")


def k1_poison(a, D, A, S=68):
    srd_off(a, S, 10, 11, WS_O, WS_F + SZ_F - WS_O)
    for i in range(4):
        a(f"v_mov_b32 v{D + i}, -1")
    a("s_mul_i32 s80, s2, 10240")
    a(f"v_lshlrev_b32 v{A}, 4, v0")
    a(f"v_add_u32 v{A + 1}, 8192, v{A}")
    a(f"v_add_u32 v{A + 1}, s80, v{A + 1}")
    a("s_lshl_b32 s81, s2, 5")
    a(f"s_add_u32 s81, s81, {WS_G - WS_O - 2048}")
    a(f"v_add_u32 v{A + 2}, s81, v{A}")
    a("v_cmp_gt_u32 vcc, 128, v0")
    a(f"v_cndmask_b32 v{A + 1}, v{A + 2}, v{A + 1}, vcc")
    a("s_lshl_b32 s81, s2, 9")
    a(f"s_add_u32 s81, s81, {WS_F - WS_O - 2080}")
    a(f"v_add_u32 v{A + 2}, s81, v{A}")
    a("v_cmp_gt_u32 vcc, 130, v0")
    a(f"v_cndmask_b32 v{A + 1}, v{A + 2}, v{A + 1}, vcc")
    a(f"v_bfrev_b32 v{A + 2}, 1")
    a("v_cmp_gt_u32 vcc, 162, v0")
    a(f"v_cndmask_b32 v{A + 1}, v{A + 2}, v{A + 1}, vcc")
    if XP_SEN == 2:
        a("v_cmp_lt_u32 vcc, 127, v0")
        a(f"v_cndmask_b32 v{A + 1}, v{A + 2}, v{A + 1}, vcc")
        a(f"v_mov_b32 v{A}, v{A + 2}")
    a(f"buffer_store_dwordx4 {vr(D, 4)}, v{A}, {sr(S, 4)}, s80 offen{XP_PSC}")
    a(f"buffer_store_dwordx4 {vr(D, 4)}, v{A + 1}, {sr(S, 4)}, 0 offen{XP_PSC}")


def k1():
    a = Asm()
    a.label("k1_kernel")
    if PROF:
        a("s_memtime s[86:87]")
    a("s_cmp_ge_u32 s2, 256")
    a("s_cbranch_scc1 K1_END")
    if XP_MAP:
        a("s_and_b32 s3, s2, 3")
        a("s_lshr_b32 s4, s2, 3")
        a("s_lshl_b32 s3, s3, 5")
        a("s_add_u32 s3, s3, s4")
        a("s_bfe_u32 s5, s2, 0x10002")
        a("s_mul_i32 s25, s3, 373")
        a("s_lshr_b32 s25, s25, 12")
        a("s_mul_i32 s4, s25, 11")
        a("s_sub_u32 s24, s3, s4")
        a("s_lshl_b32 s25, s25, 1")
        a("s_sub_u32 s6, 6, s5")
        a("s_mul_i32 s7, s5, 6")
        a("s_cmp_ge_u32 s24, s6")
        a("s_cselect_b32 s8, 1, 0")
        a("s_add_u32 s25, s25, s8")
        a("s_mul_i32 s8, s8, 6")
        a("s_add_u32 s24, s24, s7")
        a("s_sub_u32 s24, s24, s8")
        a("s_sub_u32 s3, s3, 127")
        a("s_lshl_b32 s5, s5, 1")
        a("s_add_u32 s3, s3, s5")
        a("s_add_u32 s3, s3, 253")
        a("s_cmp_ge_u32 s25, 23")
        a("s_cbranch_scc1 K1_PACK")
        a("s_mul_i32 s3, s25, 11")
        a("s_add_u32 s3, s3, s24")
    else:
        a("s_and_b32 s3, s2, 7")
        a("s_lshr_b32 s4, s2, 3")
        a("s_lshl_b32 s3, s3, 5")
        a("s_add_u32 s3, s3, s4")
        a("s_cmp_ge_u32 s3, 253")
        a("s_cbranch_scc1 K1_PACK")
        a("s_mul_i32 s25, s3, 373")
        a("s_lshr_b32 s25, s25, 12")
        a("s_mul_i32 s4, s25, 11")
        a("s_sub_u32 s24, s3, s4")
    a("s_load_dwordx2 s[4:5], s[0:1], 0")
    a("s_load_dwordx2 s[6:7], s[0:1], 8")
    a("s_load_dwordx2 s[8:9], s[0:1], 32")
    a("s_load_dwordx2 s[10:11], s[0:1], 72")
    a("s_load_dwordx2 s[64:65], s[0:1], 40")
    if XP_WO:
        a("s_load_dwordx2 s[84:85], s[0:1], 16")
    a("v_and_b32 v1, 63, v0")
    a("v_lshrrev_b32 v2, 6, v0")
    a("s_nop 0")
    a("v_readfirstlane_b32 s26, v2")
    a("s_mul_i32 s72, s3, 547")
    a("s_lshr_b32 s27, s25, 2")
    a("s_min_u32 s27, s27, 3")
    a("s_mul_i32 s30, s24, 192")
    if XP_LP:
        a("s_lshl_b32 s80, s2, 3")
        a("s_add_u32 s80, s80, s26")
        a("v_lshlrev_b32 v163, 6, v1")
        if XP_LP & 2:
            a("v_lshlrev_b32 v163, 7, v1")
            a("v_and_b32 v163, 4095, v163")
    a("s_waitcnt lgkmcnt(0)")
    if XP_LP:
        a("s_sub_u32 s81, s80, 640")
        a("s_sub_u32 s82, s80, 1240")
        a(f"s_mov_b32 s78, {SZ_W1}")
        a("s_cmp_lt_u32 s80, 1240")
        a("s_cselect_b32 s76, s6, s8")
        a("s_cselect_b32 s77, s7, s9")
        a(f"s_cselect_b32 s78, {SZ_WQKV}, s78")
        a("s_cselect_b32 s81, s81, s82")
        a("s_cmp_lt_u32 s80, 640")
        a("s_cselect_b32 s76, s4, s76")
        a("s_cselect_b32 s77, s5, s77")
        a(f"s_cselect_b32 s78, {SZ_X}, s78")
        a("s_cselect_b32 s81, s80, s81")
        a("s_and_b32 s77, s77, 0xffff")
        a("s_mov_b32 s79, 0x00020000")
        a("s_lshl_b32 s81, s81, 12")
        if not XP_LP & 4:
            a("buffer_load_dword v162, v163, s[76:79], s81 offen")
    srd(a, 12, 4, 5, SZ_X)
    a("s_sub_u32 s29, s25, 12")
    a(f"s_mov_b32 s18, {SZ_W1}")
    a("s_mov_b32 s28, 3456")
    a("s_cmp_lt_u32 s25, 12")
    a("s_cselect_b32 s16, s6, s8")
    a("s_cselect_b32 s17, s7, s9")
    a(f"s_cselect_b32 s18, {SZ_WQKV}, s18")
    a("s_cselect_b32 s28, 3840, s28")
    a("s_cselect_b32 s29, s25, s29")
    a("s_and_b32 s17, s17, 0xffff")
    a("s_mov_b32 s19, 0x00020000")
    a("s_mul_i32 s29, s29, 160")
    a(f"s_mov_b32 s31, {WS_KV}")
    a(f"s_mov_b32 s22, {SZ_KV}")
    a("s_cmp_eq_u32 s27, 0")
    a(f"s_cselect_b32 s31, {WS_Q}, s31")
    a(f"s_cselect_b32 s22, {SZ_Q}, s22")
    a("s_cmp_eq_u32 s27, 3")
    a(f"s_cselect_b32 s31, {WS_H}, s31")
    a(f"s_cselect_b32 s22, {SZ_H}, s22")
    a("s_add_u32 s20, s10, s31")
    a("s_addc_u32 s21, s11, 0")
    a("s_and_b32 s21, s21, 0xffff")
    a("s_mov_b32 s23, 0x00020000")
    prof_init(a, 10, 11, 26, 0)
    prof(a, 0)
    a("s_and_b32 s65, s65, 0xffff")
    a(f"s_mov_b32 s66, {SZ_W2}")
    a("s_mov_b32 s67, 0x00020000")
    srd_off(a, 68, 10, 11, WS_W2P, SZ_W2)
    a("v_add_u32 v164, s72, v0")
    a("v_add_u32 v165, 512, v164")
    a("v_bfrev_b32 v2, 1")
    a("v_cmp_gt_u32 vcc, 35, v0")
    a("v_lshlrev_b32 v166, 4, v164")
    a("v_cndmask_b32 v165, v2, v165, vcc")
    a("v_lshlrev_b32 v2, 4, v165")
    a("v_cndmask_b32 v167, v165, v2, vcc")
    a("s_lshr_b32 s32, s26, 1")
    a("s_and_b32 s33, s26, 1")
    a("v_lshrrev_b32 v2, 3, v1")
    a("v_and_b32 v3, 7, v1")
    a("v_xor_b32 v3, v3, v2")
    a("v_lshlrev_b32 v3, 4, v3")
    a("v_mul_u32_u24 v2, 1280, v2")
    a("v_add_u32 v4, v2, v3")
    a("v_add_u32 v5, 10240, v4")
    a("v_add_u32 v6, 20480, v4")
    a("s_mul_i32 s34, s26, 24")
    a("s_add_u32 s34, s34, s30")
    a("s_mul_i32 s34, s34, 1280")
    a("s_mov_b32 s35, 0")
    a("s_lshl_b32 s36, s28, 6")
    a("s_add_u32 s62, s34, 1280")
    a("s_mul_i32 s61, s28, 640")
    a("s_add_u32 s60, s24, s25")
    a("s_mul_i32 s63, s60, 43")
    a("s_lshr_b32 s63, s63, 7")
    a("s_mul_i32 s63, s63, 3")
    a("s_sub_u32 s60, s60, s63")
    a(f"s_mul_i32 s60, s60, {XP_ROT}")
    a("s_lshl_b32 s63, s60, 7")
    a("s_add_u32 s34, s34, s63")
    a("s_mul_i32 s35, s60, s36")
    a("s_add_u32 s37, s26, 8")
    a("s_add_u32 s38, s26, 16")
    a("s_cmp_lt_u32 s26, 4")
    a("s_cselect_b32 s38, s38, s37")
    a("s_lshl_b32 s39, s29, 1")
    for j, sidx in enumerate((26, 37, 38)):
        a(f"s_lshl_b32 s40, s{sidx}, 6")
        a("v_add_u32 v2, s40, v1")
        a("v_mul_u32_u24 v3, 3277, v2")
        a("v_lshrrev_b32 v3, 16, v3")
        a("v_mul_u32_u24 v22, 20, v3")
        a("v_sub_u32 v2, v2, v22")
        a("v_lshrrev_b32 v22, 2, v3")
        a("v_and_b32 v22, 2, v22")
        a("v_xor_b32 v2, v2, v22")
        a("v_lshlrev_b32 v2, 4, v2")
        a("v_mul_lo_u32 v3, v3, s28")
        a(f"v_add3_u32 v{7 + j}, v2, v3, s39")
    a("s_mul_i32 s41, s26, 3072")
    a("s_lshl_b32 s42, s26, 10")
    a("s_add_u32 s42, s42, 24576")
    a("s_lshl_b32 s43, s37, 10")
    a("s_add_u32 s43, s43, 24576")
    a("s_lshl_b32 s44, s38, 10")
    a("s_add_u32 s44, s44, 24576")

    def dma_pieces(buf):
        base = buf * K1_STAGE
        g = []
        for j in range(3):
            x = [f"s_add_u32 m0, s41, {base + j * 1024}", "s_nop 0",
                 f"buffer_load_dwordx4 v{4 + j}, s[12:15], s34 offen lds"]
            if j == 2:
                x += ["s_add_u32 s34, s34, 128", "s_sub_u32 s60, s34, 1280", "s_cmp_ge_u32 s34, s62",
                      "s_cselect_b32 s34, s60, s34"]
            g.append(x)
        for j in range(3):
            x = [f"s_add_u32 m0, s{42 + j}, {base}", "s_nop 0",
                 f"buffer_load_dwordx4 v{7 + j}, s[16:19], s35 offen lds"]
            if j == 2:
                x += ["s_add_u32 s35, s35, s36", "s_cmp_ge_u32 s35, s61", "s_cselect_b32 s35, 0, s35"]
            g.append(x)
        return g

    if XP_SEN in (1, 2) and XP_PKS == -1:
        k1_poison(a, 168, 172, 76)
    for b in range(2 if XP_P2 else 3):
        for g in dma_pieces(b):
            for x in g:
                a(x)
        if b == 0 and XP_LP & 4:
            a("buffer_load_dword v162, v163, s[76:79], s81 offen")
        if b < XP_PB:
            a("s_barrier")
    NPK = 3 if XP_WO else 2

    def pack_loads():
        a("buffer_load_dwordx4 v[168:171], v166, s[64:67], 0 offen")
        a("buffer_load_dwordx4 v[172:175], v167, s[64:67], 0 offen")
        if XP_WO:
            srd(a, 64, 84, 85, SZ_WO)
            a("buffer_load_dwordx4 v[176:179], v180, s[64:67], 0 offen")

    def pack_stores():
        a("buffer_store_dwordx4 v[168:171], v164, s[68:71], 0 offen")
        a("buffer_store_dwordx4 v[172:175], v165, s[68:71], 0 offen")
        if XP_WO:
            srd_off(a, 68, 10, 11, WS_WO, SZ_WO)
            a("buffer_store_dwordx4 v[176:179], v181, s[68:71], 0 offen")
    if XP_WO:
        a("s_mul_i32 s72, s3, 203")
        a("v_add_u32 v24, s72, v0")
        a("v_lshlrev_b32 v180, 4, v24")
        a("s_mov_b32 s72, 52429")
        a("s_mov_b32 s73, 102400")
        a("v_mul_lo_u32 v25, v24, s72")
        a("v_lshrrev_b32 v25, 22, v25")
        a("v_mul_u32_u24 v26, 80, v25")
        a("v_sub_u32 v26, v24, v26")
        a("v_mul_u32_u24 v27, 6554, v26")
        a("v_lshrrev_b32 v27, 16, v27")
        a("v_mul_u32_u24 v28, 10, v27")
        a("v_sub_u32 v26, v26, v28")
        a("v_lshrrev_b32 v28, 1, v25")
        a("v_and_b32 v28, 4, v28")
        a("v_xor_b32 v25, v25, v28")
        a("v_mul_u32_u24 v25, 160, v25")
        a("v_mul_lo_u32 v27, v27, s73")
        a("v_lshl_add_u32 v25, v26, 4, v25")
        a("v_add_u32 v25, v25, v27")
        a("v_cmp_gt_u32 vcc, 51200, v24")
        a("v_cmp_gt_u32 s[50:51], 203, v0") if False else None
        a("s_movk_i32 s72, 203")
        a("v_cmp_gt_u32 s[50:51], s72, v0")
        a("s_and_b64 vcc, vcc, s[50:51]")
        a("v_bfrev_b32 v26, 1")
        a("v_cndmask_b32 v181, v26, v25, vcc")
        a("v_cndmask_b32 v180, v26, v180, vcc")
    NPF = 0
    if XP_WL < 0:
        NPF = NPK
        pack_loads()
    a("s_mov_b32 s72, 53687092")
    a("s_mov_b32 s73, 276480")
    for r in (164, 165):
        a(f"v_mul_hi_u32 v24, v{r}, s72")
        a("v_mul_u32_u24 v25, 80, v24")
        a(f"v_sub_u32 v25, v{r}, v25")
        a("v_mul_u32_u24 v26, 6554, v25")
        a("v_lshrrev_b32 v26, 16, v26")
        a("v_mul_u32_u24 v27, 10, v26")
        a("v_sub_u32 v25, v25, v27")
        a("v_mul_u32_u24 v24, 160, v24")
        a("v_mul_lo_u32 v26, v26, s73")
        a("v_lshl_add_u32 v24, v25, 4, v24")
        a("v_add_u32 v24, v24, v26")
        a(f"v_cmp_gt_u32 vcc, {1728 * 80}, v{r}")
        a("v_bfrev_b32 v26, 1")
        a(f"v_cndmask_b32 v{r}, v26, v24, vcc")
    def touch():
        a("buffer_load_dword v160, v161, s[76:79], s82 offen")
        a("s_add_u32 s82, s82, s83")
    if XP_TP:
        a("s_cmp_lt_u32 s26, 4")
        for i in range(4):
            a(f"s_cselect_b32 s{76 + i}, s{12 + i}, s{16 + i}")
        a("s_cselect_b32 s83, 128, s36")
        a("s_mul_i32 s82, s83, 3")
        a("s_and_b32 s45, s25, 3")
        a("s_mul_i32 s45, s45, 48")
        a("s_mul_i32 s46, s26, 12")
        a("s_add_u32 s45, s45, s46")
        a("s_add_u32 s45, s45, s30")
        a("v_add_u32 v2, s45, v1")
        a("v_mul_u32_u24 v2, 1280, v2")
        a("v_mul_u32_u24 v3, 43, v1")
        a("v_lshrrev_b32 v3, 7, v3")
        a("v_mul_u32_u24 v22, 3, v3")
        a("v_sub_u32 v22, v1, v22")
        a("v_lshlrev_b32 v22, 7, v22")
        a("s_and_b32 s45, s24, 3")
        a("s_lshl_b32 s45, s45, 4")
        a("s_lshl_b32 s46, s26, 2")
        a("s_add_u32 s45, s45, s46")
        a("s_sub_u32 s45, s45, 16")
        a("v_add_u32 v3, s45, v3")
        a("v_mul_lo_u32 v3, v3, s28")
        a("v_add3_u32 v3, v3, v22, s39")
        a("s_cmp_lt_u32 s26, 4")
        a("s_cselect_b64 vcc, -1, 0")
        a("v_cndmask_b32 v2, v3, v2, vcc")
        a("v_bfrev_b32 v3, 1")
        a("v_cmp_gt_u32 vcc, 12, v1")
        a("v_cndmask_b32 v161, v3, v2, vcc")
        for _ in range(3, XP_TP):
            touch()
        NPF += XP_TP - 3
    if XP_PF > 1:
        NPF = 5
        a("s_lshr_b32 s45, s2, 3")
        a("s_mul_i32 s45, s45, 81920")
        a("v_lshlrev_b32 v2, 7, v0")
        a("buffer_load_dword v160, v2, s[12:15], s45 offen")
        a("v_add_u32 v3, 0x10000, v2")
        a("v_cmp_gt_u32 vcc, 128, v0")
        a("v_bfrev_b32 v22, 1")
        a("v_cndmask_b32 v3, v22, v3, vcc")
        a("buffer_load_dword v161, v3, s[12:15], s45 offen")
        a("v_mul_u32_u24 v2, 21846, v0")
        a("v_lshrrev_b32 v2, 16, v2")
        a("v_mul_u32_u24 v3, 3, v2")
        a("v_sub_u32 v3, v0, v3")
        a("v_lshlrev_b32 v3, 7, v3")
        a("s_mul_i32 s45, s24, 59")
        a("v_add_u32 v2, s45, v2")
        a("v_cmp_gt_u32 vcc, 177, v0")
        a("v_mul_lo_u32 v2, v2, s28")
        a("v_add3_u32 v2, v2, v3, s39")
        a("v_cndmask_b32 v2, v22, v2, vcc")
        a("buffer_load_dword v162, v2, s[16:19], 0 offen")
    a("v_lshrrev_b32 v22, 4, v1")
    a("v_and_b32 v23, 15, v1")
    a("s_mul_i32 s45, s32, 48")
    a("v_add_u32 v2, s45, v23")
    a("v_lshlrev_b32 v2, 7, v2")
    a("v_and_b32 v3, 7, v23")
    a("v_xor_b32 v3, v3, v22")
    a("v_lshlrev_b32 v3, 4, v3")
    a("v_add_u32 v10, v2, v3")
    a("v_xor_b32 v11, 64, v10")
    for b in (1, 2):
        a(f"v_add_u32 v{10 + 2 * b}, {b * K1_STAGE}, v10")
        a(f"v_add_u32 v{11 + 2 * b}, {b * K1_STAGE}, v11")
    a("v_lshlrev_b32 v2, 3, v22")
    a("v_lshrrev_b32 v3, 2, v23")
    a("v_add_u32 v2, v2, v3")
    a("v_mul_u32_u24 v2, 320, v2")
    a("v_and_b32 v3, 3, v23")
    a("v_lshlrev_b32 v3, 3, v3")
    a("s_mul_i32 s45, s33, 160")
    a("s_add_u32 s45, s45, 24576")
    a("v_add3_u32 v2, v2, v3, s45")
    a("v_and_b32 v3, 1, v22")
    a("v_lshlrev_b32 v3, 5, v3")
    a("s_cmp_eq_u32 s33, 0")
    a("s_cselect_b32 s45, 1, -1")
    a("v_mul_lo_u32 v3, v3, s45")
    a("v_add_u32 v16, v2, v3")
    a("v_sub_u32 v17, v2, v3")
    for b in (1, 2):
        a(f"v_add_u32 v{16 + 2 * b}, {b * K1_STAGE}, v16")
        a(f"v_add_u32 v{17 + 2 * b}, {b * K1_STAGE}, v17")

    XF = (24, 36)
    WF = (48, 68)
    ACC = 88

    def reads(buf, sub, st):
        r = []
        for ti in range(3):
            r.append(f"ds_read_b128 {vr(XF[st] + 4 * ti, 4)}, v{10 + 2 * buf + sub} offset:{ti * 2048}")
        for ni in range(5):
            ad = 16 + 2 * buf + (ni & 1)
            off = ni * 32 + sub * 10240
            r.append(f"ds_read_b64_tr_b16 {vr(WF[st] + 4 * ni, 2)}, v{ad} offset:{off}")
            r.append(f"ds_read_b64_tr_b16 {vr(WF[st] + 4 * ni + 2, 2)}, v{ad} offset:{off + 1280}")
        return r

    def mfmas(st, vor, first):
        m = []
        for ni in range(5):
            for ti in range(3):
                d = ACC + 4 * (ni * 3 + ti)
                c = "0" if first else vr(d, 4)
                w = vr(WF[st] + 4 * ni, 4)
                x = vr(XF[st] + 4 * ti, 4)
                if vor:
                    m.append(f"v_mfma_f32_16x16x32_bf16 {vr(d, 4)}, {x}, {w}, {c}")
                else:
                    m.append(f"v_mfma_f32_16x16x32_bf16 {vr(d, 4)}, {w}, {x}, {c}")
        return m

    def phase(ms, rs, ds):
        rs = list(rs)
        ds = list(ds)
        nds = len(ds)
        for i, m in enumerate(ms):
            a(m)
            for _ in range(XP_RPM):
                if rs:
                    a(rs.pop(0))
            if ds and i in (XP_DSL if nds <= 3 else (2, 4, 6, 8, 10, 12)):
                for x in ds.pop(0):
                    a(x)

    def loop(vor):
        a(f"s_waitcnt vmcnt({(6 if XP_P2 else 12) + NPF + (1 if XP_LP & 4 else 0)})")
        a("s_barrier")
        prof(a, 1)
        for r in reads(0, 0, 0):
            a(r)
        pend = dma_pieces(2) if XP_P2 else []
        for ks in range(10):
            buf = ks % 3
            a("s_waitcnt lgkmcnt(0)")
            phase(mfmas(0, vor, ks == 0), reads(buf, 1, 1), pend)
            pend = []
            nxt = []
            if ks < 9:
                tch = 1 if XP_TP and ks >= 1 and ks - 1 + XP_TP < 10 else 0
                cnt = 6 + tch + (NPF if ks in ((0,) if XP_P2 else (0, 1)) else 0) + (2 if XP_SEN in (1, 2) and ks == XP_PKS + 1 else 0)
                cnt += NPK if ks - 1 in (XP_WL, XP_WS) and ks >= 1 else 0
                a(f"s_waitcnt vmcnt({cnt if ks < 8 else NPK if XP_WL == 7 else 0}) lgkmcnt(0)")
                a("s_barrier")
                if XP_TP and ks + XP_TP < 10:
                    touch()
                if ks == XP_WL:
                    pack_loads()
                if ks == XP_WS:
                    pack_stores()
                if XP_SEN in (1, 2) and ks == XP_PKS:
                    k1_poison(a, 168, 164)
                prof(a, 2 + ks)
                nxt = reads((ks + 1) % 3, 0, 0)
            else:
                a("s_waitcnt lgkmcnt(0)")
            d = []
            if ks + 3 < 10:
                p = dma_pieces(buf)
                d = p[:3]
                pend = p[3:]
            phase(mfmas(1, vor, False), nxt, d)
        if XP_WS == 9:
            a("s_waitcnt vmcnt(0)")
            pack_stores()
        a("s_barrier")
        a("s_nop 7")
        a("s_nop 3")
        prof(a, 11)

    a("s_cmp_eq_u32 s27, 2")
    a("s_cbranch_scc1 K1_VLOOP")
    loop(False)
    a("s_mul_i32 s45, s32, 48")
    a("v_add_u32 v4, s45, v23")
    a("s_cmp_eq_u32 s27, 3")
    a("s_cbranch_scc1 K1_EPI_FFN")
    a("s_cmp_eq_u32 s27, 0")
    a(f"s_cselect_b32 s48, {f32bits(C_SCALE)}, 1.0")
    NO = 148
    a("v_mul_u32_u24 v4, 48, v4")
    a("s_mul_i32 s46, s33, 36864")
    a("v_add_u32 v4, s46, v4")
    for ni in range(5):
        a(f"v_add_u32 v2, {4 * ni}, v22")
        a("v_mul_u32_u24 v3, 13, v2")
        a("v_lshrrev_b32 v3, 6, v3")
        a("v_mul_u32_u24 v5, 5, v3")
        a(f"v_sub_u32 v{NO + 5 + ni}, v2, v5")
        a("v_mul_u32_u24 v3, 9216, v3")
        a(f"v_lshl_add_u32 v3, v{NO + 5 + ni}, 3, v3")
        a(f"v_add_u32 v{NO + ni}, v3, v4")
    a("v_mov_b32 v8, 0x3f803f80")
    a("v_mov_b32 v9, 0x00003f80")
    for ti in range(3):
        for ni in range(5):
            d = ACC + 4 * (ni * 3 + ti)
            for i in range(4):
                a(f"v_mul_f32 v{d + i}, s48, v{d + i}")
            a(f"v_cvt_pk_bf16_f32 v{d}, v{d}, v{d + 1}")
            a(f"v_cvt_pk_bf16_f32 v{d + 1}, v{d + 2}, v{d + 3}")
            a(f"ds_write_b64 v{NO + ni}, {vr(d, 2)} offset:{768 * ti}")
    for ni in range(1, 5):
        a(f"v_cmp_eq_u32 vcc, 4, v{NO + 5 + ni}")
        a("s_and_saveexec_b64 s[50:51], vcc")
        for ti in range(3):
            a(f"ds_write_b64 v{NO + ni}, v[8:9] offset:{768 * ti + 8}")
        a("s_mov_b64 exec, s[50:51]")
    a("s_mul_i32 s52, s26, 9216")
    a("s_and_b32 s46, s25, 3")
    a("s_lshl_b32 s46, s46, 3")
    a("s_add_u32 s46, s46, s26")
    a("s_sub_u32 s57, 2048, s30")
    a("s_min_u32 s57, s57, 192")
    a("s_mul_i32 s57, s57, 3")
    a("s_mov_b32 s56, 0")
    a("s_mov_b32 s58, 1000")
    a("s_cmp_eq_u32 s27, 0")
    a("s_cbranch_scc0 K1_CPK")
    a("s_mul_i32 s53, s46, 98304")
    a("s_mul_i32 s47, s30, 48")
    a("s_add_u32 s53, s53, s47")
    a("s_mov_b32 s54, 0")
    a("s_mov_b32 s55, 0")
    a("s_branch K1_COPY")
    a.label("K1_CPK")
    a(f"s_mul_i32 s53, s46, {HEAD_KV}")
    a("s_mul_i32 s47, s30, 90")
    a("s_add_u32 s53, s53, s47")
    a("s_mov_b32 s54, 683")
    a("s_mov_b32 s55, 1344")
    a("s_branch K1_COPY")
    a.label("K1_EPI_FFN")
    a("v_lshrrev_b32 v2, 2, v23")
    a("v_sub_u32 v2, 0, v2")
    a("v_and_b32 v2, 3, v2")
    a("v_and_b32 v3, 1, v22")
    a("v_lshlrev_b32 v3, 3, v3")
    a("v_lshl_add_u32 v3, v23, 6, v3")
    a("v_lshrrev_b32 v4, 1, v22")
    a("s_mul_i32 s46, s33, 10")
    for ni in range(5):
        a(f"s_add_u32 s47, s46, {2 * ni}")
        a("v_add_u32 v5, s47, v4")
        a("v_lshrrev_b32 v6, 2, v5")
        a("v_and_b32 v5, 3, v5")
        a("v_xor_b32 v5, v5, v2")
        a("v_lshl_add_u32 v6, v6, 12, v3")
        a(f"v_lshl_add_u32 v{148 + ni}, v5, 4, v6")
    for ti in range(3):
        a(f"s_add_u32 s46, s45, {16 * ti}")
        a("s_lshr_b32 s47, s46, 6")
        a("s_mul_i32 s47, s47, 20480")
        a("s_and_b32 s46, s46, 63")
        a("s_lshl_b32 s46, s46, 6")
        a("s_add_u32 s46, s46, s47")
        for ni in range(5):
            d = ACC + 4 * (ni * 3 + ti)
            for i in range(4):
                a(f"v_max_f32 v{d + i}, 0, v{d + i}")
            a(f"v_cvt_pk_bf16_f32 v{d}, v{d}, v{d + 1}")
            a(f"v_cvt_pk_bf16_f32 v{d + 1}, v{d + 2}, v{d + 3}")
            a(f"v_add_u32 v4, s46, v{148 + ni}")
            a(f"ds_write_b64 v4, {vr(d, 2)}")
    a("s_mul_i32 s52, s26, 2560")
    a("s_lshr_b32 s46, s30, 6")
    a("s_mul_i32 s46, s46, 54")
    a("s_lshr_b32 s47, s29, 5")
    a("s_add_u32 s46, s46, s47")
    a("s_lshl_b32 s53, s46, 12")
    a("s_add_u32 s53, s53, s52")
    a("s_mov_b32 s54, 410")
    a(f"s_mov_b32 s55, {221184 - 2560}")
    a(f"s_mov_b32 s56, {20480 - 2560}")
    a("s_sub_u32 s57, 2048, s30")
    a("s_min_u32 s57, s57, 192")
    a("s_lshr_b32 s57, s57, 6")
    a("s_mul_i32 s57, s57, 160")
    a("s_sub_u32 s58, 1728, s29")
    a("s_min_u32 s58, s58, 160")
    a("s_lshl_b32 s58, s58, 3")
    a("s_mul_i32 s47, s26, 160")
    a("s_sub_i32 s58, s58, s47")
    a("s_branch K1_COPY")
    a.label("K1_VLOOP")
    loop(True)
    a("s_mul_i32 s46, s33, 32256")
    for ni in range(5):
        a(f"v_add_u32 v2, {16 * ni}, v23")
        a("v_mul_u32_u24 v3, 205, v2")
        a("v_lshrrev_b32 v3, 12, v3")
        a("v_mul_u32_u24 v4, 20, v3")
        a(f"v_sub_u32 v{NO + 10 + ni}, v2, v4")
        a("v_mul_u32_u24 v3, 8064, v3")
        a(f"v_lshlrev_b32 v4, 6, v{NO + 10 + ni}")
        a(f"v_add3_u32 v{NO + ni}, v3, v4, s46")
        a(f"v_bfe_u32 v{NO + 5 + ni}, v{NO + 10 + ni}, 2, 2")
    a("v_mov_b32 v8, 0x3f803f80")
    a("v_mov_b32 v9, 0x3f803f80")
    a("s_mul_i32 s45, s32, 48")
    for ti in range(3):
        a(f"s_add_u32 s49, s45, {16 * ti}")
        a("v_lshlrev_b32 v2, 2, v22")
        a("v_add_u32 v2, s49, v2")
        a("v_lshrrev_b32 v3, 5, v2")
        a("v_mul_u32_u24 v3, 1344, v3")
        a("v_bfe_u32 v2, v2, 2, 3")
        a("v_bfe_u32 v4, v2, 1, 1")
        a("v_lshl_add_u32 v10, v4, 3, v3")
        a("v_lshrrev_b32 v4, 1, v2")
        a("v_and_b32 v4, 2, v4")
        a("v_and_b32 v2, 1, v2")
        a("v_or_b32 v11, v2, v4")
        for ni in range(5):
            d = ACC + 4 * (ni * 3 + ti)
            a(f"v_cvt_pk_bf16_f32 v{d}, v{d}, v{d + 1}")
            a(f"v_cvt_pk_bf16_f32 v{d + 1}, v{d + 2}, v{d + 3}")
            a(f"v_xor_b32 v6, v11, v{NO + 5 + ni}")
            a("v_lshlrev_b32 v6, 4, v6")
            a(f"v_add3_u32 v6, v6, v10, v{NO + ni}")
            a(f"ds_write_b64 v6, {vr(d, 2)}")
            if ni < 4:
                a("v_xor_b32 v7, 1, v11")
                a("v_lshlrev_b32 v7, 4, v7")
                a(f"v_add3_u32 v7, v7, v10, v{NO + ni}")
                a(f"v_cmp_eq_u32 vcc, 0, v{NO + 10 + ni}")
                a("s_and_saveexec_b64 s[50:51], vcc")
                a("ds_write_b64 v7, v[8:9] offset:1280")
                a("s_mov_b64 exec, s[50:51]")
    a("s_mul_i32 s52, s26, 8064")
    a("s_and_b32 s46, s25, 3")
    a("s_lshl_b32 s46, s46, 3")
    a("s_add_u32 s46, s46, s26")
    a(f"s_mul_i32 s53, s46, {HEAD_KV}")
    a("s_mul_i32 s47, s30, 90")
    a("s_add_u32 s53, s53, s47")
    a("s_add_u32 s53, s53, 1536")
    a("s_mov_b32 s54, 781")
    a("s_mov_b32 s55, 1536")
    a("s_mov_b32 s56, 0")
    a("s_sub_u32 s57, 2048, s30")
    a("s_min_u32 s57, s57, 192")
    a("s_lshr_b32 s57, s57, 5")
    a("s_mul_i32 s57, s57, 84")
    a("s_mov_b32 s58, 1000")
    a.label("K1_COPY")
    a("s_mov_b32 s59, 160")
    for it in range(9):
        ga = 24 + it
        la = 34 + it
        a(f"v_add_u32 v2, {64 * it}, v1")
        a("v_mul_lo_u32 v3, v2, s54")
        a("v_lshrrev_b32 v3, 16, v3")
        a("v_lshlrev_b32 v4, 4, v2")
        a("v_mul_lo_u32 v5, v3, s55")
        a(f"v_add3_u32 v{ga}, v4, v5, s53")
        a("v_mul_lo_u32 v5, v3, s56")
        a(f"v_add3_u32 v{la}, v4, v5, s52")
        a("v_mul_lo_u32 v5, v3, s59")
        a("v_sub_u32 v5, v2, v5")
        a("v_cmp_gt_u32 vcc, s57, v2")
        a("v_cmp_gt_i32 s[50:51], s58, v5")
        a("s_and_b64 vcc, vcc, s[50:51]")
        a("v_bfrev_b32 v5, 1")
        a(f"v_cndmask_b32 v{ga}, v5, v{ga}, vcc")
    a("s_waitcnt lgkmcnt(0)")
    a("s_barrier")
    for it in range(9):
        a(f"ds_read_b128 {vr(48 + 4 * it, 4)}, v{34 + it}")
    for it in range(9):
        a(f"s_waitcnt lgkmcnt({8 - it})")
        a(f"buffer_store_dwordx4 {vr(48 + 4 * it, 4)}, v{24 + it}, s[20:23], 0 offen sc1")
    a.label("K1_PEND")
    prof(a, 12)
    a.label("K1_END")
    a("s_endpgm")
    a.label("K1_PACK")
    a("s_load_dwordx2 s[4:5], s[0:1], 16")
    a("s_load_dwordx2 s[6:7], s[0:1], 72")
    a("s_sub_u32 s3, s3, 253")
    a("s_mul_i32 s3, s3, 17408")
    a("v_add_u32 v1, s3, v0")
    a("v_lshlrev_b32 v2, 4, v1")
    a("s_mov_b32 s20, 52429")
    a("s_mov_b32 s21, 102400")
    a("v_bfrev_b32 v3, 1")
    a("s_waitcnt lgkmcnt(0)")
    srd(a, 12, 4, 5, SZ_WO)
    srd_off(a, 16, 6, 7, WS_WO, SZ_WO)
    if XP_SEN in (1, 2):
        a("s_mov_b32 s10, s6")
        a("s_mov_b32 s11, s7")
        k1_poison(a, 4, 8)
    else:
        srd_off(a, 24, 6, 7, WS_CNT, 65536)
        a("v_lshlrev_b32 v4, 8, v1")
        a("v_mov_b32 v5, 0")
        a("buffer_store_dword v5, v4, s[24:27], 0 offen")
    if XP_WO:
        a("s_endpgm")
        return a.text()
    for j in range(34):
        a(f"s_mov_b32 s22, {j * 8192}")
        a(f"buffer_load_dwordx4 {vr(24 + 4 * j, 4)}, v2, s[12:15], s22 offen")
    for j in range(34):
        a(f"v_add_u32 v4, {j * 512}, v1")
        a("v_mul_lo_u32 v5, v4, s20")
        a("v_lshrrev_b32 v5, 22, v5")
        a("v_mul_u32_u24 v6, 80, v5")
        a("v_sub_u32 v6, v4, v6")
        a("v_mul_u32_u24 v7, 6554, v6")
        a("v_lshrrev_b32 v7, 16, v7")
        a("v_mul_u32_u24 v8, 10, v7")
        a("v_sub_u32 v6, v6, v8")
        a("v_lshrrev_b32 v8, 1, v5")
        a("v_and_b32 v8, 4, v8")
        a("v_xor_b32 v5, v5, v8")
        a("v_mul_u32_u24 v5, 160, v5")
        a("v_mul_lo_u32 v7, v7, s21")
        a("v_lshl_add_u32 v5, v6, 4, v5")
        a("v_add_u32 v5, v5, v7")
        a("v_cmp_gt_u32 vcc, 51200, v4")
        a(f"v_cndmask_b32 v{16 + (j & 3)}, v3, v5, vcc")
        a("s_waitcnt vmcnt(33)")
        a(f"buffer_store_dwordx4 {vr(24 + 4 * j, 4)}, v{16 + (j & 3)}, s[16:19], 0 offen")
    a("s_endpgm")
    return a.text()


GS_SLOT = 9216


class GW:
    VA = 4
    VW = 8
    RA = 13
    RW = 14
    AF = 24
    WF = 40
    ACC = 60


def gw_setup(a, sR0, sC0B, strideA, sLds):
    a("v_lshrrev_b32 v22, 4, v1")
    a("v_and_b32 v23, 15, v1")
    a(f"v_lshlrev_b32 v{GW.VA}, 4, v1")
    a(f"v_add_u32 v{GW.VA + 1}, 4096, v{GW.VA}")
    a("v_lshrrev_b32 v2, 2, v23")
    a("v_sub_u32 v2, 0, v2")
    a("v_and_b32 v2, 3, v2")
    a("v_xor_b32 v2, v2, v22")
    a("v_lshlrev_b32 v2, 4, v2")
    a("v_lshl_add_u32 v2, v23, 6, v2")
    a(f"v_add_u32 v{GW.RA}, s{sLds}, v2")
    a("v_lshlrev_b32 v2, 3, v22")
    a("v_lshrrev_b32 v3, 2, v23")
    a("v_add_u32 v2, v2, v3")
    a("v_mul_u32_u24 v2, 160, v2")
    a("v_and_b32 v3, 3, v23")
    a("v_lshlrev_b32 v3, 3, v3")
    a("v_add_u32 v2, 4096, v2")
    a(f"v_add3_u32 v{GW.RW}, v2, v3, s{sLds}")


def gw_pieces(slot, srdA, srdW, sKA, sKW, sLds):
    g = []
    for i in range(4):
        g.append(([f"s_add_u32 m0, s{sLds}, {slot * GS_SLOT}", "s_nop 0"] if i == 0 else []) +
                 [f"buffer_load_dwordx4 v{GW.VA}, {sr(srdA, 4)}, s{sKA} offen offset:{1024 * i} lds"])
    for i in range(4):
        g.append(([f"s_add_u32 m0, s{sLds}, {slot * GS_SLOT + 4096}", "s_nop 0"] if i == 0 else []) +
                 [f"buffer_load_dwordx4 v{GW.VA}, {sr(srdW, 4)}, s{sKW} offen offset:{1024 * i} lds"])
    g.append([f"s_add_u32 m0, s{sLds}, {slot * GS_SLOT + 8192}", "s_nop 0",
              f"buffer_load_dwordx4 v{GW.VA + 1}, {sr(srdW, 4)}, s{sKW} offen lds",
              f"s_add_u32 s{sKA}, s{sKA}, 4096", f"s_add_u32 s{sKW}, s{sKW}, 5120"])
    return g


def gw_issue(a, slot, srdA, srdW, sKA, sKW, sLds):
    for p in gw_pieces(slot, srdA, srdW, sKA, sKW, sLds):
        for x in p:
            a(x)


def gw_compute_pipe(a, slot, first, pieces):
    for t in range(4):
        a(f"ds_read_b128 {vr(GW.AF + 4 * t, 4)}, v{GW.RA} offset:{slot * GS_SLOT + t * 1024}")
    for n in range(5):
        off = slot * GS_SLOT + n * 32
        a(f"ds_read_b64_tr_b16 {vr(GW.WF + 4 * n, 2)}, v{GW.RW} offset:{off}")
        a(f"ds_read_b64_tr_b16 {vr(GW.WF + 4 * n + 2, 2)}, v{GW.RW} offset:{off + 640}")
    a("s_waitcnt lgkmcnt(0)")
    pieces = list(pieces)
    i = 0
    for n in range(5):
        for t in range(4):
            d = GW.ACC + 4 * (n * 4 + t)
            c = "0" if first else vr(d, 4)
            a(f"v_mfma_f32_16x16x32_bf16 {vr(d, 4)}, {vr(GW.WF + 4 * n, 4)}, {vr(GW.AF + 4 * t, 4)}, {c}")
            i += 1
            if pieces and i % XP_FB == 0:
                for x in pieces.pop(0):
                    a(x)
    for p in pieces:
        for x in p:
            a(x)


def gw_compute_jit(a, slot, first):
    for t in range(4):
        a(f"ds_read_b128 {vr(GW.AF + 4 * t, 4)}, v{GW.RA} offset:{slot * GS_SLOT + t * 1024}")
    for n in range(5):
        off = slot * GS_SLOT + n * 32
        a(f"ds_read_b64_tr_b16 {vr(GW.WF + 4 * n, 2)}, v{GW.RW} offset:{off}")
        a(f"ds_read_b64_tr_b16 {vr(GW.WF + 4 * n + 2, 2)}, v{GW.RW} offset:{off + 640}")
        a("s_waitcnt lgkmcnt(0)")
        for t in range(4):
            d = GW.ACC + 4 * (n * 4 + t)
            c = "0" if first else vr(d, 4)
            a(f"v_mfma_f32_16x16x32_bf16 {vr(d, 4)}, {vr(GW.WF + 4 * n, 4)}, {vr(GW.AF + 4 * t, 4)}, {c}")


def gw_compute(a, slot, first):
    if XP_FJ:
        return gw_compute_jit(a, slot, first)
    for t in range(4):
        a(f"ds_read_b128 {vr(GW.AF + 4 * t, 4)}, v{GW.RA} offset:{slot * GS_SLOT + t * 1024}")
    for n in range(5):
        off = slot * GS_SLOT + n * 32
        a(f"ds_read_b64_tr_b16 {vr(GW.WF + 4 * n, 2)}, v{GW.RW} offset:{off}")
        a(f"ds_read_b64_tr_b16 {vr(GW.WF + 4 * n + 2, 2)}, v{GW.RW} offset:{off + 640}")
    a("s_waitcnt lgkmcnt(0)")
    for n in range(5):
        for t in range(4):
            d = GW.ACC + 4 * (n * 4 + t)
            c = "0" if first else vr(d, 4)
            a(f"v_mfma_f32_16x16x32_bf16 {vr(d, 4)}, {vr(GW.WF + 4 * n, 4)}, {vr(GW.AF + 4 * t, 4)}, {c}")


def gw_write_partials(a, sRed):
    a(f"v_add_u32 v2, s{sRed}, v{GW.VA}")
    for n in range(5):
        for t in range(4):
            d = GW.ACC + 4 * (n * 4 + t)
            a(f"ds_write_b128 v2, {vr(d, 4)} offset:{(n * 4 + t) * 1024}")


def gw_read_sum(a, sW4, redbase):
    a(f"s_lshl_b32 s60, s{sW4}, 10")
    a(f"s_add_u32 s60, s60, {redbase}")
    a(f"v_add_u32 v2, s60, v{GW.VA}")
    a(f"v_add_u32 v3, {2 * 20480}, v2")
    R = 24
    for src in range(4):
        for j in range(5):
            a(f"ds_read_b128 {vr(R + 20 * src + 4 * j, 4)}, v{2 + (src >> 1)} offset:{(src & 1) * 20480 + j * 4096}")
    a("s_waitcnt lgkmcnt(10)")
    for e in range(20):
        a(f"v_add_f32 v{R + e}, v{R + e}, v{R + 20 + e}")
    a("s_waitcnt lgkmcnt(0)")
    for e in range(20):
        a(f"v_add_f32 v{R + 40 + e}, v{R + 40 + e}, v{R + 60 + e}")
    for e in range(20):
        a(f"v_add_f32 v{R + e}, v{R + e}, v{R + 40 + e}")


def tile_map(a, sRt, sCt):
    if XP_QX:
        a("s_and_b32 s60, s2, 7")
        a("s_lshr_b32 s61, s2, 3")
        a("s_lshl_b32 s62, s60, 2")
        a("s_lshr_b32 s63, s61, 3")
        a(f"s_add_u32 s{sRt}, s62, s63")
        a(f"s_and_b32 s{sCt}, s61, 7")
        return
    if XP_FUSE:
        a("s_lshr_b32 s60, s2, 5")
        a("s_lshl_b32 s60, s60, 2")
        a("s_bfe_u32 s61, s2, 0x20001")
        a(f"s_add_u32 s{sRt}, s60, s61")
        a("s_and_b32 s60, s2, 1")
        a("s_lshl_b32 s60, s60, 2")
        a("s_bfe_u32 s61, s2, 0x20003")
        a(f"s_add_u32 s{sCt}, s60, s61")
        return
    a("s_and_b32 s60, s2, 7")
    a("s_lshr_b32 s61, s2, 3")
    a("s_lshr_b32 s62, s60, 1")
    a("s_lshl_b32 s62, s62, 3")
    a("s_lshr_b32 s63, s61, 2")
    a(f"s_add_u32 s{sRt}, s62, s63")
    a("s_and_b32 s62, s60, 1")
    a("s_lshl_b32 s62, s62, 2")
    a("s_and_b32 s63, s61, 3")
    a(f"s_add_u32 s{sCt}, s62, s63")


K2_BUF = 23552 if XP_FUSE else 24576
K2_FFN = 3 * K2_BUF
K2_B = K2_FFN + 4 * 20480
K2_FLAG = K2_B + (10240 if XP_FUSE else 0)
K2_LDS = K2_FLAG + 64
K2_W4 = K2_FFN - 20480
K2_XCH = 0
K2_OST = 24576


def gate_compute(a, XV, GV, srow, srdG):
    a("v_mov_b32 v2, 0")
    for j in range(5):
        xv = XV + j
        gv = GV + j
        a(f"v_lshlrev_b32 v3, 16, v{xv}")
        a(f"v_and_b32 v19, 0xffff0000, v{xv}")
        a(f"v_lshlrev_b32 v127, 16, v{gv}")
        a(f"v_and_b32 v128, 0xffff0000, v{gv}")
        a("v_mul_f32 v3, v3, v127")
        a("v_mul_f32 v19, v19, v128")
        a("v_cvt_pk_bf16_f32 v3, v3, v19")
        a("v_lshlrev_b32 v19, 16, v3")
        a("v_and_b32 v3, 0xffff0000, v3")
        a("v_add_f32 v2, v2, v19")
        a("v_add_f32 v2, v2, v3")
    for sh in (1, 2, 4, 8):
        a("s_nop 1")
        a(f"v_add_f32_dpp v2, v2, v2 row_shr:{sh} row_mask:0xf bank_mask:0xf")
    a("s_nop 1")
    a("v_add_f32_dpp v2, v2, v2 row_bcast:15 row_mask:0xa bank_mask:0xf")
    a("s_nop 1")
    a("v_add_f32_dpp v2, v2, v2 row_bcast:31 row_mask:0xc bank_mask:0xf")
    a("s_nop 1")
    a("v_cvt_pk_bf16_f32 v2, v2, v2")
    a("v_lshlrev_b32 v2, 16, v2")
    a(f"v_mul_f32 v2, {f32bits(-LOG2E)}, v2")
    a("v_exp_f32 v2, v2")
    a("s_nop 0")
    a("v_add_f32 v2, 1.0, v2")
    a("v_rcp_f32 v2, v2")
    a("s_nop 0")
    a("v_cvt_pk_bf16_f32 v2, v2, v2")
    a("v_lshlrev_b32 v2, 16, v2")
    a(f"s_lshl_b32 s49, s{srow}, 2")
    a("v_mov_b32 v3, 0")
    a("v_cmp_eq_u32 vcc, 63, v1")
    a("s_and_saveexec_b64 s[50:51], vcc")
    a(f"buffer_store_dword v2, v3, {sr(srdG, 4)}, s49 offen")
    a("s_mov_b64 exec, s[50:51]")


def gate_compute2(a, XA, XB, GV, srow, srdG):
    GU = 24
    a("v_mov_b32 v2, 0")
    a("v_mov_b32 v3, 0")
    a("v_mov_b32 v19, 0x3f803f80")
    for j in range(5):
        a(f"v_lshlrev_b32 v{GU + 2 * j}, 16, v{GV + j}")
        a(f"v_and_b32 v{GU + 2 * j + 1}, 0xffff0000, v{GV + j}")
    for X, acc in ((XA, 2), (XB, 3)):
        for j in range(5):
            a(f"v_lshlrev_b32 v36, 16, v{X + j}")
            a(f"v_and_b32 v37, 0xffff0000, v{X + j}")
            a(f"v_pk_mul_f32 v[36:37], v[36:37], v[{GU + 2 * j}:{GU + 2 * j + 1}]")
            a("v_cvt_pk_bf16_f32 v36, v36, v37")
            a(f"v_dot2_f32_bf16 v{acc}, v36, v19, v{acc}")
    for sh in (1, 2, 4, 8):
        a("s_nop 2" if sh == 1 else "s_nop 0")
        a(f"v_add_f32_dpp v2, v2, v2 row_shr:{sh} row_mask:0xf bank_mask:0xf")
        a(f"v_add_f32_dpp v3, v3, v3 row_shr:{sh} row_mask:0xf bank_mask:0xf")
    a("s_nop 0")
    a("v_add_f32_dpp v2, v2, v2 row_bcast:15 row_mask:0xa bank_mask:0xf")
    a("v_add_f32_dpp v3, v3, v3 row_bcast:15 row_mask:0xa bank_mask:0xf")
    a("s_nop 0")
    a("v_add_f32_dpp v2, v2, v2 row_bcast:31 row_mask:0xc bank_mask:0xf")
    a("v_add_f32_dpp v3, v3, v3 row_bcast:31 row_mask:0xc bank_mask:0xf")
    a("s_nop 1")
    a("v_cvt_pk_bf16_f32 v2, v2, v3")
    a("v_and_b32 v3, 0xffff0000, v2")
    a("v_lshlrev_b32 v2, 16, v2")
    a(f"v_mul_f32 v2, {f32bits(-LOG2E)}, v2")
    a(f"v_mul_f32 v3, {f32bits(-LOG2E)}, v3")
    a("v_exp_f32 v2, v2")
    a("v_exp_f32 v3, v3")
    a("s_nop 0")
    a("v_add_f32 v2, 1.0, v2")
    a("v_add_f32 v3, 1.0, v3")
    a("v_rcp_f32 v2, v2")
    a("v_rcp_f32 v3, v3")
    a("s_nop 0")
    a("v_cvt_pk_bf16_f32 v2, v2, v3")
    a("v_and_b32 v3, 0xffff0000, v2")
    a("v_lshlrev_b32 v2, 16, v2")
    a(f"s_lshl_b32 s49, s{srow}, 2")
    a("v_mov_b32 v19, 0")
    a("v_cmp_eq_u32 vcc, 63, v1")
    a("s_and_saveexec_b64 s[50:51], vcc")
    a(f"buffer_store_dwordx2 v[2:3], v19, {sr(srdG, 4)}, s49 offen" + (" sc1" if XP_FUSE else ""))
    a("s_mov_b64 exec, s[50:51]")


def k2_tail(a):
    prof(a, 16)
    a("s_lshr_b32 s40, s2, 5")
    a("s_lshl_b32 s40, s40, 13")
    srd_off(a, 24, 8, 9, WS_CNT, 65536)
    srd(a, 16, 4, 5, SZ_OUT)
    srd_off(a, 12, 8, 9, WS_WO, SZ_WO)
    a("v_mov_b32 v4, 0")
    a("s_cmp_lg_u32 s38, 0")
    a("s_cbranch_scc1 K2_T1")
    a("v_mov_b32 v2, 1")
    a("v_lshlrev_b32 v3, 8, v1")
    a("s_mov_b32 exec_hi, 0")
    a("buffer_atomic_add v2, v3, s[24:27], s40 offen")
    a("s_mov_b32 exec_hi, -1")
    a.label("K2_T1")
    a("s_lshl_b32 s40, s2, 8")
    tile_map(a, 36, 37)
    a("v_lshrrev_b32 v22, 4, v1")
    a("v_and_b32 v23, 15, v1")
    a("s_lshl_b32 s39, s36, 6")
    a("s_and_b32 s49, s38, 3")
    a("s_lshr_b32 s50, s38, 2")
    a("s_add_u32 s43, s38, 8")
    a("s_add_u32 s44, s38, 16")
    a("s_cmp_lt_u32 s38, 4")
    a("s_cselect_b32 s44, s44, s43")
    a("s_mul_i32 s55, s37, 102400")
    a(f"s_add_u32 s55, s55, {4 * 20480}")
    for sp in (38, 43, 44):
        a(f"s_lshl_b32 s52, s{sp}, 10")
        a(f"s_add_u32 m0, s52, {K2_W4}")
        a("s_add_u32 s52, s52, s55")
        a("buffer_load_dwordx4 v16, s[12:15], s52 offen lds")
    a("s_mul_i32 s41, s37, 160")
    a("s_lshl_b32 s42, s36, 2")
    a("s_add_u32 s42, s42, s49")
    a("s_mul_i32 s42, s42, 20480")
    a("s_lshl_b32 s43, s50, 11")
    a("s_add_u32 s42, s42, s43")
    a("s_lshl_b32 s43, s49, 4")
    a("v_add_u32 v2, s43, v23")
    a("v_add_u32 v3, s39, v2")
    a("v_lshlrev_b32 v5, 2, v3")
    a("v_mul_u32_u24 v2, 160, v2")
    a("v_lshl_add_u32 v2, v22, 3, v2")
    a("s_mul_i32 s43, s50, 96")
    a(f"s_add_u32 s43, s43, {K2_OST}")
    a("v_add_u32 v17, s43, v2")
    a("s_mul_i32 s43, s49, 2560")
    a("s_mul_i32 s44, s50, 1536")
    a("s_add_u32 s43, s43, s44")
    a(f"s_add_u32 s43, s43, {K2_B}")
    a("v_lshlrev_b32 v2, 3, v1")
    a("v_add_u32 v6, s43, v2")
    for j in range(2):
        a("s_mul_i32 s43, s38, 80")
        a(f"s_add_u32 s43, s43, {64 * j}")
        a("v_add_u32 v2, s43, v1")
        a("v_mul_u32_u24 v3, 6554, v2")
        a("v_lshrrev_b32 v3, 16, v3")
        a("v_mul_u32_u24 v15, 10, v3")
        a("v_sub_u32 v15, v2, v15")
        a("v_lshlrev_b32 v15, 4, v15")
        a("v_add_u32 v3, s39, v3")
        a("v_mul_u32_u24 v3, 1280, v3")
        a(f"v_add3_u32 v{12 + j}, v3, v15, s41")
        a("v_lshlrev_b32 v2, 4, v2")
        a(f"v_add_u32 v{8 + j}, {K2_OST}, v2")
    RW = 28
    a("s_mul_i32 s43, s50, 10240")
    a(f"s_add_u32 s43, s43, {K2_W4}")
    wread_addr(a, RW, RW + 1, 43)
    a(f"v_add_u32 v{RW + 2}, {3 * 20480}, v{RW}")
    a(f"v_add_u32 v{RW + 3}, {3 * 20480}, v{RW + 1}")
    a("s_mul_i32 s43, s49, 5120")
    a(f"s_add_u32 s43, s43, {K2_XCH}")
    a("v_add_u32 v21, s43, v16")
    AF = 32
    WF = (72, 92)
    ACC = 112
    BV = 132

    def reads(t):
        st, i = t >> 1, t & 1
        pos = (st + 1) % 5
        hi = 1 if pos >= 3 else 0
        so = (pos - 3 * hi) * 20480
        r = []
        for n in range(5):
            off = so + i * 5120 + n * 32
            r.append(f"ds_read_b64_tr_b16 {vr(WF[i] + 4 * n, 2)}, v{RW + 2 * hi} offset:{off}")
            r.append(f"ds_read_b64_tr_b16 {vr(WF[i] + 4 * n + 2, 2)}, v{RW + 2 * hi + 1} offset:{off}")
        return r

    def mf(t):
        for n in range(5):
            d = ACC + 4 * n
            c = "0" if t == 0 else vr(d, 4)
            a(f"v_mfma_f32_16x16x32_bf16 {vr(d, 4)}, {vr(WF[t & 1] + 4 * n, 4)}, {vr(AF + 4 * t, 4)}, {c}")

    for r in reads(0) + reads(1):
        a(r)
    for n in range(3):
        a(f"ds_read_b64 {vr(BV + 2 * n, 2)}, v6 offset:{512 * n}")
    a("s_cmp_lg_u32 s38, 0")
    a("s_cbranch_scc1 K2_T3")
    a("s_mov_b32 s43, 0")
    a.label("K2_T2")
    a("buffer_load_dword v2, v4, s[24:27], s40 offen sc1")
    a("s_add_u32 s43, s43, 1")
    a("s_waitcnt vmcnt(0)")
    a("v_readfirstlane_b32 s44, v2")
    a("s_cmp_ge_u32 s44, 32")
    a("s_cbranch_scc1 K2_T3")
    a("s_sleep 2")
    a("s_cmp_lt_u32 s43, 0x100000")
    a("s_cbranch_scc1 K2_T2")
    a.label("K2_T3")
    a("s_waitcnt vmcnt(0)")
    a("s_barrier")
    prof(a, 17)
    for t in range(10):
        st, i = t >> 1, t & 1
        if i == 0 and st:
            a("s_add_u32 s42, s42, 4096")
        a(f"buffer_load_dwordx4 {vr(AF + 4 * t, 4)}, v16, s[20:23], s42 offen offset:{1024 * i} sc1")
    a("buffer_load_dword v18, v5, s[32:35], 0 offen sc1")
    for t in range(10):
        a(f"s_waitcnt vmcnt({10 - t}) lgkmcnt({10 if 1 <= t < 9 else 0})")
        mf(t)
        if t + 2 < 10:
            for r in reads(t + 2):
                a(r)
    prof(a, 18)
    a("s_waitcnt vmcnt(0)")
    a("v_sub_f32 v19, 1.0, v18")
    a("v_cvt_pk_bf16_f32 v19, v19, v19")
    a("v_lshlrev_b32 v19, 16, v19")
    a("s_nop 7")
    XR = 72
    a("s_cmp_eq_u32 s50, 0")
    a("s_cbranch_scc0 K2_X1")
    for n in (3, 4):
        a(f"ds_write_b128 v21, {vr(ACC + 4 * n, 4)} offset:{1024 * n}")
    a("s_waitcnt lgkmcnt(0)")
    a("s_barrier")
    for n in range(3):
        a(f"ds_read_b128 {vr(XR + 4 * n, 4)}, v21 offset:{1024 * n}")
    a("s_branch K2_FIN")
    a.label("K2_X1")
    for n in range(3):
        a(f"ds_write_b128 v21, {vr(ACC + 4 * n, 4)} offset:{1024 * n}")
    a("s_waitcnt lgkmcnt(0)")
    a("s_barrier")
    for n in (3, 4):
        a(f"ds_read_b128 {vr(XR + 4 * (n - 3), 4)}, v21 offset:{1024 * n}")
    for i in range(8):
        a(f"v_mov_b32 v{ACC + i}, v{ACC + 12 + i}")
    a.label("K2_FIN")
    a("s_waitcnt lgkmcnt(0)")
    for n in range(3):
        if n == 2:
            a("s_cmp_eq_u32 s50, 0")
            a("s_cbranch_scc0 K2_CP")
        for i in range(4):
            a(f"v_add_f32 v{ACC + 4 * n + i}, v{ACC + 4 * n + i}, v{XR + 4 * n + i}")
        for h in range(2):
            e = ACC + 4 * n + 2 * h
            bp = BV + 2 * n + h
            a(f"v_cvt_pk_bf16_f32 v24, v{e}, v{e + 1}")
            a("v_lshlrev_b32 v4, 16, v24")
            a("v_and_b32 v5, 0xffff0000, v24")
            a(f"v_lshlrev_b32 v6, 16, v{bp}")
            a(f"v_and_b32 v7, 0xffff0000, v{bp}")
            a("v_mul_f32 v4, v18, v4")
            a("v_mul_f32 v5, v18, v5")
            a("v_mul_f32 v6, v19, v6")
            a("v_mul_f32 v7, v19, v7")
            a("v_cvt_pk_bf16_f32 v24, v4, v5")
            a("v_cvt_pk_bf16_f32 v20, v6, v7")
            a("v_lshlrev_b32 v4, 16, v24")
            a("v_and_b32 v5, 0xffff0000, v24")
            a("v_lshlrev_b32 v6, 16, v20")
            a("v_and_b32 v7, 0xffff0000, v20")
            a("v_add_f32 v4, v4, v6")
            a("v_add_f32 v5, v5, v7")
            a(f"v_cvt_pk_bf16_f32 v{bp}, v4, v5")
        a(f"ds_write_b64 v17, {vr(BV + 2 * n, 2)} offset:{32 * n}")
    a.label("K2_CP")
    a("s_waitcnt lgkmcnt(0)")
    a("s_barrier")
    a("ds_read_b128 v[32:35], v8")
    a("ds_read_b128 v[36:39], v9")
    a("s_waitcnt lgkmcnt(1)")
    a("buffer_store_dwordx4 v[32:35], v12, s[16:19], 0 offen")
    a("v_cmp_gt_u32 vcc, 16, v1")
    a("s_and_saveexec_b64 s[50:51], vcc")
    a("s_waitcnt lgkmcnt(0)")
    a("buffer_store_dwordx4 v[36:39], v13, s[16:19], 0 offen")
    a("s_mov_b64 exec, s[50:51]")


T_OST, T_G, T_B, T_RW, T_XCH, T_OUT = 140, 141, 142, 143, 147, 148
T_GV, T_GM = 150, 151
T_FS, T_FL = 152, 153


def k2_tail_setup(a):
    a("s_lshr_b32 s66, s2, 5")
    a("s_lshl_b32 s66, s66, 2")
    a("s_bfe_u32 s67, s2, 0x20001")
    a("s_add_u32 s66, s66, s67")
    a("s_and_b32 s67, s2, 1")
    a("s_lshl_b32 s67, s67, 2")
    a("s_bfe_u32 s68, s2, 0x20003")
    a("s_add_u32 s67, s67, s68")
    a("s_and_b32 s58, s38, 3")
    a("s_lshr_b32 s57, s38, 2")
    a("s_mov_b32 s59, 0")
    a("s_add_u32 s61, s38, 8")
    a("s_add_u32 s62, s38, 16")
    a("s_cmp_lt_u32 s38, 4")
    a("s_cselect_b32 s62, s62, s61")
    a("s_mov_b32 s60, s38")
    a("s_mul_i32 s68, s67, 102400")
    a(f"s_add_u32 s68, s68, {4 * 20480}")
    for i in range(3):
        a(f"s_lshl_b32 s{60 + i}, s{60 + i}, 10")
        a(f"s_add_u32 s{63 + i}, s{60 + i}, {K2_W4}")
        a(f"s_add_u32 s{60 + i}, s{60 + i}, s68")
    a("s_lshl_b32 s56, s66, 2")
    a("s_add_u32 s56, s56, s58")
    a("s_mul_i32 s56, s56, 20480")
    a("s_lshl_b32 s68, s57, 11")
    a("s_add_u32 s70, s56, s68")
    for i in range(1, 5):
        a(f"s_add_u32 s{70 + i}, s70, {4096 * i}")
    a("v_lshrrev_b32 v118, 4, v1")
    a("v_and_b32 v119, 15, v1")
    a("s_lshl_b32 s68, s66, 6")
    a("s_lshl_b32 s69, s58, 4")
    a("s_add_u32 s68, s68, s69")
    a("v_add_u32 v3, s68, v119")
    a(f"v_lshlrev_b32 v{T_G}, 2, v3")
    a("v_mul_u32_u24 v3, 1280, v3")
    a("s_mul_i32 s68, s67, 160")
    a("s_mul_i32 s69, s57, 96")
    a("s_add_u32 s68, s68, s69")
    a("v_add_u32 v3, s68, v3")
    a(f"v_lshl_add_u32 v{T_OUT + 1}, v118, 3, v3")
    a("v_and_b32 v2, 1, v118")
    a("v_lshl_add_u32 v3, v2, 5, v3")
    a("v_lshrrev_b32 v2, 1, v118")
    a(f"v_lshl_add_u32 v{T_OUT}, v2, 4, v3")
    a("s_mul_i32 s68, s58, 2560")
    a("s_mul_i32 s69, s57, 1536")
    a("s_add_u32 s68, s68, s69")
    a(f"s_add_u32 s68, s68, {K2_B}")
    a("v_lshlrev_b32 v2, 3, v1")
    a(f"v_add_u32 v{T_B}, s68, v2")
    a("s_mul_i32 s68, s57, 10240")
    a(f"s_add_u32 s68, s68, {K2_W4}")
    wread_addr(a, T_RW, T_RW + 1, 68, 118, 119)
    a(f"v_add_u32 v{T_RW + 2}, {3 * 20480}, v{T_RW}")
    a(f"v_add_u32 v{T_RW + 3}, {3 * 20480}, v{T_RW + 1}")
    a("s_mul_i32 s68, s58, 5120")
    a(f"s_add_u32 s68, s68, {K2_XCH}")
    a(f"v_add_u32 v{T_XCH}, s68, v16")
    a("s_lshl_b32 s68, s37, 3")
    a("s_add_u32 s68, s68, s38")
    a("s_lshl_b32 s68, s68, 10")
    a("s_lshl_b32 s69, s36, 2")
    a("s_add_u32 s68, s68, s69")
    a(f"s_add_u32 s68, s68, {WS_F - WS_G}")
    a("v_lshlrev_b32 v2, 7, v1")
    a(f"v_add_u32 v{T_FS}, s68, v2")
    a("s_lshl_b32 s68, s66, 1")
    a("s_lshr_b32 s69, s58, 1")
    a("s_add_u32 s68, s68, s69")
    a("s_lshl_b32 s68, s68, 3")
    a("s_add_u32 s68, s68, s67")
    a("s_lshl_b32 s68, s68, 7")
    a(f"s_add_u32 s68, s68, {WS_F - WS_G}")
    a(f"v_lshl_add_u32 v{T_FL}, v17, 2, s68")
    if XP_SEN == 3:
        srd_off(a, 16, 8, 9, WS_CNT, 65536)
        a("s_lshl_b32 s75, s37, 13")
        a("s_lshl_b32 s76, s2, 8")
        a(f"v_mov_b32 v{T_FS}, 1")
        a(f"v_lshlrev_b32 v{T_FL}, 8, v1")
    a("s_lshl_b32 s68, s37, 8")
    a("s_lshl_b32 s69, s38, 5")
    a("s_add_u32 s68, s68, s69")
    a("v_add_u32 v2, s68, v17")
    a("v_lshrrev_b32 v3, 4, v2")
    a("v_mul_u32_u24 v3, 20480, v3")
    a("v_and_b32 v2, 15, v2")
    a("v_lshl_add_u32 v2, v2, 4, v3")
    a("s_mul_i32 s68, s36, 20")
    a("v_lshl_add_u32 v3, v18, 2, s68")
    a("v_lshrrev_b32 v19, 3, v3")
    a("v_lshl_add_u32 v2, v19, 8, v2")
    a("v_and_b32 v3, 4, v3")
    a(f"v_lshl_add_u32 v{T_OST}, v3, 1, v2")


T_AF = 68
T_WF = (28, 48)
T_ACC = 108
T_T2 = 128


def k2_tail_loads(a):
    a(f"buffer_load_dword v{T_GV}, v{T_G}, s[32:35], 0 offen sc1")
    for t in range(10):
        a(t2_load(t))


def t2_load(t):
    st, i = t >> 1, t & 1
    return f"buffer_load_dwordx4 {vr(T_AF + 4 * t, 4)}, v16, s[20:23], s{70 + st} offen offset:{1024 * i} sc1"


def k2_tail2(a):
    AF, WF, ACC, T2 = T_AF, T_WF, T_ACC, T_T2
    BV = 152 + 6
    prof(a, 16)

    def reads(t):
        st, i = t >> 1, t & 1
        pos = (st + 1) % 5
        hi = 1 if pos >= 3 else 0
        so = (pos - 3 * hi) * 20480
        r = []
        for n in range(5):
            off = so + i * 5120 + n * 32
            r.append(f"ds_read_b64_tr_b16 {vr(WF[i] + 4 * n, 2)}, v{T_RW + 2 * hi} offset:{off}")
            r.append(f"ds_read_b64_tr_b16 {vr(WF[i] + 4 * n + 2, 2)}, v{T_RW + 2 * hi + 1} offset:{off}")
        return r

    def mf(t):
        for n in range(5):
            d = ACC + 4 * n
            a(f"v_mfma_f32_16x16x32_bf16 {vr(d, 4)}, {vr(WF[t & 1] + 4 * n, 4)}, {vr(AF + 4 * t, 4)}, {vr(d, 4)}")

    def check(t):
        r = AF + 4 * t
        a(f"v_max3_u32 v2, v{r}, v{r + 1}, v{r + 2}")
        a(f"v_max_u32 v2, v2, v{r + 3}")
        a("v_cmp_eq_u32 vcc, -1, v2")
        a("s_nop 4")

    if XP_SEN == 3:
        a("s_cmp_lg_u32 s38, 0")
        a("s_cbranch_scc1 K2_T1")
        a("s_mov_b32 exec_hi, 0")
        a(f"buffer_atomic_add v{T_FS}, v{T_FL}, s[16:19], s75 offen")
        a("s_mov_b32 exec_hi, -1")
        a.label("K2_T1")
    for n in range(3):
        a(f"ds_read_b64 {vr(BV + 2 * n, 2)}, v{T_B} offset:{512 * n}")
    for r in reads(0) + reads(1):
        a(r)
    for i in range(20):
        a(f"v_mov_b32 v{ACC + i}, 0")
    a("s_mov_b32 s40, 0")
    a("s_mov_b32 s41, 0")
    if XP_SEN == 3:
        a("s_cmp_lg_u32 s38, 0")
        a("s_cbranch_scc1 K2_T3")
        a("v_mov_b32 v4, 0")
        a.label("K2_T2")
        a("buffer_load_dword v2, v4, s[16:19], s76 offen sc1")
        a("s_add_u32 s41, s41, 1")
        a("s_waitcnt vmcnt(0)")
        a("v_readfirstlane_b32 s44, v2")
        a("s_cmp_ge_u32 s44, 32")
        a("s_cbranch_scc1 K2_T3")
        a(f"s_sleep {XP_SLP}")
        a("s_cmp_lt_u32 s41, 0x100000")
        a("s_cbranch_scc1 K2_T2")
        a.label("K2_T3")
        a("s_barrier")
        a(f"buffer_load_dword v{T_GV}, v{T_G}, s[32:35], 0 offen sc1")
        for t in range(10):
            a(t2_load(t))
        prof(a, 17)
        a("s_waitcnt vmcnt(10)")
        a("s_branch K2_GOK")
    a("s_waitcnt vmcnt(0)")
    a.label("K2_GCHK")
    a(f"v_cmp_eq_u32 vcc, -1, v{T_GV}")
    a("s_nop 4")
    a("s_cbranch_vccz K2_GOK")
    a(f"buffer_load_dword v{T_GV}, v{T_G}, s[32:35], 0 offen sc1")
    a("s_add_u32 s41, s41, 1")
    a("s_cmp_lt_u32 s41, 0x100000")
    a("s_waitcnt vmcnt(0)")
    a("s_cbranch_scc1 K2_GCHK")
    a.label("K2_GOK")
    a(f"v_sub_f32 v{T_GM}, 1.0, v{T_GV}")
    a(f"v_cvt_pk_bf16_f32 v{T_GM}, v{T_GM}, v{T_GM}")
    a(f"v_lshlrev_b32 v{T_GM}, 16, v{T_GM}")
    a("s_waitcnt lgkmcnt(15)")
    for p in range(6):
        a(f"v_lshlrev_b32 v4, 16, v{BV + p}")
        a(f"v_and_b32 v5, 0xffff0000, v{BV + p}")
        a(f"v_mul_f32 v4, v{T_GM}, v4")
        a(f"v_mul_f32 v5, v{T_GM}, v5")
        a("v_cvt_pk_bf16_f32 v4, v4, v5")
        a(f"v_lshlrev_b32 v{T2 + 2 * p}, 16, v4")
        a(f"v_and_b32 v{T2 + 2 * p + 1}, 0xffff0000, v4")
    if XP_SEN == 3:
        a("s_branch K2_GO")
    a.label("K2_POLL")
    a(f"buffer_load_dword v2, v{T_FL}, s[32:35], 0 offen sc1")
    a("s_add_u32 s41, s41, 1")
    a("s_waitcnt vmcnt(0)")
    a("v_cmp_eq_u32 vcc, -1, v2")
    a("s_nop 4")
    a("s_cbranch_vccz K2_PDONE")
    if XP_SLP:
        a(f"s_sleep {XP_SLP}")
    a("s_cmp_lt_u32 s41, 0x100000")
    a("s_cbranch_scc1 K2_POLL")
    a.label("K2_PDONE")
    for t in range(10):
        a(t2_load(t))
    prof(a, 17)
    a.label("K2_GO")
    for t in range(10 if XP_SEN >= 2 else 0):
        a(f"s_waitcnt vmcnt({9 - t}) lgkmcnt({10 if t < 9 else 0})")
        mf(t)
        if t + 2 < 10:
            for r in reads(t + 2):
                a(r)
    for t in range(10 if XP_SEN == 1 else 0):
        a(f"s_waitcnt vmcnt({9 - t})")
        check(t)
        a(f"s_cbranch_vccz K2_OK{t}")
        a(f"s_bitset1_b32 s40, {t}")
        a(f"s_branch K2_NX{t}")
        a.label(f"K2_OK{t}")
        a(f"s_waitcnt lgkmcnt({10 if t < 9 else 0})")
        mf(t)
        a.label(f"K2_NX{t}")
        if t + 2 < 10:
            for r in reads(t + 2):
                a(r)
    if XP_SEN >= 2:
        a("s_branch K2_ALL")
    a.label("K2_RETRY")
    a("s_cmp_eq_u32 s40, 0")
    a("s_cbranch_scc1 K2_ALL")
    for t in range(10):
        a(f"s_bitcmp1_b32 s40, {t}")
        a(f"s_cbranch_scc0 K2_RL{t}")
        a(t2_load(t))
        a.label(f"K2_RL{t}")
    a("s_add_u32 s41, s41, 1")
    a("s_cmp_ge_u32 s41, 0x100000")
    a("s_cbranch_scc1 K2_ALL")
    a("s_waitcnt vmcnt(0)")
    for t in range(10):
        a(f"s_bitcmp1_b32 s40, {t}")
        a(f"s_cbranch_scc0 K2_RN{t}")
        check(t)
        a(f"s_cbranch_vccnz K2_RN{t}")
        for r in reads(t):
            a(r)
        a(f"s_bitset0_b32 s40, {t}")
        a("s_waitcnt lgkmcnt(0)")
        mf(t)
        a.label(f"K2_RN{t}")
    a("s_branch K2_RETRY")
    a.label("K2_ALL")
    prof(a, 18)
    a("s_nop 7")
    XR = 28
    a("s_cmp_eq_u32 s57, 0")
    a("s_cbranch_scc0 K2_X1")
    for n in (3, 4):
        a(f"ds_write_b128 v{T_XCH}, {vr(ACC + 4 * n, 4)} offset:{1024 * n}")
    a("s_waitcnt lgkmcnt(0)")
    a("s_barrier")
    for n in range(3):
        a(f"ds_read_b128 {vr(XR + 4 * n, 4)}, v{T_XCH} offset:{1024 * n}")
    a("s_branch K2_FIN")
    a.label("K2_X1")
    for n in range(3):
        a(f"ds_write_b128 v{T_XCH}, {vr(ACC + 4 * n, 4)} offset:{1024 * n}")
    a("s_waitcnt lgkmcnt(0)")
    a("s_barrier")
    for n in (3, 4):
        a(f"ds_read_b128 {vr(XR + 4 * (n - 3), 4)}, v{T_XCH} offset:{1024 * n}")
    for i in range(8):
        a(f"v_mov_b32 v{ACC + i}, v{ACC + 12 + i}")
    a.label("K2_FIN")
    R = 160
    for n in range(3):
        if n == 2:
            a("s_nop 1")
            a(f"v_permlane16_swap_b32 v{R}, v{R + 2}")
            a(f"v_permlane16_swap_b32 v{R + 1}, v{R + 3}")
            a("s_nop 1")
            a(f"buffer_store_dwordx4 {vr(R, 4)}, v{T_OUT}, s[28:31], 0 offen")
            a("s_cmp_eq_u32 s57, 0")
            a("s_cbranch_scc0 K2_PEND")
        a(f"s_waitcnt lgkmcnt({(1, 0, 0)[n]})" if n else "s_waitcnt lgkmcnt(1)")
        for h in range(2):
            e = ACC + 4 * n + 2 * h
            x = XR + 4 * n + 2 * h
            p = 2 * n + h
            a(f"v_pk_add_f32 {vr(e, 2)}, {vr(e, 2)}, {vr(x, 2)}")
            a(f"v_cvt_pk_bf16_f32 v6, v{e}, v{e + 1}")
            a("v_lshlrev_b32 v4, 16, v6")
            a("v_and_b32 v5, 0xffff0000, v6")
            a(f"v_mul_f32 v4, v{T_GV}, v4")
            a(f"v_mul_f32 v5, v{T_GV}, v5")
            a("v_cvt_pk_bf16_f32 v6, v4, v5")
            a("v_lshlrev_b32 v4, 16, v6")
            a("v_and_b32 v5, 0xffff0000, v6")
            a(f"v_pk_add_f32 v[4:5], v[4:5], {vr(T2 + 2 * p, 2)}")
            a(f"v_cvt_pk_bf16_f32 v{R + p}, v4, v5")
    a(f"buffer_store_dwordx2 {vr(R + 4, 2)}, v{T_OUT + 1}, s[28:31], 0 offen offset:64")


def k2():
    a = Asm()
    a.label("k2_kernel")
    if PROF:
        a("s_memtime s[86:87]")
    a("s_cmp_ge_u32 s2, 256")
    a("s_cbranch_scc1 K2_END")
    a("s_and_b32 s3, s2, 7")
    a("s_lshl_b32 s3, s3, 2")
    a("s_lshr_b32 s4, s2, 3")
    a("s_and_b32 s4, s4, 3")
    a("s_add_u32 s36, s3, s4")
    a("s_lshr_b32 s37, s2, 5")
    if XP_QX:
        a("s_lshr_b32 s36, s2, 3")
        a("s_and_b32 s37, s2, 7")
    a("s_load_dwordx2 s[4:5], s[0:1], 0")
    a("s_load_dwordx2 s[6:7], s[0:1], 48")
    a("s_load_dwordx2 s[8:9], s[0:1], 72")
    if XP_SEN:
        a("s_load_dwordx2 s[10:11], s[0:1], 56")
    a("v_and_b32 v1, 63, v0")
    a("v_lshrrev_b32 v2, 6, v0")
    a("s_nop 0")
    a("v_readfirstlane_b32 s38, v2")
    a("s_waitcnt lgkmcnt(0)")
    a("s_cmp_ge_u32 s38, 8")
    a("s_cbranch_scc1 K2_FFN")
    a("s_setprio 1")
    srd_off(a, 12, 8, 9, WS_KV, SZ_KV)
    srd_off(a, 16, 8, 9, WS_Q, SZ_Q)
    srd_off(a, 20, 8, 9, WS_O, SZ_O)
    if XP_SEN:
        srd_off(a, 24, 8, 9, WS_WO, SZ_WO)
        srd(a, 28, 10, 11, SZ_OUT)
    else:
        srd(a, 24, 4, 5, SZ_X)
        srd(a, 28, 6, 7, 1280)
    srd_off(a, 32, 8, 9, WS_G, WS_F + SZ_F - WS_G if XP_SEN else SZ_G)
    prof_init(a, 8, 9, 38, 1)
    prof(a, 0)
    a("v_lshlrev_b32 v16, 4, v1")
    a("s_mul_i32 s46, s38, 3072")
    a("s_cmp_lt_u32 s38, 7")
    a("s_cselect_b64 s[54:55], -1, 0")
    a(f"s_mul_i32 s45, s36, {HEAD_KV}")
    a("s_add_u32 s45, s45, s46")
    a("s_mov_b32 s44, s45")
    a("s_mov_b32 s41, 0")
    a(f"s_mov_b32 s42, {K2_BUF}")
    a(f"s_mov_b32 s43, {2 * K2_BUF}")
    a("s_mov_b32 s40, 0")
    a("v_and_b32 v17, 31, v1")
    a("v_lshrrev_b32 v18, 5, v1")
    a("s_lshl_b32 s47, s37, 8")
    a("s_lshl_b32 s48, s38, 5")
    a("s_add_u32 s47, s47, s48")
    a("v_add_u32 v2, s47, v17")
    a("v_mul_u32_u24 v2, 48, v2")
    a("s_mul_i32 s48, s36, 98304")
    a("v_add_u32 v2, s48, v2")
    a("v_lshl_add_u32 v3, v18, 4, v2")
    a("buffer_load_dwordx4 v[20:23], v3, s[16:19], 0 offen")
    a("buffer_load_dwordx2 v[24:25], v2, s[16:19], 0 offen offset:32")
    for sg in (41, 42):
        a(f"s_add_u32 m0, s{sg}, s46")
        a("s_nop 0")
        for j in range(3):
            if j == 2 and XP_FUSE:
                a("s_mov_b64 exec, s[54:55]")
            a(f"buffer_load_dwordx4 v16, s[12:15], s44 offen offset:{1024 * j} lds")
        if XP_FUSE:
            a("s_mov_b64 exec, -1")
        a("s_add_u32 s44, s44, 23040")
    a("v_mov_b32 v2, 0")
    a(f"v_mov_b32 v3, {K2_FLAG}")
    a("ds_write_b32 v3, v2")
    if not XP_GF:
        a("s_lshl_b32 s48, s37, 8")
        a("s_lshl_b32 s49, s36, 3")
        a("s_add_u32 s48, s48, s49")
        a("s_add_u32 s48, s48, s38")
        a("s_mul_i32 s49, s48, 1280")
        a("v_mul_u32_u24 v2, 20, v1")
        a("buffer_load_dwordx4 v[116:119], v2, s[24:27], s49 offen")
        a("buffer_load_dword v120, v2, s[24:27], s49 offen offset:16")
        a("buffer_load_dwordx4 v[122:125], v2, s[28:31], 0 offen")
        a("buffer_load_dword v126, v2, s[28:31], 0 offen offset:16")
    a("v_mul_u32_u24 v2, 48, v17")
    a("v_lshl_add_u32 v12, v18, 4, v2")
    a("v_add_u32 v13, 32, v2")
    if XP_K8:
        a("v_lshl_add_u32 v13, v18, 3, v13")
    a("v_bfe_u32 v3, v17, 2, 2")
    a("v_lshlrev_b32 v2, 6, v17")
    a("v_add_u32 v2, 1536, v2")
    a("v_xor_b32 v19, v18, v3")
    a("v_lshl_add_u32 v14, v19, 4, v2")
    a("v_add_u32 v19, 2, v18")
    a("v_xor_b32 v19, v19, v3")
    a("v_lshl_add_u32 v15, v19, 4, v2")
    if XP_SEN:
        k2_tail_setup(a)
    a("s_waitcnt vmcnt(6)" if (XP_GF and XP_ES) else "s_waitcnt vmcnt(0)")
    if not XP_GF:
        gate_compute(a, 116, 122, 48, 32)
    a("v_cmp_eq_u32 vcc, 0, v18")
    a("s_nop 1")
    a("v_cndmask_b32 v24, 0, v24, vcc")
    a("v_cndmask_b32 v25, 0, v25, vcc")
    a("v_mov_b32 v26, 0")
    a("v_mov_b32 v27, 0")
    a("s_mov_b32 s39, 0")

    QF0, QF1 = 20, 24
    KF = (28, 36)
    VF = (44, 52)
    P = 60
    S = (68, 84)
    O = 100

    def dma_stage(lds_sreg):
        a(f"s_add_u32 m0, s{lds_sreg}, s46")
        a("s_nop 0")
        for j in range(3):
            if j == 2 and XP_FUSE:
                a("s_mov_b64 exec, s[54:55]")
            a(f"buffer_load_dwordx4 v16, s[12:15], s44 offen offset:{1024 * j} lds")
        if XP_FUSE:
            a("s_mov_b64 exec, -1")
        a("s_add_u32 s44, s44, 23040")

    def set_addrs(dst, sbase):
        for i in range(4):
            a(f"v_add_u32 v{dst + i}, s{sbase}, v{12 + i}")

    def kread(st, idx):
        base = 4 if idx < 8 else 8
        off = (idx % 8) * 2880
        if XP_K8:
            return [f"ds_read_b128 {vr(KF[st], 4)}, v{base} offset:{off}",
                    f"ds_read_b64 {vr(KF[st] + 4, 2)}, v{base + 1} offset:{off}"]
        return [f"ds_read_b128 {vr(KF[st], 4)}, v{base} offset:{off}",
                f"ds_read_b128 {vr(KF[st] + 4, 4)}, v{base + 1} offset:{off}"]

    def qk2(st, sd):
        if XP_K8:
            return f"v_mfma_f32_32x32x8bf16_1k {vr(sd, 16)}, {vr(KF[st] + 4, 2)}, {vr(QF1, 2)}, {vr(sd, 16)}"
        return f"v_mfma_f32_32x32x16_bf16 {vr(sd, 16)}, {vr(KF[st] + 4, 4)}, {vr(QF1, 4)}, {vr(sd, 16)}"

    def vread(st, idx):
        base = 4 if idx < 8 else 8
        off = (idx % 8) * 2880
        return [f"ds_read_b128 {vr(VF[st], 4)}, v{base + 2} offset:{off}",
                f"ds_read_b128 {vr(VF[st] + 4, 4)}, v{base + 3} offset:{off}"]

    def qk(st, sst):
        a(f"v_mfma_f32_32x32x16_bf16 {vr(S[sst], 16)}, {vr(KF[st], 4)}, {vr(QF0, 4)}, 0")
        a(qk2(st, S[sst]))

    def set_m_from(mreg):
        a(f"v_mov_b32 v3, v{mreg}")
        a("s_nop 1")
        a(f"v_permlane32_swap_b32 v{mreg}, v3")
        a("s_nop 1")
        a(f"v_max_f32 v2, v{mreg}, v3")
        a("v_and_b32 v3, 0xffff0000, v2")
        a("v_sub_f32 v2, v2, v3")
        a("v_and_b32 v19, 0xffff0000, v2")
        a("v_sub_f32 v2, v2, v19")
        a("v_xor_b32 v3, 0x80000000, v3")
        a("v_xor_b32 v19, 0x80000000, v19")
        a("v_xor_b32 v2, 0x80000000, v2")
        a("v_lshrrev_b32 v3, 16, v3")
        a("v_or_b32 v3, v3, v19")
        a("v_lshrrev_b32 v2, 16, v2")
        a("v_cmp_eq_u32 vcc, 0, v18")
        a("s_nop 1")
        if XP_K8:
            a("v_cndmask_b32 v24, v3, v24, vcc")
            a("v_cndmask_b32 v25, v2, v25, vcc")
        else:
            a("v_cndmask_b32 v26, 0, v3, vcc")
            a("v_cndmask_b32 v27, 0, v2, vcc")
        a("s_nop 1")

    def start_stream():
        a("s_mov_b32 s44, s45")
        a("s_mov_b32 s41, 0")
        a(f"s_mov_b32 s42, {K2_BUF}")
        a(f"s_mov_b32 s43, {2 * K2_BUF}")
        dma_stage(41)
        dma_stage(42)
        set_addrs(4, 41)
        set_addrs(8, 42)
        a("s_mov_b32 s40, 0")

    def stage_head(lbl):
        if XP_ES:
            a("s_cmp_eq_u32 s40, 0")
            a(f"s_cbranch_scc1 {lbl}_W0")
            a("s_waitcnt vmcnt(0)")
            a.label(lbl + "_W0")
            a("s_waitcnt vmcnt(3) lgkmcnt(0)")
        else:
            a("s_waitcnt vmcnt(0) lgkmcnt(0)")
        if XP_NOBAR:
            a("s_cmp_lg_u32 s40, 0")
            a(f"s_cbranch_scc1 {lbl}_NB")
        a("s_barrier")
        if XP_NOBAR:
            a.label(lbl + "_NB")
        a(f"s_cmp_ge_u32 s40, {1 if XP_NODMA else 6}")
        a(f"s_cbranch_scc1 {lbl}" + ("_X" if XP_SEN and lbl == "K2_NODMA" else ""))
        dma_stage(43)
        a.label(lbl)

    def stage_rotate():
        a("s_mov_b32 s47, s41")
        a("s_mov_b32 s41, s42")
        a("s_mov_b32 s42, s43")
        a("s_mov_b32 s43, s47")
        for i in range(4):
            a(f"v_mov_b32 v{4 + i}, v{8 + i}")
        set_addrs(8, 42)
        a("s_add_u32 s40, s40, 1")

    a.label("K2_MAIN")
    prof(a, 1)
    a("s_cmp_eq_u32 s39, 0")
    a("s_cbranch_scc1 K2_STARTED")
    start_stream()
    a.label("K2_STARTED")
    set_addrs(4, 41)
    set_addrs(8, 42)
    for i in range(16):
        a(f"v_mov_b32 v{O + i}, 0")
    for i in range(4):
        a(f"v_mov_b32 v{P + 4 + i}, 0")
        a(f"v_mov_b32 v{VF[1] + 4 + i}, 0")
    a.label("K2_STAGE")
    stage_head("K2_NODMA")
    a("s_cmp_lg_u32 s40, 0")
    a("s_cbranch_scc1 K2_BODY")
    for r in kread(0, 0):
        a(r)
    a("s_cmp_lg_u32 s39, 0")
    a("s_cbranch_scc1 K2_PRIME")
    a("s_waitcnt lgkmcnt(0)")
    qk(0, 0)
    a("s_nop 15")
    a("s_nop 3")
    s0 = S[0]
    a(f"v_max3_f32 v116, v{s0}, v{s0 + 1}, v{s0 + 2}")
    for i in range(3, 15, 2):
        a(f"v_max3_f32 v116, v116, v{s0 + i}, v{s0 + i + 1}")
    a(f"v_max_f32 v116, v116, v{s0 + 15}")
    set_m_from(116)
    a.label("K2_PRIME")
    for r in kread(1, 1):
        a(r)
    for r in vread(0, 0):
        a(r)
    a("s_waitcnt lgkmcnt(4)")
    qk(0, 0)
    a("s_nop 15")
    prof(a, 2)
    a.label("K2_BODY")

    def body(par):
        for t in range(8):
            c = t % 2
            n = 1 - c
            sc = S[c]
            sn = S[n]

            def ex(lo):
                for i in range(lo, lo + 4):
                    a(f"v_exp_f32 v{sc + i}, v{sc + i}")

            def cv(lo):
                for i in range(lo, lo + 4):
                    a(f"v_cvt_pk_bf16_f32 v{P + i}, v{sc + 2 * i}, v{sc + 2 * i + 1}")
            if XP_PRIO:
                a(f"s_setprio {2 if (t & 1) == par else 1}")
            if XP_PR and (t == 0 or XP_PR[t] != XP_PR[t - 1]):
                a(f"s_setprio {XP_PR[t]}")
            ex(0)
            a(f"v_mfma_f32_32x32x16_bf16 {vr(O, 16)}, {vr(VF[n] + 4, 4)}, {vr(P + 4, 4)}, {vr(O, 16)}")
            ex(4)
            a("s_waitcnt lgkmcnt(0)" if XP_K8 else "s_waitcnt lgkmcnt(2)")
            a(f"v_mfma_f32_32x32x16_bf16 {vr(sn, 16)}, {vr(KF[n], 4)}, {vr(QF0, 4)}, 0")
            cv(0)
            if XP_ES and t == 6:
                a("s_cmp_lg_u32 s40, 0")
                a(f"s_cbranch_scc1 K2_MID{par}")
                a("s_waitcnt vmcnt(3)")
                a("s_barrier")
                a.label(f"K2_MID{par}")
            if not XP_NOLDS:
                for r in kread(c, t + 2):
                    a(r)
                for r in vread(n, t + 1):
                    a(r)
            ex(8)
            a(qk2(n, sn))
            ex(12)
            if not XP_K8:
                a("s_waitcnt lgkmcnt(4)")
            a(f"v_mfma_f32_32x32x16_bf16 {vr(O, 16)}, {vr(VF[c], 4)}, {vr(P, 4)}, {vr(O, 16)}")
            cv(4)

    if XP_PRIO:
        a("s_cmp_ge_u32 s38, 4")
        a("s_cbranch_scc1 K2_BODY1")
        body(0)
        a("s_branch K2_BODYE")
        a.label("K2_BODY1")
        body(1)
        a.label("K2_BODYE")
    else:
        body(0)
    stage_rotate()
    if PROF:
        a("s_memtime s[88:89]")
        a("s_waitcnt lgkmcnt(0)")
        a("v_mov_b32 v2, s88")
        a("s_lshl_b32 s90, s40, 2")
        a("v_mov_b32 v3, s90")
        a("buffer_store_dword v2, v3, s[92:95], s91 offen offset:8")
    a("s_cmp_lt_u32 s40, 8")
    a("s_cbranch_scc1 K2_STAGE")
    a("s_nop 1")
    a(f"v_mfma_f32_32x32x16_bf16 {vr(O, 16)}, {vr(VF[1] + 4, 4)}, {vr(P + 4, 4)}, {vr(O, 16)}")
    a("s_nop 15")
    a("s_nop 3")
    a("s_cmp_lg_u32 s39, 0")
    a("s_cbranch_scc1 K2_EPI")
    a("v_mov_b32 v2, 0")
    for i in range(9):
        a(f"v_fma_f32 v2, v{O + i}, 0, v2")
    a("v_mov_b32 v3, 0")
    for i in range(9, 12):
        a(f"v_fma_f32 v3, v{O + i}, 0, v3")
    a("v_cmp_eq_u32 vcc, 0, v18")
    a("s_nop 1")
    a("v_cndmask_b32 v3, 0, v3, vcc")
    a("v_add_f32 v2, v2, v3")
    a("v_cmp_u_f32 vcc, v2, v2")
    a("s_nop 4")
    a("s_cbranch_vccz K2_VOTE")
    a("v_mov_b32 v2, 1")
    a(f"v_mov_b32 v3, {K2_FLAG}")
    a("ds_write_b32 v3, v2")
    if XP_SEN:
        a("s_branch K2_NOST")
    a.label("K2_VOTE")
    a("s_branch K2_EPI")
    a.label("K2_FALL")
    if XP_SEN:
        a("s_waitcnt vmcnt(0)")
    a("s_barrier")
    a("v_mov_b32 v26, 0")
    a("v_mov_b32 v27, 0")
    a("v_cmp_eq_u32 vcc, 0, v18")
    a("s_nop 1")
    a("v_cndmask_b32 v24, 0, v24, vcc")
    a("v_cndmask_b32 v25, 0, v25, vcc")
    a(f"v_mov_b32 v117, {f32bits(float('-inf'))}")
    start_stream()
    a.label("K2_MSTAGE")
    stage_head("K2_MNODMA")
    for t in range(8):
        for r in kread(0, t):
            a(r)
        a("s_waitcnt lgkmcnt(0)")
        qk(0, 0)
        a("s_nop 15")
        a("s_nop 3")
        for i in range(0, 16, 2):
            a(f"v_max3_f32 v117, v117, v{s0 + i}, v{s0 + i + 1}")
    stage_rotate()
    a("s_cmp_lt_u32 s40, 8")
    a("s_cbranch_scc1 K2_MSTAGE")
    set_m_from(117)
    a("s_mov_b32 s39, 1")
    a("s_waitcnt vmcnt(0) lgkmcnt(0)")
    a("s_barrier")
    a("s_branch K2_MAIN")
    a.label("K2_EPI")
    if XP_SEN:
        a("s_cmp_lg_u32 s59, 0")
        a("s_cbranch_scc1 K2_NOST")
        a("s_mov_b32 s59, 1")
    a(f"v_mov_b32 v2, v{O + 8}")
    a(f"v_mov_b32 v3, v{O + 8}")
    a("s_nop 1")
    a("v_permlane32_swap_b32 v2, v3")
    a("s_nop 1")
    a("v_rcp_f32 v3, v3")
    a("s_nop 0")
    for i in range(12):
        a(f"v_mul_f32 v{O + i}, v{O + i}, v3")
    for i in range(6):
        a(f"v_cvt_pk_bf16_f32 v{P + i}, v{O + 2 * i}, v{O + 2 * i + 1}")
    if not XP_SEN:
        a("s_lshl_b32 s47, s37, 8")
        a("s_lshl_b32 s48, s38, 5")
        a("s_add_u32 s47, s47, s48")
        a("v_add_u32 v2, s47, v17")
    if XP_SEN:
        for i in range(6 if XP_SEN == 1 else 0):
            a(f"v_min_u32 v{P + i}, -2, v{P + i}")
        a(f"buffer_store_dwordx2 {vr(P, 2)}, v{T_OST}, s[20:23], 0 offen sc1")
        a(f"buffer_store_dwordx2 {vr(P + 2, 2)}, v{T_OST}, s[20:23], 0 offen offset:256 sc1")
        a("s_mov_b32 exec_hi, 0")
        a(f"buffer_store_dwordx2 {vr(P + 4, 2)}, v{T_OST}, s[20:23], 0 offen offset:512 sc1")
        if XP_SEN < 3:
            a("s_mov_b32 exec_lo, 0xff")
            if XP_SEN == 2:
                a("s_waitcnt vmcnt(0)")
            a(f"buffer_store_dword v16, v{T_FS}, s[32:35], 0 offen sc1")
        a("s_mov_b64 exec, -1")
        a.label("K2_NOST")
        if XP_SEN < 3:
            a(f"buffer_load_dword v{T_GV}, v{T_G}, s[32:35], 0 offen sc1")
            a("s_waitcnt lgkmcnt(0)")
        else:
            a("s_waitcnt vmcnt(0) lgkmcnt(0)")
        a("s_barrier")
        a("s_cmp_lg_u32 s39, 0")
        a("s_cbranch_scc1 K2_TAIL")
    elif XP_FUSE:
        a("v_lshrrev_b32 v3, 4, v2")
        a("v_mul_u32_u24 v3, 20480, v3")
        a("v_and_b32 v2, 15, v2")
        a("v_lshl_add_u32 v2, v2, 4, v3")
        a("s_mul_i32 s48, s36, 20")
        a("v_lshl_add_u32 v3, v18, 2, s48")
        a("v_lshrrev_b32 v19, 3, v3")
        a("v_lshl_add_u32 v2, v19, 8, v2")
        a("v_and_b32 v3, 4, v3")
        a("v_lshl_add_u32 v2, v3, 1, v2")
        a(f"buffer_store_dwordx2 {vr(P, 2)}, v2, s[20:23], 0 offen sc1")
        a(f"buffer_store_dwordx2 {vr(P + 2, 2)}, v2, s[20:23], 0 offen offset:256 sc1")
        a("v_cmp_eq_u32 vcc, 0, v18")
        a("s_and_saveexec_b64 s[50:51], vcc")
        a(f"buffer_store_dwordx2 {vr(P + 4, 2)}, v2, s[20:23], 0 offen offset:512 sc1")
        a("s_mov_b64 exec, s[50:51]")
        a("s_load_dwordx2 s[4:5], s[0:1], 56")
        a("s_waitcnt vmcnt(0) lgkmcnt(0)")
        a("s_barrier")
        a("s_cmp_lg_u32 s39, 0")
        a("s_cbranch_scc1 K2_TAIL")
    else:
        a("v_mul_u32_u24 v2, 1280, v2")
        a("s_mul_i32 s48, s36, 40")
        a("v_lshl_add_u32 v2, v18, 3, v2")
        a("v_add_u32 v2, s48, v2")
        a(f"buffer_store_dwordx2 {vr(P, 2)}, v2, s[20:23], 0 offen")
        a(f"buffer_store_dwordx2 {vr(P + 2, 2)}, v2, s[20:23], 0 offen offset:16")
        a("v_cmp_eq_u32 vcc, 0, v18")
        a("s_and_saveexec_b64 s[50:51], vcc")
        a(f"buffer_store_dwordx2 {vr(P + 4, 2)}, v2, s[20:23], 0 offen offset:32")
        a("s_mov_b64 exec, s[50:51]")
        a("s_cmp_lg_u32 s39, 0")
        a("s_cbranch_scc1 K2_PEND")
        a("s_waitcnt lgkmcnt(0)")
        a("s_barrier")
    a(f"v_mov_b32 v3, {K2_FLAG}")
    a("ds_read_b32 v2, v3")
    a("s_waitcnt lgkmcnt(0)")
    a("v_readfirstlane_b32 s47, v2")
    a("s_cmp_lg_u32 s47, 0")
    a("s_cbranch_scc1 K2_FALL")
    if XP_FUSE:
        a.label("K2_TAIL")
        if XP_SEN:
            k2_tail2(a)
        else:
            k2_tail(a)
    a.label("K2_PEND")
    prof(a, 12)
    a.label("K2_END")
    a("s_endpgm")
    if XP_SEN:
        a.label("K2_NODMA_X")
        a("s_cmp_lg_u32 s40, 6")
        a("s_cbranch_scc1 K2_NODMA")
        for i in range(3):
            a(f"s_mov_b32 m0, s{63 + i}")
            a("s_nop 0")
            a(f"buffer_load_dwordx4 v16, s[24:27], s{60 + i} offen lds")
        a("s_branch K2_NODMA")
    a.label("K2_FFN")
    if XP_NOFFN:
        a("s_endpgm")
    if XP_FP:
        a(f"s_setprio {XP_FP}")
    a("s_sub_u32 s38, s38, 8")
    if XP_GF:
        srd(a, 64, 4, 5, SZ_X)
        srd(a, 68, 6, 7, 1280)
        srd_off(a, 32, 8, 9, WS_G, SZ_G)
        a("s_lshl_b32 s48, s37, 8")
        a("s_lshl_b32 s49, s36, 3")
        a("s_add_u32 s48, s48, s49")
        a("s_lshl_b32 s49, s38, 1")
        a("s_add_u32 s48, s48, s49")
    a("s_load_dwordx2 s[6:7], s[0:1], 40")
    a("s_load_dwordx2 s[52:53], s[0:1], 16")
    tile_map(a, 36, 37)
    a("s_lshl_b32 s39, s36, 6")
    a("s_mul_i32 s40, s37, 160")
    a("s_mul_i32 s41, s38, 20480")
    a(f"s_add_u32 s41, s41, {K2_FFN}")
    a("s_mul_i32 s42, s38, 14")
    a("s_cmp_eq_u32 s38, 3")
    a("s_cselect_b32 s42, 41, s42")
    a("s_mul_i32 s45, s36, 54")
    a("s_add_u32 s45, s45, s42")
    a("s_lshl_b32 s45, s45, 12")
    a("s_mul_i32 s46, s42, 5120")
    a("s_mul_i32 s47, s37, 276480")
    a("s_add_u32 s46, s46, s47")
    a("s_waitcnt lgkmcnt(0)")
    srd_off(a, 16, 8, 9, WS_W2P, SZ_W2)
    srd_off(a, 24, 8, 9, WS_H, SZ_H)
    srd_off(a, 28, 8, 9, WS_B, SZ_B)
    gw_setup(a, 39, 40, 3456, 41)
    j = 0
    for k, ns in enumerate(XP_FS):
        a("s_barrier")
        if k == 0:
            if XP_GF:
                a("s_mul_i32 s49, s48, 1280")
                a("v_mul_u32_u24 v2, 20, v1")
                a("buffer_load_dwordx4 v[116:119], v2, s[64:67], s49 offen")
                a("buffer_load_dword v120, v2, s[64:67], s49 offen offset:16")
                a("buffer_load_dwordx4 v[122:125], v2, s[68:71], 0 offen")
                a("buffer_load_dword v126, v2, s[68:71], 0 offen offset:16")
                a("buffer_load_dwordx4 v[132:135], v2, s[64:67], s49 offen offset:1280")
                a("buffer_load_dword v136, v2, s[64:67], s49 offen offset:1296")
            gw_issue(a, 0, 24, 16, 45, 46, 41)
        if k == 1 and XP_PF == 1 and not XP_QX:
            srd(a, 52, 52, 53, SZ_WO)
            a("s_mul_i32 s56, s2, 3200")
            a("v_and_b32 v3, 255, v0")
            a("v_lshlrev_b32 v2, 7, v3")
            a("v_cmp_gt_u32 vcc, 25, v3")
            a("v_bfrev_b32 v3, 1")
            a("v_cndmask_b32 v2, v3, v2, vcc")
            a("buffer_load_dword v141, v2, s[52:55], s56 offen")
        for _ in range(ns):
            if XP_FPIPE:
                if j == 0:
                    gw_issue(a, 1, 24, 16, 45, 46, 41)
                    if XP_GF:
                        a("s_waitcnt vmcnt(18)")
                        gate_compute2(a, 116, 132, 122, 48, 32)
                        a("s_waitcnt vmcnt(10)")
                    else:
                        a("s_waitcnt vmcnt(9)")
                elif j < 13:
                    a("s_waitcnt vmcnt(9)")
                else:
                    a("s_waitcnt vmcnt(0)")
                    a("s_cmp_ge_u32 s38, 2")
                    a("s_cbranch_scc1 K2_FSKIP")
                gw_compute_pipe(a, j & 1, j == 0, gw_pieces(j & 1, 24, 16, 45, 46, 41) if j + 2 < 14 else [])
                if j == 0 and XP_ES:
                    a("s_barrier")
                j += 1
                continue
            if j < 13:
                gw_issue(a, (j + 1) & 1, 24, 16, 45, 46, 41)
                if j == 0 and XP_GF:
                    a("s_waitcnt vmcnt(18)")
                    gate_compute2(a, 116, 132, 122, 48, 32)
                    a("s_waitcnt vmcnt(10)")
                else:
                    a("s_waitcnt vmcnt(9)")
            else:
                a("s_waitcnt vmcnt(0)")
                a("s_cmp_ge_u32 s38, 2")
                a("s_cbranch_scc1 K2_FSKIP")
            gw_compute(a, j & 1, j == 0)
            if j == 0 and XP_ES:
                a("s_barrier")
            j += 1
    assert j == 14
    a.label("K2_FSKIP")
    if XP_FE:
        a(f"s_setprio {XP_FE}")
    a("s_nop 7")
    a("s_nop 3")
    a("s_waitcnt vmcnt(0)")
    gw_write_partials(a, 41)
    a("s_waitcnt lgkmcnt(0)")
    a("s_barrier")
    gw_read_sum(a, 38, K2_FFN)
    for e in range(0, 20, 2):
        a(f"v_cvt_pk_bf16_f32 v{112 + e // 2}, v{24 + e}, v{25 + e}")
    if XP_FUSE:
        a("s_mul_i32 s42, s38, 2560")
        a(f"s_add_u32 s42, s42, {K2_B}")
        a("v_lshlrev_b32 v2, 3, v1")
        a("v_add_u32 v2, s42, v2")
        for n in range(5):
            a(f"ds_write_b64 v2, {vr(112 + 2 * n, 2)} offset:{512 * n}")
        a("s_waitcnt lgkmcnt(0)")
        a("s_barrier")
        a("s_setprio 0")
        srd_off(a, 52, 8, 9, WS_WO, SZ_WO)
        a("s_mul_i32 s56, s37, 102400")
        a("s_mul_i32 s57, s38, 20480")
        a("s_add_u32 s56, s56, s57")
        for j in range(5):
            a(f"s_add_u32 m0, s41, {4096 * j}")
            a("s_nop 0")
            for i in range(4):
                a(f"buffer_load_dwordx4 v{GW.VA}, s[52:55], s56 offen offset:{1024 * i} lds")
            a("s_add_u32 s56, s56, 4096")
        for _ in range(8 - (len(XP_FS) + 2)):
            a("s_barrier")
        a("s_waitcnt vmcnt(0)")
        a("s_barrier")
        a("s_endpgm")
        return a.text()
    a("s_lshl_b32 s42, s36, 3")
    a("s_add_u32 s42, s42, s37")
    a("s_lshl_b32 s42, s42, 2")
    a("s_add_u32 s42, s42, s38")
    a("s_mul_i32 s42, s42, 2560")
    a("v_lshlrev_b32 v2, 3, v1")
    for n in range(5):
        a(f"buffer_store_dwordx2 {vr(112 + 2 * n, 2)}, v2, s[28:31], s42 offen offset:{512 * n}")
    if XP_PF2:
        srd_off(a, 52, 8, 9, WS_WO, SZ_WO)
        a("s_lshr_b32 s56, s2, 3")
        a("s_mul_i32 s56, s56, 12800")
        a("s_and_b32 s57, s2, 1")
        a("s_mul_i32 s57, s57, 409600")
        a("s_add_u32 s56, s56, s57")
        a("v_and_b32 v3, 255, v0")
        a("v_lshlrev_b32 v2, 7, v3")
        a("v_cmp_gt_u32 vcc, 100, v3")
        a("v_bfrev_b32 v3, 1")
        a("v_cndmask_b32 v2, v3, v2, vcc")
        a("buffer_load_dword v141, v2, s[52:55], s56 offen")
        a("s_waitcnt vmcnt(0)")
    a("s_endpgm")
    return a.text()


def wmap(a, dst, sC0B):
    a("v_mul_u32_u24 v3, 6554, v2")
    a("v_lshrrev_b32 v3, 16, v3")
    a("v_mul_u32_u24 v15, 10, v3")
    a("v_sub_u32 v2, v2, v15")
    a("v_lshrrev_b32 v15, 1, v3")
    a("v_and_b32 v15, 4, v15")
    a("v_xor_b32 v3, v3, v15")
    a("v_lshlrev_b32 v2, 4, v2")
    a("v_mul_u32_u24 v3, 1280, v3")
    a(f"v_add3_u32 v{dst}, v2, v3, s{sC0B}")


def wread_addr(a, d0, d1, sBase, G=22, U=23):
    a(f"v_lshlrev_b32 v2, 3, v{G}")
    a(f"v_lshrrev_b32 v3, 2, v{U}")
    a("v_add_u32 v2, v2, v3")
    a("v_mul_u32_u24 v2, 160, v2")
    a(f"v_and_b32 v3, 3, v{U}")
    a("v_lshlrev_b32 v3, 3, v3")
    a(f"v_add3_u32 v2, v2, v3, s{sBase}")
    a(f"v_and_b32 v3, 1, v{G}")
    a("v_mul_u32_u24 v3, 640, v3")
    a(f"v_add_u32 v{d0}, v2, v3")
    a("v_sub_u32 v2, v2, v3")
    a(f"v_add_u32 v{d1}, 640, v2")


K3_STG = 36864
K3_B = 4 * K3_STG
K3_LDS = K3_B + 10240


def k3():
    a = Asm()
    a.label("k3_kernel")
    if PROF:
        a("s_memtime s[86:87]")
    a("s_cmp_ge_u32 s2, 256")
    a("s_cbranch_scc1 K3_END")
    a("s_load_dwordx2 s[4:5], s[0:1], 16")
    a("s_load_dwordx2 s[8:9], s[0:1], 72")
    a("s_load_dwordx2 s[10:11], s[0:1], 56")
    tile_map(a, 36, 37)
    a("v_and_b32 v1, 63, v0")
    a("v_lshrrev_b32 v2, 6, v0")
    a("v_lshrrev_b32 v22, 4, v1")
    a("v_readfirstlane_b32 s38, v2")
    a("v_and_b32 v23, 15, v1")
    a("s_lshl_b32 s39, s36, 6")
    a("s_mul_i32 s40, s37, 160")
    a("s_and_b32 s49, s38, 3")
    a("s_lshr_b32 s50, s38, 2")
    a("s_lshl_b32 s42, s38, 3")
    for j in range(2):
        a(f"s_add_u32 s43, s42, {4 * j}")
        a("v_add_u32 v2, s43, v22")
        a("v_and_b32 v3, 15, v2")
        a("v_xor_b32 v3, v3, v23")
        a("v_add_u32 v2, s39, v2")
        a("v_mul_u32_u24 v2, 1280, v2")
        a(f"v_lshl_add_u32 v{4 + j}, v3, 4, v2")
    a("s_add_u32 s43, s38, 8")
    a("s_add_u32 s44, s38, 16")
    a("s_cmp_lt_u32 s38, 4")
    a("s_cselect_b32 s44, s44, s43")
    a("v_lshlrev_b32 v2, 4, v1")
    a("s_mul_i32 s55, s37, 102400")
    for j, sp in enumerate((38, 43, 44)):
        a(f"s_lshl_b32 s{52 + j}, s{sp}, 10")
        a(f"s_add_u32 s51, s{52 + j}, s55")
        a(f"v_add_u32 v{8 + j}, s51, v2")
        a(f"s_add_u32 s{52 + j}, s{52 + j}, 16384")
    a("s_lshl_b32 s45, s38, 11")
    a("s_waitcnt lgkmcnt(0)")
    srd_off(a, 12, 8, 9, WS_WO, SZ_WO)
    srd_off(a, 20, 8, 9, WS_O, SZ_O)
    srd_off(a, 24, 8, 9, WS_B, SZ_B)
    srd_off(a, 28, 8, 9, WS_G, SZ_G)
    srd(a, 32, 10, 11, SZ_OUT)
    prof_init(a, 8, 9, 38, 2)
    prof(a, 0)

    def issue(stage, slot):
        a(f"s_mov_b32 s47, {stage * 256}")
        a(f"s_mov_b32 s48, {stage * 20480}")
        for j in range(2):
            a(f"s_add_u32 m0, s45, {slot * K3_STG + j * 1024}")
            a("s_nop 0")
            a(f"buffer_load_dwordx4 v{4 + j}, s[20:23], s47 offen lds")
        for j in range(3):
            a(f"s_add_u32 m0, s{52 + j}, {slot * K3_STG}")
            a("s_nop 0")
            a(f"buffer_load_dwordx4 v{8 + j}, s[12:15], s48 offen lds")

    for st in range(4):
        issue(st, st)
    a("s_lshl_b32 s42, s36, 3")
    a("s_add_u32 s42, s42, s37")
    a("s_lshl_b32 s42, s42, 2")
    a("s_add_u32 s42, s42, s49")
    a("s_mul_i32 s42, s42, 2560")
    a("s_mul_i32 s43, s50, 1536")
    a("s_add_u32 s42, s42, s43")
    a("v_lshlrev_b32 v2, 3, v1")
    for n in range(3):
        a(f"buffer_load_dwordx2 {vr(104 + 2 * n, 2)}, v2, s[24:27], s42 offen offset:{512 * n}")
    a("s_lshl_b32 s42, s49, 4")
    a("v_add_u32 v2, s42, v23")
    a("v_add_u32 v3, s39, v2")
    a("v_lshlrev_b32 v3, 2, v3")
    a("buffer_load_dword v16, v3, s[28:31], 0 offen")
    a("v_mul_u32_u24 v2, 160, v2")
    a("v_lshl_add_u32 v2, v22, 3, v2")
    a("s_mul_i32 s43, s50, 96")
    a(f"s_add_u32 s43, s43, {K3_B}")
    a("v_add_u32 v17, s43, v2")
    for j in range(2):
        a("s_mul_i32 s43, s38, 80")
        a(f"s_add_u32 s43, s43, {64 * j}")
        a("v_add_u32 v2, s43, v1")
        a("v_mul_u32_u24 v3, 6554, v2")
        a("v_lshrrev_b32 v3, 16, v3")
        a("v_mul_u32_u24 v15, 10, v3")
        a("v_sub_u32 v15, v2, v15")
        a("v_lshlrev_b32 v15, 4, v15")
        a("v_add_u32 v3, s39, v3")
        a("v_mul_u32_u24 v3, 1280, v3")
        a(f"v_add3_u32 v{12 + j}, v3, v15, s40")
        a("v_lshlrev_b32 v2, 4, v2")
        a(f"v_add_u32 v{32 + j}, {K3_B}, v2")
    BV = 104
    RA, RW = 24, 28
    a("s_lshl_b32 s43, s49, 12")
    a("v_lshlrev_b32 v2, 8, v23")
    a("v_add_u32 v2, s43, v2")
    a("s_lshl_b32 s43, s50, 3")
    for i in range(2):
        a(f"s_add_u32 s44, s43, {4 * i}")
        a("v_add_u32 v3, s44, v22")
        a("v_xor_b32 v3, v3, v23")
        a(f"v_lshl_add_u32 v{RA + i}, v3, 4, v2")
        a(f"v_add_u32 v{RA + 2 + i}, {2 * K3_STG}, v{RA + i}")
    a("s_mul_i32 s43, s50, 10240")
    a("s_add_u32 s43, s43, 16384")
    wread_addr(a, RW, RW + 1, 43)
    a(f"v_add_u32 v{RW + 2}, {2 * K3_STG}, v{RW}")
    a(f"v_add_u32 v{RW + 3}, {2 * K3_STG}, v{RW + 1}")
    a("v_lshlrev_b32 v21, 4, v1")
    a("s_mul_i32 s43, s49, 5120")
    a(f"s_add_u32 s43, s43, {K3_STG}")
    a("v_add_u32 v21, s43, v21")
    AF = (36, 40)
    WF = (44, 64)
    ACC = 84

    def reads(t):
        st, i = t >> 1, t & 1
        slot = st % 4
        hi = slot >> 1
        so = (slot & 1) * K3_STG
        r = [f"ds_read_b128 {vr(AF[i], 4)}, v{RA + 2 * hi + i} offset:{so}"]
        for n in range(5):
            off = so + i * 5120 + n * 32
            r.append(f"ds_read_b64_tr_b16 {vr(WF[i] + 4 * n, 2)}, v{RW + 2 * hi} offset:{off}")
            r.append(f"ds_read_b64_tr_b16 {vr(WF[i] + 4 * n + 2, 2)}, v{RW + 2 * hi + 1} offset:{off}")
        return r

    def mf(t):
        for n in range(5):
            d = ACC + 4 * n
            c = "0" if t == 0 else vr(d, 4)
            a(f"v_mfma_f32_16x16x32_bf16 {vr(d, 4)}, {vr(WF[t & 1] + 4 * n, 4)}, {vr(AF[t & 1], 4)}, {c}")

    a("s_waitcnt vmcnt(19)")
    a("s_barrier")
    prof(a, 1)
    for r in reads(0) + reads(1):
        a(r)
    a("s_waitcnt vmcnt(4) lgkmcnt(0)")
    a("s_barrier")
    prof(a, 2)
    issue(4, 0)
    mf(0)
    for r in reads(2):
        a(r)
    mf(1)
    for t in range(2, 10):
        if t == 7:
            a("s_waitcnt vmcnt(0)")
            a("s_barrier")
            prof(a, 3)
        if t < 9:
            for r in reads(t + 1):
                a(r)
            a("s_waitcnt lgkmcnt(11)")
        else:
            a("s_waitcnt lgkmcnt(0)")
        mf(t)
    a("v_sub_f32 v18, 1.0, v16")
    a("v_cvt_pk_bf16_f32 v18, v18, v18")
    a("v_lshlrev_b32 v18, 16, v18")
    a("s_nop 7")
    prof(a, 6)
    XR = 44
    a("s_cmp_eq_u32 s50, 0")
    a("s_cbranch_scc0 K3_X1")
    for n in (3, 4):
        a(f"ds_write_b128 v21, {vr(ACC + 4 * n, 4)} offset:{1024 * n}")
    a("s_waitcnt lgkmcnt(0)")
    a("s_barrier")
    for n in range(3):
        a(f"ds_read_b128 {vr(XR + 4 * n, 4)}, v21 offset:{1024 * n}")
    a("s_branch K3_FIN")
    a.label("K3_X1")
    for n in range(3):
        a(f"ds_write_b128 v21, {vr(ACC + 4 * n, 4)} offset:{1024 * n}")
    a("s_waitcnt lgkmcnt(0)")
    a("s_barrier")
    for n in (3, 4):
        a(f"ds_read_b128 {vr(XR + 4 * (n - 3), 4)}, v21 offset:{1024 * n}")
    for i in range(8):
        a(f"v_mov_b32 v{ACC + i}, v{ACC + 12 + i}")
    a.label("K3_FIN")
    a("s_waitcnt lgkmcnt(0)")
    for n in range(3):
        if n == 2:
            a("s_cmp_eq_u32 s50, 0")
            a("s_cbranch_scc0 K3_CP")
        for i in range(4):
            a(f"v_add_f32 v{ACC + 4 * n + i}, v{ACC + 4 * n + i}, v{XR + 4 * n + i}")
        for h in range(2):
            e = ACC + 4 * n + 2 * h
            bp = BV + 2 * n + h
            a(f"v_cvt_pk_bf16_f32 v19, v{e}, v{e + 1}")
            a("v_lshlrev_b32 v4, 16, v19")
            a("v_and_b32 v5, 0xffff0000, v19")
            a(f"v_lshlrev_b32 v6, 16, v{bp}")
            a(f"v_and_b32 v7, 0xffff0000, v{bp}")
            a("v_mul_f32 v4, v16, v4")
            a("v_mul_f32 v5, v16, v5")
            a("v_mul_f32 v6, v18, v6")
            a("v_mul_f32 v7, v18, v7")
            a("v_cvt_pk_bf16_f32 v19, v4, v5")
            a("v_cvt_pk_bf16_f32 v20, v6, v7")
            a("v_lshlrev_b32 v4, 16, v19")
            a("v_and_b32 v5, 0xffff0000, v19")
            a("v_lshlrev_b32 v6, 16, v20")
            a("v_and_b32 v7, 0xffff0000, v20")
            a("v_add_f32 v4, v4, v6")
            a("v_add_f32 v5, v5, v7")
            a(f"v_cvt_pk_bf16_f32 v{bp}, v4, v5")
        a(f"ds_write_b64 v17, {vr(BV + 2 * n, 2)} offset:{32 * n}")
    a.label("K3_CP")
    a("s_waitcnt lgkmcnt(0)")
    a("s_barrier")
    a("ds_read_b128 v[4:7], v32")
    a("ds_read_b128 v[8:11], v33")
    a("s_waitcnt lgkmcnt(1)")
    a("buffer_store_dwordx4 v[4:7], v12, s[32:35], 0 offen")
    a("v_cmp_gt_u32 vcc, 16, v1")
    a("s_and_saveexec_b64 s[50:51], vcc")
    a("s_waitcnt lgkmcnt(0)")
    a("buffer_store_dwordx4 v[8:11], v13, s[32:35], 0 offen")
    a("s_mov_b64 exec, s[50:51]")
    a.label("K3_PEND")
    prof(a, 12)
    a.label("K3_END")
    a("s_endpgm")
    return a.text()


def desc(name, vgpr, sgpr=96):
    acc = (vgpr + 3) // 4 * 4
    return f""".amdhsa_kernel {name}
  .amdhsa_next_free_vgpr {vgpr}
  .amdhsa_next_free_sgpr {sgpr}
  .amdhsa_accum_offset {acc}
  .amdhsa_group_segment_fixed_size 0
  .amdhsa_kernarg_size 80
  .amdhsa_user_sgpr_count 2
  .amdhsa_user_sgpr_kernarg_segment_ptr 1
  .amdhsa_system_sgpr_workgroup_id_x 1
.end_amdhsa_kernel
"""


def main():
    l3 = "" if XP_FUSE else f"; @launch kernel=k3_kernel grid=(256,1,1) block=(512,1,1) lds={K3_LDS}\n"
    hdr = f"""; gated_mix__mha_block__dense_activation_relu__prompt : kernel list (generated by gen.py, hand-designed)
; @launch kernel=k1_kernel grid=(256,1,1) block=(512,1,1) lds={K1_LDS}
; @launch kernel=k2_kernel grid=(256,1,1) block=(768,1,1) lds={K2_LDS}
{l3}.amdgcn_target "amdgcn-amd-amdhsa--gfx950"
.text
"""
    body = ""
    for name, fn in (("k1_kernel", k1), ("k2_kernel", k2), ("k3_kernel", k3))[:2 if XP_FUSE else 3]:
        body += f".globl {name}\n.p2align 8\n.type {name},@function\n" + fn()
    tail = '.section .rodata,"a"\n.p2align 6\n'
    tail += desc("k1_kernel", 184)
    tail += ".p2align 6\n" + desc("k2_kernel", 168 if XP_SEN else 144)
    if not XP_FUSE:
        tail += ".p2align 6\n" + desc("k3_kernel", 116)
    open(OUT, "w").write(hdr + body + tail)


if __name__ == "__main__":
    main()
```

```python
import struct, sys

OUT = sys.argv[1] if len(sys.argv) > 1 else "gated_mix__mha_block__dense_activation_relu__prompt.s"

WS_Q = 0
HEAD_Q = 64 * 1280
SZ_Q = 32 * HEAD_Q
WS_KV = 0x400000
KV_STG = 21504
HEAD_KV = 8 * KV_STG
SZ_KV = 32 * HEAD_KV
WS_H = 0xC00000
SZ_H = 2048 * 3456
WS_O = 0x1400000
SZ_O = 2048 * 1280
WS_G = 0x1800000
SZ_G = 2048 * 4
WS_B = 0x1A00000
SZ_B = 2048 * 1280
WS_WO = 0x1E00000
WS_W2P = 0x2400000
WS_CNT = 0x2800000

SZ_X = 2048 * 1280
SZ_WQKV = 640 * 3840
SZ_WO = 640 * 1280
SZ_W1 = 640 * 3456
SZ_W2 = 1728 * 1280
SZ_OUT = 2048 * 1280


def f32bits(x):
    return struct.unpack("<I", struct.pack("<f", x))[0]


C_SCALE = 1.4426950408889634 / (20 ** 0.5)
LOG2E = 1.4426950408889634


PROF = int(__import__("os").environ.get("PROF", "0"))
WS_T = 0x2000000
XP_PF = int(__import__("os").environ.get("XP_PF", "0"))
XP_ROT = int(__import__("os").environ.get("XP_ROT", "1"))
XP_PRIO = int(__import__("os").environ.get("XP_PRIO", "0"))
XP_RPM = int(__import__("os").environ.get("XP_RPM", "1"))
XP_DSL = eval(__import__("os").environ.get("XP_DSL", "(7, 10, 13)"))
XP_FDEL = int(__import__("os").environ.get("XP_FDEL", "1"))
XP_FS = eval(__import__("os").environ.get("XP_FS", "(1, 3, 3, 3, 2, 2)"))
XP_QX = int(__import__("os").environ.get("XP_QX", "0"))
XP_PF2 = int(__import__("os").environ.get("XP_PF2", "0"))
XP_NOLDS = int(__import__("os").environ.get("XP_NOLDS", "0"))
XP_NOFFN = int(__import__("os").environ.get("XP_NOFFN", "0"))
XP_K8 = int(__import__("os").environ.get("XP_K8", "1"))
XP_PR = eval(__import__("os").environ.get("XP_PR", "(3, 3, 3, 2, 2, 2, 1, 1)"))
XP_FP = int(__import__("os").environ.get("XP_FP", "0"))
XP_FE = int(__import__("os").environ.get("XP_FE", "3"))
XP_FPIPE = int(__import__("os").environ.get("XP_FPIPE", "1"))
XP_FB = int(__import__("os").environ.get("XP_FB", "2"))
XP_FUSE = int(__import__("os").environ.get("XP_FUSE", "1"))
XP_ES = int(__import__("os").environ.get("XP_ES", "1"))
XP_FJ = int(__import__("os").environ.get("XP_FJ", "1"))
XP_GF = int(__import__("os").environ.get("XP_GF", "1"))
XP_NODMA = int(__import__("os").environ.get("XP_NODMA", "0"))
XP_NOBAR = int(__import__("os").environ.get("XP_NOBAR", "0"))


def prof_init(a, wsl, wsh, wave_s, kidx=0):
    if not PROF:
        return
    a(f"s_add_u32 s92, s{wsl}, {WS_T + kidx * 0x100000}")
    a(f"s_addc_u32 s93, s{wsh}, 0")
    a("s_and_b32 s93, s93, 0xffff")
    a("s_mov_b32 s94, 0x100000")
    a("s_mov_b32 s95, 0x00020000")
    a("s_lshl_b32 s91, s2, 4")
    a(f"s_add_u32 s91, s91, s{wave_s}")
    a("s_lshl_b32 s91, s91, 7")


def prof(a, slot, tmpv=2):
    if not PROF:
        return
    a("s_memtime s[88:89]")
    a("s_waitcnt lgkmcnt(0)")
    a(f"v_mov_b32 v{tmpv}, s88")
    a(f"v_mov_b32 v{tmpv + 1}, 0")
    a(f"buffer_store_dword v{tmpv}, v{tmpv + 1}, s[92:95], s91 offen offset:{4 * slot}")
    if slot == 0:
        a(f"v_mov_b32 v{tmpv}, s86")
        a(f"buffer_store_dword v{tmpv}, v{tmpv + 1}, s[92:95], s91 offen offset:60")
    if slot in (0, 12):
        a("s_memrealtime s[88:89]")
        a("s_waitcnt lgkmcnt(0)")
        a(f"v_mov_b32 v{tmpv}, s88")
        a(f"buffer_store_dword v{tmpv}, v{tmpv + 1}, s[92:95], s91 offen offset:{4 * (13 if slot == 0 else 14)}")


class Asm:
    def __init__(self):
        self.lines = []

    def __call__(self, s):
        self.lines.append("    " + s)

    def label(self, l):
        self.lines.append(l + ":")

    def c(self, s):
        self.lines.append("    ; " + s)

    def text(self):
        return "\n".join(self.lines) + "\n"


def vr(b, n=1):
    return f"v{b}" if n == 1 else f"v[{b}:{b + n - 1}]"


def sr(b, n=1):
    return f"s{b}" if n == 1 else f"s[{b}:{b + n - 1}]"


def srd(a, d, lo, hi, size):
    a(f"s_mov_b32 s{d}, s{lo}")
    a(f"s_and_b32 s{d + 1}, s{hi}, 0xffff")
    a(f"s_mov_b32 s{d + 2}, {size}")
    a(f"s_mov_b32 s{d + 3}, 0x00020000")


def srd_off(a, d, lo, hi, off, size):
    a(f"s_add_u32 s{d}, s{lo}, {off}")
    a(f"s_addc_u32 s{d + 1}, s{hi}, 0")
    a(f"s_and_b32 s{d + 1}, s{d + 1}, 0xffff")
    a(f"s_mov_b32 s{d + 2}, {size}")
    a(f"s_mov_b32 s{d + 3}, 0x00020000")


def _env(n, d):
    return int(__import__("os").environ.get(n, str(d)))


XP_N1 = _env("XP_N1", 3)
XP_KEEP = _env("XP_KEEP", 3)
XP_FILL = _env("XP_FILL", 2)
XP_R1 = _env("XP_R1", 1)
XP_MAXQ = _env("XP_MAXQ", 13)
XP_T1 = _env("XP_T1", 1)
XP_TB = _env("XP_TB", 3)
K1_P = 32
K1_LDS = K1_P * 4096
K1_NW = 232


def k1_plan(n):
    segs = []
    for s in range(10):
        items = []
        mf = []
        for q in range(4):
            items.append(("W", s, q))
            if q < n:
                items.append(("X", q, s))
            for b in range(n):
                mf.append(dict(b=b, ks=4 * s + q, x=("X", b, s), sub=q, w=("W", s, q) if b == 0 else None))
        segs.append(dict(items=items, mf=mf, lag=1))
    for b in range(n, 8):
        for h in range(2):
            items = [("X", b, w) for w in range(5 * h, 5 * h + 5)]
            mf = [dict(b=b, ks=4 * w + q, x=("X", b, w), sub=q, w=None)
                  for w in range(5 * h, 5 * h + 5) for q in range(4)]
            segs.append(dict(items=items, mf=mf, lag=2))
    page = {}
    order = []
    for j, sg in enumerate(segs):
        for it in sg["items"]:
            page[it] = len(order) % K1_P
            order.append((it, j))
        for m in sg["mf"]:
            m["seg"] = j
    return segs, page, order


K1_INC = (0, 1, 22, 23)


def k1_compute(a, mode, segs, page):
    WR, ACC, XR, R = 96, 48, 24, 6
    XB, WB, IA = 4, 12, 14
    NS = 3
    mfs = [m for sg in segs for m in sg["mf"]]
    NM = len(mfs)
    last = {}
    first = {}
    for i, m in enumerate(mfs):
        last[m["b"]] = i
        first.setdefault(m["b"], i)
    st = dict(n=0, done=-1, bar=-1)

    def lds(txt):
        a(txt)
        st["n"] += 1
        return st["n"] - 1

    def wait(i):
        if i > st["done"]:
            c = min(15, st["n"] - 1 - i)
            a(f"s_waitcnt lgkmcnt({c})")
            st["done"] = st["n"] - 1 - c

    def barrier(full):
        if full:
            wait(st["n"] - 1)
        a("s_barrier")
        st["bar"] += 1
        if XP_T1 == 1 and st["bar"] == XP_TB:
            a("buffer_load_dword v19, v18, s[12:15], s33 offen")
        if st["bar"] in (0, 3, 6, 9):
            prof(a, 1 + st["bar"] // 3)
        elif st["bar"] >= 10 and st["bar"] % 2 == 0 and 5 + (st["bar"] - 10) // 2 <= 11:
            prof(a, 5 + (st["bar"] - 10) // 2)

    def epi(b):
        A = ACC + 16 * (b % NS)
        ops = []
        if mode in ("f", "v"):
            for jj in range(2):
                for i in range(4):
                    ops.append(f"v_cvt_pk_bf16_f32 v{A + 4 * jj + i}, v{A + 8 * jj + 2 * i}, v{A + 8 * jj + 2 * i + 1}")
                if mode == "f":
                    for i in range(4):
                        ops.append(f"v_pk_max_i16 v{A + 4 * jj + i}, v{A + 4 * jj + i}, 0")
                ops.append(f"buffer_store_dwordx4 {vr(A + 4 * jj, 4)}, v{IA}, s[20:23], s46 offen offset:{(1024 if mode == 'f' else 640) * jj} sc1")
            if mode == "f":
                ops.append(f"s_add_u32 s46, s46, {2048 if b % 2 == 0 else 54 * 4096 - 2048}")
            else:
                ops.append("s_add_u32 s46, s46, 1664")
        else:
            for j in range(4):
                for i in range(4):
                    ops.append(f"v_mul_f32 v{A + 4 * j + i}, s48, v{A + 4 * j + i}")
                for i in range(2):
                    ops.append(f"v_cvt_pk_bf16_f32 v{A + 2 * j + i}, v{A + 4 * j + 2 * i}, v{A + 4 * j + 2 * i + 1}")
                ops.append(f"buffer_store_dwordx2 {vr(A + 2 * j, 2)}, v{IA + j}, s[20:23], 0 offen sc1")
                if b < 7:
                    ops.append(f"v_add_u32 v{IA + j}, v{K1_INC[j]}, v{IA + j}")
        return [(b, o) for o in ops]

    fq = []

    def emit_fill(force_b=None, limit=None):
        k = 0
        while fq and (limit is None or k < limit):
            b, txt = fq[0]
            if force_b is not None and b > force_b:
                break
            fq.pop(0)
            a(txt)
            k += 1

    rd = 0
    xid = {}
    avail = []
    for m in range(NM):
        while rd < NM and rd < m + R:
            r = mfs[rd]
            if r["seg"] > st["bar"]:
                lag1 = r["seg"] > 0 and segs[r["seg"] - 1]["lag"] == 1
                if lag1 and rd - m > XP_KEEP:
                    break
                barrier(lag1)
            if r["w"] is not None:
                pg = page[r["w"]]
                off = (pg & 15) * 4096
                d = WR + 4 * r["ks"]
                lds(f"ds_read_b64_tr_b16 {vr(d, 2)}, v{WB + (pg >> 4)} offset:{off}")
                lds(f"ds_read_b64_tr_b16 {vr(d + 2, 2)}, v{WB + (pg >> 4)} offset:{off + 1024}")
            pg = page[r["x"]]
            xid[rd] = lds(f"ds_read_b128 {vr(XR + 4 * (rd % R), 4)}, v{XB + 4 * (pg >> 4) + r['sub']} offset:{(pg & 15) * 4096}")
            rd += 1
        r = mfs[m]
        b = r["b"]
        A = ACC + 16 * (b % NS)
        if m == first[b] and b >= NS:
            for (mi, bb) in list(avail):
                if bb <= b - NS:
                    assert m - 1 >= mi, "hazard"
                    fq.extend(epi(bb))
                    avail.remove((mi, bb))
            emit_fill(force_b=b - NS)
        wait(xid[m])
        c = "0" if m == first[b] else vr(A, 16)
        wf, xf = vr(WR + 4 * r["ks"], 4), vr(XR + 4 * (m % R), 4)
        if mode == "v":
            a(f"v_mfma_f32_32x32x16_bf16 {vr(A, 16)}, {xf}, {wf}, {c}")
        else:
            a(f"v_mfma_f32_32x32x16_bf16 {vr(A, 16)}, {wf}, {xf}, {c}")
        if m == last[b]:
            avail.append((m + 2, b))
        for (mi, bb) in list(avail):
            if m >= mi:
                fq.extend(epi(bb))
                avail.remove((mi, bb))
        emit_fill(limit=XP_FILL)
    emit_fill(force_b=7)
    a("s_nop 15")
    a("s_nop 3")
    for (mi, bb) in avail:
        fq.extend(epi(bb))
    emit_fill(force_b=7)
    assert not fq
    prof(a, 12)
    a("s_endpgm")
    return st["bar"] + 1


def k1_helper(a, segs, page, order):
    VW, VX = 4, 8
    st = dict(n=0, nxt=0)
    opid = {}

    def issue(bar):
        while st["nxt"] < len(order):
            i = st["nxt"]
            if i - sum(len(sg["items"]) for sg in segs[:bar + 1]) >= XP_MAXQ:
                break
            if i >= K1_P:
                pj = order[i - K1_P][1]
                if pj + segs[pj]["lag"] > bar:
                    break
            it, _ = order[i]
            a(f"s_add_u32 m0, s47, {page[it] * 4096}")
            a("s_nop 0")
            if it[0] == "W":
                a(f"buffer_load_dwordx4 v{VW + it[2]}, s[16:19], s{60 + it[1]} offen lds")
            else:
                a(f"buffer_load_dwordx4 v{VX + it[1]}, s[12:15], s{70 + it[2]} offen lds")
            opid[it] = st["n"]
            st["n"] += 1
            st["nxt"] += 1
            if XP_T1 == 2 and st["nxt"] == XP_TB:
                a("buffer_load_dword v19, v18, s[12:15], s33 offen")
                st["n"] += 1

    def hst(slot):
        if PROF:
            a("s_memtime s[88:89]")
            a("s_waitcnt lgkmcnt(0)")
            a(f"v_mov_b32 v{40 + slot}, s88")
    if PROF:
        a("v_mov_b32 v40, s86")
    hst(1)
    issue(-1)
    hst(2)
    hst(3)
    for j in range(len(segs)):
        need = max(opid[it] for it in segs[j]["items"])
        a(f"s_waitcnt vmcnt({min(63, st['n'] - 1 - need)})")
        hst(4 + j)
        a("s_barrier")
        issue(j)
    assert st["nxt"] == len(order)
    if PROF:
        a("s_add_u32 s26, s26, 4")
        prof_init(a, 10, 11, 26, 0)
        a("v_mov_b32 v2, 0")
        for q in range(7):
            a(f"buffer_store_dwordx4 {vr(40 + 4 * q, 4)}, v2, s[92:95], s91 offen offset:{16 * q}")
    a("s_endpgm")


def k1_touch_addr(a):
    nl = (8 - XP_N1) * 40
    assert nl <= 256
    a("s_and_b32 s3, s25, 7")
    a(f"s_mul_i32 s3, s3, {nl * 128}")
    a(f"s_add_u32 s33, s30, {32 * XP_N1}")
    a("s_mul_i32 s33, s33, 1280")
    a("s_add_u32 s33, s3, s33")
    a("v_and_b32 v2, 255, v0")
    a(f"v_cmp_gt_u32 vcc, {nl}, v2")
    a("v_lshlrev_b32 v2, 7, v2")
    a("v_bfrev_b32 v18, 1")
    a("v_cndmask_b32 v18, v18, v2, vcc")


def k1():
    a = Asm()
    segs, page, order = k1_plan(XP_N1)
    a.label("k1_kernel")
    if PROF:
        a("s_memtime s[86:87]")
    a("s_cmp_ge_u32 s2, 256")
    a("s_cbranch_scc1 K1_END")
    a(f"s_cmp_ge_u32 s2, {K1_NW}")
    a("s_cbranch_scc1 K1_PACK")
    a("s_load_dwordx2 s[4:5], s[0:1], 0")
    a("s_load_dwordx2 s[6:7], s[0:1], 8")
    a("s_load_dwordx2 s[8:9], s[0:1], 32")
    a("s_load_dwordx2 s[10:11], s[0:1], 72")
    a("s_and_b32 s3, s2, 7")
    a("s_lshr_b32 s27, s2, 3")
    a("s_lshr_b32 s28, s3, 1")
    a("s_mul_i32 s28, s28, 29")
    a("s_add_u32 s28, s28, s27")
    a("s_lshr_b32 s25, s28, 2")
    a("s_and_b32 s28, s28, 3")
    a("s_and_b32 s3, s3, 1")
    a("s_lshl_b32 s3, s3, 2")
    a("s_add_u32 s24, s3, s28")
    a("v_and_b32 v1, 63, v0")
    a("v_lshrrev_b32 v2, 6, v0")
    a("s_lshl_b32 s30, s24, 8")
    a("v_readfirstlane_b32 s26, v2")
    a("s_cmp_lt_u32 s26, 4")
    a("s_cbranch_scc1 K1_COMP")
    a("s_sub_u32 s26, s26, 4")
    a("s_lshl_b32 s47, s26, 10")
    a("s_sub_u32 s3, s25, 15")
    a("s_movk_i32 s28, 3456")
    a("s_cmp_lt_u32 s25, 15")
    a("s_cselect_b32 s28, 3840, s28")
    a("s_cselect_b32 s31, s25, s3")
    a("s_lshl_b32 s31, s31, 8")
    a("s_cmp_eq_u32 s25, 28")
    a("s_cselect_b32 s29, 8, 16")
    a("v_lshrrev_b32 v2, 4, v1")
    a("v_and_b32 v3, 15, v1")
    a("v_lshlrev_b32 v16, 2, v2")
    a("v_xor_b32 v3, v3, v16")
    a("v_cmp_gt_u32 vcc, s29, v3")
    a("s_lshl_b32 s3, s26, 2")
    a("v_add_u32 v16, s3, v2")
    a("v_mul_lo_u32 v16, v16, s28")
    a("v_lshl_add_u32 v16, v3, 4, v16")
    a("v_add_u32 v16, s31, v16")
    a("v_bfrev_b32 v17, 1")
    a("v_cndmask_b32 v4, v17, v16, vcc")
    a("s_lshl_b32 s27, s28, 4")
    for q in range(1, 4):
        a(f"v_add_u32 v{4 + q}, s27, v{3 + q}")
    a("v_add_u32 v2, s3, v2")
    a("v_and_b32 v2, 7, v2")
    a("v_and_b32 v3, 7, v1")
    a("v_xor_b32 v3, v3, v2")
    a("v_lshrrev_b32 v2, 3, v1")
    a("s_lshl_b32 s3, s26, 3")
    a("s_add_u32 s3, s3, s30")
    a("v_add_u32 v2, s3, v2")
    a("v_mul_u32_u24 v2, 1280, v2")
    a("v_lshl_add_u32 v8, v3, 4, v2")
    for b in range(1, 8):
        a(f"v_add_u32 v{8 + b}, 40960, v{7 + b}")
    if XP_R1 == 2:
        a("s_and_b32 s3, s24, 3")
        a("s_mul_i32 s3, s3, 5")
        a("s_lshr_b32 s3, s3, 1")
        a("s_mul_i32 s27, s25, 3")
        a("s_add_u32 s3, s3, s27")
    else:
        a("s_add_u32 s3, s24, s25")
        a(f"s_mul_i32 s3, s3, {XP_R1}")
    a("s_mul_i32 s27, s3, 205")
    a("s_lshr_b32 s27, s27, 11")
    a("s_mul_i32 s27, s27, 10")
    a("s_sub_u32 s3, s3, s27")
    a("s_lshl_b32 s27, s28, 6")
    for w in range(10):
        a(f"s_lshl_b32 s{70 + w}, s3, 7")
        a(f"s_mul_i32 s{60 + w}, s3, s27")
        if w < 9:
            a("s_add_u32 s3, s3, 1")
            a("s_cmp_eq_u32 s3, 10")
            a("s_cselect_b32 s3, 0, s3")
    if XP_T1 == 2:
        k1_touch_addr(a)
    a(f"s_mov_b32 s18, {SZ_W1}")
    a("s_waitcnt lgkmcnt(0)")
    srd(a, 12, 4, 5, SZ_X)
    a("s_cmp_lt_u32 s25, 15")
    a("s_cselect_b32 s16, s6, s8")
    a("s_cselect_b32 s17, s7, s9")
    a(f"s_cselect_b32 s18, {SZ_WQKV}, s18")
    a("s_and_b32 s17, s17, 0xffff")
    a("s_mov_b32 s19, 0x00020000")
    k1_helper(a, segs, page, order)
    a.label("K1_COMP")
    a("s_setprio 2")
    a("s_lshr_b32 s3, s26, 1")
    a("s_add_u32 s3, s3, s25")
    a("s_cmp_ge_u32 s3, 29")
    a("s_cbranch_scc1 K1_END")
    a("v_and_b32 v2, 31, v1")
    a("v_lshrrev_b32 v3, 5, v1")
    a("v_bfe_u32 v18, v2, 1, 3")
    a("v_xor_b32 v18, v18, v3")
    a("v_lshlrev_b32 v18, 4, v18")
    a("v_lshl_add_u32 v4, v2, 7, v18")
    for s_ in range(1, 4):
        a(f"v_xor_b32 v{4 + s_}, {32 * s_}, v4")
    for s_ in range(4):
        a(f"v_add_u32 v{8 + s_}, 0x10000, v{4 + s_}")
    a("v_and_b32 v18, 15, v1")
    a("v_lshrrev_b32 v19, 2, v18")
    a("v_lshl_add_u32 v12, v3, 3, v19")
    a("v_lshlrev_b32 v12, 8, v12")
    a("v_bfe_u32 v13, v1, 4, 1")
    a("v_lshlrev_b32 v13, 1, v13")
    a("v_bfe_u32 v14, v1, 1, 1")
    a("v_add_u32 v13, v13, v14")
    a("s_lshl_b32 s3, s26, 2")
    a("v_add_u32 v13, s3, v13")
    a("v_lshlrev_b32 v19, 2, v19")
    a("v_xor_b32 v13, v13, v19")
    a("v_lshl_add_u32 v12, v13, 4, v12")
    a("v_and_b32 v13, 1, v1")
    a("v_lshl_add_u32 v12, v13, 3, v12")
    a("v_add_u32 v13, 0x10000, v12")
    if XP_T1 == 1:
        k1_touch_addr(a)
    a("s_waitcnt lgkmcnt(0)")
    srd(a, 12, 4, 5, SZ_X)
    prof_init(a, 10, 11, 26, 0)
    prof(a, 0)
    a("v_and_b32 v24, 31, v1")
    a("v_lshrrev_b32 v25, 5, v1")
    a("s_cmp_ge_u32 s25, 15")
    a("s_cbranch_scc1 K1_CF")
    a("s_cmp_ge_u32 s25, 10")
    a("s_cbranch_scc1 K1_CV")
    srd(a, 20, 10, 11, WS_KV + SZ_KV)
    a("s_sub_u32 s3, s25, 5")
    a("s_cmp_lt_u32 s25, 5")
    a("s_cselect_b32 s3, s25, s3")
    a(f"s_cselect_b32 s48, {f32bits(C_SCALE)}, 1.0")
    a(f"s_mov_b32 s27, {HEAD_KV}")
    a(f"s_cselect_b32 s27, {HEAD_Q}, s27")
    a("s_movk_i32 s28, 1024")
    a("s_cselect_b32 s28, 1280, s28")
    a("s_movk_i32 s29, 1664")
    a("s_cselect_b32 s29, 1280, s29")
    a(f"s_movk_i32 s31, {8192 + 1280}")
    a("s_cselect_b32 s31, 1024, s31")
    a(f"s_mul_i32 s34, s24, {KV_STG}")
    a(f"s_add_u32 s34, s34, {WS_KV}")
    a("s_mul_i32 s35, s24, 10240")
    a("s_cmp_lt_u32 s25, 5")
    a("s_cselect_b32 s34, s35, s34")
    a("s_lshl_b32 s3, s3, 5")
    a("s_lshl_b32 s35, s26, 3")
    a("s_add_u32 s3, s3, s35")
    a("v_lshl_add_u32 v24, v24, 3, s34")
    a("v_mov_b32 v28, s28")
    a("v_mov_b32 v29, s29")
    a("v_mov_b32 v30, s31")
    for j in range(4):
        a(f"s_add_u32 s35, s3, {2 * j}")
        a("v_add_u32 v26, s35, v25")
        a("v_mul_u32_u24 v27, 205, v26")
        a("v_lshrrev_b32 v27, 10, v27")
        a("v_mul_u32_u24 v31, 5, v27")
        a("v_sub_u32 v26, v26, v31")
        a("v_cmp_eq_u32 vcc, 4, v26")
        a("v_lshlrev_b32 v26, 8, v26")
        a("v_mul_lo_u32 v27, v27, s27")
        a("v_cndmask_b32 v26, v26, v30, vcc")
        a(f"v_cndmask_b32 v{K1_INC[j]}, v28, v29, vcc")
        a(f"v_add3_u32 v{14 + j}, v26, v27, v24")
    nb = k1_compute(a, "q", segs, page)
    assert nb == len(segs)
    a.label("K1_CV")
    srd_off(a, 20, 10, 11, WS_KV, SZ_KV)
    a("s_sub_u32 s3, s25, 10")
    a("s_lshl_b32 s3, s3, 2")
    a("s_add_u32 s3, s3, s26")
    a("s_lshl_b32 s3, s3, 5")
    a("v_add_u32 v24, s3, v24")
    a("v_mul_u32_u24 v26, 3277, v24")
    a("v_lshrrev_b32 v26, 16, v26")
    a("v_mul_u32_u24 v27, 20, v26")
    a("v_sub_u32 v24, v24, v27")
    a(f"s_mov_b32 s27, {HEAD_KV}")
    a("v_mul_lo_u32 v26, v26, s27")
    a("v_mul_u32_u24 v25, 320, v25")
    a("v_lshl_add_u32 v24, v24, 4, v25")
    a("v_add_u32 v14, v24, v26")
    a(f"s_mul_i32 s46, s24, {KV_STG}")
    a("s_add_u32 s46, s46, 8192")
    k1_compute(a, "v", segs, page)
    a.label("K1_CF")
    srd_off(a, 20, 10, 11, WS_H, SZ_H)
    a("v_lshlrev_b32 v14, 4, v1")
    a("s_lshl_b32 s46, s24, 2")
    a("s_mul_i32 s46, s46, 54")
    a("s_sub_u32 s3, s25, 15")
    a("s_lshl_b32 s3, s3, 2")
    a("s_add_u32 s46, s46, s3")
    a("s_add_u32 s46, s46, s26")
    a("s_lshl_b32 s46, s46, 12")
    k1_compute(a, "f", segs, page)
    a.label("K1_END")
    a("s_endpgm")
    NT = (256 - K1_NW) * 512
    a.label("K1_PACK")
    a("s_load_dwordx2 s[4:5], s[0:1], 16")
    a("s_load_dwordx2 s[8:9], s[0:1], 40")
    a("s_load_dwordx2 s[6:7], s[0:1], 72")
    a(f"s_sub_u32 s3, s2, {K1_NW}")
    a("s_lshl_b32 s3, s3, 9")
    a("v_add_u32 v1, s3, v0")
    a("v_lshlrev_b32 v2, 4, v1")
    a("s_mov_b32 s30, 248552")
    a("s_mov_b32 s31, 671089")
    a("s_mov_b32 s32, 52429")
    a("s_waitcnt lgkmcnt(0)")
    srd(a, 12, 4, 5, SZ_WO)
    srd_off(a, 16, 6, 7, WS_WO, SZ_WO)
    srd(a, 20, 8, 9, SZ_W2)
    srd_off(a, 24, 6, 7, WS_W2P, SZ_W2)
    srd_off(a, 36, 6, 7, WS_CNT, 65536)
    srd_off(a, 40, 6, 7, WS_KV, SZ_KV)
    rounds = [("w2", r) for r in range((138240 + NT - 1) // NT)] + [("wo", r) for r in range((51200 + NT - 1) // NT)]
    for j, (kind, r) in enumerate(rounds):
        per = 17280 if kind == "w2" else 6400
        a(f"v_add_u32 v4, {r * NT}, v1")
        a(f"v_mul_hi_u32 v5, v4, s{30 if kind == 'w2' else 31}")
        a(f"v_mul_u32_u24 v6, {per}, v5")
        a("v_sub_u32 v4, v4, v6")
        a("v_mul_u32_u24 v6, s32, v4")
        a("v_lshrrev_b32 v6, 19, v6")
        a("v_mul_u32_u24 v7, 10, v6")
        a("v_sub_u32 v4, v4, v7")
        if kind == "w2":
            a("v_lshrrev_b32 v7, 1, v6")
            a("v_xor_b32 v7, v7, v6")
            a("v_bfe_u32 v7, v7, 2, 1")
            a("v_mul_u32_u24 v7, 12, v7")
        else:
            a("v_lshrrev_b32 v7, 1, v6")
            a("v_and_b32 v7, 4, v7")
        a("v_xor_b32 v6, v6, v7")
        a("v_mul_u32_u24 v6, 1280, v6")
        a("v_mul_u32_u24 v5, 160, v5")
        a("v_lshl_add_u32 v4, v4, 4, v5")
        a(f"v_add_u32 v{8 + (j & 3)}, v4, v6")
        a(f"buffer_load_dwordx4 {vr(24 + 4 * j, 4)}, v{8 + (j & 3)}, s[{20 if kind == 'w2' else 12}:{23 if kind == 'w2' else 15}], 0 offen")
    a("v_lshlrev_b32 v4, 8, v1")
    a("v_mov_b32 v5, 0")
    a("buffer_store_dword v5, v4, s[36:39], 0 offen")
    a("v_lshrrev_b32 v4, 4, v1")
    a(f"v_mul_u32_u24 v4, {KV_STG}, v4")
    a("v_bfe_u32 v5, v1, 1, 3")
    a("v_mul_u32_u24 v5, 1664, v5")
    a("v_and_b32 v6, 1, v1")
    a("v_lshl_add_u32 v5, v6, 4, v5")
    a(f"v_add_u32 v5, {8192 + 1536}, v5")
    a("v_add_u32 v4, v4, v5")
    a("v_cmp_eq_u32 vcc, 1, v6")
    a("v_mov_b32 v12, 0x3f803f80")
    a("v_mov_b32 v5, 0x00003f80")
    a("v_cndmask_b32 v13, v5, v12, vcc")
    a("v_cndmask_b32 v14, 0, v12, vcc")
    a("v_mov_b32 v15, v14")
    a("buffer_store_dwordx4 v[12:15], v4, s[40:43], 0 offen sc1")
    for j, (kind, r) in enumerate(rounds):
        a(f"s_waitcnt vmcnt({len(rounds) + 1})")
        a(f"s_mov_b32 s33, {r * NT * 16}")
        a(f"buffer_store_dwordx4 {vr(24 + 4 * j, 4)}, v2, s[{24 if kind == 'w2' else 16}:{27 if kind == 'w2' else 19}], s33 offen sc1")
    a("s_endpgm")
    return a.text()


GS_SLOT = 9216


class GW:
    VA = 4
    VW = 8
    RA = 13
    RW = 14
    AF = 24
    WF = 40
    ACC = 60


def gw_setup(a, sR0, sC0B, strideA, sLds):
    a("v_lshrrev_b32 v22, 4, v1")
    a("v_and_b32 v23, 15, v1")
    a(f"v_lshlrev_b32 v{GW.VA}, 4, v1")
    a(f"v_add_u32 v{GW.VA + 1}, 4096, v{GW.VA}")
    a("v_lshlrev_b32 v2, 4, v23")
    a("v_lshl_add_u32 v2, v22, 9, v2")
    a(f"v_add_u32 v{GW.RA}, s{sLds}, v2")
    a("v_lshlrev_b32 v2, 3, v22")
    a("v_lshrrev_b32 v3, 2, v23")
    a("v_add_u32 v2, v2, v3")
    a("v_mul_u32_u24 v2, 160, v2")
    a("v_and_b32 v3, 3, v23")
    a("v_lshlrev_b32 v3, 3, v3")
    a("v_add_u32 v2, 4096, v2")
    a(f"v_add3_u32 v{GW.RW}, v2, v3, s{sLds}")


def gw_pieces(slot, srdA, srdW, sKA, sKW, sLds):
    g = []
    for i in range(4):
        g.append(([f"s_add_u32 m0, s{sLds}, {slot * GS_SLOT}", "s_nop 0"] if i == 0 else []) +
                 [f"buffer_load_dwordx4 v{GW.VA}, {sr(srdA, 4)}, s{sKA} offen offset:{1024 * i} lds"])
    for i in range(4):
        g.append(([f"s_add_u32 m0, s{sLds}, {slot * GS_SLOT + 4096}", "s_nop 0"] if i == 0 else []) +
                 [f"buffer_load_dwordx4 v{GW.VA}, {sr(srdW, 4)}, s{sKW} offen offset:{1024 * i} lds"])
    g.append([f"s_add_u32 m0, s{sLds}, {slot * GS_SLOT + 8192}", "s_nop 0",
              f"buffer_load_dwordx4 v{GW.VA + 1}, {sr(srdW, 4)}, s{sKW} offen lds",
              f"s_add_u32 s{sKA}, s{sKA}, 4096", f"s_add_u32 s{sKW}, s{sKW}, 5120"])
    return g


def gw_issue(a, slot, srdA, srdW, sKA, sKW, sLds):
    for p in gw_pieces(slot, srdA, srdW, sKA, sKW, sLds):
        for x in p:
            a(x)


def gw_compute_pipe(a, slot, first, pieces):
    for t in range(4):
        a(f"ds_read_b128 {vr(GW.AF + 4 * t, 4)}, v{GW.RA} offset:{slot * GS_SLOT + (t >> 1) * 2048 + (t & 1) * 256}")
    for n in range(5):
        off = slot * GS_SLOT + n * 32
        a(f"ds_read_b64_tr_b16 {vr(GW.WF + 4 * n, 2)}, v{GW.RW} offset:{off}")
        a(f"ds_read_b64_tr_b16 {vr(GW.WF + 4 * n + 2, 2)}, v{GW.RW} offset:{off + 640}")
    a("s_waitcnt lgkmcnt(0)")
    pieces = list(pieces)
    i = 0
    for n in range(5):
        for t in range(4):
            d = GW.ACC + 4 * (n * 4 + t)
            c = "0" if first else vr(d, 4)
            a(f"v_mfma_f32_16x16x32_bf16 {vr(d, 4)}, {vr(GW.WF + 4 * n, 4)}, {vr(GW.AF + 4 * t, 4)}, {c}")
            i += 1
            if pieces and i % XP_FB == 0:
                for x in pieces.pop(0):
                    a(x)
    for p in pieces:
        for x in p:
            a(x)


def gw_compute_jit(a, slot, first):
    for t in range(4):
        a(f"ds_read_b128 {vr(GW.AF + 4 * t, 4)}, v{GW.RA} offset:{slot * GS_SLOT + (t >> 1) * 2048 + (t & 1) * 256}")
    for n in range(5):
        off = slot * GS_SLOT + n * 32
        a(f"ds_read_b64_tr_b16 {vr(GW.WF + 4 * n, 2)}, v{GW.RW} offset:{off}")
        a(f"ds_read_b64_tr_b16 {vr(GW.WF + 4 * n + 2, 2)}, v{GW.RW} offset:{off + 640}")
        a("s_waitcnt lgkmcnt(0)")
        for t in range(4):
            d = GW.ACC + 4 * (n * 4 + t)
            c = "0" if first else vr(d, 4)
            a(f"v_mfma_f32_16x16x32_bf16 {vr(d, 4)}, {vr(GW.WF + 4 * n, 4)}, {vr(GW.AF + 4 * t, 4)}, {c}")


def gw_compute(a, slot, first):
    if XP_FJ:
        return gw_compute_jit(a, slot, first)
    for t in range(4):
        a(f"ds_read_b128 {vr(GW.AF + 4 * t, 4)}, v{GW.RA} offset:{slot * GS_SLOT + (t >> 1) * 2048 + (t & 1) * 256}")
    for n in range(5):
        off = slot * GS_SLOT + n * 32
        a(f"ds_read_b64_tr_b16 {vr(GW.WF + 4 * n, 2)}, v{GW.RW} offset:{off}")
        a(f"ds_read_b64_tr_b16 {vr(GW.WF + 4 * n + 2, 2)}, v{GW.RW} offset:{off + 640}")
    a("s_waitcnt lgkmcnt(0)")
    for n in range(5):
        for t in range(4):
            d = GW.ACC + 4 * (n * 4 + t)
            c = "0" if first else vr(d, 4)
            a(f"v_mfma_f32_16x16x32_bf16 {vr(d, 4)}, {vr(GW.WF + 4 * n, 4)}, {vr(GW.AF + 4 * t, 4)}, {c}")


def gw_write_partials(a, sRed):
    a(f"v_add_u32 v2, s{sRed}, v{GW.VA}")
    for n in range(5):
        for t in range(4):
            d = GW.ACC + 4 * (n * 4 + t)
            a(f"ds_write_b128 v2, {vr(d, 4)} offset:{(n * 4 + t) * 1024}")


def gw_read_sum(a, sW4, redbase):
    a(f"s_lshl_b32 s60, s{sW4}, 10")
    a(f"s_add_u32 s60, s60, {redbase}")
    a(f"v_add_u32 v2, s60, v{GW.VA}")
    a(f"v_add_u32 v3, {2 * 20480}, v2")
    R = 24
    for src in range(4):
        for j in range(5):
            a(f"ds_read_b128 {vr(R + 20 * src + 4 * j, 4)}, v{2 + (src >> 1)} offset:{(src & 1) * 20480 + j * 4096}")
    a("s_waitcnt lgkmcnt(10)")
    for e in range(20):
        a(f"v_add_f32 v{R + e}, v{R + e}, v{R + 20 + e}")
    a("s_waitcnt lgkmcnt(0)")
    for e in range(20):
        a(f"v_add_f32 v{R + 40 + e}, v{R + 40 + e}, v{R + 60 + e}")
    for e in range(20):
        a(f"v_add_f32 v{R + e}, v{R + e}, v{R + 40 + e}")


def tile_map(a, sRt, sCt):
    if XP_QX:
        a("s_and_b32 s60, s2, 7")
        a("s_lshr_b32 s61, s2, 3")
        a("s_lshl_b32 s62, s60, 2")
        a("s_lshr_b32 s63, s61, 3")
        a(f"s_add_u32 s{sRt}, s62, s63")
        a(f"s_and_b32 s{sCt}, s61, 7")
        return
    if XP_FUSE:
        a("s_lshr_b32 s60, s2, 5")
        a("s_lshl_b32 s60, s60, 2")
        a("s_bfe_u32 s61, s2, 0x20001")
        a(f"s_add_u32 s{sRt}, s60, s61")
        a("s_and_b32 s60, s2, 1")
        a("s_lshl_b32 s60, s60, 2")
        a("s_bfe_u32 s61, s2, 0x20003")
        a(f"s_add_u32 s{sCt}, s60, s61")
        return
    a("s_and_b32 s60, s2, 7")
    a("s_lshr_b32 s61, s2, 3")
    a("s_lshr_b32 s62, s60, 1")
    a("s_lshl_b32 s62, s62, 3")
    a("s_lshr_b32 s63, s61, 2")
    a(f"s_add_u32 s{sRt}, s62, s63")
    a("s_and_b32 s62, s60, 1")
    a("s_lshl_b32 s62, s62, 2")
    a("s_and_b32 s63, s61, 3")
    a(f"s_add_u32 s{sCt}, s62, s63")


K2_BUF = KV_STG
K2_FFN = 3 * K2_BUF
K2_B = K2_FFN + 4 * 20480
K2_FLAG = K2_B + (10240 if XP_FUSE else 0)
K2_LDS = K2_FLAG + 64
K2_W4 = K2_FFN - 20480
K2_XCH = 0
K2_OST = 24576


def gate_compute(a, XV, GV, srow, srdG):
    a("v_mov_b32 v2, 0")
    for j in range(5):
        xv = XV + j
        gv = GV + j
        a(f"v_lshlrev_b32 v3, 16, v{xv}")
        a(f"v_and_b32 v19, 0xffff0000, v{xv}")
        a(f"v_lshlrev_b32 v127, 16, v{gv}")
        a(f"v_and_b32 v128, 0xffff0000, v{gv}")
        a("v_mul_f32 v3, v3, v127")
        a("v_mul_f32 v19, v19, v128")
        a("v_cvt_pk_bf16_f32 v3, v3, v19")
        a("v_lshlrev_b32 v19, 16, v3")
        a("v_and_b32 v3, 0xffff0000, v3")
        a("v_add_f32 v2, v2, v19")
        a("v_add_f32 v2, v2, v3")
    for sh in (1, 2, 4, 8):
        a("s_nop 1")
        a(f"v_add_f32_dpp v2, v2, v2 row_shr:{sh} row_mask:0xf bank_mask:0xf")
    a("s_nop 1")
    a("v_add_f32_dpp v2, v2, v2 row_bcast:15 row_mask:0xa bank_mask:0xf")
    a("s_nop 1")
    a("v_add_f32_dpp v2, v2, v2 row_bcast:31 row_mask:0xc bank_mask:0xf")
    a("s_nop 1")
    a("v_cvt_pk_bf16_f32 v2, v2, v2")
    a("v_lshlrev_b32 v2, 16, v2")
    a(f"v_mul_f32 v2, {f32bits(-LOG2E)}, v2")
    a("v_exp_f32 v2, v2")
    a("s_nop 0")
    a("v_add_f32 v2, 1.0, v2")
    a("v_rcp_f32 v2, v2")
    a("s_nop 0")
    a("v_cvt_pk_bf16_f32 v2, v2, v2")
    a("v_lshlrev_b32 v2, 16, v2")
    a(f"s_lshl_b32 s49, s{srow}, 2")
    a("v_mov_b32 v3, 0")
    a("v_cmp_eq_u32 vcc, 63, v1")
    a("s_and_saveexec_b64 s[50:51], vcc")
    a(f"buffer_store_dword v2, v3, {sr(srdG, 4)}, s49 offen")
    a("s_mov_b64 exec, s[50:51]")


def gate_compute2(a, XA, XB, GV, srow, srdG):
    GU = 24
    a("v_mov_b32 v2, 0")
    a("v_mov_b32 v3, 0")
    a("v_mov_b32 v19, 0x3f803f80")
    for j in range(5):
        a(f"v_lshlrev_b32 v{GU + 2 * j}, 16, v{GV + j}")
        a(f"v_and_b32 v{GU + 2 * j + 1}, 0xffff0000, v{GV + j}")
    for X, acc in ((XA, 2), (XB, 3)):
        for j in range(5):
            a(f"v_lshlrev_b32 v36, 16, v{X + j}")
            a(f"v_and_b32 v37, 0xffff0000, v{X + j}")
            a(f"v_pk_mul_f32 v[36:37], v[36:37], v[{GU + 2 * j}:{GU + 2 * j + 1}]")
            a("v_cvt_pk_bf16_f32 v36, v36, v37")
            a(f"v_dot2_f32_bf16 v{acc}, v36, v19, v{acc}")
    for sh in (1, 2, 4, 8):
        a("s_nop 2" if sh == 1 else "s_nop 0")
        a(f"v_add_f32_dpp v2, v2, v2 row_shr:{sh} row_mask:0xf bank_mask:0xf")
        a(f"v_add_f32_dpp v3, v3, v3 row_shr:{sh} row_mask:0xf bank_mask:0xf")
    a("s_nop 0")
    a("v_add_f32_dpp v2, v2, v2 row_bcast:15 row_mask:0xa bank_mask:0xf")
    a("v_add_f32_dpp v3, v3, v3 row_bcast:15 row_mask:0xa bank_mask:0xf")
    a("s_nop 0")
    a("v_add_f32_dpp v2, v2, v2 row_bcast:31 row_mask:0xc bank_mask:0xf")
    a("v_add_f32_dpp v3, v3, v3 row_bcast:31 row_mask:0xc bank_mask:0xf")
    a("s_nop 1")
    a("v_cvt_pk_bf16_f32 v2, v2, v3")
    a("v_and_b32 v3, 0xffff0000, v2")
    a("v_lshlrev_b32 v2, 16, v2")
    a(f"v_mul_f32 v2, {f32bits(-LOG2E)}, v2")
    a(f"v_mul_f32 v3, {f32bits(-LOG2E)}, v3")
    a("v_exp_f32 v2, v2")
    a("v_exp_f32 v3, v3")
    a("s_nop 0")
    a("v_add_f32 v2, 1.0, v2")
    a("v_add_f32 v3, 1.0, v3")
    a("v_rcp_f32 v2, v2")
    a("v_rcp_f32 v3, v3")
    a("s_nop 0")
    a("v_cvt_pk_bf16_f32 v2, v2, v3")
    a("v_and_b32 v3, 0xffff0000, v2")
    a("v_lshlrev_b32 v2, 16, v2")
    a(f"s_lshl_b32 s49, s{srow}, 2")
    a("v_mov_b32 v19, 0")
    a("v_cmp_eq_u32 vcc, 63, v1")
    a("s_and_saveexec_b64 s[50:51], vcc")
    a(f"buffer_store_dwordx2 v[2:3], v19, {sr(srdG, 4)}, s49 offen" + (" sc1" if XP_FUSE else ""))
    a("s_mov_b64 exec, s[50:51]")


def k2_tail(a):
    prof(a, 16)
    a("s_lshr_b32 s40, s2, 5")
    a("s_lshl_b32 s40, s40, 13")
    srd_off(a, 24, 8, 9, WS_CNT, 65536)
    srd(a, 16, 4, 5, SZ_OUT)
    srd_off(a, 12, 8, 9, WS_WO, SZ_WO)
    a("v_mov_b32 v4, 0")
    a("s_cmp_lg_u32 s38, 0")
    a("s_cbranch_scc1 K2_T1")
    a("v_mov_b32 v2, 1")
    a("v_lshlrev_b32 v3, 8, v1")
    a("s_mov_b32 exec_hi, 0")
    a("buffer_atomic_add v2, v3, s[24:27], s40 offen")
    a("s_mov_b32 exec_hi, -1")
    a.label("K2_T1")
    a("s_lshl_b32 s40, s2, 8")
    tile_map(a, 36, 37)
    a("v_lshrrev_b32 v22, 4, v1")
    a("v_and_b32 v23, 15, v1")
    a("s_lshl_b32 s39, s36, 6")
    a("s_and_b32 s49, s38, 3")
    a("s_lshr_b32 s50, s38, 2")
    a("s_add_u32 s43, s38, 8")
    a("s_add_u32 s44, s38, 16")
    a("s_cmp_lt_u32 s38, 4")
    a("s_cselect_b32 s44, s44, s43")
    a("s_mul_i32 s55, s37, 102400")
    a(f"s_add_u32 s55, s55, {4 * 20480}")
    for sp in (38, 43, 44):
        a(f"s_lshl_b32 s52, s{sp}, 10")
        a(f"s_add_u32 m0, s52, {K2_W4}")
        a("s_add_u32 s52, s52, s55")
        a("buffer_load_dwordx4 v16, s[12:15], s52 offen lds")
    a("s_mul_i32 s41, s37, 160")
    a("s_lshl_b32 s42, s36, 2")
    a("s_add_u32 s42, s42, s49")
    a("s_mul_i32 s42, s42, 20480")
    a("s_lshl_b32 s43, s50, 11")
    a("s_add_u32 s42, s42, s43")
    a("s_lshl_b32 s43, s49, 4")
    a("v_add_u32 v2, s43, v23")
    a("v_add_u32 v3, s39, v2")
    a("v_lshlrev_b32 v5, 2, v3")
    a("v_mul_u32_u24 v2, 160, v2")
    a("v_lshl_add_u32 v2, v22, 3, v2")
    a("s_mul_i32 s43, s50, 96")
    a(f"s_add_u32 s43, s43, {K2_OST}")
    a("v_add_u32 v17, s43, v2")
    a("s_mul_i32 s43, s49, 2560")
    a("s_mul_i32 s44, s50, 1536")
    a("s_add_u32 s43, s43, s44")
    a(f"s_add_u32 s43, s43, {K2_B}")
    a("v_lshlrev_b32 v2, 3, v1")
    a("v_add_u32 v6, s43, v2")
    for j in range(2):
        a("s_mul_i32 s43, s38, 80")
        a(f"s_add_u32 s43, s43, {64 * j}")
        a("v_add_u32 v2, s43, v1")
        a("v_mul_u32_u24 v3, 6554, v2")
        a("v_lshrrev_b32 v3, 16, v3")
        a("v_mul_u32_u24 v15, 10, v3")
        a("v_sub_u32 v15, v2, v15")
        a("v_lshlrev_b32 v15, 4, v15")
        a("v_add_u32 v3, s39, v3")
        a("v_mul_u32_u24 v3, 1280, v3")
        a(f"v_add3_u32 v{12 + j}, v3, v15, s41")
        a("v_lshlrev_b32 v2, 4, v2")
        a(f"v_add_u32 v{8 + j}, {K2_OST}, v2")
    RW = 28
    a("s_mul_i32 s43, s50, 10240")
    a(f"s_add_u32 s43, s43, {K2_W4}")
    wread_addr(a, RW, RW + 1, 43)
    a(f"v_add_u32 v{RW + 2}, {3 * 20480}, v{RW}")
    a(f"v_add_u32 v{RW + 3}, {3 * 20480}, v{RW + 1}")
    a("s_mul_i32 s43, s49, 5120")
    a(f"s_add_u32 s43, s43, {K2_XCH}")
    a("v_add_u32 v21, s43, v16")
    AF = 32
    WF = (72, 92)
    ACC = 112
    BV = 132

    def reads(t):
        st, i = t >> 1, t & 1
        pos = (st + 1) % 5
        hi = 1 if pos >= 3 else 0
        so = (pos - 3 * hi) * 20480
        r = []
        for n in range(5):
            off = so + i * 5120 + n * 32
            r.append(f"ds_read_b64_tr_b16 {vr(WF[i] + 4 * n, 2)}, v{RW + 2 * hi} offset:{off}")
            r.append(f"ds_read_b64_tr_b16 {vr(WF[i] + 4 * n + 2, 2)}, v{RW + 2 * hi + 1} offset:{off}")
        return r

    def mf(t):
        for n in range(5):
            d = ACC + 4 * n
            c = "0" if t == 0 else vr(d, 4)
            a(f"v_mfma_f32_16x16x32_bf16 {vr(d, 4)}, {vr(WF[t & 1] + 4 * n, 4)}, {vr(AF + 4 * t, 4)}, {c}")

    for r in reads(0) + reads(1):
        a(r)
    for n in range(3):
        a(f"ds_read_b64 {vr(BV + 2 * n, 2)}, v6 offset:{512 * n}")
    a("s_cmp_lg_u32 s38, 0")
    a("s_cbranch_scc1 K2_T3")
    a("s_mov_b32 s43, 0")
    a.label("K2_T2")
    a("buffer_load_dword v2, v4, s[24:27], s40 offen sc1")
    a("s_add_u32 s43, s43, 1")
    a("s_waitcnt vmcnt(0)")
    a("v_readfirstlane_b32 s44, v2")
    a("s_cmp_ge_u32 s44, 32")
    a("s_cbranch_scc1 K2_T3")
    a("s_sleep 2")
    a("s_cmp_lt_u32 s43, 0x100000")
    a("s_cbranch_scc1 K2_T2")
    a.label("K2_T3")
    a("s_waitcnt vmcnt(0)")
    a("s_barrier")
    prof(a, 17)
    for t in range(10):
        st, i = t >> 1, t & 1
        if i == 0 and st:
            a("s_add_u32 s42, s42, 4096")
        a(f"buffer_load_dwordx4 {vr(AF + 4 * t, 4)}, v16, s[20:23], s42 offen offset:{1024 * i} sc1")
    a("buffer_load_dword v18, v5, s[32:35], 0 offen sc1")
    for t in range(10):
        a(f"s_waitcnt vmcnt({10 - t}) lgkmcnt({10 if 1 <= t < 9 else 0})")
        mf(t)
        if t + 2 < 10:
            for r in reads(t + 2):
                a(r)
    prof(a, 18)
    a("s_waitcnt vmcnt(0)")
    a("v_sub_f32 v19, 1.0, v18")
    a("v_cvt_pk_bf16_f32 v19, v19, v19")
    a("v_lshlrev_b32 v19, 16, v19")
    a("s_nop 7")
    XR = 72
    a("s_cmp_eq_u32 s50, 0")
    a("s_cbranch_scc0 K2_X1")
    for n in (3, 4):
        a(f"ds_write_b128 v21, {vr(ACC + 4 * n, 4)} offset:{1024 * n}")
    a("s_waitcnt lgkmcnt(0)")
    a("s_barrier")
    for n in range(3):
        a(f"ds_read_b128 {vr(XR + 4 * n, 4)}, v21 offset:{1024 * n}")
    a("s_branch K2_FIN")
    a.label("K2_X1")
    for n in range(3):
        a(f"ds_write_b128 v21, {vr(ACC + 4 * n, 4)} offset:{1024 * n}")
    a("s_waitcnt lgkmcnt(0)")
    a("s_barrier")
    for n in (3, 4):
        a(f"ds_read_b128 {vr(XR + 4 * (n - 3), 4)}, v21 offset:{1024 * n}")
    for i in range(8):
        a(f"v_mov_b32 v{ACC + i}, v{ACC + 12 + i}")
    a.label("K2_FIN")
    a("s_waitcnt lgkmcnt(0)")
    for n in range(3):
        if n == 2:
            a("s_cmp_eq_u32 s50, 0")
            a("s_cbranch_scc0 K2_CP")
        for i in range(4):
            a(f"v_add_f32 v{ACC + 4 * n + i}, v{ACC + 4 * n + i}, v{XR + 4 * n + i}")
        for h in range(2):
            e = ACC + 4 * n + 2 * h
            bp = BV + 2 * n + h
            a(f"v_cvt_pk_bf16_f32 v24, v{e}, v{e + 1}")
            a("v_lshlrev_b32 v4, 16, v24")
            a("v_and_b32 v5, 0xffff0000, v24")
            a(f"v_lshlrev_b32 v6, 16, v{bp}")
            a(f"v_and_b32 v7, 0xffff0000, v{bp}")
            a("v_mul_f32 v4, v18, v4")
            a("v_mul_f32 v5, v18, v5")
            a("v_mul_f32 v6, v19, v6")
            a("v_mul_f32 v7, v19, v7")
            a("v_cvt_pk_bf16_f32 v24, v4, v5")
            a("v_cvt_pk_bf16_f32 v20, v6, v7")
            a("v_lshlrev_b32 v4, 16, v24")
            a("v_and_b32 v5, 0xffff0000, v24")
            a("v_lshlrev_b32 v6, 16, v20")
            a("v_and_b32 v7, 0xffff0000, v20")
            a("v_add_f32 v4, v4, v6")
            a("v_add_f32 v5, v5, v7")
            a(f"v_cvt_pk_bf16_f32 v{bp}, v4, v5")
        a(f"ds_write_b64 v17, {vr(BV + 2 * n, 2)} offset:{32 * n}")
    a.label("K2_CP")
    a("s_waitcnt lgkmcnt(0)")
    a("s_barrier")
    a("ds_read_b128 v[32:35], v8")
    a("ds_read_b128 v[36:39], v9")
    a("s_waitcnt lgkmcnt(1)")
    a("buffer_store_dwordx4 v[32:35], v12, s[16:19], 0 offen")
    a("v_cmp_gt_u32 vcc, 16, v1")
    a("s_and_saveexec_b64 s[50:51], vcc")
    a("s_waitcnt lgkmcnt(0)")
    a("buffer_store_dwordx4 v[36:39], v13, s[16:19], 0 offen")
    a("s_mov_b64 exec, s[50:51]")


def k2():
    a = Asm()
    a.label("k2_kernel")
    if PROF:
        a("s_memtime s[86:87]")
    a("s_cmp_ge_u32 s2, 256")
    a("s_cbranch_scc1 K2_END")
    a("s_and_b32 s3, s2, 7")
    a("s_lshl_b32 s3, s3, 2")
    a("s_lshr_b32 s4, s2, 3")
    a("s_and_b32 s4, s4, 3")
    a("s_add_u32 s36, s3, s4")
    a("s_lshr_b32 s37, s2, 5")
    if XP_QX:
        a("s_lshr_b32 s36, s2, 3")
        a("s_and_b32 s37, s2, 7")
    a("s_load_dwordx2 s[4:5], s[0:1], 0")
    a("s_load_dwordx2 s[6:7], s[0:1], 48")
    a("s_load_dwordx2 s[8:9], s[0:1], 72")
    a("v_and_b32 v1, 63, v0")
    a("v_lshrrev_b32 v2, 6, v0")
    a("s_nop 0")
    a("v_readfirstlane_b32 s38, v2")
    a("s_waitcnt lgkmcnt(0)")
    a("s_cmp_ge_u32 s38, 8")
    a("s_cbranch_scc1 K2_FFN")
    a("s_setprio 1")
    srd_off(a, 12, 8, 9, WS_KV, SZ_KV)
    srd_off(a, 16, 8, 9, WS_Q, SZ_Q)
    srd_off(a, 20, 8, 9, WS_O, SZ_O)
    srd(a, 24, 4, 5, SZ_X)
    srd(a, 28, 6, 7, 1280)
    srd_off(a, 32, 8, 9, WS_G, SZ_G)
    prof_init(a, 8, 9, 38, 1)
    prof(a, 0)
    a("v_lshlrev_b32 v16, 4, v1")
    a("s_mul_i32 s46, s38, 3072")
    a("s_cmp_lt_u32 s38, 7")
    a("s_cselect_b64 s[54:55], -1, 0")
    a(f"s_mul_i32 s45, s36, {HEAD_KV}")
    a("s_add_u32 s45, s45, s46")
    a("s_mov_b32 s44, s45")
    a("s_mov_b32 s41, 0")
    a(f"s_mov_b32 s42, {K2_BUF}")
    a(f"s_mov_b32 s43, {2 * K2_BUF}")
    a("s_mov_b32 s40, 0")
    a("v_and_b32 v17, 31, v1")
    a("v_lshrrev_b32 v18, 5, v1")
    a("s_lshl_b32 s47, s37, 8")
    a("s_lshl_b32 s48, s38, 5")
    a("s_add_u32 s47, s47, s48")
    a("s_mul_i32 s47, s47, 40")
    a(f"s_mul_i32 s48, s36, {HEAD_Q}")
    a("s_add_u32 s48, s48, s47")
    a("v_lshlrev_b32 v2, 3, v17")
    a("v_lshl_add_u32 v3, v18, 8, v2")
    a("buffer_load_dwordx2 v[20:21], v3, s[16:19], s48 offen")
    a("buffer_load_dwordx2 v[22:23], v3, s[16:19], s48 offen offset:512")
    a("buffer_load_dwordx2 v[24:25], v2, s[16:19], s48 offen offset:1024")
    a("s_cmp_eq_u32 s38, 7")
    a("s_cbranch_scc1 K2_W7A")
    for sg in (41, 42):
        a(f"s_add_u32 m0, s{sg}, s46")
        a("s_nop 0")
        for j in range(3):
            a(f"buffer_load_dwordx4 v16, s[12:15], s44 offen offset:{1024 * j} lds")
        a(f"s_add_u32 s44, s44, {KV_STG}")
    a("s_branch K2_W7B")
    a.label("K2_W7A")
    a("s_waitcnt vmcnt(0)")
    a.label("K2_W7B")
    a("v_mov_b32 v2, 0")
    a(f"v_mov_b32 v3, {K2_FLAG}")
    a("ds_write_b32 v3, v2")
    if not XP_GF:
        a("s_lshl_b32 s48, s37, 8")
        a("s_lshl_b32 s49, s36, 3")
        a("s_add_u32 s48, s48, s49")
        a("s_add_u32 s48, s48, s38")
        a("s_mul_i32 s49, s48, 1280")
        a("v_mul_u32_u24 v2, 20, v1")
        a("buffer_load_dwordx4 v[116:119], v2, s[24:27], s49 offen")
        a("buffer_load_dword v120, v2, s[24:27], s49 offen offset:16")
        a("buffer_load_dwordx4 v[122:125], v2, s[28:31], 0 offen")
        a("buffer_load_dword v126, v2, s[28:31], 0 offen offset:16")
    a("v_lshlrev_b32 v2, 3, v17")
    a("v_lshl_add_u32 v12, v18, 8, v2")
    a(f"v_add_u32 v2, {8192 + 1280}, v2")
    a(f"v_mov_b32 v3, {8192 + 1536}")
    a("v_cmp_eq_u32 vcc, 0, v18")
    a("v_mul_u32_u24 v19, 320, v18")
    a("v_cndmask_b32 v13, v3, v2, vcc")
    a("v_lshl_add_u32 v2, v17, 4, v19")
    a("v_cmp_gt_u32 vcc, 20, v17")
    a("v_add_u32 v14, 8192, v2")
    a(f"v_add_u32 v15, {8192 + 640}, v2")
    a(f"v_mov_b32 v3, {8192 + 1552}")
    a("v_cndmask_b32 v14, v3, v14, vcc")
    a("v_cndmask_b32 v15, v3, v15, vcc")
    a("s_waitcnt vmcnt(6)" if (XP_GF and XP_ES) else "s_waitcnt vmcnt(0)")
    if not XP_GF:
        gate_compute(a, 116, 122, 48, 32)
    a("v_cmp_eq_u32 vcc, 0, v18")
    a("s_nop 1")
    a("v_cndmask_b32 v24, 0, v24, vcc")
    a("v_cndmask_b32 v25, 0, v25, vcc")
    a("v_mov_b32 v26, 0")
    a("v_mov_b32 v27, 0")
    a("s_mov_b32 s39, 0")

    QF0, QF1 = 20, 24
    KF = (28, 36)
    VF = (44, 52)
    P = 60
    S = (68, 84)
    O = 100

    def dma_stage(lds_sreg):
        dma_stage.n += 1
        a("s_cmp_eq_u32 s38, 7")
        a(f"s_cbranch_scc1 K2_W7S{dma_stage.n}")
        a(f"s_add_u32 m0, s{lds_sreg}, s46")
        a("s_nop 0")
        for j in range(3):
            a(f"buffer_load_dwordx4 v16, s[12:15], s44 offen offset:{1024 * j} lds")
        a(f"s_add_u32 s44, s44, {KV_STG}")
        a.label(f"K2_W7S{dma_stage.n}")
    dma_stage.n = 0

    def set_addrs(dst, sbase):
        for i in range(4):
            a(f"v_add_u32 v{dst + i}, s{sbase}, v{12 + i}")

    def kread(st, idx):
        base = 4 if idx < 8 else 8
        off = (idx % 8) * 1664
        return [f"ds_read2st64_b64 {vr(KF[st], 4)}, v{base} offset0:{2 * (idx % 8)} offset1:{2 * (idx % 8) + 1}",
                f"ds_read_b64 {vr(KF[st] + 4, 2)}, v{base + 1} offset:{off}"]

    def qk2(st, sd):
        if XP_K8:
            return f"v_mfma_f32_32x32x8bf16_1k {vr(sd, 16)}, {vr(KF[st] + 4, 2)}, {vr(QF1, 2)}, {vr(sd, 16)}"
        return f"v_mfma_f32_32x32x16_bf16 {vr(sd, 16)}, {vr(KF[st] + 4, 4)}, {vr(QF1, 4)}, {vr(sd, 16)}"

    def vread(st, idx):
        base = 4 if idx < 8 else 8
        off = (idx % 8) * 1664
        return [f"ds_read_b128 {vr(VF[st], 4)}, v{base + 2} offset:{off}",
                f"ds_read_b128 {vr(VF[st] + 4, 4)}, v{base + 3} offset:{off}"]

    def qk(st, sst):
        a(f"v_mfma_f32_32x32x16_bf16 {vr(S[sst], 16)}, {vr(KF[st], 4)}, {vr(QF0, 4)}, 0")
        a(qk2(st, S[sst]))

    def set_m_from(mreg):
        a(f"v_mov_b32 v3, v{mreg}")
        a("s_nop 1")
        a(f"v_permlane32_swap_b32 v{mreg}, v3")
        a("s_nop 1")
        a(f"v_max_f32 v2, v{mreg}, v3")
        a("v_and_b32 v3, 0xffff0000, v2")
        a("v_sub_f32 v2, v2, v3")
        a("v_and_b32 v19, 0xffff0000, v2")
        a("v_sub_f32 v2, v2, v19")
        a("v_xor_b32 v3, 0x80000000, v3")
        a("v_xor_b32 v19, 0x80000000, v19")
        a("v_xor_b32 v2, 0x80000000, v2")
        a("v_lshrrev_b32 v3, 16, v3")
        a("v_or_b32 v3, v3, v19")
        a("v_lshrrev_b32 v2, 16, v2")
        a("v_cmp_eq_u32 vcc, 0, v18")
        a("s_nop 1")
        if XP_K8:
            a("v_cndmask_b32 v24, v3, v24, vcc")
            a("v_cndmask_b32 v25, v2, v25, vcc")
        else:
            a("v_cndmask_b32 v26, 0, v3, vcc")
            a("v_cndmask_b32 v27, 0, v2, vcc")
        a("s_nop 1")

    def start_stream():
        a("s_mov_b32 s44, s45")
        a("s_mov_b32 s41, 0")
        a(f"s_mov_b32 s42, {K2_BUF}")
        a(f"s_mov_b32 s43, {2 * K2_BUF}")
        dma_stage(41)
        dma_stage(42)
        set_addrs(4, 41)
        set_addrs(8, 42)
        a("s_mov_b32 s40, 0")

    def stage_head(lbl):
        if XP_ES:
            a("s_cmp_eq_u32 s40, 0")
            a(f"s_cbranch_scc1 {lbl}_W0")
            a("s_waitcnt vmcnt(0)")
            a.label(lbl + "_W0")
            a("s_waitcnt vmcnt(3) lgkmcnt(0)")
        else:
            a("s_waitcnt vmcnt(0) lgkmcnt(0)")
        if XP_NOBAR:
            a("s_cmp_lg_u32 s40, 0")
            a(f"s_cbranch_scc1 {lbl}_NB")
        a("s_barrier")
        if XP_NOBAR:
            a.label(lbl + "_NB")
        a(f"s_cmp_ge_u32 s40, {1 if XP_NODMA else 6}")
        a(f"s_cbranch_scc1 {lbl}")
        dma_stage(43)
        a.label(lbl)

    def stage_rotate():
        a("s_mov_b32 s47, s41")
        a("s_mov_b32 s41, s42")
        a("s_mov_b32 s42, s43")
        a("s_mov_b32 s43, s47")
        for i in range(4):
            a(f"v_mov_b32 v{4 + i}, v{8 + i}")
        set_addrs(8, 42)
        a("s_add_u32 s40, s40, 1")

    a.label("K2_MAIN")
    prof(a, 1)
    a("s_cmp_eq_u32 s39, 0")
    a("s_cbranch_scc1 K2_STARTED")
    start_stream()
    a.label("K2_STARTED")
    set_addrs(4, 41)
    set_addrs(8, 42)
    for i in range(16):
        a(f"v_mov_b32 v{O + i}, 0")
    for i in range(4):
        a(f"v_mov_b32 v{P + 4 + i}, 0")
        a(f"v_mov_b32 v{VF[1] + 4 + i}, 0")
    a.label("K2_STAGE")
    stage_head("K2_NODMA")
    a("s_cmp_lg_u32 s40, 0")
    a("s_cbranch_scc1 K2_BODY")
    for r in kread(0, 0):
        a(r)
    a("s_cmp_lg_u32 s39, 0")
    a("s_cbranch_scc1 K2_PRIME")
    a("s_waitcnt lgkmcnt(0)")
    qk(0, 0)
    a("s_nop 15")
    a("s_nop 3")
    s0 = S[0]
    a(f"v_max3_f32 v116, v{s0}, v{s0 + 1}, v{s0 + 2}")
    for i in range(3, 15, 2):
        a(f"v_max3_f32 v116, v116, v{s0 + i}, v{s0 + i + 1}")
    a(f"v_max_f32 v116, v116, v{s0 + 15}")
    set_m_from(116)
    a.label("K2_PRIME")
    for r in kread(1, 1):
        a(r)
    for r in vread(0, 0):
        a(r)
    a("s_waitcnt lgkmcnt(4)")
    qk(0, 0)
    a("s_nop 15")
    prof(a, 2)
    a.label("K2_BODY")

    def body(par):
        for t in range(8):
            c = t % 2
            n = 1 - c
            sc = S[c]
            sn = S[n]

            def ex(lo):
                for i in range(lo, lo + 4):
                    a(f"v_exp_f32 v{sc + i}, v{sc + i}")

            def cv(lo):
                for i in range(lo, lo + 4):
                    a(f"v_cvt_pk_bf16_f32 v{P + i}, v{sc + 2 * i}, v{sc + 2 * i + 1}")
            if XP_PRIO:
                a(f"s_setprio {2 if (t & 1) == par else 1}")
            if XP_PR and (t == 0 or XP_PR[t] != XP_PR[t - 1]):
                a(f"s_setprio {XP_PR[t]}")
            ex(0)
            a(f"v_mfma_f32_32x32x16_bf16 {vr(O, 16)}, {vr(VF[n] + 4, 4)}, {vr(P + 4, 4)}, {vr(O, 16)}")
            ex(4)
            a("s_waitcnt lgkmcnt(0)" if XP_K8 else "s_waitcnt lgkmcnt(2)")
            a(f"v_mfma_f32_32x32x16_bf16 {vr(sn, 16)}, {vr(KF[n], 4)}, {vr(QF0, 4)}, 0")
            cv(0)
            if XP_ES and t == 6:
                a("s_cmp_lg_u32 s40, 0")
                a(f"s_cbranch_scc1 K2_MID{par}")
                a("s_waitcnt vmcnt(3)")
                a("s_barrier")
                a.label(f"K2_MID{par}")
            if not XP_NOLDS:
                for r in kread(c, t + 2):
                    a(r)
                for r in vread(n, t + 1):
                    a(r)
            ex(8)
            a(qk2(n, sn))
            ex(12)
            if not XP_K8:
                a("s_waitcnt lgkmcnt(4)")
            a(f"v_mfma_f32_32x32x16_bf16 {vr(O, 16)}, {vr(VF[c], 4)}, {vr(P, 4)}, {vr(O, 16)}")
            cv(4)

    if XP_PRIO:
        a("s_cmp_ge_u32 s38, 4")
        a("s_cbranch_scc1 K2_BODY1")
        body(0)
        a("s_branch K2_BODYE")
        a.label("K2_BODY1")
        body(1)
        a.label("K2_BODYE")
    else:
        body(0)
    stage_rotate()
    if PROF:
        a("s_memtime s[88:89]")
        a("s_waitcnt lgkmcnt(0)")
        a("v_mov_b32 v2, s88")
        a("s_lshl_b32 s90, s40, 2")
        a("v_mov_b32 v3, s90")
        a("buffer_store_dword v2, v3, s[92:95], s91 offen offset:8")
    a("s_cmp_lt_u32 s40, 8")
    a("s_cbranch_scc1 K2_STAGE")
    a("s_nop 1")
    a(f"v_mfma_f32_32x32x16_bf16 {vr(O, 16)}, {vr(VF[1] + 4, 4)}, {vr(P + 4, 4)}, {vr(O, 16)}")
    a("s_nop 15")
    a("s_nop 3")
    a("s_cmp_lg_u32 s39, 0")
    a("s_cbranch_scc1 K2_EPI")
    a("v_mov_b32 v2, 0")
    for i in range(9):
        a(f"v_fma_f32 v2, v{O + i}, 0, v2")
    a("v_mov_b32 v3, 0")
    for i in range(9, 12):
        a(f"v_fma_f32 v3, v{O + i}, 0, v3")
    a("v_cmp_eq_u32 vcc, 0, v18")
    a("s_nop 1")
    a("v_cndmask_b32 v3, 0, v3, vcc")
    a("v_add_f32 v2, v2, v3")
    a("v_cmp_u_f32 vcc, v2, v2")
    a("s_nop 4")
    a("s_cbranch_vccz K2_VOTE")
    a("v_mov_b32 v2, 1")
    a(f"v_mov_b32 v3, {K2_FLAG}")
    a("ds_write_b32 v3, v2")
    a.label("K2_VOTE")
    a("s_branch K2_EPI")
    a.label("K2_FALL")
    a("s_barrier")
    a("v_mov_b32 v26, 0")
    a("v_mov_b32 v27, 0")
    a("v_cmp_eq_u32 vcc, 0, v18")
    a("s_nop 1")
    a("v_cndmask_b32 v24, 0, v24, vcc")
    a("v_cndmask_b32 v25, 0, v25, vcc")
    a(f"v_mov_b32 v117, {f32bits(float('-inf'))}")
    start_stream()
    a.label("K2_MSTAGE")
    stage_head("K2_MNODMA")
    for t in range(8):
        for r in kread(0, t):
            a(r)
        a("s_waitcnt lgkmcnt(0)")
        qk(0, 0)
        a("s_nop 15")
        a("s_nop 3")
        for i in range(0, 16, 2):
            a(f"v_max3_f32 v117, v117, v{s0 + i}, v{s0 + i + 1}")
    stage_rotate()
    a("s_cmp_lt_u32 s40, 8")
    a("s_cbranch_scc1 K2_MSTAGE")
    set_m_from(117)
    a("s_mov_b32 s39, 1")
    a("s_waitcnt vmcnt(0) lgkmcnt(0)")
    a("s_barrier")
    a("s_branch K2_MAIN")
    a.label("K2_EPI")
    a(f"v_mov_b32 v2, v{O + 8}")
    a(f"v_mov_b32 v3, v{O + 8}")
    a("s_nop 1")
    a("v_permlane32_swap_b32 v2, v3")
    a("s_nop 1")
    a("v_rcp_f32 v3, v3")
    a("s_nop 0")
    for i in range(12):
        a(f"v_mul_f32 v{O + i}, v{O + i}, v3")
    for i in range(6):
        a(f"v_cvt_pk_bf16_f32 v{P + i}, v{O + 2 * i}, v{O + 2 * i + 1}")
    a("s_lshl_b32 s47, s37, 8")
    a("s_lshl_b32 s48, s38, 5")
    a("s_add_u32 s47, s47, s48")
    a("v_add_u32 v2, s47, v17")
    if XP_FUSE:
        a("v_lshrrev_b32 v3, 4, v2")
        a("v_mul_u32_u24 v3, 20480, v3")
        a("v_and_b32 v2, 15, v2")
        a("v_lshl_add_u32 v2, v2, 4, v3")
        a("s_mul_i32 s48, s36, 20")
        a("v_lshl_add_u32 v3, v18, 2, s48")
        a("v_lshrrev_b32 v19, 3, v3")
        a("v_lshl_add_u32 v2, v19, 8, v2")
        a("v_and_b32 v3, 4, v3")
        a("v_lshl_add_u32 v2, v3, 1, v2")
        a(f"buffer_store_dwordx2 {vr(P, 2)}, v2, s[20:23], 0 offen sc1")
        a(f"buffer_store_dwordx2 {vr(P + 2, 2)}, v2, s[20:23], 0 offen offset:256 sc1")
        a("v_cmp_eq_u32 vcc, 0, v18")
        a("s_and_saveexec_b64 s[50:51], vcc")
        a(f"buffer_store_dwordx2 {vr(P + 4, 2)}, v2, s[20:23], 0 offen offset:512 sc1")
        a("s_mov_b64 exec, s[50:51]")
        a("s_load_dwordx2 s[4:5], s[0:1], 56")
        a("s_waitcnt vmcnt(0) lgkmcnt(0)")
        a("s_barrier")
        a("s_cmp_lg_u32 s39, 0")
        a("s_cbranch_scc1 K2_TAIL")
    else:
        a("v_mul_u32_u24 v2, 1280, v2")
        a("s_mul_i32 s48, s36, 40")
        a("v_lshl_add_u32 v2, v18, 3, v2")
        a("v_add_u32 v2, s48, v2")
        a(f"buffer_store_dwordx2 {vr(P, 2)}, v2, s[20:23], 0 offen")
        a(f"buffer_store_dwordx2 {vr(P + 2, 2)}, v2, s[20:23], 0 offen offset:16")
        a("v_cmp_eq_u32 vcc, 0, v18")
        a("s_and_saveexec_b64 s[50:51], vcc")
        a(f"buffer_store_dwordx2 {vr(P + 4, 2)}, v2, s[20:23], 0 offen offset:32")
        a("s_mov_b64 exec, s[50:51]")
        a("s_cmp_lg_u32 s39, 0")
        a("s_cbranch_scc1 K2_PEND")
        a("s_waitcnt lgkmcnt(0)")
        a("s_barrier")
    a(f"v_mov_b32 v3, {K2_FLAG}")
    a("ds_read_b32 v2, v3")
    a("s_waitcnt lgkmcnt(0)")
    a("v_readfirstlane_b32 s47, v2")
    a("s_cmp_lg_u32 s47, 0")
    a("s_cbranch_scc1 K2_FALL")
    if XP_FUSE:
        a.label("K2_TAIL")
        k2_tail(a)
    a.label("K2_PEND")
    prof(a, 12)
    a.label("K2_END")
    a("s_endpgm")
    a.label("K2_FFN")
    if XP_NOFFN:
        a("s_endpgm")
    if XP_FP:
        a(f"s_setprio {XP_FP}")
    a("s_sub_u32 s38, s38, 8")
    if XP_GF:
        srd(a, 64, 4, 5, SZ_X)
        srd(a, 68, 6, 7, 1280)
        srd_off(a, 32, 8, 9, WS_G, SZ_G)
        a("s_lshl_b32 s48, s37, 8")
        a("s_lshl_b32 s49, s36, 3")
        a("s_add_u32 s48, s48, s49")
        a("s_lshl_b32 s49, s38, 1")
        a("s_add_u32 s48, s48, s49")
    a("s_load_dwordx2 s[6:7], s[0:1], 40")
    a("s_load_dwordx2 s[52:53], s[0:1], 16")
    tile_map(a, 36, 37)
    a("s_lshl_b32 s39, s36, 6")
    a("s_mul_i32 s40, s37, 160")
    a("s_mul_i32 s41, s38, 20480")
    a(f"s_add_u32 s41, s41, {K2_FFN}")
    a("s_mul_i32 s42, s38, 14")
    a("s_cmp_eq_u32 s38, 3")
    a("s_cselect_b32 s42, 41, s42")
    a("s_mul_i32 s45, s36, 54")
    a("s_add_u32 s45, s45, s42")
    a("s_lshl_b32 s45, s45, 12")
    a("s_mul_i32 s46, s42, 5120")
    a("s_mul_i32 s47, s37, 276480")
    a("s_add_u32 s46, s46, s47")
    a("s_waitcnt lgkmcnt(0)")
    srd_off(a, 16, 8, 9, WS_W2P, SZ_W2)
    srd_off(a, 24, 8, 9, WS_H, SZ_H)
    srd_off(a, 28, 8, 9, WS_B, SZ_B)
    gw_setup(a, 39, 40, 3456, 41)
    j = 0
    for k, ns in enumerate(XP_FS):
        a("s_barrier")
        if k == 0:
            if XP_GF:
                a("s_mul_i32 s49, s48, 1280")
                a("v_mul_u32_u24 v2, 20, v1")
                a("buffer_load_dwordx4 v[116:119], v2, s[64:67], s49 offen")
                a("buffer_load_dword v120, v2, s[64:67], s49 offen offset:16")
                a("buffer_load_dwordx4 v[122:125], v2, s[68:71], 0 offen")
                a("buffer_load_dword v126, v2, s[68:71], 0 offen offset:16")
                a("buffer_load_dwordx4 v[132:135], v2, s[64:67], s49 offen offset:1280")
                a("buffer_load_dword v136, v2, s[64:67], s49 offen offset:1296")
            gw_issue(a, 0, 24, 16, 45, 46, 41)
        if k == 1 and XP_PF and not XP_QX:
            srd(a, 52, 52, 53, SZ_WO)
            a("s_mul_i32 s56, s2, 3200")
            a("v_and_b32 v3, 255, v0")
            a("v_lshlrev_b32 v2, 7, v3")
            a("v_cmp_gt_u32 vcc, 25, v3")
            a("v_bfrev_b32 v3, 1")
            a("v_cndmask_b32 v2, v3, v2, vcc")
            a("buffer_load_dword v141, v2, s[52:55], s56 offen")
        for _ in range(ns):
            if XP_FPIPE:
                if j == 0:
                    gw_issue(a, 1, 24, 16, 45, 46, 41)
                    if XP_GF:
                        a("s_waitcnt vmcnt(18)")
                        gate_compute2(a, 116, 132, 122, 48, 32)
                        a("s_waitcnt vmcnt(10)")
                    else:
                        a("s_waitcnt vmcnt(9)")
                elif j < 13:
                    a("s_waitcnt vmcnt(9)")
                else:
                    a("s_waitcnt vmcnt(0)")
                    a("s_cmp_ge_u32 s38, 2")
                    a("s_cbranch_scc1 K2_FSKIP")
                gw_compute_pipe(a, j & 1, j == 0, gw_pieces(j & 1, 24, 16, 45, 46, 41) if j + 2 < 14 else [])
                if j == 0 and XP_ES:
                    a("s_barrier")
                j += 1
                continue
            if j < 13:
                gw_issue(a, (j + 1) & 1, 24, 16, 45, 46, 41)
                if j == 0 and XP_GF:
                    a("s_waitcnt vmcnt(18)")
                    gate_compute2(a, 116, 132, 122, 48, 32)
                    a("s_waitcnt vmcnt(10)")
                else:
                    a("s_waitcnt vmcnt(9)")
            else:
                a("s_waitcnt vmcnt(0)")
                a("s_cmp_ge_u32 s38, 2")
                a("s_cbranch_scc1 K2_FSKIP")
            gw_compute(a, j & 1, j == 0)
            if j == 0 and XP_ES:
                a("s_barrier")
            j += 1
    assert j == 14
    a.label("K2_FSKIP")
    if XP_FE:
        a(f"s_setprio {XP_FE}")
    a("s_nop 7")
    a("s_nop 3")
    a("s_waitcnt vmcnt(0)")
    gw_write_partials(a, 41)
    a("s_waitcnt lgkmcnt(0)")
    a("s_barrier")
    gw_read_sum(a, 38, K2_FFN)
    for e in range(0, 20, 2):
        a(f"v_cvt_pk_bf16_f32 v{112 + e // 2}, v{24 + e}, v{25 + e}")
    if XP_FUSE:
        a("s_mul_i32 s42, s38, 2560")
        a(f"s_add_u32 s42, s42, {K2_B}")
        a("v_lshlrev_b32 v2, 3, v1")
        a("v_add_u32 v2, s42, v2")
        for n in range(5):
            a(f"ds_write_b64 v2, {vr(112 + 2 * n, 2)} offset:{512 * n}")
        a("s_waitcnt lgkmcnt(0)")
        a("s_barrier")
        a("s_setprio 0")
        srd_off(a, 52, 8, 9, WS_WO, SZ_WO)
        a("s_mul_i32 s56, s37, 102400")
        a("s_mul_i32 s57, s38, 20480")
        a("s_add_u32 s56, s56, s57")
        for j in range(5):
            a(f"s_add_u32 m0, s41, {4096 * j}")
            a("s_nop 0")
            for i in range(4):
                a(f"buffer_load_dwordx4 v{GW.VA}, s[52:55], s56 offen offset:{1024 * i} lds")
            a("s_add_u32 s56, s56, 4096")
        for _ in range(8 - (len(XP_FS) + 2)):
            a("s_barrier")
        a("s_waitcnt vmcnt(0)")
        a("s_barrier")
        a("s_endpgm")
        return a.text()
    a("s_lshl_b32 s42, s36, 3")
    a("s_add_u32 s42, s42, s37")
    a("s_lshl_b32 s42, s42, 2")
    a("s_add_u32 s42, s42, s38")
    a("s_mul_i32 s42, s42, 2560")
    a("v_lshlrev_b32 v2, 3, v1")
    for n in range(5):
        a(f"buffer_store_dwordx2 {vr(112 + 2 * n, 2)}, v2, s[28:31], s42 offen offset:{512 * n}")
    if XP_PF2:
        srd_off(a, 52, 8, 9, WS_WO, SZ_WO)
        a("s_lshr_b32 s56, s2, 3")
        a("s_mul_i32 s56, s56, 12800")
        a("s_and_b32 s57, s2, 1")
        a("s_mul_i32 s57, s57, 409600")
        a("s_add_u32 s56, s56, s57")
        a("v_and_b32 v3, 255, v0")
        a("v_lshlrev_b32 v2, 7, v3")
        a("v_cmp_gt_u32 vcc, 100, v3")
        a("v_bfrev_b32 v3, 1")
        a("v_cndmask_b32 v2, v3, v2, vcc")
        a("buffer_load_dword v141, v2, s[52:55], s56 offen")
        a("s_waitcnt vmcnt(0)")
    a("s_endpgm")
    return a.text()


def wmap(a, dst, sC0B):
    a("v_mul_u32_u24 v3, 6554, v2")
    a("v_lshrrev_b32 v3, 16, v3")
    a("v_mul_u32_u24 v15, 10, v3")
    a("v_sub_u32 v2, v2, v15")
    a("v_lshrrev_b32 v15, 1, v3")
    a("v_and_b32 v15, 4, v15")
    a("v_xor_b32 v3, v3, v15")
    a("v_lshlrev_b32 v2, 4, v2")
    a("v_mul_u32_u24 v3, 1280, v3")
    a(f"v_add3_u32 v{dst}, v2, v3, s{sC0B}")


def wread_addr(a, d0, d1, sBase):
    a("v_lshlrev_b32 v2, 3, v22")
    a("v_lshrrev_b32 v3, 2, v23")
    a("v_add_u32 v2, v2, v3")
    a("v_mul_u32_u24 v2, 160, v2")
    a("v_and_b32 v3, 3, v23")
    a("v_lshlrev_b32 v3, 3, v3")
    a(f"v_add3_u32 v2, v2, v3, s{sBase}")
    a("v_and_b32 v3, 1, v22")
    a("v_mul_u32_u24 v3, 640, v3")
    a(f"v_add_u32 v{d0}, v2, v3")
    a("v_sub_u32 v2, v2, v3")
    a(f"v_add_u32 v{d1}, 640, v2")


K3_STG = 36864
K3_B = 4 * K3_STG
K3_LDS = K3_B + 10240


def k3():
    a = Asm()
    a.label("k3_kernel")
    if PROF:
        a("s_memtime s[86:87]")
    a("s_cmp_ge_u32 s2, 256")
    a("s_cbranch_scc1 K3_END")
    a("s_load_dwordx2 s[4:5], s[0:1], 16")
    a("s_load_dwordx2 s[8:9], s[0:1], 72")
    a("s_load_dwordx2 s[10:11], s[0:1], 56")
    tile_map(a, 36, 37)
    a("v_and_b32 v1, 63, v0")
    a("v_lshrrev_b32 v2, 6, v0")
    a("v_lshrrev_b32 v22, 4, v1")
    a("v_readfirstlane_b32 s38, v2")
    a("v_and_b32 v23, 15, v1")
    a("s_lshl_b32 s39, s36, 6")
    a("s_mul_i32 s40, s37, 160")
    a("s_and_b32 s49, s38, 3")
    a("s_lshr_b32 s50, s38, 2")
    a("s_lshl_b32 s42, s38, 3")
    for j in range(2):
        a(f"s_add_u32 s43, s42, {4 * j}")
        a("v_add_u32 v2, s43, v22")
        a("v_and_b32 v3, 15, v2")
        a("v_xor_b32 v3, v3, v23")
        a("v_add_u32 v2, s39, v2")
        a("v_mul_u32_u24 v2, 1280, v2")
        a(f"v_lshl_add_u32 v{4 + j}, v3, 4, v2")
    a("s_add_u32 s43, s38, 8")
    a("s_add_u32 s44, s38, 16")
    a("s_cmp_lt_u32 s38, 4")
    a("s_cselect_b32 s44, s44, s43")
    a("v_lshlrev_b32 v2, 4, v1")
    a("s_mul_i32 s55, s37, 102400")
    for j, sp in enumerate((38, 43, 44)):
        a(f"s_lshl_b32 s{52 + j}, s{sp}, 10")
        a(f"s_add_u32 s51, s{52 + j}, s55")
        a(f"v_add_u32 v{8 + j}, s51, v2")
        a(f"s_add_u32 s{52 + j}, s{52 + j}, 16384")
    a("s_lshl_b32 s45, s38, 11")
    a("s_waitcnt lgkmcnt(0)")
    srd_off(a, 12, 8, 9, WS_WO, SZ_WO)
    srd_off(a, 20, 8, 9, WS_O, SZ_O)
    srd_off(a, 24, 8, 9, WS_B, SZ_B)
    srd_off(a, 28, 8, 9, WS_G, SZ_G)
    srd(a, 32, 10, 11, SZ_OUT)
    prof_init(a, 8, 9, 38, 2)
    prof(a, 0)

    def issue(stage, slot):
        a(f"s_mov_b32 s47, {stage * 256}")
        a(f"s_mov_b32 s48, {stage * 20480}")
        for j in range(2):
            a(f"s_add_u32 m0, s45, {slot * K3_STG + j * 1024}")
            a("s_nop 0")
            a(f"buffer_load_dwordx4 v{4 + j}, s[20:23], s47 offen lds")
        for j in range(3):
            a(f"s_add_u32 m0, s{52 + j}, {slot * K3_STG}")
            a("s_nop 0")
            a(f"buffer_load_dwordx4 v{8 + j}, s[12:15], s48 offen lds")

    for st in range(4):
        issue(st, st)
    a("s_lshl_b32 s42, s36, 3")
    a("s_add_u32 s42, s42, s37")
    a("s_lshl_b32 s42, s42, 2")
    a("s_add_u32 s42, s42, s49")
    a("s_mul_i32 s42, s42, 2560")
    a("s_mul_i32 s43, s50, 1536")
    a("s_add_u32 s42, s42, s43")
    a("v_lshlrev_b32 v2, 3, v1")
    for n in range(3):
        a(f"buffer_load_dwordx2 {vr(104 + 2 * n, 2)}, v2, s[24:27], s42 offen offset:{512 * n}")
    a("s_lshl_b32 s42, s49, 4")
    a("v_add_u32 v2, s42, v23")
    a("v_add_u32 v3, s39, v2")
    a("v_lshlrev_b32 v3, 2, v3")
    a("buffer_load_dword v16, v3, s[28:31], 0 offen")
    a("v_mul_u32_u24 v2, 160, v2")
    a("v_lshl_add_u32 v2, v22, 3, v2")
    a("s_mul_i32 s43, s50, 96")
    a(f"s_add_u32 s43, s43, {K3_B}")
    a("v_add_u32 v17, s43, v2")
    for j in range(2):
        a("s_mul_i32 s43, s38, 80")
        a(f"s_add_u32 s43, s43, {64 * j}")
        a("v_add_u32 v2, s43, v1")
        a("v_mul_u32_u24 v3, 6554, v2")
        a("v_lshrrev_b32 v3, 16, v3")
        a("v_mul_u32_u24 v15, 10, v3")
        a("v_sub_u32 v15, v2, v15")
        a("v_lshlrev_b32 v15, 4, v15")
        a("v_add_u32 v3, s39, v3")
        a("v_mul_u32_u24 v3, 1280, v3")
        a(f"v_add3_u32 v{12 + j}, v3, v15, s40")
        a("v_lshlrev_b32 v2, 4, v2")
        a(f"v_add_u32 v{32 + j}, {K3_B}, v2")
    BV = 104
    RA, RW = 24, 28
    a("s_lshl_b32 s43, s49, 12")
    a("v_lshlrev_b32 v2, 8, v23")
    a("v_add_u32 v2, s43, v2")
    a("s_lshl_b32 s43, s50, 3")
    for i in range(2):
        a(f"s_add_u32 s44, s43, {4 * i}")
        a("v_add_u32 v3, s44, v22")
        a("v_xor_b32 v3, v3, v23")
        a(f"v_lshl_add_u32 v{RA + i}, v3, 4, v2")
        a(f"v_add_u32 v{RA + 2 + i}, {2 * K3_STG}, v{RA + i}")
    a("s_mul_i32 s43, s50, 10240")
    a("s_add_u32 s43, s43, 16384")
    wread_addr(a, RW, RW + 1, 43)
    a(f"v_add_u32 v{RW + 2}, {2 * K3_STG}, v{RW}")
    a(f"v_add_u32 v{RW + 3}, {2 * K3_STG}, v{RW + 1}")
    a("v_lshlrev_b32 v21, 4, v1")
    a("s_mul_i32 s43, s49, 5120")
    a(f"s_add_u32 s43, s43, {K3_STG}")
    a("v_add_u32 v21, s43, v21")
    AF = (36, 40)
    WF = (44, 64)
    ACC = 84

    def reads(t):
        st, i = t >> 1, t & 1
        slot = st % 4
        hi = slot >> 1
        so = (slot & 1) * K3_STG
        r = [f"ds_read_b128 {vr(AF[i], 4)}, v{RA + 2 * hi + i} offset:{so}"]
        for n in range(5):
            off = so + i * 5120 + n * 32
            r.append(f"ds_read_b64_tr_b16 {vr(WF[i] + 4 * n, 2)}, v{RW + 2 * hi} offset:{off}")
            r.append(f"ds_read_b64_tr_b16 {vr(WF[i] + 4 * n + 2, 2)}, v{RW + 2 * hi + 1} offset:{off}")
        return r

    def mf(t):
        for n in range(5):
            d = ACC + 4 * n
            c = "0" if t == 0 else vr(d, 4)
            a(f"v_mfma_f32_16x16x32_bf16 {vr(d, 4)}, {vr(WF[t & 1] + 4 * n, 4)}, {vr(AF[t & 1], 4)}, {c}")

    a("s_waitcnt vmcnt(19)")
    a("s_barrier")
    prof(a, 1)
    for r in reads(0) + reads(1):
        a(r)
    a("s_waitcnt vmcnt(4) lgkmcnt(0)")
    a("s_barrier")
    prof(a, 2)
    issue(4, 0)
    mf(0)
    for r in reads(2):
        a(r)
    mf(1)
    for t in range(2, 10):
        if t == 7:
            a("s_waitcnt vmcnt(0)")
            a("s_barrier")
            prof(a, 3)
        if t < 9:
            for r in reads(t + 1):
                a(r)
            a("s_waitcnt lgkmcnt(11)")
        else:
            a("s_waitcnt lgkmcnt(0)")
        mf(t)
    a("v_sub_f32 v18, 1.0, v16")
    a("v_cvt_pk_bf16_f32 v18, v18, v18")
    a("v_lshlrev_b32 v18, 16, v18")
    a("s_nop 7")
    prof(a, 6)
    XR = 44
    a("s_cmp_eq_u32 s50, 0")
    a("s_cbranch_scc0 K3_X1")
    for n in (3, 4):
        a(f"ds_write_b128 v21, {vr(ACC + 4 * n, 4)} offset:{1024 * n}")
    a("s_waitcnt lgkmcnt(0)")
    a("s_barrier")
    for n in range(3):
        a(f"ds_read_b128 {vr(XR + 4 * n, 4)}, v21 offset:{1024 * n}")
    a("s_branch K3_FIN")
    a.label("K3_X1")
    for n in range(3):
        a(f"ds_write_b128 v21, {vr(ACC + 4 * n, 4)} offset:{1024 * n}")
    a("s_waitcnt lgkmcnt(0)")
    a("s_barrier")
    for n in (3, 4):
        a(f"ds_read_b128 {vr(XR + 4 * (n - 3), 4)}, v21 offset:{1024 * n}")
    for i in range(8):
        a(f"v_mov_b32 v{ACC + i}, v{ACC + 12 + i}")
    a.label("K3_FIN")
    a("s_waitcnt lgkmcnt(0)")
    for n in range(3):
        if n == 2:
            a("s_cmp_eq_u32 s50, 0")
            a("s_cbranch_scc0 K3_CP")
        for i in range(4):
            a(f"v_add_f32 v{ACC + 4 * n + i}, v{ACC + 4 * n + i}, v{XR + 4 * n + i}")
        for h in range(2):
            e = ACC + 4 * n + 2 * h
            bp = BV + 2 * n + h
            a(f"v_cvt_pk_bf16_f32 v19, v{e}, v{e + 1}")
            a("v_lshlrev_b32 v4, 16, v19")
            a("v_and_b32 v5, 0xffff0000, v19")
            a(f"v_lshlrev_b32 v6, 16, v{bp}")
            a(f"v_and_b32 v7, 0xffff0000, v{bp}")
            a("v_mul_f32 v4, v16, v4")
            a("v_mul_f32 v5, v16, v5")
            a("v_mul_f32 v6, v18, v6")
            a("v_mul_f32 v7, v18, v7")
            a("v_cvt_pk_bf16_f32 v19, v4, v5")
            a("v_cvt_pk_bf16_f32 v20, v6, v7")
            a("v_lshlrev_b32 v4, 16, v19")
            a("v_and_b32 v5, 0xffff0000, v19")
            a("v_lshlrev_b32 v6, 16, v20")
            a("v_and_b32 v7, 0xffff0000, v20")
            a("v_add_f32 v4, v4, v6")
            a("v_add_f32 v5, v5, v7")
            a(f"v_cvt_pk_bf16_f32 v{bp}, v4, v5")
        a(f"ds_write_b64 v17, {vr(BV + 2 * n, 2)} offset:{32 * n}")
    a.label("K3_CP")
    a("s_waitcnt lgkmcnt(0)")
    a("s_barrier")
    a("ds_read_b128 v[4:7], v32")
    a("ds_read_b128 v[8:11], v33")
    a("s_waitcnt lgkmcnt(1)")
    a("buffer_store_dwordx4 v[4:7], v12, s[32:35], 0 offen")
    a("v_cmp_gt_u32 vcc, 16, v1")
    a("s_and_saveexec_b64 s[50:51], vcc")
    a("s_waitcnt lgkmcnt(0)")
    a("buffer_store_dwordx4 v[8:11], v13, s[32:35], 0 offen")
    a("s_mov_b64 exec, s[50:51]")
    a.label("K3_PEND")
    prof(a, 12)
    a.label("K3_END")
    a("s_endpgm")
    return a.text()


def desc(name, vgpr, sgpr=96):
    acc = (vgpr + 3) // 4 * 4
    return f""".amdhsa_kernel {name}
  .amdhsa_next_free_vgpr {vgpr}
  .amdhsa_next_free_sgpr {sgpr}
  .amdhsa_accum_offset {acc}
  .amdhsa_group_segment_fixed_size 0
  .amdhsa_kernarg_size 80
  .amdhsa_user_sgpr_count 2
  .amdhsa_user_sgpr_kernarg_segment_ptr 1
  .amdhsa_system_sgpr_workgroup_id_x 1
.end_amdhsa_kernel
"""


def main():
    l3 = "" if XP_FUSE else f"; @launch kernel=k3_kernel grid=(256,1,1) block=(512,1,1) lds={K3_LDS}\n"
    hdr = f"""; gated_mix__mha_block__dense_activation_relu__prompt : kernel list (generated by gen.py, hand-designed)
; @launch kernel=k1_kernel grid=(256,1,1) block=(512,1,1) lds={K1_LDS}
; @launch kernel=k2_kernel grid=(256,1,1) block=(768,1,1) lds={K2_LDS}
{l3}.amdgcn_target "amdgcn-amd-amdhsa--gfx950"
.text
"""
    body = ""
    for name, fn in (("k1_kernel", k1), ("k2_kernel", k2), ("k3_kernel", k3))[:2 if XP_FUSE else 3]:
        body += f".globl {name}\n.p2align 8\n.type {name},@function\n" + fn()
    tail = '.section .rodata,"a"\n.p2align 6\n'
    tail += desc("k1_kernel", 256)
    tail += ".p2align 6\n" + desc("k2_kernel", 144)
    if not XP_FUSE:
        tail += ".p2align 6\n" + desc("k3_kernel", 116)
    open(OUT, "w").write(hdr + body + tail)


if __name__ == "__main__":
    main()
```

```python
import struct, sys

OUT = sys.argv[1] if len(sys.argv) > 1 else "gated_mix__mha_block__dense_activation_relu__prompt.s"

WS_Q = 0
HEAD_Q = 64 * 1280
SZ_Q = 32 * HEAD_Q
WS_KV = 0x400000
KV_STG = 21504
HEAD_KV = 8 * KV_STG
SZ_KV = 32 * HEAD_KV
WS_H = 0xC00000
SZ_H = 2048 * 3456
WS_O = 0x1400000
SZ_O = 2048 * 1280
WS_G = 0x1800000
SZ_G = 2048 * 4
WS_B = 0x1A00000
SZ_B = 2048 * 1280
WS_WO = 0x1E00000
WS_W2P = 0x2400000
WS_CNT = 0x2800000

SZ_X = 2048 * 1280
SZ_WQKV = 640 * 3840
SZ_WO = 640 * 1280
SZ_W1 = 640 * 3456
SZ_W2 = 1728 * 1280
SZ_OUT = 2048 * 1280


def f32bits(x):
    return struct.unpack("<I", struct.pack("<f", x))[0]


C_SCALE = 1.4426950408889634 / (20 ** 0.5)
LOG2E = 1.4426950408889634


PROF = int(__import__("os").environ.get("PROF", "0"))
WS_T = 0x2000000
XP_PF = int(__import__("os").environ.get("XP_PF", "0"))
XP_ROT = int(__import__("os").environ.get("XP_ROT", "1"))
XP_PRIO = int(__import__("os").environ.get("XP_PRIO", "0"))
XP_RPM = int(__import__("os").environ.get("XP_RPM", "1"))
XP_DSL = eval(__import__("os").environ.get("XP_DSL", "(7, 10, 13)"))
XP_FDEL = int(__import__("os").environ.get("XP_FDEL", "1"))
XP_FS = eval(__import__("os").environ.get("XP_FS", "(1, 3, 3, 3, 2, 2)"))
XP_QX = int(__import__("os").environ.get("XP_QX", "0"))
XP_PF2 = int(__import__("os").environ.get("XP_PF2", "0"))
XP_NOLDS = int(__import__("os").environ.get("XP_NOLDS", "0"))
XP_NOFFN = int(__import__("os").environ.get("XP_NOFFN", "0"))
XP_K8 = int(__import__("os").environ.get("XP_K8", "1"))
XP_PR = eval(__import__("os").environ.get("XP_PR", "(3, 3, 3, 2, 2, 2, 1, 1)"))
XP_FP = int(__import__("os").environ.get("XP_FP", "0"))
XP_FE = int(__import__("os").environ.get("XP_FE", "3"))
XP_FPIPE = int(__import__("os").environ.get("XP_FPIPE", "1"))
XP_FB = int(__import__("os").environ.get("XP_FB", "2"))
XP_FUSE = int(__import__("os").environ.get("XP_FUSE", "1"))
XP_ES = int(__import__("os").environ.get("XP_ES", "1"))
XP_FJ = int(__import__("os").environ.get("XP_FJ", "1"))
XP_GF = int(__import__("os").environ.get("XP_GF", "1"))
XP_NODMA = int(__import__("os").environ.get("XP_NODMA", "0"))
XP_NOBAR = int(__import__("os").environ.get("XP_NOBAR", "0"))


def prof_init(a, wsl, wsh, wave_s, kidx=0):
    if not PROF:
        return
    a(f"s_add_u32 s92, s{wsl}, {WS_T + kidx * 0x100000}")
    a(f"s_addc_u32 s93, s{wsh}, 0")
    a("s_and_b32 s93, s93, 0xffff")
    a("s_mov_b32 s94, 0x100000")
    a("s_mov_b32 s95, 0x00020000")
    a("s_lshl_b32 s91, s2, 4")
    a(f"s_add_u32 s91, s91, s{wave_s}")
    a("s_lshl_b32 s91, s91, 7")


def prof(a, slot, tmpv=2):
    if not PROF:
        return
    a("s_memtime s[88:89]")
    a("s_waitcnt lgkmcnt(0)")
    a(f"v_mov_b32 v{tmpv}, s88")
    a(f"v_mov_b32 v{tmpv + 1}, 0")
    a(f"buffer_store_dword v{tmpv}, v{tmpv + 1}, s[92:95], s91 offen offset:{4 * slot}")
    if slot == 0:
        a(f"v_mov_b32 v{tmpv}, s86")
        a(f"buffer_store_dword v{tmpv}, v{tmpv + 1}, s[92:95], s91 offen offset:60")
    if slot in (0, 12):
        a("s_memrealtime s[88:89]")
        a("s_waitcnt lgkmcnt(0)")
        a(f"v_mov_b32 v{tmpv}, s88")
        a(f"buffer_store_dword v{tmpv}, v{tmpv + 1}, s[92:95], s91 offen offset:{4 * (13 if slot == 0 else 14)}")


class Asm:
    def __init__(self):
        self.lines = []

    def __call__(self, s):
        self.lines.append("    " + s)

    def label(self, l):
        self.lines.append(l + ":")

    def c(self, s):
        self.lines.append("    ; " + s)

    def text(self):
        return "\n".join(self.lines) + "\n"


def vr(b, n=1):
    return f"v{b}" if n == 1 else f"v[{b}:{b + n - 1}]"


def sr(b, n=1):
    return f"s{b}" if n == 1 else f"s[{b}:{b + n - 1}]"


def srd(a, d, lo, hi, size):
    a(f"s_mov_b32 s{d}, s{lo}")
    a(f"s_and_b32 s{d + 1}, s{hi}, 0xffff")
    a(f"s_mov_b32 s{d + 2}, {size}")
    a(f"s_mov_b32 s{d + 3}, 0x00020000")


def srd_off(a, d, lo, hi, off, size):
    a(f"s_add_u32 s{d}, s{lo}, {off}")
    a(f"s_addc_u32 s{d + 1}, s{hi}, 0")
    a(f"s_and_b32 s{d + 1}, s{d + 1}, 0xffff")
    a(f"s_mov_b32 s{d + 2}, {size}")
    a(f"s_mov_b32 s{d + 3}, 0x00020000")


def _env(n, d):
    return int(__import__("os").environ.get(n, str(d)))


XP_N1 = _env("XP_N1", 3)
XP_KEEP = _env("XP_KEEP", 3)
XP_FILL = _env("XP_FILL", 2)
XP_R1 = _env("XP_R1", 1)
XP_MAXQ = _env("XP_MAXQ", 13)
XP_T1 = _env("XP_T1", 1)
XP_TB = _env("XP_TB", 3)
K1_P = 32
K1_LDS = K1_P * 4096
K1_NW = 232


def k1_plan(n):
    segs = []
    for s in range(10):
        items = []
        mf = []
        for q in range(4):
            items.append(("W", s, q))
            if q < n:
                items.append(("X", q, s))
            for b in range(n):
                mf.append(dict(b=b, ks=4 * s + q, x=("X", b, s), sub=q, w=("W", s, q) if b == 0 else None))
        segs.append(dict(items=items, mf=mf, lag=1))
    for b in range(n, 8):
        for h in range(2):
            items = [("X", b, w) for w in range(5 * h, 5 * h + 5)]
            mf = [dict(b=b, ks=4 * w + q, x=("X", b, w), sub=q, w=None)
                  for w in range(5 * h, 5 * h + 5) for q in range(4)]
            segs.append(dict(items=items, mf=mf, lag=2))
    page = {}
    order = []
    for j, sg in enumerate(segs):
        for it in sg["items"]:
            page[it] = len(order) % K1_P
            order.append((it, j))
        for m in sg["mf"]:
            m["seg"] = j
    return segs, page, order


K1_INC = (0, 1, 22, 23)


def k1_compute(a, mode, segs, page):
    WR, ACC, XR, R = 96, 48, 24, 6
    XB, WB, IA = 4, 12, 14
    NS = 3
    mfs = [m for sg in segs for m in sg["mf"]]
    NM = len(mfs)
    last = {}
    first = {}
    for i, m in enumerate(mfs):
        last[m["b"]] = i
        first.setdefault(m["b"], i)
    st = dict(n=0, done=-1, bar=-1)

    def lds(txt):
        a(txt)
        st["n"] += 1
        return st["n"] - 1

    def wait(i):
        if i > st["done"]:
            c = min(15, st["n"] - 1 - i)
            a(f"s_waitcnt lgkmcnt({c})")
            st["done"] = st["n"] - 1 - c

    def barrier(full):
        if full:
            wait(st["n"] - 1)
        a("s_barrier")
        st["bar"] += 1
        if XP_T1 == 1 and st["bar"] == XP_TB:
            a("buffer_load_dword v19, v18, s[12:15], s33 offen")
        if st["bar"] in (0, 3, 6, 9):
            prof(a, 1 + st["bar"] // 3)
        elif st["bar"] >= 10 and st["bar"] % 2 == 0 and 5 + (st["bar"] - 10) // 2 <= 11:
            prof(a, 5 + (st["bar"] - 10) // 2)

    def epi(b):
        A = ACC + 16 * (b % NS)
        ops = []
        if mode in ("f", "v"):
            for jj in range(2):
                for i in range(4):
                    ops.append(f"v_cvt_pk_bf16_f32 v{A + 4 * jj + i}, v{A + 8 * jj + 2 * i}, v{A + 8 * jj + 2 * i + 1}")
                if mode == "f":
                    for i in range(4):
                        ops.append(f"v_pk_max_i16 v{A + 4 * jj + i}, v{A + 4 * jj + i}, 0")
                ops.append(f"buffer_store_dwordx4 {vr(A + 4 * jj, 4)}, v{IA}, s[20:23], s46 offen offset:{(1024 if mode == 'f' else 640) * jj} sc1")
            if mode == "f":
                ops.append(f"s_add_u32 s46, s46, {2048 if b % 2 == 0 else 54 * 4096 - 2048}")
            else:
                ops.append("s_add_u32 s46, s46, 1664")
        else:
            for j in range(4):
                for i in range(4):
                    ops.append(f"v_mul_f32 v{A + 4 * j + i}, s48, v{A + 4 * j + i}")
                for i in range(2):
                    ops.append(f"v_cvt_pk_bf16_f32 v{A + 2 * j + i}, v{A + 4 * j + 2 * i}, v{A + 4 * j + 2 * i + 1}")
                ops.append(f"buffer_store_dwordx2 {vr(A + 2 * j, 2)}, v{IA + j}, s[20:23], 0 offen sc1")
                if b < 7:
                    ops.append(f"v_add_u32 v{IA + j}, v{K1_INC[j]}, v{IA + j}")
        return [(b, o) for o in ops]

    fq = []

    def emit_fill(force_b=None, limit=None):
        k = 0
        while fq and (limit is None or k < limit):
            b, txt = fq[0]
            if force_b is not None and b > force_b:
                break
            fq.pop(0)
            a(txt)
            k += 1

    rd = 0
    xid = {}
    avail = []
    for m in range(NM):
        while rd < NM and rd < m + R:
            r = mfs[rd]
            if r["seg"] > st["bar"]:
                lag1 = r["seg"] > 0 and segs[r["seg"] - 1]["lag"] == 1
                if lag1 and rd - m > XP_KEEP:
                    break
                barrier(lag1)
            if r["w"] is not None:
                pg = page[r["w"]]
                off = (pg & 15) * 4096
                d = WR + 4 * r["ks"]
                lds(f"ds_read_b64_tr_b16 {vr(d, 2)}, v{WB + (pg >> 4)} offset:{off}")
                lds(f"ds_read_b64_tr_b16 {vr(d + 2, 2)}, v{WB + (pg >> 4)} offset:{off + 1024}")
            pg = page[r["x"]]
            xid[rd] = lds(f"ds_read_b128 {vr(XR + 4 * (rd % R), 4)}, v{XB + 4 * (pg >> 4) + r['sub']} offset:{(pg & 15) * 4096}")
            rd += 1
        r = mfs[m]
        b = r["b"]
        A = ACC + 16 * (b % NS)
        if m == first[b] and b >= NS:
            for (mi, bb) in list(avail):
                if bb <= b - NS:
                    assert m - 1 >= mi, "hazard"
                    fq.extend(epi(bb))
                    avail.remove((mi, bb))
            emit_fill(force_b=b - NS)
        wait(xid[m])
        c = "0" if m == first[b] else vr(A, 16)
        wf, xf = vr(WR + 4 * r["ks"], 4), vr(XR + 4 * (m % R), 4)
        if mode == "v":
            a(f"v_mfma_f32_32x32x16_bf16 {vr(A, 16)}, {xf}, {wf}, {c}")
        else:
            a(f"v_mfma_f32_32x32x16_bf16 {vr(A, 16)}, {wf}, {xf}, {c}")
        if m == last[b]:
            avail.append((m + 2, b))
        for (mi, bb) in list(avail):
            if m >= mi:
                fq.extend(epi(bb))
                avail.remove((mi, bb))
        emit_fill(limit=XP_FILL)
    emit_fill(force_b=7)
    a("s_nop 15")
    a("s_nop 3")
    for (mi, bb) in avail:
        fq.extend(epi(bb))
    emit_fill(force_b=7)
    assert not fq
    prof(a, 12)
    a("s_endpgm")
    return st["bar"] + 1


def k1_helper(a, segs, page, order):
    VW, VX = 4, 8
    st = dict(n=0, nxt=0)
    opid = {}

    def issue(bar):
        while st["nxt"] < len(order):
            i = st["nxt"]
            if i - sum(len(sg["items"]) for sg in segs[:bar + 1]) >= XP_MAXQ:
                break
            if i >= K1_P:
                pj = order[i - K1_P][1]
                if pj + segs[pj]["lag"] > bar:
                    break
            it, _ = order[i]
            a(f"s_add_u32 m0, s47, {page[it] * 4096}")
            a("s_nop 0")
            if it[0] == "W":
                a(f"buffer_load_dwordx4 v{VW + it[2]}, s[16:19], s{60 + it[1]} offen lds")
            else:
                a(f"buffer_load_dwordx4 v{VX + it[1]}, s[12:15], s{70 + it[2]} offen lds")
            opid[it] = st["n"]
            st["n"] += 1
            st["nxt"] += 1
            if XP_T1 == 2 and st["nxt"] == XP_TB:
                a("buffer_load_dword v19, v18, s[12:15], s33 offen")
                st["n"] += 1

    def hst(slot):
        if PROF:
            a("s_memtime s[88:89]")
            a("s_waitcnt lgkmcnt(0)")
            a(f"v_mov_b32 v{40 + slot}, s88")
    if PROF:
        a("v_mov_b32 v40, s86")
    hst(1)
    issue(-1)
    hst(2)
    hst(3)
    for j in range(len(segs)):
        need = max(opid[it] for it in segs[j]["items"])
        a(f"s_waitcnt vmcnt({min(63, st['n'] - 1 - need)})")
        hst(4 + j)
        a("s_barrier")
        issue(j)
    assert st["nxt"] == len(order)
    if PROF:
        a("s_add_u32 s26, s26, 4")
        prof_init(a, 10, 11, 26, 0)
        a("v_mov_b32 v2, 0")
        for q in range(7):
            a(f"buffer_store_dwordx4 {vr(40 + 4 * q, 4)}, v2, s[92:95], s91 offen offset:{16 * q}")
    a("s_endpgm")


def k1_touch_addr(a):
    nl = (8 - XP_N1) * 40
    assert nl <= 256
    a("s_and_b32 s3, s25, 7")
    a(f"s_mul_i32 s3, s3, {nl * 128}")
    a(f"s_add_u32 s33, s30, {32 * XP_N1}")
    a("s_mul_i32 s33, s33, 1280")
    a("s_add_u32 s33, s3, s33")
    a("v_and_b32 v2, 255, v0")
    a(f"v_cmp_gt_u32 vcc, {nl}, v2")
    a("v_lshlrev_b32 v2, 7, v2")
    a("v_bfrev_b32 v18, 1")
    a("v_cndmask_b32 v18, v18, v2, vcc")


def k1():
    a = Asm()
    segs, page, order = k1_plan(XP_N1)
    a.label("k1_kernel")
    if PROF:
        a("s_memtime s[86:87]")
    a("s_cmp_ge_u32 s2, 256")
    a("s_cbranch_scc1 K1_END")
    a(f"s_cmp_ge_u32 s2, {K1_NW}")
    a("s_cbranch_scc1 K1_PACK")
    a("s_load_dwordx2 s[4:5], s[0:1], 0")
    a("s_load_dwordx2 s[6:7], s[0:1], 8")
    a("s_load_dwordx2 s[8:9], s[0:1], 32")
    a("s_load_dwordx2 s[10:11], s[0:1], 72")
    a("s_and_b32 s3, s2, 7")
    a("s_lshr_b32 s27, s2, 3")
    a("s_lshr_b32 s28, s3, 1")
    a("s_mul_i32 s28, s28, 29")
    a("s_add_u32 s28, s28, s27")
    a("s_lshr_b32 s25, s28, 2")
    a("s_and_b32 s28, s28, 3")
    a("s_and_b32 s3, s3, 1")
    a("s_lshl_b32 s3, s3, 2")
    a("s_add_u32 s24, s3, s28")
    a("v_and_b32 v1, 63, v0")
    a("v_lshrrev_b32 v2, 6, v0")
    a("s_lshl_b32 s30, s24, 8")
    a("v_readfirstlane_b32 s26, v2")
    a("s_cmp_lt_u32 s26, 4")
    a("s_cbranch_scc1 K1_COMP")
    a("s_sub_u32 s26, s26, 4")
    a("s_lshl_b32 s47, s26, 10")
    a("s_sub_u32 s3, s25, 15")
    a("s_movk_i32 s28, 3456")
    a("s_cmp_lt_u32 s25, 15")
    a("s_cselect_b32 s28, 3840, s28")
    a("s_cselect_b32 s31, s25, s3")
    a("s_lshl_b32 s31, s31, 8")
    a("s_cmp_eq_u32 s25, 28")
    a("s_cselect_b32 s29, 8, 16")
    a("v_lshrrev_b32 v2, 4, v1")
    a("v_and_b32 v3, 15, v1")
    a("v_lshlrev_b32 v16, 2, v2")
    a("v_xor_b32 v3, v3, v16")
    a("v_cmp_gt_u32 vcc, s29, v3")
    a("s_lshl_b32 s3, s26, 2")
    a("v_add_u32 v16, s3, v2")
    a("v_mul_lo_u32 v16, v16, s28")
    a("v_lshl_add_u32 v16, v3, 4, v16")
    a("v_add_u32 v16, s31, v16")
    a("v_bfrev_b32 v17, 1")
    a("v_cndmask_b32 v4, v17, v16, vcc")
    a("s_lshl_b32 s27, s28, 4")
    for q in range(1, 4):
        a(f"v_add_u32 v{4 + q}, s27, v{3 + q}")
    a("v_add_u32 v2, s3, v2")
    a("v_and_b32 v2, 7, v2")
    a("v_and_b32 v3, 7, v1")
    a("v_xor_b32 v3, v3, v2")
    a("v_lshrrev_b32 v2, 3, v1")
    a("s_lshl_b32 s3, s26, 3")
    a("s_add_u32 s3, s3, s30")
    a("v_add_u32 v2, s3, v2")
    a("v_mul_u32_u24 v2, 1280, v2")
    a("v_lshl_add_u32 v8, v3, 4, v2")
    for b in range(1, 8):
        a(f"v_add_u32 v{8 + b}, 40960, v{7 + b}")
    if XP_R1 == 2:
        a("s_and_b32 s3, s24, 3")
        a("s_mul_i32 s3, s3, 5")
        a("s_lshr_b32 s3, s3, 1")
        a("s_mul_i32 s27, s25, 3")
        a("s_add_u32 s3, s3, s27")
    else:
        a("s_add_u32 s3, s24, s25")
        a(f"s_mul_i32 s3, s3, {XP_R1}")
    a("s_mul_i32 s27, s3, 205")
    a("s_lshr_b32 s27, s27, 11")
    a("s_mul_i32 s27, s27, 10")
    a("s_sub_u32 s3, s3, s27")
    a("s_lshl_b32 s27, s28, 6")
    for w in range(10):
        a(f"s_lshl_b32 s{70 + w}, s3, 7")
        a(f"s_mul_i32 s{60 + w}, s3, s27")
        if w < 9:
            a("s_add_u32 s3, s3, 1")
            a("s_cmp_eq_u32 s3, 10")
            a("s_cselect_b32 s3, 0, s3")
    if XP_T1 == 2:
        k1_touch_addr(a)
    a(f"s_mov_b32 s18, {SZ_W1}")
    a("s_waitcnt lgkmcnt(0)")
    srd(a, 12, 4, 5, SZ_X)
    a("s_cmp_lt_u32 s25, 15")
    a("s_cselect_b32 s16, s6, s8")
    a("s_cselect_b32 s17, s7, s9")
    a(f"s_cselect_b32 s18, {SZ_WQKV}, s18")
    a("s_and_b32 s17, s17, 0xffff")
    a("s_mov_b32 s19, 0x00020000")
    k1_helper(a, segs, page, order)
    a.label("K1_COMP")
    a("s_setprio 2")
    a("s_lshr_b32 s3, s26, 1")
    a("s_add_u32 s3, s3, s25")
    a("s_cmp_ge_u32 s3, 29")
    a("s_cbranch_scc1 K1_END")
    a("v_and_b32 v2, 31, v1")
    a("v_lshrrev_b32 v3, 5, v1")
    a("v_bfe_u32 v18, v2, 1, 3")
    a("v_xor_b32 v18, v18, v3")
    a("v_lshlrev_b32 v18, 4, v18")
    a("v_lshl_add_u32 v4, v2, 7, v18")
    for s_ in range(1, 4):
        a(f"v_xor_b32 v{4 + s_}, {32 * s_}, v4")
    for s_ in range(4):
        a(f"v_add_u32 v{8 + s_}, 0x10000, v{4 + s_}")
    a("v_and_b32 v18, 15, v1")
    a("v_lshrrev_b32 v19, 2, v18")
    a("v_lshl_add_u32 v12, v3, 3, v19")
    a("v_lshlrev_b32 v12, 8, v12")
    a("v_bfe_u32 v13, v1, 4, 1")
    a("v_lshlrev_b32 v13, 1, v13")
    a("v_bfe_u32 v14, v1, 1, 1")
    a("v_add_u32 v13, v13, v14")
    a("s_lshl_b32 s3, s26, 2")
    a("v_add_u32 v13, s3, v13")
    a("v_lshlrev_b32 v19, 2, v19")
    a("v_xor_b32 v13, v13, v19")
    a("v_lshl_add_u32 v12, v13, 4, v12")
    a("v_and_b32 v13, 1, v1")
    a("v_lshl_add_u32 v12, v13, 3, v12")
    a("v_add_u32 v13, 0x10000, v12")
    if XP_T1 == 1:
        k1_touch_addr(a)
    a("s_waitcnt lgkmcnt(0)")
    srd(a, 12, 4, 5, SZ_X)
    prof_init(a, 10, 11, 26, 0)
    prof(a, 0)
    a("v_and_b32 v24, 31, v1")
    a("v_lshrrev_b32 v25, 5, v1")
    a("s_cmp_ge_u32 s25, 15")
    a("s_cbranch_scc1 K1_CF")
    a("s_cmp_ge_u32 s25, 10")
    a("s_cbranch_scc1 K1_CV")
    srd(a, 20, 10, 11, WS_KV + SZ_KV)
    a("s_sub_u32 s3, s25, 5")
    a("s_cmp_lt_u32 s25, 5")
    a("s_cselect_b32 s3, s25, s3")
    a(f"s_cselect_b32 s48, {f32bits(C_SCALE)}, 1.0")
    a(f"s_mov_b32 s27, {HEAD_KV}")
    a(f"s_cselect_b32 s27, {HEAD_Q}, s27")
    a("s_movk_i32 s28, 1024")
    a("s_cselect_b32 s28, 1280, s28")
    a("s_movk_i32 s29, 1664")
    a("s_cselect_b32 s29, 1280, s29")
    a(f"s_movk_i32 s31, {8192 + 1280}")
    a("s_cselect_b32 s31, 1024, s31")
    a(f"s_mul_i32 s34, s24, {KV_STG}")
    a(f"s_add_u32 s34, s34, {WS_KV}")
    a("s_mul_i32 s35, s24, 10240")
    a("s_cmp_lt_u32 s25, 5")
    a("s_cselect_b32 s34, s35, s34")
    a("s_lshl_b32 s3, s3, 5")
    a("s_lshl_b32 s35, s26, 3")
    a("s_add_u32 s3, s3, s35")
    a("v_lshl_add_u32 v24, v24, 3, s34")
    a("v_mov_b32 v28, s28")
    a("v_mov_b32 v29, s29")
    a("v_mov_b32 v30, s31")
    for j in range(4):
        a(f"s_add_u32 s35, s3, {2 * j}")
        a("v_add_u32 v26, s35, v25")
        a("v_mul_u32_u24 v27, 205, v26")
        a("v_lshrrev_b32 v27, 10, v27")
        a("v_mul_u32_u24 v31, 5, v27")
        a("v_sub_u32 v26, v26, v31")
        a("v_cmp_eq_u32 vcc, 4, v26")
        a("v_lshlrev_b32 v26, 8, v26")
        a("v_mul_lo_u32 v27, v27, s27")
        a("v_cndmask_b32 v26, v26, v30, vcc")
        a(f"v_cndmask_b32 v{K1_INC[j]}, v28, v29, vcc")
        a(f"v_add3_u32 v{14 + j}, v26, v27, v24")
    nb = k1_compute(a, "q", segs, page)
    assert nb == len(segs)
    a.label("K1_CV")
    srd_off(a, 20, 10, 11, WS_KV, SZ_KV)
    a("s_sub_u32 s3, s25, 10")
    a("s_lshl_b32 s3, s3, 2")
    a("s_add_u32 s3, s3, s26")
    a("s_lshl_b32 s3, s3, 5")
    a("v_add_u32 v24, s3, v24")
    a("v_mul_u32_u24 v26, 3277, v24")
    a("v_lshrrev_b32 v26, 16, v26")
    a("v_mul_u32_u24 v27, 20, v26")
    a("v_sub_u32 v24, v24, v27")
    a(f"s_mov_b32 s27, {HEAD_KV}")
    a("v_mul_lo_u32 v26, v26, s27")
    a("v_mul_u32_u24 v25, 320, v25")
    a("v_lshl_add_u32 v24, v24, 4, v25")
    a("v_add_u32 v14, v24, v26")
    a(f"s_mul_i32 s46, s24, {KV_STG}")
    a("s_add_u32 s46, s46, 8192")
    k1_compute(a, "v", segs, page)
    a.label("K1_CF")
    srd_off(a, 20, 10, 11, WS_H, SZ_H)
    a("v_lshlrev_b32 v14, 4, v1")
    a("s_lshl_b32 s46, s24, 2")
    a("s_mul_i32 s46, s46, 54")
    a("s_sub_u32 s3, s25, 15")
    a("s_lshl_b32 s3, s3, 2")
    a("s_add_u32 s46, s46, s3")
    a("s_add_u32 s46, s46, s26")
    a("s_lshl_b32 s46, s46, 12")
    k1_compute(a, "f", segs, page)
    a.label("K1_END")
    a("s_endpgm")
    NT = (256 - K1_NW) * 512
    a.label("K1_PACK")
    a("s_load_dwordx2 s[4:5], s[0:1], 16")
    a("s_load_dwordx2 s[8:9], s[0:1], 40")
    a("s_load_dwordx2 s[6:7], s[0:1], 72")
    a(f"s_sub_u32 s3, s2, {K1_NW}")
    a("s_lshl_b32 s3, s3, 9")
    a("v_add_u32 v1, s3, v0")
    a("v_lshlrev_b32 v2, 4, v1")
    a("s_mov_b32 s30, 248552")
    a("s_mov_b32 s31, 671089")
    a("s_mov_b32 s32, 52429")
    a("s_waitcnt lgkmcnt(0)")
    srd(a, 12, 4, 5, SZ_WO)
    srd_off(a, 16, 6, 7, WS_WO, SZ_WO)
    srd(a, 20, 8, 9, SZ_W2)
    srd_off(a, 24, 6, 7, WS_W2P, SZ_W2)
    srd_off(a, 36, 6, 7, WS_CNT, 65536)
    srd_off(a, 40, 6, 7, WS_KV, SZ_KV)
    rounds = [("w2", r) for r in range((138240 + NT - 1) // NT)] + [("wo", r) for r in range((51200 + NT - 1) // NT)]
    for j, (kind, r) in enumerate(rounds):
        per = 17280 if kind == "w2" else 6400
        a(f"v_add_u32 v4, {r * NT}, v1")
        a(f"v_mul_hi_u32 v5, v4, s{30 if kind == 'w2' else 31}")
        a(f"v_mul_u32_u24 v6, {per}, v5")
        a("v_sub_u32 v4, v4, v6")
        a("v_mul_u32_u24 v6, s32, v4")
        a("v_lshrrev_b32 v6, 19, v6")
        a("v_mul_u32_u24 v7, 10, v6")
        a("v_sub_u32 v4, v4, v7")
        if kind == "w2":
            a("v_lshrrev_b32 v7, 1, v6")
            a("v_xor_b32 v7, v7, v6")
            a("v_bfe_u32 v7, v7, 2, 1")
            a("v_mul_u32_u24 v7, 12, v7")
        else:
            a("v_lshrrev_b32 v7, 1, v6")
            a("v_and_b32 v7, 4, v7")
        a("v_xor_b32 v6, v6, v7")
        a("v_mul_u32_u24 v6, 1280, v6")
        a("v_mul_u32_u24 v5, 160, v5")
        a("v_lshl_add_u32 v4, v4, 4, v5")
        a(f"v_add_u32 v{8 + (j & 3)}, v4, v6")
        a(f"buffer_load_dwordx4 {vr(24 + 4 * j, 4)}, v{8 + (j & 3)}, s[{20 if kind == 'w2' else 12}:{23 if kind == 'w2' else 15}], 0 offen")
    a("v_lshlrev_b32 v4, 8, v1")
    a("v_mov_b32 v5, 0")
    a("buffer_store_dword v5, v4, s[36:39], 0 offen")
    a("v_lshrrev_b32 v4, 4, v1")
    a(f"v_mul_u32_u24 v4, {KV_STG}, v4")
    a("v_bfe_u32 v5, v1, 1, 3")
    a("v_mul_u32_u24 v5, 1664, v5")
    a("v_and_b32 v6, 1, v1")
    a("v_lshl_add_u32 v5, v6, 4, v5")
    a(f"v_add_u32 v5, {8192 + 1536}, v5")
    a("v_add_u32 v4, v4, v5")
    a("v_cmp_eq_u32 vcc, 1, v6")
    a("v_mov_b32 v12, 0x3f803f80")
    a("v_mov_b32 v5, 0x00003f80")
    a("v_cndmask_b32 v13, v5, v12, vcc")
    a("v_cndmask_b32 v14, 0, v12, vcc")
    a("v_mov_b32 v15, v14")
    a("buffer_store_dwordx4 v[12:15], v4, s[40:43], 0 offen sc1")
    for j, (kind, r) in enumerate(rounds):
        a(f"s_waitcnt vmcnt({len(rounds) + 1})")
        a(f"s_mov_b32 s33, {r * NT * 16}")
        a(f"buffer_store_dwordx4 {vr(24 + 4 * j, 4)}, v2, s[{24 if kind == 'w2' else 16}:{27 if kind == 'w2' else 19}], s33 offen sc1")
    a("s_endpgm")
    return a.text()


GS_SLOT = 9216


class GW:
    VA = 4
    VW = 8
    RA = 13
    RW = 14
    AF = 24
    WF = 40
    ACC = 60


def gw_setup(a, sR0, sC0B, strideA, sLds):
    a("v_lshrrev_b32 v22, 4, v1")
    a("v_and_b32 v23, 15, v1")
    a(f"v_lshlrev_b32 v{GW.VA}, 4, v1")
    a(f"v_add_u32 v{GW.VA + 1}, 4096, v{GW.VA}")
    a("v_lshlrev_b32 v2, 4, v23")
    a("v_lshl_add_u32 v2, v22, 9, v2")
    a(f"v_add_u32 v{GW.RA}, s{sLds}, v2")
    a("v_lshlrev_b32 v2, 3, v22")
    a("v_lshrrev_b32 v3, 2, v23")
    a("v_add_u32 v2, v2, v3")
    a("v_mul_u32_u24 v2, 160, v2")
    a("v_and_b32 v3, 3, v23")
    a("v_lshlrev_b32 v3, 3, v3")
    a("v_add_u32 v2, 4096, v2")
    a(f"v_add3_u32 v{GW.RW}, v2, v3, s{sLds}")


def gw_pieces(slot, srdA, srdW, sKA, sKW, sLds):
    g = []
    for i in range(4):
        g.append(([f"s_add_u32 m0, s{sLds}, {slot * GS_SLOT}", "s_nop 0"] if i == 0 else []) +
                 [f"buffer_load_dwordx4 v{GW.VA}, {sr(srdA, 4)}, s{sKA} offen offset:{1024 * i} lds"])
    for i in range(4):
        g.append(([f"s_add_u32 m0, s{sLds}, {slot * GS_SLOT + 4096}", "s_nop 0"] if i == 0 else []) +
                 [f"buffer_load_dwordx4 v{GW.VA}, {sr(srdW, 4)}, s{sKW} offen offset:{1024 * i} lds"])
    g.append([f"s_add_u32 m0, s{sLds}, {slot * GS_SLOT + 8192}", "s_nop 0",
              f"buffer_load_dwordx4 v{GW.VA + 1}, {sr(srdW, 4)}, s{sKW} offen lds",
              f"s_add_u32 s{sKA}, s{sKA}, 4096", f"s_add_u32 s{sKW}, s{sKW}, 5120"])
    return g


def gw_issue(a, slot, srdA, srdW, sKA, sKW, sLds):
    for p in gw_pieces(slot, srdA, srdW, sKA, sKW, sLds):
        for x in p:
            a(x)


def gw_compute_pipe(a, slot, first, pieces):
    for t in range(4):
        a(f"ds_read_b128 {vr(GW.AF + 4 * t, 4)}, v{GW.RA} offset:{slot * GS_SLOT + (t >> 1) * 2048 + (t & 1) * 256}")
    for n in range(5):
        off = slot * GS_SLOT + n * 32
        a(f"ds_read_b64_tr_b16 {vr(GW.WF + 4 * n, 2)}, v{GW.RW} offset:{off}")
        a(f"ds_read_b64_tr_b16 {vr(GW.WF + 4 * n + 2, 2)}, v{GW.RW} offset:{off + 640}")
    a("s_waitcnt lgkmcnt(0)")
    pieces = list(pieces)
    i = 0
    for n in range(5):
        for t in range(4):
            d = GW.ACC + 4 * (n * 4 + t)
            c = "0" if first else vr(d, 4)
            a(f"v_mfma_f32_16x16x32_bf16 {vr(d, 4)}, {vr(GW.WF + 4 * n, 4)}, {vr(GW.AF + 4 * t, 4)}, {c}")
            i += 1
            if pieces and i % XP_FB == 0:
                for x in pieces.pop(0):
                    a(x)
    for p in pieces:
        for x in p:
            a(x)


def gw_compute_jit(a, slot, first):
    for t in range(4):
        a(f"ds_read_b128 {vr(GW.AF + 4 * t, 4)}, v{GW.RA} offset:{slot * GS_SLOT + (t >> 1) * 2048 + (t & 1) * 256}")
    for n in range(5):
        off = slot * GS_SLOT + n * 32
        a(f"ds_read_b64_tr_b16 {vr(GW.WF + 4 * n, 2)}, v{GW.RW} offset:{off}")
        a(f"ds_read_b64_tr_b16 {vr(GW.WF + 4 * n + 2, 2)}, v{GW.RW} offset:{off + 640}")
        a("s_waitcnt lgkmcnt(0)")
        for t in range(4):
            d = GW.ACC + 4 * (n * 4 + t)
            c = "0" if first else vr(d, 4)
            a(f"v_mfma_f32_16x16x32_bf16 {vr(d, 4)}, {vr(GW.WF + 4 * n, 4)}, {vr(GW.AF + 4 * t, 4)}, {c}")


def gw_compute(a, slot, first):
    if XP_FJ:
        return gw_compute_jit(a, slot, first)
    for t in range(4):
        a(f"ds_read_b128 {vr(GW.AF + 4 * t, 4)}, v{GW.RA} offset:{slot * GS_SLOT + (t >> 1) * 2048 + (t & 1) * 256}")
    for n in range(5):
        off = slot * GS_SLOT + n * 32
        a(f"ds_read_b64_tr_b16 {vr(GW.WF + 4 * n, 2)}, v{GW.RW} offset:{off}")
        a(f"ds_read_b64_tr_b16 {vr(GW.WF + 4 * n + 2, 2)}, v{GW.RW} offset:{off + 640}")
    a("s_waitcnt lgkmcnt(0)")
    for n in range(5):
        for t in range(4):
            d = GW.ACC + 4 * (n * 4 + t)
            c = "0" if first else vr(d, 4)
            a(f"v_mfma_f32_16x16x32_bf16 {vr(d, 4)}, {vr(GW.WF + 4 * n, 4)}, {vr(GW.AF + 4 * t, 4)}, {c}")


def gw_write_partials(a, sRed):
    a(f"v_add_u32 v2, s{sRed}, v{GW.VA}")
    for n in range(5):
        for t in range(4):
            d = GW.ACC + 4 * (n * 4 + t)
            a(f"ds_write_b128 v2, {vr(d, 4)} offset:{(n * 4 + t) * 1024}")


def gw_read_sum(a, sW4, redbase):
    a(f"s_lshl_b32 s60, s{sW4}, 10")
    a(f"s_add_u32 s60, s60, {redbase}")
    a(f"v_add_u32 v2, s60, v{GW.VA}")
    a(f"v_add_u32 v3, {2 * 20480}, v2")
    R = 24
    for src in range(4):
        for j in range(5):
            a(f"ds_read_b128 {vr(R + 20 * src + 4 * j, 4)}, v{2 + (src >> 1)} offset:{(src & 1) * 20480 + j * 4096}")
    a("s_waitcnt lgkmcnt(10)")
    for e in range(0, 20, 2):
        a(f"v_pk_add_f32 {vr(R + e, 2)}, {vr(R + e, 2)}, {vr(R + 20 + e, 2)}")
    a("s_waitcnt lgkmcnt(0)")
    for e in range(0, 20, 2):
        a(f"v_pk_add_f32 {vr(R + 40 + e, 2)}, {vr(R + 40 + e, 2)}, {vr(R + 60 + e, 2)}")
    for e in range(0, 20, 2):
        a(f"v_pk_add_f32 {vr(R + e, 2)}, {vr(R + e, 2)}, {vr(R + 40 + e, 2)}")


def tile_map(a, sRt, sCt):
    if XP_QX:
        a("s_and_b32 s60, s2, 7")
        a("s_lshr_b32 s61, s2, 3")
        a("s_lshl_b32 s62, s60, 2")
        a("s_lshr_b32 s63, s61, 3")
        a(f"s_add_u32 s{sRt}, s62, s63")
        a(f"s_and_b32 s{sCt}, s61, 7")
        return
    if XP_FUSE:
        a("s_lshr_b32 s60, s2, 5")
        a("s_lshl_b32 s60, s60, 2")
        a("s_bfe_u32 s61, s2, 0x20001")
        a(f"s_add_u32 s{sRt}, s60, s61")
        a("s_and_b32 s60, s2, 1")
        a("s_lshl_b32 s60, s60, 2")
        a("s_bfe_u32 s61, s2, 0x20003")
        a(f"s_add_u32 s{sCt}, s60, s61")
        return
    a("s_and_b32 s60, s2, 7")
    a("s_lshr_b32 s61, s2, 3")
    a("s_lshr_b32 s62, s60, 1")
    a("s_lshl_b32 s62, s62, 3")
    a("s_lshr_b32 s63, s61, 2")
    a(f"s_add_u32 s{sRt}, s62, s63")
    a("s_and_b32 s62, s60, 1")
    a("s_lshl_b32 s62, s62, 2")
    a("s_and_b32 s63, s61, 3")
    a(f"s_add_u32 s{sCt}, s62, s63")


K2_BUF = KV_STG
K2_FFN = 3 * K2_BUF
K2_B = K2_FFN + 4 * 20480
K2_FLAG = K2_B + (10240 if XP_FUSE else 0)
K2_LDS = K2_FLAG + 64
K2_W4 = K2_FFN - 20480
K2_XCH = 0
K2_OST = 24576


def gate_compute(a, XV, GV, srow, srdG):
    a("v_mov_b32 v2, 0")
    for j in range(5):
        xv = XV + j
        gv = GV + j
        a(f"v_lshlrev_b32 v3, 16, v{xv}")
        a(f"v_and_b32 v19, 0xffff0000, v{xv}")
        a(f"v_lshlrev_b32 v127, 16, v{gv}")
        a(f"v_and_b32 v128, 0xffff0000, v{gv}")
        a("v_mul_f32 v3, v3, v127")
        a("v_mul_f32 v19, v19, v128")
        a("v_cvt_pk_bf16_f32 v3, v3, v19")
        a("v_lshlrev_b32 v19, 16, v3")
        a("v_and_b32 v3, 0xffff0000, v3")
        a("v_add_f32 v2, v2, v19")
        a("v_add_f32 v2, v2, v3")
    for sh in (1, 2, 4, 8):
        a("s_nop 1")
        a(f"v_add_f32_dpp v2, v2, v2 row_shr:{sh} row_mask:0xf bank_mask:0xf")
    a("s_nop 1")
    a("v_add_f32_dpp v2, v2, v2 row_bcast:15 row_mask:0xa bank_mask:0xf")
    a("s_nop 1")
    a("v_add_f32_dpp v2, v2, v2 row_bcast:31 row_mask:0xc bank_mask:0xf")
    a("s_nop 1")
    a("v_cvt_pk_bf16_f32 v2, v2, v2")
    a("v_lshlrev_b32 v2, 16, v2")
    a(f"v_mul_f32 v2, {f32bits(-LOG2E)}, v2")
    a("v_exp_f32 v2, v2")
    a("s_nop 0")
    a("v_add_f32 v2, 1.0, v2")
    a("v_rcp_f32 v2, v2")
    a("s_nop 0")
    a("v_cvt_pk_bf16_f32 v2, v2, v2")
    a("v_lshlrev_b32 v2, 16, v2")
    a(f"s_lshl_b32 s49, s{srow}, 2")
    a("v_mov_b32 v3, 0")
    a("v_cmp_eq_u32 vcc, 63, v1")
    a("s_and_saveexec_b64 s[50:51], vcc")
    a(f"buffer_store_dword v2, v3, {sr(srdG, 4)}, s49 offen")
    a("s_mov_b64 exec, s[50:51]")


def gate_compute2(a, XA, XB, GV, srow, srdG):
    GU = 24
    a("v_mov_b32 v2, 0")
    a("v_mov_b32 v3, 0")
    a("v_mov_b32 v19, 0x3f803f80")
    for j in range(5):
        a(f"v_lshlrev_b32 v{GU + 2 * j}, 16, v{GV + j}")
        a(f"v_and_b32 v{GU + 2 * j + 1}, 0xffff0000, v{GV + j}")
    for X, acc in ((XA, 2), (XB, 3)):
        for j in range(5):
            a(f"v_lshlrev_b32 v36, 16, v{X + j}")
            a(f"v_and_b32 v37, 0xffff0000, v{X + j}")
            a(f"v_pk_mul_f32 v[36:37], v[36:37], v[{GU + 2 * j}:{GU + 2 * j + 1}]")
            a("v_cvt_pk_bf16_f32 v36, v36, v37")
            a(f"v_dot2_f32_bf16 v{acc}, v36, v19, v{acc}")
    for sh in (1, 2, 4, 8):
        a("s_nop 2" if sh == 1 else "s_nop 0")
        a(f"v_add_f32_dpp v2, v2, v2 row_shr:{sh} row_mask:0xf bank_mask:0xf")
        a(f"v_add_f32_dpp v3, v3, v3 row_shr:{sh} row_mask:0xf bank_mask:0xf")
    a("s_nop 0")
    a("v_add_f32_dpp v2, v2, v2 row_bcast:15 row_mask:0xa bank_mask:0xf")
    a("v_add_f32_dpp v3, v3, v3 row_bcast:15 row_mask:0xa bank_mask:0xf")
    a("s_nop 0")
    a("v_add_f32_dpp v2, v2, v2 row_bcast:31 row_mask:0xc bank_mask:0xf")
    a("v_add_f32_dpp v3, v3, v3 row_bcast:31 row_mask:0xc bank_mask:0xf")
    a("s_nop 1")
    a("v_cvt_pk_bf16_f32 v2, v2, v3")
    a("v_and_b32 v3, 0xffff0000, v2")
    a("v_lshlrev_b32 v2, 16, v2")
    a(f"v_mul_f32 v2, {f32bits(-LOG2E)}, v2")
    a(f"v_mul_f32 v3, {f32bits(-LOG2E)}, v3")
    a("v_exp_f32 v2, v2")
    a("v_exp_f32 v3, v3")
    a("s_nop 0")
    a("v_add_f32 v2, 1.0, v2")
    a("v_add_f32 v3, 1.0, v3")
    a("v_rcp_f32 v2, v2")
    a("v_rcp_f32 v3, v3")
    a("s_nop 0")
    a("v_cvt_pk_bf16_f32 v2, v2, v3")
    a("v_and_b32 v3, 0xffff0000, v2")
    a("v_lshlrev_b32 v2, 16, v2")
    a(f"s_lshl_b32 s49, s{srow}, 2")
    a("v_mov_b32 v19, 0")
    a("v_cmp_eq_u32 vcc, 63, v1")
    a("s_and_saveexec_b64 s[50:51], vcc")
    a(f"buffer_store_dwordx2 v[2:3], v19, {sr(srdG, 4)}, s49 offen" + (" sc1" if XP_FUSE else ""))
    a("s_mov_b64 exec, s[50:51]")


def k2_tail(a):
    a("s_load_dwordx2 s[4:5], s[0:1], 56")
    a("s_setprio 0")
    prof(a, 16)
    srd_off(a, 32, 8, 9, WS_G, SZ_G)
    a("s_lshr_b32 s40, s2, 5")
    a("s_lshl_b32 s40, s40, 13")
    srd_off(a, 24, 8, 9, WS_CNT, 65536)
    srd_off(a, 12, 8, 9, WS_WO, SZ_WO)
    a("v_mov_b32 v4, 0")
    a("s_cmp_lg_u32 s38, 0")
    a("s_cbranch_scc1 K2_T1")
    a("v_mov_b32 v2, 1")
    a("v_lshlrev_b32 v3, 8, v1")
    a("s_mov_b32 exec_hi, 0")
    a("buffer_atomic_add v2, v3, s[24:27], s40 offen")
    a("s_mov_b32 exec_hi, -1")
    a.label("K2_T1")
    a("s_lshl_b32 s40, s2, 8")
    tile_map(a, 36, 37)
    a("v_lshrrev_b32 v22, 4, v1")
    a("v_and_b32 v23, 15, v1")
    a("s_lshl_b32 s39, s36, 6")
    a("s_and_b32 s49, s38, 3")
    a("s_lshr_b32 s50, s38, 2")
    a("s_add_u32 s43, s38, 8")
    a("s_add_u32 s44, s38, 16")
    a("s_cmp_lt_u32 s38, 4")
    a("s_cselect_b32 s44, s44, s43")
    a("s_mul_i32 s55, s37, 102400")
    a(f"s_add_u32 s55, s55, {4 * 20480}")
    for sp in (38, 43, 44):
        a(f"s_lshl_b32 s52, s{sp}, 10")
        a(f"s_add_u32 m0, s52, {K2_W4}")
        a("s_add_u32 s52, s52, s55")
        a("buffer_load_dwordx4 v16, s[12:15], s52 offen lds")
    a("s_mul_i32 s41, s37, 160")
    a("s_lshl_b32 s42, s36, 2")
    a("s_add_u32 s42, s42, s49")
    a("s_mul_i32 s42, s42, 20480")
    a("s_lshl_b32 s43, s50, 11")
    a("s_add_u32 s42, s42, s43")
    a("s_lshl_b32 s43, s49, 4")
    a("v_add_u32 v2, s43, v23")
    a("v_add_u32 v3, s39, v2")
    a("v_lshlrev_b32 v5, 2, v3")
    a("v_mul_u32_u24 v2, 160, v2")
    a("v_lshl_add_u32 v2, v22, 3, v2")
    a("s_mul_i32 s43, s50, 96")
    a(f"s_add_u32 s43, s43, {K2_OST}")
    a("v_add_u32 v17, s43, v2")
    a("s_mul_i32 s43, s49, 2560")
    a("s_mul_i32 s44, s50, 1536")
    a("s_add_u32 s43, s43, s44")
    a(f"s_add_u32 s43, s43, {K2_B}")
    a("v_lshlrev_b32 v2, 3, v1")
    a("v_add_u32 v6, s43, v2")
    for j in range(2):
        a("s_mul_i32 s43, s38, 80")
        a(f"s_add_u32 s43, s43, {64 * j}")
        a("v_add_u32 v2, s43, v1")
        a("v_mul_u32_u24 v3, 6554, v2")
        a("v_lshrrev_b32 v3, 16, v3")
        a("v_mul_u32_u24 v15, 10, v3")
        a("v_sub_u32 v15, v2, v15")
        a("v_lshlrev_b32 v15, 4, v15")
        a("v_add_u32 v3, s39, v3")
        a("v_mul_u32_u24 v3, 1280, v3")
        a(f"v_add3_u32 v{12 + j}, v3, v15, s41")
        a("v_lshlrev_b32 v2, 4, v2")
        a(f"v_add_u32 v{8 + j}, {K2_OST}, v2")
    RW = 28
    a("s_mul_i32 s43, s50, 10240")
    a(f"s_add_u32 s43, s43, {K2_W4}")
    wread_addr(a, RW, RW + 1, 43)
    a(f"v_add_u32 v{RW + 2}, {3 * 20480}, v{RW}")
    a(f"v_add_u32 v{RW + 3}, {3 * 20480}, v{RW + 1}")
    a("s_mul_i32 s43, s49, 5120")
    a(f"s_add_u32 s43, s43, {K2_XCH}")
    a("v_add_u32 v21, s43, v16")
    AF = 32
    WF = (72, 92)
    ACC = 112
    BV = 132

    def reads(t):
        st, i = t >> 1, t & 1
        pos = (st + 1) % 5
        hi = 1 if pos >= 3 else 0
        so = (pos - 3 * hi) * 20480
        r = []
        for n in range(5):
            off = so + i * 5120 + n * 32
            r.append(f"ds_read_b64_tr_b16 {vr(WF[i] + 4 * n, 2)}, v{RW + 2 * hi} offset:{off}")
            r.append(f"ds_read_b64_tr_b16 {vr(WF[i] + 4 * n + 2, 2)}, v{RW + 2 * hi + 1} offset:{off}")
        return r

    def mf(t):
        for n in range(5):
            d = ACC + 4 * n
            c = "0" if t == 0 else vr(d, 4)
            a(f"v_mfma_f32_16x16x32_bf16 {vr(d, 4)}, {vr(WF[t & 1] + 4 * n, 4)}, {vr(AF + 4 * t, 4)}, {c}")

    a("s_waitcnt lgkmcnt(0)")
    srd(a, 16, 4, 5, SZ_OUT)
    for r in reads(0) + reads(1):
        a(r)
    for n in range(3):
        a(f"ds_read_b64 {vr(BV + 2 * n, 2)}, v6 offset:{512 * n}")
    a("s_cmp_lg_u32 s38, 0")
    a("s_cbranch_scc1 K2_T3")
    a("s_mov_b32 s43, 0")
    a.label("K2_T2")
    a("buffer_load_dword v2, v4, s[24:27], s40 offen sc1")
    a("s_add_u32 s43, s43, 1")
    a("s_waitcnt vmcnt(0)")
    a("v_readfirstlane_b32 s44, v2")
    a("s_cmp_ge_u32 s44, 32")
    a("s_cbranch_scc1 K2_T3")
    a("s_sleep 2")
    a("s_cmp_lt_u32 s43, 0x100000")
    a("s_cbranch_scc1 K2_T2")
    a.label("K2_T3")
    a("s_waitcnt vmcnt(0)")
    a("s_barrier")
    prof(a, 17)
    for t in range(10):
        st, i = t >> 1, t & 1
        if i == 0 and st:
            a("s_add_u32 s42, s42, 4096")
        a(f"buffer_load_dwordx4 {vr(AF + 4 * t, 4)}, v16, s[20:23], s42 offen offset:{1024 * i} sc1")
    a("buffer_load_dword v18, v5, s[32:35], 0 offen sc1")
    for t in range(10):
        a(f"s_waitcnt vmcnt({10 - t}) lgkmcnt({10 if 1 <= t < 9 else 0})")
        mf(t)
        if t + 2 < 10:
            for r in reads(t + 2):
                a(r)
    prof(a, 18)
    a("s_waitcnt vmcnt(0)")
    a("v_sub_f32 v19, 1.0, v18")
    a("v_cvt_pk_bf16_f32 v19, v19, v19")
    a("v_lshlrev_b32 v19, 16, v19")
    a("s_nop 7")
    XR = 72
    a("s_cmp_eq_u32 s50, 0")
    a("s_cbranch_scc0 K2_X1")
    for n in (3, 4):
        a(f"ds_write_b128 v21, {vr(ACC + 4 * n, 4)} offset:{1024 * n}")
    a("s_waitcnt lgkmcnt(0)")
    a("s_barrier")
    for n in range(3):
        a(f"ds_read_b128 {vr(XR + 4 * n, 4)}, v21 offset:{1024 * n}")
    a("s_branch K2_FIN")
    a.label("K2_X1")
    for n in range(3):
        a(f"ds_write_b128 v21, {vr(ACC + 4 * n, 4)} offset:{1024 * n}")
    a("s_waitcnt lgkmcnt(0)")
    a("s_barrier")
    for n in (3, 4):
        a(f"ds_read_b128 {vr(XR + 4 * (n - 3), 4)}, v21 offset:{1024 * n}")
    for i in range(8):
        a(f"v_mov_b32 v{ACC + i}, v{ACC + 12 + i}")
    a.label("K2_FIN")
    a("s_waitcnt lgkmcnt(0)")
    for n in range(3):
        if n == 2:
            a("s_cmp_eq_u32 s50, 0")
            a("s_cbranch_scc0 K2_CP")
        for i in range(4):
            a(f"v_add_f32 v{ACC + 4 * n + i}, v{ACC + 4 * n + i}, v{XR + 4 * n + i}")
        for h in range(2):
            e = ACC + 4 * n + 2 * h
            bp = BV + 2 * n + h
            a(f"v_cvt_pk_bf16_f32 v24, v{e}, v{e + 1}")
            a("v_lshlrev_b32 v4, 16, v24")
            a("v_and_b32 v5, 0xffff0000, v24")
            a(f"v_lshlrev_b32 v6, 16, v{bp}")
            a(f"v_and_b32 v7, 0xffff0000, v{bp}")
            a("v_mul_f32 v4, v18, v4")
            a("v_mul_f32 v5, v18, v5")
            a("v_mul_f32 v6, v19, v6")
            a("v_mul_f32 v7, v19, v7")
            a("v_cvt_pk_bf16_f32 v24, v4, v5")
            a("v_cvt_pk_bf16_f32 v20, v6, v7")
            a("v_lshlrev_b32 v4, 16, v24")
            a("v_and_b32 v5, 0xffff0000, v24")
            a("v_lshlrev_b32 v6, 16, v20")
            a("v_and_b32 v7, 0xffff0000, v20")
            a("v_add_f32 v4, v4, v6")
            a("v_add_f32 v5, v5, v7")
            a(f"v_cvt_pk_bf16_f32 v{bp}, v4, v5")
        a(f"ds_write_b64 v17, {vr(BV + 2 * n, 2)} offset:{32 * n}")
    a.label("K2_CP")
    a("s_waitcnt lgkmcnt(0)")
    a("s_barrier")
    a("ds_read_b128 v[32:35], v8")
    a("ds_read_b128 v[36:39], v9")
    a("s_waitcnt lgkmcnt(1)")
    a("buffer_store_dwordx4 v[32:35], v12, s[16:19], 0 offen")
    a("v_cmp_gt_u32 vcc, 16, v1")
    a("s_and_saveexec_b64 s[50:51], vcc")
    a("s_waitcnt lgkmcnt(0)")
    a("buffer_store_dwordx4 v[36:39], v13, s[16:19], 0 offen")
    a("s_mov_b64 exec, s[50:51]")


XP_UNR = _env("XP_UNR", 1)
XP_WP = _env("XP_WP", 5)
XP_ORD = _env("XP_ORD", 1)
XP_AP = _env("XP_AP", 2)
XP_MID = _env("XP_MID", 2)


class VmQ:
    def __init__(self, a):
        self.a = a
        self.q = []

    def op(self, txt, tag):
        self.a(txt)
        self.q.append(tag)

    def wait(self, tag):
        idx = [i for i, t in enumerate(self.q) if t == tag]
        if not idx:
            return
        n = len(self.q) - 1 - idx[-1]
        self.a(f"s_waitcnt vmcnt({min(n, 63)})")
        if n <= 63:
            self.q = self.q[idx[-1] + 1:]


def k2():
    a = Asm()
    a.label("k2_kernel")
    if PROF:
        a("s_memtime s[86:87]")
    a("s_cmp_ge_u32 s2, 256")
    a("s_cbranch_scc1 K2_END")
    a("s_load_dwordx2 s[8:9], s[0:1], 72")
    a("s_load_dwordx2 s[4:5], s[0:1], 0")
    a("s_load_dwordx2 s[6:7], s[0:1], 48")
    a("s_and_b32 s3, s2, 7")
    a("s_lshl_b32 s3, s3, 2")
    a("s_lshr_b32 s36, s2, 3")
    a("s_and_b32 s36, s36, 3")
    a("s_add_u32 s36, s3, s36")
    a("s_lshr_b32 s37, s2, 5")
    a("v_and_b32 v1, 63, v0")
    a("v_lshrrev_b32 v2, 6, v0")
    a("v_lshlrev_b32 v16, 4, v1")
    a("v_readfirstlane_b32 s38, v2")
    a("s_cmp_ge_u32 s38, 4")
    a("s_cbranch_scc1 K2_FFN")
    QA0, QA1, QB0, QB1 = 20, 24, 26, 30
    K0 = 32
    K1 = (36, 38)
    V1, V2 = (40, 128), (44, 132)
    PA, PB = 48, 56
    SA, SB = 64, 80
    OA, OB = 96, 112
    a(f"s_setprio {XP_AP}")
    a("v_and_b32 v17, 31, v1")
    a("v_lshrrev_b32 v18, 5, v1")
    a("s_lshl_b32 s47, s37, 3")
    a("s_lshl_b32 s48, s38, 1")
    a("s_add_u32 s47, s47, s48")
    a("s_mul_i32 s47, s47, 1280")
    a(f"s_mul_i32 s48, s36, {HEAD_Q}")
    a("s_add_u32 s48, s48, s47")
    a("v_lshlrev_b32 v2, 3, v17")
    a("v_lshl_add_u32 v3, v18, 8, v2")
    a("s_waitcnt lgkmcnt(0)")
    srd_off(a, 16, 8, 9, WS_Q, SZ_Q)
    for q0, q1, o in ((QA0, QA1, 0), (QB0, QB1, 1280)):
        a(f"buffer_load_dwordx2 {vr(q0, 2)}, v3, s[16:19], s48 offen offset:{o}")
        a(f"buffer_load_dwordx2 {vr(q0 + 2, 2)}, v3, s[16:19], s48 offen offset:{o + 512}")
        a(f"buffer_load_dwordx2 {vr(q1, 2)}, v2, s[16:19], s48 offen offset:{o + 1024}")
    srd_off(a, 20, 8, 9, WS_O, SZ_O)
    prof_init(a, 8, 9, 38, 1)
    prof(a, 0)
    a("v_mov_b32 v2, 0")
    a(f"v_mov_b32 v3, {K2_FLAG}")
    a("ds_write_b32 v3, v2")
    a("v_lshlrev_b32 v2, 3, v17")
    a("v_lshl_add_u32 v12, v18, 8, v2")
    a(f"v_add_u32 v2, {8192 + 1280}, v2")
    a(f"v_mov_b32 v3, {8192 + 1536}")
    a("v_cmp_eq_u32 vcc, 0, v18")
    a("v_mul_u32_u24 v19, 320, v18")
    a("v_cndmask_b32 v13, v3, v2, vcc")
    a("v_lshl_add_u32 v2, v17, 4, v19")
    a("v_cmp_gt_u32 vcc, 20, v17")
    a("v_add_u32 v14, 8192, v2")
    a(f"v_add_u32 v15, {8192 + 640}, v2")
    a(f"v_mov_b32 v3, {8192 + 1552}")
    a("v_cndmask_b32 v14, v3, v14, vcc")
    a("v_cndmask_b32 v15, v3, v15, vcc")
    a("s_mov_b32 s39, 0")

    def zero_m():
        a("v_cmp_eq_u32 vcc, 0, v18")
        a("s_nop 1")
        for q in (QA1, QA1 + 1, QB1, QB1 + 1):
            a(f"v_cndmask_b32 v{q}, 0, v{q}, vcc")

    def rk0(blk):
        st, i = (blk >> 3) % 3, blk & 7
        o = st * (K2_BUF // 512) + 2 * i
        return f"ds_read2st64_b64 {vr(K0, 4)}, v12 offset0:{o} offset1:{o + 1}"

    def rk1(blk):
        return f"ds_read_b64 {vr(K1[blk & 1], 2)}, v13 offset:{((blk >> 3) % 3) * K2_BUF + (blk & 7) * 1664}"

    def rv1(blk):
        return f"ds_read_b128 {vr(V1[blk & 1], 4)}, v14 offset:{((blk >> 3) % 3) * K2_BUF + (blk & 7) * 1664}"

    def rv2(blk):
        return f"ds_read_b128 {vr(V2[blk & 1], 4)}, v15 offset:{((blk >> 3) % 3) * K2_BUF + (blk & 7) * 1664}"

    def qk1(s_, q):
        return f"v_mfma_f32_32x32x16_bf16 {vr(s_, 16)}, {vr(K0, 4)}, {vr(q, 4)}, 0"

    def qk2(s_, q, blk=0):
        return f"v_mfma_f32_32x32x8bf16_1k {vr(s_, 16)}, {vr(K1[blk & 1], 2)}, {vr(q, 2)}, {vr(s_, 16)}"

    def pv(o, v_, p):
        return f"v_mfma_f32_32x32x16_bf16 {vr(o, 16)}, {vr(v_, 4)}, {vr(p, 4)}, {vr(o, 16)}"

    def set_m2(mA, mB):
        T = (2, 3, 19), (4, 5, 6)
        for m, (t0, t1, t2) in zip((mA, mB), T):
            a(f"v_mov_b32 v{t1}, v{m}")
        a("s_nop 1")
        for m, (t0, t1, t2) in zip((mA, mB), T):
            a(f"v_permlane32_swap_b32 v{m}, v{t1}")
        a("s_nop 1")
        for m, (t0, t1, t2) in zip((mA, mB), T):
            a(f"v_max_f32 v{m}, v{m}, v{t1}")
        for m, (t0, t1, t2) in zip((mA, mB), T):
            a(f"v_and_b32 v{t1}, 0xffff0000, v{m}")
            a(f"v_sub_f32 v{t0}, v{m}, v{t1}")
            a(f"v_and_b32 v{t2}, 0xffff0000, v{t0}")
            a(f"v_sub_f32 v{t0}, v{t0}, v{t2}")
            a(f"v_lshrrev_b32 v{t1}, 16, v{t1}")
            a(f"v_or_b32 v{t1}, v{t1}, v{t2}")
            a(f"v_xor_b32 v{t1}, 0x80008000, v{t1}")
            a(f"v_lshrrev_b32 v{t0}, 16, v{t0}")
            a(f"v_xor_b32 v{t0}, 0x8000, v{t0}")
        a("v_cmp_eq_u32 vcc, 0, v18")
        a("s_nop 1")
        for q, (t0, t1, t2) in zip((QA1, QB1), T):
            a(f"v_cndmask_b32 v{q}, v{t1}, v{q}, vcc")
            a(f"v_cndmask_b32 v{q + 1}, v{t0}, v{q + 1}, vcc")

    a("s_waitcnt vmcnt(0)")
    zero_m()
    a.label("K2_MAIN")
    prof(a, 1)
    for i in range(32):
        a(f"v_mov_b32 v{OA + i}, 0")
    for i in range(4):
        a(f"v_mov_b32 v{PA + 4 + i}, 0")
        a(f"v_mov_b32 v{PB + 4 + i}, 0")
        a(f"v_mov_b32 v{V2[1] + i}, 0")
    a("s_waitcnt lgkmcnt(0)")
    a("s_barrier")
    a(rk0(0))
    a(rk1(0))
    a(rv1(0))
    a("s_waitcnt lgkmcnt(1)")
    a(qk1(SA, QA0))
    a("s_cmp_lg_u32 s39, 0")
    a("s_cbranch_scc1 K2_PRIME")
    a(qk1(SB, QB0))
    a(qk2(SA, QA1))
    a(qk2(SB, QB1))
    a("s_nop 11")
    for s_, m in ((SA, 8), (SB, 9)):
        if s_ == SB:
            a("s_nop 3")
        a(f"v_max3_f32 v{m}, v{s_}, v{s_ + 1}, v{s_ + 2}")
        for i in range(3, 15, 2):
            a(f"v_max3_f32 v{m}, v{m}, v{s_ + i}, v{s_ + i + 1}")
        a(f"v_max_f32 v{m}, v{m}, v{s_ + 15}")
    set_m2(8, 9)
    for i in range(16):
        a(f"v_sub_f32 v{SA + i}, v{SA + i}, v8")
    a("s_branch K2_PRIM2")
    a.label("K2_PRIME")
    a(qk2(SA, QA1))
    a("s_nop 15")
    a("s_nop 3")
    a.label("K2_PRIM2")
    for i in range(4):
        a(f"v_mov_b32 v{SB + 12 + i}, 0")
    a("s_waitcnt lgkmcnt(0)")
    prof(a, 2)

    def ex(s_, lo):
        return [f"v_exp_f32 v{s_ + i}, v{s_ + i}" for i in range(lo, lo + 4)]

    def cv(p, s_, lo):
        return [f"v_cvt_pk_bf16_f32 v{p + i}, v{s_ + 2 * i}, v{s_ + 2 * i + 1}" for i in range(lo, lo + 2)]

    for blk in range(64):
        t = blk & 7
        last = blk == 63
        if t == 0 and blk:
            if PROF:
                prof(a, 2 + (blk >> 3))
            a("s_barrier")
        if blk == XP_MID:
            a("s_barrier")
        v2p, v1c = V2[(blk - 1) & 1], V1[blk & 1]
        mf = [pv(OA, v2p, PA + 4), qk1(SB, QB0), qk2(SB, QB1, blk), pv(OA, v1c, PA),
              pv(OB, v2p, PB + 4), qk1(SA, QA0), qk2(SA, QA1, blk + 1), pv(OB, v1c, PB)]
        rd = {0: [rv2(blk), rk1(blk + 1)], 1: [rk0(blk + 1), rv1(blk + 1)]}
        wt = {5: "s_waitcnt lgkmcnt(0)"}
        if last:
            rd = {0: [rv2(blk)]}
            mf[5] = mf[6] = None
        for g in range(8):
            s_ = SA if g < 4 else SB
            ps, pp = (SA, PA) if 1 <= g <= 4 else (SB, PB)
            e = ex(s_, 4 * (g % 4))
            c = cv(pp, ps, 2 * ((g - 1) % 4))
            if XP_ORD == 0:
                fill = c + e
            elif XP_ORD == 1:
                fill = [e[0], c[0], e[1], c[1], e[2], e[3]]
            else:
                fill = e[:3] + c + e[3:]
            if mf[g]:
                a(mf[g])
            for x in rd.get(g, []):
                a(x)
            for j, f in enumerate(fill):
                if j == XP_WP and (g + 1) % 8 in wt:
                    a(wt[(g + 1) % 8])
                a(f)
    prof(a, 10)
    a(pv(OA, V2[1], PA + 4))
    for x in cv(PB, SB, 6):
        a(x)
    a("s_nop 1")
    a(pv(OB, V2[1], PB + 4))
    a("s_lshl_b32 s47, s37, 8")
    a("s_lshl_b32 s48, s38, 6")
    a("s_add_u32 s47, s47, s48")
    a("v_add_u32 v2, s47, v17")
    a("v_lshrrev_b32 v3, 4, v2")
    a("v_mul_u32_u24 v3, 20480, v3")
    a("v_and_b32 v2, 15, v2")
    a("v_lshl_add_u32 v2, v2, 4, v3")
    a("s_mul_i32 s48, s36, 20")
    a("v_lshl_add_u32 v3, v18, 2, s48")
    a("v_lshrrev_b32 v19, 3, v3")
    a("v_lshl_add_u32 v2, v19, 8, v2")
    a("v_and_b32 v3, 4, v3")
    a("v_lshl_add_u32 v10, v3, 1, v2")
    a("v_add_u32 v11, 40960, v10")
    a("v_cmp_eq_u32 vcc, 0, v18")
    a("s_mov_b64 s[52:53], vcc")
    a("s_nop 4")
    for o, p, ad in ((OA, PA, 10), (OB, PB, 11)):
        a(f"v_mov_b32 v2, v{o + 8}")
        a(f"v_mov_b32 v3, v{o + 8}")
        a("s_nop 1")
        a("v_permlane32_swap_b32 v2, v3")
        a("s_nop 1")
        a("v_rcp_f32 v3, v3")
        a(f"v_mul_f32 v{4 + (o == OB)}, 0x49800000, v{o + 8}")
        a(f"v_mul_f32 v{4 + (o == OB)}, 0, v{4 + (o == OB)}")
        for i in range(12):
            a(f"v_mul_f32 v{o + i}, v{o + i}, v3")
        for i in range(6):
            a(f"v_cvt_pk_bf16_f32 v{p + i}, v{o + 2 * i}, v{o + 2 * i + 1}")
        a(f"buffer_store_dwordx2 {vr(p, 2)}, v{ad}, s[20:23], 0 offen sc1")
        a(f"buffer_store_dwordx2 {vr(p + 2, 2)}, v{ad}, s[20:23], 0 offen offset:256 sc1")
        a("s_mov_b64 exec, s[52:53]")
        a(f"buffer_store_dwordx2 {vr(p + 4, 2)}, v{ad}, s[20:23], 0 offen offset:512 sc1")
        a("s_mov_b64 exec, -1")
    a("s_cmp_lg_u32 s39, 0")
    a("s_cbranch_scc1 K2_VOTE")
    for o, acc in ((OA, 4), (OB, 5)):
        for i in range(12):
            a(f"v_fma_f32 v{acc}, v{o + i}, 0, v{acc}")
    a("v_add_f32 v4, v4, v5")
    a("v_cmp_u_f32 vcc, v4, v4")
    a("s_nop 4")
    a("s_cbranch_vccz K2_VOTE")
    a("v_mov_b32 v2, 1")
    a(f"v_mov_b32 v3, {K2_FLAG}")
    a("ds_write_b32 v3, v2")
    a.label("K2_VOTE")
    a("s_waitcnt vmcnt(0) lgkmcnt(0)")
    a("s_barrier")
    a("s_cmp_lg_u32 s39, 0")
    a("s_cbranch_scc1 K2_TAIL")
    a(f"v_mov_b32 v3, {K2_FLAG}")
    a("ds_read_b32 v2, v3")
    a("s_waitcnt lgkmcnt(0)")
    a("v_readfirstlane_b32 s47, v2")
    a("s_cmp_eq_u32 s47, 0")
    a("s_cbranch_scc1 K2_TAIL")
    zero_m()
    a(f"v_mov_b32 v8, {f32bits(float('-inf'))}")
    a("v_mov_b32 v9, v8")
    a("v_mov_b32 v4, v12")
    a("v_mov_b32 v5, v13")
    a("s_mov_b32 s40, 0")
    a.label("K2_MSTAGE")
    a("s_barrier")
    for t in range(8):
        a(rk0(t).replace("v12", "v4"))
        a(rk1(t).replace("v13", "v5"))
        a("s_waitcnt lgkmcnt(0)")
        a(qk1(SA, QA0))
        a(qk1(SB, QB0))
        a(qk2(SA, QA1, t))
        a(qk2(SB, QB1, t))
        a("s_nop 15")
        a("s_nop 3")
        for s_, m in ((SA, 8), (SB, 9)):
            for i in range(0, 16, 2):
                a(f"v_max3_f32 v{m}, v{m}, v{s_ + i}, v{s_ + i + 1}")
    a("s_add_u32 s40, s40, 1")
    a(f"s_mov_b32 s47, {K2_BUF}")
    a("s_cmp_eq_u32 s40, 3")
    a(f"s_cselect_b32 s47, {-2 * K2_BUF}, s47")
    a("s_cmp_eq_u32 s40, 6")
    a(f"s_cselect_b32 s47, {-2 * K2_BUF}, s47")
    a("v_add_u32 v4, s47, v4")
    a("v_add_u32 v5, s47, v5")
    a("s_cmp_lt_u32 s40, 8")
    a("s_cbranch_scc1 K2_MSTAGE")
    set_m2(8, 9)
    a("s_mov_b32 s39, 1")
    a("s_barrier")
    a("s_branch K2_MAIN")
    a.label("K2_TAIL")
    k2_tail(a)
    prof(a, 12)
    a.label("K2_END")
    a("s_endpgm")
    a.label("K2_FFN")
    vq = VmQ(a)
    a("s_sub_u32 s38, s38, 4")
    a("s_mul_i32 s58, s38, 5376")
    a(f"s_mul_i32 s59, s36, {HEAD_KV}")
    a("s_add_u32 s59, s59, s58")
    a("s_mov_b32 s44, s59")
    a("v_add_u32 v17, 4096, v16")
    a("s_lshl_b32 s48, s37, 8")
    a("s_lshl_b32 s49, s36, 3")
    a("s_add_u32 s48, s48, s49")
    a("s_lshl_b32 s49, s38, 1")
    a("s_add_u32 s48, s48, s49")
    a("s_mul_i32 s49, s48, 1280")
    a("v_mul_u32_u24 v2, 20, v1")
    a("s_waitcnt lgkmcnt(0)")
    srd_off(a, 12, 8, 9, WS_KV, SZ_KV)

    def kv_issue(buf, tag, sbuf=None):
        if sbuf is None:
            a(f"s_add_u32 m0, s58, {buf * K2_BUF}")
        else:
            a(f"s_add_u32 m0, s58, s{sbuf}")
        a("s_nop 0")
        for j in range(4):
            vq.op(f"buffer_load_dwordx4 v16, s[12:15], s44 offen offset:{1024 * j} lds", tag)
        a("s_add_u32 m0, m0, 4096")
        a("s_nop 0")
        vq.op("buffer_load_dwordx4 v17, s[12:15], s44 offen lds", tag)
        a("s_mov_b64 exec, 0xffff")
        vq.op("buffer_load_dwordx4 v17, s[12:15], s44 offen offset:1024 lds", tag)
        a("s_mov_b64 exec, -1")
        a(f"s_add_u32 s44, s44, {KV_STG}")

    def fst(slot):
        if PROF:
            a("s_memtime s[88:89]")
            a("s_waitcnt lgkmcnt(0)")
            a(f"v_mov_b32 v{200 + slot}, s88")
    if PROF:
        a("v_mov_b32 v200, s86")
    kv_issue(0, "kv0")
    srd(a, 64, 4, 5, SZ_X)
    srd(a, 68, 6, 7, 1280)
    vq.op("buffer_load_dwordx4 v[116:119], v2, s[64:67], s49 offen", "g")
    vq.op("buffer_load_dword v120, v2, s[64:67], s49 offen offset:16", "g")
    vq.op("buffer_load_dwordx4 v[122:125], v2, s[68:71], 0 offen", "g")
    vq.op("buffer_load_dword v126, v2, s[68:71], 0 offen offset:16", "g")
    vq.op("buffer_load_dwordx4 v[132:135], v2, s[64:67], s49 offen offset:1280", "g")
    vq.op("buffer_load_dword v136, v2, s[64:67], s49 offen offset:1296", "g")
    kv_issue(1, "kv1")
    srd_off(a, 32, 8, 9, WS_G, SZ_G)
    tile_map(a, 36, 37)
    a("s_lshl_b32 s39, s36, 6")
    a("s_mul_i32 s40, s37, 160")
    a("s_mul_i32 s41, s38, 20480")
    a(f"s_add_u32 s41, s41, {K2_FFN}")
    a("s_mul_i32 s42, s38, 14")
    a("s_cmp_eq_u32 s38, 3")
    a("s_cselect_b32 s42, 41, s42")
    a("s_mul_i32 s45, s36, 54")
    a("s_add_u32 s45, s45, s42")
    a("s_lshl_b32 s45, s45, 12")
    a("s_mul_i32 s46, s42, 5120")
    a("s_mul_i32 s47, s37, 276480")
    a("s_add_u32 s46, s46, s47")
    srd_off(a, 16, 8, 9, WS_W2P, SZ_W2)
    srd_off(a, 24, 8, 9, WS_H, SZ_H)
    gw_setup(a, 39, 40, 3456, 41)

    class TA:
        def __init__(self, tag):
            self.tag = tag

        def __call__(self, x):
            if x.startswith("buffer_"):
                vq.op(x, self.tag)
            else:
                a(x)

    j = 0
    for k in range(8):
        vq.wait("kv0" if k == 0 else f"kv{k + 1}")
        fst(1 + k)
        a("s_barrier")
        if k == 0:
            gw_issue(TA("f0"), 0, 24, 16, 45, 46, 41)
            vq.wait("g")
            gate_compute2(TA("gs"), 116, 132, 122, 48, 32)
            vq.wait("kv1")
            fst(10)
            a("s_barrier")
            gw_issue(TA("f1"), 1, 24, 16, 45, 46, 41)
        if k + 2 < 8:
            kv_issue((k + 2) % 3, f"kv{k + 2}")
        if k < len(XP_FS):
            for _ in range(XP_FS[k]):
                vq.wait(f"f{j}")
                if j == 13:
                    a("s_cmp_ge_u32 s38, 2")
                    a("s_cbranch_scc1 K2_FSKIP")
                gw_compute_pipe(TA(f"f{j + 2}"), j & 1, j == 0, gw_pieces(j & 1, 24, 16, 45, 46, 41) if j + 2 < 14 else [])
                j += 1
            if j == 14:
                a.label("K2_FSKIP")
                a("s_nop 7")
                a("s_nop 3")
                gw_write_partials(a, 41)
                a("s_waitcnt lgkmcnt(0)")
        elif k == len(XP_FS):
            if XP_FE:
                a(f"s_setprio {XP_FE}")
            gw_read_sum(a, 38, K2_FFN)
            for e in range(0, 20, 2):
                a(f"v_cvt_pk_bf16_f32 v{112 + e // 2}, v{24 + e}, v{25 + e}")
            a("s_mul_i32 s42, s38, 2560")
            a(f"s_add_u32 s42, s42, {K2_B}")
            a("v_lshlrev_b32 v2, 3, v1")
            a("v_add_u32 v2, s42, v2")
            for n in range(5):
                a(f"ds_write_b64 v2, {vr(112 + 2 * n, 2)} offset:{512 * n}")
            a("s_setprio 0")
            a("s_waitcnt lgkmcnt(0)")
        elif k == len(XP_FS) + 1:
            srd_off(a, 52, 8, 9, WS_WO, SZ_WO)
            a("s_mul_i32 s56, s37, 102400")
            a("s_mul_i32 s57, s38, 20480")
            a("s_add_u32 s56, s56, s57")
            for jj in range(5):
                a(f"s_add_u32 m0, s41, {4096 * jj}")
                a("s_nop 0")
                for i in range(4):
                    vq.op(f"buffer_load_dwordx4 v{GW.VA}, s[52:55], s56 offen offset:{1024 * i} lds", "wo")
                a("s_add_u32 s56, s56, 4096")
    assert j == 14 and len(XP_FS) <= 6
    srd_off(a, 20, 8, 9, WS_O, SZ_O)
    a("s_add_u32 s38, s38, 4")
    if PROF:
        fst(9)
        prof_init(a, 8, 9, 38, 1)
        a("v_mov_b32 v2, 0")
        for q in range(3):
            a(f"buffer_store_dwordx4 {vr(200 + 4 * q, 4)}, v2, s[92:95], s91 offen offset:{16 * q}")
    a("s_waitcnt vmcnt(0)")
    a("s_barrier")
    a(f"v_mov_b32 v3, {K2_FLAG}")
    a("ds_read_b32 v2, v3")
    a("s_waitcnt lgkmcnt(0)")
    a("v_readfirstlane_b32 s47, v2")
    a("s_cmp_eq_u32 s47, 0")
    a("s_cbranch_scc1 K2_TAIL")
    a("s_mov_b32 s39, 0")
    a.label("K2_SPASS")
    a("s_mov_b32 s44, s59")
    kv_issue(0, "x")
    kv_issue(1, "x")
    a("s_mov_b32 s40, 0")
    a(f"s_mov_b32 s43, {2 * K2_BUF}")
    a.label("K2_SSTAGE")
    a("s_waitcnt vmcnt(0)")
    a("s_barrier")
    a("s_cmp_ge_u32 s40, 6")
    a("s_cbranch_scc1 K2_SNO")
    kv_issue(0, "x", sbuf=43)
    a(f"s_add_u32 s43, s43, {K2_BUF}")
    a(f"s_cmp_eq_u32 s43, {3 * K2_BUF}")
    a("s_cselect_b32 s43, 0, s43")
    a.label("K2_SNO")
    a("s_sub_u32 s47, s39, 1")
    a("s_or_b32 s47, s47, s40")
    a("s_cmp_lg_u32 s47, 0")
    a("s_cbranch_scc1 K2_SNM")
    a("s_barrier")
    a.label("K2_SNM")
    a("s_add_u32 s40, s40, 1")
    a("s_cmp_lt_u32 s40, 8")
    a("s_cbranch_scc1 K2_SSTAGE")
    a("s_barrier")
    a("s_add_u32 s39, s39, 1")
    a("s_cmp_lt_u32 s39, 2")
    a("s_cbranch_scc1 K2_SPASS")
    a("s_branch K2_TAIL")
    return a.text()


def wmap(a, dst, sC0B):
    a("v_mul_u32_u24 v3, 6554, v2")
    a("v_lshrrev_b32 v3, 16, v3")
    a("v_mul_u32_u24 v15, 10, v3")
    a("v_sub_u32 v2, v2, v15")
    a("v_lshrrev_b32 v15, 1, v3")
    a("v_and_b32 v15, 4, v15")
    a("v_xor_b32 v3, v3, v15")
    a("v_lshlrev_b32 v2, 4, v2")
    a("v_mul_u32_u24 v3, 1280, v3")
    a(f"v_add3_u32 v{dst}, v2, v3, s{sC0B}")


def wread_addr(a, d0, d1, sBase):
    a("v_lshlrev_b32 v2, 3, v22")
    a("v_lshrrev_b32 v3, 2, v23")
    a("v_add_u32 v2, v2, v3")
    a("v_mul_u32_u24 v2, 160, v2")
    a("v_and_b32 v3, 3, v23")
    a("v_lshlrev_b32 v3, 3, v3")
    a(f"v_add3_u32 v2, v2, v3, s{sBase}")
    a("v_and_b32 v3, 1, v22")
    a("v_mul_u32_u24 v3, 640, v3")
    a(f"v_add_u32 v{d0}, v2, v3")
    a("v_sub_u32 v2, v2, v3")
    a(f"v_add_u32 v{d1}, 640, v2")


K3_STG = 36864
K3_B = 4 * K3_STG
K3_LDS = K3_B + 10240


def k3():
    a = Asm()
    a.label("k3_kernel")
    if PROF:
        a("s_memtime s[86:87]")
    a("s_cmp_ge_u32 s2, 256")
    a("s_cbranch_scc1 K3_END")
    a("s_load_dwordx2 s[4:5], s[0:1], 16")
    a("s_load_dwordx2 s[8:9], s[0:1], 72")
    a("s_load_dwordx2 s[10:11], s[0:1], 56")
    tile_map(a, 36, 37)
    a("v_and_b32 v1, 63, v0")
    a("v_lshrrev_b32 v2, 6, v0")
    a("v_lshrrev_b32 v22, 4, v1")
    a("v_readfirstlane_b32 s38, v2")
    a("v_and_b32 v23, 15, v1")
    a("s_lshl_b32 s39, s36, 6")
    a("s_mul_i32 s40, s37, 160")
    a("s_and_b32 s49, s38, 3")
    a("s_lshr_b32 s50, s38, 2")
    a("s_lshl_b32 s42, s38, 3")
    for j in range(2):
        a(f"s_add_u32 s43, s42, {4 * j}")
        a("v_add_u32 v2, s43, v22")
        a("v_and_b32 v3, 15, v2")
        a("v_xor_b32 v3, v3, v23")
        a("v_add_u32 v2, s39, v2")
        a("v_mul_u32_u24 v2, 1280, v2")
        a(f"v_lshl_add_u32 v{4 + j}, v3, 4, v2")
    a("s_add_u32 s43, s38, 8")
    a("s_add_u32 s44, s38, 16")
    a("s_cmp_lt_u32 s38, 4")
    a("s_cselect_b32 s44, s44, s43")
    a("v_lshlrev_b32 v2, 4, v1")
    a("s_mul_i32 s55, s37, 102400")
    for j, sp in enumerate((38, 43, 44)):
        a(f"s_lshl_b32 s{52 + j}, s{sp}, 10")
        a(f"s_add_u32 s51, s{52 + j}, s55")
        a(f"v_add_u32 v{8 + j}, s51, v2")
        a(f"s_add_u32 s{52 + j}, s{52 + j}, 16384")
    a("s_lshl_b32 s45, s38, 11")
    a("s_waitcnt lgkmcnt(0)")
    srd_off(a, 12, 8, 9, WS_WO, SZ_WO)
    srd_off(a, 20, 8, 9, WS_O, SZ_O)
    srd_off(a, 24, 8, 9, WS_B, SZ_B)
    srd_off(a, 28, 8, 9, WS_G, SZ_G)
    srd(a, 32, 10, 11, SZ_OUT)
    prof_init(a, 8, 9, 38, 2)
    prof(a, 0)

    def issue(stage, slot):
        a(f"s_mov_b32 s47, {stage * 256}")
        a(f"s_mov_b32 s48, {stage * 20480}")
        for j in range(2):
            a(f"s_add_u32 m0, s45, {slot * K3_STG + j * 1024}")
            a("s_nop 0")
            a(f"buffer_load_dwordx4 v{4 + j}, s[20:23], s47 offen lds")
        for j in range(3):
            a(f"s_add_u32 m0, s{52 + j}, {slot * K3_STG}")
            a("s_nop 0")
            a(f"buffer_load_dwordx4 v{8 + j}, s[12:15], s48 offen lds")

    for st in range(4):
        issue(st, st)
    a("s_lshl_b32 s42, s36, 3")
    a("s_add_u32 s42, s42, s37")
    a("s_lshl_b32 s42, s42, 2")
    a("s_add_u32 s42, s42, s49")
    a("s_mul_i32 s42, s42, 2560")
    a("s_mul_i32 s43, s50, 1536")
    a("s_add_u32 s42, s42, s43")
    a("v_lshlrev_b32 v2, 3, v1")
    for n in range(3):
        a(f"buffer_load_dwordx2 {vr(104 + 2 * n, 2)}, v2, s[24:27], s42 offen offset:{512 * n}")
    a("s_lshl_b32 s42, s49, 4")
    a("v_add_u32 v2, s42, v23")
    a("v_add_u32 v3, s39, v2")
    a("v_lshlrev_b32 v3, 2, v3")
    a("buffer_load_dword v16, v3, s[28:31], 0 offen")
    a("v_mul_u32_u24 v2, 160, v2")
    a("v_lshl_add_u32 v2, v22, 3, v2")
    a("s_mul_i32 s43, s50, 96")
    a(f"s_add_u32 s43, s43, {K3_B}")
    a("v_add_u32 v17, s43, v2")
    for j in range(2):
        a("s_mul_i32 s43, s38, 80")
        a(f"s_add_u32 s43, s43, {64 * j}")
        a("v_add_u32 v2, s43, v1")
        a("v_mul_u32_u24 v3, 6554, v2")
        a("v_lshrrev_b32 v3, 16, v3")
        a("v_mul_u32_u24 v15, 10, v3")
        a("v_sub_u32 v15, v2, v15")
        a("v_lshlrev_b32 v15, 4, v15")
        a("v_add_u32 v3, s39, v3")
        a("v_mul_u32_u24 v3, 1280, v3")
        a(f"v_add3_u32 v{12 + j}, v3, v15, s40")
        a("v_lshlrev_b32 v2, 4, v2")
        a(f"v_add_u32 v{32 + j}, {K3_B}, v2")
    BV = 104
    RA, RW = 24, 28
    a("s_lshl_b32 s43, s49, 12")
    a("v_lshlrev_b32 v2, 8, v23")
    a("v_add_u32 v2, s43, v2")
    a("s_lshl_b32 s43, s50, 3")
    for i in range(2):
        a(f"s_add_u32 s44, s43, {4 * i}")
        a("v_add_u32 v3, s44, v22")
        a("v_xor_b32 v3, v3, v23")
        a(f"v_lshl_add_u32 v{RA + i}, v3, 4, v2")
        a(f"v_add_u32 v{RA + 2 + i}, {2 * K3_STG}, v{RA + i}")
    a("s_mul_i32 s43, s50, 10240")
    a("s_add_u32 s43, s43, 16384")
    wread_addr(a, RW, RW + 1, 43)
    a(f"v_add_u32 v{RW + 2}, {2 * K3_STG}, v{RW}")
    a(f"v_add_u32 v{RW + 3}, {2 * K3_STG}, v{RW + 1}")
    a("v_lshlrev_b32 v21, 4, v1")
    a("s_mul_i32 s43, s49, 5120")
    a(f"s_add_u32 s43, s43, {K3_STG}")
    a("v_add_u32 v21, s43, v21")
    AF = (36, 40)
    WF = (44, 64)
    ACC = 84

    def reads(t):
        st, i = t >> 1, t & 1
        slot = st % 4
        hi = slot >> 1
        so = (slot & 1) * K3_STG
        r = [f"ds_read_b128 {vr(AF[i], 4)}, v{RA + 2 * hi + i} offset:{so}"]
        for n in range(5):
            off = so + i * 5120 + n * 32
            r.append(f"ds_read_b64_tr_b16 {vr(WF[i] + 4 * n, 2)}, v{RW + 2 * hi} offset:{off}")
            r.append(f"ds_read_b64_tr_b16 {vr(WF[i] + 4 * n + 2, 2)}, v{RW + 2 * hi + 1} offset:{off}")
        return r

    def mf(t):
        for n in range(5):
            d = ACC + 4 * n
            c = "0" if t == 0 else vr(d, 4)
            a(f"v_mfma_f32_16x16x32_bf16 {vr(d, 4)}, {vr(WF[t & 1] + 4 * n, 4)}, {vr(AF[t & 1], 4)}, {c}")

    a("s_waitcnt vmcnt(19)")
    a("s_barrier")
    prof(a, 1)
    for r in reads(0) + reads(1):
        a(r)
    a("s_waitcnt vmcnt(4) lgkmcnt(0)")
    a("s_barrier")
    prof(a, 2)
    issue(4, 0)
    mf(0)
    for r in reads(2):
        a(r)
    mf(1)
    for t in range(2, 10):
        if t == 7:
            a("s_waitcnt vmcnt(0)")
            a("s_barrier")
            prof(a, 3)
        if t < 9:
            for r in reads(t + 1):
                a(r)
            a("s_waitcnt lgkmcnt(11)")
        else:
            a("s_waitcnt lgkmcnt(0)")
        mf(t)
    a("v_sub_f32 v18, 1.0, v16")
    a("v_cvt_pk_bf16_f32 v18, v18, v18")
    a("v_lshlrev_b32 v18, 16, v18")
    a("s_nop 7")
    prof(a, 6)
    XR = 44
    a("s_cmp_eq_u32 s50, 0")
    a("s_cbranch_scc0 K3_X1")
    for n in (3, 4):
        a(f"ds_write_b128 v21, {vr(ACC + 4 * n, 4)} offset:{1024 * n}")
    a("s_waitcnt lgkmcnt(0)")
    a("s_barrier")
    for n in range(3):
        a(f"ds_read_b128 {vr(XR + 4 * n, 4)}, v21 offset:{1024 * n}")
    a("s_branch K3_FIN")
    a.label("K3_X1")
    for n in range(3):
        a(f"ds_write_b128 v21, {vr(ACC + 4 * n, 4)} offset:{1024 * n}")
    a("s_waitcnt lgkmcnt(0)")
    a("s_barrier")
    for n in (3, 4):
        a(f"ds_read_b128 {vr(XR + 4 * (n - 3), 4)}, v21 offset:{1024 * n}")
    for i in range(8):
        a(f"v_mov_b32 v{ACC + i}, v{ACC + 12 + i}")
    a.label("K3_FIN")
    a("s_waitcnt lgkmcnt(0)")
    for n in range(3):
        if n == 2:
            a("s_cmp_eq_u32 s50, 0")
            a("s_cbranch_scc0 K3_CP")
        for i in range(4):
            a(f"v_add_f32 v{ACC + 4 * n + i}, v{ACC + 4 * n + i}, v{XR + 4 * n + i}")
        for h in range(2):
            e = ACC + 4 * n + 2 * h
            bp = BV + 2 * n + h
            a(f"v_cvt_pk_bf16_f32 v19, v{e}, v{e + 1}")
            a("v_lshlrev_b32 v4, 16, v19")
            a("v_and_b32 v5, 0xffff0000, v19")
            a(f"v_lshlrev_b32 v6, 16, v{bp}")
            a(f"v_and_b32 v7, 0xffff0000, v{bp}")
            a("v_mul_f32 v4, v16, v4")
            a("v_mul_f32 v5, v16, v5")
            a("v_mul_f32 v6, v18, v6")
            a("v_mul_f32 v7, v18, v7")
            a("v_cvt_pk_bf16_f32 v19, v4, v5")
            a("v_cvt_pk_bf16_f32 v20, v6, v7")
            a("v_lshlrev_b32 v4, 16, v19")
            a("v_and_b32 v5, 0xffff0000, v19")
            a("v_lshlrev_b32 v6, 16, v20")
            a("v_and_b32 v7, 0xffff0000, v20")
            a("v_add_f32 v4, v4, v6")
            a("v_add_f32 v5, v5, v7")
            a(f"v_cvt_pk_bf16_f32 v{bp}, v4, v5")
        a(f"ds_write_b64 v17, {vr(BV + 2 * n, 2)} offset:{32 * n}")
    a.label("K3_CP")
    a("s_waitcnt lgkmcnt(0)")
    a("s_barrier")
    a("ds_read_b128 v[4:7], v32")
    a("ds_read_b128 v[8:11], v33")
    a("s_waitcnt lgkmcnt(1)")
    a("buffer_store_dwordx4 v[4:7], v12, s[32:35], 0 offen")
    a("v_cmp_gt_u32 vcc, 16, v1")
    a("s_and_saveexec_b64 s[50:51], vcc")
    a("s_waitcnt lgkmcnt(0)")
    a("buffer_store_dwordx4 v[8:11], v13, s[32:35], 0 offen")
    a("s_mov_b64 exec, s[50:51]")
    a.label("K3_PEND")
    prof(a, 12)
    a.label("K3_END")
    a("s_endpgm")
    return a.text()


def desc(name, vgpr, sgpr=96):
    acc = (vgpr + 3) // 4 * 4
    return f""".amdhsa_kernel {name}
  .amdhsa_next_free_vgpr {vgpr}
  .amdhsa_next_free_sgpr {sgpr}
  .amdhsa_accum_offset {acc}
  .amdhsa_group_segment_fixed_size 0
  .amdhsa_kernarg_size 80
  .amdhsa_user_sgpr_count 2
  .amdhsa_user_sgpr_kernarg_segment_ptr 1
  .amdhsa_system_sgpr_workgroup_id_x 1
.end_amdhsa_kernel
"""


def main():
    l3 = "" if XP_FUSE else f"; @launch kernel=k3_kernel grid=(256,1,1) block=(512,1,1) lds={K3_LDS}\n"
    hdr = f"""; gated_mix__mha_block__dense_activation_relu__prompt : kernel list (generated by gen.py, hand-designed)
; @launch kernel=k1_kernel grid=(256,1,1) block=(512,1,1) lds={K1_LDS}
; @launch kernel=k2_kernel grid=(256,1,1) block=(512,1,1) lds={K2_LDS}
{l3}.amdgcn_target "amdgcn-amd-amdhsa--gfx950"
.text
"""
    body = ""
    for name, fn in (("k1_kernel", k1), ("k2_kernel", k2), ("k3_kernel", k3))[:2 if XP_FUSE else 3]:
        body += f".globl {name}\n.p2align 8\n.type {name},@function\n" + fn()
    tail = '.section .rodata,"a"\n.p2align 6\n'
    tail += desc("k1_kernel", 256)
    tail += ".p2align 6\n" + desc("k2_kernel", 256)
    if not XP_FUSE:
        tail += ".p2align 6\n" + desc("k3_kernel", 116)
    open(OUT, "w").write(hdr + body + tail)


if __name__ == "__main__":
    main()
```

```python
import struct, sys

OUT = sys.argv[1] if len(sys.argv) > 1 else "gated_mix__mha_block__dense_activation_relu__prompt.s"

WS_Q = 0
HEAD_Q = 64 * 1280
SZ_Q = 32 * HEAD_Q
WS_KV = 0x400000
KV_STG = 21504
HEAD_KV = 8 * KV_STG
SZ_KV = 32 * HEAD_KV
WS_H = 0xC00000
SZ_H = 2048 * 3456
WS_O = 0x1400000
SZ_O = 2048 * 1280
WS_G = 0x1800000
SZ_G = 2048 * 4
WS_B = 0x1A00000
SZ_B = 2048 * 1280
WS_WO = 0x1E00000
WS_W2P = 0x2400000
WS_CNT = 0x2800000

SZ_X = 2048 * 1280
SZ_WQKV = 640 * 3840
SZ_WO = 640 * 1280
SZ_W1 = 640 * 3456
SZ_W2 = 1728 * 1280
SZ_OUT = 2048 * 1280


def f32bits(x):
    return struct.unpack("<I", struct.pack("<f", x))[0]


C_SCALE = 1.4426950408889634 / (20 ** 0.5)
LOG2E = 1.4426950408889634


PROF = int(__import__("os").environ.get("PROF", "0"))
WS_T = 0x2000000
XP_PF = int(__import__("os").environ.get("XP_PF", "0"))
XP_ROT = int(__import__("os").environ.get("XP_ROT", "1"))
XP_PRIO = int(__import__("os").environ.get("XP_PRIO", "0"))
XP_RPM = int(__import__("os").environ.get("XP_RPM", "1"))
XP_DSL = eval(__import__("os").environ.get("XP_DSL", "(7, 10, 13)"))
XP_FDEL = int(__import__("os").environ.get("XP_FDEL", "1"))
XP_FS = eval(__import__("os").environ.get("XP_FS", "(1, 3, 3, 3, 2, 2)"))
XP_QX = int(__import__("os").environ.get("XP_QX", "0"))
XP_PF2 = int(__import__("os").environ.get("XP_PF2", "0"))
XP_NOLDS = int(__import__("os").environ.get("XP_NOLDS", "0"))
XP_NOFFN = int(__import__("os").environ.get("XP_NOFFN", "0"))
XP_K8 = int(__import__("os").environ.get("XP_K8", "1"))
XP_PR = eval(__import__("os").environ.get("XP_PR", "(3, 3, 3, 2, 2, 2, 1, 1)"))
XP_FP = int(__import__("os").environ.get("XP_FP", "0"))
XP_FE = int(__import__("os").environ.get("XP_FE", "3"))
XP_FPIPE = int(__import__("os").environ.get("XP_FPIPE", "1"))
XP_FB = int(__import__("os").environ.get("XP_FB", "2"))
XP_FUSE = int(__import__("os").environ.get("XP_FUSE", "1"))
XP_ES = int(__import__("os").environ.get("XP_ES", "1"))
XP_FJ = int(__import__("os").environ.get("XP_FJ", "1"))
XP_GF = int(__import__("os").environ.get("XP_GF", "1"))
XP_NODMA = int(__import__("os").environ.get("XP_NODMA", "0"))
XP_NOBAR = int(__import__("os").environ.get("XP_NOBAR", "0"))


def prof_init(a, wsl, wsh, wave_s, kidx=0):
    if not PROF:
        return
    a(f"s_add_u32 s92, s{wsl}, {WS_T + kidx * 0x100000}")
    a(f"s_addc_u32 s93, s{wsh}, 0")
    a("s_and_b32 s93, s93, 0xffff")
    a("s_mov_b32 s94, 0x100000")
    a("s_mov_b32 s95, 0x00020000")
    a("s_lshl_b32 s91, s2, 4")
    a(f"s_add_u32 s91, s91, s{wave_s}")
    a("s_lshl_b32 s91, s91, 7")


def prof(a, slot, tmpv=2):
    if not PROF:
        return
    a("s_memtime s[88:89]")
    a("s_waitcnt lgkmcnt(0)")
    a(f"v_mov_b32 v{tmpv}, s88")
    a(f"v_mov_b32 v{tmpv + 1}, 0")
    a(f"buffer_store_dword v{tmpv}, v{tmpv + 1}, s[92:95], s91 offen offset:{4 * slot}")
    if slot == 0:
        a(f"v_mov_b32 v{tmpv}, s86")
        a(f"buffer_store_dword v{tmpv}, v{tmpv + 1}, s[92:95], s91 offen offset:60")
    if slot in (0, 12):
        a("s_memrealtime s[88:89]")
        a("s_waitcnt lgkmcnt(0)")
        a(f"v_mov_b32 v{tmpv}, s88")
        a(f"buffer_store_dword v{tmpv}, v{tmpv + 1}, s[92:95], s91 offen offset:{4 * (13 if slot == 0 else 14)}")


class Asm:
    def __init__(self):
        self.lines = []

    def __call__(self, s):
        self.lines.append("    " + s)

    def label(self, l):
        self.lines.append(l + ":")

    def c(self, s):
        self.lines.append("    ; " + s)

    def text(self):
        return "\n".join(self.lines) + "\n"


def vr(b, n=1):
    return f"v{b}" if n == 1 else f"v[{b}:{b + n - 1}]"


def sr(b, n=1):
    return f"s{b}" if n == 1 else f"s[{b}:{b + n - 1}]"


def srd(a, d, lo, hi, size):
    a(f"s_mov_b32 s{d}, s{lo}")
    a(f"s_and_b32 s{d + 1}, s{hi}, 0xffff")
    a(f"s_mov_b32 s{d + 2}, {size}")
    a(f"s_mov_b32 s{d + 3}, 0x00020000")


def srd_off(a, d, lo, hi, off, size):
    a(f"s_add_u32 s{d}, s{lo}, {off}")
    a(f"s_addc_u32 s{d + 1}, s{hi}, 0")
    a(f"s_and_b32 s{d + 1}, s{d + 1}, 0xffff")
    a(f"s_mov_b32 s{d + 2}, {size}")
    a(f"s_mov_b32 s{d + 3}, 0x00020000")


def _env(n, d):
    return int(__import__("os").environ.get(n, str(d)))


XP_N1 = _env("XP_N1", 3)
XP_KEEP = _env("XP_KEEP", 3)
XP_FILL = _env("XP_FILL", 2)
XP_R1 = _env("XP_R1", 1)
XP_MAXQ = _env("XP_MAXQ", 13)
XP_T1 = _env("XP_T1", 1)
XP_TB = _env("XP_TB", 3)
K1_P = 32
K1_LDS = K1_P * 4096
K1_NW = 232


def k1_plan(n):
    segs = []
    for s in range(10):
        items = []
        mf = []
        for q in range(4):
            items.append(("W", s, q))
            if q < n:
                items.append(("X", q, s))
            for b in range(n):
                mf.append(dict(b=b, ks=4 * s + q, x=("X", b, s), sub=q, w=("W", s, q) if b == 0 else None))
        segs.append(dict(items=items, mf=mf, lag=1))
    for b in range(n, 8):
        for h in range(2):
            items = [("X", b, w) for w in range(5 * h, 5 * h + 5)]
            mf = [dict(b=b, ks=4 * w + q, x=("X", b, w), sub=q, w=None)
                  for w in range(5 * h, 5 * h + 5) for q in range(4)]
            segs.append(dict(items=items, mf=mf, lag=2))
    page = {}
    order = []
    for j, sg in enumerate(segs):
        for it in sg["items"]:
            page[it] = len(order) % K1_P
            order.append((it, j))
        for m in sg["mf"]:
            m["seg"] = j
    return segs, page, order


K1_INC = (0, 1, 22, 23)


def k1_compute(a, mode, segs, page):
    WR, ACC, XR, R = 96, 48, 24, 6
    XB, WB, IA = 4, 12, 14
    NS = 3
    mfs = [m for sg in segs for m in sg["mf"]]
    NM = len(mfs)
    last = {}
    first = {}
    for i, m in enumerate(mfs):
        last[m["b"]] = i
        first.setdefault(m["b"], i)
    st = dict(n=0, done=-1, bar=-1)

    def lds(txt):
        a(txt)
        st["n"] += 1
        return st["n"] - 1

    def wait(i):
        if i > st["done"]:
            c = min(15, st["n"] - 1 - i)
            a(f"s_waitcnt lgkmcnt({c})")
            st["done"] = st["n"] - 1 - c

    def barrier(full):
        if full:
            wait(st["n"] - 1)
        a("s_barrier")
        st["bar"] += 1
        if XP_T1 == 1 and st["bar"] == XP_TB:
            a("buffer_load_dword v19, v18, s[12:15], s33 offen")
        if st["bar"] in (0, 3, 6, 9):
            prof(a, 1 + st["bar"] // 3)
        elif st["bar"] >= 10 and st["bar"] % 2 == 0 and 5 + (st["bar"] - 10) // 2 <= 11:
            prof(a, 5 + (st["bar"] - 10) // 2)

    def epi(b):
        A = ACC + 16 * (b % NS)
        ops = []
        if mode in ("f", "v"):
            for jj in range(2):
                for i in range(4):
                    ops.append(f"v_cvt_pk_bf16_f32 v{A + 4 * jj + i}, v{A + 8 * jj + 2 * i}, v{A + 8 * jj + 2 * i + 1}")
                if mode == "f":
                    for i in range(4):
                        ops.append(f"v_pk_max_i16 v{A + 4 * jj + i}, v{A + 4 * jj + i}, 0")
                ops.append(f"buffer_store_dwordx4 {vr(A + 4 * jj, 4)}, v{IA}, s[20:23], s46 offen offset:{(1024 if mode == 'f' else 640) * jj} sc1")
            if mode == "f":
                ops.append(f"s_add_u32 s46, s46, {2048 if b % 2 == 0 else 54 * 4096 - 2048}")
            else:
                ops.append("s_add_u32 s46, s46, 1664")
        else:
            for j in range(4):
                for i in range(4):
                    ops.append(f"v_mul_f32 v{A + 4 * j + i}, s48, v{A + 4 * j + i}")
                for i in range(2):
                    ops.append(f"v_cvt_pk_bf16_f32 v{A + 2 * j + i}, v{A + 4 * j + 2 * i}, v{A + 4 * j + 2 * i + 1}")
                ops.append(f"buffer_store_dwordx2 {vr(A + 2 * j, 2)}, v{IA + j}, s[20:23], 0 offen sc1")
                if b < 7:
                    ops.append(f"v_add_u32 v{IA + j}, v{K1_INC[j]}, v{IA + j}")
        return [(b, o) for o in ops]

    fq = []

    def emit_fill(force_b=None, limit=None):
        k = 0
        while fq and (limit is None or k < limit):
            b, txt = fq[0]
            if force_b is not None and b > force_b:
                break
            fq.pop(0)
            a(txt)
            k += 1

    rd = 0
    xid = {}
    avail = []
    for m in range(NM):
        while rd < NM and rd < m + R:
            r = mfs[rd]
            if r["seg"] > st["bar"]:
                lag1 = r["seg"] > 0 and segs[r["seg"] - 1]["lag"] == 1
                if lag1 and rd - m > XP_KEEP:
                    break
                barrier(lag1)
            if r["w"] is not None:
                pg = page[r["w"]]
                off = (pg & 15) * 4096
                d = WR + 4 * r["ks"]
                lds(f"ds_read_b64_tr_b16 {vr(d, 2)}, v{WB + (pg >> 4)} offset:{off}")
                lds(f"ds_read_b64_tr_b16 {vr(d + 2, 2)}, v{WB + (pg >> 4)} offset:{off + 1024}")
            pg = page[r["x"]]
            xid[rd] = lds(f"ds_read_b128 {vr(XR + 4 * (rd % R), 4)}, v{XB + 4 * (pg >> 4) + r['sub']} offset:{(pg & 15) * 4096}")
            rd += 1
        r = mfs[m]
        b = r["b"]
        A = ACC + 16 * (b % NS)
        if m == first[b] and b >= NS:
            for (mi, bb) in list(avail):
                if bb <= b - NS:
                    assert m - 1 >= mi, "hazard"
                    fq.extend(epi(bb))
                    avail.remove((mi, bb))
            emit_fill(force_b=b - NS)
        wait(xid[m])
        c = "0" if m == first[b] else vr(A, 16)
        wf, xf = vr(WR + 4 * r["ks"], 4), vr(XR + 4 * (m % R), 4)
        if mode == "v":
            a(f"v_mfma_f32_32x32x16_bf16 {vr(A, 16)}, {xf}, {wf}, {c}")
        else:
            a(f"v_mfma_f32_32x32x16_bf16 {vr(A, 16)}, {wf}, {xf}, {c}")
        if m == last[b]:
            avail.append((m + 2, b))
        for (mi, bb) in list(avail):
            if m >= mi:
                fq.extend(epi(bb))
                avail.remove((mi, bb))
        emit_fill(limit=XP_FILL)
    emit_fill(force_b=7)
    a("s_nop 15")
    a("s_nop 3")
    for (mi, bb) in avail:
        fq.extend(epi(bb))
    emit_fill(force_b=7)
    assert not fq
    prof(a, 12)
    a("s_endpgm")
    return st["bar"] + 1


XP_GB = _env("XP_GB", 17)
XP_GP = _env("XP_GP", 0)
XP_HR = _env("XP_HR", 0)
K1_HP = XP_HR * K1_NW * 256


def pack_addr(a, kind, base, vI, t, dst, sm):
    per = 17280 if kind == "w2" else 6400
    a(f"v_add_u32 v{t}, {base}, v{vI}")
    a(f"v_mul_hi_u32 v{t + 1}, v{t}, s{sm if kind == 'w2' else sm + 1}")
    a(f"v_mul_u32_u24 v{t + 2}, {per}, v{t + 1}")
    a(f"v_sub_u32 v{t}, v{t}, v{t + 2}")
    a(f"v_mul_u32_u24 v{t + 2}, s{sm + 2}, v{t}")
    a(f"v_lshrrev_b32 v{t + 2}, 19, v{t + 2}")
    a(f"v_mul_u32_u24 v{t + 3}, 10, v{t + 2}")
    a(f"v_sub_u32 v{t}, v{t}, v{t + 3}")
    if kind == "w2":
        a(f"v_lshrrev_b32 v{t + 3}, 1, v{t + 2}")
        a(f"v_xor_b32 v{t + 3}, v{t + 3}, v{t + 2}")
        a(f"v_bfe_u32 v{t + 3}, v{t + 3}, 2, 1")
        a(f"v_mul_u32_u24 v{t + 3}, 12, v{t + 3}")
    else:
        a(f"v_lshrrev_b32 v{t + 3}, 1, v{t + 2}")
        a(f"v_and_b32 v{t + 3}, 4, v{t + 3}")
    a(f"v_xor_b32 v{t + 2}, v{t + 2}, v{t + 3}")
    a(f"v_mul_u32_u24 v{t + 2}, 1280, v{t + 2}")
    a(f"v_mul_u32_u24 v{t + 1}, 160, v{t + 1}")
    a(f"v_lshl_add_u32 v{t}, v{t}, 4, v{t + 1}")
    a(f"v_add_u32 v{dst}, v{t}, v{t + 2}")


def k1_helper(a, segs, page, order):
    VW, VX = 4, 8
    st = dict(n=0, nxt=0)
    opid = {}

    def issue(bar):
        while st["nxt"] < len(order):
            i = st["nxt"]
            if i - sum(len(sg["items"]) for sg in segs[:bar + 1]) >= XP_MAXQ:
                break
            if i >= K1_P:
                pj = order[i - K1_P][1]
                if pj + segs[pj]["lag"] > bar:
                    break
            it, _ = order[i]
            a(f"s_add_u32 m0, s47, {page[it] * 4096}")
            a("s_nop 0")
            if it[0] == "W":
                a(f"buffer_load_dwordx4 v{VW + it[2]}, s[16:19], s{60 + it[1]} offen lds")
            else:
                a(f"buffer_load_dwordx4 v{VX + it[1]}, s[12:15], s{70 + it[2]} offen lds")
            opid[it] = st["n"]
            st["n"] += 1
            st["nxt"] += 1
            if XP_T1 == 2 and st["nxt"] == XP_TB:
                a("buffer_load_dword v19, v18, s[12:15], s33 offen")
                st["n"] += 1
            if st["nxt"] == len(order):
                for r in range(XP_HR):
                    a(f"s_mov_b32 s3, {r * K1_NW * 4096}")
                    a(f"buffer_store_dwordx4 {vr(120 + 4 * r, 4)}, v21, s[80:83], s3 offen sc1")
                st["n"] += XP_HR

    def hst(slot):
        if PROF:
            a("s_memtime s[88:89]")
            a("s_waitcnt lgkmcnt(0)")
            a(f"v_mov_b32 v{40 + slot}, s88")
    if PROF:
        a("v_mov_b32 v40, s86")
    hst(1)
    issue(-1)
    hst(2)
    srd(a, 56, 44, 45, 1280)
    srd_off(a, 52, 10, 11, WS_G, SZ_G)
    a("v_cmp_eq_u32 vcc, 63, v1")
    a("s_mov_b64 s[50:51], vcc")
    a("v_lshlrev_b32 v20, 3, v1")
    a("v_lshlrev_b32 v22, 2, v1")
    a("s_lshl_b32 s48, s24, 5")
    a("s_add_u32 s48, s48, s25")
    a("s_lshl_b32 s48, s48, 2")
    a("s_add_u32 s48, s48, s26")
    a("s_mul_i32 s49, s48, 2560")
    a("s_lshl_b32 s48, s48, 3")
    srd(a, 36, 40, 41, SZ_W2)
    srd_off(a, 80, 10, 11, WS_W2P, SZ_W2)
    a("s_mov_b32 s40, 248552")
    a("s_mov_b32 s42, 52429")
    a("s_lshl_b32 s3, s2, 8")
    a("v_and_b32 v21, 255, v0")
    a("v_add_u32 v21, s3, v21")
    for r in range(XP_HR):
        pack_addr(a, "w2", r * K1_NW * 256, 21, 24, 28 + r, 40)
    a("v_lshlrev_b32 v21, 4, v21")
    hst(3)
    gl = []
    gate_unpack(gl.append, 96, 180, 190)
    gate_compute2(gl.append, 104, 110, 180, 190, 48, 52)
    for j in range(len(segs)):
        need = max(opid[it] for it in segs[j]["items"])
        a(f"s_waitcnt vmcnt({min(63, st['n'] - 1 - need)})")
        hst(4 + j)
        a("s_barrier")
        if j == XP_TB:
            for r in range(XP_HR):
                a(f"buffer_load_dwordx4 {vr(120 + 4 * r, 4)}, v{28 + r}, s[36:39], 0 offen")
            st["n"] += XP_HR
        issue(j)
        if j == XP_GB:
            gate_loads(a, 20, 22, 56, 12, 49)
            st["n"] += 9
            gid = st["n"] - 1
        if XP_GB >= 17 and j == len(segs) - 1:
            a("s_waitcnt vmcnt(0)")
            need = gid + 1
        if j >= XP_GB + 3 or j == len(segs) - 1:
            assert need > gid
            np_ = len(segs) - j
            k = (len(gl) + np_ - 1) // np_
            while k < len(gl) and not gl[k].startswith("v_"):
                k += 1
            if k >= len(gl) - 4:
                k = len(gl)
            a(f"s_setprio {XP_GP}")
            for x in gl[:k]:
                a(x)
                if x.startswith("buffer_"):
                    st["n"] += 1
            a("s_setprio 0")
            gl = gl[k:]
    assert st["nxt"] == len(order)
    assert not gl
    hst(24)
    if PROF:
        a("s_add_u32 s26, s26, 4")
        prof_init(a, 10, 11, 26, 0)
        a("v_mov_b32 v2, 0")
        for q in range(7):
            a(f"buffer_store_dwordx4 {vr(40 + 4 * q, 4)}, v2, s[92:95], s91 offen offset:{16 * q}")
    a("s_endpgm")


def k1_touch_addr(a):
    nl = (8 - XP_N1) * 40
    assert nl <= 256
    a("s_and_b32 s3, s25, 7")
    a(f"s_mul_i32 s3, s3, {nl * 128}")
    a(f"s_add_u32 s33, s30, {32 * XP_N1}")
    a("s_mul_i32 s33, s33, 1280")
    a("s_add_u32 s33, s3, s33")
    a("v_and_b32 v2, 255, v0")
    a(f"v_cmp_gt_u32 vcc, {nl}, v2")
    a("v_lshlrev_b32 v2, 7, v2")
    a("v_bfrev_b32 v18, 1")
    a("v_cndmask_b32 v18, v18, v2, vcc")


def k1():
    a = Asm()
    segs, page, order = k1_plan(XP_N1)
    a.label("k1_kernel")
    if PROF:
        a("s_memtime s[86:87]")
    a("s_cmp_ge_u32 s2, 256")
    a("s_cbranch_scc1 K1_END")
    a(f"s_cmp_ge_u32 s2, {K1_NW}")
    a("s_cbranch_scc1 K1_PACK")
    a("s_load_dwordx2 s[4:5], s[0:1], 0")
    a("s_load_dwordx2 s[6:7], s[0:1], 8")
    a("s_load_dwordx2 s[8:9], s[0:1], 32")
    a("s_load_dwordx2 s[10:11], s[0:1], 72")
    a("s_load_dwordx2 s[44:45], s[0:1], 48")
    a("s_load_dwordx2 s[40:41], s[0:1], 40")
    a("s_and_b32 s3, s2, 7")
    a("s_lshr_b32 s27, s2, 3")
    a("s_lshr_b32 s28, s3, 1")
    a("s_mul_i32 s28, s28, 29")
    a("s_add_u32 s28, s28, s27")
    a("s_lshr_b32 s25, s28, 2")
    a("s_and_b32 s28, s28, 3")
    a("s_and_b32 s3, s3, 1")
    a("s_lshl_b32 s3, s3, 2")
    a("s_add_u32 s24, s3, s28")
    a("v_and_b32 v1, 63, v0")
    a("v_lshrrev_b32 v2, 6, v0")
    a("s_lshl_b32 s30, s24, 8")
    a("v_readfirstlane_b32 s26, v2")
    a("s_cmp_lt_u32 s26, 4")
    a("s_cbranch_scc1 K1_COMP")
    a("s_sub_u32 s26, s26, 4")
    a("s_lshl_b32 s47, s26, 10")
    a("s_sub_u32 s3, s25, 15")
    a("s_movk_i32 s28, 3456")
    a("s_cmp_lt_u32 s25, 15")
    a("s_cselect_b32 s28, 3840, s28")
    a("s_cselect_b32 s31, s25, s3")
    a("s_lshl_b32 s31, s31, 8")
    a("s_cmp_eq_u32 s25, 28")
    a("s_cselect_b32 s29, 8, 16")
    a("v_lshrrev_b32 v2, 4, v1")
    a("v_and_b32 v3, 15, v1")
    a("v_lshlrev_b32 v16, 2, v2")
    a("v_xor_b32 v3, v3, v16")
    a("v_cmp_gt_u32 vcc, s29, v3")
    a("s_lshl_b32 s3, s26, 2")
    a("v_add_u32 v16, s3, v2")
    a("v_mul_lo_u32 v16, v16, s28")
    a("v_lshl_add_u32 v16, v3, 4, v16")
    a("v_add_u32 v16, s31, v16")
    a("v_bfrev_b32 v17, 1")
    a("v_cndmask_b32 v4, v17, v16, vcc")
    a("s_lshl_b32 s27, s28, 4")
    for q in range(1, 4):
        a(f"v_add_u32 v{4 + q}, s27, v{3 + q}")
    a("v_add_u32 v2, s3, v2")
    a("v_and_b32 v2, 7, v2")
    a("v_and_b32 v3, 7, v1")
    a("v_xor_b32 v3, v3, v2")
    a("v_lshrrev_b32 v2, 3, v1")
    a("s_lshl_b32 s3, s26, 3")
    a("s_add_u32 s3, s3, s30")
    a("v_add_u32 v2, s3, v2")
    a("v_mul_u32_u24 v2, 1280, v2")
    a("v_lshl_add_u32 v8, v3, 4, v2")
    for b in range(1, 8):
        a(f"v_add_u32 v{8 + b}, 40960, v{7 + b}")
    if XP_R1 == 2:
        a("s_and_b32 s3, s24, 3")
        a("s_mul_i32 s3, s3, 5")
        a("s_lshr_b32 s3, s3, 1")
        a("s_mul_i32 s27, s25, 3")
        a("s_add_u32 s3, s3, s27")
    else:
        a("s_add_u32 s3, s24, s25")
        a(f"s_mul_i32 s3, s3, {XP_R1}")
    a("s_mul_i32 s27, s3, 205")
    a("s_lshr_b32 s27, s27, 11")
    a("s_mul_i32 s27, s27, 10")
    a("s_sub_u32 s3, s3, s27")
    a("s_lshl_b32 s27, s28, 6")
    for w in range(10):
        a(f"s_lshl_b32 s{70 + w}, s3, 7")
        a(f"s_mul_i32 s{60 + w}, s3, s27")
        if w < 9:
            a("s_add_u32 s3, s3, 1")
            a("s_cmp_eq_u32 s3, 10")
            a("s_cselect_b32 s3, 0, s3")
    if XP_T1 == 2:
        k1_touch_addr(a)
    a(f"s_mov_b32 s18, {SZ_W1}")
    a("s_waitcnt lgkmcnt(0)")
    srd(a, 12, 4, 5, SZ_X)
    a("s_cmp_lt_u32 s25, 15")
    a("s_cselect_b32 s16, s6, s8")
    a("s_cselect_b32 s17, s7, s9")
    a(f"s_cselect_b32 s18, {SZ_WQKV}, s18")
    a("s_and_b32 s17, s17, 0xffff")
    a("s_mov_b32 s19, 0x00020000")
    k1_helper(a, segs, page, order)
    a.label("K1_COMP")
    a("s_setprio 2")
    a("s_lshr_b32 s3, s26, 1")
    a("s_add_u32 s3, s3, s25")
    a("s_cmp_ge_u32 s3, 29")
    a("s_cbranch_scc1 K1_END")
    a("v_and_b32 v2, 31, v1")
    a("v_lshrrev_b32 v3, 5, v1")
    a("v_bfe_u32 v18, v2, 1, 3")
    a("v_xor_b32 v18, v18, v3")
    a("v_lshlrev_b32 v18, 4, v18")
    a("v_lshl_add_u32 v4, v2, 7, v18")
    for s_ in range(1, 4):
        a(f"v_xor_b32 v{4 + s_}, {32 * s_}, v4")
    for s_ in range(4):
        a(f"v_add_u32 v{8 + s_}, 0x10000, v{4 + s_}")
    a("v_and_b32 v18, 15, v1")
    a("v_lshrrev_b32 v19, 2, v18")
    a("v_lshl_add_u32 v12, v3, 3, v19")
    a("v_lshlrev_b32 v12, 8, v12")
    a("v_bfe_u32 v13, v1, 4, 1")
    a("v_lshlrev_b32 v13, 1, v13")
    a("v_bfe_u32 v14, v1, 1, 1")
    a("v_add_u32 v13, v13, v14")
    a("s_lshl_b32 s3, s26, 2")
    a("v_add_u32 v13, s3, v13")
    a("v_lshlrev_b32 v19, 2, v19")
    a("v_xor_b32 v13, v13, v19")
    a("v_lshl_add_u32 v12, v13, 4, v12")
    a("v_and_b32 v13, 1, v1")
    a("v_lshl_add_u32 v12, v13, 3, v12")
    a("v_add_u32 v13, 0x10000, v12")
    if XP_T1 == 1:
        k1_touch_addr(a)
    a("s_waitcnt lgkmcnt(0)")
    srd(a, 12, 4, 5, SZ_X)
    prof_init(a, 10, 11, 26, 0)
    prof(a, 0)
    a("v_and_b32 v24, 31, v1")
    a("v_lshrrev_b32 v25, 5, v1")
    a("s_cmp_ge_u32 s25, 15")
    a("s_cbranch_scc1 K1_CF")
    a("s_cmp_ge_u32 s25, 10")
    a("s_cbranch_scc1 K1_CV")
    srd(a, 20, 10, 11, WS_KV + SZ_KV)
    a("s_sub_u32 s3, s25, 5")
    a("s_cmp_lt_u32 s25, 5")
    a("s_cselect_b32 s3, s25, s3")
    a(f"s_cselect_b32 s48, {f32bits(C_SCALE)}, 1.0")
    a(f"s_mov_b32 s27, {HEAD_KV}")
    a(f"s_cselect_b32 s27, {HEAD_Q}, s27")
    a("s_movk_i32 s28, 1024")
    a("s_cselect_b32 s28, 1280, s28")
    a("s_movk_i32 s29, 1664")
    a("s_cselect_b32 s29, 1280, s29")
    a(f"s_movk_i32 s31, {8192 + 1280}")
    a("s_cselect_b32 s31, 1024, s31")
    a(f"s_mul_i32 s34, s24, {KV_STG}")
    a(f"s_add_u32 s34, s34, {WS_KV}")
    a("s_mul_i32 s35, s24, 10240")
    a("s_cmp_lt_u32 s25, 5")
    a("s_cselect_b32 s34, s35, s34")
    a("s_lshl_b32 s3, s3, 5")
    a("s_lshl_b32 s35, s26, 3")
    a("s_add_u32 s3, s3, s35")
    a("v_lshl_add_u32 v24, v24, 3, s34")
    a("v_mov_b32 v28, s28")
    a("v_mov_b32 v29, s29")
    a("v_mov_b32 v30, s31")
    for j in range(4):
        a(f"s_add_u32 s35, s3, {2 * j}")
        a("v_add_u32 v26, s35, v25")
        a("v_mul_u32_u24 v27, 205, v26")
        a("v_lshrrev_b32 v27, 10, v27")
        a("v_mul_u32_u24 v31, 5, v27")
        a("v_sub_u32 v26, v26, v31")
        a("v_cmp_eq_u32 vcc, 4, v26")
        a("v_lshlrev_b32 v26, 8, v26")
        a("v_mul_lo_u32 v27, v27, s27")
        a("v_cndmask_b32 v26, v26, v30, vcc")
        a(f"v_cndmask_b32 v{K1_INC[j]}, v28, v29, vcc")
        a(f"v_add3_u32 v{14 + j}, v26, v27, v24")
    nb = k1_compute(a, "q", segs, page)
    assert nb == len(segs)
    a.label("K1_CV")
    srd_off(a, 20, 10, 11, WS_KV, SZ_KV)
    a("s_sub_u32 s3, s25, 10")
    a("s_lshl_b32 s3, s3, 2")
    a("s_add_u32 s3, s3, s26")
    a("s_lshl_b32 s3, s3, 5")
    a("v_add_u32 v24, s3, v24")
    a("v_mul_u32_u24 v26, 3277, v24")
    a("v_lshrrev_b32 v26, 16, v26")
    a("v_mul_u32_u24 v27, 20, v26")
    a("v_sub_u32 v24, v24, v27")
    a(f"s_mov_b32 s27, {HEAD_KV}")
    a("v_mul_lo_u32 v26, v26, s27")
    a("v_mul_u32_u24 v25, 320, v25")
    a("v_lshl_add_u32 v24, v24, 4, v25")
    a("v_add_u32 v14, v24, v26")
    a(f"s_mul_i32 s46, s24, {KV_STG}")
    a("s_add_u32 s46, s46, 8192")
    k1_compute(a, "v", segs, page)
    a.label("K1_CF")
    srd_off(a, 20, 10, 11, WS_H, SZ_H)
    a("v_lshlrev_b32 v14, 4, v1")
    a("s_lshl_b32 s46, s24, 2")
    a("s_mul_i32 s46, s46, 54")
    a("s_sub_u32 s3, s25, 15")
    a("s_lshl_b32 s3, s3, 2")
    a("s_add_u32 s46, s46, s3")
    a("s_add_u32 s46, s46, s26")
    a("s_lshl_b32 s46, s46, 12")
    k1_compute(a, "f", segs, page)
    a.label("K1_END")
    a("s_endpgm")
    NT = (256 - K1_NW) * 512
    a.label("K1_PACK")
    a("s_load_dwordx2 s[4:5], s[0:1], 16")
    a("s_load_dwordx2 s[8:9], s[0:1], 40")
    a("s_load_dwordx2 s[6:7], s[0:1], 72")
    a("s_load_dwordx2 s[44:45], s[0:1], 0")
    a("s_load_dwordx2 s[46:47], s[0:1], 48")
    a(f"s_sub_u32 s3, s2, {K1_NW}")
    a("s_lshl_b32 s3, s3, 9")
    a("v_add_u32 v1, s3, v0")
    a("v_lshlrev_b32 v2, 4, v1")
    a("s_mov_b32 s30, 248552")
    a("s_mov_b32 s31, 671089")
    a("s_mov_b32 s32, 52429")
    a("s_waitcnt lgkmcnt(0)")
    srd(a, 12, 4, 5, SZ_WO)
    srd_off(a, 16, 6, 7, WS_WO, SZ_WO)
    srd(a, 20, 8, 9, SZ_W2)
    srd_off(a, 24, 6, 7, WS_W2P, SZ_W2)
    srd_off(a, 36, 6, 7, WS_CNT, 65536)
    srd_off(a, 40, 6, 7, WS_KV, SZ_KV)
    rounds = [("w2", K1_HP + r * NT) for r in range((138240 - K1_HP + NT - 1) // NT)]
    for j, (kind, r) in enumerate(rounds):
        pack_addr(a, kind, r, 1, 4, 8 + (j & 3), 30)
        a(f"buffer_load_dwordx4 {vr(24 + 4 * j, 4)}, v{8 + (j & 3)}, s[{20 if kind == 'w2' else 12}:{23 if kind == 'w2' else 15}], 0 offen")
    NG = 1
    srd(a, 52, 44, 45, SZ_X)
    srd(a, 56, 46, 47, 1280)
    srd_off(a, 60, 6, 7, WS_G, SZ_G)
    a("v_lshrrev_b32 v4, 6, v0")
    a("v_and_b32 v3, 63, v0")
    a("v_readfirstlane_b32 s34, v4")
    a("v_cmp_eq_u32 vcc, 63, v3")
    a("s_mov_b64 s[50:51], vcc")
    a("v_lshlrev_b32 v16, 3, v3")
    a("v_lshlrev_b32 v3, 2, v3")
    a(f"s_sub_u32 s3, s2, {K1_NW}")
    a("s_mul_i32 s48, s3, 43")
    a("s_lshr_b32 s48, s48, 7")
    a("s_mul_i32 s48, s48, 116")
    a("s_lshl_b32 s3, s3, 2")
    a("s_add_u32 s48, s48, s3")
    a("s_add_u32 s48, s48, 116")
    a("s_add_u32 s48, s48, s34")
    a("s_mul_i32 s49, s48, 2560")
    a("s_lshl_b32 s48, s48, 3")
    gate_loads(a, 16, 3, 56, 52, 49)
    a("v_lshlrev_b32 v4, 8, v1")
    a("v_mov_b32 v5, 0")
    a("buffer_store_dword v5, v4, s[36:39], 0 offen")
    a("v_lshrrev_b32 v4, 4, v1")
    a(f"v_mul_u32_u24 v4, {KV_STG}, v4")
    a("v_bfe_u32 v5, v1, 1, 3")
    a("v_mul_u32_u24 v5, 1664, v5")
    a("v_and_b32 v6, 1, v1")
    a("v_lshl_add_u32 v5, v6, 4, v5")
    a(f"v_add_u32 v5, {8192 + 1536}, v5")
    a("v_add_u32 v4, v4, v5")
    a("v_cmp_eq_u32 vcc, 1, v6")
    a("v_mov_b32 v12, 0x3f803f80")
    a("v_mov_b32 v5, 0x00003f80")
    a("v_cndmask_b32 v13, v5, v12, vcc")
    a("v_cndmask_b32 v14, 0, v12, vcc")
    a("v_mov_b32 v15, v14")
    a("buffer_store_dwordx4 v[12:15], v4, s[40:43], 0 offen sc1")
    for j, (kind, r) in enumerate(rounds):
        a(f"s_waitcnt vmcnt({len(rounds) + 1 + 9})")
        a(f"s_mov_b32 s33, {r * 16}")
        a(f"buffer_store_dwordx4 {vr(24 + 4 * j, 4)}, v2, s[{24 if kind == 'w2' else 16}:{27 if kind == 'w2' else 19}], s33 offen sc1")
    a("s_cmp_ge_u32 s34, 4")
    a("s_cbranch_scc1 K1_PEND")
    a(f"s_waitcnt vmcnt({len(rounds) + 2})")
    gate_unpack(a, 96, 180, 190)
    gate_compute2(a, 104, 110, 180, 190, 48, 60)
    a.label("K1_PEND")
    if PROF:
        a("s_waitcnt vmcnt(0)")
        prof_init(a, 6, 7, 34, 0)
        prof(a, 0)
        prof(a, 12)
    a("s_endpgm")
    return a.text()


GS_SLOT = 9216


class GW:
    VA = 4
    VW = 8
    RA = 18
    RW = 14
    AF = 24
    WF = 40
    ACC = 160


def gw_setup(a, sR0, sC0B, strideA, sLds):
    a("v_lshrrev_b32 v22, 4, v1")
    a("v_and_b32 v23, 15, v1")
    a(f"v_lshlrev_b32 v{GW.VA}, 4, v1")
    a(f"v_add_u32 v{GW.VA + 1}, 4096, v{GW.VA}")
    a("v_lshlrev_b32 v2, 4, v23")
    a("v_lshl_add_u32 v2, v22, 9, v2")
    a("s_and_b32 s60, s38, 1")
    a("s_lshl_b32 s60, s60, 8")
    a("s_lshr_b32 s61, s38, 1")
    a("s_lshl_b32 s61, s61, 11")
    a("s_or_b32 s60, s60, s61")
    for t in range(4):
        a(f"s_xor_b32 s61, s60, {(t >> 1) * 2048 + (t & 1) * 256}")
        a(f"s_add_u32 s61, s61, s{sLds}")
        a(f"v_add_u32 v{GW.RA + t}, s61, v2")
    a("v_lshlrev_b32 v2, 3, v22")
    a("v_lshrrev_b32 v3, 2, v23")
    a("v_add_u32 v2, v2, v3")
    a("v_mul_u32_u24 v2, 160, v2")
    a("v_and_b32 v3, 3, v23")
    a("v_lshlrev_b32 v3, 3, v3")
    a("v_add_u32 v2, 4096, v2")
    a(f"v_add3_u32 v{GW.RW}, v2, v3, s{sLds}")


def gw_pieces(slot, srdA, srdW, sKA, sKW, sLds):
    g = []
    for i in range(4):
        g.append(([f"s_add_u32 m0, s{sLds}, {slot * GS_SLOT}", "s_nop 0"] if i == 0 else []) +
                 [f"buffer_load_dwordx4 v{GW.VA}, {sr(srdA, 4)}, s{sKA} offen offset:{1024 * i} lds"])
    for i in range(4):
        g.append(([f"s_add_u32 m0, s{sLds}, {slot * GS_SLOT + 4096}", "s_nop 0"] if i == 0 else []) +
                 [f"buffer_load_dwordx4 v{GW.VA}, {sr(srdW, 4)}, s{sKW} offen offset:{1024 * i} lds"])
    g.append([f"s_add_u32 m0, s{sLds}, {slot * GS_SLOT + 8192}", "s_nop 0",
              f"buffer_load_dwordx4 v{GW.VA + 1}, {sr(srdW, 4)}, s{sKW} offen lds",
              f"s_add_u32 s{sKA}, s{sKA}, 4096", f"s_add_u32 s{sKW}, s{sKW}, 5120"])
    return g


def gw_issue(a, slot, srdA, srdW, sKA, sKW, sLds):
    for p in gw_pieces(slot, srdA, srdW, sKA, sKW, sLds):
        for x in p:
            a(x)


def gw_compute_pipe(a, slot, first, pieces):
    for t in range(4):
        a(f"ds_read_b128 {vr(GW.AF + 4 * t, 4)}, v{GW.RA + t} offset:{slot * GS_SLOT}")
    for n in range(5):
        off = slot * GS_SLOT + n * 32
        a(f"ds_read_b64_tr_b16 {vr(GW.WF + 4 * n, 2)}, v{GW.RW} offset:{off}")
        a(f"ds_read_b64_tr_b16 {vr(GW.WF + 4 * n + 2, 2)}, v{GW.RW} offset:{off + 640}")
    a("s_waitcnt lgkmcnt(0)")
    pieces = list(pieces)
    i = 0
    for n in range(5):
        for t in range(4):
            d = GW.ACC + 4 * (n * 4 + t)
            c = "0" if first else vr(d, 4)
            a(f"v_mfma_f32_16x16x32_bf16 {vr(d, 4)}, {vr(GW.WF + 4 * n, 4)}, {vr(GW.AF + 4 * t, 4)}, {c}")
            i += 1
            if pieces and i % XP_FB == 0:
                for x in pieces.pop(0):
                    a(x)
    for p in pieces:
        for x in p:
            a(x)


def gw_compute_jit(a, slot, first):
    for t in range(4):
        a(f"ds_read_b128 {vr(GW.AF + 4 * t, 4)}, v{GW.RA + t} offset:{slot * GS_SLOT}")
    for n in range(5):
        off = slot * GS_SLOT + n * 32
        a(f"ds_read_b64_tr_b16 {vr(GW.WF + 4 * n, 2)}, v{GW.RW} offset:{off}")
        a(f"ds_read_b64_tr_b16 {vr(GW.WF + 4 * n + 2, 2)}, v{GW.RW} offset:{off + 640}")
        a("s_waitcnt lgkmcnt(0)")
        for t in range(4):
            d = GW.ACC + 4 * (n * 4 + t)
            c = "0" if first else vr(d, 4)
            a(f"v_mfma_f32_16x16x32_bf16 {vr(d, 4)}, {vr(GW.WF + 4 * n, 4)}, {vr(GW.AF + 4 * t, 4)}, {c}")


def gw_compute(a, slot, first):
    if XP_FJ:
        return gw_compute_jit(a, slot, first)
    for t in range(4):
        a(f"ds_read_b128 {vr(GW.AF + 4 * t, 4)}, v{GW.RA + t} offset:{slot * GS_SLOT}")
    for n in range(5):
        off = slot * GS_SLOT + n * 32
        a(f"ds_read_b64_tr_b16 {vr(GW.WF + 4 * n, 2)}, v{GW.RW} offset:{off}")
        a(f"ds_read_b64_tr_b16 {vr(GW.WF + 4 * n + 2, 2)}, v{GW.RW} offset:{off + 640}")
    a("s_waitcnt lgkmcnt(0)")
    for n in range(5):
        for t in range(4):
            d = GW.ACC + 4 * (n * 4 + t)
            c = "0" if first else vr(d, 4)
            a(f"v_mfma_f32_16x16x32_bf16 {vr(d, 4)}, {vr(GW.WF + 4 * n, 4)}, {vr(GW.AF + 4 * t, 4)}, {c}")


def gw_write_partials(a, sRed):
    a(f"v_add_u32 v2, s{sRed}, v{GW.VA}")
    for n in range(5):
        for t in range(4):
            d = GW.ACC + 4 * (n * 4 + t)
            a(f"ds_write_b128 v2, {vr(d, 4)} offset:{(n * 4 + t) * 1024}")


def gw_read_sum(a, sW4, redbase):
    a(f"s_lshl_b32 s60, s{sW4}, 10")
    a(f"s_add_u32 s60, s60, {redbase}")
    a(f"v_add_u32 v2, s60, v{GW.VA}")
    a(f"v_add_u32 v3, {2 * 20480}, v2")
    R = 24
    for src in range(4):
        for j in range(5):
            a(f"ds_read_b128 {vr(R + 20 * src + 4 * j, 4)}, v{2 + (src >> 1)} offset:{(src & 1) * 20480 + j * 4096}")
    a("s_waitcnt lgkmcnt(10)")
    for e in range(0, 20, 2):
        a(f"v_pk_add_f32 {vr(R + e, 2)}, {vr(R + e, 2)}, {vr(R + 20 + e, 2)}")
    a("s_waitcnt lgkmcnt(0)")
    for e in range(0, 20, 2):
        a(f"v_pk_add_f32 {vr(R + 40 + e, 2)}, {vr(R + 40 + e, 2)}, {vr(R + 60 + e, 2)}")
    for e in range(0, 20, 2):
        a(f"v_pk_add_f32 {vr(R + e, 2)}, {vr(R + e, 2)}, {vr(R + 40 + e, 2)}")


def tile_map(a, sRt, sCt):
    if XP_QX:
        a("s_and_b32 s60, s2, 7")
        a("s_lshr_b32 s61, s2, 3")
        a("s_lshl_b32 s62, s60, 2")
        a("s_lshr_b32 s63, s61, 3")
        a(f"s_add_u32 s{sRt}, s62, s63")
        a(f"s_and_b32 s{sCt}, s61, 7")
        return
    if XP_FUSE:
        a("s_lshr_b32 s60, s2, 5")
        a("s_lshl_b32 s60, s60, 2")
        a("s_bfe_u32 s61, s2, 0x20001")
        a(f"s_add_u32 s{sRt}, s60, s61")
        a("s_and_b32 s60, s2, 1")
        a("s_lshl_b32 s60, s60, 2")
        a("s_bfe_u32 s61, s2, 0x20003")
        a(f"s_add_u32 s{sCt}, s60, s61")
        return
    a("s_and_b32 s60, s2, 7")
    a("s_lshr_b32 s61, s2, 3")
    a("s_lshr_b32 s62, s60, 1")
    a("s_lshl_b32 s62, s62, 3")
    a("s_lshr_b32 s63, s61, 2")
    a(f"s_add_u32 s{sRt}, s62, s63")
    a("s_and_b32 s62, s60, 1")
    a("s_lshl_b32 s62, s62, 2")
    a("s_and_b32 s63, s61, 3")
    a(f"s_add_u32 s{sCt}, s62, s63")


K2_BUF = KV_STG
K2_FFN = 3 * K2_BUF
K2_B = K2_FFN + 4 * 20480
K2_FLAG = K2_B + (10240 if XP_FUSE else 0)
K2_LDS = K2_FLAG + 64
K2_W4 = K2_FFN - 20480
K2_XCH = 0
K2_OST = 24576


def gate_compute(a, XV, GV, srow, srdG):
    a("v_mov_b32 v2, 0")
    for j in range(5):
        xv = XV + j
        gv = GV + j
        a(f"v_lshlrev_b32 v3, 16, v{xv}")
        a(f"v_and_b32 v19, 0xffff0000, v{xv}")
        a(f"v_lshlrev_b32 v127, 16, v{gv}")
        a(f"v_and_b32 v128, 0xffff0000, v{gv}")
        a("v_mul_f32 v3, v3, v127")
        a("v_mul_f32 v19, v19, v128")
        a("v_cvt_pk_bf16_f32 v3, v3, v19")
        a("v_lshlrev_b32 v19, 16, v3")
        a("v_and_b32 v3, 0xffff0000, v3")
        a("v_add_f32 v2, v2, v19")
        a("v_add_f32 v2, v2, v3")
    for sh in (1, 2, 4, 8):
        a("s_nop 1")
        a(f"v_add_f32_dpp v2, v2, v2 row_shr:{sh} row_mask:0xf bank_mask:0xf")
    a("s_nop 1")
    a("v_add_f32_dpp v2, v2, v2 row_bcast:15 row_mask:0xa bank_mask:0xf")
    a("s_nop 1")
    a("v_add_f32_dpp v2, v2, v2 row_bcast:31 row_mask:0xc bank_mask:0xf")
    a("s_nop 1")
    a("v_cvt_pk_bf16_f32 v2, v2, v2")
    a("v_lshlrev_b32 v2, 16, v2")
    a(f"v_mul_f32 v2, {f32bits(-LOG2E)}, v2")
    a("v_exp_f32 v2, v2")
    a("s_nop 0")
    a("v_add_f32 v2, 1.0, v2")
    a("v_rcp_f32 v2, v2")
    a("s_nop 0")
    a("v_cvt_pk_bf16_f32 v2, v2, v2")
    a("v_lshlrev_b32 v2, 16, v2")
    a(f"s_lshl_b32 s49, s{srow}, 2")
    a("v_mov_b32 v3, 0")
    a("v_cmp_eq_u32 vcc, 63, v1")
    a("s_and_saveexec_b64 s[50:51], vcc")
    a(f"buffer_store_dword v2, v3, {sr(srdG, 4)}, s49 offen")
    a("s_mov_b64 exec, s[50:51]")


def gate_loads(a, v8, v4, srdG, srdX, sX):
    for b, sd, so, o in ((96, srdG, "0", 0), (104, srdX, f"s{sX}", 0), (110, srdX, f"s{sX}", 1280)):
        a(f"buffer_load_dwordx2 {vr(b, 2)}, v{v8}, {sr(sd, 4)}, {so} offen offset:{o}")
        a(f"buffer_load_dwordx2 {vr(b + 2, 2)}, v{v8}, {sr(sd, 4)}, {so} offen offset:{o + 512}")
        a(f"buffer_load_dword v{b + 4}, v{v4}, {sr(sd, 4)}, {so} offen offset:{o + 1024}")


def gate_unpack(a, GV, GU, T):
    for j in range(5):
        a(f"v_lshlrev_b32 v{GU + 2 * j}, 16, v{GV + j}")
        a(f"v_and_b32 v{GU + 2 * j + 1}, 0xffff0000, v{GV + j}")


def gate_compute2(a, XA, XB, GU, T, soff, srdG):
    A, B, t0, t1, one = T, T + 1, T + 2, T + 3, T + 4
    a(f"v_mov_b32 v{A}, 0")
    a(f"v_mov_b32 v{B}, 0")
    for X, acc in ((XA, A), (XB, B)):
        for j in range(5):
            a(f"v_lshlrev_b32 v{t0}, 16, v{X + j}")
            a(f"v_and_b32 v{t1}, 0xffff0000, v{X + j}")
            a(f"v_mul_f32 v{t0}, v{t0}, v{GU + 2 * j}")
            a(f"v_mul_f32 v{t1}, v{t1}, v{GU + 2 * j + 1}")
            a(f"v_cvt_pk_bf16_f32 v{t0}, v{t0}, v{t1}")
            a(f"v_and_b32 v{t1}, 0xffff0000, v{t0}")
            a(f"v_lshlrev_b32 v{t0}, 16, v{t0}")
            a(f"v_add_f32 v{acc}, v{acc}, v{t1}")
            a(f"v_add_f32 v{acc}, v{acc}, v{t0}")
    for sh in (1, 2, 4, 8):
        a("s_nop 2" if sh == 1 else "s_nop 0")
        a(f"v_add_f32_dpp v{A}, v{A}, v{A} row_shr:{sh} row_mask:0xf bank_mask:0xf")
        a(f"v_add_f32_dpp v{B}, v{B}, v{B} row_shr:{sh} row_mask:0xf bank_mask:0xf")
    a("s_nop 0")
    a(f"v_add_f32_dpp v{A}, v{A}, v{A} row_bcast:15 row_mask:0xa bank_mask:0xf")
    a(f"v_add_f32_dpp v{B}, v{B}, v{B} row_bcast:15 row_mask:0xa bank_mask:0xf")
    a("s_nop 0")
    a(f"v_add_f32_dpp v{A}, v{A}, v{A} row_bcast:31 row_mask:0xc bank_mask:0xf")
    a(f"v_add_f32_dpp v{B}, v{B}, v{B} row_bcast:31 row_mask:0xc bank_mask:0xf")
    a("s_nop 1")
    a(f"v_cvt_pk_bf16_f32 v{A}, v{A}, v{B}")
    a(f"v_and_b32 v{B}, 0xffff0000, v{A}")
    a(f"v_lshlrev_b32 v{A}, 16, v{A}")
    a(f"v_mul_f32 v{A}, {f32bits(-LOG2E)}, v{A}")
    a(f"v_mul_f32 v{B}, {f32bits(-LOG2E)}, v{B}")
    a(f"v_exp_f32 v{A}, v{A}")
    a(f"v_exp_f32 v{B}, v{B}")
    a("s_nop 0")
    a(f"v_add_f32 v{A}, 1.0, v{A}")
    a(f"v_add_f32 v{B}, 1.0, v{B}")
    a(f"v_rcp_f32 v{A}, v{A}")
    a(f"v_rcp_f32 v{B}, v{B}")
    a("s_nop 0")
    a(f"v_cvt_pk_bf16_f32 v{A}, v{A}, v{B}")
    a(f"v_and_b32 v{B}, 0xffff0000, v{A}")
    a(f"v_lshlrev_b32 v{A}, 16, v{A}")
    a(f"v_mov_b32 v{t0}, 0")
    a("s_mov_b64 exec, s[50:51]")
    a(f"buffer_store_dwordx2 v[{A}:{B}], v{t0}, {sr(srdG, 4)}, s{soff} offen sc1")
    a("s_mov_b64 exec, -1")


def k2_tail(a):
    a("s_load_dwordx2 s[4:5], s[0:1], 56")
    a("s_setprio 0")
    prof(a, 16)
    srd_off(a, 32, 8, 9, WS_G, SZ_G)
    a("s_lshr_b32 s40, s2, 5")
    a("s_lshl_b32 s40, s40, 13")
    srd_off(a, 24, 8, 9, WS_CNT, 65536)
    a("v_mov_b32 v4, 0")
    a("s_cmp_lg_u32 s38, 0")
    a("s_cbranch_scc1 K2_T1")
    a("v_mov_b32 v2, 1")
    a("v_lshlrev_b32 v3, 8, v1")
    a("s_mov_b32 exec_hi, 0")
    a("buffer_atomic_add v2, v3, s[24:27], s40 offen")
    a("s_mov_b32 exec_hi, -1")
    a.label("K2_T1")
    a("s_lshl_b32 s40, s2, 8")
    tile_map(a, 36, 37)
    a("v_lshrrev_b32 v22, 4, v1")
    a("v_and_b32 v23, 15, v1")
    a("s_lshl_b32 s39, s36, 6")
    a("s_and_b32 s49, s38, 3")
    a("s_lshr_b32 s50, s38, 2")
    a("s_mul_i32 s41, s37, 160")
    a("s_lshl_b32 s42, s36, 2")
    a("s_add_u32 s42, s42, s49")
    a("s_mul_i32 s42, s42, 20480")
    a("s_lshl_b32 s43, s50, 11")
    a("s_add_u32 s42, s42, s43")
    a("s_lshl_b32 s43, s49, 4")
    a("v_add_u32 v2, s43, v23")
    a("v_add_u32 v3, s39, v2")
    a("v_lshlrev_b32 v5, 2, v3")
    a("v_mul_u32_u24 v2, 160, v2")
    a("v_lshl_add_u32 v2, v22, 3, v2")
    a("s_mul_i32 s43, s50, 96")
    a(f"s_add_u32 s43, s43, {K2_OST}")
    a("v_add_u32 v17, s43, v2")
    a("s_mul_i32 s43, s49, 2560")
    a("s_mul_i32 s44, s50, 1536")
    a("s_add_u32 s43, s43, s44")
    a(f"s_add_u32 s43, s43, {K2_B}")
    a("v_lshlrev_b32 v2, 3, v1")
    a("v_add_u32 v6, s43, v2")
    for j in range(2):
        a("s_mul_i32 s43, s38, 80")
        a(f"s_add_u32 s43, s43, {64 * j}")
        a("v_add_u32 v2, s43, v1")
        a("v_mul_u32_u24 v3, 6554, v2")
        a("v_lshrrev_b32 v3, 16, v3")
        a("v_mul_u32_u24 v15, 10, v3")
        a("v_sub_u32 v15, v2, v15")
        a("v_lshlrev_b32 v15, 4, v15")
        a("v_add_u32 v3, s39, v3")
        a("v_mul_u32_u24 v3, 1280, v3")
        a(f"v_add3_u32 v{12 + j}, v3, v15, s41")
        a("v_lshlrev_b32 v2, 4, v2")
        a(f"v_add_u32 v{8 + j}, {K2_OST}, v2")
    RW = 28
    a("s_mul_i32 s43, s50, 10240")
    a(f"s_add_u32 s43, s43, {K2_W4}")
    wread_addr(a, RW, RW + 1, 43)
    a(f"v_add_u32 v{RW + 2}, {3 * 20480}, v{RW}")
    a(f"v_add_u32 v{RW + 3}, {3 * 20480}, v{RW + 1}")
    a("s_mul_i32 s43, s49, 5120")
    a(f"s_add_u32 s43, s43, {K2_XCH}")
    a("v_add_u32 v21, s43, v16")
    AF = 32
    WF = (72, 92)
    ACC = 112
    BV = 132

    def reads(t):
        st, i = t >> 1, t & 1
        pos = (st + 1) % 5
        hi = 1 if pos >= 3 else 0
        so = (pos - 3 * hi) * 20480
        r = []
        for n in range(5):
            off = so + i * 5120 + n * 32
            r.append(f"ds_read_b64_tr_b16 {vr(WF[i] + 4 * n, 2)}, v{RW + 2 * hi} offset:{off}")
            r.append(f"ds_read_b64_tr_b16 {vr(WF[i] + 4 * n + 2, 2)}, v{RW + 2 * hi + 1} offset:{off}")
        return r

    def mf(t):
        for n in range(5):
            d = ACC + 4 * n
            c = "0" if t == 0 else vr(d, 4)
            a(f"v_mfma_f32_16x16x32_bf16 {vr(d, 4)}, {vr(WF[t & 1] + 4 * n, 4)}, {vr(AF + 4 * t, 4)}, {c}")

    a("s_waitcnt lgkmcnt(0)")
    srd(a, 16, 4, 5, SZ_OUT)
    for r in reads(0) + reads(1):
        a(r)
    a("s_barrier")
    a("s_cmp_lt_u32 s38, 4")
    a("s_cbranch_scc1 K2_T15")
    for n in range(5):
        a(f"ds_read_b128 {vr(AF + 4 * n, 4)}, v150 offset:{n * 1024}")
    for n in range(5):
        d = GW.ACC + 16 * n
        a(f"s_waitcnt lgkmcnt({4 - n})")
        for e in (0, 2):
            a(f"v_pk_add_f32 {vr(d + e, 2)}, {vr(d + e, 2)}, {vr(AF + 4 * n + e, 2)}")
        a(f"v_cvt_pk_bf16_f32 v{d}, v{d}, v{d + 1}")
        a(f"v_cvt_pk_bf16_f32 v{d + 1}, v{d + 2}, v{d + 3}")
    for n in range(5):
        a(f"ds_write_b64 v151, {vr(GW.ACC + 16 * n, 2)} offset:{512 * n}")
    a("s_waitcnt lgkmcnt(0)")
    a.label("K2_T15")
    a("s_cmp_lg_u32 s38, 0")
    a("s_cbranch_scc1 K2_T3")
    a("s_mov_b32 s43, 0")
    a.label("K2_T2")
    a("buffer_load_dword v2, v4, s[24:27], s40 offen sc1")
    a("s_add_u32 s43, s43, 1")
    a("s_waitcnt vmcnt(0)")
    a("v_readfirstlane_b32 s44, v2")
    a("s_cmp_ge_u32 s44, 32")
    a("s_cbranch_scc1 K2_T3")
    a("s_sleep 2")
    a("s_cmp_lt_u32 s43, 0x100000")
    a("s_cbranch_scc1 K2_T2")
    a.label("K2_T3")
    a("s_waitcnt vmcnt(0)")
    a("s_barrier")
    prof(a, 17)
    for t in range(10):
        st, i = t >> 1, t & 1
        if i == 0 and st:
            a("s_add_u32 s42, s42, 4096")
        a(f"buffer_load_dwordx4 {vr(AF + 4 * t, 4)}, v16, s[20:23], s42 offen offset:{1024 * i} sc1")
    a("buffer_load_dword v18, v5, s[32:35], 0 offen sc1")
    for n in range(3):
        a(f"ds_read_b64 {vr(BV + 2 * n, 2)}, v6 offset:{512 * n}")
    for t in range(10):
        a(f"s_waitcnt vmcnt({10 - t}) lgkmcnt({10 if 1 <= t < 9 else 0})")
        mf(t)
        if t + 2 < 10:
            for r in reads(t + 2):
                a(r)
    prof(a, 18)
    a("s_waitcnt vmcnt(0)")
    a("v_sub_f32 v19, 1.0, v18")
    a("v_cvt_pk_bf16_f32 v19, v19, v19")
    a("v_lshlrev_b32 v19, 16, v19")
    a("s_nop 7")
    XR = 72
    a("s_cmp_eq_u32 s50, 0")
    a("s_cbranch_scc0 K2_X1")
    for n in (3, 4):
        a(f"ds_write_b128 v21, {vr(ACC + 4 * n, 4)} offset:{1024 * n}")
    a("s_waitcnt lgkmcnt(0)")
    a("s_barrier")
    for n in range(3):
        a(f"ds_read_b128 {vr(XR + 4 * n, 4)}, v21 offset:{1024 * n}")
    a("s_branch K2_FIN")
    a.label("K2_X1")
    for n in range(3):
        a(f"ds_write_b128 v21, {vr(ACC + 4 * n, 4)} offset:{1024 * n}")
    a("s_waitcnt lgkmcnt(0)")
    a("s_barrier")
    for n in (3, 4):
        a(f"ds_read_b128 {vr(XR + 4 * (n - 3), 4)}, v21 offset:{1024 * n}")
    for i in range(8):
        a(f"v_mov_b32 v{ACC + i}, v{ACC + 12 + i}")
    a.label("K2_FIN")
    a("s_waitcnt lgkmcnt(0)")
    for n in range(3):
        if n == 2:
            a("s_cmp_eq_u32 s50, 0")
            a("s_cbranch_scc0 K2_CP")
        for i in range(4):
            a(f"v_add_f32 v{ACC + 4 * n + i}, v{ACC + 4 * n + i}, v{XR + 4 * n + i}")
        for h in range(2):
            e = ACC + 4 * n + 2 * h
            bp = BV + 2 * n + h
            a(f"v_cvt_pk_bf16_f32 v24, v{e}, v{e + 1}")
            a("v_lshlrev_b32 v4, 16, v24")
            a("v_and_b32 v5, 0xffff0000, v24")
            a(f"v_lshlrev_b32 v6, 16, v{bp}")
            a(f"v_and_b32 v7, 0xffff0000, v{bp}")
            a("v_mul_f32 v4, v18, v4")
            a("v_mul_f32 v5, v18, v5")
            a("v_mul_f32 v6, v19, v6")
            a("v_mul_f32 v7, v19, v7")
            a("v_cvt_pk_bf16_f32 v24, v4, v5")
            a("v_cvt_pk_bf16_f32 v20, v6, v7")
            a("v_lshlrev_b32 v4, 16, v24")
            a("v_and_b32 v5, 0xffff0000, v24")
            a("v_lshlrev_b32 v6, 16, v20")
            a("v_and_b32 v7, 0xffff0000, v20")
            a("v_add_f32 v4, v4, v6")
            a("v_add_f32 v5, v5, v7")
            a(f"v_cvt_pk_bf16_f32 v{bp}, v4, v5")
        a(f"ds_write_b64 v17, {vr(BV + 2 * n, 2)} offset:{32 * n}")
    a.label("K2_CP")
    a("s_waitcnt lgkmcnt(0)")
    a("s_barrier")
    a("ds_read_b128 v[32:35], v8")
    a("ds_read_b128 v[36:39], v9")
    a("s_waitcnt lgkmcnt(1)")
    a("buffer_store_dwordx4 v[32:35], v12, s[16:19], 0 offen")
    a("v_cmp_gt_u32 vcc, 16, v1")
    a("s_and_saveexec_b64 s[50:51], vcc")
    a("s_waitcnt lgkmcnt(0)")
    a("buffer_store_dwordx4 v[36:39], v13, s[16:19], 0 offen")
    a("s_mov_b64 exec, s[50:51]")


XP_UNR = _env("XP_UNR", 0)
XP_WP = _env("XP_WP", 5)
XP_ORD = _env("XP_ORD", 1)
XP_AP = _env("XP_AP", 2)
XP_MID = _env("XP_MID", 0)


class VmQ:
    def __init__(self, a):
        self.a = a
        self.q = []

    def op(self, txt, tag):
        self.a(txt)
        self.q.append(tag)

    def wait(self, tag):
        idx = [i for i, t in enumerate(self.q) if t == tag]
        if not idx:
            return
        n = len(self.q) - 1 - idx[-1]
        self.a(f"s_waitcnt vmcnt({min(n, 63)})")
        if n <= 63:
            self.q = self.q[idx[-1] + 1:]


def k2():
    a = Asm()
    a.label("k2_kernel")
    if PROF:
        a("s_memtime s[86:87]")
    a("s_cmp_ge_u32 s2, 256")
    a("s_cbranch_scc1 K2_END")
    a("s_load_dwordx2 s[8:9], s[0:1], 72")
    a("s_and_b32 s3, s2, 7")
    a("s_lshl_b32 s3, s3, 2")
    a("s_lshr_b32 s36, s2, 3")
    a("s_and_b32 s36, s36, 3")
    a("s_add_u32 s36, s3, s36")
    a("s_lshr_b32 s37, s2, 5")
    a("v_and_b32 v1, 63, v0")
    a("v_lshrrev_b32 v2, 6, v0")
    a("v_lshlrev_b32 v16, 4, v1")
    a("v_readfirstlane_b32 s38, v2")
    a("s_cmp_ge_u32 s38, 4")
    a("s_cbranch_scc1 K2_FFN")
    QA0, QA1, QB0, QB1 = 20, 24, 26, 30
    K0 = 32
    K1 = (36, 38)
    V1, V2 = (40, 128), (44, 132)
    PA, PB = 48, 56
    SA, SB = 64, 80
    OA, OB = 96, 112
    a(f"s_setprio {XP_AP}")
    a("v_and_b32 v17, 31, v1")
    a("v_lshrrev_b32 v18, 5, v1")
    a("s_lshl_b32 s47, s37, 3")
    a("s_lshl_b32 s48, s38, 1")
    a("s_add_u32 s47, s47, s48")
    a("s_mul_i32 s47, s47, 1280")
    a(f"s_mul_i32 s48, s36, {HEAD_Q}")
    a("s_add_u32 s48, s48, s47")
    a("v_lshlrev_b32 v2, 3, v17")
    a("v_lshl_add_u32 v3, v18, 8, v2")
    a("s_waitcnt lgkmcnt(0)")
    srd_off(a, 16, 8, 9, WS_Q, SZ_Q)
    for q0, q1, o in ((QA0, QA1, 0), (QB0, QB1, 1280)):
        a(f"buffer_load_dwordx2 {vr(q0, 2)}, v3, s[16:19], s48 offen offset:{o}")
        a(f"buffer_load_dwordx2 {vr(q0 + 2, 2)}, v3, s[16:19], s48 offen offset:{o + 512}")
        a(f"buffer_load_dwordx2 {vr(q1, 2)}, v2, s[16:19], s48 offen offset:{o + 1024}")
    srd_off(a, 20, 8, 9, WS_O, SZ_O)
    prof_init(a, 8, 9, 38, 1)
    prof(a, 0)
    a("v_mov_b32 v2, 0")
    a(f"v_mov_b32 v3, {K2_FLAG}")
    a("ds_write_b32 v3, v2")
    a("v_lshlrev_b32 v2, 3, v17")
    a("v_lshl_add_u32 v12, v18, 8, v2")
    a(f"v_add_u32 v2, {8192 + 1280}, v2")
    a(f"v_mov_b32 v3, {8192 + 1536}")
    a("v_cmp_eq_u32 vcc, 0, v18")
    a("v_mul_u32_u24 v19, 320, v18")
    a("v_cndmask_b32 v13, v3, v2, vcc")
    a("v_lshl_add_u32 v2, v17, 4, v19")
    a("v_cmp_gt_u32 vcc, 20, v17")
    a("v_add_u32 v14, 8192, v2")
    a(f"v_add_u32 v15, {8192 + 640}, v2")
    a(f"v_mov_b32 v3, {8192 + 1552}")
    a("v_cndmask_b32 v14, v3, v14, vcc")
    a("v_cndmask_b32 v15, v3, v15, vcc")
    a("s_mov_b32 s39, 0")

    def zero_m():
        a("v_cmp_eq_u32 vcc, 0, v18")
        a("s_nop 1")
        for q in (QA1, QA1 + 1, QB1, QB1 + 1):
            a(f"v_cndmask_b32 v{q}, 0, v{q}, vcc")

    def rk0(blk):
        st, i = (blk >> 3) % 3, blk & 7
        o = st * (K2_BUF // 512) + 2 * i
        return f"ds_read2st64_b64 {vr(K0, 4)}, v12 offset0:{o} offset1:{o + 1}"

    def rk1(blk):
        return f"ds_read_b64 {vr(K1[blk & 1], 2)}, v13 offset:{((blk >> 3) % 3) * K2_BUF + (blk & 7) * 1664}"

    def rv1(blk):
        return f"ds_read_b128 {vr(V1[blk & 1], 4)}, v14 offset:{((blk >> 3) % 3) * K2_BUF + (blk & 7) * 1664}"

    def rv2(blk):
        return f"ds_read_b128 {vr(V2[blk & 1], 4)}, v15 offset:{((blk >> 3) % 3) * K2_BUF + (blk & 7) * 1664}"

    def qk1(s_, q):
        return f"v_mfma_f32_32x32x16_bf16 {vr(s_, 16)}, {vr(K0, 4)}, {vr(q, 4)}, 0"

    def qk2(s_, q, blk=0):
        return f"v_mfma_f32_32x32x8bf16_1k {vr(s_, 16)}, {vr(K1[blk & 1], 2)}, {vr(q, 2)}, {vr(s_, 16)}"

    def pv(o, v_, p):
        return f"v_mfma_f32_32x32x16_bf16 {vr(o, 16)}, {vr(v_, 4)}, {vr(p, 4)}, {vr(o, 16)}"

    def set_m2(mA, mB):
        T = (2, 3, 19), (4, 5, 6)
        for m, (t0, t1, t2) in zip((mA, mB), T):
            a(f"v_mov_b32 v{t1}, v{m}")
        a("s_nop 1")
        for m, (t0, t1, t2) in zip((mA, mB), T):
            a(f"v_permlane32_swap_b32 v{m}, v{t1}")
        a("s_nop 1")
        for m, (t0, t1, t2) in zip((mA, mB), T):
            a(f"v_max_f32 v{m}, v{m}, v{t1}")
        for m, (t0, t1, t2) in zip((mA, mB), T):
            a(f"v_and_b32 v{t1}, 0xffff0000, v{m}")
            a(f"v_sub_f32 v{t0}, v{m}, v{t1}")
            a(f"v_and_b32 v{t2}, 0xffff0000, v{t0}")
            a(f"v_sub_f32 v{t0}, v{t0}, v{t2}")
            a(f"v_lshrrev_b32 v{t1}, 16, v{t1}")
            a(f"v_or_b32 v{t1}, v{t1}, v{t2}")
            a(f"v_xor_b32 v{t1}, 0x80008000, v{t1}")
            a(f"v_lshrrev_b32 v{t0}, 16, v{t0}")
            a(f"v_xor_b32 v{t0}, 0x8000, v{t0}")
        a("v_cmp_eq_u32 vcc, 0, v18")
        a("s_nop 1")
        for q, (t0, t1, t2) in zip((QA1, QB1), T):
            a(f"v_cndmask_b32 v{q}, v{t1}, v{q}, vcc")
            a(f"v_cndmask_b32 v{q + 1}, v{t0}, v{q + 1}, vcc")

    a("s_waitcnt vmcnt(0)")
    zero_m()
    a.label("K2_MAIN")
    prof(a, 1)
    for i in range(32):
        a(f"v_mov_b32 v{OA + i}, 0")
    for i in range(4):
        a(f"v_mov_b32 v{PA + 4 + i}, 0")
        a(f"v_mov_b32 v{PB + 4 + i}, 0")
        a(f"v_mov_b32 v{V2[1] + i}, 0")
    a("s_waitcnt lgkmcnt(0)")
    a("s_barrier")
    a(rk0(0))
    a(rk1(0))
    a(rv1(0))
    a("s_waitcnt lgkmcnt(1)")
    a(qk1(SA, QA0))
    a("s_cmp_lg_u32 s39, 0")
    a("s_cbranch_scc1 K2_PRIME")
    a(qk1(SB, QB0))
    a(qk2(SA, QA1))
    a(qk2(SB, QB1))
    a("s_nop 11")
    for s_, m in ((SA, 8), (SB, 9)):
        if s_ == SB:
            a("s_nop 3")
        a(f"v_max3_f32 v{m}, v{s_}, v{s_ + 1}, v{s_ + 2}")
        for i in range(3, 15, 2):
            a(f"v_max3_f32 v{m}, v{m}, v{s_ + i}, v{s_ + i + 1}")
        a(f"v_max_f32 v{m}, v{m}, v{s_ + 15}")
    set_m2(8, 9)
    for i in range(16):
        a(f"v_sub_f32 v{SA + i}, v{SA + i}, v8")
    a("s_branch K2_PRIM2")
    a.label("K2_PRIME")
    a(qk2(SA, QA1))
    a("s_nop 15")
    a("s_nop 3")
    a.label("K2_PRIM2")
    for i in range(4):
        a(f"v_mov_b32 v{SB + 12 + i}, 0")
    a("s_waitcnt lgkmcnt(0)")
    prof(a, 2)

    def ex(s_, lo):
        return [f"v_exp_f32 v{s_ + i}, v{s_ + i}" for i in range(lo, lo + 4)]

    def cv(p, s_, lo):
        return [f"v_cvt_pk_bf16_f32 v{p + i}, v{s_ + 2 * i}, v{s_ + 2 * i + 1}" for i in range(lo, lo + 2)]

    if not XP_UNR:
        a("s_barrier")
        a("s_mov_b32 s40, 0")
        a(f"s_mov_b32 s41, {K2_BUF}")
        a(f"s_mov_b32 s42, {K2_BUF}")
        a(f"s_mov_b32 s43, {-2 * K2_BUF}")
        a("s_branch K2_BODY")
        a.label("K2_STAGE")
        a("s_barrier")
        a.label("K2_BODY")
    for blk in range(64 if XP_UNR else 8):
        t = blk & 7
        last = blk == 63
        if t == 0 and blk:
            if PROF:
                prof(a, 2 + (blk >> 3))
            a("s_barrier")
        if blk == XP_MID and XP_UNR:
            a("s_barrier")
        v2p, v1c = V2[(blk - 1) & 1], V1[blk & 1]
        mf = [pv(OA, v2p, PA + 4), qk1(SB, QB0), qk2(SB, QB1, blk), pv(OA, v1c, PA),
              pv(OB, v2p, PB + 4), qk1(SA, QA0), qk2(SA, QA1, blk + 1), pv(OB, v1c, PB)]
        nb = blk + 1 if XP_UNR else (blk + 1) & 7
        rd = {0: [rv2(blk), rk1(nb)], 1: [rk0(nb), rv1(nb)]}
        wt = {5: "s_waitcnt lgkmcnt(0)"}
        xtra = {}
        if not XP_UNR and t == 6:
            xtra = {2: ["v_add_u32 v13, s41, v13"], 3: ["v_add_u32 v12, s41, v12"], 6: ["v_add_u32 v14, s41, v14"]}
        if not XP_UNR and t == 7:
            xtra = {2: ["v_add_u32 v15, s41, v15"],
                    3: ["s_mov_b32 s47, s41", "s_mov_b32 s41, s42"], 4: ["s_mov_b32 s42, s43", "s_mov_b32 s43, s47"],
                    6: ["s_add_u32 s40, s40, 1"]}
        if last:
            rd = {0: [rv2(blk)]}
            mf[5] = mf[6] = None
        for g in range(8):
            s_ = SA if g < 4 else SB
            ps, pp = (SA, PA) if 1 <= g <= 4 else (SB, PB)
            e = ex(s_, 4 * (g % 4))
            c = cv(pp, ps, 2 * ((g - 1) % 4))
            if XP_ORD == 0:
                fill = c + e
            elif XP_ORD == 1:
                fill = [e[0], c[0], e[1], c[1], e[2], e[3]]
            else:
                fill = e[:3] + c + e[3:]
            if mf[g]:
                a(mf[g])
            for x in rd.get(g, []):
                a(x)
            for j, f in enumerate(fill):
                if j == XP_WP and (g + 1) % 8 in wt:
                    a(wt[(g + 1) % 8])
                if j == XP_WP:
                    for x in xtra.get(g, []):
                        a(x)
                a(f)
    if not XP_UNR:
        if PROF:
            a("s_memtime s[88:89]")
            a("s_waitcnt lgkmcnt(0)")
            a("v_mov_b32 v2, s88")
            a("s_lshl_b32 s90, s40, 2")
            a("v_mov_b32 v3, s90")
            a("buffer_store_dword v2, v3, s[92:95], s91 offen offset:8")
        a("s_cmp_lt_u32 s40, 8")
        a("s_cbranch_scc1 K2_STAGE")
    prof(a, 10)
    a(pv(OA, V2[1], PA + 4))
    a("s_barrier")
    for x in cv(PB, SB, 6):
        a(x)
    a("s_nop 1")
    a(pv(OB, V2[1], PB + 4))
    a("s_lshl_b32 s47, s37, 8")
    a("s_lshl_b32 s48, s38, 6")
    a("s_add_u32 s47, s47, s48")
    a("v_add_u32 v2, s47, v17")
    a("v_lshrrev_b32 v3, 4, v2")
    a("v_mul_u32_u24 v3, 20480, v3")
    a("v_and_b32 v2, 15, v2")
    a("v_lshl_add_u32 v2, v2, 4, v3")
    a("s_mul_i32 s48, s36, 20")
    a("v_lshl_add_u32 v3, v18, 2, s48")
    a("v_lshrrev_b32 v19, 3, v3")
    a("v_lshl_add_u32 v2, v19, 8, v2")
    a("v_and_b32 v3, 4, v3")
    a("v_lshl_add_u32 v10, v3, 1, v2")
    a("v_add_u32 v11, 40960, v10")
    a("v_cmp_eq_u32 vcc, 0, v18")
    a("s_mov_b64 s[52:53], vcc")
    a("s_nop 4")
    for o, p, ad in ((OA, PA, 10), (OB, PB, 11)):
        a(f"v_mov_b32 v2, v{o + 8}")
        a(f"v_mov_b32 v3, v{o + 8}")
        a("s_nop 1")
        a("v_permlane32_swap_b32 v2, v3")
        a("s_nop 1")
        a("v_rcp_f32 v3, v3")
        a(f"v_mul_f32 v{4 + (o == OB)}, 0x49800000, v{o + 8}")
        a(f"v_mul_f32 v{4 + (o == OB)}, 0, v{4 + (o == OB)}")
        for i in range(12):
            a(f"v_mul_f32 v{o + i}, v{o + i}, v3")
        for i in range(6):
            a(f"v_cvt_pk_bf16_f32 v{p + i}, v{o + 2 * i}, v{o + 2 * i + 1}")
        a(f"buffer_store_dwordx2 {vr(p, 2)}, v{ad}, s[20:23], 0 offen sc1")
        a(f"buffer_store_dwordx2 {vr(p + 2, 2)}, v{ad}, s[20:23], 0 offen offset:256 sc1")
        a("s_mov_b64 exec, s[52:53]")
        a(f"buffer_store_dwordx2 {vr(p + 4, 2)}, v{ad}, s[20:23], 0 offen offset:512 sc1")
        a("s_mov_b64 exec, -1")
    a("s_cmp_lg_u32 s39, 0")
    a("s_cbranch_scc1 K2_VOTE")
    for o, acc in ((OA, 4), (OB, 5)):
        for i in range(12):
            a(f"v_fma_f32 v{acc}, v{o + i}, 0, v{acc}")
    a("v_add_f32 v4, v4, v5")
    a("v_cmp_u_f32 vcc, v4, v4")
    a("s_nop 4")
    a("s_cbranch_vccz K2_VOTE")
    a("v_mov_b32 v2, 1")
    a(f"v_mov_b32 v3, {K2_FLAG}")
    a("ds_write_b32 v3, v2")
    a.label("K2_VOTE")
    a("s_waitcnt vmcnt(0) lgkmcnt(0)")
    a("s_barrier")
    a("s_cmp_lg_u32 s39, 0")
    a("s_cbranch_scc1 K2_TAIL")
    a(f"v_mov_b32 v3, {K2_FLAG}")
    a("ds_read_b32 v2, v3")
    a("s_waitcnt lgkmcnt(0)")
    a("v_readfirstlane_b32 s47, v2")
    a("s_cmp_eq_u32 s47, 0")
    a("s_cbranch_scc1 K2_TAIL")
    a("s_barrier")
    if not XP_UNR:
        for i in range(4):
            a(f"v_subrev_u32 v{12 + i}, {2 * K2_BUF}, v{12 + i}")
    zero_m()
    a(f"v_mov_b32 v8, {f32bits(float('-inf'))}")
    a("v_mov_b32 v9, v8")
    a("v_mov_b32 v4, v12")
    a("v_mov_b32 v5, v13")
    a("s_mov_b32 s40, 0")
    a.label("K2_MSTAGE")
    a("s_barrier")
    for t in range(8):
        a(rk0(t).replace("v12", "v4"))
        a(rk1(t).replace("v13", "v5"))
        a("s_waitcnt lgkmcnt(0)")
        a(qk1(SA, QA0))
        a(qk1(SB, QB0))
        a(qk2(SA, QA1, t))
        a(qk2(SB, QB1, t))
        a("s_nop 15")
        a("s_nop 3")
        for s_, m in ((SA, 8), (SB, 9)):
            for i in range(0, 16, 2):
                a(f"v_max3_f32 v{m}, v{m}, v{s_ + i}, v{s_ + i + 1}")
    a("s_add_u32 s40, s40, 1")
    a(f"s_mov_b32 s47, {K2_BUF}")
    a("s_cmp_eq_u32 s40, 3")
    a(f"s_cselect_b32 s47, {-2 * K2_BUF}, s47")
    a("s_cmp_eq_u32 s40, 6")
    a(f"s_cselect_b32 s47, {-2 * K2_BUF}, s47")
    a("v_add_u32 v4, s47, v4")
    a("v_add_u32 v5, s47, v5")
    a("s_cmp_lt_u32 s40, 8")
    a("s_cbranch_scc1 K2_MSTAGE")
    set_m2(8, 9)
    a("s_mov_b32 s39, 1")
    a("s_barrier")
    a("s_branch K2_MAIN")
    a.label("K2_TAIL")
    k2_tail(a)
    prof(a, 12)
    a.label("K2_END")
    a("s_endpgm")
    a.label("K2_FFN")
    vq = VmQ(a)
    a("s_sub_u32 s38, s38, 4")
    a("s_mul_i32 s58, s38, 5376")
    a(f"s_mul_i32 s59, s36, {HEAD_KV}")
    a("s_add_u32 s59, s59, s58")
    a("s_mov_b32 s44, s59")
    a("v_add_u32 v17, 4096, v16")
    a("s_waitcnt lgkmcnt(0)")
    srd_off(a, 12, 8, 9, WS_KV, SZ_KV)

    def kv_issue(buf, tag, sbuf=None):
        if sbuf is None:
            a(f"s_add_u32 m0, s58, {buf * K2_BUF}")
        else:
            a(f"s_add_u32 m0, s58, s{sbuf}")
        a("s_nop 0")
        for j in range(4):
            vq.op(f"buffer_load_dwordx4 v16, s[12:15], s44 offen offset:{1024 * j} lds", tag)
        a("s_add_u32 m0, m0, 4096")
        a("s_nop 0")
        vq.op("buffer_load_dwordx4 v17, s[12:15], s44 offen lds", tag)
        a("s_mov_b64 exec, 0xffff")
        vq.op("buffer_load_dwordx4 v17, s[12:15], s44 offen offset:1024 lds", tag)
        a("s_mov_b64 exec, -1")
        a(f"s_add_u32 s44, s44, {KV_STG}")

    def fst(slot):
        if PROF:
            a("s_memtime s[88:89]")
            a("s_waitcnt lgkmcnt(0)")
            a(f"v_mov_b32 v{240 + slot}, s88")
    if PROF:
        a("v_mov_b32 v240, s86")
    kv_issue(0, "kv0")
    kv_issue(1, "kv1")
    a("s_load_dwordx2 s[6:7], s[0:1], 16")
    tile_map(a, 36, 37)
    a("s_lshl_b32 s39, s36, 6")
    a("s_mul_i32 s40, s37, 160")
    a("s_mul_i32 s41, s38, 20480")
    a(f"s_add_u32 s41, s41, {K2_FFN}")
    a("s_mul_i32 s42, s38, 14")
    a("s_cmp_eq_u32 s38, 3")
    a("s_cselect_b32 s42, 41, s42")
    a("s_mul_i32 s45, s36, 54")
    a("s_add_u32 s45, s45, s42")
    a("s_lshl_b32 s45, s45, 12")
    a("s_mul_i32 s46, s42, 5120")
    a("s_mul_i32 s47, s37, 276480")
    a("s_add_u32 s46, s46, s47")
    srd_off(a, 16, 8, 9, WS_W2P, SZ_W2)
    srd_off(a, 24, 8, 9, WS_H, SZ_H)
    gw_setup(a, 39, 40, 3456, 41)

    class TA:
        def __init__(self, tag):
            self.tag = tag

        def __call__(self, x):
            if x.startswith("buffer_"):
                vq.op(x, self.tag)
            else:
                a(x)

    for i in range(5):
        a(f"v_add_u32 v2, {64 * i}, v1")
        wmap(a, 6 + i, 40)
    a("s_waitcnt lgkmcnt(0)")
    srd(a, 52, 6, 7, SZ_WO)

    def wo_issue(groups):
        for jj in groups:
            if jj < 4:
                a(f"s_lshl_b32 s56, s38, 2")
                a(f"s_add_u32 s56, s56, {jj}")
                a(f"s_add_u32 s57, s41, {5120 * jj}")
            else:
                a("s_add_u32 s56, s38, 16")
                a("s_mul_i32 s57, s38, 5120")
                a(f"s_add_u32 s57, s57, {K2_W4}")
            a("s_mul_i32 s56, s56, 40960")
            for i in range(5):
                a(f"s_add_u32 m0, s57, {1024 * i}")
                a("s_nop 0")
                vq.op(f"buffer_load_dwordx4 v{6 + i}, s[52:55], s56 offen lds", "wo")

    j = 0
    for k in range(8):
        vq.wait("kv0" if k == 0 else f"kv{k + 1}")
        fst(1 + k)
        a("s_barrier")
        if k == 0:
            gw_issue(TA("f0"), 0, 24, 16, 45, 46, 41)
            vq.wait("kv1")
            fst(10)
            a("s_barrier")
            gw_issue(TA("f1"), 1, 24, 16, 45, 46, 41)
        if k + 2 < 8:
            kv_issue((k + 2) % 3, f"kv{k + 2}")
        if k < len(XP_FS):
            for _ in range(XP_FS[k]):
                vq.wait(f"f{j}")
                if j == 13:
                    a("s_cmp_ge_u32 s38, 2")
                    a("s_cbranch_scc1 K2_FSKIP")
                gw_compute_pipe(TA(f"f{j + 2}"), j & 1, j == 0, gw_pieces(j & 1, 24, 16, 45, 46, 41) if j + 2 < 14 else [])
                j += 1
            if j == 14:
                a.label("K2_FSKIP")
                wo_issue([0, 1])
        if k == 6:
            wo_issue([2, 3, 4])
    assert j == 14 and len(XP_FS) == 6
    srd_off(a, 20, 8, 9, WS_O, SZ_O)
    a("s_mul_i32 s60, s38, 10240")
    a("v_add_u32 v148, s60, v16")
    a("s_xor_b32 s60, s38, 2")
    a("s_mul_i32 s60, s60, 10240")
    a("v_add_u32 v149, s60, v16")
    a("s_xor_b32 s60, s38, 3")
    a("s_mul_i32 s60, s60, 10240")
    a("v_add_u32 v150, s60, v16")
    a("s_mul_i32 s60, s38, 2560")
    a(f"s_add_u32 s60, s60, {K2_B}")
    a("v_lshlrev_b32 v2, 3, v1")
    a("v_add_u32 v151, s60, v2")
    a("s_add_u32 s38, s38, 4")
    a("s_mov_b32 s39, 0")
    if PROF:
        fst(9)
        prof_init(a, 8, 9, 38, 1)
        a("v_mov_b32 v2, 0")
        for q in range(3):
            a(f"buffer_store_dwordx4 {vr(240 + 4 * q, 4)}, v2, s[92:95], s91 offen offset:{16 * q}")
    a.label("K2_FB8")
    a("s_barrier")
    for n in range(5):
        for t in (2, 3):
            a(f"ds_write_b128 v148, {vr(GW.ACC + 4 * (n * 4 + t), 4)} offset:{(n * 2 + t - 2) * 1024}")
    a("s_waitcnt vmcnt(0) lgkmcnt(0)")
    a("s_barrier")
    a(f"v_mov_b32 v3, {K2_FLAG}")
    a("ds_read_b32 v2, v3")
    for q in range(10):
        a(f"ds_read_b128 {vr(24 + 4 * q, 4)}, v149 offset:{q * 1024}")
    a("s_waitcnt lgkmcnt(10)")
    a("v_readfirstlane_b32 s47, v2")
    a("s_andn2_b32 s47, s47, s39")
    a("s_cmp_lg_u32 s47, 0")
    a("s_cbranch_scc1 K2_SERV")
    for q in range(10):
        n, t = q >> 1, q & 1
        d = GW.ACC + 4 * (n * 4 + t)
        a(f"s_waitcnt lgkmcnt({9 - q})")
        for e in (0, 2):
            a(f"v_pk_add_f32 {vr(d + e, 2)}, {vr(d + e, 2)}, {vr(24 + 4 * q + e, 2)}")
    for n in range(5):
        a(f"ds_write_b128 v149, {vr(GW.ACC + 4 * (n * 4 + 1), 4)} offset:{n * 1024}")
    a("s_branch K2_TAIL")
    a.label("K2_SERV")
    a("s_waitcnt lgkmcnt(0)")
    a("s_barrier")
    a.label("K2_SPASS")
    a("s_mov_b32 s44, s59")
    kv_issue(0, "x")
    kv_issue(1, "x")
    a("s_mov_b32 s40, 0")
    a(f"s_mov_b32 s43, {2 * K2_BUF}")
    a.label("K2_SSTAGE")
    a("s_waitcnt vmcnt(0)")
    a("s_barrier")
    a("s_cmp_ge_u32 s40, 6")
    a("s_cbranch_scc1 K2_SNO")
    kv_issue(0, "x", sbuf=43)
    a(f"s_add_u32 s43, s43, {K2_BUF}")
    a(f"s_cmp_eq_u32 s43, {3 * K2_BUF}")
    a("s_cselect_b32 s43, 0, s43")
    a.label("K2_SNO")
    a("s_sub_u32 s47, s39, 1")
    a("s_or_b32 s47, s47, s40")
    a("s_cmp_lg_u32 s47, 0")
    a("s_cbranch_scc1 K2_SNM")
    a("s_barrier")
    a.label("K2_SNM")
    a("s_add_u32 s40, s40, 1")
    a("s_cmp_lt_u32 s40, 8")
    a("s_cbranch_scc1 K2_SSTAGE")
    a("s_cmp_lg_u32 s39, 0")
    a("s_cbranch_scc1 K2_SDONE")
    a("s_barrier")
    a("s_mov_b32 s39, 1")
    a("s_branch K2_SPASS")
    a.label("K2_SDONE")
    a("s_sub_u32 s38, s38, 4")
    wo_issue([4])
    a("s_add_u32 s38, s38, 4")
    a("s_branch K2_FB8")
    return a.text()


def wmap(a, dst, sC0B):
    a("v_mul_u32_u24 v3, 6554, v2")
    a("v_lshrrev_b32 v3, 16, v3")
    a("v_mul_u32_u24 v15, 10, v3")
    a("v_sub_u32 v2, v2, v15")
    a("v_lshrrev_b32 v15, 1, v3")
    a("v_and_b32 v15, 4, v15")
    a("v_xor_b32 v3, v3, v15")
    a("v_lshlrev_b32 v2, 4, v2")
    a("v_mul_u32_u24 v3, 1280, v3")
    a(f"v_add3_u32 v{dst}, v2, v3, s{sC0B}")


def wread_addr(a, d0, d1, sBase):
    a("v_lshlrev_b32 v2, 3, v22")
    a("v_lshrrev_b32 v3, 2, v23")
    a("v_add_u32 v2, v2, v3")
    a("v_mul_u32_u24 v2, 160, v2")
    a("v_and_b32 v3, 3, v23")
    a("v_lshlrev_b32 v3, 3, v3")
    a(f"v_add3_u32 v2, v2, v3, s{sBase}")
    a("v_and_b32 v3, 1, v22")
    a("v_mul_u32_u24 v3, 640, v3")
    a(f"v_add_u32 v{d0}, v2, v3")
    a("v_sub_u32 v2, v2, v3")
    a(f"v_add_u32 v{d1}, 640, v2")


K3_STG = 36864
K3_B = 4 * K3_STG
K3_LDS = K3_B + 10240


def k3():
    a = Asm()
    a.label("k3_kernel")
    if PROF:
        a("s_memtime s[86:87]")
    a("s_cmp_ge_u32 s2, 256")
    a("s_cbranch_scc1 K3_END")
    a("s_load_dwordx2 s[4:5], s[0:1], 16")
    a("s_load_dwordx2 s[8:9], s[0:1], 72")
    a("s_load_dwordx2 s[10:11], s[0:1], 56")
    tile_map(a, 36, 37)
    a("v_and_b32 v1, 63, v0")
    a("v_lshrrev_b32 v2, 6, v0")
    a("v_lshrrev_b32 v22, 4, v1")
    a("v_readfirstlane_b32 s38, v2")
    a("v_and_b32 v23, 15, v1")
    a("s_lshl_b32 s39, s36, 6")
    a("s_mul_i32 s40, s37, 160")
    a("s_and_b32 s49, s38, 3")
    a("s_lshr_b32 s50, s38, 2")
    a("s_lshl_b32 s42, s38, 3")
    for j in range(2):
        a(f"s_add_u32 s43, s42, {4 * j}")
        a("v_add_u32 v2, s43, v22")
        a("v_and_b32 v3, 15, v2")
        a("v_xor_b32 v3, v3, v23")
        a("v_add_u32 v2, s39, v2")
        a("v_mul_u32_u24 v2, 1280, v2")
        a(f"v_lshl_add_u32 v{4 + j}, v3, 4, v2")
    a("s_add_u32 s43, s38, 8")
    a("s_add_u32 s44, s38, 16")
    a("s_cmp_lt_u32 s38, 4")
    a("s_cselect_b32 s44, s44, s43")
    a("v_lshlrev_b32 v2, 4, v1")
    a("s_mul_i32 s55, s37, 102400")
    for j, sp in enumerate((38, 43, 44)):
        a(f"s_lshl_b32 s{52 + j}, s{sp}, 10")
        a(f"s_add_u32 s51, s{52 + j}, s55")
        a(f"v_add_u32 v{8 + j}, s51, v2")
        a(f"s_add_u32 s{52 + j}, s{52 + j}, 16384")
    a("s_lshl_b32 s45, s38, 11")
    a("s_waitcnt lgkmcnt(0)")
    srd_off(a, 12, 8, 9, WS_WO, SZ_WO)
    srd_off(a, 20, 8, 9, WS_O, SZ_O)
    srd_off(a, 24, 8, 9, WS_B, SZ_B)
    srd_off(a, 28, 8, 9, WS_G, SZ_G)
    srd(a, 32, 10, 11, SZ_OUT)
    prof_init(a, 8, 9, 38, 2)
    prof(a, 0)

    def issue(stage, slot):
        a(f"s_mov_b32 s47, {stage * 256}")
        a(f"s_mov_b32 s48, {stage * 20480}")
        for j in range(2):
            a(f"s_add_u32 m0, s45, {slot * K3_STG + j * 1024}")
            a("s_nop 0")
            a(f"buffer_load_dwordx4 v{4 + j}, s[20:23], s47 offen lds")
        for j in range(3):
            a(f"s_add_u32 m0, s{52 + j}, {slot * K3_STG}")
            a("s_nop 0")
            a(f"buffer_load_dwordx4 v{8 + j}, s[12:15], s48 offen lds")

    for st in range(4):
        issue(st, st)
    a("s_lshl_b32 s42, s36, 3")
    a("s_add_u32 s42, s42, s37")
    a("s_lshl_b32 s42, s42, 2")
    a("s_add_u32 s42, s42, s49")
    a("s_mul_i32 s42, s42, 2560")
    a("s_mul_i32 s43, s50, 1536")
    a("s_add_u32 s42, s42, s43")
    a("v_lshlrev_b32 v2, 3, v1")
    for n in range(3):
        a(f"buffer_load_dwordx2 {vr(104 + 2 * n, 2)}, v2, s[24:27], s42 offen offset:{512 * n}")
    a("s_lshl_b32 s42, s49, 4")
    a("v_add_u32 v2, s42, v23")
    a("v_add_u32 v3, s39, v2")
    a("v_lshlrev_b32 v3, 2, v3")
    a("buffer_load_dword v16, v3, s[28:31], 0 offen")
    a("v_mul_u32_u24 v2, 160, v2")
    a("v_lshl_add_u32 v2, v22, 3, v2")
    a("s_mul_i32 s43, s50, 96")
    a(f"s_add_u32 s43, s43, {K3_B}")
    a("v_add_u32 v17, s43, v2")
    for j in range(2):
        a("s_mul_i32 s43, s38, 80")
        a(f"s_add_u32 s43, s43, {64 * j}")
        a("v_add_u32 v2, s43, v1")
        a("v_mul_u32_u24 v3, 6554, v2")
        a("v_lshrrev_b32 v3, 16, v3")
        a("v_mul_u32_u24 v15, 10, v3")
        a("v_sub_u32 v15, v2, v15")
        a("v_lshlrev_b32 v15, 4, v15")
        a("v_add_u32 v3, s39, v3")
        a("v_mul_u32_u24 v3, 1280, v3")
        a(f"v_add3_u32 v{12 + j}, v3, v15, s40")
        a("v_lshlrev_b32 v2, 4, v2")
        a(f"v_add_u32 v{32 + j}, {K3_B}, v2")
    BV = 104
    RA, RW = 24, 28
    a("s_lshl_b32 s43, s49, 12")
    a("v_lshlrev_b32 v2, 8, v23")
    a("v_add_u32 v2, s43, v2")
    a("s_lshl_b32 s43, s50, 3")
    for i in range(2):
        a(f"s_add_u32 s44, s43, {4 * i}")
        a("v_add_u32 v3, s44, v22")
        a("v_xor_b32 v3, v3, v23")
        a(f"v_lshl_add_u32 v{RA + i}, v3, 4, v2")
        a(f"v_add_u32 v{RA + 2 + i}, {2 * K3_STG}, v{RA + i}")
    a("s_mul_i32 s43, s50, 10240")
    a("s_add_u32 s43, s43, 16384")
    wread_addr(a, RW, RW + 1, 43)
    a(f"v_add_u32 v{RW + 2}, {2 * K3_STG}, v{RW}")
    a(f"v_add_u32 v{RW + 3}, {2 * K3_STG}, v{RW + 1}")
    a("v_lshlrev_b32 v21, 4, v1")
    a("s_mul_i32 s43, s49, 5120")
    a(f"s_add_u32 s43, s43, {K3_STG}")
    a("v_add_u32 v21, s43, v21")
    AF = (36, 40)
    WF = (44, 64)
    ACC = 84

    def reads(t):
        st, i = t >> 1, t & 1
        slot = st % 4
        hi = slot >> 1
        so = (slot & 1) * K3_STG
        r = [f"ds_read_b128 {vr(AF[i], 4)}, v{RA + 2 * hi + i} offset:{so}"]
        for n in range(5):
            off = so + i * 5120 + n * 32
            r.append(f"ds_read_b64_tr_b16 {vr(WF[i] + 4 * n, 2)}, v{RW + 2 * hi} offset:{off}")
            r.append(f"ds_read_b64_tr_b16 {vr(WF[i] + 4 * n + 2, 2)}, v{RW + 2 * hi + 1} offset:{off}")
        return r

    def mf(t):
        for n in range(5):
            d = ACC + 4 * n
            c = "0" if t == 0 else vr(d, 4)
            a(f"v_mfma_f32_16x16x32_bf16 {vr(d, 4)}, {vr(WF[t & 1] + 4 * n, 4)}, {vr(AF[t & 1], 4)}, {c}")

    a("s_waitcnt vmcnt(19)")
    a("s_barrier")
    prof(a, 1)
    for r in reads(0) + reads(1):
        a(r)
    a("s_waitcnt vmcnt(4) lgkmcnt(0)")
    a("s_barrier")
    prof(a, 2)
    issue(4, 0)
    mf(0)
    for r in reads(2):
        a(r)
    mf(1)
    for t in range(2, 10):
        if t == 7:
            a("s_waitcnt vmcnt(0)")
            a("s_barrier")
            prof(a, 3)
        if t < 9:
            for r in reads(t + 1):
                a(r)
            a("s_waitcnt lgkmcnt(11)")
        else:
            a("s_waitcnt lgkmcnt(0)")
        mf(t)
    a("v_sub_f32 v18, 1.0, v16")
    a("v_cvt_pk_bf16_f32 v18, v18, v18")
    a("v_lshlrev_b32 v18, 16, v18")
    a("s_nop 7")
    prof(a, 6)
    XR = 44
    a("s_cmp_eq_u32 s50, 0")
    a("s_cbranch_scc0 K3_X1")
    for n in (3, 4):
        a(f"ds_write_b128 v21, {vr(ACC + 4 * n, 4)} offset:{1024 * n}")
    a("s_waitcnt lgkmcnt(0)")
    a("s_barrier")
    for n in range(3):
        a(f"ds_read_b128 {vr(XR + 4 * n, 4)}, v21 offset:{1024 * n}")
    a("s_branch K3_FIN")
    a.label("K3_X1")
    for n in range(3):
        a(f"ds_write_b128 v21, {vr(ACC + 4 * n, 4)} offset:{1024 * n}")
    a("s_waitcnt lgkmcnt(0)")
    a("s_barrier")
    for n in (3, 4):
        a(f"ds_read_b128 {vr(XR + 4 * (n - 3), 4)}, v21 offset:{1024 * n}")
    for i in range(8):
        a(f"v_mov_b32 v{ACC + i}, v{ACC + 12 + i}")
    a.label("K3_FIN")
    a("s_waitcnt lgkmcnt(0)")
    for n in range(3):
        if n == 2:
            a("s_cmp_eq_u32 s50, 0")
            a("s_cbranch_scc0 K3_CP")
        for i in range(4):
            a(f"v_add_f32 v{ACC + 4 * n + i}, v{ACC + 4 * n + i}, v{XR + 4 * n + i}")
        for h in range(2):
            e = ACC + 4 * n + 2 * h
            bp = BV + 2 * n + h
            a(f"v_cvt_pk_bf16_f32 v19, v{e}, v{e + 1}")
            a("v_lshlrev_b32 v4, 16, v19")
            a("v_and_b32 v5, 0xffff0000, v19")
            a(f"v_lshlrev_b32 v6, 16, v{bp}")
            a(f"v_and_b32 v7, 0xffff0000, v{bp}")
            a("v_mul_f32 v4, v16, v4")
            a("v_mul_f32 v5, v16, v5")
            a("v_mul_f32 v6, v18, v6")
            a("v_mul_f32 v7, v18, v7")
            a("v_cvt_pk_bf16_f32 v19, v4, v5")
            a("v_cvt_pk_bf16_f32 v20, v6, v7")
            a("v_lshlrev_b32 v4, 16, v19")
            a("v_and_b32 v5, 0xffff0000, v19")
            a("v_lshlrev_b32 v6, 16, v20")
            a("v_and_b32 v7, 0xffff0000, v20")
            a("v_add_f32 v4, v4, v6")
            a("v_add_f32 v5, v5, v7")
            a(f"v_cvt_pk_bf16_f32 v{bp}, v4, v5")
        a(f"ds_write_b64 v17, {vr(BV + 2 * n, 2)} offset:{32 * n}")
    a.label("K3_CP")
    a("s_waitcnt lgkmcnt(0)")
    a("s_barrier")
    a("ds_read_b128 v[4:7], v32")
    a("ds_read_b128 v[8:11], v33")
    a("s_waitcnt lgkmcnt(1)")
    a("buffer_store_dwordx4 v[4:7], v12, s[32:35], 0 offen")
    a("v_cmp_gt_u32 vcc, 16, v1")
    a("s_and_saveexec_b64 s[50:51], vcc")
    a("s_waitcnt lgkmcnt(0)")
    a("buffer_store_dwordx4 v[8:11], v13, s[32:35], 0 offen")
    a("s_mov_b64 exec, s[50:51]")
    a.label("K3_PEND")
    prof(a, 12)
    a.label("K3_END")
    a("s_endpgm")
    return a.text()


def desc(name, vgpr, sgpr=96):
    acc = (vgpr + 3) // 4 * 4
    return f""".amdhsa_kernel {name}
  .amdhsa_next_free_vgpr {vgpr}
  .amdhsa_next_free_sgpr {sgpr}
  .amdhsa_accum_offset {acc}
  .amdhsa_group_segment_fixed_size 0
  .amdhsa_kernarg_size 80
  .amdhsa_user_sgpr_count 2
  .amdhsa_user_sgpr_kernarg_segment_ptr 1
  .amdhsa_system_sgpr_workgroup_id_x 1
.end_amdhsa_kernel
"""


def main():
    l3 = "" if XP_FUSE else f"; @launch kernel=k3_kernel grid=(256,1,1) block=(512,1,1) lds={K3_LDS}\n"
    hdr = f"""; gated_mix__mha_block__dense_activation_relu__prompt : kernel list (generated by gen.py, hand-designed)
; @launch kernel=k1_kernel grid=(256,1,1) block=(512,1,1) lds={K1_LDS}
; @launch kernel=k2_kernel grid=(256,1,1) block=(512,1,1) lds={K2_LDS}
{l3}.amdgcn_target "amdgcn-amd-amdhsa--gfx950"
.text
"""
    body = ""
    for name, fn in (("k1_kernel", k1), ("k2_kernel", k2), ("k3_kernel", k3))[:2 if XP_FUSE else 3]:
        body += f".globl {name}\n.p2align 8\n.type {name},@function\n" + fn()
    tail = '.section .rodata,"a"\n.p2align 6\n'
    tail += desc("k1_kernel", 256)
    tail += ".p2align 6\n" + desc("k2_kernel", 256)
    if not XP_FUSE:
        tail += ".p2align 6\n" + desc("k3_kernel", 116)
    open(OUT, "w").write(hdr + body + tail)


if __name__ == "__main__":
    main()
```

```python
import struct, sys, os

NAME = "gated_mix__mha_block__dense_activation_relu__prompt"
OUT = sys.argv[1] if len(sys.argv) > 1 else f"cdna_kernels/{NAME}.s"


def _env(n, d):
    return int(os.environ.get(n, str(d)))


WS_Q = 0
HEAD_Q = 64 * 1280
SZ_Q = 32 * HEAD_Q
WS_KV = 0x400000
KV_STG = 21504
HEAD_KV = 8 * KV_STG
SZ_KV = 32 * HEAD_KV
WS_H = 0xC00000
SZ_H = 2048 * 3456
WS_O = 0x1400000
SZ_O = 2048 * 1280
WS_G = 0x1800000
SZ_G = 2048 * 4
WS_CNT = 0x2800000
CNT_H = 256 * 256
CNT_Q = 288 * 256
SZ_CNT = 544 * 256

SZ_X = 2048 * 1280
SZ_WQKV = 640 * 3840
SZ_WO = 640 * 1280
SZ_W1 = 640 * 3456
SZ_W2 = 1728 * 1280
SZ_OUT = 2048 * 1280


def f32bits(x):
    return struct.unpack("<I", struct.pack("<f", x))[0]


C_SCALE = 1.4426950408889634 / (20 ** 0.5)
LOG2E = 1.4426950408889634

PROF = _env("PROF", 0)
WS_T = 0x2000000
XP_FS = eval(os.environ.get("XP_FS", "(0, 1, 3, 3, 3, 3, 1)"))
XP_FB = _env("XP_FB", 2)
XP_FILL = _env("XP_FILL", 2)
XP_MAXQ = _env("XP_MAXQ", 13)
XP_IL = _env("XP_IL", 8)
XP_FLG = _env("XP_FLG", 72)
XP_F1W = _env("XP_F1W", 64)
XP_GSEG = _env("XP_GSEG", 4)
XP_MAP = _env("XP_MAP", 2)
XP_WP = _env("XP_WP", 5)
XP_AP = _env("XP_AP", 2)
XP_ROT = _env("XP_ROT", 10)
XP_ROTM = _env("XP_ROTM", 1)
XP_EP = _env("XP_EP", 72)
XP_IL2 = _env("XP_IL2", 8)
XP_GSEG2 = _env("XP_GSEG2", 8)
XP_SP = _env("XP_SP", 3)
PA_JOIN = _env("PA_JOIN", 44)
XP_FILL2 = _env("XP_FILL2", 3)
XP_FREE = _env("XP_FREE", 80)
XP_MID = _env("XP_MID", 5)
XP_SLP = _env("XP_SLP", 4)
XP_TCH = _env("XP_TCH", 0)


class Asm:
    def __init__(self):
        self.lines = []
        self.nvm = 0

    def __call__(self, s):
        self.lines.append("    " + s)
        if s.startswith("buffer_"):
            self.nvm += 1

    def label(self, l):
        self.lines.append(l + ":")

    def text(self):
        return "\n".join(self.lines) + "\n"


def prof_init(a, wave_s):
    if not PROF:
        return
    a(f"s_add_u32 s92, s8, {WS_T}")
    a("s_addc_u32 s93, s9, 0")
    a("s_and_b32 s93, s93, 0xffff")
    a("s_mov_b32 s94, 0x100000")
    a("s_mov_b32 s95, 0x00020000")
    a("s_lshl_b32 s91, s2, 3")
    a(f"s_add_u32 s91, s91, s{wave_s}")
    a("s_lshl_b32 s91, s91, 8")


def prof(a, slot, tmpv=2, real=None):
    if not PROF:
        return
    a("s_memtime s[88:89]")
    a("s_waitcnt lgkmcnt(0)")
    a(f"v_mov_b32 v{tmpv}, s88")
    a(f"v_mov_b32 v{tmpv + 1}, 0")
    a(f"buffer_store_dword v{tmpv}, v{tmpv + 1}, s[92:95], s91 offen offset:{4 * slot}")
    if real is not None:
        a("s_memrealtime s[88:89]")
        a("s_waitcnt lgkmcnt(0)")
        a(f"v_mov_b32 v{tmpv}, s88")
        a(f"buffer_store_dword v{tmpv}, v{tmpv + 1}, s[92:95], s91 offen offset:{4 * real}")


def vr(b, n=1):
    return f"v{b}" if n == 1 else f"v[{b}:{b + n - 1}]"


def sr(b, n=1):
    return f"s{b}" if n == 1 else f"s[{b}:{b + n - 1}]"


def srd(a, d, lo, hi, size):
    a(f"s_mov_b32 s{d}, s{lo}")
    a(f"s_and_b32 s{d + 1}, s{hi}, 0xffff")
    a(f"s_mov_b32 s{d + 2}, {size}")
    a(f"s_mov_b32 s{d + 3}, 0x00020000")


def srd_off(a, d, lo, hi, off, size):
    a(f"s_add_u32 s{d}, s{lo}, {off}")
    a(f"s_addc_u32 s{d + 1}, s{hi}, 0")
    a(f"s_and_b32 s{d + 1}, s{d + 1}, 0xffff")
    a(f"s_mov_b32 s{d + 2}, {size}")
    a(f"s_mov_b32 s{d + 3}, 0x00020000")


K2_BUF = KV_STG
K2_FFN = 3 * K2_BUF
K2_B = K2_FFN + 4 * 20480
K2_W4 = K2_FFN - 20480
K2_XCH = 0
K2_OST = 24576
K2_QF = 36 * 4096
K2_FLAG = 39 * 4096
PA_CNT = 36 * 4096
K2_HS = 2 * K2_BUF + 2048
LDS = 40 * 4096

QA0, QB0, QA1, QB1 = 32, 36, 40, 42
K0 = 20
K1 = (24, 26)
V1, V2 = (28, 128), (44, 132)
PA, PB = 48, 56
SA, SB = 64, 80
OA, OB = 96, 112


def pa_plan():
    loads = []
    mfs = []
    bars = []
    for s in range(10):
        base = 8 * ((s + 2) % 4)
        its = []
        for i in range(4):
            its.append((("X", i, s), base + i))
            its.append((("W", i & 1, i >> 1, s), base + 4 + i))
        loads += its
        bars.append(dict(at=len(mfs), need=[x for x, _ in its], tag=f"w{s}"))
        order = [(q, b) for q in range(4) for b in range(4)] if s < 9 else [(q, b) for b in (2, 0, 3, 1) for q in range(4)]
        for q, b in order:
            mfs.append(dict(b=b, ks=4 * s + q, w=("W", b >> 1, q >> 1, s), kk=q & 1, x=(("X", 0, s), q) if b == order[0][1] else None))
    g0 = len(mfs)
    early = [(("G", P, k), 36 - 4 * P + k) for P in range(2) for k in range(4)]
    loads[XP_EP:XP_EP] = early
    if XP_EP > 72:
        bars.append(dict(at=g0, need=[("G", 0, kk) for kk in range(4)], tag="w10"))
    for P in range(2):
        for k in range(4, 20):
            loads.append((("G", P, k), 16 * P + k - 4))
    order = [(4, ks) for ks in range(XP_IL)] + [(5, ks) for ks in range(XP_IL)]
    for k2 in range(XP_IL, 40, 2):
        order += [(4, k2), (4, k2 + 1), (5, k2), (5, k2 + 1)]
    if XP_IL2:
        for k2 in range(0, 40 - XP_IL2, 2):
            order += [(6, k2), (6, k2 + 1), (7, k2), (7, k2 + 1)]
        order += [(b, ks) for b in (6, 7) for ks in range(40 - XP_IL2, 40)]
    else:
        order += [(b, ks) for b in (6, 7) for ks in range(40)]
    for b, ks in order:
        mfs.append(dict(b=b, ks=ks, w=("G", (b - 4) >> 1, ks >> 1), kk=ks & 1, x=None))
    at = min(i for i, m in enumerate(mfs) if m["w"] == ("G", 0, 4))
    bars.append(dict(at=at, need=[("G", 0, kk) for kk in range(20)], tag="g4"))
    assert 64 <= XP_FREE <= min(i for i, m in enumerate(mfs) if m["w"] == ("G", 1, 4)) - g0
    assert PA_JOIN <= XP_F1W < XP_FREE - 8
    bars.append(dict(at=g0 + XP_FREE, need=[("G", 1, kk) for kk in range(20)], tag="free"))
    return loads, mfs, bars, g0


XS, ACC, WR, R = 96, 32, 16, 4
WB = (4, 5, 6, 7, 8, 9)
XB, XT = 12, (13, 14)
ST = (10, 11)
LN16 = 1


def pa_compute(a, mode, plan, emit_from, emit_to, extra):
    loads, mfs, bars, g0 = plan
    page = dict(loads)
    NM = len(mfs)
    sink = Asm()
    st = dict(n=0, done=-1, bar=-1, o=sink, lastq=None)
    lastrd = {}
    freebar = {}
    first, last = {}, {}
    for i, m in enumerate(mfs):
        last[m["b"]] = i
        first.setdefault(m["b"], i)

    def o(x):
        st["o"](x)

    def lds(txt, item):
        o(txt)
        st["n"] += 1
        lastrd[item] = st["n"] - 1
        return st["n"] - 1

    def wait(i):
        if i > st["done"]:
            c = min(15, st["n"] - 1 - i)
            o(f"s_waitcnt lgkmcnt({c})")
            st["done"] = st["n"] - 1 - c

    def barrier():
        st["bar"] += 1
        bt = bars[st["bar"]]
        for it, i in lastrd.items():
            if i <= st["done"] and remaining[it] == 0 and it not in freebar:
                freebar[it] = st["bar"]
        o("s_barrier")
        if PROF:
            slot = {"w0": 1, "w3": 2, "w6": 3, "w9": 4, "g4": 5, "g12": 6, "f1": 7, "free": 8}.get(bt["tag"])
            if slot:
                o("s_memtime s[88:89]")
                o("s_waitcnt lgkmcnt(0)")
                o(f"v_writelane_b32 v2, s88, {slot}")
                st["done"] = st["n"] - 1
                if slot == 8:
                    for i in range(1, 9):
                        o(f"v_readlane_b32 s{59 + i}, v2, {i}")

    remaining = {"arr": 1}
    for m in mfs:
        remaining[m["w"]] = remaining.get(m["w"], 0) + 1
        if m["x"]:
            remaining[m["x"][0]] = remaining.get(m["x"][0], 0) + 1

    def epi(b):
        A = ACC + 16 * (b & 3)
        ops = []
        if b >= 4:
            for jj in range(2):
                for i in range(4):
                    ops.append(f"v_cvt_pk_bf16_f32 v{A + 4 * jj + i}, v{A + 8 * jj + 2 * i}, v{A + 8 * jj + 2 * i + 1}")
                for i in range(4):
                    ops.append(f"v_pk_max_i16 v{A + 4 * jj + i}, v{A + 4 * jj + i}, 0")
                if b < 7 and _env("XP_NOH", 0):
                    pass
                else:
                    ops.append(f"buffer_store_dwordx4 {vr(A + 4 * jj, 4)}, v{LN16}, {'s[28:31]' if b < 6 else 's[24:27]'}, s{76 + ((b - 4) >> 1)} offen offset:{1024 * jj} sc1")
            if b in (4, 6):
                ops.append(f"s_add_u32 s{76 + ((b - 4) >> 1)}, s{76 + ((b - 4) >> 1)}, 4096")
        elif mode == "v":
            D = A if b >= 2 else A + 40
            for i in range(8):
                ops.append(f"v_cvt_pk_bf16_f32 v{D + i}, v{A + 2 * i}, v{A + 2 * i + 1}")
            t, u = ST
            g = [f"v_add_u32 v{u}, {32 * b}, v15",
                 f"v_mul_u32_u24 v{t}, 3277, v{u}",
                 f"v_lshrrev_b32 v{t}, 16, v{t}",
                 f"v_mul_lo_u32 v{t}, v{t}, s44",
                 f"v_lshl_add_u32 v{t}, v{u}, 4, v{t}",
                 f"v_add_u32 v{t}, v0, v{t}"]
            ops.append([g + [f"buffer_store_dwordx4 {vr(D, 4)}, v{t}, s[20:23], s45 offen sc1"],
                        [f"buffer_store_dwordx4 {vr(D + 4, 4)}, v{t}, s[20:23], s45 offen offset:640 sc1"]])
        else:
            D = A if b >= 2 else A + 40
            for j in range(4):
                for i in range(4 if mode == "q" else 0):
                    ops.append(f"v_mul_f32 v{A + 4 * j + i}, s78, v{A + 4 * j + i}")
                for i in range(2):
                    ops.append(f"v_cvt_pk_bf16_f32 v{D + 2 * j + i}, v{A + 4 * j + 2 * i}, v{A + 4 * j + 2 * i + 1}")
                ops.append([[f"v_mad_u32_u24 v{ST[j & 1]}, v0, s{60 + 4 * b + j}, v15",
                             f"buffer_store_dwordx2 {vr(D + 2 * j, 2)}, v{ST[j & 1]}, s[20:23], s{44 + 4 * b + j} offen sc1"]])
        return [(b, x) for x in ops]

    sq = []
    st["ns"] = 0
    fq = []

    def emit_fill(force_b=None, limit=None):
        k = 0
        while fq and (limit is None or k < limit):
            b, txt = fq[0]
            if force_b is not None and all(bb != force_b for bb, _ in fq):
                break
            fq.pop(0)
            if isinstance(txt, list):
                sq.extend(txt)
                continue
            o(txt)
            k += 1

    rd = 0
    wid = {}
    avail = []
    nx = 0
    for m in range(NM + 1):
        if m == emit_from:
            st["o"] = a
        if m == g0 + PA_JOIN:
            assert not fq and not avail and not sq, "fillers pending at the join"
            if emit_to > m:
                a.label("PA_JOIN")
            st["lastq"] = a.nvm
        if m == emit_to and m < NM:
            st["o"] = sink
        if m == NM:
            break
        while rd < NM and rd < m + R:
            r = mfs[rd]
            while st["bar"] + 1 < len(bars) and bars[st["bar"] + 1]["at"] <= rd:
                barrier()
            if r["x"]:
                it, q = r["x"]
                t = XT[nx & 1]
                nx += 1
                o(f"v_xor_b32 v{t}, {32 * q + page[it] * 4096}, v{XB}")
                lds(f"ds_read_b128 {vr(XS + 4 * r['ks'], 4)}, v{t}", it)
                remaining[it] -= 1
            pg = page[r["w"]]
            rg = 0 if pg < 16 else (1 if pg < 28 else 2)
            off = (pg - (0, 16, 24)[rg]) * 4096 + r["kk"] * 2048
            d = WR + 4 * (rd % R)
            bs = WB[2 * rg + (r["b"] & 1)]
            lds(f"ds_read_b64_tr_b16 {vr(d, 2)}, v{bs} offset:{off}", r["w"])
            wid[rd] = lds(f"ds_read_b64_tr_b16 {vr(d + 2, 2)}, v{bs} offset:{off + 512}", r["w"])
            remaining[r["w"]] -= 1
            rd += 1
        r = mfs[m]
        b = r["b"]
        A = ACC + 16 * (b & 3)
        if m == first[b] and b >= 4:
            for (mi, bb) in list(avail):
                if bb == b - 4:
                    assert m - 1 >= mi, "hazard"
                    fq.extend(epi(bb))
                    avail.remove((mi, bb))
            emit_fill(force_b=b - 4)
        if PROF and m >= g0 + max(30, PA_JOIN) and (m - g0) % 10 == 0:
            o("s_memtime s[88:89]")
            o("s_waitcnt lgkmcnt(0)")
            o(f"s_mov_b32 s{44 + (m - g0 - 30) // 10}, s88")
            st["done"] = st["n"] - 1
        if m == g0 + 2:
            o(f"v_mov_b32 v13, {PA_CNT}")
            st["ini"] = lds("ds_read_b32 v14, v13", "arr")
        if m == g0 + 8:
            assert bars[st["bar"] + 1]["tag"] == "g4"
            wait(st["ini"])
            o("v_readfirstlane_b32 s17, v14")
            o("s_add_u32 s17, s17, 3")
        if m == g0 + XP_F1W:
            assert freebar[("G", 0, 0)] <= st["bar"]
            o("v_mov_b32 v14, 1")
            o(f"v_lshl_add_u32 v12, v{LN16}, 7, s80")
            o(f"s_waitcnt vmcnt({a.nvm - st['lastq']})")
            o("s_mov_b64 exec, 1")
            st["arr"] = lds("ds_add_rtn_u32 v13, v13, v14", "arr")
            o("s_mov_b64 exec, -1")
            if PROF:
                o("s_memtime s[88:89]")
                o("s_waitcnt lgkmcnt(0)")
                o("v_writelane_b32 v2, s88, 7")
                st["done"] = st["n"] - 1
        if m == g0 + XP_F1W + 3:
            wait(st["arr"])
            o("v_readfirstlane_b32 s3, v13")
            o("v_mov_b32 v14, s81")
            o("s_cmp_eq_u32 s3, s17")
            o("s_cselect_b64 exec, s[82:83], 0")
            o("buffer_atomic_add v14, v12, s[12:15], 0 offen")
            o("s_mov_b64 exec, -1")
        wait(wid[m])
        c = "0" if m == first[b] else vr(A, 16)
        wf, xf = vr(WR + 4 * (m % R), 4), vr(XS + 4 * r["ks"], 4)
        if mode == "v" and b < 4:
            o(f"v_mfma_f32_32x32x16_bf16 {vr(A, 16)}, {xf}, {wf}, {c}")
        else:
            o(f"v_mfma_f32_32x32x16_bf16 {vr(A, 16)}, {wf}, {xf}, {c}")
        if m == last[b]:
            avail.append((m + 2, b))
        for (mi, bb) in list(avail):
            if m >= mi:
                fq.extend(epi(bb))
                avail.remove((mi, bb))
        if m in extra:
            fq.extend((99, x) for x in extra[m])
        emit_fill(limit=XP_FILL + (XP_FILL2 if g0 - 12 <= m < g0 + 12 else 0))
        if sq and m >= st["ns"]:
            for x in sq.pop(0):
                o(x)
            st["ns"] = m + XP_SP * (2 if mode == "v" else 1)
    emit_fill()
    o("s_nop 15")
    o("s_nop 3")
    for (mi, bb) in avail:
        fq.extend(epi(bb))
    emit_fill()
    assert st["bar"] == len(bars) - 1
    for it in list(freebar):
        if it[0] == "X":
            for b in range(4):
                freebar[("X", b, it[2])] = freebar[it]
    return freebar


def pa_helper(a, plan, freebar, hst, touch):
    loads, mfs, bars, g0 = plan
    VX, VW, VG = 4, 8, 12
    opid = {}
    prev = {}
    occ = {}
    for it, pg in loads:
        prev[it] = occ.get(pg)
        occ[pg] = it
    st = dict(bar=-1, done=-1)

    def wait(op):
        if op > st["done"]:
            n = a.nvm - 1 - op
            assert n <= 63
            a(f"s_waitcnt vmcnt({n})")
            st["done"] = op

    def barrier():
        st["bar"] += 1
        bt = bars[st["bar"]]
        if bt["need"]:
            wait(max(opid[it] for it in bt["need"]))
        if bt["tag"] == "g4":
            wait(opid["flag"])
            a("v_readfirstlane_b32 s3, v19")
            a("s_or_b32 s3, s3, s38")
            a("s_cbranch_scc1 PA_FOK")
            flag_poll(a, "PA_FP")
            a.nvm -= 1
            a.label("PA_FOK")
        hst(3 + st["bar"])
        a("s_barrier")

    def ready(bt):
        return bt["tag"][0] == "w" and all(it in opid and opid[it] <= st["done"] for it in bt["need"])

    hst(1)
    for i, (it, pg) in enumerate(loads):
        if i == XP_MAXQ:
            hst(2)
            yield
        if i >= XP_MAXQ:
            wait(opid[loads[i - XP_MAXQ][0]])
        while ready(bars[st["bar"] + 1]):
            barrier()
        while prev[it] is not None and freebar[prev[it]] > st["bar"]:
            barrier()
        a(f"s_add_u32 m0, s47, {pg * 4096}")
        a("s_nop 0")
        if it[0] == "W":
            a(f"buffer_load_dwordx4 v{VW + 2 * it[2] + it[1]}, s[16:19], s{60 + it[3]} offen lds")
        elif it[0] == "X":
            a(f"buffer_load_dwordx4 v{VX + it[1]}, s[12:15], s{70 + it[2]} offen lds")
        else:
            a(f"buffer_load_dwordx4 v{VG + 2 * it[1] + (it[2] & 1)}, s[28:31], s{48 + (it[2] >> 1)} offen lds")
        opid[it] = a.nvm - 1
        if i == XP_FLG:
            a("buffer_load_dword v19, v26, s[80:83], 0 offen sc1")
            opid["flag"] = a.nvm - 1
    touch()
    while st["bar"] + 2 < len(bars):
        barrier()
    for k in range(15):
        assert freebar[("G", 0, k)] <= len(bars) - 1


def flag_poll(a, name):
    poll(a, name, "buffer_load_dword v19, v26, s[80:83], 0 offen sc1",
         ["v_readfirstlane_b32 s3, v19", "s_cmp_lg_u32 s3, 0", f"s_cbranch_scc1 {name}_OK"], cnt=46, slp=8)


def gate_unpack(a, GV, GU):
    for j in range(5):
        a(f"v_lshlrev_b32 v{GU + 2 * j}, 16, v{GV + j}")
        a(f"v_and_b32 v{GU + 2 * j + 1}, 0xffff0000, v{GV + j}")


def gate_compute2(a, XA, XB_, GU, T, soff, off, srdG):
    A, B, t0, t1 = T, T + 1, T + 2, T + 3
    a(f"v_mov_b32 v{A}, 0")
    a(f"v_mov_b32 v{B}, 0")
    for X, acc in ((XA, A), (XB_, B)):
        for j in range(5):
            a(f"v_lshlrev_b32 v{t0}, 16, v{X + j}")
            a(f"v_and_b32 v{t1}, 0xffff0000, v{X + j}")
            a(f"v_mul_f32 v{t0}, v{t0}, v{GU + 2 * j}")
            a(f"v_mul_f32 v{t1}, v{t1}, v{GU + 2 * j + 1}")
            a(f"v_cvt_pk_bf16_f32 v{t0}, v{t0}, v{t1}")
            a(f"v_and_b32 v{t1}, 0xffff0000, v{t0}")
            a(f"v_lshlrev_b32 v{t0}, 16, v{t0}")
            a(f"v_add_f32 v{acc}, v{acc}, v{t1}")
            a(f"v_add_f32 v{acc}, v{acc}, v{t0}")
    for sh in (1, 2, 4, 8):
        a("s_nop 2" if sh == 1 else "s_nop 0")
        a(f"v_add_f32_dpp v{A}, v{A}, v{A} row_shr:{sh} row_mask:0xf bank_mask:0xf")
        a(f"v_add_f32_dpp v{B}, v{B}, v{B} row_shr:{sh} row_mask:0xf bank_mask:0xf")
    a("s_nop 0")
    a(f"v_add_f32_dpp v{A}, v{A}, v{A} row_bcast:15 row_mask:0xa bank_mask:0xf")
    a(f"v_add_f32_dpp v{B}, v{B}, v{B} row_bcast:15 row_mask:0xa bank_mask:0xf")
    a("s_nop 0")
    a(f"v_add_f32_dpp v{A}, v{A}, v{A} row_bcast:31 row_mask:0xc bank_mask:0xf")
    a(f"v_add_f32_dpp v{B}, v{B}, v{B} row_bcast:31 row_mask:0xc bank_mask:0xf")
    a("s_nop 1")
    a(f"v_cvt_pk_bf16_f32 v{A}, v{A}, v{B}")
    a(f"v_and_b32 v{B}, 0xffff0000, v{A}")
    a(f"v_lshlrev_b32 v{A}, 16, v{A}")
    a(f"v_mul_f32 v{A}, {f32bits(-LOG2E)}, v{A}")
    a(f"v_mul_f32 v{B}, {f32bits(-LOG2E)}, v{B}")
    a(f"v_exp_f32 v{A}, v{A}")
    a(f"v_exp_f32 v{B}, v{B}")
    a("s_nop 0")
    a(f"v_add_f32 v{A}, 1.0, v{A}")
    a(f"v_add_f32 v{B}, 1.0, v{B}")
    a(f"v_rcp_f32 v{A}, v{A}")
    a(f"v_rcp_f32 v{B}, v{B}")
    a("s_nop 0")
    a(f"v_cvt_pk_bf16_f32 v{A}, v{A}, v{B}")
    a(f"v_and_b32 v{B}, 0xffff0000, v{A}")
    a(f"v_lshlrev_b32 v{A}, 16, v{A}")
    a(f"v_mov_b32 v{t0}, 0")
    a("s_mov_b64 exec, s[50:51]")
    a(f"buffer_store_dwordx2 v[{A}:{B}], v{t0}, {sr(srdG, 4)}, s{soff} offen offset:{off} sc1")
    a("s_mov_b64 exec, -1")
GS_SLOT = 9216


class GW:
    VA = 16
    RA = 141
    RW = 157
    AF = 24
    WF = 40
    ACC = 160


def gw_setup(a, sR0, sC0B, strideA, sLds):
    a("v_lshrrev_b32 v10, 4, v1")
    a("v_and_b32 v11, 15, v1")
    a("v_lshlrev_b32 v2, 4, v11")
    a("v_lshl_add_u32 v2, v10, 9, v2")
    a("s_and_b32 s60, s38, 1")
    a("s_lshl_b32 s60, s60, 8")
    a("s_lshr_b32 s61, s38, 1")
    a("s_lshl_b32 s61, s61, 11")
    a("s_or_b32 s60, s60, s61")
    for t in range(4):
        a(f"s_xor_b32 s61, s60, {(t >> 1) * 2048 + (t & 1) * 256}")
        a(f"s_add_u32 s61, s61, s{sLds}")
        a(f"v_add_u32 v{GW.RA + t}, s61, v2")
    a("v_lshlrev_b32 v2, 3, v10")
    a("v_lshrrev_b32 v3, 2, v11")
    a("v_add_u32 v2, v2, v3")
    a("v_mul_u32_u24 v2, 160, v2")
    a("v_and_b32 v3, 3, v11")
    a("v_lshlrev_b32 v3, 3, v3")
    a("v_add_u32 v2, 4096, v2")
    a(f"v_add3_u32 v{GW.RW}, v2, v3, s{sLds}")


def gw_compute_pipe(a, slot, first, pieces):
    for t in range(4):
        a(f"ds_read_b128 {vr(GW.AF + 4 * t, 4)}, v{GW.RA + t} offset:{slot * GS_SLOT}")
    for n in range(5):
        off = slot * GS_SLOT + n * 32
        a(f"ds_read_b64_tr_b16 {vr(GW.WF + 4 * n, 2)}, v{GW.RW} offset:{off}")
        a(f"ds_read_b64_tr_b16 {vr(GW.WF + 4 * n + 2, 2)}, v{GW.RW} offset:{off + 640}")
    a("s_waitcnt lgkmcnt(0)")
    pieces = list(pieces)
    i = 0
    for n in range(5):
        for t in range(4):
            d = GW.ACC + 4 * (n * 4 + t)
            c = "0" if first else vr(d, 4)
            a(f"v_mfma_f32_16x16x32_bf16 {vr(d, 4)}, {vr(GW.WF + 4 * n, 4)}, {vr(GW.AF + 4 * t, 4)}, {c}")
            i += 1
            if pieces and i % XP_FB == 0:
                for x in pieces.pop(0):
                    a(x)
    for p in pieces:
        for x in p:
            a(x)


def wmap(a, dst, sC0B):
    a("v_mul_u32_u24 v3, 6554, v2")
    a("v_lshrrev_b32 v3, 16, v3")
    a("v_mul_u32_u24 v15, 10, v3")
    a("v_sub_u32 v2, v2, v15")
    a("v_lshrrev_b32 v15, 1, v3")
    a("v_and_b32 v15, 4, v15")
    a("v_xor_b32 v3, v3, v15")
    a("v_lshlrev_b32 v2, 4, v2")
    a("v_mul_u32_u24 v3, 1280, v3")
    a(f"v_add3_u32 v{dst}, v2, v3, s{sC0B}")


def wread_addr(a, d0, d1, sBase):
    a("v_lshlrev_b32 v2, 3, v22")
    a("v_lshrrev_b32 v3, 2, v23")
    a("v_add_u32 v2, v2, v3")
    a("v_mul_u32_u24 v2, 160, v2")
    a("v_and_b32 v3, 3, v23")
    a("v_lshlrev_b32 v3, 3, v3")
    a(f"v_add3_u32 v2, v2, v3, s{sBase}")
    a("v_and_b32 v3, 1, v22")
    a("v_mul_u32_u24 v3, 640, v3")
    a(f"v_add_u32 v{d0}, v2, v3")
    a("v_sub_u32 v2, v2, v3")
    a(f"v_add_u32 v{d1}, 640, v2")


class VmQ:
    def __init__(self, a):
        self.a = a
        self.q = []

    def op(self, txt, tag):
        self.a(txt)
        self.q.append(tag)

    def wait(self, tag):
        idx = [i for i, t in enumerate(self.q) if t == tag]
        if not idx:
            return
        n = len(self.q) - 1 - idx[-1]
        self.a(f"s_waitcnt vmcnt({min(n, 63)})")
        if n <= 63:
            self.q = self.q[idx[-1] + 1:]


def k2_tail(a):
    a("s_load_dwordx2 s[4:5], s[0:1], 56")
    a("s_setprio 0")
    prof(a, 19)
    srd_off(a, 32, 8, 9, WS_G, SZ_G)
    a("s_lshr_b32 s40, s2, 5")
    a("s_lshl_b32 s40, s40, 13")
    srd_off(a, 24, 8, 9, WS_CNT, 65536)
    a("v_mov_b32 v4, 0")
    a("s_cmp_lg_u32 s38, 0")
    a("s_cbranch_scc1 K2_T1")
    a("v_mov_b32 v2, 1")
    a("v_lshlrev_b32 v3, 8, v1")
    a("s_mov_b32 exec_hi, 0")
    a("buffer_atomic_add v2, v3, s[24:27], s40 offen")
    a("s_mov_b32 exec_hi, -1")
    a.label("K2_T1")
    a("s_lshl_b32 s40, s2, 8")
    tile_map(a, 36, 37)
    a("v_lshrrev_b32 v22, 4, v1")
    a("v_and_b32 v23, 15, v1")
    a("s_lshl_b32 s39, s36, 6")
    a("s_and_b32 s49, s38, 3")
    a("s_lshr_b32 s50, s38, 2")
    a("s_mul_i32 s41, s37, 160")
    a("s_lshl_b32 s42, s36, 2")
    a("s_add_u32 s42, s42, s49")
    a("s_mul_i32 s42, s42, 20480")
    a("s_lshl_b32 s43, s50, 11")
    a("s_add_u32 s42, s42, s43")
    a("s_lshl_b32 s43, s49, 4")
    a("v_add_u32 v2, s43, v23")
    a("v_add_u32 v3, s39, v2")
    a("v_lshlrev_b32 v5, 2, v3")
    a("v_mul_u32_u24 v2, 160, v2")
    a("v_lshl_add_u32 v2, v22, 3, v2")
    a("s_mul_i32 s43, s50, 96")
    a(f"s_add_u32 s43, s43, {K2_OST}")
    a("v_add_u32 v17, s43, v2")
    a("s_mul_i32 s43, s49, 2560")
    a("s_mul_i32 s44, s50, 1536")
    a("s_add_u32 s43, s43, s44")
    a(f"s_add_u32 s43, s43, {K2_B}")
    a("v_lshlrev_b32 v2, 3, v1")
    a("v_add_u32 v6, s43, v2")
    for j in range(2):
        a("s_mul_i32 s43, s38, 80")
        a(f"s_add_u32 s43, s43, {64 * j}")
        a("v_add_u32 v2, s43, v1")
        a("v_mul_u32_u24 v3, 6554, v2")
        a("v_lshrrev_b32 v3, 16, v3")
        a("v_mul_u32_u24 v15, 10, v3")
        a("v_sub_u32 v15, v2, v15")
        a("v_lshlrev_b32 v15, 4, v15")
        a("v_add_u32 v3, s39, v3")
        a("v_mul_u32_u24 v3, 1280, v3")
        a(f"v_add3_u32 v{12 + j}, v3, v15, s41")
        a("v_lshlrev_b32 v2, 4, v2")
        a(f"v_add_u32 v{8 + j}, {K2_OST}, v2")
    RW = 28
    a("s_mul_i32 s43, s50, 10240")
    a(f"s_add_u32 s43, s43, {K2_W4}")
    wread_addr(a, RW, RW + 1, 43)
    a(f"v_add_u32 v{RW + 2}, {3 * 20480}, v{RW}")
    a(f"v_add_u32 v{RW + 3}, {3 * 20480}, v{RW + 1}")
    a("s_mul_i32 s43, s49, 5120")
    a(f"s_add_u32 s43, s43, {K2_XCH}")
    a("v_add_u32 v21, s43, v16")
    AF = 32
    WF = (72, 92)
    ACC = 112
    BV = 132

    def reads(t):
        st, i = t >> 1, t & 1
        pos = (st + 1) % 5
        hi = 1 if pos >= 3 else 0
        so = (pos - 3 * hi) * 20480
        r = []
        for n in range(5):
            off = so + i * 5120 + n * 32
            r.append(f"ds_read_b64_tr_b16 {vr(WF[i] + 4 * n, 2)}, v{RW + 2 * hi} offset:{off}")
            r.append(f"ds_read_b64_tr_b16 {vr(WF[i] + 4 * n + 2, 2)}, v{RW + 2 * hi + 1} offset:{off}")
        return r

    def mf(t):
        for n in range(5):
            d = ACC + 4 * n
            c = "0" if t == 0 else vr(d, 4)
            a(f"v_mfma_f32_16x16x32_bf16 {vr(d, 4)}, {vr(WF[t & 1] + 4 * n, 4)}, {vr(AF + 4 * t, 4)}, {c}")

    a("s_waitcnt lgkmcnt(0)")
    srd(a, 16, 4, 5, SZ_OUT)
    for r in reads(0) + reads(1):
        a(r)
    a("s_barrier")
    a("s_cmp_lt_u32 s38, 4")
    a("s_cbranch_scc1 K2_T15")
    for n in range(5):
        a(f"ds_read_b128 {vr(AF + 4 * n, 4)}, v150 offset:{n * 1024}")
    for n in range(5):
        d = GW.ACC + 16 * n
        a(f"s_waitcnt lgkmcnt({4 - n})")
        for e in (0, 2):
            a(f"v_pk_add_f32 {vr(d + e, 2)}, {vr(d + e, 2)}, {vr(AF + 4 * n + e, 2)}")
        a(f"v_cvt_pk_bf16_f32 v{d}, v{d}, v{d + 1}")
        a(f"v_cvt_pk_bf16_f32 v{d + 1}, v{d + 2}, v{d + 3}")
    for n in range(5):
        a(f"ds_write_b64 v151, {vr(GW.ACC + 16 * n, 2)} offset:{512 * n}")
    a("s_waitcnt lgkmcnt(0)")
    a.label("K2_T15")
    a("s_cmp_lg_u32 s38, 0")
    a("s_cbranch_scc1 K2_T3")
    a("s_mov_b32 s43, 0")
    a.label("K2_T2")
    a("buffer_load_dword v2, v4, s[24:27], s40 offen sc1")
    a("s_add_u32 s43, s43, 1")
    a("s_waitcnt vmcnt(0)")
    a("v_readfirstlane_b32 s44, v2")
    a("s_cmp_ge_u32 s44, 32")
    a("s_cbranch_scc1 K2_T3")
    a("s_sleep 2")
    a("s_cmp_lt_u32 s43, 0x20000")
    a("s_cbranch_scc1 K2_T2")
    a.label("K2_T3")
    a("s_waitcnt vmcnt(0)")
    a("s_barrier")
    prof(a, 20)
    for t in range(10):
        st, i = t >> 1, t & 1
        if i == 0 and st:
            a("s_add_u32 s42, s42, 4096")
        a(f"buffer_load_dwordx4 {vr(AF + 4 * t, 4)}, v16, s[20:23], s42 offen offset:{1024 * i} sc1")
    a("buffer_load_dword v18, v5, s[32:35], 0 offen sc1")
    for n in range(3):
        a(f"ds_read_b64 {vr(BV + 2 * n, 2)}, v6 offset:{512 * n}")
    for t in range(10):
        a(f"s_waitcnt vmcnt({10 - t}) lgkmcnt({10 if 1 <= t < 9 else 0})")
        mf(t)
        if t + 2 < 10:
            for r in reads(t + 2):
                a(r)
    prof(a, 21)
    a("s_waitcnt vmcnt(0)")
    a("v_sub_f32 v19, 1.0, v18")
    a("v_cvt_pk_bf16_f32 v19, v19, v19")
    a("v_lshlrev_b32 v19, 16, v19")
    a("s_nop 7")
    XR = 72
    a("s_cmp_eq_u32 s50, 0")
    a("s_cbranch_scc0 K2_X1")
    for n in (3, 4):
        a(f"ds_write_b128 v21, {vr(ACC + 4 * n, 4)} offset:{1024 * n}")
    a("s_waitcnt lgkmcnt(0)")
    a("s_barrier")
    for n in range(3):
        a(f"ds_read_b128 {vr(XR + 4 * n, 4)}, v21 offset:{1024 * n}")
    a("s_branch K2_FIN")
    a.label("K2_X1")
    for n in range(3):
        a(f"ds_write_b128 v21, {vr(ACC + 4 * n, 4)} offset:{1024 * n}")
    a("s_waitcnt lgkmcnt(0)")
    a("s_barrier")
    for n in (3, 4):
        a(f"ds_read_b128 {vr(XR + 4 * (n - 3), 4)}, v21 offset:{1024 * n}")
    for i in range(8):
        a(f"v_mov_b32 v{ACC + i}, v{ACC + 12 + i}")
    a.label("K2_FIN")
    a("s_waitcnt lgkmcnt(0)")
    for n in range(3):
        if n == 2:
            a("s_cmp_eq_u32 s50, 0")
            a("s_cbranch_scc0 K2_CP")
        for i in range(4):
            a(f"v_add_f32 v{ACC + 4 * n + i}, v{ACC + 4 * n + i}, v{XR + 4 * n + i}")
        for h in range(2):
            e = ACC + 4 * n + 2 * h
            bp = BV + 2 * n + h
            a(f"v_cvt_pk_bf16_f32 v24, v{e}, v{e + 1}")
            a("v_lshlrev_b32 v4, 16, v24")
            a("v_and_b32 v5, 0xffff0000, v24")
            a(f"v_lshlrev_b32 v6, 16, v{bp}")
            a(f"v_and_b32 v7, 0xffff0000, v{bp}")
            a("v_mul_f32 v4, v18, v4")
            a("v_mul_f32 v5, v18, v5")
            a("v_mul_f32 v6, v19, v6")
            a("v_mul_f32 v7, v19, v7")
            a("v_cvt_pk_bf16_f32 v24, v4, v5")
            a("v_cvt_pk_bf16_f32 v20, v6, v7")
            a("v_lshlrev_b32 v4, 16, v24")
            a("v_and_b32 v5, 0xffff0000, v24")
            a("v_lshlrev_b32 v6, 16, v20")
            a("v_and_b32 v7, 0xffff0000, v20")
            a("v_add_f32 v4, v4, v6")
            a("v_add_f32 v5, v5, v7")
            a(f"v_cvt_pk_bf16_f32 v{bp}, v4, v5")
        a(f"ds_write_b64 v17, {vr(BV + 2 * n, 2)} offset:{32 * n}")
    a.label("K2_CP")
    a("s_waitcnt lgkmcnt(0)")
    a("s_barrier")
    a("ds_read_b128 v[32:35], v8")
    a("ds_read_b128 v[36:39], v9")
    a("s_waitcnt lgkmcnt(1)")
    a("buffer_store_dwordx4 v[32:35], v12, s[16:19], 0 offen")
    a("v_cmp_gt_u32 vcc, 16, v1")
    a("s_and_saveexec_b64 s[50:51], vcc")
    a("s_waitcnt lgkmcnt(0)")
    a("buffer_store_dwordx4 v[36:39], v13, s[16:19], 0 offen")
    a("s_mov_b64 exec, s[50:51]")


W2V = 152
WOV = 240


def gw_piecesA(slot):
    g = []
    for i in range(4):
        g.append(([f"s_add_u32 m0, s41, {slot * GS_SLOT}", "s_nop 0"] if i == 0 else []) +
                 [f"buffer_load_dwordx4 v{GW.VA}, s[24:27], s45 offen offset:{1024 * i} sc1 lds"] +
                 (["s_add_u32 s45, s45, 4096"] if i == 3 else []))
    return g


def gw_piecesW(slot):
    g = []
    for i in range(4):
        g.append(([f"s_add_u32 m0, s41, {slot * GS_SLOT + 4096}", "s_nop 0"] if i == 0 else []) +
                 [f"buffer_load_dwordx4 v{W2V + i}, s[16:19], s46 offen offset:{1024 * i} lds"])
    g.append([f"s_add_u32 m0, s41, {slot * GS_SLOT + 8192}", "s_nop 0",
              f"buffer_load_dwordx4 v{W2V + 4}, s[16:19], s46 offen lds",
              "s_add_u32 s46, s46, 40960"])
    return g


def tile_map(a, sRt, sCt):
    a("s_lshr_b32 s60, s2, 6")
    a("s_lshl_b32 s60, s60, 2")
    a("s_bfe_u32 s61, s2, 0x20001")
    a("s_add_u32 s60, s60, s61")
    a("s_bfe_u32 s61, s2, 0x10005")
    a("s_lshl_b32 s61, s61, 4")
    a(f"s_add_u32 s{sRt}, s60, s61")
    a("s_and_b32 s60, s2, 1")
    a("s_lshl_b32 s60, s60, 2")
    a("s_bfe_u32 s61, s2, 0x20003")
    a(f"s_add_u32 s{sCt}, s60, s61")


def head_map(a):
    a("s_and_b32 s3, s2, 7")
    a("s_lshl_b32 s3, s3, 2")
    a("s_bfe_u32 s36, s2, 0x20003")
    a("s_add_u32 s36, s3, s36")
    a("s_bfe_u32 s3, s2, 0x10005")
    a("s_lshl_b32 s3, s3, 2")
    a("s_lshr_b32 s37, s2, 6")
    a("s_add_u32 s37, s37, s3")


def poll(a, name, load, check, cnt=43, slp=2):
    a(f"s_mov_b32 s{cnt}, 0")
    a.label(name)
    a(load)
    a(f"s_add_u32 s{cnt}, s{cnt}, 1")
    a("s_waitcnt vmcnt(0)")
    for x in check:
        a(x)
    a(f"s_sleep {slp}")
    a(f"s_cmp_lt_u32 s{cnt}, 0x20000")
    a(f"s_cbranch_scc1 {name}")
    a.label(name + "_OK")


def att_init():
    g = []
    x = []
    head_map(x.append)
    srd_off(x.append, 20, 8, 9, WS_O, SZ_O)
    x += ["s_mov_b32 s39, 0",
          "s_mul_i32 s3, s38, 3072", f"s_add_u32 s3, s3, {K2_QF}", "v_add_u32 v11, s3, v1",
          "v_bfe_u32 v4, v1, 4, 5", "v_lshrrev_b32 v5, 9, v1",
          "v_lshlrev_b32 v2, 3, v4",
          "v_lshl_add_u32 v12, v5, 8, v2",
          f"v_add_u32 v2, {8192 + 1280}, v2",
          f"v_mov_b32 v3, {8192 + 1536}",
          "v_cmp_eq_u32 vcc, 0, v5",
          "v_mul_u32_u24 v0, 320, v5",
          "v_cndmask_b32 v13, v3, v2, vcc",
          "v_lshl_add_u32 v2, v4, 4, v0",
          "v_cmp_gt_u32 vcc, 20, v4",
          "v_add_u32 v14, 8192, v2",
          f"v_add_u32 v15, {8192 + 640}, v2",
          f"v_mov_b32 v3, {8192 + 1552}",
          "v_cndmask_b32 v14, v3, v14, vcc",
          "v_cndmask_b32 v15, v3, v15, vcc"]
    z = zero_regs()
    g.append((88, x + z[:8]))
    g.append((132, z[8:]))
    return g


def zero_regs():
    x = [f"v_mov_b32 v{PA + 4 + i}, 0" for i in range(4)] + [f"v_mov_b32 v{PB + 4 + i}, 0" for i in range(4)]
    x += [f"v_mov_b32 v{OA + i}, 0" for i in range(32)]
    x += [f"v_mov_b32 v{V2[1] + i}, 0" for i in range(4)]
    return x


def kernel():
    a = Asm()
    plan = pa_plan()
    loads, mfs, bars, g0 = plan
    NM = len(mfs)
    a.label(NAME + "_kernel")
    if PROF:
        a("s_memtime s[86:87]")
    a("s_cmp_ge_u32 s2, 256")
    a("s_cbranch_scc1 K_END")
    a("s_load_dwordx2 s[4:5], s[0:1], 0")
    a("s_load_dwordx2 s[6:7], s[0:1], 8")
    a("s_load_dwordx2 s[8:9], s[0:1], 72")
    a("s_load_dwordx2 s[10:11], s[0:1], 32")
    a("s_load_dwordx2 s[80:81], s[0:1], 64")
    a("s_load_dwordx2 s[40:41], s[0:1], 40")
    a("s_load_dwordx2 s[42:43], s[0:1], 16")
    a("v_and_b32 v1, 63, v0")
    a("v_lshrrev_b32 v2, 6, v0")
    if XP_MAP == 0:
        a("s_bfe_u32 s24, s2, 0x20001")
        a("s_lshl_b32 s24, s24, 2")
        a("s_bfe_u32 s3, s2, 0x20003")
        a("s_add_u32 s24, s24, s3")
        a("s_lshr_b32 s3, s2, 5")
        a("s_and_b32 s27, s2, 1")
        a("s_lshl_b32 s25, s27, 3")
        a("s_add_u32 s25, s25, s3")
        a("s_mul_i32 s34, s27, 6")
        a("s_add_u32 s34, s34, s3")
        a("s_lshl_b32 s34, s34, 1")
        a("s_add_u32 s35, s34, 1")
        a("s_lshl_b32 s27, s27, 1")
        a("s_add_u32 s27, s27, s3")
        a("s_add_u32 s27, s27, 18")
        a("s_cmp_lt_u32 s3, 6")
    else:
        a("s_bfe_u32 s24, s2, 0x10002")
        a("s_lshl_b32 s24, s24, 3")
        a("s_bfe_u32 s3, s2, 0x30003" if XP_MAP == 1 else "s_lshr_b32 s3, s2, 5")
        a("s_add_u32 s24, s24, s3")
        a("s_lshr_b32 s3, s2, 6" if XP_MAP == 1 else "s_bfe_u32 s3, s2, 0x20003")
        a("s_and_b32 s27, s2, 3")
        a("s_lshl_b32 s25, s27, 2")
        a("s_add_u32 s25, s25, s3")
        a("s_mul_i32 s34, s27, 3")
        a("s_add_u32 s34, s34, s3")
        a("s_lshl_b32 s34, s34, 1")
        a("s_add_u32 s35, s34, 1")
        a("s_add_u32 s27, s27, 24")
        a("s_cmp_lt_u32 s3, 3")
    a("s_cselect_b32 s35, s35, s27")
    a("s_cselect_b32 s33, 1, 0")
    a("v_readfirstlane_b32 s38, v2")
    a("s_cmp_eq_u32 s25, 15")
    a("s_cbranch_scc1 K_SPARE")
    a("s_cmp_lt_u32 s38, 4")
    a("s_cbranch_scc1 PA_COMP")
    a("s_sub_u32 s38, s38, 4")
    a("s_lshl_b32 s47, s38, 10")
    a("v_lshrrev_b32 v2, 3, v1")
    a("v_and_b32 v3, 7, v1")
    a("s_lshl_b32 s3, s38, 3")
    a("v_add_u32 v2, s3, v2")
    a("v_bfe_u32 v16, v2, 1, 3")
    a("v_xor_b32 v16, v16, v3")
    a("s_mul_i32 s3, s24, 163840")
    a("v_mul_u32_u24 v17, 1280, v2")
    a("v_lshl_add_u32 v16, v16, 4, s3")
    a("v_add_u32 v4, v16, v17")
    for b in range(1, 4):
        a(f"v_add_u32 v{4 + b}, 40960, v{3 + b}")
    a("v_bfe_u32 v16, v1, 4, 1")
    a("v_lshlrev_b32 v16, 2, v16")
    a("v_xor_b32 v3, v3, v16")
    a("v_lshlrev_b32 v3, 4, v3")
    a("s_lshl_b32 s3, s25, 8")
    a("v_mul_u32_u24 v16, 3840, v2")
    a("v_add3_u32 v8, v16, v3, s3")
    a("v_add_u32 v9, 128, v8")
    a(f"v_add_u32 v10, {32 * 3840}, v8")
    a(f"v_add_u32 v11, {32 * 3840}, v9")
    a("s_add_u32 s3, s24, s25")
    a("s_mul_i32 s27, s3, 205")
    a("s_lshr_b32 s27, s27, 11")
    a("s_mul_i32 s27, s27, 10")
    a("s_sub_u32 s3, s3, s27")

    def tables(ws):
        for w in ws:
            a(f"s_lshl_b32 s{70 + w}, s3, 7")
            a(f"s_mul_i32 s{60 + w}, s3, {64 * 3840}")
            if w < 9:
                a("s_add_u32 s3, s3, 1")
                a("s_cmp_eq_u32 s3, 10")
                a("s_cselect_b32 s3, 0, s3")
    tables((0, 1))
    a("s_waitcnt lgkmcnt(0)")
    srd(a, 12, 4, 5, SZ_X)
    srd(a, 16, 6, 7, SZ_WQKV)

    def hst(slot):
        if PROF:
            a("s_memtime s[88:89]")
            a("s_waitcnt lgkmcnt(0)")
            a(f"v_mov_b32 v{96 + slot}, s88")

    def touch_setup():
        if not XP_TCH:
            return
        srd(a, 20, 40, 41, SZ_W2)
        srd(a, 24, 42, 43, SZ_WO)
        a("s_and_b32 s3, s2, 1")
        a("s_lshl_b32 s3, s3, 2")
        a("s_bfe_u32 s32, s2, 0x20003")
        a("s_add_u32 s32, s32, s3")
        a("s_mul_i32 s32, s32, 160")
        a("s_lshr_b32 s37, s2, 5")
        a(f"s_mul_i32 s36, s37, {216 * 1280}")
        a(f"s_mul_i32 s37, s37, {80 * 1280}")
        a("v_and_b32 v16, 255, v0")
        a("v_lshrrev_b32 v17, 1, v16")
        a("v_mul_u32_u24 v17, 1280, v17")
        a("v_and_b32 v18, 1, v16")
        a("v_mul_u32_u24 v18, 156, v18")
        a("v_add3_u32 v20, v17, v18, s32")
        a(f"v_add_u32 v17, {128 * 1280}, v20")
        a("v_bfrev_b32 v18, 1")
        a("v_cmp_gt_u32 vcc, 176, v16")
        a("v_cndmask_b32 v21, v18, v17, vcc")
        a("v_cmp_gt_u32 vcc, 160, v16")
        a("v_cndmask_b32 v22, v18, v20, vcc")

    def touch():
        if XP_TCH:
            a("buffer_load_dword v23, v20, s[20:23], s36 offen")
            a("buffer_load_dword v23, v21, s[20:23], s36 offen")
            a("buffer_load_dword v23, v22, s[24:27], s37 offen")

    freebar = pa_compute(Asm(), "v", plan, 0, NM, {})
    if PROF:
        a("v_mov_b32 v96, s86")
    hg = pa_helper(a, plan, freebar, hst, touch)
    next(hg)
    tables(range(2, 10))
    for w in range(10):
        a(f"s_mul_i32 s{48 + w}, s{70 + w}, {64 * 3456 // 128}")
    srd(a, 28, 10, 11, SZ_W1)
    srd(a, 80, 80, 81, 256)
    a("v_mul_u32_u24 v16, 3456, v2")
    a("v_add_u32 v16, v16, v3")
    a("s_lshl_b32 s3, s34, 7")
    a("s_cmp_eq_u32 s33, 0")
    a("s_cselect_b32 s3, 0x40000000, s3")
    a("v_add_u32 v12, s3, v16")
    a(f"v_add_u32 v13, {32 * 3456}, v12")
    a("s_lshl_b32 s3, s35, 7")
    a("v_add_u32 v14, s3, v16")
    a(f"v_add_u32 v15, {32 * 3456}, v14")
    a("s_lshl_b32 s85, s24, 9")
    a(f"s_add_u32 s85, s85, {CNT_H}")
    a("s_mov_b32 s39, -1")
    a("s_lshl_b32 s3, s38, 12")
    a("v_mov_b32 v26, s3")
    touch_setup()
    for _ in hg:
        pass
    a("s_branch H_POST")
    a.label("PA_COMP")
    a("s_setprio 2")
    a("v_and_b32 v2, 31, v1")
    a("v_lshrrev_b32 v0, 5, v1")
    a("v_bfe_u32 v3, v2, 1, 3")
    a("v_xor_b32 v3, v3, v0")
    a("v_lshlrev_b32 v3, 4, v3")
    a("v_lshl_add_u32 v3, v2, 7, v3")
    a("s_lshl_b32 s3, s38, 12")
    a(f"v_add_u32 v{XB}, s3, v3")
    a("v_bfe_u32 v3, v1, 2, 2")
    a("v_lshl_add_u32 v3, v0, 3, v3")
    a("v_bfe_u32 v13, v1, 4, 1")
    a("v_bfe_u32 v14, v1, 1, 1")
    a("v_lshl_add_u32 v13, v13, 1, v14")
    a("v_bfe_u32 v14, v1, 3, 1")
    a("v_lshl_add_u32 v13, v14, 2, v13")
    a("v_lshlrev_b32 v13, 4, v13")
    a("v_lshl_add_u32 v3, v3, 7, v13")
    a("v_and_b32 v13, 1, v1")
    a(f"v_lshl_add_u32 v{WB[0]}, v13, 3, v3")
    a(f"v_xor_b32 v{WB[1]}, 64, v{WB[0]}")
    for j in range(2):
        a(f"v_add_u32 v{WB[2 + j]}, 0x10000, v{WB[j]}")
        a(f"v_add_u32 v{WB[4 + j]}, 0x18000, v{WB[j]}")
    a("s_lshl_b32 s26, s24, 2")
    a("s_add_u32 s26, s26, s38")
    a("s_lshr_b32 s27, s26, 3")
    a(f"s_mul_i32 s27, s27, {KV_STG}")
    a(f"s_add_u32 s27, s27, {WS_KV}")
    a("s_and_b32 s32, s26, 7")
    a("s_lshr_b32 s3, s26, 1")
    a("s_mul_i32 s3, s3, 27")
    a("s_add_u32 s76, s3, s34")
    a("s_add_u32 s77, s3, s35")
    a("s_and_b32 s3, s26, 1")
    a("s_lshl_b32 s3, s3, 11")
    a("s_lshl_b32 s76, s76, 13")
    a("s_lshl_b32 s77, s77, 13")
    a("s_add_u32 s76, s76, s3")
    a("s_add_u32 s77, s77, s3")
    a("s_mul_i32 s76, s76, s33")
    a("s_mov_b32 s79, s25")
    a("s_mov_b32 s78, s26")
    a("s_waitcnt lgkmcnt(0)")
    srd(a, 20, 8, 9, WS_KV + SZ_KV)
    srd_off(a, 28, 8, 9, WS_H, SZ_H)
    a("s_mov_b32 s24, s28")
    a("s_mov_b32 s25, s29")
    a(f"s_mov_b32 s26, {SZ_H}")
    a("s_mul_i32 s30, s30, s33")
    prof_init(a, 38)
    if PROF:
        a("v_mov_b32 v13, s86")
        a("v_mov_b32 v14, 0")
        a("buffer_store_dword v13, v14, s[92:95], s91 offen offset:120")
        prof(a, 0, 13, real=28)
    a("s_or_b32 s3, s2, s38")
    a("s_cbranch_scc1 PA_NZ")
    srd_off(a, 44, 8, 9, WS_CNT, SZ_CNT)
    srd(a, 80, 80, 81, 256)
    a("v_lshlrev_b32 v13, 8, v1")
    a("v_mov_b32 v14, 0")
    for i in range((SZ_CNT + 16383) // 16384):
        a(f"s_mov_b32 s3, {16384 * i}")
        a("buffer_store_dword v14, v13, s[44:47], s3 offen sc1")
    a("v_mov_b32 v13, 1")
    a("s_waitcnt vmcnt(0)")
    a("s_mov_b64 exec, 1")
    a("buffer_store_dword v13, v14, s[80:83], 0 offen sc1")
    a("s_mov_b64 exec, -1")
    a.label("PA_NZ")
    srd_off(a, 12, 8, 9, WS_CNT, SZ_CNT)
    a("s_mul_i32 s3, s79, 205")
    a("s_lshr_b32 s3, s3, 10")
    a("s_cmp_eq_u32 s3, 0")
    a("s_cselect_b32 s81, 0x10000, 1")
    a("s_mul_i32 s3, s3, 5")
    a("s_sub_u32 s3, s79, s3")
    a("s_movk_i32 s82, 0x7f")
    a("s_cmp_eq_u32 s3, 2")
    a("s_cselect_b32 s82, 0xff, s82")
    a("s_mov_b32 s83, 0")
    a("s_mul_i32 s16, s3, 6560")
    a("s_lshr_b32 s16, s16, 10")
    a("s_lshl_b32 s80, s16, 11")
    a("s_lshr_b32 s3, s78, 3")
    a("s_lshl_b32 s3, s3, 8")
    a("s_add_u32 s80, s80, s3")
    a(f"s_add_u32 s80, s80, {CNT_Q}")
    a("s_cmp_ge_u32 s79, 10")
    a("s_cbranch_scc1 PA_V")
    a("s_lshl_b32 s34, s32, 10")
    a("s_add_u32 s34, s34, s27")
    a("s_mul_i32 s35, s32, 1664")
    a("s_add_u32 s35, s35, s27")
    a(f"s_add_u32 s35, s35, {8192 + 1280}")
    a("s_mul_i32 s36, s78, 1280")
    a("s_add_u32 s37, s36, 1024")
    a("s_sub_u32 s3, s79, 5")
    a(f"s_mov_b32 s39, {HEAD_KV}")
    a("s_cmp_lt_u32 s79, 5")
    a("s_cselect_b32 s3, s79, s3")
    a(f"s_cselect_b32 s78, {f32bits(C_SCALE)}, 1.0")
    a(f"s_cselect_b32 s39, {HEAD_Q}, s39")
    a("s_cselect_b32 s34, s36, s34")
    a("s_cselect_b32 s35, s37, s35")
    a("s_mov_b32 s27, 0x00020000")
    a("s_lshl_b32 s3, s3, 5")
    a("v_add_u32 v3, s3, v2")
    a("v_mul_u32_u24 v13, 205, v3")
    a("v_lshrrev_b32 v13, 10, v13")
    a("v_mul_u32_u24 v14, 5, v13")
    a("v_sub_u32 v3, v3, v14")
    a("v_cmp_eq_u32 vcc, 4, v3")
    a("v_lshl_add_u32 v3, v3, 8, s34")
    a("v_mov_b32 v14, s35")
    a("v_mul_lo_u32 v13, v13, s39")
    a("v_cndmask_b32 v3, v3, v14, vcc")
    a("v_add_u32 v3, v3, v13")
    a("v_lshlrev_b32 v15, 3, v2")
    a("v_lshlrev_b32 v1, 4, v1")
    for i in range(16):
        a(f"v_readlane_b32 s{44 + i}, v3, {2 * i}")
        a(f"v_readlane_b32 s{60 + i}, v3, {2 * i + 1}")
    for i in range(16):
        a(f"s_sub_u32 s{60 + i}, s{60 + i}, s{44 + i}")
    pa_compute(a, "q", plan, 0, g0 - 16, {})
    a("s_cmp_ge_u32 s79, 5")
    a("s_cbranch_scc1 PA_K")
    pa_compute(a, "q", plan, g0 - 16, g0 + PA_JOIN, {})
    a("s_branch PA_JOIN")
    a.label("PA_K")
    pa_compute(a, "k", plan, g0 - 16, g0 + PA_JOIN, {})
    a("s_branch PA_JOIN")
    a.label("PA_V")
    a("s_mul_i32 s45, s32, 1664")
    a("s_add_u32 s45, s45, s27")
    a("s_add_u32 s45, s45, 8192")
    a("s_mov_b32 s27, 0x00020000")
    a(f"s_mov_b32 s44, {HEAD_KV - 320}")
    a("s_sub_u32 s3, s79, 10")
    a("s_lshl_b32 s3, s3, 7")
    a("v_add_u32 v15, s3, v2")
    a("v_mul_u32_u24 v0, 320, v0")
    a("v_lshrrev_b32 v13, 1, v1")
    a("v_add_u32 v13, s16, v13")
    a(f"v_mul_u32_u24 v13, {HEAD_KV}, v13")
    a("v_and_b32 v14, 1, v1")
    a("v_lshl_add_u32 v13, v14, 4, v13")
    a("v_cmp_eq_u32 vcc, 1, v14")
    a("v_mov_b32 v32, 0x3f803f80")
    a("v_mov_b32 v14, 0x00003f80")
    a("v_cndmask_b32 v33, v14, v32, vcc")
    a("v_cndmask_b32 v34, 0, v32, vcc")
    a("v_mov_b32 v35, v34")
    a("s_mov_b64 exec, 0xffff")
    a("buffer_store_dwordx4 v[32:35], v13, s[20:23], s45 offen offset:1536 sc1")
    a("s_mov_b64 exec, -1")
    a("v_lshlrev_b32 v1, 4, v1")
    extra = {}
    for ks, ops in att_init():
        extra[g0 + ks] = ops
    pa_compute(a, "v", plan, 0, NM, extra)
    prof(a, 9)
    if PROF:
        for i in range(13):
            a(f"v_mov_b32 v2, s{44 + i}")
            a(f"buffer_store_dword v2, v3, s[92:95], s91 offen offset:{4 * (32 + i)}")
            a("s_nop 1")
        for i in range(1, 9):
            a(f"v_mov_b32 v2, s{59 + i}")
            a(f"buffer_store_dword v2, v3, s[92:95], s91 offen offset:{4 * i}")
            a("s_nop 1")
    a(f"s_setprio {XP_AP}")

    def zero_m():
        a("v_cmp_eq_u32 vcc, 0, v18")
        a("s_nop 1")
        for q in (QA1, QA1 + 1, QB1, QB1 + 1):
            a(f"v_cndmask_b32 v{q}, 0, v{q}, vcc")

    def rk0(blk):
        o = 2 * (blk & 7)
        return f"ds_read2st64_b64 {vr(K0, 4)}, v12 offset0:{o} offset1:{o + 1}"

    def rk1(blk):
        return f"ds_read_b64 {vr(K1[blk & 1], 2)}, v13 offset:{(blk & 7) * 1664}"

    def rv1(blk):
        return f"ds_read_b128 {vr(V1[blk & 1], 4)}, v14 offset:{(blk & 7) * 1664}"

    def rv2(blk):
        return f"ds_read_b128 {vr(V2[blk & 1], 4)}, v15 offset:{(blk & 7) * 1664}"

    def qk1(s_, q):
        return f"v_mfma_f32_32x32x16_bf16 {vr(s_, 16)}, {vr(K0, 4)}, {vr(q, 4)}, 0"

    def qk2(s_, q, blk=0):
        return f"v_mfma_f32_32x32x8bf16_1k {vr(s_, 16)}, {vr(K1[blk & 1], 2)}, {vr(q, 2)}, {vr(s_, 16)}"

    def pv(o, v_, p):
        return f"v_mfma_f32_32x32x16_bf16 {vr(o, 16)}, {vr(v_, 4)}, {vr(p, 4)}, {vr(o, 16)}"

    def set_m2(mA, mB):
        T = (2, 3, 19), (4, 5, 6)
        for m, (t0, t1, t2) in zip((mA, mB), T):
            a(f"v_mov_b32 v{t1}, v{m}")
        a("s_nop 1")
        for m, (t0, t1, t2) in zip((mA, mB), T):
            a(f"v_permlane32_swap_b32 v{m}, v{t1}")
        a("s_nop 1")
        for m, (t0, t1, t2) in zip((mA, mB), T):
            a(f"v_max_f32 v{m}, v{m}, v{t1}")
        for m, (t0, t1, t2) in zip((mA, mB), T):
            a(f"v_and_b32 v{t1}, 0xffff0000, v{m}")
            a(f"v_sub_f32 v{t0}, v{m}, v{t1}")
            a(f"v_and_b32 v{t2}, 0xffff0000, v{t0}")
            a(f"v_sub_f32 v{t0}, v{t0}, v{t2}")
            a(f"v_lshrrev_b32 v{t1}, 16, v{t1}")
            a(f"v_or_b32 v{t1}, v{t1}, v{t2}")
            a(f"v_xor_b32 v{t1}, 0x80008000, v{t1}")
            a(f"v_lshrrev_b32 v{t0}, 16, v{t0}")
            a(f"v_xor_b32 v{t0}, 0x8000, v{t0}")
        a("v_cmp_eq_u32 vcc, 0, v18")
        a("s_nop 1")
        for q, (t0, t1, t2) in zip((QA1, QB1), T):
            a(f"v_cndmask_b32 v{q}, v{t1}, v{q}, vcc")
            a(f"v_cndmask_b32 v{q + 1}, v{t0}, v{q + 1}, vcc")

    a.label("A_B1")
    a("s_barrier")
    for i in range(3):
        a(f"ds_read_b128 {vr(QA0 + 4 * i, 4)}, v11 offset:{1024 * i}")
    a("v_mov_b32 v16, v1")
    a("v_lshrrev_b32 v1, 4, v1")
    a("v_and_b32 v17, 31, v1")
    a("v_lshrrev_b32 v18, 5, v1")
    a.label("A_GO")
    a(rk0(0))
    a(rk1(0))
    a(rv1(0))
    for i in range(4):
        a(f"v_mov_b32 v{SB + 12 + i}, 0")
    a("s_mov_b32 s40, 0")
    a(f"s_mov_b32 s41, {K2_BUF}")
    a(f"s_mov_b32 s42, {K2_BUF}")
    a(f"s_mov_b32 s43, {-2 * K2_BUF}")
    a("s_waitcnt lgkmcnt(2)")
    a(qk1(SA, QA0))
    a("s_waitcnt lgkmcnt(1)")
    a(qk2(SA, QA1))
    a("s_nop 15")
    a("s_nop 3")
    a("s_waitcnt lgkmcnt(0)")
    prof(a, 10)
    a("s_branch K2_BODY")

    def ex(s_, lo):
        return [f"v_exp_f32 v{s_ + i}, v{s_ + i}" for i in range(lo, lo + 4)]

    def cv(p, s_, lo):
        return [f"v_cvt_pk_bf16_f32 v{p + i}, v{s_ + 2 * i}, v{s_ + 2 * i + 1}" for i in range(lo, lo + 2)]

    a.label("K2_STAGE")
    a("s_barrier")
    a.label("K2_BODY")
    for blk in range(8):
        t = blk
        v2p, v1c = V2[(blk - 1) & 1], V1[blk & 1]
        mf = [pv(OA, v2p, PA + 4), qk1(SB, QB0), qk2(SB, QB1, blk), pv(OA, v1c, PA),
              pv(OB, v2p, PB + 4), qk1(SA, QA0), qk2(SA, QA1, blk + 1), pv(OB, v1c, PB)]
        nb = (blk + 1) & 7
        rd = {0: [rv2(blk), rk1(nb)], 1: [rk0(nb), rv1(nb)]}
        wt = {5: "s_waitcnt lgkmcnt(0)"}
        xtra = {}
        if t == 6:
            xtra = {2: ["v_add_u32 v13, s41, v13"], 3: ["v_add_u32 v12, s41, v12"], 6: ["v_add_u32 v14, s41, v14"]}
        if t == 7:
            xtra = {2: ["v_add_u32 v15, s41, v15"],
                    3: ["s_mov_b32 s47, s41", "s_mov_b32 s41, s42"], 4: ["s_mov_b32 s42, s43", "s_mov_b32 s43, s47"],
                    6: ["s_add_u32 s40, s40, 1"]}
        for g in range(8):
            s_ = SA if g < 4 else SB
            ps, pp = (SA, PA) if 1 <= g <= 4 else (SB, PB)
            e = ex(s_, 4 * (g % 4))
            c = cv(pp, ps, 2 * ((g - 1) % 4))
            fill = [e[0], c[0], e[1], c[1], e[2], e[3]]
            a(mf[g])
            for x in rd.get(g, []):
                a(x)
            for j, f in enumerate(fill):
                if j == XP_WP and (g + 1) % 8 in wt:
                    a(wt[(g + 1) % 8])
                if j == XP_WP:
                    for x in xtra.get(g, []):
                        a(x)
                a(f)
        if blk == XP_MID:
            a("s_or_b32 s47, s40, s39")
            a("s_cbranch_scc1 K2_NOMID")
            a("s_waitcnt vmcnt(0)")
            a("s_barrier")
            a.label("K2_NOMID")
    if PROF:
        a("s_memtime s[88:89]")
        a("s_waitcnt lgkmcnt(0)")
        a("v_mov_b32 v2, s88")
        a("s_lshl_b32 s90, s40, 2")
        a("v_mov_b32 v3, s90")
        a("buffer_store_dword v2, v3, s[92:95], s91 offen offset:40")
    a("s_cmp_lt_u32 s40, 8")
    a("s_cbranch_scc1 K2_STAGE")
    a(pv(OA, V2[1], PA + 4))
    a("s_barrier")
    for x in cv(PB, SB, 6):
        a(x)
    a("s_nop 1")
    a(pv(OB, V2[1], PB + 4))
    a("s_lshl_b32 s47, s37, 8")
    a("s_lshl_b32 s48, s38, 6")
    a("s_add_u32 s47, s47, s48")
    a("v_add_u32 v2, s47, v17")
    a("v_lshrrev_b32 v3, 4, v2")
    a("v_mul_u32_u24 v3, 20480, v3")
    a("v_and_b32 v2, 15, v2")
    a("v_lshl_add_u32 v2, v2, 4, v3")
    a("s_mul_i32 s48, s36, 20")
    a("v_lshl_add_u32 v3, v18, 2, s48")
    a("v_lshrrev_b32 v19, 3, v3")
    a("v_lshl_add_u32 v2, v19, 8, v2")
    a("v_and_b32 v3, 4, v3")
    a("v_lshl_add_u32 v10, v3, 1, v2")
    a("v_add_u32 v11, 40960, v10")
    a("v_cmp_eq_u32 vcc, 0, v18")
    a("s_mov_b64 s[52:53], vcc")
    a("s_nop 4")
    for o, p, ad in ((OA, PA, 10), (OB, PB, 11)):
        a(f"v_mov_b32 v2, v{o + 8}")
        a(f"v_mov_b32 v3, v{o + 8}")
        a("s_nop 1")
        a("v_permlane32_swap_b32 v2, v3")
        a("s_nop 1")
        a("v_rcp_f32 v3, v3")
        a(f"v_mul_f32 v{4 + (o == OB)}, 0x49800000, v{o + 8}")
        a(f"v_mul_f32 v{4 + (o == OB)}, 0, v{4 + (o == OB)}")
        for i in range(12):
            a(f"v_mul_f32 v{o + i}, v{o + i}, v3")
        for i in range(6):
            a(f"v_cvt_pk_bf16_f32 v{p + i}, v{o + 2 * i}, v{o + 2 * i + 1}")
        a(f"buffer_store_dwordx2 {vr(p, 2)}, v{ad}, s[20:23], 0 offen sc1")
        a(f"buffer_store_dwordx2 {vr(p + 2, 2)}, v{ad}, s[20:23], 0 offen offset:256 sc1")
        a("s_mov_b64 exec, s[52:53]")
        a(f"buffer_store_dwordx2 {vr(p + 4, 2)}, v{ad}, s[20:23], 0 offen offset:512 sc1")
        a("s_mov_b64 exec, -1")
    a("s_cmp_lg_u32 s39, 0")
    a("s_cbranch_scc1 K2_VOTE")
    for o, acc in ((OA, 4), (OB, 5)):
        for i in range(12):
            a(f"v_fma_f32 v{acc}, v{o + i}, 0, v{acc}")
    a("v_add_f32 v4, v4, v5")
    a("v_cmp_u_f32 vcc, v4, v4")
    a("s_nop 4")
    a("s_cbranch_vccz K2_VOTE")
    a("v_mov_b32 v2, 1")
    a(f"v_mov_b32 v3, {K2_FLAG}")
    a("ds_write_b32 v3, v2")
    a.label("K2_VOTE")
    a("s_waitcnt vmcnt(0) lgkmcnt(0)")
    a("s_barrier")
    a("s_cmp_lg_u32 s39, 0")
    a("s_cbranch_scc1 K2_TAIL")
    a(f"v_mov_b32 v3, {K2_FLAG}")
    a("ds_read_b32 v2, v3")
    a("s_waitcnt lgkmcnt(0)")
    a("v_readfirstlane_b32 s47, v2")
    a("s_cmp_eq_u32 s47, 0")
    a("s_cbranch_scc1 K2_TAIL")
    a("s_barrier")
    for i in range(4):
        a(f"v_subrev_u32 v{12 + i}, {2 * K2_BUF}, v{12 + i}")
    zero_m()
    a(f"v_mov_b32 v8, {f32bits(float('-inf'))}")
    a("v_mov_b32 v9, v8")
    a("v_mov_b32 v4, v12")
    a("v_mov_b32 v5, v13")
    a("s_mov_b32 s40, 0")
    a.label("K2_MSTAGE")
    a("s_barrier")
    for t in range(8):
        a(rk0(t).replace("v12", "v4"))
        a(rk1(t).replace("v13", "v5"))
        a("s_waitcnt lgkmcnt(0)")
        a(qk1(SA, QA0))
        a(qk1(SB, QB0))
        a(qk2(SA, QA1, t))
        a(qk2(SB, QB1, t))
        a("s_nop 15")
        a("s_nop 3")
        for s_, m in ((SA, 8), (SB, 9)):
            for i in range(0, 16, 2):
                a(f"v_max3_f32 v{m}, v{m}, v{s_ + i}, v{s_ + i + 1}")
    a("s_add_u32 s40, s40, 1")
    a(f"s_mov_b32 s47, {K2_BUF}")
    a("s_cmp_eq_u32 s40, 3")
    a(f"s_cselect_b32 s47, {-2 * K2_BUF}, s47")
    a("s_cmp_eq_u32 s40, 6")
    a(f"s_cselect_b32 s47, {-2 * K2_BUF}, s47")
    a("v_add_u32 v4, s47, v4")
    a("v_add_u32 v5, s47, v5")
    a("s_cmp_lt_u32 s40, 8")
    a("s_cbranch_scc1 K2_MSTAGE")
    set_m2(8, 9)
    a("s_mov_b32 s39, 1")
    a("s_barrier")
    for x in zero_regs():
        a(x)
    a("s_barrier")
    a("s_branch A_GO")
    a.label("K2_TAIL")
    k2_tail(a)
    prof(a, 22, real=29)
    a.label("K_END")
    a("s_endpgm")

    a.label("K_SPARE")
    a("s_load_dwordx2 s[44:45], s[0:1], 48")
    a("v_cmp_eq_u32 vcc, 63, v1")
    a("s_mov_b64 s[50:51], vcc")
    a("v_lshlrev_b32 v16, 3, v1")
    a("v_lshlrev_b32 v17, 2, v1")
    a("s_lshl_b32 s3, s24, 3")
    a("s_add_u32 s3, s3, s38")
    a("s_mul_i32 s49, s3, 20480")
    a("s_lshl_b32 s48, s3, 6")
    a("s_lshl_b32 s3, s24, 9")
    a("v_add_u32 v18, s3, v0")
    a("s_waitcnt lgkmcnt(0)")
    srd(a, 12, 4, 5, SZ_X)
    srd(a, 16, 44, 45, 1280)
    srd_off(a, 28, 8, 9, WS_G, SZ_G)
    srd_off(a, 52, 8, 9, WS_CNT, SZ_CNT)
    srd(a, 80, 80, 81, 256)
    prof_init(a, 38)
    if PROF:
        a("v_mov_b32 v13, s86")
        a("v_mov_b32 v14, 0")
        a("buffer_store_dword v13, v14, s[92:95], s91 offen offset:120")
        prof(a, 0, 13, real=28)
        a("v_mov_b32 v96, s86")

    def rowld(b, sd, so, o):
        a(f"buffer_load_dwordx2 {vr(b, 2)}, v16, {sr(sd, 4)}, {so} offen offset:{o}")
        a(f"buffer_load_dwordx2 {vr(b + 2, 2)}, v16, {sr(sd, 4)}, {so} offen offset:{o + 512}")
        a(f"buffer_load_dword v{b + 4}, v17, {sr(sd, 4)}, {so} offen offset:{o + 1024}")
    rowld(24, 16, "0", 0)
    for p in range(8):
        rowld(136 + 12 * p, 12, "s49", 0)
        rowld(142 + 12 * p, 12, "s49", 1280)
        a("s_add_u32 s49, s49, 2560")
    n0 = a.nvm
    for p in range(8):
        a(f"s_waitcnt vmcnt({a.nvm - n0 + 6 * (7 - p)})")
        if p == 0:
            gate_unpack(a, 24, 32)
        gate_compute2(a, 136 + 12 * p, 142 + 12 * p, 32, 44, 48, 8 * p, 28)
    a("s_lshl_b32 s3, s24, 1")
    a(f"s_add_u32 s3, s3, {CNT_H // 256}")
    a("v_add_u32 v24, s3, v1")
    a("v_mov_b32 v26, 0")
    a("v_lshlrev_b32 v24, 8, v24")
    a("v_mov_b32 v25, 1")
    touch_setup()
    a("s_cmp_lg_u32 s38, 0")
    a("s_cbranch_scc1 K_SP0")
    flag_poll(a, "K_FP")
    a.label("K_SP0")
    a("s_waitcnt vmcnt(0)")
    a("s_barrier")
    a("s_cmp_ge_u32 s38, 4")
    a("s_cbranch_scc1 K_SP2")
    a("s_cmp_lg_u32 s38, 0")
    a("s_cbranch_scc1 K_SP1")
    a("s_mov_b64 exec, 3")
    a("buffer_atomic_add v25, v24, s[52:55], 0 offen")
    a("s_mov_b64 exec, -1")
    a.label("K_SP1")
    a("v_lshlrev_b32 v1, 4, v1")
    for ks, ops in att_init():
        for x in ops:
            a(x)
    prof(a, 9)
    a(f"s_setprio {XP_AP}")
    a("s_branch A_B1")
    a.label("K_SP2")
    touch()
    a("s_sub_u32 s38, s38, 4")
    a("s_mov_b32 s39, 0")
    a("s_mov_b32 s85, 0")
    a.label("H_POST")
    vq = VmQ(a)
    VPA, VPT, VP = 145, 146, 147
    head_map(a)
    a("s_mul_i32 s58, s38, 5376")
    a(f"s_mul_i32 s49, s36, {HEAD_KV}")
    a("s_add_u32 s59, s49, s58")
    a("s_mov_b32 s44, s59")
    srd_off(a, 28, 8, 9, WS_CNT, SZ_CNT)
    a("s_lshl_b32 s3, s36, 11")
    a(f"s_add_u32 s3, s3, {CNT_Q}")
    a(f"v_lshl_add_u32 v{VPA}, v1, 8, s3")
    a("s_bitcmp1_b32 0x02081040, s36")
    a("s_cselect_b32 s62, 8, 4")
    a(f"v_mov_b32 v{VPT}, s62")
    a(f"v_writelane_b32 v{VPT}, 16, 8")
    a("s_lshl_b32 s62, s62, 15")
    a("s_mov_b32 s63, s37")
    tile_map(a, 50, 51)
    a("s_lshl_b32 s3, s50, 8")
    a(f"s_add_u32 s3, s3, {CNT_H}")
    a(f"v_writelane_b32 v{VPA}, s3, 8")
    a(f"v_mov_b32 v{VP}, 0")
    def ensure(name, mask, first=False):
        a("s_mov_b64 exec, 0x1ff")
        a("s_mov_b32 s47, 0")
        if first:
            a(f"s_branch {name}_L")
        a.label(name)
        if mask is None:
            a(f"v_readlane_b32 s3, v{VP}, s63")
            a("s_cmp_ge_u32 s3, s62")
        else:
            a(f"v_and_b32 v2, 0xffff, v{VP}")
            a(f"v_cmp_lt_u32 vcc, v2, v{VPT}")
            a("s_nop 4")
            a(f"s_and_b32 s3, vcc_lo, {mask}")
            a("s_cmp_eq_u32 s3, 0")
        a(f"s_cbranch_scc1 {name}_OK")
        a(f"s_sleep {XP_SLP}")
        a.label(name + "_L")
        a(f"buffer_load_dword v{VP}, v{VPA}, s[28:31], 0 offen sc1")
        a("s_add_u32 s47, s47, 1")
        a("s_cmp_lt_u32 s47, 0x20000")
        a("s_waitcnt vmcnt(0)")
        a(f"s_cbranch_scc1 {name}")
        a.label(name + "_OK")
        a("s_mov_b64 exec, -1")

    def pre():
        a("v_lshlrev_b32 v16, 4, v1")
        a("v_add_u32 v13, 4096, v16")
        srd_off(a, 12, 8, 9, WS_KV, SZ_KV)
        srd_off(a, 64, 8, 9, WS_Q, SZ_Q)
        a("v_and_b32 v17, 31, v1")
        a("v_lshrrev_b32 v18, 5, v1")
        a("s_lshl_b32 s3, s37, 3")
        a("s_lshl_b32 s48, s38, 1")
        a("s_add_u32 s3, s3, s48")
        a("s_mul_i32 s3, s3, 1280")
        a(f"s_mul_i32 s48, s36, {HEAD_Q}")
        a("s_add_u32 s48, s48, s3")
        a("v_lshlrev_b32 v4, 3, v17")
        a("v_lshl_add_u32 v5, v18, 8, v4")
        a(f"v_add_u32 v2, {8192 + 1280}, v4")
        a(f"v_mov_b32 v3, {8192 + 1536}")
        a("v_cmp_eq_u32 vcc, 0, v18")
        a("s_nop 1")
        a("v_cndmask_b32 v6, v3, v2, vcc")
    pre()
    srd(a, 52, 42, 43, SZ_WO)
    srd(a, 16, 40, 41, SZ_W2)
    srd_off(a, 24, 8, 9, WS_H, SZ_H)
    a("s_cmp_eq_u32 s38, 0")
    a("s_cselect_b32 s34, 3, 0")
    a("s_and_b32 s34, s34, s39")
    a("s_mov_b32 s35, 0")
    a("s_mul_i32 s40, s51, 160")
    a("s_mul_i32 s41, s38, 20480")
    a(f"s_add_u32 s41, s41, {K2_FFN}")
    a("s_mul_i32 s42, s38, 14")
    a("s_cmp_eq_u32 s38, 3")
    a("s_cselect_b32 s42, 41, s42")
    a("s_mul_i32 s45, s50, 54")
    a("s_add_u32 s45, s45, s42")
    a("s_lshl_b32 s45, s45, 12")
    a("s_mul_i32 s46, s42, 40960")
    a("s_mul_i32 s3, s38, 3072")
    a(f"s_add_u32 s3, s3, {K2_QF}")
    a("v_add_u32 v7, s3, v16")
    for i in range(5):
        a(f"v_add_u32 v2, {64 * i}, v1")
        a("v_mul_u32_u24 v3, 6554, v2")
        a("v_lshrrev_b32 v3, 16, v3")
        a("v_mul_u32_u24 v15, 10, v3")
        a("v_sub_u32 v2, v2, v15")
        a("v_lshrrev_b32 v15, 1, v3")
        a("v_xor_b32 v15, v15, v3")
        a("v_bfe_u32 v15, v15, 2, 1")
        a("v_mul_u32_u24 v15, 12, v15")
        a("v_xor_b32 v3, v3, v15")
        a("v_mul_u32_u24 v3, 1280, v3")
        a("v_lshl_add_u32 v2, v2, 4, v3")
        if 0 < i < 4:
            a(f"v_subrev_u32 v2, {1024 * i}, v2")
        a(f"v_add_u32 v{W2V + i}, s40, v2")
    gw_setup(a, 39, 40, 3456, 41)
    for i in range(5):
        a(f"v_add_u32 v2, {64 * i}, v1")
        wmap(a, WOV + i, 40)
    a("s_cmp_eq_u32 s39, 0")
    a("s_cbranch_scc1 H_NOFREE")
    a("s_waitcnt vmcnt(0)")
    hst(17)
    a("s_barrier")
    a.label("H_NOFREE")
    a("s_setprio 3")
    hst(20)
    ensure("H_P2", None, first=True)
    hst(19)
    for q0, q1, o in ((QA0, QA1, 0), (QB0, QB1, 1280)):
        vq.op(f"buffer_load_dwordx2 {vr(q0, 2)}, v5, s[64:67], s48 offen offset:{o} sc1", "q")
        vq.op(f"buffer_load_dwordx2 {vr(q0 + 2, 2)}, v5, s[64:67], s48 offen offset:{o + 512} sc1", "q")
        vq.op(f"buffer_load_dwordx2 {vr(q1, 2)}, v4, s[64:67], s48 offen offset:{o + 1024} sc1", "q")
    ensure("H_P1", 0x01)
    hst(21)
    vq.op(f"buffer_load_dwordx2 {vr(K0, 2)}, v5, s[12:15], s49 offen sc1", "q")
    vq.op(f"buffer_load_dwordx2 {vr(K0 + 2, 2)}, v5, s[12:15], s49 offen offset:512 sc1", "q")
    vq.op(f"buffer_load_dwordx2 {vr(K1[0], 2)}, v6, s[12:15], s49 offen sc1", "q")

    def kv_issue(buf, tag, sbuf=None, step=1):
        if sbuf is None:
            a(f"s_add_u32 m0, s58, {buf * K2_BUF}")
        else:
            a(f"s_add_u32 m0, s58, s{sbuf}")
        a("s_nop 0")
        for j in range(4):
            vq.op(f"buffer_load_dwordx4 v16, s[12:15], s44 offen offset:{1024 * j} sc1 lds", tag)
        a("s_add_u32 m0, m0, 4096")
        a("s_nop 0")
        vq.op("buffer_load_dwordx4 v13, s[12:15], s44 offen sc1 lds", tag)
        a("s_mov_b64 exec, 0xffff")
        vq.op("buffer_load_dwordx4 v13, s[12:15], s44 offen offset:1024 sc1 lds", tag)
        a("s_mov_b64 exec, -1")
        a(f"s_add_u32 s44, s44, {step * KV_STG}" if step > 0 else f"s_sub_u32 s44, s44, {-step * KV_STG}")

    def kv_pos(p):
        kv_issue(p % 3, f"kv{p}", step=-3 if p & 1 else 4)

    kv_pos(0)
    a("v_mov_b32 v2, 0")
    a(f"v_mov_b32 v3, {K2_FLAG}")
    a("ds_write_b32 v3, v2")
    vq.wait("q")
    hst(22)
    zero_m()
    a(qk1(SA, QA0))
    a(qk1(SB, QB0))
    a(qk2(SA, QA1))
    a(qk2(SB, QB1))
    a(f"ds_write_b128 v7, {vr(QA0, 4)}")
    a(f"ds_write_b128 v7, {vr(QB0, 4)} offset:1024")
    a("s_nop 15")
    a("s_nop 7")
    for s_, m in ((SA, 8), (SB, 9)):
        a(f"v_max3_f32 v{m}, v{s_}, v{s_ + 1}, v{s_ + 2}")
        for i in range(3, 15, 2):
            a(f"v_max3_f32 v{m}, v{m}, v{s_ + i}, v{s_ + i + 1}")
        a(f"v_max_f32 v{m}, v{m}, v{s_ + 15}")
    set_m2(8, 9)
    a(f"ds_write_b128 v7, {vr(QA1, 4)} offset:2048")
    a("v_mov_b32 v4, 1")
    a("v_lshlrev_b32 v5, 8, v1")
    vq.wait("kv0")
    a("s_waitcnt lgkmcnt(0)")
    hst(23)
    a("s_setprio 0")
    a("s_barrier")
    ensure("H_P3", 0x12)
    kv_pos(1)
    kv_pos(2)

    class TA:
        def __init__(self, tag):
            self.tag = tag

        def __call__(self, x):
            if x.startswith("buffer_"):
                vq.op(x, self.tag)
            else:
                a(x)

    def issue(tag, pieces):
        for p in pieces:
            for x in p:
                TA(tag)(x)
    vq.wait("kv1")
    hst(24)
    a("s_barrier")
    a("s_mov_b64 exec, s[34:35]")
    a("buffer_atomic_add v4, v5, s[28:31], s85 offen")
    a("s_mov_b64 exec, -1")
    issue("f0", gw_piecesW(0))
    issue("f1", gw_piecesW(1))

    def wo_issue(groups):
        for jj in groups:
            if jj < 4:
                a(f"s_lshl_b32 s56, s38, 2")
                a(f"s_add_u32 s56, s56, {jj}")
                a(f"s_add_u32 s57, s41, {5120 * jj}")
            else:
                a("s_add_u32 s56, s38, 16")
                a("s_mul_i32 s57, s38, 5120")
                a(f"s_add_u32 s57, s57, {K2_W4}")
            a("s_mul_i32 s56, s56, 40960")
            for i in range(5):
                a(f"s_add_u32 m0, s57, {1024 * i}")
                a("s_nop 0")
                vq.op(f"buffer_load_dwordx4 v{WOV + i}, s[52:55], s56 offen lds", "wo")

    j = 0
    for k in range(8):
        if k:
            vq.wait(f"kv{k + 1}")
            hst(25 + k)
            a("s_barrier")
            if k == 1:
                ensure("H_P4", 0x1ff, first=True)
                vq.q = []
                hst(25)
                issue("f0", gw_piecesA(0))
                issue("f1", gw_piecesA(1))
            if k + 2 < 8:
                kv_pos(k + 2)
        if k < len(XP_FS):
            for _ in range(XP_FS[k]):
                vq.wait(f"f{j}")
                if j == 13:
                    a("s_cmp_ge_u32 s38, 2")
                    a("s_cbranch_scc1 K2_FSKIP")
                gw_compute_pipe(TA(f"f{j + 2}"), j & 1, j == 0,
                                gw_piecesA(j & 1) + gw_piecesW(j & 1) if j + 2 < 14 else [])
                j += 1
            if j == 14:
                a.label("K2_FSKIP")
                wo_issue([0, 1])
        if k == 6:
            wo_issue([2, 3, 4])
    assert j == 14 and len(XP_FS) in (6, 7)
    srd_off(a, 20, 8, 9, WS_O, SZ_O)
    a("s_mul_i32 s60, s38, 10240")
    a("v_add_u32 v148, s60, v16")
    a("s_xor_b32 s60, s38, 2")
    a("s_mul_i32 s60, s60, 10240")
    a("v_add_u32 v149, s60, v16")
    a("s_xor_b32 s60, s38, 3")
    a("s_mul_i32 s60, s60, 10240")
    a("v_add_u32 v150, s60, v16")
    a("s_mul_i32 s60, s38, 2560")
    a(f"s_add_u32 s60, s60, {K2_B}")
    a("v_lshlrev_b32 v2, 3, v1")
    a("v_add_u32 v151, s60, v2")
    a("s_add_u32 s38, s38, 4")
    a("s_mov_b32 s39, 0")
    if PROF:
        hst(33)
        prof_init(a, 38)
        a("s_add_u32 s91, s91, 0x80000")
        a("v_mov_b32 v2, 0")
        for q in range(9):
            a(f"buffer_store_dwordx4 {vr(96 + 4 * q, 4)}, v2, s[92:95], s91 offen offset:{16 * q}")
        a("s_sub_u32 s91, s91, 0x80000")
    a.label("K2_FB8")
    a("s_barrier")
    for n in range(5):
        for t in (2, 3):
            a(f"ds_write_b128 v148, {vr(GW.ACC + 4 * (n * 4 + t), 4)} offset:{(n * 2 + t - 2) * 1024}")
    a("s_waitcnt vmcnt(0) lgkmcnt(0)")
    a("s_barrier")
    a(f"v_mov_b32 v3, {K2_FLAG}")
    a("ds_read_b32 v2, v3")
    for q in range(10):
        a(f"ds_read_b128 {vr(24 + 4 * q, 4)}, v149 offset:{q * 1024}")
    a("s_waitcnt lgkmcnt(10)")
    a("v_readfirstlane_b32 s47, v2")
    a("s_andn2_b32 s47, s47, s39")
    a("s_cmp_lg_u32 s47, 0")
    a("s_cbranch_scc1 K2_SERV")
    for q in range(10):
        n, t = q >> 1, q & 1
        d = GW.ACC + 4 * (n * 4 + t)
        a(f"s_waitcnt lgkmcnt({9 - q})")
        for e in (0, 2):
            a(f"v_pk_add_f32 {vr(d + e, 2)}, {vr(d + e, 2)}, {vr(24 + 4 * q + e, 2)}")
    for n in range(5):
        a(f"ds_write_b128 v149, {vr(GW.ACC + 4 * (n * 4 + 1), 4)} offset:{n * 1024}")
    a("s_branch K2_TAIL")
    a.label("K2_SERV")
    a("s_waitcnt lgkmcnt(0)")
    a("s_barrier")
    a.label("K2_SPASS")
    a("s_mov_b32 s44, s59")
    kv_issue(0, "x")
    kv_issue(1, "x")
    a("s_mov_b32 s40, 0")
    a(f"s_mov_b32 s43, {2 * K2_BUF}")
    a.label("K2_SSTAGE")
    a("s_waitcnt vmcnt(0)")
    a("s_barrier")
    a("s_cmp_ge_u32 s40, 6")
    a("s_cbranch_scc1 K2_SNO")
    kv_issue(0, "x", sbuf=43)
    a(f"s_add_u32 s43, s43, {K2_BUF}")
    a(f"s_cmp_eq_u32 s43, {3 * K2_BUF}")
    a("s_cselect_b32 s43, 0, s43")
    a.label("K2_SNO")
    a("s_add_u32 s40, s40, 1")
    a("s_cmp_lt_u32 s40, 8")
    a("s_cbranch_scc1 K2_SSTAGE")
    a("s_cmp_lg_u32 s39, 0")
    a("s_cbranch_scc1 K2_SDONE")
    a("s_barrier")
    a("s_mov_b32 s39, 1")
    a("s_branch K2_SPASS")
    a.label("K2_SDONE")
    a("s_sub_u32 s38, s38, 4")
    wo_issue([4])
    a("s_add_u32 s38, s38, 4")
    a("s_branch K2_FB8")
    return a.text()


def main():
    hdr = f"""; {NAME} : one fused kernel (generated by gen10.py, hand-designed)
; @launch grid=(256,1,1) block=(512,1,1) lds={LDS}
.amdgcn_target "amdgcn-amd-amdhsa--gfx950"
.text
.globl {NAME}_kernel
.p2align 8
.type {NAME}_kernel,@function
"""
    tail = f""".section .rodata,"a"
.p2align 6
.amdhsa_kernel {NAME}_kernel
  .amdhsa_next_free_vgpr 256
  .amdhsa_next_free_sgpr 96
  .amdhsa_accum_offset 256
  .amdhsa_group_segment_fixed_size 0
  .amdhsa_kernarg_size 80
  .amdhsa_user_sgpr_count 2
  .amdhsa_user_sgpr_kernarg_segment_ptr 1
  .amdhsa_system_sgpr_workgroup_id_x 1
.end_amdhsa_kernel
"""
    open(OUT, "w").write(hdr + kernel() + tail)


if __name__ == "__main__":
    main()
```
